```python
import torch

def _softmax(x, axis=-1):
    return torch.softmax(x, dim=axis)
def _gelu(x):
    return torch.nn.functional.gelu(x, approximate="tanh")
def _silu(x):
    return torch.nn.functional.silu(x)
def _sigmoid(x):
    return torch.sigmoid(x)
def _layernorm(x, axis=-1, eps=1e-5):
    m = x.mean(dim=axis, keepdim=True)
    v = x.var(dim=axis, keepdim=True, unbiased=False)
    return (x - m) / torch.sqrt(v + eps)
def _scatter_add(tgt, idx, src, axis=0):
    return tgt.clone().index_add_(axis, idx, src)
def _segment_sum(src, seg, n):
    out = torch.zeros((n,) + src.shape[1:], dtype=src.dtype)
    return out.index_add_(0, seg, src)
def _pad(x, pw):
    flat = tuple(v for pair in reversed(pw) for v in pair)
    return torch.nn.functional.pad(x, flat)

kernel_name = 'sequential_preLN__spectral_gfnet__mixer_token_mlp__prompt'

def setup_inputs():

    _w = (lambda a: (lambda t: t.to(torch.bfloat16) if t.is_floating_point() else t)(torch.as_tensor(a)))
    def _A_setup():
        B, S, D = 1, 2048, 1024
        Df = D // 2 + 1
        return {
            "x": _w((lambda *s: torch.randn(*s, dtype=torch.bfloat16) * 0.05)(B, S, D)),
            "w_r": _w((lambda *s: torch.randn(*s, dtype=torch.bfloat16) * 0.4)(S, Df) * 0.02),
            "w_i": _w((lambda *s: torch.randn(*s, dtype=torch.bfloat16) * 0.4)(S, Df) * 0.02),
        }
    _A_in = _A_setup()

    def _B_setup():
        B, S, D, F = 1, 2048, 1024, 3584
        return {
            "x": _w((lambda *s: torch.randn(*s, dtype=torch.bfloat16) * 0.05)(B, S, D)),
            "w1": _w((lambda *s: torch.randn(*s, dtype=torch.bfloat16) * 0.4)(S, F) * (S ** -0.5)),
            "b1": _w((lambda *s: torch.randn(*s, dtype=torch.bfloat16) * 3.2)(F) * 0.02),
            "w2": _w((lambda *s: torch.randn(*s, dtype=torch.bfloat16) * 0.8)(F, S) * (F ** -0.5)),
            "b2": _w((lambda *s: torch.randn(*s, dtype=torch.bfloat16) * 3.2)(S) * 0.02),
        }
    _B_in = _B_setup()

    return {
        "A_x": _A_in["x"],
        "A_w_r": _A_in["w_r"],
        "A_w_i": _A_in["w_i"],
        "B_x": _B_in["x"],
        "B_w1": _B_in["w1"],
        "B_b1": _B_in["b1"],
        "B_w2": _B_in["w2"],
        "B_b2": _B_in["b2"],
    }

def reference(A_x, A_w_r, A_w_i, B_x, B_w1, B_b1, B_w2, B_b2):
    def _A_ref(x, w_r, w_i):
        B, S, D = x.shape
        X = (lambda x, axes=(-2,-1): torch.fft.rfft2(x.float(), dim=axes))(x, axes=(-2, -1))
        W = w_r + 1j * w_i
        X = X * W
        y = (lambda x, s, axes=(-2,-1): torch.fft.irfft2(x, s=s, dim=axes).to(torch.bfloat16))(X, (S, D), axes=(-2, -1))
        return y

    def _B_ref(x, w1, b1, w2, b2):
        B, S, D = x.shape
        h = _layernorm(x, axis=-1)
        u = torch.einsum("bsd,sf->bdf", h, w1) + b1
        u = _gelu(u)
        y = torch.einsum("bdf,fs->bds", u, w2) + b2
        return (lambda x, *d: x.permute(*d))(y, 0, 2, 1)

    x = A_x
    h = x + _A_ref(_layernorm(x, axis=-1), A_w_r, A_w_i)
    h2 = h + _B_ref(_layernorm(h, axis=-1), B_w1, B_b1, B_w2, B_b2)
    return h2
```

```python
import re

def vr(a, n=1):
    return f"v{a}" if n == 1 else f"v[{a}:{a+n-1}]"
def sr(a, n=1):
    return f"s{a}" if n == 1 else f"s[{a}:{a+n-1}]"
def ar(a, n=1):
    return f"a{a}" if n == 1 else f"a[{a}:{a+n-1}]"

_reg_re = re.compile(r'(?<![\w.])(-?)(?:abs\()?(\|?)([vsa])(?:(\d+)\b|\[(\d+):(\d+)\])')
def regs_of(tok):
    out = set()
    t = tok.strip()
    if t in ('vcc', 'vcc_lo', 'vcc_hi'):
        return {('s', 'vcc')}
    if t == 'exec': return {('s', 'exec')}
    if t == 'm0': return {('s', 'm0')}
    for m in _reg_re.finditer(t):
        k = m.group(3)
        if m.group(4) is not None:
            out.add((k, int(m.group(4))))
        else:
            for i in range(int(m.group(5)), int(m.group(6)) + 1): out.add((k, i))
    return out

TRANS = ('v_exp_f32', 'v_log_f32', 'v_rcp_f32', 'v_rsq_f32', 'v_sqrt_f32', 'v_sin_f32', 'v_cos_f32')

class Ins:
    __slots__ = ('text', 'op', 'dst', 'src', 'kind', 'ws', 'passes', 'srcC', 'dpp', 'store_data', 'sdst')
    def __init__(self, text):
        self.text = text
        s = text.split(';')[0].strip()
        self.op = None; self.dst = set(); self.src = set(); self.kind = 'other'; self.ws = 1
        self.passes = 0; self.srcC = set(); self.dpp = False; self.store_data = set(); self.sdst = set()
        if not s or s.endswith(':') or s.startswith('.'):
            self.kind = 'label' if s.endswith(':') else 'none'; self.ws = 0; return
        parts = s.split(None, 1)
        op = parts[0]; self.op = op
        rest = parts[1] if len(parts) > 1 else ''
        ops = []; depth = 0; cur = ''
        for ch in rest:
            if ch in '[(': depth += 1
            if ch in '])': depth -= 1
            if ch == ',' and depth == 0: ops.append(cur.strip()); cur = ''
            else: cur += ch
        if cur.strip(): ops.append(cur.strip())
        R = [regs_of(o.split(' ')[0] if not o.startswith('abs(') else o.split(' ')[0]) for o in ops]
        base = op.replace('_e32', '').replace('_e64', '').replace('_dpp', '').replace('_sdwa', '')
        if op == 's_nop':
            self.kind = 'nop'; self.ws = int(ops[0], 0) + 1; return
        if op.startswith('v_mfma'):
            self.kind = 'mfma'
            self.passes = 8 if '32x32x16' in op else (4 if '16x16x32' in op else 16)
            self.dst = R[0]; self.src = R[1] | R[2] | R[3]; self.srcC = R[3]
            return
        if op.startswith('v_'):
            self.kind = 'valu'
            self.dpp = ('_dpp' in op) or ('quad_perm' in s) or ('row_' in s)
            if base.startswith('v_cmp'):
                self.sdst = R[0]; self.src = set().union(*R[1:])
                if base.startswith('v_cmpx'): self.sdst |= {('s', 'exec')}
            elif base in ('v_readlane_b32', 'v_readfirstlane_b32'):
                self.sdst = R[0]; self.src = set().union(*R[1:]); self.kind = 'valu'
            elif base.startswith('v_permlane') and 'swap' in base:
                self.dst = R[0] | R[1]; self.src = R[0] | R[1]
            elif base in ('v_add_co_u32', 'v_sub_co_u32', 'v_addc_co_u32', 'v_subb_co_u32'):
                self.dst = R[0]; self.sdst = R[1]; self.src = set().union(*R[2:])
            else:
                self.dst = R[0]; self.src = set().union(*R[1:]) if len(R) > 1 else set()
                if base in ('v_fmac_f32', 'v_pk_fmac_f16', 'v_dot2c_f32_bf16', 'v_writelane_b32') or self.dpp:
                    self.src |= R[0]
                if base == 'v_cndmask_b32' and len(ops) == 3: self.src |= {('s', 'vcc')}
            return
        if op.startswith('ds_'):
            self.kind = 'ds'
            if op.startswith('ds_read') or op.startswith('ds_bpermute') or op.startswith('ds_swizzle') or op.startswith('ds_permute'):
                self.dst = R[0]; self.src = set().union(*R[1:]) if len(R) > 1 else set()
            else:
                self.src = set().union(*R)
            return
        if op.startswith('buffer_') or op.startswith('global_'):
            self.kind = 'vmem'
            lds = bool(re.search(r'\blds\b', s)) or '_lds_' in op
            if 'load' in op and not lds:
                self.dst = R[0]; self.src = set().union(*R[1:])
            elif 'atomic' in op and re.search(r'\bsc0\b', s):
                self.dst = R[0]; self.src = set().union(*R)
            else:
                self.src = set().union(*R) if R else set()
                if lds: self.src |= {('s', 'm0')}
                if 'store' in op and ('x4' in op or 'x3' in op):
                    self.store_data = R[0] if op.startswith('buffer_') else R[1]
            return
        if op.startswith('s_'):
            self.kind = 'salu'
            if op in ('s_waitcnt', 's_barrier', 's_endpgm', 's_branch', 's_setprio', 's_sleep') or op.startswith('s_cbranch') or op.startswith('s_cmp') or op.startswith('s_bitcmp'):
                self.src = set().union(*R) if R else set()
            else:
                self.dst = R[0] if R else set(); self.src = set().union(*R[1:]) if len(R) > 1 else set()
            return

def need(prod, cons):
    n = 0
    vdst = {r for r in prod.dst if r[0] in 'va'}
    if prod.kind == 'valu':
        if cons.kind == 'mfma' and vdst & cons.src: n = max(n, 2)
        if cons.kind == 'valu':
            if cons.dpp and vdst & cons.src: n = max(n, 2)
            if cons.op.startswith('v_permlane') and vdst & cons.src: n = max(n, 2)
            if cons.op.startswith(('v_readlane', 'v_readfirstlane')) and vdst & cons.src: n = max(n, 1)
            if prod.op.replace('_e32', '').replace('_e64', '') in TRANS and vdst & cons.src: n = max(n, 1)
            if prod.sdst & cons.src:
                n = max(n, 4 if cons.op.startswith(('v_readlane', 'v_writelane')) else 2)
            if ('s', 'exec') in prod.sdst: n = max(n, 5 if cons.dpp else 0)
        if cons.kind == 'mfma' and ('s', 'exec') in prod.sdst: n = max(n, 4)
        if cons.kind == 'vmem' and prod.sdst & cons.src: n = max(n, 5)
        if cons.kind in ('salu',) and prod.sdst & cons.src: n = max(n, 1)
        if cons.kind == 'ds' and prod.sdst & cons.src: n = max(n, 5)
    if prod.kind == 'mfma':
        p = prod.passes
        big = {4: 8, 8: 12, 16: 20}[p]
        if cons.kind == 'mfma':
            a_b = cons.src - cons.srcC
            if prod.dst & a_b: n = max(n, big)
            if prod.dst & cons.srcC:
                if not (prod.dst == cons.srcC and prod.passes == cons.passes): n = max(n, {4: 6, 8: 10, 16: 18}[p])
            if prod.dst & cons.dst and not (prod.dst == cons.dst and cons.srcC == cons.dst) :
                n = max(n, {4: 6, 8: 10, 16: 18}[p])
        elif cons.kind in ('valu', 'ds', 'vmem'):
            if prod.dst & (cons.src | cons.dst): n = max(n, big)
            if cons.kind == 'valu' and prod.srcC & cons.dst: n = max(n, {4: 3, 8: 7, 16: 15}[p])
    if prod.kind == 'vmem' and prod.store_data:
        if prod.store_data & cons.dst: n = max(n, 2 if cons.kind == 'valu' else 1)
    if prod.kind == 'salu' and ('s', 'm0') in prod.dst and cons.kind == 'vmem' and ('s', 'm0') in cons.src:
        n = max(n, 1)
    return n

LOOK = 24
def fix_hazards(lines):
    out = []
    labels = {}
    def pad_before(cons, hist):
        k = 0; dist = 0
        for p in reversed(hist):
            if p.kind in ('label', 'none'): continue
            r = need(p, cons)
            if r > dist: k = max(k, r - dist)
            dist += p.ws
            if dist >= LOOK: break
        return k
    def emit_nops(k):
        while k > 0:
            m = min(k, 16); out.append(Ins(f"    s_nop {m-1}")); k -= m
    for ln in lines:
        ins = Ins(ln)
        if ins.kind == 'label':
            labels[ln.strip()[:-1]] = len(out)
            out.append(ins); continue
        if ins.kind == 'none':
            out.append(ins); continue
        k = pad_before(ins, out)
        emit_nops(k)
        if ins.op and (ins.op.startswith('s_cbranch') or ins.op == 's_branch'):
            tgt = ins.text.split(';')[0].split()[-1]
            if tgt in labels:
                head = [x for x in out[labels[tgt]:labels[tgt] + 40] if x.kind not in ('label', 'none')]
                worst = 0; d = 1
                for hcons in head:
                    dist = d;
                    for p in reversed(out):
                        if p.kind in ('label', 'none'): continue
                        r = need(p, hcons)
                        if r > dist: worst = max(worst, r - dist)
                        dist += p.ws
                        if dist >= LOOK: break
                    d += hcons.ws
                    if d >= LOOK: break
                emit_nops(worst)
        out.append(ins)
    return [i.text for i in out]

class Kern:
    def __init__(self, name):
        self.name = name; self.l = []
    def e(self, s):
        for x in s.split('\n'):
            x = x.strip()
            if not x: continue
            self.l.append(x if x.endswith(':') else '    ' + x)
    def __call__(self, s): self.e(s)
    def text(self):
        body = fix_hazards(self.l)
        return f".globl {self.name}\n.p2align 8\n.type {self.name},@function\n{self.name}:\n" + "\n".join(body) + "\n"

def descriptor(name, vgpr, sgpr=96, accum=None):
    if accum is None: accum = (vgpr + 3) // 4 * 4
    return f""".p2align 6
.amdhsa_kernel {name}
  .amdhsa_next_free_vgpr {vgpr}
  .amdhsa_next_free_sgpr {sgpr}
  .amdhsa_accum_offset {accum}
  .amdhsa_group_segment_fixed_size 0
  .amdhsa_kernarg_size 88
  .amdhsa_user_sgpr_count 2
  .amdhsa_user_sgpr_kernarg_segment_ptr 1
  .amdhsa_system_sgpr_workgroup_id_x 1
.end_amdhsa_kernel
"""
```

```python
import sys, math, struct
sys.path.insert(0, 'work')
from asmlib import *

ZW_OFF = 0x0          ; ZW_SIZE = 257*32768
VB_OFF = 0x900000     ; VB_BLK = 257*64 ; VB_SIZE = 256*VB_BLK + 1024
H_OFF  = 0xE00000
HN_OFF = 0x1200000
GT_OFF = 0x1600000
WS_USED = 0x1D00000
S, D, F = 2048, 1024, 3584

def f32(x):
    return '0x%08x' % struct.unpack('<I', struct.pack('<f', x))[0]

CVT = 'v_cvt_pk_bf16_f32'
MF32 = 'v_mfma_f32_32x32x16_bf16'

def srd(k, s, base, size, off=0):
    if off:
        k(f"s_add_u32 s{s}, s{base}, {hex(off)}")
        k(f"s_addc_u32 s{s+1}, s{base+1}, 0")
    else:
        k(f"s_mov_b32 s{s}, s{base}")
        k(f"s_mov_b32 s{s+1}, s{base+1}")
    k(f"s_mov_b32 s{s+2}, {hex(size)}")
    k(f"s_mov_b32 s{s+3}, 0x20000")

SEQ = [(r, c) for r in range(4) for c in range(4)]

def gen_matrix(k, Mr, Mi, vA, vB, t):
    ang, a5, tC, tS = t, t+1, t+2, t+3
    k(f"v_mov_b32 v{ang}, v{vB}")
    k(f"v_mul_f32 v{a5}, 5.0, v{vA}" if False else f"v_mul_f32 v{a5}, {f32(5.0)}, v{vA}")
    for i, (r, c) in enumerate(SEQ):
        k(f"v_cos_f32 v{tC}, v{ang}")
        k(f"v_sin_f32 v{tS}, v{ang}")
        if i < 15: k(f"v_add_f32 v{ang}, v{ang}, v{a5 if c == 3 else vA}")
        k(f"{CVT} v{Mr+i}, v{tC}, v{tS}")
        k(f"{CVT} v{Mi+i}, -v{tS}, v{tC}")

def gen_twiddle(k, twr, twi, vA, vB, t):
    ang, a5 = t, t+1
    k(f"v_mov_b32 v{ang}, v{vB}")
    k(f"v_mul_f32 v{a5}, {f32(5.0)}, v{vA}")
    for i, (r, c) in enumerate(SEQ):
        k(f"v_cos_f32 v{twr+i}, v{ang}")
        k(f"v_sin_f32_e64 v{twi+i}, -v{ang}")
        if i < 15: k(f"v_add_f32 v{ang}, v{ang}, v{a5 if c == 3 else vA}")

def stage(k, typ, Dr, Di, data, Mr, Mi, first=True):
    for r in range(4):
        for (Dx, M) in ((Dr, Mr), (Di, Mi)):
            c = '0' if (r == 0 and first) else vr(Dx, 16)
            if typ == 'A': k(f"{MF32} {vr(Dx,16)}, {vr(data+4*r,4)}, {vr(M+4*r,4)}, {c}")
            else:          k(f"{MF32} {vr(Dx,16)}, {vr(M+4*r,4)}, {vr(data+4*r,4)}, {c}")

def cmul_pack(k, Dr, Di, wr, wi, out, t, conj=False):
    for jj in range(0, 16, 4):
        T = [t + 8*((jj//4) % 2) + 2*i for i in range(4)]
        for pi, j in enumerate((jj, jj+2)):
            pass
    for j in range(0, 16, 2):
        b = t + 4*((j//2) % 4)
        R, I = b, b+2
        k(f"v_pk_mul_f32 {vr(R,2)}, {vr(Dr+j,2)}, {vr(wr+j,2)}")
        k(f"v_pk_mul_f32 {vr(I,2)}, {vr(Dr+j,2)}, {vr(wi+j,2)}")
        k(f"v_pk_fma_f32 {vr(R,2)}, {vr(Di+j,2)}, {vr(wi+j,2)}, {vr(R,2)} neg_lo:[1,0,0] neg_hi:[1,0,0]")
        k(f"v_pk_fma_f32 {vr(I,2)}, {vr(Di+j,2)}, {vr(wr+j,2)}, {vr(I,2)}")
        n = '-' if conj else ''
        k(f"{CVT} v{out+j}, v{R}, {n}v{I}")
        k(f"{CVT} v{out+j+1}, v{R+1}, {n}v{I+1}")

def wave_reduce2(k, a, b):
    for m in ("quad_perm:[1,0,3,2] row_mask:0xf", "quad_perm:[2,3,0,1] row_mask:0xf", "row_half_mirror row_mask:0xf",
              "row_mirror row_mask:0xf", "row_bcast:15 row_mask:0xa", "row_bcast:31 row_mask:0xc"):
        k(f"v_add_f32_dpp v{a}, v{a}, v{a} {m} bank_mask:0xf")
        k(f"v_add_f32_dpp v{b}, v{b}, v{b} {m} bank_mask:0xf")

def tree_sum(k, X, n, t, op='add'):
    acc = [t, t+2, t+4, t+6]
    for i in range(4):
        k(f"v_pk_add_f32 {vr(acc[i],2)}, {vr(X+2*i,2)}, {vr(X+2*(i+4),2)}")
    for i in range(8, n):
        k(f"v_pk_add_f32 {vr(acc[i%4],2)}, {vr(acc[i%4],2)}, {vr(X+2*i,2)}")
    k(f"v_pk_add_f32 {vr(acc[0],2)}, {vr(acc[0],2)}, {vr(acc[1],2)}")
    k(f"v_pk_add_f32 {vr(acc[2],2)}, {vr(acc[2],2)}, {vr(acc[3],2)}")
    k(f"v_pk_add_f32 {vr(acc[0],2)}, {vr(acc[0],2)}, {vr(acc[2],2)}")

def ln_stats_xrow(k, X, t, sM, sR, sTmp):
    tree_sum(k, X, 16, t)
    wave_reduce2(k, t, t+1)
    k(f"v_mul_f32 v{t}, {f32(1/1024)}, v{t}")
    k(f"v_mul_f32 v{t+1}, {f32(1/1024)}, v{t+1}")
    k(f"{CVT} v{t+2}, v{t}, v{t+1}")
    k(f"v_readlane_b32 s{sTmp}, v{t}, 63")
    k(f"v_readlane_b32 s{sTmp+1}, v{t+1}, 63")
    k(f"v_lshlrev_b32 v{t+12}, 16, v{t+2}")
    k(f"v_and_b32 v{t+13}, 0xffff0000, v{t+2}")
    acc = [t, t+2]; tmp = [t+4, t+6, t+8, t+10]
    for i in range(16):
        d = tmp[i % 4]
        k(f"v_pk_add_f32 {vr(d,2)}, {vr(X+2*i,2)}, {sr(sTmp,2)} neg_lo:[0,1] neg_hi:[0,1]")
        a = acc[i % 2]
        if i < 2: k(f"v_pk_mul_f32 {vr(a,2)}, {vr(d,2)}, {vr(d,2)}")
        else:     k(f"v_pk_fma_f32 {vr(a,2)}, {vr(d,2)}, {vr(d,2)}, {vr(a,2)}")
    k(f"v_pk_add_f32 {vr(t,2)}, {vr(t,2)}, {vr(t+2,2)}")
    wave_reduce2(k, t, t+1)
    k(f"v_mul_f32 v{t}, {f32(1/1024)}, v{t}")
    k(f"v_mul_f32 v{t+1}, {f32(1/1024)}, v{t+1}")
    k(f"{CVT} v{t+2}, v{t}, v{t+1}")
    k(f"v_lshlrev_b32 v{t}, 16, v{t+2}")
    k(f"v_and_b32 v{t+1}, 0xffff0000, v{t+2}")
    k(f"v_add_f32 v{t}, {f32(1e-5)}, v{t}")
    k(f"v_add_f32 v{t+1}, {f32(1e-5)}, v{t+1}")
    k(f"{CVT} v{t+2}, v{t}, v{t+1}")
    k(f"v_lshlrev_b32 v{t}, 16, v{t+2}")
    k(f"v_and_b32 v{t+1}, 0xffff0000, v{t+2}")
    k(f"v_sqrt_f32 v{t}, v{t}")
    k(f"v_sqrt_f32 v{t+1}, v{t+1}")
    k(f"s_nop 0")
    k(f"{CVT} v{t+2}, v{t}, v{t+1}")
    k(f"v_lshlrev_b32 v{t}, 16, v{t+2}")
    k(f"v_and_b32 v{t+1}, 0xffff0000, v{t+2}")
    k(f"v_rcp_f32 v{t}, v{t}")
    k(f"v_rcp_f32 v{t+1}, v{t+1}")
    k(f"s_nop 0")
    k(f"v_mul_f32 v{t+12}, v{t+12}, v{t}")
    k(f"v_mul_f32 v{t+13}, v{t+13}, v{t+1}")
    k(f"v_readlane_b32 s{sR}, v{t}, 63")
    k(f"v_readlane_b32 s{sR+1}, v{t+1}, 63")
    k(f"v_readlane_b32 s{sM}, v{t+12}, 63")
    k(f"v_readlane_b32 s{sM+1}, v{t+13}, 63")

def gen_p1():
    k = Kern('p1_kernel')
    k("s_cmp_ge_u32 s2, 256")
    k("s_cbranch_scc1 L_p1_end")
    k("s_load_dwordx4 s[4:7], s[0:1], 0")
    k("s_load_dwordx2 s[24:25], s[0:1], 16")
    k("s_load_dwordx2 s[26:27], s[0:1], 80")
    TID, LANE = 0, 1
    k("v_and_b32 v1, 63, v0")
    k("v_lshrrev_b32 v2, 6, v0")
    k("v_readfirstlane_b32 s28, v2")
    k("s_lshr_b32 s29, s2, 5")
    k("s_lshl_b32 s29, s29, 2")
    k("s_and_b32 s30, s2, 31")
    k("s_add_u32 s31, s29, s28")
    k("s_lshl_b32 s31, s31, 5")
    k("s_add_u32 s31, s31, s30")
    k("s_lshl_b32 s31, s31, 11")
    k("s_add_u32 s32, s31, 0x200000")
    k("s_waitcnt lgkmcnt(0)")
    srd(k, 8, 4, S*D*2)
    srd(k, 12, 6, S*513*2)
    srd(k, 16, 24, S*513*2)
    srd(k, 20, 26, 257*32768, ZW_OFF)
    XL = 4
    k("v_lshlrev_b32 v2, 4, v1")
    k(f"buffer_load_dwordx4 {vr(XL,4)}, v2, s[8:11], s31 offen")
    k(f"buffer_load_dwordx4 {vr(XL+4,4)}, v2, s[8:11], s31 offen offset:1024")
    k(f"buffer_load_dwordx4 {vr(XL+8,4)}, v2, s[8:11], s32 offen")
    k(f"buffer_load_dwordx4 {vr(XL+12,4)}, v2, s[8:11], s32 offen offset:1024")
    WL = 20
    k("v_lshlrev_b32 v3, 2, v0")
    k("s_lshl_b32 s33, s29, 6")
    k("s_lshl_b32 s34, s30, 1")
    k("s_add_u32 s33, s33, s34")
    k("s_mul_i32 s33, s33, 1026")
    for pi in range(2):
        for cc in range(4):
            off = (64*cc + pi)*1026
            k(f"s_add_u32 s34, s33, {off}")
            k(f"buffer_load_dword v{WL+4*pi+cc}, v3, s[12:15], s34 offen")
            k(f"buffer_load_dword v{WL+8+4*pi+cc}, v3, s[16:19], s34 offen")
    WX = 200
    k("v_and_b32 v200, 3, v1")
    k("v_lshlrev_b32 v200, 6, v200")
    k("v_bfe_u32 v201, v1, 2, 1")
    k("v_add_u32 v200, v200, v201")
    k("v_mul_u32_u24 v200, 1026, v200")
    k("v_add_u32 v200, 1024, v200")
    k("v_cmp_gt_u32 vcc, 8, v0")
    k("s_and_saveexec_b64 s[36:37], vcc")
    k("s_cbranch_execz L_p1_nox")
    k("buffer_load_ushort v202, v200, s[12:15], s33 offen")
    k("buffer_load_ushort v203, v200, s[16:19], s33 offen")
    k("L_p1_nox:")
    k("s_mov_b64 exec, -1")
    Mr, Mi, TWR, TWI = 36, 52, 68, 84
    XF, DR, DI, OP, T = 100, 132, 148, 164, 180
    k("v_and_b32 v2, 31, v1")
    k("v_cvt_f32_u32 v2, v2")
    k("v_lshrrev_b32 v3, 5, v1")
    k("v_lshlrev_b32 v3, 2, v3")
    k("v_cvt_f32_u32 v3, v3")
    k(f"v_mul_f32 v204, {f32(1/32)}, v2")
    k("v_mul_f32 v205, v204, v3")
    gen_matrix(k, Mr, Mi, 204, 205, T)
    k(f"v_mul_f32 v204, {f32(1/1024)}, v2")
    k("v_mul_f32 v205, v204, v3")
    gen_twiddle(k, TWR, TWI, 204, 205, T)
    k("s_mov_b32 s35, 0xffff0000")
    k("s_waitcnt vmcnt(18)")
    k.l.pop()
    k("s_waitcnt vmcnt(16)")
    for i in range(16):
        for row in range(2):
            src = XL + 8*row + (i >> 1)
            if i % 2 == 0: k(f"v_lshlrev_b32 v{XF+2*i+row}, 16, v{src}")
            else:          k(f"v_and_b32 v{XF+2*i+row}, s35, v{src}")
    ln_stats_xrow(k, XF, T, 38, 40, 42)
    for i in range(16):
        d = T + 2*(i % 4)
        k(f"v_pk_fma_f32 {vr(d,2)}, {vr(XF+2*i,2)}, {sr(40,2)}, {sr(38,2)} neg_lo:[0,0,1] neg_hi:[0,0,1]") if False else None
    k(f"v_mov_b32 v{T+8}, s40"); k(f"v_mov_b32 v{T+9}, s41")
    k(f"v_mov_b32 v{T+10}, s38"); k(f"v_mov_b32 v{T+11}, s39")
    for i in range(16):
        d = T + 2*(i % 4)
        k(f"v_pk_fma_f32 {vr(d,2)}, {vr(XF+2*i,2)}, {vr(T+8,2)}, {vr(T+10,2)} neg_lo:[0,0,1] neg_hi:[0,0,1]")
        k(f"{CVT} v{OP+i}, v{d}, v{d+1}")
    k("s_lshl_b32 s36, s28, 12")
    k("v_lshlrev_b32 v2, 5, v1")
    k("v_add_u32 v2, s36, v2")
    k(f"ds_write_b128 v2, {vr(OP,4)}")
    k(f"ds_write_b128 v2, {vr(OP+4,4)} offset:16")
    k(f"ds_write_b128 v2, {vr(OP+8,4)} offset:2048")
    k(f"ds_write_b128 v2, {vr(OP+12,4)} offset:2064")
    k("v_and_b32 v3, 31, v1")
    k("v_lshlrev_b32 v3, 2, v3")
    k("v_lshrrev_b32 v206, 5, v1")
    k("v_lshlrev_b32 v206, 9, v206")
    k("v_add3_u32 v3, v3, v206, s36")
    k("s_waitcnt lgkmcnt(0)")
    for i, (r, c) in enumerate(SEQ):
        k(f"ds_read_b32 v{OP+i}, v3 offset:{(8*r+c)*128}")
    swz = 44
    k("s_lshr_b32 s44, s2, 1")
    k("s_and_b32 s44, s44, 7")
    k("s_mov_b32 s45, 0x05040100")
    k("s_mov_b32 s46, 0x07060302")
    k("s_waitcnt vmcnt(0)")
    WO = XF
    for e in range(2):
        for pi in range(2):
            for cc in range(4):
                k(f"v_perm_b32 v{WO+4*(2*e+pi)+cc}, v{WL+8+4*pi+cc}, v{WL+4*pi+cc}, s{45+e}")
    k("v_lshlrev_b32 v207, 15, v0")
    k("s_lshl_b32 s47, s2, 7")
    for sl in range(4):
        k(f"s_xor_b32 s48, s44, {4+sl}")
        k("s_lshl_b32 s48, s48, 4")
        k("s_add_u32 s48, s48, s47")
        k(f"buffer_store_dwordx4 {vr(WO+4*sl,4)}, v207, s[20:23], s48 offen")
    k("v_lshlrev_b32 v203, 16, v203")
    k("v_or_b32 v202, v202, v203")
    k("v_bfe_u32 v201, v1, 2, 1")
    k("v_add_u32 v201, 4, v201")
    k("v_xor_b32 v201, s44, v201")
    k("v_lshlrev_b32 v201, 4, v201")
    k("v_and_b32 v203, 3, v1")
    k("v_lshl_add_u32 v201, v203, 2, v201")
    k("s_add_u32 s48, s47, 0x800000")
    k("v_cmp_gt_u32 vcc, 8, v0")
    k("s_and_saveexec_b64 s[36:37], vcc")
    k("s_cbranch_execz L_p1_nox2")
    k("buffer_store_dword v202, v201, s[20:23], s48 offen")
    k("L_p1_nox2:")
    k("s_mov_b64 exec, -1")
    k("s_waitcnt lgkmcnt(0)")
    stage(k, 'A', DR, DI, OP, Mr, Mi)
    cmul_pack(k, DR, DI, TWR, TWI, OP, T)
    stage(k, 'B', DR, DI, OP, Mr, Mi)
    STG = 16384
    k("v_and_b32 v2, 31, v1")
    k("v_lshrrev_b32 v3, 5, v1")
    k("v_and_b32 v206, 1, v2")
    k("v_xor_b32 v207, s44, v206")
    k("v_and_b32 v207, 3, v207")
    k("v_lshlrev_b32 v207, 4, v207")
    k("v_lshrrev_b32 v208, 1, v2")
    k("v_lshl_add_u32 v207, v208, 6, v207")
    k("v_lshl_add_u32 v207, v3, 12, v207")
    k("s_lshl_b32 s48, s28, 2")
    k(f"s_add_u32 s48, s48, {STG}")
    k("v_add_u32 v207, s48, v207")
    k("v_add_u32 v206, 2, v206")
    k("v_xor_b32 v206, s44, v206")
    k("v_and_b32 v206, 3, v206")
    k("v_lshlrev_b32 v206, 4, v206")
    k("v_add_u32 v208, 1, v2")
    k("v_lshrrev_b32 v208, 1, v208")
    k("v_lshlrev_b32 v208, 6, v208")
    k("v_sub_u32 v206, v206, v208")
    k("v_lshlrev_b32 v208, 12, v3")
    k("v_sub_u32 v206, v206, v208")
    k("v_add_u32 v206, s48, v206")
    for i, (r, c) in enumerate(SEQ):
        if r < 2: k(f"{CVT} v{OP+i}, v{DR+i}, v{DI+i}")
        else:     k(f"{CVT} v{OP+i}, v{DI+i}, v{DR+i}")
    k(f"{CVT} v{T}, v{DI}, v{DR}")
    k(f"{CVT} v{T+1}, v{DR+8}, v{DI+8}")
    for i, (r, c) in enumerate(SEQ):
        if r < 2: k(f"ds_write_b32 v207, v{OP+i} offset:{(8*r+c)*1024}")
        else:     k(f"ds_write_b32 v206, v{OP+i} offset:{(32-8*r-c)*1024}")
    k("s_xor_b32 s49, s44, 2")
    k("s_and_b32 s49, s49, 3")
    k("s_lshl_b32 s49, s49, 4")
    k("s_add_u32 s49, s49, s48")
    k("s_and_b32 s50, s44, 3")
    k("s_lshl_b32 s50, s50, 4")
    k("s_add_u32 s50, s50, s48")
    k("v_mov_b32 v208, s49")
    k("v_mov_b32 v209, s50")
    k("s_mov_b64 exec, 1")
    k(f"ds_write_b32 v208, v{T}")
    k(f"ds_write_b32 v209, v{T+1} offset:16384")
    k("s_mov_b64 exec, -1")
    k("s_waitcnt lgkmcnt(0)")
    k("s_barrier")
    k("v_lshlrev_b32 v2, 4, v0")
    k(f"v_add_u32 v2, {STG}, v2")
    for j in range(4):
        k(f"ds_read_b128 {vr(XF+4*j,4)}, v2 offset:{4096*j}")
    k("v_lshrrev_b32 v3, 2, v0")
    k("v_lshlrev_b32 v3, 15, v3")
    k("v_and_b32 v206, 3, v0")
    k("v_lshl_add_u32 v3, v206, 4, v3")
    k("s_and_b32 s48, s44, 4")
    k("s_lshl_b32 s48, s48, 4")
    k("s_add_u32 s48, s48, s47")
    k("v_cmp_gt_u32 vcc, 4, v0")
    k("s_and_saveexec_b64 s[36:37], vcc")
    k("s_cbranch_execz L_p1_nox3")
    k(f"ds_read_b128 {vr(XF+16,4)}, v2 offset:16384")
    k("s_waitcnt lgkmcnt(0)")
    k("s_add_u32 s49, s48, 0x800000")
    k(f"buffer_store_dwordx4 {vr(XF+16,4)}, v3, s[20:23], s49 offen")
    k("L_p1_nox3:")
    k("s_mov_b64 exec, -1")
    k("s_waitcnt lgkmcnt(0)")
    for j in range(4):
        k(f"buffer_store_dwordx4 {vr(XF+4*j,4)}, v3, s[20:23], s48 offen")
        if j < 3: k("s_add_u32 s48, s48, 0x200000")
    k("L_p1_end:")
    k("s_endpgm")
    return k, 216, 32832+64


def gen_p2():
    k = Kern('p2_kernel')
    k("s_cmp_ge_u32 s2, 257")
    k("s_cbranch_scc1 L_p2_end")
    k("s_load_dwordx2 s[26:27], s[0:1], 80")
    k("v_and_b32 v1, 63, v0")
    k("v_lshrrev_b32 v2, 6, v0")
    k("v_readfirstlane_b32 s28, v2")
    k("v_lshlrev_b32 v2, 4, v1")
    k("s_lshr_b32 s29, s28, 1")
    k("s_and_b32 s30, s28, 1")
    k("s_lshl_b32 s31, s2, 15")
    k("s_lshl_b32 s32, s28, 13")
    k("s_add_u32 s31, s31, s32")
    k("s_waitcnt lgkmcnt(0)")
    srd(k, 8, 26, 257*32768, ZW_OFF)
    srd(k, 12, 26, 256*VB_BLK, VB_OFF)
    for i in range(8):
        k(f"s_add_u32 m0, s32, {1024*i}")
        k(f"buffer_load_dwordx4 v2, s[8:11], s31 offen lds")
        if i < 7: k("s_add_u32 s31, s31, 1024")
    Z1, Z2 = 4, 20
    M1r, M1i, MFr, MFi, MIr, MIi = 36, 52, 68, 84, 100, 116
    T1r, T1i, T2r, T2i = 132, 148, 164, 180
    DR, DI, T = 196, 212, 228
    A, B, J, H4, PI = 244, 245, 246, 247, 248
    k(f"v_and_b32 v{J}, 31, v1")
    k(f"v_cvt_f32_u32 v{J}, v{J}")
    k(f"v_lshrrev_b32 v{H4}, 5, v1")
    k(f"v_lshlrev_b32 v{H4}, 2, v{H4}")
    k(f"v_cvt_f32_u32 v{H4}, v{H4}")
    k(f"v_mov_b32 v{PI}, s30")
    k(f"v_cvt_f32_u32 v{PI}, v{PI}")
    k(f"v_mul_f32 v{A}, {f32(1/32)}, v{J}")
    k(f"v_mul_f32 v{B}, v{A}, v{H4}")
    gen_matrix(k, MFr, MFi, A, B, T)
    k(f"v_fma_f32 v{A}, v{J}, 2.0, v{PI}")
    k(f"v_mul_f32 v{A}, {f32(1/64)}, v{A}")
    k(f"v_mul_f32 v{B}, v{A}, v{H4}")
    gen_matrix(k, M1r, M1i, A, B, T)
    k("s_lshl_b32 s33, s30, 4")
    k(f"v_and_b32 v{T}, 31, v1")
    k(f"v_xor_b32 v{T}, s33, v{T}")
    k(f"v_cvt_f32_u32 v{T}, v{T}")
    k(f"v_mul_f32 v{A}, {f32(1/32)}, v{T}")
    k(f"v_mul_f32 v{B}, v{A}, v{H4}")
    k(f"v_mul_f32 v{T}, {f32(1/64)}, v{T}")
    k(f"v_fma_f32 v{B}, v{T}, v{PI}, v{B}")
    gen_matrix(k, MIr, MIi, A, B, T)
    k(f"v_fma_f32 v{A}, v{J}, 2.0, v{PI}")
    k(f"v_mul_f32 v{A}, {f32(1/2048)}, v{A}")
    k(f"v_mov_b32 v{T}, {f32(0.125)}")
    k(f"v_mul_f32 v{T+1}, {f32(-0.25)}, v{PI}")
    k(f"v_add_f32 v{T}, v{T}, v{T+1}")
    k(f"v_fma_f32 v{B}, v{A}, v{H4}, v{T}")
    gen_twiddle(k, T1r, T1i, A, B, T)
    k(f"v_mul_f32 v{A}, {f32(1/1024)}, v{J}")
    k(f"v_mul_f32 v{B}, v{A}, v{H4}")
    k(f"v_mul_f32 v{T}, {f32(1/2048)}, v{J}")
    k(f"v_fma_f32 v{B}, v{T}, v{PI}, v{B}")
    gen_twiddle(k, T2r, T2i, A, B, T)
    AZ1, AZ2, AW = 249, 250, 251
    k(f"v_bfe_u32 v{T}, v1, 1, 3")
    k(f"v_lshlrev_b32 v{T+1}, 7, v1")
    k(f"v_xor_b32 v{AZ1}, s29, v{T}")
    k(f"v_lshl_add_u32 v{AZ1}, v{AZ1}, 4, v{T+1}")
    k("s_add_u32 s33, s29, 2")
    k(f"v_xor_b32 v{AZ2}, s33, v{T}")
    k(f"v_lshl_add_u32 v{AZ2}, v{AZ2}, 4, v{T+1}")
    k("s_lshl_b32 s33, s29, 1")
    k("s_add_u32 s33, s33, s30")
    k("s_add_u32 s33, s33, 4")
    k(f"v_xor_b32 v{AW}, s33, v{T}")
    k(f"v_lshl_add_u32 v{AW}, v{AW}, 4, v{T+1}")
    k("s_mul_i32 s34, s30, 0x80008000")
    k("s_mov_b32 s35, 0xffff0000")
    k("s_waitcnt vmcnt(0)")
    k("s_barrier")
    for r in range(4):
        k(f"ds_read_b128 {vr(Z1+4*r,4)}, v{AZ1} offset:{8192*r}")
        k(f"ds_read_b128 {vr(Z2+4*r,4)}, v{AZ2} offset:{8192*r}")
    k("s_waitcnt lgkmcnt(0)")
    for i in range(16):
        k(f"v_xor_b32 v{Z2+i}, s34, v{Z2+i}")
    stage(k, 'A', DR, DI, Z1, M1r, M1i, first=True)
    stage(k, 'A', DR, DI, Z2, M1r, M1i, first=False)
    for r in range(4):
        k(f"ds_read_b128 {vr(Z2+4*r,4)}, v{AW} offset:{8192*r}")
    OP = Z1
    cmul_pack(k, DR, DI, T1r, T1i, OP, T)
    stage(k, 'B', DR, DI, OP, MFr, MFi)
    WR, WI = M1r, M1i
    k("s_waitcnt lgkmcnt(0)")
    for i in range(16):
        k(f"v_lshlrev_b32 v{WR+i}, 16, v{Z2+i}")
        k(f"v_and_b32 v{WI+i}, s35, v{Z2+i}")
    cmul_pack(k, DR, DI, WR, WI, OP, T, conj=True)
    stage(k, 'A', DR, DI, OP, MFr, MFi)
    cmul_pack(k, DR, DI, T2r, T2i, OP, T)
    stage(k, 'B', DR, DI, OP, MIr, MIi)
    XCH, STG = 32768, 49152
    AX = 252
    k("s_lshl_b32 s36, s28, 12")
    k(f"s_add_u32 s36, s36, {XCH}")
    k(f"v_lshl_add_u32 v{AX}, v1, 4, s36")
    k(f"ds_write_b128 v{AX}, {vr(DR+8,4)}")
    k(f"ds_write_b128 v{AX}, {vr(DR+12,4)} offset:1024")
    k(f"ds_write_b128 v{AX}, {vr(DI+8,4)} offset:2048")
    k(f"ds_write_b128 v{AX}, {vr(DI+12,4)} offset:3072")
    k(f"v_xor_b32 v{AX}, 4096, v{AX}")
    k("s_lshl_b32 s37, s2, 1")
    k("s_add_u32 s37, s37, s29")
    k("s_and_b32 s37, s37, 511")
    k("s_cmp_eq_u32 s37, 0")
    k(f"s_cselect_b32 s38, 0, {f32(1.0)}")
    k("s_cmp_eq_u32 s30, 0")
    k(f"s_cselect_b32 s40, {f32(1.0)}, {f32(-1.0)}")
    k("s_lshl_b32 s41, s30, 31")
    k("s_xor_b32 s42, s38, s41")
    k("s_waitcnt lgkmcnt(0)")
    k("s_barrier")
    OR_, OI = 36, 44
    k(f"ds_read_b128 {vr(OR_,4)}, v{AX}")
    k(f"ds_read_b128 {vr(OR_+4,4)}, v{AX} offset:1024")
    k(f"ds_read_b128 {vr(OI,4)}, v{AX} offset:2048")
    k(f"ds_read_b128 {vr(OI+4,4)}, v{AX} offset:3072")
    k(f"v_bfe_u32 v{T}, v1, 1, 2")
    k(f"v_xor_b32 v{T+1}, s29, v{T}")
    k(f"v_xor_b32 v{T+2}, 2, v{T+1}")
    k("s_lshl_b32 s43, s30, 13")
    k(f"s_add_u32 s43, s43, {STG}")
    k(f"v_lshl_add_u32 v{T+3}, v1, 6, s43")
    k(f"v_lshl_add_u32 v253, v{T+1}, 4, v{T+3}")
    k(f"v_lshl_add_u32 v254, v{T+2}, 4, v{T+3}")
    k("s_waitcnt lgkmcnt(0)")
    UA, UB = 52, 60
    Ur, Ui, Er, Ei, Ar, Ai, Br, Bi = 68, 70, 72, 74, 76, 78, 80, 82
    bc = "op_sel_hi:[1,0,1]"
    for j in range(0, 8, 2):
        o = 16*((j//2) % 2)
        ur, ui, er, ei, a_r, a_i, b_r, b_i = [x+o for x in (Ur, Ui, Er, Ei, Ar, Ai, Br, Bi)]
        k(f"v_pk_add_f32 {vr(ur,2)}, {vr(DR+j,2)}, {vr(OR_+j,2)}")
        k(f"v_pk_add_f32 {vr(ui,2)}, {vr(DI+j,2)}, {vr(OI+j,2)}")
        k(f"v_pk_add_f32 {vr(er,2)}, {vr(DR+j,2)}, {vr(OR_+j,2)} neg_lo:[0,1] neg_hi:[0,1]")
        k(f"v_pk_add_f32 {vr(ei,2)}, {vr(DI+j,2)}, {vr(OI+j,2)} neg_lo:[0,1] neg_hi:[0,1]")
        k(f"v_pk_fma_f32 {vr(a_r,2)}, {vr(ei,2)}, s[42:43], {vr(ur,2)} {bc}")
        k(f"v_pk_fma_f32 {vr(b_r,2)}, {vr(ei,2)}, s[42:43], {vr(ur,2)} {bc} neg_lo:[1,0,0] neg_hi:[1,0,0]")
        k(f"v_pk_mul_f32 {vr(ui,2)}, {vr(ui,2)}, s[38:39] op_sel_hi:[1,0]")
        k(f"v_pk_fma_f32 {vr(a_i,2)}, {vr(er,2)}, s[40:41], {vr(ui,2)} {bc} neg_lo:[1,0,0] neg_hi:[1,0,0]")
        k(f"v_pk_fma_f32 {vr(b_i,2)}, {vr(er,2)}, s[40:41], {vr(ui,2)} {bc} neg_lo:[1,0,1] neg_hi:[1,0,1]")
        k(f"{CVT} v{UA+j}, v{a_r}, v{a_i}")
        k(f"{CVT} v{UA+j+1}, v{a_r+1}, v{a_i+1}")
        k(f"{CVT} v{UB+j}, v{b_r}, v{b_i}")
        k(f"{CVT} v{UB+j+1}, v{b_r+1}, v{b_i+1}")
    for rl in range(2):
        k(f"ds_write_b128 v253, {vr(UA+4*rl,4)} offset:{4096*rl}")
        k(f"ds_write_b128 v254, {vr(UB+4*rl,4)} offset:{4096*rl}")
    k(f"v_and_b32 v{T}, 3, v0")
    k(f"v_bfe_u32 v{T+1}, v0, 3, 2")
    k(f"v_xor_b32 v{T+1}, v{T}, v{T+1}")
    k(f"v_lshrrev_b32 v{T+2}, 2, v0")
    k(f"v_lshlrev_b32 v{T+3}, 6, v{T+2}")
    k(f"v_lshl_add_u32 v{T+3}, v{T+1}, 4, v{T+3}")
    k(f"v_add_u32 v{T+3}, {STG}, v{T+3}")
    k(f"v_mul_u32_u24 v{T+2}, {VB_BLK}, v{T+2}")
    k("s_and_b32 s44, s2, 2")
    k(f"v_xor_b32 v{T}, s44, v{T}")
    k(f"v_lshl_add_u32 v{T+2}, v{T}, 4, v{T+2}")
    k("s_lshl_b32 s45, s2, 6")
    k("s_waitcnt lgkmcnt(0)")
    k("s_barrier")
    for j in range(4):
        k(f"ds_read_b128 {vr(4+4*j,4)}, v{T+3} offset:{4096*j}")
    k("s_waitcnt lgkmcnt(0)")
    for j in range(4):
        k(f"buffer_store_dwordx4 {vr(4+4*j,4)}, v{T+2}, s[12:15], s45 offen")
        if j < 3: k(f"s_add_u32 s45, s45, {64*VB_BLK}")
    k("L_p2_end:")
    k("s_endpgm")
    return k, 256, 65536

def ln_stats_rows(k, R0, R1, t, vRM, sTmp):
    for (R, o) in ((R0, 0), (R1, 4)):
        a, b = t+o, t+o+2
        k(f"v_pk_add_f32 {vr(a,2)}, {vr(R,2)}, {vr(R+2,2)}")
        k(f"v_pk_add_f32 {vr(b,2)}, {vr(R+4,2)}, {vr(R+6,2)}")
    for i in range(4, 8):
        for (R, o) in ((R0, 0), (R1, 4)):
            a = t+o+2*(i % 2)
            k(f"v_pk_add_f32 {vr(a,2)}, {vr(a,2)}, {vr(R+2*i,2)}")
    for o in (0, 4):
        k(f"v_pk_add_f32 {vr(t+o,2)}, {vr(t+o,2)}, {vr(t+o+2,2)}")
    k(f"v_add_f32 v{t}, v{t}, v{t+1}")
    k(f"v_add_f32 v{t+1}, v{t+4}, v{t+5}")
    wave_reduce2(k, t, t+1)
    k(f"v_mul_f32 v{t}, {f32(1/1024)}, v{t}")
    k(f"v_mul_f32 v{t+1}, {f32(1/1024)}, v{t+1}")
    k(f"{CVT} v{t+2}, v{t}, v{t+1}")
    k(f"v_readlane_b32 s{sTmp}, v{t}, 63")
    k(f"v_readlane_b32 s{sTmp+1}, v{t+1}, 63")
    k(f"v_lshlrev_b32 v{t+12}, 16, v{t+2}")
    k(f"v_and_b32 v{t+13}, 0xffff0000, v{t+2}")
    acc = {0: t, 1: t+2}; tmp = [t+4, t+6, t+8, t+10]
    n = 0
    for i in range(8):
        for row, R in ((0, R0), (1, R1)):
            d = tmp[n % 4]; n += 1
            sel = "op_sel_hi:[1,0]" if row == 0 else "op_sel:[0,1] op_sel_hi:[1,1]"
            k(f"v_pk_add_f32 {vr(d,2)}, {vr(R+2*i,2)}, {sr(sTmp,2)} {sel} neg_lo:[0,1] neg_hi:[0,1]")
            a = acc[row]
            if i == 0: k(f"v_pk_mul_f32 {vr(a,2)}, {vr(d,2)}, {vr(d,2)}")
            else:      k(f"v_pk_fma_f32 {vr(a,2)}, {vr(d,2)}, {vr(d,2)}, {vr(a,2)}")
    k(f"v_add_f32 v{t}, v{t}, v{t+1}")
    k(f"v_add_f32 v{t+1}, v{t+2}, v{t+3}")
    wave_reduce2(k, t, t+1)
    k(f"v_mul_f32 v{t}, {f32(1/1024)}, v{t}")
    k(f"v_mul_f32 v{t+1}, {f32(1/1024)}, v{t+1}")
    k(f"{CVT} v{t+2}, v{t}, v{t+1}")
    k(f"v_lshlrev_b32 v{t}, 16, v{t+2}")
    k(f"v_and_b32 v{t+1}, 0xffff0000, v{t+2}")
    k(f"v_add_f32 v{t}, {f32(1e-5)}, v{t}")
    k(f"v_add_f32 v{t+1}, {f32(1e-5)}, v{t+1}")
    k(f"{CVT} v{t+2}, v{t}, v{t+1}")
    k(f"v_lshlrev_b32 v{t}, 16, v{t+2}")
    k(f"v_and_b32 v{t+1}, 0xffff0000, v{t+2}")
    k(f"v_sqrt_f32 v{t}, v{t}")
    k(f"v_sqrt_f32 v{t+1}, v{t+1}")
    k(f"s_nop 0")
    k(f"{CVT} v{t+2}, v{t}, v{t+1}")
    k(f"v_lshlrev_b32 v{t}, 16, v{t+2}")
    k(f"v_and_b32 v{t+1}, 0xffff0000, v{t+2}")
    k(f"v_rcp_f32 v{t}, v{t}")
    k(f"v_rcp_f32 v{t+1}, v{t+1}")
    k(f"s_nop 0")
    k(f"v_mul_f32 v{t+12}, v{t+12}, v{t}")
    k(f"v_mul_f32 v{t+13}, v{t+13}, v{t+1}")
    k(f"v_readlane_b32 s{sTmp}, v{t}, 63")
    k(f"v_readlane_b32 s{sTmp+1}, v{t+1}, 63")
    k(f"v_readlane_b32 s{sTmp+2}, v{t+12}, 63")
    k(f"v_readlane_b32 s{sTmp+3}, v{t+13}, 63")
    for i in range(4):
        k(f"v_mov_b32 v{vRM+i}, s{sTmp+i}")

def ln_apply_rows(k, R0, R1, vRM, dst0, dst1):
    for i in range(8):
        k(f"v_pk_fma_f32 {vr(dst0+2*i,2)}, {vr(R0+2*i,2)}, {vr(vRM,2)}, {vr(vRM+2,2)} op_sel_hi:[1,0,0] neg_lo:[0,0,1] neg_hi:[0,0,1]")
        k(f"v_pk_fma_f32 {vr(dst1+2*i,2)}, {vr(R1+2*i,2)}, {vr(vRM,2)}, {vr(vRM+2,2)} op_sel:[0,1,1] op_sel_hi:[1,1,1] neg_lo:[0,0,1] neg_hi:[0,0,1]")

def gen_p3():
    k = Kern('p3_kernel')
    k("s_cmp_ge_u32 s2, 256")
    k("s_cbranch_scc1 L_p3_end")
    k("s_load_dwordx2 s[4:5], s[0:1], 0")
    k("s_load_dwordx2 s[26:27], s[0:1], 80")
    k("v_and_b32 v1, 63, v0")
    k("v_lshrrev_b32 v2, 6, v0")
    k("v_readfirstlane_b32 s28, v2")
    k("s_lshr_b32 s29, s2, 5")
    k("s_lshl_b32 s29, s29, 2")
    k("s_and_b32 s30, s2, 31")
    k("s_add_u32 s31, s29, s28")
    k("s_lshl_b32 s31, s31, 5")
    k("s_add_u32 s31, s31, s30")
    k("s_lshl_b32 s31, s31, 11")
    k("s_add_u32 s32, s31, 0x200000")
    k(f"s_mul_i32 s33, s2, {VB_BLK}")
    k("s_lshl_b32 s34, s28, 12")
    k("s_add_u32 s33, s33, s34")
    k("v_lshlrev_b32 v2, 4, v1")
    k("s_waitcnt lgkmcnt(0)")
    srd(k, 8, 4, S*D*2)
    srd(k, 12, 26, 256*VB_BLK, VB_OFF)
    srd(k, 16, 26, S*D*2, H_OFF)
    srd(k, 20, 26, S*D*2, HN_OFF)
    for i in range(4):
        k(f"s_add_u32 m0, s34, {1024*i}")
        k(f"buffer_load_dwordx4 v2, s[12:15], s33 offen lds")
        k("s_add_u32 s33, s33, 1024")
    k("s_cmp_eq_u32 s28, 3")
    k("s_cbranch_scc0 L_p3_noex")
    k("s_mov_b32 m0, 16384")
    k(f"buffer_load_dwordx4 v2, s[12:15], s33 offen lds")
    k("L_p3_noex:")
    XL = 4
    k(f"buffer_load_dwordx4 {vr(XL,4)}, v2, s[8:11], s31 offen")
    k(f"buffer_load_dwordx4 {vr(XL+4,4)}, v2, s[8:11], s31 offen offset:1024")
    k(f"buffer_load_dwordx4 {vr(XL+8,4)}, v2, s[8:11], s32 offen")
    k(f"buffer_load_dwordx4 {vr(XL+12,4)}, v2, s[8:11], s32 offen offset:1024")
    OP, Mr, Mi, TWR, TWI, DR, DI, T = 20, 36, 52, 68, 84, 100, 116, 132
    R0, R1, Y0, Y1 = 148, 164, 180, 196
    k("v_and_b32 v212, 31, v1")
    k("v_cvt_f32_u32 v212, v212")
    k("v_lshrrev_b32 v213, 5, v1")
    k("v_lshlrev_b32 v213, 2, v213")
    k("v_cvt_f32_u32 v213, v213")
    k(f"v_mul_f32 v214, {f32(1/32)}, v212")
    k("v_mul_f32 v215, v214, v213")
    gen_matrix(k, Mr, Mi, 214, 215, T)
    k(f"v_mul_f32 v214, {f32(1/1024)}, v212")
    k("v_mul_f32 v215, v214, v213")
    gen_twiddle(k, TWR, TWI, 214, 215, T)
    k(f"s_mov_b32 s36, {f32(2.0**-21.5)}")
    for j in range(0, 32, 2):
        k(f"v_pk_mul_f32 {vr(TWR+j,2)}, {vr(TWR+j,2)}, s[36:37] op_sel_hi:[1,0]")
    k("v_and_b32 v2, 31, v1")
    k("v_lshrrev_b32 v3, 5, v1")
    k("v_and_b32 v216, 1, v2")
    k("v_lshrrev_b32 v217, 1, v2")
    k("v_and_b32 v218, 2, v217")
    k("v_xor_b32 v218, v218, v216")
    k("v_lshlrev_b32 v218, 4, v218")
    k("v_lshl_add_u32 v218, v217, 6, v218")
    k("v_lshl_add_u32 v218, v3, 12, v218")
    k("s_lshl_b32 s37, s28, 2")
    k("v_add_u32 v218, s37, v218")
    k("v_add_u32 v217, 1, v2")
    k("v_lshrrev_b32 v217, 1, v217")
    k("v_sub_u32 v219, 0, v217")
    k("v_and_b32 v219, 2, v219")
    k("v_add_u32 v216, 2, v216")
    k("v_xor_b32 v219, v219, v216")
    k("v_lshlrev_b32 v219, 4, v219")
    k("v_lshlrev_b32 v217, 6, v217")
    k("v_sub_u32 v219, v219, v217")
    k("v_lshlrev_b32 v217, 12, v3")
    k("v_sub_u32 v219, v219, v217")
    k("s_add_u32 s37, s37, 5120")
    k("v_add_u32 v219, s37, v219")
    k("s_mov_b32 s35, 0xffff0000")
    k("s_waitcnt vmcnt(4)")
    k("s_barrier")
    for i, (r, c) in enumerate(SEQ):
        if r < 2: k(f"ds_read_b32 v{OP+i}, v218 offset:{(8*r+c)*1024}")
        else:     k(f"ds_read_b32 v{OP+i}, v219 offset:{(32-8*r-c)*1024-5120}")
    k("s_waitcnt vmcnt(0)")
    for i in range(8):
        k(f"v_lshlrev_b32 v{R0+2*i}, 16, v{XL+i}")
        k(f"v_and_b32 v{R0+2*i+1}, s35, v{XL+i}")
        k(f"v_lshlrev_b32 v{R1+2*i}, 16, v{XL+8+i}")
        k(f"v_and_b32 v{R1+2*i+1}, s35, v{XL+8+i}")
    k("s_waitcnt lgkmcnt(0)")
    stage(k, 'A', DR, DI, OP, Mr, Mi)
    cmul_pack(k, DR, DI, TWR, TWI, OP, T)
    stage(k, 'B', DR, DI, OP, Mr, Mi)
    TR = 17408
    k("s_lshl_b32 s36, s28, 12")
    k(f"s_add_u32 s36, s36, {TR}")
    k("v_and_b32 v3, 31, v1")
    k("v_lshlrev_b32 v3, 2, v3")
    k("v_lshrrev_b32 v216, 5, v1")
    k("v_lshlrev_b32 v216, 9, v216")
    k("v_add3_u32 v3, v3, v216, s36")
    k("v_lshl_add_u32 v2, v1, 5, s36")
    for i in range(16):
        k(f"{CVT} v{OP+i}, v{DR+i}, -v{DI+i}")
    for i, (r, c) in enumerate(SEQ):
        k(f"ds_write_b32 v3, v{OP+i} offset:{(8*r+c)*128}")
    k("s_waitcnt lgkmcnt(0)")
    k(f"ds_read_b128 {vr(OP,4)}, v2")
    k(f"ds_read_b128 {vr(OP+4,4)}, v2 offset:16")
    k(f"ds_read_b128 {vr(OP+8,4)}, v2 offset:2048")
    k(f"ds_read_b128 {vr(OP+12,4)}, v2 offset:2064")
    k("s_waitcnt lgkmcnt(0)")
    for i in range(16):
        k(f"v_lshlrev_b32 v{Y0+i}, 16, v{OP+i}")
        k(f"v_and_b32 v{Y1+i}, s35, v{OP+i}")
    for i in range(8):
        k(f"v_pk_add_f32 {vr(Y0+2*i,2)}, {vr(Y0+2*i,2)}, {vr(R0+2*i,2)}")
        k(f"v_pk_add_f32 {vr(Y1+2*i,2)}, {vr(Y1+2*i,2)}, {vr(R1+2*i,2)}")
    HP = 36
    for i in range(8):
        k(f"{CVT} v{HP+i}, v{Y0+2*i}, v{Y0+2*i+1}")
        k(f"{CVT} v{HP+8+i}, v{Y1+2*i}, v{Y1+2*i+1}")
    k("v_lshlrev_b32 v2, 4, v1")
    k(f"buffer_store_dwordx4 {vr(HP,4)}, v2, s[16:19], s31 offen")
    k(f"buffer_store_dwordx4 {vr(HP+4,4)}, v2, s[16:19], s31 offen offset:1024")
    k(f"buffer_store_dwordx4 {vr(HP+8,4)}, v2, s[16:19], s32 offen")
    k(f"buffer_store_dwordx4 {vr(HP+12,4)}, v2, s[16:19], s32 offen offset:1024")
    for i in range(8):
        k(f"v_lshlrev_b32 v{R0+2*i}, 16, v{HP+i}")
        k(f"v_and_b32 v{R0+2*i+1}, s35, v{HP+i}")
        k(f"v_lshlrev_b32 v{R1+2*i}, 16, v{HP+8+i}")
        k(f"v_and_b32 v{R1+2*i+1}, s35, v{HP+8+i}")
    RM = 220
    ln_stats_rows(k, R0, R1, T, RM, 40)
    ln_apply_rows(k, R0, R1, RM, Y0, Y1)
    LP = 52
    for i in range(8):
        k(f"{CVT} v{LP+i}, v{Y0+2*i}, v{Y0+2*i+1}")
        k(f"{CVT} v{LP+8+i}, v{Y1+2*i}, v{Y1+2*i+1}")
    for i in range(8):
        k(f"v_lshlrev_b32 v{R0+2*i}, 16, v{LP+i}")
        k(f"v_and_b32 v{R0+2*i+1}, s35, v{LP+i}")
        k(f"v_lshlrev_b32 v{R1+2*i}, 16, v{LP+8+i}")
        k(f"v_and_b32 v{R1+2*i+1}, s35, v{LP+8+i}")
    ln_stats_rows(k, R0, R1, T, RM, 40)
    ln_apply_rows(k, R0, R1, RM, Y0, Y1)
    NP = 68
    for i in range(8):
        k(f"{CVT} v{NP+i}, v{Y0+2*i}, v{Y0+2*i+1}")
        k(f"{CVT} v{NP+8+i}, v{Y1+2*i}, v{Y1+2*i+1}")
    k(f"buffer_store_dwordx4 {vr(NP,4)}, v2, s[20:23], s31 offen")
    k(f"buffer_store_dwordx4 {vr(NP+4,4)}, v2, s[20:23], s31 offen offset:1024")
    k(f"buffer_store_dwordx4 {vr(NP+8,4)}, v2, s[20:23], s32 offen")
    k(f"buffer_store_dwordx4 {vr(NP+12,4)}, v2, s[20:23], s32 offen offset:1024")
    k("L_p3_end:")
    k("s_endpgm")
    return k, 224, 33792

MF16 = 'v_mfma_f32_16x16x32_bf16'

def interleave(mf, rd, lead=0):
    out = []; n = len(mf); m = len(rd); ri = 0
    for i in range(n):
        out.append(mf[i])
        tgt = min(m, (m*(i+1) + n - 1)//n)
        while ri < tgt:
            out.append(rd[ri]); ri += 1
    out += rd[ri:]
    return out

def producer_loop(k, tag, per, issue, NS, NIT):
    for n in range(NS): issue()
    k(f"s_waitcnt vmcnt({(NS-1)*per})")
    k("s_barrier")
    nmain = NIT - NS
    k(f"s_mov_b32 s60, 0")
    k(f"L_{tag}_ploop:")
    k(f"s_waitcnt vmcnt({(NS-2)*per})")
    k("s_barrier")
    issue()
    k("s_add_u32 s60, s60, 1")
    k(f"s_cmp_lt_u32 s60, {nmain}")
    k(f"s_cbranch_scc1 L_{tag}_ploop")
    for n in range(nmain, NIT-1):
        k(f"s_waitcnt vmcnt({(NIT-1-(n+1))*per})")
        k("s_barrier")

def gen_g1():
    k = Kern('g1_kernel')
    NS, NIT, STG = 5, 32, 30720
    k("s_cmp_ge_u32 s2, 256")
    k("s_cbranch_scc1 L_g1_end")
    k("s_load_dwordx4 s[4:7], s[0:1], 32")
    k("s_load_dwordx2 s[26:27], s[0:1], 80")
    k("v_and_b32 v1, 63, v0")
    k("v_lshrrev_b32 v2, 6, v0")
    k("v_readfirstlane_b32 s28, v2")
    k("s_and_b32 s29, s2, 7")
    k("s_lshl_b32 s29, s29, 2")
    k("s_bfe_u32 s30, s2, 0x20003")
    k("s_add_u32 s29, s29, s30")
    k("s_lshr_b32 s30, s2, 5")
    k("s_mul_i32 s31, s29, 224")
    k("s_lshl_b32 s32, s30, 8")
    k("s_waitcnt lgkmcnt(0)")
    srd(k, 8, 4, S*F*2)
    srd(k, 12, 26, S*D*2, HN_OFF)
    srd(k, 16, 26, F*D*2, GT_OFF)
    srd(k, 20, 6, F*2)
    k("s_cmp_ge_u32 s28, 4")
    k("s_cbranch_scc1 L_g1_prod")
    ACC, X, Y, AH0, AH1, AW, BIAS = 8, 64, 100, 136, 137, 138, 141
    BH0, BH1, BW = 144+4, 144+5, 144+6
    k("v_lshrrev_b32 v2, 4, v1")
    k("v_bfe_u32 v3, v1, 2, 2")
    k("v_and_b32 v4, 3, v1")
    k("v_lshl_add_u32 v5, v2, 2, v3")
    k("v_and_b32 v6, 7, v5")
    k("v_lshlrev_b32 v6, 1, v6")
    k("s_lshl_b32 s33, s28, 2")
    k("v_lshrrev_b32 v7, 1, v4")
    k("v_add_u32 v7, s33, v7")
    k("v_xor_b32 v7, v7, v6")
    k("v_lshlrev_b32 v7, 4, v7")
    k("v_lshl_add_u32 v7, v5, 8, v7")
    k("v_and_b32 v6, 1, v4")
    k(f"v_lshl_add_u32 v{BH0}, v6, 3, v7")
    k(f"v_xor_b32 v{BH1}, 32, v{BH0}")
    k("v_mul_u32_u24 v7, 224, v5")
    k("v_lshl_add_u32 v7, v4, 3, v7")
    k(f"v_add_u32 v{BW}, 16384, v7")
    k(f"v_mov_b32 v{AH0}, v{BH0}"); k(f"v_mov_b32 v{AH1}, v{BH1}"); k(f"v_mov_b32 v{AW}, v{BW}")
    k("v_and_b32 v2, 15, v1")
    k("v_lshlrev_b32 v2, 1, v2")
    for tf in range(7):
        k(f"buffer_load_ushort v{BIAS+tf}, v2, s[20:23], s31 offen offset:{32*tf}")
    def reads(dst, ko):
        r = []
        for t, a in ((0, AH0), (1, AH1)):
            r.append(f"ds_read_b64_tr_b16 {vr(dst+4*t,2)}, v{a} offset:{ko*256}")
            r.append(f"ds_read_b64_tr_b16 {vr(dst+4*t+2,2)}, v{a} offset:{(ko+16)*256}")
        for t in range(7):
            r.append(f"ds_read_b64_tr_b16 {vr(dst+8+4*t,2)}, v{AW} offset:{ko*224+32*t}")
            r.append(f"ds_read_b64_tr_b16 {vr(dst+8+4*t+2,2)}, v{AW} offset:{(ko+16)*224+32*t}")
        order = [0, 1, 4, 5, 2, 3] + list(range(6, 18))
        return [r[i] for i in order]
    def mfmas(src, first=False):
        m = []
        for tf in range(7):
            for td in range(2):
                a = ACC + 4*(2*tf+td)
                c = '0' if first else vr(a, 4)
                m.append(f"{MF16} {vr(a,4)}, {vr(src+4*td,4)}, {vr(src+8+4*tf,4)}, {c}")
        return m
    for i in range(56): k(f"v_mov_b32 v{ACC+i}, 0")
    k("s_mov_b32 s34, 0")
    k("s_mov_b32 s35, 0")
    k("s_barrier")
    for x in reads(X, 0): k(x)
    k("s_waitcnt lgkmcnt(0)")
    k("L_g1_cloop:")
    for x in interleave(mfmas(X), reads(Y, 32)): k(x)
    k(f"s_add_u32 s34, s34, {STG}")
    k(f"s_cmp_eq_u32 s34, {STG*NS}")
    k("s_cselect_b32 s34, 0, s34")
    k("s_waitcnt lgkmcnt(0)")
    k("s_barrier")
    k(f"v_add_u32 v{AH0}, s34, v{BH0}")
    k(f"v_add_u32 v{AH1}, s34, v{BH1}")
    k(f"v_add_u32 v{AW}, s34, v{BW}")
    for x in interleave(mfmas(Y), reads(X, 0)): k(x)
    k("s_add_u32 s35, s35, 1")
    k(f"s_cmp_lt_u32 s35, {NIT-1}")
    k("s_waitcnt lgkmcnt(0)")
    k("s_cbranch_scc1 L_g1_cloop")
    for x in interleave(mfmas(X), reads(Y, 32)): k(x)
    k("s_waitcnt lgkmcnt(0)")
    for x in mfmas(Y): k(x)
    k("s_mov_b32 s36, 0xffff0000")
    c0 = -2.0*math.log2(math.e)*math.sqrt(2.0/math.pi); c1 = c0*0.044715
    k(f"s_mov_b32 s38, {f32(c0)}"); k(f"s_mov_b32 s40, {f32(c1)}")
    k(f"v_mov_b32 v4, {f32(c0)}"); k(f"v_mov_b32 v5, {f32(c0)}")
    k(f"v_mov_b32 v6, 1.0"); k(f"v_mov_b32 v7, 1.0")
    k("s_waitcnt vmcnt(0)")
    for tf in range(7): k(f"v_lshlrev_b32 v{BIAS+tf}, 16, v{BIAS+tf}")
    k("v_and_b32 v2, 15, v1")
    k("v_lshlrev_b32 v2, 11, v2")
    k("v_lshrrev_b32 v3, 4, v1")
    k("v_lshl_add_u32 v2, v3, 4, v2")
    k("s_mul_i32 s37, s29, 112*2048")
    k("s_add_u32 s37, s37, s32")
    k("s_lshl_b32 s33, s28, 6")
    k("s_add_u32 s37, s37, s33")
    T = 64
    for tf in range(7):
        P = T + 16*(tf % 2)
        for td in range(2):
            a = ACC + 4*(2*tf+td)
            for h in range(2):
                u, w, e = P+4, P+6, P+8
                if td == 1: u, w, e = P+10, P+12, P+14
                src = a+2*h
                k(f"{CVT} v{w}, v{src}, v{src+1}")
                k(f"v_lshlrev_b32 v{u}, 16, v{w}")
                k(f"v_and_b32 v{u+1}, s36, v{w}")
                k(f"v_add_f32 v{u}, v{u}, v{BIAS+tf}")
                k(f"v_add_f32 v{u+1}, v{u+1}, v{BIAS+tf}")
                k(f"{CVT} v{w}, v{u}, v{u+1}")
                k(f"v_lshlrev_b32 v{u}, 16, v{w}")
                k(f"v_and_b32 v{u+1}, s36, v{w}")
                k(f"v_pk_mul_f32 {vr(w,2)}, {vr(u,2)}, {vr(u,2)}")
                k(f"v_pk_fma_f32 {vr(w,2)}, {vr(w,2)}, s[40:41], {vr(4,2)} op_sel_hi:[1,0,1]")
                k(f"v_pk_mul_f32 {vr(w,2)}, {vr(w,2)}, {vr(u,2)}")
                k(f"v_exp_f32 v{w}, v{w}")
                k(f"v_exp_f32 v{w+1}, v{w+1}")
                k(f"s_nop 0")
                k(f"v_pk_add_f32 {vr(w,2)}, {vr(w,2)}, {vr(6,2)}")
                k(f"v_rcp_f32 v{w}, v{w}")
                k(f"v_rcp_f32 v{w+1}, v{w+1}")
                k(f"s_nop 0")
                k(f"v_pk_mul_f32 {vr(w,2)}, {vr(w,2)}, {vr(u,2)}")
                k(f"{CVT} v{P+2*td+h}, v{w}, v{w+1}")
        k(f"v_permlane32_swap_b32 v{P}, v{P+2}")
        k(f"v_permlane32_swap_b32 v{P+1}, v{P+3}")
        k(f"v_permlane16_swap_b32 v{P}, v{P+2}")
        k(f"v_permlane16_swap_b32 v{P+1}, v{P+3}")
        k(f"buffer_store_dwordx4 {vr(P,4)}, v2, s[16:19], s37 offen")
        if tf < 6: k(f"s_add_u32 s37, s37, {16*2048}")
    k("s_branch L_g1_end")
    k("L_g1_prod:")
    k("s_sub_u32 s33, s28, 4")
    k("v_lshrrev_b32 v2, 4, v1")
    k("s_and_b32 s34, s33, 1")
    k("s_lshl_b32 s34, s34, 2")
    k("v_add_u32 v3, s34, v2")
    k("v_lshlrev_b32 v3, 1, v3")
    k("v_and_b32 v4, 15, v1")
    k("v_xor_b32 v3, v3, v4")
    k("v_lshlrev_b32 v3, 4, v3")
    k("v_lshl_add_u32 v8, v2, 11, v3")
    for m in range(4):
        k(f"s_add_u32 s34, s33, {4*m}")
        k("s_lshl_b32 s34, s34, 6")
        k("v_add_u32 v2, s34, v1")
        k("v_mul_u32_u24 v3, 4682, v2")
        k("v_lshrrev_b32 v3, 16, v3")
        k("v_mul_u32_u24 v4, 14, v3")
        k("v_sub_u32 v4, v2, v4")
        k("v_mul_u32_u24 v3, 7168, v3")
        k(f"v_lshl_add_u32 v{9+m}, v4, 4, v3")
    k("s_lshl_b32 s34, s33, 13")
    k("s_add_u32 s40, s32, s34")
    k("s_mov_b32 s41, s31")
    k("s_lshl_b32 s42, s33, 10")
    k("s_mov_b32 s43, 0")
    for per, tag in ((8, 'g1a'), (7, 'g1b')):
        if per == 8:
            k("s_cmp_ge_u32 s33, 2")
            k("s_cbranch_scc1 L_g1b_start")
        else:
            k("L_g1b_start:")
        def issue(per=per):
            k("s_add_u32 s44, s43, s42")
            k("s_mov_b32 s45, s40")
            for m in range(4):
                k(f"s_add_u32 m0, s44, {4096*m}")
                k(f"buffer_load_dwordx4 v8, s[12:15], s45 offen lds")
                if m < 3: k(f"s_add_u32 s45, s45, {16*2048}")
            for m in range(per-4):
                k(f"s_add_u32 m0, s44, {16384+4096*m}")
                k(f"buffer_load_dwordx4 v{9+m}, s[8:11], s41 offen lds")
            k(f"s_add_u32 s40, s40, {64*2048}")
            k(f"s_add_u32 s41, s41, {64*7168}")
            k(f"s_add_u32 s43, s43, {STG}")
            k(f"s_cmp_eq_u32 s43, {STG*NS}")
            k("s_cselect_b32 s43, 0, s43")
        producer_loop(k, tag, per, issue, NS, NIT)
        k("s_branch L_g1_end")
    k("L_g1_end:")
    k("s_endpgm")
    return k, 152, STG*NS

def gen_g2():
    k = Kern('g2_kernel')
    NS, NIT, STG = 6, 56, 24576
    k("s_cmp_ge_u32 s2, 256")
    k("s_cbranch_scc1 L_g2_end")
    k("s_load_dwordx4 s[4:7], s[0:1], 48")
    k("s_load_dwordx2 s[24:25], s[0:1], 64")
    k("s_load_dwordx2 s[26:27], s[0:1], 80")
    k("v_and_b32 v1, 63, v0")
    k("v_lshrrev_b32 v2, 6, v0")
    k("v_readfirstlane_b32 s28, v2")
    k("s_and_b32 s29, s2, 3")
    k("s_lshl_b32 s29, s29, 2")
    k("s_bfe_u32 s30, s2, 0x20003")
    k("s_add_u32 s29, s29, s30")
    k("s_bfe_u32 s30, s2, 0x10002")
    k("s_lshl_b32 s30, s30, 3")
    k("s_lshr_b32 s31, s2, 5")
    k("s_add_u32 s30, s30, s31")
    k("s_lshl_b32 s31, s29, 8")
    k("s_lshl_b32 s32, s30, 7")
    k("s_waitcnt lgkmcnt(0)")
    srd(k, 8, 4, F*S*2)
    srd(k, 12, 26, F*D*2, GT_OFF)
    srd(k, 16, 26, S*D*2, H_OFF)
    srd(k, 20, 6, S*2)
    srd(k, 48, 24, S*D*2)
    k("s_cmp_ge_u32 s28, 4")
    k("s_cbranch_scc1 L_g2_prod")
    ACC, X, Y, AA, AB0, AB1 = 8, 40, 88, 136, 137, 138
    BA, BB0, BB1 = 139, 140, 141
    HL, BIAS = 142, 158
    k("s_and_b32 s33, s28, 1")
    k("s_lshr_b32 s34, s28, 1")
    k("v_lshrrev_b32 v2, 4, v1")
    k("v_bfe_u32 v3, v1, 2, 2")
    k("v_and_b32 v4, 3, v1")
    k("v_lshrrev_b32 v5, 1, v2")
    k("v_lshl_add_u32 v5, v5, 3, v3")
    k("v_and_b32 v6, 1, v2")
    k("v_and_b32 v7, 1, v4")
    k("v_lshl_add_u32 v7, v7, 1, v6")
    k("s_lshl_b32 s35, s33, 2")
    k("v_add_u32 v7, s35, v7")
    k("v_bfe_u32 v9, v3, 1, 1")
    k("v_lshlrev_b32 v9, 2, v9")
    k("v_xor_b32 v7, v7, v9")
    k("v_lshlrev_b32 v7, 4, v7")
    k("v_lshrrev_b32 v9, 1, v4")
    k("v_lshl_add_u32 v7, v9, 3, v7")
    k(f"v_lshl_add_u32 v{BA}, v5, 7, v7")
    k("v_lshrrev_b32 v7, 1, v4")
    k("v_lshl_add_u32 v7, v6, 1, v7")
    k("s_lshl_b32 s35, s34, 3")
    k("v_add_u32 v7, s35, v7")
    k("v_lshlrev_b32 v9, 2, v3")
    k("v_xor_b32 v7, v7, v9")
    k("v_lshlrev_b32 v7, 4, v7")
    k("v_and_b32 v9, 1, v4")
    k("v_lshl_add_u32 v7, v9, 3, v7")
    k("v_lshl_add_u32 v7, v5, 8, v7")
    k(f"v_add_u32 v{BB0}, 8192, v7")
    k(f"v_xor_b32 v{BB1}, 64, v{BB0}")
    k(f"v_mov_b32 v{AA}, v{BA}"); k(f"v_mov_b32 v{AB0}, v{BB0}"); k(f"v_mov_b32 v{AB1}, v{BB1}")
    k("v_and_b32 v2, 31, v1")
    k("v_lshlrev_b32 v3, 11, v2")
    k("v_lshrrev_b32 v4, 5, v1")
    k("v_lshl_add_u32 v3, v4, 5, v3")
    k("v_mov_b32 v159, v3")
    k("s_lshl_b32 s36, s29, 7")
    k("s_lshl_b32 s37, s34, 6")
    k("s_add_u32 s36, s36, s37")
    k("s_lshl_b32 s37, s36, 11")
    k("s_add_u32 s37, s37, s32")
    k("s_lshl_b32 s38, s33, 6")
    k("s_add_u32 s37, s37, s38")
    k("s_add_u32 s38, s37, 0x10000")
    k(f"buffer_load_dwordx4 {vr(HL,4)}, v3, s[16:19], s37 offen")
    k(f"buffer_load_dwordx4 {vr(HL+4,4)}, v3, s[16:19], s37 offen offset:16")
    k(f"buffer_load_dwordx4 {vr(HL+8,4)}, v3, s[16:19], s38 offen")
    k(f"buffer_load_dwordx4 {vr(HL+12,4)}, v3, s[16:19], s38 offen offset:16")
    k("v_lshlrev_b32 v2, 1, v2")
    k("s_lshl_b32 s39, s36, 1")
    k(f"buffer_load_ushort v{BIAS}, v2, s[20:23], s39 offen")
    k(f"buffer_load_ushort v160, v2, s[20:23], s39 offen offset:64")
    MF = MF32
    def reads(dst):
        r = []
        for ks in range(4):
            b = dst + 12*ks; ko = 16*ks
            r.append(f"ds_read_b64_tr_b16 {vr(b,2)}, v{AA} offset:{ko*128}")
            r.append(f"ds_read_b64_tr_b16 {vr(b+2,2)}, v{AA} offset:{(ko+4)*128}")
            for t, a in ((0, AB0), (1, AB1)):
                r.append(f"ds_read_b64_tr_b16 {vr(b+4+4*t,2)}, v{a} offset:{ko*256}")
                r.append(f"ds_read_b64_tr_b16 {vr(b+4+4*t+2,2)}, v{a} offset:{(ko+4)*256}")
        return r
    def mfmas(src):
        m = []
        for ks in range(4):
            b = src + 12*ks
            for t in range(2):
                a = ACC + 16*t
                m.append(f"{MF} {vr(a,16)}, {vr(b,4)}, {vr(b+4+4*t,4)}, {vr(a,16)}")
        return m
    for i in range(32): k(f"v_mov_b32 v{ACC+i}, 0")
    k("s_mov_b32 s34, 0")
    k("s_mov_b32 s35, 0")
    k("s_barrier")
    for x in reads(X): k(x)
    k("s_waitcnt lgkmcnt(0)")
    def adv():
        k(f"s_add_u32 s34, s34, {STG}")
        k(f"s_cmp_eq_u32 s34, {STG*NS}")
        k("s_cselect_b32 s34, 0, s34")
        k("s_barrier")
        k(f"v_add_u32 v{AA}, s34, v{BA}")
        k(f"v_add_u32 v{AB0}, s34, v{BB0}")
        k(f"v_add_u32 v{AB1}, s34, v{BB1}")
    k("L_g2_cloop:")
    adv()
    for x in interleave(mfmas(X), reads(Y)): k(x)
    k("s_waitcnt lgkmcnt(0)")
    adv()
    for x in interleave(mfmas(Y), reads(X)): k(x)
    k("s_add_u32 s35, s35, 2")
    k(f"s_cmp_lt_u32 s35, {NIT-2}")
    k("s_waitcnt lgkmcnt(0)")
    k("s_cbranch_scc1 L_g2_cloop")
    adv()
    for x in interleave(mfmas(X), reads(Y)): k(x)
    k("s_waitcnt lgkmcnt(0)")
    for x in mfmas(Y): k(x)
    k("s_mov_b32 s40, 0xffff0000")
    k("s_waitcnt vmcnt(0)")
    k(f"v_lshlrev_b32 v{BIAS}, 16, v{BIAS}")
    k(f"v_lshlrev_b32 v160, 16, v160")
    T = 40
    for t in range(2):
        bias = BIAS if t == 0 else 160
        O = T + 8*t
        for j in range(0, 16, 2):
            u, w = T+16+4*((j//2) % 2), T+18+4*((j//2) % 2)
            a = ACC + 16*t + j
            hp = HL + 8*t + j//2
            k(f"{CVT} v{w}, v{a}, v{a+1}")
            k(f"v_lshlrev_b32 v{u}, 16, v{w}")
            k(f"v_and_b32 v{u+1}, s40, v{w}")
            k(f"v_add_f32 v{u}, v{u}, v{bias}")
            k(f"v_add_f32 v{u+1}, v{u+1}, v{bias}")
            k(f"{CVT} v{w}, v{u}, v{u+1}")
            k(f"v_lshlrev_b32 v{u}, 16, v{w}")
            k(f"v_and_b32 v{u+1}, s40, v{w}")
            k(f"v_lshlrev_b32 v{w}, 16, v{hp}")
            k(f"v_and_b32 v{w+1}, s40, v{hp}")
            k(f"v_pk_add_f32 {vr(u,2)}, {vr(u,2)}, {vr(w,2)}")
            k(f"{CVT} v{O+j//2}, v{u}, v{u+1}")
        so = 's37' if t == 0 else 's38'
        k(f"buffer_store_dwordx4 {vr(O,4)}, v159, s[48:51], {so} offen")
        k(f"buffer_store_dwordx4 {vr(O+4,4)}, v159, s[48:51], {so} offen offset:16")
    k("s_branch L_g2_end")
    k("L_g2_prod:")
    k("s_sub_u32 s33, s28, 4")
    k("v_lshrrev_b32 v2, 3, v1")
    k("v_bfe_u32 v3, v2, 1, 1")
    k("v_lshlrev_b32 v3, 2, v3")
    k("v_and_b32 v4, 7, v1")
    k("v_xor_b32 v3, v3, v4")
    k("v_lshlrev_b32 v3, 4, v3")
    k("v_lshl_add_u32 v8, v2, 11, v3")
    k("v_lshrrev_b32 v2, 4, v1")
    k("v_lshlrev_b32 v3, 2, v2")
    k("v_and_b32 v4, 15, v1")
    k("v_xor_b32 v3, v3, v4")
    k("v_lshlrev_b32 v3, 4, v3")
    k("v_lshl_add_u32 v9, v2, 12, v3")
    k("s_lshl_b32 s34, s33, 14")
    k("s_add_u32 s40, s32, s34")
    k("s_lshl_b32 s34, s33, 14")
    k("s_add_u32 s41, s31, s34")
    k("s_lshl_b32 s42, s33, 10")
    k("s_mov_b32 s43, 0")
    def issue():
        k("s_add_u32 s44, s43, s42")
        for m in range(2):
            k(f"s_add_u32 m0, s44, {4096*m}")
            k(f"s_add_u32 s45, s40, {m*32*2048}")
            k(f"buffer_load_dwordx4 v8, s[12:15], s45 offen lds")
        for m in range(4):
            k(f"s_add_u32 m0, s44, {8192+4096*m}")
            k(f"s_add_u32 s45, s41, {m*16*4096}")
            k(f"buffer_load_dwordx4 v9, s[8:11], s45 offen lds")
        k(f"s_add_u32 s40, s40, {64*2048}")
        k(f"s_add_u32 s41, s41, {64*4096}")
        k(f"s_add_u32 s43, s43, {STG}")
        k(f"s_cmp_eq_u32 s43, {STG*NS}")
        k("s_cselect_b32 s43, 0, s43")
    producer_loop_g2(k, 'g2', 6, issue, NS, NIT)
    k("L_g2_end:")
    k("s_endpgm")
    return k, 164, STG*NS

def producer_loop_g2(k, tag, per, issue, NS, NIT):
    producer_loop(k, tag, per, issue, NS, NIT)

KERNELS = [('p1_kernel', gen_p1, (256,1,1), (256,1,1)), ('p2_kernel', gen_p2, (257,1,1), (256,1,1)), ('p3_kernel', gen_p3, (256,1,1), (256,1,1)),
 ('g1_kernel', gen_g1, (256,1,1), (512,1,1)), ('g2_kernel', gen_g2, (256,1,1), (512,1,1))]

def build_all(kernels=None):
    ks = []
    for name, fn, grid, block in (kernels or KERNELS):
        k, nv, lds = fn()
        ks.append((name, k, nv, lds, grid, block))
    hdr = open('sequential_preLN__spectral_gfnet__mixer_token_mlp__prompt.s.ref').read().split('; Override launch')[0]
    s = hdr
    for name, k, nv, lds, grid, block in ks:
        s += f"; @launch kernel={name} grid=({grid[0]},{grid[1]},{grid[2]}) block=({block[0]},{block[1]},{block[2]}) lds={lds}\n"
    s += '.amdgcn_target "amdgcn-amd-amdhsa--gfx950"\n.text\n'
    for name, k, nv, lds, grid, block in ks: s += k.text()
    s += '.section .rodata,"a"\n'
    for name, k, nv, lds, grid, block in ks: s += descriptor(name, nv)
    return s, ks

if __name__ == '__main__':
    s, ks = build_all()
    open(sys.argv[1] if len(sys.argv) > 1 else 'out.s', 'w').write(s)
    print('written', len(s), 'bytes')
```

```python
import gen
from asmlib import *
s,ks=gen.build_all()
def empty(name):
    return f".globl {name}\n.p2align 8\n.type {name},@function\n{name}:\n    s_endpgm\n"
def add_empty(s,n,pos='end'):
    lines=s.split('\n')
    idx=[i for i,l in enumerate(lines) if l.startswith('; @launch')]
    new=[f"; @launch kernel=e_kernel grid=(1,1,1) block=(64,1,1) lds=0"]*n
    if pos=='end': lines[idx[-1]+1:idx[-1]+1]=new
    else: lines[idx[0]:idx[0]]=new
    s='\n'.join(lines)
    s=s.replace('.section .rodata,"a"\n', empty('e_kernel')+'.section .rodata,"a"\n',1)
    s+=descriptor('e_kernel',8)
    return s
open('v_e5_end.s','w').write(add_empty(s,5,'end'))
open('v_e5_start.s','w').write(add_empty(s,5,'start'))
open('v_base.s','w').write(s)
```

```python
import sys, math, struct
sys.path.insert(0, 'work')
from asmlib import *

ZW_OFF = 0x0          ; ZW_SIZE = 257*32768
VB_OFF = 0x900000     ; VB_BLK = 257*64 ; VB_SIZE = 256*VB_BLK + 1024
H_OFF  = 0xE00000
HN_OFF = 0x1200000
GT_OFF = 0x1600000
WS_USED = 0x1D00000
S, D, F = 2048, 1024, 3584

def f32(x):
    return '0x%08x' % struct.unpack('<I', struct.pack('<f', x))[0]

CVT = 'v_cvt_pk_bf16_f32'
STAMP = False
NO_DMA = False
NO_MFMA = False
NO_READ = False
NO_BAR = False
NO_ADV = False
NO_A = False
NO_B = False
STAMP_OFF = 0x2000000
KIDX = {'p1':0,'p2':1,'p3':2,'g1':3,'g2':4}
NMARK = 8
def mark(k, i):
    if STAMP: k(f"s_memrealtime s[{64+2*i}:{65+2*i}]")
def stamp_begin(k):
    if STAMP:
        for i in range(1, NMARK): k(f"s_mov_b64 s[{64+2*i}:{65+2*i}], 0")
        k("s_memrealtime s[64:65]")
        k("s_memtime s[94:95]")
def stamp_end(k, tag, tid=0, slot=0, sfx=''):
    if not STAMP: return
    mark(k, 6)
    k("s_waitcnt vmcnt(0) lgkmcnt(0)")
    mark(k, 7)
    k("s_memtime s[84:85]")
    k("s_load_dwordx2 s[88:89], s[0:1], 80")
    k("s_waitcnt lgkmcnt(0)")
    k(f"s_add_u32 s88, s88, {STAMP_OFF + KIDX[tag]*65536}")
    k("s_addc_u32 s89, s89, 0")
    k(f"s_add_u32 s87, s2, {slot}")
    k("s_lshl_b32 s87, s87, 7")
    k("v_mov_b32 v8, s87")
    k(f"v_cmp_eq_u32 vcc, {tid}, v0" if tid <= 64 else f"v_cmp_eq_u32 vcc, {hex(tid)}, v0")
    k("s_and_saveexec_b64 s[86:87], vcc")
    k(f"s_cbranch_execz L_{tag}_nostamp{sfx}")
    for i in range(0, NMARK, 2):
        for j in range(4): k(f"v_mov_b32 v{4+j}, s{64+2*i+j}")
        k(f"global_store_dwordx4 v8, v[4:7], s[88:89] offset:{8*i}")
        k("s_nop 1")
    k("v_mov_b32 v4, s94"); k("v_mov_b32 v5, s95"); k("v_mov_b32 v6, s84"); k("v_mov_b32 v7, s85")
    k("global_store_dwordx4 v8, v[4:7], s[88:89] offset:64")
    k(f"L_{tag}_nostamp{sfx}:")

MF32 = 'v_mfma_f32_32x32x16_bf16'

CODEPF = 1
W1PF = 0
W1L2 = 0
ST_FLAGS = ''
def code_prefetch(k, tag, first_label, last_label, vtmp, stmp, nwaves_cond=None):
    if not CODEPF: return
    k(f"s_getpc_b64 s[{stmp}:{stmp+1}]")
    k(f"L_{tag}_pc:")
    k(f"s_add_u32 s{stmp}, s{stmp}, {first_label}-L_{tag}_pc")
    k(f"s_addc_u32 s{stmp+1}, s{stmp+1}, 0")

def srd(k, s, base, size, off=0):
    if off:
        k(f"s_add_u32 s{s}, s{base}, {hex(off)}")
        k(f"s_addc_u32 s{s+1}, s{base+1}, 0")
    else:
        k(f"s_mov_b32 s{s}, s{base}")
        k(f"s_mov_b32 s{s+1}, s{base+1}")
    k(f"s_mov_b32 s{s+2}, {hex(size)}")
    k(f"s_mov_b32 s{s+3}, 0x20000")

SEQ = [(r, c) for r in range(4) for c in range(4)]

def gen_matrix(k, Mr, Mi, vA, vB, t):
    ang, a5, tC, tS = t, t+1, t+2, t+3
    k(f"v_mov_b32 v{ang}, v{vB}")
    k(f"v_mul_f32 v{a5}, 5.0, v{vA}" if False else f"v_mul_f32 v{a5}, {f32(5.0)}, v{vA}")
    for i, (r, c) in enumerate(SEQ):
        k(f"v_cos_f32 v{tC}, v{ang}")
        k(f"v_sin_f32 v{tS}, v{ang}")
        if i < 15: k(f"v_add_f32 v{ang}, v{ang}, v{a5 if c == 3 else vA}")
        k(f"{CVT} v{Mr+i}, v{tC}, v{tS}")
        k(f"{CVT} v{Mi+i}, -v{tS}, v{tC}")

def gen_twiddle(k, twr, twi, vA, vB, t):
    ang, a5 = t, t+1
    k(f"v_mov_b32 v{ang}, v{vB}")
    k(f"v_mul_f32 v{a5}, {f32(5.0)}, v{vA}")
    for i, (r, c) in enumerate(SEQ):
        k(f"v_cos_f32 v{twr+i}, v{ang}")
        k(f"v_sin_f32_e64 v{twi+i}, -v{ang}")
        if i < 15: k(f"v_add_f32 v{ang}, v{ang}, v{a5 if c == 3 else vA}")

def stage(k, typ, Dr, Di, data, Mr, Mi, first=True):
    for r in range(4):
        for (Dx, M) in ((Dr, Mr), (Di, Mi)):
            c = '0' if (r == 0 and first) else vr(Dx, 16)
            if typ == 'A': k(f"{MF32} {vr(Dx,16)}, {vr(data+4*r,4)}, {vr(M+4*r,4)}, {c}")
            else:          k(f"{MF32} {vr(Dx,16)}, {vr(M+4*r,4)}, {vr(data+4*r,4)}, {c}")

def cmul_pack(k, Dr, Di, wr, wi, out, t, conj=False):
    for jj in range(0, 16, 4):
        T = [t + 8*((jj//4) % 2) + 2*i for i in range(4)]
        for pi, j in enumerate((jj, jj+2)):
            pass
    for j in range(0, 16, 2):
        b = t + 4*((j//2) % 4)
        R, I = b, b+2
        k(f"v_pk_mul_f32 {vr(R,2)}, {vr(Dr+j,2)}, {vr(wr+j,2)}")
        k(f"v_pk_mul_f32 {vr(I,2)}, {vr(Dr+j,2)}, {vr(wi+j,2)}")
        k(f"v_pk_fma_f32 {vr(R,2)}, {vr(Di+j,2)}, {vr(wi+j,2)}, {vr(R,2)} neg_lo:[1,0,0] neg_hi:[1,0,0]")
        k(f"v_pk_fma_f32 {vr(I,2)}, {vr(Di+j,2)}, {vr(wr+j,2)}, {vr(I,2)}")
        n = '-' if conj else ''
        k(f"{CVT} v{out+j}, v{R}, {n}v{I}")
        k(f"{CVT} v{out+j+1}, v{R+1}, {n}v{I+1}")

def wave_reduce2(k, a, b):
    for m in ("quad_perm:[1,0,3,2] row_mask:0xf", "quad_perm:[2,3,0,1] row_mask:0xf", "row_half_mirror row_mask:0xf",
              "row_mirror row_mask:0xf", "row_bcast:15 row_mask:0xa", "row_bcast:31 row_mask:0xc"):
        k(f"v_add_f32_dpp v{a}, v{a}, v{a} {m} bank_mask:0xf")
        k(f"v_add_f32_dpp v{b}, v{b}, v{b} {m} bank_mask:0xf")

def tree_sum(k, X, n, t, op='add'):
    acc = [t, t+2, t+4, t+6]
    for i in range(4):
        k(f"v_pk_add_f32 {vr(acc[i],2)}, {vr(X+2*i,2)}, {vr(X+2*(i+4),2)}")
    for i in range(8, n):
        k(f"v_pk_add_f32 {vr(acc[i%4],2)}, {vr(acc[i%4],2)}, {vr(X+2*i,2)}")
    k(f"v_pk_add_f32 {vr(acc[0],2)}, {vr(acc[0],2)}, {vr(acc[1],2)}")
    k(f"v_pk_add_f32 {vr(acc[2],2)}, {vr(acc[2],2)}, {vr(acc[3],2)}")
    k(f"v_pk_add_f32 {vr(acc[0],2)}, {vr(acc[0],2)}, {vr(acc[2],2)}")

def ln_stats_xrow(k, X, t, sM, sR, sTmp):
    tree_sum(k, X, 16, t)
    wave_reduce2(k, t, t+1)
    k(f"v_mul_f32 v{t}, {f32(1/1024)}, v{t}")
    k(f"v_mul_f32 v{t+1}, {f32(1/1024)}, v{t+1}")
    k(f"{CVT} v{t+2}, v{t}, v{t+1}")
    k(f"v_readlane_b32 s{sTmp}, v{t}, 63")
    k(f"v_readlane_b32 s{sTmp+1}, v{t+1}, 63")
    k(f"v_lshlrev_b32 v{t+12}, 16, v{t+2}")
    k(f"v_and_b32 v{t+13}, 0xffff0000, v{t+2}")
    acc = [t, t+2]; tmp = [t+4, t+6, t+8, t+10]
    for i in range(16):
        d = tmp[i % 4]
        k(f"v_pk_add_f32 {vr(d,2)}, {vr(X+2*i,2)}, {sr(sTmp,2)} neg_lo:[0,1] neg_hi:[0,1]")
        a = acc[i % 2]
        if i < 2: k(f"v_pk_mul_f32 {vr(a,2)}, {vr(d,2)}, {vr(d,2)}")
        else:     k(f"v_pk_fma_f32 {vr(a,2)}, {vr(d,2)}, {vr(d,2)}, {vr(a,2)}")
    k(f"v_pk_add_f32 {vr(t,2)}, {vr(t,2)}, {vr(t+2,2)}")
    wave_reduce2(k, t, t+1)
    k(f"v_mul_f32 v{t}, {f32(1/1024)}, v{t}")
    k(f"v_mul_f32 v{t+1}, {f32(1/1024)}, v{t+1}")
    k(f"{CVT} v{t+2}, v{t}, v{t+1}")
    k(f"v_lshlrev_b32 v{t}, 16, v{t+2}")
    k(f"v_and_b32 v{t+1}, 0xffff0000, v{t+2}")
    k(f"v_add_f32 v{t}, {f32(1e-5)}, v{t}")
    k(f"v_add_f32 v{t+1}, {f32(1e-5)}, v{t+1}")
    k(f"{CVT} v{t+2}, v{t}, v{t+1}")
    k(f"v_lshlrev_b32 v{t}, 16, v{t+2}")
    k(f"v_and_b32 v{t+1}, 0xffff0000, v{t+2}")
    k(f"v_sqrt_f32 v{t}, v{t}")
    k(f"v_sqrt_f32 v{t+1}, v{t+1}")
    k(f"s_nop 0")
    k(f"{CVT} v{t+2}, v{t}, v{t+1}")
    k(f"v_lshlrev_b32 v{t}, 16, v{t+2}")
    k(f"v_and_b32 v{t+1}, 0xffff0000, v{t+2}")
    k(f"v_rcp_f32 v{t}, v{t}")
    k(f"v_rcp_f32 v{t+1}, v{t+1}")
    k(f"s_nop 0")
    k(f"v_mul_f32 v{t+12}, v{t+12}, v{t}")
    k(f"v_mul_f32 v{t+13}, v{t+13}, v{t+1}")
    k(f"v_readlane_b32 s{sR}, v{t}, 63")
    k(f"v_readlane_b32 s{sR+1}, v{t+1}, 63")
    k(f"v_readlane_b32 s{sM}, v{t+12}, 63")
    k(f"v_readlane_b32 s{sM+1}, v{t+13}, 63")

def gen_p1():
    k = Kern('p1_kernel')
    k("s_cmp_ge_u32 s2, 256")
    k("s_cbranch_scc1 L_p1_end")
    stamp_begin(k)
    k("s_load_dwordx4 s[4:7], s[0:1], 0")
    k("s_load_dwordx2 s[24:25], s[0:1], 16")
    k("s_load_dwordx2 s[60:61], s[0:1], 32")
    k("s_load_dwordx2 s[26:27], s[0:1], 80")
    TID, LANE = 0, 1
    if CODEPF:
        k("s_getpc_b64 s[52:53]")
        k("L_p1_pc:")
        k("s_sub_u32 s52, s52, L_p1_pc-p1_kernel")
        k("s_subb_u32 s53, s53, 0")
        k("v_lshlrev_b32 v210, 7, v0")
        k("v_mov_b32 v211, s53")
        k("v_add_co_u32 v210, vcc, s52, v210")
        k("v_addc_co_u32 v211, vcc, 0, v211, vcc")
        k("v_cmp_gt_u32 vcc, (L_p1_endc-p1_kernel+127)/128, v0")
        k("s_and_saveexec_b64 s[54:55], vcc")
        k("s_cbranch_execz L_p1_cp0")
        k("global_load_dword v212, v[210:211], off")
        k("L_p1_cp0:")
        k("s_mov_b64 exec, -1")
        k("s_bfe_u32 s54, s2, 0x10003")
        k("s_lshl_b32 s54, s54, 15")
        k("s_add_u32 s54, s54, L_p1_endc-p1_kernel")
        k("v_add_co_u32 v210, vcc, s54, v210")
        k("v_addc_co_u32 v211, vcc, 0, v211, vcc")
        k("v_lshlrev_b32 v213, 7, v0")
        k("v_add_u32 v213, s54, v213")
        k("v_cmp_gt_u32 vcc, L_text_end-p1_kernel, v213")
        k("s_and_saveexec_b64 s[54:55], vcc")
        k("s_cbranch_execz L_p1_cp1")
        k("global_load_dword v212, v[210:211], off")
        k("L_p1_cp1:")
        k("s_mov_b64 exec, -1")
    k("v_and_b32 v1, 63, v0")
    k("v_lshrrev_b32 v2, 6, v0")
    k("v_readfirstlane_b32 s28, v2")
    k("s_lshr_b32 s29, s2, 5")
    k("s_lshl_b32 s29, s29, 2")
    k("s_and_b32 s30, s2, 31")
    k("s_add_u32 s31, s29, s28")
    k("s_lshl_b32 s31, s31, 5")
    k("s_add_u32 s31, s31, s30")
    k("s_lshl_b32 s31, s31, 11")
    k("s_add_u32 s32, s31, 0x200000")
    k("s_waitcnt lgkmcnt(0)")
    srd(k, 8, 4, S*D*2)
    srd(k, 12, 6, S*513*2)
    srd(k, 16, 24, S*513*2)
    srd(k, 20, 26, 257*32768, ZW_OFF)
    XL = 4
    k("v_lshlrev_b32 v2, 4, v1")
    k(f"buffer_load_dwordx4 {vr(XL,4)}, v2, s[8:11], s31 offen")
    k(f"buffer_load_dwordx4 {vr(XL+4,4)}, v2, s[8:11], s31 offen offset:1024")
    k(f"buffer_load_dwordx4 {vr(XL+8,4)}, v2, s[8:11], s32 offen")
    k(f"buffer_load_dwordx4 {vr(XL+12,4)}, v2, s[8:11], s32 offen offset:1024")
    WL = 20
    k("v_lshlrev_b32 v3, 2, v0")
    k("s_lshl_b32 s33, s29, 6")
    k("s_lshl_b32 s34, s30, 1")
    k("s_add_u32 s33, s33, s34")
    k("s_mul_i32 s33, s33, 1026")
    for pi in range(2):
        for cc in range(4):
            off = (64*cc + pi)*1026
            k(f"s_add_u32 s34, s33, {off}")
            k(f"buffer_load_dword v{WL+4*pi+cc}, v3, s[12:15], s34 offen")
            k(f"buffer_load_dword v{WL+8+4*pi+cc}, v3, s[16:19], s34 offen")
    WX = 200
    k("v_and_b32 v200, 3, v1")
    k("v_lshlrev_b32 v200, 6, v200")
    k("v_bfe_u32 v201, v1, 2, 1")
    k("v_add_u32 v200, v200, v201")
    k("v_mul_u32_u24 v200, 1026, v200")
    k("v_add_u32 v200, 1024, v200")
    k("v_cmp_gt_u32 vcc, 8, v0")
    k("s_and_saveexec_b64 s[36:37], vcc")
    k("s_cbranch_execz L_p1_nox")
    k("buffer_load_ushort v202, v200, s[12:15], s33 offen")
    k("buffer_load_ushort v203, v200, s[16:19], s33 offen")
    k("L_p1_nox:")
    k("s_mov_b64 exec, -1")
    Mr, Mi, TWR, TWI = 36, 52, 68, 84
    XF, DR, DI, OP, T = 100, 132, 148, 164, 180
    k("v_and_b32 v2, 31, v1")
    k("v_cvt_f32_u32 v2, v2")
    k("v_lshrrev_b32 v3, 5, v1")
    k("v_lshlrev_b32 v3, 2, v3")
    k("v_cvt_f32_u32 v3, v3")
    k(f"v_mul_f32 v204, {f32(1/32)}, v2")
    k("v_mul_f32 v205, v204, v3")
    gen_matrix(k, Mr, Mi, 204, 205, T)
    k(f"v_mul_f32 v204, {f32(1/1024)}, v2")
    k("v_mul_f32 v205, v204, v3")
    gen_twiddle(k, TWR, TWI, 204, 205, T)
    k("s_mov_b32 s35, 0xffff0000")
    k("s_waitcnt vmcnt(18)")
    k.l.pop()
    mark(k, 1)
    k("s_waitcnt vmcnt(16)")
    mark(k, 2)
    for i in range(16):
        for row in range(2):
            src = XL + 8*row + (i >> 1)
            if i % 2 == 0: k(f"v_lshlrev_b32 v{XF+2*i+row}, 16, v{src}")
            else:          k(f"v_and_b32 v{XF+2*i+row}, s35, v{src}")
    ln_stats_xrow(k, XF, T, 38, 40, 42)
    for i in range(16):
        d = T + 2*(i % 4)
        k(f"v_pk_fma_f32 {vr(d,2)}, {vr(XF+2*i,2)}, {sr(40,2)}, {sr(38,2)} neg_lo:[0,0,1] neg_hi:[0,0,1]") if False else None
    k(f"v_mov_b32 v{T+8}, s40"); k(f"v_mov_b32 v{T+9}, s41")
    k(f"v_mov_b32 v{T+10}, s38"); k(f"v_mov_b32 v{T+11}, s39")
    for i in range(16):
        d = T + 2*(i % 4)
        k(f"v_pk_fma_f32 {vr(d,2)}, {vr(XF+2*i,2)}, {vr(T+8,2)}, {vr(T+10,2)} neg_lo:[0,0,1] neg_hi:[0,0,1]")
        k(f"{CVT} v{OP+i}, v{d}, v{d+1}")
    k("s_lshl_b32 s36, s28, 12")
    k("v_lshlrev_b32 v2, 5, v1")
    k("v_add_u32 v2, s36, v2")
    k(f"ds_write_b128 v2, {vr(OP,4)}")
    k(f"ds_write_b128 v2, {vr(OP+4,4)} offset:16")
    k(f"ds_write_b128 v2, {vr(OP+8,4)} offset:2048")
    k(f"ds_write_b128 v2, {vr(OP+12,4)} offset:2064")
    k("v_and_b32 v3, 31, v1")
    k("v_lshlrev_b32 v3, 2, v3")
    k("v_lshrrev_b32 v206, 5, v1")
    k("v_lshlrev_b32 v206, 9, v206")
    k("v_add3_u32 v3, v3, v206, s36")
    k("s_waitcnt lgkmcnt(0)")
    for i, (r, c) in enumerate(SEQ):
        k(f"ds_read_b32 v{OP+i}, v3 offset:{(8*r+c)*128}")
    swz = 44
    k("s_lshr_b32 s44, s2, 1")
    k("s_and_b32 s44, s44, 7")
    k("s_mov_b32 s45, 0x05040100")
    k("s_mov_b32 s46, 0x07060302")
    k("s_waitcnt vmcnt(0)")
    if W1PF:
        srd(k, 56, 60, S*F*2)
        k(f"s_mul_i32 s62, s2, {149*128}")
        k("v_lshlrev_b32 v214, 7, v0")
        k("v_cmp_gt_u32 vcc, 149, v0")
        k("s_and_saveexec_b64 s[36:37], vcc")
        k("s_cbranch_execz L_p1_nopf")
        k("buffer_load_dword v215, v214, s[56:59], s62 offen")
        k("L_p1_nopf:")
        k("s_mov_b64 exec, -1")
    WO = XF
    for e in range(2):
        for pi in range(2):
            for cc in range(4):
                k(f"v_perm_b32 v{WO+4*(2*e+pi)+cc}, v{WL+8+4*pi+cc}, v{WL+4*pi+cc}, s{45+e}")
    k("v_lshlrev_b32 v207, 15, v0")
    k("s_lshl_b32 s47, s2, 7")
    for sl in range(4):
        k(f"s_xor_b32 s48, s44, {4+sl}")
        k("s_lshl_b32 s48, s48, 4")
        k("s_add_u32 s48, s48, s47")
        k(f"buffer_store_dwordx4 {vr(WO+4*sl,4)}, v207, s[20:23], s48 offen")
    k("v_lshlrev_b32 v203, 16, v203")
    k("v_or_b32 v202, v202, v203")
    k("v_bfe_u32 v201, v1, 2, 1")
    k("v_add_u32 v201, 4, v201")
    k("v_xor_b32 v201, s44, v201")
    k("v_lshlrev_b32 v201, 4, v201")
    k("v_and_b32 v203, 3, v1")
    k("v_lshl_add_u32 v201, v203, 2, v201")
    k("s_add_u32 s48, s47, 0x800000")
    k("v_cmp_gt_u32 vcc, 8, v0")
    k("s_and_saveexec_b64 s[36:37], vcc")
    k("s_cbranch_execz L_p1_nox2")
    k("buffer_store_dword v202, v201, s[20:23], s48 offen")
    k("L_p1_nox2:")
    k("s_mov_b64 exec, -1")
    mark(k, 3)
    k("s_waitcnt lgkmcnt(0)")
    stage(k, 'A', DR, DI, OP, Mr, Mi)
    cmul_pack(k, DR, DI, TWR, TWI, OP, T)
    stage(k, 'B', DR, DI, OP, Mr, Mi)
    mark(k, 4)
    STG = 16384
    k("v_and_b32 v2, 31, v1")
    k("v_lshrrev_b32 v3, 5, v1")
    k("v_and_b32 v206, 1, v2")
    k("v_xor_b32 v207, s44, v206")
    k("v_and_b32 v207, 3, v207")
    k("v_lshlrev_b32 v207, 4, v207")
    k("v_lshrrev_b32 v208, 1, v2")
    k("v_lshl_add_u32 v207, v208, 6, v207")
    k("v_lshl_add_u32 v207, v3, 12, v207")
    k("s_lshl_b32 s48, s28, 2")
    k(f"s_add_u32 s48, s48, {STG}")
    k("v_add_u32 v207, s48, v207")
    k("v_add_u32 v206, 2, v206")
    k("v_xor_b32 v206, s44, v206")
    k("v_and_b32 v206, 3, v206")
    k("v_lshlrev_b32 v206, 4, v206")
    k("v_add_u32 v208, 1, v2")
    k("v_lshrrev_b32 v208, 1, v208")
    k("v_lshlrev_b32 v208, 6, v208")
    k("v_sub_u32 v206, v206, v208")
    k("v_lshlrev_b32 v208, 12, v3")
    k("v_sub_u32 v206, v206, v208")
    k("v_add_u32 v206, s48, v206")
    for i, (r, c) in enumerate(SEQ):
        if r < 2: k(f"{CVT} v{OP+i}, v{DR+i}, v{DI+i}")
        else:     k(f"{CVT} v{OP+i}, v{DI+i}, v{DR+i}")
    k(f"{CVT} v{T}, v{DI}, v{DR}")
    k(f"{CVT} v{T+1}, v{DR+8}, v{DI+8}")
    for i, (r, c) in enumerate(SEQ):
        if r < 2: k(f"ds_write_b32 v207, v{OP+i} offset:{(8*r+c)*1024}")
        else:     k(f"ds_write_b32 v206, v{OP+i} offset:{(32-8*r-c)*1024}")
    k("s_xor_b32 s49, s44, 2")
    k("s_and_b32 s49, s49, 3")
    k("s_lshl_b32 s49, s49, 4")
    k("s_add_u32 s49, s49, s48")
    k("s_and_b32 s50, s44, 3")
    k("s_lshl_b32 s50, s50, 4")
    k("s_add_u32 s50, s50, s48")
    k("v_mov_b32 v208, s49")
    k("v_mov_b32 v209, s50")
    k("s_mov_b64 exec, 1")
    k(f"ds_write_b32 v208, v{T}")
    k(f"ds_write_b32 v209, v{T+1} offset:16384")
    k("s_mov_b64 exec, -1")
    k("s_waitcnt lgkmcnt(0)")
    k("s_barrier")
    k("v_lshlrev_b32 v2, 4, v0")
    k(f"v_add_u32 v2, {STG}, v2")
    for j in range(4):
        k(f"ds_read_b128 {vr(XF+4*j,4)}, v2 offset:{4096*j}")
    k("v_lshrrev_b32 v3, 2, v0")
    k("v_lshlrev_b32 v3, 15, v3")
    k("v_and_b32 v206, 3, v0")
    k("v_lshl_add_u32 v3, v206, 4, v3")
    k("s_and_b32 s48, s44, 4")
    k("s_lshl_b32 s48, s48, 4")
    k("s_add_u32 s48, s48, s47")
    k("v_cmp_gt_u32 vcc, 4, v0")
    k("s_and_saveexec_b64 s[36:37], vcc")
    k("s_cbranch_execz L_p1_nox3")
    k(f"ds_read_b128 {vr(XF+16,4)}, v2 offset:16384")
    k("s_waitcnt lgkmcnt(0)")
    k("s_add_u32 s49, s48, 0x800000")
    k(f"buffer_store_dwordx4 {vr(XF+16,4)}, v3, s[20:23], s49 offen")
    k("L_p1_nox3:")
    k("s_mov_b64 exec, -1")
    k("s_waitcnt lgkmcnt(0)")
    for j in range(4):
        k(f"buffer_store_dwordx4 {vr(XF+4*j,4)}, v3, s[20:23], s48 offen")
        if j < 3: k("s_add_u32 s48, s48, 0x200000")
    stamp_end(k, 'p1')
    k("L_p1_end:")
    k("s_endpgm")
    k("L_p1_endc:")
    return k, 216, 32832+64


def gen_p2():
    k = Kern('p2_kernel')
    k("s_cmp_ge_u32 s2, 257")
    k("s_cbranch_scc1 L_p2_end")
    stamp_begin(k)
    k("s_load_dwordx2 s[26:27], s[0:1], 80")
    k("s_load_dwordx2 s[24:25], s[0:1], 32")
    k("v_and_b32 v1, 63, v0")
    k("v_lshrrev_b32 v2, 6, v0")
    k("v_readfirstlane_b32 s28, v2")
    k("v_lshlrev_b32 v2, 4, v1")
    k("s_lshr_b32 s29, s28, 1")
    k("s_and_b32 s30, s28, 1")
    k("s_lshl_b32 s31, s2, 15")
    k("s_lshl_b32 s32, s28, 13")
    k("s_add_u32 s31, s31, s32")
    k("s_waitcnt lgkmcnt(0)")
    srd(k, 8, 26, 257*32768, ZW_OFF)
    srd(k, 12, 26, 256*VB_BLK, VB_OFF)
    for i in range(8):
        k(f"s_add_u32 m0, s32, {1024*i}")
        k(f"buffer_load_dwordx4 v2, s[8:11], s31 offen lds")
        if i < 7: k("s_add_u32 s31, s31, 1024")
    if W1PF:
        srd(k, 16, 24, S*F*2)
        k(f"s_mul_i32 s33, s2, {150*128}")
        k(f"s_add_u32 s33, s33, {38144*128}")
        k("v_lshlrev_b32 v3, 7, v0")
        k("v_min_u32 v3, 149*128, v3")
        k("buffer_load_dword v255, v3, s[16:19], s33 offen")
    Z1, Z2 = 4, 20
    M1r, M1i, MFr, MFi, MIr, MIi = 36, 52, 68, 84, 100, 116
    T1r, T1i, T2r, T2i = 132, 148, 164, 180
    DR, DI, T = 196, 212, 228
    A, B, J, H4, PI = 244, 245, 246, 247, 248
    k(f"v_and_b32 v{J}, 31, v1")
    k(f"v_cvt_f32_u32 v{J}, v{J}")
    k(f"v_lshrrev_b32 v{H4}, 5, v1")
    k(f"v_lshlrev_b32 v{H4}, 2, v{H4}")
    k(f"v_cvt_f32_u32 v{H4}, v{H4}")
    k(f"v_mov_b32 v{PI}, s30")
    k(f"v_cvt_f32_u32 v{PI}, v{PI}")
    k(f"v_mul_f32 v{A}, {f32(1/32)}, v{J}")
    k(f"v_mul_f32 v{B}, v{A}, v{H4}")
    gen_matrix(k, MFr, MFi, A, B, T)
    k(f"v_fma_f32 v{A}, v{J}, 2.0, v{PI}")
    k(f"v_mul_f32 v{A}, {f32(1/64)}, v{A}")
    k(f"v_mul_f32 v{B}, v{A}, v{H4}")
    gen_matrix(k, M1r, M1i, A, B, T)
    k("s_lshl_b32 s33, s30, 4")
    k(f"v_and_b32 v{T}, 31, v1")
    k(f"v_xor_b32 v{T}, s33, v{T}")
    k(f"v_cvt_f32_u32 v{T}, v{T}")
    k(f"v_mul_f32 v{A}, {f32(1/32)}, v{T}")
    k(f"v_mul_f32 v{B}, v{A}, v{H4}")
    k(f"v_mul_f32 v{T}, {f32(1/64)}, v{T}")
    k(f"v_fma_f32 v{B}, v{T}, v{PI}, v{B}")
    gen_matrix(k, MIr, MIi, A, B, T)
    k(f"v_fma_f32 v{A}, v{J}, 2.0, v{PI}")
    k(f"v_mul_f32 v{A}, {f32(1/2048)}, v{A}")
    k(f"v_mov_b32 v{T}, {f32(0.125)}")
    k(f"v_mul_f32 v{T+1}, {f32(-0.25)}, v{PI}")
    k(f"v_add_f32 v{T}, v{T}, v{T+1}")
    k(f"v_fma_f32 v{B}, v{A}, v{H4}, v{T}")
    gen_twiddle(k, T1r, T1i, A, B, T)
    k(f"v_mul_f32 v{A}, {f32(1/1024)}, v{J}")
    k(f"v_mul_f32 v{B}, v{A}, v{H4}")
    k(f"v_mul_f32 v{T}, {f32(1/2048)}, v{J}")
    k(f"v_fma_f32 v{B}, v{T}, v{PI}, v{B}")
    gen_twiddle(k, T2r, T2i, A, B, T)
    AZ1, AZ2, AW = 249, 250, 251
    k(f"v_bfe_u32 v{T}, v1, 1, 3")
    k(f"v_lshlrev_b32 v{T+1}, 7, v1")
    k(f"v_xor_b32 v{AZ1}, s29, v{T}")
    k(f"v_lshl_add_u32 v{AZ1}, v{AZ1}, 4, v{T+1}")
    k("s_add_u32 s33, s29, 2")
    k(f"v_xor_b32 v{AZ2}, s33, v{T}")
    k(f"v_lshl_add_u32 v{AZ2}, v{AZ2}, 4, v{T+1}")
    k("s_lshl_b32 s33, s29, 1")
    k("s_add_u32 s33, s33, s30")
    k("s_add_u32 s33, s33, 4")
    k(f"v_xor_b32 v{AW}, s33, v{T}")
    k(f"v_lshl_add_u32 v{AW}, v{AW}, 4, v{T+1}")
    k("s_mul_i32 s34, s30, 0x80008000")
    k("s_mov_b32 s35, 0xffff0000")
    mark(k, 1)
    k(f"s_waitcnt vmcnt({1 if W1PF else 0})")
    k("s_barrier")
    mark(k, 2)
    for r in range(4):
        k(f"ds_read_b128 {vr(Z1+4*r,4)}, v{AZ1} offset:{8192*r}")
        k(f"ds_read_b128 {vr(Z2+4*r,4)}, v{AZ2} offset:{8192*r}")
    k("s_waitcnt lgkmcnt(0)")
    for i in range(16):
        k(f"v_xor_b32 v{Z2+i}, s34, v{Z2+i}")
    stage(k, 'A', DR, DI, Z1, M1r, M1i, first=True)
    stage(k, 'A', DR, DI, Z2, M1r, M1i, first=False)
    for r in range(4):
        k(f"ds_read_b128 {vr(Z2+4*r,4)}, v{AW} offset:{8192*r}")
    OP = Z1
    cmul_pack(k, DR, DI, T1r, T1i, OP, T)
    stage(k, 'B', DR, DI, OP, MFr, MFi)
    WR, WI = M1r, M1i
    k("s_waitcnt lgkmcnt(0)")
    for i in range(16):
        k(f"v_lshlrev_b32 v{WR+i}, 16, v{Z2+i}")
        k(f"v_and_b32 v{WI+i}, s35, v{Z2+i}")
    cmul_pack(k, DR, DI, WR, WI, OP, T, conj=True)
    stage(k, 'A', DR, DI, OP, MFr, MFi)
    cmul_pack(k, DR, DI, T2r, T2i, OP, T)
    stage(k, 'B', DR, DI, OP, MIr, MIi)
    mark(k, 4)
    XCH, STG = 32768, 49152
    AX = 252
    k("s_lshl_b32 s36, s28, 12")
    k(f"s_add_u32 s36, s36, {XCH}")
    k(f"v_lshl_add_u32 v{AX}, v1, 4, s36")
    k(f"ds_write_b128 v{AX}, {vr(DR+8,4)}")
    k(f"ds_write_b128 v{AX}, {vr(DR+12,4)} offset:1024")
    k(f"ds_write_b128 v{AX}, {vr(DI+8,4)} offset:2048")
    k(f"ds_write_b128 v{AX}, {vr(DI+12,4)} offset:3072")
    k(f"v_xor_b32 v{AX}, 4096, v{AX}")
    k("s_lshl_b32 s37, s2, 1")
    k("s_add_u32 s37, s37, s29")
    k("s_and_b32 s37, s37, 511")
    k("s_cmp_eq_u32 s37, 0")
    k(f"s_cselect_b32 s38, 0, {f32(1.0)}")
    k("s_cmp_eq_u32 s30, 0")
    k(f"s_cselect_b32 s40, {f32(1.0)}, {f32(-1.0)}")
    k("s_lshl_b32 s41, s30, 31")
    k("s_xor_b32 s42, s38, s41")
    k("s_waitcnt lgkmcnt(0)")
    k("s_barrier")
    OR_, OI = 36, 44
    k(f"ds_read_b128 {vr(OR_,4)}, v{AX}")
    k(f"ds_read_b128 {vr(OR_+4,4)}, v{AX} offset:1024")
    k(f"ds_read_b128 {vr(OI,4)}, v{AX} offset:2048")
    k(f"ds_read_b128 {vr(OI+4,4)}, v{AX} offset:3072")
    k(f"v_bfe_u32 v{T}, v1, 1, 2")
    k(f"v_xor_b32 v{T+1}, s29, v{T}")
    k(f"v_xor_b32 v{T+2}, 2, v{T+1}")
    k("s_lshl_b32 s43, s30, 13")
    k(f"s_add_u32 s43, s43, {STG}")
    k(f"v_lshl_add_u32 v{T+3}, v1, 6, s43")
    k(f"v_lshl_add_u32 v253, v{T+1}, 4, v{T+3}")
    k(f"v_lshl_add_u32 v254, v{T+2}, 4, v{T+3}")
    k("s_waitcnt lgkmcnt(0)")
    UA, UB = 52, 60
    Ur, Ui, Er, Ei, Ar, Ai, Br, Bi = 68, 70, 72, 74, 76, 78, 80, 82
    bc = "op_sel_hi:[1,0,1]"
    for j in range(0, 8, 2):
        o = 16*((j//2) % 2)
        ur, ui, er, ei, a_r, a_i, b_r, b_i = [x+o for x in (Ur, Ui, Er, Ei, Ar, Ai, Br, Bi)]
        k(f"v_pk_add_f32 {vr(ur,2)}, {vr(DR+j,2)}, {vr(OR_+j,2)}")
        k(f"v_pk_add_f32 {vr(ui,2)}, {vr(DI+j,2)}, {vr(OI+j,2)}")
        k(f"v_pk_add_f32 {vr(er,2)}, {vr(DR+j,2)}, {vr(OR_+j,2)} neg_lo:[0,1] neg_hi:[0,1]")
        k(f"v_pk_add_f32 {vr(ei,2)}, {vr(DI+j,2)}, {vr(OI+j,2)} neg_lo:[0,1] neg_hi:[0,1]")
        k(f"v_pk_fma_f32 {vr(a_r,2)}, {vr(ei,2)}, s[42:43], {vr(ur,2)} {bc}")
        k(f"v_pk_fma_f32 {vr(b_r,2)}, {vr(ei,2)}, s[42:43], {vr(ur,2)} {bc} neg_lo:[1,0,0] neg_hi:[1,0,0]")
        k(f"v_pk_mul_f32 {vr(ui,2)}, {vr(ui,2)}, s[38:39] op_sel_hi:[1,0]")
        k(f"v_pk_fma_f32 {vr(a_i,2)}, {vr(er,2)}, s[40:41], {vr(ui,2)} {bc} neg_lo:[1,0,0] neg_hi:[1,0,0]")
        k(f"v_pk_fma_f32 {vr(b_i,2)}, {vr(er,2)}, s[40:41], {vr(ui,2)} {bc} neg_lo:[1,0,1] neg_hi:[1,0,1]")
        k(f"{CVT} v{UA+j}, v{a_r}, v{a_i}")
        k(f"{CVT} v{UA+j+1}, v{a_r+1}, v{a_i+1}")
        k(f"{CVT} v{UB+j}, v{b_r}, v{b_i}")
        k(f"{CVT} v{UB+j+1}, v{b_r+1}, v{b_i+1}")
    for rl in range(2):
        k(f"ds_write_b128 v253, {vr(UA+4*rl,4)} offset:{4096*rl}")
        k(f"ds_write_b128 v254, {vr(UB+4*rl,4)} offset:{4096*rl}")
    k(f"v_and_b32 v{T}, 3, v0")
    k(f"v_bfe_u32 v{T+1}, v0, 3, 2")
    k(f"v_xor_b32 v{T+1}, v{T}, v{T+1}")
    k(f"v_lshrrev_b32 v{T+2}, 2, v0")
    k(f"v_lshlrev_b32 v{T+3}, 6, v{T+2}")
    k(f"v_lshl_add_u32 v{T+3}, v{T+1}, 4, v{T+3}")
    k(f"v_add_u32 v{T+3}, {STG}, v{T+3}")
    k(f"v_mul_u32_u24 v{T+2}, {VB_BLK}, v{T+2}")
    k("s_and_b32 s44, s2, 2")
    k(f"v_xor_b32 v{T}, s44, v{T}")
    k(f"v_lshl_add_u32 v{T+2}, v{T}, 4, v{T+2}")
    k("s_lshl_b32 s45, s2, 6")
    k("s_waitcnt lgkmcnt(0)")
    k("s_barrier")
    for j in range(4):
        k(f"ds_read_b128 {vr(4+4*j,4)}, v{T+3} offset:{4096*j}")
    k("s_waitcnt lgkmcnt(0)")
    for j in range(4):
        k(f"buffer_store_dwordx4 {vr(4+4*j,4)}, v{T+2}, s[12:15], s45 offen")
        if j < 3: k(f"s_add_u32 s45, s45, {64*VB_BLK}")
    stamp_end(k, 'p2')
    k("L_p2_end:")
    k("s_endpgm")
    return k, 256, 65536

def ln_stats_rows(k, R0, R1, t, vRM, sTmp):
    for (R, o) in ((R0, 0), (R1, 4)):
        a, b = t+o, t+o+2
        k(f"v_pk_add_f32 {vr(a,2)}, {vr(R,2)}, {vr(R+2,2)}")
        k(f"v_pk_add_f32 {vr(b,2)}, {vr(R+4,2)}, {vr(R+6,2)}")
    for i in range(4, 8):
        for (R, o) in ((R0, 0), (R1, 4)):
            a = t+o+2*(i % 2)
            k(f"v_pk_add_f32 {vr(a,2)}, {vr(a,2)}, {vr(R+2*i,2)}")
    for o in (0, 4):
        k(f"v_pk_add_f32 {vr(t+o,2)}, {vr(t+o,2)}, {vr(t+o+2,2)}")
    k(f"v_add_f32 v{t}, v{t}, v{t+1}")
    k(f"v_add_f32 v{t+1}, v{t+4}, v{t+5}")
    wave_reduce2(k, t, t+1)
    k(f"v_mul_f32 v{t}, {f32(1/1024)}, v{t}")
    k(f"v_mul_f32 v{t+1}, {f32(1/1024)}, v{t+1}")
    k(f"{CVT} v{t+2}, v{t}, v{t+1}")
    k(f"v_readlane_b32 s{sTmp}, v{t}, 63")
    k(f"v_readlane_b32 s{sTmp+1}, v{t+1}, 63")
    k(f"v_lshlrev_b32 v{t+12}, 16, v{t+2}")
    k(f"v_and_b32 v{t+13}, 0xffff0000, v{t+2}")
    acc = {0: t, 1: t+2}; tmp = [t+4, t+6, t+8, t+10]
    n = 0
    for i in range(8):
        for row, R in ((0, R0), (1, R1)):
            d = tmp[n % 4]; n += 1
            sel = "op_sel_hi:[1,0]" if row == 0 else "op_sel:[0,1] op_sel_hi:[1,1]"
            k(f"v_pk_add_f32 {vr(d,2)}, {vr(R+2*i,2)}, {sr(sTmp,2)} {sel} neg_lo:[0,1] neg_hi:[0,1]")
            a = acc[row]
            if i == 0: k(f"v_pk_mul_f32 {vr(a,2)}, {vr(d,2)}, {vr(d,2)}")
            else:      k(f"v_pk_fma_f32 {vr(a,2)}, {vr(d,2)}, {vr(d,2)}, {vr(a,2)}")
    k(f"v_add_f32 v{t}, v{t}, v{t+1}")
    k(f"v_add_f32 v{t+1}, v{t+2}, v{t+3}")
    wave_reduce2(k, t, t+1)
    k(f"v_mul_f32 v{t}, {f32(1/1024)}, v{t}")
    k(f"v_mul_f32 v{t+1}, {f32(1/1024)}, v{t+1}")
    k(f"{CVT} v{t+2}, v{t}, v{t+1}")
    k(f"v_lshlrev_b32 v{t}, 16, v{t+2}")
    k(f"v_and_b32 v{t+1}, 0xffff0000, v{t+2}")
    k(f"v_add_f32 v{t}, {f32(1e-5)}, v{t}")
    k(f"v_add_f32 v{t+1}, {f32(1e-5)}, v{t+1}")
    k(f"{CVT} v{t+2}, v{t}, v{t+1}")
    k(f"v_lshlrev_b32 v{t}, 16, v{t+2}")
    k(f"v_and_b32 v{t+1}, 0xffff0000, v{t+2}")
    k(f"v_sqrt_f32 v{t}, v{t}")
    k(f"v_sqrt_f32 v{t+1}, v{t+1}")
    k(f"s_nop 0")
    k(f"{CVT} v{t+2}, v{t}, v{t+1}")
    k(f"v_lshlrev_b32 v{t}, 16, v{t+2}")
    k(f"v_and_b32 v{t+1}, 0xffff0000, v{t+2}")
    k(f"v_rcp_f32 v{t}, v{t}")
    k(f"v_rcp_f32 v{t+1}, v{t+1}")
    k(f"s_nop 0")
    k(f"v_mul_f32 v{t+12}, v{t+12}, v{t}")
    k(f"v_mul_f32 v{t+13}, v{t+13}, v{t+1}")
    k(f"v_readlane_b32 s{sTmp}, v{t}, 63")
    k(f"v_readlane_b32 s{sTmp+1}, v{t+1}, 63")
    k(f"v_readlane_b32 s{sTmp+2}, v{t+12}, 63")
    k(f"v_readlane_b32 s{sTmp+3}, v{t+13}, 63")
    for i in range(4):
        k(f"v_mov_b32 v{vRM+i}, s{sTmp+i}")

def ln_apply_rows(k, R0, R1, vRM, dst0, dst1):
    for i in range(8):
        k(f"v_pk_fma_f32 {vr(dst0+2*i,2)}, {vr(R0+2*i,2)}, {vr(vRM,2)}, {vr(vRM+2,2)} op_sel_hi:[1,0,0] neg_lo:[0,0,1] neg_hi:[0,0,1]")
        k(f"v_pk_fma_f32 {vr(dst1+2*i,2)}, {vr(R1+2*i,2)}, {vr(vRM,2)}, {vr(vRM+2,2)} op_sel:[0,1,1] op_sel_hi:[1,1,1] neg_lo:[0,0,1] neg_hi:[0,0,1]")

def gen_p3():
    k = Kern('p3_kernel')
    k("s_cmp_ge_u32 s2, 256")
    k("s_cbranch_scc1 L_p3_end")
    stamp_begin(k)
    k("s_load_dwordx2 s[4:5], s[0:1], 0")
    k("s_load_dwordx2 s[26:27], s[0:1], 80")
    k("s_load_dwordx2 s[24:25], s[0:1], 32")
    k("v_and_b32 v1, 63, v0")
    k("v_lshrrev_b32 v2, 6, v0")
    k("v_readfirstlane_b32 s28, v2")
    k("s_lshr_b32 s29, s2, 5")
    k("s_lshl_b32 s29, s29, 2")
    k("s_and_b32 s30, s2, 31")
    k("s_add_u32 s31, s29, s28")
    k("s_lshl_b32 s31, s31, 5")
    k("s_add_u32 s31, s31, s30")
    k("s_lshl_b32 s31, s31, 11")
    k("s_add_u32 s32, s31, 0x200000")
    k(f"s_mul_i32 s33, s2, {VB_BLK}")
    k("s_lshl_b32 s34, s28, 12")
    k("s_add_u32 s33, s33, s34")
    k("v_lshlrev_b32 v2, 4, v1")
    k("s_waitcnt lgkmcnt(0)")
    srd(k, 8, 4, S*D*2)
    srd(k, 12, 26, 256*VB_BLK, VB_OFF)
    srd(k, 16, 26, S*D*2, H_OFF)
    srd(k, 20, 26, S*D*2, HN_OFF)
    for i in range(4):
        k(f"s_add_u32 m0, s34, {1024*i}")
        k(f"buffer_load_dwordx4 v2, s[12:15], s33 offen lds")
        k("s_add_u32 s33, s33, 1024")
    k("s_cmp_eq_u32 s28, 3")
    k("s_cbranch_scc0 L_p3_noex")
    k("s_mov_b32 m0, 16384")
    k(f"buffer_load_dwordx4 v2, s[12:15], s33 offen lds")
    k("L_p3_noex:")
    XL = 4
    k(f"buffer_load_dwordx4 {vr(XL,4)}, v2, s[8:11], s31 offen")
    k(f"buffer_load_dwordx4 {vr(XL+4,4)}, v2, s[8:11], s31 offen offset:1024")
    k(f"buffer_load_dwordx4 {vr(XL+8,4)}, v2, s[8:11], s32 offen")
    k(f"buffer_load_dwordx4 {vr(XL+12,4)}, v2, s[8:11], s32 offen offset:1024")
    if W1PF:
        srd(k, 48, 24, S*F*2)
        k(f"s_mul_i32 s38, s2, {149*128}")
        k(f"s_add_u32 s38, s38, {76544*128}")
        k("v_lshlrev_b32 v226, 7, v0")
        k("v_min_u32 v226, 148*128, v226")
        k("buffer_load_dword v224, v226, s[48:51], s38 offen")
    OP, Mr, Mi, TWR, TWI, DR, DI, T = 20, 36, 52, 68, 84, 100, 116, 132
    R0, R1, Y0, Y1 = 148, 164, 180, 196
    k("v_and_b32 v212, 31, v1")
    k("v_cvt_f32_u32 v212, v212")
    k("v_lshrrev_b32 v213, 5, v1")
    k("v_lshlrev_b32 v213, 2, v213")
    k("v_cvt_f32_u32 v213, v213")
    k(f"v_mul_f32 v214, {f32(1/32)}, v212")
    k("v_mul_f32 v215, v214, v213")
    gen_matrix(k, Mr, Mi, 214, 215, T)
    k(f"v_mul_f32 v214, {f32(1/1024)}, v212")
    k("v_mul_f32 v215, v214, v213")
    gen_twiddle(k, TWR, TWI, 214, 215, T)
    k(f"s_mov_b32 s36, {f32(2.0**-21.5)}")
    for j in range(0, 32, 2):
        k(f"v_pk_mul_f32 {vr(TWR+j,2)}, {vr(TWR+j,2)}, s[36:37] op_sel_hi:[1,0]")
    k("v_and_b32 v2, 31, v1")
    k("v_lshrrev_b32 v3, 5, v1")
    k("v_and_b32 v216, 1, v2")
    k("v_lshrrev_b32 v217, 1, v2")
    k("v_and_b32 v218, 2, v217")
    k("v_xor_b32 v218, v218, v216")
    k("v_lshlrev_b32 v218, 4, v218")
    k("v_lshl_add_u32 v218, v217, 6, v218")
    k("v_lshl_add_u32 v218, v3, 12, v218")
    k("s_lshl_b32 s37, s28, 2")
    k("v_add_u32 v218, s37, v218")
    k("v_add_u32 v217, 1, v2")
    k("v_lshrrev_b32 v217, 1, v217")
    k("v_sub_u32 v219, 0, v217")
    k("v_and_b32 v219, 2, v219")
    k("v_add_u32 v216, 2, v216")
    k("v_xor_b32 v219, v219, v216")
    k("v_lshlrev_b32 v219, 4, v219")
    k("v_lshlrev_b32 v217, 6, v217")
    k("v_sub_u32 v219, v219, v217")
    k("v_lshlrev_b32 v217, 12, v3")
    k("v_sub_u32 v219, v219, v217")
    k("s_add_u32 s37, s37, 5120")
    k("v_add_u32 v219, s37, v219")
    k("s_mov_b32 s35, 0xffff0000")
    mark(k, 1)
    k(f"s_waitcnt vmcnt({4 + (1 if W1PF else 0)})")
    k("s_barrier")
    mark(k, 2)
    for i, (r, c) in enumerate(SEQ):
        if r < 2: k(f"ds_read_b32 v{OP+i}, v218 offset:{(8*r+c)*1024}")
        else:     k(f"ds_read_b32 v{OP+i}, v219 offset:{(32-8*r-c)*1024-5120}")
    k(f"s_waitcnt vmcnt({1 if W1PF else 0})")
    for i in range(8):
        k(f"v_lshlrev_b32 v{R0+2*i}, 16, v{XL+i}")
        k(f"v_and_b32 v{R0+2*i+1}, s35, v{XL+i}")
        k(f"v_lshlrev_b32 v{R1+2*i}, 16, v{XL+8+i}")
        k(f"v_and_b32 v{R1+2*i+1}, s35, v{XL+8+i}")
    k("s_waitcnt lgkmcnt(0)")
    stage(k, 'A', DR, DI, OP, Mr, Mi)
    cmul_pack(k, DR, DI, TWR, TWI, OP, T)
    stage(k, 'B', DR, DI, OP, Mr, Mi)
    TR = 17408
    mark(k, 3)
    k("s_lshl_b32 s36, s28, 12")
    k(f"s_add_u32 s36, s36, {TR}")
    k("v_and_b32 v3, 31, v1")
    k("v_lshlrev_b32 v3, 2, v3")
    k("v_lshrrev_b32 v216, 5, v1")
    k("v_lshlrev_b32 v216, 9, v216")
    k("v_add3_u32 v3, v3, v216, s36")
    k("v_lshl_add_u32 v2, v1, 5, s36")
    for i in range(16):
        k(f"{CVT} v{OP+i}, v{DR+i}, -v{DI+i}")
    for i, (r, c) in enumerate(SEQ):
        k(f"ds_write_b32 v3, v{OP+i} offset:{(8*r+c)*128}")
    k("s_waitcnt lgkmcnt(0)")
    k(f"ds_read_b128 {vr(OP,4)}, v2")
    k(f"ds_read_b128 {vr(OP+4,4)}, v2 offset:16")
    k(f"ds_read_b128 {vr(OP+8,4)}, v2 offset:2048")
    k(f"ds_read_b128 {vr(OP+12,4)}, v2 offset:2064")
    k("s_waitcnt lgkmcnt(0)")
    for i in range(16):
        k(f"v_lshlrev_b32 v{Y0+i}, 16, v{OP+i}")
        k(f"v_and_b32 v{Y1+i}, s35, v{OP+i}")
    for i in range(8):
        k(f"v_pk_add_f32 {vr(Y0+2*i,2)}, {vr(Y0+2*i,2)}, {vr(R0+2*i,2)}")
        k(f"v_pk_add_f32 {vr(Y1+2*i,2)}, {vr(Y1+2*i,2)}, {vr(R1+2*i,2)}")
    HP = 36
    for i in range(8):
        k(f"{CVT} v{HP+i}, v{Y0+2*i}, v{Y0+2*i+1}")
        k(f"{CVT} v{HP+8+i}, v{Y1+2*i}, v{Y1+2*i+1}")
    k("v_lshlrev_b32 v2, 4, v1")
    k(f"buffer_store_dwordx4 {vr(HP,4)}, v2, s[16:19], s31 offen")
    k(f"buffer_store_dwordx4 {vr(HP+4,4)}, v2, s[16:19], s31 offen offset:1024")
    k(f"buffer_store_dwordx4 {vr(HP+8,4)}, v2, s[16:19], s32 offen")
    k(f"buffer_store_dwordx4 {vr(HP+12,4)}, v2, s[16:19], s32 offen offset:1024")
    for i in range(8):
        k(f"v_lshlrev_b32 v{R0+2*i}, 16, v{HP+i}")
        k(f"v_and_b32 v{R0+2*i+1}, s35, v{HP+i}")
        k(f"v_lshlrev_b32 v{R1+2*i}, 16, v{HP+8+i}")
        k(f"v_and_b32 v{R1+2*i+1}, s35, v{HP+8+i}")
    RM = 220
    mark(k, 4)
    ln_stats_rows(k, R0, R1, T, RM, 40)
    ln_apply_rows(k, R0, R1, RM, Y0, Y1)
    LP = 52
    for i in range(8):
        k(f"{CVT} v{LP+i}, v{Y0+2*i}, v{Y0+2*i+1}")
        k(f"{CVT} v{LP+8+i}, v{Y1+2*i}, v{Y1+2*i+1}")
    for i in range(8):
        k(f"v_lshlrev_b32 v{R0+2*i}, 16, v{LP+i}")
        k(f"v_and_b32 v{R0+2*i+1}, s35, v{LP+i}")
        k(f"v_lshlrev_b32 v{R1+2*i}, 16, v{LP+8+i}")
        k(f"v_and_b32 v{R1+2*i+1}, s35, v{LP+8+i}")
    ln_stats_rows(k, R0, R1, T, RM, 40)
    ln_apply_rows(k, R0, R1, RM, Y0, Y1)
    NP = 68
    for i in range(8):
        k(f"{CVT} v{NP+i}, v{Y0+2*i}, v{Y0+2*i+1}")
        k(f"{CVT} v{NP+8+i}, v{Y1+2*i}, v{Y1+2*i+1}")
    k(f"buffer_store_dwordx4 {vr(NP,4)}, v2, s[20:23], s31 offen")
    k(f"buffer_store_dwordx4 {vr(NP+4,4)}, v2, s[20:23], s31 offen offset:1024")
    k(f"buffer_store_dwordx4 {vr(NP+8,4)}, v2, s[20:23], s32 offen")
    k(f"buffer_store_dwordx4 {vr(NP+12,4)}, v2, s[20:23], s32 offen offset:1024")
    stamp_end(k, 'p3')
    k("L_p3_end:")
    k("s_endpgm")
    return k, 228, 33792

MF16 = 'v_mfma_f32_16x16x32_bf16'

def interleave(mf, rd, lead=0):
    out = []; n = len(mf); m = len(rd); ri = 0
    for i in range(n):
        out.append(mf[i])
        tgt = min(m, (m*(i+1) + n - 1)//n)
        while ri < tgt:
            out.append(rd[ri]); ri += 1
    out += rd[ri:]
    return out

def producer_loop(k, tag, per, issue, NS, NIT):
    mark(k, 1)
    issue()
    mark(k, 2)
    issue()
    k(f"s_waitcnt vmcnt({per})")
    mark(k, 3)
    k("s_barrier")
    for n in range(2, NS): issue()
    mark(k, 4)
    nmain = NIT - NS
    k(f"s_mov_b32 s60, 0")
    k(f"L_{tag}_ploop:")
    k(f"s_waitcnt vmcnt({(NS-2)*per})")
    k("s_barrier")
    issue()
    k("s_add_u32 s60, s60, 1")
    k(f"s_cmp_lt_u32 s60, {nmain}")
    k(f"s_cbranch_scc1 L_{tag}_ploop")
    for n in range(nmain, NIT-1):
        k(f"s_waitcnt vmcnt({(NIT-1-(n+1))*per})")
        k("s_barrier")


def gemm_kernel(tag):
    g1 = tag == 'g1'
    k = Kern(tag + '_kernel')
    TA = 2 if g1 else 1
    AROW = 256 if g1 else 128
    ASZ = 64*AROW; STG = ASZ + 16384
    NS = NS1 if g1 else NS2
    NIT = 32 if g1 else 56
    NWG = 224 if g1 else 256
    BSTR = 7168 if g1 else 4096
    PF = PFD
    k(f"s_cmp_ge_u32 s2, 256")
    k(f"s_cbranch_scc1 L_{tag}_end")
    stamp_begin(k)
    if g1:
        k("s_load_dwordx4 s[4:7], s[0:1], 32")
        k("s_load_dwordx2 s[24:25], s[0:1], 48")
    else:
        k("s_load_dwordx4 s[4:7], s[0:1], 48")
        k("s_load_dwordx2 s[24:25], s[0:1], 64")
    k("s_load_dwordx2 s[26:27], s[0:1], 80")
    k("v_and_b32 v1, 63, v0")
    k("v_lshrrev_b32 v2, 6, v0")
    k("v_readfirstlane_b32 s28, v2")
    if g1:
        k("s_and_b32 s30, s2, 1")
        k("s_lshl_b32 s30, s30, 2")
        k("s_bfe_u32 s52, s2, 0x20003")
        k("s_add_u32 s30, s30, s52")
        k("s_bfe_u32 s29, s2, 0x20001")
        k("s_mul_i32 s29, s29, 7")
        k("s_lshr_b32 s53, s2, 5")
        k("s_add_u32 s29, s29, s53")
        k("s_lshl_b32 s31, s29, 8")
        k("s_lshl_b32 s32, s30, 8")
    else:
        k("s_and_b32 s29, s2, 3")
        k("s_lshl_b32 s29, s29, 2")
        k("s_bfe_u32 s53, s2, 0x20003")
        k("s_add_u32 s29, s29, s53")
        k("s_bfe_u32 s30, s2, 0x10002")
        k("s_lshl_b32 s30, s30, 3")
        k("s_lshr_b32 s52, s2, 5")
        k("s_add_u32 s30, s30, s52")
        k("s_lshl_b32 s31, s29, 8")
        k("s_lshl_b32 s32, s30, 7")
    k("s_waitcnt lgkmcnt(0)")
    if g1:
        srd(k, 8, 4, S*F*2)
        srd(k, 12, 26, S*D*2, HN_OFF)
        srd(k, 16, 26, F*D*2, GT_OFF)
        srd(k, 20, 6, F*2)
        if W2PF:
            k("s_cmp_lt_u32 s2, 224")
            k(f"s_cbranch_scc1 L_{tag}_main")
            srd(k, 48, 24, F*S*2)
            k("s_sub_u32 s33, s2, 224")
            k("s_mul_i32 s33, s33, 458752")
            k("v_lshlrev_b32 v2, 7, v0")
            for i in range(7):
                k(f"buffer_load_dword v3, v2, s[48:51], s33 offen")
                k("s_add_u32 s33, s33, 65536")
            k(f"s_branch L_{tag}_end")
            k(f"L_{tag}_main:")
        else:
            k("s_cmp_ge_u32 s2, 224")
            k(f"s_cbranch_scc1 L_{tag}_end")
    else:
        srd(k, 8, 4, F*S*2)
        srd(k, 12, 26, F*D*2, GT_OFF)
        srd(k, 16, 26, S*D*2, H_OFF)
        srd(k, 20, 6, S*2)
        srd(k, 48, 24, S*D*2)
    k("s_cmp_ge_u32 s28, 4")
    k(f"s_cbranch_scc1 L_{tag}_prod")
    FR = 4*(4*TA + 8)
    ACC = 8; NACC = 32*TA
    X = ACC + NACC; Y = X + FR
    R = Y + FR
    AA = [R, R+1]; AB = [R+2, R+3]; BA = [R+4, R+5]; BB = [R+6, R+7]
    MISC = R + 8
    k("s_and_b32 s33, s28, 1")
    k("s_lshr_b32 s34, s28, 1")
    k("v_lshrrev_b32 v2, 4, v1")
    k("v_bfe_u32 v3, v1, 2, 2")
    k("v_and_b32 v4, 3, v1")
    k("v_lshrrev_b32 v5, 1, v2")
    k("v_lshl_add_u32 v5, v5, 3, v3")
    k("v_and_b32 v6, 1, v2")
    k("v_and_b32 v7, 1, v4")
    k("v_lshl_add_u32 v7, v7, 1, v6")
    k(f"s_mul_i32 s35, s33, {4*TA}")
    k("v_add_u32 v7, s35, v7")
    if g1: k("v_lshlrev_b32 v9, 2, v3")
    else:
        k("v_bfe_u32 v9, v3, 1, 1")
        k("v_lshlrev_b32 v9, 2, v9")
    k("v_xor_b32 v7, v7, v9")
    k("v_lshlrev_b32 v7, 4, v7")
    k("v_lshrrev_b32 v9, 1, v4")
    k("v_lshl_add_u32 v7, v9, 3, v7")
    k(f"v_lshl_add_u32 v{BA[0]}, v5, {8 if g1 else 7}, v7")
    k(f"v_xor_b32 v{BA[1]}, 64, v{BA[0]}")
    k("v_lshrrev_b32 v7, 1, v4")
    k("v_lshl_add_u32 v7, v6, 1, v7")
    k("s_lshl_b32 s35, s34, 3")
    k("v_add_u32 v7, s35, v7")
    k("v_lshlrev_b32 v9, 2, v3")
    k("v_xor_b32 v7, v7, v9")
    k("v_lshlrev_b32 v7, 4, v7")
    k("v_and_b32 v9, 1, v4")
    k("v_lshl_add_u32 v7, v9, 3, v7")
    k("v_lshl_add_u32 v7, v5, 8, v7")
    k(f"v_add_u32 v{BB[0]}, {ASZ}, v7")
    k(f"v_xor_b32 v{BB[1]}, 64, v{BB[0]}")
    for i in range(2):
        k(f"v_mov_b32 v{AA[i]}, v{BA[i]}"); k(f"v_mov_b32 v{AB[i]}, v{BB[i]}")
    PFV, DUM = MISC, MISC+1
    nB = 32 if g1 else 16
    nA = 19 if g1 else 16
    k("s_cmp_eq_u32 s28, 0")
    k(f"s_cbranch_scc0 L_{tag}_pfA")
    k(f"v_lshrrev_b32 v2, 1, v1")
    k(f"s_mul_i32 s35, s52, {nB//2}")
    k(f"v_add_u32 v2, s35, v2")
    k(f"v_mul_u32_u24 v2, {BSTR}, v2")
    k(f"v_and_b32 v3, 1, v1")
    k(f"v_lshl_add_u32 v{PFV}, v3, 7, v2")
    k(f"s_mov_b32 s54, s31")
    k(f"s_mov_b32 s55, {64*BSTR}")
    k(f"s_mov_b32 s56, {hex((1<<nB)-1)}"); k("s_mov_b32 s57, 0")
    k(f"s_branch L_{tag}_pfdone")
    k(f"L_{tag}_pfA:")
    if g1:
        k(f"s_mul_i32 s35, s53, 19")
        k(f"v_add_u32 v2, s35, v1")
        k(f"v_min_u32 v2, 127, v2")
        k(f"v_lshrrev_b32 v3, 1, v2")
        k(f"v_lshlrev_b32 v3, 11, v3")
        k(f"v_and_b32 v2, 1, v2")
        k(f"v_lshl_add_u32 v{PFV}, v2, 7, v3")
    else:
        k(f"s_mul_i32 s35, s53, 16")
        k(f"v_add_u32 v2, s35, v1")
        k(f"v_lshlrev_b32 v{PFV}, 11, v2")
    k(f"s_mov_b32 s54, s32")
    k(f"s_mov_b32 s55, {64*2048}")
    k(f"s_mov_b32 s56, {hex((1<<nA)-1)}"); k("s_mov_b32 s57, 0")
    k(f"L_{tag}_pfdone:")
    def pf_touch():
        k("s_mov_b64 exec, s[56:57]")
        k(f"buffer_load_dword v{DUM}, v{PFV}, s[60:63], s54 offen")
        k("s_mov_b64 exec, -1")
        k("s_add_u32 s54, s54, s55")
    if PF > 0:
        k("s_cmp_eq_u32 s28, 0")
        for i in range(4): k(f"s_cselect_b32 s{60+i}, s{8+i}, s{12+i}")
        k("s_mov_b32 s63, 0x20000")
        k("s_cmp_ge_u32 s28, 2")
        k(f"s_cbranch_scc1 L_{tag}_pf0skip")
        for i in range(NS+PF): pf_touch()
        k(f"L_{tag}_pf0skip:")
    if g1:
        BIAS = MISC+2
        k("v_and_b32 v2, 31, v1")
        k("v_lshlrev_b32 v2, 1, v2")
        k("s_lshl_b32 s36, s34, 7")
        k("s_add_u32 s36, s36, s31")
        k(f"buffer_load_ushort v{BIAS}, v2, s[20:23], s36 offen")
        k(f"buffer_load_ushort v{BIAS+1}, v2, s[20:23], s36 offen offset:64")
        NV = MISC+4
    else:
        HL = MISC+2; BIAS = HL+16; OV = BIAS+2
        k("v_and_b32 v2, 31, v1")
        k("v_lshlrev_b32 v3, 11, v2")
        k("v_lshrrev_b32 v4, 5, v1")
        k(f"v_lshl_add_u32 v{OV}, v4, 5, v3")
        k("s_lshl_b32 s36, s29, 7")
        k("s_lshl_b32 s37, s34, 6")
        k("s_add_u32 s36, s36, s37")
        k("s_lshl_b32 s37, s36, 11")
        k("s_add_u32 s37, s37, s32")
        k("s_lshl_b32 s38, s33, 6")
        k("s_add_u32 s37, s37, s38")
        k("s_add_u32 s38, s37, 0x10000")
        k(f"buffer_load_dwordx4 {vr(HL,4)}, v{OV}, s[16:19], s37 offen")
        k(f"buffer_load_dwordx4 {vr(HL+4,4)}, v{OV}, s[16:19], s37 offen offset:16")
        k(f"buffer_load_dwordx4 {vr(HL+8,4)}, v{OV}, s[16:19], s38 offen")
        k(f"buffer_load_dwordx4 {vr(HL+12,4)}, v{OV}, s[16:19], s38 offen offset:16")
        k("v_lshlrev_b32 v2, 1, v2")
        k("s_lshl_b32 s39, s36, 1")
        k(f"buffer_load_ushort v{BIAS}, v2, s[20:23], s39 offen")
        k(f"buffer_load_ushort v{BIAS+1}, v2, s[20:23], s39 offen offset:64")
        NV = OV+1
    def reads(dst):
        r = []
        for ks in range(4):
            b = dst + (4*TA+8)*ks; ko = 16*ks
            for t in range(TA):
                r.append(f"ds_read_b64_tr_b16 {vr(b+4*t,2)}, v{AA[t]} offset:{ko*AROW}")
                r.append(f"ds_read_b64_tr_b16 {vr(b+4*t+2,2)}, v{AA[t]} offset:{(ko+4)*AROW}")
            for t in range(2):
                r.append(f"ds_read_b64_tr_b16 {vr(b+4*TA+4*t,2)}, v{AB[t]} offset:{ko*256}")
                r.append(f"ds_read_b64_tr_b16 {vr(b+4*TA+4*t+2,2)}, v{AB[t]} offset:{(ko+4)*256}")
        return r
    def mfmas(src):
        m = []
        for ks in range(4):
            b = src + (4*TA+8)*ks
            for ta in range(TA):
                for tb in range(2):
                    a = ACC + 16*(2*ta+tb)
                    if FAKE16:
                        for q in range(2):
                            aa = a + 4*((2*ks+q) % 4)
                            m.append(f"{MF16} {vr(aa,4)}, {vr(b+4*ta,4)}, {vr(b+4*TA+4*tb,4)}, {vr(aa,4)}")
                    else:
                        m.append(f"{MF32} {vr(a,16)}, {vr(b+4*ta,4)}, {vr(b+4*TA+4*tb,4)}, {vr(a,16)}")
        return m
    def front(mf, rd, per):
        out = []; ri = 0
        for i, m in enumerate(mf):
            out.append(m)
            for _ in range(per):
                if ri < len(rd): out.append(rd[ri]); ri += 1
        return out + rd[ri:]
    per = RPG1 if g1 else RPG2
    if FAKE16: per = (per+1)//2
    for i in range(NACC): k(f"v_mov_b32 v{ACC+i}, 0")
    k("s_mov_b32 s34, 0")
    k("s_mov_b32 s35, 0")
    mark(k, 1)
    k("s_barrier")
    mark(k, 2)
    for x in reads(X): k(x)
    def adv(pf):
        k(f"s_add_u32 s34, s34, {STG}")
        k(f"s_cmp_eq_u32 s34, {STG*NS}")
        k("s_cselect_b32 s34, 0, s34")
        k("s_waitcnt lgkmcnt(0)")
        k("s_barrier")
        for i in range(TA): k(f"v_add_u32 v{AA[i]}, s34, v{BA[i]}")
        for i in range(2): k(f"v_add_u32 v{AB[i]}, s34, v{BB[i]}")
    npf = [0]
    def pf_in_loop():
        if PF > 0:
            lab = f"L_{tag}_pfs{npf[0]}"; npf[0] += 1
            k("s_cmp_ge_u32 s28, 2")
            k(f"s_cbranch_scc1 {lab}")
            pf_touch()
            k(f"{lab}:")
    k(f"L_{tag}_cloop:")
    adv(True)
    for x in front(mfmas(X), reads(Y), per): k(x)
    pf_in_loop()
    adv(True)
    for x in front(mfmas(Y), reads(X), per): k(x)
    pf_in_loop()
    k("s_add_u32 s35, s35, 2")
    k(f"s_cmp_lt_u32 s35, {NIT-2}")
    k(f"s_cbranch_scc1 L_{tag}_cloop")
    adv(False)
    for x in front(mfmas(X), reads(Y), per): k(x)
    k("s_waitcnt lgkmcnt(0)")
    for x in mfmas(Y): k(x)
    mark(k, 3)
    k("s_mov_b32 s40, 0xffff0000")
    k("s_waitcnt vmcnt(0)")
    mark(k, 4)
    k(f"v_lshlrev_b32 v{BIAS}, 16, v{BIAS}")
    k(f"v_lshlrev_b32 v{BIAS+1}, 16, v{BIAS+1}")
    T = X
    if g1:
        c0 = -2.0*math.log2(math.e)*math.sqrt(2.0/math.pi); c1 = c0*0.044715
        k(f"s_mov_b32 s42, {f32(c1)}")
        k(f"v_mov_b32 v4, {f32(c0)}"); k(f"v_mov_b32 v5, {f32(c0)}")
        k(f"v_mov_b32 v6, 1.0"); k(f"v_mov_b32 v7, 1.0")
        k("v_and_b32 v2, 31, v1")
        k("v_lshlrev_b32 v2, 11, v2")
        k("v_lshrrev_b32 v3, 5, v1")
        k("v_lshl_add_u32 v2, v3, 5, v2")
        k("s_lshl_b32 s36, s29, 7")
        k("s_lshr_b32 s37, s28, 1")
        k("s_lshl_b32 s37, s37, 6")
        k("s_add_u32 s36, s36, s37")
        k("s_lshl_b32 s36, s36, 11")
        k("s_add_u32 s36, s36, s32")
        k("s_lshl_b32 s37, s33, 7")
        k("s_add_u32 s36, s36, s37")
        n = 0
        for ta in range(2):
            for tb in range(2):
                a0 = ACC + 16*(2*ta+tb)
                O = T + 8*(n % 2); n += 1
                for j in range(0, 16, 2):
                    u, w = T+16+4*((j//2) % 4), T+18+4*((j//2) % 4)
                    src = a0+j
                    if EMU_U:
                        k(f"{CVT} v{w}, v{src}, v{src+1}")
                        k(f"v_lshlrev_b32 v{u}, 16, v{w}")
                        k(f"v_and_b32 v{u+1}, s40, v{w}")
                        k(f"v_add_f32 v{u}, v{u}, v{BIAS+tb}")
                        k(f"v_add_f32 v{u+1}, v{u+1}, v{BIAS+tb}")
                        k(f"{CVT} v{w}, v{u}, v{u+1}")
                        k(f"v_lshlrev_b32 v{u}, 16, v{w}")
                        k(f"v_and_b32 v{u+1}, s40, v{w}")
                    else:
                        k(f"v_add_f32 v{u}, v{src}, v{BIAS+tb}")
                        k(f"v_add_f32 v{u+1}, v{src+1}, v{BIAS+tb}")
                    k(f"v_pk_mul_f32 {vr(w,2)}, {vr(u,2)}, {vr(u,2)}")
                    k(f"v_pk_fma_f32 {vr(w,2)}, {vr(w,2)}, s[42:43], {vr(4,2)} op_sel_hi:[1,0,1]")
                    k(f"v_pk_mul_f32 {vr(w,2)}, {vr(w,2)}, {vr(u,2)}")
                    k(f"v_exp_f32 v{w}, v{w}")
                    k(f"v_exp_f32 v{w+1}, v{w+1}")
                    k(f"s_nop 0")
                    k(f"v_pk_add_f32 {vr(w,2)}, {vr(w,2)}, {vr(6,2)}")
                    k(f"v_rcp_f32 v{w}, v{w}")
                    k(f"v_rcp_f32 v{w+1}, v{w+1}")
                    k(f"s_nop 0")
                    k(f"v_pk_mul_f32 {vr(w,2)}, {vr(w,2)}, {vr(u,2)}")
                    k(f"{CVT} v{O+j//2}, v{w}, v{w+1}")
                so = (tb*32*2048 + ta*64)
                k(f"s_add_u32 s37, s36, {so}")
                k(f"buffer_store_dwordx4 {vr(O,4)}, v2, s[16:19], s37 offen")
                k(f"buffer_store_dwordx4 {vr(O+4,4)}, v2, s[16:19], s37 offen offset:16")
    else:
        for t in range(2):
            bias = BIAS + t
            O = T + 8*t
            for j in range(0, 16, 2):
                u, w = T+16+4*((j//2) % 2), T+18+4*((j//2) % 2)
                a = ACC + 16*t + j
                hp = HL + 8*t + j//2
                k(f"{CVT} v{w}, v{a}, v{a+1}")
                k(f"v_lshlrev_b32 v{u}, 16, v{w}")
                k(f"v_and_b32 v{u+1}, s40, v{w}")
                k(f"v_add_f32 v{u}, v{u}, v{bias}")
                k(f"v_add_f32 v{u+1}, v{u+1}, v{bias}")
                k(f"{CVT} v{w}, v{u}, v{u+1}")
                k(f"v_lshlrev_b32 v{u}, 16, v{w}")
                k(f"v_and_b32 v{u+1}, s40, v{w}")
                k(f"v_lshlrev_b32 v{w}, 16, v{hp}")
                k(f"v_and_b32 v{w+1}, s40, v{hp}")
                k(f"v_pk_add_f32 {vr(u,2)}, {vr(u,2)}, {vr(w,2)}")
                k(f"{CVT} v{O+j//2}, v{u}, v{u+1}")
            so = 's37' if t == 0 else 's38'
            k(f"buffer_store_dwordx4 {vr(O,4)}, v{OV}, s[48:51], {so} offen")
            k(f"buffer_store_dwordx4 {vr(O+4,4)}, v{OV}, s[48:51], {so} offen offset:16")
    stamp_end(k, tag)
    k(f"s_branch L_{tag}_end")
    k(f"L_{tag}_prod:")
    k("s_sub_u32 s33, s28, 4")
    if g1:
        k("v_lshrrev_b32 v2, 4, v1")
        k("v_lshlrev_b32 v3, 2, v2")
        k("v_and_b32 v4, 15, v1")
        k("v_xor_b32 v3, v3, v4")
        k("v_lshlrev_b32 v3, 4, v3")
        k("v_lshl_add_u32 v8, v2, 11, v3")
        k("s_lshl_b32 s34, s33, 13")
        nAi, astep = 4, 16*2048
    else:
        k("v_lshrrev_b32 v2, 3, v1")
        k("v_bfe_u32 v3, v2, 1, 1")
        k("v_lshlrev_b32 v3, 2, v3")
        k("v_and_b32 v4, 7, v1")
        k("v_xor_b32 v3, v3, v4")
        k("v_lshlrev_b32 v3, 4, v3")
        k("v_lshl_add_u32 v8, v2, 11, v3")
        k("s_lshl_b32 s34, s33, 14")
        nAi, astep = 2, 32*2048
    k("s_add_u32 s40, s32, s34")
    k("v_lshrrev_b32 v2, 4, v1")
    k("v_lshlrev_b32 v3, 2, v2")
    k("v_and_b32 v4, 15, v1")
    k("v_xor_b32 v3, v3, v4")
    k("v_lshlrev_b32 v3, 4, v3")
    k(f"v_mul_u32_u24 v2, {BSTR}, v2")
    k("v_add_u32 v9, v2, v3")
    k(f"s_mul_i32 s34, s33, {4*BSTR}")
    k("s_add_u32 s41, s31, s34")
    k("s_lshl_b32 s42, s33, 10")
    k("s_mov_b32 s43, 0")
    if KPERM:
        k("s_add_u32 s46, s52, s53")
    k("s_mov_b32 s47, 0")
    def issue():
        if KPERM:
            k("s_add_u32 s58, s46, s47")
            k("s_and_b32 s58, s58, 3")
            k("s_cmp_eq_u32 s58, 0")
            k(f"s_cselect_b32 s58, {3+NIT}, {NIT-1}")
            k("s_add_u32 s58, s58, s47")
            k(f"s_cmp_ge_u32 s58, {2*NIT}")
            k(f"s_cselect_b32 s59, {2*NIT}, {NIT}")
            k(f"s_cmp_ge_u32 s58, {NIT}")
            k(f"s_cselect_b32 s59, s59, 0")
            k("s_sub_u32 s58, s58, s59")
        else:
            k("s_mov_b32 s58, s47")
        if KWRAP: k(f"s_and_b32 s58, s58, {KWRAP-1}")
        k(f"s_mul_i32 s59, s58, {64*BSTR}")
        k(f"s_lshl_b32 s58, s58, 17")
        k("s_add_u32 s58, s58, s40")
        k("s_add_u32 s59, s59, s41")
        k("s_add_u32 s44, s43, s42")
        for m in range(nAi):
            k(f"s_add_u32 m0, s44, {4096*m}")
            k(f"s_add_u32 s45, s58, {m*astep}")
            k(f"buffer_load_dwordx4 v8, s[12:15], s45 offen lds")
        for m in range(4):
            k(f"s_add_u32 m0, s44, {ASZ+4096*m}")
            k(f"s_add_u32 s45, s59, {m*16*BSTR}")
            k(f"buffer_load_dwordx4 v9, s[8:11], s45 offen lds")
        k("s_add_u32 s47, s47, 1")
        k(f"s_add_u32 s43, s43, {STG}")
        k(f"s_cmp_eq_u32 s43, {STG*NS}")
        k("s_cselect_b32 s43, 0, s43")
    producer_loop(k, tag, nAi+4, issue, NS, NIT)
    stamp_end(k, tag, tid=256, slot=256, sfx='p')
    k(f"L_{tag}_end:")
    k("s_endpgm")
    return k, NV, STG*NS

PFD = 0
KPERM = 1
FAKE16 = 0
NS1 = 3
NS2 = 3
KWRAP = 0
W2PF = True
EMU_U = True
RPG1 = 3
RPG2 = 4
def gen_g1(): return gemm_kernel('g1')
def gen_g2(): return gemm_kernel('g2')

KERNELS = [('p1_kernel', gen_p1, (256,1,1), (256,1,1)), ('p2_kernel', gen_p2, (257,1,1), (256,1,1)), ('p3_kernel', gen_p3, (256,1,1), (256,1,1)),
 ('g1_kernel', gen_g1, (256,1,1), (512,1,1)), ('g2_kernel', gen_g2, (256,1,1), (512,1,1))]

def build_all(kernels=None):
    ks = []
    for name, fn, grid, block in (kernels or KERNELS):
        k, nv, lds = fn()
        if name.startswith('g'):
            if NO_DMA: k.l = [x for x in k.l if not ('offen lds' in x)]
            if NO_MFMA: k.l = [x for x in k.l if 'v_mfma' not in x]
            if NO_ADV: k.l = [x for x in k.l if not (x.strip().startswith('s_add_u32 s40, s40,') or x.strip().startswith('s_add_u32 s41, s41,'))]
            if NO_A: k.l = [x for x in k.l if not ('s[12:15]' in x and 'offen lds' in x)]
            if NO_B: k.l = [x for x in k.l if not ('s[8:11]' in x and 'offen lds' in x)]
            if NO_BAR: k.l = [x for x in k.l if 's_barrier' not in x]
            if NO_READ: k.l = [x for x in k.l if 'ds_read_b64_tr' not in x]
        ks.append((name, k, nv, lds, grid, block))
    hdr = open('sequential_preLN__spectral_gfnet__mixer_token_mlp__prompt.s.ref').read().split('; Override launch')[0]
    s = hdr
    for name, k, nv, lds, grid, block in ks:
        s += f"; @launch kernel={name} grid=({grid[0]},{grid[1]},{grid[2]}) block=({block[0]},{block[1]},{block[2]}) lds={lds}\n"
    s += '.amdgcn_target "amdgcn-amd-amdhsa--gfx950"\n.text\n'
    for name, k, nv, lds, grid, block in ks: s += k.text()
    s += 'L_text_end:\n'
    s += '.section .rodata,"a"\n'
    for name, k, nv, lds, grid, block in ks: s += descriptor(name, nv)
    return s, ks

if __name__ == '__main__':
    s, ks = build_all()
    open(sys.argv[1] if len(sys.argv) > 1 else 'out.s', 'w').write(s)
    print('written', len(s), 'bytes')
```

```python
import gen, sys
from asmlib import *
def add_kernel(s, name, body, pos, grid=(1,1,1), block=(64,1,1), nv=8):
    lines=s.split('\n')
    idx=[i for i,l in enumerate(lines) if l.startswith('; @launch')]
    new=[f"; @launch kernel={name} grid=({grid[0]},1,1) block=({block[0]},1,1) lds=0"]
    p = idx[0] if pos==0 else idx[pos-1]+1
    lines[p:p]=new
    s='\n'.join(lines)
    code=f".globl {name}\n.p2align 8\n.type {name},@function\n{name}:\n{body}\n    s_endpgm\n"
    s=s.replace('.section .rodata,"a"\n', code+'.section .rodata,"a"\n',1)
    s+=descriptor(name,nv)
    return s
spin=lambda n: f"""    s_memtime s[4:5]
    s_waitcnt lgkmcnt(0)
L_sp:
    s_memtime s[6:7]
    s_waitcnt lgkmcnt(0)
    s_sub_u32 s8, s6, s4
    s_cmp_lt_u32 s8, {n}
    s_cbranch_scc1 L_sp"""
s,_=gen.build_all()
open('v_base.s','w').write(s)
open('v_spin0.s','w').write(add_kernel(s,'sp_kernel',spin(40000),0))
open('v_spin3.s','w').write(add_kernel(s,'sp_kernel',spin(40000),3))
open('v_spin5.s','w').write(add_kernel(s,'sp_kernel',spin(40000),5))
```

```python
import gen
gen.STAMP=True
s,ks=gen.build_all()
body='''
    s_load_dwordx2 s[4:5], s[0:1], 80
    s_load_dwordx2 s[6:7], s[0:1], 72
    s_waitcnt lgkmcnt(0)
    s_add_u32 s4, s4, 0x2000000
    s_addc_u32 s5, s5, 0
    s_sub_u32 s6, s6, 2560
    s_subb_u32 s7, s7, 0
    ; lane i<15: kernel = i/3, which = i%3 -> mark index {0,2,7}
    v_mul_u32_u24 v1, 86, v0
    v_lshrrev_b32 v1, 8, v1          ; i/3
    v_mul_u32_u24 v2, 3, v1
    v_sub_u32 v2, v0, v2             ; i%3
    v_lshlrev_b32 v3, 16, v1         ; kernel*65536
    v_cmp_eq_u32 vcc, 1, v2
    v_cndmask_b32 v4, 0, 16, vcc
    v_cmp_eq_u32 vcc, 2, v2
    s_nop 1
    v_cndmask_b32 v4, v4, 56, vcc
    v_add_u32 v3, v3, v4
    v_cmp_gt_u32 vcc, 15, v0
    s_and_saveexec_b64 s[10:11], vcc
    s_cbranch_execz L_dbg_end
    global_load_dword v5, v3, s[4:5]
    v_mov_b32 v7, 0
    global_load_dword v6, v7, s[4:5]
    s_waitcnt vmcnt(0)
    v_sub_u32 v5, v5, v6
    v_lshlrev_b32 v8, 2, v0
    global_store_dword v8, v5, s[6:7]
    global_store_dword v8, v5, s[6:7] offset:2560
L_dbg_end:
'''
import mk_variants as mv
s2=mv.add_kernel(s,'dbg_kernel',body,5,nv=16)
open('v_dbg.s','w').write(s2)
```

```python
import sys, math, struct
sys.path.insert(0, 'work')
from asmlib import *

ZW_OFF = 0x0          ; ZW_SIZE = 257*32768
VB_OFF = 0x900000     ; VB_BLK = 257*64 ; VB_SIZE = 256*VB_BLK + 1024
H_OFF  = 0xE00000
HN_OFF = 0x1200000
GT_OFF = 0x1600000
WS_USED = 0x1D00000
S, D, F = 2048, 1024, 3584

def f32(x):
    return '0x%08x' % struct.unpack('<I', struct.pack('<f', x))[0]

CVT = 'v_cvt_pk_bf16_f32'
STAMP = False
NO_DMA = False
NO_MFMA = False
NO_READ = False
NO_BAR = False
NO_ADV = False
NO_A = False
NO_B = False
STAMP_OFF = 0x3000000
KIDX = {'p1':0,'p2':1,'p3':2,'g1':3,'g2':4}
NMARK = 8
def mark(k, i):
    if STAMP: k(f"s_memrealtime s[{64+2*i}:{65+2*i}]")
def stamp_begin(k):
    if STAMP:
        for i in range(1, NMARK): k(f"s_mov_b64 s[{64+2*i}:{65+2*i}], 0")
        k("s_memrealtime s[64:65]")
        k("s_memtime s[94:95]")
def stamp_end(k, tag, tid=0, slot=0, sfx=''):
    if not STAMP: return
    mark(k, 6)
    k("s_waitcnt vmcnt(0) lgkmcnt(0)")
    mark(k, 7)
    k("s_memtime s[84:85]")
    k("s_load_dwordx2 s[88:89], s[0:1], 80")
    k("s_waitcnt lgkmcnt(0)")
    k(f"s_add_u32 s88, s88, {STAMP_OFF + KIDX[tag]*65536}")
    k("s_addc_u32 s89, s89, 0")
    k(f"s_add_u32 s87, s2, {slot}")
    k("s_lshl_b32 s87, s87, 7")
    k("v_mov_b32 v8, s87")
    k(f"v_cmp_eq_u32 vcc, {tid}, v0" if tid <= 64 else f"v_cmp_eq_u32 vcc, {hex(tid)}, v0")
    k("s_and_saveexec_b64 s[86:87], vcc")
    k(f"s_cbranch_execz L_{tag}_nostamp{sfx}")
    for i in range(0, NMARK, 2):
        for j in range(4): k(f"v_mov_b32 v{4+j}, s{64+2*i+j}")
        k(f"global_store_dwordx4 v8, v[4:7], s[88:89] offset:{8*i}")
        k("s_nop 1")
    k("v_mov_b32 v4, s94"); k("v_mov_b32 v5, s95"); k("v_mov_b32 v6, s84"); k("v_mov_b32 v7, s85")
    k("global_store_dwordx4 v8, v[4:7], s[88:89] offset:64")
    k("s_getreg_b32 s84, hwreg(HW_REG_XCC_ID, 0, 4)")
    k("s_nop 1")
    k("v_mov_b32 v4, s84")
    k("global_store_dword v8, v4, s[88:89] offset:80")
    k(f"L_{tag}_nostamp{sfx}:")

MF32 = 'v_mfma_f32_32x32x16_bf16'

CODEPF = 1
W1PF = 0
W1L2 = 0
ST_FLAGS = ''
ST_ALL = ''
ST_P1 = 'sc1'
ST_P2 = 'sc1'
ST_P3 = 'sc1'
ST_G1 = 'sc1'
ST_G2 = 'nt'
OUT_TOUCH = 0
def code_prefetch(k, tag, first_label, last_label, vtmp, stmp, nwaves_cond=None):
    if not CODEPF: return
    k(f"s_getpc_b64 s[{stmp}:{stmp+1}]")
    k(f"L_{tag}_pc:")
    k(f"s_add_u32 s{stmp}, s{stmp}, {first_label}-L_{tag}_pc")
    k(f"s_addc_u32 s{stmp+1}, s{stmp+1}, 0")

def srd(k, s, base, size, off=0):
    if off:
        k(f"s_add_u32 s{s}, s{base}, {hex(off)}")
        k(f"s_addc_u32 s{s+1}, s{base+1}, 0")
    else:
        k(f"s_mov_b32 s{s}, s{base}")
        k(f"s_mov_b32 s{s+1}, s{base+1}")
    k(f"s_mov_b32 s{s+2}, {hex(size)}")
    k(f"s_mov_b32 s{s+3}, 0x20000")

SEQ = [(r, c) for r in range(4) for c in range(4)]

def gen_matrix(k, Mr, Mi, vA, vB, t):
    ang, a5, tC, tS = t, t+1, t+2, t+3
    k(f"v_mov_b32 v{ang}, v{vB}")
    k(f"v_mul_f32 v{a5}, 5.0, v{vA}" if False else f"v_mul_f32 v{a5}, {f32(5.0)}, v{vA}")
    for i, (r, c) in enumerate(SEQ):
        k(f"v_cos_f32 v{tC}, v{ang}")
        k(f"v_sin_f32 v{tS}, v{ang}")
        if i < 15: k(f"v_add_f32 v{ang}, v{ang}, v{a5 if c == 3 else vA}")
        k(f"{CVT} v{Mr+i}, v{tC}, v{tS}")
        k(f"{CVT} v{Mi+i}, -v{tS}, v{tC}")

def gen_twiddle(k, twr, twi, vA, vB, t):
    ang, a5 = t, t+1
    k(f"v_mov_b32 v{ang}, v{vB}")
    k(f"v_mul_f32 v{a5}, {f32(5.0)}, v{vA}")
    for i, (r, c) in enumerate(SEQ):
        k(f"v_cos_f32 v{twr+i}, v{ang}")
        k(f"v_sin_f32_e64 v{twi+i}, -v{ang}")
        if i < 15: k(f"v_add_f32 v{ang}, v{ang}, v{a5 if c == 3 else vA}")

def stage(k, typ, Dr, Di, data, Mr, Mi, first=True):
    for r in range(4):
        for (Dx, M) in ((Dr, Mr), (Di, Mi)):
            c = '0' if (r == 0 and first) else vr(Dx, 16)
            if typ == 'A': k(f"{MF32} {vr(Dx,16)}, {vr(data+4*r,4)}, {vr(M+4*r,4)}, {c}")
            else:          k(f"{MF32} {vr(Dx,16)}, {vr(M+4*r,4)}, {vr(data+4*r,4)}, {c}")

def cmul_pack(k, Dr, Di, wr, wi, out, t, conj=False):
    for jj in range(0, 16, 4):
        T = [t + 8*((jj//4) % 2) + 2*i for i in range(4)]
        for pi, j in enumerate((jj, jj+2)):
            pass
    for j in range(0, 16, 2):
        b = t + 4*((j//2) % 4)
        R, I = b, b+2
        k(f"v_pk_mul_f32 {vr(R,2)}, {vr(Dr+j,2)}, {vr(wr+j,2)}")
        k(f"v_pk_mul_f32 {vr(I,2)}, {vr(Dr+j,2)}, {vr(wi+j,2)}")
        k(f"v_pk_fma_f32 {vr(R,2)}, {vr(Di+j,2)}, {vr(wi+j,2)}, {vr(R,2)} neg_lo:[1,0,0] neg_hi:[1,0,0]")
        k(f"v_pk_fma_f32 {vr(I,2)}, {vr(Di+j,2)}, {vr(wr+j,2)}, {vr(I,2)}")
        n = '-' if conj else ''
        k(f"{CVT} v{out+j}, v{R}, {n}v{I}")
        k(f"{CVT} v{out+j+1}, v{R+1}, {n}v{I+1}")

def wave_reduce2(k, a, b):
    for m in ("quad_perm:[1,0,3,2] row_mask:0xf", "quad_perm:[2,3,0,1] row_mask:0xf", "row_half_mirror row_mask:0xf",
              "row_mirror row_mask:0xf", "row_bcast:15 row_mask:0xa", "row_bcast:31 row_mask:0xc"):
        k(f"v_add_f32_dpp v{a}, v{a}, v{a} {m} bank_mask:0xf")
        k(f"v_add_f32_dpp v{b}, v{b}, v{b} {m} bank_mask:0xf")

def tree_sum(k, X, n, t, op='add'):
    acc = [t, t+2, t+4, t+6]
    for i in range(4):
        k(f"v_pk_add_f32 {vr(acc[i],2)}, {vr(X+2*i,2)}, {vr(X+2*(i+4),2)}")
    for i in range(8, n):
        k(f"v_pk_add_f32 {vr(acc[i%4],2)}, {vr(acc[i%4],2)}, {vr(X+2*i,2)}")
    k(f"v_pk_add_f32 {vr(acc[0],2)}, {vr(acc[0],2)}, {vr(acc[1],2)}")
    k(f"v_pk_add_f32 {vr(acc[2],2)}, {vr(acc[2],2)}, {vr(acc[3],2)}")
    k(f"v_pk_add_f32 {vr(acc[0],2)}, {vr(acc[0],2)}, {vr(acc[2],2)}")

def ln_stats_xrow(k, X, t, sM, sR, sTmp):
    tree_sum(k, X, 16, t)
    wave_reduce2(k, t, t+1)
    k(f"v_mul_f32 v{t}, {f32(1/1024)}, v{t}")
    k(f"v_mul_f32 v{t+1}, {f32(1/1024)}, v{t+1}")
    k(f"{CVT} v{t+2}, v{t}, v{t+1}")
    k(f"v_readlane_b32 s{sTmp}, v{t}, 63")
    k(f"v_readlane_b32 s{sTmp+1}, v{t+1}, 63")
    k(f"v_lshlrev_b32 v{t+12}, 16, v{t+2}")
    k(f"v_and_b32 v{t+13}, 0xffff0000, v{t+2}")
    acc = [t, t+2]; tmp = [t+4, t+6, t+8, t+10]
    for i in range(16):
        d = tmp[i % 4]
        k(f"v_pk_add_f32 {vr(d,2)}, {vr(X+2*i,2)}, {sr(sTmp,2)} neg_lo:[0,1] neg_hi:[0,1]")
        a = acc[i % 2]
        if i < 2: k(f"v_pk_mul_f32 {vr(a,2)}, {vr(d,2)}, {vr(d,2)}")
        else:     k(f"v_pk_fma_f32 {vr(a,2)}, {vr(d,2)}, {vr(d,2)}, {vr(a,2)}")
    k(f"v_pk_add_f32 {vr(t,2)}, {vr(t,2)}, {vr(t+2,2)}")
    wave_reduce2(k, t, t+1)
    k(f"v_mul_f32 v{t}, {f32(1/1024)}, v{t}")
    k(f"v_mul_f32 v{t+1}, {f32(1/1024)}, v{t+1}")
    k(f"{CVT} v{t+2}, v{t}, v{t+1}")
    k(f"v_lshlrev_b32 v{t}, 16, v{t+2}")
    k(f"v_and_b32 v{t+1}, 0xffff0000, v{t+2}")
    k(f"v_add_f32 v{t}, {f32(1e-5)}, v{t}")
    k(f"v_add_f32 v{t+1}, {f32(1e-5)}, v{t+1}")
    k(f"{CVT} v{t+2}, v{t}, v{t+1}")
    k(f"v_lshlrev_b32 v{t}, 16, v{t+2}")
    k(f"v_and_b32 v{t+1}, 0xffff0000, v{t+2}")
    k(f"v_sqrt_f32 v{t}, v{t}")
    k(f"v_sqrt_f32 v{t+1}, v{t+1}")
    k(f"s_nop 0")
    k(f"{CVT} v{t+2}, v{t}, v{t+1}")
    k(f"v_lshlrev_b32 v{t}, 16, v{t+2}")
    k(f"v_and_b32 v{t+1}, 0xffff0000, v{t+2}")
    k(f"v_rcp_f32 v{t}, v{t}")
    k(f"v_rcp_f32 v{t+1}, v{t+1}")
    k(f"s_nop 0")
    k(f"v_mul_f32 v{t+12}, v{t+12}, v{t}")
    k(f"v_mul_f32 v{t+13}, v{t+13}, v{t+1}")
    k(f"v_readlane_b32 s{sR}, v{t}, 63")
    k(f"v_readlane_b32 s{sR+1}, v{t+1}, 63")
    k(f"v_readlane_b32 s{sM}, v{t+12}, 63")
    k(f"v_readlane_b32 s{sM+1}, v{t+13}, 63")

def gen_p1():
    k = Kern('p1_kernel')
    k("s_cmp_ge_u32 s2, 256")
    k("s_cbranch_scc1 L_p1_end")
    stamp_begin(k)
    k("s_load_dwordx4 s[4:7], s[0:1], 0")
    k("s_load_dwordx2 s[24:25], s[0:1], 16")
    k("s_load_dwordx2 s[60:61], s[0:1], 32")
    k("s_load_dwordx2 s[26:27], s[0:1], 80")
    TID, LANE = 0, 1
    if CODEPF:
        k("s_getpc_b64 s[52:53]")
        k("L_p1_pc:")
        k("s_sub_u32 s52, s52, L_p1_pc-p1_kernel")
        k("s_subb_u32 s53, s53, 0")
        k("v_lshlrev_b32 v210, 7, v0")
        k("v_mov_b32 v211, s53")
        k("v_add_co_u32 v210, vcc, s52, v210")
        k("v_addc_co_u32 v211, vcc, 0, v211, vcc")
        k("v_cmp_gt_u32 vcc, (L_p1_endc-p1_kernel+127)/128, v0")
        k("s_and_saveexec_b64 s[54:55], vcc")
        k("s_cbranch_execz L_p1_cp0")
        k("global_load_dword v212, v[210:211], off")
        k("L_p1_cp0:")
        k("s_mov_b64 exec, -1")
        k("s_bfe_u32 s54, s2, 0x10003")
        k("s_lshl_b32 s54, s54, 15")
        k("s_add_u32 s54, s54, L_p1_endc-p1_kernel")
        k("v_add_co_u32 v210, vcc, s54, v210")
        k("v_addc_co_u32 v211, vcc, 0, v211, vcc")
        k("v_lshlrev_b32 v213, 7, v0")
        k("v_add_u32 v213, s54, v213")
        k("v_cmp_gt_u32 vcc, L_text_end-p1_kernel, v213")
        k("s_and_saveexec_b64 s[54:55], vcc")
        k("s_cbranch_execz L_p1_cp1")
        k("global_load_dword v212, v[210:211], off")
        k("L_p1_cp1:")
        k("s_mov_b64 exec, -1")
    k("v_and_b32 v1, 63, v0")
    k("v_lshrrev_b32 v2, 6, v0")
    k("v_readfirstlane_b32 s28, v2")
    k("s_lshr_b32 s29, s2, 5")
    k("s_lshl_b32 s29, s29, 2")
    k("s_and_b32 s30, s2, 31")
    k("s_add_u32 s31, s29, s28")
    k("s_lshl_b32 s31, s31, 5")
    k("s_add_u32 s31, s31, s30")
    k("s_lshl_b32 s31, s31, 11")
    k("s_add_u32 s32, s31, 0x200000")
    k("s_waitcnt lgkmcnt(0)")
    srd(k, 8, 4, S*D*2)
    srd(k, 12, 6, S*513*2)
    srd(k, 16, 24, S*513*2)
    srd(k, 20, 26, 257*32768, ZW_OFF)
    XL = 4
    k("v_lshlrev_b32 v2, 4, v1")
    k(f"buffer_load_dwordx4 {vr(XL,4)}, v2, s[8:11], s31 offen")
    k(f"buffer_load_dwordx4 {vr(XL+4,4)}, v2, s[8:11], s31 offen offset:1024")
    k(f"buffer_load_dwordx4 {vr(XL+8,4)}, v2, s[8:11], s32 offen")
    k(f"buffer_load_dwordx4 {vr(XL+12,4)}, v2, s[8:11], s32 offen offset:1024")
    WL = 20
    k("v_lshlrev_b32 v3, 2, v0")
    k("s_lshl_b32 s33, s29, 6")
    k("s_lshl_b32 s34, s30, 1")
    k("s_add_u32 s33, s33, s34")
    k("s_mul_i32 s33, s33, 1026")
    for pi in range(2):
        for cc in range(4):
            off = (64*cc + pi)*1026
            k(f"s_add_u32 s34, s33, {off}")
            k(f"buffer_load_dword v{WL+4*pi+cc}, v3, s[12:15], s34 offen")
            k(f"buffer_load_dword v{WL+8+4*pi+cc}, v3, s[16:19], s34 offen")
    WX = 200
    k("v_and_b32 v200, 3, v1")
    k("v_lshlrev_b32 v200, 6, v200")
    k("v_bfe_u32 v201, v1, 2, 1")
    k("v_add_u32 v200, v200, v201")
    k("v_mul_u32_u24 v200, 1026, v200")
    k("v_add_u32 v200, 1024, v200")
    k("v_cmp_gt_u32 vcc, 8, v0")
    k("s_and_saveexec_b64 s[36:37], vcc")
    k("s_cbranch_execz L_p1_nox")
    k("buffer_load_ushort v202, v200, s[12:15], s33 offen")
    k("buffer_load_ushort v203, v200, s[16:19], s33 offen")
    k("L_p1_nox:")
    k("s_mov_b64 exec, -1")
    Mr, Mi, TWR, TWI = 36, 52, 68, 84
    XF, DR, DI, OP, T = 100, 132, 148, 164, 180
    k("v_and_b32 v2, 31, v1")
    k("v_cvt_f32_u32 v2, v2")
    k("v_lshrrev_b32 v3, 5, v1")
    k("v_lshlrev_b32 v3, 2, v3")
    k("v_cvt_f32_u32 v3, v3")
    k(f"v_mul_f32 v204, {f32(1/32)}, v2")
    k("v_mul_f32 v205, v204, v3")
    gen_matrix(k, Mr, Mi, 204, 205, T)
    k(f"v_mul_f32 v204, {f32(1/1024)}, v2")
    k("v_mul_f32 v205, v204, v3")
    gen_twiddle(k, TWR, TWI, 204, 205, T)
    STG = 16384
    k("s_lshr_b32 s44, s2, 1")
    k("s_and_b32 s44, s44, 7")
    k("s_mov_b32 s45, 0x05040100")
    k("s_mov_b32 s46, 0x07060302")
    k("s_lshl_b32 s47, s2, 7")
    k("s_lshl_b32 s48, s28, 2")
    k(f"s_add_u32 s48, s48, {STG}")
    B1, B2, AWJ, AX, ARD, AGL, AT1, AT2 = 206, 207, 208, 209, 216, 217, 218, 219
    k("v_and_b32 v2, 31, v1")
    k("v_lshrrev_b32 v3, 5, v1")
    k("v_and_b32 v204, 1, v2")
    k("v_lshrrev_b32 v205, 1, v2")
    k(f"v_xor_b32 v{B1}, s44, v204")
    k(f"v_and_b32 v{AT1}, 7, v205")
    k(f"v_xor_b32 v{B1}, v{B1}, v{AT1}")
    k(f"v_lshlrev_b32 v{B1}, 4, v{B1}")
    k(f"v_lshl_add_u32 v{B1}, v205, 7, v{B1}")
    k(f"v_lshl_add_u32 v{B1}, v3, 13, v{B1}")
    k(f"v_add_u32 v{B1}, s48, v{B1}")
    k("v_add_u32 v205, 1, v2")
    k("v_lshrrev_b32 v205, 1, v205")
    k(f"v_sub_u32 v{AT1}, 0, v205")
    k(f"v_and_b32 v{AT1}, 7, v{AT1}")
    k("v_add_u32 v204, 2, v204")
    k(f"v_xor_b32 v{B2}, s44, v204")
    k(f"v_xor_b32 v{B2}, v{B2}, v{AT1}")
    k(f"v_lshlrev_b32 v{B2}, 4, v{B2}")
    k("v_lshlrev_b32 v205, 7, v205")
    k(f"v_sub_u32 v{B2}, v{B2}, v205")
    k("v_lshlrev_b32 v205, 13, v3")
    k(f"v_sub_u32 v{B2}, v{B2}, v205")
    k(f"v_add_u32 v{B2}, s48, v{B2}")
    k("v_and_b32 v204, 7, v0")
    k("s_xor_b32 s49, s44, 4")
    k("v_xor_b32 v204, s49, v204")
    k("v_lshlrev_b32 v204, 4, v204")
    k(f"v_lshl_add_u32 v{AWJ}, v0, 7, v204")
    k(f"v_add_u32 v{AWJ}, {STG}, v{AWJ}")
    k("v_bfe_u32 v204, v1, 2, 1")
    k("v_add_u32 v204, 4, v204")
    k("v_xor_b32 v204, s44, v204")
    k("v_lshlrev_b32 v204, 4, v204")
    k("v_and_b32 v205, 3, v1")
    k(f"v_lshl_add_u32 v{AX}, v205, 2, v204")
    k(f"v_add_u32 v{AX}, {STG+32768}, v{AX}")
    k("v_lshrrev_b32 v204, 3, v0")
    k("v_and_b32 v205, 7, v0")
    k(f"v_and_b32 v{AT1}, 7, v204")
    k(f"v_xor_b32 v{AT1}, v{AT1}, v205")
    k(f"v_lshlrev_b32 v{AT1}, 4, v{AT1}")
    k(f"v_lshl_add_u32 v{ARD}, v204, 7, v{AT1}")
    k(f"v_add_u32 v{ARD}, {STG}, v{ARD}")
    k("v_lshlrev_b32 v204, 15, v204")
    k(f"v_lshl_add_u32 v{AGL}, v205, 4, v204")
    k("s_xor_b32 s49, s44, 2")
    k("s_lshl_b32 s49, s49, 4")
    k("s_add_u32 s49, s49, s48")
    k("s_lshl_b32 s50, s44, 4")
    k("s_add_u32 s50, s50, s48")
    k("s_add_u32 s50, s50, 32768")
    k(f"v_mov_b32 v{AT1}, s49")
    k(f"v_mov_b32 v{AT2}, s50")
    k("s_lshl_b32 s36, s28, 12")
    k("v_lshlrev_b32 v2, 5, v1")
    k("v_add_u32 v2, s36, v2")
    k("v_and_b32 v3, 31, v1")
    k("v_lshlrev_b32 v3, 2, v3")
    k("v_lshrrev_b32 v204, 5, v1")
    k("v_lshlrev_b32 v204, 9, v204")
    k("v_add3_u32 v3, v3, v204, s36")
    k("s_mov_b32 s35, 0xffff0000")
    mark(k, 1)
    k("s_waitcnt vmcnt(16)")
    mark(k, 2)
    for i in range(16):
        for row in range(2):
            src = XL + 8*row + (i >> 1)
            if i % 2 == 0: k(f"v_lshlrev_b32 v{XF+2*i+row}, 16, v{src}")
            else:          k(f"v_and_b32 v{XF+2*i+row}, s35, v{src}")
    ln_stats_xrow(k, XF, T, 38, 40, 42)
    k(f"v_mov_b32 v{T+8}, s40"); k(f"v_mov_b32 v{T+9}, s41")
    k(f"v_mov_b32 v{T+10}, s38"); k(f"v_mov_b32 v{T+11}, s39")
    for i in range(16):
        d = T + 2*(i % 4)
        k(f"v_pk_fma_f32 {vr(d,2)}, {vr(XF+2*i,2)}, {vr(T+8,2)}, {vr(T+10,2)} neg_lo:[0,0,1] neg_hi:[0,0,1]")
        k(f"{CVT} v{OP+i}, v{d}, v{d+1}")
    k(f"ds_write_b128 v2, {vr(OP,4)}")
    k(f"ds_write_b128 v2, {vr(OP+4,4)} offset:16")
    k(f"ds_write_b128 v2, {vr(OP+8,4)} offset:2048")
    k(f"ds_write_b128 v2, {vr(OP+12,4)} offset:2064")
    k("s_waitcnt lgkmcnt(0)")
    for i, (r, c) in enumerate(SEQ):
        k(f"ds_read_b32 v{OP+i}, v3 offset:{(8*r+c)*128}")
    mark(k, 3)
    k("s_waitcnt lgkmcnt(0)")
    stage(k, 'A', DR, DI, OP, Mr, Mi)
    k("s_waitcnt vmcnt(0)")
    WO = XF
    for e in range(2):
        for pi in range(2):
            for cc in range(4):
                k(f"v_perm_b32 v{WO+4*(2*e+pi)+cc}, v{WL+8+4*pi+cc}, v{WL+4*pi+cc}, s{45+e}")
    for sl in range(4):
        if sl: k(f"v_xor_b32 v204, {16*sl}, v{AWJ}")
        k(f"ds_write_b128 v{204 if sl else AWJ}, {vr(WO+4*sl,4)}")
    k("v_lshlrev_b32 v203, 16, v203")
    k("v_or_b32 v202, v202, v203")
    k("v_cmp_gt_u32 vcc, 8, v0")
    k("s_and_saveexec_b64 s[36:37], vcc")
    k("s_cbranch_execz L_p1_nox2")
    k(f"ds_write_b32 v{AX}, v202")
    k("L_p1_nox2:")
    k("s_mov_b64 exec, -1")
    if W1PF:
        srd(k, 56, 60, S*F*2)
        k(f"s_mul_i32 s62, s2, {149*128}")
        k("v_lshlrev_b32 v214, 7, v0")
        k("v_min_u32 v214, 148*128, v214")
        k("buffer_load_dword v215, v214, s[56:59], s62 offen")
    cmul_pack(k, DR, DI, TWR, TWI, OP, T)
    stage(k, 'B', DR, DI, OP, Mr, Mi)
    mark(k, 4)
    for i, (r, c) in enumerate(SEQ):
        if r < 2: k(f"{CVT} v{OP+i}, v{DR+i}, v{DI+i}")
        else:     k(f"{CVT} v{OP+i}, v{DI+i}, v{DR+i}")
        if r < 2: k(f"ds_write_b32 v{B1}, v{OP+i} offset:{(8*r+c)*2048}")
        else:     k(f"ds_write_b32 v{B2}, v{OP+i} offset:{(32-8*r-c)*2048}")
    k(f"{CVT} v{T}, v{DI}, v{DR}")
    k(f"{CVT} v{T+1}, v{DR+8}, v{DI+8}")
    k("s_mov_b64 exec, 1")
    k(f"ds_write_b32 v{AT1}, v{T}")
    k(f"ds_write_b32 v{AT2}, v{T+1}")
    k("s_mov_b64 exec, -1")
    k("s_waitcnt lgkmcnt(0)")
    k("s_barrier")
    RO = XF
    for j in range(8):
        k(f"ds_read_b128 {vr(RO+4*j,4)}, v{ARD} offset:{4096*j}")
    k("v_cmp_gt_u32 vcc, 8, v0")
    k("s_and_saveexec_b64 s[36:37], vcc")
    k("s_cbranch_execz L_p1_nox3")
    k(f"ds_read_b128 {vr(T,4)}, v{ARD} offset:32768")
    k("s_waitcnt lgkmcnt(0)")
    k("s_add_u32 s49, s47, 0x800000")
    k(f"buffer_store_dwordx4 {vr(T,4)}, v{AGL}, s[20:23], s49 offen {ST_P1}")
    k("L_p1_nox3:")
    k("s_mov_b64 exec, -1")
    for j in range(8):
        k(f"s_waitcnt lgkmcnt({7-j})")
        k(f"buffer_store_dwordx4 {vr(RO+4*j,4)}, v{AGL}, s[20:23], s47 offen {ST_P1}")
        if j < 7: k("s_add_u32 s47, s47, 0x100000")
    stamp_end(k, 'p1')
    k("L_p1_end:")
    k("s_endpgm")
    k("L_p1_endc:")
    return k, 220, STG + 257*128

def gen_p2():
    k = Kern('p2_kernel')
    k("s_cmp_ge_u32 s2, 257")
    k("s_cbranch_scc1 L_p2_end")
    stamp_begin(k)
    k("s_load_dwordx2 s[26:27], s[0:1], 80")
    k("s_load_dwordx2 s[24:25], s[0:1], 32")
    k("v_and_b32 v1, 63, v0")
    k("v_lshrrev_b32 v2, 6, v0")
    k("v_readfirstlane_b32 s28, v2")
    k("v_lshlrev_b32 v2, 4, v1")
    k("s_lshr_b32 s29, s28, 1")
    k("s_and_b32 s30, s28, 1")
    k("s_lshl_b32 s31, s2, 15")
    k("s_lshl_b32 s32, s28, 13")
    k("s_add_u32 s31, s31, s32")
    k("s_waitcnt lgkmcnt(0)")
    srd(k, 8, 26, 257*32768, ZW_OFF)
    srd(k, 12, 26, 256*VB_BLK, VB_OFF)
    for i in range(8):
        k(f"s_add_u32 m0, s32, {1024*i}")
        k(f"buffer_load_dwordx4 v2, s[8:11], s31 offen lds")
        if i < 7: k("s_add_u32 s31, s31, 1024")
    if W1PF:
        srd(k, 16, 24, S*F*2)
        k(f"s_mul_i32 s33, s2, {150*128}")
        k(f"s_add_u32 s33, s33, {38144*128}")
        k("v_lshlrev_b32 v3, 7, v0")
        k("v_min_u32 v3, 149*128, v3")
        k("buffer_load_dword v255, v3, s[16:19], s33 offen")
    Z1, Z2 = 4, 20
    M1r, M1i, MFr, MFi, MIr, MIi = 36, 52, 68, 84, 100, 116
    T1r, T1i, T2r, T2i = 132, 148, 164, 180
    DR, DI, T = 196, 212, 228
    A, B, J, H4, PI = 244, 245, 246, 247, 248
    k(f"v_and_b32 v{J}, 31, v1")
    k(f"v_cvt_f32_u32 v{J}, v{J}")
    k(f"v_lshrrev_b32 v{H4}, 5, v1")
    k(f"v_lshlrev_b32 v{H4}, 2, v{H4}")
    k(f"v_cvt_f32_u32 v{H4}, v{H4}")
    k(f"v_mov_b32 v{PI}, s30")
    k(f"v_cvt_f32_u32 v{PI}, v{PI}")
    k(f"v_mul_f32 v{A}, {f32(1/32)}, v{J}")
    k(f"v_mul_f32 v{B}, v{A}, v{H4}")
    gen_matrix(k, MFr, MFi, A, B, T)
    k(f"v_fma_f32 v{A}, v{J}, 2.0, v{PI}")
    k(f"v_mul_f32 v{A}, {f32(1/64)}, v{A}")
    k(f"v_mul_f32 v{B}, v{A}, v{H4}")
    gen_matrix(k, M1r, M1i, A, B, T)
    k("s_lshl_b32 s33, s30, 4")
    k(f"v_and_b32 v{T}, 31, v1")
    k(f"v_xor_b32 v{T}, s33, v{T}")
    k(f"v_cvt_f32_u32 v{T}, v{T}")
    k(f"v_mul_f32 v{A}, {f32(1/32)}, v{T}")
    k(f"v_mul_f32 v{B}, v{A}, v{H4}")
    k(f"v_mul_f32 v{T}, {f32(1/64)}, v{T}")
    k(f"v_fma_f32 v{B}, v{T}, v{PI}, v{B}")
    gen_matrix(k, MIr, MIi, A, B, T)
    k(f"v_fma_f32 v{A}, v{J}, 2.0, v{PI}")
    k(f"v_mul_f32 v{A}, {f32(1/2048)}, v{A}")
    k(f"v_mov_b32 v{T}, {f32(0.125)}")
    k(f"v_mul_f32 v{T+1}, {f32(-0.25)}, v{PI}")
    k(f"v_add_f32 v{T}, v{T}, v{T+1}")
    k(f"v_fma_f32 v{B}, v{A}, v{H4}, v{T}")
    gen_twiddle(k, T1r, T1i, A, B, T)
    k(f"v_mul_f32 v{A}, {f32(1/1024)}, v{J}")
    k(f"v_mul_f32 v{B}, v{A}, v{H4}")
    k(f"v_mul_f32 v{T}, {f32(1/2048)}, v{J}")
    k(f"v_fma_f32 v{B}, v{T}, v{PI}, v{B}")
    gen_twiddle(k, T2r, T2i, A, B, T)
    AZ1, AZ2, AW = 249, 250, 251
    k(f"v_bfe_u32 v{T}, v1, 1, 3")
    k(f"v_lshlrev_b32 v{T+1}, 7, v1")
    k(f"v_xor_b32 v{AZ1}, s29, v{T}")
    k(f"v_lshl_add_u32 v{AZ1}, v{AZ1}, 4, v{T+1}")
    k("s_add_u32 s33, s29, 2")
    k(f"v_xor_b32 v{AZ2}, s33, v{T}")
    k(f"v_lshl_add_u32 v{AZ2}, v{AZ2}, 4, v{T+1}")
    k("s_lshl_b32 s33, s29, 1")
    k("s_add_u32 s33, s33, s30")
    k("s_add_u32 s33, s33, 4")
    k(f"v_xor_b32 v{AW}, s33, v{T}")
    k(f"v_lshl_add_u32 v{AW}, v{AW}, 4, v{T+1}")
    k("s_mul_i32 s34, s30, 0x80008000")
    k("s_mov_b32 s35, 0xffff0000")
    mark(k, 1)
    k(f"s_waitcnt vmcnt({1 if W1PF else 0})")
    k("s_barrier")
    mark(k, 2)
    for r in range(4):
        k(f"ds_read_b128 {vr(Z1+4*r,4)}, v{AZ1} offset:{8192*r}")
        k(f"ds_read_b128 {vr(Z2+4*r,4)}, v{AZ2} offset:{8192*r}")
    k("s_waitcnt lgkmcnt(0)")
    for i in range(16):
        k(f"v_xor_b32 v{Z2+i}, s34, v{Z2+i}")
    stage(k, 'A', DR, DI, Z1, M1r, M1i, first=True)
    stage(k, 'A', DR, DI, Z2, M1r, M1i, first=False)
    for r in range(4):
        k(f"ds_read_b128 {vr(Z2+4*r,4)}, v{AW} offset:{8192*r}")
    OP = Z1
    cmul_pack(k, DR, DI, T1r, T1i, OP, T)
    stage(k, 'B', DR, DI, OP, MFr, MFi)
    WR, WI = M1r, M1i
    k("s_waitcnt lgkmcnt(0)")
    for i in range(16):
        k(f"v_lshlrev_b32 v{WR+i}, 16, v{Z2+i}")
        k(f"v_and_b32 v{WI+i}, s35, v{Z2+i}")
    cmul_pack(k, DR, DI, WR, WI, OP, T, conj=True)
    stage(k, 'A', DR, DI, OP, MFr, MFi)
    cmul_pack(k, DR, DI, T2r, T2i, OP, T)
    stage(k, 'B', DR, DI, OP, MIr, MIi)
    mark(k, 4)
    XCH, STG = 32768, 49152
    AX = 252
    k("s_lshl_b32 s36, s28, 12")
    k(f"s_add_u32 s36, s36, {XCH}")
    k(f"v_lshl_add_u32 v{AX}, v1, 4, s36")
    k(f"ds_write_b128 v{AX}, {vr(DR+8,4)}")
    k(f"ds_write_b128 v{AX}, {vr(DR+12,4)} offset:1024")
    k(f"ds_write_b128 v{AX}, {vr(DI+8,4)} offset:2048")
    k(f"ds_write_b128 v{AX}, {vr(DI+12,4)} offset:3072")
    k(f"v_xor_b32 v{AX}, 4096, v{AX}")
    k("s_lshl_b32 s37, s2, 1")
    k("s_add_u32 s37, s37, s29")
    k("s_and_b32 s37, s37, 511")
    k("s_cmp_eq_u32 s37, 0")
    k(f"s_cselect_b32 s38, 0, {f32(1.0)}")
    k("s_cmp_eq_u32 s30, 0")
    k(f"s_cselect_b32 s40, {f32(1.0)}, {f32(-1.0)}")
    k("s_lshl_b32 s41, s30, 31")
    k("s_xor_b32 s42, s38, s41")
    k("s_waitcnt lgkmcnt(0)")
    k("s_barrier")
    OR_, OI = 36, 44
    k(f"ds_read_b128 {vr(OR_,4)}, v{AX}")
    k(f"ds_read_b128 {vr(OR_+4,4)}, v{AX} offset:1024")
    k(f"ds_read_b128 {vr(OI,4)}, v{AX} offset:2048")
    k(f"ds_read_b128 {vr(OI+4,4)}, v{AX} offset:3072")
    k(f"v_bfe_u32 v{T}, v1, 1, 2")
    k(f"v_xor_b32 v{T+1}, s29, v{T}")
    k(f"v_xor_b32 v{T+2}, 2, v{T+1}")
    k("s_lshl_b32 s43, s30, 13")
    k(f"s_add_u32 s43, s43, {STG}")
    k(f"v_lshl_add_u32 v{T+3}, v1, 6, s43")
    k(f"v_lshl_add_u32 v253, v{T+1}, 4, v{T+3}")
    k(f"v_lshl_add_u32 v254, v{T+2}, 4, v{T+3}")
    k("s_waitcnt lgkmcnt(0)")
    UA, UB = 52, 60
    Ur, Ui, Er, Ei, Ar, Ai, Br, Bi = 68, 70, 72, 74, 76, 78, 80, 82
    bc = "op_sel_hi:[1,0,1]"
    for j in range(0, 8, 2):
        o = 16*((j//2) % 2)
        ur, ui, er, ei, a_r, a_i, b_r, b_i = [x+o for x in (Ur, Ui, Er, Ei, Ar, Ai, Br, Bi)]
        k(f"v_pk_add_f32 {vr(ur,2)}, {vr(DR+j,2)}, {vr(OR_+j,2)}")
        k(f"v_pk_add_f32 {vr(ui,2)}, {vr(DI+j,2)}, {vr(OI+j,2)}")
        k(f"v_pk_add_f32 {vr(er,2)}, {vr(DR+j,2)}, {vr(OR_+j,2)} neg_lo:[0,1] neg_hi:[0,1]")
        k(f"v_pk_add_f32 {vr(ei,2)}, {vr(DI+j,2)}, {vr(OI+j,2)} neg_lo:[0,1] neg_hi:[0,1]")
        k(f"v_pk_fma_f32 {vr(a_r,2)}, {vr(ei,2)}, s[42:43], {vr(ur,2)} {bc}")
        k(f"v_pk_fma_f32 {vr(b_r,2)}, {vr(ei,2)}, s[42:43], {vr(ur,2)} {bc} neg_lo:[1,0,0] neg_hi:[1,0,0]")
        k(f"v_pk_mul_f32 {vr(ui,2)}, {vr(ui,2)}, s[38:39] op_sel_hi:[1,0]")
        k(f"v_pk_fma_f32 {vr(a_i,2)}, {vr(er,2)}, s[40:41], {vr(ui,2)} {bc} neg_lo:[1,0,0] neg_hi:[1,0,0]")
        k(f"v_pk_fma_f32 {vr(b_i,2)}, {vr(er,2)}, s[40:41], {vr(ui,2)} {bc} neg_lo:[1,0,1] neg_hi:[1,0,1]")
        k(f"{CVT} v{UA+j}, v{a_r}, v{a_i}")
        k(f"{CVT} v{UA+j+1}, v{a_r+1}, v{a_i+1}")
        k(f"{CVT} v{UB+j}, v{b_r}, v{b_i}")
        k(f"{CVT} v{UB+j+1}, v{b_r+1}, v{b_i+1}")
    for rl in range(2):
        k(f"ds_write_b128 v253, {vr(UA+4*rl,4)} offset:{4096*rl}")
        k(f"ds_write_b128 v254, {vr(UB+4*rl,4)} offset:{4096*rl}")
    k(f"v_and_b32 v{T}, 3, v0")
    k(f"v_bfe_u32 v{T+1}, v0, 3, 2")
    k(f"v_xor_b32 v{T+1}, v{T}, v{T+1}")
    k(f"v_lshrrev_b32 v{T+2}, 2, v0")
    k(f"v_lshlrev_b32 v{T+3}, 6, v{T+2}")
    k(f"v_lshl_add_u32 v{T+3}, v{T+1}, 4, v{T+3}")
    k(f"v_add_u32 v{T+3}, {STG}, v{T+3}")
    k(f"v_mul_u32_u24 v{T+2}, {VB_BLK}, v{T+2}")
    k("s_and_b32 s44, s2, 2")
    k(f"v_xor_b32 v{T}, s44, v{T}")
    k(f"v_lshl_add_u32 v{T+2}, v{T}, 4, v{T+2}")
    k("s_lshl_b32 s45, s2, 6")
    k("s_waitcnt lgkmcnt(0)")
    k("s_barrier")
    for j in range(4):
        k(f"ds_read_b128 {vr(4+4*j,4)}, v{T+3} offset:{4096*j}")
    k("s_waitcnt lgkmcnt(0)")
    for j in range(4):
        k(f"buffer_store_dwordx4 {vr(4+4*j,4)}, v{T+2}, s[12:15], s45 offen {ST_P2}")
        if j < 3: k(f"s_add_u32 s45, s45, {64*VB_BLK}")
    stamp_end(k, 'p2')
    k("L_p2_end:")
    k("s_endpgm")
    return k, 256, 65536

def ln_stats_rows(k, R0, R1, t, vRM, sTmp):
    for (R, o) in ((R0, 0), (R1, 4)):
        a, b = t+o, t+o+2
        k(f"v_pk_add_f32 {vr(a,2)}, {vr(R,2)}, {vr(R+2,2)}")
        k(f"v_pk_add_f32 {vr(b,2)}, {vr(R+4,2)}, {vr(R+6,2)}")
    for i in range(4, 8):
        for (R, o) in ((R0, 0), (R1, 4)):
            a = t+o+2*(i % 2)
            k(f"v_pk_add_f32 {vr(a,2)}, {vr(a,2)}, {vr(R+2*i,2)}")
    for o in (0, 4):
        k(f"v_pk_add_f32 {vr(t+o,2)}, {vr(t+o,2)}, {vr(t+o+2,2)}")
    k(f"v_add_f32 v{t}, v{t}, v{t+1}")
    k(f"v_add_f32 v{t+1}, v{t+4}, v{t+5}")
    wave_reduce2(k, t, t+1)
    k(f"v_mul_f32 v{t}, {f32(1/1024)}, v{t}")
    k(f"v_mul_f32 v{t+1}, {f32(1/1024)}, v{t+1}")
    k(f"{CVT} v{t+2}, v{t}, v{t+1}")
    k(f"v_readlane_b32 s{sTmp}, v{t}, 63")
    k(f"v_readlane_b32 s{sTmp+1}, v{t+1}, 63")
    k(f"v_lshlrev_b32 v{t+12}, 16, v{t+2}")
    k(f"v_and_b32 v{t+13}, 0xffff0000, v{t+2}")
    acc = {0: t, 1: t+2}; tmp = [t+4, t+6, t+8, t+10]
    n = 0
    for i in range(8):
        for row, R in ((0, R0), (1, R1)):
            d = tmp[n % 4]; n += 1
            sel = "op_sel_hi:[1,0]" if row == 0 else "op_sel:[0,1] op_sel_hi:[1,1]"
            k(f"v_pk_add_f32 {vr(d,2)}, {vr(R+2*i,2)}, {sr(sTmp,2)} {sel} neg_lo:[0,1] neg_hi:[0,1]")
            a = acc[row]
            if i == 0: k(f"v_pk_mul_f32 {vr(a,2)}, {vr(d,2)}, {vr(d,2)}")
            else:      k(f"v_pk_fma_f32 {vr(a,2)}, {vr(d,2)}, {vr(d,2)}, {vr(a,2)}")
    k(f"v_add_f32 v{t}, v{t}, v{t+1}")
    k(f"v_add_f32 v{t+1}, v{t+2}, v{t+3}")
    wave_reduce2(k, t, t+1)
    k(f"v_mul_f32 v{t}, {f32(1/1024)}, v{t}")
    k(f"v_mul_f32 v{t+1}, {f32(1/1024)}, v{t+1}")
    k(f"{CVT} v{t+2}, v{t}, v{t+1}")
    k(f"v_lshlrev_b32 v{t}, 16, v{t+2}")
    k(f"v_and_b32 v{t+1}, 0xffff0000, v{t+2}")
    k(f"v_add_f32 v{t}, {f32(1e-5)}, v{t}")
    k(f"v_add_f32 v{t+1}, {f32(1e-5)}, v{t+1}")
    k(f"{CVT} v{t+2}, v{t}, v{t+1}")
    k(f"v_lshlrev_b32 v{t}, 16, v{t+2}")
    k(f"v_and_b32 v{t+1}, 0xffff0000, v{t+2}")
    k(f"v_sqrt_f32 v{t}, v{t}")
    k(f"v_sqrt_f32 v{t+1}, v{t+1}")
    k(f"s_nop 0")
    k(f"{CVT} v{t+2}, v{t}, v{t+1}")
    k(f"v_lshlrev_b32 v{t}, 16, v{t+2}")
    k(f"v_and_b32 v{t+1}, 0xffff0000, v{t+2}")
    k(f"v_rcp_f32 v{t}, v{t}")
    k(f"v_rcp_f32 v{t+1}, v{t+1}")
    k(f"s_nop 0")
    k(f"v_mul_f32 v{t+12}, v{t+12}, v{t}")
    k(f"v_mul_f32 v{t+13}, v{t+13}, v{t+1}")
    k(f"v_readlane_b32 s{sTmp}, v{t}, 63")
    k(f"v_readlane_b32 s{sTmp+1}, v{t+1}, 63")
    k(f"v_readlane_b32 s{sTmp+2}, v{t+12}, 63")
    k(f"v_readlane_b32 s{sTmp+3}, v{t+13}, 63")
    for i in range(4):
        k(f"v_mov_b32 v{vRM+i}, s{sTmp+i}")

def ln_apply_rows(k, R0, R1, vRM, dst0, dst1):
    for i in range(8):
        k(f"v_pk_fma_f32 {vr(dst0+2*i,2)}, {vr(R0+2*i,2)}, {vr(vRM,2)}, {vr(vRM+2,2)} op_sel_hi:[1,0,0] neg_lo:[0,0,1] neg_hi:[0,0,1]")
        k(f"v_pk_fma_f32 {vr(dst1+2*i,2)}, {vr(R1+2*i,2)}, {vr(vRM,2)}, {vr(vRM+2,2)} op_sel:[0,1,1] op_sel_hi:[1,1,1] neg_lo:[0,0,1] neg_hi:[0,0,1]")

def gen_p3():
    k = Kern('p3_kernel')
    k("s_cmp_ge_u32 s2, 256")
    k("s_cbranch_scc1 L_p3_end")
    stamp_begin(k)
    k("s_load_dwordx2 s[4:5], s[0:1], 0")
    k("s_load_dwordx2 s[26:27], s[0:1], 80")
    k("s_load_dwordx2 s[24:25], s[0:1], 32")
    k("v_and_b32 v1, 63, v0")
    k("v_lshrrev_b32 v2, 6, v0")
    k("v_readfirstlane_b32 s28, v2")
    k("s_lshr_b32 s29, s2, 5")
    k("s_lshl_b32 s29, s29, 2")
    k("s_and_b32 s30, s2, 31")
    k("s_add_u32 s31, s29, s28")
    k("s_lshl_b32 s31, s31, 5")
    k("s_add_u32 s31, s31, s30")
    k("s_lshl_b32 s31, s31, 11")
    k("s_add_u32 s32, s31, 0x200000")
    k(f"s_mul_i32 s33, s2, {VB_BLK}")
    k("s_lshl_b32 s34, s28, 12")
    k("s_add_u32 s33, s33, s34")
    k("v_lshlrev_b32 v2, 4, v1")
    k("s_waitcnt lgkmcnt(0)")
    srd(k, 8, 4, S*D*2)
    srd(k, 12, 26, 256*VB_BLK, VB_OFF)
    srd(k, 16, 26, S*D*2, H_OFF)
    srd(k, 20, 26, S*D*2, HN_OFF)
    for i in range(4):
        k(f"s_add_u32 m0, s34, {1024*i}")
        k(f"buffer_load_dwordx4 v2, s[12:15], s33 offen lds")
        k("s_add_u32 s33, s33, 1024")
    k("s_cmp_eq_u32 s28, 3")
    k("s_cbranch_scc0 L_p3_noex")
    k("s_mov_b32 m0, 16384")
    k(f"buffer_load_dwordx4 v2, s[12:15], s33 offen lds")
    k("L_p3_noex:")
    XL = 4
    k(f"buffer_load_dwordx4 {vr(XL,4)}, v2, s[8:11], s31 offen")
    k(f"buffer_load_dwordx4 {vr(XL+4,4)}, v2, s[8:11], s31 offen offset:1024")
    k(f"buffer_load_dwordx4 {vr(XL+8,4)}, v2, s[8:11], s32 offen")
    k(f"buffer_load_dwordx4 {vr(XL+12,4)}, v2, s[8:11], s32 offen offset:1024")
    if W1PF:
        srd(k, 48, 24, S*F*2)
        k(f"s_mul_i32 s38, s2, {149*128}")
        k(f"s_add_u32 s38, s38, {76544*128}")
        k("v_lshlrev_b32 v226, 7, v0")
        k("v_min_u32 v226, 148*128, v226")
        k("buffer_load_dword v224, v226, s[48:51], s38 offen")
    OP, Mr, Mi, TWR, TWI, DR, DI, T = 20, 36, 52, 68, 84, 100, 116, 132
    R0, R1, Y0, Y1 = 148, 164, 180, 196
    k("v_and_b32 v212, 31, v1")
    k("v_cvt_f32_u32 v212, v212")
    k("v_lshrrev_b32 v213, 5, v1")
    k("v_lshlrev_b32 v213, 2, v213")
    k("v_cvt_f32_u32 v213, v213")
    k(f"v_mul_f32 v214, {f32(1/32)}, v212")
    k("v_mul_f32 v215, v214, v213")
    gen_matrix(k, Mr, Mi, 214, 215, T)
    k(f"v_mul_f32 v214, {f32(1/1024)}, v212")
    k("v_mul_f32 v215, v214, v213")
    gen_twiddle(k, TWR, TWI, 214, 215, T)
    k(f"s_mov_b32 s36, {f32(2.0**-21.5)}")
    for j in range(0, 32, 2):
        k(f"v_pk_mul_f32 {vr(TWR+j,2)}, {vr(TWR+j,2)}, s[36:37] op_sel_hi:[1,0]")
    k("v_and_b32 v2, 31, v1")
    k("v_lshrrev_b32 v3, 5, v1")
    k("v_and_b32 v216, 1, v2")
    k("v_lshrrev_b32 v217, 1, v2")
    k("v_and_b32 v218, 2, v217")
    k("v_xor_b32 v218, v218, v216")
    k("v_lshlrev_b32 v218, 4, v218")
    k("v_lshl_add_u32 v218, v217, 6, v218")
    k("v_lshl_add_u32 v218, v3, 12, v218")
    k("s_lshl_b32 s37, s28, 2")
    k("v_add_u32 v218, s37, v218")
    k("v_add_u32 v217, 1, v2")
    k("v_lshrrev_b32 v217, 1, v217")
    k("v_sub_u32 v219, 0, v217")
    k("v_and_b32 v219, 2, v219")
    k("v_add_u32 v216, 2, v216")
    k("v_xor_b32 v219, v219, v216")
    k("v_lshlrev_b32 v219, 4, v219")
    k("v_lshlrev_b32 v217, 6, v217")
    k("v_sub_u32 v219, v219, v217")
    k("v_lshlrev_b32 v217, 12, v3")
    k("v_sub_u32 v219, v219, v217")
    k("s_add_u32 s37, s37, 5120")
    k("v_add_u32 v219, s37, v219")
    k("s_mov_b32 s35, 0xffff0000")
    mark(k, 1)
    k(f"s_waitcnt vmcnt({4 + (1 if W1PF else 0)})")
    k("s_barrier")
    mark(k, 2)
    for i, (r, c) in enumerate(SEQ):
        if r < 2: k(f"ds_read_b32 v{OP+i}, v218 offset:{(8*r+c)*1024}")
        else:     k(f"ds_read_b32 v{OP+i}, v219 offset:{(32-8*r-c)*1024-5120}")
    k(f"s_waitcnt vmcnt({1 if W1PF else 0})")
    for i in range(8):
        k(f"v_lshlrev_b32 v{R0+2*i}, 16, v{XL+i}")
        k(f"v_and_b32 v{R0+2*i+1}, s35, v{XL+i}")
        k(f"v_lshlrev_b32 v{R1+2*i}, 16, v{XL+8+i}")
        k(f"v_and_b32 v{R1+2*i+1}, s35, v{XL+8+i}")
    k("s_waitcnt lgkmcnt(0)")
    stage(k, 'A', DR, DI, OP, Mr, Mi)
    cmul_pack(k, DR, DI, TWR, TWI, OP, T)
    stage(k, 'B', DR, DI, OP, Mr, Mi)
    TR = 17408
    mark(k, 3)
    k("s_lshl_b32 s36, s28, 12")
    k(f"s_add_u32 s36, s36, {TR}")
    k("v_and_b32 v3, 31, v1")
    k("v_lshlrev_b32 v3, 2, v3")
    k("v_lshrrev_b32 v216, 5, v1")
    k("v_lshlrev_b32 v216, 9, v216")
    k("v_add3_u32 v3, v3, v216, s36")
    k("v_lshl_add_u32 v2, v1, 5, s36")
    for i in range(16):
        k(f"{CVT} v{OP+i}, v{DR+i}, -v{DI+i}")
    for i, (r, c) in enumerate(SEQ):
        k(f"ds_write_b32 v3, v{OP+i} offset:{(8*r+c)*128}")
    k("s_waitcnt lgkmcnt(0)")
    k(f"ds_read_b128 {vr(OP,4)}, v2")
    k(f"ds_read_b128 {vr(OP+4,4)}, v2 offset:16")
    k(f"ds_read_b128 {vr(OP+8,4)}, v2 offset:2048")
    k(f"ds_read_b128 {vr(OP+12,4)}, v2 offset:2064")
    k("s_waitcnt lgkmcnt(0)")
    for i in range(16):
        k(f"v_lshlrev_b32 v{Y0+i}, 16, v{OP+i}")
        k(f"v_and_b32 v{Y1+i}, s35, v{OP+i}")
    for i in range(8):
        k(f"v_pk_add_f32 {vr(Y0+2*i,2)}, {vr(Y0+2*i,2)}, {vr(R0+2*i,2)}")
        k(f"v_pk_add_f32 {vr(Y1+2*i,2)}, {vr(Y1+2*i,2)}, {vr(R1+2*i,2)}")
    HP = 36
    for i in range(8):
        k(f"{CVT} v{HP+i}, v{Y0+2*i}, v{Y0+2*i+1}")
        k(f"{CVT} v{HP+8+i}, v{Y1+2*i}, v{Y1+2*i+1}")
    k("v_lshlrev_b32 v2, 4, v1")
    k(f"buffer_store_dwordx4 {vr(HP,4)}, v2, s[16:19], s31 offen {ST_P3}")
    k(f"buffer_store_dwordx4 {vr(HP+4,4)}, v2, s[16:19], s31 offen offset:1024 {ST_P3}")
    k(f"buffer_store_dwordx4 {vr(HP+8,4)}, v2, s[16:19], s32 offen {ST_P3}")
    k(f"buffer_store_dwordx4 {vr(HP+12,4)}, v2, s[16:19], s32 offen offset:1024 {ST_P3}")
    for i in range(8):
        k(f"v_lshlrev_b32 v{R0+2*i}, 16, v{HP+i}")
        k(f"v_and_b32 v{R0+2*i+1}, s35, v{HP+i}")
        k(f"v_lshlrev_b32 v{R1+2*i}, 16, v{HP+8+i}")
        k(f"v_and_b32 v{R1+2*i+1}, s35, v{HP+8+i}")
    RM = 220
    mark(k, 4)
    ln_stats_rows(k, R0, R1, T, RM, 40)
    ln_apply_rows(k, R0, R1, RM, Y0, Y1)
    LP = 52
    for i in range(8):
        k(f"{CVT} v{LP+i}, v{Y0+2*i}, v{Y0+2*i+1}")
        k(f"{CVT} v{LP+8+i}, v{Y1+2*i}, v{Y1+2*i+1}")
    for i in range(8):
        k(f"v_lshlrev_b32 v{R0+2*i}, 16, v{LP+i}")
        k(f"v_and_b32 v{R0+2*i+1}, s35, v{LP+i}")
        k(f"v_lshlrev_b32 v{R1+2*i}, 16, v{LP+8+i}")
        k(f"v_and_b32 v{R1+2*i+1}, s35, v{LP+8+i}")
    ln_stats_rows(k, R0, R1, T, RM, 40)
    ln_apply_rows(k, R0, R1, RM, Y0, Y1)
    NP = 68
    for i in range(8):
        k(f"{CVT} v{NP+i}, v{Y0+2*i}, v{Y0+2*i+1}")
        k(f"{CVT} v{NP+8+i}, v{Y1+2*i}, v{Y1+2*i+1}")
    k(f"buffer_store_dwordx4 {vr(NP,4)}, v2, s[20:23], s31 offen {ST_P3}")
    k(f"buffer_store_dwordx4 {vr(NP+4,4)}, v2, s[20:23], s31 offen offset:1024 {ST_P3}")
    k(f"buffer_store_dwordx4 {vr(NP+8,4)}, v2, s[20:23], s32 offen {ST_P3}")
    k(f"buffer_store_dwordx4 {vr(NP+12,4)}, v2, s[20:23], s32 offen offset:1024 {ST_P3}")
    stamp_end(k, 'p3')
    k("L_p3_end:")
    k("s_endpgm")
    return k, 228, 33792

MF16 = 'v_mfma_f32_16x16x32_bf16'

def interleave(mf, rd, lead=0):
    out = []; n = len(mf); m = len(rd); ri = 0
    for i in range(n):
        out.append(mf[i])
        tgt = min(m, (m*(i+1) + n - 1)//n)
        while ri < tgt:
            out.append(rd[ri]); ri += 1
    out += rd[ri:]
    return out

def producer_loop(k, tag, per, issue, NS, NIT):
    mark(k, 1)
    issue()
    mark(k, 2)
    issue()
    k(f"s_waitcnt vmcnt({per})")
    mark(k, 3)
    k("s_barrier")
    for n in range(2, NS): issue()
    mark(k, 4)
    nmain = NIT - NS
    k(f"s_mov_b32 s60, 0")
    k(f"L_{tag}_ploop:")
    k(f"s_waitcnt vmcnt({(NS-2)*per})")
    k("s_barrier")
    issue()
    k("s_add_u32 s60, s60, 1")
    k(f"s_cmp_lt_u32 s60, {nmain}")
    k(f"s_cbranch_scc1 L_{tag}_ploop")
    for n in range(nmain, NIT-1):
        k(f"s_waitcnt vmcnt({(NIT-1-(n+1))*per})")
        k("s_barrier")


XB_OFF = ZW_OFF
FL_OFF = 0x2800000
def gemm_kernel(tag):
    g1 = tag == 'g1'
    k = Kern(tag + '_kernel')
    ASZ = 16384; STG = 32768; NS = 3
    NIT = 32 if g1 else 28
    BSTR = 7168 if g1 else 4096
    k(f"s_cmp_ge_u32 s2, 256")
    k(f"s_cbranch_scc1 L_{tag}_end")
    stamp_begin(k)
    if g1:
        k("s_load_dwordx4 s[4:7], s[0:1], 32")
        k("s_load_dwordx2 s[24:25], s[0:1], 48")
    else:
        k("s_load_dwordx4 s[4:7], s[0:1], 48")
        k("s_load_dwordx2 s[24:25], s[0:1], 64")
    k("s_load_dwordx2 s[26:27], s[0:1], 80")
    k("v_and_b32 v1, 63, v0")
    k("v_lshrrev_b32 v2, 6, v0")
    k("v_readfirstlane_b32 s28, v2")
    if g1:
        k("s_and_b32 s30, s2, 1")
        k("s_lshl_b32 s30, s30, 2")
        k("s_bfe_u32 s52, s2, 0x20003")
        k("s_add_u32 s30, s30, s52")
        k("s_bfe_u32 s29, s2, 0x20001")
        k("s_mul_i32 s29, s29, 7")
        k("s_lshr_b32 s53, s2, 5")
        k("s_add_u32 s29, s29, s53")
        k("s_mov_b32 s63, 0")
    else:
        if MAP2 == 1:
            k("s_bfe_u32 s62, s2, 0x10003")
            k("s_bfe_u32 s29, s2, 0x20001")
            k("s_lshl_b32 s29, s29, 2")
            k("s_bfe_u32 s52, s2, 0x20004")
            k("s_add_u32 s29, s29, s52")
            k("s_lshr_b32 s53, s2, 6")
            k("s_and_b32 s30, s2, 1")
            k("s_lshl_b32 s30, s30, 2")
            k("s_add_u32 s30, s30, s53")
        else:
            k("s_and_b32 s62, s2, 1")
            k("s_bfe_u32 s29, s2, 0x20001")
            k("s_lshl_b32 s29, s29, 2")
            k("s_bfe_u32 s52, s2, 0x20003")
            k("s_add_u32 s29, s29, s52")
            k("s_lshr_b32 s53, s2, 5")
            k("s_mov_b32 s30, s53")
        k("s_mul_i32 s63, s62, 28")
        srd(k, 56, 26, 256*64, FL_OFF) if False else None
    k("s_lshl_b32 s31, s29, 8")
    k("s_lshl_b32 s32, s30, 8")
    k("s_waitcnt lgkmcnt(0)")
    if g1:
        srd(k, 8, 4, S*F*2)
        srd(k, 12, 26, S*D*2, HN_OFF)
        srd(k, 16, 26, F*D*2, GT_OFF)
        srd(k, 20, 6, F*2)
        srd(k, 44, 26, 256*64, FL_OFF)
        k("s_lshl_b32 s33, s2, 6")
        k("v_mov_b32 v2, 0")
        k("v_lshlrev_b32 v3, 2, v0")
        k("v_cmp_gt_u32 vcc, 16, v0")
        k("s_and_saveexec_b64 s[34:35], vcc")
        k(f"s_cbranch_execz L_{tag}_nozf")
        k("buffer_store_dword v2, v3, s[44:47], s33 offen")
        k(f"L_{tag}_nozf:")
        k("s_mov_b64 exec, -1")
        k("s_cmp_lt_u32 s2, 224")
        k(f"s_cbranch_scc1 L_{tag}_main")
        if W2PF:
            srd(k, 48, 24, F*S*2)
            k("s_sub_u32 s33, s2, 224")
            k("s_mul_i32 s33, s33, 458752")
            k("v_lshlrev_b32 v2, 7, v0")
            for i in range(7):
                k(f"buffer_load_dword v3, v2, s[48:51], s33 offen")
                k("s_add_u32 s33, s33, 65536")
        k(f"s_branch L_{tag}_end")
        k(f"L_{tag}_main:")
    else:
        srd(k, 8, 4, F*S*2)
        srd(k, 12, 26, F*D*2, GT_OFF)
        srd(k, 16, 26, S*D*2, H_OFF)
        srd(k, 20, 6, S*2)
        srd(k, 48, 24, S*D*2)
        k("s_getreg_b32 s54, hwreg(HW_REG_XCC_ID, 0, 4)")
        k("s_add_u32 s54, s54, 1")
        srd(k, 56, 26, 256*64, FL_OFF)
        k("s_lshl_b32 s33, s2, 6")
        k("v_mov_b32 v2, s54")
        k("v_mov_b32 v3, 0")
        k("v_cmp_eq_u32 vcc, 0, v0")
        k("s_and_saveexec_b64 s[34:35], vcc")
        k(f"s_cbranch_execz L_{tag}_nopub")
        k("buffer_store_dword v2, v3, s[56:59], s33 offen offset:4 sc0 sc1")
        k(f"L_{tag}_nopub:")
        k("s_mov_b64 exec, -1")
    k("s_cmp_ge_u32 s28, 4")
    k(f"s_cbranch_scc1 L_{tag}_prod")
    ACC = 8; X = 72; Y = 136; R = 200
    AA = [R+i for i in range(4)]; AB = [R+4+i for i in range(4)]
    BA = [R+8+i for i in range(4)]; BB = [R+12+i for i in range(4)]
    MISC = R + 16
    k("s_and_b32 s33, s28, 1")
    k("s_lshr_b32 s36, s28, 1")
    k("v_lshrrev_b32 v2, 4, v1")
    k("v_bfe_u32 v3, v1, 2, 2")
    k("v_and_b32 v4, 3, v1")
    k("v_lshl_add_u32 v5, v2, 2, v3")
    k("v_and_b32 v6, 7, v5")
    k("v_lshlrev_b32 v6, 1, v6")
    k("v_lshrrev_b32 v7, 1, v4")
    k("v_and_b32 v9, 1, v4")
    for (base, w, add) in ((BA, 's33', 0), (BB, 's36', ASZ)):
        k(f"s_lshl_b32 s35, {w}, 3")
        k("v_add_u32 v10, s35, v7")
        k("v_xor_b32 v10, v10, v6")
        k("v_lshlrev_b32 v10, 4, v10")
        k("v_lshl_add_u32 v10, v9, 3, v10")
        k("v_lshl_add_u32 v10, v5, 8, v10")
        if add: k(f"v_add_u32 v10, {add}, v10")
        k(f"v_mov_b32 v{base[0]}, v10")
        for t in range(1, 4): k(f"v_xor_b32 v{base[t]}, {32*t}, v10")
    for t in range(4):
        k(f"v_mov_b32 v{AA[t]}, v{BA[t]}"); k(f"v_mov_b32 v{AB[t]}, v{BB[t]}")
    BIAS = MISC
    k("v_and_b32 v2, 15, v1")
    k("v_lshlrev_b32 v2, 1, v2")
    k("s_lshl_b32 s37, s36, 7")
    k("s_add_u32 s37, s37, s31")
    for t in range(4):
        k(f"buffer_load_ushort v{BIAS+t}, v2, s[20:23], s37 offen offset:{32*t}")
    OV = MISC+4
    k("v_and_b32 v2, 15, v1")
    k("v_lshlrev_b32 v2, 11, v2")
    k("v_lshrrev_b32 v3, 4, v1")
    k(f"v_lshl_add_u32 v{OV}, v3, 4, v2")
    k("s_lshl_b32 s38, s29, 7")
    k("s_lshl_b32 s39, s36, 6")
    k("s_add_u32 s38, s38, s39")
    k("s_lshl_b32 s38, s38, 11")
    k("s_add_u32 s38, s38, s32")
    k("s_lshl_b32 s39, s33, 7")
    k("s_add_u32 s38, s38, s39")
    if not g1:
        HL = MISC+6
        NV = HL+16
        if OUT_TOUCH:
            k("s_lshl_b32 s39, s62, 16")
            k("s_add_u32 s39, s39, s38")
            k(f"buffer_load_dword v{NV}, v{OV}, s[48:51], s39 offen")
            NV += 1
    else:
        NV = MISC+5
    def reads(dst):
        r = []
        for ks in range(2):
            b = dst + 32*ks; ko = 32*ks
            for t in range(4):
                for (o, a) in ((0, AA[t]), (16, AB[t])):
                    r.append(f"ds_read_b64_tr_b16 {vr(b+o+4*t,2)}, v{a} offset:{ko*256}")
                    r.append(f"ds_read_b64_tr_b16 {vr(b+o+4*t+2,2)}, v{a} offset:{(ko+16)*256}")
        return r
    def mfmas(src):
        m = []
        for ks in range(2):
            b = src + 32*ks
            order = sorted([(td, tn) for td in range(4) for tn in range(4)], key=lambda x: (max(x), x))
            for td, tn in order:
                a = ACC + 4*(4*tn+td)
                m.append(f"{MF16} {vr(a,4)}, {vr(b+4*td,4)}, {vr(b+16+4*tn,4)}, {vr(a,4)}")
        return m
    def sched(mf, rd, extra):
        out = []; ri = 0; ei = 0
        for i, m in enumerate(mf):
            out.append(m)
            if ri < len(rd):
                for _ in range(RPAT[i % len(RPAT)]):
                    if ri < len(rd): out.append(rd[ri]); ri += 1
            elif ei < len(extra):
                out.append(extra[ei]); ei += 1
        out += rd[ri:] + extra[ei:]
        return out
    def upd():
        e = [f"s_add_u32 s34, s34, {STG}", f"s_cmp_eq_u32 s34, {STG*NS}", "s_cselect_b32 s34, 0, s34"]
        e += [f"v_add_u32 v{AA[t]}, s34, v{BA[t]}" for t in range(4)]
        e += [f"v_add_u32 v{AB[t]}, s34, v{BB[t]}" for t in range(4)]
        return e
    for i in range(64): k(f"v_mov_b32 v{ACC+i}, 0")
    k("s_mov_b32 s34, 0")
    k("s_mov_b32 s35, 0")
    mark(k, 1)
    k("s_barrier")
    mark(k, 2)
    for x in reads(X): k(x)
    for x in upd(): k(x)
    k(f"L_{tag}_cloop:")
    k("s_waitcnt lgkmcnt(0)")
    k("s_barrier")
    for x in sched(mfmas(X), reads(Y), upd()): k(x)
    k("s_waitcnt lgkmcnt(0)")
    k("s_barrier")
    for x in sched(mfmas(Y), reads(X), upd() + ["s_add_u32 s35, s35, 2", f"s_cmp_lt_u32 s35, {NIT-2}"]): k(x)
    k(f"s_cbranch_scc1 L_{tag}_cloop")
    XID = 3
    if not g1:
        k(f"s_xor_b32 s42, s2, {8 if MAP2 == 1 else 1}")
        k("s_lshl_b32 s39, s42, 6")
        k("v_mov_b32 v4, 0")
        k(f"buffer_load_dword v{XID}, v4, s[56:59], s39 offen offset:4 sc0 sc1")
        k("s_lshl_b32 s39, s62, 16")
        k("s_add_u32 s39, s39, s38")
        for tnl in range(2):
            for tp in range(2):
                k(f"s_add_u32 s40, s39, {tnl*16*2048 + tp*64}")
                k(f"buffer_load_dwordx4 {vr(HL+8*tnl+4*tp,4)}, v{OV}, s[16:19], s40 offen")
    k("s_waitcnt lgkmcnt(0)")
    k("s_barrier")
    for x in sched(mfmas(X), reads(Y), []): k(x)
    k("s_waitcnt lgkmcnt(0)")
    for x in mfmas(Y): k(x)
    mark(k, 3)
    k("s_mov_b32 s40, 0xffff0000")
    T = X
    def pack_swap(P):
        k(f"v_permlane32_swap_b32 v{P}, v{P+2}")
        k(f"v_permlane32_swap_b32 v{P+1}, v{P+3}")
        k(f"v_permlane16_swap_b32 v{P}, v{P+2}")
        k(f"v_permlane16_swap_b32 v{P+1}, v{P+3}")
    def store_lines(P0, P1, tmp, so, srdreg):
        for i in range(4): k(f"v_mov_b32 v{tmp+i}, v{P0+i}")
        for i in range(4): k(f"v_mov_b32_dpp v{P0+i}, v{P1+i} row_ror:8 row_mask:0xf bank_mask:0xc")
        for i in range(4): k(f"v_mov_b32_dpp v{P1+i}, v{tmp+i} row_ror:8 row_mask:0xf bank_mask:0x3")
        fl = ST_G1 if g1 else ST_G2
        k(f"s_add_u32 s41, s38, {so}")
        k(f"buffer_store_dwordx4 {vr(P0,4)}, v{OVS}, s[{srdreg}:{srdreg+3}], s41 offen {fl}")
        k(f"s_add_u32 s41, s38, {so + 8*2048}")
        k(f"buffer_store_dwordx4 {vr(P1,4)}, v{OVS}, s[{srdreg}:{srdreg+3}], s41 offen {fl}")
    OVS = 3
    def set_ovs():
        k("v_and_b32 v2, 7, v1")
        k("v_lshlrev_b32 v2, 11, v2")
        k("v_bfe_u32 v3, v1, 3, 1")
        k("v_lshl_add_u32 v2, v3, 6, v2")
        k("v_lshrrev_b32 v3, 4, v1")
        k(f"v_lshl_add_u32 v{OVS}, v3, 4, v2")
    if g1:
        SH = 65536
        k("s_lshl_b32 s39, s28, 13")
        k(f"s_add_u32 s39, s39, {SH}")
        k("v_lshl_add_u32 v2, v1, 4, s39")
        for i in range(8): k(f"ds_write_b128 v2, {vr(ACC+32+4*i,4)} offset:{1024*i}")
        k("s_waitcnt vmcnt(0) lgkmcnt(0)")
        k("s_barrier")
        mark(k, 4)
        k(f"L_{tag}_epi:")
        for t in range(2): k(f"v_lshlrev_b32 v{BIAS+t}, 16, v{BIAS+t}")
        c0 = -2.0*math.log2(math.e)*math.sqrt(2.0/math.pi); c1 = c0*0.044715
        k("s_mov_b32 s40, 0xffff0000")
        k(f"s_mov_b32 s42, {f32(c1)}")
        k(f"v_mov_b32 v4, {f32(c0)}"); k(f"v_mov_b32 v5, {f32(c0)}")
        k(f"v_mov_b32 v6, 1.0"); k(f"v_mov_b32 v7, 1.0")
        set_ovs()
        for tn in range(2):
            for tp in range(2):
                P = T + 4*tp + 24*tn
                for q in range(4):
                    td = 2*tp + q//2
                    src = ACC + 4*(4*tn+td) + 2*(q % 2)
                    u, w = T+8+4*q, T+10+4*q
                    gelu_pair(k, src, u, w, BIAS+tn, P+q)
                pack_swap(P)
            store_lines(T+24*tn, T+24*tn+4, T+32, tn*16*2048, 16)
    else:
        k("s_waitcnt vmcnt(0)")
        srd(k, 44, 26, 256*32768, 0x1E00000 if XB_SEP else XB_OFF)
        srd(k, 56, 26, 256*64, FL_OFF)
        k(f"s_xor_b32 s42, s2, {8 if MAP2 == 1 else 1}")
        k("s_lshl_b32 s43, s42, 15")
        k("s_lshl_b32 s39, s28, 13")
        k("s_add_u32 s43, s43, s39")
        k("v_lshlrev_b32 v2, 4, v1")
        k("v_mov_b32 v4, 0")
        k("s_lshl_b32 s39, s42, 6")
        k("s_mov_b32 s41, 0")
        k("v_readfirstlane_b32 s61, v3")
        k("s_cmp_eq_u32 s61, 0")
        k(f"s_cbranch_scc0 L_{tag}_xpolld")
        k(f"L_{tag}_xpoll:")
        k("buffer_load_dword v3, v4, s[56:59], s39 offen offset:4 sc0 sc1")
        k("s_waitcnt vmcnt(0)")
        k("v_readfirstlane_b32 s61, v3")
        k("s_add_u32 s41, s41, 1")
        k("s_cmp_ge_u32 s41, 0x40000")
        k(f"s_cbranch_scc1 L_{tag}_xpolld")
        k("s_cmp_eq_u32 s61, 0")
        k(f"s_cbranch_scc1 L_{tag}_xpoll")
        k(f"L_{tag}_xpolld:")
        k("s_cmp_eq_u32 s61, s54")
        k(f"s_cselect_b32 s61, {0 if FORCE_FAR else 1}, 0")
        def sends(flags, lab):
            k("s_cmp_eq_u32 s62, 0")
            k(f"s_cbranch_scc1 L_{tag}_k0{lab}")
            for i in range(8):
                k(f"s_add_u32 s39, s43, {1024*i}")
                k(f"buffer_store_dwordx4 {vr(ACC+4*i,4)}, v2, s[44:47], s39 offen {flags}")
            k(f"s_branch L_{tag}_k1{lab}")
            k(f"L_{tag}_k0{lab}:")
            for i in range(8):
                k(f"s_add_u32 s39, s43, {1024*i}")
                k(f"buffer_store_dwordx4 {vr(ACC+32+4*i,4)}, v2, s[44:47], s39 offen {flags}")
            k(f"L_{tag}_k1{lab}:")
        def handoff(stf, ldf, lab):
            sends(stf, lab)
            k("s_waitcnt vmcnt(0)")
            k("s_lshl_b32 s39, s42, 6")
            k("s_lshl_b32 s41, s28, 2")
            k("s_add_u32 s39, s39, s41")
            k("v_mov_b32 v3, 1")
            k("s_mov_b64 exec, 1")
            k(f"buffer_store_dword v3, v4, s[56:59], s39 offen offset:16 {stf}")
            k("s_lshl_b32 s39, s2, 6")
            k("s_add_u32 s39, s39, s41")
            k("s_mov_b32 s41, 0")
            k(f"L_{tag}_poll{lab}:")
            k(f"buffer_load_dword v3, v4, s[56:59], s39 offen offset:16 {ldf}")
            k("s_waitcnt vmcnt(0)")
            k("v_readfirstlane_b32 s43, v3")
            k("s_add_u32 s41, s41, 1")
            k("s_cmp_ge_u32 s41, 0x40000")
            k(f"s_cbranch_scc1 L_{tag}_polld{lab}")
            k("s_cmp_eq_u32 s43, 1")
            k(f"s_cbranch_scc0 L_{tag}_poll{lab}")
            k(f"L_{tag}_polld{lab}:")
            k("s_mov_b64 exec, -1")
            k("s_lshl_b32 s43, s2, 15")
            k("s_lshl_b32 s39, s28, 13")
            k("s_add_u32 s43, s43, s39")
            for i in range(8):
                k(f"s_add_u32 s39, s43, {1024*i}")
                k(f"buffer_load_dwordx4 {vr(Y+4*i,4)}, v2, s[44:47], s39 offen {ldf}")
        k("s_cmp_eq_u32 s61, 1")
        k(f"s_cbranch_scc0 L_{tag}_far")
        handoff('', 'sc1', 'n')
        k(f"s_branch L_{tag}_xdone")
        k(f"L_{tag}_far:")
        handoff('sc0 sc1', 'sc0 sc1', 'f')
        k(f"L_{tag}_xdone:")
        k("s_cmp_eq_u32 s62, 0")
        k(f"s_cbranch_scc1 L_{tag}_kept")
        for i in range(32): k(f"v_mov_b32 v{ACC+i}, v{ACC+32+i}")
        k(f"v_mov_b32 v{BIAS}, v{BIAS+2}"); k(f"v_mov_b32 v{BIAS+1}, v{BIAS+3}")
        k(f"L_{tag}_kept:")
        mark(k, 4)
        k(f"v_lshlrev_b32 v{BIAS}, 16, v{BIAS}"); k(f"v_lshlrev_b32 v{BIAS+1}, 16, v{BIAS+1}")
        k("s_lshl_b32 s39, s62, 16")
        k("s_add_u32 s38, s38, s39")
        set_ovs()
        for tnl in range(2):
            for tp in range(2):
                i0 = 4*tnl + 2*tp
                k(f"s_waitcnt vmcnt({6 - i0 if i0 < 6 else 0})")
                if i0 == 0: mark(k, 5)
                P = T + 4*tp + 24*tnl
                for q in range(4):
                    td = 2*tp + q//2
                    a = ACC + 4*(4*tnl+td) + 2*(q % 2); y = Y + 4*(4*tnl+td) + 2*(q % 2)
                    u, w = T+8+4*q, T+10+4*q
                    k(f"v_pk_add_f32 {vr(a,2)}, {vr(a,2)}, {vr(y,2)}")
                    k(f"{CVT} v{w}, v{a}, v{a+1}")
                    k(f"v_lshlrev_b32 v{u}, 16, v{w}")
                    k(f"v_and_b32 v{u+1}, s40, v{w}")
                    k(f"v_add_f32 v{u}, v{u}, v{BIAS+tnl}")
                    k(f"v_add_f32 v{u+1}, v{u+1}, v{BIAS+tnl}")
                    k(f"{CVT} v{P+q}, v{u}, v{u+1}")
                pack_swap(P)
                for q in range(4):
                    u, w = T+8+4*q, T+10+4*q
                    hp = HL+8*tnl+4*tp+q
                    k(f"v_lshlrev_b32 v{u}, 16, v{P+q}")
                    k(f"v_and_b32 v{u+1}, s40, v{P+q}")
                    k(f"v_lshlrev_b32 v{w}, 16, v{hp}")
                    k(f"v_and_b32 v{w+1}, s40, v{hp}")
                    k(f"v_pk_add_f32 {vr(u,2)}, {vr(u,2)}, {vr(w,2)}")
                    k(f"{CVT} v{P+q}, v{u}, v{u+1}")
            store_lines(T+24*tnl, T+24*tnl+4, T+32, tnl*16*2048, 48)
    stamp_end(k, tag)
    k(f"s_branch L_{tag}_end")
    k(f"L_{tag}_prod:")
    if PPRIO: k(f"s_setprio {PPRIO}")
    k("s_sub_u32 s33, s28, 4")
    k("v_lshrrev_b32 v2, 4, v1")
    k("s_and_b32 s34, s33, 1")
    k("s_lshl_b32 s34, s34, 2")
    k("v_add_u32 v3, s34, v2")
    k("v_lshlrev_b32 v3, 1, v3")
    k("v_and_b32 v4, 15, v1")
    k("v_xor_b32 v3, v3, v4")
    k("v_lshlrev_b32 v3, 4, v3")
    k("v_lshl_add_u32 v8, v2, 11, v3")
    k(f"v_mul_u32_u24 v2, {BSTR}, v2")
    k("v_add_u32 v9, v2, v3")
    k("s_lshl_b32 s34, s33, 13")
    k("s_add_u32 s40, s32, s34")
    k(f"s_mul_i32 s34, s33, {4*BSTR}")
    k("s_add_u32 s41, s31, s34")
    k("s_lshl_b32 s42, s33, 10")
    k("s_mov_b32 s43, 0")
    k("s_add_u32 s46, s52, s53")
    k("s_mov_b32 s47, 0")
    def issue():
        k("s_add_u32 s58, s46, s47")
        k("s_and_b32 s58, s58, 3")
        k("s_cmp_eq_u32 s58, 0")
        k(f"s_cselect_b32 s58, {3+NIT}, {NIT-1}")
        k("s_add_u32 s58, s58, s47")
        k(f"s_cmp_ge_u32 s58, {2*NIT}")
        k(f"s_cselect_b32 s59, {2*NIT}, {NIT}")
        k(f"s_cmp_ge_u32 s58, {NIT}")
        k(f"s_cselect_b32 s59, s59, 0")
        k("s_sub_u32 s58, s58, s59")
        if not KPERM: k("s_mov_b32 s58, s47")
        if KWRAP: k(f"s_and_b32 s58, s58, {KWRAP-1}")
        k("s_add_u32 s58, s58, s63")
        k(f"s_mul_i32 s59, s58, {64*BSTR}")
        k(f"s_lshl_b32 s58, s58, 17")
        k("s_add_u32 s58, s58, s40")
        k("s_add_u32 s59, s59, s41")
        k("s_add_u32 s44, s43, s42")
        for m in range(4):
            k(f"s_add_u32 m0, s44, {4096*m}")
            k(f"s_add_u32 s45, s58, {m*16*2048}")
            k(f"buffer_load_dwordx4 v8, s[12:15], s45 offen lds")
            k(f"s_add_u32 m0, s44, {ASZ+4096*m}")
            k(f"s_add_u32 s45, s59, {m*16*BSTR}")
            k(f"buffer_load_dwordx4 v9, s[8:11], s45 offen lds")
        k("s_add_u32 s47, s47, 1")
        k(f"s_add_u32 s43, s43, {STG}")
        k(f"s_cmp_eq_u32 s43, {STG*NS}")
        k("s_cselect_b32 s43, 0, s43")
    producer_loop(k, tag, 8, issue, NS, NIT)
    if g1:
        k("s_and_b32 s34, s33, 1")
        k("s_lshr_b32 s36, s33, 1")
        k("v_and_b32 v2, 15, v1")
        k("v_lshlrev_b32 v2, 1, v2")
        k("s_lshl_b32 s37, s36, 7")
        k("s_add_u32 s37, s37, s31")
        for t in range(2):
            k(f"buffer_load_ushort v{BIAS+t}, v2, s[20:23], s37 offen offset:{64+32*t}")
        k("v_and_b32 v2, 15, v1")
        k("v_lshlrev_b32 v2, 11, v2")
        k("v_lshrrev_b32 v3, 4, v1")
        k(f"v_lshl_add_u32 v{OV}, v3, 4, v2")
        k("s_lshl_b32 s38, s29, 7")
        k("s_lshl_b32 s39, s36, 6")
        k("s_add_u32 s38, s38, s39")
        k("s_add_u32 s38, s38, 32")
        k("s_lshl_b32 s38, s38, 11")
        k("s_add_u32 s38, s38, s32")
        k("s_lshl_b32 s39, s34, 7")
        k("s_add_u32 s38, s38, s39")
        k("s_lshl_b32 s39, s33, 13")
        k(f"s_add_u32 s39, s39, 65536")
        k("v_lshl_add_u32 v2, v1, 4, s39")
        k("s_setprio 0")
        k("s_barrier")
        for i in range(8): k(f"ds_read_b128 {vr(ACC+4*i,4)}, v2 offset:{1024*i}")
        k("s_waitcnt vmcnt(0) lgkmcnt(0)")
        k(f"s_branch L_{tag}_epi")
    stamp_end(k, tag, tid=256, slot=256, sfx='p')
    k(f"L_{tag}_end:")
    k("s_endpgm")
    return k, NV, STG*NS

def gelu_pair(k, src, u, w, bias, dst):
    if EMU_U:
        k(f"{CVT} v{w}, v{src}, v{src+1}")
        k(f"v_lshlrev_b32 v{u}, 16, v{w}")
        k(f"v_and_b32 v{u+1}, s40, v{w}")
        k(f"v_add_f32 v{u}, v{u}, v{bias}")
        k(f"v_add_f32 v{u+1}, v{u+1}, v{bias}")
        k(f"{CVT} v{w}, v{u}, v{u+1}")
        k(f"v_lshlrev_b32 v{u}, 16, v{w}")
        k(f"v_and_b32 v{u+1}, s40, v{w}")
    else:
        k(f"v_add_f32 v{u}, v{src}, v{bias}")
        k(f"v_add_f32 v{u+1}, v{src+1}, v{bias}")
    k(f"v_pk_mul_f32 {vr(w,2)}, {vr(u,2)}, {vr(u,2)}")
    k(f"v_pk_fma_f32 {vr(w,2)}, {vr(w,2)}, s[42:43], {vr(4,2)} op_sel_hi:[1,0,1]")
    k(f"v_pk_mul_f32 {vr(w,2)}, {vr(w,2)}, {vr(u,2)}")
    k(f"v_exp_f32 v{w}, v{w}")
    k(f"v_exp_f32 v{w+1}, v{w+1}")
    k(f"s_nop 0")
    k(f"v_pk_add_f32 {vr(w,2)}, {vr(w,2)}, {vr(6,2)}")
    k(f"v_rcp_f32 v{w}, v{w}")
    k(f"v_rcp_f32 v{w+1}, v{w+1}")
    k(f"s_nop 0")
    k(f"v_pk_mul_f32 {vr(w,2)}, {vr(w,2)}, {vr(u,2)}")
    k(f"{CVT} v{dst}, v{w}, v{w+1}")

RPAT = [2, 1]
MAP2 = 0
XB_SEP = 1
FORCE_FAR = 0
PPRIO = 3
PFD = 0
KPERM = 1
FAKE16 = 0
NS1 = 3
NS2 = 3
KWRAP = 0
W2PF = True
EMU_U = True
RPG1 = 3
RPG2 = 4
def gen_g1(): return gemm_kernel('g1')
def gen_g2(): return gemm_kernel('g2')

KERNELS = [('p1_kernel', gen_p1, (256,1,1), (256,1,1)), ('p2_kernel', gen_p2, (257,1,1), (256,1,1)), ('p3_kernel', gen_p3, (256,1,1), (256,1,1)),
 ('g1_kernel', gen_g1, (256,1,1), (512,1,1)), ('g2_kernel', gen_g2, (256,1,1), (512,1,1))]

def build_all(kernels=None):
    ks = []
    for name, fn, grid, block in (kernels or KERNELS):
        k, nv, lds = fn()
        if ST_ALL:
            k.l = [ (x + ' ' + ST_ALL) if ('buffer_store' in x and 'sc1' not in x and 'sc0' not in x and ' nt' not in x) else x for x in k.l]
        if name.startswith('g'):
            if NO_DMA: k.l = [x for x in k.l if not ('offen lds' in x)]
            if NO_MFMA: k.l = [x for x in k.l if 'v_mfma' not in x]
            if NO_ADV: k.l = [x for x in k.l if not (x.strip().startswith('s_add_u32 s40, s40,') or x.strip().startswith('s_add_u32 s41, s41,'))]
            if NO_A: k.l = [x for x in k.l if not ('s[12:15]' in x and 'offen lds' in x)]
            if NO_B: k.l = [x for x in k.l if not ('s[8:11]' in x and 'offen lds' in x)]
            if NO_BAR: k.l = [x for x in k.l if 's_barrier' not in x]
            if NO_READ: k.l = [x for x in k.l if 'ds_read_b64_tr' not in x]
        ks.append((name, k, nv, lds, grid, block))
    hdr = open('sequential_preLN__spectral_gfnet__mixer_token_mlp__prompt.s.ref').read().split('; Override launch')[0]
    s = hdr
    for name, k, nv, lds, grid, block in ks:
        s += f"; @launch kernel={name} grid=({grid[0]},{grid[1]},{grid[2]}) block=({block[0]},{block[1]},{block[2]}) lds={lds}\n"
    s += '.amdgcn_target "amdgcn-amd-amdhsa--gfx950"\n.text\n'
    for name, k, nv, lds, grid, block in ks: s += k.text()
    s += 'L_text_end:\n'
    s += '.section .rodata,"a"\n'
    for name, k, nv, lds, grid, block in ks: s += descriptor(name, nv)
    return s, ks

if __name__ == '__main__':
    s, ks = build_all()
    open(sys.argv[1] if len(sys.argv) > 1 else 'out.s', 'w').write(s)
    print('written', len(s), 'bytes')
```

```python
import sys, importlib
import gen
for a in sys.argv[1:]:
    name,cfg=a.split(':',1)
    g=importlib.reload(gen)
    for c in cfg.split():
        if '=' in c:
            kk,vv=c.split('=',1); setattr(g,kk,eval(vv))
    s,_=g.build_all()
    open(f'v_{name}.s','w').write(s)
    print('wrote',name,len(s))
```

```python
import sys, math, struct
sys.path.insert(0, 'work')
from asmlib import *

ZW_OFF = 0x0          ; ZW_SIZE = 257*32768
ZD_OFF = 0x0 ; WB_OFF = 0x480000
VB_OFF = 0x900000     ; VB_BLK = 257*64 ; VB_SIZE = 256*VB_BLK + 1024
H_OFF  = 0xE00000
HN_OFF = 0x1200000
GT_OFF = 0x1600000
WS_USED = 0x1D00000
S, D, F = 2048, 1024, 3584

def f32(x):
    return '0x%08x' % struct.unpack('<I', struct.pack('<f', x))[0]

CVT = 'v_cvt_pk_bf16_f32'
STAMP = False
NO_DMA = False
NO_MFMA = False
NO_READ = False
NO_BAR = False
NO_ADV = False
NO_A = False
NO_B = False
STAMP_OFF = 0x3000000
KIDX = {'p1':0,'p2':1,'p3':2,'g1':3,'g2':4}
NMARK = 8
def mark(k, i):
    if STAMP and not (LOOPSTAMP and k.name.startswith('g') and 1 <= i <= 4): k(f"s_memrealtime s[{64+2*i}:{65+2*i}]")
def stamp_begin(k):
    if STAMP:
        for i in range(1, NMARK): k(f"s_mov_b64 s[{64+2*i}:{65+2*i}], 0")
        k("s_memrealtime s[64:65]")
        k("s_memtime s[94:95]")
def stamp_end(k, tag, tid=0, slot=0, sfx=''):
    if not STAMP: return
    mark(k, 6)
    k("s_waitcnt vmcnt(0) lgkmcnt(0)")
    mark(k, 7)
    k("s_memtime s[84:85]")
    k("s_load_dwordx2 s[88:89], s[0:1], 80")
    k("s_waitcnt lgkmcnt(0)")
    k(f"s_add_u32 s88, s88, {STAMP_OFF + KIDX[tag]*65536}")
    k("s_addc_u32 s89, s89, 0")
    k(f"s_add_u32 s87, s2, {slot}")
    k("s_lshl_b32 s87, s87, 7")
    k("v_mov_b32 v8, s87")
    k(f"v_cmp_eq_u32 vcc, {tid}, v0" if tid <= 64 else f"v_cmp_eq_u32 vcc, {hex(tid)}, v0")
    k("s_and_saveexec_b64 s[86:87], vcc")
    k(f"s_cbranch_execz L_{tag}_nostamp{sfx}")
    for i in range(0, NMARK, 2):
        for j in range(4): k(f"v_mov_b32 v{4+j}, s{64+2*i+j}")
        k(f"global_store_dwordx4 v8, v[4:7], s[88:89] offset:{8*i}")
        k("s_nop 1")
    k("v_mov_b32 v4, s94"); k("v_mov_b32 v5, s95"); k("v_mov_b32 v6, s84"); k("v_mov_b32 v7, s85")
    k("global_store_dwordx4 v8, v[4:7], s[88:89] offset:64")
    k("s_getreg_b32 s84, hwreg(HW_REG_XCC_ID, 0, 4)")
    k("s_nop 1")
    k("v_mov_b32 v4, s84")
    k("global_store_dword v8, v4, s[88:89] offset:80")
    k(f"L_{tag}_nostamp{sfx}:")

MF32 = 'v_mfma_f32_32x32x16_bf16'

CODEPF = 1
W1PF = 0
W1L2 = 0
ST_FLAGS = ''
ST_ALL = ''
ST_P1 = 'sc1'
ST_P2 = 'sc1'
ST_P3 = 'sc1'
ST_G1 = 'sc1'
ST_G2 = 'nt'
OUT_TOUCH = 0
def code_prefetch(k, tag, first_label, last_label, vtmp, stmp, nwaves_cond=None):
    if not CODEPF: return
    k(f"s_getpc_b64 s[{stmp}:{stmp+1}]")
    k(f"L_{tag}_pc:")
    k(f"s_add_u32 s{stmp}, s{stmp}, {first_label}-L_{tag}_pc")
    k(f"s_addc_u32 s{stmp+1}, s{stmp+1}, 0")

def srd(k, s, base, size, off=0):
    if off:
        k(f"s_add_u32 s{s}, s{base}, {hex(off)}")
        k(f"s_addc_u32 s{s+1}, s{base+1}, 0")
    else:
        k(f"s_mov_b32 s{s}, s{base}")
        k(f"s_mov_b32 s{s+1}, s{base+1}")
    k(f"s_mov_b32 s{s+2}, {hex(size)}")
    k(f"s_mov_b32 s{s+3}, 0x20000")

SEQ = [(r, c) for r in range(4) for c in range(4)]

def rot_setup(k, vA, t):
    k(f"v_mul_f32 v{t+4}, {f32(5.0)}, v{vA}")
    k(f"v_cos_f32 v{t}, v{vA}")
    k(f"v_sin_f32 v{t+1}, v{vA}")
    k(f"v_cos_f32 v{t+2}, v{t+4}")
    k(f"v_sin_f32 v{t+3}, v{t+4}")

def rot(k, dst, src, st, tmp, sign):
    k(f"v_pk_mul_f32 {vr(tmp,2)}, {vr(src,2)}, {vr(st,2)} op_sel_hi:[1,0]")
    neg = "neg_lo:[0,1,0]" if sign > 0 else "neg_hi:[0,1,0]"
    k(f"v_pk_fma_f32 {vr(dst,2)}, {vr(src,2)}, {vr(st,2)}, {vr(tmp,2)} op_sel:[1,1,0] op_sel_hi:[0,1,1] {neg}")

def gen_matrix(k, Mr, Mi, vA, vB, t):
    rot_setup(k, vA, t)
    cur = [t+6, t+8]
    k(f"v_cos_f32 v{cur[0]}, v{vB}")
    k(f"v_sin_f32 v{cur[0]+1}, v{vB}")
    k("s_nop 0")
    for i, (r, c) in enumerate(SEQ):
        a_, b_ = cur[i % 2], cur[(i+1) % 2]
        if i < 15: rot(k, b_, a_, t+2 if c == 3 else t, t+4, +1)
        k(f"{CVT} v{Mr+i}, v{a_}, v{a_+1}")
        k(f"{CVT} v{Mi+i}, -v{a_+1}, v{a_}")

def gen_twiddle(k, tw, vA, vB, t, scale=None):
    rot_setup(k, vA, t)
    k(f"v_cos_f32 v{tw}, v{vB}")
    k(f"v_sin_f32_e64 v{tw+1}, -v{vB}")
    if scale is not None:
        k(f"v_mul_f32 v{tw}, {f32(scale)}, v{tw}")
        k(f"v_mul_f32 v{tw+1}, {f32(scale)}, v{tw+1}")
    else: k("s_nop 0")
    for i, (r, c) in enumerate(SEQ):
        if i < 15: rot(k, tw+2*(i+1), tw+2*i, t+2 if c == 3 else t, t+4, -1)

def stage(k, typ, Dr, Di, data, Mr, Mi, first=True):
    for r in range(4):
        for (Dx, M) in ((Dr, Mr), (Di, Mi)):
            c = '0' if (r == 0 and first) else vr(Dx, 16)
            if typ == 'A': k(f"{MF32} {vr(Dx,16)}, {vr(data+4*r,4)}, {vr(M+4*r,4)}, {c}")
            else:          k(f"{MF32} {vr(Dx,16)}, {vr(M+4*r,4)}, {vr(data+4*r,4)}, {c}")

def cmul_pack(k, Dr, Di, w, out, t, conj=False):
    for j in range(16):
        o = t + 2*(j % 4); jp = j & ~1; x = j & 1
        k(f"v_pk_mul_f32 {vr(o,2)}, {vr(w+2*j,2)}, {vr(Dr+jp,2)} op_sel:[0,{x}] op_sel_hi:[1,{x}]")
        k(f"v_pk_fma_f32 {vr(o,2)}, {vr(w+2*j,2)}, {vr(Di+jp,2)}, {vr(o,2)} op_sel:[1,{x},0] op_sel_hi:[0,{x},1] neg_lo:[1,0,0]")
        if j >= 1:
            po = t + 2*((j-1) % 4); n = '-' if conj else ''
            k(f"{CVT} v{out+j-1}, v{po}, {n}v{po+1}")
    po = t + 2*(15 % 4); n = '-' if conj else ''
    k(f"{CVT} v{out+15}, v{po}, {n}v{po+1}")

def wave_reduce2(k, a, b):
    for m in ("quad_perm:[1,0,3,2] row_mask:0xf", "quad_perm:[2,3,0,1] row_mask:0xf", "row_half_mirror row_mask:0xf",
              "row_mirror row_mask:0xf", "row_bcast:15 row_mask:0xa", "row_bcast:31 row_mask:0xc"):
        k(f"v_add_f32_dpp v{a}, v{a}, v{a} {m} bank_mask:0xf")
        k(f"v_add_f32_dpp v{b}, v{b}, v{b} {m} bank_mask:0xf")

def tree_sum(k, X, n, t, op='add'):
    acc = [t, t+2, t+4, t+6]
    for i in range(4):
        k(f"v_pk_add_f32 {vr(acc[i],2)}, {vr(X+2*i,2)}, {vr(X+2*(i+4),2)}")
    for i in range(8, n):
        k(f"v_pk_add_f32 {vr(acc[i%4],2)}, {vr(acc[i%4],2)}, {vr(X+2*i,2)}")
    k(f"v_pk_add_f32 {vr(acc[0],2)}, {vr(acc[0],2)}, {vr(acc[1],2)}")
    k(f"v_pk_add_f32 {vr(acc[2],2)}, {vr(acc[2],2)}, {vr(acc[3],2)}")
    k(f"v_pk_add_f32 {vr(acc[0],2)}, {vr(acc[0],2)}, {vr(acc[2],2)}")

def ln_stats_xrow(k, X, t, sM, sR, sTmp):
    tree_sum(k, X, 16, t)
    wave_reduce2(k, t, t+1)
    k(f"v_mul_f32 v{t}, {f32(1/1024)}, v{t}")
    k(f"v_mul_f32 v{t+1}, {f32(1/1024)}, v{t+1}")
    k(f"{CVT} v{t+2}, v{t}, v{t+1}")
    k(f"v_readlane_b32 s{sTmp}, v{t}, 63")
    k(f"v_readlane_b32 s{sTmp+1}, v{t+1}, 63")
    k(f"v_lshlrev_b32 v{t+12}, 16, v{t+2}")
    k(f"v_and_b32 v{t+13}, 0xffff0000, v{t+2}")
    acc = [t, t+2]; tmp = [t+4, t+6, t+8, t+10]
    for i in range(16):
        d = tmp[i % 4]
        k(f"v_pk_add_f32 {vr(d,2)}, {vr(X+2*i,2)}, {sr(sTmp,2)} neg_lo:[0,1] neg_hi:[0,1]")
        a = acc[i % 2]
        if i < 2: k(f"v_pk_mul_f32 {vr(a,2)}, {vr(d,2)}, {vr(d,2)}")
        else:     k(f"v_pk_fma_f32 {vr(a,2)}, {vr(d,2)}, {vr(d,2)}, {vr(a,2)}")
    k(f"v_pk_add_f32 {vr(t,2)}, {vr(t,2)}, {vr(t+2,2)}")
    wave_reduce2(k, t, t+1)
    k(f"v_mul_f32 v{t}, {f32(1/1024)}, v{t}")
    k(f"v_mul_f32 v{t+1}, {f32(1/1024)}, v{t+1}")
    k(f"{CVT} v{t+2}, v{t}, v{t+1}")
    k(f"v_lshlrev_b32 v{t}, 16, v{t+2}")
    k(f"v_and_b32 v{t+1}, 0xffff0000, v{t+2}")
    k(f"v_add_f32 v{t}, {f32(1e-5)}, v{t}")
    k(f"v_add_f32 v{t+1}, {f32(1e-5)}, v{t+1}")
    k(f"{CVT} v{t+2}, v{t}, v{t+1}")
    k(f"v_lshlrev_b32 v{t}, 16, v{t+2}")
    k(f"v_and_b32 v{t+1}, 0xffff0000, v{t+2}")
    k(f"v_sqrt_f32 v{t}, v{t}")
    k(f"v_sqrt_f32 v{t+1}, v{t+1}")
    k(f"s_nop 0")
    k(f"{CVT} v{t+2}, v{t}, v{t+1}")
    k(f"v_lshlrev_b32 v{t}, 16, v{t+2}")
    k(f"v_and_b32 v{t+1}, 0xffff0000, v{t+2}")
    k(f"v_rcp_f32 v{t}, v{t}")
    k(f"v_rcp_f32 v{t+1}, v{t+1}")
    k(f"s_nop 0")
    k(f"v_mul_f32 v{t+12}, v{t+12}, v{t}")
    k(f"v_mul_f32 v{t+13}, v{t+13}, v{t+1}")
    k(f"v_readlane_b32 s{sR}, v{t}, 63")
    k(f"v_readlane_b32 s{sR+1}, v{t+1}, 63")
    k(f"v_readlane_b32 s{sM}, v{t+12}, 63")
    k(f"v_readlane_b32 s{sM+1}, v{t+13}, 63")

def gen_p1():
    k = Kern('p1_kernel')
    k("s_cmp_ge_u32 s2, 256")
    k("s_cbranch_scc1 L_p1_end")
    stamp_begin(k)
    k("s_load_dwordx4 s[4:7], s[0:1], 0")
    k("s_load_dwordx2 s[24:25], s[0:1], 16")
    k("s_load_dwordx2 s[60:61], s[0:1], 32")
    k("s_load_dwordx2 s[26:27], s[0:1], 80")
    TID, LANE = 0, 1
    if CODEPF:
        k("s_getpc_b64 s[52:53]")
        k("L_p1_pc:")
        k("s_sub_u32 s52, s52, L_p1_pc-p1_kernel")
        k("s_subb_u32 s53, s53, 0")
        k("v_lshlrev_b32 v210, 7, v0")
        k("v_mov_b32 v211, s53")
        k("v_add_co_u32 v210, vcc, s52, v210")
        k("v_addc_co_u32 v211, vcc, 0, v211, vcc")
        k("v_cmp_gt_u32 vcc, (L_p1_endc-p1_kernel+127)/128, v0")
        k("s_and_saveexec_b64 s[54:55], vcc")
        k("s_cbranch_execz L_p1_cp0")
        k("global_load_dword v212, v[210:211], off")
        k("L_p1_cp0:")
        k("s_mov_b64 exec, -1")
        k("s_bfe_u32 s54, s2, 0x10003")
        k("s_lshl_b32 s54, s54, 15")
        k("s_add_u32 s54, s54, L_p1_endc-p1_kernel")
        k("v_add_co_u32 v210, vcc, s54, v210")
        k("v_addc_co_u32 v211, vcc, 0, v211, vcc")
        k("v_lshlrev_b32 v213, 7, v0")
        k("v_add_u32 v213, s54, v213")
        k("v_cmp_gt_u32 vcc, L_text_end-p1_kernel, v213")
        k("s_and_saveexec_b64 s[54:55], vcc")
        k("s_cbranch_execz L_p1_cp1")
        k("global_load_dword v212, v[210:211], off")
        k("L_p1_cp1:")
        k("s_mov_b64 exec, -1")
    k("v_and_b32 v1, 63, v0")
    k("v_lshrrev_b32 v2, 6, v0")
    k("v_readfirstlane_b32 s28, v2")
    k("s_lshr_b32 s29, s2, 5")
    k("s_lshl_b32 s29, s29, 2")
    k("s_and_b32 s30, s2, 31")
    k("s_add_u32 s31, s29, s28")
    k("s_lshl_b32 s31, s31, 5")
    k("s_add_u32 s31, s31, s30")
    k("s_lshl_b32 s31, s31, 11")
    k("s_add_u32 s32, s31, 0x200000")
    k("s_waitcnt lgkmcnt(0)")
    srd(k, 8, 4, S*D*2)
    srd(k, 12, 6, S*513*2)
    srd(k, 16, 24, S*513*2)
    srd(k, 20, 26, 257*16384, ZD_OFF)
    srd(k, 72 if False else 52, 26, 257*16384, WB_OFF) if False else None
    XL = 4
    k("v_lshlrev_b32 v2, 4, v1")
    k(f"buffer_load_dwordx4 {vr(XL,4)}, v2, s[8:11], s31 offen")
    k(f"buffer_load_dwordx4 {vr(XL+4,4)}, v2, s[8:11], s31 offen offset:1024")
    k(f"buffer_load_dwordx4 {vr(XL+8,4)}, v2, s[8:11], s32 offen")
    k(f"buffer_load_dwordx4 {vr(XL+12,4)}, v2, s[8:11], s32 offen offset:1024")
    WL = 20
    Mr, Mi, TW = 36, 52, 68
    XF, DR, DI, OP, T = 100, 132, 148, 164, 180
    k("v_and_b32 v2, 31, v1")
    k("v_cvt_f32_u32 v2, v2")
    k("v_lshrrev_b32 v3, 5, v1")
    k("v_lshlrev_b32 v3, 2, v3")
    k("v_cvt_f32_u32 v3, v3")
    k(f"v_mul_f32 v204, {f32(1/32)}, v2")
    k("v_mul_f32 v205, v204, v3")
    gen_matrix(k, Mr, Mi, 204, 205, T)
    k(f"v_mul_f32 v204, {f32(1/1024)}, v2")
    k("v_mul_f32 v205, v204, v3")
    gen_twiddle(k, TW, 204, 205, T)
    STG = 16384; WST = STG + 257*64 + 64
    k("s_lshr_b32 s44, s2, 2")
    k("s_and_b32 s44, s44, 3")
    k("s_mov_b32 s45, 0x05040100")
    k("s_mov_b32 s46, 0x07060302")
    k("s_lshl_b32 s47, s2, 6")
    k("s_lshl_b32 s48, s28, 2")
    k(f"s_add_u32 s48, s48, {STG}")
    B1, B2, AWJ, AX, ARD, AGL, AT1, AT2, AWR, AWG = 206, 207, 208, 209, 216, 217, 218, 219, 221, 222
    k("v_and_b32 v2, 31, v1")
    k("v_lshrrev_b32 v3, 5, v1")
    k("v_and_b32 v204, 1, v2")
    k("v_lshrrev_b32 v205, 1, v2")
    k(f"v_xor_b32 v{B1}, s44, v204")
    k(f"v_lshlrev_b32 v{B1}, 4, v{B1}")
    k(f"v_lshl_add_u32 v{B1}, v205, 6, v{B1}")
    k(f"v_lshl_add_u32 v{B1}, v3, 12, v{B1}")
    k(f"v_add_u32 v{B1}, s48, v{B1}")
    k("v_add_u32 v205, 1, v2")
    k("v_lshrrev_b32 v205, 1, v205")
    k("v_add_u32 v204, 2, v204")
    k(f"v_xor_b32 v{B2}, s44, v204")
    k(f"v_lshlrev_b32 v{B2}, 4, v{B2}")
    k("v_lshlrev_b32 v205, 6, v205")
    k(f"v_sub_u32 v{B2}, v{B2}, v205")
    k("v_lshlrev_b32 v205, 12, v3")
    k(f"v_sub_u32 v{B2}, v{B2}, v205")
    k(f"v_add_u32 v{B2}, s48, v{B2}")
    k("s_lshl_b32 s49, s28, 12")
    k(f"s_add_u32 s49, s49, {WST}")
    k("v_bfe_u32 v204, v1, 1, 2")
    k("v_xor_b32 v204, s44, v204")
    k("v_lshlrev_b32 v204, 4, v204")
    k(f"v_lshl_add_u32 v{AWJ}, v1, 6, v204")
    k(f"v_add_u32 v{AWJ}, s49, v{AWJ}")
    k("v_lshrrev_b32 v204, 2, v1")
    k("v_and_b32 v205, 3, v1")
    k(f"v_bfe_u32 v{AT1}, v204, 1, 2")
    k(f"v_xor_b32 v{AT1}, v{AT1}, v205")
    k(f"v_lshlrev_b32 v{AT1}, 4, v{AT1}")
    k(f"v_lshl_add_u32 v{AWR}, v204, 6, v{AT1}")
    k(f"v_add_u32 v{AWR}, s49, v{AWR}")
    k("s_lshl_b32 s49, s28, 6")
    k("v_add_u32 v204, s49, v204")
    k("v_lshlrev_b32 v204, 14, v204")
    k(f"v_lshl_add_u32 v{AWG}, v205, 4, v204")
    k("v_bfe_u32 v204, v1, 2, 1")
    k("v_xor_b32 v204, s44, v204")
    k("v_lshlrev_b32 v204, 4, v204")
    k("v_and_b32 v205, 3, v1")
    k(f"v_lshl_add_u32 v{AX}, v205, 2, v204")
    k(f"v_lshlrev_b32 v{ARD}, 4, v0")
    k(f"v_add_u32 v{ARD}, {STG}, v{ARD}")
    k("v_lshrrev_b32 v204, 2, v0")
    k("v_lshlrev_b32 v204, 14, v204")
    k("v_and_b32 v205, 3, v0")
    k(f"v_lshl_add_u32 v{AGL}, v205, 4, v204")
    k("s_xor_b32 s49, s44, 2")
    k("s_lshl_b32 s49, s49, 4")
    k("s_add_u32 s49, s49, s48")
    k("s_lshl_b32 s50, s44, 4")
    k("s_add_u32 s50, s50, s48")
    k("s_add_u32 s50, s50, 16384")
    k(f"v_mov_b32 v{AT1}, s49")
    k(f"v_mov_b32 v{AT2}, s50")
    k("s_lshl_b32 s36, s28, 12")
    k("v_lshlrev_b32 v2, 5, v1")
    k("v_add_u32 v2, s36, v2")
    k("v_and_b32 v3, 31, v1")
    k("v_lshlrev_b32 v3, 2, v3")
    k("v_lshrrev_b32 v204, 5, v1")
    k("v_lshlrev_b32 v204, 9, v204")
    k("v_add3_u32 v3, v3, v204, s36")
    k("s_mov_b32 s35, 0xffff0000")
    mark(k, 1)
    k("s_waitcnt vmcnt(0)")
    mark(k, 2)
    k("v_lshlrev_b32 v220, 2, v0")
    k("s_lshl_b32 s33, s29, 6")
    k("s_lshl_b32 s34, s30, 1")
    k("s_add_u32 s33, s33, s34")
    k("s_mul_i32 s33, s33, 1026")
    for pi in range(2):
        for cc in range(4):
            off = (64*cc + pi)*1026
            k(f"s_add_u32 s34, s33, {off}")
            k(f"buffer_load_dword v{WL+4*pi+cc}, v220, s[12:15], s34 offen")
            k(f"buffer_load_dword v{WL+8+4*pi+cc}, v220, s[16:19], s34 offen")
    WX = 200
    k("v_and_b32 v200, 3, v1")
    k("v_lshlrev_b32 v200, 6, v200")
    k("v_bfe_u32 v201, v1, 2, 1")
    k("v_add_u32 v200, v200, v201")
    k("v_mul_u32_u24 v200, 1026, v200")
    k("v_add_u32 v200, 1024, v200")
    k("v_cmp_gt_u32 vcc, 8, v0")
    k("s_and_saveexec_b64 s[36:37], vcc")
    k("s_cbranch_execz L_p1_nox")
    k("buffer_load_ushort v202, v200, s[12:15], s33 offen")
    k("buffer_load_ushort v203, v200, s[16:19], s33 offen")
    k("L_p1_nox:")
    k("s_mov_b64 exec, -1")
    for i in range(16):
        for row in range(2):
            src = XL + 8*row + (i >> 1)
            if i % 2 == 0: k(f"v_lshlrev_b32 v{XF+2*i+row}, 16, v{src}")
            else:          k(f"v_and_b32 v{XF+2*i+row}, s35, v{src}")
    ln_stats_xrow(k, XF, T, 38, 40, 42)
    k(f"v_mov_b32 v{T+8}, s40"); k(f"v_mov_b32 v{T+9}, s41")
    k(f"v_mov_b32 v{T+10}, s38"); k(f"v_mov_b32 v{T+11}, s39")
    for i in range(16):
        d = T + 2*(i % 4)
        k(f"v_pk_fma_f32 {vr(d,2)}, {vr(XF+2*i,2)}, {vr(T+8,2)}, {vr(T+10,2)} neg_lo:[0,0,1] neg_hi:[0,0,1]")
        k(f"{CVT} v{OP+i}, v{d}, v{d+1}")
    k(f"ds_write_b128 v2, {vr(OP,4)}")
    k(f"ds_write_b128 v2, {vr(OP+4,4)} offset:16")
    k(f"ds_write_b128 v2, {vr(OP+8,4)} offset:2048")
    k(f"ds_write_b128 v2, {vr(OP+12,4)} offset:2064")
    k("s_waitcnt lgkmcnt(0)")
    for i, (r, c) in enumerate(SEQ):
        k(f"ds_read_b32 v{OP+i}, v3 offset:{(8*r+c)*128}")
    mark(k, 3)
    k("s_waitcnt lgkmcnt(0)")
    stage(k, 'A', DR, DI, OP, Mr, Mi)
    srd(k, 56, 26, 257*16384, WB_OFF)
    k("s_waitcnt vmcnt(0)")
    WO = XF
    for e in range(2):
        for pi in range(2):
            for cc in range(4):
                k(f"v_perm_b32 v{WO+4*(2*e+pi)+cc}, v{WL+8+4*pi+cc}, v{WL+4*pi+cc}, s{45+e}")
    for sl in range(4):
        if sl: k(f"v_xor_b32 v204, {16*sl}, v{AWJ}")
        k(f"ds_write_b128 v{204 if sl else AWJ}, {vr(WO+4*sl,4)}")
    k("v_lshlrev_b32 v203, 16, v203")
    k("v_or_b32 v202, v202, v203")
    k("s_add_u32 s49, s47, 0x400000")
    k("v_cmp_gt_u32 vcc, 8, v0")
    k("s_and_saveexec_b64 s[36:37], vcc")
    k("s_cbranch_execz L_p1_nox2")
    k(f"buffer_store_dword v202, v{AX}, s[56:59], s49 offen {ST_P1}")
    k("L_p1_nox2:")
    k("s_mov_b64 exec, -1")
    k("s_waitcnt lgkmcnt(0)")
    for j in range(4): k(f"ds_read_b128 {vr(WO+16+4*j,4)}, v{AWR} offset:{1024*j}")
    k("s_mov_b32 s49, s47")
    for j in range(4):
        k(f"s_waitcnt lgkmcnt({3-j})")
        k(f"buffer_store_dwordx4 {vr(WO+16+4*j,4)}, v{AWG}, s[56:59], s49 offen {ST_P1}")
        if j < 3: k(f"s_add_u32 s49, s49, {16*16384}")
    cmul_pack(k, DR, DI, TW, OP, T)
    stage(k, 'B', DR, DI, OP, Mr, Mi)
    mark(k, 4)
    for i, (r, c) in enumerate(SEQ):
        if r < 2: k(f"{CVT} v{OP+i}, v{DR+i}, v{DI+i}")
        else:     k(f"{CVT} v{OP+i}, v{DI+i}, v{DR+i}")
        if r < 2: k(f"ds_write_b32 v{B1}, v{OP+i} offset:{(8*r+c)*1024}")
        else:     k(f"ds_write_b32 v{B2}, v{OP+i} offset:{(32-8*r-c)*1024}")
    k(f"{CVT} v{T}, v{DI}, v{DR}")
    k(f"{CVT} v{T+1}, v{DR+8}, v{DI+8}")
    k("s_mov_b64 exec, 1")
    k(f"ds_write_b32 v{AT1}, v{T}")
    k(f"ds_write_b32 v{AT2}, v{T+1}")
    k("s_mov_b64 exec, -1")
    k("s_waitcnt lgkmcnt(0)")
    k("s_barrier")
    RO = XF
    for j in range(4):
        k(f"ds_read_b128 {vr(RO+4*j,4)}, v{ARD} offset:{4096*j}")
    k("v_cmp_gt_u32 vcc, 4, v0")
    k("s_and_saveexec_b64 s[36:37], vcc")
    k("s_cbranch_execz L_p1_nox3")
    k(f"ds_read_b128 {vr(T,4)}, v{ARD} offset:16384")
    k("s_waitcnt lgkmcnt(0)")
    k("s_add_u32 s49, s47, 0x400000")
    k(f"buffer_store_dwordx4 {vr(T,4)}, v{AGL}, s[20:23], s49 offen {ST_P1}")
    k("L_p1_nox3:")
    k("s_mov_b64 exec, -1")
    for j in range(4):
        k(f"s_waitcnt lgkmcnt({3-j})")
        k(f"buffer_store_dwordx4 {vr(RO+4*j,4)}, v{AGL}, s[20:23], s47 offen {ST_P1}")
        if j < 3: k("s_add_u32 s47, s47, 0x100000")
    stamp_end(k, 'p1')
    k("L_p1_end:")
    k("s_endpgm")
    k("L_p1_endc:")
    return k, 224, WST + 16384

def gen_p2():
    k = Kern('p2_kernel')
    k("s_cmp_ge_u32 s2, 257")
    k("s_cbranch_scc1 L_p2_end")
    stamp_begin(k)
    k("s_load_dwordx2 s[26:27], s[0:1], 80")
    k("s_load_dwordx2 s[24:25], s[0:1], 32")
    k("v_and_b32 v1, 63, v0")
    k("v_lshrrev_b32 v2, 6, v0")
    k("v_readfirstlane_b32 s28, v2")
    k("v_lshlrev_b32 v2, 4, v1")
    k("s_lshr_b32 s29, s28, 1")
    k("s_and_b32 s30, s28, 1")
    k("s_lshl_b32 s31, s2, 14")
    k("s_lshl_b32 s32, s28, 12")
    k("s_add_u32 s31, s31, s32")
    k("s_waitcnt lgkmcnt(0)")
    srd(k, 8, 26, 257*16384, ZD_OFF)
    srd(k, 20, 26, 257*16384, WB_OFF)
    srd(k, 12, 26, 256*VB_BLK, VB_OFF)
    for i in range(4):
        k(f"s_add_u32 m0, s32, {1024*i}")
        k(f"s_add_u32 s33, s31, {1024*i}")
        k(f"buffer_load_dwordx4 v2, s[8:11], s33 offen lds")
    if W1PF:
        srd(k, 16, 24, S*F*2)
        k(f"s_mul_i32 s33, s2, {150*128}")
        k(f"s_add_u32 s33, s33, {38144*128}")
        k("v_lshlrev_b32 v3, 7, v0")
        k("v_min_u32 v3, 149*128, v3")
        k("buffer_load_dword v255, v3, s[16:19], s33 offen")
    Z1, Z2 = 4, 20
    M1r, M1i, MFr, MFi, MIr, MIi = 36, 52, 68, 84, 100, 116
    T1, T2 = 132, 164
    DR, DI, T = 196, 212, 228
    A, B, J, H4, PI = 244, 245, 246, 247, 248
    k(f"v_and_b32 v{J}, 31, v1")
    k(f"v_cvt_f32_u32 v{J}, v{J}")
    k(f"v_lshrrev_b32 v{H4}, 5, v1")
    k(f"v_lshlrev_b32 v{H4}, 2, v{H4}")
    k(f"v_cvt_f32_u32 v{H4}, v{H4}")
    k(f"v_mov_b32 v{PI}, s30")
    k(f"v_cvt_f32_u32 v{PI}, v{PI}")
    k(f"v_mul_f32 v{A}, {f32(1/32)}, v{J}")
    k(f"v_mul_f32 v{B}, v{A}, v{H4}")
    gen_matrix(k, MFr, MFi, A, B, T)
    k(f"v_fma_f32 v{A}, v{J}, 2.0, v{PI}")
    k(f"v_mul_f32 v{A}, {f32(1/64)}, v{A}")
    k(f"v_mul_f32 v{B}, v{A}, v{H4}")
    gen_matrix(k, M1r, M1i, A, B, T)
    k("s_lshl_b32 s33, s30, 4")
    k(f"v_and_b32 v{T}, 31, v1")
    k(f"v_xor_b32 v{T}, s33, v{T}")
    k(f"v_cvt_f32_u32 v{T}, v{T}")
    k(f"v_mul_f32 v{A}, {f32(1/32)}, v{T}")
    k(f"v_mul_f32 v{B}, v{A}, v{H4}")
    k(f"v_mul_f32 v{T}, {f32(1/64)}, v{T}")
    k(f"v_fma_f32 v{B}, v{T}, v{PI}, v{B}")
    gen_matrix(k, MIr, MIi, A, B, T)
    k(f"v_fma_f32 v{A}, v{J}, 2.0, v{PI}")
    k(f"v_mul_f32 v{A}, {f32(1/2048)}, v{A}")
    k(f"v_mov_b32 v{T}, {f32(0.125)}")
    k(f"v_mul_f32 v{T+1}, {f32(-0.25)}, v{PI}")
    k(f"v_add_f32 v{T}, v{T}, v{T+1}")
    k(f"v_fma_f32 v{B}, v{A}, v{H4}, v{T}")
    gen_twiddle(k, T1, A, B, T)
    k(f"v_mul_f32 v{A}, {f32(1/1024)}, v{J}")
    k(f"v_mul_f32 v{B}, v{A}, v{H4}")
    k(f"v_mul_f32 v{T}, {f32(1/2048)}, v{J}")
    k(f"v_fma_f32 v{B}, v{T}, v{PI}, v{B}")
    gen_twiddle(k, T2, A, B, T)
    AZ1, AZ2, AW = 249, 250, 251
    k(f"v_bfe_u32 v{T}, v1, 2, 2")
    k(f"v_lshlrev_b32 v{T+1}, 6, v1")
    k(f"v_xor_b32 v{AZ1}, s29, v{T}")
    k(f"v_lshl_add_u32 v{AZ1}, v{AZ1}, 4, v{T+1}")
    k(f"v_xor_b32 v{AZ2}, 32, v{AZ1}")
    k("s_lshl_b32 s33, s29, 1")
    k("s_add_u32 s33, s33, s30")
    k(f"v_xor_b32 v{AW}, s33, v{T}")
    k(f"v_lshl_add_u32 v{AW}, v{AW}, 4, v{T+1}")
    k(f"v_add_u32 v{AW}, 16384, v{AW}")
    k("s_mul_i32 s34, s30, 0x80008000")
    k("s_mov_b32 s35, 0xffff0000")
    mark(k, 1)
    k("s_waitcnt vmcnt(0)")
    for i in range(4):
        k(f"s_add_u32 m0, s32, {16384+1024*i}")
        k(f"s_add_u32 s33, s31, {1024*i}")
        k(f"buffer_load_dwordx4 v2, s[20:23], s33 offen lds")
    k("s_barrier")
    mark(k, 2)
    for r in range(4):
        k(f"ds_read_b128 {vr(Z1+4*r,4)}, v{AZ1} offset:{4096*r}")
        k(f"ds_read_b128 {vr(Z2+4*r,4)}, v{AZ2} offset:{4096*r}")
    k("s_waitcnt lgkmcnt(0)")
    for i in range(16):
        k(f"v_xor_b32 v{Z2+i}, s34, v{Z2+i}")
    stage(k, 'A', DR, DI, Z1, M1r, M1i, first=True)
    stage(k, 'A', DR, DI, Z2, M1r, M1i, first=False)
    OP = Z1
    cmul_pack(k, DR, DI, T1, OP, T)
    k("s_waitcnt vmcnt(0)")
    k("s_barrier")
    for r in range(4):
        k(f"ds_read_b128 {vr(Z2+4*r,4)}, v{AW} offset:{4096*r}")
    stage(k, 'B', DR, DI, OP, MFr, MFi)
    WP = M1r
    k("s_waitcnt lgkmcnt(0)")
    for i in range(16):
        k(f"v_lshlrev_b32 v{WP+2*i}, 16, v{Z2+i}")
        k(f"v_and_b32 v{WP+2*i+1}, s35, v{Z2+i}")
    cmul_pack(k, DR, DI, WP, OP, T, conj=True)
    stage(k, 'A', DR, DI, OP, MFr, MFi)
    cmul_pack(k, DR, DI, T2, OP, T)
    stage(k, 'B', DR, DI, OP, MIr, MIi)
    mark(k, 4)
    XCH, STG = 32768, 49152
    AX = 252
    k("s_lshl_b32 s36, s28, 12")
    k(f"s_add_u32 s36, s36, {XCH}")
    k(f"v_lshl_add_u32 v{AX}, v1, 4, s36")
    k(f"ds_write_b128 v{AX}, {vr(DR+8,4)}")
    k(f"ds_write_b128 v{AX}, {vr(DR+12,4)} offset:1024")
    k(f"ds_write_b128 v{AX}, {vr(DI+8,4)} offset:2048")
    k(f"ds_write_b128 v{AX}, {vr(DI+12,4)} offset:3072")
    k(f"v_xor_b32 v{AX}, 4096, v{AX}")
    k("s_lshl_b32 s37, s2, 1")
    k("s_add_u32 s37, s37, s29")
    k("s_and_b32 s37, s37, 511")
    k("s_cmp_eq_u32 s37, 0")
    k(f"s_cselect_b32 s38, 0, {f32(1.0)}")
    k("s_cmp_eq_u32 s30, 0")
    k(f"s_cselect_b32 s40, {f32(1.0)}, {f32(-1.0)}")
    k("s_lshl_b32 s41, s30, 31")
    k("s_xor_b32 s42, s38, s41")
    k("s_waitcnt lgkmcnt(0)")
    k("s_barrier")
    OR_, OI = 36, 44
    k(f"ds_read_b128 {vr(OR_,4)}, v{AX}")
    k(f"ds_read_b128 {vr(OR_+4,4)}, v{AX} offset:1024")
    k(f"ds_read_b128 {vr(OI,4)}, v{AX} offset:2048")
    k(f"ds_read_b128 {vr(OI+4,4)}, v{AX} offset:3072")
    k(f"v_bfe_u32 v{T}, v1, 1, 2")
    k(f"v_xor_b32 v{T+1}, s29, v{T}")
    k(f"v_xor_b32 v{T+2}, 2, v{T+1}")
    k("s_lshl_b32 s43, s30, 13")
    k(f"s_add_u32 s43, s43, {STG}")
    k(f"v_lshl_add_u32 v{T+3}, v1, 6, s43")
    k(f"v_lshl_add_u32 v253, v{T+1}, 4, v{T+3}")
    k(f"v_lshl_add_u32 v254, v{T+2}, 4, v{T+3}")
    k("s_waitcnt lgkmcnt(0)")
    UA, UB = 52, 60
    Ur, Ui, Er, Ei, Ar, Ai, Br, Bi = 68, 70, 72, 74, 76, 78, 80, 82
    bc = "op_sel_hi:[1,0,1]"
    for j in range(0, 8, 2):
        o = 16*((j//2) % 2)
        ur, ui, er, ei, a_r, a_i, b_r, b_i = [x+o for x in (Ur, Ui, Er, Ei, Ar, Ai, Br, Bi)]
        k(f"v_pk_add_f32 {vr(ur,2)}, {vr(DR+j,2)}, {vr(OR_+j,2)}")
        k(f"v_pk_add_f32 {vr(ui,2)}, {vr(DI+j,2)}, {vr(OI+j,2)}")
        k(f"v_pk_add_f32 {vr(er,2)}, {vr(DR+j,2)}, {vr(OR_+j,2)} neg_lo:[0,1] neg_hi:[0,1]")
        k(f"v_pk_add_f32 {vr(ei,2)}, {vr(DI+j,2)}, {vr(OI+j,2)} neg_lo:[0,1] neg_hi:[0,1]")
        k(f"v_pk_fma_f32 {vr(a_r,2)}, {vr(ei,2)}, s[42:43], {vr(ur,2)} {bc}")
        k(f"v_pk_fma_f32 {vr(b_r,2)}, {vr(ei,2)}, s[42:43], {vr(ur,2)} {bc} neg_lo:[1,0,0] neg_hi:[1,0,0]")
        k(f"v_pk_mul_f32 {vr(ui,2)}, {vr(ui,2)}, s[38:39] op_sel_hi:[1,0]")
        k(f"v_pk_fma_f32 {vr(a_i,2)}, {vr(er,2)}, s[40:41], {vr(ui,2)} {bc} neg_lo:[1,0,0] neg_hi:[1,0,0]")
        k(f"v_pk_fma_f32 {vr(b_i,2)}, {vr(er,2)}, s[40:41], {vr(ui,2)} {bc} neg_lo:[1,0,1] neg_hi:[1,0,1]")
        k(f"{CVT} v{UA+j}, v{a_r}, v{a_i}")
        k(f"{CVT} v{UA+j+1}, v{a_r+1}, v{a_i+1}")
        k(f"{CVT} v{UB+j}, v{b_r}, v{b_i}")
        k(f"{CVT} v{UB+j+1}, v{b_r+1}, v{b_i+1}")
    for rl in range(2):
        k(f"ds_write_b128 v253, {vr(UA+4*rl,4)} offset:{4096*rl}")
        k(f"ds_write_b128 v254, {vr(UB+4*rl,4)} offset:{4096*rl}")
    k(f"v_and_b32 v{T}, 3, v0")
    k(f"v_bfe_u32 v{T+1}, v0, 3, 2")
    k(f"v_xor_b32 v{T+1}, v{T}, v{T+1}")
    k(f"v_lshrrev_b32 v{T+2}, 2, v0")
    k(f"v_lshlrev_b32 v{T+3}, 6, v{T+2}")
    k(f"v_lshl_add_u32 v{T+3}, v{T+1}, 4, v{T+3}")
    k(f"v_add_u32 v{T+3}, {STG}, v{T+3}")
    k(f"v_mul_u32_u24 v{T+2}, {VB_BLK}, v{T+2}")
    k("s_and_b32 s44, s2, 2")
    k(f"v_xor_b32 v{T}, s44, v{T}")
    k(f"v_lshl_add_u32 v{T+2}, v{T}, 4, v{T+2}")
    k("s_lshl_b32 s45, s2, 6")
    k("s_waitcnt lgkmcnt(0)")
    k("s_barrier")
    for j in range(4):
        k(f"ds_read_b128 {vr(4+4*j,4)}, v{T+3} offset:{4096*j}")
    k("s_waitcnt lgkmcnt(0)")
    for j in range(4):
        k(f"buffer_store_dwordx4 {vr(4+4*j,4)}, v{T+2}, s[12:15], s45 offen {ST_P2}")
        if j < 3: k(f"s_add_u32 s45, s45, {64*VB_BLK}")
    stamp_end(k, 'p2')
    k("L_p2_end:")
    k("s_endpgm")
    return k, 256, 65536

def ln_stats_rows(k, R0, R1, t, vRM, sTmp):
    for (R, o) in ((R0, 0), (R1, 4)):
        a, b = t+o, t+o+2
        k(f"v_pk_add_f32 {vr(a,2)}, {vr(R,2)}, {vr(R+2,2)}")
        k(f"v_pk_add_f32 {vr(b,2)}, {vr(R+4,2)}, {vr(R+6,2)}")
    for i in range(4, 8):
        for (R, o) in ((R0, 0), (R1, 4)):
            a = t+o+2*(i % 2)
            k(f"v_pk_add_f32 {vr(a,2)}, {vr(a,2)}, {vr(R+2*i,2)}")
    for o in (0, 4):
        k(f"v_pk_add_f32 {vr(t+o,2)}, {vr(t+o,2)}, {vr(t+o+2,2)}")
    k(f"v_add_f32 v{t}, v{t}, v{t+1}")
    k(f"v_add_f32 v{t+1}, v{t+4}, v{t+5}")
    wave_reduce2(k, t, t+1)
    k(f"v_mul_f32 v{t}, {f32(1/1024)}, v{t}")
    k(f"v_mul_f32 v{t+1}, {f32(1/1024)}, v{t+1}")
    k(f"{CVT} v{t+2}, v{t}, v{t+1}")
    k(f"v_readlane_b32 s{sTmp}, v{t}, 63")
    k(f"v_readlane_b32 s{sTmp+1}, v{t+1}, 63")
    k(f"v_lshlrev_b32 v{t+12}, 16, v{t+2}")
    k(f"v_and_b32 v{t+13}, 0xffff0000, v{t+2}")
    acc = {0: t, 1: t+2}; tmp = [t+4, t+6, t+8, t+10]
    n = 0
    for i in range(8):
        for row, R in ((0, R0), (1, R1)):
            d = tmp[n % 4]; n += 1
            sel = "op_sel_hi:[1,0]" if row == 0 else "op_sel:[0,1] op_sel_hi:[1,1]"
            k(f"v_pk_add_f32 {vr(d,2)}, {vr(R+2*i,2)}, {sr(sTmp,2)} {sel} neg_lo:[0,1] neg_hi:[0,1]")
            a = acc[row]
            if i == 0: k(f"v_pk_mul_f32 {vr(a,2)}, {vr(d,2)}, {vr(d,2)}")
            else:      k(f"v_pk_fma_f32 {vr(a,2)}, {vr(d,2)}, {vr(d,2)}, {vr(a,2)}")
    k(f"v_add_f32 v{t}, v{t}, v{t+1}")
    k(f"v_add_f32 v{t+1}, v{t+2}, v{t+3}")
    wave_reduce2(k, t, t+1)
    k(f"v_mul_f32 v{t}, {f32(1/1024)}, v{t}")
    k(f"v_mul_f32 v{t+1}, {f32(1/1024)}, v{t+1}")
    k(f"{CVT} v{t+2}, v{t}, v{t+1}")
    k(f"v_lshlrev_b32 v{t}, 16, v{t+2}")
    k(f"v_and_b32 v{t+1}, 0xffff0000, v{t+2}")
    k(f"v_add_f32 v{t}, {f32(1e-5)}, v{t}")
    k(f"v_add_f32 v{t+1}, {f32(1e-5)}, v{t+1}")
    k(f"{CVT} v{t+2}, v{t}, v{t+1}")
    k(f"v_lshlrev_b32 v{t}, 16, v{t+2}")
    k(f"v_and_b32 v{t+1}, 0xffff0000, v{t+2}")
    k(f"v_sqrt_f32 v{t}, v{t}")
    k(f"v_sqrt_f32 v{t+1}, v{t+1}")
    k(f"s_nop 0")
    k(f"{CVT} v{t+2}, v{t}, v{t+1}")
    k(f"v_lshlrev_b32 v{t}, 16, v{t+2}")
    k(f"v_and_b32 v{t+1}, 0xffff0000, v{t+2}")
    k(f"v_rcp_f32 v{t}, v{t}")
    k(f"v_rcp_f32 v{t+1}, v{t+1}")
    k(f"s_nop 0")
    k(f"v_mul_f32 v{t+12}, v{t+12}, v{t}")
    k(f"v_mul_f32 v{t+13}, v{t+13}, v{t+1}")
    k(f"v_readlane_b32 s{sTmp}, v{t}, 63")
    k(f"v_readlane_b32 s{sTmp+1}, v{t+1}, 63")
    k(f"v_readlane_b32 s{sTmp+2}, v{t+12}, 63")
    k(f"v_readlane_b32 s{sTmp+3}, v{t+13}, 63")
    for i in range(4):
        k(f"v_mov_b32 v{vRM+i}, s{sTmp+i}")

def ln_apply_rows(k, R0, R1, vRM, dst0, dst1):
    for i in range(8):
        k(f"v_pk_fma_f32 {vr(dst0+2*i,2)}, {vr(R0+2*i,2)}, {vr(vRM,2)}, {vr(vRM+2,2)} op_sel_hi:[1,0,0] neg_lo:[0,0,1] neg_hi:[0,0,1]")
        k(f"v_pk_fma_f32 {vr(dst1+2*i,2)}, {vr(R1+2*i,2)}, {vr(vRM,2)}, {vr(vRM+2,2)} op_sel:[0,1,1] op_sel_hi:[1,1,1] neg_lo:[0,0,1] neg_hi:[0,0,1]")

def gen_p3():
    k = Kern('p3_kernel')
    k("s_cmp_ge_u32 s2, 256")
    k("s_cbranch_scc1 L_p3_end")
    stamp_begin(k)
    k("s_load_dwordx2 s[4:5], s[0:1], 0")
    k("s_load_dwordx2 s[26:27], s[0:1], 80")
    k("s_load_dwordx2 s[24:25], s[0:1], 32")
    k("v_and_b32 v1, 63, v0")
    k("v_lshrrev_b32 v2, 6, v0")
    k("v_readfirstlane_b32 s28, v2")
    k("s_lshr_b32 s29, s2, 5")
    k("s_lshl_b32 s29, s29, 2")
    k("s_and_b32 s30, s2, 31")
    k("s_add_u32 s31, s29, s28")
    k("s_lshl_b32 s31, s31, 5")
    k("s_add_u32 s31, s31, s30")
    k("s_lshl_b32 s31, s31, 11")
    k("s_add_u32 s32, s31, 0x200000")
    k(f"s_mul_i32 s33, s2, {VB_BLK}")
    k("s_lshl_b32 s34, s28, 12")
    k("s_add_u32 s33, s33, s34")
    k("v_lshlrev_b32 v2, 4, v1")
    k("s_waitcnt lgkmcnt(0)")
    srd(k, 8, 4, S*D*2)
    srd(k, 12, 26, 256*VB_BLK, VB_OFF)
    srd(k, 16, 26, S*D*2, H_OFF)
    srd(k, 20, 26, S*D*2, HN_OFF)
    for i in range(4):
        k(f"s_add_u32 m0, s34, {1024*i}")
        k(f"buffer_load_dwordx4 v2, s[12:15], s33 offen lds")
        k("s_add_u32 s33, s33, 1024")
    k("s_cmp_eq_u32 s28, 3")
    k("s_cbranch_scc0 L_p3_noex")
    k("s_mov_b32 m0, 16384")
    k(f"buffer_load_dwordx4 v2, s[12:15], s33 offen lds")
    k("L_p3_noex:")
    XL = 4
    if W1PF:
        srd(k, 48, 24, S*F*2)
        k(f"s_mul_i32 s38, s2, {149*128}")
        k(f"s_add_u32 s38, s38, {76544*128}")
        k("v_lshlrev_b32 v226, 7, v0")
        k("v_min_u32 v226, 148*128, v226")
        k("buffer_load_dword v224, v226, s[48:51], s38 offen")
    OP, Mr, Mi, TW, DR, DI, T = 20, 36, 52, 68, 100, 116, 132
    R0, R1, Y0, Y1 = 148, 164, 180, 196
    k("v_and_b32 v212, 31, v1")
    k("v_cvt_f32_u32 v212, v212")
    k("v_lshrrev_b32 v213, 5, v1")
    k("v_lshlrev_b32 v213, 2, v213")
    k("v_cvt_f32_u32 v213, v213")
    k(f"v_mul_f32 v214, {f32(1/32)}, v212")
    k("v_mul_f32 v215, v214, v213")
    gen_matrix(k, Mr, Mi, 214, 215, T)
    k(f"v_mul_f32 v214, {f32(1/1024)}, v212")
    k("v_mul_f32 v215, v214, v213")
    gen_twiddle(k, TW, 214, 215, T, scale=2.0**-21.5)
    k("v_and_b32 v2, 31, v1")
    k("v_lshrrev_b32 v3, 5, v1")
    k("v_and_b32 v216, 1, v2")
    k("v_lshrrev_b32 v217, 1, v2")
    k("v_and_b32 v218, 2, v217")
    k("v_xor_b32 v218, v218, v216")
    k("v_lshlrev_b32 v218, 4, v218")
    k("v_lshl_add_u32 v218, v217, 6, v218")
    k("v_lshl_add_u32 v218, v3, 12, v218")
    k("s_lshl_b32 s37, s28, 2")
    k("v_add_u32 v218, s37, v218")
    k("v_add_u32 v217, 1, v2")
    k("v_lshrrev_b32 v217, 1, v217")
    k("v_sub_u32 v219, 0, v217")
    k("v_and_b32 v219, 2, v219")
    k("v_add_u32 v216, 2, v216")
    k("v_xor_b32 v219, v219, v216")
    k("v_lshlrev_b32 v219, 4, v219")
    k("v_lshlrev_b32 v217, 6, v217")
    k("v_sub_u32 v219, v219, v217")
    k("v_lshlrev_b32 v217, 12, v3")
    k("v_sub_u32 v219, v219, v217")
    k("s_add_u32 s37, s37, 5120")
    k("v_add_u32 v219, s37, v219")
    k("s_mov_b32 s35, 0xffff0000")
    mark(k, 1)
    k("s_waitcnt vmcnt(0)")
    k("v_lshlrev_b32 v225, 4, v1")
    k(f"buffer_load_dwordx4 {vr(XL,4)}, v225, s[8:11], s31 offen")
    k(f"buffer_load_dwordx4 {vr(XL+4,4)}, v225, s[8:11], s31 offen offset:1024")
    k(f"buffer_load_dwordx4 {vr(XL+8,4)}, v225, s[8:11], s32 offen")
    k(f"buffer_load_dwordx4 {vr(XL+12,4)}, v225, s[8:11], s32 offen offset:1024")
    k("s_barrier")
    mark(k, 2)
    for i, (r, c) in enumerate(SEQ):
        if r < 2: k(f"ds_read_b32 v{OP+i}, v218 offset:{(8*r+c)*1024}")
        else:     k(f"ds_read_b32 v{OP+i}, v219 offset:{(32-8*r-c)*1024-5120}")
    k("s_waitcnt lgkmcnt(0)")
    stage(k, 'A', DR, DI, OP, Mr, Mi)
    cmul_pack(k, DR, DI, TW, OP, T)
    stage(k, 'B', DR, DI, OP, Mr, Mi)
    k("s_waitcnt vmcnt(0)")
    for i in range(8):
        k(f"v_lshlrev_b32 v{R0+2*i}, 16, v{XL+i}")
        k(f"v_and_b32 v{R0+2*i+1}, s35, v{XL+i}")
        k(f"v_lshlrev_b32 v{R1+2*i}, 16, v{XL+8+i}")
        k(f"v_and_b32 v{R1+2*i+1}, s35, v{XL+8+i}")
    TR = 17408
    mark(k, 3)
    k("s_lshl_b32 s36, s28, 12")
    k(f"s_add_u32 s36, s36, {TR}")
    k("v_and_b32 v3, 31, v1")
    k("v_lshlrev_b32 v3, 2, v3")
    k("v_lshrrev_b32 v216, 5, v1")
    k("v_lshlrev_b32 v216, 9, v216")
    k("v_add3_u32 v3, v3, v216, s36")
    k("v_lshl_add_u32 v2, v1, 5, s36")
    for i in range(16):
        k(f"{CVT} v{OP+i}, v{DR+i}, -v{DI+i}")
    for i, (r, c) in enumerate(SEQ):
        k(f"ds_write_b32 v3, v{OP+i} offset:{(8*r+c)*128}")
    k("s_waitcnt lgkmcnt(0)")
    k(f"ds_read_b128 {vr(OP,4)}, v2")
    k(f"ds_read_b128 {vr(OP+4,4)}, v2 offset:16")
    k(f"ds_read_b128 {vr(OP+8,4)}, v2 offset:2048")
    k(f"ds_read_b128 {vr(OP+12,4)}, v2 offset:2064")
    k("s_waitcnt lgkmcnt(0)")
    for i in range(16):
        k(f"v_lshlrev_b32 v{Y0+i}, 16, v{OP+i}")
        k(f"v_and_b32 v{Y1+i}, s35, v{OP+i}")
    for i in range(8):
        k(f"v_pk_add_f32 {vr(Y0+2*i,2)}, {vr(Y0+2*i,2)}, {vr(R0+2*i,2)}")
        k(f"v_pk_add_f32 {vr(Y1+2*i,2)}, {vr(Y1+2*i,2)}, {vr(R1+2*i,2)}")
    HP = 36
    for i in range(8):
        k(f"{CVT} v{HP+i}, v{Y0+2*i}, v{Y0+2*i+1}")
        k(f"{CVT} v{HP+8+i}, v{Y1+2*i}, v{Y1+2*i+1}")
    k("v_lshlrev_b32 v2, 4, v1")
    k(f"buffer_store_dwordx4 {vr(HP,4)}, v2, s[16:19], s31 offen {ST_P3}")
    k(f"buffer_store_dwordx4 {vr(HP+4,4)}, v2, s[16:19], s31 offen offset:1024 {ST_P3}")
    k(f"buffer_store_dwordx4 {vr(HP+8,4)}, v2, s[16:19], s32 offen {ST_P3}")
    k(f"buffer_store_dwordx4 {vr(HP+12,4)}, v2, s[16:19], s32 offen offset:1024 {ST_P3}")
    for i in range(8):
        k(f"v_lshlrev_b32 v{R0+2*i}, 16, v{HP+i}")
        k(f"v_and_b32 v{R0+2*i+1}, s35, v{HP+i}")
        k(f"v_lshlrev_b32 v{R1+2*i}, 16, v{HP+8+i}")
        k(f"v_and_b32 v{R1+2*i+1}, s35, v{HP+8+i}")
    RM = 220
    mark(k, 4)
    ln_stats_rows(k, R0, R1, T, RM, 40)
    ln_apply_rows(k, R0, R1, RM, Y0, Y1)
    LP = 52
    for i in range(8):
        k(f"{CVT} v{LP+i}, v{Y0+2*i}, v{Y0+2*i+1}")
        k(f"{CVT} v{LP+8+i}, v{Y1+2*i}, v{Y1+2*i+1}")
    for i in range(8):
        k(f"v_lshlrev_b32 v{R0+2*i}, 16, v{LP+i}")
        k(f"v_and_b32 v{R0+2*i+1}, s35, v{LP+i}")
        k(f"v_lshlrev_b32 v{R1+2*i}, 16, v{LP+8+i}")
        k(f"v_and_b32 v{R1+2*i+1}, s35, v{LP+8+i}")
    ln_stats_rows(k, R0, R1, T, RM, 40)
    ln_apply_rows(k, R0, R1, RM, Y0, Y1)
    NP = 68
    for i in range(8):
        k(f"{CVT} v{NP+i}, v{Y0+2*i}, v{Y0+2*i+1}")
        k(f"{CVT} v{NP+8+i}, v{Y1+2*i}, v{Y1+2*i+1}")
    k(f"buffer_store_dwordx4 {vr(NP,4)}, v2, s[20:23], s31 offen {ST_P3}")
    k(f"buffer_store_dwordx4 {vr(NP+4,4)}, v2, s[20:23], s31 offen offset:1024 {ST_P3}")
    k(f"buffer_store_dwordx4 {vr(NP+8,4)}, v2, s[20:23], s32 offen {ST_P3}")
    k(f"buffer_store_dwordx4 {vr(NP+12,4)}, v2, s[20:23], s32 offen offset:1024 {ST_P3}")
    stamp_end(k, 'p3')
    k("L_p3_end:")
    k("s_endpgm")
    return k, 228, 33792

MF16 = 'v_mfma_f32_16x16x32_bf16'

def interleave(mf, rd, lead=0):
    out = []; n = len(mf); m = len(rd); ri = 0
    for i in range(n):
        out.append(mf[i])
        tgt = min(m, (m*(i+1) + n - 1)//n)
        while ri < tgt:
            out.append(rd[ri]); ri += 1
    out += rd[ri:]
    return out

def producer_loop(k, tag, per, issue, NS, NIT):
    mark(k, 1)
    issue()
    mark(k, 2)
    issue()
    k(f"s_waitcnt vmcnt({per})")
    mark(k, 3)
    k("s_barrier")
    for n in range(2, NS): issue()
    mark(k, 4)
    nmain = NIT - NS
    k(f"s_mov_b32 s60, 0")
    k(f"L_{tag}_ploop:")
    k(f"s_waitcnt vmcnt({(NS-2)*per})")
    k("s_barrier")
    issue()
    k("s_add_u32 s60, s60, 1")
    k(f"s_cmp_lt_u32 s60, {nmain}")
    k(f"s_cbranch_scc1 L_{tag}_ploop")
    for n in range(nmain, NIT-1):
        k(f"s_waitcnt vmcnt({(NIT-1-(n+1))*per})")
        k("s_barrier")


XB_OFF = ZW_OFF
FL_OFF = 0x2800000
def gemm_kernel(tag):
    g1 = tag == 'g1'
    k = Kern(tag + '_kernel')
    ASZ = 16384; STG = 32768; NS = 4 if STATIC else (5 if BAR2 else 3)
    NIT = 32 if g1 else 28
    BSTR = 7168 if g1 else 4096
    k(f"s_cmp_ge_u32 s2, 256")
    k(f"s_cbranch_scc1 L_{tag}_end")
    stamp_begin(k)
    if g1:
        k("s_load_dwordx4 s[4:7], s[0:1], 32")
        k("s_load_dwordx2 s[24:25], s[0:1], 48")
    else:
        k("s_load_dwordx4 s[4:7], s[0:1], 48")
        k("s_load_dwordx2 s[24:25], s[0:1], 64")
    k("s_load_dwordx2 s[26:27], s[0:1], 80")
    k("v_and_b32 v1, 63, v0")
    k("v_lshrrev_b32 v2, 6, v0")
    k("v_readfirstlane_b32 s28, v2")
    if g1:
        k("s_and_b32 s30, s2, 1")
        k("s_lshl_b32 s30, s30, 2")
        k("s_bfe_u32 s52, s2, 0x20003")
        k("s_add_u32 s30, s30, s52")
        k("s_bfe_u32 s29, s2, 0x20001")
        k("s_mul_i32 s29, s29, 7")
        k("s_lshr_b32 s53, s2, 5")
        k("s_add_u32 s29, s29, s53")
        k("s_mov_b32 s63, 0")
    else:
        if MAP2 == 1:
            k("s_bfe_u32 s62, s2, 0x10003")
            k("s_bfe_u32 s29, s2, 0x20001")
            k("s_lshl_b32 s29, s29, 2")
            k("s_bfe_u32 s52, s2, 0x20004")
            k("s_add_u32 s29, s29, s52")
            k("s_lshr_b32 s53, s2, 6")
            k("s_and_b32 s30, s2, 1")
            k("s_lshl_b32 s30, s30, 2")
            k("s_add_u32 s30, s30, s53")
        else:
            k("s_and_b32 s62, s2, 1")
            k("s_bfe_u32 s29, s2, 0x20001")
            k("s_lshl_b32 s29, s29, 2")
            k("s_bfe_u32 s52, s2, 0x20003")
            k("s_add_u32 s29, s29, s52")
            k("s_lshr_b32 s53, s2, 5")
            k("s_mov_b32 s30, s53")
        k("s_mul_i32 s63, s62, 28")
        srd(k, 56, 26, 256*64, FL_OFF) if False else None
    k("s_lshl_b32 s31, s29, 8")
    k("s_lshl_b32 s32, s30, 8")
    k("s_waitcnt lgkmcnt(0)")
    if g1:
        srd(k, 8, 4, S*F*2)
        srd(k, 12, 26, S*D*2, HN_OFF)
        srd(k, 16, 26, F*D*2, GT_OFF)
        srd(k, 20, 6, F*2)
        srd(k, 44, 26, 256*64, FL_OFF)
        k("s_lshl_b32 s33, s2, 6")
        k("v_mov_b32 v2, 0")
        k("v_lshlrev_b32 v3, 2, v0")
        k("v_cmp_gt_u32 vcc, 16, v0")
        k("s_and_saveexec_b64 s[34:35], vcc")
        k(f"s_cbranch_execz L_{tag}_nozf")
        k("buffer_store_dword v2, v3, s[44:47], s33 offen")
        k(f"L_{tag}_nozf:")
        k("s_mov_b64 exec, -1")
        k("s_cmp_lt_u32 s2, 224")
        k(f"s_cbranch_scc1 L_{tag}_main")
        if W2PF:
            srd(k, 48, 24, F*S*2)
            k("s_sub_u32 s33, s2, 224")
            k("s_mul_i32 s33, s33, 458752")
            k("v_lshlrev_b32 v2, 7, v0")
            for i in range(7):
                k(f"buffer_load_dword v3, v2, s[48:51], s33 offen")
                k("s_add_u32 s33, s33, 65536")
        k(f"s_branch L_{tag}_end")
        k(f"L_{tag}_main:")
    else:
        srd(k, 8, 4, F*S*2)
        srd(k, 12, 26, F*D*2, GT_OFF)
        srd(k, 16, 26, S*D*2, H_OFF)
        srd(k, 20, 6, S*2)
        srd(k, 48, 24, S*D*2)
        k("s_getreg_b32 s54, hwreg(HW_REG_XCC_ID, 0, 4)")
        k("s_add_u32 s54, s54, 1")
        srd(k, 56, 26, 256*64, FL_OFF)
        k("s_lshl_b32 s33, s2, 6")
        k("v_mov_b32 v2, s54")
        k("v_mov_b32 v3, 0")
        k("v_cmp_eq_u32 vcc, 0, v0")
        k("s_and_saveexec_b64 s[34:35], vcc")
        k(f"s_cbranch_execz L_{tag}_nopub")
        k("buffer_store_dword v2, v3, s[56:59], s33 offen offset:4 sc0 sc1")
        k(f"L_{tag}_nopub:")
        k("s_mov_b64 exec, -1")
    k("s_cmp_ge_u32 s28, 4")
    k(f"s_cbranch_scc1 L_{tag}_prod")
    ACC = 8; X = 72; Y = 136; R = 200
    AA = [R+i for i in range(4)]; AB = [R+4+i for i in range(4)]
    BA = [R+8+i for i in range(4)]; BB = [R+12+i for i in range(4)]
    MISC = R + 16
    k("s_and_b32 s33, s28, 1")
    k("s_lshr_b32 s36, s28, 1")
    k("v_lshrrev_b32 v2, 4, v1")
    k("v_bfe_u32 v3, v1, 2, 2")
    k("v_and_b32 v4, 3, v1")
    k("v_lshl_add_u32 v5, v2, 2, v3")
    k("v_and_b32 v6, 7, v5")
    k("v_lshlrev_b32 v6, 1, v6")
    k("v_lshrrev_b32 v7, 1, v4")
    k("v_and_b32 v9, 1, v4")
    for (base, w, add) in ((BA, 's33', 0), (BB, 's36', ASZ)):
        k(f"s_lshl_b32 s35, {w}, 3")
        k("v_add_u32 v10, s35, v7")
        k("v_xor_b32 v10, v10, v6")
        k("v_lshlrev_b32 v10, 4, v10")
        k("v_lshl_add_u32 v10, v9, 3, v10")
        k("v_lshl_add_u32 v10, v5, 8, v10")
        if add: k(f"v_add_u32 v10, {add}, v10")
        k(f"v_mov_b32 v{base[0]}, v10")
        for t in range(1, 4): k(f"v_xor_b32 v{base[t]}, {32*t}, v10")
    for t in range(4):
        k(f"v_mov_b32 v{AA[t]}, v{BA[t]}"); k(f"v_mov_b32 v{AB[t]}, v{BB[t]}")
    BIAS = MISC
    k("v_and_b32 v2, 15, v1")
    k("v_lshlrev_b32 v2, 1, v2")
    k("s_lshl_b32 s37, s36, 7")
    k("s_add_u32 s37, s37, s31")
    for t in range(4):
        k(f"buffer_load_ushort v{BIAS+t}, v2, s[20:23], s37 offen offset:{32*t}")
    OV = MISC+4
    k("v_and_b32 v2, 15, v1")
    k("v_lshlrev_b32 v2, 11, v2")
    k("v_lshrrev_b32 v3, 4, v1")
    k(f"v_lshl_add_u32 v{OV}, v3, 4, v2")
    k("s_lshl_b32 s38, s29, 7")
    k("s_lshl_b32 s39, s36, 6")
    k("s_add_u32 s38, s38, s39")
    k("s_lshl_b32 s38, s38, 11")
    k("s_add_u32 s38, s38, s32")
    k("s_lshl_b32 s39, s33, 7")
    k("s_add_u32 s38, s38, s39")
    if not g1:
        HL = MISC+6
        NV = HL+16
        if OUT_TOUCH:
            k("s_lshl_b32 s39, s62, 16")
            k("s_add_u32 s39, s39, s38")
            k(f"buffer_load_dword v{NV}, v{OV}, s[48:51], s39 offen")
            NV += 1
    else:
        NV = MISC+5
    def reads(dst, buf=None):
        r = []
        for ks in range(2):
            b = dst + 32*ks; ko = 32*ks
            for t in range(4):
                if buf is None: regs = (AA[t], AB[t]); bo = 0
                else:
                    regs = (BA[t], BB[t]) if buf < 2 else (AA[t], AB[t]); bo = (buf % 2)*STG
                for (o, a) in ((0, regs[0]), (16, regs[1])):
                    r.append(f"ds_read_b64_tr_b16 {vr(b+o+4*t,2)}, v{a} offset:{bo+ko*256}")
                    r.append(f"ds_read_b64_tr_b16 {vr(b+o+4*t+2,2)}, v{a} offset:{bo+(ko+16)*256}")
        return r
    def mfmas(src):
        m = []
        for ks in range(2):
            b = src + 32*ks
            order = sorted([(td, tn) for td in range(4) for tn in range(4)], key=lambda x: (max(x), x))
            if FAKE32:
                for i in range(8):
                    a = ACC + 16*(i % 4)
                    m.append(f"{MF32} {vr(a,16)}, {vr(b+4*(i%4),4)}, {vr(b+16+4*((i//2)%4),4)}, {vr(a,16)}")
                continue
            for td, tn in order:
                a = ACC + 4*(4*tn+td)
                m.append(f"{MF16} {vr(a,4)}, {vr(b+4*td,4)}, {vr(b+16+4*tn,4)}, {vr(a,4)}")
        return m
    def sched(mf, rd, extra):
        out = []; ri = 0; ei = 0
        for i, m in enumerate(mf):
            out.append(m)
            if ri < len(rd):
                for _ in range(RPAT[i % len(RPAT)]):
                    if ri < len(rd): out.append(rd[ri]); ri += 1
            elif ei < len(extra):
                out.append(extra[ei]); ei += 1
        out += rd[ri:] + extra[ei:]
        return out
    def upd():
        e = [f"s_add_u32 s34, s34, {STG}", f"s_cmp_eq_u32 s34, {STG*NS}", "s_cselect_b32 s34, 0, s34"]
        e += [f"v_add_u32 v{AA[t]}, s34, v{BA[t]}" for t in range(4)]
        e += [f"v_add_u32 v{AB[t]}, s34, v{BB[t]}" for t in range(4)]
        return e
    for i in range(64): k(f"v_mov_b32 v{ACC+i}, 0")
    k("s_mov_b32 s34, 0")
    k("s_mov_b32 s35, 0")
    mark(k, 1)
    k("s_barrier")
    mark(k, 2)
    if STATIC:
        for t in range(4):
            k(f"v_add_u32 v{AA[t]}, 65536, v{BA[t]}"); k(f"v_add_u32 v{AB[t]}, 65536, v{BB[t]}")
        for x in reads(X, 0): k(x)
        k(f"L_{tag}_cloop:")
        for u in range(4):
            cur, nxt = (X, Y) if u % 2 == 0 else (Y, X)
            k("s_waitcnt lgkmcnt(0)")
            k("s_barrier")
            ex = ["s_add_u32 s35, s35, 4", f"s_cmp_lt_u32 s35, {NIT-4}"] if u == 3 else []
            for x in sched(mfmas(cur), reads(nxt, (u+1) % 4), ex): k(x)
        k(f"s_cbranch_scc1 L_{tag}_cloop")
        for u in range(2):
            cur, nxt = (X, Y) if u % 2 == 0 else (Y, X)
            k("s_waitcnt lgkmcnt(0)")
            k("s_barrier")
            for x in sched(mfmas(cur), reads(nxt, u+1), []): k(x)
    else:
        for x in reads(X): k(x)
        for x in upd(): k(x)
        k(f"L_{tag}_cloop:")
        k("s_waitcnt lgkmcnt(0)")
        if LOOPSTAMP:
            k(f"s_cmp_eq_u32 s35, {LOOPSTAMP}")
            k(f"s_cbranch_scc0 L_{tag}_nolatch")
            for i in range(4): k(f"s_mov_b64 s[{96-20+2*i}:{97-20+2*i}], s[{66+2*i}:{67+2*i}]") if False else None
            k("s_sub_u32 s90, s68, s66"); k("s_sub_u32 s91, s70, s68"); k("s_sub_u32 s92, s72, s70")
            k("s_memtime s[82:83]"); k("s_waitcnt lgkmcnt(0)"); k("s_sub_u32 s93, s82, s72")
            k(f"L_{tag}_nolatch:")
        k("s_barrier")
        if LOOPSTAMP: k("s_memtime s[66:67]")
        for x in sched(mfmas(X), reads(Y), upd()): k(x)
        if LOOPSTAMP: k("s_memtime s[68:69]")
        k("s_waitcnt lgkmcnt(0)")
        if not BAR2: k("s_barrier")
        if LOOPSTAMP: k("s_memtime s[70:71]")
        for x in sched(mfmas(Y), reads(X), upd() + ["s_add_u32 s35, s35, 2", f"s_cmp_lt_u32 s35, {NIT-2}"]): k(x)
        if LOOPSTAMP: k("s_memtime s[72:73]")
        k(f"s_cbranch_scc1 L_{tag}_cloop")
    if LOOPSTAMP:
        k("s_waitcnt lgkmcnt(0)")
        for i in range(4):
            k(f"s_mov_b32 s{66+2*i}, s{90+i}"); k(f"s_mov_b32 s{67+2*i}, 0")
    XID = 3
    if not g1:
        k(f"s_xor_b32 s42, s2, {8 if MAP2 == 1 else 1}")
        k("s_lshl_b32 s39, s42, 6")
        k("v_mov_b32 v4, 0")
        k(f"buffer_load_dword v{XID}, v4, s[56:59], s39 offen offset:4 sc0 sc1")
        k("s_lshl_b32 s39, s62, 16")
        k("s_add_u32 s39, s39, s38")
        for tnl in range(2):
            for tp in range(2):
                k(f"s_add_u32 s40, s39, {tnl*16*2048 + tp*64}")
                k(f"buffer_load_dwordx4 {vr(HL+8*tnl+4*tp,4)}, v{OV}, s[16:19], s40 offen")
    k("s_waitcnt lgkmcnt(0)")
    k("s_barrier")
    for x in sched(mfmas(X), reads(Y, 3 if STATIC else None), []): k(x)
    k("s_waitcnt lgkmcnt(0)")
    for x in mfmas(Y): k(x)
    mark(k, 3)
    k("s_mov_b32 s40, 0xffff0000")
    T = X
    def pack_swap(P):
        k(f"v_permlane32_swap_b32 v{P}, v{P+2}")
        k(f"v_permlane32_swap_b32 v{P+1}, v{P+3}")
        k(f"v_permlane16_swap_b32 v{P}, v{P+2}")
        k(f"v_permlane16_swap_b32 v{P+1}, v{P+3}")
    def store_lines(P0, P1, tmp, so, srdreg):
        for i in range(4): k(f"v_mov_b32 v{tmp+i}, v{P0+i}")
        for i in range(4): k(f"v_mov_b32_dpp v{P0+i}, v{P1+i} row_ror:8 row_mask:0xf bank_mask:0xc")
        for i in range(4): k(f"v_mov_b32_dpp v{P1+i}, v{tmp+i} row_ror:8 row_mask:0xf bank_mask:0x3")
        fl = ST_G1 if g1 else ST_G2
        k(f"s_add_u32 s41, s38, {so}")
        k(f"buffer_store_dwordx4 {vr(P0,4)}, v{OVS}, s[{srdreg}:{srdreg+3}], s41 offen {fl}")
        k(f"s_add_u32 s41, s38, {so + 8*2048}")
        k(f"buffer_store_dwordx4 {vr(P1,4)}, v{OVS}, s[{srdreg}:{srdreg+3}], s41 offen {fl}")
    OVS = 3
    def set_ovs():
        k("v_and_b32 v2, 7, v1")
        k("v_lshlrev_b32 v2, 11, v2")
        k("v_bfe_u32 v3, v1, 3, 1")
        k("v_lshl_add_u32 v2, v3, 6, v2")
        k("v_lshrrev_b32 v3, 4, v1")
        k(f"v_lshl_add_u32 v{OVS}, v3, 4, v2")
    if g1:
        SH = 32768 if STATIC else (98304 if BAR2 else 65536)
        k("s_lshl_b32 s39, s28, 13")
        k(f"s_add_u32 s39, s39, {SH}")
        k("v_lshl_add_u32 v2, v1, 4, s39")
        for i in range(8): k(f"ds_write_b128 v2, {vr(ACC+32+4*i,4)} offset:{1024*i}")
        k("s_waitcnt vmcnt(0) lgkmcnt(0)")
        k("s_barrier")
        mark(k, 4)
        k(f"L_{tag}_epi:")
        for t in range(2): k(f"v_lshlrev_b32 v{BIAS+t}, 16, v{BIAS+t}")
        c0 = -2.0*math.log2(math.e)*math.sqrt(2.0/math.pi); c1 = c0*0.044715
        k("s_mov_b32 s40, 0xffff0000")
        k(f"s_mov_b32 s42, {f32(c1)}")
        k(f"v_mov_b32 v4, {f32(c0)}"); k(f"v_mov_b32 v5, {f32(c0)}")
        k(f"v_mov_b32 v6, 1.0"); k(f"v_mov_b32 v7, 1.0")
        set_ovs()
        for tn in range(2):
            for tp in range(2):
                P = T + 4*tp + 24*tn
                for q in range(4):
                    td = 2*tp + q//2
                    src = ACC + 4*(4*tn+td) + 2*(q % 2)
                    u, w = T+8+4*q, T+10+4*q
                    gelu_pair(k, src, u, w, BIAS+tn, P+q)
                pack_swap(P)
            store_lines(T+24*tn, T+24*tn+4, T+32, tn*16*2048, 16)
    else:
        k("s_waitcnt vmcnt(0)")
        srd(k, 44, 26, 256*32768, 0x1E00000 if XB_SEP else XB_OFF)
        srd(k, 56, 26, 256*64, FL_OFF)
        k(f"s_xor_b32 s42, s2, {8 if MAP2 == 1 else 1}")
        k("s_lshl_b32 s43, s42, 15")
        k("s_lshl_b32 s39, s28, 13")
        k("s_add_u32 s43, s43, s39")
        k("v_lshlrev_b32 v2, 4, v1")
        k("v_mov_b32 v4, 0")
        k("s_lshl_b32 s39, s42, 6")
        k("s_mov_b32 s41, 0")
        k("v_readfirstlane_b32 s61, v3")
        k("s_cmp_eq_u32 s61, 0")
        k(f"s_cbranch_scc0 L_{tag}_xpolld")
        k(f"L_{tag}_xpoll:")
        k("buffer_load_dword v3, v4, s[56:59], s39 offen offset:4 sc0 sc1")
        k("s_waitcnt vmcnt(0)")
        k("v_readfirstlane_b32 s61, v3")
        k("s_add_u32 s41, s41, 1")
        k("s_cmp_ge_u32 s41, 0x40000")
        k(f"s_cbranch_scc1 L_{tag}_xpolld")
        k("s_cmp_eq_u32 s61, 0")
        k(f"s_cbranch_scc1 L_{tag}_xpoll")
        k(f"L_{tag}_xpolld:")
        k("s_cmp_eq_u32 s61, s54")
        k(f"s_cselect_b32 s61, {0 if FORCE_FAR else 1}, 0")
        def sends(flags, lab):
            k("s_cmp_eq_u32 s62, 0")
            k(f"s_cbranch_scc1 L_{tag}_k0{lab}")
            for i in range(8):
                k(f"s_add_u32 s39, s43, {1024*i}")
                k(f"buffer_store_dwordx4 {vr(ACC+4*i,4)}, v2, s[44:47], s39 offen {flags}")
            k(f"s_branch L_{tag}_k1{lab}")
            k(f"L_{tag}_k0{lab}:")
            for i in range(8):
                k(f"s_add_u32 s39, s43, {1024*i}")
                k(f"buffer_store_dwordx4 {vr(ACC+32+4*i,4)}, v2, s[44:47], s39 offen {flags}")
            k(f"L_{tag}_k1{lab}:")
        def handoff(stf, ldf, lab):
            sends(stf, lab)
            k("s_waitcnt vmcnt(0)")
            k("s_lshl_b32 s39, s42, 6")
            k("s_lshl_b32 s41, s28, 2")
            k("s_add_u32 s39, s39, s41")
            k("v_mov_b32 v3, 1")
            k("s_mov_b64 exec, 1")
            k(f"buffer_store_dword v3, v4, s[56:59], s39 offen offset:16 {stf}")
            k("s_lshl_b32 s39, s2, 6")
            k("s_add_u32 s39, s39, s41")
            k("s_mov_b32 s41, 0")
            k(f"L_{tag}_poll{lab}:")
            k(f"buffer_load_dword v3, v4, s[56:59], s39 offen offset:16 {ldf}")
            k("s_waitcnt vmcnt(0)")
            k("v_readfirstlane_b32 s43, v3")
            k("s_add_u32 s41, s41, 1")
            k("s_cmp_ge_u32 s41, 0x40000")
            k(f"s_cbranch_scc1 L_{tag}_polld{lab}")
            k("s_cmp_eq_u32 s43, 1")
            k(f"s_cbranch_scc0 L_{tag}_poll{lab}")
            k(f"L_{tag}_polld{lab}:")
            k("s_mov_b64 exec, -1")
            k("s_lshl_b32 s43, s2, 15")
            k("s_lshl_b32 s39, s28, 13")
            k("s_add_u32 s43, s43, s39")
            for i in range(8):
                k(f"s_add_u32 s39, s43, {1024*i}")
                k(f"buffer_load_dwordx4 {vr(Y+4*i,4)}, v2, s[44:47], s39 offen {ldf}")
        k("s_cmp_eq_u32 s61, 1")
        k(f"s_cbranch_scc0 L_{tag}_far")
        handoff('', 'sc1', 'n')
        k(f"s_branch L_{tag}_xdone")
        k(f"L_{tag}_far:")
        handoff('sc0 sc1', 'sc0 sc1', 'f')
        k(f"L_{tag}_xdone:")
        k("s_cmp_eq_u32 s62, 0")
        k(f"s_cbranch_scc1 L_{tag}_kept")
        for i in range(32): k(f"v_mov_b32 v{ACC+i}, v{ACC+32+i}")
        k(f"v_mov_b32 v{BIAS}, v{BIAS+2}"); k(f"v_mov_b32 v{BIAS+1}, v{BIAS+3}")
        k(f"L_{tag}_kept:")
        mark(k, 4)
        k(f"v_lshlrev_b32 v{BIAS}, 16, v{BIAS}"); k(f"v_lshlrev_b32 v{BIAS+1}, 16, v{BIAS+1}")
        k("s_lshl_b32 s39, s62, 16")
        k("s_add_u32 s38, s38, s39")
        set_ovs()
        for tnl in range(2):
            for tp in range(2):
                i0 = 4*tnl + 2*tp
                k(f"s_waitcnt vmcnt({6 - i0 if i0 < 6 else 0})")
                if i0 == 0: mark(k, 5)
                P = T + 4*tp + 24*tnl
                for q in range(4):
                    td = 2*tp + q//2
                    a = ACC + 4*(4*tnl+td) + 2*(q % 2); y = Y + 4*(4*tnl+td) + 2*(q % 2)
                    u, w = T+8+4*q, T+10+4*q
                    k(f"v_pk_add_f32 {vr(a,2)}, {vr(a,2)}, {vr(y,2)}")
                    k(f"{CVT} v{w}, v{a}, v{a+1}")
                    k(f"v_lshlrev_b32 v{u}, 16, v{w}")
                    k(f"v_and_b32 v{u+1}, s40, v{w}")
                    k(f"v_add_f32 v{u}, v{u}, v{BIAS+tnl}")
                    k(f"v_add_f32 v{u+1}, v{u+1}, v{BIAS+tnl}")
                    k(f"{CVT} v{P+q}, v{u}, v{u+1}")
                pack_swap(P)
                for q in range(4):
                    u, w = T+8+4*q, T+10+4*q
                    hp = HL+8*tnl+4*tp+q
                    k(f"v_lshlrev_b32 v{u}, 16, v{P+q}")
                    k(f"v_and_b32 v{u+1}, s40, v{P+q}")
                    k(f"v_lshlrev_b32 v{w}, 16, v{hp}")
                    k(f"v_and_b32 v{w+1}, s40, v{hp}")
                    k(f"v_pk_add_f32 {vr(u,2)}, {vr(u,2)}, {vr(w,2)}")
                    k(f"{CVT} v{P+q}, v{u}, v{u+1}")
            store_lines(T+24*tnl, T+24*tnl+4, T+32, tnl*16*2048, 48)
    stamp_end(k, tag)
    k(f"s_branch L_{tag}_end")
    k(f"L_{tag}_prod:")
    if PPRIO: k(f"s_setprio {PPRIO}")
    k("s_sub_u32 s33, s28, 4")
    k("v_lshrrev_b32 v2, 4, v1")
    k("s_and_b32 s34, s33, 1")
    k("s_lshl_b32 s34, s34, 2")
    k("v_add_u32 v3, s34, v2")
    k("v_lshlrev_b32 v3, 1, v3")
    k("v_and_b32 v4, 15, v1")
    k("v_xor_b32 v3, v3, v4")
    k("v_lshlrev_b32 v3, 4, v3")
    k("v_lshl_add_u32 v8, v2, 11, v3")
    k(f"v_mul_u32_u24 v2, {BSTR}, v2")
    k("v_add_u32 v9, v2, v3")
    k("s_lshl_b32 s34, s33, 13")
    k("s_add_u32 s40, s32, s34")
    k(f"s_mul_i32 s34, s33, {4*BSTR}")
    k("s_add_u32 s41, s31, s34")
    k("s_lshl_b32 s42, s33, 10")
    k("s_mov_b32 s43, 0")
    k("s_add_u32 s46, s52, s53")
    k("s_mov_b32 s47, 0")
    def issue():
        k("s_add_u32 s58, s46, s47")
        k("s_and_b32 s58, s58, 3")
        k("s_cmp_eq_u32 s58, 0")
        k(f"s_cselect_b32 s58, {3+NIT}, {NIT-1}")
        k("s_add_u32 s58, s58, s47")
        k(f"s_cmp_ge_u32 s58, {2*NIT}")
        k(f"s_cselect_b32 s59, {2*NIT}, {NIT}")
        k(f"s_cmp_ge_u32 s58, {NIT}")
        k(f"s_cselect_b32 s59, s59, 0")
        k("s_sub_u32 s58, s58, s59")
        if not KPERM: k("s_mov_b32 s58, s47")
        if KWRAP: k(f"s_and_b32 s58, s58, {KWRAP-1}")
        k("s_add_u32 s58, s58, s63")
        k(f"s_mul_i32 s59, s58, {64*BSTR}")
        k(f"s_lshl_b32 s58, s58, 17")
        k("s_add_u32 s58, s58, s40")
        k("s_add_u32 s59, s59, s41")
        k("s_add_u32 s44, s43, s42")
        for m in range(4):
            k(f"s_add_u32 m0, s44, {4096*m}")
            k(f"s_add_u32 s45, s58, {m*16*2048}")
            k(f"buffer_load_dwordx4 v8, s[12:15], s45 offen lds")
            k(f"s_add_u32 m0, s44, {ASZ+4096*m}")
            k(f"s_add_u32 s45, s59, {m*16*BSTR}")
            k(f"buffer_load_dwordx4 v9, s[8:11], s45 offen lds")
        k("s_add_u32 s47, s47, 1")
        k(f"s_add_u32 s43, s43, {STG}")
        k(f"s_cmp_eq_u32 s43, {STG*NS}")
        k("s_cselect_b32 s43, 0, s43")
    if BAR2:
        per = 8
        mark(k, 1)
        issue(); mark(k, 2); issue()
        k(f"s_waitcnt vmcnt({per})")
        mark(k, 3)
        k("s_barrier")
        issue(); issue()
        mark(k, 4)
        k("s_mov_b32 s60, 0")
        k(f"L_{tag}_ploop:")
        k(f"s_waitcnt vmcnt({per})")
        k("s_barrier")
        issue(); issue()
        k("s_add_u32 s60, s60, 2")
        k(f"s_cmp_lt_u32 s60, {NIT-4}")
        k(f"s_cbranch_scc1 L_{tag}_ploop")
        k(f"s_waitcnt vmcnt({per})")
        k("s_barrier")
        k("s_waitcnt vmcnt(0)")
        k("s_barrier")
    else:
        producer_loop(k, tag, 8, issue, 3 if STATIC else NS, NIT)
    if g1:
        k("s_and_b32 s34, s33, 1")
        k("s_lshr_b32 s36, s33, 1")
        k("v_and_b32 v2, 15, v1")
        k("v_lshlrev_b32 v2, 1, v2")
        k("s_lshl_b32 s37, s36, 7")
        k("s_add_u32 s37, s37, s31")
        for t in range(2):
            k(f"buffer_load_ushort v{BIAS+t}, v2, s[20:23], s37 offen offset:{64+32*t}")
        k("v_and_b32 v2, 15, v1")
        k("v_lshlrev_b32 v2, 11, v2")
        k("v_lshrrev_b32 v3, 4, v1")
        k(f"v_lshl_add_u32 v{OV}, v3, 4, v2")
        k("s_lshl_b32 s38, s29, 7")
        k("s_lshl_b32 s39, s36, 6")
        k("s_add_u32 s38, s38, s39")
        k("s_add_u32 s38, s38, 32")
        k("s_lshl_b32 s38, s38, 11")
        k("s_add_u32 s38, s38, s32")
        k("s_lshl_b32 s39, s34, 7")
        k("s_add_u32 s38, s38, s39")
        k("s_lshl_b32 s39, s33, 13")
        k(f"s_add_u32 s39, s39, {32768 if STATIC else (98304 if BAR2 else 65536)}")
        k("v_lshl_add_u32 v2, v1, 4, s39")
        k("s_setprio 0")
        k("s_barrier")
        for i in range(8): k(f"ds_read_b128 {vr(ACC+4*i,4)}, v2 offset:{1024*i}")
        k("s_waitcnt vmcnt(0) lgkmcnt(0)")
        k(f"s_branch L_{tag}_epi")
    stamp_end(k, tag, tid=256, slot=256, sfx='p')
    k(f"L_{tag}_end:")
    k("s_endpgm")
    return k, NV, STG*NS

def gelu_pair(k, src, u, w, bias, dst):
    if EMU_U:
        k(f"{CVT} v{w}, v{src}, v{src+1}")
        k(f"v_lshlrev_b32 v{u}, 16, v{w}")
        k(f"v_and_b32 v{u+1}, s40, v{w}")
        k(f"v_add_f32 v{u}, v{u}, v{bias}")
        k(f"v_add_f32 v{u+1}, v{u+1}, v{bias}")
        k(f"{CVT} v{w}, v{u}, v{u+1}")
        k(f"v_lshlrev_b32 v{u}, 16, v{w}")
        k(f"v_and_b32 v{u+1}, s40, v{w}")
    else:
        k(f"v_add_f32 v{u}, v{src}, v{bias}")
        k(f"v_add_f32 v{u+1}, v{src+1}, v{bias}")
    k(f"v_pk_mul_f32 {vr(w,2)}, {vr(u,2)}, {vr(u,2)}")
    k(f"v_pk_fma_f32 {vr(w,2)}, {vr(w,2)}, s[42:43], {vr(4,2)} op_sel_hi:[1,0,1]")
    k(f"v_pk_mul_f32 {vr(w,2)}, {vr(w,2)}, {vr(u,2)}")
    k(f"v_exp_f32 v{w}, v{w}")
    k(f"v_exp_f32 v{w+1}, v{w+1}")
    k(f"s_nop 0")
    k(f"v_pk_add_f32 {vr(w,2)}, {vr(w,2)}, {vr(6,2)}")
    k(f"v_rcp_f32 v{w}, v{w}")
    k(f"v_rcp_f32 v{w+1}, v{w+1}")
    k(f"s_nop 0")
    k(f"v_pk_mul_f32 {vr(w,2)}, {vr(w,2)}, {vr(u,2)}")
    k(f"{CVT} v{dst}, v{w}, v{w+1}")

RPAT = [2, 1]
STATIC = 1
LOOPSTAMP = 0
BAR2 = 0
FAKE32 = 0
MAP2 = 0
XB_SEP = 1
FORCE_FAR = 0
PPRIO = 3
PFD = 0
KPERM = 1
FAKE16 = 0
NS1 = 3
NS2 = 3
KWRAP = 0
W2PF = True
EMU_U = True
RPG1 = 3
RPG2 = 4
def gen_g1(): return gemm_kernel('g1')
def gen_g2(): return gemm_kernel('g2')

KERNELS = [('p1_kernel', gen_p1, (256,1,1), (256,1,1)), ('p2_kernel', gen_p2, (257,1,1), (256,1,1)), ('p3_kernel', gen_p3, (256,1,1), (256,1,1)),
 ('g1_kernel', gen_g1, (256,1,1), (512,1,1)), ('g2_kernel', gen_g2, (256,1,1), (512,1,1))]

def build_all(kernels=None):
    ks = []
    for name, fn, grid, block in (kernels or KERNELS):
        k, nv, lds = fn()
        if ST_ALL:
            k.l = [ (x + ' ' + ST_ALL) if ('buffer_store' in x and 'sc1' not in x and 'sc0' not in x and ' nt' not in x) else x for x in k.l]
        if name.startswith('g'):
            if NO_DMA: k.l = [x for x in k.l if not ('offen lds' in x)]
            if NO_MFMA: k.l = [x for x in k.l if 'v_mfma' not in x]
            if NO_ADV: k.l = [x for x in k.l if not (x.strip().startswith('s_add_u32 s40, s40,') or x.strip().startswith('s_add_u32 s41, s41,'))]
            if NO_A: k.l = [x for x in k.l if not ('s[12:15]' in x and 'offen lds' in x)]
            if NO_B: k.l = [x for x in k.l if not ('s[8:11]' in x and 'offen lds' in x)]
            if NO_BAR: k.l = [x for x in k.l if 's_barrier' not in x]
            if NO_READ: k.l = [x for x in k.l if 'ds_read_b64_tr' not in x]
        ks.append((name, k, nv, lds, grid, block))
    hdr = open('sequential_preLN__spectral_gfnet__mixer_token_mlp__prompt.s.ref').read().split('; Override launch')[0]
    s = hdr
    for name, k, nv, lds, grid, block in ks:
        s += f"; @launch kernel={name} grid=({grid[0]},{grid[1]},{grid[2]}) block=({block[0]},{block[1]},{block[2]}) lds={lds}\n"
    s += '.amdgcn_target "amdgcn-amd-amdhsa--gfx950"\n.text\n'
    for name, k, nv, lds, grid, block in ks: s += k.text()
    s += 'L_text_end:\n'
    s += '.section .rodata,"a"\n'
    for name, k, nv, lds, grid, block in ks: s += descriptor(name, nv)
    return s, ks

if __name__ == '__main__':
    s, ks = build_all()
    open(sys.argv[1] if len(sys.argv) > 1 else 'out.s', 'w').write(s)
    print('written', len(s), 'bytes')
```

```python
import sys, math, struct
sys.path.insert(0, 'work')
from asmlib import *

ZW_OFF = 0x0          ; ZW_SIZE = 257*32768
ZD_OFF = 0x0 ; WB_OFF = 0x480000
VB_OFF = 0x900000     ; VB_BLK = 257*64 ; VB_SIZE = 256*VB_BLK + 1024
H_OFF  = 0xE00000
HN_OFF = 0x1200000
GT_OFF = 0x1600000
WS_USED = 0x1D00000
S, D, F = 2048, 1024, 3584

def f32(x):
    return '0x%08x' % struct.unpack('<I', struct.pack('<f', x))[0]

CVT = 'v_cvt_pk_bf16_f32'
STAMP = False
NO_DMA = False
NO_MFMA = False
NO_READ = False
NO_BAR = False
NO_ADV = False
NO_A = False
NO_B = False
STAMP_OFF = 0x3000000
KIDX = {'p1':0,'p2':1,'p3':2,'g1':3,'g2':4}
NMARK = 8
def mark(k, i):
    if STAMP and not (LOOPSTAMP and k.name.startswith('g') and 1 <= i <= 4): k(f"s_memrealtime s[{64+2*i}:{65+2*i}]")
def stamp_begin(k):
    if STAMP:
        for i in range(1, NMARK): k(f"s_mov_b64 s[{64+2*i}:{65+2*i}], 0")
        k("s_memrealtime s[64:65]")
        k("s_memtime s[94:95]")
def stamp_end(k, tag, tid=0, slot=0, sfx=''):
    if not STAMP: return
    mark(k, 6)
    k("s_waitcnt vmcnt(0) lgkmcnt(0)")
    mark(k, 7)
    k("s_memtime s[84:85]")
    k("s_load_dwordx2 s[88:89], s[0:1], 80")
    k("s_waitcnt lgkmcnt(0)")
    k(f"s_add_u32 s88, s88, {STAMP_OFF + KIDX[tag]*65536}")
    k("s_addc_u32 s89, s89, 0")
    k(f"s_add_u32 s87, s2, {slot}")
    k("s_lshl_b32 s87, s87, 7")
    k("v_mov_b32 v8, s87")
    k(f"v_cmp_eq_u32 vcc, {tid}, v0" if tid <= 64 else f"v_cmp_eq_u32 vcc, {hex(tid)}, v0")
    k("s_and_saveexec_b64 s[86:87], vcc")
    k(f"s_cbranch_execz L_{tag}_nostamp{sfx}")
    for i in range(0, NMARK, 2):
        for j in range(4): k(f"v_mov_b32 v{4+j}, s{64+2*i+j}")
        k(f"global_store_dwordx4 v8, v[4:7], s[88:89] offset:{8*i}")
        k("s_nop 1")
    k("v_mov_b32 v4, s94"); k("v_mov_b32 v5, s95"); k("v_mov_b32 v6, s84"); k("v_mov_b32 v7, s85")
    k("global_store_dwordx4 v8, v[4:7], s[88:89] offset:64")
    k("s_getreg_b32 s84, hwreg(HW_REG_XCC_ID, 0, 4)")
    k("s_nop 1")
    k("v_mov_b32 v4, s84")
    k("global_store_dword v8, v4, s[88:89] offset:80")
    k(f"L_{tag}_nostamp{sfx}:")

MF32 = 'v_mfma_f32_32x32x16_bf16'

CODEPF = 1
W1PF = 224
W1L2 = 0
ST_FLAGS = ''
ST_ALL = ''
ST_P1 = 'sc1'
ST_P2 = 'sc1'
ST_P3 = 'sc1'
ST_G1 = 'sc1'
ST_G2 = 'nt'
OUT_TOUCH = 0
def code_prefetch(k, tag, first_label, last_label, vtmp, stmp, nwaves_cond=None):
    if not CODEPF: return
    k(f"s_getpc_b64 s[{stmp}:{stmp+1}]")
    k(f"L_{tag}_pc:")
    k(f"s_add_u32 s{stmp}, s{stmp}, {first_label}-L_{tag}_pc")
    k(f"s_addc_u32 s{stmp+1}, s{stmp+1}, 0")

def srd(k, s, base, size, off=0):
    if off:
        k(f"s_add_u32 s{s}, s{base}, {hex(off)}")
        k(f"s_addc_u32 s{s+1}, s{base+1}, 0")
    else:
        k(f"s_mov_b32 s{s}, s{base}")
        k(f"s_mov_b32 s{s+1}, s{base+1}")
    k(f"s_mov_b32 s{s+2}, {hex(size)}")
    k(f"s_mov_b32 s{s+3}, 0x20000")

SEQ = [(r, c) for r in range(4) for c in range(4)]

def rot_setup(k, vA, t):
    k(f"v_mul_f32 v{t+4}, {f32(5.0)}, v{vA}")
    k(f"v_cos_f32 v{t}, v{vA}")
    k(f"v_sin_f32 v{t+1}, v{vA}")
    k(f"v_cos_f32 v{t+2}, v{t+4}")
    k(f"v_sin_f32 v{t+3}, v{t+4}")

def rot(k, dst, src, st, tmp, sign):
    k(f"v_pk_mul_f32 {vr(tmp,2)}, {vr(src,2)}, {vr(st,2)} op_sel_hi:[1,0]")
    neg = "neg_lo:[0,1,0]" if sign > 0 else "neg_hi:[0,1,0]"
    k(f"v_pk_fma_f32 {vr(dst,2)}, {vr(src,2)}, {vr(st,2)}, {vr(tmp,2)} op_sel:[1,1,0] op_sel_hi:[0,1,1] {neg}")

def gen_matrix(k, Mr, Mi, vA, vB, t):
    rot_setup(k, vA, t)
    cur = [t+6, t+8]
    k(f"v_cos_f32 v{cur[0]}, v{vB}")
    k(f"v_sin_f32 v{cur[0]+1}, v{vB}")
    k("s_nop 0")
    for i, (r, c) in enumerate(SEQ):
        a_, b_ = cur[i % 2], cur[(i+1) % 2]
        if i < 15: rot(k, b_, a_, t+2 if c == 3 else t, t+4, +1)
        k(f"{CVT} v{Mr+i}, v{a_}, v{a_+1}")
        k(f"{CVT} v{Mi+i}, -v{a_+1}, v{a_}")

def gen_twiddle(k, tw, vA, vB, t, scale=None):
    rot_setup(k, vA, t)
    k(f"v_cos_f32 v{tw}, v{vB}")
    k(f"v_sin_f32_e64 v{tw+1}, -v{vB}")
    if scale is not None:
        k(f"v_mul_f32 v{tw}, {f32(scale)}, v{tw}")
        k(f"v_mul_f32 v{tw+1}, {f32(scale)}, v{tw+1}")
    else: k("s_nop 0")
    for i, (r, c) in enumerate(SEQ):
        if i < 15: rot(k, tw+2*(i+1), tw+2*i, t+2 if c == 3 else t, t+4, -1)

def stage(k, typ, Dr, Di, data, Mr, Mi, first=True):
    for r in range(4):
        for (Dx, M) in ((Dr, Mr), (Di, Mi)):
            c = '0' if (r == 0 and first) else vr(Dx, 16)
            if typ == 'A': k(f"{MF32} {vr(Dx,16)}, {vr(data+4*r,4)}, {vr(M+4*r,4)}, {c}")
            else:          k(f"{MF32} {vr(Dx,16)}, {vr(M+4*r,4)}, {vr(data+4*r,4)}, {c}")

def cmul_pack(k, Dr, Di, w, out, t, conj=False):
    for j in range(16):
        o = t + 2*(j % 4); jp = j & ~1; x = j & 1
        k(f"v_pk_mul_f32 {vr(o,2)}, {vr(w+2*j,2)}, {vr(Dr+jp,2)} op_sel:[0,{x}] op_sel_hi:[1,{x}]")
        k(f"v_pk_fma_f32 {vr(o,2)}, {vr(w+2*j,2)}, {vr(Di+jp,2)}, {vr(o,2)} op_sel:[1,{x},0] op_sel_hi:[0,{x},1] neg_lo:[1,0,0]")
        if j >= 1:
            po = t + 2*((j-1) % 4); n = '-' if conj else ''
            k(f"{CVT} v{out+j-1}, v{po}, {n}v{po+1}")
    po = t + 2*(15 % 4); n = '-' if conj else ''
    k(f"{CVT} v{out+15}, v{po}, {n}v{po+1}")

def wave_reduce2(k, a, b):
    for m in ("quad_perm:[1,0,3,2] row_mask:0xf", "quad_perm:[2,3,0,1] row_mask:0xf", "row_half_mirror row_mask:0xf",
              "row_mirror row_mask:0xf", "row_bcast:15 row_mask:0xa", "row_bcast:31 row_mask:0xc"):
        k(f"v_add_f32_dpp v{a}, v{a}, v{a} {m} bank_mask:0xf")
        k(f"v_add_f32_dpp v{b}, v{b}, v{b} {m} bank_mask:0xf")

def tree_sum(k, X, n, t, op='add'):
    acc = [t, t+2, t+4, t+6]
    for i in range(4):
        k(f"v_pk_add_f32 {vr(acc[i],2)}, {vr(X+2*i,2)}, {vr(X+2*(i+4),2)}")
    for i in range(8, n):
        k(f"v_pk_add_f32 {vr(acc[i%4],2)}, {vr(acc[i%4],2)}, {vr(X+2*i,2)}")
    k(f"v_pk_add_f32 {vr(acc[0],2)}, {vr(acc[0],2)}, {vr(acc[1],2)}")
    k(f"v_pk_add_f32 {vr(acc[2],2)}, {vr(acc[2],2)}, {vr(acc[3],2)}")
    k(f"v_pk_add_f32 {vr(acc[0],2)}, {vr(acc[0],2)}, {vr(acc[2],2)}")

def ln_stats_xrow(k, X, t, sM, sR, sTmp):
    tree_sum(k, X, 16, t)
    wave_reduce2(k, t, t+1)
    k(f"v_mul_f32 v{t}, {f32(1/1024)}, v{t}")
    k(f"v_mul_f32 v{t+1}, {f32(1/1024)}, v{t+1}")
    k(f"{CVT} v{t+2}, v{t}, v{t+1}")
    k(f"v_readlane_b32 s{sTmp}, v{t}, 63")
    k(f"v_readlane_b32 s{sTmp+1}, v{t+1}, 63")
    k(f"v_lshlrev_b32 v{t+12}, 16, v{t+2}")
    k(f"v_and_b32 v{t+13}, 0xffff0000, v{t+2}")
    acc = [t, t+2]; tmp = [t+4, t+6, t+8, t+10]
    for i in range(16):
        d = tmp[i % 4]
        k(f"v_pk_add_f32 {vr(d,2)}, {vr(X+2*i,2)}, {sr(sTmp,2)} neg_lo:[0,1] neg_hi:[0,1]")
        a = acc[i % 2]
        if i < 2: k(f"v_pk_mul_f32 {vr(a,2)}, {vr(d,2)}, {vr(d,2)}")
        else:     k(f"v_pk_fma_f32 {vr(a,2)}, {vr(d,2)}, {vr(d,2)}, {vr(a,2)}")
    k(f"v_pk_add_f32 {vr(t,2)}, {vr(t,2)}, {vr(t+2,2)}")
    wave_reduce2(k, t, t+1)
    k(f"v_mul_f32 v{t}, {f32(1/1024)}, v{t}")
    k(f"v_mul_f32 v{t+1}, {f32(1/1024)}, v{t+1}")
    k(f"{CVT} v{t+2}, v{t}, v{t+1}")
    k(f"v_lshlrev_b32 v{t}, 16, v{t+2}")
    k(f"v_and_b32 v{t+1}, 0xffff0000, v{t+2}")
    k(f"v_add_f32 v{t}, {f32(1e-5)}, v{t}")
    k(f"v_add_f32 v{t+1}, {f32(1e-5)}, v{t+1}")
    k(f"{CVT} v{t+2}, v{t}, v{t+1}")
    k(f"v_lshlrev_b32 v{t}, 16, v{t+2}")
    k(f"v_and_b32 v{t+1}, 0xffff0000, v{t+2}")
    k(f"v_sqrt_f32 v{t}, v{t}")
    k(f"v_sqrt_f32 v{t+1}, v{t+1}")
    k(f"s_nop 0")
    k(f"{CVT} v{t+2}, v{t}, v{t+1}")
    k(f"v_lshlrev_b32 v{t}, 16, v{t+2}")
    k(f"v_and_b32 v{t+1}, 0xffff0000, v{t+2}")
    k(f"v_rcp_f32 v{t}, v{t}")
    k(f"v_rcp_f32 v{t+1}, v{t+1}")
    k(f"s_nop 0")
    k(f"v_mul_f32 v{t+12}, v{t+12}, v{t}")
    k(f"v_mul_f32 v{t+13}, v{t+13}, v{t+1}")
    k(f"v_readlane_b32 s{sR}, v{t}, 63")
    k(f"v_readlane_b32 s{sR+1}, v{t+1}, 63")
    k(f"v_readlane_b32 s{sM}, v{t+12}, 63")
    k(f"v_readlane_b32 s{sM+1}, v{t+13}, 63")

def gen_p1():
    k = Kern('p1_kernel')
    k("s_cmp_ge_u32 s2, 256")
    k("s_cbranch_scc1 L_p1_end")
    stamp_begin(k)
    k("s_load_dwordx4 s[4:7], s[0:1], 0")
    k("s_load_dwordx2 s[24:25], s[0:1], 16")
    k("s_load_dwordx2 s[60:61], s[0:1], 32")
    k("s_load_dwordx2 s[26:27], s[0:1], 80")
    TID, LANE = 0, 1
    if CODEPF:
        k("s_getpc_b64 s[52:53]")
        k("L_p1_pc:")
        k("s_sub_u32 s52, s52, L_p1_pc-p1_kernel")
        k("s_subb_u32 s53, s53, 0")
        k("v_lshlrev_b32 v210, 7, v0")
        k("v_mov_b32 v211, s53")
        k("v_add_co_u32 v210, vcc, s52, v210")
        k("v_addc_co_u32 v211, vcc, 0, v211, vcc")
        k("v_cmp_gt_u32 vcc, (L_p1_endc-p1_kernel+127)/128, v0")
        k("s_and_saveexec_b64 s[54:55], vcc")
        k("s_cbranch_execz L_p1_cp0")
        k("global_load_dword v212, v[210:211], off")
        k("L_p1_cp0:")
        k("s_mov_b64 exec, -1")
        k("s_bfe_u32 s54, s2, 0x10003")
        k("s_lshl_b32 s54, s54, 15")
        k("s_add_u32 s54, s54, L_p1_endc-p1_kernel")
        k("v_add_co_u32 v210, vcc, s54, v210")
        k("v_addc_co_u32 v211, vcc, 0, v211, vcc")
        k("v_lshlrev_b32 v213, 7, v0")
        k("v_add_u32 v213, s54, v213")
        k("v_cmp_gt_u32 vcc, L_text_end-p1_kernel, v213")
        k("s_and_saveexec_b64 s[54:55], vcc")
        k("s_cbranch_execz L_p1_cp1")
        k("global_load_dword v212, v[210:211], off")
        k("L_p1_cp1:")
        k("s_mov_b64 exec, -1")
    k("v_and_b32 v1, 63, v0")
    k("v_lshrrev_b32 v2, 6, v0")
    k("v_readfirstlane_b32 s28, v2")
    k("s_lshr_b32 s29, s2, 5")
    k("s_lshl_b32 s29, s29, 2")
    k("s_and_b32 s30, s2, 31")
    k("s_add_u32 s31, s29, s28")
    k("s_lshl_b32 s31, s31, 5")
    k("s_add_u32 s31, s31, s30")
    k("s_lshl_b32 s31, s31, 11")
    k("s_add_u32 s32, s31, 0x200000")
    k("s_waitcnt lgkmcnt(0)")
    srd(k, 8, 4, S*D*2)
    srd(k, 12, 6, S*513*2)
    srd(k, 16, 24, S*513*2)
    srd(k, 20, 26, 257*16384, ZD_OFF)
    srd(k, 72 if False else 52, 26, 257*16384, WB_OFF) if False else None
    XL = 4
    if FUSE_GG:
        srd(k, 56, 26, 1024, BAR_OFF)
        k("s_cmp_lt_u32 s2, 8")
        k("s_cbranch_scc0 L_p1_nozb")
        k("s_lshl_b32 s33, s2, 7")
        k("v_mov_b32 v2, 0")
        k("v_cmp_eq_u32 vcc, 0, v0")
        k("s_and_saveexec_b64 s[34:35], vcc")
        k("s_cbranch_execz L_p1_nozb")
        k("buffer_store_dword v2, v2, s[56:59], s33 offen sc0 sc1")
        k("L_p1_nozb:")
        k("s_mov_b64 exec, -1")
    k("v_lshlrev_b32 v2, 4, v1")
    k(f"buffer_load_dwordx4 {vr(XL,4)}, v2, s[8:11], s31 offen {NT_X}")
    k(f"buffer_load_dwordx4 {vr(XL+4,4)}, v2, s[8:11], s31 offen offset:1024 {NT_X}")
    k(f"buffer_load_dwordx4 {vr(XL+8,4)}, v2, s[8:11], s32 offen {NT_X}")
    k(f"buffer_load_dwordx4 {vr(XL+12,4)}, v2, s[8:11], s32 offen offset:1024 {NT_X}")
    WL = 20
    Mr, Mi, TW = 36, 52, 68
    XF, DR, DI, OP, T = 100, 132, 148, 164, 180
    k("v_and_b32 v2, 31, v1")
    k("v_cvt_f32_u32 v2, v2")
    k("v_lshrrev_b32 v3, 5, v1")
    k("v_lshlrev_b32 v3, 2, v3")
    k("v_cvt_f32_u32 v3, v3")
    k(f"v_mul_f32 v204, {f32(1/32)}, v2")
    k("v_mul_f32 v205, v204, v3")
    gen_matrix(k, Mr, Mi, 204, 205, T)
    k(f"v_mul_f32 v204, {f32(1/1024)}, v2")
    k("v_mul_f32 v205, v204, v3")
    gen_twiddle(k, TW, 204, 205, T)
    STG = 16384; WST = STG + 257*64 + 64
    k("s_lshr_b32 s44, s2, 2")
    k("s_and_b32 s44, s44, 3")
    k("s_mov_b32 s45, 0x05040100")
    k("s_mov_b32 s46, 0x07060302")
    k("s_lshl_b32 s47, s2, 6")
    k("s_lshl_b32 s48, s28, 2")
    k(f"s_add_u32 s48, s48, {STG}")
    B1, B2, AWJ, AX, ARD, AGL, AT1, AT2, AWR, AWG = 206, 207, 208, 209, 216, 217, 218, 219, 221, 222
    k("v_and_b32 v2, 31, v1")
    k("v_lshrrev_b32 v3, 5, v1")
    k("v_and_b32 v204, 1, v2")
    k("v_lshrrev_b32 v205, 1, v2")
    k(f"v_xor_b32 v{B1}, s44, v204")
    k(f"v_lshlrev_b32 v{B1}, 4, v{B1}")
    k(f"v_lshl_add_u32 v{B1}, v205, 6, v{B1}")
    k(f"v_lshl_add_u32 v{B1}, v3, 12, v{B1}")
    k(f"v_add_u32 v{B1}, s48, v{B1}")
    k("v_add_u32 v205, 1, v2")
    k("v_lshrrev_b32 v205, 1, v205")
    k("v_add_u32 v204, 2, v204")
    k(f"v_xor_b32 v{B2}, s44, v204")
    k(f"v_lshlrev_b32 v{B2}, 4, v{B2}")
    k("v_lshlrev_b32 v205, 6, v205")
    k(f"v_sub_u32 v{B2}, v{B2}, v205")
    k("v_lshlrev_b32 v205, 12, v3")
    k(f"v_sub_u32 v{B2}, v{B2}, v205")
    k(f"v_add_u32 v{B2}, s48, v{B2}")
    k("s_lshl_b32 s49, s28, 12")
    k(f"s_add_u32 s49, s49, {WST}")
    k("v_bfe_u32 v204, v1, 1, 2")
    k("v_xor_b32 v204, s44, v204")
    k("v_lshlrev_b32 v204, 4, v204")
    k(f"v_lshl_add_u32 v{AWJ}, v1, 6, v204")
    k(f"v_add_u32 v{AWJ}, s49, v{AWJ}")
    k("v_lshrrev_b32 v204, 2, v1")
    k("v_and_b32 v205, 3, v1")
    k(f"v_bfe_u32 v{AT1}, v204, 1, 2")
    k(f"v_xor_b32 v{AT1}, v{AT1}, v205")
    k(f"v_lshlrev_b32 v{AT1}, 4, v{AT1}")
    k(f"v_lshl_add_u32 v{AWR}, v204, 6, v{AT1}")
    k(f"v_add_u32 v{AWR}, s49, v{AWR}")
    k("s_lshl_b32 s49, s28, 6")
    k("v_add_u32 v204, s49, v204")
    k("v_lshlrev_b32 v204, 14, v204")
    k(f"v_lshl_add_u32 v{AWG}, v205, 4, v204")
    k("v_bfe_u32 v204, v1, 2, 1")
    k("v_xor_b32 v204, s44, v204")
    k("v_lshlrev_b32 v204, 4, v204")
    k("v_and_b32 v205, 3, v1")
    k(f"v_lshl_add_u32 v{AX}, v205, 2, v204")
    k(f"v_lshlrev_b32 v{ARD}, 4, v0")
    k(f"v_add_u32 v{ARD}, {STG}, v{ARD}")
    k("v_lshrrev_b32 v204, 2, v0")
    k("v_lshlrev_b32 v204, 14, v204")
    k("v_and_b32 v205, 3, v0")
    k(f"v_lshl_add_u32 v{AGL}, v205, 4, v204")
    k("s_xor_b32 s49, s44, 2")
    k("s_lshl_b32 s49, s49, 4")
    k("s_add_u32 s49, s49, s48")
    k("s_lshl_b32 s50, s44, 4")
    k("s_add_u32 s50, s50, s48")
    k("s_add_u32 s50, s50, 16384")
    k(f"v_mov_b32 v{AT1}, s49")
    k(f"v_mov_b32 v{AT2}, s50")
    k("s_lshl_b32 s36, s28, 12")
    k("v_lshlrev_b32 v2, 5, v1")
    k("v_add_u32 v2, s36, v2")
    k("v_and_b32 v3, 31, v1")
    k("v_lshlrev_b32 v3, 2, v3")
    k("v_lshrrev_b32 v204, 5, v1")
    k("v_lshlrev_b32 v204, 9, v204")
    k("v_add3_u32 v3, v3, v204, s36")
    k("s_mov_b32 s35, 0xffff0000")
    mark(k, 1)
    k("s_waitcnt vmcnt(0)")
    mark(k, 2)
    k("v_lshlrev_b32 v220, 2, v0")
    k("s_lshl_b32 s33, s29, 6")
    k("s_lshl_b32 s34, s30, 1")
    k("s_add_u32 s33, s33, s34")
    k("s_mul_i32 s33, s33, 1026")
    for pi in range(2):
        for cc in range(4):
            off = (64*cc + pi)*1026
            k(f"s_add_u32 s34, s33, {off}")
            k(f"buffer_load_dword v{WL+4*pi+cc}, v220, s[12:15], s34 offen {NT_W}")
            k(f"buffer_load_dword v{WL+8+4*pi+cc}, v220, s[16:19], s34 offen {NT_W}")
    WX = 200
    k("v_and_b32 v200, 3, v1")
    k("v_lshlrev_b32 v200, 6, v200")
    k("v_bfe_u32 v201, v1, 2, 1")
    k("v_add_u32 v200, v200, v201")
    k("v_mul_u32_u24 v200, 1026, v200")
    k("v_add_u32 v200, 1024, v200")
    k("v_cmp_gt_u32 vcc, 8, v0")
    k("s_and_saveexec_b64 s[36:37], vcc")
    k("s_cbranch_execz L_p1_nox")
    k("buffer_load_ushort v202, v200, s[12:15], s33 offen")
    k("buffer_load_ushort v203, v200, s[16:19], s33 offen")
    k("L_p1_nox:")
    k("s_mov_b64 exec, -1")
    for i in range(16):
        for row in range(2):
            src = XL + 8*row + (i >> 1)
            if i % 2 == 0: k(f"v_lshlrev_b32 v{XF+2*i+row}, 16, v{src}")
            else:          k(f"v_and_b32 v{XF+2*i+row}, s35, v{src}")
    ln_stats_xrow(k, XF, T, 38, 40, 42)
    k(f"v_mov_b32 v{T+8}, s40"); k(f"v_mov_b32 v{T+9}, s41")
    k(f"v_mov_b32 v{T+10}, s38"); k(f"v_mov_b32 v{T+11}, s39")
    for i in range(16):
        d = T + 2*(i % 4)
        k(f"v_pk_fma_f32 {vr(d,2)}, {vr(XF+2*i,2)}, {vr(T+8,2)}, {vr(T+10,2)} neg_lo:[0,0,1] neg_hi:[0,0,1]")
        k(f"{CVT} v{OP+i}, v{d}, v{d+1}")
    k(f"ds_write_b128 v2, {vr(OP,4)}")
    k(f"ds_write_b128 v2, {vr(OP+4,4)} offset:16")
    k(f"ds_write_b128 v2, {vr(OP+8,4)} offset:2048")
    k(f"ds_write_b128 v2, {vr(OP+12,4)} offset:2064")
    k("s_waitcnt lgkmcnt(0)")
    for i, (r, c) in enumerate(SEQ):
        k(f"ds_read_b32 v{OP+i}, v3 offset:{(8*r+c)*128}")
    mark(k, 3)
    k("s_waitcnt lgkmcnt(0)")
    stage(k, 'A', DR, DI, OP, Mr, Mi)
    srd(k, 56, 26, 257*16384, WB_OFF)
    k("s_waitcnt vmcnt(0)")
    WO = XF
    for e in range(2):
        for pi in range(2):
            for cc in range(4):
                k(f"v_perm_b32 v{WO+4*(2*e+pi)+cc}, v{WL+8+4*pi+cc}, v{WL+4*pi+cc}, s{45+e}")
    for sl in range(4):
        if sl: k(f"v_xor_b32 v204, {16*sl}, v{AWJ}")
        k(f"ds_write_b128 v{204 if sl else AWJ}, {vr(WO+4*sl,4)}")
    k("v_lshlrev_b32 v203, 16, v203")
    k("v_or_b32 v202, v202, v203")
    k("s_add_u32 s49, s47, 0x400000")
    k("v_cmp_gt_u32 vcc, 8, v0")
    k("s_and_saveexec_b64 s[36:37], vcc")
    k("s_cbranch_execz L_p1_nox2")
    k(f"buffer_store_dword v202, v{AX}, s[56:59], s49 offen {ST_P1}")
    k("L_p1_nox2:")
    k("s_mov_b64 exec, -1")
    k("s_waitcnt lgkmcnt(0)")
    for j in range(4): k(f"ds_read_b128 {vr(WO+16+4*j,4)}, v{AWR} offset:{1024*j}")
    k("s_mov_b32 s49, s47")
    for j in range(4):
        k(f"s_waitcnt lgkmcnt({3-j})")
        k(f"buffer_store_dwordx4 {vr(WO+16+4*j,4)}, v{AWG}, s[56:59], s49 offen {ST_P1}")
        if j < 3: k(f"s_add_u32 s49, s49, {16*16384}")
    cmul_pack(k, DR, DI, TW, OP, T)
    stage(k, 'B', DR, DI, OP, Mr, Mi)
    mark(k, 4)
    for i, (r, c) in enumerate(SEQ):
        if r < 2: k(f"{CVT} v{OP+i}, v{DR+i}, v{DI+i}")
        else:     k(f"{CVT} v{OP+i}, v{DI+i}, v{DR+i}")
        if r < 2: k(f"ds_write_b32 v{B1}, v{OP+i} offset:{(8*r+c)*1024}")
        else:     k(f"ds_write_b32 v{B2}, v{OP+i} offset:{(32-8*r-c)*1024}")
    k(f"{CVT} v{T}, v{DI}, v{DR}")
    k(f"{CVT} v{T+1}, v{DR+8}, v{DI+8}")
    k("s_mov_b64 exec, 1")
    k(f"ds_write_b32 v{AT1}, v{T}")
    k(f"ds_write_b32 v{AT2}, v{T+1}")
    k("s_mov_b64 exec, -1")
    k("s_waitcnt lgkmcnt(0)")
    k("s_barrier")
    RO = XF
    for j in range(4):
        k(f"ds_read_b128 {vr(RO+4*j,4)}, v{ARD} offset:{4096*j}")
    k("v_cmp_gt_u32 vcc, 4, v0")
    k("s_and_saveexec_b64 s[36:37], vcc")
    k("s_cbranch_execz L_p1_nox3")
    k(f"ds_read_b128 {vr(T,4)}, v{ARD} offset:16384")
    k("s_waitcnt lgkmcnt(0)")
    k("s_add_u32 s49, s47, 0x400000")
    k(f"buffer_store_dwordx4 {vr(T,4)}, v{AGL}, s[20:23], s49 offen {ST_P1}")
    k("L_p1_nox3:")
    k("s_mov_b64 exec, -1")
    for j in range(4):
        k(f"s_waitcnt lgkmcnt({3-j})")
        k(f"buffer_store_dwordx4 {vr(RO+4*j,4)}, v{AGL}, s[20:23], s47 offen {ST_P1}")
        if j < 3: k("s_add_u32 s47, s47, 0x100000")
    stamp_end(k, 'p1')
    k("L_p1_end:")
    k("s_endpgm")
    k("L_p1_endc:")
    return k, 224, WST + 16384

def gen_p2():
    k = Kern('p2_kernel')
    k("s_cmp_ge_u32 s2, 257")
    k("s_cbranch_scc1 L_p2_end")
    stamp_begin(k)
    k("s_load_dwordx2 s[26:27], s[0:1], 80")
    k("s_load_dwordx2 s[24:25], s[0:1], 32")
    k("v_and_b32 v1, 63, v0")
    k("v_lshrrev_b32 v2, 6, v0")
    k("v_readfirstlane_b32 s28, v2")
    k("v_lshlrev_b32 v2, 4, v1")
    k("s_lshr_b32 s29, s28, 1")
    k("s_and_b32 s30, s28, 1")
    k("s_lshl_b32 s31, s2, 14")
    k("s_lshl_b32 s32, s28, 12")
    k("s_add_u32 s31, s31, s32")
    k("s_waitcnt lgkmcnt(0)")
    srd(k, 8, 26, 257*16384, ZD_OFF)
    srd(k, 20, 26, 257*16384, WB_OFF)
    srd(k, 12, 26, 256*VB_BLK, VB_OFF)
    for i in range(4):
        k(f"s_add_u32 m0, s32, {1024*i}")
        k(f"s_add_u32 s33, s31, {1024*i}")
        k(f"buffer_load_dwordx4 v2, s[8:11], s33 offen lds")
    Z1, Z2 = 4, 20
    M1r, M1i, MFr, MFi, MIr, MIi = 36, 52, 68, 84, 100, 116
    T1, T2 = 132, 164
    DR, DI, T = 196, 212, 228
    A, B, J, H4, PI = 244, 245, 246, 247, 248
    k(f"v_and_b32 v{J}, 31, v1")
    k(f"v_cvt_f32_u32 v{J}, v{J}")
    k(f"v_lshrrev_b32 v{H4}, 5, v1")
    k(f"v_lshlrev_b32 v{H4}, 2, v{H4}")
    k(f"v_cvt_f32_u32 v{H4}, v{H4}")
    k(f"v_mov_b32 v{PI}, s30")
    k(f"v_cvt_f32_u32 v{PI}, v{PI}")
    k(f"v_mul_f32 v{A}, {f32(1/32)}, v{J}")
    k(f"v_mul_f32 v{B}, v{A}, v{H4}")
    gen_matrix(k, MFr, MFi, A, B, T)
    k(f"v_fma_f32 v{A}, v{J}, 2.0, v{PI}")
    k(f"v_mul_f32 v{A}, {f32(1/64)}, v{A}")
    k(f"v_mul_f32 v{B}, v{A}, v{H4}")
    gen_matrix(k, M1r, M1i, A, B, T)
    k("s_lshl_b32 s33, s30, 4")
    k(f"v_and_b32 v{T}, 31, v1")
    k(f"v_xor_b32 v{T}, s33, v{T}")
    k(f"v_cvt_f32_u32 v{T}, v{T}")
    k(f"v_mul_f32 v{A}, {f32(1/32)}, v{T}")
    k(f"v_mul_f32 v{B}, v{A}, v{H4}")
    k(f"v_mul_f32 v{T}, {f32(1/64)}, v{T}")
    k(f"v_fma_f32 v{B}, v{T}, v{PI}, v{B}")
    gen_matrix(k, MIr, MIi, A, B, T)
    k(f"v_fma_f32 v{A}, v{J}, 2.0, v{PI}")
    k(f"v_mul_f32 v{A}, {f32(1/2048)}, v{A}")
    k(f"v_mov_b32 v{T}, {f32(0.125)}")
    k(f"v_mul_f32 v{T+1}, {f32(-0.25)}, v{PI}")
    k(f"v_add_f32 v{T}, v{T}, v{T+1}")
    k(f"v_fma_f32 v{B}, v{A}, v{H4}, v{T}")
    gen_twiddle(k, T1, A, B, T)
    k(f"v_mul_f32 v{A}, {f32(1/1024)}, v{J}")
    k(f"v_mul_f32 v{B}, v{A}, v{H4}")
    k(f"v_mul_f32 v{T}, {f32(1/2048)}, v{J}")
    k(f"v_fma_f32 v{B}, v{T}, v{PI}, v{B}")
    gen_twiddle(k, T2, A, B, T)
    AZ1, AZ2, AW = 249, 250, 251
    k(f"v_bfe_u32 v{T}, v1, 2, 2")
    k(f"v_lshlrev_b32 v{T+1}, 6, v1")
    k(f"v_xor_b32 v{AZ1}, s29, v{T}")
    k(f"v_lshl_add_u32 v{AZ1}, v{AZ1}, 4, v{T+1}")
    k(f"v_xor_b32 v{AZ2}, 32, v{AZ1}")
    k("s_lshl_b32 s33, s29, 1")
    k("s_add_u32 s33, s33, s30")
    k(f"v_xor_b32 v{AW}, s33, v{T}")
    k(f"v_lshl_add_u32 v{AW}, v{AW}, 4, v{T+1}")
    k(f"v_add_u32 v{AW}, 16384, v{AW}")
    k("s_mul_i32 s34, s30, 0x80008000")
    k("s_mov_b32 s35, 0xffff0000")
    mark(k, 1)
    k("s_waitcnt vmcnt(0)")
    for i in range(4):
        k(f"s_add_u32 m0, s32, {16384+1024*i}")
        k(f"s_add_u32 s33, s31, {1024*i}")
        k(f"buffer_load_dwordx4 v2, s[20:23], s33 offen lds")
    if W1PF:
        srd(k, 16, 24, S*F*2)
        k(f"s_mul_i32 s33, s2, {W1PF*128}")
        k("v_lshlrev_b32 v3, 7, v0")
        k(f"v_min_u32 v3, {(W1PF-1)*128}, v3")
        k("buffer_load_dword v255, v3, s[16:19], s33 offen")
    k("s_barrier")
    mark(k, 2)
    for r in range(4):
        k(f"ds_read_b128 {vr(Z1+4*r,4)}, v{AZ1} offset:{4096*r}")
        k(f"ds_read_b128 {vr(Z2+4*r,4)}, v{AZ2} offset:{4096*r}")
    k("s_waitcnt lgkmcnt(0)")
    for i in range(16):
        k(f"v_xor_b32 v{Z2+i}, s34, v{Z2+i}")
    stage(k, 'A', DR, DI, Z1, M1r, M1i, first=True)
    stage(k, 'A', DR, DI, Z2, M1r, M1i, first=False)
    OP = Z1
    cmul_pack(k, DR, DI, T1, OP, T)
    k(f"s_waitcnt vmcnt({1 if W1PF else 0})")
    k("s_barrier")
    for r in range(4):
        k(f"ds_read_b128 {vr(Z2+4*r,4)}, v{AW} offset:{4096*r}")
    stage(k, 'B', DR, DI, OP, MFr, MFi)
    WP = M1r
    k("s_waitcnt lgkmcnt(0)")
    for i in range(16):
        k(f"v_lshlrev_b32 v{WP+2*i}, 16, v{Z2+i}")
        k(f"v_and_b32 v{WP+2*i+1}, s35, v{Z2+i}")
    cmul_pack(k, DR, DI, WP, OP, T, conj=True)
    stage(k, 'A', DR, DI, OP, MFr, MFi)
    cmul_pack(k, DR, DI, T2, OP, T)
    stage(k, 'B', DR, DI, OP, MIr, MIi)
    mark(k, 4)
    XCH, STG = 32768, 49152
    AX = 252
    k("s_lshl_b32 s36, s28, 12")
    k(f"s_add_u32 s36, s36, {XCH}")
    k(f"v_lshl_add_u32 v{AX}, v1, 4, s36")
    k(f"ds_write_b128 v{AX}, {vr(DR+8,4)}")
    k(f"ds_write_b128 v{AX}, {vr(DR+12,4)} offset:1024")
    k(f"ds_write_b128 v{AX}, {vr(DI+8,4)} offset:2048")
    k(f"ds_write_b128 v{AX}, {vr(DI+12,4)} offset:3072")
    k(f"v_xor_b32 v{AX}, 4096, v{AX}")
    k("s_lshl_b32 s37, s2, 1")
    k("s_add_u32 s37, s37, s29")
    k("s_and_b32 s37, s37, 511")
    k("s_cmp_eq_u32 s37, 0")
    k(f"s_cselect_b32 s38, 0, {f32(1.0)}")
    k("s_cmp_eq_u32 s30, 0")
    k(f"s_cselect_b32 s40, {f32(1.0)}, {f32(-1.0)}")
    k("s_lshl_b32 s41, s30, 31")
    k("s_xor_b32 s42, s38, s41")
    k("s_waitcnt lgkmcnt(0)")
    k("s_barrier")
    OR_, OI = 36, 44
    k(f"ds_read_b128 {vr(OR_,4)}, v{AX}")
    k(f"ds_read_b128 {vr(OR_+4,4)}, v{AX} offset:1024")
    k(f"ds_read_b128 {vr(OI,4)}, v{AX} offset:2048")
    k(f"ds_read_b128 {vr(OI+4,4)}, v{AX} offset:3072")
    k(f"v_bfe_u32 v{T}, v1, 1, 2")
    k(f"v_xor_b32 v{T+1}, s29, v{T}")
    k(f"v_xor_b32 v{T+2}, 2, v{T+1}")
    k("s_lshl_b32 s43, s30, 13")
    k(f"s_add_u32 s43, s43, {STG}")
    k(f"v_lshl_add_u32 v{T+3}, v1, 6, s43")
    k(f"v_lshl_add_u32 v253, v{T+1}, 4, v{T+3}")
    k(f"v_lshl_add_u32 v254, v{T+2}, 4, v{T+3}")
    k("s_waitcnt lgkmcnt(0)")
    UA, UB = 52, 60
    Ur, Ui, Er, Ei, Ar, Ai, Br, Bi = 68, 70, 72, 74, 76, 78, 80, 82
    bc = "op_sel_hi:[1,0,1]"
    for j in range(0, 8, 2):
        o = 16*((j//2) % 2)
        ur, ui, er, ei, a_r, a_i, b_r, b_i = [x+o for x in (Ur, Ui, Er, Ei, Ar, Ai, Br, Bi)]
        k(f"v_pk_add_f32 {vr(ur,2)}, {vr(DR+j,2)}, {vr(OR_+j,2)}")
        k(f"v_pk_add_f32 {vr(ui,2)}, {vr(DI+j,2)}, {vr(OI+j,2)}")
        k(f"v_pk_add_f32 {vr(er,2)}, {vr(DR+j,2)}, {vr(OR_+j,2)} neg_lo:[0,1] neg_hi:[0,1]")
        k(f"v_pk_add_f32 {vr(ei,2)}, {vr(DI+j,2)}, {vr(OI+j,2)} neg_lo:[0,1] neg_hi:[0,1]")
        k(f"v_pk_fma_f32 {vr(a_r,2)}, {vr(ei,2)}, s[42:43], {vr(ur,2)} {bc}")
        k(f"v_pk_fma_f32 {vr(b_r,2)}, {vr(ei,2)}, s[42:43], {vr(ur,2)} {bc} neg_lo:[1,0,0] neg_hi:[1,0,0]")
        k(f"v_pk_mul_f32 {vr(ui,2)}, {vr(ui,2)}, s[38:39] op_sel_hi:[1,0]")
        k(f"v_pk_fma_f32 {vr(a_i,2)}, {vr(er,2)}, s[40:41], {vr(ui,2)} {bc} neg_lo:[1,0,0] neg_hi:[1,0,0]")
        k(f"v_pk_fma_f32 {vr(b_i,2)}, {vr(er,2)}, s[40:41], {vr(ui,2)} {bc} neg_lo:[1,0,1] neg_hi:[1,0,1]")
        k(f"{CVT} v{UA+j}, v{a_r}, v{a_i}")
        k(f"{CVT} v{UA+j+1}, v{a_r+1}, v{a_i+1}")
        k(f"{CVT} v{UB+j}, v{b_r}, v{b_i}")
        k(f"{CVT} v{UB+j+1}, v{b_r+1}, v{b_i+1}")
    for rl in range(2):
        k(f"ds_write_b128 v253, {vr(UA+4*rl,4)} offset:{4096*rl}")
        k(f"ds_write_b128 v254, {vr(UB+4*rl,4)} offset:{4096*rl}")
    k(f"v_and_b32 v{T}, 3, v0")
    k(f"v_bfe_u32 v{T+1}, v0, 3, 2")
    k(f"v_xor_b32 v{T+1}, v{T}, v{T+1}")
    k(f"v_lshrrev_b32 v{T+2}, 2, v0")
    k(f"v_lshlrev_b32 v{T+3}, 6, v{T+2}")
    k(f"v_lshl_add_u32 v{T+3}, v{T+1}, 4, v{T+3}")
    k(f"v_add_u32 v{T+3}, {STG}, v{T+3}")
    k(f"v_mul_u32_u24 v{T+2}, {VB_BLK}, v{T+2}")
    k("s_and_b32 s44, s2, 2")
    k(f"v_xor_b32 v{T}, s44, v{T}")
    k(f"v_lshl_add_u32 v{T+2}, v{T}, 4, v{T+2}")
    k("s_lshl_b32 s45, s2, 6")
    k("s_waitcnt lgkmcnt(0)")
    k("s_barrier")
    for j in range(4):
        k(f"ds_read_b128 {vr(4+4*j,4)}, v{T+3} offset:{4096*j}")
    k("s_waitcnt lgkmcnt(0)")
    for j in range(4):
        k(f"buffer_store_dwordx4 {vr(4+4*j,4)}, v{T+2}, s[12:15], s45 offen {ST_P2}")
        if j < 3: k(f"s_add_u32 s45, s45, {64*VB_BLK}")
    stamp_end(k, 'p2')
    k("L_p2_end:")
    k("s_endpgm")
    return k, 256, 65536

def ln_stats_rows(k, R0, R1, t, vRM, sTmp):
    for (R, o) in ((R0, 0), (R1, 4)):
        a, b = t+o, t+o+2
        k(f"v_pk_add_f32 {vr(a,2)}, {vr(R,2)}, {vr(R+2,2)}")
        k(f"v_pk_add_f32 {vr(b,2)}, {vr(R+4,2)}, {vr(R+6,2)}")
    for i in range(4, 8):
        for (R, o) in ((R0, 0), (R1, 4)):
            a = t+o+2*(i % 2)
            k(f"v_pk_add_f32 {vr(a,2)}, {vr(a,2)}, {vr(R+2*i,2)}")
    for o in (0, 4):
        k(f"v_pk_add_f32 {vr(t+o,2)}, {vr(t+o,2)}, {vr(t+o+2,2)}")
    k(f"v_add_f32 v{t}, v{t}, v{t+1}")
    k(f"v_add_f32 v{t+1}, v{t+4}, v{t+5}")
    wave_reduce2(k, t, t+1)
    k(f"v_mul_f32 v{t}, {f32(1/1024)}, v{t}")
    k(f"v_mul_f32 v{t+1}, {f32(1/1024)}, v{t+1}")
    k(f"{CVT} v{t+2}, v{t}, v{t+1}")
    k(f"v_readlane_b32 s{sTmp}, v{t}, 63")
    k(f"v_readlane_b32 s{sTmp+1}, v{t+1}, 63")
    k(f"v_lshlrev_b32 v{t+12}, 16, v{t+2}")
    k(f"v_and_b32 v{t+13}, 0xffff0000, v{t+2}")
    acc = {0: t, 1: t+2}; tmp = [t+4, t+6, t+8, t+10]
    n = 0
    for i in range(8):
        for row, R in ((0, R0), (1, R1)):
            d = tmp[n % 4]; n += 1
            sel = "op_sel_hi:[1,0]" if row == 0 else "op_sel:[0,1] op_sel_hi:[1,1]"
            k(f"v_pk_add_f32 {vr(d,2)}, {vr(R+2*i,2)}, {sr(sTmp,2)} {sel} neg_lo:[0,1] neg_hi:[0,1]")
            a = acc[row]
            if i == 0: k(f"v_pk_mul_f32 {vr(a,2)}, {vr(d,2)}, {vr(d,2)}")
            else:      k(f"v_pk_fma_f32 {vr(a,2)}, {vr(d,2)}, {vr(d,2)}, {vr(a,2)}")
    k(f"v_add_f32 v{t}, v{t}, v{t+1}")
    k(f"v_add_f32 v{t+1}, v{t+2}, v{t+3}")
    wave_reduce2(k, t, t+1)
    k(f"v_mul_f32 v{t}, {f32(1/1024)}, v{t}")
    k(f"v_mul_f32 v{t+1}, {f32(1/1024)}, v{t+1}")
    k(f"{CVT} v{t+2}, v{t}, v{t+1}")
    k(f"v_lshlrev_b32 v{t}, 16, v{t+2}")
    k(f"v_and_b32 v{t+1}, 0xffff0000, v{t+2}")
    k(f"v_add_f32 v{t}, {f32(1e-5)}, v{t}")
    k(f"v_add_f32 v{t+1}, {f32(1e-5)}, v{t+1}")
    k(f"{CVT} v{t+2}, v{t}, v{t+1}")
    k(f"v_lshlrev_b32 v{t}, 16, v{t+2}")
    k(f"v_and_b32 v{t+1}, 0xffff0000, v{t+2}")
    k(f"v_sqrt_f32 v{t}, v{t}")
    k(f"v_sqrt_f32 v{t+1}, v{t+1}")
    k(f"s_nop 0")
    k(f"{CVT} v{t+2}, v{t}, v{t+1}")
    k(f"v_lshlrev_b32 v{t}, 16, v{t+2}")
    k(f"v_and_b32 v{t+1}, 0xffff0000, v{t+2}")
    k(f"v_rcp_f32 v{t}, v{t}")
    k(f"v_rcp_f32 v{t+1}, v{t+1}")
    k(f"s_nop 0")
    k(f"v_mul_f32 v{t+12}, v{t+12}, v{t}")
    k(f"v_mul_f32 v{t+13}, v{t+13}, v{t+1}")
    k(f"v_readlane_b32 s{sTmp}, v{t}, 63")
    k(f"v_readlane_b32 s{sTmp+1}, v{t+1}, 63")
    k(f"v_readlane_b32 s{sTmp+2}, v{t+12}, 63")
    k(f"v_readlane_b32 s{sTmp+3}, v{t+13}, 63")
    for i in range(4):
        k(f"v_mov_b32 v{vRM+i}, s{sTmp+i}")

def ln_apply_rows(k, R0, R1, vRM, dst0, dst1):
    for i in range(8):
        k(f"v_pk_fma_f32 {vr(dst0+2*i,2)}, {vr(R0+2*i,2)}, {vr(vRM,2)}, {vr(vRM+2,2)} op_sel_hi:[1,0,0] neg_lo:[0,0,1] neg_hi:[0,0,1]")
        k(f"v_pk_fma_f32 {vr(dst1+2*i,2)}, {vr(R1+2*i,2)}, {vr(vRM,2)}, {vr(vRM+2,2)} op_sel:[0,1,1] op_sel_hi:[1,1,1] neg_lo:[0,0,1] neg_hi:[0,0,1]")

def gen_p3():
    k = Kern('p3_kernel')
    k("s_cmp_ge_u32 s2, 256")
    k("s_cbranch_scc1 L_p3_end")
    stamp_begin(k)
    k("s_load_dwordx2 s[4:5], s[0:1], 0")
    k("s_load_dwordx2 s[26:27], s[0:1], 80")
    k("s_load_dwordx2 s[24:25], s[0:1], 32")
    k("v_and_b32 v1, 63, v0")
    k("v_lshrrev_b32 v2, 6, v0")
    k("v_readfirstlane_b32 s28, v2")
    k("s_lshr_b32 s29, s2, 5")
    k("s_lshl_b32 s29, s29, 2")
    k("s_and_b32 s30, s2, 31")
    k("s_add_u32 s31, s29, s28")
    k("s_lshl_b32 s31, s31, 5")
    k("s_add_u32 s31, s31, s30")
    k("s_lshl_b32 s31, s31, 11")
    k("s_add_u32 s32, s31, 0x200000")
    k(f"s_mul_i32 s33, s2, {VB_BLK}")
    k("s_lshl_b32 s34, s28, 12")
    k("s_add_u32 s33, s33, s34")
    k("v_lshlrev_b32 v2, 4, v1")
    k("s_waitcnt lgkmcnt(0)")
    srd(k, 8, 4, S*D*2)
    srd(k, 12, 26, 256*VB_BLK, VB_OFF)
    srd(k, 16, 26, S*D*2, H_OFF)
    srd(k, 20, 26, S*D*2, HN_OFF)
    for i in range(4):
        k(f"s_add_u32 m0, s34, {1024*i}")
        k(f"buffer_load_dwordx4 v2, s[12:15], s33 offen lds")
        k("s_add_u32 s33, s33, 1024")
    k("s_cmp_eq_u32 s28, 3")
    k("s_cbranch_scc0 L_p3_noex")
    k("s_mov_b32 m0, 16384")
    k(f"buffer_load_dwordx4 v2, s[12:15], s33 offen lds")
    k("L_p3_noex:")
    XL = 4
    OP, Mr, Mi, TW, DR, DI, T = 20, 36, 52, 68, 100, 116, 132
    R0, R1, Y0, Y1 = 148, 164, 180, 196
    k("v_and_b32 v212, 31, v1")
    k("v_cvt_f32_u32 v212, v212")
    k("v_lshrrev_b32 v213, 5, v1")
    k("v_lshlrev_b32 v213, 2, v213")
    k("v_cvt_f32_u32 v213, v213")
    k(f"v_mul_f32 v214, {f32(1/32)}, v212")
    k("v_mul_f32 v215, v214, v213")
    gen_matrix(k, Mr, Mi, 214, 215, T)
    k(f"v_mul_f32 v214, {f32(1/1024)}, v212")
    k("v_mul_f32 v215, v214, v213")
    gen_twiddle(k, TW, 214, 215, T, scale=2.0**-21.5)
    k("v_and_b32 v2, 31, v1")
    k("v_lshrrev_b32 v3, 5, v1")
    k("v_and_b32 v216, 1, v2")
    k("v_lshrrev_b32 v217, 1, v2")
    k("v_and_b32 v218, 2, v217")
    k("v_xor_b32 v218, v218, v216")
    k("v_lshlrev_b32 v218, 4, v218")
    k("v_lshl_add_u32 v218, v217, 6, v218")
    k("v_lshl_add_u32 v218, v3, 12, v218")
    k("s_lshl_b32 s37, s28, 2")
    k("v_add_u32 v218, s37, v218")
    k("v_add_u32 v217, 1, v2")
    k("v_lshrrev_b32 v217, 1, v217")
    k("v_sub_u32 v219, 0, v217")
    k("v_and_b32 v219, 2, v219")
    k("v_add_u32 v216, 2, v216")
    k("v_xor_b32 v219, v219, v216")
    k("v_lshlrev_b32 v219, 4, v219")
    k("v_lshlrev_b32 v217, 6, v217")
    k("v_sub_u32 v219, v219, v217")
    k("v_lshlrev_b32 v217, 12, v3")
    k("v_sub_u32 v219, v219, v217")
    k("s_add_u32 s37, s37, 5120")
    k("v_add_u32 v219, s37, v219")
    k("s_mov_b32 s35, 0xffff0000")
    mark(k, 1)
    k("s_waitcnt vmcnt(0)")
    k("v_lshlrev_b32 v225, 4, v1")
    k(f"buffer_load_dwordx4 {vr(XL,4)}, v225, s[8:11], s31 offen")
    k(f"buffer_load_dwordx4 {vr(XL+4,4)}, v225, s[8:11], s31 offen offset:1024")
    k(f"buffer_load_dwordx4 {vr(XL+8,4)}, v225, s[8:11], s32 offen")
    k(f"buffer_load_dwordx4 {vr(XL+12,4)}, v225, s[8:11], s32 offen offset:1024")
    if W1PF:
        srd(k, 48, 24, S*F*2)
        k(f"s_mul_i32 s38, s2, {W1PF*128}")
        k(f"s_add_u32 s38, s38, {256*W1PF*128}")
        k("v_lshlrev_b32 v226, 7, v0")
        k(f"v_min_u32 v226, {(W1PF-1)*128}, v226")
        k("buffer_load_dword v224, v226, s[48:51], s38 offen")
    k("s_barrier")
    mark(k, 2)
    for i, (r, c) in enumerate(SEQ):
        if r < 2: k(f"ds_read_b32 v{OP+i}, v218 offset:{(8*r+c)*1024}")
        else:     k(f"ds_read_b32 v{OP+i}, v219 offset:{(32-8*r-c)*1024-5120}")
    k("s_waitcnt lgkmcnt(0)")
    stage(k, 'A', DR, DI, OP, Mr, Mi)
    cmul_pack(k, DR, DI, TW, OP, T)
    stage(k, 'B', DR, DI, OP, Mr, Mi)
    k(f"s_waitcnt vmcnt({1 if W1PF else 0})")
    for i in range(8):
        k(f"v_lshlrev_b32 v{R0+2*i}, 16, v{XL+i}")
        k(f"v_and_b32 v{R0+2*i+1}, s35, v{XL+i}")
        k(f"v_lshlrev_b32 v{R1+2*i}, 16, v{XL+8+i}")
        k(f"v_and_b32 v{R1+2*i+1}, s35, v{XL+8+i}")
    TR = 17408
    mark(k, 3)
    k("s_lshl_b32 s36, s28, 12")
    k(f"s_add_u32 s36, s36, {TR}")
    k("v_and_b32 v3, 31, v1")
    k("v_lshlrev_b32 v3, 2, v3")
    k("v_lshrrev_b32 v216, 5, v1")
    k("v_lshlrev_b32 v216, 9, v216")
    k("v_add3_u32 v3, v3, v216, s36")
    k("v_lshl_add_u32 v2, v1, 5, s36")
    for i in range(16):
        k(f"{CVT} v{OP+i}, v{DR+i}, -v{DI+i}")
    for i, (r, c) in enumerate(SEQ):
        k(f"ds_write_b32 v3, v{OP+i} offset:{(8*r+c)*128}")
    k("s_waitcnt lgkmcnt(0)")
    k(f"ds_read_b128 {vr(OP,4)}, v2")
    k(f"ds_read_b128 {vr(OP+4,4)}, v2 offset:16")
    k(f"ds_read_b128 {vr(OP+8,4)}, v2 offset:2048")
    k(f"ds_read_b128 {vr(OP+12,4)}, v2 offset:2064")
    k("s_waitcnt lgkmcnt(0)")
    for i in range(16):
        k(f"v_lshlrev_b32 v{Y0+i}, 16, v{OP+i}")
        k(f"v_and_b32 v{Y1+i}, s35, v{OP+i}")
    for i in range(8):
        k(f"v_pk_add_f32 {vr(Y0+2*i,2)}, {vr(Y0+2*i,2)}, {vr(R0+2*i,2)}")
        k(f"v_pk_add_f32 {vr(Y1+2*i,2)}, {vr(Y1+2*i,2)}, {vr(R1+2*i,2)}")
    HP = 36
    for i in range(8):
        k(f"{CVT} v{HP+i}, v{Y0+2*i}, v{Y0+2*i+1}")
        k(f"{CVT} v{HP+8+i}, v{Y1+2*i}, v{Y1+2*i+1}")
    k("v_lshlrev_b32 v2, 4, v1")
    k(f"buffer_store_dwordx4 {vr(HP,4)}, v2, s[16:19], s31 offen {ST_P3}")
    k(f"buffer_store_dwordx4 {vr(HP+4,4)}, v2, s[16:19], s31 offen offset:1024 {ST_P3}")
    k(f"buffer_store_dwordx4 {vr(HP+8,4)}, v2, s[16:19], s32 offen {ST_P3}")
    k(f"buffer_store_dwordx4 {vr(HP+12,4)}, v2, s[16:19], s32 offen offset:1024 {ST_P3}")
    for i in range(8):
        k(f"v_lshlrev_b32 v{R0+2*i}, 16, v{HP+i}")
        k(f"v_and_b32 v{R0+2*i+1}, s35, v{HP+i}")
        k(f"v_lshlrev_b32 v{R1+2*i}, 16, v{HP+8+i}")
        k(f"v_and_b32 v{R1+2*i+1}, s35, v{HP+8+i}")
    RM = 220
    mark(k, 4)
    ln_stats_rows(k, R0, R1, T, RM, 40)
    ln_apply_rows(k, R0, R1, RM, Y0, Y1)
    LP = 52
    for i in range(8):
        k(f"{CVT} v{LP+i}, v{Y0+2*i}, v{Y0+2*i+1}")
        k(f"{CVT} v{LP+8+i}, v{Y1+2*i}, v{Y1+2*i+1}")
    for i in range(8):
        k(f"v_lshlrev_b32 v{R0+2*i}, 16, v{LP+i}")
        k(f"v_and_b32 v{R0+2*i+1}, s35, v{LP+i}")
        k(f"v_lshlrev_b32 v{R1+2*i}, 16, v{LP+8+i}")
        k(f"v_and_b32 v{R1+2*i+1}, s35, v{LP+8+i}")
    ln_stats_rows(k, R0, R1, T, RM, 40)
    ln_apply_rows(k, R0, R1, RM, Y0, Y1)
    NP = 68
    for i in range(8):
        k(f"{CVT} v{NP+i}, v{Y0+2*i}, v{Y0+2*i+1}")
        k(f"{CVT} v{NP+8+i}, v{Y1+2*i}, v{Y1+2*i+1}")
    k(f"buffer_store_dwordx4 {vr(NP,4)}, v2, s[20:23], s31 offen {ST_P3}")
    k(f"buffer_store_dwordx4 {vr(NP+4,4)}, v2, s[20:23], s31 offen offset:1024 {ST_P3}")
    k(f"buffer_store_dwordx4 {vr(NP+8,4)}, v2, s[20:23], s32 offen {ST_P3}")
    k(f"buffer_store_dwordx4 {vr(NP+12,4)}, v2, s[20:23], s32 offen offset:1024 {ST_P3}")
    stamp_end(k, 'p3')
    k("L_p3_end:")
    k("s_endpgm")
    return k, 228, 33792

MF16 = 'v_mfma_f32_16x16x32_bf16'

def interleave(mf, rd, lead=0):
    out = []; n = len(mf); m = len(rd); ri = 0
    for i in range(n):
        out.append(mf[i])
        tgt = min(m, (m*(i+1) + n - 1)//n)
        while ri < tgt:
            out.append(rd[ri]); ri += 1
    out += rd[ri:]
    return out

def producer_loop(k, tag, per, issue, NS, NIT):
    mark(k, 1)
    issue()
    mark(k, 2)
    issue()
    k(f"s_waitcnt vmcnt({per})")
    mark(k, 3)
    k("s_barrier")
    for n in range(2, NS): issue()
    mark(k, 4)
    nmain = NIT - NS
    k(f"s_mov_b32 s60, 0")
    k(f"L_{tag}_ploop:")
    k(f"s_waitcnt vmcnt({(NS-2)*per})")
    k("s_barrier")
    issue()
    k("s_add_u32 s60, s60, 1")
    k(f"s_cmp_lt_u32 s60, {nmain}")
    k(f"s_cbranch_scc1 L_{tag}_ploop")
    for n in range(nmain, NIT-1):
        k(f"s_waitcnt vmcnt({(NIT-1-(n+1))*per})")
        k("s_barrier")


XB_OFF = ZW_OFF
FL_OFF = 0x2800000
BAR_OFF = 0x2810000
def gemm_kernel(tag, fused=False):
    g1 = tag == 'g1'
    k = Kern('gg_kernel' if fused else tag + '_kernel')
    ENDL = 'L_gg_end' if fused else f'L_{tag}_end'
    ASZ = 16384; STG = 32768; NS = 4 if STATIC else (5 if BAR2 else 3)
    NIT = 32 if g1 else 28
    BSTR = 7168 if g1 else 4096
    if not (fused and not g1):
        k(f"s_cmp_ge_u32 s2, 256")
        k(f"s_cbranch_scc1 {ENDL}")
    else:
        k("L_gbar:")
        k("s_load_dwordx2 s[26:27], s[0:1], 80")
        k("s_waitcnt vmcnt(0) lgkmcnt(0)")
        k("s_barrier")
        srd(k, 36, 26, 1024, BAR_OFF)
        k("v_cmp_eq_u32 vcc, 0, v0")
        k("s_and_saveexec_b64 s[34:35], vcc")
        k("s_cbranch_execz L_gbar_noarr")
        k("s_and_b32 s33, s2, 7")
        k("s_lshl_b32 s33, s33, 7")
        k("v_mov_b32 v2, 1")
        k("v_mov_b32 v3, 0")
        k("buffer_atomic_add v2, v3, s[36:39], s33 offen sc1")
        k("L_gbar_noarr:")
        k("s_mov_b64 exec, -1")
    stamp_begin(k)
    if g1:
        k("s_load_dwordx4 s[4:7], s[0:1], 32")
        k("s_load_dwordx2 s[24:25], s[0:1], 48")
    else:
        k("s_load_dwordx4 s[4:7], s[0:1], 48")
        k("s_load_dwordx2 s[24:25], s[0:1], 64")
    k("s_load_dwordx2 s[26:27], s[0:1], 80")
    k("v_and_b32 v1, 63, v0")
    k("v_lshrrev_b32 v2, 6, v0")
    k("v_readfirstlane_b32 s28, v2")
    if g1:
        k("s_and_b32 s30, s2, 1")
        k("s_lshl_b32 s30, s30, 2")
        k("s_bfe_u32 s52, s2, 0x20003")
        k("s_add_u32 s30, s30, s52")
        k("s_bfe_u32 s29, s2, 0x20001")
        k("s_mul_i32 s29, s29, 7")
        k("s_lshr_b32 s53, s2, 5")
        k("s_add_u32 s29, s29, s53")
        k("s_mov_b32 s63, 0")
        k("s_and_b32 s55, s2, 1")
        k(f"s_mul_i32 s55, s55, {16 if KHALF else 0}")
    else:
        if MAP2 == 1:
            k("s_bfe_u32 s62, s2, 0x10003")
            k("s_bfe_u32 s29, s2, 0x20001")
            k("s_lshl_b32 s29, s29, 2")
            k("s_bfe_u32 s52, s2, 0x20004")
            k("s_add_u32 s29, s29, s52")
            k("s_lshr_b32 s53, s2, 6")
            k("s_and_b32 s30, s2, 1")
            k("s_lshl_b32 s30, s30, 2")
            k("s_add_u32 s30, s30, s53")
        else:
            k("s_and_b32 s62, s2, 1")
            k("s_bfe_u32 s29, s2, 0x20001")
            k("s_lshl_b32 s29, s29, 2")
            k("s_bfe_u32 s52, s2, 0x20003")
            k("s_add_u32 s29, s29, s52")
            k("s_lshr_b32 s53, s2, 5")
            k("s_mov_b32 s30, s53")
        k("s_mov_b32 s55, 0")
        k("s_mul_i32 s63, s62, 28")
        srd(k, 56, 26, 256*64, FL_OFF) if False else None
    k("s_lshl_b32 s31, s29, 8")
    k("s_lshl_b32 s32, s30, 8")
    k("s_waitcnt lgkmcnt(0)")
    if g1:
        srd(k, 8, 4, S*F*2)
        srd(k, 12, 26, S*D*2, HN_OFF)
        srd(k, 16, 26, F*D*2, GT_OFF)
        srd(k, 20, 6, F*2)
        srd(k, 44, 26, 256*64, FL_OFF)
        k("s_lshl_b32 s33, s2, 6")
        k("v_mov_b32 v2, 0")
        k("v_lshlrev_b32 v3, 2, v0")
        k("v_cmp_gt_u32 vcc, 16, v0")
        k("s_and_saveexec_b64 s[34:35], vcc")
        k(f"s_cbranch_execz L_{tag}_nozf")
        k("buffer_store_dword v2, v3, s[44:47], s33 offen sc0 sc1")
        k(f"L_{tag}_nozf:")
        k("s_mov_b64 exec, -1")
        k("s_cmp_lt_u32 s2, 224")
        k(f"s_cbranch_scc1 L_{tag}_main")
        if W2PF:
            srd(k, 48, 24, F*S*2)
            k("s_sub_u32 s33, s2, 224")
            k("s_mul_i32 s33, s33, 458752")
            k("v_lshlrev_b32 v2, 7, v0")
            for i in range(7):
                k(f"buffer_load_dword v9, v2, s[48:51], s33 offen")
                k("s_add_u32 s33, s33, 65536")
        if XSENT:
            srd(k, 44, 26, 256*(16384 if XBF16 else 32768), 0x1E00000 if XB_SEP else VB_OFF)
            k("s_sub_u32 s33, s2, 224")
            k("s_lshl_b32 s33, s33, 17")
            k("v_lshlrev_b32 v2, 4, v0")
            for i in range(4): k(f"v_mov_b32 v{4+i}, -1")
            k("s_mov_b32 s34, 0")
            k(f"L_{tag}_clr:")
            k("buffer_store_dwordx4 v[4:7], v2, s[44:47], s33 offen sc0 sc1")
            k("s_add_u32 s33, s33, 8192")
            k("s_add_u32 s34, s34, 1")
            k("s_cmp_lt_u32 s34, 16")
            k(f"s_cbranch_scc1 L_{tag}_clr")
        k(f"s_branch {'L_gbar' if fused else ENDL}")
        k(f"L_{tag}_main:")
    else:
        srd(k, 8, 4, F*S*2)
        srd(k, 12, 26, F*D*2, GT_OFF)
        srd(k, 16, 26, S*D*2, H_OFF)
        srd(k, 20, 6, S*2)
        srd(k, 48, 24, S*D*2)
        k("s_getreg_b32 s54, hwreg(HW_REG_XCC_ID, 0, 4)")
        k("s_add_u32 s54, s54, 1")
        srd(k, 56, 26, 256*64, FL_OFF)
        k("s_lshl_b32 s33, s2, 6")
        k("v_mov_b32 v2, s54")
        k("v_mov_b32 v3, 0")
        k("v_cmp_eq_u32 vcc, 0, v0")
        k("s_and_saveexec_b64 s[34:35], vcc")
        k(f"s_cbranch_execz L_{tag}_nopub")
        k("buffer_store_dword v2, v3, s[56:59], s33 offen offset:4 sc0 sc1")
        k(f"L_{tag}_nopub:")
        k("s_mov_b64 exec, -1")
    k("s_cmp_ge_u32 s28, 4")
    k(f"s_cbranch_scc1 L_{tag}_prod")
    ACC = 8; X = 72; Y = 136; R = 200
    AA = [R+i for i in range(4)]; AB = [R+4+i for i in range(4)]
    BA = [R+8+i for i in range(4)]; BB = [R+12+i for i in range(4)]
    MISC = R + 16
    k("s_and_b32 s33, s28, 1")
    k("s_lshr_b32 s36, s28, 1")
    k("v_lshrrev_b32 v2, 4, v1")
    k("v_bfe_u32 v3, v1, 2, 2")
    k("v_and_b32 v4, 3, v1")
    k("v_lshl_add_u32 v5, v2, 2, v3")
    k("v_and_b32 v6, 7, v5")
    k("v_lshlrev_b32 v6, 1, v6")
    k("v_lshrrev_b32 v7, 1, v4")
    k("v_and_b32 v9, 1, v4")
    for (base, w, add) in ((BA, 's33', 0), (BB, 's36', ASZ)):
        k(f"s_lshl_b32 s35, {w}, 3")
        k("v_add_u32 v10, s35, v7")
        k("v_xor_b32 v10, v10, v6")
        k("v_lshlrev_b32 v10, 4, v10")
        k("v_lshl_add_u32 v10, v9, 3, v10")
        k("v_lshl_add_u32 v10, v5, 8, v10")
        if add: k(f"v_add_u32 v10, {add}, v10")
        k(f"v_mov_b32 v{base[0]}, v10")
        for t in range(1, 4): k(f"v_xor_b32 v{base[t]}, {32*t}, v10")
    for t in range(4):
        k(f"v_mov_b32 v{AA[t]}, v{BA[t]}"); k(f"v_mov_b32 v{AB[t]}, v{BB[t]}")
    BIAS = MISC
    k("v_and_b32 v2, 15, v1")
    k("v_lshlrev_b32 v2, 1, v2")
    k("s_lshl_b32 s37, s36, 7")
    k("s_add_u32 s37, s37, s31")
    for t in range(4):
        k(f"buffer_load_ushort v{BIAS+t}, v2, s[20:23], s37 offen offset:{32*t}")
    OV = MISC+4
    k("v_and_b32 v2, 15, v1")
    k("v_lshlrev_b32 v2, 11, v2")
    k("v_lshrrev_b32 v3, 4, v1")
    k(f"v_lshl_add_u32 v{OV}, v3, 4, v2")
    k("s_lshl_b32 s38, s29, 7")
    k("s_lshl_b32 s39, s36, 6")
    k("s_add_u32 s38, s38, s39")
    k("s_lshl_b32 s38, s38, 11")
    k("s_add_u32 s38, s38, s32")
    k("s_lshl_b32 s39, s33, 7")
    k("s_add_u32 s38, s38, s39")
    if not g1:
        HL = MISC+6
        NV = HL+16
        if OUT_TOUCH:
            k("s_lshl_b32 s39, s62, 16")
            k("s_add_u32 s39, s39, s38")
            k(f"buffer_load_dword v{NV}, v{OV}, s[48:51], s39 offen")
            NV += 1
    else:
        NV = MISC+5
    def reads(dst, buf=None):
        r = []
        for ks in range(2):
            b = dst + 32*ks; ko = 32*ks
            for t in range(4):
                if buf is None: regs = (AA[t], AB[t]); bo = 0
                else:
                    regs = (BA[t], BB[t]) if buf < 2 else (AA[t], AB[t]); bo = (buf % 2)*STG
                for (o, a) in ((0, regs[0]), (16, regs[1])):
                    r.append(f"ds_read_b64_tr_b16 {vr(b+o+4*t,2)}, v{a} offset:{bo+ko*256}")
                    r.append(f"ds_read_b64_tr_b16 {vr(b+o+4*t+2,2)}, v{a} offset:{bo+(ko+16)*256}")
        return r
    def mfmas(src):
        m = []
        for ks in range(2):
            b = src + 32*ks
            order = sorted([(td, tn) for td in range(4) for tn in range(4)], key=lambda x: (max(x), x))
            if FAKE32:
                for i in range(8):
                    a = ACC + 16*(i % 4)
                    m.append(f"{MF32} {vr(a,16)}, {vr(b+4*(i%4),4)}, {vr(b+16+4*((i//2)%4),4)}, {vr(a,16)}")
                continue
            for td, tn in order:
                a = ACC + 4*(4*tn+td)
                m.append(f"{MF16} {vr(a,4)}, {vr(b+4*td,4)}, {vr(b+16+4*tn,4)}, {vr(a,4)}")
        return m
    def sched(mf, rd, extra):
        out = []; ri = 0; ei = 0
        for i, m in enumerate(mf):
            out.append(m)
            if ri < len(rd):
                for _ in range(RPAT[i % len(RPAT)]):
                    if ri < len(rd): out.append(rd[ri]); ri += 1
            elif ei < len(extra):
                out.append(extra[ei]); ei += 1
        out += rd[ri:] + extra[ei:]
        return out
    def upd():
        e = [f"s_add_u32 s34, s34, {STG}", f"s_cmp_eq_u32 s34, {STG*NS}", "s_cselect_b32 s34, 0, s34"]
        e += [f"v_add_u32 v{AA[t]}, s34, v{BA[t]}" for t in range(4)]
        e += [f"v_add_u32 v{AB[t]}, s34, v{BB[t]}" for t in range(4)]
        return e
    for i in range(64): k(f"v_mov_b32 v{ACC+i}, 0")
    k("s_mov_b32 s34, 0")
    k("s_mov_b32 s35, 0")
    if fused and not g1: k("s_barrier")
    mark(k, 1)
    k("s_barrier")
    mark(k, 2)
    if STATIC:
        for t in range(4):
            k(f"v_add_u32 v{AA[t]}, 65536, v{BA[t]}"); k(f"v_add_u32 v{AB[t]}, 65536, v{BB[t]}")
        for x in reads(X, 0): k(x)
        k(f"L_{tag}_cloop:")
        for u in range(4):
            cur, nxt = (X, Y) if u % 2 == 0 else (Y, X)
            k("s_waitcnt lgkmcnt(0)")
            k("s_barrier")
            ex = ["s_add_u32 s35, s35, 4", f"s_cmp_lt_u32 s35, {NIT-4}"] if u == 3 else []
            for x in sched(mfmas(cur), reads(nxt, (u+1) % 4), ex): k(x)
        k(f"s_cbranch_scc1 L_{tag}_cloop")
        for u in range(2):
            cur, nxt = (X, Y) if u % 2 == 0 else (Y, X)
            k("s_waitcnt lgkmcnt(0)")
            k("s_barrier")
            for x in sched(mfmas(cur), reads(nxt, u+1), []): k(x)
    else:
        for x in reads(X): k(x)
        for x in upd(): k(x)
        k(f"L_{tag}_cloop:")
        k("s_waitcnt lgkmcnt(0)")
        if LOOPSTAMP:
            k(f"s_cmp_eq_u32 s35, {LOOPSTAMP}")
            k(f"s_cbranch_scc0 L_{tag}_nolatch")
            for i in range(4): k(f"s_mov_b64 s[{96-20+2*i}:{97-20+2*i}], s[{66+2*i}:{67+2*i}]") if False else None
            k("s_sub_u32 s90, s68, s66"); k("s_sub_u32 s91, s70, s68"); k("s_sub_u32 s92, s72, s70")
            k("s_memtime s[82:83]"); k("s_waitcnt lgkmcnt(0)"); k("s_sub_u32 s93, s82, s72")
            k(f"L_{tag}_nolatch:")
        k("s_barrier")
        if LOOPSTAMP: k("s_memtime s[66:67]")
        for x in sched(mfmas(X), reads(Y), upd()): k(x)
        if LOOPSTAMP: k("s_memtime s[68:69]")
        k("s_waitcnt lgkmcnt(0)")
        if not BAR2: k("s_barrier")
        if LOOPSTAMP: k("s_memtime s[70:71]")
        for x in sched(mfmas(Y), reads(X), upd() + ["s_add_u32 s35, s35, 2", f"s_cmp_lt_u32 s35, {NIT-2}"]): k(x)
        if LOOPSTAMP: k("s_memtime s[72:73]")
        k(f"s_cbranch_scc1 L_{tag}_cloop")
    if LOOPSTAMP:
        k("s_waitcnt lgkmcnt(0)")
        for i in range(4):
            k(f"s_mov_b32 s{66+2*i}, s{90+i}"); k(f"s_mov_b32 s{67+2*i}, 0")
    XID = 3
    if not g1:
        k(f"s_xor_b32 s42, s2, {8 if MAP2 == 1 else 1}")
        k("s_lshl_b32 s39, s42, 6")
        k("v_mov_b32 v4, 0")
        k(f"buffer_load_dword v{XID}, v4, s[56:59], s39 offen offset:4 sc0 sc1")
        k("s_lshl_b32 s39, s62, 16")
        k("s_add_u32 s39, s39, s38")
        for tnl in range(2):
            for tp in range(2):
                k(f"s_add_u32 s40, s39, {tnl*16*2048 + tp*64}")
                k(f"buffer_load_dwordx4 {vr(HL+8*tnl+4*tp,4)}, v{OV}, s[16:19], s40 offen")
    k("s_waitcnt lgkmcnt(0)")
    k("s_barrier")
    for x in sched(mfmas(X), reads(Y, 3 if STATIC else None), []): k(x)
    k("s_waitcnt lgkmcnt(0)")
    for x in mfmas(Y): k(x)
    mark(k, 3)
    k("s_mov_b32 s40, 0xffff0000")
    T = X
    def pack_swap(P):
        k(f"v_permlane32_swap_b32 v{P}, v{P+2}")
        k(f"v_permlane32_swap_b32 v{P+1}, v{P+3}")
        k(f"v_permlane16_swap_b32 v{P}, v{P+2}")
        k(f"v_permlane16_swap_b32 v{P+1}, v{P+3}")
    def store_lines(P0, P1, tmp, so, srdreg):
        for i in range(4): k(f"v_mov_b32 v{tmp+i}, v{P0+i}")
        for i in range(4): k(f"v_mov_b32_dpp v{P0+i}, v{P1+i} row_ror:8 row_mask:0xf bank_mask:0xc")
        for i in range(4): k(f"v_mov_b32_dpp v{P1+i}, v{tmp+i} row_ror:8 row_mask:0xf bank_mask:0x3")
        fl = ST_G1 if g1 else ST_G2
        k(f"s_add_u32 s41, s38, {so}")
        k(f"buffer_store_dwordx4 {vr(P0,4)}, v{OVS}, s[{srdreg}:{srdreg+3}], s41 offen {fl}")
        k(f"s_add_u32 s41, s38, {so + 8*2048}")
        k(f"buffer_store_dwordx4 {vr(P1,4)}, v{OVS}, s[{srdreg}:{srdreg+3}], s41 offen {fl}")
    OVS = 3
    def set_ovs():
        k("v_and_b32 v2, 7, v1")
        k("v_lshlrev_b32 v2, 11, v2")
        k("v_bfe_u32 v3, v1, 3, 1")
        k("v_lshl_add_u32 v2, v3, 6, v2")
        k("v_lshrrev_b32 v3, 4, v1")
        k(f"v_lshl_add_u32 v{OVS}, v3, 4, v2")
    if g1:
        SH = 32768 if STATIC else (98304 if BAR2 else 65536)
        k("s_lshl_b32 s39, s28, 13")
        k(f"s_add_u32 s39, s39, {SH}")
        k("v_lshl_add_u32 v2, v1, 4, s39")
        for i in range(8): k(f"ds_write_b128 v2, {vr(ACC+32+4*i,4)} offset:{1024*i}")
        k("s_waitcnt vmcnt(0) lgkmcnt(0)")
        k("s_barrier")
        mark(k, 4)
        k(f"L_{tag}_epi:")
        for t in range(2): k(f"v_lshlrev_b32 v{BIAS+t}, 16, v{BIAS+t}")
        c0 = -2.0*math.log2(math.e)*math.sqrt(2.0/math.pi); c1 = c0*0.044715
        k("s_mov_b32 s40, 0xffff0000")
        k(f"s_mov_b32 s42, {f32(c1)}")
        k(f"v_mov_b32 v4, {f32(c0)}"); k(f"v_mov_b32 v5, {f32(c0)}")
        k(f"v_mov_b32 v6, 1.0"); k(f"v_mov_b32 v7, 1.0")
        set_ovs()
        for tn in range(2):
            for tp in range(2):
                P = T + 4*tp + 24*tn
                for q in range(4):
                    td = 2*tp + q//2
                    src = ACC + 4*(4*tn+td) + 2*(q % 2)
                    u, w = T+8+4*q, T+10+4*q
                    gelu_pair(k, src, u, w, BIAS+tn, P+q)
                pack_swap(P)
            store_lines(T+24*tn, T+24*tn+4, T+32, tn*16*2048, 16)
    else:
        k("s_waitcnt vmcnt(0)")
        srd(k, 44, 26, 256*(16384 if XBF16 else 32768), 0x1E00000 if XB_SEP else VB_OFF)
        srd(k, 56, 26, 256*64, FL_OFF)
        k(f"s_xor_b32 s42, s2, {8 if MAP2 == 1 else 1}")
        k(f"s_lshl_b32 s43, s42, {14 if XBF16 else 15}")
        k(f"s_lshl_b32 s39, s28, {12 if XBF16 else 13}")
        k("s_add_u32 s43, s43, s39")
        k("v_lshlrev_b32 v2, 4, v1")
        k("v_mov_b32 v4, 0")
        k("s_lshl_b32 s39, s42, 6")
        k("s_mov_b32 s41, 0")
        k("v_readfirstlane_b32 s61, v3")
        k("s_cmp_eq_u32 s61, 0")
        k(f"s_cbranch_scc0 L_{tag}_xpolld")
        k(f"L_{tag}_xpoll:")
        k("buffer_load_dword v3, v4, s[56:59], s39 offen offset:4 sc0 sc1")
        k("s_waitcnt vmcnt(0)")
        k("v_readfirstlane_b32 s61, v3")
        k("s_add_u32 s41, s41, 1")
        k("s_cmp_ge_u32 s41, 0x40000")
        k(f"s_cbranch_scc1 L_{tag}_xpolld")
        k("s_cmp_eq_u32 s61, 0")
        k(f"s_cbranch_scc1 L_{tag}_xpoll")
        k(f"L_{tag}_xpolld:")
        k("s_cmp_eq_u32 s61, s54")
        k(f"s_cselect_b32 s61, {0 if FORCE_FAR else 1}, 0")
        def sends(flags, lab):
            k("s_cmp_eq_u32 s62, 0")
            k(f"s_cbranch_scc1 L_{tag}_k0{lab}")
            for half, l2 in ((0, None), (32, f"L_{tag}_k0{lab}:")):
                if l2: k(l2)
                if XBF16:
                    for i in range(16): k(f"{CVT} v{Y+32+i}, v{ACC+half+2*i}, v{ACC+half+2*i+1}")
                    for i in range(4):
                        k(f"s_add_u32 s39, s43, {1024*i}")
                        k(f"buffer_store_dwordx4 {vr(Y+32+4*i,4)}, v2, s[44:47], s39 offen {flags}")
                else:
                    for i in range(8):
                        k(f"s_add_u32 s39, s43, {1024*i}")
                        k(f"buffer_store_dwordx4 {vr(ACC+half+4*i,4)}, v2, s[44:47], s39 offen {flags}")
                if half == 0: k(f"s_branch L_{tag}_k1{lab}")
            k(f"L_{tag}_k1{lab}:")
        def handoff(stf, ldf, lab):
            sends(stf, lab)
            k("s_waitcnt vmcnt(0)")
            k("s_lshl_b32 s39, s42, 6")
            k("s_lshl_b32 s41, s28, 2")
            k("s_add_u32 s39, s39, s41")
            k("v_mov_b32 v3, 1")
            k("s_mov_b64 exec, 1")
            k(f"buffer_store_dword v3, v4, s[56:59], s39 offen offset:16 {stf}")
            k("s_lshl_b32 s39, s2, 6")
            k("s_add_u32 s39, s39, s41")
            k("s_mov_b32 s41, 0")
            k(f"L_{tag}_poll{lab}:")
            k(f"buffer_load_dword v3, v4, s[56:59], s39 offen offset:16 {ldf}")
            k("s_waitcnt vmcnt(0)")
            k("v_readfirstlane_b32 s43, v3")
            k("s_add_u32 s41, s41, 1")
            k("s_cmp_ge_u32 s41, 0x40000")
            k(f"s_cbranch_scc1 L_{tag}_polld{lab}")
            k("s_cmp_eq_u32 s43, 1")
            k(f"s_cbranch_scc0 L_{tag}_poll{lab}")
            k(f"L_{tag}_polld{lab}:")
            k("s_mov_b64 exec, -1")
            k(f"s_lshl_b32 s43, s2, {14 if XBF16 else 15}")
            k(f"s_lshl_b32 s39, s28, {12 if XBF16 else 13}")
            k("s_add_u32 s43, s43, s39")
            for i in range(4 if XBF16 else 8):
                k(f"s_add_u32 s39, s43, {1024*i}")
                k(f"buffer_load_dwordx4 {vr(Y+(32 if XBF16 else 0)+4*i,4)}, v2, s[44:47], s39 offen {ldf}")
        if XSENT:
            assert XBF16
            sends('sc0 sc1', 's')
            k("s_lshl_b32 s43, s2, 14")
            k("s_lshl_b32 s39, s28, 12")
            k("s_add_u32 s43, s43, s39")
            k("s_mov_b32 s41, 0")
            k("s_waitcnt vmcnt(0)")
            k(f"L_{tag}_spoll:")
            for i in range(4):
                k(f"s_add_u32 s39, s43, {1024*i}")
                k(f"buffer_load_dwordx4 {vr(Y+32+4*i,4)}, v2, s[44:47], s39 offen sc0 sc1")
            k("s_add_u32 s41, s41, 1")
            k("s_waitcnt vmcnt(0)")
            k(f"v_max3_u32 v3, v{Y+32}, v{Y+33}, v{Y+34}")
            for i in range(3, 15, 2): k(f"v_max3_u32 v3, v3, v{Y+32+i}, v{Y+32+i+1}")
            k(f"v_max_u32 v3, v3, v{Y+47}")
            k("v_cmp_eq_u32 vcc, -1, v3")
            k("s_nop 4")
            k("s_cmp_ge_u32 s41, 0x20000")
            k(f"s_cbranch_scc1 L_{tag}_spolld")
            k(f"s_cbranch_vccnz L_{tag}_spoll")
            k(f"L_{tag}_spolld:")
        else:
            k("s_cmp_eq_u32 s61, 1")
            k(f"s_cbranch_scc0 L_{tag}_far")
            handoff('', 'sc1', 'n')
            k(f"s_branch L_{tag}_xdone")
            k(f"L_{tag}_far:")
            handoff('sc0 sc1', 'sc0 sc1', 'f')
            k(f"L_{tag}_xdone:")
        k("s_cmp_eq_u32 s62, 0")
        k(f"s_cbranch_scc1 L_{tag}_kept")
        for i in range(32): k(f"v_mov_b32 v{ACC+i}, v{ACC+32+i}")
        k(f"v_mov_b32 v{BIAS}, v{BIAS+2}"); k(f"v_mov_b32 v{BIAS+1}, v{BIAS+3}")
        k(f"L_{tag}_kept:")
        mark(k, 4)
        k(f"v_lshlrev_b32 v{BIAS}, 16, v{BIAS}"); k(f"v_lshlrev_b32 v{BIAS+1}, 16, v{BIAS+1}")
        if PERTURB:
            k(f"v_add_f32 v{BIAS}, {f32(PERTURB)}, v{BIAS}"); k(f"v_add_f32 v{BIAS+1}, {f32(PERTURB)}, v{BIAS+1}")
        k("s_lshl_b32 s39, s62, 16")
        k("s_add_u32 s38, s38, s39")
        set_ovs()
        for tnl in range(2):
            for tp in range(2):
                i0 = 4*tnl + 2*tp
                if XBF16: k(f"s_waitcnt vmcnt({3 - i0//2})")
                else:     k(f"s_waitcnt vmcnt({6 - i0 if i0 < 6 else 0})")
                if i0 == 0: mark(k, 5)
                P = T + 4*tp + 24*tnl
                for q in range(4):
                    td = 2*tp + q//2
                    a = ACC + 4*(4*tnl+td) + 2*(q % 2); y = Y + 4*(4*tnl+td) + 2*(q % 2)
                    u, w = T+8+4*q, T+10+4*q
                    if XBF16:
                        pk = Y + 32 + (4*(4*tnl+td) + 2*(q % 2))//2
                        k(f"v_lshlrev_b32 v{y}, 16, v{pk}")
                        k(f"v_and_b32 v{y+1}, s40, v{pk}")
                    k(f"v_pk_add_f32 {vr(a,2)}, {vr(a,2)}, {vr(y,2)}")
                    if EMU_Y:
                        k(f"{CVT} v{w}, v{a}, v{a+1}")
                        k(f"v_lshlrev_b32 v{u}, 16, v{w}")
                        k(f"v_and_b32 v{u+1}, s40, v{w}")
                        k(f"v_add_f32 v{u}, v{u}, v{BIAS+tnl}")
                        k(f"v_add_f32 v{u+1}, v{u+1}, v{BIAS+tnl}")
                    else:
                        k(f"v_add_f32 v{u}, v{a}, v{BIAS+tnl}")
                        k(f"v_add_f32 v{u+1}, v{a+1}, v{BIAS+tnl}")
                    k(f"{CVT} v{P+q}, v{u}, v{u+1}")
                pack_swap(P)
                for q in range(4):
                    u, w = T+8+4*q, T+10+4*q
                    hp = HL+8*tnl+4*tp+q
                    k(f"v_lshlrev_b32 v{u}, 16, v{P+q}")
                    k(f"v_and_b32 v{u+1}, s40, v{P+q}")
                    k(f"v_lshlrev_b32 v{w}, 16, v{hp}")
                    k(f"v_and_b32 v{w+1}, s40, v{hp}")
                    k(f"v_pk_add_f32 {vr(u,2)}, {vr(u,2)}, {vr(w,2)}")
                    k(f"{CVT} v{P+q}, v{u}, v{u+1}")
            store_lines(T+24*tnl, T+24*tnl+4, T+32, tnl*16*2048, 48)
    stamp_end(k, tag)
    k(f"s_branch {'L_gbar' if (fused and g1) else ENDL}")
    k(f"L_{tag}_prod:")
    if PPRIO: k(f"s_setprio {PPRIO}")
    k("s_sub_u32 s33, s28, 4")
    k("v_lshrrev_b32 v2, 4, v1")
    k("s_and_b32 s34, s33, 1")
    k("s_lshl_b32 s34, s34, 2")
    k("v_add_u32 v3, s34, v2")
    k("v_lshlrev_b32 v3, 1, v3")
    k("v_and_b32 v4, 15, v1")
    k("v_xor_b32 v3, v3, v4")
    k("v_lshlrev_b32 v3, 4, v3")
    k("v_lshl_add_u32 v8, v2, 11, v3")
    k(f"v_mul_u32_u24 v2, {BSTR}, v2")
    k("v_add_u32 v9, v2, v3")
    k("s_lshl_b32 s34, s33, 13")
    k("s_add_u32 s40, s32, s34")
    k(f"s_mul_i32 s34, s33, {4*BSTR}")
    k("s_add_u32 s41, s31, s34")
    k("s_lshl_b32 s42, s33, 10")
    k("s_mov_b32 s43, 0")
    k("s_add_u32 s46, s52, s53")
    k("s_mov_b32 s47, 0")
    def issue():
        k("s_add_u32 s58, s46, s47")
        k("s_and_b32 s58, s58, 3")
        k("s_cmp_eq_u32 s58, 0")
        k(f"s_cselect_b32 s58, {3+NIT}, {NIT-1}")
        k("s_add_u32 s58, s58, s47")
        k("s_add_u32 s58, s58, s55")
        k(f"s_cmp_ge_u32 s58, {2*NIT}")
        k(f"s_cselect_b32 s59, {2*NIT}, {NIT}")
        k(f"s_cmp_ge_u32 s58, {NIT}")
        k(f"s_cselect_b32 s59, s59, 0")
        k("s_sub_u32 s58, s58, s59")
        if not KPERM: k("s_mov_b32 s58, s47")
        if KWRAP: k(f"s_and_b32 s58, s58, {KWRAP-1}")
        k("s_add_u32 s58, s58, s63")
        k(f"s_mul_i32 s59, s58, {64*BSTR}")
        k(f"s_lshl_b32 s58, s58, 17")
        k("s_add_u32 s58, s58, s40")
        k("s_add_u32 s59, s59, s41")
        k("s_add_u32 s44, s43, s42")
        for m in range(4):
            k(f"s_add_u32 m0, s44, {4096*m}")
            k(f"s_add_u32 s45, s58, {m*16*2048}")
            k(f"buffer_load_dwordx4 v8, s[12:15], s45 offen lds")
            k(f"s_add_u32 m0, s44, {ASZ+4096*m}")
            k(f"s_add_u32 s45, s59, {m*16*BSTR}")
            k(f"buffer_load_dwordx4 v9, s[8:11], s45 offen {NT_B1 if g1 else NT_B2} lds")
        k("s_add_u32 s47, s47, 1")
        k(f"s_add_u32 s43, s43, {STG}")
        k(f"s_cmp_eq_u32 s43, {STG*NS}")
        k("s_cselect_b32 s43, 0, s43")
    if fused and not g1:
        k("s_cmp_eq_u32 s33, 0")
        k("s_cbranch_scc0 L_gbar_nopoll")
        srd(k, 36, 26, 1024, BAR_OFF)
        k("v_and_b32 v2, 7, v1")
        k("v_lshlrev_b32 v2, 7, v2")
        k("s_mov_b32 s34, 0")
        k("L_gbar_poll:")
        if PSLEEP: k(f"s_sleep {PSLEEP}")
        k(f"buffer_load_dword v3, v2, s[36:39], 0 offen {POLLF}")
        k("s_waitcnt vmcnt(0)")
        k("v_cmp_gt_u32 vcc, 32, v3")
        k("s_add_u32 s34, s34, 1")
        k("s_cmp_ge_u32 s34, 0x20000")
        k("s_cbranch_scc1 L_gbar_nopoll")
        k("s_cbranch_vccnz L_gbar_poll")
        k("L_gbar_nopoll:")
        k("s_barrier")
    if BAR2:
        per = 8
        mark(k, 1)
        issue(); mark(k, 2); issue()
        k(f"s_waitcnt vmcnt({per})")
        mark(k, 3)
        k("s_barrier")
        issue(); issue()
        mark(k, 4)
        k("s_mov_b32 s60, 0")
        k(f"L_{tag}_ploop:")
        k(f"s_waitcnt vmcnt({per})")
        k("s_barrier")
        issue(); issue()
        k("s_add_u32 s60, s60, 2")
        k(f"s_cmp_lt_u32 s60, {NIT-4}")
        k(f"s_cbranch_scc1 L_{tag}_ploop")
        k(f"s_waitcnt vmcnt({per})")
        k("s_barrier")
        k("s_waitcnt vmcnt(0)")
        k("s_barrier")
    else:
        producer_loop(k, tag, 8, issue, 3 if STATIC else NS, NIT)
    if g1:
        k("s_and_b32 s34, s33, 1")
        k("s_lshr_b32 s36, s33, 1")
        k("v_and_b32 v2, 15, v1")
        k("v_lshlrev_b32 v2, 1, v2")
        k("s_lshl_b32 s37, s36, 7")
        k("s_add_u32 s37, s37, s31")
        for t in range(2):
            k(f"buffer_load_ushort v{BIAS+t}, v2, s[20:23], s37 offen offset:{64+32*t}")
        k("v_and_b32 v2, 15, v1")
        k("v_lshlrev_b32 v2, 11, v2")
        k("v_lshrrev_b32 v3, 4, v1")
        k(f"v_lshl_add_u32 v{OV}, v3, 4, v2")
        k("s_lshl_b32 s38, s29, 7")
        k("s_lshl_b32 s39, s36, 6")
        k("s_add_u32 s38, s38, s39")
        k("s_add_u32 s38, s38, 32")
        k("s_lshl_b32 s38, s38, 11")
        k("s_add_u32 s38, s38, s32")
        k("s_lshl_b32 s39, s34, 7")
        k("s_add_u32 s38, s38, s39")
        k("s_lshl_b32 s39, s33, 13")
        k(f"s_add_u32 s39, s39, {32768 if STATIC else (98304 if BAR2 else 65536)}")
        k("v_lshl_add_u32 v2, v1, 4, s39")
        k("s_setprio 0")
        k("s_barrier")
        for i in range(8): k(f"ds_read_b128 {vr(ACC+4*i,4)}, v2 offset:{1024*i}")
        k("s_waitcnt vmcnt(0) lgkmcnt(0)")
        k(f"s_branch L_{tag}_epi")
    stamp_end(k, tag, tid=256, slot=256, sfx='p')
    if fused and g1:
        return k, NV, STG*NS
    k(f"{ENDL}:")
    k("s_endpgm")
    return k, NV, STG*NS

def gelu_pair(k, src, u, w, bias, dst):
    if EMU_U:
        k(f"{CVT} v{w}, v{src}, v{src+1}")
        k(f"v_lshlrev_b32 v{u}, 16, v{w}")
        k(f"v_and_b32 v{u+1}, s40, v{w}")
        k(f"v_add_f32 v{u}, v{u}, v{bias}")
        k(f"v_add_f32 v{u+1}, v{u+1}, v{bias}")
        k(f"{CVT} v{w}, v{u}, v{u+1}")
        k(f"v_lshlrev_b32 v{u}, 16, v{w}")
        k(f"v_and_b32 v{u+1}, s40, v{w}")
    else:
        k(f"v_add_f32 v{u}, v{src}, v{bias}")
        k(f"v_add_f32 v{u+1}, v{src+1}, v{bias}")
    k(f"v_pk_mul_f32 {vr(w,2)}, {vr(u,2)}, {vr(u,2)}")
    k(f"v_pk_fma_f32 {vr(w,2)}, {vr(w,2)}, s[42:43], {vr(4,2)} op_sel_hi:[1,0,1]")
    k(f"v_pk_mul_f32 {vr(w,2)}, {vr(w,2)}, {vr(u,2)}")
    k(f"v_exp_f32 v{w}, v{w}")
    k(f"v_exp_f32 v{w+1}, v{w+1}")
    k(f"s_nop 0")
    k(f"v_pk_add_f32 {vr(w,2)}, {vr(w,2)}, {vr(6,2)}")
    k(f"v_rcp_f32 v{w}, v{w}")
    k(f"v_rcp_f32 v{w+1}, v{w+1}")
    k(f"s_nop 0")
    k(f"v_pk_mul_f32 {vr(w,2)}, {vr(w,2)}, {vr(u,2)}")
    k(f"{CVT} v{dst}, v{w}, v{w+1}")

RPAT = [2, 1]
FUSE_GG = 0
NT_B1 = ''
NT_B2 = ''
NT_X = ''
NT_W = ''
KHALF = 1
XSENT = 1
XBF16 = 1
EMU_Y = 1
PERTURB = 0
PSLEEP = 4
POLLF = 'sc0 sc1'
STATIC = 1
LOOPSTAMP = 0
BAR2 = 0
FAKE32 = 0
MAP2 = 0
XB_SEP = 1
FORCE_FAR = 0
PPRIO = 3
PFD = 0
KPERM = 1
FAKE16 = 0
NS1 = 3
NS2 = 3
KWRAP = 0
W2PF = True
EMU_U = True
RPG1 = 3
RPG2 = 4
def gen_gg():
    k1, nv1, l1 = gemm_kernel('g1', True)
    k2, nv2, l2 = gemm_kernel('g2', True)
    k1.l += k2.l
    return k1, max(nv1, nv2), max(l1, l2)
def gen_g1(): return gemm_kernel('g1')
def gen_g2(): return gemm_kernel('g2')

KERNELS = [('p1_kernel', gen_p1, (256,1,1), (256,1,1)), ('p2_kernel', gen_p2, (257,1,1), (256,1,1)), ('p3_kernel', gen_p3, (256,1,1), (256,1,1)),
 ('g1_kernel', gen_g1, (256,1,1), (512,1,1)), ('g2_kernel', gen_g2, (256,1,1), (512,1,1))]

def build_all(kernels=None):
    ks = []
    if kernels is None:
        kernels = KERNELS[:3] + [('gg_kernel', gen_gg, (256,1,1), (512,1,1))] if FUSE_GG else KERNELS
    for name, fn, grid, block in kernels:
        k, nv, lds = fn()
        if ST_ALL:
            k.l = [ (x + ' ' + ST_ALL) if ('buffer_store' in x and 'sc1' not in x and 'sc0' not in x and ' nt' not in x) else x for x in k.l]
        if name.startswith('g'):
            if NO_DMA: k.l = [x for x in k.l if not ('offen lds' in x)]
            if NO_MFMA: k.l = [x for x in k.l if 'v_mfma' not in x]
            if NO_ADV: k.l = [x for x in k.l if not (x.strip().startswith('s_add_u32 s40, s40,') or x.strip().startswith('s_add_u32 s41, s41,'))]
            if NO_A: k.l = [x for x in k.l if not ('s[12:15]' in x and 'offen lds' in x)]
            if NO_B: k.l = [x for x in k.l if not ('s[8:11]' in x and 'offen lds' in x)]
            if NO_BAR: k.l = [x for x in k.l if 's_barrier' not in x]
            if NO_READ: k.l = [x for x in k.l if 'ds_read_b64_tr' not in x]
        ks.append((name, k, nv, lds, grid, block))
    hdr = open('sequential_preLN__spectral_gfnet__mixer_token_mlp__prompt.s.ref').read().split('; Override launch')[0]
    s = hdr
    for name, k, nv, lds, grid, block in ks:
        s += f"; @launch kernel={name} grid=({grid[0]},{grid[1]},{grid[2]}) block=({block[0]},{block[1]},{block[2]}) lds={lds}\n"
    s += '.amdgcn_target "amdgcn-amd-amdhsa--gfx950"\n.text\n'
    for name, k, nv, lds, grid, block in ks: s += k.text()
    s += 'L_text_end:\n'
    s += '.section .rodata,"a"\n'
    for name, k, nv, lds, grid, block in ks: s += descriptor(name, nv)
    return s, ks

if __name__ == '__main__':
    s, ks = build_all()
    open(sys.argv[1] if len(sys.argv) > 1 else 'out.s', 'w').write(s)
    print('written', len(s), 'bytes')
```

```python
import sys, math, struct
sys.path.insert(0, 'work')
from asmlib import *

ZW_OFF = 0x0          ; ZW_SIZE = 257*32768
ZD_OFF = 0x0 ; WB_OFF = 0x480000
VB_OFF = 0x900000     ; VB_BLK = 257*64 ; VB_SIZE = 256*VB_BLK + 1024
H_OFF  = 0xE00000
HN_OFF = 0x1200000
GT_OFF = 0x1600000
WS_USED = 0x1D00000
S, D, F = 2048, 1024, 3584

def f32(x):
    return '0x%08x' % struct.unpack('<I', struct.pack('<f', x))[0]

CVT = 'v_cvt_pk_bf16_f32'
STAMP = False
NO_DMA = False
NO_MFMA = False
NO_READ = False
NO_BAR = False
NO_ADV = False
NO_A = False
NO_B = False
STAMP_OFF = 0x3000000
KIDX = {'p1':0,'p2':1,'p3':2,'g1':3,'g2':4}
NMARK = 8
def mark(k, i):
    if STAMP and not (LOOPSTAMP and k.name.startswith('g') and 1 <= i <= 4): k(f"s_memrealtime s[{64+2*i}:{65+2*i}]")
def stamp_begin(k):
    if STAMP:
        for i in range(1, NMARK): k(f"s_mov_b64 s[{64+2*i}:{65+2*i}], 0")
        k("s_memrealtime s[64:65]")
        k("s_memtime s[94:95]")
def stamp_end(k, tag, tid=0, slot=0, sfx=''):
    if not STAMP: return
    mark(k, 6)
    k("s_waitcnt vmcnt(0) lgkmcnt(0)")
    mark(k, 7)
    k("s_memtime s[84:85]")
    k("s_load_dwordx2 s[88:89], s[0:1], 80")
    k("s_waitcnt lgkmcnt(0)")
    k(f"s_add_u32 s88, s88, {STAMP_OFF + KIDX[tag]*65536}")
    k("s_addc_u32 s89, s89, 0")
    k(f"s_add_u32 s87, s2, {slot}")
    k("s_lshl_b32 s87, s87, 7")
    k("v_mov_b32 v8, s87")
    k(f"v_cmp_eq_u32 vcc, {tid}, v0" if tid <= 64 else f"v_cmp_eq_u32 vcc, {hex(tid)}, v0")
    k("s_and_saveexec_b64 s[86:87], vcc")
    k(f"s_cbranch_execz L_{tag}_nostamp{sfx}")
    for i in range(0, NMARK, 2):
        for j in range(4): k(f"v_mov_b32 v{4+j}, s{64+2*i+j}")
        k(f"global_store_dwordx4 v8, v[4:7], s[88:89] offset:{8*i}")
        k("s_nop 1")
    k("v_mov_b32 v4, s94"); k("v_mov_b32 v5, s95"); k("v_mov_b32 v6, s84"); k("v_mov_b32 v7, s85")
    k("global_store_dwordx4 v8, v[4:7], s[88:89] offset:64")
    k("s_getreg_b32 s84, hwreg(HW_REG_XCC_ID, 0, 4)")
    k("s_nop 1")
    k("v_mov_b32 v4, s84")
    k("global_store_dword v8, v4, s[88:89] offset:80")
    k(f"L_{tag}_nostamp{sfx}:")

MF32 = 'v_mfma_f32_32x32x16_bf16'

CODEPF = 1
W1PF = 0
W1L2 = 0
ST_FLAGS = ''
ST_ALL = ''
ST_P1 = 'sc1'
ST_P2 = 'sc1'
ST_P3 = 'sc1'
ST_G1 = 'sc1'
ST_G2 = 'nt'
OUT_TOUCH = 0
def code_prefetch(k, tag, first_label, last_label, vtmp, stmp, nwaves_cond=None):
    if not CODEPF: return
    k(f"s_getpc_b64 s[{stmp}:{stmp+1}]")
    k(f"L_{tag}_pc:")
    k(f"s_add_u32 s{stmp}, s{stmp}, {first_label}-L_{tag}_pc")
    k(f"s_addc_u32 s{stmp+1}, s{stmp+1}, 0")

WS_BASE = 0
def srd(k, s, base, size, off=0):
    if base == 26: off += WS_BASE
    if off:
        k(f"s_add_u32 s{s}, s{base}, {hex(off)}")
        k(f"s_addc_u32 s{s+1}, s{base+1}, 0")
    else:
        k(f"s_mov_b32 s{s}, s{base}")
        k(f"s_mov_b32 s{s+1}, s{base+1}")
    k(f"s_mov_b32 s{s+2}, {hex(size)}")
    k(f"s_mov_b32 s{s+3}, 0x20000")

SEQ = [(r, c) for r in range(4) for c in range(4)]

def rot_setup(k, vA, t):
    k(f"v_mul_f32 v{t+4}, {f32(5.0)}, v{vA}")
    k(f"v_cos_f32 v{t}, v{vA}")
    k(f"v_sin_f32 v{t+1}, v{vA}")
    k(f"v_cos_f32 v{t+2}, v{t+4}")
    k(f"v_sin_f32 v{t+3}, v{t+4}")

def rot(k, dst, src, st, tmp, sign):
    k(f"v_pk_mul_f32 {vr(tmp,2)}, {vr(src,2)}, {vr(st,2)} op_sel_hi:[1,0]")
    neg = "neg_lo:[0,1,0]" if sign > 0 else "neg_hi:[0,1,0]"
    k(f"v_pk_fma_f32 {vr(dst,2)}, {vr(src,2)}, {vr(st,2)}, {vr(tmp,2)} op_sel:[1,1,0] op_sel_hi:[0,1,1] {neg}")

def gen_matrix(k, Mr, Mi, vA, vB, t):
    rot_setup(k, vA, t)
    cur = [t+6, t+8]
    k(f"v_cos_f32 v{cur[0]}, v{vB}")
    k(f"v_sin_f32 v{cur[0]+1}, v{vB}")
    k("s_nop 0")
    for i, (r, c) in enumerate(SEQ):
        a_, b_ = cur[i % 2], cur[(i+1) % 2]
        if i < 15: rot(k, b_, a_, t+2 if c == 3 else t, t+4, +1)
        k(f"{CVT} v{Mr+i}, v{a_}, v{a_+1}")
        k(f"{CVT} v{Mi+i}, -v{a_+1}, v{a_}")

def gen_twiddle(k, tw, vA, vB, t, scale=None):
    rot_setup(k, vA, t)
    k(f"v_cos_f32 v{tw}, v{vB}")
    k(f"v_sin_f32_e64 v{tw+1}, -v{vB}")
    if scale is not None:
        k(f"v_mul_f32 v{tw}, {f32(scale)}, v{tw}")
        k(f"v_mul_f32 v{tw+1}, {f32(scale)}, v{tw+1}")
    else: k("s_nop 0")
    for i, (r, c) in enumerate(SEQ):
        if i < 15: rot(k, tw+2*(i+1), tw+2*i, t+2 if c == 3 else t, t+4, -1)

def stage(k, typ, Dr, Di, data, Mr, Mi, first=True):
    for r in range(4):
        for (Dx, M) in ((Dr, Mr), (Di, Mi)):
            c = '0' if (r == 0 and first) else vr(Dx, 16)
            if typ == 'A': k(f"{MF32} {vr(Dx,16)}, {vr(data+4*r,4)}, {vr(M+4*r,4)}, {c}")
            else:          k(f"{MF32} {vr(Dx,16)}, {vr(M+4*r,4)}, {vr(data+4*r,4)}, {c}")

def cmul_pack(k, Dr, Di, w, out, t, conj=False):
    for j in range(16):
        o = t + 2*(j % 4); jp = j & ~1; x = j & 1
        k(f"v_pk_mul_f32 {vr(o,2)}, {vr(w+2*j,2)}, {vr(Dr+jp,2)} op_sel:[0,{x}] op_sel_hi:[1,{x}]")
        k(f"v_pk_fma_f32 {vr(o,2)}, {vr(w+2*j,2)}, {vr(Di+jp,2)}, {vr(o,2)} op_sel:[1,{x},0] op_sel_hi:[0,{x},1] neg_lo:[1,0,0]")
        if j >= 1:
            po = t + 2*((j-1) % 4); n = '-' if conj else ''
            k(f"{CVT} v{out+j-1}, v{po}, {n}v{po+1}")
    po = t + 2*(15 % 4); n = '-' if conj else ''
    k(f"{CVT} v{out+15}, v{po}, {n}v{po+1}")

def wave_reduce2(k, a, b):
    for m in ("quad_perm:[1,0,3,2] row_mask:0xf", "quad_perm:[2,3,0,1] row_mask:0xf", "row_half_mirror row_mask:0xf",
              "row_mirror row_mask:0xf", "row_bcast:15 row_mask:0xa", "row_bcast:31 row_mask:0xc"):
        k(f"v_add_f32_dpp v{a}, v{a}, v{a} {m} bank_mask:0xf")
        k(f"v_add_f32_dpp v{b}, v{b}, v{b} {m} bank_mask:0xf")

def tree_sum(k, X, n, t, op='add'):
    acc = [t, t+2, t+4, t+6]
    for i in range(4):
        k(f"v_pk_add_f32 {vr(acc[i],2)}, {vr(X+2*i,2)}, {vr(X+2*(i+4),2)}")
    for i in range(8, n):
        k(f"v_pk_add_f32 {vr(acc[i%4],2)}, {vr(acc[i%4],2)}, {vr(X+2*i,2)}")
    k(f"v_pk_add_f32 {vr(acc[0],2)}, {vr(acc[0],2)}, {vr(acc[1],2)}")
    k(f"v_pk_add_f32 {vr(acc[2],2)}, {vr(acc[2],2)}, {vr(acc[3],2)}")
    k(f"v_pk_add_f32 {vr(acc[0],2)}, {vr(acc[0],2)}, {vr(acc[2],2)}")

def ln_stats_xrow(k, X, t, sM, sR, sTmp):
    tree_sum(k, X, 16, t)
    wave_reduce2(k, t, t+1)
    k(f"v_mul_f32 v{t}, {f32(1/1024)}, v{t}")
    k(f"v_mul_f32 v{t+1}, {f32(1/1024)}, v{t+1}")
    k(f"{CVT} v{t+2}, v{t}, v{t+1}")
    k(f"v_readlane_b32 s{sTmp}, v{t}, 63")
    k(f"v_readlane_b32 s{sTmp+1}, v{t+1}, 63")
    k(f"v_lshlrev_b32 v{t+12}, 16, v{t+2}")
    k(f"v_and_b32 v{t+13}, 0xffff0000, v{t+2}")
    acc = [t, t+2]; tmp = [t+4, t+6, t+8, t+10]
    for i in range(16):
        d = tmp[i % 4]
        k(f"v_pk_add_f32 {vr(d,2)}, {vr(X+2*i,2)}, {sr(sTmp,2)} neg_lo:[0,1] neg_hi:[0,1]")
        a = acc[i % 2]
        if i < 2: k(f"v_pk_mul_f32 {vr(a,2)}, {vr(d,2)}, {vr(d,2)}")
        else:     k(f"v_pk_fma_f32 {vr(a,2)}, {vr(d,2)}, {vr(d,2)}, {vr(a,2)}")
    k(f"v_pk_add_f32 {vr(t,2)}, {vr(t,2)}, {vr(t+2,2)}")
    wave_reduce2(k, t, t+1)
    k(f"v_mul_f32 v{t}, {f32(1/1024)}, v{t}")
    k(f"v_mul_f32 v{t+1}, {f32(1/1024)}, v{t+1}")
    k(f"{CVT} v{t+2}, v{t}, v{t+1}")
    k(f"v_lshlrev_b32 v{t}, 16, v{t+2}")
    k(f"v_and_b32 v{t+1}, 0xffff0000, v{t+2}")
    k(f"v_add_f32 v{t}, {f32(1e-5)}, v{t}")
    k(f"v_add_f32 v{t+1}, {f32(1e-5)}, v{t+1}")
    k(f"{CVT} v{t+2}, v{t}, v{t+1}")
    k(f"v_lshlrev_b32 v{t}, 16, v{t+2}")
    k(f"v_and_b32 v{t+1}, 0xffff0000, v{t+2}")
    k(f"v_sqrt_f32 v{t}, v{t}")
    k(f"v_sqrt_f32 v{t+1}, v{t+1}")
    k(f"s_nop 0")
    k(f"{CVT} v{t+2}, v{t}, v{t+1}")
    k(f"v_lshlrev_b32 v{t}, 16, v{t+2}")
    k(f"v_and_b32 v{t+1}, 0xffff0000, v{t+2}")
    k(f"v_rcp_f32 v{t}, v{t}")
    k(f"v_rcp_f32 v{t+1}, v{t+1}")
    k(f"s_nop 0")
    k(f"v_mul_f32 v{t+12}, v{t+12}, v{t}")
    k(f"v_mul_f32 v{t+13}, v{t+13}, v{t+1}")
    k(f"v_readlane_b32 s{sR}, v{t}, 63")
    k(f"v_readlane_b32 s{sR+1}, v{t+1}, 63")
    k(f"v_readlane_b32 s{sM}, v{t+12}, 63")
    k(f"v_readlane_b32 s{sM+1}, v{t+13}, 63")

def gen_p1():
    k = Kern('p1_kernel')
    k("s_cmp_ge_u32 s2, 256")
    k("s_cbranch_scc1 L_p1_end")
    stamp_begin(k)
    k("s_load_dwordx4 s[4:7], s[0:1], 0")
    k("s_load_dwordx2 s[24:25], s[0:1], 16")
    k("s_load_dwordx2 s[60:61], s[0:1], 32")
    k("s_load_dwordx2 s[26:27], s[0:1], 80")
    TID, LANE = 0, 1
    if CODEPF:
        k("s_getpc_b64 s[52:53]")
        k("L_p1_pc:")
        k("s_sub_u32 s52, s52, L_p1_pc-p1_kernel")
        k("s_subb_u32 s53, s53, 0")
        k("v_lshlrev_b32 v210, 7, v0")
        k("v_mov_b32 v211, s53")
        k("v_add_co_u32 v210, vcc, s52, v210")
        k("v_addc_co_u32 v211, vcc, 0, v211, vcc")
        k("v_cmp_gt_u32 vcc, (L_p1_endc-p1_kernel+127)/128, v0")
        k("s_and_saveexec_b64 s[54:55], vcc")
        k("s_cbranch_execz L_p1_cp0")
        k("global_load_dword v212, v[210:211], off")
        k("L_p1_cp0:")
        k("s_mov_b64 exec, -1")
        k("s_bfe_u32 s54, s2, 0x10003")
        k("s_lshl_b32 s54, s54, 15")
        k("s_add_u32 s54, s54, L_p1_endc-p1_kernel")
        k("v_add_co_u32 v210, vcc, s54, v210")
        k("v_addc_co_u32 v211, vcc, 0, v211, vcc")
        k("v_lshlrev_b32 v213, 7, v0")
        k("v_add_u32 v213, s54, v213")
        k("v_cmp_gt_u32 vcc, L_text_end-p1_kernel, v213")
        k("s_and_saveexec_b64 s[54:55], vcc")
        k("s_cbranch_execz L_p1_cp1")
        k("global_load_dword v212, v[210:211], off")
        k("L_p1_cp1:")
        k("s_mov_b64 exec, -1")
    k("v_and_b32 v1, 63, v0")
    k("v_lshrrev_b32 v2, 6, v0")
    k("v_readfirstlane_b32 s28, v2")
    k("s_lshr_b32 s29, s2, 5")
    k("s_lshl_b32 s29, s29, 2")
    k("s_and_b32 s30, s2, 31")
    k("s_add_u32 s31, s29, s28")
    k("s_lshl_b32 s31, s31, 5")
    k("s_add_u32 s31, s31, s30")
    k("s_lshl_b32 s31, s31, 11")
    k("s_add_u32 s32, s31, 0x200000")
    k("s_waitcnt lgkmcnt(0)")
    srd(k, 8, 4, S*D*2)
    srd(k, 12, 6, S*513*2)
    srd(k, 16, 24, S*513*2)
    srd(k, 20, 26, 257*16384, ZD_OFF)
    srd(k, 72 if False else 52, 26, 257*16384, WB_OFF) if False else None
    XL = 4
    if FUSE_GG:
        srd(k, 56, 26, 1024, BAR_OFF)
        k("s_cmp_lt_u32 s2, 8")
        k("s_cbranch_scc0 L_p1_nozb")
        k("s_lshl_b32 s33, s2, 7")
        k("v_mov_b32 v2, 0")
        k("v_cmp_eq_u32 vcc, 0, v0")
        k("s_and_saveexec_b64 s[34:35], vcc")
        k("s_cbranch_execz L_p1_nozb")
        k("buffer_store_dword v2, v2, s[56:59], s33 offen sc0 sc1")
        k("L_p1_nozb:")
        k("s_mov_b64 exec, -1")
    k("v_lshlrev_b32 v2, 4, v1")
    k(f"buffer_load_dwordx4 {vr(XL,4)}, v2, s[8:11], s31 offen {NT_X}")
    k(f"buffer_load_dwordx4 {vr(XL+4,4)}, v2, s[8:11], s31 offen offset:1024 {NT_X}")
    k(f"buffer_load_dwordx4 {vr(XL+8,4)}, v2, s[8:11], s32 offen {NT_X}")
    k(f"buffer_load_dwordx4 {vr(XL+12,4)}, v2, s[8:11], s32 offen offset:1024 {NT_X}")
    WL = 20
    Mr, Mi, TW = 36, 52, 68
    XF, DR, DI, OP, T = 100, 132, 148, 164, 180
    k("v_and_b32 v2, 31, v1")
    k("v_cvt_f32_u32 v2, v2")
    k("v_lshrrev_b32 v3, 5, v1")
    k("v_lshlrev_b32 v3, 2, v3")
    k("v_cvt_f32_u32 v3, v3")
    k(f"v_mul_f32 v204, {f32(1/32)}, v2")
    k("v_mul_f32 v205, v204, v3")
    gen_matrix(k, Mr, Mi, 204, 205, T)
    k(f"v_mul_f32 v204, {f32(1/1024)}, v2")
    k("v_mul_f32 v205, v204, v3")
    gen_twiddle(k, TW, 204, 205, T)
    STG = 16384; WST = STG + 257*64 + 64
    k("s_lshr_b32 s44, s2, 2")
    k("s_and_b32 s44, s44, 3")
    k("s_mov_b32 s45, 0x05040100")
    k("s_mov_b32 s46, 0x07060302")
    k("s_lshl_b32 s47, s2, 6")
    k("s_lshl_b32 s48, s28, 2")
    k(f"s_add_u32 s48, s48, {STG}")
    B1, B2, AWJ, AX, ARD, AGL, AT1, AT2, AWR, AWG = 206, 207, 208, 209, 216, 217, 218, 219, 221, 222
    k("v_and_b32 v2, 31, v1")
    k("v_lshrrev_b32 v3, 5, v1")
    k("v_and_b32 v204, 1, v2")
    k("v_lshrrev_b32 v205, 1, v2")
    k(f"v_xor_b32 v{B1}, s44, v204")
    k(f"v_lshlrev_b32 v{B1}, 4, v{B1}")
    k(f"v_lshl_add_u32 v{B1}, v205, 6, v{B1}")
    k(f"v_lshl_add_u32 v{B1}, v3, 12, v{B1}")
    k(f"v_add_u32 v{B1}, s48, v{B1}")
    k("v_add_u32 v205, 1, v2")
    k("v_lshrrev_b32 v205, 1, v205")
    k("v_add_u32 v204, 2, v204")
    k(f"v_xor_b32 v{B2}, s44, v204")
    k(f"v_lshlrev_b32 v{B2}, 4, v{B2}")
    k("v_lshlrev_b32 v205, 6, v205")
    k(f"v_sub_u32 v{B2}, v{B2}, v205")
    k("v_lshlrev_b32 v205, 12, v3")
    k(f"v_sub_u32 v{B2}, v{B2}, v205")
    k(f"v_add_u32 v{B2}, s48, v{B2}")
    k("s_lshl_b32 s49, s28, 12")
    k(f"s_add_u32 s49, s49, {WST}")
    k("v_bfe_u32 v204, v1, 1, 2")
    k("v_xor_b32 v204, s44, v204")
    k("v_lshlrev_b32 v204, 4, v204")
    k(f"v_lshl_add_u32 v{AWJ}, v1, 6, v204")
    k(f"v_add_u32 v{AWJ}, s49, v{AWJ}")
    k("v_lshrrev_b32 v204, 2, v1")
    k("v_and_b32 v205, 3, v1")
    k(f"v_bfe_u32 v{AT1}, v204, 1, 2")
    k(f"v_xor_b32 v{AT1}, v{AT1}, v205")
    k(f"v_lshlrev_b32 v{AT1}, 4, v{AT1}")
    k(f"v_lshl_add_u32 v{AWR}, v204, 6, v{AT1}")
    k(f"v_add_u32 v{AWR}, s49, v{AWR}")
    k("s_lshl_b32 s49, s28, 6")
    k("v_add_u32 v204, s49, v204")
    k("v_lshlrev_b32 v204, 14, v204")
    k(f"v_lshl_add_u32 v{AWG}, v205, 4, v204")
    k("v_bfe_u32 v204, v1, 2, 1")
    k("v_xor_b32 v204, s44, v204")
    k("v_lshlrev_b32 v204, 4, v204")
    k("v_and_b32 v205, 3, v1")
    k(f"v_lshl_add_u32 v{AX}, v205, 2, v204")
    k(f"v_lshlrev_b32 v{ARD}, 4, v0")
    k(f"v_add_u32 v{ARD}, {STG}, v{ARD}")
    k("v_lshrrev_b32 v204, 2, v0")
    k("v_lshlrev_b32 v204, 14, v204")
    k("v_and_b32 v205, 3, v0")
    k(f"v_lshl_add_u32 v{AGL}, v205, 4, v204")
    k("s_xor_b32 s49, s44, 2")
    k("s_lshl_b32 s49, s49, 4")
    k("s_add_u32 s49, s49, s48")
    k("s_lshl_b32 s50, s44, 4")
    k("s_add_u32 s50, s50, s48")
    k("s_add_u32 s50, s50, 16384")
    k(f"v_mov_b32 v{AT1}, s49")
    k(f"v_mov_b32 v{AT2}, s50")
    k("s_lshl_b32 s36, s28, 12")
    k("v_lshlrev_b32 v2, 5, v1")
    k("v_add_u32 v2, s36, v2")
    k("v_and_b32 v3, 31, v1")
    k("v_lshlrev_b32 v3, 2, v3")
    k("v_lshrrev_b32 v204, 5, v1")
    k("v_lshlrev_b32 v204, 9, v204")
    k("v_add3_u32 v3, v3, v204, s36")
    k("s_mov_b32 s35, 0xffff0000")
    mark(k, 1)
    k("s_waitcnt vmcnt(0)")
    mark(k, 2)
    k("v_lshlrev_b32 v220, 2, v0")
    k("s_lshl_b32 s33, s29, 6")
    k("s_lshl_b32 s34, s30, 1")
    k("s_add_u32 s33, s33, s34")
    k("s_mul_i32 s33, s33, 1026")
    for pi in range(2):
        for cc in range(4):
            off = (64*cc + pi)*1026
            k(f"s_add_u32 s34, s33, {off}")
            k(f"buffer_load_dword v{WL+4*pi+cc}, v220, s[12:15], s34 offen {NT_W}")
            k(f"buffer_load_dword v{WL+8+4*pi+cc}, v220, s[16:19], s34 offen {NT_W}")
    WX = 200
    k("v_and_b32 v200, 3, v1")
    k("v_lshlrev_b32 v200, 6, v200")
    k("v_bfe_u32 v201, v1, 2, 1")
    k("v_add_u32 v200, v200, v201")
    k("v_mul_u32_u24 v200, 1026, v200")
    k("v_add_u32 v200, 1024, v200")
    k("v_cmp_gt_u32 vcc, 8, v0")
    k("s_and_saveexec_b64 s[36:37], vcc")
    k("s_cbranch_execz L_p1_nox")
    k("buffer_load_ushort v202, v200, s[12:15], s33 offen")
    k("buffer_load_ushort v203, v200, s[16:19], s33 offen")
    k("L_p1_nox:")
    k("s_mov_b64 exec, -1")
    for i in range(16):
        for row in range(2):
            src = XL + 8*row + (i >> 1)
            if i % 2 == 0: k(f"v_lshlrev_b32 v{XF+2*i+row}, 16, v{src}")
            else:          k(f"v_and_b32 v{XF+2*i+row}, s35, v{src}")
    ln_stats_xrow(k, XF, T, 38, 40, 42)
    k(f"v_mov_b32 v{T+8}, s40"); k(f"v_mov_b32 v{T+9}, s41")
    k(f"v_mov_b32 v{T+10}, s38"); k(f"v_mov_b32 v{T+11}, s39")
    for i in range(16):
        d = T + 2*(i % 4)
        k(f"v_pk_fma_f32 {vr(d,2)}, {vr(XF+2*i,2)}, {vr(T+8,2)}, {vr(T+10,2)} neg_lo:[0,0,1] neg_hi:[0,0,1]")
        k(f"{CVT} v{OP+i}, v{d}, v{d+1}")
    k(f"ds_write_b128 v2, {vr(OP,4)}")
    k(f"ds_write_b128 v2, {vr(OP+4,4)} offset:16")
    k(f"ds_write_b128 v2, {vr(OP+8,4)} offset:2048")
    k(f"ds_write_b128 v2, {vr(OP+12,4)} offset:2064")
    k("s_waitcnt lgkmcnt(0)")
    for i, (r, c) in enumerate(SEQ):
        k(f"ds_read_b32 v{OP+i}, v3 offset:{(8*r+c)*128}")
    mark(k, 3)
    k("s_waitcnt lgkmcnt(0)")
    stage(k, 'A', DR, DI, OP, Mr, Mi)
    srd(k, 56, 26, 257*16384, WB_OFF)
    k("s_waitcnt vmcnt(0)")
    WO = XF
    for e in range(2):
        for pi in range(2):
            for cc in range(4):
                k(f"v_perm_b32 v{WO+4*(2*e+pi)+cc}, v{WL+8+4*pi+cc}, v{WL+4*pi+cc}, s{45+e}")
    for sl in range(4):
        if sl: k(f"v_xor_b32 v204, {16*sl}, v{AWJ}")
        k(f"ds_write_b128 v{204 if sl else AWJ}, {vr(WO+4*sl,4)}")
    k("v_lshlrev_b32 v203, 16, v203")
    k("v_or_b32 v202, v202, v203")
    k("s_add_u32 s49, s47, 0x400000")
    k("v_cmp_gt_u32 vcc, 8, v0")
    k("s_and_saveexec_b64 s[36:37], vcc")
    k("s_cbranch_execz L_p1_nox2")
    k(f"buffer_store_dword v202, v{AX}, s[56:59], s49 offen {ST_P1}")
    k("L_p1_nox2:")
    k("s_mov_b64 exec, -1")
    k("s_waitcnt lgkmcnt(0)")
    for j in range(4): k(f"ds_read_b128 {vr(WO+16+4*j,4)}, v{AWR} offset:{1024*j}")
    k("s_mov_b32 s49, s47")
    for j in range(4):
        k(f"s_waitcnt lgkmcnt({3-j})")
        k(f"buffer_store_dwordx4 {vr(WO+16+4*j,4)}, v{AWG}, s[56:59], s49 offen {ST_P1}")
        if j < 3: k(f"s_add_u32 s49, s49, {16*16384}")
    cmul_pack(k, DR, DI, TW, OP, T)
    stage(k, 'B', DR, DI, OP, Mr, Mi)
    mark(k, 4)
    for i, (r, c) in enumerate(SEQ):
        if r < 2: k(f"{CVT} v{OP+i}, v{DR+i}, v{DI+i}")
        else:     k(f"{CVT} v{OP+i}, v{DI+i}, v{DR+i}")
        if r < 2: k(f"ds_write_b32 v{B1}, v{OP+i} offset:{(8*r+c)*1024}")
        else:     k(f"ds_write_b32 v{B2}, v{OP+i} offset:{(32-8*r-c)*1024}")
    k(f"{CVT} v{T}, v{DI}, v{DR}")
    k(f"{CVT} v{T+1}, v{DR+8}, v{DI+8}")
    k("s_mov_b64 exec, 1")
    k(f"ds_write_b32 v{AT1}, v{T}")
    k(f"ds_write_b32 v{AT2}, v{T+1}")
    k("s_mov_b64 exec, -1")
    k("s_waitcnt lgkmcnt(0)")
    k("s_barrier")
    RO = XF
    for j in range(4):
        k(f"ds_read_b128 {vr(RO+4*j,4)}, v{ARD} offset:{4096*j}")
    k("v_cmp_gt_u32 vcc, 4, v0")
    k("s_and_saveexec_b64 s[36:37], vcc")
    k("s_cbranch_execz L_p1_nox3")
    k(f"ds_read_b128 {vr(T,4)}, v{ARD} offset:16384")
    k("s_waitcnt lgkmcnt(0)")
    k("s_add_u32 s49, s47, 0x400000")
    k(f"buffer_store_dwordx4 {vr(T,4)}, v{AGL}, s[20:23], s49 offen {ST_P1}")
    k("L_p1_nox3:")
    k("s_mov_b64 exec, -1")
    for j in range(4):
        k(f"s_waitcnt lgkmcnt({3-j})")
        k(f"buffer_store_dwordx4 {vr(RO+4*j,4)}, v{AGL}, s[20:23], s47 offen {ST_P1}")
        if j < 3: k("s_add_u32 s47, s47, 0x100000")
    stamp_end(k, 'p1')
    k("L_p1_end:")
    k("s_endpgm")
    k("L_p1_endc:")
    return k, 224, WST + 16384

def gen_p2():
    k = Kern('p2_kernel')
    k("s_cmp_ge_u32 s2, 257")
    k("s_cbranch_scc1 L_p2_end")
    stamp_begin(k)
    k("s_load_dwordx2 s[26:27], s[0:1], 80")
    k("s_load_dwordx2 s[24:25], s[0:1], 32")
    k("v_and_b32 v1, 63, v0")
    k("v_lshrrev_b32 v2, 6, v0")
    k("v_readfirstlane_b32 s28, v2")
    k("v_lshlrev_b32 v2, 4, v1")
    k("s_lshr_b32 s29, s28, 1")
    k("s_and_b32 s30, s28, 1")
    k("s_lshl_b32 s31, s2, 14")
    k("s_lshl_b32 s32, s28, 12")
    k("s_add_u32 s31, s31, s32")
    k("s_waitcnt lgkmcnt(0)")
    srd(k, 8, 26, 257*16384, ZD_OFF)
    srd(k, 20, 26, 257*16384, WB_OFF)
    srd(k, 12, 26, 256*VB_BLK, VB_OFF)
    for i in range(4):
        k(f"s_add_u32 m0, s32, {1024*i}")
        k(f"s_add_u32 s33, s31, {1024*i}")
        k(f"buffer_load_dwordx4 v2, s[8:11], s33 offen lds")
    Z1, Z2 = 4, 20
    M1r, M1i, MFr, MFi, MIr, MIi = 36, 52, 68, 84, 100, 116
    T1, T2 = 132, 164
    DR, DI, T = 196, 212, 228
    A, B, J, H4, PI = 244, 245, 246, 247, 248
    k(f"v_and_b32 v{J}, 31, v1")
    k(f"v_cvt_f32_u32 v{J}, v{J}")
    k(f"v_lshrrev_b32 v{H4}, 5, v1")
    k(f"v_lshlrev_b32 v{H4}, 2, v{H4}")
    k(f"v_cvt_f32_u32 v{H4}, v{H4}")
    k(f"v_mov_b32 v{PI}, s30")
    k(f"v_cvt_f32_u32 v{PI}, v{PI}")
    k(f"v_mul_f32 v{A}, {f32(1/32)}, v{J}")
    k(f"v_mul_f32 v{B}, v{A}, v{H4}")
    gen_matrix(k, MFr, MFi, A, B, T)
    k(f"v_fma_f32 v{A}, v{J}, 2.0, v{PI}")
    k(f"v_mul_f32 v{A}, {f32(1/64)}, v{A}")
    k(f"v_mul_f32 v{B}, v{A}, v{H4}")
    gen_matrix(k, M1r, M1i, A, B, T)
    k("s_lshl_b32 s33, s30, 4")
    k(f"v_and_b32 v{T}, 31, v1")
    k(f"v_xor_b32 v{T}, s33, v{T}")
    k(f"v_cvt_f32_u32 v{T}, v{T}")
    k(f"v_mul_f32 v{A}, {f32(1/32)}, v{T}")
    k(f"v_mul_f32 v{B}, v{A}, v{H4}")
    k(f"v_mul_f32 v{T}, {f32(1/64)}, v{T}")
    k(f"v_fma_f32 v{B}, v{T}, v{PI}, v{B}")
    gen_matrix(k, MIr, MIi, A, B, T)
    k(f"v_fma_f32 v{A}, v{J}, 2.0, v{PI}")
    k(f"v_mul_f32 v{A}, {f32(1/2048)}, v{A}")
    k(f"v_mov_b32 v{T}, {f32(0.125)}")
    k(f"v_mul_f32 v{T+1}, {f32(-0.25)}, v{PI}")
    k(f"v_add_f32 v{T}, v{T}, v{T+1}")
    k(f"v_fma_f32 v{B}, v{A}, v{H4}, v{T}")
    gen_twiddle(k, T1, A, B, T)
    k(f"v_mul_f32 v{A}, {f32(1/1024)}, v{J}")
    k(f"v_mul_f32 v{B}, v{A}, v{H4}")
    k(f"v_mul_f32 v{T}, {f32(1/2048)}, v{J}")
    k(f"v_fma_f32 v{B}, v{T}, v{PI}, v{B}")
    gen_twiddle(k, T2, A, B, T)
    AZ1, AZ2, AW = 249, 250, 251
    k(f"v_bfe_u32 v{T}, v1, 2, 2")
    k(f"v_lshlrev_b32 v{T+1}, 6, v1")
    k(f"v_xor_b32 v{AZ1}, s29, v{T}")
    k(f"v_lshl_add_u32 v{AZ1}, v{AZ1}, 4, v{T+1}")
    k(f"v_xor_b32 v{AZ2}, 32, v{AZ1}")
    k("s_lshl_b32 s33, s29, 1")
    k("s_add_u32 s33, s33, s30")
    k(f"v_xor_b32 v{AW}, s33, v{T}")
    k(f"v_lshl_add_u32 v{AW}, v{AW}, 4, v{T+1}")
    k(f"v_add_u32 v{AW}, 16384, v{AW}")
    k("s_mul_i32 s34, s30, 0x80008000")
    k("s_mov_b32 s35, 0xffff0000")
    mark(k, 1)
    k("s_waitcnt vmcnt(0)")
    for i in range(4):
        k(f"s_add_u32 m0, s32, {16384+1024*i}")
        k(f"s_add_u32 s33, s31, {1024*i}")
        k(f"buffer_load_dwordx4 v2, s[20:23], s33 offen lds")
    if W1PF:
        srd(k, 16, 24, S*F*2)
        k(f"s_mul_i32 s33, s2, {W1PF*128}")
        k("v_lshlrev_b32 v3, 7, v0")
        k(f"v_min_u32 v3, {(W1PF-1)*128}, v3")
        k("buffer_load_dword v255, v3, s[16:19], s33 offen")
    k("s_barrier")
    mark(k, 2)
    for r in range(4):
        k(f"ds_read_b128 {vr(Z1+4*r,4)}, v{AZ1} offset:{4096*r}")
        k(f"ds_read_b128 {vr(Z2+4*r,4)}, v{AZ2} offset:{4096*r}")
    k("s_waitcnt lgkmcnt(0)")
    for i in range(16):
        k(f"v_xor_b32 v{Z2+i}, s34, v{Z2+i}")
    stage(k, 'A', DR, DI, Z1, M1r, M1i, first=True)
    stage(k, 'A', DR, DI, Z2, M1r, M1i, first=False)
    OP = Z1
    cmul_pack(k, DR, DI, T1, OP, T)
    k(f"s_waitcnt vmcnt({1 if W1PF else 0})")
    k("s_barrier")
    for r in range(4):
        k(f"ds_read_b128 {vr(Z2+4*r,4)}, v{AW} offset:{4096*r}")
    stage(k, 'B', DR, DI, OP, MFr, MFi)
    WP = M1r
    k("s_waitcnt lgkmcnt(0)")
    for i in range(16):
        k(f"v_lshlrev_b32 v{WP+2*i}, 16, v{Z2+i}")
        k(f"v_and_b32 v{WP+2*i+1}, s35, v{Z2+i}")
    cmul_pack(k, DR, DI, WP, OP, T, conj=True)
    stage(k, 'A', DR, DI, OP, MFr, MFi)
    cmul_pack(k, DR, DI, T2, OP, T)
    stage(k, 'B', DR, DI, OP, MIr, MIi)
    mark(k, 4)
    XCH, STG = 32768, 49152
    AX = 252
    k("s_lshl_b32 s36, s28, 12")
    k(f"s_add_u32 s36, s36, {XCH}")
    k(f"v_lshl_add_u32 v{AX}, v1, 4, s36")
    k(f"ds_write_b128 v{AX}, {vr(DR+8,4)}")
    k(f"ds_write_b128 v{AX}, {vr(DR+12,4)} offset:1024")
    k(f"ds_write_b128 v{AX}, {vr(DI+8,4)} offset:2048")
    k(f"ds_write_b128 v{AX}, {vr(DI+12,4)} offset:3072")
    k(f"v_xor_b32 v{AX}, 4096, v{AX}")
    k("s_lshl_b32 s37, s2, 1")
    k("s_add_u32 s37, s37, s29")
    k("s_and_b32 s37, s37, 511")
    k("s_cmp_eq_u32 s37, 0")
    k(f"s_cselect_b32 s38, 0, {f32(1.0)}")
    k("s_cmp_eq_u32 s30, 0")
    k(f"s_cselect_b32 s40, {f32(1.0)}, {f32(-1.0)}")
    k("s_lshl_b32 s41, s30, 31")
    k("s_xor_b32 s42, s38, s41")
    k("s_waitcnt lgkmcnt(0)")
    k("s_barrier")
    OR_, OI = 36, 44
    k(f"ds_read_b128 {vr(OR_,4)}, v{AX}")
    k(f"ds_read_b128 {vr(OR_+4,4)}, v{AX} offset:1024")
    k(f"ds_read_b128 {vr(OI,4)}, v{AX} offset:2048")
    k(f"ds_read_b128 {vr(OI+4,4)}, v{AX} offset:3072")
    k(f"v_bfe_u32 v{T}, v1, 1, 2")
    k(f"v_xor_b32 v{T+1}, s29, v{T}")
    k(f"v_xor_b32 v{T+2}, 2, v{T+1}")
    k("s_lshl_b32 s43, s30, 13")
    k(f"s_add_u32 s43, s43, {STG}")
    k(f"v_lshl_add_u32 v{T+3}, v1, 6, s43")
    k(f"v_lshl_add_u32 v253, v{T+1}, 4, v{T+3}")
    k(f"v_lshl_add_u32 v254, v{T+2}, 4, v{T+3}")
    k("s_waitcnt lgkmcnt(0)")
    UA, UB = 52, 60
    Ur, Ui, Er, Ei, Ar, Ai, Br, Bi = 68, 70, 72, 74, 76, 78, 80, 82
    bc = "op_sel_hi:[1,0,1]"
    for j in range(0, 8, 2):
        o = 16*((j//2) % 2)
        ur, ui, er, ei, a_r, a_i, b_r, b_i = [x+o for x in (Ur, Ui, Er, Ei, Ar, Ai, Br, Bi)]
        k(f"v_pk_add_f32 {vr(ur,2)}, {vr(DR+j,2)}, {vr(OR_+j,2)}")
        k(f"v_pk_add_f32 {vr(ui,2)}, {vr(DI+j,2)}, {vr(OI+j,2)}")
        k(f"v_pk_add_f32 {vr(er,2)}, {vr(DR+j,2)}, {vr(OR_+j,2)} neg_lo:[0,1] neg_hi:[0,1]")
        k(f"v_pk_add_f32 {vr(ei,2)}, {vr(DI+j,2)}, {vr(OI+j,2)} neg_lo:[0,1] neg_hi:[0,1]")
        k(f"v_pk_fma_f32 {vr(a_r,2)}, {vr(ei,2)}, s[42:43], {vr(ur,2)} {bc}")
        k(f"v_pk_fma_f32 {vr(b_r,2)}, {vr(ei,2)}, s[42:43], {vr(ur,2)} {bc} neg_lo:[1,0,0] neg_hi:[1,0,0]")
        k(f"v_pk_mul_f32 {vr(ui,2)}, {vr(ui,2)}, s[38:39] op_sel_hi:[1,0]")
        k(f"v_pk_fma_f32 {vr(a_i,2)}, {vr(er,2)}, s[40:41], {vr(ui,2)} {bc} neg_lo:[1,0,0] neg_hi:[1,0,0]")
        k(f"v_pk_fma_f32 {vr(b_i,2)}, {vr(er,2)}, s[40:41], {vr(ui,2)} {bc} neg_lo:[1,0,1] neg_hi:[1,0,1]")
        k(f"{CVT} v{UA+j}, v{a_r}, v{a_i}")
        k(f"{CVT} v{UA+j+1}, v{a_r+1}, v{a_i+1}")
        k(f"{CVT} v{UB+j}, v{b_r}, v{b_i}")
        k(f"{CVT} v{UB+j+1}, v{b_r+1}, v{b_i+1}")
    for rl in range(2):
        k(f"ds_write_b128 v253, {vr(UA+4*rl,4)} offset:{4096*rl}")
        k(f"ds_write_b128 v254, {vr(UB+4*rl,4)} offset:{4096*rl}")
    k(f"v_and_b32 v{T}, 3, v0")
    k(f"v_bfe_u32 v{T+1}, v0, 3, 2")
    k(f"v_xor_b32 v{T+1}, v{T}, v{T+1}")
    k(f"v_lshrrev_b32 v{T+2}, 2, v0")
    k(f"v_lshlrev_b32 v{T+3}, 6, v{T+2}")
    k(f"v_lshl_add_u32 v{T+3}, v{T+1}, 4, v{T+3}")
    k(f"v_add_u32 v{T+3}, {STG}, v{T+3}")
    k(f"v_mul_u32_u24 v{T+2}, {VB_BLK}, v{T+2}")
    k("s_and_b32 s44, s2, 2")
    k(f"v_xor_b32 v{T}, s44, v{T}")
    k(f"v_lshl_add_u32 v{T+2}, v{T}, 4, v{T+2}")
    k("s_lshl_b32 s45, s2, 6")
    k("s_waitcnt lgkmcnt(0)")
    k("s_barrier")
    for j in range(4):
        k(f"ds_read_b128 {vr(4+4*j,4)}, v{T+3} offset:{4096*j}")
    k("s_waitcnt lgkmcnt(0)")
    for j in range(4):
        k(f"buffer_store_dwordx4 {vr(4+4*j,4)}, v{T+2}, s[12:15], s45 offen {ST_P2}")
        if j < 3: k(f"s_add_u32 s45, s45, {64*VB_BLK}")
    stamp_end(k, 'p2')
    k("L_p2_end:")
    k("s_endpgm")
    return k, 256, 65536

def ln_stats_rows(k, R0, R1, t, vRM, sTmp):
    for (R, o) in ((R0, 0), (R1, 4)):
        a, b = t+o, t+o+2
        k(f"v_pk_add_f32 {vr(a,2)}, {vr(R,2)}, {vr(R+2,2)}")
        k(f"v_pk_add_f32 {vr(b,2)}, {vr(R+4,2)}, {vr(R+6,2)}")
    for i in range(4, 8):
        for (R, o) in ((R0, 0), (R1, 4)):
            a = t+o+2*(i % 2)
            k(f"v_pk_add_f32 {vr(a,2)}, {vr(a,2)}, {vr(R+2*i,2)}")
    for o in (0, 4):
        k(f"v_pk_add_f32 {vr(t+o,2)}, {vr(t+o,2)}, {vr(t+o+2,2)}")
    k(f"v_add_f32 v{t}, v{t}, v{t+1}")
    k(f"v_add_f32 v{t+1}, v{t+4}, v{t+5}")
    wave_reduce2(k, t, t+1)
    k(f"v_mul_f32 v{t}, {f32(1/1024)}, v{t}")
    k(f"v_mul_f32 v{t+1}, {f32(1/1024)}, v{t+1}")
    k(f"{CVT} v{t+2}, v{t}, v{t+1}")
    k(f"v_readlane_b32 s{sTmp}, v{t}, 63")
    k(f"v_readlane_b32 s{sTmp+1}, v{t+1}, 63")
    k(f"v_lshlrev_b32 v{t+12}, 16, v{t+2}")
    k(f"v_and_b32 v{t+13}, 0xffff0000, v{t+2}")
    acc = {0: t, 1: t+2}; tmp = [t+4, t+6, t+8, t+10]
    n = 0
    for i in range(8):
        for row, R in ((0, R0), (1, R1)):
            d = tmp[n % 4]; n += 1
            sel = "op_sel_hi:[1,0]" if row == 0 else "op_sel:[0,1] op_sel_hi:[1,1]"
            k(f"v_pk_add_f32 {vr(d,2)}, {vr(R+2*i,2)}, {sr(sTmp,2)} {sel} neg_lo:[0,1] neg_hi:[0,1]")
            a = acc[row]
            if i == 0: k(f"v_pk_mul_f32 {vr(a,2)}, {vr(d,2)}, {vr(d,2)}")
            else:      k(f"v_pk_fma_f32 {vr(a,2)}, {vr(d,2)}, {vr(d,2)}, {vr(a,2)}")
    k(f"v_add_f32 v{t}, v{t}, v{t+1}")
    k(f"v_add_f32 v{t+1}, v{t+2}, v{t+3}")
    wave_reduce2(k, t, t+1)
    k(f"v_mul_f32 v{t}, {f32(1/1024)}, v{t}")
    k(f"v_mul_f32 v{t+1}, {f32(1/1024)}, v{t+1}")
    k(f"{CVT} v{t+2}, v{t}, v{t+1}")
    k(f"v_lshlrev_b32 v{t}, 16, v{t+2}")
    k(f"v_and_b32 v{t+1}, 0xffff0000, v{t+2}")
    k(f"v_add_f32 v{t}, {f32(1e-5)}, v{t}")
    k(f"v_add_f32 v{t+1}, {f32(1e-5)}, v{t+1}")
    k(f"{CVT} v{t+2}, v{t}, v{t+1}")
    k(f"v_lshlrev_b32 v{t}, 16, v{t+2}")
    k(f"v_and_b32 v{t+1}, 0xffff0000, v{t+2}")
    k(f"v_sqrt_f32 v{t}, v{t}")
    k(f"v_sqrt_f32 v{t+1}, v{t+1}")
    k(f"s_nop 0")
    k(f"{CVT} v{t+2}, v{t}, v{t+1}")
    k(f"v_lshlrev_b32 v{t}, 16, v{t+2}")
    k(f"v_and_b32 v{t+1}, 0xffff0000, v{t+2}")
    k(f"v_rcp_f32 v{t}, v{t}")
    k(f"v_rcp_f32 v{t+1}, v{t+1}")
    k(f"s_nop 0")
    k(f"v_mul_f32 v{t+12}, v{t+12}, v{t}")
    k(f"v_mul_f32 v{t+13}, v{t+13}, v{t+1}")
    k(f"v_readlane_b32 s{sTmp}, v{t}, 63")
    k(f"v_readlane_b32 s{sTmp+1}, v{t+1}, 63")
    k(f"v_readlane_b32 s{sTmp+2}, v{t+12}, 63")
    k(f"v_readlane_b32 s{sTmp+3}, v{t+13}, 63")
    for i in range(4):
        k(f"v_mov_b32 v{vRM+i}, s{sTmp+i}")

def ln_apply_rows(k, R0, R1, vRM, dst0, dst1):
    for i in range(8):
        k(f"v_pk_fma_f32 {vr(dst0+2*i,2)}, {vr(R0+2*i,2)}, {vr(vRM,2)}, {vr(vRM+2,2)} op_sel_hi:[1,0,0] neg_lo:[0,0,1] neg_hi:[0,0,1]")
        k(f"v_pk_fma_f32 {vr(dst1+2*i,2)}, {vr(R1+2*i,2)}, {vr(vRM,2)}, {vr(vRM+2,2)} op_sel:[0,1,1] op_sel_hi:[1,1,1] neg_lo:[0,0,1] neg_hi:[0,0,1]")

def gen_p3():
    k = Kern('p3_kernel')
    k("s_cmp_ge_u32 s2, 256")
    k("s_cbranch_scc1 L_p3_end")
    stamp_begin(k)
    k("s_load_dwordx2 s[4:5], s[0:1], 0")
    k("s_load_dwordx2 s[26:27], s[0:1], 80")
    k("s_load_dwordx2 s[24:25], s[0:1], 32")
    k("v_and_b32 v1, 63, v0")
    k("v_lshrrev_b32 v2, 6, v0")
    k("v_readfirstlane_b32 s28, v2")
    k("s_lshr_b32 s29, s2, 5")
    k("s_lshl_b32 s29, s29, 2")
    k("s_and_b32 s30, s2, 31")
    k("s_add_u32 s31, s29, s28")
    k("s_lshl_b32 s31, s31, 5")
    k("s_add_u32 s31, s31, s30")
    k("s_lshl_b32 s31, s31, 11")
    k("s_add_u32 s32, s31, 0x200000")
    k(f"s_mul_i32 s33, s2, {VB_BLK}")
    k("s_lshl_b32 s34, s28, 12")
    k("s_add_u32 s33, s33, s34")
    k("v_lshlrev_b32 v2, 4, v1")
    k("s_waitcnt lgkmcnt(0)")
    srd(k, 8, 4, S*D*2)
    srd(k, 12, 26, 256*VB_BLK, VB_OFF)
    srd(k, 16, 26, S*D*2, H_OFF)
    srd(k, 20, 26, S*D*2, HN_OFF)
    for i in range(4):
        k(f"s_add_u32 m0, s34, {1024*i}")
        k(f"buffer_load_dwordx4 v2, s[12:15], s33 offen lds")
        k("s_add_u32 s33, s33, 1024")
    k("s_cmp_eq_u32 s28, 3")
    k("s_cbranch_scc0 L_p3_noex")
    k("s_mov_b32 m0, 16384")
    k(f"buffer_load_dwordx4 v2, s[12:15], s33 offen lds")
    k("L_p3_noex:")
    XL = 4
    OP, Mr, Mi, TW, DR, DI, T = 20, 36, 52, 68, 100, 116, 132
    R0, R1, Y0, Y1 = 148, 164, 180, 196
    k("v_and_b32 v212, 31, v1")
    k("v_cvt_f32_u32 v212, v212")
    k("v_lshrrev_b32 v213, 5, v1")
    k("v_lshlrev_b32 v213, 2, v213")
    k("v_cvt_f32_u32 v213, v213")
    k(f"v_mul_f32 v214, {f32(1/32)}, v212")
    k("v_mul_f32 v215, v214, v213")
    gen_matrix(k, Mr, Mi, 214, 215, T)
    k(f"v_mul_f32 v214, {f32(1/1024)}, v212")
    k("v_mul_f32 v215, v214, v213")
    gen_twiddle(k, TW, 214, 215, T, scale=2.0**-21.5)
    k("v_and_b32 v2, 31, v1")
    k("v_lshrrev_b32 v3, 5, v1")
    k("v_and_b32 v216, 1, v2")
    k("v_lshrrev_b32 v217, 1, v2")
    k("v_and_b32 v218, 2, v217")
    k("v_xor_b32 v218, v218, v216")
    k("v_lshlrev_b32 v218, 4, v218")
    k("v_lshl_add_u32 v218, v217, 6, v218")
    k("v_lshl_add_u32 v218, v3, 12, v218")
    k("s_lshl_b32 s37, s28, 2")
    k("v_add_u32 v218, s37, v218")
    k("v_add_u32 v217, 1, v2")
    k("v_lshrrev_b32 v217, 1, v217")
    k("v_sub_u32 v219, 0, v217")
    k("v_and_b32 v219, 2, v219")
    k("v_add_u32 v216, 2, v216")
    k("v_xor_b32 v219, v219, v216")
    k("v_lshlrev_b32 v219, 4, v219")
    k("v_lshlrev_b32 v217, 6, v217")
    k("v_sub_u32 v219, v219, v217")
    k("v_lshlrev_b32 v217, 12, v3")
    k("v_sub_u32 v219, v219, v217")
    k("s_add_u32 s37, s37, 5120")
    k("v_add_u32 v219, s37, v219")
    k("s_mov_b32 s35, 0xffff0000")
    mark(k, 1)
    k("s_waitcnt vmcnt(0)")
    k("v_lshlrev_b32 v225, 4, v1")
    k(f"buffer_load_dwordx4 {vr(XL,4)}, v225, s[8:11], s31 offen")
    k(f"buffer_load_dwordx4 {vr(XL+4,4)}, v225, s[8:11], s31 offen offset:1024")
    k(f"buffer_load_dwordx4 {vr(XL+8,4)}, v225, s[8:11], s32 offen")
    k(f"buffer_load_dwordx4 {vr(XL+12,4)}, v225, s[8:11], s32 offen offset:1024")
    if W1PF:
        srd(k, 48, 24, S*F*2)
        k(f"s_mul_i32 s38, s2, {W1PF*128}")
        k(f"s_add_u32 s38, s38, {256*W1PF*128}")
        k("v_lshlrev_b32 v226, 7, v0")
        k(f"v_min_u32 v226, {(W1PF-1)*128}, v226")
        k("buffer_load_dword v224, v226, s[48:51], s38 offen")
    k("s_barrier")
    mark(k, 2)
    for i, (r, c) in enumerate(SEQ):
        if r < 2: k(f"ds_read_b32 v{OP+i}, v218 offset:{(8*r+c)*1024}")
        else:     k(f"ds_read_b32 v{OP+i}, v219 offset:{(32-8*r-c)*1024-5120}")
    k("s_waitcnt lgkmcnt(0)")
    stage(k, 'A', DR, DI, OP, Mr, Mi)
    cmul_pack(k, DR, DI, TW, OP, T)
    stage(k, 'B', DR, DI, OP, Mr, Mi)
    k(f"s_waitcnt vmcnt({1 if W1PF else 0})")
    for i in range(8):
        k(f"v_lshlrev_b32 v{R0+2*i}, 16, v{XL+i}")
        k(f"v_and_b32 v{R0+2*i+1}, s35, v{XL+i}")
        k(f"v_lshlrev_b32 v{R1+2*i}, 16, v{XL+8+i}")
        k(f"v_and_b32 v{R1+2*i+1}, s35, v{XL+8+i}")
    TR = 17408
    mark(k, 3)
    k("s_lshl_b32 s36, s28, 12")
    k(f"s_add_u32 s36, s36, {TR}")
    k("v_and_b32 v3, 31, v1")
    k("v_lshlrev_b32 v3, 2, v3")
    k("v_lshrrev_b32 v216, 5, v1")
    k("v_lshlrev_b32 v216, 9, v216")
    k("v_add3_u32 v3, v3, v216, s36")
    k("v_lshl_add_u32 v2, v1, 5, s36")
    for i in range(16):
        k(f"{CVT} v{OP+i}, v{DR+i}, -v{DI+i}")
    for i, (r, c) in enumerate(SEQ):
        k(f"ds_write_b32 v3, v{OP+i} offset:{(8*r+c)*128}")
    k("s_waitcnt lgkmcnt(0)")
    k(f"ds_read_b128 {vr(OP,4)}, v2")
    k(f"ds_read_b128 {vr(OP+4,4)}, v2 offset:16")
    k(f"ds_read_b128 {vr(OP+8,4)}, v2 offset:2048")
    k(f"ds_read_b128 {vr(OP+12,4)}, v2 offset:2064")
    k("s_waitcnt lgkmcnt(0)")
    for i in range(16):
        k(f"v_lshlrev_b32 v{Y0+i}, 16, v{OP+i}")
        k(f"v_and_b32 v{Y1+i}, s35, v{OP+i}")
    for i in range(8):
        k(f"v_pk_add_f32 {vr(Y0+2*i,2)}, {vr(Y0+2*i,2)}, {vr(R0+2*i,2)}")
        k(f"v_pk_add_f32 {vr(Y1+2*i,2)}, {vr(Y1+2*i,2)}, {vr(R1+2*i,2)}")
    HP = 36
    for i in range(8):
        k(f"{CVT} v{HP+i}, v{Y0+2*i}, v{Y0+2*i+1}")
        k(f"{CVT} v{HP+8+i}, v{Y1+2*i}, v{Y1+2*i+1}")
    k("v_lshlrev_b32 v2, 4, v1")
    k(f"buffer_store_dwordx4 {vr(HP,4)}, v2, s[16:19], s31 offen {ST_P3}")
    k(f"buffer_store_dwordx4 {vr(HP+4,4)}, v2, s[16:19], s31 offen offset:1024 {ST_P3}")
    k(f"buffer_store_dwordx4 {vr(HP+8,4)}, v2, s[16:19], s32 offen {ST_P3}")
    k(f"buffer_store_dwordx4 {vr(HP+12,4)}, v2, s[16:19], s32 offen offset:1024 {ST_P3}")
    for i in range(8):
        k(f"v_lshlrev_b32 v{R0+2*i}, 16, v{HP+i}")
        k(f"v_and_b32 v{R0+2*i+1}, s35, v{HP+i}")
        k(f"v_lshlrev_b32 v{R1+2*i}, 16, v{HP+8+i}")
        k(f"v_and_b32 v{R1+2*i+1}, s35, v{HP+8+i}")
    RM = 220
    mark(k, 4)
    ln_stats_rows(k, R0, R1, T, RM, 40)
    ln_apply_rows(k, R0, R1, RM, Y0, Y1)
    LP = 52
    for i in range(8):
        k(f"{CVT} v{LP+i}, v{Y0+2*i}, v{Y0+2*i+1}")
        k(f"{CVT} v{LP+8+i}, v{Y1+2*i}, v{Y1+2*i+1}")
    for i in range(8):
        k(f"v_lshlrev_b32 v{R0+2*i}, 16, v{LP+i}")
        k(f"v_and_b32 v{R0+2*i+1}, s35, v{LP+i}")
        k(f"v_lshlrev_b32 v{R1+2*i}, 16, v{LP+8+i}")
        k(f"v_and_b32 v{R1+2*i+1}, s35, v{LP+8+i}")
    ln_stats_rows(k, R0, R1, T, RM, 40)
    ln_apply_rows(k, R0, R1, RM, Y0, Y1)
    NP = 68
    for i in range(8):
        k(f"{CVT} v{NP+i}, v{Y0+2*i}, v{Y0+2*i+1}")
        k(f"{CVT} v{NP+8+i}, v{Y1+2*i}, v{Y1+2*i+1}")
    k(f"buffer_store_dwordx4 {vr(NP,4)}, v2, s[20:23], s31 offen {ST_P3}")
    k(f"buffer_store_dwordx4 {vr(NP+4,4)}, v2, s[20:23], s31 offen offset:1024 {ST_P3}")
    k(f"buffer_store_dwordx4 {vr(NP+8,4)}, v2, s[20:23], s32 offen {ST_P3}")
    k(f"buffer_store_dwordx4 {vr(NP+12,4)}, v2, s[20:23], s32 offen offset:1024 {ST_P3}")
    stamp_end(k, 'p3')
    k("L_p3_end:")
    k("s_endpgm")
    return k, 228, 33792

MF16 = 'v_mfma_f32_16x16x32_bf16'

def interleave(mf, rd, lead=0):
    out = []; n = len(mf); m = len(rd); ri = 0
    for i in range(n):
        out.append(mf[i])
        tgt = min(m, (m*(i+1) + n - 1)//n)
        while ri < tgt:
            out.append(rd[ri]); ri += 1
    out += rd[ri:]
    return out

def producer_loop(k, tag, per, issue, NS, NIT):
    mark(k, 1)
    issue()
    mark(k, 2)
    issue()
    k(f"s_waitcnt vmcnt({per})")
    mark(k, 3)
    k("s_barrier")
    for n in range(2, NS): issue()
    mark(k, 4)
    nmain = NIT - NS
    k(f"s_mov_b32 s60, 0")
    k(f"L_{tag}_ploop:")
    k(f"s_waitcnt vmcnt({(NS-2)*per})")
    k("s_barrier")
    issue()
    k("s_add_u32 s60, s60, 1")
    k(f"s_cmp_lt_u32 s60, {nmain}")
    k(f"s_cbranch_scc1 L_{tag}_ploop")
    for n in range(nmain, NIT-1):
        k(f"s_waitcnt vmcnt({(NIT-1-(n+1))*per})")
        k("s_barrier")


XB_OFF = ZW_OFF
FL_OFF = 0x2800000
BAR_OFF = 0x2810000
def gemm_kernel(tag, fused=False):
    g1 = tag == 'g1'
    k = Kern('gg_kernel' if fused else tag + '_kernel')
    ENDL = 'L_gg_end' if fused else f'L_{tag}_end'
    ASZ = 16384; STG = 32768; NS = 4 if STATIC else (5 if BAR2 else 3)
    NIT = 32 if g1 else 28
    BSTR = 7168 if g1 else 4096
    if not (fused and not g1):
        k(f"s_cmp_ge_u32 s2, 256")
        k(f"s_cbranch_scc1 {ENDL}")
    else:
        k("L_gbar:")
        k("s_load_dwordx2 s[26:27], s[0:1], 80")
        k("s_waitcnt vmcnt(0) lgkmcnt(0)")
        k("s_barrier")
        srd(k, 36, 26, 1024, BAR_OFF)
        k("v_cmp_eq_u32 vcc, 0, v0")
        k("s_and_saveexec_b64 s[34:35], vcc")
        k("s_cbranch_execz L_gbar_noarr")
        k("s_and_b32 s33, s2, 7")
        k("s_lshl_b32 s33, s33, 7")
        k("v_mov_b32 v2, 1")
        k("v_mov_b32 v3, 0")
        k("buffer_atomic_add v2, v3, s[36:39], s33 offen sc1")
        k("L_gbar_noarr:")
        k("s_mov_b64 exec, -1")
    stamp_begin(k)
    if g1:
        k("s_load_dwordx4 s[4:7], s[0:1], 32")
        k("s_load_dwordx2 s[24:25], s[0:1], 48")
    else:
        k("s_load_dwordx4 s[4:7], s[0:1], 48")
        k("s_load_dwordx2 s[24:25], s[0:1], 64")
    k("s_load_dwordx2 s[26:27], s[0:1], 80")
    k("v_and_b32 v1, 63, v0")
    k("v_lshrrev_b32 v2, 6, v0")
    k("v_readfirstlane_b32 s28, v2")
    if g1:
        k("s_and_b32 s30, s2, 1")
        k("s_lshl_b32 s30, s30, 2")
        k("s_bfe_u32 s52, s2, 0x20003")
        k("s_add_u32 s30, s30, s52")
        k("s_bfe_u32 s29, s2, 0x20001")
        k("s_mul_i32 s29, s29, 7")
        k("s_lshr_b32 s53, s2, 5")
        k("s_add_u32 s29, s29, s53")
        k("s_mov_b32 s63, 0")
        k("s_and_b32 s55, s2, 1")
        k(f"s_mul_i32 s55, s55, {16 if KHALF else 0}")
    else:
        if MAP2 == 1:
            k("s_bfe_u32 s62, s2, 0x10003")
            k("s_bfe_u32 s29, s2, 0x20001")
            k("s_lshl_b32 s29, s29, 2")
            k("s_bfe_u32 s52, s2, 0x20004")
            k("s_add_u32 s29, s29, s52")
            k("s_lshr_b32 s53, s2, 6")
            k("s_and_b32 s30, s2, 1")
            k("s_lshl_b32 s30, s30, 2")
            k("s_add_u32 s30, s30, s53")
        else:
            k("s_and_b32 s62, s2, 1")
            k("s_bfe_u32 s29, s2, 0x20001")
            k("s_lshl_b32 s29, s29, 2")
            k("s_bfe_u32 s52, s2, 0x20003")
            k("s_add_u32 s29, s29, s52")
            k("s_lshr_b32 s53, s2, 5")
            k("s_mov_b32 s30, s53")
        k("s_mov_b32 s55, 0")
        k("s_mul_i32 s63, s62, 28")
        srd(k, 56, 26, 256*64, FL_OFF) if False else None
    k("s_lshl_b32 s31, s29, 8")
    k("s_lshl_b32 s32, s30, 8")
    k("s_waitcnt lgkmcnt(0)")
    if g1:
        srd(k, 8, 4, S*F*2)
        srd(k, 12, 26, S*D*2, HN_OFF)
        srd(k, 16, 26, F*D*2, GT_OFF)
        srd(k, 20, 6, F*2)
        srd(k, 44, 26, 256*64, FL_OFF)
        k("s_lshl_b32 s33, s2, 6")
        k("v_mov_b32 v2, 0")
        k("v_lshlrev_b32 v3, 2, v0")
        k("v_cmp_gt_u32 vcc, 16, v0")
        k("s_and_saveexec_b64 s[34:35], vcc")
        k(f"s_cbranch_execz L_{tag}_nozf")
        k("buffer_store_dword v2, v3, s[44:47], s33 offen sc0 sc1")
        k(f"L_{tag}_nozf:")
        k("s_mov_b64 exec, -1")
        k("s_cmp_lt_u32 s2, 224")
        k(f"s_cbranch_scc1 L_{tag}_main")
        if W2PF:
            srd(k, 48, 24, F*S*2)
            k("s_sub_u32 s33, s2, 224")
            k("s_and_b32 s34, s33, 15")
            k("s_lshr_b32 s35, s33, 4")
            k(f"s_mul_i32 s35, s35, {1792*4096}")
            k("s_lshl_b32 s33, s34, 16")
            k("s_add_u32 s33, s33, s35")
            k("v_lshlrev_b32 v2, 7, v0")
            for i in range(W2PF):
                k(f"buffer_load_dword v9, v2, s[48:51], s33 offen")
                k(f"s_add_u32 s33, s33, {16*65536}")
        if XSENT:
            srd(k, 44, 26, 256*(16384 if XBF16 else 32768), 0x1E00000 if XB_SEP else VB_OFF)
            k("s_sub_u32 s33, s2, 224")
            k("s_lshl_b32 s33, s33, 17")
            k("v_lshlrev_b32 v2, 4, v0")
            for i in range(4): k(f"v_mov_b32 v{4+i}, -1")
            k("s_mov_b32 s34, 0")
            k(f"L_{tag}_clr:")
            k("buffer_store_dwordx4 v[4:7], v2, s[44:47], s33 offen sc0 sc1")
            k("s_add_u32 s33, s33, 8192")
            k("s_add_u32 s34, s34, 1")
            k("s_cmp_lt_u32 s34, 16")
            k(f"s_cbranch_scc1 L_{tag}_clr")
        k(f"s_branch {'L_gbar' if fused else ENDL}")
        k(f"L_{tag}_main:")
    else:
        srd(k, 8, 4, F*S*2)
        srd(k, 12, 26, F*D*2, GT_OFF)
        srd(k, 16, 26, S*D*2, H_OFF)
        srd(k, 20, 6, S*2)
        srd(k, 48, 24, S*D*2)
        k("s_getreg_b32 s54, hwreg(HW_REG_XCC_ID, 0, 4)")
        k("s_add_u32 s54, s54, 1")
        srd(k, 56, 26, 256*64, FL_OFF)
        k("s_lshl_b32 s33, s2, 6")
        k("v_mov_b32 v2, s54")
        k("v_mov_b32 v3, 0")
        k("v_cmp_eq_u32 vcc, 0, v0")
        k("s_and_saveexec_b64 s[34:35], vcc")
        k(f"s_cbranch_execz L_{tag}_nopub")
        k("buffer_store_dword v2, v3, s[56:59], s33 offen offset:4 sc0 sc1")
        k(f"L_{tag}_nopub:")
        k("s_mov_b64 exec, -1")
    k("s_cmp_ge_u32 s28, 4")
    k(f"s_cbranch_scc1 L_{tag}_prod")
    ACC = 8; X = 72; Y = 136; R = 200
    AA = [R+i for i in range(4)]; AB = [R+4+i for i in range(4)]
    BA = [R+8+i for i in range(4)]; BB = [R+12+i for i in range(4)]
    MISC = R + 16
    k("s_and_b32 s33, s28, 1")
    k("s_lshr_b32 s36, s28, 1")
    k("v_lshrrev_b32 v2, 4, v1")
    k("v_bfe_u32 v3, v1, 2, 2")
    k("v_and_b32 v4, 3, v1")
    k("v_lshl_add_u32 v5, v2, 2, v3")
    k("v_and_b32 v6, 7, v5")
    k("v_lshlrev_b32 v6, 1, v6")
    k("v_lshrrev_b32 v7, 1, v4")
    k("v_and_b32 v9, 1, v4")
    for (base, w, add) in ((BA, 's33', 0), (BB, 's36', ASZ)):
        k(f"s_lshl_b32 s35, {w}, 3")
        k("v_add_u32 v10, s35, v7")
        k("v_xor_b32 v10, v10, v6")
        k("v_lshlrev_b32 v10, 4, v10")
        k("v_lshl_add_u32 v10, v9, 3, v10")
        k("v_lshl_add_u32 v10, v5, 8, v10")
        if add: k(f"v_add_u32 v10, {add}, v10")
        k(f"v_mov_b32 v{base[0]}, v10")
        for t in range(1, 4): k(f"v_xor_b32 v{base[t]}, {32*t}, v10")
    for t in range(4):
        k(f"v_mov_b32 v{AA[t]}, v{BA[t]}"); k(f"v_mov_b32 v{AB[t]}, v{BB[t]}")
    BIAS = MISC
    k("v_and_b32 v2, 15, v1")
    k("v_lshlrev_b32 v2, 1, v2")
    k("s_lshl_b32 s37, s36, 7")
    k("s_add_u32 s37, s37, s31")
    for t in range(4):
        k(f"buffer_load_ushort v{BIAS+t}, v2, s[20:23], s37 offen offset:{32*t}")
    OV = MISC+4
    k("v_and_b32 v2, 15, v1")
    k("v_lshlrev_b32 v2, 11, v2")
    k("v_lshrrev_b32 v3, 4, v1")
    k(f"v_lshl_add_u32 v{OV}, v3, 4, v2")
    k("s_lshl_b32 s38, s29, 7")
    k("s_lshl_b32 s39, s36, 6")
    k("s_add_u32 s38, s38, s39")
    k("s_lshl_b32 s38, s38, 11")
    k("s_add_u32 s38, s38, s32")
    k("s_lshl_b32 s39, s33, 7")
    k("s_add_u32 s38, s38, s39")
    if not g1:
        HL = MISC+6
        NV = HL+16
        if OUT_TOUCH:
            k("s_lshl_b32 s39, s62, 16")
            k("s_add_u32 s39, s39, s38")
            k(f"buffer_load_dword v{NV}, v{OV}, s[48:51], s39 offen")
            NV += 1
    else:
        NV = MISC+5
    def reads(dst, buf=None):
        r = []
        for ks in range(2):
            b = dst + 32*ks; ko = 32*ks
            for t in range(4):
                if buf is None: regs = (AA[t], AB[t]); bo = 0
                else:
                    regs = (BA[t], BB[t]) if buf < 2 else (AA[t], AB[t]); bo = (buf % 2)*STG
                for (o, a) in ((0, regs[0]), (16, regs[1])):
                    r.append(f"ds_read_b64_tr_b16 {vr(b+o+4*t,2)}, v{a} offset:{bo+ko*256}")
                    r.append(f"ds_read_b64_tr_b16 {vr(b+o+4*t+2,2)}, v{a} offset:{bo+(ko+16)*256}")
        return r
    def mfmas(src):
        m = []
        for ks in range(2):
            b = src + 32*ks
            order = sorted([(td, tn) for td in range(4) for tn in range(4)], key=lambda x: (max(x), x))
            if FAKE32:
                for i in range(8):
                    a = ACC + 16*(i % 4)
                    m.append(f"{MF32} {vr(a,16)}, {vr(b+4*(i%4),4)}, {vr(b+16+4*((i//2)%4),4)}, {vr(a,16)}")
                continue
            for td, tn in order:
                a = ACC + 4*(4*tn+td)
                m.append(f"{MF16} {vr(a,4)}, {vr(b+4*td,4)}, {vr(b+16+4*tn,4)}, {vr(a,4)}")
        return m
    def sched(mf, rd, extra):
        out = []; ri = 0; ei = 0
        for i, m in enumerate(mf):
            out.append(m)
            if ri < len(rd):
                for _ in range(RPAT[i % len(RPAT)]):
                    if ri < len(rd): out.append(rd[ri]); ri += 1
            elif ei < len(extra):
                out.append(extra[ei]); ei += 1
        out += rd[ri:] + extra[ei:]
        return out
    def upd():
        e = [f"s_add_u32 s34, s34, {STG}", f"s_cmp_eq_u32 s34, {STG*NS}", "s_cselect_b32 s34, 0, s34"]
        e += [f"v_add_u32 v{AA[t]}, s34, v{BA[t]}" for t in range(4)]
        e += [f"v_add_u32 v{AB[t]}, s34, v{BB[t]}" for t in range(4)]
        return e
    for i in range(64): k(f"v_mov_b32 v{ACC+i}, 0")
    k("s_mov_b32 s34, 0")
    k("s_mov_b32 s35, 0")
    if fused and not g1: k("s_barrier")
    mark(k, 1)
    k("s_barrier")
    mark(k, 2)
    if STATIC:
        for t in range(4):
            k(f"v_add_u32 v{AA[t]}, 65536, v{BA[t]}"); k(f"v_add_u32 v{AB[t]}, 65536, v{BB[t]}")
        for x in reads(X, 0): k(x)
        k(f"L_{tag}_cloop:")
        for u in range(4):
            cur, nxt = (X, Y) if u % 2 == 0 else (Y, X)
            k("s_waitcnt lgkmcnt(0)")
            k("s_barrier")
            ex = ["s_add_u32 s35, s35, 4", f"s_cmp_lt_u32 s35, {NIT-4}"] if u == 3 else []
            for x in sched(mfmas(cur), reads(nxt, (u+1) % 4), ex): k(x)
        k(f"s_cbranch_scc1 L_{tag}_cloop")
        for u in range(2):
            cur, nxt = (X, Y) if u % 2 == 0 else (Y, X)
            k("s_waitcnt lgkmcnt(0)")
            k("s_barrier")
            for x in sched(mfmas(cur), reads(nxt, u+1), []): k(x)
    else:
        for x in reads(X): k(x)
        for x in upd(): k(x)
        k(f"L_{tag}_cloop:")
        k("s_waitcnt lgkmcnt(0)")
        if LOOPSTAMP:
            k(f"s_cmp_eq_u32 s35, {LOOPSTAMP}")
            k(f"s_cbranch_scc0 L_{tag}_nolatch")
            for i in range(4): k(f"s_mov_b64 s[{96-20+2*i}:{97-20+2*i}], s[{66+2*i}:{67+2*i}]") if False else None
            k("s_sub_u32 s90, s68, s66"); k("s_sub_u32 s91, s70, s68"); k("s_sub_u32 s92, s72, s70")
            k("s_memtime s[82:83]"); k("s_waitcnt lgkmcnt(0)"); k("s_sub_u32 s93, s82, s72")
            k(f"L_{tag}_nolatch:")
        k("s_barrier")
        if LOOPSTAMP: k("s_memtime s[66:67]")
        for x in sched(mfmas(X), reads(Y), upd()): k(x)
        if LOOPSTAMP: k("s_memtime s[68:69]")
        k("s_waitcnt lgkmcnt(0)")
        if not BAR2: k("s_barrier")
        if LOOPSTAMP: k("s_memtime s[70:71]")
        for x in sched(mfmas(Y), reads(X), upd() + ["s_add_u32 s35, s35, 2", f"s_cmp_lt_u32 s35, {NIT-2}"]): k(x)
        if LOOPSTAMP: k("s_memtime s[72:73]")
        k(f"s_cbranch_scc1 L_{tag}_cloop")
    if LOOPSTAMP:
        k("s_waitcnt lgkmcnt(0)")
        for i in range(4):
            k(f"s_mov_b32 s{66+2*i}, s{90+i}"); k(f"s_mov_b32 s{67+2*i}, 0")
    XID = 3
    if not g1:
        k(f"s_xor_b32 s42, s2, {8 if MAP2 == 1 else 1}")
        k("s_lshl_b32 s39, s42, 6")
        k("v_mov_b32 v4, 0")
        k(f"buffer_load_dword v{XID}, v4, s[56:59], s39 offen offset:4 sc0 sc1")
        k("s_lshl_b32 s39, s62, 16")
        k("s_add_u32 s39, s39, s38")
        for tnl in range(2):
            for tp in range(2):
                k(f"s_add_u32 s40, s39, {tnl*16*2048 + tp*64}")
                k(f"buffer_load_dwordx4 {vr(HL+8*tnl+4*tp,4)}, v{OV}, s[16:19], s40 offen")
    k("s_waitcnt lgkmcnt(0)")
    k("s_barrier")
    for x in sched(mfmas(X), reads(Y, 3 if STATIC else None), []): k(x)
    k("s_waitcnt lgkmcnt(0)")
    for x in mfmas(Y): k(x)
    mark(k, 3)
    k("s_mov_b32 s40, 0xffff0000")
    T = X
    def pack_swap(P):
        k(f"v_permlane32_swap_b32 v{P}, v{P+2}")
        k(f"v_permlane32_swap_b32 v{P+1}, v{P+3}")
        k(f"v_permlane16_swap_b32 v{P}, v{P+2}")
        k(f"v_permlane16_swap_b32 v{P+1}, v{P+3}")
    def store_lines(P0, P1, tmp, so, srdreg):
        for i in range(4): k(f"v_mov_b32 v{tmp+i}, v{P0+i}")
        for i in range(4): k(f"v_mov_b32_dpp v{P0+i}, v{P1+i} row_ror:8 row_mask:0xf bank_mask:0xc")
        for i in range(4): k(f"v_mov_b32_dpp v{P1+i}, v{tmp+i} row_ror:8 row_mask:0xf bank_mask:0x3")
        fl = ST_G1 if g1 else ST_G2
        k(f"s_add_u32 s41, s38, {so}")
        k(f"buffer_store_dwordx4 {vr(P0,4)}, v{OVS}, s[{srdreg}:{srdreg+3}], s41 offen {fl}")
        k(f"s_add_u32 s41, s38, {so + 8*2048}")
        k(f"buffer_store_dwordx4 {vr(P1,4)}, v{OVS}, s[{srdreg}:{srdreg+3}], s41 offen {fl}")
    OVS = 3
    def set_ovs():
        k("v_and_b32 v2, 7, v1")
        k("v_lshlrev_b32 v2, 11, v2")
        k("v_bfe_u32 v3, v1, 3, 1")
        k("v_lshl_add_u32 v2, v3, 6, v2")
        k("v_lshrrev_b32 v3, 4, v1")
        k(f"v_lshl_add_u32 v{OVS}, v3, 4, v2")
    if g1:
        SH = 32768 if STATIC else (98304 if BAR2 else 65536)
        k("s_lshl_b32 s39, s28, 13")
        k(f"s_add_u32 s39, s39, {SH}")
        k("v_lshl_add_u32 v2, v1, 4, s39")
        for i in range(8): k(f"ds_write_b128 v2, {vr(ACC+32+4*i,4)} offset:{1024*i}")
        k("s_waitcnt vmcnt(0) lgkmcnt(0)")
        k("s_barrier")
        mark(k, 4)
        k(f"L_{tag}_epi:")
        for t in range(2): k(f"v_lshlrev_b32 v{BIAS+t}, 16, v{BIAS+t}")
        c0 = -2.0*math.log2(math.e)*math.sqrt(2.0/math.pi); c1 = c0*0.044715
        k("s_mov_b32 s40, 0xffff0000")
        k(f"s_mov_b32 s42, {f32(c1)}")
        k(f"v_mov_b32 v4, {f32(c0)}"); k(f"v_mov_b32 v5, {f32(c0)}")
        k(f"v_mov_b32 v6, 1.0"); k(f"v_mov_b32 v7, 1.0")
        set_ovs()
        for tn in range(2):
            for tp in range(2):
                P = T + 4*tp + 24*tn
                for q in range(4):
                    td = 2*tp + q//2
                    src = ACC + 4*(4*tn+td) + 2*(q % 2)
                    u, w = T+8+4*q, T+10+4*q
                    gelu_pair(k, src, u, w, BIAS+tn, P+q)
                pack_swap(P)
            store_lines(T+24*tn, T+24*tn+4, T+32, tn*16*2048, 16)
    else:
        k("s_waitcnt vmcnt(0)")
        srd(k, 44, 26, 256*(16384 if XBF16 else 32768), 0x1E00000 if XB_SEP else VB_OFF)
        srd(k, 56, 26, 256*64, FL_OFF)
        k(f"s_xor_b32 s42, s2, {8 if MAP2 == 1 else 1}")
        k(f"s_lshl_b32 s43, s42, {14 if XBF16 else 15}")
        k(f"s_lshl_b32 s39, s28, {12 if XBF16 else 13}")
        k("s_add_u32 s43, s43, s39")
        k("v_lshlrev_b32 v2, 4, v1")
        k("v_mov_b32 v4, 0")
        k("s_lshl_b32 s39, s42, 6")
        k("s_mov_b32 s41, 0")
        k("v_readfirstlane_b32 s61, v3")
        k("s_cmp_eq_u32 s61, 0")
        k(f"s_cbranch_scc0 L_{tag}_xpolld")
        k(f"L_{tag}_xpoll:")
        k("buffer_load_dword v3, v4, s[56:59], s39 offen offset:4 sc0 sc1")
        k("s_waitcnt vmcnt(0)")
        k("v_readfirstlane_b32 s61, v3")
        k("s_add_u32 s41, s41, 1")
        k("s_cmp_ge_u32 s41, 0x40000")
        k(f"s_cbranch_scc1 L_{tag}_xpolld")
        k("s_cmp_eq_u32 s61, 0")
        k(f"s_cbranch_scc1 L_{tag}_xpoll")
        k(f"L_{tag}_xpolld:")
        k("s_cmp_eq_u32 s61, s54")
        k(f"s_cselect_b32 s61, {0 if FORCE_FAR else 1}, 0")
        def sends(flags, lab):
            k("s_cmp_eq_u32 s62, 0")
            k(f"s_cbranch_scc1 L_{tag}_k0{lab}")
            for half, l2 in ((0, None), (32, f"L_{tag}_k0{lab}:")):
                if l2: k(l2)
                if XBF16:
                    for i in range(16): k(f"{CVT} v{Y+32+i}, v{ACC+half+2*i}, v{ACC+half+2*i+1}")
                    for i in range(4):
                        k(f"s_add_u32 s39, s43, {1024*i}")
                        k(f"buffer_store_dwordx4 {vr(Y+32+4*i,4)}, v2, s[44:47], s39 offen {flags}")
                else:
                    for i in range(8):
                        k(f"s_add_u32 s39, s43, {1024*i}")
                        k(f"buffer_store_dwordx4 {vr(ACC+half+4*i,4)}, v2, s[44:47], s39 offen {flags}")
                if half == 0: k(f"s_branch L_{tag}_k1{lab}")
            k(f"L_{tag}_k1{lab}:")
        def handoff(stf, ldf, lab):
            sends(stf, lab)
            k("s_waitcnt vmcnt(0)")
            k("s_lshl_b32 s39, s42, 6")
            k("s_lshl_b32 s41, s28, 2")
            k("s_add_u32 s39, s39, s41")
            k("v_mov_b32 v3, 1")
            k("s_mov_b64 exec, 1")
            k(f"buffer_store_dword v3, v4, s[56:59], s39 offen offset:16 {stf}")
            k("s_lshl_b32 s39, s2, 6")
            k("s_add_u32 s39, s39, s41")
            k("s_mov_b32 s41, 0")
            k(f"L_{tag}_poll{lab}:")
            k(f"buffer_load_dword v3, v4, s[56:59], s39 offen offset:16 {ldf}")
            k("s_waitcnt vmcnt(0)")
            k("v_readfirstlane_b32 s43, v3")
            k("s_add_u32 s41, s41, 1")
            k("s_cmp_ge_u32 s41, 0x40000")
            k(f"s_cbranch_scc1 L_{tag}_polld{lab}")
            k("s_cmp_eq_u32 s43, 1")
            k(f"s_cbranch_scc0 L_{tag}_poll{lab}")
            k(f"L_{tag}_polld{lab}:")
            k("s_mov_b64 exec, -1")
            k(f"s_lshl_b32 s43, s2, {14 if XBF16 else 15}")
            k(f"s_lshl_b32 s39, s28, {12 if XBF16 else 13}")
            k("s_add_u32 s43, s43, s39")
            for i in range(4 if XBF16 else 8):
                k(f"s_add_u32 s39, s43, {1024*i}")
                k(f"buffer_load_dwordx4 {vr(Y+(32 if XBF16 else 0)+4*i,4)}, v2, s[44:47], s39 offen {ldf}")
        if XSENT:
            assert XBF16
            sends('sc0 sc1', 's')
            k("s_lshl_b32 s43, s2, 14")
            k("s_lshl_b32 s39, s28, 12")
            k("s_add_u32 s43, s43, s39")
            k("s_mov_b32 s41, 0")
            k("s_waitcnt vmcnt(0)")
            k(f"L_{tag}_spoll:")
            for i in range(4):
                k(f"s_add_u32 s39, s43, {1024*i}")
                k(f"buffer_load_dwordx4 {vr(Y+32+4*i,4)}, v2, s[44:47], s39 offen sc0 sc1")
            k("s_add_u32 s41, s41, 1")
            k("s_waitcnt vmcnt(0)")
            k(f"v_max3_u32 v3, v{Y+32}, v{Y+33}, v{Y+34}")
            for i in range(3, 15, 2): k(f"v_max3_u32 v3, v3, v{Y+32+i}, v{Y+32+i+1}")
            k(f"v_max_u32 v3, v3, v{Y+47}")
            k("v_cmp_eq_u32 vcc, -1, v3")
            k("s_nop 4")
            k("s_cmp_ge_u32 s41, 0x20000")
            k(f"s_cbranch_scc1 L_{tag}_spolld")
            k(f"s_cbranch_vccnz L_{tag}_spoll")
            k(f"L_{tag}_spolld:")
        else:
            k("s_cmp_eq_u32 s61, 1")
            k(f"s_cbranch_scc0 L_{tag}_far")
            handoff('', 'sc1', 'n')
            k(f"s_branch L_{tag}_xdone")
            k(f"L_{tag}_far:")
            handoff('sc0 sc1', 'sc0 sc1', 'f')
            k(f"L_{tag}_xdone:")
        k("s_cmp_eq_u32 s62, 0")
        k(f"s_cbranch_scc1 L_{tag}_kept")
        for i in range(32): k(f"v_mov_b32 v{ACC+i}, v{ACC+32+i}")
        k(f"v_mov_b32 v{BIAS}, v{BIAS+2}"); k(f"v_mov_b32 v{BIAS+1}, v{BIAS+3}")
        k(f"L_{tag}_kept:")
        mark(k, 4)
        k(f"v_lshlrev_b32 v{BIAS}, 16, v{BIAS}"); k(f"v_lshlrev_b32 v{BIAS+1}, 16, v{BIAS+1}")
        if PERTURB:
            k(f"v_add_f32 v{BIAS}, {f32(PERTURB)}, v{BIAS}"); k(f"v_add_f32 v{BIAS+1}, {f32(PERTURB)}, v{BIAS+1}")
        k("s_lshl_b32 s39, s62, 16")
        k("s_add_u32 s38, s38, s39")
        set_ovs()
        for tnl in range(2):
            for tp in range(2):
                i0 = 4*tnl + 2*tp
                if XBF16: k(f"s_waitcnt vmcnt({3 - i0//2})")
                else:     k(f"s_waitcnt vmcnt({6 - i0 if i0 < 6 else 0})")
                if i0 == 0: mark(k, 5)
                P = T + 4*tp + 24*tnl
                for q in range(4):
                    td = 2*tp + q//2
                    a = ACC + 4*(4*tnl+td) + 2*(q % 2); y = Y + 4*(4*tnl+td) + 2*(q % 2)
                    u, w = T+8+4*q, T+10+4*q
                    if XBF16:
                        pk = Y + 32 + (4*(4*tnl+td) + 2*(q % 2))//2
                        k(f"v_lshlrev_b32 v{y}, 16, v{pk}")
                        k(f"v_and_b32 v{y+1}, s40, v{pk}")
                    k(f"v_pk_add_f32 {vr(a,2)}, {vr(a,2)}, {vr(y,2)}")
                    if EMU_Y:
                        k(f"{CVT} v{w}, v{a}, v{a+1}")
                        k(f"v_lshlrev_b32 v{u}, 16, v{w}")
                        k(f"v_and_b32 v{u+1}, s40, v{w}")
                        k(f"v_add_f32 v{u}, v{u}, v{BIAS+tnl}")
                        k(f"v_add_f32 v{u+1}, v{u+1}, v{BIAS+tnl}")
                    else:
                        k(f"v_add_f32 v{u}, v{a}, v{BIAS+tnl}")
                        k(f"v_add_f32 v{u+1}, v{a+1}, v{BIAS+tnl}")
                    k(f"{CVT} v{P+q}, v{u}, v{u+1}")
                pack_swap(P)
                for q in range(4):
                    u, w = T+8+4*q, T+10+4*q
                    hp = HL+8*tnl+4*tp+q
                    k(f"v_lshlrev_b32 v{u}, 16, v{P+q}")
                    k(f"v_and_b32 v{u+1}, s40, v{P+q}")
                    k(f"v_lshlrev_b32 v{w}, 16, v{hp}")
                    k(f"v_and_b32 v{w+1}, s40, v{hp}")
                    k(f"v_pk_add_f32 {vr(u,2)}, {vr(u,2)}, {vr(w,2)}")
                    k(f"{CVT} v{P+q}, v{u}, v{u+1}")
            store_lines(T+24*tnl, T+24*tnl+4, T+32, tnl*16*2048, 48)
    stamp_end(k, tag)
    k(f"s_branch {'L_gbar' if (fused and g1) else ENDL}")
    k(f"L_{tag}_prod:")
    if PPRIO: k(f"s_setprio {PPRIO}")
    k("s_sub_u32 s33, s28, 4")
    k("v_lshrrev_b32 v2, 4, v1")
    k("s_and_b32 s34, s33, 1")
    k("s_lshl_b32 s34, s34, 2")
    k("v_add_u32 v3, s34, v2")
    k("v_lshlrev_b32 v3, 1, v3")
    k("v_and_b32 v4, 15, v1")
    k("v_xor_b32 v3, v3, v4")
    k("v_lshlrev_b32 v3, 4, v3")
    k("v_lshl_add_u32 v8, v2, 11, v3")
    k(f"v_mul_u32_u24 v2, {BSTR}, v2")
    k("v_add_u32 v9, v2, v3")
    k("s_lshl_b32 s34, s33, 13")
    k("s_add_u32 s40, s32, s34")
    k(f"s_mul_i32 s34, s33, {4*BSTR}")
    k("s_add_u32 s41, s31, s34")
    k("s_lshl_b32 s42, s33, 10")
    k("s_mov_b32 s43, 0")
    k("s_add_u32 s46, s52, s53")
    k("s_mov_b32 s47, 0")
    def issue():
        k("s_add_u32 s58, s46, s47")
        k("s_and_b32 s58, s58, 3")
        k("s_cmp_eq_u32 s58, 0")
        k(f"s_cselect_b32 s58, {3+NIT}, {NIT-1}")
        k("s_add_u32 s58, s58, s47")
        k("s_add_u32 s58, s58, s55")
        k(f"s_cmp_ge_u32 s58, {2*NIT}")
        k(f"s_cselect_b32 s59, {2*NIT}, {NIT}")
        k(f"s_cmp_ge_u32 s58, {NIT}")
        k(f"s_cselect_b32 s59, s59, 0")
        k("s_sub_u32 s58, s58, s59")
        if not KPERM: k("s_mov_b32 s58, s47")
        if KWRAP: k(f"s_and_b32 s58, s58, {KWRAP-1}")
        k("s_add_u32 s58, s58, s63")
        k(f"s_mul_i32 s59, s58, {64*BSTR}")
        k(f"s_lshl_b32 s58, s58, 17")
        k("s_add_u32 s58, s58, s40")
        k("s_add_u32 s59, s59, s41")
        k("s_add_u32 s44, s43, s42")
        for m in range(4):
            k(f"s_add_u32 m0, s44, {4096*m}")
            k(f"s_add_u32 s45, s58, {m*16*2048}")
            k(f"buffer_load_dwordx4 v8, s[12:15], s45 offen lds")
            k(f"s_add_u32 m0, s44, {ASZ+4096*m}")
            k(f"s_add_u32 s45, s59, {m*16*BSTR}")
            k(f"buffer_load_dwordx4 v9, s[8:11], s45 offen {NT_B1 if g1 else NT_B2} lds")
        k("s_add_u32 s47, s47, 1")
        k(f"s_add_u32 s43, s43, {STG}")
        k(f"s_cmp_eq_u32 s43, {STG*NS}")
        k("s_cselect_b32 s43, 0, s43")
    if fused and not g1:
        k("s_cmp_eq_u32 s33, 0")
        k("s_cbranch_scc0 L_gbar_nopoll")
        srd(k, 36, 26, 1024, BAR_OFF)
        k("v_and_b32 v2, 7, v1")
        k("v_lshlrev_b32 v2, 7, v2")
        k("s_mov_b32 s34, 0")
        k("L_gbar_poll:")
        if PSLEEP: k(f"s_sleep {PSLEEP}")
        k(f"buffer_load_dword v3, v2, s[36:39], 0 offen {POLLF}")
        k("s_waitcnt vmcnt(0)")
        k("v_cmp_gt_u32 vcc, 32, v3")
        k("s_add_u32 s34, s34, 1")
        k("s_cmp_ge_u32 s34, 0x20000")
        k("s_cbranch_scc1 L_gbar_nopoll")
        k("s_cbranch_vccnz L_gbar_poll")
        k("L_gbar_nopoll:")
        k("s_barrier")
    if BAR2:
        per = 8
        mark(k, 1)
        issue(); mark(k, 2); issue()
        k(f"s_waitcnt vmcnt({per})")
        mark(k, 3)
        k("s_barrier")
        issue(); issue()
        mark(k, 4)
        k("s_mov_b32 s60, 0")
        k(f"L_{tag}_ploop:")
        k(f"s_waitcnt vmcnt({per})")
        k("s_barrier")
        issue(); issue()
        k("s_add_u32 s60, s60, 2")
        k(f"s_cmp_lt_u32 s60, {NIT-4}")
        k(f"s_cbranch_scc1 L_{tag}_ploop")
        k(f"s_waitcnt vmcnt({per})")
        k("s_barrier")
        k("s_waitcnt vmcnt(0)")
        k("s_barrier")
    else:
        producer_loop(k, tag, 8, issue, 3 if STATIC else NS, NIT)
    if g1:
        k("s_and_b32 s34, s33, 1")
        k("s_lshr_b32 s36, s33, 1")
        k("v_and_b32 v2, 15, v1")
        k("v_lshlrev_b32 v2, 1, v2")
        k("s_lshl_b32 s37, s36, 7")
        k("s_add_u32 s37, s37, s31")
        for t in range(2):
            k(f"buffer_load_ushort v{BIAS+t}, v2, s[20:23], s37 offen offset:{64+32*t}")
        k("v_and_b32 v2, 15, v1")
        k("v_lshlrev_b32 v2, 11, v2")
        k("v_lshrrev_b32 v3, 4, v1")
        k(f"v_lshl_add_u32 v{OV}, v3, 4, v2")
        k("s_lshl_b32 s38, s29, 7")
        k("s_lshl_b32 s39, s36, 6")
        k("s_add_u32 s38, s38, s39")
        k("s_add_u32 s38, s38, 32")
        k("s_lshl_b32 s38, s38, 11")
        k("s_add_u32 s38, s38, s32")
        k("s_lshl_b32 s39, s34, 7")
        k("s_add_u32 s38, s38, s39")
        k("s_lshl_b32 s39, s33, 13")
        k(f"s_add_u32 s39, s39, {32768 if STATIC else (98304 if BAR2 else 65536)}")
        k("v_lshl_add_u32 v2, v1, 4, s39")
        k("s_setprio 0")
        k("s_barrier")
        for i in range(8): k(f"ds_read_b128 {vr(ACC+4*i,4)}, v2 offset:{1024*i}")
        k("s_waitcnt vmcnt(0) lgkmcnt(0)")
        k(f"s_branch L_{tag}_epi")
    stamp_end(k, tag, tid=256, slot=256, sfx='p')
    if fused and g1:
        return k, NV, STG*NS
    k(f"{ENDL}:")
    k("s_endpgm")
    return k, NV, STG*NS

def gelu_pair(k, src, u, w, bias, dst):
    if EMU_U:
        k(f"{CVT} v{w}, v{src}, v{src+1}")
        k(f"v_lshlrev_b32 v{u}, 16, v{w}")
        k(f"v_and_b32 v{u+1}, s40, v{w}")
        k(f"v_add_f32 v{u}, v{u}, v{bias}")
        k(f"v_add_f32 v{u+1}, v{u+1}, v{bias}")
        k(f"{CVT} v{w}, v{u}, v{u+1}")
        k(f"v_lshlrev_b32 v{u}, 16, v{w}")
        k(f"v_and_b32 v{u+1}, s40, v{w}")
    else:
        k(f"v_add_f32 v{u}, v{src}, v{bias}")
        k(f"v_add_f32 v{u+1}, v{src+1}, v{bias}")
    k(f"v_pk_mul_f32 {vr(w,2)}, {vr(u,2)}, {vr(u,2)}")
    k(f"v_pk_fma_f32 {vr(w,2)}, {vr(w,2)}, s[42:43], {vr(4,2)} op_sel_hi:[1,0,1]")
    k(f"v_pk_mul_f32 {vr(w,2)}, {vr(w,2)}, {vr(u,2)}")
    k(f"v_exp_f32 v{w}, v{w}")
    k(f"v_exp_f32 v{w+1}, v{w+1}")
    k(f"s_nop 0")
    k(f"v_pk_add_f32 {vr(w,2)}, {vr(w,2)}, {vr(6,2)}")
    k(f"v_rcp_f32 v{w}, v{w}")
    k(f"v_rcp_f32 v{w+1}, v{w+1}")
    k(f"s_nop 0")
    k(f"v_pk_mul_f32 {vr(w,2)}, {vr(w,2)}, {vr(u,2)}")
    k(f"{CVT} v{dst}, v{w}, v{w+1}")

RPAT = [2, 1]
FUSE_GG = 0
NT_B1 = ''
NT_B2 = ''
NT_X = ''
NT_W = ''
KHALF = 1
XSENT = 1
XBF16 = 1
EMU_Y = 1
PERTURB = 0
PSLEEP = 4
POLLF = 'sc0 sc1'
STATIC = 1
LOOPSTAMP = 0
BAR2 = 0
FAKE32 = 0
MAP2 = 0
XB_SEP = 1
FORCE_FAR = 0
PPRIO = 3
PFD = 0
KPERM = 1
FAKE16 = 0
NS1 = 3
NS2 = 3
KWRAP = 0
W2PF = 7
EMU_U = True
RPG1 = 3
RPG2 = 4
def gen_gg():
    k1, nv1, l1 = gemm_kernel('g1', True)
    k2, nv2, l2 = gemm_kernel('g2', True)
    k1.l += k2.l
    return k1, max(nv1, nv2), max(l1, l2)
def gen_g1(): return gemm_kernel('g1')
def gen_g2(): return gemm_kernel('g2')

KERNELS = [('p1_kernel', gen_p1, (256,1,1), (256,1,1)), ('p2_kernel', gen_p2, (257,1,1), (256,1,1)), ('p3_kernel', gen_p3, (256,1,1), (256,1,1)),
 ('g1_kernel', gen_g1, (256,1,1), (512,1,1)), ('g2_kernel', gen_g2, (256,1,1), (512,1,1))]

def build_all(kernels=None):
    ks = []
    if kernels is None:
        kernels = KERNELS[:3] + [('gg_kernel', gen_gg, (256,1,1), (512,1,1))] if FUSE_GG else KERNELS
    for name, fn, grid, block in kernels:
        k, nv, lds = fn()
        if ST_ALL:
            k.l = [ (x + ' ' + ST_ALL) if ('buffer_store' in x and 'sc1' not in x and 'sc0' not in x and ' nt' not in x) else x for x in k.l]
        if name.startswith('g'):
            if NO_DMA: k.l = [x for x in k.l if not ('offen lds' in x)]
            if NO_MFMA: k.l = [x for x in k.l if 'v_mfma' not in x]
            if NO_ADV: k.l = [x for x in k.l if not (x.strip().startswith('s_add_u32 s40, s40,') or x.strip().startswith('s_add_u32 s41, s41,'))]
            if NO_A: k.l = [x for x in k.l if not ('s[12:15]' in x and 'offen lds' in x)]
            if NO_B: k.l = [x for x in k.l if not ('s[8:11]' in x and 'offen lds' in x)]
            if NO_BAR: k.l = [x for x in k.l if 's_barrier' not in x]
            if NO_READ: k.l = [x for x in k.l if 'ds_read_b64_tr' not in x]
        ks.append((name, k, nv, lds, grid, block))
    hdr = open('sequential_preLN__spectral_gfnet__mixer_token_mlp__prompt.s.ref').read().split('; Override launch')[0]
    s = hdr
    for name, k, nv, lds, grid, block in ks:
        s += f"; @launch kernel={name} grid=({grid[0]},{grid[1]},{grid[2]}) block=({block[0]},{block[1]},{block[2]}) lds={lds}\n"
    s += '.amdgcn_target "amdgcn-amd-amdhsa--gfx950"\n.text\n'
    for name, k, nv, lds, grid, block in ks: s += k.text()
    s += 'L_text_end:\n'
    s += '.section .rodata,"a"\n'
    for name, k, nv, lds, grid, block in ks: s += descriptor(name, nv)
    return s, ks

if __name__ == '__main__':
    s, ks = build_all()
    open(sys.argv[1] if len(sys.argv) > 1 else 'out.s', 'w').write(s)
    print('written', len(s), 'bytes')
```

```python
import sys, math, struct
sys.path.insert(0, 'work')
from asmlib import *

ZW_OFF = 0x0          ; ZW_SIZE = 257*32768
ZD_OFF = 0x0 ; WB_OFF = 0x480000
VB_OFF = 0x900000     ; VB_BLK = 256*64
H_OFF  = 0xE00000
HN_OFF = 0x1200000
GT_OFF = 0x1600000
WS_USED = 0x1D00000
S, D, F = 2048, 1024, 3584

def f32(x):
    return '0x%08x' % struct.unpack('<I', struct.pack('<f', x))[0]

CVT = 'v_cvt_pk_bf16_f32'
STAMP = False
NO_DMA = False
NO_MFMA = False
NO_READ = False
NO_BAR = False
NO_ADV = False
NO_A = False
NO_B = False
STAMP_OFF = 0x3000000
KIDX = {'p1':0,'p2':1,'p3':2,'g1':3,'g2':4}
NMARK = 8
def mark(k, i):
    if STAMP and not (LOOPSTAMP and k.name.startswith('g') and 1 <= i <= 4): k(f"s_memrealtime s[{64+2*i}:{65+2*i}]")
def stamp_begin(k):
    if STAMP:
        for i in range(1, NMARK): k(f"s_mov_b64 s[{64+2*i}:{65+2*i}], 0")
        k("s_memrealtime s[64:65]")
        k("s_memtime s[94:95]")
def stamp_end(k, tag, tid=0, slot=0, sfx=''):
    if not STAMP: return
    mark(k, 6)
    k("s_waitcnt vmcnt(0) lgkmcnt(0)")
    mark(k, 7)
    k("s_memtime s[84:85]")
    k("s_load_dwordx2 s[88:89], s[0:1], 80")
    k("s_waitcnt lgkmcnt(0)")
    k(f"s_add_u32 s88, s88, {STAMP_OFF + KIDX[tag]*65536}")
    k("s_addc_u32 s89, s89, 0")
    k(f"s_add_u32 s87, s2, {slot}")
    k("s_lshl_b32 s87, s87, 7")
    k("v_mov_b32 v8, s87")
    k(f"v_cmp_eq_u32 vcc, {tid}, v0" if tid <= 64 else f"v_cmp_eq_u32 vcc, {hex(tid)}, v0")
    k("s_and_saveexec_b64 s[86:87], vcc")
    k(f"s_cbranch_execz L_{tag}_nostamp{sfx}")
    for i in range(0, NMARK, 2):
        for j in range(4): k(f"v_mov_b32 v{4+j}, s{64+2*i+j}")
        k(f"global_store_dwordx4 v8, v[4:7], s[88:89] offset:{8*i}")
        k("s_nop 1")
    k("v_mov_b32 v4, s94"); k("v_mov_b32 v5, s95"); k("v_mov_b32 v6, s84"); k("v_mov_b32 v7, s85")
    k("global_store_dwordx4 v8, v[4:7], s[88:89] offset:64")
    k("s_getreg_b32 s84, hwreg(HW_REG_XCC_ID, 0, 4)")
    k("s_nop 1")
    k("v_mov_b32 v4, s84")
    k("global_store_dword v8, v4, s[88:89] offset:80")
    k(f"L_{tag}_nostamp{sfx}:")

MF32 = 'v_mfma_f32_32x32x16_bf16'

CODEPF = 1
W1PF = 0
W1L2 = 0
ST_FLAGS = ''
ST_ALL = ''
ST_P1 = 'sc1'
ST_P2 = 'sc1'
ST_P3 = 'sc1'
ST_G1 = 'sc1'
ST_G2 = 'nt'
OUT_TOUCH = 0
def code_prefetch(k, tag, first_label, last_label, vtmp, stmp, nwaves_cond=None):
    if not CODEPF: return
    k(f"s_getpc_b64 s[{stmp}:{stmp+1}]")
    k(f"L_{tag}_pc:")
    k(f"s_add_u32 s{stmp}, s{stmp}, {first_label}-L_{tag}_pc")
    k(f"s_addc_u32 s{stmp+1}, s{stmp+1}, 0")

WS_BASE = 0
def srd(k, s, base, size, off=0):
    if base == 26: off += WS_BASE
    if off:
        k(f"s_add_u32 s{s}, s{base}, {hex(off)}")
        k(f"s_addc_u32 s{s+1}, s{base+1}, 0")
    else:
        k(f"s_mov_b32 s{s}, s{base}")
        k(f"s_mov_b32 s{s+1}, s{base+1}")
    k(f"s_mov_b32 s{s+2}, {hex(size)}")
    k(f"s_mov_b32 s{s+3}, 0x20000")

SEQ = [(r, c) for r in range(4) for c in range(4)]

def rot_setup(k, vA, t):
    k(f"v_mul_f32 v{t+4}, {f32(5.0)}, v{vA}")
    k(f"v_cos_f32 v{t}, v{vA}")
    k(f"v_sin_f32 v{t+1}, v{vA}")
    k(f"v_cos_f32 v{t+2}, v{t+4}")
    k(f"v_sin_f32 v{t+3}, v{t+4}")

def rot(k, dst, src, st, tmp, sign):
    k(f"v_pk_mul_f32 {vr(tmp,2)}, {vr(src,2)}, {vr(st,2)} op_sel_hi:[1,0]")
    neg = "neg_lo:[0,1,0]" if sign > 0 else "neg_hi:[0,1,0]"
    k(f"v_pk_fma_f32 {vr(dst,2)}, {vr(src,2)}, {vr(st,2)}, {vr(tmp,2)} op_sel:[1,1,0] op_sel_hi:[0,1,1] {neg}")

def gen_matrix(k, Mr, Mi, vA, vB, t):
    rot_setup(k, vA, t)
    cur = [t+6, t+8]
    k(f"v_cos_f32 v{cur[0]}, v{vB}")
    k(f"v_sin_f32 v{cur[0]+1}, v{vB}")
    k("s_nop 0")
    for i, (r, c) in enumerate(SEQ):
        a_, b_ = cur[i % 2], cur[(i+1) % 2]
        if i < 15: rot(k, b_, a_, t+2 if c == 3 else t, t+4, +1)
        k(f"{CVT} v{Mr+i}, v{a_}, v{a_+1}")
        k(f"{CVT} v{Mi+i}, -v{a_+1}, v{a_}")

def gen_twiddle(k, tw, vA, vB, t, scale=None):
    rot_setup(k, vA, t)
    k(f"v_cos_f32 v{tw}, v{vB}")
    k(f"v_sin_f32_e64 v{tw+1}, -v{vB}")
    if scale is not None:
        k(f"v_mul_f32 v{tw}, {f32(scale)}, v{tw}")
        k(f"v_mul_f32 v{tw+1}, {f32(scale)}, v{tw+1}")
    else: k("s_nop 0")
    for i, (r, c) in enumerate(SEQ):
        if i < 15: rot(k, tw+2*(i+1), tw+2*i, t+2 if c == 3 else t, t+4, -1)

def stage(k, typ, Dr, Di, data, Mr, Mi, first=True):
    for r in range(4):
        for (Dx, M) in ((Dr, Mr), (Di, Mi)):
            c = '0' if (r == 0 and first) else vr(Dx, 16)
            if typ == 'A': k(f"{MF32} {vr(Dx,16)}, {vr(data+4*r,4)}, {vr(M+4*r,4)}, {c}")
            else:          k(f"{MF32} {vr(Dx,16)}, {vr(M+4*r,4)}, {vr(data+4*r,4)}, {c}")

def cmul_pack(k, Dr, Di, w, out, t, conj=False):
    for j in range(16):
        o = t + 2*(j % 4); jp = j & ~1; x = j & 1
        k(f"v_pk_mul_f32 {vr(o,2)}, {vr(w+2*j,2)}, {vr(Dr+jp,2)} op_sel:[0,{x}] op_sel_hi:[1,{x}]")
        k(f"v_pk_fma_f32 {vr(o,2)}, {vr(w+2*j,2)}, {vr(Di+jp,2)}, {vr(o,2)} op_sel:[1,{x},0] op_sel_hi:[0,{x},1] neg_lo:[1,0,0]")
        if j >= 1:
            po = t + 2*((j-1) % 4); n = '-' if conj else ''
            k(f"{CVT} v{out+j-1}, v{po}, {n}v{po+1}")
    po = t + 2*(15 % 4); n = '-' if conj else ''
    k(f"{CVT} v{out+15}, v{po}, {n}v{po+1}")

def wave_reduce2(k, a, b):
    for m in ("quad_perm:[1,0,3,2] row_mask:0xf", "quad_perm:[2,3,0,1] row_mask:0xf", "row_half_mirror row_mask:0xf",
              "row_mirror row_mask:0xf", "row_bcast:15 row_mask:0xa", "row_bcast:31 row_mask:0xc"):
        k(f"v_add_f32_dpp v{a}, v{a}, v{a} {m} bank_mask:0xf")
        k(f"v_add_f32_dpp v{b}, v{b}, v{b} {m} bank_mask:0xf")

def tree_sum(k, X, n, t, op='add'):
    acc = [t, t+2, t+4, t+6]
    for i in range(4):
        k(f"v_pk_add_f32 {vr(acc[i],2)}, {vr(X+2*i,2)}, {vr(X+2*(i+4),2)}")
    for i in range(8, n):
        k(f"v_pk_add_f32 {vr(acc[i%4],2)}, {vr(acc[i%4],2)}, {vr(X+2*i,2)}")
    k(f"v_pk_add_f32 {vr(acc[0],2)}, {vr(acc[0],2)}, {vr(acc[1],2)}")
    k(f"v_pk_add_f32 {vr(acc[2],2)}, {vr(acc[2],2)}, {vr(acc[3],2)}")
    k(f"v_pk_add_f32 {vr(acc[0],2)}, {vr(acc[0],2)}, {vr(acc[2],2)}")

def ln_scalars(k, t):
    k(f"v_mul_f32 v{t}, {f32(1/1024)}, v{t}")
    k(f"v_mul_f32 v{t+1}, {f32(1/1024)}, v{t+1}")
    if EMU_LN:
        k(f"{CVT} v{t+2}, v{t}, v{t+1}")
        k(f"v_lshlrev_b32 v{t}, 16, v{t+2}")
        k(f"v_and_b32 v{t+1}, 0xffff0000, v{t+2}")
    k(f"v_add_f32 v{t}, {f32(1e-5)}, v{t}")
    k(f"v_add_f32 v{t+1}, {f32(1e-5)}, v{t+1}")
    if EMU_LN:
        k(f"{CVT} v{t+2}, v{t}, v{t+1}")
        k(f"v_lshlrev_b32 v{t}, 16, v{t+2}")
        k(f"v_and_b32 v{t+1}, 0xffff0000, v{t+2}")
        k(f"v_sqrt_f32 v{t}, v{t}")
        k(f"v_sqrt_f32 v{t+1}, v{t+1}")
        k(f"s_nop 0")
        k(f"{CVT} v{t+2}, v{t}, v{t+1}")
        k(f"v_lshlrev_b32 v{t}, 16, v{t+2}")
        k(f"v_and_b32 v{t+1}, 0xffff0000, v{t+2}")
        k(f"v_rcp_f32 v{t}, v{t}")
        k(f"v_rcp_f32 v{t+1}, v{t+1}")
    else:
        k(f"v_rsq_f32 v{t}, v{t}")
        k(f"v_rsq_f32 v{t+1}, v{t+1}")
    k(f"s_nop 0")
    k(f"v_mul_f32 v{t+12}, v{t+12}, v{t}")
    k(f"v_mul_f32 v{t+13}, v{t+13}, v{t+1}")

def ln_mean(k, t, sTmp):
    k(f"v_mul_f32 v{t}, {f32(1/1024)}, v{t}")
    k(f"v_mul_f32 v{t+1}, {f32(1/1024)}, v{t+1}")
    if EMU_LN:
        k(f"{CVT} v{t+2}, v{t}, v{t+1}")
        k(f"v_readlane_b32 s{sTmp}, v{t}, 63")
        k(f"v_readlane_b32 s{sTmp+1}, v{t+1}, 63")
        k(f"v_lshlrev_b32 v{t+12}, 16, v{t+2}")
        k(f"v_and_b32 v{t+13}, 0xffff0000, v{t+2}")
    else:
        k(f"v_mov_b32 v{t+12}, v{t}")
        k(f"v_mov_b32 v{t+13}, v{t+1}")
        k(f"v_readlane_b32 s{sTmp}, v{t}, 63")
        k(f"v_readlane_b32 s{sTmp+1}, v{t+1}, 63")

def ln_stats_xrow(k, X, t, sM, sR, sTmp):
    tree_sum(k, X, 16, t)
    wave_reduce2(k, t, t+1)
    ln_mean(k, t, sTmp)
    acc = [t, t+2]; tmp = [t+4, t+6, t+8, t+10]
    for i in range(16):
        d = tmp[i % 4]
        k(f"v_pk_add_f32 {vr(d,2)}, {vr(X+2*i,2)}, {sr(sTmp,2)} neg_lo:[0,1] neg_hi:[0,1]")
        a = acc[i % 2]
        if i < 2: k(f"v_pk_mul_f32 {vr(a,2)}, {vr(d,2)}, {vr(d,2)}")
        else:     k(f"v_pk_fma_f32 {vr(a,2)}, {vr(d,2)}, {vr(d,2)}, {vr(a,2)}")
    k(f"v_pk_add_f32 {vr(t,2)}, {vr(t,2)}, {vr(t+2,2)}")
    wave_reduce2(k, t, t+1)
    ln_scalars(k, t)
    k(f"v_readlane_b32 s{sR}, v{t}, 63")
    k(f"v_readlane_b32 s{sR+1}, v{t+1}, 63")
    k(f"v_readlane_b32 s{sM}, v{t+12}, 63")
    k(f"v_readlane_b32 s{sM+1}, v{t+13}, 63")

def gen_p1():
    k = Kern('p1_kernel')
    k("s_cmp_ge_u32 s2, 256")
    k("s_cbranch_scc1 L_p1_end")
    stamp_begin(k)
    k("s_load_dwordx4 s[4:7], s[0:1], 0")
    k("s_load_dwordx2 s[24:25], s[0:1], 16")
    k("s_load_dwordx2 s[60:61], s[0:1], 32")
    k("s_load_dwordx2 s[26:27], s[0:1], 80")
    TID, LANE = 0, 1
    if CODEPF:
        k("s_getpc_b64 s[52:53]")
        k("L_p1_pc:")
        k("s_sub_u32 s52, s52, L_p1_pc-p1_kernel")
        k("s_subb_u32 s53, s53, 0")
        k("v_lshlrev_b32 v210, 7, v0")
        k("v_mov_b32 v211, s53")
        k("v_add_co_u32 v210, vcc, s52, v210")
        k("v_addc_co_u32 v211, vcc, 0, v211, vcc")
        k("v_cmp_gt_u32 vcc, (L_p1_endc-p1_kernel+127)/128, v0")
        k("s_and_saveexec_b64 s[54:55], vcc")
        k("s_cbranch_execz L_p1_cp0")
        k("global_load_dword v212, v[210:211], off")
        k("L_p1_cp0:")
        k("s_mov_b64 exec, -1")
        k("s_bfe_u32 s54, s2, 0x10003")
        k("s_lshl_b32 s54, s54, 15")
        k("s_add_u32 s54, s54, L_p1_endc-p1_kernel")
        k("v_add_co_u32 v210, vcc, s54, v210")
        k("v_addc_co_u32 v211, vcc, 0, v211, vcc")
        k("v_lshlrev_b32 v213, 7, v0")
        k("v_add_u32 v213, s54, v213")
        k("v_cmp_gt_u32 vcc, L_text_end-p1_kernel, v213")
        k("s_and_saveexec_b64 s[54:55], vcc")
        k("s_cbranch_execz L_p1_cp1")
        k("global_load_dword v212, v[210:211], off")
        k("L_p1_cp1:")
        k("s_mov_b64 exec, -1")
    k("v_and_b32 v1, 63, v0")
    k("v_lshrrev_b32 v2, 6, v0")
    k("v_readfirstlane_b32 s28, v2")
    k("s_lshr_b32 s29, s2, 5")
    k("s_lshl_b32 s29, s29, 2")
    k("s_and_b32 s30, s2, 31")
    k("s_add_u32 s31, s29, s28")
    k("s_lshl_b32 s31, s31, 5")
    k("s_add_u32 s31, s31, s30")
    k("s_lshl_b32 s31, s31, 11")
    k("s_add_u32 s32, s31, 0x200000")
    k("s_waitcnt lgkmcnt(0)")
    srd(k, 8, 4, S*D*2)
    srd(k, 12, 6, S*513*2)
    srd(k, 16, 24, S*513*2)
    srd(k, 20, 26, 257*16384, ZD_OFF)
    srd(k, 72 if False else 52, 26, 257*16384, WB_OFF) if False else None
    XL = 4
    if FUSE_GG:
        srd(k, 56, 26, 1024, BAR_OFF)
        k("s_cmp_lt_u32 s2, 8")
        k("s_cbranch_scc0 L_p1_nozb")
        k("s_lshl_b32 s33, s2, 7")
        k("v_mov_b32 v2, 0")
        k("v_cmp_eq_u32 vcc, 0, v0")
        k("s_and_saveexec_b64 s[34:35], vcc")
        k("s_cbranch_execz L_p1_nozb")
        k("buffer_store_dword v2, v2, s[56:59], s33 offen sc0 sc1")
        k("L_p1_nozb:")
        k("s_mov_b64 exec, -1")
    k("v_lshlrev_b32 v2, 4, v1")
    k(f"buffer_load_dwordx4 {vr(XL,4)}, v2, s[8:11], s31 offen {NT_X}")
    k(f"buffer_load_dwordx4 {vr(XL+4,4)}, v2, s[8:11], s31 offen offset:1024 {NT_X}")
    k(f"buffer_load_dwordx4 {vr(XL+8,4)}, v2, s[8:11], s32 offen {NT_X}")
    k(f"buffer_load_dwordx4 {vr(XL+12,4)}, v2, s[8:11], s32 offen offset:1024 {NT_X}")
    WL = 20
    Mr, Mi, TW = 36, 52, 68
    XF, DR, DI, OP, T = 100, 132, 148, 164, 180
    k("v_and_b32 v2, 31, v1")
    k("v_cvt_f32_u32 v2, v2")
    k("v_lshrrev_b32 v3, 5, v1")
    k("v_lshlrev_b32 v3, 2, v3")
    k("v_cvt_f32_u32 v3, v3")
    k(f"v_mul_f32 v204, {f32(1/32)}, v2")
    k("v_mul_f32 v205, v204, v3")
    gen_matrix(k, Mr, Mi, 204, 205, T)
    k(f"v_mul_f32 v204, {f32(1/1024)}, v2")
    k("v_mul_f32 v205, v204, v3")
    gen_twiddle(k, TW, 204, 205, T)
    STG = 16384; WST = STG + 257*64 + 64
    k("s_lshr_b32 s44, s2, 2")
    k("s_and_b32 s44, s44, 3")
    k("s_mov_b32 s45, 0x05040100")
    k("s_mov_b32 s46, 0x07060302")
    k("s_lshl_b32 s47, s2, 6")
    k("s_lshl_b32 s48, s28, 2")
    k(f"s_add_u32 s48, s48, {STG}")
    B1, B2, AWJ, AX, ARD, AGL, AT1, AT2, AWR, AWG = 206, 207, 208, 209, 216, 217, 218, 219, 221, 222
    k("v_and_b32 v2, 31, v1")
    k("v_lshrrev_b32 v3, 5, v1")
    k("v_and_b32 v204, 1, v2")
    k("v_lshrrev_b32 v205, 1, v2")
    k(f"v_xor_b32 v{B1}, s44, v204")
    k(f"v_lshlrev_b32 v{B1}, 4, v{B1}")
    k(f"v_lshl_add_u32 v{B1}, v205, 6, v{B1}")
    k(f"v_lshl_add_u32 v{B1}, v3, 12, v{B1}")
    k(f"v_add_u32 v{B1}, s48, v{B1}")
    k("v_add_u32 v205, 1, v2")
    k("v_lshrrev_b32 v205, 1, v205")
    k("v_add_u32 v204, 2, v204")
    k(f"v_xor_b32 v{B2}, s44, v204")
    k(f"v_lshlrev_b32 v{B2}, 4, v{B2}")
    k("v_lshlrev_b32 v205, 6, v205")
    k(f"v_sub_u32 v{B2}, v{B2}, v205")
    k("v_lshlrev_b32 v205, 12, v3")
    k(f"v_sub_u32 v{B2}, v{B2}, v205")
    k(f"v_add_u32 v{B2}, s48, v{B2}")
    k("s_lshl_b32 s49, s28, 12")
    k(f"s_add_u32 s49, s49, {WST}")
    k("v_bfe_u32 v204, v1, 1, 2")
    k("v_xor_b32 v204, s44, v204")
    k("v_lshlrev_b32 v204, 4, v204")
    k(f"v_lshl_add_u32 v{AWJ}, v1, 6, v204")
    k(f"v_add_u32 v{AWJ}, s49, v{AWJ}")
    k("v_lshrrev_b32 v204, 2, v1")
    k("v_and_b32 v205, 3, v1")
    k(f"v_bfe_u32 v{AT1}, v204, 1, 2")
    k(f"v_xor_b32 v{AT1}, v{AT1}, v205")
    k(f"v_lshlrev_b32 v{AT1}, 4, v{AT1}")
    k(f"v_lshl_add_u32 v{AWR}, v204, 6, v{AT1}")
    k(f"v_add_u32 v{AWR}, s49, v{AWR}")
    k("s_lshl_b32 s49, s28, 6")
    k("v_add_u32 v204, s49, v204")
    k("v_lshlrev_b32 v204, 14, v204")
    k(f"v_lshl_add_u32 v{AWG}, v205, 4, v204")
    k("v_bfe_u32 v204, v1, 2, 1")
    k("v_xor_b32 v204, s44, v204")
    k("v_lshlrev_b32 v204, 4, v204")
    k("v_and_b32 v205, 3, v1")
    k(f"v_lshl_add_u32 v{AX}, v205, 2, v204")
    APW = 223
    k(f"v_add_u32 v{APW}, {WST}, v{AX}")
    k(f"v_lshlrev_b32 v{ARD}, 4, v0")
    k(f"v_add_u32 v{ARD}, {STG}, v{ARD}")
    k("v_lshrrev_b32 v204, 2, v0")
    k("v_lshlrev_b32 v204, 14, v204")
    k("v_and_b32 v205, 3, v0")
    k(f"v_lshl_add_u32 v{AGL}, v205, 4, v204")
    k("s_xor_b32 s49, s44, 2")
    k("s_lshl_b32 s49, s49, 4")
    k("s_add_u32 s49, s49, s48")
    k("s_lshl_b32 s50, s44, 4")
    k("s_add_u32 s50, s50, s48")
    k(f"v_mov_b32 v{AT1}, s49")
    k(f"v_mov_b32 v{AT2}, s50")
    k("s_lshl_b32 s36, s28, 12")
    k("v_lshlrev_b32 v2, 5, v1")
    k("v_add_u32 v2, s36, v2")
    k("v_and_b32 v3, 31, v1")
    k("v_lshlrev_b32 v3, 2, v3")
    k("v_lshrrev_b32 v204, 5, v1")
    k("v_lshlrev_b32 v204, 9, v204")
    k("v_add3_u32 v3, v3, v204, s36")
    k("s_mov_b32 s35, 0xffff0000")
    mark(k, 1)
    k("s_waitcnt vmcnt(0)")
    mark(k, 2)
    k("v_lshlrev_b32 v220, 2, v0")
    k("s_lshl_b32 s33, s29, 6")
    k("s_lshl_b32 s34, s30, 1")
    k("s_add_u32 s33, s33, s34")
    k("s_mul_i32 s33, s33, 1026")
    for pi in range(2):
        for cc in range(4):
            off = (64*cc + pi)*1026
            k(f"s_add_u32 s34, s33, {off}")
            k(f"buffer_load_dword v{WL+4*pi+cc}, v220, s[12:15], s34 offen {NT_W}")
            k(f"buffer_load_dword v{WL+8+4*pi+cc}, v220, s[16:19], s34 offen {NT_W}")
    WX = 200
    k("v_and_b32 v200, 3, v1")
    k("v_lshlrev_b32 v200, 6, v200")
    k("v_bfe_u32 v201, v1, 2, 1")
    k("v_add_u32 v200, v200, v201")
    k("v_mul_u32_u24 v200, 1026, v200")
    k("v_add_u32 v200, 1024, v200")
    k("v_and_b32 v226, 3, v1")
    k("v_lshlrev_b32 v226, 6, v226")
    k("v_add_u32 v226, v226, v201")
    k("s_lshl_b32 s49, s29, 6")
    k("s_lshl_b32 s50, s30, 1")
    k("s_add_u32 s49, s49, s50")
    k("v_add_u32 v226, s49, v226")
    k("v_sub_u32 v226, 2048, v226")
    k("v_and_b32 v226, 2047, v226")
    k("v_mul_u32_u24 v226, 1026, v226")
    k("v_subrev_u32 v227, 1024, v200")
    k("v_cmp_gt_u32 vcc, 8, v0")
    k("s_and_saveexec_b64 s[36:37], vcc")
    k("s_cbranch_execz L_p1_nox")
    k("buffer_load_ushort v202, v200, s[12:15], s33 offen")
    k("buffer_load_ushort v203, v200, s[16:19], s33 offen")
    k("buffer_load_ushort v228, v227, s[12:15], s33 offen")
    k("buffer_load_ushort v229, v227, s[16:19], s33 offen")
    k("buffer_load_ushort v230, v226, s[12:15], 0 offen")
    k("buffer_load_ushort v231, v226, s[16:19], 0 offen")
    k("buffer_load_ushort v232, v226, s[12:15], 0 offen offset:1024")
    k("buffer_load_ushort v233, v226, s[16:19], 0 offen offset:1024")
    k("L_p1_nox:")
    k("s_mov_b64 exec, -1")
    for i in range(16):
        for row in range(2):
            src = XL + 8*row + (i >> 1)
            if i % 2 == 0: k(f"v_lshlrev_b32 v{XF+2*i+row}, 16, v{src}")
            else:          k(f"v_and_b32 v{XF+2*i+row}, s35, v{src}")
    ln_stats_xrow(k, XF, T, 38, 40, 42)
    k(f"v_mov_b32 v{T+8}, s40"); k(f"v_mov_b32 v{T+9}, s41")
    k(f"v_mov_b32 v{T+10}, s38"); k(f"v_mov_b32 v{T+11}, s39")
    for i in range(16):
        d = T + 2*(i % 4)
        k(f"v_pk_fma_f32 {vr(d,2)}, {vr(XF+2*i,2)}, {vr(T+8,2)}, {vr(T+10,2)} neg_lo:[0,0,1] neg_hi:[0,0,1]")
        k(f"{CVT} v{OP+i}, v{d}, v{d+1}")
    k(f"ds_write_b128 v2, {vr(OP,4)}")
    k(f"ds_write_b128 v2, {vr(OP+4,4)} offset:16")
    k(f"ds_write_b128 v2, {vr(OP+8,4)} offset:2048")
    k(f"ds_write_b128 v2, {vr(OP+12,4)} offset:2064")
    k("s_waitcnt lgkmcnt(0)")
    for i, (r, c) in enumerate(SEQ):
        k(f"ds_read_b32 v{OP+i}, v3 offset:{(8*r+c)*128}")
    mark(k, 3)
    k("s_waitcnt lgkmcnt(0)")
    stage(k, 'A', DR, DI, OP, Mr, Mi)
    srd(k, 56, 26, 257*16384, WB_OFF)
    k("s_waitcnt vmcnt(0)")
    WO = XF
    for e in range(2):
        for pi in range(2):
            for cc in range(4):
                k(f"v_perm_b32 v{WO+4*(2*e+pi)+cc}, v{WL+8+4*pi+cc}, v{WL+4*pi+cc}, s{45+e}")
    for sl in range(4):
        if sl: k(f"v_xor_b32 v204, {16*sl}, v{AWJ}")
        k(f"ds_write_b128 v{204 if sl else AWJ}, {vr(WO+4*sl,4)}")
    k("s_add_u32 s49, s47, 0x400000")
    k("v_cmp_gt_u32 vcc, 8, v0")
    k("s_and_saveexec_b64 s[36:37], vcc")
    k("s_cbranch_execz L_p1_nox2")
    for r_ in (202, 203, 228, 229, 230, 231, 232, 233): k(f"v_lshlrev_b32 v{r_}, 16, v{r_}")
    k("v_add_f32 v228, v228, v230")
    k("v_sub_f32 v229, v229, v231")
    k("v_add_f32 v202, v202, v232")
    k("v_sub_f32 v203, v203, v233")
    k("v_add_f32 v230, v228, v202")
    k("v_add_f32 v231, v229, v203")
    k("v_sub_f32 v232, v228, v202")
    k("v_sub_f32 v233, v229, v203")
    for r_ in (230, 231, 232, 233): k(f"v_mul_f32 v{r_}, 0x3e800000, v{r_}")
    k(f"{CVT} v202, v230, v231")
    k(f"{CVT} v203, v232, v233")
    k(f"ds_write_b32 v{APW}, v202")
    k(f"buffer_store_dword v203, v{AX}, s[56:59], s49 offen {ST_P1}")
    k("L_p1_nox2:")
    k("s_mov_b64 exec, -1")
    k("s_waitcnt lgkmcnt(0)")
    for j in range(4): k(f"ds_read_b128 {vr(WO+16+4*j,4)}, v{AWR} offset:{1024*j}")
    k("s_mov_b32 s49, s47")
    for j in range(4):
        k(f"s_waitcnt lgkmcnt({3-j})")
        k(f"buffer_store_dwordx4 {vr(WO+16+4*j,4)}, v{AWG}, s[56:59], s49 offen {ST_P1}")
        if j < 3: k(f"s_add_u32 s49, s49, {16*16384}")
    cmul_pack(k, DR, DI, TW, OP, T)
    stage(k, 'B', DR, DI, OP, Mr, Mi)
    mark(k, 4)
    for i, (r, c) in enumerate(SEQ):
        if r < 2: k(f"{CVT} v{OP+i}, v{DR+i}, v{DI+i}")
        else:     k(f"{CVT} v{OP+i}, v{DI+i}, v{DR+i}")
        if r < 2: k(f"ds_write_b32 v{B1}, v{OP+i} offset:{(8*r+c)*1024}")
        else:     k(f"ds_write_b32 v{B2}, v{OP+i} offset:{(32-8*r-c)*1024}")
    k(f"v_sub_f32 v{T+2}, v{DR}, v{DI+8}")
    k(f"v_add_f32 v{T+3}, v{DI}, v{DR+8}")
    k(f"v_sub_f32 v{T+4}, v{DI}, v{DR+8}")
    k(f"v_add_f32 v{T+5}, v{DR}, v{DI+8}")
    k(f"{CVT} v{T}, v{T+4}, v{T+5}")
    k(f"{CVT} v{T+1}, v{T+2}, v{T+3}")
    k("s_mov_b64 exec, 1")
    k(f"ds_write_b32 v{AT1}, v{T}")
    k(f"ds_write_b32 v{AT2}, v{T+1}")
    k("s_mov_b64 exec, -1")
    k("s_waitcnt lgkmcnt(0)")
    k("s_barrier")
    RO = XF
    for j in range(4):
        k(f"ds_read_b128 {vr(RO+4*j,4)}, v{ARD} offset:{4096*j}")
    for j in range(4):
        k(f"s_waitcnt lgkmcnt({3-j})")
        k(f"buffer_store_dwordx4 {vr(RO+4*j,4)}, v{AGL}, s[20:23], s47 offen {ST_P1}")
        if j < 3: k("s_add_u32 s47, s47, 0x100000")
    stamp_end(k, 'p1')
    k("L_p1_end:")
    k("s_endpgm")
    k("L_p1_endc:")
    return k, 236, WST + 16384

def gen_p2():
    k = Kern('p2_kernel')
    k("s_cmp_ge_u32 s2, 256")
    k("s_cbranch_scc1 L_p2_end")
    stamp_begin(k)
    k("s_load_dwordx2 s[26:27], s[0:1], 80")
    k("s_load_dwordx2 s[24:25], s[0:1], 32")
    k("v_and_b32 v1, 63, v0")
    k("v_lshrrev_b32 v2, 6, v0")
    k("v_readfirstlane_b32 s28, v2")
    k("v_lshlrev_b32 v2, 4, v1")
    k("s_lshr_b32 s29, s28, 1")
    k("s_and_b32 s30, s28, 1")
    k("s_lshl_b32 s31, s2, 14")
    k("s_lshl_b32 s32, s28, 12")
    k("s_add_u32 s31, s31, s32")
    k("s_waitcnt lgkmcnt(0)")
    srd(k, 8, 26, 257*16384, ZD_OFF)
    srd(k, 20, 26, 257*16384, WB_OFF)
    srd(k, 12, 26, 256*VB_BLK, VB_OFF)
    for i in range(4):
        k(f"s_add_u32 m0, s32, {1024*i}")
        k(f"s_add_u32 s33, s31, {1024*i}")
        k(f"buffer_load_dwordx4 v2, s[8:11], s33 offen lds")
    Z1, Z2 = 4, 20
    M1r, M1i, MFr, MFi, MIr, MIi = 36, 52, 68, 84, 100, 116
    T1, T2 = 132, 164
    DR, DI, T = 196, 212, 228
    A, B, J, H4, PI = 244, 245, 246, 247, 248
    k(f"v_and_b32 v{J}, 31, v1")
    k(f"v_cvt_f32_u32 v{J}, v{J}")
    k(f"v_lshrrev_b32 v{H4}, 5, v1")
    k(f"v_lshlrev_b32 v{H4}, 2, v{H4}")
    k(f"v_cvt_f32_u32 v{H4}, v{H4}")
    k(f"v_mov_b32 v{PI}, s30")
    k(f"v_cvt_f32_u32 v{PI}, v{PI}")
    k(f"v_mul_f32 v{A}, {f32(1/32)}, v{J}")
    k(f"v_mul_f32 v{B}, v{A}, v{H4}")
    gen_matrix(k, MFr, MFi, A, B, T)
    k(f"v_fma_f32 v{A}, v{J}, 2.0, v{PI}")
    k(f"v_mul_f32 v{A}, {f32(1/64)}, v{A}")
    k(f"v_mul_f32 v{B}, v{A}, v{H4}")
    gen_matrix(k, M1r, M1i, A, B, T)
    k("s_lshl_b32 s33, s30, 4")
    k(f"v_and_b32 v{T}, 31, v1")
    k(f"v_xor_b32 v{T}, s33, v{T}")
    k(f"v_cvt_f32_u32 v{T}, v{T}")
    k(f"v_mul_f32 v{A}, {f32(1/32)}, v{T}")
    k(f"v_mul_f32 v{B}, v{A}, v{H4}")
    k(f"v_mul_f32 v{T}, {f32(1/64)}, v{T}")
    k(f"v_fma_f32 v{B}, v{T}, v{PI}, v{B}")
    gen_matrix(k, MIr, MIi, A, B, T)
    k(f"v_fma_f32 v{A}, v{J}, 2.0, v{PI}")
    k(f"v_mul_f32 v{A}, {f32(1/2048)}, v{A}")
    k(f"v_mov_b32 v{T}, {f32(0.125)}")
    k(f"v_mul_f32 v{T+1}, {f32(-0.25)}, v{PI}")
    k(f"v_add_f32 v{T}, v{T}, v{T+1}")
    k(f"v_fma_f32 v{B}, v{A}, v{H4}, v{T}")
    gen_twiddle(k, T1, A, B, T)
    k(f"v_mul_f32 v{A}, {f32(1/1024)}, v{J}")
    k(f"v_mul_f32 v{B}, v{A}, v{H4}")
    k(f"v_mul_f32 v{T}, {f32(1/2048)}, v{J}")
    k(f"v_fma_f32 v{B}, v{T}, v{PI}, v{B}")
    gen_twiddle(k, T2, A, B, T)
    AZ1, AZ2, AW = 249, 250, 251
    k(f"v_bfe_u32 v{T}, v1, 2, 2")
    k(f"v_lshlrev_b32 v{T+1}, 6, v1")
    k(f"v_xor_b32 v{AZ1}, s29, v{T}")
    k(f"v_lshl_add_u32 v{AZ1}, v{AZ1}, 4, v{T+1}")
    k(f"v_xor_b32 v{AZ2}, 32, v{AZ1}")
    k("s_lshl_b32 s33, s29, 1")
    k("s_add_u32 s33, s33, s30")
    k(f"v_xor_b32 v{AW}, s33, v{T}")
    k(f"v_lshl_add_u32 v{AW}, v{AW}, 4, v{T+1}")
    k(f"v_add_u32 v{AW}, 16384, v{AW}")
    k("s_mul_i32 s34, s30, 0x80008000")
    k("s_mov_b32 s35, 0xffff0000")
    mark(k, 1)
    k("s_waitcnt vmcnt(0)")
    for i in range(4):
        k(f"s_add_u32 m0, s32, {16384+1024*i}")
        k(f"s_add_u32 s33, s31, {1024*i}")
        k(f"buffer_load_dwordx4 v2, s[20:23], s33 offen lds")
    if W1PF:
        srd(k, 16, 24, S*F*2)
        k(f"s_mul_i32 s33, s2, {W1PF*128}")
        k("v_lshlrev_b32 v3, 7, v0")
        k(f"v_min_u32 v3, {(W1PF-1)*128}, v3")
        k("buffer_load_dword v255, v3, s[16:19], s33 offen")
    k("s_barrier")
    mark(k, 2)
    for r in range(4):
        k(f"ds_read_b128 {vr(Z1+4*r,4)}, v{AZ1} offset:{4096*r}")
        k(f"ds_read_b128 {vr(Z2+4*r,4)}, v{AZ2} offset:{4096*r}")
    k("s_waitcnt lgkmcnt(0)")
    for i in range(16):
        k(f"v_xor_b32 v{Z2+i}, s34, v{Z2+i}")
    stage(k, 'A', DR, DI, Z1, M1r, M1i, first=True)
    stage(k, 'A', DR, DI, Z2, M1r, M1i, first=False)
    OP = Z1
    cmul_pack(k, DR, DI, T1, OP, T)
    k(f"s_waitcnt vmcnt({1 if W1PF else 0})")
    k("s_barrier")
    for r in range(4):
        k(f"ds_read_b128 {vr(Z2+4*r,4)}, v{AW} offset:{4096*r}")
    stage(k, 'B', DR, DI, OP, MFr, MFi)
    WP = M1r
    k("s_waitcnt lgkmcnt(0)")
    for i in range(16):
        k(f"v_lshlrev_b32 v{WP+2*i}, 16, v{Z2+i}")
        k(f"v_and_b32 v{WP+2*i+1}, s35, v{Z2+i}")
    k("s_or_b32 s46, s2, s29")
    k("s_cmp_eq_u32 s46, 0")
    k("s_cbranch_scc1 L_p2_spec")
    cmul_pack(k, DR, DI, WP, OP, T, conj=True)
    k("L_p2_specd:")
    stage(k, 'A', DR, DI, OP, MFr, MFi)
    cmul_pack(k, DR, DI, T2, OP, T)
    stage(k, 'B', DR, DI, OP, MIr, MIi)
    mark(k, 4)
    XCH, STG = 32768, 49152
    AX = 252
    k("s_lshl_b32 s36, s28, 12")
    k(f"s_add_u32 s36, s36, {XCH}")
    k(f"v_lshl_add_u32 v{AX}, v1, 4, s36")
    k(f"ds_write_b128 v{AX}, {vr(DR+8,4)}")
    k(f"ds_write_b128 v{AX}, {vr(DR+12,4)} offset:1024")
    k(f"ds_write_b128 v{AX}, {vr(DI+8,4)} offset:2048")
    k(f"ds_write_b128 v{AX}, {vr(DI+12,4)} offset:3072")
    k(f"v_xor_b32 v{AX}, 4096, v{AX}")
    k("s_cmp_eq_u32 s30, 0")
    k(f"s_cselect_b32 s40, {f32(1.0)}, {f32(-1.0)}")
    k("s_mov_b32 s42, s40")
    k("s_waitcnt lgkmcnt(0)")
    k("s_barrier")
    OR_, OI = 36, 44
    k(f"ds_read_b128 {vr(OR_,4)}, v{AX}")
    k(f"ds_read_b128 {vr(OR_+4,4)}, v{AX} offset:1024")
    k(f"ds_read_b128 {vr(OI,4)}, v{AX} offset:2048")
    k(f"ds_read_b128 {vr(OI+4,4)}, v{AX} offset:3072")
    k(f"v_bfe_u32 v{T}, v1, 1, 2")
    k(f"v_xor_b32 v{T+1}, s29, v{T}")
    k(f"v_xor_b32 v{T+2}, 2, v{T+1}")
    k("s_lshl_b32 s43, s30, 13")
    k(f"s_add_u32 s43, s43, {STG}")
    k(f"v_lshl_add_u32 v{T+3}, v1, 6, s43")
    k(f"v_lshl_add_u32 v253, v{T+1}, 4, v{T+3}")
    k(f"v_lshl_add_u32 v254, v{T+2}, 4, v{T+3}")
    k("s_waitcnt lgkmcnt(0)")
    UA, UB = 52, 60
    Ur, Ui, Er, Ei, Ar, Ai, Br, Bi = 68, 70, 72, 74, 76, 78, 80, 82
    bc = "op_sel_hi:[1,0,1]"
    k("s_cmp_eq_u32 s46, 0")
    k("s_cbranch_scc1 L_p2_spost")
    for j in range(0, 8, 2):
        o = 16*((j//2) % 2)
        ur, ui, er, ei, a_r, a_i, b_r, b_i = [x+o for x in (Ur, Ui, Er, Ei, Ar, Ai, Br, Bi)]
        k(f"v_pk_add_f32 {vr(ur,2)}, {vr(DR+j,2)}, {vr(OR_+j,2)}")
        k(f"v_pk_add_f32 {vr(ui,2)}, {vr(DI+j,2)}, {vr(OI+j,2)}")
        k(f"v_pk_add_f32 {vr(er,2)}, {vr(DR+j,2)}, {vr(OR_+j,2)} neg_lo:[0,1] neg_hi:[0,1]")
        k(f"v_pk_add_f32 {vr(ei,2)}, {vr(DI+j,2)}, {vr(OI+j,2)} neg_lo:[0,1] neg_hi:[0,1]")
        k(f"v_pk_fma_f32 {vr(a_r,2)}, {vr(ei,2)}, s[42:43], {vr(ur,2)} {bc}")
        k(f"v_pk_fma_f32 {vr(b_r,2)}, {vr(ei,2)}, s[42:43], {vr(ur,2)} {bc} neg_lo:[1,0,0] neg_hi:[1,0,0]")
        k(f"v_pk_fma_f32 {vr(a_i,2)}, {vr(er,2)}, s[40:41], {vr(ui,2)} {bc} neg_lo:[1,0,0] neg_hi:[1,0,0]")
        k(f"v_pk_fma_f32 {vr(b_i,2)}, {vr(er,2)}, s[40:41], {vr(ui,2)} {bc} neg_lo:[1,0,1] neg_hi:[1,0,1]")
        k(f"{CVT} v{UA+j}, v{a_r}, v{a_i}")
        k(f"{CVT} v{UA+j+1}, v{a_r+1}, v{a_i+1}")
        k(f"{CVT} v{UB+j}, v{b_r}, v{b_i}")
        k(f"{CVT} v{UB+j+1}, v{b_r+1}, v{b_i+1}")
    k("s_branch L_p2_postd")
    k("L_p2_spost:")
    for j in range(0, 8, 2):
        o = 16*((j//2) % 2)
        ur, ui, er, ei, a_r, a_i, b_r, b_i = [x+o for x in (Ur, Ui, Er, Ei, Ar, Ai, Br, Bi)]
        k(f"v_pk_add_f32 {vr(ur,2)}, {vr(DR+j,2)}, {vr(OR_+j,2)}")
        k(f"v_pk_add_f32 {vr(ui,2)}, {vr(DI+j,2)}, {vr(OI+j,2)}")
        k(f"v_pk_add_f32 {vr(er,2)}, {vr(DR+j,2)}, {vr(OR_+j,2)} neg_lo:[0,1] neg_hi:[0,1]")
        k(f"v_pk_add_f32 {vr(ei,2)}, {vr(DI+j,2)}, {vr(OI+j,2)} neg_lo:[0,1] neg_hi:[0,1]")
        k(f"v_pk_mul_f32 {vr(a_i,2)}, {vr(er,2)}, s[40:41] op_sel_hi:[1,0] neg_lo:[1,0] neg_hi:[1,0]")
        k(f"v_pk_mul_f32 {vr(b_i,2)}, {vr(ei,2)}, s[40:41] op_sel_hi:[1,0]")
        k(f"{CVT} v{UA+j}, v{ur}, v{a_i}")
        k(f"{CVT} v{UA+j+1}, v{ur+1}, v{a_i+1}")
        k(f"{CVT} v{UB+j}, -v{ui}, v{b_i}")
        k(f"{CVT} v{UB+j+1}, -v{ui+1}, v{b_i+1}")
    k("L_p2_postd:")
    for rl in range(2):
        k(f"ds_write_b128 v253, {vr(UA+4*rl,4)} offset:{4096*rl}")
        k(f"ds_write_b128 v254, {vr(UB+4*rl,4)} offset:{4096*rl}")
    k(f"v_and_b32 v{T}, 3, v0")
    k(f"v_bfe_u32 v{T+1}, v0, 3, 2")
    k(f"v_xor_b32 v{T+1}, v{T}, v{T+1}")
    k(f"v_lshrrev_b32 v{T+2}, 2, v0")
    k(f"v_lshlrev_b32 v{T+3}, 6, v{T+2}")
    k(f"v_lshl_add_u32 v{T+3}, v{T+1}, 4, v{T+3}")
    k(f"v_add_u32 v{T+3}, {STG}, v{T+3}")
    k(f"v_mul_u32_u24 v{T+2}, {VB_BLK}, v{T+2}")
    k("s_and_b32 s44, s2, 2")
    k(f"v_xor_b32 v{T}, s44, v{T}")
    k(f"v_lshl_add_u32 v{T+2}, v{T}, 4, v{T+2}")
    k("s_lshl_b32 s45, s2, 6")
    k("s_waitcnt lgkmcnt(0)")
    k("s_barrier")
    for j in range(4):
        k(f"ds_read_b128 {vr(4+4*j,4)}, v{T+3} offset:{4096*j}")
    k("s_waitcnt lgkmcnt(0)")
    for j in range(4):
        k(f"buffer_store_dwordx4 {vr(4+4*j,4)}, v{T+2}, s[12:15], s45 offen {ST_P2}")
        if j < 3: k(f"s_add_u32 s45, s45, {64*VB_BLK}")
    stamp_end(k, 'p2')
    k("L_p2_end:")
    k("s_endpgm")
    k("L_p2_spec:")
    QP = T1
    XB_ = Z2
    k(f"v_bfe_u32 v{T}, v1, 2, 2")
    k(f"v_xor_b32 v{T}, s30, v{T}")
    k(f"v_lshlrev_b32 v{T}, 4, v{T}")
    k(f"v_lshl_add_u32 v{T}, v1, 6, v{T}")
    k("s_mov_b32 s47, 0x400000")
    for r in range(4):
        k(f"buffer_load_dwordx4 {vr(XB_+4*r,4)}, v{T}, s[20:23], s47 offen")
        if r < 3: k("s_add_u32 s47, s47, 4096")
    k("s_lshl_b32 s47, s30, 13")
    k(f"v_and_b32 v{T+1}, 31, v1")
    k(f"v_lshrrev_b32 v{T+2}, 5, v1")
    k(f"v_lshlrev_b32 v{T+3}, 2, v{T+1}")
    k(f"v_lshl_add_u32 v{T+3}, v{T+2}, 10, v{T+3}")
    k(f"v_add_u32 v{T+3}, s47, v{T+3}")
    for i, (r, c) in enumerate(SEQ):
        k(f"ds_write_b32 v{T+3}, v{DR+i} offset:{(8*r+c)*256}")
        k(f"ds_write_b32 v{T+3}, v{DI+i} offset:{(8*r+c)*256+128}")
    k(f"v_add_u32 v{T+4}, s30, v{T+1}")
    k(f"v_sub_u32 v{T+5}, 32, v{T+4}")
    k(f"v_lshlrev_b32 v{T+5}, 2, v{T+5}")
    k(f"v_cmp_eq_u32 vcc, 0, v{T+4}")
    k(f"v_mov_b32 v{T+6}, 256")
    k(f"v_cndmask_b32 v{T+5}, v{T+5}, v{T+6}, vcc")
    k(f"v_lshlrev_b32 v{T+6}, 10, v{T+2}")
    k(f"v_sub_u32 v{T+5}, v{T+5}, v{T+6}")
    k(f"v_add_u32 v{T+5}, 1024, v{T+5}")
    k(f"v_add_u32 v{T+5}, s47, v{T+5}")
    k(f"v_add_u32 v{T+6}, {27*256}, v{T+5}")
    k(f"v_or_b32 v{T+7}, v{T+4}, v{T+2}")
    k(f"v_cmp_eq_u32 vcc, 0, v{T+7}")
    k(f"v_mov_b32 v{T+7}, s47")
    k(f"v_cndmask_b32 v{T+6}, v{T+6}, v{T+7}, vcc")
    k("s_waitcnt vmcnt(0)")
    for i in range(16):
        k(f"v_lshlrev_b32 v{QP+2*i}, 16, v{XB_+i}")
        k(f"v_and_b32 v{QP+2*i+1}, s35, v{XB_+i}")
    k("s_waitcnt lgkmcnt(0)")
    for half in range(2):
        for jj in range(8):
            i = 8*half + jj; r, c = SEQ[i]
            if i == 0:
                k(f"ds_read_b32 v{XB_+2*jj}, v{T+6}")
                k(f"ds_read_b32 v{XB_+2*jj+1}, v{T+6} offset:128")
            else:
                k(f"ds_read_b32 v{XB_+2*jj}, v{T+5} offset:{(27-8*r-c)*256}")
                k(f"ds_read_b32 v{XB_+2*jj+1}, v{T+5} offset:{(27-8*r-c)*256+128}")
        k("s_waitcnt lgkmcnt(0)")
        for jj in range(8):
            j = 8*half + jj; o = T + 8 + 2*(jj % 4); jp = j & ~1; x = j & 1
            k(f"v_pk_mul_f32 {vr(o,2)}, {vr(WP+2*j,2)}, {vr(DR+jp,2)} op_sel:[0,{x}] op_sel_hi:[1,{x}]")
            k(f"v_pk_fma_f32 {vr(o,2)}, {vr(WP+2*j,2)}, {vr(DI+jp,2)}, {vr(o,2)} op_sel:[1,{x},0] op_sel_hi:[0,{x},1] neg_lo:[1,0,0]")
            k(f"v_pk_fma_f32 {vr(o,2)}, {vr(QP+2*j,2)}, {vr(XB_+2*jj,2)}, {vr(o,2)} op_sel:[0,0,0] op_sel_hi:[1,0,1]")
            k(f"v_pk_fma_f32 {vr(o,2)}, {vr(QP+2*j,2)}, {vr(XB_+2*jj,2)}, {vr(o,2)} op_sel:[1,1,0] op_sel_hi:[0,1,1] neg_hi:[1,0,0]")
            k(f"{CVT} v{OP+j}, v{o}, -v{o+1}")
    k("s_branch L_p2_specd")
    return k, 256, 65536

def ln_stats_rows(k, R0, R1, t, vRM, sTmp):
    for (R, o) in ((R0, 0), (R1, 4)):
        a, b = t+o, t+o+2
        k(f"v_pk_add_f32 {vr(a,2)}, {vr(R,2)}, {vr(R+2,2)}")
        k(f"v_pk_add_f32 {vr(b,2)}, {vr(R+4,2)}, {vr(R+6,2)}")
    for i in range(4, 8):
        for (R, o) in ((R0, 0), (R1, 4)):
            a = t+o+2*(i % 2)
            k(f"v_pk_add_f32 {vr(a,2)}, {vr(a,2)}, {vr(R+2*i,2)}")
    for o in (0, 4):
        k(f"v_pk_add_f32 {vr(t+o,2)}, {vr(t+o,2)}, {vr(t+o+2,2)}")
    k(f"v_add_f32 v{t}, v{t}, v{t+1}")
    k(f"v_add_f32 v{t+1}, v{t+4}, v{t+5}")
    wave_reduce2(k, t, t+1)
    ln_mean(k, t, sTmp)
    acc = {0: t, 1: t+2}; tmp = [t+4, t+6, t+8, t+10]
    n = 0
    for i in range(8):
        for row, R in ((0, R0), (1, R1)):
            d = tmp[n % 4]; n += 1
            sel = "op_sel_hi:[1,0]" if row == 0 else "op_sel:[0,1] op_sel_hi:[1,1]"
            k(f"v_pk_add_f32 {vr(d,2)}, {vr(R+2*i,2)}, {sr(sTmp,2)} {sel} neg_lo:[0,1] neg_hi:[0,1]")
            a = acc[row]
            if i == 0: k(f"v_pk_mul_f32 {vr(a,2)}, {vr(d,2)}, {vr(d,2)}")
            else:      k(f"v_pk_fma_f32 {vr(a,2)}, {vr(d,2)}, {vr(d,2)}, {vr(a,2)}")
    k(f"v_add_f32 v{t}, v{t}, v{t+1}")
    k(f"v_add_f32 v{t+1}, v{t+2}, v{t+3}")
    wave_reduce2(k, t, t+1)
    ln_scalars(k, t)
    k(f"v_readlane_b32 s{sTmp}, v{t}, 63")
    k(f"v_readlane_b32 s{sTmp+1}, v{t+1}, 63")
    k(f"v_readlane_b32 s{sTmp+2}, v{t+12}, 63")
    k(f"v_readlane_b32 s{sTmp+3}, v{t+13}, 63")
    for i in range(4):
        k(f"v_mov_b32 v{vRM+i}, s{sTmp+i}")

def ln_apply_rows(k, R0, R1, vRM, dst0, dst1):
    for i in range(8):
        k(f"v_pk_fma_f32 {vr(dst0+2*i,2)}, {vr(R0+2*i,2)}, {vr(vRM,2)}, {vr(vRM+2,2)} op_sel_hi:[1,0,0] neg_lo:[0,0,1] neg_hi:[0,0,1]")
        k(f"v_pk_fma_f32 {vr(dst1+2*i,2)}, {vr(R1+2*i,2)}, {vr(vRM,2)}, {vr(vRM+2,2)} op_sel:[0,1,1] op_sel_hi:[1,1,1] neg_lo:[0,0,1] neg_hi:[0,0,1]")

def gen_p3():
    k = Kern('p3_kernel')
    k("s_cmp_ge_u32 s2, 256")
    k("s_cbranch_scc1 L_p3_end")
    stamp_begin(k)
    k("s_load_dwordx2 s[4:5], s[0:1], 0")
    k("s_load_dwordx2 s[26:27], s[0:1], 80")
    k("s_load_dwordx2 s[24:25], s[0:1], 32")
    k("v_and_b32 v1, 63, v0")
    k("v_lshrrev_b32 v2, 6, v0")
    k("v_readfirstlane_b32 s28, v2")
    k("s_lshr_b32 s29, s2, 5")
    k("s_lshl_b32 s29, s29, 2")
    k("s_and_b32 s30, s2, 31")
    k("s_add_u32 s31, s29, s28")
    k("s_lshl_b32 s31, s31, 5")
    k("s_add_u32 s31, s31, s30")
    k("s_lshl_b32 s31, s31, 11")
    k("s_add_u32 s32, s31, 0x200000")
    k(f"s_mul_i32 s33, s2, {VB_BLK}")
    k("s_lshl_b32 s34, s28, 12")
    k("s_add_u32 s33, s33, s34")
    k("v_lshlrev_b32 v2, 4, v1")
    k("s_waitcnt lgkmcnt(0)")
    srd(k, 8, 4, S*D*2)
    srd(k, 12, 26, 256*VB_BLK, VB_OFF)
    srd(k, 16, 26, S*D*2, H_OFF)
    srd(k, 20, 26, S*D*2, HN_OFF)
    for i in range(4):
        k(f"s_add_u32 m0, s34, {1024*i}")
        k(f"buffer_load_dwordx4 v2, s[12:15], s33 offen lds")
        k("s_add_u32 s33, s33, 1024")
    XL = 4
    OP, Mr, Mi, TW, DR, DI, T = 20, 36, 52, 68, 100, 116, 132
    R0, R1, Y0, Y1 = 148, 164, 180, 196
    k("v_and_b32 v212, 31, v1")
    k("v_cvt_f32_u32 v212, v212")
    k("v_lshrrev_b32 v213, 5, v1")
    k("v_lshlrev_b32 v213, 2, v213")
    k("v_cvt_f32_u32 v213, v213")
    k(f"v_mul_f32 v214, {f32(1/32)}, v212")
    k("v_mul_f32 v215, v214, v213")
    gen_matrix(k, Mr, Mi, 214, 215, T)
    k(f"v_mul_f32 v214, {f32(1/1024)}, v212")
    k("v_mul_f32 v215, v214, v213")
    gen_twiddle(k, TW, 214, 215, T, scale=2.0**-21.5)
    k("v_and_b32 v2, 31, v1")
    k("v_lshrrev_b32 v3, 5, v1")
    k("v_and_b32 v216, 1, v2")
    k("v_lshrrev_b32 v217, 1, v2")
    k("v_and_b32 v218, 2, v217")
    k("v_xor_b32 v218, v218, v216")
    k("v_lshlrev_b32 v218, 4, v218")
    k("v_lshl_add_u32 v218, v217, 6, v218")
    k("v_lshl_add_u32 v218, v3, 12, v218")
    k("s_lshl_b32 s37, s28, 2")
    k("v_add_u32 v218, s37, v218")
    k("v_add_u32 v217, 1, v2")
    k("v_lshrrev_b32 v217, 1, v217")
    k("v_sub_u32 v219, 0, v217")
    k("v_and_b32 v219, 2, v219")
    k("v_add_u32 v216, 2, v216")
    k("v_xor_b32 v219, v219, v216")
    k("v_lshlrev_b32 v219, 4, v219")
    k("v_lshlrev_b32 v217, 6, v217")
    k("v_sub_u32 v219, v219, v217")
    k("v_lshlrev_b32 v217, 12, v3")
    k("v_sub_u32 v219, v219, v217")
    k("s_add_u32 s37, s37, 5120")
    k("v_add_u32 v219, s37, v219")
    k(f"v_add_u32 v227, {16*1024-5120}, v219")
    k("s_lshl_b32 s38, s28, 2")
    k("s_add_u32 s38, s38, 32")
    k("v_mov_b32 v226, s38")
    k("v_cmp_eq_u32 vcc, 0, v1")
    k("v_cndmask_b32 v227, v227, v226, vcc")
    k("s_mov_b32 s35, 0xffff0000")
    mark(k, 1)
    k("s_waitcnt vmcnt(0)")
    k("v_lshlrev_b32 v225, 4, v1")
    k(f"buffer_load_dwordx4 {vr(XL,4)}, v225, s[8:11], s31 offen")
    k(f"buffer_load_dwordx4 {vr(XL+4,4)}, v225, s[8:11], s31 offen offset:1024")
    k(f"buffer_load_dwordx4 {vr(XL+8,4)}, v225, s[8:11], s32 offen")
    k(f"buffer_load_dwordx4 {vr(XL+12,4)}, v225, s[8:11], s32 offen offset:1024")
    if W1PF:
        srd(k, 48, 24, S*F*2)
        k(f"s_mul_i32 s38, s2, {W1PF*128}")
        k(f"s_add_u32 s38, s38, {256*W1PF*128}")
        k("v_lshlrev_b32 v226, 7, v0")
        k(f"v_min_u32 v226, {(W1PF-1)*128}, v226")
        k("buffer_load_dword v224, v226, s[48:51], s38 offen")
    k("s_barrier")
    mark(k, 2)
    for i, (r, c) in enumerate(SEQ):
        if r < 2: k(f"ds_read_b32 v{OP+i}, v218 offset:{(8*r+c)*1024}")
        elif i == 8: k(f"ds_read_b32 v{OP+i}, v227")
        else:     k(f"ds_read_b32 v{OP+i}, v219 offset:{(32-8*r-c)*1024-5120}")
    k("s_waitcnt lgkmcnt(0)")
    stage(k, 'A', DR, DI, OP, Mr, Mi)
    cmul_pack(k, DR, DI, TW, OP, T)
    stage(k, 'B', DR, DI, OP, Mr, Mi)
    k(f"s_waitcnt vmcnt({1 if W1PF else 0})")
    for i in range(8):
        k(f"v_lshlrev_b32 v{R0+2*i}, 16, v{XL+i}")
        k(f"v_and_b32 v{R0+2*i+1}, s35, v{XL+i}")
        k(f"v_lshlrev_b32 v{R1+2*i}, 16, v{XL+8+i}")
        k(f"v_and_b32 v{R1+2*i+1}, s35, v{XL+8+i}")
    TR = 17408
    mark(k, 3)
    k("s_lshl_b32 s36, s28, 12")
    k(f"s_add_u32 s36, s36, {TR}")
    k("v_and_b32 v3, 31, v1")
    k("v_lshlrev_b32 v3, 2, v3")
    k("v_lshrrev_b32 v216, 5, v1")
    k("v_lshlrev_b32 v216, 9, v216")
    k("v_add3_u32 v3, v3, v216, s36")
    k("v_lshl_add_u32 v2, v1, 5, s36")
    for i in range(16):
        k(f"{CVT} v{OP+i}, v{DR+i}, -v{DI+i}")
    for i, (r, c) in enumerate(SEQ):
        k(f"ds_write_b32 v3, v{OP+i} offset:{(8*r+c)*128}")
    k("s_waitcnt lgkmcnt(0)")
    k(f"ds_read_b128 {vr(OP,4)}, v2")
    k(f"ds_read_b128 {vr(OP+4,4)}, v2 offset:16")
    k(f"ds_read_b128 {vr(OP+8,4)}, v2 offset:2048")
    k(f"ds_read_b128 {vr(OP+12,4)}, v2 offset:2064")
    k("s_waitcnt lgkmcnt(0)")
    for i in range(16):
        k(f"v_lshlrev_b32 v{Y0+i}, 16, v{OP+i}")
        k(f"v_and_b32 v{Y1+i}, s35, v{OP+i}")
    for i in range(8):
        k(f"v_pk_add_f32 {vr(Y0+2*i,2)}, {vr(Y0+2*i,2)}, {vr(R0+2*i,2)}")
        k(f"v_pk_add_f32 {vr(Y1+2*i,2)}, {vr(Y1+2*i,2)}, {vr(R1+2*i,2)}")
    HP = 36
    for i in range(8):
        k(f"{CVT} v{HP+i}, v{Y0+2*i}, v{Y0+2*i+1}")
        k(f"{CVT} v{HP+8+i}, v{Y1+2*i}, v{Y1+2*i+1}")
    k("v_lshlrev_b32 v2, 4, v1")
    k(f"buffer_store_dwordx4 {vr(HP,4)}, v2, s[16:19], s31 offen {ST_P3}")
    k(f"buffer_store_dwordx4 {vr(HP+4,4)}, v2, s[16:19], s31 offen offset:1024 {ST_P3}")
    k(f"buffer_store_dwordx4 {vr(HP+8,4)}, v2, s[16:19], s32 offen {ST_P3}")
    k(f"buffer_store_dwordx4 {vr(HP+12,4)}, v2, s[16:19], s32 offen offset:1024 {ST_P3}")
    for i in range(8):
        k(f"v_lshlrev_b32 v{R0+2*i}, 16, v{HP+i}")
        k(f"v_and_b32 v{R0+2*i+1}, s35, v{HP+i}")
        k(f"v_lshlrev_b32 v{R1+2*i}, 16, v{HP+8+i}")
        k(f"v_and_b32 v{R1+2*i+1}, s35, v{HP+8+i}")
    RM = 220
    mark(k, 4)
    ln_stats_rows(k, R0, R1, T, RM, 40)
    if EMU_L2:
        ln_apply_rows(k, R0, R1, RM, Y0, Y1)
        LP = 52
        for i in range(8):
            k(f"{CVT} v{LP+i}, v{Y0+2*i}, v{Y0+2*i+1}")
            k(f"{CVT} v{LP+8+i}, v{Y1+2*i}, v{Y1+2*i+1}")
        for i in range(8):
            k(f"v_lshlrev_b32 v{R0+2*i}, 16, v{LP+i}")
            k(f"v_and_b32 v{R0+2*i+1}, s35, v{LP+i}")
            k(f"v_lshlrev_b32 v{R1+2*i}, 16, v{LP+8+i}")
            k(f"v_and_b32 v{R1+2*i+1}, s35, v{LP+8+i}")
    else:
        ln_apply_rows(k, R0, R1, RM, R0, R1)
    ln_stats_rows(k, R0, R1, T, RM, 40)
    ln_apply_rows(k, R0, R1, RM, Y0, Y1)
    NP = 68
    for i in range(8):
        k(f"{CVT} v{NP+i}, v{Y0+2*i}, v{Y0+2*i+1}")
        k(f"{CVT} v{NP+8+i}, v{Y1+2*i}, v{Y1+2*i+1}")
    k(f"buffer_store_dwordx4 {vr(NP,4)}, v2, s[20:23], s31 offen {ST_P3}")
    k(f"buffer_store_dwordx4 {vr(NP+4,4)}, v2, s[20:23], s31 offen offset:1024 {ST_P3}")
    k(f"buffer_store_dwordx4 {vr(NP+8,4)}, v2, s[20:23], s32 offen {ST_P3}")
    k(f"buffer_store_dwordx4 {vr(NP+12,4)}, v2, s[20:23], s32 offen offset:1024 {ST_P3}")
    stamp_end(k, 'p3')
    k("L_p3_end:")
    k("s_endpgm")
    return k, 228, 33792

MF16 = 'v_mfma_f32_16x16x32_bf16'

def interleave(mf, rd, lead=0):
    out = []; n = len(mf); m = len(rd); ri = 0
    for i in range(n):
        out.append(mf[i])
        tgt = min(m, (m*(i+1) + n - 1)//n)
        while ri < tgt:
            out.append(rd[ri]); ri += 1
    out += rd[ri:]
    return out

def producer_loop(k, tag, per, issue, NS, NIT):
    mark(k, 1)
    issue()
    mark(k, 2)
    issue()
    k(f"s_waitcnt vmcnt({per})")
    mark(k, 3)
    k("s_barrier")
    for n in range(2, NS): issue()
    mark(k, 4)
    nmain = NIT - NS
    k(f"s_mov_b32 s60, 0")
    k(f"L_{tag}_ploop:")
    k(f"s_waitcnt vmcnt({(NS-2)*per})")
    k("s_barrier")
    issue()
    k("s_add_u32 s60, s60, 1")
    k(f"s_cmp_lt_u32 s60, {nmain}")
    k(f"s_cbranch_scc1 L_{tag}_ploop")
    for n in range(nmain, NIT-1):
        k(f"s_waitcnt vmcnt({(NIT-1-(n+1))*per})")
        k("s_barrier")


XB_OFF = ZW_OFF
FL_OFF = 0x2800000
BAR_OFF = 0x2810000
def gemm_kernel(tag, fused=False):
    g1 = tag == 'g1'
    k = Kern('gg_kernel' if fused else tag + '_kernel')
    ENDL = 'L_gg_end' if fused else f'L_{tag}_end'
    ASZ = 16384; STG = 32768; NS = 4 if STATIC else (5 if BAR2 else 3)
    NIT = 32 if g1 else 28
    BSTR = 7168 if g1 else 4096
    if not (fused and not g1):
        k(f"s_cmp_ge_u32 s2, 256")
        k(f"s_cbranch_scc1 {ENDL}")
    else:
        k("L_gbar:")
        k("s_load_dwordx2 s[26:27], s[0:1], 80")
        k("s_waitcnt vmcnt(0) lgkmcnt(0)")
        k("s_barrier")
        srd(k, 36, 26, 1024, BAR_OFF)
        k("v_cmp_eq_u32 vcc, 0, v0")
        k("s_and_saveexec_b64 s[34:35], vcc")
        k("s_cbranch_execz L_gbar_noarr")
        k("s_and_b32 s33, s2, 7")
        k("s_lshl_b32 s33, s33, 7")
        k("v_mov_b32 v2, 1")
        k("v_mov_b32 v3, 0")
        k("buffer_atomic_add v2, v3, s[36:39], s33 offen sc1")
        k("L_gbar_noarr:")
        k("s_mov_b64 exec, -1")
    stamp_begin(k)
    if g1:
        k("s_load_dwordx4 s[4:7], s[0:1], 32")
        k("s_load_dwordx2 s[24:25], s[0:1], 48")
    else:
        k("s_load_dwordx4 s[4:7], s[0:1], 48")
        k("s_load_dwordx2 s[24:25], s[0:1], 64")
    k("s_load_dwordx2 s[26:27], s[0:1], 80")
    k("v_and_b32 v1, 63, v0")
    k("v_lshrrev_b32 v2, 6, v0")
    k("v_readfirstlane_b32 s28, v2")
    if g1:
        k("s_and_b32 s30, s2, 1")
        k("s_lshl_b32 s30, s30, 2")
        k("s_bfe_u32 s52, s2, 0x20003")
        k("s_add_u32 s30, s30, s52")
        k("s_bfe_u32 s29, s2, 0x20001")
        k("s_mul_i32 s29, s29, 7")
        k("s_lshr_b32 s53, s2, 5")
        k("s_add_u32 s29, s29, s53")
        k("s_mov_b32 s63, 0")
        k("s_and_b32 s55, s2, 1")
        k(f"s_mul_i32 s55, s55, {16 if KHALF else 0}")
    else:
        if MAP2 == 1:
            k("s_bfe_u32 s62, s2, 0x10003")
            k("s_bfe_u32 s29, s2, 0x20001")
            k("s_lshl_b32 s29, s29, 2")
            k("s_bfe_u32 s52, s2, 0x20004")
            k("s_add_u32 s29, s29, s52")
            k("s_lshr_b32 s53, s2, 6")
            k("s_and_b32 s30, s2, 1")
            k("s_lshl_b32 s30, s30, 2")
            k("s_add_u32 s30, s30, s53")
        else:
            k("s_and_b32 s62, s2, 1")
            k("s_bfe_u32 s29, s2, 0x20001")
            k("s_lshl_b32 s29, s29, 2")
            k("s_bfe_u32 s52, s2, 0x20003")
            k("s_add_u32 s29, s29, s52")
            k("s_lshr_b32 s53, s2, 5")
            k("s_mov_b32 s30, s53")
        k("s_mov_b32 s55, 0")
        k("s_mul_i32 s63, s62, 28")
        srd(k, 56, 26, 256*64, FL_OFF) if False else None
    k("s_lshl_b32 s31, s29, 8")
    k("s_lshl_b32 s32, s30, 8")
    k("s_waitcnt lgkmcnt(0)")
    if g1:
        srd(k, 8, 4, S*F*2)
        srd(k, 12, 26, S*D*2, HN_OFF)
        srd(k, 16, 26, F*D*2, GT_OFF)
        srd(k, 20, 6, F*2)
        srd(k, 44, 26, 256*64, FL_OFF)
        k("s_lshl_b32 s33, s2, 6")
        k("v_mov_b32 v2, 0")
        k("v_lshlrev_b32 v3, 2, v0")
        k("v_cmp_gt_u32 vcc, 16, v0")
        k("s_and_saveexec_b64 s[34:35], vcc")
        k(f"s_cbranch_execz L_{tag}_nozf")
        k("buffer_store_dword v2, v3, s[44:47], s33 offen sc0 sc1")
        k(f"L_{tag}_nozf:")
        k("s_mov_b64 exec, -1")
        k("s_cmp_lt_u32 s2, 224")
        k(f"s_cbranch_scc1 L_{tag}_main")
        if W1IDLE:
            k("s_sub_u32 s33, s2, 224")
            k("s_mul_i32 s33, s33, 112")
            k("v_mul_u32_u24 v3, 586, v0")
            k("v_lshrrev_b32 v3, 16, v3")
            k("v_mul_u32_u24 v4, 112, v3")
            k("v_sub_u32 v4, v0, v4")
            k("v_add_u32 v4, s33, v4")
            k("v_mul_u32_u24 v5, 4682, v4")
            k("v_lshrrev_b32 v5, 18, v5")
            k("v_mul_u32_u24 v6, 56, v5")
            k("v_sub_u32 v6, v4, v6")
            k("v_and_b32 v7, 1, v3")
            k("v_lshrrev_b32 v8, 1, v3")
            k("v_lshl_add_u32 v7, v7, 4, v8")
            k("v_lshl_add_u32 v5, v7, 6, v5")
            k("v_mul_u32_u24 v5, 7168, v5")
            k("v_lshl_add_u32 v2, v6, 7, v5")
            k("v_cmp_gt_u32 vcc, 448, v0")
            k("s_and_saveexec_b64 s[34:35], vcc")
            k(f"s_cbranch_execz L_{tag}_now1")
            k(f"s_mov_b32 s33, {W1IDLE*64*7168}")
            for i in range((16-W1IDLE)//2):
                k(f"buffer_load_dword v9, v2, s[8:11], s33 offen")
                k(f"s_add_u32 s33, s33, {2*64*7168}")
            k(f"L_{tag}_now1:")
            k("s_mov_b64 exec, -1")
        if W2PF:
            srd(k, 48, 24, F*S*2)
            k("s_sub_u32 s33, s2, 224")
            k("s_and_b32 s34, s33, 15")
            k("s_lshr_b32 s35, s33, 4")
            k(f"s_mul_i32 s35, s35, {1792*4096}")
            k("s_lshl_b32 s33, s34, 16")
            k("s_add_u32 s33, s33, s35")
            k("v_lshlrev_b32 v2, 7, v0")
            for i in range(W2PF):
                k(f"buffer_load_dword v9, v2, s[48:51], s33 offen")
                k(f"s_add_u32 s33, s33, {16*65536}")
        if XSENT:
            srd(k, 44, 26, 256*(16384 if XBF16 else 32768), 0x1E00000 if XB_SEP else VB_OFF)
            k("s_sub_u32 s33, s2, 224")
            k("s_lshl_b32 s33, s33, 17")
            k("v_lshlrev_b32 v2, 4, v0")
            for i in range(4): k(f"v_mov_b32 v{4+i}, -1")
            k("s_mov_b32 s34, 0")
            k(f"L_{tag}_clr:")
            k("buffer_store_dwordx4 v[4:7], v2, s[44:47], s33 offen sc0 sc1")
            k("s_add_u32 s33, s33, 8192")
            k("s_add_u32 s34, s34, 1")
            k("s_cmp_lt_u32 s34, 16")
            k(f"s_cbranch_scc1 L_{tag}_clr")
        stamp_end(k, tag, tid=0, slot=256, sfx='idle')
        k(f"s_branch {'L_gbar' if fused else ENDL}")
        k(f"L_{tag}_main:")
    else:
        srd(k, 8, 4, F*S*2)
        srd(k, 12, 26, F*D*2, GT_OFF)
        srd(k, 16, 26, S*D*2, H_OFF)
        srd(k, 20, 6, S*2)
        srd(k, 48, 24, S*D*2)
        k("s_getreg_b32 s54, hwreg(HW_REG_XCC_ID, 0, 4)")
        k("s_add_u32 s54, s54, 1")
        srd(k, 56, 26, 256*64, FL_OFF)
        k("s_lshl_b32 s33, s2, 6")
        k("v_mov_b32 v2, s54")
        k("v_mov_b32 v3, 0")
        k("v_cmp_eq_u32 vcc, 0, v0")
        k("s_and_saveexec_b64 s[34:35], vcc")
        k(f"s_cbranch_execz L_{tag}_nopub")
        k("buffer_store_dword v2, v3, s[56:59], s33 offen offset:4 sc0 sc1")
        k(f"L_{tag}_nopub:")
        k("s_mov_b64 exec, -1")
    k("s_cmp_ge_u32 s28, 4")
    k(f"s_cbranch_scc1 L_{tag}_prod")
    ACC = 8; X = 72; Y = 136; R = 200
    AA = [R+i for i in range(4)]; AB = [R+4+i for i in range(4)]
    BA = [R+8+i for i in range(4)]; BB = [R+12+i for i in range(4)]
    MISC = R + 16
    k("s_and_b32 s33, s28, 1")
    k("s_lshr_b32 s36, s28, 1")
    k("v_lshrrev_b32 v2, 4, v1")
    k("v_bfe_u32 v3, v1, 2, 2")
    k("v_and_b32 v4, 3, v1")
    k("v_lshl_add_u32 v5, v2, 2, v3")
    k("v_and_b32 v6, 7, v5")
    k("v_lshlrev_b32 v6, 1, v6")
    k("v_lshrrev_b32 v7, 1, v4")
    k("v_and_b32 v9, 1, v4")
    for (base, w, add) in ((BA, 's33', 0), (BB, 's36', ASZ)):
        k(f"s_lshl_b32 s35, {w}, 3")
        k("v_add_u32 v10, s35, v7")
        k("v_xor_b32 v10, v10, v6")
        k("v_lshlrev_b32 v10, 4, v10")
        k("v_lshl_add_u32 v10, v9, 3, v10")
        k("v_lshl_add_u32 v10, v5, 8, v10")
        if add: k(f"v_add_u32 v10, {add}, v10")
        k(f"v_mov_b32 v{base[0]}, v10")
        for t in range(1, 4): k(f"v_xor_b32 v{base[t]}, {32*t}, v10")
    for t in range(4):
        k(f"v_mov_b32 v{AA[t]}, v{BA[t]}"); k(f"v_mov_b32 v{AB[t]}, v{BB[t]}")
    BIAS = MISC
    k("v_and_b32 v2, 15, v1")
    k("v_lshlrev_b32 v2, 1, v2")
    k("s_lshl_b32 s37, s36, 7")
    k("s_add_u32 s37, s37, s31")
    for t in range(4):
        k(f"buffer_load_ushort v{BIAS+t}, v2, s[20:23], s37 offen offset:{32*t}")
    OV = MISC+4
    k("v_and_b32 v2, 15, v1")
    k("v_lshlrev_b32 v2, 11, v2")
    k("v_lshrrev_b32 v3, 4, v1")
    k(f"v_lshl_add_u32 v{OV}, v3, 4, v2")
    k("s_lshl_b32 s38, s29, 7")
    k("s_lshl_b32 s39, s36, 6")
    k("s_add_u32 s38, s38, s39")
    k("s_lshl_b32 s38, s38, 11")
    k("s_add_u32 s38, s38, s32")
    k("s_lshl_b32 s39, s33, 7")
    k("s_add_u32 s38, s38, s39")
    if not g1:
        HL = MISC+6
        NV = HL+16
        if OUT_TOUCH:
            k("s_lshl_b32 s39, s62, 16")
            k("s_add_u32 s39, s39, s38")
            k(f"buffer_load_dword v{NV}, v{OV}, s[48:51], s39 offen")
            NV += 1
    else:
        NV = MISC+5
    def reads(dst, buf=None):
        r = []
        for ks in range(2):
            b = dst + 32*ks; ko = 32*ks
            for t in range(4):
                if buf is None: regs = (AA[t], AB[t]); bo = 0
                else:
                    regs = (BA[t], BB[t]) if buf < 2 else (AA[t], AB[t]); bo = (buf % 2)*STG
                for (o, a) in ((0, regs[0]), (16, regs[1])):
                    r.append(f"ds_read_b64_tr_b16 {vr(b+o+4*t,2)}, v{a} offset:{bo+ko*256}")
                    r.append(f"ds_read_b64_tr_b16 {vr(b+o+4*t+2,2)}, v{a} offset:{bo+(ko+16)*256}")
        return r
    def mfmas(src):
        m = []
        for ks in range(2):
            b = src + 32*ks
            order = sorted([(td, tn) for td in range(4) for tn in range(4)], key=lambda x: (max(x), x))
            if FAKE32:
                for i in range(8):
                    a = ACC + 16*(i % 4)
                    m.append(f"{MF32} {vr(a,16)}, {vr(b+4*(i%4),4)}, {vr(b+16+4*((i//2)%4),4)}, {vr(a,16)}")
                continue
            for td, tn in order:
                a = ACC + 4*(4*tn+td)
                m.append(f"{MF16} {vr(a,4)}, {vr(b+4*td,4)}, {vr(b+16+4*tn,4)}, {vr(a,4)}")
        return m
    def sched(mf, rd, extra):
        out = []; ri = 0; ei = 0
        for i, m in enumerate(mf):
            out.append(m)
            if ri < len(rd):
                for _ in range(RPAT[i % len(RPAT)]):
                    if ri < len(rd): out.append(rd[ri]); ri += 1
            elif ei < len(extra):
                out.append(extra[ei]); ei += 1
        out += rd[ri:] + extra[ei:]
        return out
    def upd():
        e = [f"s_add_u32 s34, s34, {STG}", f"s_cmp_eq_u32 s34, {STG*NS}", "s_cselect_b32 s34, 0, s34"]
        e += [f"v_add_u32 v{AA[t]}, s34, v{BA[t]}" for t in range(4)]
        e += [f"v_add_u32 v{AB[t]}, s34, v{BB[t]}" for t in range(4)]
        return e
    for i in range(64): k(f"v_mov_b32 v{ACC+i}, 0")
    k("s_mov_b32 s34, 0")
    k("s_mov_b32 s35, 0")
    if fused and not g1: k("s_barrier")
    mark(k, 1)
    k("s_barrier")
    mark(k, 2)
    if STATIC:
        for t in range(4):
            k(f"v_add_u32 v{AA[t]}, 65536, v{BA[t]}"); k(f"v_add_u32 v{AB[t]}, 65536, v{BB[t]}")
        for x in reads(X, 0): k(x)
        k(f"L_{tag}_cloop:")
        for u in range(4):
            cur, nxt = (X, Y) if u % 2 == 0 else (Y, X)
            k("s_waitcnt lgkmcnt(0)")
            k("s_barrier")
            ex = ["s_add_u32 s35, s35, 4", f"s_cmp_lt_u32 s35, {NIT-4}"] if u == 3 else []
            for x in sched(mfmas(cur), reads(nxt, (u+1) % 4), ex): k(x)
        k(f"s_cbranch_scc1 L_{tag}_cloop")
        for u in range(2):
            cur, nxt = (X, Y) if u % 2 == 0 else (Y, X)
            k("s_waitcnt lgkmcnt(0)")
            k("s_barrier")
            for x in sched(mfmas(cur), reads(nxt, u+1), []): k(x)
    else:
        for x in reads(X): k(x)
        for x in upd(): k(x)
        k(f"L_{tag}_cloop:")
        k("s_waitcnt lgkmcnt(0)")
        if LOOPSTAMP:
            k(f"s_cmp_eq_u32 s35, {LOOPSTAMP}")
            k(f"s_cbranch_scc0 L_{tag}_nolatch")
            for i in range(4): k(f"s_mov_b64 s[{96-20+2*i}:{97-20+2*i}], s[{66+2*i}:{67+2*i}]") if False else None
            k("s_sub_u32 s90, s68, s66"); k("s_sub_u32 s91, s70, s68"); k("s_sub_u32 s92, s72, s70")
            k("s_memtime s[82:83]"); k("s_waitcnt lgkmcnt(0)"); k("s_sub_u32 s93, s82, s72")
            k(f"L_{tag}_nolatch:")
        k("s_barrier")
        if LOOPSTAMP: k("s_memtime s[66:67]")
        for x in sched(mfmas(X), reads(Y), upd()): k(x)
        if LOOPSTAMP: k("s_memtime s[68:69]")
        k("s_waitcnt lgkmcnt(0)")
        if not BAR2: k("s_barrier")
        if LOOPSTAMP: k("s_memtime s[70:71]")
        for x in sched(mfmas(Y), reads(X), upd() + ["s_add_u32 s35, s35, 2", f"s_cmp_lt_u32 s35, {NIT-2}"]): k(x)
        if LOOPSTAMP: k("s_memtime s[72:73]")
        k(f"s_cbranch_scc1 L_{tag}_cloop")
    if LOOPSTAMP:
        k("s_waitcnt lgkmcnt(0)")
        for i in range(4):
            k(f"s_mov_b32 s{66+2*i}, s{90+i}"); k(f"s_mov_b32 s{67+2*i}, 0")
    XID = 3
    if not g1:
        k(f"s_xor_b32 s42, s2, {8 if MAP2 == 1 else 1}")
        k("s_lshl_b32 s39, s42, 6")
        k("v_mov_b32 v4, 0")
        k(f"buffer_load_dword v{XID}, v4, s[56:59], s39 offen offset:4 sc0 sc1")
        k("s_lshl_b32 s39, s62, 16")
        k("s_add_u32 s39, s39, s38")
        for tnl in range(2):
            for tp in range(2):
                k(f"s_add_u32 s40, s39, {tnl*16*2048 + tp*64}")
                k(f"buffer_load_dwordx4 {vr(HL+8*tnl+4*tp,4)}, v{OV}, s[16:19], s40 offen")
    k("s_waitcnt lgkmcnt(0)")
    k("s_barrier")
    for x in sched(mfmas(X), reads(Y, 3 if STATIC else None), []): k(x)
    k("s_waitcnt lgkmcnt(0)")
    for x in mfmas(Y): k(x)
    mark(k, 3)
    k("s_mov_b32 s40, 0xffff0000")
    T = X
    def pack_swap(P):
        k(f"v_permlane32_swap_b32 v{P}, v{P+2}")
        k(f"v_permlane32_swap_b32 v{P+1}, v{P+3}")
        k(f"v_permlane16_swap_b32 v{P}, v{P+2}")
        k(f"v_permlane16_swap_b32 v{P+1}, v{P+3}")
    def store_lines(P0, P1, tmp, so, srdreg):
        for i in range(4): k(f"v_mov_b32 v{tmp+i}, v{P0+i}")
        for i in range(4): k(f"v_mov_b32_dpp v{P0+i}, v{P1+i} row_ror:8 row_mask:0xf bank_mask:0xc")
        for i in range(4): k(f"v_mov_b32_dpp v{P1+i}, v{tmp+i} row_ror:8 row_mask:0xf bank_mask:0x3")
        fl = ST_G1 if g1 else ST_G2
        k(f"s_add_u32 s41, s38, {so}")
        k(f"buffer_store_dwordx4 {vr(P0,4)}, v{OVS}, s[{srdreg}:{srdreg+3}], s41 offen {fl}")
        k(f"s_add_u32 s41, s38, {so + 8*2048}")
        k(f"buffer_store_dwordx4 {vr(P1,4)}, v{OVS}, s[{srdreg}:{srdreg+3}], s41 offen {fl}")
    OVS = 3
    def set_ovs():
        k("v_and_b32 v2, 7, v1")
        k("v_lshlrev_b32 v2, 11, v2")
        k("v_bfe_u32 v3, v1, 3, 1")
        k("v_lshl_add_u32 v2, v3, 6, v2")
        k("v_lshrrev_b32 v3, 4, v1")
        k(f"v_lshl_add_u32 v{OVS}, v3, 4, v2")
    if g1:
        SH = 32768 if STATIC else (98304 if BAR2 else 65536)
        k("s_lshl_b32 s39, s28, 13")
        k(f"s_add_u32 s39, s39, {SH}")
        k("v_lshl_add_u32 v2, v1, 4, s39")
        for i in range(8): k(f"ds_write_b128 v2, {vr(ACC+32+4*i,4)} offset:{1024*i}")
        k("s_waitcnt vmcnt(0) lgkmcnt(0)")
        k("s_barrier")
        mark(k, 4)
        k(f"L_{tag}_epi:")
        for t in range(2): k(f"v_lshlrev_b32 v{BIAS+t}, 16, v{BIAS+t}")
        c0 = -2.0*math.log2(math.e)*math.sqrt(2.0/math.pi); c1 = c0*0.044715
        k("s_mov_b32 s40, 0xffff0000")
        k(f"s_mov_b32 s42, {f32(c1)}")
        k(f"v_mov_b32 v4, {f32(c0)}"); k(f"v_mov_b32 v5, {f32(c0)}")
        k(f"v_mov_b32 v6, 1.0"); k(f"v_mov_b32 v7, 1.0")
        set_ovs()
        for tn in range(2):
            for tp in range(2):
                P = T + 4*tp + 24*tn
                for q in range(4):
                    td = 2*tp + q//2
                    src = ACC + 4*(4*tn+td) + 2*(q % 2)
                    u, w = T+8+4*q, T+10+4*q
                    gelu_pair(k, src, u, w, BIAS+tn, P+q)
                pack_swap(P)
            store_lines(T+24*tn, T+24*tn+4, T+32, tn*16*2048, 16)
    else:
        k("s_waitcnt vmcnt(0)")
        srd(k, 44, 26, 256*(16384 if XBF16 else 32768), 0x1E00000 if XB_SEP else VB_OFF)
        srd(k, 56, 26, 256*64, FL_OFF)
        k(f"s_xor_b32 s42, s2, {8 if MAP2 == 1 else 1}")
        k(f"s_lshl_b32 s43, s42, {14 if XBF16 else 15}")
        k(f"s_lshl_b32 s39, s28, {12 if XBF16 else 13}")
        k("s_add_u32 s43, s43, s39")
        k("v_lshlrev_b32 v2, 4, v1")
        k("v_mov_b32 v4, 0")
        k("s_lshl_b32 s39, s42, 6")
        k("s_mov_b32 s41, 0")
        k("v_readfirstlane_b32 s61, v3")
        k("s_cmp_eq_u32 s61, 0")
        k(f"s_cbranch_scc0 L_{tag}_xpolld")
        k(f"L_{tag}_xpoll:")
        k("buffer_load_dword v3, v4, s[56:59], s39 offen offset:4 sc0 sc1")
        k("s_waitcnt vmcnt(0)")
        k("v_readfirstlane_b32 s61, v3")
        k("s_add_u32 s41, s41, 1")
        k("s_cmp_ge_u32 s41, 0x40000")
        k(f"s_cbranch_scc1 L_{tag}_xpolld")
        k("s_cmp_eq_u32 s61, 0")
        k(f"s_cbranch_scc1 L_{tag}_xpoll")
        k(f"L_{tag}_xpolld:")
        k("s_cmp_eq_u32 s61, s54")
        k(f"s_cselect_b32 s61, {0 if FORCE_FAR else 1}, 0")
        def sends(flags, lab):
            k("s_cmp_eq_u32 s62, 0")
            k(f"s_cbranch_scc1 L_{tag}_k0{lab}")
            for half, l2 in ((0, None), (32, f"L_{tag}_k0{lab}:")):
                if l2: k(l2)
                if XBF16:
                    for i in range(16): k(f"{CVT} v{Y+32+i}, v{ACC+half+2*i}, v{ACC+half+2*i+1}")
                    for i in range(4):
                        k(f"s_add_u32 s39, s43, {1024*i}")
                        k(f"buffer_store_dwordx4 {vr(Y+32+4*i,4)}, v2, s[44:47], s39 offen {flags}")
                else:
                    for i in range(8):
                        k(f"s_add_u32 s39, s43, {1024*i}")
                        k(f"buffer_store_dwordx4 {vr(ACC+half+4*i,4)}, v2, s[44:47], s39 offen {flags}")
                if half == 0: k(f"s_branch L_{tag}_k1{lab}")
            k(f"L_{tag}_k1{lab}:")
        def handoff(stf, ldf, lab):
            sends(stf, lab)
            k("s_waitcnt vmcnt(0)")
            k("s_lshl_b32 s39, s42, 6")
            k("s_lshl_b32 s41, s28, 2")
            k("s_add_u32 s39, s39, s41")
            k("v_mov_b32 v3, 1")
            k("s_mov_b64 exec, 1")
            k(f"buffer_store_dword v3, v4, s[56:59], s39 offen offset:16 {stf}")
            k("s_lshl_b32 s39, s2, 6")
            k("s_add_u32 s39, s39, s41")
            k("s_mov_b32 s41, 0")
            k(f"L_{tag}_poll{lab}:")
            k(f"buffer_load_dword v3, v4, s[56:59], s39 offen offset:16 {ldf}")
            k("s_waitcnt vmcnt(0)")
            k("v_readfirstlane_b32 s43, v3")
            k("s_add_u32 s41, s41, 1")
            k("s_cmp_ge_u32 s41, 0x40000")
            k(f"s_cbranch_scc1 L_{tag}_polld{lab}")
            k("s_cmp_eq_u32 s43, 1")
            k(f"s_cbranch_scc0 L_{tag}_poll{lab}")
            k(f"L_{tag}_polld{lab}:")
            k("s_mov_b64 exec, -1")
            k(f"s_lshl_b32 s43, s2, {14 if XBF16 else 15}")
            k(f"s_lshl_b32 s39, s28, {12 if XBF16 else 13}")
            k("s_add_u32 s43, s43, s39")
            for i in range(4 if XBF16 else 8):
                k(f"s_add_u32 s39, s43, {1024*i}")
                k(f"buffer_load_dwordx4 {vr(Y+(32 if XBF16 else 0)+4*i,4)}, v2, s[44:47], s39 offen {ldf}")
        if XSENT:
            assert XBF16
            sends('sc0 sc1', 's')
            k("s_lshl_b32 s43, s2, 14")
            k("s_lshl_b32 s39, s28, 12")
            k("s_add_u32 s43, s43, s39")
            k("s_mov_b32 s41, 0")
            k("s_waitcnt vmcnt(0)")
            k(f"L_{tag}_spoll:")
            for i in range(4):
                k(f"s_add_u32 s39, s43, {1024*i}")
                k(f"buffer_load_dwordx4 {vr(Y+32+4*i,4)}, v2, s[44:47], s39 offen sc0 sc1")
            k("s_add_u32 s41, s41, 1")
            k("s_waitcnt vmcnt(0)")
            k(f"v_max3_u32 v3, v{Y+32}, v{Y+33}, v{Y+34}")
            for i in range(3, 15, 2): k(f"v_max3_u32 v3, v3, v{Y+32+i}, v{Y+32+i+1}")
            k(f"v_max_u32 v3, v3, v{Y+47}")
            k("v_cmp_eq_u32 vcc, -1, v3")
            k("s_nop 4")
            k("s_cmp_ge_u32 s41, 0x20000")
            k(f"s_cbranch_scc1 L_{tag}_spolld")
            k(f"s_cbranch_vccnz L_{tag}_spoll")
            k(f"L_{tag}_spolld:")
        else:
            k("s_cmp_eq_u32 s61, 1")
            k(f"s_cbranch_scc0 L_{tag}_far")
            handoff('', 'sc1', 'n')
            k(f"s_branch L_{tag}_xdone")
            k(f"L_{tag}_far:")
            handoff('sc0 sc1', 'sc0 sc1', 'f')
            k(f"L_{tag}_xdone:")
        k("s_cmp_eq_u32 s62, 0")
        k(f"s_cbranch_scc1 L_{tag}_kept")
        for i in range(32): k(f"v_mov_b32 v{ACC+i}, v{ACC+32+i}")
        k(f"v_mov_b32 v{BIAS}, v{BIAS+2}"); k(f"v_mov_b32 v{BIAS+1}, v{BIAS+3}")
        k(f"L_{tag}_kept:")
        mark(k, 4)
        k(f"v_lshlrev_b32 v{BIAS}, 16, v{BIAS}"); k(f"v_lshlrev_b32 v{BIAS+1}, 16, v{BIAS+1}")
        if PERTURB:
            k(f"v_add_f32 v{BIAS}, {f32(PERTURB)}, v{BIAS}"); k(f"v_add_f32 v{BIAS+1}, {f32(PERTURB)}, v{BIAS+1}")
        k("s_lshl_b32 s39, s62, 16")
        k("s_add_u32 s38, s38, s39")
        set_ovs()
        for tnl in range(2):
            for tp in range(2):
                i0 = 4*tnl + 2*tp
                if XBF16: k(f"s_waitcnt vmcnt({3 - i0//2})")
                else:     k(f"s_waitcnt vmcnt({6 - i0 if i0 < 6 else 0})")
                if i0 == 0: mark(k, 5)
                P = T + 4*tp + 24*tnl
                for q in range(4):
                    td = 2*tp + q//2
                    a = ACC + 4*(4*tnl+td) + 2*(q % 2); y = Y + 4*(4*tnl+td) + 2*(q % 2)
                    u, w = T+8+4*q, T+10+4*q
                    if XBF16:
                        pk = Y + 32 + (4*(4*tnl+td) + 2*(q % 2))//2
                        k(f"v_lshlrev_b32 v{y}, 16, v{pk}")
                        k(f"v_and_b32 v{y+1}, s40, v{pk}")
                    k(f"v_pk_add_f32 {vr(a,2)}, {vr(a,2)}, {vr(y,2)}")
                    if EMU_Y:
                        k(f"{CVT} v{w}, v{a}, v{a+1}")
                        k(f"v_lshlrev_b32 v{u}, 16, v{w}")
                        k(f"v_and_b32 v{u+1}, s40, v{w}")
                        k(f"v_add_f32 v{u}, v{u}, v{BIAS+tnl}")
                        k(f"v_add_f32 v{u+1}, v{u+1}, v{BIAS+tnl}")
                    else:
                        k(f"v_add_f32 v{u}, v{a}, v{BIAS+tnl}")
                        k(f"v_add_f32 v{u+1}, v{a+1}, v{BIAS+tnl}")
                    k(f"{CVT} v{P+q}, v{u}, v{u+1}")
                pack_swap(P)
                for q in range(4):
                    u, w = T+8+4*q, T+10+4*q
                    hp = HL+8*tnl+4*tp+q
                    k(f"v_lshlrev_b32 v{u}, 16, v{P+q}")
                    k(f"v_and_b32 v{u+1}, s40, v{P+q}")
                    k(f"v_lshlrev_b32 v{w}, 16, v{hp}")
                    k(f"v_and_b32 v{w+1}, s40, v{hp}")
                    k(f"v_pk_add_f32 {vr(u,2)}, {vr(u,2)}, {vr(w,2)}")
                    k(f"{CVT} v{P+q}, v{u}, v{u+1}")
            store_lines(T+24*tnl, T+24*tnl+4, T+32, tnl*16*2048, 48)
    stamp_end(k, tag)
    k(f"s_branch {'L_gbar' if (fused and g1) else ENDL}")
    k(f"L_{tag}_prod:")
    if PPRIO: k(f"s_setprio {PPRIO}")
    k("s_sub_u32 s33, s28, 4")
    k("v_lshrrev_b32 v2, 4, v1")
    k("s_and_b32 s34, s33, 1")
    k("s_lshl_b32 s34, s34, 2")
    k("v_add_u32 v3, s34, v2")
    k("v_lshlrev_b32 v3, 1, v3")
    k("v_and_b32 v4, 15, v1")
    k("v_xor_b32 v3, v3, v4")
    k("v_lshlrev_b32 v3, 4, v3")
    k("v_lshl_add_u32 v8, v2, 11, v3")
    k(f"v_mul_u32_u24 v2, {BSTR}, v2")
    k("v_add_u32 v9, v2, v3")
    k("s_lshl_b32 s34, s33, 13")
    k("s_add_u32 s40, s32, s34")
    k(f"s_mul_i32 s34, s33, {4*BSTR}")
    k("s_add_u32 s41, s31, s34")
    k("s_lshl_b32 s42, s33, 10")
    k("s_mov_b32 s43, 0")
    k("s_add_u32 s46, s52, s53")
    k("s_mov_b32 s47, 0")
    def issue():
        k("s_add_u32 s58, s46, s47")
        k("s_and_b32 s58, s58, 3")
        k("s_cmp_eq_u32 s58, 0")
        k(f"s_cselect_b32 s58, {3+NIT}, {NIT-1}")
        k("s_add_u32 s58, s58, s47")
        k("s_add_u32 s58, s58, s55")
        k(f"s_cmp_ge_u32 s58, {2*NIT}")
        k(f"s_cselect_b32 s59, {2*NIT}, {NIT}")
        k(f"s_cmp_ge_u32 s58, {NIT}")
        k(f"s_cselect_b32 s59, s59, 0")
        k("s_sub_u32 s58, s58, s59")
        if not KPERM: k("s_mov_b32 s58, s47")
        if KWRAP: k(f"s_and_b32 s58, s58, {KWRAP-1}")
        k("s_add_u32 s58, s58, s63")
        k(f"s_mul_i32 s59, s58, {64*BSTR}")
        k(f"s_lshl_b32 s58, s58, 17")
        k("s_add_u32 s58, s58, s40")
        k("s_add_u32 s59, s59, s41")
        k("s_add_u32 s44, s43, s42")
        for m in range(4):
            k(f"s_add_u32 m0, s44, {4096*m}")
            k(f"s_add_u32 s45, s58, {m*16*2048}")
            k(f"buffer_load_dwordx4 v8, s[12:15], s45 offen lds")
            k(f"s_add_u32 m0, s44, {ASZ+4096*m}")
            k(f"s_add_u32 s45, s59, {m*16*BSTR}")
            k(f"buffer_load_dwordx4 v9, s[8:11], s45 offen {NT_B1 if g1 else NT_B2} lds")
        k("s_add_u32 s47, s47, 1")
        k(f"s_add_u32 s43, s43, {STG}")
        k(f"s_cmp_eq_u32 s43, {STG*NS}")
        k("s_cselect_b32 s43, 0, s43")
    if fused and not g1:
        k("s_cmp_eq_u32 s33, 0")
        k("s_cbranch_scc0 L_gbar_nopoll")
        srd(k, 36, 26, 1024, BAR_OFF)
        k("v_and_b32 v2, 7, v1")
        k("v_lshlrev_b32 v2, 7, v2")
        k("s_mov_b32 s34, 0")
        k("L_gbar_poll:")
        if PSLEEP: k(f"s_sleep {PSLEEP}")
        k(f"buffer_load_dword v3, v2, s[36:39], 0 offen {POLLF}")
        k("s_waitcnt vmcnt(0)")
        k("v_cmp_gt_u32 vcc, 32, v3")
        k("s_add_u32 s34, s34, 1")
        k("s_cmp_ge_u32 s34, 0x20000")
        k("s_cbranch_scc1 L_gbar_nopoll")
        k("s_cbranch_vccnz L_gbar_poll")
        k("L_gbar_nopoll:")
        k("s_barrier")
    if BAR2:
        per = 8
        mark(k, 1)
        issue(); mark(k, 2); issue()
        k(f"s_waitcnt vmcnt({per})")
        mark(k, 3)
        k("s_barrier")
        issue(); issue()
        mark(k, 4)
        k("s_mov_b32 s60, 0")
        k(f"L_{tag}_ploop:")
        k(f"s_waitcnt vmcnt({per})")
        k("s_barrier")
        issue(); issue()
        k("s_add_u32 s60, s60, 2")
        k(f"s_cmp_lt_u32 s60, {NIT-4}")
        k(f"s_cbranch_scc1 L_{tag}_ploop")
        k(f"s_waitcnt vmcnt({per})")
        k("s_barrier")
        k("s_waitcnt vmcnt(0)")
        k("s_barrier")
    else:
        producer_loop(k, tag, 8, issue, 3 if STATIC else NS, NIT)
    if g1:
        k("s_and_b32 s34, s33, 1")
        k("s_lshr_b32 s36, s33, 1")
        k("v_and_b32 v2, 15, v1")
        k("v_lshlrev_b32 v2, 1, v2")
        k("s_lshl_b32 s37, s36, 7")
        k("s_add_u32 s37, s37, s31")
        for t in range(2):
            k(f"buffer_load_ushort v{BIAS+t}, v2, s[20:23], s37 offen offset:{64+32*t}")
        k("v_and_b32 v2, 15, v1")
        k("v_lshlrev_b32 v2, 11, v2")
        k("v_lshrrev_b32 v3, 4, v1")
        k(f"v_lshl_add_u32 v{OV}, v3, 4, v2")
        k("s_lshl_b32 s38, s29, 7")
        k("s_lshl_b32 s39, s36, 6")
        k("s_add_u32 s38, s38, s39")
        k("s_add_u32 s38, s38, 32")
        k("s_lshl_b32 s38, s38, 11")
        k("s_add_u32 s38, s38, s32")
        k("s_lshl_b32 s39, s34, 7")
        k("s_add_u32 s38, s38, s39")
        k("s_lshl_b32 s39, s33, 13")
        k(f"s_add_u32 s39, s39, {32768 if STATIC else (98304 if BAR2 else 65536)}")
        k("v_lshl_add_u32 v2, v1, 4, s39")
        k("s_setprio 0")
        k("s_barrier")
        for i in range(8): k(f"ds_read_b128 {vr(ACC+4*i,4)}, v2 offset:{1024*i}")
        k("s_waitcnt vmcnt(0) lgkmcnt(0)")
        k(f"s_branch L_{tag}_epi")
    stamp_end(k, tag, tid=256, slot=256, sfx='p')
    if fused and g1:
        return k, NV, STG*NS
    k(f"{ENDL}:")
    k("s_endpgm")
    return k, NV, STG*NS

def gelu_pair(k, src, u, w, bias, dst):
    if EMU_U:
        k(f"{CVT} v{w}, v{src}, v{src+1}")
        k(f"v_lshlrev_b32 v{u}, 16, v{w}")
        k(f"v_and_b32 v{u+1}, s40, v{w}")
        k(f"v_add_f32 v{u}, v{u}, v{bias}")
        k(f"v_add_f32 v{u+1}, v{u+1}, v{bias}")
        k(f"{CVT} v{w}, v{u}, v{u+1}")
        k(f"v_lshlrev_b32 v{u}, 16, v{w}")
        k(f"v_and_b32 v{u+1}, s40, v{w}")
    else:
        k(f"v_add_f32 v{u}, v{src}, v{bias}")
        k(f"v_add_f32 v{u+1}, v{src+1}, v{bias}")
    k(f"v_pk_mul_f32 {vr(w,2)}, {vr(u,2)}, {vr(u,2)}")
    k(f"v_pk_fma_f32 {vr(w,2)}, {vr(w,2)}, s[42:43], {vr(4,2)} op_sel_hi:[1,0,1]")
    k(f"v_pk_mul_f32 {vr(w,2)}, {vr(w,2)}, {vr(u,2)}")
    k(f"v_exp_f32 v{w}, v{w}")
    k(f"v_exp_f32 v{w+1}, v{w+1}")
    k(f"s_nop 0")
    k(f"v_pk_add_f32 {vr(w,2)}, {vr(w,2)}, {vr(6,2)}")
    k(f"v_rcp_f32 v{w}, v{w}")
    k(f"v_rcp_f32 v{w+1}, v{w+1}")
    k(f"s_nop 0")
    k(f"v_pk_mul_f32 {vr(w,2)}, {vr(w,2)}, {vr(u,2)}")
    k(f"{CVT} v{dst}, v{w}, v{w+1}")

RPAT = [2, 1]
FUSE_GG = 0
W1IDLE = 0
EMU_LN = 0
EMU_L2 = 0
NT_B1 = ''
NT_B2 = ''
NT_X = ''
NT_W = ''
KHALF = 1
XSENT = 1
XBF16 = 1
EMU_Y = 0
PERTURB = 0
PSLEEP = 4
POLLF = 'sc0 sc1'
STATIC = 1
LOOPSTAMP = 0
BAR2 = 0
FAKE32 = 0
MAP2 = 0
XB_SEP = 1
FORCE_FAR = 0
PPRIO = 3
PFD = 0
KPERM = 1
FAKE16 = 0
NS1 = 3
NS2 = 3
KWRAP = 0
W2PF = 7
EMU_U = 0
RPG1 = 3
RPG2 = 4
def gen_gg():
    k1, nv1, l1 = gemm_kernel('g1', True)
    k2, nv2, l2 = gemm_kernel('g2', True)
    k1.l += k2.l
    return k1, max(nv1, nv2), max(l1, l2)
def gen_g1(): return gemm_kernel('g1')
def gen_g2(): return gemm_kernel('g2')

KERNELS = [('p1_kernel', gen_p1, (256,1,1), (256,1,1)), ('p2_kernel', gen_p2, (256,1,1), (256,1,1)), ('p3_kernel', gen_p3, (256,1,1), (256,1,1)),
 ('g1_kernel', gen_g1, (256,1,1), (512,1,1)), ('g2_kernel', gen_g2, (256,1,1), (512,1,1))]

def build_all(kernels=None):
    ks = []
    if kernels is None:
        kernels = KERNELS[:3] + [('gg_kernel', gen_gg, (256,1,1), (512,1,1))] if FUSE_GG else KERNELS
    for name, fn, grid, block in kernels:
        k, nv, lds = fn()
        if ST_ALL:
            k.l = [ (x + ' ' + ST_ALL) if ('buffer_store' in x and 'sc1' not in x and 'sc0' not in x and ' nt' not in x) else x for x in k.l]
        if name.startswith('g'):
            if NO_DMA: k.l = [x for x in k.l if not ('offen lds' in x)]
            if NO_MFMA: k.l = [x for x in k.l if 'v_mfma' not in x]
            if NO_ADV: k.l = [x for x in k.l if not (x.strip().startswith('s_add_u32 s40, s40,') or x.strip().startswith('s_add_u32 s41, s41,'))]
            if NO_A: k.l = [x for x in k.l if not ('s[12:15]' in x and 'offen lds' in x)]
            if NO_B: k.l = [x for x in k.l if not ('s[8:11]' in x and 'offen lds' in x)]
            if NO_BAR: k.l = [x for x in k.l if 's_barrier' not in x]
            if NO_READ: k.l = [x for x in k.l if 'ds_read_b64_tr' not in x]
        ks.append((name, k, nv, lds, grid, block))
    hdr = open('sequential_preLN__spectral_gfnet__mixer_token_mlp__prompt.s.ref').read().split('; Override launch')[0]
    s = hdr
    for name, k, nv, lds, grid, block in ks:
        s += f"; @launch kernel={name} grid=({grid[0]},{grid[1]},{grid[2]}) block=({block[0]},{block[1]},{block[2]}) lds={lds}\n"
    s += '.amdgcn_target "amdgcn-amd-amdhsa--gfx950"\n.text\n'
    for name, k, nv, lds, grid, block in ks: s += k.text()
    s += 'L_text_end:\n'
    s += '.section .rodata,"a"\n'
    for name, k, nv, lds, grid, block in ks: s += descriptor(name, nv)
    return s, ks

if __name__ == '__main__':
    s, ks = build_all()
    open(sys.argv[1] if len(sys.argv) > 1 else 'out.s', 'w').write(s)
    print('written', len(s), 'bytes')
```

```python
import sys, math, struct
sys.path.insert(0, 'work')
from asmlib import *

ZW_OFF = 0x0          ; ZW_SIZE = 257*32768
ZD_OFF = 0x0 ; WB_OFF = 0x480000
VB_OFF = 0x900000     ; VB_BLK = 256*64
H_OFF  = 0xE00000
HN_OFF = 0x1200000
GT_OFF = 0x1600000
WS_USED = 0x1D00000
S, D, F = 2048, 1024, 3584

def f32(x):
    return '0x%08x' % struct.unpack('<I', struct.pack('<f', x))[0]

CVT = 'v_cvt_pk_bf16_f32'
STAMP = False
NO_DMA = False
NO_MFMA = False
NO_READ = False
NO_BAR = False
NO_ADV = False
NO_A = False
NO_B = False
STAMP_OFF = 0x3000000
KIDX = {'p1':0,'p2':1,'p3':2,'g1':3,'g2':4}
NMARK = 8
def mark(k, i):
    if STAMP and not (LOOPSTAMP and k.name.startswith('g') and 1 <= i <= 4): k(f"s_memrealtime s[{64+2*i}:{65+2*i}]")
def stamp_begin(k):
    if STAMP:
        for i in range(1, NMARK): k(f"s_mov_b64 s[{64+2*i}:{65+2*i}], 0")
        k("s_memrealtime s[64:65]")
        k("s_memtime s[94:95]")
def stamp_end(k, tag, tid=0, slot=0, sfx=''):
    if not STAMP: return
    mark(k, 6)
    k("s_waitcnt vmcnt(0) lgkmcnt(0)")
    mark(k, 7)
    k("s_memtime s[84:85]")
    k("s_load_dwordx2 s[88:89], s[0:1], 80")
    k("s_waitcnt lgkmcnt(0)")
    k(f"s_add_u32 s88, s88, {STAMP_OFF + KIDX[tag]*65536}")
    k("s_addc_u32 s89, s89, 0")
    k(f"s_add_u32 s87, s2, {slot}")
    k("s_lshl_b32 s87, s87, 7")
    k("v_mov_b32 v8, s87")
    k(f"v_cmp_eq_u32 vcc, {tid}, v0" if tid <= 64 else f"v_cmp_eq_u32 vcc, {hex(tid)}, v0")
    k("s_and_saveexec_b64 s[86:87], vcc")
    k(f"s_cbranch_execz L_{tag}_nostamp{sfx}")
    for i in range(0, NMARK, 2):
        for j in range(4): k(f"v_mov_b32 v{4+j}, s{64+2*i+j}")
        k(f"global_store_dwordx4 v8, v[4:7], s[88:89] offset:{8*i}")
        k("s_nop 1")
    k("v_mov_b32 v4, s94"); k("v_mov_b32 v5, s95"); k("v_mov_b32 v6, s84"); k("v_mov_b32 v7, s85")
    k("global_store_dwordx4 v8, v[4:7], s[88:89] offset:64")
    k("s_getreg_b32 s84, hwreg(HW_REG_XCC_ID, 0, 4)")
    k("s_nop 1")
    k("v_mov_b32 v4, s84")
    k("global_store_dword v8, v4, s[88:89] offset:80")
    k(f"L_{tag}_nostamp{sfx}:")

MF32 = 'v_mfma_f32_32x32x16_bf16'

CODEPF = 1
W1PF = 0
W1PF0 = 0
W1L2 = 0
ST_FLAGS = ''
ST_ALL = ''
ST_P1 = 'sc1'
ST_P2 = 'sc1'
ST_P3 = 'sc1'
ST_G1 = 'sc1'
ST_G2 = 'nt'
OUT_TOUCH = 0
def code_prefetch(k, tag, first_label, last_label, vtmp, stmp, nwaves_cond=None):
    if not CODEPF: return
    k(f"s_getpc_b64 s[{stmp}:{stmp+1}]")
    k(f"L_{tag}_pc:")
    k(f"s_add_u32 s{stmp}, s{stmp}, {first_label}-L_{tag}_pc")
    k(f"s_addc_u32 s{stmp+1}, s{stmp+1}, 0")

WS_BASE = 0
def srd(k, s, base, size, off=0):
    if base == 26: off += WS_BASE
    if off:
        k(f"s_add_u32 s{s}, s{base}, {hex(off)}")
        k(f"s_addc_u32 s{s+1}, s{base+1}, 0")
    else:
        k(f"s_mov_b32 s{s}, s{base}")
        k(f"s_mov_b32 s{s+1}, s{base+1}")
    k(f"s_mov_b32 s{s+2}, {hex(size)}")
    k(f"s_mov_b32 s{s+3}, 0x20000")

SEQ = [(r, c) for r in range(4) for c in range(4)]

def rot_setup(k, vA, t):
    k(f"v_mul_f32 v{t+4}, {f32(5.0)}, v{vA}")
    k(f"v_cos_f32 v{t}, v{vA}")
    k(f"v_sin_f32 v{t+1}, v{vA}")
    k(f"v_cos_f32 v{t+2}, v{t+4}")
    k(f"v_sin_f32 v{t+3}, v{t+4}")

def rot(k, dst, src, st, tmp, sign):
    k(f"v_pk_mul_f32 {vr(tmp,2)}, {vr(src,2)}, {vr(st,2)} op_sel_hi:[1,0]")
    neg = "neg_lo:[0,1,0]" if sign > 0 else "neg_hi:[0,1,0]"
    k(f"v_pk_fma_f32 {vr(dst,2)}, {vr(src,2)}, {vr(st,2)}, {vr(tmp,2)} op_sel:[1,1,0] op_sel_hi:[0,1,1] {neg}")

def gen_matrix(k, Mr, Mi, vA, vB, t):
    rot_setup(k, vA, t)
    cur = [t+6, t+8]
    k(f"v_cos_f32 v{cur[0]}, v{vB}")
    k(f"v_sin_f32 v{cur[0]+1}, v{vB}")
    k("s_nop 0")
    for i, (r, c) in enumerate(SEQ):
        a_, b_ = cur[i % 2], cur[(i+1) % 2]
        if i < 15: rot(k, b_, a_, t+2 if c == 3 else t, t+4, +1)
        k(f"{CVT} v{Mr+i}, v{a_}, v{a_+1}")
        k(f"{CVT} v{Mi+i}, -v{a_+1}, v{a_}")

def gen_twiddle(k, tw, vA, vB, t, scale=None):
    rot_setup(k, vA, t)
    k(f"v_cos_f32 v{tw}, v{vB}")
    k(f"v_sin_f32_e64 v{tw+1}, -v{vB}")
    if scale is not None:
        k(f"v_mul_f32 v{tw}, {f32(scale)}, v{tw}")
        k(f"v_mul_f32 v{tw+1}, {f32(scale)}, v{tw+1}")
    else: k("s_nop 0")
    for i, (r, c) in enumerate(SEQ):
        if i < 15: rot(k, tw+2*(i+1), tw+2*i, t+2 if c == 3 else t, t+4, -1)

def stage(k, typ, Dr, Di, data, Mr, Mi, first=True):
    for r in range(4):
        for (Dx, M) in ((Dr, Mr), (Di, Mi)):
            c = '0' if (r == 0 and first) else vr(Dx, 16)
            if typ == 'A': k(f"{MF32} {vr(Dx,16)}, {vr(data+4*r,4)}, {vr(M+4*r,4)}, {c}")
            else:          k(f"{MF32} {vr(Dx,16)}, {vr(M+4*r,4)}, {vr(data+4*r,4)}, {c}")

def cmul_pack(k, Dr, Di, w, out, t, conj=False):
    for j in range(16):
        o = t + 2*(j % 4); jp = j & ~1; x = j & 1
        k(f"v_pk_mul_f32 {vr(o,2)}, {vr(w+2*j,2)}, {vr(Dr+jp,2)} op_sel:[0,{x}] op_sel_hi:[1,{x}]")
        k(f"v_pk_fma_f32 {vr(o,2)}, {vr(w+2*j,2)}, {vr(Di+jp,2)}, {vr(o,2)} op_sel:[1,{x},0] op_sel_hi:[0,{x},1] neg_lo:[1,0,0]")
        if j >= 1:
            po = t + 2*((j-1) % 4); n = '-' if conj else ''
            k(f"{CVT} v{out+j-1}, v{po}, {n}v{po+1}")
    po = t + 2*(15 % 4); n = '-' if conj else ''
    k(f"{CVT} v{out+15}, v{po}, {n}v{po+1}")

def wave_reduce2(k, a, b):
    for m in ("quad_perm:[1,0,3,2] row_mask:0xf", "quad_perm:[2,3,0,1] row_mask:0xf", "row_half_mirror row_mask:0xf",
              "row_mirror row_mask:0xf", "row_bcast:15 row_mask:0xa", "row_bcast:31 row_mask:0xc"):
        k(f"v_add_f32_dpp v{a}, v{a}, v{a} {m} bank_mask:0xf")
        k(f"v_add_f32_dpp v{b}, v{b}, v{b} {m} bank_mask:0xf")

def tree_sum(k, X, n, t, op='add'):
    acc = [t, t+2, t+4, t+6]
    for i in range(4):
        k(f"v_pk_add_f32 {vr(acc[i],2)}, {vr(X+2*i,2)}, {vr(X+2*(i+4),2)}")
    for i in range(8, n):
        k(f"v_pk_add_f32 {vr(acc[i%4],2)}, {vr(acc[i%4],2)}, {vr(X+2*i,2)}")
    k(f"v_pk_add_f32 {vr(acc[0],2)}, {vr(acc[0],2)}, {vr(acc[1],2)}")
    k(f"v_pk_add_f32 {vr(acc[2],2)}, {vr(acc[2],2)}, {vr(acc[3],2)}")
    k(f"v_pk_add_f32 {vr(acc[0],2)}, {vr(acc[0],2)}, {vr(acc[2],2)}")

def ln_scalars(k, t):
    k(f"v_mul_f32 v{t}, {f32(1/1024)}, v{t}")
    k(f"v_mul_f32 v{t+1}, {f32(1/1024)}, v{t+1}")
    if EMU_LN:
        k(f"{CVT} v{t+2}, v{t}, v{t+1}")
        k(f"v_lshlrev_b32 v{t}, 16, v{t+2}")
        k(f"v_and_b32 v{t+1}, 0xffff0000, v{t+2}")
    k(f"v_add_f32 v{t}, {f32(1e-5)}, v{t}")
    k(f"v_add_f32 v{t+1}, {f32(1e-5)}, v{t+1}")
    if EMU_LN:
        k(f"{CVT} v{t+2}, v{t}, v{t+1}")
        k(f"v_lshlrev_b32 v{t}, 16, v{t+2}")
        k(f"v_and_b32 v{t+1}, 0xffff0000, v{t+2}")
        k(f"v_sqrt_f32 v{t}, v{t}")
        k(f"v_sqrt_f32 v{t+1}, v{t+1}")
        k(f"s_nop 0")
        k(f"{CVT} v{t+2}, v{t}, v{t+1}")
        k(f"v_lshlrev_b32 v{t}, 16, v{t+2}")
        k(f"v_and_b32 v{t+1}, 0xffff0000, v{t+2}")
        k(f"v_rcp_f32 v{t}, v{t}")
        k(f"v_rcp_f32 v{t+1}, v{t+1}")
    else:
        k(f"v_rsq_f32 v{t}, v{t}")
        k(f"v_rsq_f32 v{t+1}, v{t+1}")
    k(f"s_nop 0")
    k(f"v_mul_f32 v{t+12}, v{t+12}, v{t}")
    k(f"v_mul_f32 v{t+13}, v{t+13}, v{t+1}")

def ln_mean(k, t, sTmp):
    k(f"v_mul_f32 v{t}, {f32(1/1024)}, v{t}")
    k(f"v_mul_f32 v{t+1}, {f32(1/1024)}, v{t+1}")
    if EMU_LN:
        k(f"{CVT} v{t+2}, v{t}, v{t+1}")
        k(f"v_readlane_b32 s{sTmp}, v{t}, 63")
        k(f"v_readlane_b32 s{sTmp+1}, v{t+1}, 63")
        k(f"v_lshlrev_b32 v{t+12}, 16, v{t+2}")
        k(f"v_and_b32 v{t+13}, 0xffff0000, v{t+2}")
    else:
        k(f"v_mov_b32 v{t+12}, v{t}")
        k(f"v_mov_b32 v{t+13}, v{t+1}")
        k(f"v_readlane_b32 s{sTmp}, v{t}, 63")
        k(f"v_readlane_b32 s{sTmp+1}, v{t+1}, 63")

def ln_stats_xrow(k, X, t, sM, sR, sTmp):
    tree_sum(k, X, 16, t)
    wave_reduce2(k, t, t+1)
    ln_mean(k, t, sTmp)
    acc = [t, t+2]; tmp = [t+4, t+6, t+8, t+10]
    for i in range(16):
        d = tmp[i % 4]
        k(f"v_pk_add_f32 {vr(d,2)}, {vr(X+2*i,2)}, {sr(sTmp,2)} neg_lo:[0,1] neg_hi:[0,1]")
        a = acc[i % 2]
        if i < 2: k(f"v_pk_mul_f32 {vr(a,2)}, {vr(d,2)}, {vr(d,2)}")
        else:     k(f"v_pk_fma_f32 {vr(a,2)}, {vr(d,2)}, {vr(d,2)}, {vr(a,2)}")
    k(f"v_pk_add_f32 {vr(t,2)}, {vr(t,2)}, {vr(t+2,2)}")
    wave_reduce2(k, t, t+1)
    ln_scalars(k, t)
    k(f"v_readlane_b32 s{sR}, v{t}, 63")
    k(f"v_readlane_b32 s{sR+1}, v{t+1}, 63")
    k(f"v_readlane_b32 s{sM}, v{t+12}, 63")
    k(f"v_readlane_b32 s{sM+1}, v{t+13}, 63")

def gen_p1():
    k = Kern('p1_kernel')
    k("s_cmp_ge_u32 s2, 256")
    k("s_cbranch_scc1 L_p1_end")
    stamp_begin(k)
    k("s_load_dwordx4 s[4:7], s[0:1], 0")
    k("s_load_dwordx2 s[24:25], s[0:1], 16")
    k("s_load_dwordx2 s[60:61], s[0:1], 32")
    k("s_load_dwordx2 s[26:27], s[0:1], 80")
    TID, LANE = 0, 1
    if CODEPF:
        k("s_getpc_b64 s[52:53]")
        k("L_p1_pc:")
        k("s_sub_u32 s52, s52, L_p1_pc-p1_kernel")
        k("s_subb_u32 s53, s53, 0")
        k("v_lshlrev_b32 v210, 7, v0")
        k("v_mov_b32 v211, s53")
        k("v_add_co_u32 v210, vcc, s52, v210")
        k("v_addc_co_u32 v211, vcc, 0, v211, vcc")
        k("v_cmp_gt_u32 vcc, (L_p1_endc-p1_kernel+127)/128, v0")
        k("s_and_saveexec_b64 s[54:55], vcc")
        k("s_cbranch_execz L_p1_cp0")
        k("global_load_dword v212, v[210:211], off")
        k("L_p1_cp0:")
        k("s_mov_b64 exec, -1")
        k("s_bfe_u32 s54, s2, 0x10003")
        k("s_lshl_b32 s54, s54, 15")
        k("s_add_u32 s54, s54, L_p1_endc-p1_kernel")
        k("v_add_co_u32 v210, vcc, s54, v210")
        k("v_addc_co_u32 v211, vcc, 0, v211, vcc")
        k("v_lshlrev_b32 v213, 7, v0")
        k("v_add_u32 v213, s54, v213")
        k("v_cmp_gt_u32 vcc, L_text_end-p1_kernel, v213")
        k("s_and_saveexec_b64 s[54:55], vcc")
        k("s_cbranch_execz L_p1_cp1")
        k("global_load_dword v212, v[210:211], off")
        k("L_p1_cp1:")
        k("s_mov_b64 exec, -1")
    k("v_and_b32 v1, 63, v0")
    k("v_lshrrev_b32 v2, 6, v0")
    k("v_readfirstlane_b32 s28, v2")
    k("s_lshr_b32 s29, s2, 5")
    k("s_lshl_b32 s29, s29, 2")
    k("s_and_b32 s30, s2, 31")
    k("s_add_u32 s31, s29, s28")
    k("s_lshl_b32 s31, s31, 5")
    k("s_add_u32 s31, s31, s30")
    k("s_lshl_b32 s31, s31, 11")
    k("s_add_u32 s32, s31, 0x200000")
    k("s_waitcnt lgkmcnt(0)")
    srd(k, 8, 4, S*D*2)
    srd(k, 12, 6, S*513*2)
    srd(k, 16, 24, S*513*2)
    srd(k, 20, 26, 257*16384, ZD_OFF)
    srd(k, 72 if False else 52, 26, 257*16384, WB_OFF) if False else None
    XL = 4
    if FUSE_GG:
        srd(k, 56, 26, 1024, BAR_OFF)
        k("s_cmp_lt_u32 s2, 8")
        k("s_cbranch_scc0 L_p1_nozb")
        k("s_lshl_b32 s33, s2, 7")
        k("v_mov_b32 v2, 0")
        k("v_cmp_eq_u32 vcc, 0, v0")
        k("s_and_saveexec_b64 s[34:35], vcc")
        k("s_cbranch_execz L_p1_nozb")
        k("buffer_store_dword v2, v2, s[56:59], s33 offen sc0 sc1")
        k("L_p1_nozb:")
        k("s_mov_b64 exec, -1")
    k("v_lshlrev_b32 v2, 4, v1")
    k(f"buffer_load_dwordx4 {vr(XL,4)}, v2, s[8:11], s31 offen {NT_X}")
    k(f"buffer_load_dwordx4 {vr(XL+4,4)}, v2, s[8:11], s31 offen offset:1024 {NT_X}")
    k(f"buffer_load_dwordx4 {vr(XL+8,4)}, v2, s[8:11], s32 offen {NT_X}")
    k(f"buffer_load_dwordx4 {vr(XL+12,4)}, v2, s[8:11], s32 offen offset:1024 {NT_X}")
    WL = 20
    Mr, Mi, TW = 36, 52, 68
    XF, DR, DI, OP, T = 100, 132, 148, 164, 180
    k("v_and_b32 v2, 31, v1")
    k("v_cvt_f32_u32 v2, v2")
    k("v_lshrrev_b32 v3, 5, v1")
    k("v_lshlrev_b32 v3, 2, v3")
    k("v_cvt_f32_u32 v3, v3")
    k(f"v_mul_f32 v204, {f32(1/32)}, v2")
    k("v_mul_f32 v205, v204, v3")
    gen_matrix(k, Mr, Mi, 204, 205, T)
    k(f"v_mul_f32 v204, {f32(1/1024)}, v2")
    k("v_mul_f32 v205, v204, v3")
    gen_twiddle(k, TW, 204, 205, T)
    STG = 16384; WST = STG + 257*64 + 64
    k("s_lshr_b32 s44, s2, 2")
    k("s_and_b32 s44, s44, 3")
    k("s_mov_b32 s45, 0x05040100")
    k("s_mov_b32 s46, 0x07060302")
    k("s_lshl_b32 s47, s2, 6")
    k("s_lshl_b32 s48, s28, 2")
    k(f"s_add_u32 s48, s48, {STG}")
    B1, B2, AWJ, AX, ARD, AGL, AT1, AT2, AWR, AWG = 206, 207, 208, 209, 216, 217, 218, 219, 221, 222
    k("v_and_b32 v2, 31, v1")
    k("v_lshrrev_b32 v3, 5, v1")
    k("v_and_b32 v204, 1, v2")
    k("v_lshrrev_b32 v205, 1, v2")
    k(f"v_xor_b32 v{B1}, s44, v204")
    k(f"v_lshlrev_b32 v{B1}, 4, v{B1}")
    k(f"v_lshl_add_u32 v{B1}, v205, 6, v{B1}")
    k(f"v_lshl_add_u32 v{B1}, v3, 12, v{B1}")
    k(f"v_add_u32 v{B1}, s48, v{B1}")
    k("v_add_u32 v205, 1, v2")
    k("v_lshrrev_b32 v205, 1, v205")
    k("v_add_u32 v204, 2, v204")
    k(f"v_xor_b32 v{B2}, s44, v204")
    k(f"v_lshlrev_b32 v{B2}, 4, v{B2}")
    k("v_lshlrev_b32 v205, 6, v205")
    k(f"v_sub_u32 v{B2}, v{B2}, v205")
    k("v_lshlrev_b32 v205, 12, v3")
    k(f"v_sub_u32 v{B2}, v{B2}, v205")
    k(f"v_add_u32 v{B2}, s48, v{B2}")
    k("s_lshl_b32 s49, s28, 12")
    k(f"s_add_u32 s49, s49, {WST}")
    k("v_bfe_u32 v204, v1, 1, 2")
    k("v_xor_b32 v204, s44, v204")
    k("v_lshlrev_b32 v204, 4, v204")
    k(f"v_lshl_add_u32 v{AWJ}, v1, 6, v204")
    k(f"v_add_u32 v{AWJ}, s49, v{AWJ}")
    k("v_lshrrev_b32 v204, 2, v1")
    k("v_and_b32 v205, 3, v1")
    k(f"v_bfe_u32 v{AT1}, v204, 1, 2")
    k(f"v_xor_b32 v{AT1}, v{AT1}, v205")
    k(f"v_lshlrev_b32 v{AT1}, 4, v{AT1}")
    k(f"v_lshl_add_u32 v{AWR}, v204, 6, v{AT1}")
    k(f"v_add_u32 v{AWR}, s49, v{AWR}")
    k("s_lshl_b32 s49, s28, 6")
    k("v_add_u32 v204, s49, v204")
    k("v_lshlrev_b32 v204, 14, v204")
    k(f"v_lshl_add_u32 v{AWG}, v205, 4, v204")
    k("v_bfe_u32 v204, v1, 2, 1")
    k("v_xor_b32 v204, s44, v204")
    k("v_lshlrev_b32 v204, 4, v204")
    k("v_and_b32 v205, 3, v1")
    k(f"v_lshl_add_u32 v{AX}, v205, 2, v204")
    APW = 223
    k(f"v_add_u32 v{APW}, {WST}, v{AX}")
    k(f"v_lshlrev_b32 v{ARD}, 4, v0")
    k(f"v_add_u32 v{ARD}, {STG}, v{ARD}")
    k("v_lshrrev_b32 v204, 2, v0")
    k("v_lshlrev_b32 v204, 14, v204")
    k("v_and_b32 v205, 3, v0")
    k(f"v_lshl_add_u32 v{AGL}, v205, 4, v204")
    k("s_xor_b32 s49, s44, 2")
    k("s_lshl_b32 s49, s49, 4")
    k("s_add_u32 s49, s49, s48")
    k("s_lshl_b32 s50, s44, 4")
    k("s_add_u32 s50, s50, s48")
    k(f"v_mov_b32 v{AT1}, s49")
    k(f"v_mov_b32 v{AT2}, s50")
    k("s_lshl_b32 s36, s28, 12")
    k("v_lshlrev_b32 v2, 5, v1")
    k("v_add_u32 v2, s36, v2")
    k("v_and_b32 v3, 31, v1")
    k("v_lshlrev_b32 v3, 2, v3")
    k("v_lshrrev_b32 v204, 5, v1")
    k("v_lshlrev_b32 v204, 9, v204")
    k("v_add3_u32 v3, v3, v204, s36")
    k("s_mov_b32 s35, 0xffff0000")
    mark(k, 1)
    k("s_waitcnt vmcnt(0)")
    mark(k, 2)
    k("v_lshlrev_b32 v220, 2, v0")
    k("s_lshl_b32 s33, s29, 6")
    k("s_lshl_b32 s34, s30, 1")
    k("s_add_u32 s33, s33, s34")
    k("s_mul_i32 s33, s33, 1026")
    for pi in range(2):
        for cc in range(4):
            off = (64*cc + pi)*1026
            k(f"s_add_u32 s34, s33, {off}")
            k(f"buffer_load_dword v{WL+4*pi+cc}, v220, s[12:15], s34 offen {NT_W}")
            k(f"buffer_load_dword v{WL+8+4*pi+cc}, v220, s[16:19], s34 offen {NT_W}")
    WX = 200
    k("v_and_b32 v200, 3, v1")
    k("v_lshlrev_b32 v200, 6, v200")
    k("v_bfe_u32 v201, v1, 2, 1")
    k("v_add_u32 v200, v200, v201")
    k("v_mul_u32_u24 v200, 1026, v200")
    k("v_add_u32 v200, 1024, v200")
    k("v_and_b32 v226, 3, v1")
    k("v_lshlrev_b32 v226, 6, v226")
    k("v_add_u32 v226, v226, v201")
    k("s_lshl_b32 s49, s29, 6")
    k("s_lshl_b32 s50, s30, 1")
    k("s_add_u32 s49, s49, s50")
    k("v_add_u32 v226, s49, v226")
    k("v_sub_u32 v226, 2048, v226")
    k("v_and_b32 v226, 2047, v226")
    k("v_mul_u32_u24 v226, 1026, v226")
    k("v_subrev_u32 v227, 1024, v200")
    k("v_cmp_gt_u32 vcc, 8, v0")
    k("s_and_saveexec_b64 s[36:37], vcc")
    k("s_cbranch_execz L_p1_nox")
    k("buffer_load_ushort v202, v200, s[12:15], s33 offen")
    k("buffer_load_ushort v203, v200, s[16:19], s33 offen")
    k("buffer_load_ushort v228, v227, s[12:15], s33 offen")
    k("buffer_load_ushort v229, v227, s[16:19], s33 offen")
    k("buffer_load_ushort v230, v226, s[12:15], 0 offen")
    k("buffer_load_ushort v231, v226, s[16:19], 0 offen")
    k("buffer_load_ushort v232, v226, s[12:15], 0 offen offset:1024")
    k("buffer_load_ushort v233, v226, s[16:19], 0 offen offset:1024")
    k("L_p1_nox:")
    k("s_mov_b64 exec, -1")
    for i in range(16):
        for row in range(2):
            src = XL + 8*row + (i >> 1)
            if i % 2 == 0: k(f"v_lshlrev_b32 v{XF+2*i+row}, 16, v{src}")
            else:          k(f"v_and_b32 v{XF+2*i+row}, s35, v{src}")
    ln_stats_xrow(k, XF, T, 38, 40, 42)
    k(f"v_mov_b32 v{T+8}, s40"); k(f"v_mov_b32 v{T+9}, s41")
    k(f"v_mov_b32 v{T+10}, s38"); k(f"v_mov_b32 v{T+11}, s39")
    for i in range(16):
        d = T + 2*(i % 4)
        k(f"v_pk_fma_f32 {vr(d,2)}, {vr(XF+2*i,2)}, {vr(T+8,2)}, {vr(T+10,2)} neg_lo:[0,0,1] neg_hi:[0,0,1]")
        k(f"{CVT} v{OP+i}, v{d}, v{d+1}")
    k(f"ds_write_b128 v2, {vr(OP,4)}")
    k(f"ds_write_b128 v2, {vr(OP+4,4)} offset:16")
    k(f"ds_write_b128 v2, {vr(OP+8,4)} offset:2048")
    k(f"ds_write_b128 v2, {vr(OP+12,4)} offset:2064")
    k("s_waitcnt lgkmcnt(0)")
    for i, (r, c) in enumerate(SEQ):
        k(f"ds_read_b32 v{OP+i}, v3 offset:{(8*r+c)*128}")
    mark(k, 3)
    k("s_waitcnt lgkmcnt(0)")
    stage(k, 'A', DR, DI, OP, Mr, Mi)
    srd(k, 56, 26, 257*16384, WB_OFF)
    k("s_waitcnt vmcnt(0)")
    WO = XF
    for e in range(2):
        for pi in range(2):
            for cc in range(4):
                k(f"v_perm_b32 v{WO+4*(2*e+pi)+cc}, v{WL+8+4*pi+cc}, v{WL+4*pi+cc}, s{45+e}")
    for sl in range(4):
        if sl: k(f"v_xor_b32 v204, {16*sl}, v{AWJ}")
        k(f"ds_write_b128 v{204 if sl else AWJ}, {vr(WO+4*sl,4)}")
    k("s_add_u32 s49, s47, 0x400000")
    k("v_cmp_gt_u32 vcc, 8, v0")
    k("s_and_saveexec_b64 s[36:37], vcc")
    k("s_cbranch_execz L_p1_nox2")
    for r_ in (202, 203, 228, 229, 230, 231, 232, 233): k(f"v_lshlrev_b32 v{r_}, 16, v{r_}")
    k("v_add_f32 v228, v228, v230")
    k("v_sub_f32 v229, v229, v231")
    k("v_add_f32 v202, v202, v232")
    k("v_sub_f32 v203, v203, v233")
    k("v_add_f32 v230, v228, v202")
    k("v_add_f32 v231, v229, v203")
    k("v_sub_f32 v232, v228, v202")
    k("v_sub_f32 v233, v229, v203")
    for r_ in (230, 231, 232, 233): k(f"v_mul_f32 v{r_}, 0x3e800000, v{r_}")
    k(f"{CVT} v202, v230, v231")
    k(f"{CVT} v203, v232, v233")
    k(f"ds_write_b32 v{APW}, v202")
    k(f"buffer_store_dword v203, v{AX}, s[56:59], s49 offen {ST_P1}")
    k("L_p1_nox2:")
    k("s_mov_b64 exec, -1")
    k("s_waitcnt lgkmcnt(0)")
    for j in range(4): k(f"ds_read_b128 {vr(WO+16+4*j,4)}, v{AWR} offset:{1024*j}")
    k("s_mov_b32 s49, s47")
    for j in range(4):
        k(f"s_waitcnt lgkmcnt({3-j})")
        k(f"buffer_store_dwordx4 {vr(WO+16+4*j,4)}, v{AWG}, s[56:59], s49 offen {ST_P1}")
        if j < 3: k(f"s_add_u32 s49, s49, {16*16384}")
    cmul_pack(k, DR, DI, TW, OP, T)
    stage(k, 'B', DR, DI, OP, Mr, Mi)
    mark(k, 4)
    for i, (r, c) in enumerate(SEQ):
        if r < 2: k(f"{CVT} v{OP+i}, v{DR+i}, v{DI+i}")
        else:     k(f"{CVT} v{OP+i}, v{DI+i}, v{DR+i}")
        if r < 2: k(f"ds_write_b32 v{B1}, v{OP+i} offset:{(8*r+c)*1024}")
        else:     k(f"ds_write_b32 v{B2}, v{OP+i} offset:{(32-8*r-c)*1024}")
    k(f"v_sub_f32 v{T+2}, v{DR}, v{DI+8}")
    k(f"v_add_f32 v{T+3}, v{DI}, v{DR+8}")
    k(f"v_sub_f32 v{T+4}, v{DI}, v{DR+8}")
    k(f"v_add_f32 v{T+5}, v{DR}, v{DI+8}")
    k(f"{CVT} v{T}, v{T+4}, v{T+5}")
    k(f"{CVT} v{T+1}, v{T+2}, v{T+3}")
    k("s_mov_b64 exec, 1")
    k(f"ds_write_b32 v{AT1}, v{T}")
    k(f"ds_write_b32 v{AT2}, v{T+1}")
    k("s_mov_b64 exec, -1")
    k("s_waitcnt lgkmcnt(0)")
    k("s_barrier")
    RO = XF
    for j in range(4):
        k(f"ds_read_b128 {vr(RO+4*j,4)}, v{ARD} offset:{4096*j}")
    for j in range(4):
        k(f"s_waitcnt lgkmcnt({3-j})")
        k(f"buffer_store_dwordx4 {vr(RO+4*j,4)}, v{AGL}, s[20:23], s47 offen {ST_P1}")
        if j < 3: k("s_add_u32 s47, s47, 0x100000")
    stamp_end(k, 'p1')
    k("L_p1_end:")
    k("s_endpgm")
    k("L_p1_endc:")
    return k, 236, WST + 16384

def pf_wave(k, tag, first_line):
    if not W1PF: return
    k("s_cmp_eq_u32 s28, 4")
    k(f"s_cbranch_scc0 L_{tag}_nopf")
    k("s_waitcnt lgkmcnt(0)")
    srd(k, 16, 24, S*F*2)
    k(f"s_mul_i32 s33, s2, {W1PF*128}")
    k(f"s_add_u32 s33, s33, {first_line*128}")
    k("v_lshlrev_b32 v3, 7, v1")
    for i in range(W1PF//64):
        k("buffer_load_dword v4, v3, s[16:19], s33 offen")
        k("s_add_u32 s33, s33, 8192")
    k("s_endpgm")
    k(f"L_{tag}_nopf:")

def gen_p2():
    k = Kern('p2_kernel')
    k("s_cmp_ge_u32 s2, 256")
    k("s_cbranch_scc1 L_p2_end")
    stamp_begin(k)
    k("s_load_dwordx2 s[26:27], s[0:1], 80")
    k("s_load_dwordx2 s[24:25], s[0:1], 32")
    k("v_and_b32 v1, 63, v0")
    k("v_lshrrev_b32 v2, 6, v0")
    k("v_readfirstlane_b32 s28, v2")
    pf_wave(k, 'p2', W1PF0)
    k("v_lshlrev_b32 v2, 4, v1")
    k("s_lshr_b32 s29, s28, 1")
    k("s_and_b32 s30, s28, 1")
    k("s_lshl_b32 s31, s2, 14")
    k("s_lshl_b32 s32, s28, 12")
    k("s_add_u32 s31, s31, s32")
    k("s_waitcnt lgkmcnt(0)")
    srd(k, 8, 26, 257*16384, ZD_OFF)
    srd(k, 20, 26, 257*16384, WB_OFF)
    srd(k, 12, 26, 256*VB_BLK, VB_OFF)
    for i in range(4):
        k(f"s_add_u32 m0, s32, {1024*i}")
        k(f"s_add_u32 s33, s31, {1024*i}")
        k(f"buffer_load_dwordx4 v2, s[8:11], s33 offen lds")
    Z1, Z2 = 4, 20
    M1r, M1i, MFr, MFi, MIr, MIi = 36, 52, 68, 84, 100, 116
    T1, T2 = 132, 164
    DR, DI, T = 196, 212, 228
    A, B, J, H4, PI = 244, 245, 246, 247, 248
    k(f"v_and_b32 v{J}, 31, v1")
    k(f"v_cvt_f32_u32 v{J}, v{J}")
    k(f"v_lshrrev_b32 v{H4}, 5, v1")
    k(f"v_lshlrev_b32 v{H4}, 2, v{H4}")
    k(f"v_cvt_f32_u32 v{H4}, v{H4}")
    k(f"v_mov_b32 v{PI}, s30")
    k(f"v_cvt_f32_u32 v{PI}, v{PI}")
    k(f"v_mul_f32 v{A}, {f32(1/32)}, v{J}")
    k(f"v_mul_f32 v{B}, v{A}, v{H4}")
    gen_matrix(k, MFr, MFi, A, B, T)
    k(f"v_fma_f32 v{A}, v{J}, 2.0, v{PI}")
    k(f"v_mul_f32 v{A}, {f32(1/64)}, v{A}")
    k(f"v_mul_f32 v{B}, v{A}, v{H4}")
    gen_matrix(k, M1r, M1i, A, B, T)
    k("s_lshl_b32 s33, s30, 4")
    k(f"v_and_b32 v{T}, 31, v1")
    k(f"v_xor_b32 v{T}, s33, v{T}")
    k(f"v_cvt_f32_u32 v{T}, v{T}")
    k(f"v_mul_f32 v{A}, {f32(1/32)}, v{T}")
    k(f"v_mul_f32 v{B}, v{A}, v{H4}")
    k(f"v_mul_f32 v{T}, {f32(1/64)}, v{T}")
    k(f"v_fma_f32 v{B}, v{T}, v{PI}, v{B}")
    gen_matrix(k, MIr, MIi, A, B, T)
    k(f"v_fma_f32 v{A}, v{J}, 2.0, v{PI}")
    k(f"v_mul_f32 v{A}, {f32(1/2048)}, v{A}")
    k(f"v_mov_b32 v{T}, {f32(0.125)}")
    k(f"v_mul_f32 v{T+1}, {f32(-0.25)}, v{PI}")
    k(f"v_add_f32 v{T}, v{T}, v{T+1}")
    k(f"v_fma_f32 v{B}, v{A}, v{H4}, v{T}")
    gen_twiddle(k, T1, A, B, T)
    k(f"v_mul_f32 v{A}, {f32(1/1024)}, v{J}")
    k(f"v_mul_f32 v{B}, v{A}, v{H4}")
    k(f"v_mul_f32 v{T}, {f32(1/2048)}, v{J}")
    k(f"v_fma_f32 v{B}, v{T}, v{PI}, v{B}")
    gen_twiddle(k, T2, A, B, T)
    AZ1, AZ2, AW = 249, 250, 251
    k(f"v_bfe_u32 v{T}, v1, 2, 2")
    k(f"v_lshlrev_b32 v{T+1}, 6, v1")
    k(f"v_xor_b32 v{AZ1}, s29, v{T}")
    k(f"v_lshl_add_u32 v{AZ1}, v{AZ1}, 4, v{T+1}")
    k(f"v_xor_b32 v{AZ2}, 32, v{AZ1}")
    k("s_lshl_b32 s33, s29, 1")
    k("s_add_u32 s33, s33, s30")
    k(f"v_xor_b32 v{AW}, s33, v{T}")
    k(f"v_lshl_add_u32 v{AW}, v{AW}, 4, v{T+1}")
    k(f"v_add_u32 v{AW}, 16384, v{AW}")
    k("s_mul_i32 s34, s30, 0x80008000")
    k("s_mov_b32 s35, 0xffff0000")
    mark(k, 1)
    k("s_waitcnt vmcnt(0)")
    for i in range(4):
        k(f"s_add_u32 m0, s32, {16384+1024*i}")
        k(f"s_add_u32 s33, s31, {1024*i}")
        k(f"buffer_load_dwordx4 v2, s[20:23], s33 offen lds")
    k("s_barrier")
    mark(k, 2)
    for r in range(4):
        k(f"ds_read_b128 {vr(Z1+4*r,4)}, v{AZ1} offset:{4096*r}")
        k(f"ds_read_b128 {vr(Z2+4*r,4)}, v{AZ2} offset:{4096*r}")
    k("s_waitcnt lgkmcnt(0)")
    for i in range(16):
        k(f"v_xor_b32 v{Z2+i}, s34, v{Z2+i}")
    stage(k, 'A', DR, DI, Z1, M1r, M1i, first=True)
    stage(k, 'A', DR, DI, Z2, M1r, M1i, first=False)
    OP = Z1
    cmul_pack(k, DR, DI, T1, OP, T)
    k("s_waitcnt vmcnt(0)")
    k("s_barrier")
    for r in range(4):
        k(f"ds_read_b128 {vr(Z2+4*r,4)}, v{AW} offset:{4096*r}")
    stage(k, 'B', DR, DI, OP, MFr, MFi)
    WP = M1r
    k("s_waitcnt lgkmcnt(0)")
    for i in range(16):
        k(f"v_lshlrev_b32 v{WP+2*i}, 16, v{Z2+i}")
        k(f"v_and_b32 v{WP+2*i+1}, s35, v{Z2+i}")
    k("s_or_b32 s46, s2, s29")
    k("s_cmp_eq_u32 s46, 0")
    k("s_cbranch_scc1 L_p2_spec")
    cmul_pack(k, DR, DI, WP, OP, T, conj=True)
    k("L_p2_specd:")
    stage(k, 'A', DR, DI, OP, MFr, MFi)
    cmul_pack(k, DR, DI, T2, OP, T)
    stage(k, 'B', DR, DI, OP, MIr, MIi)
    mark(k, 4)
    XCH, STG = 32768, 49152
    AX = 252
    k("s_lshl_b32 s36, s28, 12")
    k(f"s_add_u32 s36, s36, {XCH}")
    k(f"v_lshl_add_u32 v{AX}, v1, 4, s36")
    k(f"ds_write_b128 v{AX}, {vr(DR+8,4)}")
    k(f"ds_write_b128 v{AX}, {vr(DR+12,4)} offset:1024")
    k(f"ds_write_b128 v{AX}, {vr(DI+8,4)} offset:2048")
    k(f"ds_write_b128 v{AX}, {vr(DI+12,4)} offset:3072")
    k(f"v_xor_b32 v{AX}, 4096, v{AX}")
    k("s_cmp_eq_u32 s30, 0")
    k(f"s_cselect_b32 s40, {f32(1.0)}, {f32(-1.0)}")
    k("s_mov_b32 s42, s40")
    k("s_waitcnt lgkmcnt(0)")
    k("s_barrier")
    OR_, OI = 36, 44
    k(f"ds_read_b128 {vr(OR_,4)}, v{AX}")
    k(f"ds_read_b128 {vr(OR_+4,4)}, v{AX} offset:1024")
    k(f"ds_read_b128 {vr(OI,4)}, v{AX} offset:2048")
    k(f"ds_read_b128 {vr(OI+4,4)}, v{AX} offset:3072")
    k(f"v_bfe_u32 v{T}, v1, 1, 2")
    k(f"v_xor_b32 v{T+1}, s29, v{T}")
    k(f"v_xor_b32 v{T+2}, 2, v{T+1}")
    k("s_lshl_b32 s43, s30, 13")
    k(f"s_add_u32 s43, s43, {STG}")
    k(f"v_lshl_add_u32 v{T+3}, v1, 6, s43")
    k(f"v_lshl_add_u32 v253, v{T+1}, 4, v{T+3}")
    k(f"v_lshl_add_u32 v254, v{T+2}, 4, v{T+3}")
    k("s_waitcnt lgkmcnt(0)")
    UA, UB = 52, 60
    Ur, Ui, Er, Ei, Ar, Ai, Br, Bi = 68, 70, 72, 74, 76, 78, 80, 82
    bc = "op_sel_hi:[1,0,1]"
    k("s_cmp_eq_u32 s46, 0")
    k("s_cbranch_scc1 L_p2_spost")
    for j in range(0, 8, 2):
        o = 16*((j//2) % 2)
        ur, ui, er, ei, a_r, a_i, b_r, b_i = [x+o for x in (Ur, Ui, Er, Ei, Ar, Ai, Br, Bi)]
        k(f"v_pk_add_f32 {vr(ur,2)}, {vr(DR+j,2)}, {vr(OR_+j,2)}")
        k(f"v_pk_add_f32 {vr(ui,2)}, {vr(DI+j,2)}, {vr(OI+j,2)}")
        k(f"v_pk_add_f32 {vr(er,2)}, {vr(DR+j,2)}, {vr(OR_+j,2)} neg_lo:[0,1] neg_hi:[0,1]")
        k(f"v_pk_add_f32 {vr(ei,2)}, {vr(DI+j,2)}, {vr(OI+j,2)} neg_lo:[0,1] neg_hi:[0,1]")
        k(f"v_pk_fma_f32 {vr(a_r,2)}, {vr(ei,2)}, s[42:43], {vr(ur,2)} {bc}")
        k(f"v_pk_fma_f32 {vr(b_r,2)}, {vr(ei,2)}, s[42:43], {vr(ur,2)} {bc} neg_lo:[1,0,0] neg_hi:[1,0,0]")
        k(f"v_pk_fma_f32 {vr(a_i,2)}, {vr(er,2)}, s[40:41], {vr(ui,2)} {bc} neg_lo:[1,0,0] neg_hi:[1,0,0]")
        k(f"v_pk_fma_f32 {vr(b_i,2)}, {vr(er,2)}, s[40:41], {vr(ui,2)} {bc} neg_lo:[1,0,1] neg_hi:[1,0,1]")
        k(f"{CVT} v{UA+j}, v{a_r}, v{a_i}")
        k(f"{CVT} v{UA+j+1}, v{a_r+1}, v{a_i+1}")
        k(f"{CVT} v{UB+j}, v{b_r}, v{b_i}")
        k(f"{CVT} v{UB+j+1}, v{b_r+1}, v{b_i+1}")
    k("s_branch L_p2_postd")
    k("L_p2_spost:")
    for j in range(0, 8, 2):
        o = 16*((j//2) % 2)
        ur, ui, er, ei, a_r, a_i, b_r, b_i = [x+o for x in (Ur, Ui, Er, Ei, Ar, Ai, Br, Bi)]
        k(f"v_pk_add_f32 {vr(ur,2)}, {vr(DR+j,2)}, {vr(OR_+j,2)}")
        k(f"v_pk_add_f32 {vr(ui,2)}, {vr(DI+j,2)}, {vr(OI+j,2)}")
        k(f"v_pk_add_f32 {vr(er,2)}, {vr(DR+j,2)}, {vr(OR_+j,2)} neg_lo:[0,1] neg_hi:[0,1]")
        k(f"v_pk_add_f32 {vr(ei,2)}, {vr(DI+j,2)}, {vr(OI+j,2)} neg_lo:[0,1] neg_hi:[0,1]")
        k(f"v_pk_mul_f32 {vr(a_i,2)}, {vr(er,2)}, s[40:41] op_sel_hi:[1,0] neg_lo:[1,0] neg_hi:[1,0]")
        k(f"v_pk_mul_f32 {vr(b_i,2)}, {vr(ei,2)}, s[40:41] op_sel_hi:[1,0]")
        k(f"{CVT} v{UA+j}, v{ur}, v{a_i}")
        k(f"{CVT} v{UA+j+1}, v{ur+1}, v{a_i+1}")
        k(f"{CVT} v{UB+j}, -v{ui}, v{b_i}")
        k(f"{CVT} v{UB+j+1}, -v{ui+1}, v{b_i+1}")
    k("L_p2_postd:")
    for rl in range(2):
        k(f"ds_write_b128 v253, {vr(UA+4*rl,4)} offset:{4096*rl}")
        k(f"ds_write_b128 v254, {vr(UB+4*rl,4)} offset:{4096*rl}")
    k(f"v_and_b32 v{T}, 3, v0")
    k(f"v_bfe_u32 v{T+1}, v0, 3, 2")
    k(f"v_xor_b32 v{T+1}, v{T}, v{T+1}")
    k(f"v_lshrrev_b32 v{T+2}, 2, v0")
    k(f"v_lshlrev_b32 v{T+3}, 6, v{T+2}")
    k(f"v_lshl_add_u32 v{T+3}, v{T+1}, 4, v{T+3}")
    k(f"v_add_u32 v{T+3}, {STG}, v{T+3}")
    k(f"v_mul_u32_u24 v{T+2}, {VB_BLK}, v{T+2}")
    k("s_and_b32 s44, s2, 2")
    k(f"v_xor_b32 v{T}, s44, v{T}")
    k(f"v_lshl_add_u32 v{T+2}, v{T}, 4, v{T+2}")
    k("s_lshl_b32 s45, s2, 6")
    k("s_waitcnt lgkmcnt(0)")
    k("s_barrier")
    for j in range(4):
        k(f"ds_read_b128 {vr(4+4*j,4)}, v{T+3} offset:{4096*j}")
    k("s_waitcnt lgkmcnt(0)")
    for j in range(4):
        k(f"buffer_store_dwordx4 {vr(4+4*j,4)}, v{T+2}, s[12:15], s45 offen {ST_P2}")
        if j < 3: k(f"s_add_u32 s45, s45, {64*VB_BLK}")
    stamp_end(k, 'p2')
    k("L_p2_end:")
    k("s_endpgm")
    k("L_p2_spec:")
    QP = T1
    XB_ = Z2
    k(f"v_bfe_u32 v{T}, v1, 2, 2")
    k(f"v_xor_b32 v{T}, s30, v{T}")
    k(f"v_lshlrev_b32 v{T}, 4, v{T}")
    k(f"v_lshl_add_u32 v{T}, v1, 6, v{T}")
    k("s_mov_b32 s47, 0x400000")
    for r in range(4):
        k(f"buffer_load_dwordx4 {vr(XB_+4*r,4)}, v{T}, s[20:23], s47 offen")
        if r < 3: k("s_add_u32 s47, s47, 4096")
    k("s_lshl_b32 s47, s30, 13")
    k(f"v_and_b32 v{T+1}, 31, v1")
    k(f"v_lshrrev_b32 v{T+2}, 5, v1")
    k(f"v_lshlrev_b32 v{T+3}, 2, v{T+1}")
    k(f"v_lshl_add_u32 v{T+3}, v{T+2}, 10, v{T+3}")
    k(f"v_add_u32 v{T+3}, s47, v{T+3}")
    for i, (r, c) in enumerate(SEQ):
        k(f"ds_write_b32 v{T+3}, v{DR+i} offset:{(8*r+c)*256}")
        k(f"ds_write_b32 v{T+3}, v{DI+i} offset:{(8*r+c)*256+128}")
    k(f"v_add_u32 v{T+4}, s30, v{T+1}")
    k(f"v_sub_u32 v{T+5}, 32, v{T+4}")
    k(f"v_lshlrev_b32 v{T+5}, 2, v{T+5}")
    k(f"v_cmp_eq_u32 vcc, 0, v{T+4}")
    k(f"v_mov_b32 v{T+6}, 256")
    k(f"v_cndmask_b32 v{T+5}, v{T+5}, v{T+6}, vcc")
    k(f"v_lshlrev_b32 v{T+6}, 10, v{T+2}")
    k(f"v_sub_u32 v{T+5}, v{T+5}, v{T+6}")
    k(f"v_add_u32 v{T+5}, 1024, v{T+5}")
    k(f"v_add_u32 v{T+5}, s47, v{T+5}")
    k(f"v_add_u32 v{T+6}, {27*256}, v{T+5}")
    k(f"v_or_b32 v{T+7}, v{T+4}, v{T+2}")
    k(f"v_cmp_eq_u32 vcc, 0, v{T+7}")
    k(f"v_mov_b32 v{T+7}, s47")
    k(f"v_cndmask_b32 v{T+6}, v{T+6}, v{T+7}, vcc")
    k("s_waitcnt vmcnt(0)")
    for i in range(16):
        k(f"v_lshlrev_b32 v{QP+2*i}, 16, v{XB_+i}")
        k(f"v_and_b32 v{QP+2*i+1}, s35, v{XB_+i}")
    k("s_waitcnt lgkmcnt(0)")
    for half in range(2):
        for jj in range(8):
            i = 8*half + jj; r, c = SEQ[i]
            if i == 0:
                k(f"ds_read_b32 v{XB_+2*jj}, v{T+6}")
                k(f"ds_read_b32 v{XB_+2*jj+1}, v{T+6} offset:128")
            else:
                k(f"ds_read_b32 v{XB_+2*jj}, v{T+5} offset:{(27-8*r-c)*256}")
                k(f"ds_read_b32 v{XB_+2*jj+1}, v{T+5} offset:{(27-8*r-c)*256+128}")
        k("s_waitcnt lgkmcnt(0)")
        for jj in range(8):
            j = 8*half + jj; o = T + 8 + 2*(jj % 4); jp = j & ~1; x = j & 1
            k(f"v_pk_mul_f32 {vr(o,2)}, {vr(WP+2*j,2)}, {vr(DR+jp,2)} op_sel:[0,{x}] op_sel_hi:[1,{x}]")
            k(f"v_pk_fma_f32 {vr(o,2)}, {vr(WP+2*j,2)}, {vr(DI+jp,2)}, {vr(o,2)} op_sel:[1,{x},0] op_sel_hi:[0,{x},1] neg_lo:[1,0,0]")
            k(f"v_pk_fma_f32 {vr(o,2)}, {vr(QP+2*j,2)}, {vr(XB_+2*jj,2)}, {vr(o,2)} op_sel:[0,0,0] op_sel_hi:[1,0,1]")
            k(f"v_pk_fma_f32 {vr(o,2)}, {vr(QP+2*j,2)}, {vr(XB_+2*jj,2)}, {vr(o,2)} op_sel:[1,1,0] op_sel_hi:[0,1,1] neg_hi:[1,0,0]")
            k(f"{CVT} v{OP+j}, v{o}, -v{o+1}")
    k("s_branch L_p2_specd")
    return k, 256, 65536

def ln_stats_rows(k, R0, R1, t, vRM, sTmp):
    for (R, o) in ((R0, 0), (R1, 4)):
        a, b = t+o, t+o+2
        k(f"v_pk_add_f32 {vr(a,2)}, {vr(R,2)}, {vr(R+2,2)}")
        k(f"v_pk_add_f32 {vr(b,2)}, {vr(R+4,2)}, {vr(R+6,2)}")
    for i in range(4, 8):
        for (R, o) in ((R0, 0), (R1, 4)):
            a = t+o+2*(i % 2)
            k(f"v_pk_add_f32 {vr(a,2)}, {vr(a,2)}, {vr(R+2*i,2)}")
    for o in (0, 4):
        k(f"v_pk_add_f32 {vr(t+o,2)}, {vr(t+o,2)}, {vr(t+o+2,2)}")
    k(f"v_add_f32 v{t}, v{t}, v{t+1}")
    k(f"v_add_f32 v{t+1}, v{t+4}, v{t+5}")
    wave_reduce2(k, t, t+1)
    ln_mean(k, t, sTmp)
    acc = {0: t, 1: t+2}; tmp = [t+4, t+6, t+8, t+10]
    n = 0
    for i in range(8):
        for row, R in ((0, R0), (1, R1)):
            d = tmp[n % 4]; n += 1
            sel = "op_sel_hi:[1,0]" if row == 0 else "op_sel:[0,1] op_sel_hi:[1,1]"
            k(f"v_pk_add_f32 {vr(d,2)}, {vr(R+2*i,2)}, {sr(sTmp,2)} {sel} neg_lo:[0,1] neg_hi:[0,1]")
            a = acc[row]
            if i == 0: k(f"v_pk_mul_f32 {vr(a,2)}, {vr(d,2)}, {vr(d,2)}")
            else:      k(f"v_pk_fma_f32 {vr(a,2)}, {vr(d,2)}, {vr(d,2)}, {vr(a,2)}")
    k(f"v_add_f32 v{t}, v{t}, v{t+1}")
    k(f"v_add_f32 v{t+1}, v{t+2}, v{t+3}")
    wave_reduce2(k, t, t+1)
    ln_scalars(k, t)
    k(f"v_readlane_b32 s{sTmp}, v{t}, 63")
    k(f"v_readlane_b32 s{sTmp+1}, v{t+1}, 63")
    k(f"v_readlane_b32 s{sTmp+2}, v{t+12}, 63")
    k(f"v_readlane_b32 s{sTmp+3}, v{t+13}, 63")
    for i in range(4):
        k(f"v_mov_b32 v{vRM+i}, s{sTmp+i}")

def ln_apply_rows(k, R0, R1, vRM, dst0, dst1):
    for i in range(8):
        k(f"v_pk_fma_f32 {vr(dst0+2*i,2)}, {vr(R0+2*i,2)}, {vr(vRM,2)}, {vr(vRM+2,2)} op_sel_hi:[1,0,0] neg_lo:[0,0,1] neg_hi:[0,0,1]")
        k(f"v_pk_fma_f32 {vr(dst1+2*i,2)}, {vr(R1+2*i,2)}, {vr(vRM,2)}, {vr(vRM+2,2)} op_sel:[0,1,1] op_sel_hi:[1,1,1] neg_lo:[0,0,1] neg_hi:[0,0,1]")

def gen_p3():
    k = Kern('p3_kernel')
    k("s_cmp_ge_u32 s2, 256")
    k("s_cbranch_scc1 L_p3_end")
    stamp_begin(k)
    k("s_load_dwordx2 s[4:5], s[0:1], 0")
    k("s_load_dwordx2 s[26:27], s[0:1], 80")
    k("s_load_dwordx2 s[24:25], s[0:1], 32")
    k("v_and_b32 v1, 63, v0")
    k("v_lshrrev_b32 v2, 6, v0")
    k("v_readfirstlane_b32 s28, v2")
    pf_wave(k, 'p3', W1PF0 + 256*W1PF)
    k("s_lshr_b32 s29, s2, 5")
    k("s_lshl_b32 s29, s29, 2")
    k("s_and_b32 s30, s2, 31")
    k("s_add_u32 s31, s29, s28")
    k("s_lshl_b32 s31, s31, 5")
    k("s_add_u32 s31, s31, s30")
    k("s_lshl_b32 s31, s31, 11")
    k("s_add_u32 s32, s31, 0x200000")
    k(f"s_mul_i32 s33, s2, {VB_BLK}")
    k("s_lshl_b32 s34, s28, 12")
    k("s_add_u32 s33, s33, s34")
    k("v_lshlrev_b32 v2, 4, v1")
    k("s_waitcnt lgkmcnt(0)")
    srd(k, 8, 4, S*D*2)
    srd(k, 12, 26, 256*VB_BLK, VB_OFF)
    srd(k, 16, 26, S*D*2, H_OFF)
    srd(k, 20, 26, S*D*2, HN_OFF)
    for i in range(4):
        k(f"s_add_u32 m0, s34, {1024*i}")
        k(f"buffer_load_dwordx4 v2, s[12:15], s33 offen lds")
        k("s_add_u32 s33, s33, 1024")
    XL = 4
    OP, Mr, Mi, TW, DR, DI, T = 20, 36, 52, 68, 100, 116, 132
    R0, R1, Y0, Y1 = 148, 164, 180, 196
    k("v_and_b32 v212, 31, v1")
    k("v_cvt_f32_u32 v212, v212")
    k("v_lshrrev_b32 v213, 5, v1")
    k("v_lshlrev_b32 v213, 2, v213")
    k("v_cvt_f32_u32 v213, v213")
    k(f"v_mul_f32 v214, {f32(1/32)}, v212")
    k("v_mul_f32 v215, v214, v213")
    gen_matrix(k, Mr, Mi, 214, 215, T)
    k(f"v_mul_f32 v214, {f32(1/1024)}, v212")
    k("v_mul_f32 v215, v214, v213")
    gen_twiddle(k, TW, 214, 215, T, scale=2.0**-21.5)
    k("v_and_b32 v2, 31, v1")
    k("v_lshrrev_b32 v3, 5, v1")
    k("v_and_b32 v216, 1, v2")
    k("v_lshrrev_b32 v217, 1, v2")
    k("v_and_b32 v218, 2, v217")
    k("v_xor_b32 v218, v218, v216")
    k("v_lshlrev_b32 v218, 4, v218")
    k("v_lshl_add_u32 v218, v217, 6, v218")
    k("v_lshl_add_u32 v218, v3, 12, v218")
    k("s_lshl_b32 s37, s28, 2")
    k("v_add_u32 v218, s37, v218")
    k("v_add_u32 v217, 1, v2")
    k("v_lshrrev_b32 v217, 1, v217")
    k("v_sub_u32 v219, 0, v217")
    k("v_and_b32 v219, 2, v219")
    k("v_add_u32 v216, 2, v216")
    k("v_xor_b32 v219, v219, v216")
    k("v_lshlrev_b32 v219, 4, v219")
    k("v_lshlrev_b32 v217, 6, v217")
    k("v_sub_u32 v219, v219, v217")
    k("v_lshlrev_b32 v217, 12, v3")
    k("v_sub_u32 v219, v219, v217")
    k("s_add_u32 s37, s37, 5120")
    k("v_add_u32 v219, s37, v219")
    k(f"v_add_u32 v227, {16*1024-5120}, v219")
    k("s_lshl_b32 s38, s28, 2")
    k("s_add_u32 s38, s38, 32")
    k("v_mov_b32 v226, s38")
    k("v_cmp_eq_u32 vcc, 0, v1")
    k("v_cndmask_b32 v227, v227, v226, vcc")
    k("s_mov_b32 s35, 0xffff0000")
    mark(k, 1)
    k("s_waitcnt vmcnt(0)")
    k("v_lshlrev_b32 v225, 4, v1")
    k(f"buffer_load_dwordx4 {vr(XL,4)}, v225, s[8:11], s31 offen")
    k(f"buffer_load_dwordx4 {vr(XL+4,4)}, v225, s[8:11], s31 offen offset:1024")
    k(f"buffer_load_dwordx4 {vr(XL+8,4)}, v225, s[8:11], s32 offen")
    k(f"buffer_load_dwordx4 {vr(XL+12,4)}, v225, s[8:11], s32 offen offset:1024")
    k("s_barrier")
    mark(k, 2)
    for i, (r, c) in enumerate(SEQ):
        if r < 2: k(f"ds_read_b32 v{OP+i}, v218 offset:{(8*r+c)*1024}")
        elif i == 8: k(f"ds_read_b32 v{OP+i}, v227")
        else:     k(f"ds_read_b32 v{OP+i}, v219 offset:{(32-8*r-c)*1024-5120}")
    k("s_waitcnt lgkmcnt(0)")
    stage(k, 'A', DR, DI, OP, Mr, Mi)
    cmul_pack(k, DR, DI, TW, OP, T)
    stage(k, 'B', DR, DI, OP, Mr, Mi)
    k("s_waitcnt vmcnt(0)")
    for i in range(8):
        k(f"v_lshlrev_b32 v{R0+2*i}, 16, v{XL+i}")
        k(f"v_and_b32 v{R0+2*i+1}, s35, v{XL+i}")
        k(f"v_lshlrev_b32 v{R1+2*i}, 16, v{XL+8+i}")
        k(f"v_and_b32 v{R1+2*i+1}, s35, v{XL+8+i}")
    TR = 17408
    mark(k, 3)
    k("s_lshl_b32 s36, s28, 12")
    k(f"s_add_u32 s36, s36, {TR}")
    k("v_and_b32 v3, 31, v1")
    k("v_lshlrev_b32 v3, 2, v3")
    k("v_lshrrev_b32 v216, 5, v1")
    k("v_lshlrev_b32 v216, 9, v216")
    k("v_add3_u32 v3, v3, v216, s36")
    k("v_lshl_add_u32 v2, v1, 5, s36")
    for i in range(16):
        k(f"{CVT} v{OP+i}, v{DR+i}, -v{DI+i}")
    for i, (r, c) in enumerate(SEQ):
        k(f"ds_write_b32 v3, v{OP+i} offset:{(8*r+c)*128}")
    k("s_waitcnt lgkmcnt(0)")
    k(f"ds_read_b128 {vr(OP,4)}, v2")
    k(f"ds_read_b128 {vr(OP+4,4)}, v2 offset:16")
    k(f"ds_read_b128 {vr(OP+8,4)}, v2 offset:2048")
    k(f"ds_read_b128 {vr(OP+12,4)}, v2 offset:2064")
    k("s_waitcnt lgkmcnt(0)")
    for i in range(16):
        k(f"v_lshlrev_b32 v{Y0+i}, 16, v{OP+i}")
        k(f"v_and_b32 v{Y1+i}, s35, v{OP+i}")
    for i in range(8):
        k(f"v_pk_add_f32 {vr(Y0+2*i,2)}, {vr(Y0+2*i,2)}, {vr(R0+2*i,2)}")
        k(f"v_pk_add_f32 {vr(Y1+2*i,2)}, {vr(Y1+2*i,2)}, {vr(R1+2*i,2)}")
    HP = 36
    for i in range(8):
        k(f"{CVT} v{HP+i}, v{Y0+2*i}, v{Y0+2*i+1}")
        k(f"{CVT} v{HP+8+i}, v{Y1+2*i}, v{Y1+2*i+1}")
    k("v_lshlrev_b32 v2, 4, v1")
    k(f"buffer_store_dwordx4 {vr(HP,4)}, v2, s[16:19], s31 offen {ST_P3}")
    k(f"buffer_store_dwordx4 {vr(HP+4,4)}, v2, s[16:19], s31 offen offset:1024 {ST_P3}")
    k(f"buffer_store_dwordx4 {vr(HP+8,4)}, v2, s[16:19], s32 offen {ST_P3}")
    k(f"buffer_store_dwordx4 {vr(HP+12,4)}, v2, s[16:19], s32 offen offset:1024 {ST_P3}")
    for i in range(8):
        k(f"v_lshlrev_b32 v{R0+2*i}, 16, v{HP+i}")
        k(f"v_and_b32 v{R0+2*i+1}, s35, v{HP+i}")
        k(f"v_lshlrev_b32 v{R1+2*i}, 16, v{HP+8+i}")
        k(f"v_and_b32 v{R1+2*i+1}, s35, v{HP+8+i}")
    RM = 220
    mark(k, 4)
    ln_stats_rows(k, R0, R1, T, RM, 40)
    if EMU_L2:
        ln_apply_rows(k, R0, R1, RM, Y0, Y1)
        LP = 52
        for i in range(8):
            k(f"{CVT} v{LP+i}, v{Y0+2*i}, v{Y0+2*i+1}")
            k(f"{CVT} v{LP+8+i}, v{Y1+2*i}, v{Y1+2*i+1}")
        for i in range(8):
            k(f"v_lshlrev_b32 v{R0+2*i}, 16, v{LP+i}")
            k(f"v_and_b32 v{R0+2*i+1}, s35, v{LP+i}")
            k(f"v_lshlrev_b32 v{R1+2*i}, 16, v{LP+8+i}")
            k(f"v_and_b32 v{R1+2*i+1}, s35, v{LP+8+i}")
    else:
        ln_apply_rows(k, R0, R1, RM, R0, R1)
    ln_stats_rows(k, R0, R1, T, RM, 40)
    ln_apply_rows(k, R0, R1, RM, Y0, Y1)
    NP = 68
    for i in range(8):
        k(f"{CVT} v{NP+i}, v{Y0+2*i}, v{Y0+2*i+1}")
        k(f"{CVT} v{NP+8+i}, v{Y1+2*i}, v{Y1+2*i+1}")
    k(f"buffer_store_dwordx4 {vr(NP,4)}, v2, s[20:23], s31 offen {ST_P3}")
    k(f"buffer_store_dwordx4 {vr(NP+4,4)}, v2, s[20:23], s31 offen offset:1024 {ST_P3}")
    k(f"buffer_store_dwordx4 {vr(NP+8,4)}, v2, s[20:23], s32 offen {ST_P3}")
    k(f"buffer_store_dwordx4 {vr(NP+12,4)}, v2, s[20:23], s32 offen offset:1024 {ST_P3}")
    stamp_end(k, 'p3')
    k("L_p3_end:")
    k("s_endpgm")
    return k, 228, 33792

MF16 = 'v_mfma_f32_16x16x32_bf16'

def interleave(mf, rd, lead=0):
    out = []; n = len(mf); m = len(rd); ri = 0
    for i in range(n):
        out.append(mf[i])
        tgt = min(m, (m*(i+1) + n - 1)//n)
        while ri < tgt:
            out.append(rd[ri]); ri += 1
    out += rd[ri:]
    return out

def producer_loop(k, tag, per, issue, NS, NIT):
    mark(k, 1)
    issue()
    mark(k, 2)
    issue()
    k(f"s_waitcnt vmcnt({per})")
    mark(k, 3)
    k("s_barrier")
    for n in range(2, NS): issue()
    mark(k, 4)
    nmain = NIT - NS
    k(f"s_mov_b32 s60, 0")
    k(f"L_{tag}_ploop:")
    k(f"s_waitcnt vmcnt({(NS-2)*per})")
    k("s_barrier")
    issue()
    k("s_add_u32 s60, s60, 1")
    k(f"s_cmp_lt_u32 s60, {nmain}")
    k(f"s_cbranch_scc1 L_{tag}_ploop")
    for n in range(nmain, NIT-1):
        k(f"s_waitcnt vmcnt({(NIT-1-(n+1))*per})")
        k("s_barrier")


XB_OFF = ZW_OFF
FL_OFF = 0x2800000
BAR_OFF = 0x2810000
def gemm_kernel(tag, fused=False):
    g1 = tag == 'g1'
    k = Kern('gg_kernel' if fused else tag + '_kernel')
    ENDL = 'L_gg_end' if fused else f'L_{tag}_end'
    ASZ = 16384; STG = 32768; NS = 4 if STATIC else (5 if BAR2 else 3)
    NIT = 32 if g1 else 28
    BSTR = 7168 if g1 else 4096
    if not (fused and not g1):
        k(f"s_cmp_ge_u32 s2, 256")
        k(f"s_cbranch_scc1 {ENDL}")
    else:
        k("L_gbar:")
        k("s_load_dwordx2 s[26:27], s[0:1], 80")
        k("s_waitcnt vmcnt(0) lgkmcnt(0)")
        k("s_barrier")
        srd(k, 36, 26, 1024, BAR_OFF)
        k("v_cmp_eq_u32 vcc, 0, v0")
        k("s_and_saveexec_b64 s[34:35], vcc")
        k("s_cbranch_execz L_gbar_noarr")
        k("s_and_b32 s33, s2, 7")
        k("s_lshl_b32 s33, s33, 7")
        k("v_mov_b32 v2, 1")
        k("v_mov_b32 v3, 0")
        k("buffer_atomic_add v2, v3, s[36:39], s33 offen sc1")
        k("L_gbar_noarr:")
        k("s_mov_b64 exec, -1")
    stamp_begin(k)
    if g1:
        k("s_load_dwordx4 s[4:7], s[0:1], 32")
        k("s_load_dwordx2 s[24:25], s[0:1], 48")
    else:
        k("s_load_dwordx4 s[4:7], s[0:1], 48")
        k("s_load_dwordx2 s[24:25], s[0:1], 64")
    k("s_load_dwordx2 s[26:27], s[0:1], 80")
    k("v_and_b32 v1, 63, v0")
    k("v_lshrrev_b32 v2, 6, v0")
    k("v_readfirstlane_b32 s28, v2")
    if g1:
        k("s_and_b32 s30, s2, 1")
        k("s_lshl_b32 s30, s30, 2")
        k("s_bfe_u32 s52, s2, 0x20003")
        k("s_add_u32 s30, s30, s52")
        k("s_bfe_u32 s29, s2, 0x20001")
        k("s_mul_i32 s29, s29, 7")
        k("s_lshr_b32 s53, s2, 5")
        k("s_add_u32 s29, s29, s53")
        k("s_mov_b32 s63, 0")
        k("s_and_b32 s55, s2, 1")
        k(f"s_mul_i32 s55, s55, {16 if KHALF else 0}")
    else:
        if MAP2 == 1:
            k("s_bfe_u32 s62, s2, 0x10003")
            k("s_bfe_u32 s29, s2, 0x20001")
            k("s_lshl_b32 s29, s29, 2")
            k("s_bfe_u32 s52, s2, 0x20004")
            k("s_add_u32 s29, s29, s52")
            k("s_lshr_b32 s53, s2, 6")
            k("s_and_b32 s30, s2, 1")
            k("s_lshl_b32 s30, s30, 2")
            k("s_add_u32 s30, s30, s53")
        else:
            k("s_and_b32 s62, s2, 1")
            k("s_bfe_u32 s29, s2, 0x20001")
            k("s_lshl_b32 s29, s29, 2")
            k("s_bfe_u32 s52, s2, 0x20003")
            k("s_add_u32 s29, s29, s52")
            k("s_lshr_b32 s53, s2, 5")
            k("s_mov_b32 s30, s53")
        k("s_mov_b32 s55, 0")
        k("s_mul_i32 s63, s62, 28")
        srd(k, 56, 26, 256*64, FL_OFF) if False else None
    k("s_lshl_b32 s31, s29, 8")
    k("s_lshl_b32 s32, s30, 8")
    k("s_waitcnt lgkmcnt(0)")
    if g1:
        srd(k, 8, 4, S*F*2)
        srd(k, 12, 26, S*D*2, HN_OFF)
        srd(k, 16, 26, F*D*2, GT_OFF)
        srd(k, 20, 6, F*2)
        srd(k, 44, 26, 256*64, FL_OFF)
        k("s_lshl_b32 s33, s2, 6")
        k("v_mov_b32 v2, 0")
        k("v_lshlrev_b32 v3, 2, v0")
        k("v_cmp_gt_u32 vcc, 16, v0")
        k("s_and_saveexec_b64 s[34:35], vcc")
        k(f"s_cbranch_execz L_{tag}_nozf")
        k("buffer_store_dword v2, v3, s[44:47], s33 offen sc0 sc1")
        k(f"L_{tag}_nozf:")
        k("s_mov_b64 exec, -1")
        k("s_cmp_lt_u32 s2, 224")
        k(f"s_cbranch_scc1 L_{tag}_main")
        if W1IDLE:
            k("s_sub_u32 s33, s2, 224")
            k("s_mul_i32 s33, s33, 112")
            k("v_mul_u32_u24 v3, 586, v0")
            k("v_lshrrev_b32 v3, 16, v3")
            k("v_mul_u32_u24 v4, 112, v3")
            k("v_sub_u32 v4, v0, v4")
            k("v_add_u32 v4, s33, v4")
            k("v_mul_u32_u24 v5, 4682, v4")
            k("v_lshrrev_b32 v5, 18, v5")
            k("v_mul_u32_u24 v6, 56, v5")
            k("v_sub_u32 v6, v4, v6")
            k("v_and_b32 v7, 1, v3")
            k("v_lshrrev_b32 v8, 1, v3")
            k("v_lshl_add_u32 v7, v7, 4, v8")
            k("v_lshl_add_u32 v5, v7, 6, v5")
            k("v_mul_u32_u24 v5, 7168, v5")
            k("v_lshl_add_u32 v2, v6, 7, v5")
            k("v_cmp_gt_u32 vcc, 448, v0")
            k("s_and_saveexec_b64 s[34:35], vcc")
            k(f"s_cbranch_execz L_{tag}_now1")
            k(f"s_mov_b32 s33, {W1IDLE*64*7168}")
            for i in range((16-W1IDLE)//2):
                k(f"buffer_load_dword v9, v2, s[8:11], s33 offen")
                k(f"s_add_u32 s33, s33, {2*64*7168}")
            k(f"L_{tag}_now1:")
            k("s_mov_b64 exec, -1")
        if W2PF:
            srd(k, 48, 24, F*S*2)
            k("s_sub_u32 s33, s2, 224")
            k("s_and_b32 s34, s33, 15")
            k("s_lshr_b32 s35, s33, 4")
            k(f"s_mul_i32 s35, s35, {1792*4096}")
            k("s_lshl_b32 s33, s34, 16")
            k("s_add_u32 s33, s33, s35")
            k("v_lshlrev_b32 v2, 7, v0")
            for i in range(W2PF):
                k(f"buffer_load_dword v9, v2, s[48:51], s33 offen")
                k(f"s_add_u32 s33, s33, {16*65536}")
        if XSENT:
            srd(k, 44, 26, 256*(16384 if XBF16 else 32768), 0x1E00000 if XB_SEP else VB_OFF)
            k("s_sub_u32 s33, s2, 224")
            k("s_lshl_b32 s33, s33, 17")
            k("v_lshlrev_b32 v2, 4, v0")
            for i in range(4): k(f"v_mov_b32 v{4+i}, -1")
            k("s_mov_b32 s34, 0")
            k(f"L_{tag}_clr:")
            k("buffer_store_dwordx4 v[4:7], v2, s[44:47], s33 offen sc0 sc1")
            k("s_add_u32 s33, s33, 8192")
            k("s_add_u32 s34, s34, 1")
            k("s_cmp_lt_u32 s34, 16")
            k(f"s_cbranch_scc1 L_{tag}_clr")
        stamp_end(k, tag, tid=0, slot=256, sfx='idle')
        k(f"s_branch {'L_gbar' if fused else ENDL}")
        k(f"L_{tag}_main:")
    else:
        srd(k, 8, 4, F*S*2)
        srd(k, 12, 26, F*D*2, GT_OFF)
        srd(k, 16, 26, S*D*2, H_OFF)
        srd(k, 20, 6, S*2)
        srd(k, 48, 24, S*D*2)
        k("s_getreg_b32 s54, hwreg(HW_REG_XCC_ID, 0, 4)")
        k("s_add_u32 s54, s54, 1")
        srd(k, 56, 26, 256*64, FL_OFF)
        k("s_lshl_b32 s33, s2, 6")
        k("v_mov_b32 v2, s54")
        k("v_mov_b32 v3, 0")
        k("v_cmp_eq_u32 vcc, 0, v0")
        k("s_and_saveexec_b64 s[34:35], vcc")
        k(f"s_cbranch_execz L_{tag}_nopub")
        k("buffer_store_dword v2, v3, s[56:59], s33 offen offset:4 sc0 sc1")
        k(f"L_{tag}_nopub:")
        k("s_mov_b64 exec, -1")
    k("s_cmp_ge_u32 s28, 4")
    k(f"s_cbranch_scc1 L_{tag}_prod")
    ACC = 8; X = 72; Y = 136; R = 200
    AA = [R+i for i in range(4)]; AB = [R+4+i for i in range(4)]
    BA = [R+8+i for i in range(4)]; BB = [R+12+i for i in range(4)]
    MISC = R + 16
    k("s_and_b32 s33, s28, 1")
    k("s_lshr_b32 s36, s28, 1")
    k("v_lshrrev_b32 v2, 4, v1")
    k("v_bfe_u32 v3, v1, 2, 2")
    k("v_and_b32 v4, 3, v1")
    k("v_lshl_add_u32 v5, v2, 2, v3")
    k("v_and_b32 v6, 7, v5")
    k("v_lshlrev_b32 v6, 1, v6")
    k("v_lshrrev_b32 v7, 1, v4")
    k("v_and_b32 v9, 1, v4")
    for (base, w, add) in ((BA, 's33', 0), (BB, 's36', ASZ)):
        k(f"s_lshl_b32 s35, {w}, 3")
        k("v_add_u32 v10, s35, v7")
        k("v_xor_b32 v10, v10, v6")
        k("v_lshlrev_b32 v10, 4, v10")
        k("v_lshl_add_u32 v10, v9, 3, v10")
        k("v_lshl_add_u32 v10, v5, 8, v10")
        if add: k(f"v_add_u32 v10, {add}, v10")
        k(f"v_mov_b32 v{base[0]}, v10")
        for t in range(1, 4): k(f"v_xor_b32 v{base[t]}, {32*t}, v10")
    for t in range(4):
        k(f"v_mov_b32 v{AA[t]}, v{BA[t]}"); k(f"v_mov_b32 v{AB[t]}, v{BB[t]}")
    BIAS = MISC
    k("v_and_b32 v2, 15, v1")
    k("v_lshlrev_b32 v2, 1, v2")
    k("s_lshl_b32 s37, s36, 7")
    k("s_add_u32 s37, s37, s31")
    for t in range(4):
        k(f"buffer_load_ushort v{BIAS+t}, v2, s[20:23], s37 offen offset:{32*t}")
    OV = MISC+4
    k("v_and_b32 v2, 15, v1")
    k("v_lshlrev_b32 v2, 11, v2")
    k("v_lshrrev_b32 v3, 4, v1")
    k(f"v_lshl_add_u32 v{OV}, v3, 4, v2")
    k("s_lshl_b32 s38, s29, 7")
    k("s_lshl_b32 s39, s36, 6")
    k("s_add_u32 s38, s38, s39")
    k("s_lshl_b32 s38, s38, 11")
    k("s_add_u32 s38, s38, s32")
    k("s_lshl_b32 s39, s33, 7")
    k("s_add_u32 s38, s38, s39")
    if not g1:
        HL = MISC+6
        NV = HL+16
        if OUT_TOUCH:
            k("s_lshl_b32 s39, s62, 16")
            k("s_add_u32 s39, s39, s38")
            k(f"buffer_load_dword v{NV}, v{OV}, s[48:51], s39 offen")
            NV += 1
    else:
        NV = MISC+5
    def reads(dst, buf=None):
        r = []
        for ks in range(2):
            b = dst + 32*ks; ko = 32*ks
            for t in range(4):
                if buf is None: regs = (AA[t], AB[t]); bo = 0
                else:
                    regs = (BA[t], BB[t]) if buf < 2 else (AA[t], AB[t]); bo = (buf % 2)*STG
                for (o, a) in ((0, regs[0]), (16, regs[1])):
                    r.append(f"ds_read_b64_tr_b16 {vr(b+o+4*t,2)}, v{a} offset:{bo+ko*256}")
                    r.append(f"ds_read_b64_tr_b16 {vr(b+o+4*t+2,2)}, v{a} offset:{bo+(ko+16)*256}")
        return r
    def mfmas(src):
        m = []
        for ks in range(2):
            b = src + 32*ks
            order = sorted([(td, tn) for td in range(4) for tn in range(4)], key=lambda x: (max(x), x))
            if FAKE32:
                for i in range(8):
                    a = ACC + 16*(i % 4)
                    m.append(f"{MF32} {vr(a,16)}, {vr(b+4*(i%4),4)}, {vr(b+16+4*((i//2)%4),4)}, {vr(a,16)}")
                continue
            for td, tn in order:
                a = ACC + 4*(4*tn+td)
                m.append(f"{MF16} {vr(a,4)}, {vr(b+4*td,4)}, {vr(b+16+4*tn,4)}, {vr(a,4)}")
        return m
    def sched(mf, rd, extra):
        out = []; ri = 0; ei = 0
        for i, m in enumerate(mf):
            out.append(m)
            if ri < len(rd):
                for _ in range(RPAT[i % len(RPAT)]):
                    if ri < len(rd): out.append(rd[ri]); ri += 1
            elif ei < len(extra):
                out.append(extra[ei]); ei += 1
        out += rd[ri:] + extra[ei:]
        return out
    def upd():
        e = [f"s_add_u32 s34, s34, {STG}", f"s_cmp_eq_u32 s34, {STG*NS}", "s_cselect_b32 s34, 0, s34"]
        e += [f"v_add_u32 v{AA[t]}, s34, v{BA[t]}" for t in range(4)]
        e += [f"v_add_u32 v{AB[t]}, s34, v{BB[t]}" for t in range(4)]
        return e
    for i in range(64): k(f"v_mov_b32 v{ACC+i}, 0")
    k("s_mov_b32 s34, 0")
    k("s_mov_b32 s35, 0")
    if fused and not g1: k("s_barrier")
    mark(k, 1)
    k("s_barrier")
    mark(k, 2)
    if STATIC:
        for t in range(4):
            k(f"v_add_u32 v{AA[t]}, 65536, v{BA[t]}"); k(f"v_add_u32 v{AB[t]}, 65536, v{BB[t]}")
        for x in reads(X, 0): k(x)
        k(f"L_{tag}_cloop:")
        for u in range(4):
            cur, nxt = (X, Y) if u % 2 == 0 else (Y, X)
            k("s_waitcnt lgkmcnt(0)")
            k("s_barrier")
            ex = ["s_add_u32 s35, s35, 4", f"s_cmp_lt_u32 s35, {NIT-4}"] if u == 3 else []
            for x in sched(mfmas(cur), reads(nxt, (u+1) % 4), ex): k(x)
        k(f"s_cbranch_scc1 L_{tag}_cloop")
        for u in range(2):
            cur, nxt = (X, Y) if u % 2 == 0 else (Y, X)
            k("s_waitcnt lgkmcnt(0)")
            k("s_barrier")
            for x in sched(mfmas(cur), reads(nxt, u+1), []): k(x)
    else:
        for x in reads(X): k(x)
        for x in upd(): k(x)
        k(f"L_{tag}_cloop:")
        k("s_waitcnt lgkmcnt(0)")
        if LOOPSTAMP:
            k(f"s_cmp_eq_u32 s35, {LOOPSTAMP}")
            k(f"s_cbranch_scc0 L_{tag}_nolatch")
            for i in range(4): k(f"s_mov_b64 s[{96-20+2*i}:{97-20+2*i}], s[{66+2*i}:{67+2*i}]") if False else None
            k("s_sub_u32 s90, s68, s66"); k("s_sub_u32 s91, s70, s68"); k("s_sub_u32 s92, s72, s70")
            k("s_memtime s[82:83]"); k("s_waitcnt lgkmcnt(0)"); k("s_sub_u32 s93, s82, s72")
            k(f"L_{tag}_nolatch:")
        k("s_barrier")
        if LOOPSTAMP: k("s_memtime s[66:67]")
        for x in sched(mfmas(X), reads(Y), upd()): k(x)
        if LOOPSTAMP: k("s_memtime s[68:69]")
        k("s_waitcnt lgkmcnt(0)")
        if not BAR2: k("s_barrier")
        if LOOPSTAMP: k("s_memtime s[70:71]")
        for x in sched(mfmas(Y), reads(X), upd() + ["s_add_u32 s35, s35, 2", f"s_cmp_lt_u32 s35, {NIT-2}"]): k(x)
        if LOOPSTAMP: k("s_memtime s[72:73]")
        k(f"s_cbranch_scc1 L_{tag}_cloop")
    if LOOPSTAMP:
        k("s_waitcnt lgkmcnt(0)")
        for i in range(4):
            k(f"s_mov_b32 s{66+2*i}, s{90+i}"); k(f"s_mov_b32 s{67+2*i}, 0")
    XID = 3
    if not g1:
        k(f"s_xor_b32 s42, s2, {8 if MAP2 == 1 else 1}")
        k("s_lshl_b32 s39, s42, 6")
        k("v_mov_b32 v4, 0")
        k(f"buffer_load_dword v{XID}, v4, s[56:59], s39 offen offset:4 sc0 sc1")
        k("s_lshl_b32 s39, s62, 16")
        k("s_add_u32 s39, s39, s38")
        for tnl in range(2):
            for tp in range(2):
                k(f"s_add_u32 s40, s39, {tnl*16*2048 + tp*64}")
                k(f"buffer_load_dwordx4 {vr(HL+8*tnl+4*tp,4)}, v{OV}, s[16:19], s40 offen")
    k("s_waitcnt lgkmcnt(0)")
    k("s_barrier")
    for x in sched(mfmas(X), reads(Y, 3 if STATIC else None), []): k(x)
    k("s_waitcnt lgkmcnt(0)")
    for x in mfmas(Y): k(x)
    mark(k, 3)
    k("s_mov_b32 s40, 0xffff0000")
    T = X
    def pack_swap(P):
        k(f"v_permlane32_swap_b32 v{P}, v{P+2}")
        k(f"v_permlane32_swap_b32 v{P+1}, v{P+3}")
        k(f"v_permlane16_swap_b32 v{P}, v{P+2}")
        k(f"v_permlane16_swap_b32 v{P+1}, v{P+3}")
    def store_lines(P0, P1, tmp, so, srdreg):
        for i in range(4): k(f"v_mov_b32 v{tmp+i}, v{P0+i}")
        for i in range(4): k(f"v_mov_b32_dpp v{P0+i}, v{P1+i} row_ror:8 row_mask:0xf bank_mask:0xc")
        for i in range(4): k(f"v_mov_b32_dpp v{P1+i}, v{tmp+i} row_ror:8 row_mask:0xf bank_mask:0x3")
        fl = ST_G1 if g1 else ST_G2
        k(f"s_add_u32 s41, s38, {so}")
        k(f"buffer_store_dwordx4 {vr(P0,4)}, v{OVS}, s[{srdreg}:{srdreg+3}], s41 offen {fl}")
        k(f"s_add_u32 s41, s38, {so + 8*2048}")
        k(f"buffer_store_dwordx4 {vr(P1,4)}, v{OVS}, s[{srdreg}:{srdreg+3}], s41 offen {fl}")
    OVS = 3
    def set_ovs():
        k("v_and_b32 v2, 7, v1")
        k("v_lshlrev_b32 v2, 11, v2")
        k("v_bfe_u32 v3, v1, 3, 1")
        k("v_lshl_add_u32 v2, v3, 6, v2")
        k("v_lshrrev_b32 v3, 4, v1")
        k(f"v_lshl_add_u32 v{OVS}, v3, 4, v2")
    if g1:
        SH = 32768 if STATIC else (98304 if BAR2 else 65536)
        k("s_lshl_b32 s39, s28, 13")
        k(f"s_add_u32 s39, s39, {SH}")
        k("v_lshl_add_u32 v2, v1, 4, s39")
        for i in range(8): k(f"ds_write_b128 v2, {vr(ACC+32+4*i,4)} offset:{1024*i}")
        k("s_waitcnt vmcnt(0) lgkmcnt(0)")
        k("s_barrier")
        mark(k, 4)
        k(f"L_{tag}_epi:")
        for t in range(2): k(f"v_lshlrev_b32 v{BIAS+t}, 16, v{BIAS+t}")
        c0 = -2.0*math.log2(math.e)*math.sqrt(2.0/math.pi); c1 = c0*0.044715
        k("s_mov_b32 s40, 0xffff0000")
        k(f"s_mov_b32 s42, {f32(c1)}")
        k(f"v_mov_b32 v4, {f32(c0)}"); k(f"v_mov_b32 v5, {f32(c0)}")
        k(f"v_mov_b32 v6, 1.0"); k(f"v_mov_b32 v7, 1.0")
        set_ovs()
        for tn in range(2):
            for tp in range(2):
                P = T + 4*tp + 24*tn
                for q in range(4):
                    td = 2*tp + q//2
                    src = ACC + 4*(4*tn+td) + 2*(q % 2)
                    u, w = T+8+4*q, T+10+4*q
                    gelu_pair(k, src, u, w, BIAS+tn, P+q)
                pack_swap(P)
            store_lines(T+24*tn, T+24*tn+4, T+32, tn*16*2048, 16)
    else:
        k("s_waitcnt vmcnt(0)")
        srd(k, 44, 26, 256*(16384 if XBF16 else 32768), 0x1E00000 if XB_SEP else VB_OFF)
        srd(k, 56, 26, 256*64, FL_OFF)
        k(f"s_xor_b32 s42, s2, {8 if MAP2 == 1 else 1}")
        k(f"s_lshl_b32 s43, s42, {14 if XBF16 else 15}")
        k(f"s_lshl_b32 s39, s28, {12 if XBF16 else 13}")
        k("s_add_u32 s43, s43, s39")
        k("v_lshlrev_b32 v2, 4, v1")
        k("v_mov_b32 v4, 0")
        k("s_lshl_b32 s39, s42, 6")
        k("s_mov_b32 s41, 0")
        k("v_readfirstlane_b32 s61, v3")
        k("s_cmp_eq_u32 s61, 0")
        k(f"s_cbranch_scc0 L_{tag}_xpolld")
        k(f"L_{tag}_xpoll:")
        k("buffer_load_dword v3, v4, s[56:59], s39 offen offset:4 sc0 sc1")
        k("s_waitcnt vmcnt(0)")
        k("v_readfirstlane_b32 s61, v3")
        k("s_add_u32 s41, s41, 1")
        k("s_cmp_ge_u32 s41, 0x40000")
        k(f"s_cbranch_scc1 L_{tag}_xpolld")
        k("s_cmp_eq_u32 s61, 0")
        k(f"s_cbranch_scc1 L_{tag}_xpoll")
        k(f"L_{tag}_xpolld:")
        k("s_cmp_eq_u32 s61, s54")
        k(f"s_cselect_b32 s61, {0 if FORCE_FAR else 1}, 0")
        def sends(flags, lab):
            k("s_cmp_eq_u32 s62, 0")
            k(f"s_cbranch_scc1 L_{tag}_k0{lab}")
            for half, l2 in ((0, None), (32, f"L_{tag}_k0{lab}:")):
                if l2: k(l2)
                if XBF16:
                    for i in range(16): k(f"{CVT} v{Y+32+i}, v{ACC+half+2*i}, v{ACC+half+2*i+1}")
                    for i in range(4):
                        k(f"s_add_u32 s39, s43, {1024*i}")
                        k(f"buffer_store_dwordx4 {vr(Y+32+4*i,4)}, v2, s[44:47], s39 offen {flags}")
                else:
                    for i in range(8):
                        k(f"s_add_u32 s39, s43, {1024*i}")
                        k(f"buffer_store_dwordx4 {vr(ACC+half+4*i,4)}, v2, s[44:47], s39 offen {flags}")
                if half == 0: k(f"s_branch L_{tag}_k1{lab}")
            k(f"L_{tag}_k1{lab}:")
        def handoff(stf, ldf, lab):
            sends(stf, lab)
            k("s_waitcnt vmcnt(0)")
            k("s_lshl_b32 s39, s42, 6")
            k("s_lshl_b32 s41, s28, 2")
            k("s_add_u32 s39, s39, s41")
            k("v_mov_b32 v3, 1")
            k("s_mov_b64 exec, 1")
            k(f"buffer_store_dword v3, v4, s[56:59], s39 offen offset:16 {stf}")
            k("s_lshl_b32 s39, s2, 6")
            k("s_add_u32 s39, s39, s41")
            k("s_mov_b32 s41, 0")
            k(f"L_{tag}_poll{lab}:")
            k(f"buffer_load_dword v3, v4, s[56:59], s39 offen offset:16 {ldf}")
            k("s_waitcnt vmcnt(0)")
            k("v_readfirstlane_b32 s43, v3")
            k("s_add_u32 s41, s41, 1")
            k("s_cmp_ge_u32 s41, 0x40000")
            k(f"s_cbranch_scc1 L_{tag}_polld{lab}")
            k("s_cmp_eq_u32 s43, 1")
            k(f"s_cbranch_scc0 L_{tag}_poll{lab}")
            k(f"L_{tag}_polld{lab}:")
            k("s_mov_b64 exec, -1")
            k(f"s_lshl_b32 s43, s2, {14 if XBF16 else 15}")
            k(f"s_lshl_b32 s39, s28, {12 if XBF16 else 13}")
            k("s_add_u32 s43, s43, s39")
            for i in range(4 if XBF16 else 8):
                k(f"s_add_u32 s39, s43, {1024*i}")
                k(f"buffer_load_dwordx4 {vr(Y+(32 if XBF16 else 0)+4*i,4)}, v2, s[44:47], s39 offen {ldf}")
        if XSENT:
            assert XBF16
            sends('sc0 sc1', 's')
            k("s_lshl_b32 s43, s2, 14")
            k("s_lshl_b32 s39, s28, 12")
            k("s_add_u32 s43, s43, s39")
            k("s_mov_b32 s41, 0")
            k("s_waitcnt vmcnt(0)")
            k(f"L_{tag}_spoll:")
            for i in range(4):
                k(f"s_add_u32 s39, s43, {1024*i}")
                k(f"buffer_load_dwordx4 {vr(Y+32+4*i,4)}, v2, s[44:47], s39 offen sc0 sc1")
            k("s_add_u32 s41, s41, 1")
            k("s_waitcnt vmcnt(0)")
            k(f"v_max3_u32 v3, v{Y+32}, v{Y+33}, v{Y+34}")
            for i in range(3, 15, 2): k(f"v_max3_u32 v3, v3, v{Y+32+i}, v{Y+32+i+1}")
            k(f"v_max_u32 v3, v3, v{Y+47}")
            k("v_cmp_eq_u32 vcc, -1, v3")
            k("s_nop 4")
            k("s_cmp_ge_u32 s41, 0x20000")
            k(f"s_cbranch_scc1 L_{tag}_spolld")
            k(f"s_cbranch_vccnz L_{tag}_spoll")
            k(f"L_{tag}_spolld:")
        else:
            k("s_cmp_eq_u32 s61, 1")
            k(f"s_cbranch_scc0 L_{tag}_far")
            handoff('', 'sc1', 'n')
            k(f"s_branch L_{tag}_xdone")
            k(f"L_{tag}_far:")
            handoff('sc0 sc1', 'sc0 sc1', 'f')
            k(f"L_{tag}_xdone:")
        k("s_cmp_eq_u32 s62, 0")
        k(f"s_cbranch_scc1 L_{tag}_kept")
        for i in range(32): k(f"v_mov_b32 v{ACC+i}, v{ACC+32+i}")
        k(f"v_mov_b32 v{BIAS}, v{BIAS+2}"); k(f"v_mov_b32 v{BIAS+1}, v{BIAS+3}")
        k(f"L_{tag}_kept:")
        mark(k, 4)
        k(f"v_lshlrev_b32 v{BIAS}, 16, v{BIAS}"); k(f"v_lshlrev_b32 v{BIAS+1}, 16, v{BIAS+1}")
        if PERTURB:
            k(f"v_add_f32 v{BIAS}, {f32(PERTURB)}, v{BIAS}"); k(f"v_add_f32 v{BIAS+1}, {f32(PERTURB)}, v{BIAS+1}")
        k("s_lshl_b32 s39, s62, 16")
        k("s_add_u32 s38, s38, s39")
        set_ovs()
        for tnl in range(2):
            for tp in range(2):
                i0 = 4*tnl + 2*tp
                if XBF16: k(f"s_waitcnt vmcnt({3 - i0//2})")
                else:     k(f"s_waitcnt vmcnt({6 - i0 if i0 < 6 else 0})")
                if i0 == 0: mark(k, 5)
                P = T + 4*tp + 24*tnl
                for q in range(4):
                    td = 2*tp + q//2
                    a = ACC + 4*(4*tnl+td) + 2*(q % 2); y = Y + 4*(4*tnl+td) + 2*(q % 2)
                    u, w = T+8+4*q, T+10+4*q
                    if XBF16:
                        pk = Y + 32 + (4*(4*tnl+td) + 2*(q % 2))//2
                        k(f"v_lshlrev_b32 v{y}, 16, v{pk}")
                        k(f"v_and_b32 v{y+1}, s40, v{pk}")
                    k(f"v_pk_add_f32 {vr(a,2)}, {vr(a,2)}, {vr(y,2)}")
                    if EMU_Y:
                        k(f"{CVT} v{w}, v{a}, v{a+1}")
                        k(f"v_lshlrev_b32 v{u}, 16, v{w}")
                        k(f"v_and_b32 v{u+1}, s40, v{w}")
                        k(f"v_add_f32 v{u}, v{u}, v{BIAS+tnl}")
                        k(f"v_add_f32 v{u+1}, v{u+1}, v{BIAS+tnl}")
                    else:
                        k(f"v_add_f32 v{u}, v{a}, v{BIAS+tnl}")
                        k(f"v_add_f32 v{u+1}, v{a+1}, v{BIAS+tnl}")
                    k(f"{CVT} v{P+q}, v{u}, v{u+1}")
                pack_swap(P)
                for q in range(4):
                    u, w = T+8+4*q, T+10+4*q
                    hp = HL+8*tnl+4*tp+q
                    k(f"v_lshlrev_b32 v{u}, 16, v{P+q}")
                    k(f"v_and_b32 v{u+1}, s40, v{P+q}")
                    k(f"v_lshlrev_b32 v{w}, 16, v{hp}")
                    k(f"v_and_b32 v{w+1}, s40, v{hp}")
                    k(f"v_pk_add_f32 {vr(u,2)}, {vr(u,2)}, {vr(w,2)}")
                    k(f"{CVT} v{P+q}, v{u}, v{u+1}")
            store_lines(T+24*tnl, T+24*tnl+4, T+32, tnl*16*2048, 48)
    stamp_end(k, tag)
    k(f"s_branch {'L_gbar' if (fused and g1) else ENDL}")
    k(f"L_{tag}_prod:")
    if PPRIO: k(f"s_setprio {PPRIO}")
    k("s_sub_u32 s33, s28, 4")
    k("v_lshrrev_b32 v2, 4, v1")
    k("s_and_b32 s34, s33, 1")
    k("s_lshl_b32 s34, s34, 2")
    k("v_add_u32 v3, s34, v2")
    k("v_lshlrev_b32 v3, 1, v3")
    k("v_and_b32 v4, 15, v1")
    k("v_xor_b32 v3, v3, v4")
    k("v_lshlrev_b32 v3, 4, v3")
    k("v_lshl_add_u32 v8, v2, 11, v3")
    k(f"v_mul_u32_u24 v2, {BSTR}, v2")
    k("v_add_u32 v9, v2, v3")
    k("s_lshl_b32 s34, s33, 13")
    k("s_add_u32 s40, s32, s34")
    k(f"s_mul_i32 s34, s33, {4*BSTR}")
    k("s_add_u32 s41, s31, s34")
    k("s_lshl_b32 s42, s33, 10")
    k("s_mov_b32 s43, 0")
    k("s_add_u32 s46, s52, s53")
    k("s_mov_b32 s47, 0")
    def issue():
        k("s_add_u32 s58, s46, s47")
        k("s_and_b32 s58, s58, 3")
        k("s_cmp_eq_u32 s58, 0")
        k(f"s_cselect_b32 s58, {3+NIT}, {NIT-1}")
        k("s_add_u32 s58, s58, s47")
        k("s_add_u32 s58, s58, s55")
        k(f"s_cmp_ge_u32 s58, {2*NIT}")
        k(f"s_cselect_b32 s59, {2*NIT}, {NIT}")
        k(f"s_cmp_ge_u32 s58, {NIT}")
        k(f"s_cselect_b32 s59, s59, 0")
        k("s_sub_u32 s58, s58, s59")
        if not KPERM: k("s_mov_b32 s58, s47")
        if KWRAP: k(f"s_and_b32 s58, s58, {KWRAP-1}")
        k("s_add_u32 s58, s58, s63")
        k(f"s_mul_i32 s59, s58, {64*BSTR}")
        k(f"s_lshl_b32 s58, s58, 17")
        k("s_add_u32 s58, s58, s40")
        k("s_add_u32 s59, s59, s41")
        k("s_add_u32 s44, s43, s42")
        for m in range(4):
            k(f"s_add_u32 m0, s44, {4096*m}")
            k(f"s_add_u32 s45, s58, {m*16*2048}")
            k(f"buffer_load_dwordx4 v8, s[12:15], s45 offen lds")
            k(f"s_add_u32 m0, s44, {ASZ+4096*m}")
            k(f"s_add_u32 s45, s59, {m*16*BSTR}")
            k(f"buffer_load_dwordx4 v9, s[8:11], s45 offen {NT_B1 if g1 else NT_B2} lds")
        k("s_add_u32 s47, s47, 1")
        k(f"s_add_u32 s43, s43, {STG}")
        k(f"s_cmp_eq_u32 s43, {STG*NS}")
        k("s_cselect_b32 s43, 0, s43")
    if fused and not g1:
        k("s_cmp_eq_u32 s33, 0")
        k("s_cbranch_scc0 L_gbar_nopoll")
        srd(k, 36, 26, 1024, BAR_OFF)
        k("v_and_b32 v2, 7, v1")
        k("v_lshlrev_b32 v2, 7, v2")
        k("s_mov_b32 s34, 0")
        k("L_gbar_poll:")
        if PSLEEP: k(f"s_sleep {PSLEEP}")
        k(f"buffer_load_dword v3, v2, s[36:39], 0 offen {POLLF}")
        k("s_waitcnt vmcnt(0)")
        k("v_cmp_gt_u32 vcc, 32, v3")
        k("s_add_u32 s34, s34, 1")
        k("s_cmp_ge_u32 s34, 0x20000")
        k("s_cbranch_scc1 L_gbar_nopoll")
        k("s_cbranch_vccnz L_gbar_poll")
        k("L_gbar_nopoll:")
        k("s_barrier")
    if BAR2:
        per = 8
        mark(k, 1)
        issue(); mark(k, 2); issue()
        k(f"s_waitcnt vmcnt({per})")
        mark(k, 3)
        k("s_barrier")
        issue(); issue()
        mark(k, 4)
        k("s_mov_b32 s60, 0")
        k(f"L_{tag}_ploop:")
        k(f"s_waitcnt vmcnt({per})")
        k("s_barrier")
        issue(); issue()
        k("s_add_u32 s60, s60, 2")
        k(f"s_cmp_lt_u32 s60, {NIT-4}")
        k(f"s_cbranch_scc1 L_{tag}_ploop")
        k(f"s_waitcnt vmcnt({per})")
        k("s_barrier")
        k("s_waitcnt vmcnt(0)")
        k("s_barrier")
    else:
        producer_loop(k, tag, 8, issue, 3 if STATIC else NS, NIT)
    if g1:
        k("s_and_b32 s34, s33, 1")
        k("s_lshr_b32 s36, s33, 1")
        k("v_and_b32 v2, 15, v1")
        k("v_lshlrev_b32 v2, 1, v2")
        k("s_lshl_b32 s37, s36, 7")
        k("s_add_u32 s37, s37, s31")
        for t in range(2):
            k(f"buffer_load_ushort v{BIAS+t}, v2, s[20:23], s37 offen offset:{64+32*t}")
        k("v_and_b32 v2, 15, v1")
        k("v_lshlrev_b32 v2, 11, v2")
        k("v_lshrrev_b32 v3, 4, v1")
        k(f"v_lshl_add_u32 v{OV}, v3, 4, v2")
        k("s_lshl_b32 s38, s29, 7")
        k("s_lshl_b32 s39, s36, 6")
        k("s_add_u32 s38, s38, s39")
        k("s_add_u32 s38, s38, 32")
        k("s_lshl_b32 s38, s38, 11")
        k("s_add_u32 s38, s38, s32")
        k("s_lshl_b32 s39, s34, 7")
        k("s_add_u32 s38, s38, s39")
        k("s_lshl_b32 s39, s33, 13")
        k(f"s_add_u32 s39, s39, {32768 if STATIC else (98304 if BAR2 else 65536)}")
        k("v_lshl_add_u32 v2, v1, 4, s39")
        k("s_setprio 0")
        k("s_barrier")
        for i in range(8): k(f"ds_read_b128 {vr(ACC+4*i,4)}, v2 offset:{1024*i}")
        k("s_waitcnt vmcnt(0) lgkmcnt(0)")
        k(f"s_branch L_{tag}_epi")
    stamp_end(k, tag, tid=256, slot=256, sfx='p')
    if fused and g1:
        return k, NV, STG*NS
    k(f"{ENDL}:")
    k("s_endpgm")
    return k, NV, STG*NS

def gelu_pair(k, src, u, w, bias, dst):
    if EMU_U:
        k(f"{CVT} v{w}, v{src}, v{src+1}")
        k(f"v_lshlrev_b32 v{u}, 16, v{w}")
        k(f"v_and_b32 v{u+1}, s40, v{w}")
        k(f"v_add_f32 v{u}, v{u}, v{bias}")
        k(f"v_add_f32 v{u+1}, v{u+1}, v{bias}")
        k(f"{CVT} v{w}, v{u}, v{u+1}")
        k(f"v_lshlrev_b32 v{u}, 16, v{w}")
        k(f"v_and_b32 v{u+1}, s40, v{w}")
    else:
        k(f"v_add_f32 v{u}, v{src}, v{bias}")
        k(f"v_add_f32 v{u+1}, v{src+1}, v{bias}")
    k(f"v_pk_mul_f32 {vr(w,2)}, {vr(u,2)}, {vr(u,2)}")
    k(f"v_pk_fma_f32 {vr(w,2)}, {vr(w,2)}, s[42:43], {vr(4,2)} op_sel_hi:[1,0,1]")
    k(f"v_pk_mul_f32 {vr(w,2)}, {vr(w,2)}, {vr(u,2)}")
    k(f"v_exp_f32 v{w}, v{w}")
    k(f"v_exp_f32 v{w+1}, v{w+1}")
    k(f"s_nop 0")
    k(f"v_pk_add_f32 {vr(w,2)}, {vr(w,2)}, {vr(6,2)}")
    k(f"v_rcp_f32 v{w}, v{w}")
    k(f"v_rcp_f32 v{w+1}, v{w+1}")
    k(f"s_nop 0")
    k(f"v_pk_mul_f32 {vr(w,2)}, {vr(w,2)}, {vr(u,2)}")
    k(f"{CVT} v{dst}, v{w}, v{w+1}")

RPAT = [2, 1]
FUSE_GG = 0
W1IDLE = 0
EMU_LN = 0
EMU_L2 = 0
NT_B1 = ''
NT_B2 = ''
NT_X = ''
NT_W = ''
KHALF = 1
XSENT = 1
XBF16 = 1
EMU_Y = 0
PERTURB = 0
PSLEEP = 4
POLLF = 'sc0 sc1'
STATIC = 1
LOOPSTAMP = 0
BAR2 = 0
FAKE32 = 0
MAP2 = 0
XB_SEP = 1
FORCE_FAR = 0
PPRIO = 3
PFD = 0
KPERM = 1
FAKE16 = 0
NS1 = 3
NS2 = 3
KWRAP = 0
W2PF = 7
EMU_U = 0
RPG1 = 3
RPG2 = 4
def gen_gg():
    k1, nv1, l1 = gemm_kernel('g1', True)
    k2, nv2, l2 = gemm_kernel('g2', True)
    k1.l += k2.l
    return k1, max(nv1, nv2), max(l1, l2)
def gen_g1(): return gemm_kernel('g1')
def gen_g2(): return gemm_kernel('g2')

KERNELS = [('p1_kernel', gen_p1, (256,1,1), (256,1,1)), ('p2_kernel', gen_p2, (256,1,1), (256,1,1)), ('p3_kernel', gen_p3, (256,1,1), (256,1,1)),
 ('g1_kernel', gen_g1, (256,1,1), (512,1,1)), ('g2_kernel', gen_g2, (256,1,1), (512,1,1))]

def build_all(kernels=None):
    ks = []
    if kernels is None:
        kernels = KERNELS[:3] + [('gg_kernel', gen_gg, (256,1,1), (512,1,1))] if FUSE_GG else KERNELS
    for name, fn, grid, block in kernels:
        if W1PF and name in ('p2_kernel', 'p3_kernel'): block = (320, 1, 1)
        k, nv, lds = fn()
        if ST_ALL:
            k.l = [ (x + ' ' + ST_ALL) if ('buffer_store' in x and 'sc1' not in x and 'sc0' not in x and ' nt' not in x) else x for x in k.l]
        if name.startswith('g'):
            if NO_DMA: k.l = [x for x in k.l if not ('offen lds' in x)]
            if NO_MFMA: k.l = [x for x in k.l if 'v_mfma' not in x]
            if NO_ADV: k.l = [x for x in k.l if not (x.strip().startswith('s_add_u32 s40, s40,') or x.strip().startswith('s_add_u32 s41, s41,'))]
            if NO_A: k.l = [x for x in k.l if not ('s[12:15]' in x and 'offen lds' in x)]
            if NO_B: k.l = [x for x in k.l if not ('s[8:11]' in x and 'offen lds' in x)]
            if NO_BAR: k.l = [x for x in k.l if 's_barrier' not in x]
            if NO_READ: k.l = [x for x in k.l if 'ds_read_b64_tr' not in x]
        ks.append((name, k, nv, lds, grid, block))
    hdr = open('sequential_preLN__spectral_gfnet__mixer_token_mlp__prompt.s.ref').read().split('; Override launch')[0]
    s = hdr
    for name, k, nv, lds, grid, block in ks:
        s += f"; @launch kernel={name} grid=({grid[0]},{grid[1]},{grid[2]}) block=({block[0]},{block[1]},{block[2]}) lds={lds}\n"
    s += '.amdgcn_target "amdgcn-amd-amdhsa--gfx950"\n.text\n'
    for name, k, nv, lds, grid, block in ks: s += k.text()
    s += 'L_text_end:\n'
    s += '.section .rodata,"a"\n'
    for name, k, nv, lds, grid, block in ks: s += descriptor(name, nv)
    return s, ks

if __name__ == '__main__':
    s, ks = build_all()
    open(sys.argv[1] if len(sys.argv) > 1 else 'out.s', 'w').write(s)
    print('written', len(s), 'bytes')
```

```python
import sys, math, struct
sys.path.insert(0, 'work')
from asmlib import *

ZW_OFF = 0x0          ; ZW_SIZE = 257*32768
ZD_OFF = 0x0 ; WB_OFF = 0x480000
VB_OFF = 0x900000     ; VB_BLK = 256*64
H_OFF  = 0xE00000
HN_OFF = 0x1200000
GT_OFF = 0x1600000
WS_USED = 0x1D00000
S, D, F = 2048, 1024, 3584

def f32(x):
    return '0x%08x' % struct.unpack('<I', struct.pack('<f', x))[0]

CVT = 'v_cvt_pk_bf16_f32'
STAMP = False
NO_DMA = False
NO_MFMA = False
NO_READ = False
NO_BAR = False
NO_ADV = False
NO_A = False
NO_B = False
STAMP_OFF = 0x3000000
KIDX = {'p1':0,'p2':1,'p3':2,'g1':3,'g2':4}
NMARK = 8
def mark(k, i):
    if STAMP and not (LOOPSTAMP and k.name.startswith('g') and 1 <= i <= 4): k(f"s_memrealtime s[{64+2*i}:{65+2*i}]")
def stamp_begin(k):
    if STAMP:
        for i in range(1, NMARK): k(f"s_mov_b64 s[{64+2*i}:{65+2*i}], 0")
        k("s_memrealtime s[64:65]")
        k("s_memtime s[94:95]")
def stamp_end(k, tag, tid=0, slot=0, sfx=''):
    if not STAMP: return
    mark(k, 6)
    k("s_waitcnt vmcnt(0) lgkmcnt(0)")
    mark(k, 7)
    k("s_memtime s[84:85]")
    k("s_load_dwordx2 s[88:89], s[0:1], 80")
    k("s_waitcnt lgkmcnt(0)")
    k(f"s_add_u32 s88, s88, {STAMP_OFF + KIDX[tag]*65536}")
    k("s_addc_u32 s89, s89, 0")
    k(f"s_add_u32 s87, s2, {slot}")
    k("s_lshl_b32 s87, s87, 7")
    k("v_mov_b32 v8, s87")
    k(f"v_cmp_eq_u32 vcc, {tid}, v0" if tid <= 64 else f"v_cmp_eq_u32 vcc, {hex(tid)}, v0")
    k("s_and_saveexec_b64 s[86:87], vcc")
    k(f"s_cbranch_execz L_{tag}_nostamp{sfx}")
    for i in range(0, NMARK, 2):
        for j in range(4): k(f"v_mov_b32 v{4+j}, s{64+2*i+j}")
        k(f"global_store_dwordx4 v8, v[4:7], s[88:89] offset:{8*i}")
        k("s_nop 1")
    k("v_mov_b32 v4, s94"); k("v_mov_b32 v5, s95"); k("v_mov_b32 v6, s84"); k("v_mov_b32 v7, s85")
    k("global_store_dwordx4 v8, v[4:7], s[88:89] offset:64")
    k("s_getreg_b32 s84, hwreg(HW_REG_XCC_ID, 0, 4)")
    k("s_nop 1")
    k("v_mov_b32 v4, s84")
    k("global_store_dword v8, v4, s[88:89] offset:80")
    k(f"L_{tag}_nostamp{sfx}:")

MF32 = 'v_mfma_f32_32x32x16_bf16'

CODEPF = 1
W1PF = 0
W1PF0 = 0
W1L2 = 0
ST_FLAGS = ''
ST_ALL = ''
ST_P1 = 'sc1'
ST_P2 = 'sc1'
ST_P3 = 'sc1'
ST_G1 = 'sc1'
ST_G2 = 'nt'
OUT_TOUCH = 0
def code_prefetch(k, tag, first_label, last_label, vtmp, stmp, nwaves_cond=None):
    if not CODEPF: return
    k(f"s_getpc_b64 s[{stmp}:{stmp+1}]")
    k(f"L_{tag}_pc:")
    k(f"s_add_u32 s{stmp}, s{stmp}, {first_label}-L_{tag}_pc")
    k(f"s_addc_u32 s{stmp+1}, s{stmp+1}, 0")

WS_BASE = 0
def srd(k, s, base, size, off=0):
    if base == 26: off += WS_BASE
    if off:
        k(f"s_add_u32 s{s}, s{base}, {hex(off)}")
        k(f"s_addc_u32 s{s+1}, s{base+1}, 0")
    else:
        k(f"s_mov_b32 s{s}, s{base}")
        k(f"s_mov_b32 s{s+1}, s{base+1}")
    k(f"s_mov_b32 s{s+2}, {hex(size)}")
    k(f"s_mov_b32 s{s+3}, 0x20000")

SEQ = [(r, c) for r in range(4) for c in range(4)]

def rot_setup(k, vA, t):
    k(f"v_mul_f32 v{t+4}, {f32(5.0)}, v{vA}")
    k(f"v_cos_f32 v{t}, v{vA}")
    k(f"v_sin_f32 v{t+1}, v{vA}")
    k(f"v_cos_f32 v{t+2}, v{t+4}")
    k(f"v_sin_f32 v{t+3}, v{t+4}")

def rot(k, dst, src, st, tmp, sign):
    k(f"v_pk_mul_f32 {vr(tmp,2)}, {vr(src,2)}, {vr(st,2)} op_sel_hi:[1,0]")
    neg = "neg_lo:[0,1,0]" if sign > 0 else "neg_hi:[0,1,0]"
    k(f"v_pk_fma_f32 {vr(dst,2)}, {vr(src,2)}, {vr(st,2)}, {vr(tmp,2)} op_sel:[1,1,0] op_sel_hi:[0,1,1] {neg}")

def gen_matrix(k, Mr, Mi, vA, vB, t):
    rot_setup(k, vA, t)
    cur = [t+6, t+8]
    k(f"v_cos_f32 v{cur[0]}, v{vB}")
    k(f"v_sin_f32 v{cur[0]+1}, v{vB}")
    k("s_nop 0")
    for i, (r, c) in enumerate(SEQ):
        a_, b_ = cur[i % 2], cur[(i+1) % 2]
        if i < 15: rot(k, b_, a_, t+2 if c == 3 else t, t+4, +1)
        k(f"{CVT} v{Mr+i}, v{a_}, v{a_+1}")
        k(f"{CVT} v{Mi+i}, -v{a_+1}, v{a_}")

def gen_twiddle(k, tw, vA, vB, t, scale=None):
    rot_setup(k, vA, t)
    k(f"v_cos_f32 v{tw}, v{vB}")
    k(f"v_sin_f32_e64 v{tw+1}, -v{vB}")
    if scale is not None:
        k(f"v_mul_f32 v{tw}, {f32(scale)}, v{tw}")
        k(f"v_mul_f32 v{tw+1}, {f32(scale)}, v{tw+1}")
    else: k("s_nop 0")
    for i, (r, c) in enumerate(SEQ):
        if i < 15: rot(k, tw+2*(i+1), tw+2*i, t+2 if c == 3 else t, t+4, -1)

def stage(k, typ, Dr, Di, data, Mr, Mi, first=True):
    for r in range(4):
        for (Dx, M) in ((Dr, Mr), (Di, Mi)):
            c = '0' if (r == 0 and first) else vr(Dx, 16)
            if typ == 'A': k(f"{MF32} {vr(Dx,16)}, {vr(data+4*r,4)}, {vr(M+4*r,4)}, {c}")
            else:          k(f"{MF32} {vr(Dx,16)}, {vr(M+4*r,4)}, {vr(data+4*r,4)}, {c}")

def cmul_pack(k, Dr, Di, w, out, t, conj=False):
    for j in range(16):
        o = t + 2*(j % 4); jp = j & ~1; x = j & 1
        k(f"v_pk_mul_f32 {vr(o,2)}, {vr(w+2*j,2)}, {vr(Dr+jp,2)} op_sel:[0,{x}] op_sel_hi:[1,{x}]")
        k(f"v_pk_fma_f32 {vr(o,2)}, {vr(w+2*j,2)}, {vr(Di+jp,2)}, {vr(o,2)} op_sel:[1,{x},0] op_sel_hi:[0,{x},1] neg_lo:[1,0,0]")
        if j >= 1:
            po = t + 2*((j-1) % 4); n = '-' if conj else ''
            k(f"{CVT} v{out+j-1}, v{po}, {n}v{po+1}")
    po = t + 2*(15 % 4); n = '-' if conj else ''
    k(f"{CVT} v{out+15}, v{po}, {n}v{po+1}")

def wave_reduce2(k, a, b):
    for m in ("quad_perm:[1,0,3,2] row_mask:0xf", "quad_perm:[2,3,0,1] row_mask:0xf", "row_half_mirror row_mask:0xf",
              "row_mirror row_mask:0xf", "row_bcast:15 row_mask:0xa", "row_bcast:31 row_mask:0xc"):
        k(f"v_add_f32_dpp v{a}, v{a}, v{a} {m} bank_mask:0xf")
        k(f"v_add_f32_dpp v{b}, v{b}, v{b} {m} bank_mask:0xf")

def tree_sum(k, X, n, t, op='add'):
    acc = [t, t+2, t+4, t+6]
    for i in range(4):
        k(f"v_pk_add_f32 {vr(acc[i],2)}, {vr(X+2*i,2)}, {vr(X+2*(i+4),2)}")
    for i in range(8, n):
        k(f"v_pk_add_f32 {vr(acc[i%4],2)}, {vr(acc[i%4],2)}, {vr(X+2*i,2)}")
    k(f"v_pk_add_f32 {vr(acc[0],2)}, {vr(acc[0],2)}, {vr(acc[1],2)}")
    k(f"v_pk_add_f32 {vr(acc[2],2)}, {vr(acc[2],2)}, {vr(acc[3],2)}")
    k(f"v_pk_add_f32 {vr(acc[0],2)}, {vr(acc[0],2)}, {vr(acc[2],2)}")

def ln_scalars(k, t):
    k(f"v_mul_f32 v{t}, {f32(1/1024)}, v{t}")
    k(f"v_mul_f32 v{t+1}, {f32(1/1024)}, v{t+1}")
    if EMU_LN:
        k(f"{CVT} v{t+2}, v{t}, v{t+1}")
        k(f"v_lshlrev_b32 v{t}, 16, v{t+2}")
        k(f"v_and_b32 v{t+1}, 0xffff0000, v{t+2}")
    k(f"v_add_f32 v{t}, {f32(1e-5)}, v{t}")
    k(f"v_add_f32 v{t+1}, {f32(1e-5)}, v{t+1}")
    if EMU_LN:
        k(f"{CVT} v{t+2}, v{t}, v{t+1}")
        k(f"v_lshlrev_b32 v{t}, 16, v{t+2}")
        k(f"v_and_b32 v{t+1}, 0xffff0000, v{t+2}")
        k(f"v_sqrt_f32 v{t}, v{t}")
        k(f"v_sqrt_f32 v{t+1}, v{t+1}")
        k(f"s_nop 0")
        k(f"{CVT} v{t+2}, v{t}, v{t+1}")
        k(f"v_lshlrev_b32 v{t}, 16, v{t+2}")
        k(f"v_and_b32 v{t+1}, 0xffff0000, v{t+2}")
        k(f"v_rcp_f32 v{t}, v{t}")
        k(f"v_rcp_f32 v{t+1}, v{t+1}")
    else:
        k(f"v_rsq_f32 v{t}, v{t}")
        k(f"v_rsq_f32 v{t+1}, v{t+1}")
    k(f"s_nop 0")
    k(f"v_mul_f32 v{t+12}, v{t+12}, v{t}")
    k(f"v_mul_f32 v{t+13}, v{t+13}, v{t+1}")

def ln_mean(k, t, sTmp):
    k(f"v_mul_f32 v{t}, {f32(1/1024)}, v{t}")
    k(f"v_mul_f32 v{t+1}, {f32(1/1024)}, v{t+1}")
    if EMU_LN:
        k(f"{CVT} v{t+2}, v{t}, v{t+1}")
        k(f"v_readlane_b32 s{sTmp}, v{t}, 63")
        k(f"v_readlane_b32 s{sTmp+1}, v{t+1}, 63")
        k(f"v_lshlrev_b32 v{t+12}, 16, v{t+2}")
        k(f"v_and_b32 v{t+13}, 0xffff0000, v{t+2}")
    else:
        k(f"v_mov_b32 v{t+12}, v{t}")
        k(f"v_mov_b32 v{t+13}, v{t+1}")
        k(f"v_readlane_b32 s{sTmp}, v{t}, 63")
        k(f"v_readlane_b32 s{sTmp+1}, v{t+1}, 63")

def ln_stats_xrow(k, X, t, sM, sR, sTmp):
    tree_sum(k, X, 16, t)
    wave_reduce2(k, t, t+1)
    ln_mean(k, t, sTmp)
    acc = [t, t+2]; tmp = [t+4, t+6, t+8, t+10]
    for i in range(16):
        d = tmp[i % 4]
        k(f"v_pk_add_f32 {vr(d,2)}, {vr(X+2*i,2)}, {sr(sTmp,2)} neg_lo:[0,1] neg_hi:[0,1]")
        a = acc[i % 2]
        if i < 2: k(f"v_pk_mul_f32 {vr(a,2)}, {vr(d,2)}, {vr(d,2)}")
        else:     k(f"v_pk_fma_f32 {vr(a,2)}, {vr(d,2)}, {vr(d,2)}, {vr(a,2)}")
    k(f"v_pk_add_f32 {vr(t,2)}, {vr(t,2)}, {vr(t+2,2)}")
    wave_reduce2(k, t, t+1)
    ln_scalars(k, t)
    k(f"v_readlane_b32 s{sR}, v{t}, 63")
    k(f"v_readlane_b32 s{sR+1}, v{t+1}, 63")
    k(f"v_readlane_b32 s{sM}, v{t+12}, 63")
    k(f"v_readlane_b32 s{sM+1}, v{t+13}, 63")

def gen_p1():
    k = Kern('p1_kernel')
    k("s_cmp_ge_u32 s2, 256")
    k("s_cbranch_scc1 L_p1_end")
    stamp_begin(k)
    k("s_load_dwordx4 s[4:7], s[0:1], 0")
    k("s_load_dwordx2 s[24:25], s[0:1], 16")
    k("s_load_dwordx2 s[60:61], s[0:1], 32")
    k("s_load_dwordx2 s[26:27], s[0:1], 80")
    TID, LANE = 0, 1
    if CODEPF:
        k("s_getpc_b64 s[52:53]")
        k("L_p1_pc:")
        k("s_sub_u32 s52, s52, L_p1_pc-p1_kernel")
        k("s_subb_u32 s53, s53, 0")
        k("v_lshlrev_b32 v210, 7, v0")
        k("v_mov_b32 v211, s53")
        k("v_add_co_u32 v210, vcc, s52, v210")
        k("v_addc_co_u32 v211, vcc, 0, v211, vcc")
        k("v_cmp_gt_u32 vcc, (L_p1_endc-p1_kernel+127)/128, v0")
        k("s_and_saveexec_b64 s[54:55], vcc")
        k("s_cbranch_execz L_p1_cp0")
        k("global_load_dword v212, v[210:211], off")
        k("L_p1_cp0:")
        k("s_mov_b64 exec, -1")
        k("s_bfe_u32 s54, s2, 0x10003")
        k("s_lshl_b32 s54, s54, 15")
        k("s_add_u32 s54, s54, L_p1_endc-p1_kernel")
        k("v_add_co_u32 v210, vcc, s54, v210")
        k("v_addc_co_u32 v211, vcc, 0, v211, vcc")
        k("v_lshlrev_b32 v213, 7, v0")
        k("v_add_u32 v213, s54, v213")
        k("v_cmp_gt_u32 vcc, L_text_end-p1_kernel, v213")
        k("s_and_saveexec_b64 s[54:55], vcc")
        k("s_cbranch_execz L_p1_cp1")
        k("global_load_dword v212, v[210:211], off")
        k("L_p1_cp1:")
        k("s_mov_b64 exec, -1")
    k("v_and_b32 v1, 63, v0")
    k("v_lshrrev_b32 v2, 6, v0")
    k("v_readfirstlane_b32 s28, v2")
    k("s_lshr_b32 s29, s2, 5")
    k("s_lshl_b32 s29, s29, 2")
    k("s_and_b32 s30, s2, 31")
    k("s_add_u32 s31, s29, s28")
    k("s_lshl_b32 s31, s31, 5")
    k("s_add_u32 s31, s31, s30")
    k("s_lshl_b32 s31, s31, 11")
    k("s_add_u32 s32, s31, 0x200000")
    k("s_waitcnt lgkmcnt(0)")
    srd(k, 8, 4, S*D*2)
    srd(k, 12, 6, S*513*2)
    srd(k, 16, 24, S*513*2)
    srd(k, 20, 26, 257*16384, ZD_OFF)
    srd(k, 72 if False else 52, 26, 257*16384, WB_OFF) if False else None
    XL = 4
    if FUSE_GG:
        srd(k, 56, 26, 1024, BAR_OFF)
        k("s_cmp_lt_u32 s2, 8")
        k("s_cbranch_scc0 L_p1_nozb")
        k("s_lshl_b32 s33, s2, 7")
        k("v_mov_b32 v2, 0")
        k("v_cmp_eq_u32 vcc, 0, v0")
        k("s_and_saveexec_b64 s[34:35], vcc")
        k("s_cbranch_execz L_p1_nozb")
        k("buffer_store_dword v2, v2, s[56:59], s33 offen sc0 sc1")
        k("L_p1_nozb:")
        k("s_mov_b64 exec, -1")
    k("v_lshlrev_b32 v2, 4, v1")
    k(f"buffer_load_dwordx4 {vr(XL,4)}, v2, s[8:11], s31 offen {NT_X}")
    k(f"buffer_load_dwordx4 {vr(XL+4,4)}, v2, s[8:11], s31 offen offset:1024 {NT_X}")
    k(f"buffer_load_dwordx4 {vr(XL+8,4)}, v2, s[8:11], s32 offen {NT_X}")
    k(f"buffer_load_dwordx4 {vr(XL+12,4)}, v2, s[8:11], s32 offen offset:1024 {NT_X}")
    WL = 20
    Mr, Mi, TW = 36, 52, 68
    XF, DR, DI, OP, T = 100, 132, 148, 164, 180
    k("v_and_b32 v2, 31, v1")
    k("v_cvt_f32_u32 v2, v2")
    k("v_lshrrev_b32 v3, 5, v1")
    k("v_lshlrev_b32 v3, 2, v3")
    k("v_cvt_f32_u32 v3, v3")
    k(f"v_mul_f32 v204, {f32(1/32)}, v2")
    k("v_mul_f32 v205, v204, v3")
    gen_matrix(k, Mr, Mi, 204, 205, T)
    k(f"v_mul_f32 v204, {f32(1/1024)}, v2")
    k("v_mul_f32 v205, v204, v3")
    gen_twiddle(k, TW, 204, 205, T)
    STG = 16384; WST = STG + 257*64 + 64
    k("s_lshr_b32 s44, s2, 2")
    k("s_and_b32 s44, s44, 3")
    k("s_mov_b32 s45, 0x05040100")
    k("s_mov_b32 s46, 0x07060302")
    k("s_lshl_b32 s47, s2, 6")
    k("s_lshl_b32 s48, s28, 2")
    k(f"s_add_u32 s48, s48, {STG}")
    B1, B2, AWJ, AX, ARD, AGL, AT1, AT2, AWR, AWG = 206, 207, 208, 209, 216, 217, 218, 219, 221, 222
    k("v_and_b32 v2, 31, v1")
    k("v_lshrrev_b32 v3, 5, v1")
    k("v_and_b32 v204, 1, v2")
    k("v_lshrrev_b32 v205, 1, v2")
    k(f"v_xor_b32 v{B1}, s44, v204")
    k(f"v_lshlrev_b32 v{B1}, 4, v{B1}")
    k(f"v_lshl_add_u32 v{B1}, v205, 6, v{B1}")
    k(f"v_lshl_add_u32 v{B1}, v3, 12, v{B1}")
    k(f"v_add_u32 v{B1}, s48, v{B1}")
    k("v_add_u32 v205, 1, v2")
    k("v_lshrrev_b32 v205, 1, v205")
    k("v_add_u32 v204, 2, v204")
    k(f"v_xor_b32 v{B2}, s44, v204")
    k(f"v_lshlrev_b32 v{B2}, 4, v{B2}")
    k("v_lshlrev_b32 v205, 6, v205")
    k(f"v_sub_u32 v{B2}, v{B2}, v205")
    k("v_lshlrev_b32 v205, 12, v3")
    k(f"v_sub_u32 v{B2}, v{B2}, v205")
    k(f"v_add_u32 v{B2}, s48, v{B2}")
    k("s_lshl_b32 s49, s28, 12")
    k(f"s_add_u32 s49, s49, {WST}")
    k("v_bfe_u32 v204, v1, 1, 2")
    k("v_xor_b32 v204, s44, v204")
    k("v_lshlrev_b32 v204, 4, v204")
    k(f"v_lshl_add_u32 v{AWJ}, v1, 6, v204")
    k(f"v_add_u32 v{AWJ}, s49, v{AWJ}")
    k("v_lshrrev_b32 v204, 2, v1")
    k("v_and_b32 v205, 3, v1")
    k(f"v_bfe_u32 v{AT1}, v204, 1, 2")
    k(f"v_xor_b32 v{AT1}, v{AT1}, v205")
    k(f"v_lshlrev_b32 v{AT1}, 4, v{AT1}")
    k(f"v_lshl_add_u32 v{AWR}, v204, 6, v{AT1}")
    k(f"v_add_u32 v{AWR}, s49, v{AWR}")
    k("s_lshl_b32 s49, s28, 6")
    k("v_add_u32 v204, s49, v204")
    k("v_lshlrev_b32 v204, 14, v204")
    k(f"v_lshl_add_u32 v{AWG}, v205, 4, v204")
    k("v_bfe_u32 v204, v1, 2, 1")
    k("v_xor_b32 v204, s44, v204")
    k("v_lshlrev_b32 v204, 4, v204")
    k("v_and_b32 v205, 3, v1")
    k(f"v_lshl_add_u32 v{AX}, v205, 2, v204")
    APW = 223
    k(f"v_add_u32 v{APW}, {WST}, v{AX}")
    k(f"v_lshlrev_b32 v{ARD}, 4, v0")
    k(f"v_add_u32 v{ARD}, {STG}, v{ARD}")
    k("v_lshrrev_b32 v204, 2, v0")
    k("v_lshlrev_b32 v204, 14, v204")
    k("v_and_b32 v205, 3, v0")
    k(f"v_lshl_add_u32 v{AGL}, v205, 4, v204")
    k("s_xor_b32 s49, s44, 2")
    k("s_lshl_b32 s49, s49, 4")
    k("s_add_u32 s49, s49, s48")
    k("s_lshl_b32 s50, s44, 4")
    k("s_add_u32 s50, s50, s48")
    k(f"v_mov_b32 v{AT1}, s49")
    k(f"v_mov_b32 v{AT2}, s50")
    k("s_lshl_b32 s36, s28, 12")
    k("v_lshlrev_b32 v2, 5, v1")
    k("v_add_u32 v2, s36, v2")
    k("v_and_b32 v3, 31, v1")
    k("v_lshlrev_b32 v3, 2, v3")
    k("v_lshrrev_b32 v204, 5, v1")
    k("v_lshlrev_b32 v204, 9, v204")
    k("v_add3_u32 v3, v3, v204, s36")
    k("s_mov_b32 s35, 0xffff0000")
    mark(k, 1)
    k("s_waitcnt vmcnt(0)")
    mark(k, 2)
    k("v_lshlrev_b32 v220, 2, v0")
    k("s_lshl_b32 s33, s29, 6")
    k("s_lshl_b32 s34, s30, 1")
    k("s_add_u32 s33, s33, s34")
    k("s_mul_i32 s33, s33, 1026")
    for pi in range(2):
        for cc in range(4):
            off = (64*cc + pi)*1026
            k(f"s_add_u32 s34, s33, {off}")
            k(f"buffer_load_dword v{WL+4*pi+cc}, v220, s[12:15], s34 offen {NT_W}")
            k(f"buffer_load_dword v{WL+8+4*pi+cc}, v220, s[16:19], s34 offen {NT_W}")
    WX = 200
    k("v_and_b32 v200, 3, v1")
    k("v_lshlrev_b32 v200, 6, v200")
    k("v_bfe_u32 v201, v1, 2, 1")
    k("v_add_u32 v200, v200, v201")
    k("v_mul_u32_u24 v200, 1026, v200")
    k("v_add_u32 v200, 1024, v200")
    k("v_and_b32 v226, 3, v1")
    k("v_lshlrev_b32 v226, 6, v226")
    k("v_add_u32 v226, v226, v201")
    k("s_lshl_b32 s49, s29, 6")
    k("s_lshl_b32 s50, s30, 1")
    k("s_add_u32 s49, s49, s50")
    k("v_add_u32 v226, s49, v226")
    k("v_sub_u32 v226, 2048, v226")
    k("v_and_b32 v226, 2047, v226")
    k("v_mul_u32_u24 v226, 1026, v226")
    k("v_subrev_u32 v227, 1024, v200")
    k("v_cmp_gt_u32 vcc, 8, v0")
    k("s_and_saveexec_b64 s[36:37], vcc")
    k("s_cbranch_execz L_p1_nox")
    k("buffer_load_ushort v202, v200, s[12:15], s33 offen")
    k("buffer_load_ushort v203, v200, s[16:19], s33 offen")
    k("buffer_load_ushort v228, v227, s[12:15], s33 offen")
    k("buffer_load_ushort v229, v227, s[16:19], s33 offen")
    k("buffer_load_ushort v230, v226, s[12:15], 0 offen")
    k("buffer_load_ushort v231, v226, s[16:19], 0 offen")
    k("buffer_load_ushort v232, v226, s[12:15], 0 offen offset:1024")
    k("buffer_load_ushort v233, v226, s[16:19], 0 offen offset:1024")
    k("L_p1_nox:")
    k("s_mov_b64 exec, -1")
    for i in range(16):
        for row in range(2):
            src = XL + 8*row + (i >> 1)
            if i % 2 == 0: k(f"v_lshlrev_b32 v{XF+2*i+row}, 16, v{src}")
            else:          k(f"v_and_b32 v{XF+2*i+row}, s35, v{src}")
    ln_stats_xrow(k, XF, T, 38, 40, 42)
    k(f"v_mov_b32 v{T+8}, s40"); k(f"v_mov_b32 v{T+9}, s41")
    k(f"v_mov_b32 v{T+10}, s38"); k(f"v_mov_b32 v{T+11}, s39")
    for i in range(16):
        d = T + 2*(i % 4)
        k(f"v_pk_fma_f32 {vr(d,2)}, {vr(XF+2*i,2)}, {vr(T+8,2)}, {vr(T+10,2)} neg_lo:[0,0,1] neg_hi:[0,0,1]")
        k(f"{CVT} v{OP+i}, v{d}, v{d+1}")
    k(f"ds_write_b128 v2, {vr(OP,4)}")
    k(f"ds_write_b128 v2, {vr(OP+4,4)} offset:16")
    k(f"ds_write_b128 v2, {vr(OP+8,4)} offset:2048")
    k(f"ds_write_b128 v2, {vr(OP+12,4)} offset:2064")
    k("s_waitcnt lgkmcnt(0)")
    for i, (r, c) in enumerate(SEQ):
        k(f"ds_read_b32 v{OP+i}, v3 offset:{(8*r+c)*128}")
    mark(k, 3)
    k("s_waitcnt lgkmcnt(0)")
    stage(k, 'A', DR, DI, OP, Mr, Mi)
    srd(k, 56, 26, 257*16384, WB_OFF)
    k("s_waitcnt vmcnt(0)")
    WO = XF
    for e in range(2):
        for pi in range(2):
            for cc in range(4):
                k(f"v_perm_b32 v{WO+4*(2*e+pi)+cc}, v{WL+8+4*pi+cc}, v{WL+4*pi+cc}, s{45+e}")
    for sl in range(4):
        if sl: k(f"v_xor_b32 v204, {16*sl}, v{AWJ}")
        k(f"ds_write_b128 v{204 if sl else AWJ}, {vr(WO+4*sl,4)}")
    k("s_add_u32 s49, s47, 0x400000")
    k("v_cmp_gt_u32 vcc, 8, v0")
    k("s_and_saveexec_b64 s[36:37], vcc")
    k("s_cbranch_execz L_p1_nox2")
    for r_ in (202, 203, 228, 229, 230, 231, 232, 233): k(f"v_lshlrev_b32 v{r_}, 16, v{r_}")
    k("v_add_f32 v228, v228, v230")
    k("v_sub_f32 v229, v229, v231")
    k("v_add_f32 v202, v202, v232")
    k("v_sub_f32 v203, v203, v233")
    k("v_add_f32 v230, v228, v202")
    k("v_add_f32 v231, v229, v203")
    k("v_sub_f32 v232, v228, v202")
    k("v_sub_f32 v233, v229, v203")
    for r_ in (230, 231, 232, 233): k(f"v_mul_f32 v{r_}, 0x3e800000, v{r_}")
    k(f"{CVT} v202, v230, v231")
    k(f"{CVT} v203, v232, v233")
    k(f"ds_write_b32 v{APW}, v202")
    k(f"buffer_store_dword v203, v{AX}, s[56:59], s49 offen {ST_P1}")
    k("L_p1_nox2:")
    k("s_mov_b64 exec, -1")
    k("s_waitcnt lgkmcnt(0)")
    for j in range(4): k(f"ds_read_b128 {vr(WO+16+4*j,4)}, v{AWR} offset:{1024*j}")
    k("s_mov_b32 s49, s47")
    for j in range(4):
        k(f"s_waitcnt lgkmcnt({3-j})")
        k(f"buffer_store_dwordx4 {vr(WO+16+4*j,4)}, v{AWG}, s[56:59], s49 offen {ST_P1}")
        if j < 3: k(f"s_add_u32 s49, s49, {16*16384}")
    cmul_pack(k, DR, DI, TW, OP, T)
    stage(k, 'B', DR, DI, OP, Mr, Mi)
    mark(k, 4)
    for i, (r, c) in enumerate(SEQ):
        if r < 2: k(f"{CVT} v{OP+i}, v{DR+i}, v{DI+i}")
        else:     k(f"{CVT} v{OP+i}, v{DI+i}, v{DR+i}")
        if r < 2: k(f"ds_write_b32 v{B1}, v{OP+i} offset:{(8*r+c)*1024}")
        else:     k(f"ds_write_b32 v{B2}, v{OP+i} offset:{(32-8*r-c)*1024}")
    k(f"v_sub_f32 v{T+2}, v{DR}, v{DI+8}")
    k(f"v_add_f32 v{T+3}, v{DI}, v{DR+8}")
    k(f"v_sub_f32 v{T+4}, v{DI}, v{DR+8}")
    k(f"v_add_f32 v{T+5}, v{DR}, v{DI+8}")
    k(f"{CVT} v{T}, v{T+4}, v{T+5}")
    k(f"{CVT} v{T+1}, v{T+2}, v{T+3}")
    k("s_mov_b64 exec, 1")
    k(f"ds_write_b32 v{AT1}, v{T}")
    k(f"ds_write_b32 v{AT2}, v{T+1}")
    k("s_mov_b64 exec, -1")
    k("s_waitcnt lgkmcnt(0)")
    k("s_barrier")
    RO = XF
    for j in range(4):
        k(f"ds_read_b128 {vr(RO+4*j,4)}, v{ARD} offset:{4096*j}")
    for j in range(4):
        k(f"s_waitcnt lgkmcnt({3-j})")
        k(f"buffer_store_dwordx4 {vr(RO+4*j,4)}, v{AGL}, s[20:23], s47 offen {ST_P1}")
        if j < 3: k("s_add_u32 s47, s47, 0x100000")
    stamp_end(k, 'p1')
    k("L_p1_end:")
    k("s_endpgm")
    k("L_p1_endc:")
    return k, 236, WST + 16384

def pf_wave(k, tag, first_line):
    if not W1PF: return
    k("s_cmp_eq_u32 s28, 4")
    k(f"s_cbranch_scc0 L_{tag}_nopf")
    k("s_waitcnt lgkmcnt(0)")
    srd(k, 16, 24, S*F*2)
    k(f"s_mul_i32 s33, s2, {W1PF*128}")
    k(f"s_add_u32 s33, s33, {first_line*128}")
    k("v_lshlrev_b32 v3, 7, v1")
    for i in range(W1PF//64):
        k("buffer_load_dword v4, v3, s[16:19], s33 offen")
        k("s_add_u32 s33, s33, 8192")
    k("s_endpgm")
    k(f"L_{tag}_nopf:")

def gen_p2():
    k = Kern('p2_kernel')
    k("s_cmp_ge_u32 s2, 256")
    k("s_cbranch_scc1 L_p2_end")
    stamp_begin(k)
    k("s_load_dwordx2 s[26:27], s[0:1], 80")
    k("s_load_dwordx2 s[24:25], s[0:1], 32")
    k("v_and_b32 v1, 63, v0")
    k("v_lshrrev_b32 v2, 6, v0")
    k("v_readfirstlane_b32 s28, v2")
    pf_wave(k, 'p2', W1PF0)
    k("v_lshlrev_b32 v2, 4, v1")
    k("s_lshr_b32 s29, s28, 1")
    k("s_and_b32 s30, s28, 1")
    k("s_lshl_b32 s31, s2, 14")
    k("s_lshl_b32 s32, s28, 12")
    k("s_add_u32 s31, s31, s32")
    k("s_waitcnt lgkmcnt(0)")
    srd(k, 8, 26, 257*16384, ZD_OFF)
    srd(k, 20, 26, 257*16384, WB_OFF)
    srd(k, 12, 26, 256*VB_BLK, VB_OFF)
    for i in range(4):
        k(f"s_add_u32 m0, s32, {1024*i}")
        k(f"s_add_u32 s33, s31, {1024*i}")
        k(f"buffer_load_dwordx4 v2, s[8:11], s33 offen lds")
    Z1, Z2 = 4, 20
    M1r, M1i, MFr, MFi, MIr, MIi = 36, 52, 68, 84, 100, 116
    T1, T2 = 132, 164
    DR, DI, T = 196, 212, 228
    A, B, J, H4, PI = 244, 245, 246, 247, 248
    k(f"v_and_b32 v{J}, 31, v1")
    k(f"v_cvt_f32_u32 v{J}, v{J}")
    k(f"v_lshrrev_b32 v{H4}, 5, v1")
    k(f"v_lshlrev_b32 v{H4}, 2, v{H4}")
    k(f"v_cvt_f32_u32 v{H4}, v{H4}")
    k(f"v_mov_b32 v{PI}, s30")
    k(f"v_cvt_f32_u32 v{PI}, v{PI}")
    k(f"v_mul_f32 v{A}, {f32(1/32)}, v{J}")
    k(f"v_mul_f32 v{B}, v{A}, v{H4}")
    gen_matrix(k, MFr, MFi, A, B, T)
    k(f"v_fma_f32 v{A}, v{J}, 2.0, v{PI}")
    k(f"v_mul_f32 v{A}, {f32(1/64)}, v{A}")
    k(f"v_mul_f32 v{B}, v{A}, v{H4}")
    gen_matrix(k, M1r, M1i, A, B, T)
    k("s_lshl_b32 s33, s30, 4")
    k(f"v_and_b32 v{T}, 31, v1")
    k(f"v_xor_b32 v{T}, s33, v{T}")
    k(f"v_cvt_f32_u32 v{T}, v{T}")
    k(f"v_mul_f32 v{A}, {f32(1/32)}, v{T}")
    k(f"v_mul_f32 v{B}, v{A}, v{H4}")
    k(f"v_mul_f32 v{T}, {f32(1/64)}, v{T}")
    k(f"v_fma_f32 v{B}, v{T}, v{PI}, v{B}")
    gen_matrix(k, MIr, MIi, A, B, T)
    k(f"v_fma_f32 v{A}, v{J}, 2.0, v{PI}")
    k(f"v_mul_f32 v{A}, {f32(1/2048)}, v{A}")
    k(f"v_mov_b32 v{T}, {f32(0.125)}")
    k(f"v_mul_f32 v{T+1}, {f32(-0.25)}, v{PI}")
    k(f"v_add_f32 v{T}, v{T}, v{T+1}")
    k(f"v_fma_f32 v{B}, v{A}, v{H4}, v{T}")
    gen_twiddle(k, T1, A, B, T)
    k(f"v_mul_f32 v{A}, {f32(1/1024)}, v{J}")
    k(f"v_mul_f32 v{B}, v{A}, v{H4}")
    k(f"v_mul_f32 v{T}, {f32(1/2048)}, v{J}")
    k(f"v_fma_f32 v{B}, v{T}, v{PI}, v{B}")
    gen_twiddle(k, T2, A, B, T)
    AZ1, AZ2, AW = 249, 250, 251
    k(f"v_bfe_u32 v{T}, v1, 2, 2")
    k(f"v_lshlrev_b32 v{T+1}, 6, v1")
    k(f"v_xor_b32 v{AZ1}, s29, v{T}")
    k(f"v_lshl_add_u32 v{AZ1}, v{AZ1}, 4, v{T+1}")
    k(f"v_xor_b32 v{AZ2}, 32, v{AZ1}")
    k("s_lshl_b32 s33, s29, 1")
    k("s_add_u32 s33, s33, s30")
    k(f"v_xor_b32 v{AW}, s33, v{T}")
    k(f"v_lshl_add_u32 v{AW}, v{AW}, 4, v{T+1}")
    k(f"v_add_u32 v{AW}, 16384, v{AW}")
    k("s_mul_i32 s34, s30, 0x80008000")
    k("s_mov_b32 s35, 0xffff0000")
    mark(k, 1)
    k("s_waitcnt vmcnt(0)")
    for i in range(4):
        k(f"s_add_u32 m0, s32, {16384+1024*i}")
        k(f"s_add_u32 s33, s31, {1024*i}")
        k(f"buffer_load_dwordx4 v2, s[20:23], s33 offen lds")
    k("s_barrier")
    mark(k, 2)
    for r in range(4):
        k(f"ds_read_b128 {vr(Z1+4*r,4)}, v{AZ1} offset:{4096*r}")
        k(f"ds_read_b128 {vr(Z2+4*r,4)}, v{AZ2} offset:{4096*r}")
    k("s_waitcnt lgkmcnt(0)")
    for i in range(16):
        k(f"v_xor_b32 v{Z2+i}, s34, v{Z2+i}")
    stage(k, 'A', DR, DI, Z1, M1r, M1i, first=True)
    stage(k, 'A', DR, DI, Z2, M1r, M1i, first=False)
    OP = Z1
    cmul_pack(k, DR, DI, T1, OP, T)
    k("s_waitcnt vmcnt(0)")
    k("s_barrier")
    for r in range(4):
        k(f"ds_read_b128 {vr(Z2+4*r,4)}, v{AW} offset:{4096*r}")
    stage(k, 'B', DR, DI, OP, MFr, MFi)
    WP = M1r
    k("s_waitcnt lgkmcnt(0)")
    for i in range(16):
        k(f"v_lshlrev_b32 v{WP+2*i}, 16, v{Z2+i}")
        k(f"v_and_b32 v{WP+2*i+1}, s35, v{Z2+i}")
    k("s_or_b32 s46, s2, s29")
    k("s_cmp_eq_u32 s46, 0")
    k("s_cbranch_scc1 L_p2_spec")
    cmul_pack(k, DR, DI, WP, OP, T, conj=True)
    k("L_p2_specd:")
    stage(k, 'A', DR, DI, OP, MFr, MFi)
    cmul_pack(k, DR, DI, T2, OP, T)
    stage(k, 'B', DR, DI, OP, MIr, MIi)
    mark(k, 4)
    XCH, STG = 32768, 49152
    AX = 252
    k("s_lshl_b32 s36, s28, 12")
    k(f"s_add_u32 s36, s36, {XCH}")
    k(f"v_lshl_add_u32 v{AX}, v1, 4, s36")
    k(f"ds_write_b128 v{AX}, {vr(DR+8,4)}")
    k(f"ds_write_b128 v{AX}, {vr(DR+12,4)} offset:1024")
    k(f"ds_write_b128 v{AX}, {vr(DI+8,4)} offset:2048")
    k(f"ds_write_b128 v{AX}, {vr(DI+12,4)} offset:3072")
    k(f"v_xor_b32 v{AX}, 4096, v{AX}")
    k("s_cmp_eq_u32 s30, 0")
    k(f"s_cselect_b32 s40, {f32(1.0)}, {f32(-1.0)}")
    k("s_mov_b32 s42, s40")
    k("s_waitcnt lgkmcnt(0)")
    k("s_barrier")
    OR_, OI = 36, 44
    k(f"ds_read_b128 {vr(OR_,4)}, v{AX}")
    k(f"ds_read_b128 {vr(OR_+4,4)}, v{AX} offset:1024")
    k(f"ds_read_b128 {vr(OI,4)}, v{AX} offset:2048")
    k(f"ds_read_b128 {vr(OI+4,4)}, v{AX} offset:3072")
    k(f"v_bfe_u32 v{T}, v1, 1, 2")
    k(f"v_xor_b32 v{T+1}, s29, v{T}")
    k(f"v_xor_b32 v{T+2}, 2, v{T+1}")
    k("s_lshl_b32 s43, s30, 13")
    k(f"s_add_u32 s43, s43, {STG}")
    k(f"v_lshl_add_u32 v{T+3}, v1, 6, s43")
    k(f"v_lshl_add_u32 v253, v{T+1}, 4, v{T+3}")
    k(f"v_lshl_add_u32 v254, v{T+2}, 4, v{T+3}")
    k("s_waitcnt lgkmcnt(0)")
    UA, UB = 52, 60
    Ur, Ui, Er, Ei, Ar, Ai, Br, Bi = 68, 70, 72, 74, 76, 78, 80, 82
    bc = "op_sel_hi:[1,0,1]"
    k("s_cmp_eq_u32 s46, 0")
    k("s_cbranch_scc1 L_p2_spost")
    for j in range(0, 8, 2):
        o = 16*((j//2) % 2)
        ur, ui, er, ei, a_r, a_i, b_r, b_i = [x+o for x in (Ur, Ui, Er, Ei, Ar, Ai, Br, Bi)]
        k(f"v_pk_add_f32 {vr(ur,2)}, {vr(DR+j,2)}, {vr(OR_+j,2)}")
        k(f"v_pk_add_f32 {vr(ui,2)}, {vr(DI+j,2)}, {vr(OI+j,2)}")
        k(f"v_pk_add_f32 {vr(er,2)}, {vr(DR+j,2)}, {vr(OR_+j,2)} neg_lo:[0,1] neg_hi:[0,1]")
        k(f"v_pk_add_f32 {vr(ei,2)}, {vr(DI+j,2)}, {vr(OI+j,2)} neg_lo:[0,1] neg_hi:[0,1]")
        k(f"v_pk_fma_f32 {vr(a_r,2)}, {vr(ei,2)}, s[42:43], {vr(ur,2)} {bc}")
        k(f"v_pk_fma_f32 {vr(b_r,2)}, {vr(ei,2)}, s[42:43], {vr(ur,2)} {bc} neg_lo:[1,0,0] neg_hi:[1,0,0]")
        k(f"v_pk_fma_f32 {vr(a_i,2)}, {vr(er,2)}, s[40:41], {vr(ui,2)} {bc} neg_lo:[1,0,0] neg_hi:[1,0,0]")
        k(f"v_pk_fma_f32 {vr(b_i,2)}, {vr(er,2)}, s[40:41], {vr(ui,2)} {bc} neg_lo:[1,0,1] neg_hi:[1,0,1]")
        k(f"{CVT} v{UA+j}, v{a_r}, v{a_i}")
        k(f"{CVT} v{UA+j+1}, v{a_r+1}, v{a_i+1}")
        k(f"{CVT} v{UB+j}, v{b_r}, v{b_i}")
        k(f"{CVT} v{UB+j+1}, v{b_r+1}, v{b_i+1}")
    k("s_branch L_p2_postd")
    k("L_p2_spost:")
    for j in range(0, 8, 2):
        o = 16*((j//2) % 2)
        ur, ui, er, ei, a_r, a_i, b_r, b_i = [x+o for x in (Ur, Ui, Er, Ei, Ar, Ai, Br, Bi)]
        k(f"v_pk_add_f32 {vr(ur,2)}, {vr(DR+j,2)}, {vr(OR_+j,2)}")
        k(f"v_pk_add_f32 {vr(ui,2)}, {vr(DI+j,2)}, {vr(OI+j,2)}")
        k(f"v_pk_add_f32 {vr(er,2)}, {vr(DR+j,2)}, {vr(OR_+j,2)} neg_lo:[0,1] neg_hi:[0,1]")
        k(f"v_pk_add_f32 {vr(ei,2)}, {vr(DI+j,2)}, {vr(OI+j,2)} neg_lo:[0,1] neg_hi:[0,1]")
        k(f"v_pk_mul_f32 {vr(a_i,2)}, {vr(er,2)}, s[40:41] op_sel_hi:[1,0] neg_lo:[1,0] neg_hi:[1,0]")
        k(f"v_pk_mul_f32 {vr(b_i,2)}, {vr(ei,2)}, s[40:41] op_sel_hi:[1,0]")
        k(f"{CVT} v{UA+j}, v{ur}, v{a_i}")
        k(f"{CVT} v{UA+j+1}, v{ur+1}, v{a_i+1}")
        k(f"{CVT} v{UB+j}, -v{ui}, v{b_i}")
        k(f"{CVT} v{UB+j+1}, -v{ui+1}, v{b_i+1}")
    k("L_p2_postd:")
    for rl in range(2):
        k(f"ds_write_b128 v253, {vr(UA+4*rl,4)} offset:{4096*rl}")
        k(f"ds_write_b128 v254, {vr(UB+4*rl,4)} offset:{4096*rl}")
    k(f"v_and_b32 v{T}, 3, v0")
    k(f"v_bfe_u32 v{T+1}, v0, 3, 2")
    k(f"v_xor_b32 v{T+1}, v{T}, v{T+1}")
    k(f"v_lshrrev_b32 v{T+2}, 2, v0")
    k(f"v_lshlrev_b32 v{T+3}, 6, v{T+2}")
    k(f"v_lshl_add_u32 v{T+3}, v{T+1}, 4, v{T+3}")
    k(f"v_add_u32 v{T+3}, {STG}, v{T+3}")
    k(f"v_mul_u32_u24 v{T+2}, {VB_BLK}, v{T+2}")
    k("s_and_b32 s44, s2, 2")
    k(f"v_xor_b32 v{T}, s44, v{T}")
    k(f"v_lshl_add_u32 v{T+2}, v{T}, 4, v{T+2}")
    k("s_lshl_b32 s45, s2, 6")
    k("s_waitcnt lgkmcnt(0)")
    k("s_barrier")
    for j in range(4):
        k(f"ds_read_b128 {vr(4+4*j,4)}, v{T+3} offset:{4096*j}")
    k("s_waitcnt lgkmcnt(0)")
    for j in range(4):
        k(f"buffer_store_dwordx4 {vr(4+4*j,4)}, v{T+2}, s[12:15], s45 offen {ST_P2}")
        if j < 3: k(f"s_add_u32 s45, s45, {64*VB_BLK}")
    stamp_end(k, 'p2')
    k("L_p2_end:")
    k("s_endpgm")
    k("L_p2_spec:")
    QP = T1
    XB_ = Z2
    k(f"v_bfe_u32 v{T}, v1, 2, 2")
    k(f"v_xor_b32 v{T}, s30, v{T}")
    k(f"v_lshlrev_b32 v{T}, 4, v{T}")
    k(f"v_lshl_add_u32 v{T}, v1, 6, v{T}")
    k("s_mov_b32 s47, 0x400000")
    for r in range(4):
        k(f"buffer_load_dwordx4 {vr(XB_+4*r,4)}, v{T}, s[20:23], s47 offen")
        if r < 3: k("s_add_u32 s47, s47, 4096")
    k("s_lshl_b32 s47, s30, 13")
    k(f"v_and_b32 v{T+1}, 31, v1")
    k(f"v_lshrrev_b32 v{T+2}, 5, v1")
    k(f"v_lshlrev_b32 v{T+3}, 2, v{T+1}")
    k(f"v_lshl_add_u32 v{T+3}, v{T+2}, 10, v{T+3}")
    k(f"v_add_u32 v{T+3}, s47, v{T+3}")
    for i, (r, c) in enumerate(SEQ):
        k(f"ds_write_b32 v{T+3}, v{DR+i} offset:{(8*r+c)*256}")
        k(f"ds_write_b32 v{T+3}, v{DI+i} offset:{(8*r+c)*256+128}")
    k(f"v_add_u32 v{T+4}, s30, v{T+1}")
    k(f"v_sub_u32 v{T+5}, 32, v{T+4}")
    k(f"v_lshlrev_b32 v{T+5}, 2, v{T+5}")
    k(f"v_cmp_eq_u32 vcc, 0, v{T+4}")
    k(f"v_mov_b32 v{T+6}, 256")
    k(f"v_cndmask_b32 v{T+5}, v{T+5}, v{T+6}, vcc")
    k(f"v_lshlrev_b32 v{T+6}, 10, v{T+2}")
    k(f"v_sub_u32 v{T+5}, v{T+5}, v{T+6}")
    k(f"v_add_u32 v{T+5}, 1024, v{T+5}")
    k(f"v_add_u32 v{T+5}, s47, v{T+5}")
    k(f"v_add_u32 v{T+6}, {27*256}, v{T+5}")
    k(f"v_or_b32 v{T+7}, v{T+4}, v{T+2}")
    k(f"v_cmp_eq_u32 vcc, 0, v{T+7}")
    k(f"v_mov_b32 v{T+7}, s47")
    k(f"v_cndmask_b32 v{T+6}, v{T+6}, v{T+7}, vcc")
    k("s_waitcnt vmcnt(0)")
    for i in range(16):
        k(f"v_lshlrev_b32 v{QP+2*i}, 16, v{XB_+i}")
        k(f"v_and_b32 v{QP+2*i+1}, s35, v{XB_+i}")
    k("s_waitcnt lgkmcnt(0)")
    for half in range(2):
        for jj in range(8):
            i = 8*half + jj; r, c = SEQ[i]
            if i == 0:
                k(f"ds_read_b32 v{XB_+2*jj}, v{T+6}")
                k(f"ds_read_b32 v{XB_+2*jj+1}, v{T+6} offset:128")
            else:
                k(f"ds_read_b32 v{XB_+2*jj}, v{T+5} offset:{(27-8*r-c)*256}")
                k(f"ds_read_b32 v{XB_+2*jj+1}, v{T+5} offset:{(27-8*r-c)*256+128}")
        k("s_waitcnt lgkmcnt(0)")
        for jj in range(8):
            j = 8*half + jj; o = T + 8 + 2*(jj % 4); jp = j & ~1; x = j & 1
            k(f"v_pk_mul_f32 {vr(o,2)}, {vr(WP+2*j,2)}, {vr(DR+jp,2)} op_sel:[0,{x}] op_sel_hi:[1,{x}]")
            k(f"v_pk_fma_f32 {vr(o,2)}, {vr(WP+2*j,2)}, {vr(DI+jp,2)}, {vr(o,2)} op_sel:[1,{x},0] op_sel_hi:[0,{x},1] neg_lo:[1,0,0]")
            k(f"v_pk_fma_f32 {vr(o,2)}, {vr(QP+2*j,2)}, {vr(XB_+2*jj,2)}, {vr(o,2)} op_sel:[0,0,0] op_sel_hi:[1,0,1]")
            k(f"v_pk_fma_f32 {vr(o,2)}, {vr(QP+2*j,2)}, {vr(XB_+2*jj,2)}, {vr(o,2)} op_sel:[1,1,0] op_sel_hi:[0,1,1] neg_hi:[1,0,0]")
            k(f"{CVT} v{OP+j}, v{o}, -v{o+1}")
    k("s_branch L_p2_specd")
    return k, 256, 65536

def ln_stats_rows(k, R0, R1, t, vRM, sTmp):
    for (R, o) in ((R0, 0), (R1, 4)):
        a, b = t+o, t+o+2
        k(f"v_pk_add_f32 {vr(a,2)}, {vr(R,2)}, {vr(R+2,2)}")
        k(f"v_pk_add_f32 {vr(b,2)}, {vr(R+4,2)}, {vr(R+6,2)}")
    for i in range(4, 8):
        for (R, o) in ((R0, 0), (R1, 4)):
            a = t+o+2*(i % 2)
            k(f"v_pk_add_f32 {vr(a,2)}, {vr(a,2)}, {vr(R+2*i,2)}")
    for o in (0, 4):
        k(f"v_pk_add_f32 {vr(t+o,2)}, {vr(t+o,2)}, {vr(t+o+2,2)}")
    k(f"v_add_f32 v{t}, v{t}, v{t+1}")
    k(f"v_add_f32 v{t+1}, v{t+4}, v{t+5}")
    wave_reduce2(k, t, t+1)
    ln_mean(k, t, sTmp)
    acc = {0: t, 1: t+2}; tmp = [t+4, t+6, t+8, t+10]
    n = 0
    for i in range(8):
        for row, R in ((0, R0), (1, R1)):
            d = tmp[n % 4]; n += 1
            sel = "op_sel_hi:[1,0]" if row == 0 else "op_sel:[0,1] op_sel_hi:[1,1]"
            k(f"v_pk_add_f32 {vr(d,2)}, {vr(R+2*i,2)}, {sr(sTmp,2)} {sel} neg_lo:[0,1] neg_hi:[0,1]")
            a = acc[row]
            if i == 0: k(f"v_pk_mul_f32 {vr(a,2)}, {vr(d,2)}, {vr(d,2)}")
            else:      k(f"v_pk_fma_f32 {vr(a,2)}, {vr(d,2)}, {vr(d,2)}, {vr(a,2)}")
    k(f"v_add_f32 v{t}, v{t}, v{t+1}")
    k(f"v_add_f32 v{t+1}, v{t+2}, v{t+3}")
    wave_reduce2(k, t, t+1)
    ln_scalars(k, t)
    k(f"v_readlane_b32 s{sTmp}, v{t}, 63")
    k(f"v_readlane_b32 s{sTmp+1}, v{t+1}, 63")
    k(f"v_readlane_b32 s{sTmp+2}, v{t+12}, 63")
    k(f"v_readlane_b32 s{sTmp+3}, v{t+13}, 63")
    for i in range(4):
        k(f"v_mov_b32 v{vRM+i}, s{sTmp+i}")

def ln_apply_rows(k, R0, R1, vRM, dst0, dst1):
    for i in range(8):
        k(f"v_pk_fma_f32 {vr(dst0+2*i,2)}, {vr(R0+2*i,2)}, {vr(vRM,2)}, {vr(vRM+2,2)} op_sel_hi:[1,0,0] neg_lo:[0,0,1] neg_hi:[0,0,1]")
        k(f"v_pk_fma_f32 {vr(dst1+2*i,2)}, {vr(R1+2*i,2)}, {vr(vRM,2)}, {vr(vRM+2,2)} op_sel:[0,1,1] op_sel_hi:[1,1,1] neg_lo:[0,0,1] neg_hi:[0,0,1]")

def gen_p3():
    k = Kern('p3_kernel')
    k("s_cmp_ge_u32 s2, 256")
    k("s_cbranch_scc1 L_p3_end")
    stamp_begin(k)
    k("s_load_dwordx2 s[4:5], s[0:1], 0")
    k("s_load_dwordx2 s[26:27], s[0:1], 80")
    k("s_load_dwordx2 s[24:25], s[0:1], 32")
    k("v_and_b32 v1, 63, v0")
    k("v_lshrrev_b32 v2, 6, v0")
    k("v_readfirstlane_b32 s28, v2")
    pf_wave(k, 'p3', W1PF0 + 256*W1PF)
    k("s_lshr_b32 s29, s2, 5")
    k("s_lshl_b32 s29, s29, 2")
    k("s_and_b32 s30, s2, 31")
    k("s_add_u32 s31, s29, s28")
    k("s_lshl_b32 s31, s31, 5")
    k("s_add_u32 s31, s31, s30")
    k("s_lshl_b32 s31, s31, 11")
    k("s_add_u32 s32, s31, 0x200000")
    k(f"s_mul_i32 s33, s2, {VB_BLK}")
    k("s_lshl_b32 s34, s28, 12")
    k("s_add_u32 s33, s33, s34")
    k("v_lshlrev_b32 v2, 4, v1")
    k("s_waitcnt lgkmcnt(0)")
    srd(k, 8, 4, S*D*2)
    srd(k, 12, 26, 256*VB_BLK, VB_OFF)
    srd(k, 16, 26, S*D*2, H_OFF)
    srd(k, 20, 26, S*D*2, HN_OFF)
    for i in range(4):
        k(f"s_add_u32 m0, s34, {1024*i}")
        k(f"buffer_load_dwordx4 v2, s[12:15], s33 offen lds")
        k("s_add_u32 s33, s33, 1024")
    XL = 4
    OP, Mr, Mi, TW, DR, DI, T = 20, 36, 52, 68, 100, 116, 132
    R0, R1, Y0, Y1 = 148, 164, 180, 196
    k("v_and_b32 v212, 31, v1")
    k("v_cvt_f32_u32 v212, v212")
    k("v_lshrrev_b32 v213, 5, v1")
    k("v_lshlrev_b32 v213, 2, v213")
    k("v_cvt_f32_u32 v213, v213")
    k(f"v_mul_f32 v214, {f32(1/32)}, v212")
    k("v_mul_f32 v215, v214, v213")
    gen_matrix(k, Mr, Mi, 214, 215, T)
    k(f"v_mul_f32 v214, {f32(1/1024)}, v212")
    k("v_mul_f32 v215, v214, v213")
    gen_twiddle(k, TW, 214, 215, T, scale=2.0**-21.5)
    k("v_and_b32 v2, 31, v1")
    k("v_lshrrev_b32 v3, 5, v1")
    k("v_and_b32 v216, 1, v2")
    k("v_lshrrev_b32 v217, 1, v2")
    k("v_and_b32 v218, 2, v217")
    k("v_xor_b32 v218, v218, v216")
    k("v_lshlrev_b32 v218, 4, v218")
    k("v_lshl_add_u32 v218, v217, 6, v218")
    k("v_lshl_add_u32 v218, v3, 12, v218")
    k("s_lshl_b32 s37, s28, 2")
    k("v_add_u32 v218, s37, v218")
    k("v_add_u32 v217, 1, v2")
    k("v_lshrrev_b32 v217, 1, v217")
    k("v_sub_u32 v219, 0, v217")
    k("v_and_b32 v219, 2, v219")
    k("v_add_u32 v216, 2, v216")
    k("v_xor_b32 v219, v219, v216")
    k("v_lshlrev_b32 v219, 4, v219")
    k("v_lshlrev_b32 v217, 6, v217")
    k("v_sub_u32 v219, v219, v217")
    k("v_lshlrev_b32 v217, 12, v3")
    k("v_sub_u32 v219, v219, v217")
    k("s_add_u32 s37, s37, 5120")
    k("v_add_u32 v219, s37, v219")
    k(f"v_add_u32 v227, {16*1024-5120}, v219")
    k("s_lshl_b32 s38, s28, 2")
    k("s_add_u32 s38, s38, 32")
    k("v_mov_b32 v226, s38")
    k("v_cmp_eq_u32 vcc, 0, v1")
    k("v_cndmask_b32 v227, v227, v226, vcc")
    k("s_mov_b32 s35, 0xffff0000")
    mark(k, 1)
    k("s_waitcnt vmcnt(0)")
    k("v_lshlrev_b32 v225, 4, v1")
    k(f"buffer_load_dwordx4 {vr(XL,4)}, v225, s[8:11], s31 offen")
    k(f"buffer_load_dwordx4 {vr(XL+4,4)}, v225, s[8:11], s31 offen offset:1024")
    k(f"buffer_load_dwordx4 {vr(XL+8,4)}, v225, s[8:11], s32 offen")
    k(f"buffer_load_dwordx4 {vr(XL+12,4)}, v225, s[8:11], s32 offen offset:1024")
    k("s_barrier")
    mark(k, 2)
    for i, (r, c) in enumerate(SEQ):
        if r < 2: k(f"ds_read_b32 v{OP+i}, v218 offset:{(8*r+c)*1024}")
        elif i == 8: k(f"ds_read_b32 v{OP+i}, v227")
        else:     k(f"ds_read_b32 v{OP+i}, v219 offset:{(32-8*r-c)*1024-5120}")
    k("s_waitcnt lgkmcnt(0)")
    stage(k, 'A', DR, DI, OP, Mr, Mi)
    cmul_pack(k, DR, DI, TW, OP, T)
    stage(k, 'B', DR, DI, OP, Mr, Mi)
    k("s_waitcnt vmcnt(0)")
    for i in range(8):
        k(f"v_lshlrev_b32 v{R0+2*i}, 16, v{XL+i}")
        k(f"v_and_b32 v{R0+2*i+1}, s35, v{XL+i}")
        k(f"v_lshlrev_b32 v{R1+2*i}, 16, v{XL+8+i}")
        k(f"v_and_b32 v{R1+2*i+1}, s35, v{XL+8+i}")
    TR = 17408
    mark(k, 3)
    k("s_lshl_b32 s36, s28, 12")
    k(f"s_add_u32 s36, s36, {TR}")
    k("v_and_b32 v3, 31, v1")
    k("v_lshlrev_b32 v3, 2, v3")
    k("v_lshrrev_b32 v216, 5, v1")
    k("v_lshlrev_b32 v216, 9, v216")
    k("v_add3_u32 v3, v3, v216, s36")
    k("v_lshl_add_u32 v2, v1, 5, s36")
    for i in range(16):
        k(f"{CVT} v{OP+i}, v{DR+i}, -v{DI+i}")
    for i, (r, c) in enumerate(SEQ):
        k(f"ds_write_b32 v3, v{OP+i} offset:{(8*r+c)*128}")
    k("s_waitcnt lgkmcnt(0)")
    k(f"ds_read_b128 {vr(OP,4)}, v2")
    k(f"ds_read_b128 {vr(OP+4,4)}, v2 offset:16")
    k(f"ds_read_b128 {vr(OP+8,4)}, v2 offset:2048")
    k(f"ds_read_b128 {vr(OP+12,4)}, v2 offset:2064")
    k("s_waitcnt lgkmcnt(0)")
    for i in range(16):
        k(f"v_lshlrev_b32 v{Y0+i}, 16, v{OP+i}")
        k(f"v_and_b32 v{Y1+i}, s35, v{OP+i}")
    for i in range(8):
        k(f"v_pk_add_f32 {vr(Y0+2*i,2)}, {vr(Y0+2*i,2)}, {vr(R0+2*i,2)}")
        k(f"v_pk_add_f32 {vr(Y1+2*i,2)}, {vr(Y1+2*i,2)}, {vr(R1+2*i,2)}")
    HP = 36
    for i in range(8):
        k(f"{CVT} v{HP+i}, v{Y0+2*i}, v{Y0+2*i+1}")
        k(f"{CVT} v{HP+8+i}, v{Y1+2*i}, v{Y1+2*i+1}")
    k("v_lshlrev_b32 v2, 4, v1")
    k(f"buffer_store_dwordx4 {vr(HP,4)}, v2, s[16:19], s31 offen {ST_P3}")
    k(f"buffer_store_dwordx4 {vr(HP+4,4)}, v2, s[16:19], s31 offen offset:1024 {ST_P3}")
    k(f"buffer_store_dwordx4 {vr(HP+8,4)}, v2, s[16:19], s32 offen {ST_P3}")
    k(f"buffer_store_dwordx4 {vr(HP+12,4)}, v2, s[16:19], s32 offen offset:1024 {ST_P3}")
    for i in range(8):
        k(f"v_lshlrev_b32 v{R0+2*i}, 16, v{HP+i}")
        k(f"v_and_b32 v{R0+2*i+1}, s35, v{HP+i}")
        k(f"v_lshlrev_b32 v{R1+2*i}, 16, v{HP+8+i}")
        k(f"v_and_b32 v{R1+2*i+1}, s35, v{HP+8+i}")
    RM = 220
    mark(k, 4)
    ln_stats_rows(k, R0, R1, T, RM, 40)
    if EMU_L2:
        ln_apply_rows(k, R0, R1, RM, Y0, Y1)
        LP = 52
        for i in range(8):
            k(f"{CVT} v{LP+i}, v{Y0+2*i}, v{Y0+2*i+1}")
            k(f"{CVT} v{LP+8+i}, v{Y1+2*i}, v{Y1+2*i+1}")
        for i in range(8):
            k(f"v_lshlrev_b32 v{R0+2*i}, 16, v{LP+i}")
            k(f"v_and_b32 v{R0+2*i+1}, s35, v{LP+i}")
            k(f"v_lshlrev_b32 v{R1+2*i}, 16, v{LP+8+i}")
            k(f"v_and_b32 v{R1+2*i+1}, s35, v{LP+8+i}")
    else:
        ln_apply_rows(k, R0, R1, RM, R0, R1)
    ln_stats_rows(k, R0, R1, T, RM, 40)
    ln_apply_rows(k, R0, R1, RM, Y0, Y1)
    NP = 68
    for i in range(8):
        k(f"{CVT} v{NP+i}, v{Y0+2*i}, v{Y0+2*i+1}")
        k(f"{CVT} v{NP+8+i}, v{Y1+2*i}, v{Y1+2*i+1}")
    k(f"buffer_store_dwordx4 {vr(NP,4)}, v2, s[20:23], s31 offen {ST_P3}")
    k(f"buffer_store_dwordx4 {vr(NP+4,4)}, v2, s[20:23], s31 offen offset:1024 {ST_P3}")
    k(f"buffer_store_dwordx4 {vr(NP+8,4)}, v2, s[20:23], s32 offen {ST_P3}")
    k(f"buffer_store_dwordx4 {vr(NP+12,4)}, v2, s[20:23], s32 offen offset:1024 {ST_P3}")
    stamp_end(k, 'p3')
    k("L_p3_end:")
    k("s_endpgm")
    return k, 228, 33792

MF16 = 'v_mfma_f32_16x16x32_bf16'

def interleave(mf, rd, lead=0):
    out = []; n = len(mf); m = len(rd); ri = 0
    for i in range(n):
        out.append(mf[i])
        tgt = min(m, (m*(i+1) + n - 1)//n)
        while ri < tgt:
            out.append(rd[ri]); ri += 1
    out += rd[ri:]
    return out

def producer_loop(k, tag, per, issue, NS, NIT):
    mark(k, 1)
    issue()
    mark(k, 2)
    issue()
    k(f"s_waitcnt vmcnt({per})")
    mark(k, 3)
    k("s_barrier")
    for n in range(2, NS): issue()
    mark(k, 4)
    nmain = NIT - NS
    k(f"s_mov_b32 s60, 0")
    k(f"L_{tag}_ploop:")
    k(f"s_waitcnt vmcnt({(NS-2)*per})")
    k("s_barrier")
    issue()
    k("s_add_u32 s60, s60, 1")
    k(f"s_cmp_lt_u32 s60, {nmain}")
    k(f"s_cbranch_scc1 L_{tag}_ploop")
    for n in range(nmain, NIT-1):
        k(f"s_waitcnt vmcnt({(NIT-1-(n+1))*per})")
        k("s_barrier")


XB_OFF = ZW_OFF
FL_OFF = 0x2800000
BAR_OFF = 0x2810000
def gemm_kernel(tag, fused=False):
    g1 = tag == 'g1'
    k = Kern('gg_kernel' if fused else tag + '_kernel')
    ENDL = 'L_gg_end' if fused else f'L_{tag}_end'
    ASZ = 16384; STG = 32768; NS = 4 if STATIC else (5 if BAR2 else 3)
    NIT = 32 if g1 else 28
    BSTR = 7168 if g1 else 4096
    if not (fused and not g1):
        k(f"s_cmp_ge_u32 s2, 256")
        k(f"s_cbranch_scc1 {ENDL}")
    else:
        k("L_gbar:")
        k("s_load_dwordx2 s[26:27], s[0:1], 80")
        k("s_waitcnt vmcnt(0) lgkmcnt(0)")
        k("s_barrier")
        srd(k, 36, 26, 1024, BAR_OFF)
        k("v_cmp_eq_u32 vcc, 0, v0")
        k("s_and_saveexec_b64 s[34:35], vcc")
        k("s_cbranch_execz L_gbar_noarr")
        k("s_and_b32 s33, s2, 7")
        k("s_lshl_b32 s33, s33, 7")
        k("v_mov_b32 v2, 1")
        k("v_mov_b32 v3, 0")
        k("buffer_atomic_add v2, v3, s[36:39], s33 offen sc1")
        k("L_gbar_noarr:")
        k("s_mov_b64 exec, -1")
    stamp_begin(k)
    if g1:
        k("s_load_dwordx4 s[4:7], s[0:1], 32")
        k("s_load_dwordx2 s[24:25], s[0:1], 48")
    else:
        k("s_load_dwordx4 s[4:7], s[0:1], 48")
        k("s_load_dwordx2 s[24:25], s[0:1], 64")
    k("s_load_dwordx2 s[26:27], s[0:1], 80")
    k("v_and_b32 v1, 63, v0")
    k("v_lshrrev_b32 v2, 6, v0")
    k("v_readfirstlane_b32 s28, v2")
    if g1:
        k("s_and_b32 s30, s2, 1")
        k("s_lshl_b32 s30, s30, 2")
        k("s_bfe_u32 s52, s2, 0x20003")
        k("s_add_u32 s30, s30, s52")
        k("s_bfe_u32 s29, s2, 0x20001")
        k("s_mul_i32 s29, s29, 7")
        k("s_lshr_b32 s53, s2, 5")
        k("s_add_u32 s29, s29, s53")
        k("s_mov_b32 s63, 0")
        k("s_and_b32 s55, s2, 1")
        k(f"s_mul_i32 s55, s55, {16 if KHALF else 0}")
    else:
        if MAP2 == 1:
            k("s_bfe_u32 s62, s2, 0x10003")
            k("s_bfe_u32 s29, s2, 0x20001")
            k("s_lshl_b32 s29, s29, 2")
            k("s_bfe_u32 s52, s2, 0x20004")
            k("s_add_u32 s29, s29, s52")
            k("s_lshr_b32 s53, s2, 6")
            k("s_and_b32 s30, s2, 1")
            k("s_lshl_b32 s30, s30, 2")
            k("s_add_u32 s30, s30, s53")
        else:
            k("s_and_b32 s62, s2, 1")
            k("s_bfe_u32 s29, s2, 0x20001")
            k("s_lshl_b32 s29, s29, 2")
            k("s_bfe_u32 s52, s2, 0x20003")
            k("s_add_u32 s29, s29, s52")
            k("s_lshr_b32 s53, s2, 5")
            k("s_mov_b32 s30, s53")
        k("s_mov_b32 s55, 0")
        k("s_mul_i32 s63, s62, 28")
        srd(k, 56, 26, 256*64, FL_OFF) if False else None
    k("s_lshl_b32 s31, s29, 8")
    k("s_lshl_b32 s32, s30, 8")
    k("s_waitcnt lgkmcnt(0)")
    if g1:
        srd(k, 8, 4, S*F*2)
        srd(k, 12, 26, S*D*2, HN_OFF)
        srd(k, 16, 26, F*D*2, GT_OFF)
        srd(k, 20, 6, F*2)
        if not XSENT:
            srd(k, 44, 26, 256*64, FL_OFF)
            k("s_lshl_b32 s33, s2, 6")
            k("v_mov_b32 v2, 0")
            k("v_lshlrev_b32 v3, 2, v0")
            k("v_cmp_gt_u32 vcc, 16, v0")
            k("s_and_saveexec_b64 s[34:35], vcc")
            k(f"s_cbranch_execz L_{tag}_nozf")
            k("buffer_store_dword v2, v3, s[44:47], s33 offen sc0 sc1")
            k(f"L_{tag}_nozf:")
            k("s_mov_b64 exec, -1")
        k("s_cmp_lt_u32 s2, 224")
        k(f"s_cbranch_scc1 L_{tag}_main")
        if W1IDLE:
            k("s_sub_u32 s33, s2, 224")
            k("s_mul_i32 s33, s33, 112")
            k("v_mul_u32_u24 v3, 586, v0")
            k("v_lshrrev_b32 v3, 16, v3")
            k("v_mul_u32_u24 v4, 112, v3")
            k("v_sub_u32 v4, v0, v4")
            k("v_add_u32 v4, s33, v4")
            k("v_mul_u32_u24 v5, 4682, v4")
            k("v_lshrrev_b32 v5, 18, v5")
            k("v_mul_u32_u24 v6, 56, v5")
            k("v_sub_u32 v6, v4, v6")
            k("v_and_b32 v7, 1, v3")
            k("v_lshrrev_b32 v8, 1, v3")
            k("v_lshl_add_u32 v7, v7, 4, v8")
            k("v_lshl_add_u32 v5, v7, 6, v5")
            k("v_mul_u32_u24 v5, 7168, v5")
            k("v_lshl_add_u32 v2, v6, 7, v5")
            k("v_cmp_gt_u32 vcc, 448, v0")
            k("s_and_saveexec_b64 s[34:35], vcc")
            k(f"s_cbranch_execz L_{tag}_now1")
            k(f"s_mov_b32 s33, {W1IDLE*64*7168}")
            for i in range((16-W1IDLE)//2):
                k(f"buffer_load_dword v9, v2, s[8:11], s33 offen")
                k(f"s_add_u32 s33, s33, {2*64*7168}")
            k(f"L_{tag}_now1:")
            k("s_mov_b64 exec, -1")
        if W2PF:
            srd(k, 48, 24, F*S*2)
            k("s_sub_u32 s33, s2, 224")
            k("s_and_b32 s34, s33, 15")
            k("s_lshr_b32 s35, s33, 4")
            k(f"s_mul_i32 s35, s35, {1792*4096}")
            k("s_lshl_b32 s33, s34, 16")
            k("s_add_u32 s33, s33, s35")
            k("v_lshlrev_b32 v2, 7, v0")
            for i in range(W2PF):
                k(f"buffer_load_dword v9, v2, s[48:51], s33 offen")
                k(f"s_add_u32 s33, s33, {16*65536}")
        if XSENT:
            srd(k, 44, 26, 256*(16384 if XBF16 else 32768), 0x1E00000 if XB_SEP else VB_OFF)
            k("s_sub_u32 s33, s2, 224")
            k("s_lshl_b32 s33, s33, 17")
            k("v_lshlrev_b32 v2, 4, v0")
            for i in range(4): k(f"v_mov_b32 v{4+i}, -1")
            k("s_mov_b32 s34, 0")
            k(f"L_{tag}_clr:")
            k("buffer_store_dwordx4 v[4:7], v2, s[44:47], s33 offen sc0 sc1")
            k("s_add_u32 s33, s33, 8192")
            k("s_add_u32 s34, s34, 1")
            k("s_cmp_lt_u32 s34, 16")
            k(f"s_cbranch_scc1 L_{tag}_clr")
        stamp_end(k, tag, tid=0, slot=256, sfx='idle')
        k(f"s_branch {'L_gbar' if fused else ENDL}")
        k(f"L_{tag}_main:")
    else:
        srd(k, 8, 4, F*S*2)
        srd(k, 12, 26, F*D*2, GT_OFF)
        srd(k, 16, 26, S*D*2, H_OFF)
        srd(k, 20, 6, S*2)
        srd(k, 48, 24, S*D*2)
        if not XSENT:
            k("s_getreg_b32 s54, hwreg(HW_REG_XCC_ID, 0, 4)")
            k("s_add_u32 s54, s54, 1")
            srd(k, 56, 26, 256*64, FL_OFF)
            k("s_lshl_b32 s33, s2, 6")
            k("v_mov_b32 v2, s54")
            k("v_mov_b32 v3, 0")
            k("v_cmp_eq_u32 vcc, 0, v0")
            k("s_and_saveexec_b64 s[34:35], vcc")
            k(f"s_cbranch_execz L_{tag}_nopub")
            k("buffer_store_dword v2, v3, s[56:59], s33 offen offset:4 sc0 sc1")
            k(f"L_{tag}_nopub:")
            k("s_mov_b64 exec, -1")
    k("s_cmp_ge_u32 s28, 4")
    k(f"s_cbranch_scc1 L_{tag}_prod")
    ACC = 8; X = 72; Y = 136; R = 200
    AA = [R+i for i in range(4)]; AB = [R+4+i for i in range(4)]
    BA = [R+8+i for i in range(4)]; BB = [R+12+i for i in range(4)]
    MISC = R + 16
    k("s_and_b32 s33, s28, 1")
    k("s_lshr_b32 s36, s28, 1")
    k("v_lshrrev_b32 v2, 4, v1")
    k("v_bfe_u32 v3, v1, 2, 2")
    k("v_and_b32 v4, 3, v1")
    k("v_lshl_add_u32 v5, v2, 2, v3")
    k("v_and_b32 v6, 7, v5")
    k("v_lshlrev_b32 v6, 1, v6")
    k("v_lshrrev_b32 v7, 1, v4")
    k("v_and_b32 v9, 1, v4")
    for (base, w, add) in ((BA, 's33', 0), (BB, 's36', ASZ)):
        k(f"s_lshl_b32 s35, {w}, 3")
        k("v_add_u32 v10, s35, v7")
        k("v_xor_b32 v10, v10, v6")
        k("v_lshlrev_b32 v10, 4, v10")
        k("v_lshl_add_u32 v10, v9, 3, v10")
        k("v_lshl_add_u32 v10, v5, 8, v10")
        if add: k(f"v_add_u32 v10, {add}, v10")
        k(f"v_mov_b32 v{base[0]}, v10")
        for t in range(1, 4): k(f"v_xor_b32 v{base[t]}, {32*t}, v10")
    for t in range(4):
        k(f"v_mov_b32 v{AA[t]}, v{BA[t]}"); k(f"v_mov_b32 v{AB[t]}, v{BB[t]}")
    BIAS = MISC
    k("v_and_b32 v2, 15, v1")
    k("v_lshlrev_b32 v2, 1, v2")
    k("s_lshl_b32 s37, s36, 7")
    k("s_add_u32 s37, s37, s31")
    for t in range(4):
        k(f"buffer_load_ushort v{BIAS+t}, v2, s[20:23], s37 offen offset:{32*t}")
    OV = MISC+4
    k("v_and_b32 v2, 15, v1")
    k("v_lshlrev_b32 v2, 11, v2")
    k("v_lshrrev_b32 v3, 4, v1")
    k(f"v_lshl_add_u32 v{OV}, v3, 4, v2")
    k("s_lshl_b32 s38, s29, 7")
    k("s_lshl_b32 s39, s36, 6")
    k("s_add_u32 s38, s38, s39")
    k("s_lshl_b32 s38, s38, 11")
    k("s_add_u32 s38, s38, s32")
    k("s_lshl_b32 s39, s33, 7")
    k("s_add_u32 s38, s38, s39")
    if not g1:
        HL = MISC+6
        NV = HL+16
        if OUT_TOUCH:
            k("s_lshl_b32 s39, s62, 16")
            k("s_add_u32 s39, s39, s38")
            k(f"buffer_load_dword v{NV}, v{OV}, s[48:51], s39 offen")
            NV += 1
    else:
        NV = MISC+5
    def reads(dst, buf=None):
        r = []
        for ks in range(2):
            b = dst + 32*ks; ko = 32*ks
            for t in range(4):
                if buf is None: regs = (AA[t], AB[t]); bo = 0
                else:
                    regs = (BA[t], BB[t]) if buf < 2 else (AA[t], AB[t]); bo = (buf % 2)*STG
                for (o, a) in ((0, regs[0]), (16, regs[1])):
                    r.append(f"ds_read_b64_tr_b16 {vr(b+o+4*t,2)}, v{a} offset:{bo+ko*256}")
                    r.append(f"ds_read_b64_tr_b16 {vr(b+o+4*t+2,2)}, v{a} offset:{bo+(ko+16)*256}")
        return r
    def mfmas(src):
        m = []
        for ks in range(2):
            b = src + 32*ks
            order = sorted([(td, tn) for td in range(4) for tn in range(4)], key=lambda x: (max(x), x))
            if FAKE32:
                for i in range(8):
                    a = ACC + 16*(i % 4)
                    m.append(f"{MF32} {vr(a,16)}, {vr(b+4*(i%4),4)}, {vr(b+16+4*((i//2)%4),4)}, {vr(a,16)}")
                continue
            for td, tn in order:
                a = ACC + 4*(4*tn+td)
                m.append(f"{MF16} {vr(a,4)}, {vr(b+4*td,4)}, {vr(b+16+4*tn,4)}, {vr(a,4)}")
        return m
    def sched(mf, rd, extra):
        out = []; ri = 0; ei = 0
        for i, m in enumerate(mf):
            out.append(m)
            if ri < len(rd):
                for _ in range(RPAT[i % len(RPAT)]):
                    if ri < len(rd): out.append(rd[ri]); ri += 1
            elif ei < len(extra):
                out.append(extra[ei]); ei += 1
        out += rd[ri:] + extra[ei:]
        return out
    def upd():
        e = [f"s_add_u32 s34, s34, {STG}", f"s_cmp_eq_u32 s34, {STG*NS}", "s_cselect_b32 s34, 0, s34"]
        e += [f"v_add_u32 v{AA[t]}, s34, v{BA[t]}" for t in range(4)]
        e += [f"v_add_u32 v{AB[t]}, s34, v{BB[t]}" for t in range(4)]
        return e
    for i in range(64): k(f"v_mov_b32 v{ACC+i}, 0")
    k("s_mov_b32 s34, 0")
    k("s_mov_b32 s35, 0")
    if fused and not g1: k("s_barrier")
    mark(k, 1)
    k("s_barrier")
    mark(k, 2)
    if STATIC:
        for t in range(4):
            k(f"v_add_u32 v{AA[t]}, 65536, v{BA[t]}"); k(f"v_add_u32 v{AB[t]}, 65536, v{BB[t]}")
        for x in reads(X, 0): k(x)
        k(f"L_{tag}_cloop:")
        for u in range(4):
            cur, nxt = (X, Y) if u % 2 == 0 else (Y, X)
            k("s_waitcnt lgkmcnt(0)")
            k("s_barrier")
            ex = ["s_add_u32 s35, s35, 4", f"s_cmp_lt_u32 s35, {NIT-4}"] if u == 3 else []
            for x in sched(mfmas(cur), reads(nxt, (u+1) % 4), ex): k(x)
        k(f"s_cbranch_scc1 L_{tag}_cloop")
        for u in range(2):
            cur, nxt = (X, Y) if u % 2 == 0 else (Y, X)
            k("s_waitcnt lgkmcnt(0)")
            k("s_barrier")
            for x in sched(mfmas(cur), reads(nxt, u+1), []): k(x)
    else:
        for x in reads(X): k(x)
        for x in upd(): k(x)
        k(f"L_{tag}_cloop:")
        k("s_waitcnt lgkmcnt(0)")
        if LOOPSTAMP:
            k(f"s_cmp_eq_u32 s35, {LOOPSTAMP}")
            k(f"s_cbranch_scc0 L_{tag}_nolatch")
            for i in range(4): k(f"s_mov_b64 s[{96-20+2*i}:{97-20+2*i}], s[{66+2*i}:{67+2*i}]") if False else None
            k("s_sub_u32 s90, s68, s66"); k("s_sub_u32 s91, s70, s68"); k("s_sub_u32 s92, s72, s70")
            k("s_memtime s[82:83]"); k("s_waitcnt lgkmcnt(0)"); k("s_sub_u32 s93, s82, s72")
            k(f"L_{tag}_nolatch:")
        k("s_barrier")
        if LOOPSTAMP: k("s_memtime s[66:67]")
        for x in sched(mfmas(X), reads(Y), upd()): k(x)
        if LOOPSTAMP: k("s_memtime s[68:69]")
        k("s_waitcnt lgkmcnt(0)")
        if not BAR2: k("s_barrier")
        if LOOPSTAMP: k("s_memtime s[70:71]")
        for x in sched(mfmas(Y), reads(X), upd() + ["s_add_u32 s35, s35, 2", f"s_cmp_lt_u32 s35, {NIT-2}"]): k(x)
        if LOOPSTAMP: k("s_memtime s[72:73]")
        k(f"s_cbranch_scc1 L_{tag}_cloop")
    if LOOPSTAMP:
        k("s_waitcnt lgkmcnt(0)")
        for i in range(4):
            k(f"s_mov_b32 s{66+2*i}, s{90+i}"); k(f"s_mov_b32 s{67+2*i}, 0")
    XID = 3
    if not g1:
        if not XSENT:
            k(f"s_xor_b32 s42, s2, {8 if MAP2 == 1 else 1}")
            k("s_lshl_b32 s39, s42, 6")
            k("v_mov_b32 v4, 0")
            k(f"buffer_load_dword v{XID}, v4, s[56:59], s39 offen offset:4 sc0 sc1")
        k("s_lshl_b32 s39, s62, 16")
        k("s_add_u32 s39, s39, s38")
        for tnl in range(1 if XSHARE else 2):
            for tp in range(2):
                k(f"s_add_u32 s40, s39, {tnl*16*2048 + tp*64}")
                k(f"buffer_load_dwordx4 {vr(HL+8*tnl+4*tp,4)}, v{OV}, s[16:19], s40 offen")
    k("s_waitcnt lgkmcnt(0)")
    k("s_barrier")
    for x in sched(mfmas(X), reads(Y, 3 if STATIC else None), []): k(x)
    k("s_waitcnt lgkmcnt(0)")
    for x in mfmas(Y): k(x)
    mark(k, 3)
    k("s_mov_b32 s40, 0xffff0000")
    T = X
    def pack_swap(P):
        k(f"v_permlane32_swap_b32 v{P}, v{P+2}")
        k(f"v_permlane32_swap_b32 v{P+1}, v{P+3}")
        k(f"v_permlane16_swap_b32 v{P}, v{P+2}")
        k(f"v_permlane16_swap_b32 v{P+1}, v{P+3}")
    def store_lines(P0, P1, tmp, so, srdreg):
        for i in range(4): k(f"v_mov_b32 v{tmp+i}, v{P0+i}")
        for i in range(4): k(f"v_mov_b32_dpp v{P0+i}, v{P1+i} row_ror:8 row_mask:0xf bank_mask:0xc")
        for i in range(4): k(f"v_mov_b32_dpp v{P1+i}, v{tmp+i} row_ror:8 row_mask:0xf bank_mask:0x3")
        fl = ST_G1 if g1 else ST_G2
        k(f"s_add_u32 s41, s38, {so}")
        k(f"buffer_store_dwordx4 {vr(P0,4)}, v{OVS}, s[{srdreg}:{srdreg+3}], s41 offen {fl}")
        k(f"s_add_u32 s41, s38, {so + 8*2048}")
        k(f"buffer_store_dwordx4 {vr(P1,4)}, v{OVS}, s[{srdreg}:{srdreg+3}], s41 offen {fl}")
    OVS = 3
    def set_ovs():
        k("v_and_b32 v2, 7, v1")
        k("v_lshlrev_b32 v2, 11, v2")
        k("v_bfe_u32 v3, v1, 3, 1")
        k("v_lshl_add_u32 v2, v3, 6, v2")
        k("v_lshrrev_b32 v3, 4, v1")
        k(f"v_lshl_add_u32 v{OVS}, v3, 4, v2")
    if g1:
        SH = 32768 if STATIC else (98304 if BAR2 else 65536)
        k("s_lshl_b32 s39, s28, 13")
        k(f"s_add_u32 s39, s39, {SH}")
        k("v_lshl_add_u32 v2, v1, 4, s39")
        for i in range(8): k(f"ds_write_b128 v2, {vr(ACC+32+4*i,4)} offset:{1024*i}")
        k("s_waitcnt vmcnt(0) lgkmcnt(0)")
        k("s_barrier")
        mark(k, 4)
        k(f"L_{tag}_epi:")
        for t in range(2): k(f"v_lshlrev_b32 v{BIAS+t}, 16, v{BIAS+t}")
        c0 = -2.0*math.log2(math.e)*math.sqrt(2.0/math.pi); c1 = c0*0.044715
        k("s_mov_b32 s40, 0xffff0000")
        k(f"s_mov_b32 s42, {f32(c1)}")
        k(f"v_mov_b32 v4, {f32(c0)}"); k(f"v_mov_b32 v5, {f32(c0)}")
        k(f"v_mov_b32 v6, 1.0"); k(f"v_mov_b32 v7, 1.0")
        set_ovs()
        for tn in range(2):
            for tp in range(2):
                P = T + 4*tp + 24*tn
                for q in range(4):
                    td = 2*tp + q//2
                    src = ACC + 4*(4*tn+td) + 2*(q % 2)
                    u, w = T+8+4*q, T+10+4*q
                    gelu_pair(k, src, u, w, BIAS+tn, P+q)
                pack_swap(P)
            store_lines(T+24*tn, T+24*tn+4, T+32, tn*16*2048, 16)
    else:
        if XSHARE:
            assert XSENT and XBF16
            SHX, SHY = 0, 16384
            k("s_waitcnt vmcnt(0)")
            srd(k, 44, 26, 256*16384, 0x1E00000 if XB_SEP else VB_OFF)
            k(f"s_xor_b32 s42, s2, {8 if MAP2 == 1 else 1}")
            k("s_lshl_b32 s43, s42, 14")
            k("s_lshl_b32 s39, s28, 12")
            k("s_add_u32 s43, s43, s39")
            k("v_lshlrev_b32 v2, 4, v1")
            k("s_cmp_eq_u32 s62, 0")
            k(f"s_cbranch_scc1 L_{tag}_k0")
            for half, l2 in ((0, None), (32, f"L_{tag}_k0:")):
                if l2: k(l2)
                for i in range(16): k(f"{CVT} v{Y+32+i}, v{ACC+half+2*i}, v{ACC+half+2*i+1}")
                for i in range(4):
                    k(f"s_add_u32 s39, s43, {1024*i}")
                    k(f"buffer_store_dwordx4 {vr(Y+32+4*i,4)}, v2, s[44:47], s39 offen sc0 sc1")
                if half == 0:
                    for i in range(32): k(f"v_mov_b32 v{ACC+i}, v{ACC+32+i}")
                    k(f"v_mov_b32 v{BIAS}, v{BIAS+2}")
                    k(f"s_branch L_{tag}_k1")
            k(f"L_{tag}_k1:")
            k("s_lshl_b32 s39, s28, 12")
            k(f"v_add_u32 v3, s39, v2")
            for i in range(4): k(f"ds_write_b128 v3, {vr(ACC+16+4*i,4)} offset:{SHX+1024*i}")
            k("s_lshl_b32 s39, s62, 16")
            k("s_add_u32 s38, s38, s39")
            k("s_lshl_b32 s39, s28, 11")
            k(f"v_add_u32 v3, s39, v2")
            k("s_waitcnt vmcnt(0) lgkmcnt(0)" if XWAIT else "s_waitcnt lgkmcnt(0)")
            k("s_barrier")
            k("s_barrier")
            k(f"ds_read_b128 {vr(Y+40,4)}, v3 offset:{SHY}")
            k(f"ds_read_b128 {vr(Y+44,4)}, v3 offset:{SHY+1024}")
            k("s_waitcnt lgkmcnt(0)")
            mark(k, 4)
            k(f"L_{tag}_epi:")
            k("s_mov_b32 s40, 0xffff0000")
            k(f"v_lshlrev_b32 v{BIAS}, 16, v{BIAS}")
            if PERTURB: k(f"v_add_f32 v{BIAS}, {f32(PERTURB)}, v{BIAS}")
            set_ovs()
            for tp in range(2):
                P = T + 4*tp
                for q in range(4):
                    td = 2*tp + q//2
                    a_ = ACC + 4*td + 2*(q % 2); y = Y + 4*td + 2*(q % 2)
                    u, w = T+8+4*q, T+10+4*q
                    pk = Y + 40 + (4*td + 2*(q % 2))//2
                    k(f"v_lshlrev_b32 v{y}, 16, v{pk}")
                    k(f"v_and_b32 v{y+1}, s40, v{pk}")
                    k(f"v_pk_add_f32 {vr(a_,2)}, {vr(a_,2)}, {vr(y,2)}")
                    k(f"v_add_f32 v{u}, v{a_}, v{BIAS}")
                    k(f"v_add_f32 v{u+1}, v{a_+1}, v{BIAS}")
                    k(f"{CVT} v{P+q}, v{u}, v{u+1}")
                pack_swap(P)
                for q in range(4):
                    u, w = T+8+4*q, T+10+4*q
                    hp = HL+4*tp+q
                    k(f"v_lshlrev_b32 v{u}, 16, v{P+q}")
                    k(f"v_and_b32 v{u+1}, s40, v{P+q}")
                    k(f"v_lshlrev_b32 v{w}, 16, v{hp}")
                    k(f"v_and_b32 v{w+1}, s40, v{hp}")
                    k(f"v_pk_add_f32 {vr(u,2)}, {vr(u,2)}, {vr(w,2)}")
                    k(f"{CVT} v{P+q}, v{u}, v{u+1}")
            store_lines(T, T+4, T+32, 0, 48)
        else:
            k("s_waitcnt vmcnt(0)")
            srd(k, 44, 26, 256*(16384 if XBF16 else 32768), 0x1E00000 if XB_SEP else VB_OFF)
            if not XSENT: srd(k, 56, 26, 256*64, FL_OFF)
            k(f"s_xor_b32 s42, s2, {8 if MAP2 == 1 else 1}")
            k(f"s_lshl_b32 s43, s42, {14 if XBF16 else 15}")
            k(f"s_lshl_b32 s39, s28, {12 if XBF16 else 13}")
            k("s_add_u32 s43, s43, s39")
            k("v_lshlrev_b32 v2, 4, v1")
            k("v_mov_b32 v4, 0")
            if not XSENT:
                k("s_lshl_b32 s39, s42, 6")
                k("s_mov_b32 s41, 0")
                k("v_readfirstlane_b32 s61, v3")
                k("s_cmp_eq_u32 s61, 0")
                k(f"s_cbranch_scc0 L_{tag}_xpolld")
                k(f"L_{tag}_xpoll:")
                k("buffer_load_dword v3, v4, s[56:59], s39 offen offset:4 sc0 sc1")
                k("s_waitcnt vmcnt(0)")
                k("v_readfirstlane_b32 s61, v3")
                k("s_add_u32 s41, s41, 1")
                k("s_cmp_ge_u32 s41, 0x40000")
                k(f"s_cbranch_scc1 L_{tag}_xpolld")
                k("s_cmp_eq_u32 s61, 0")
                k(f"s_cbranch_scc1 L_{tag}_xpoll")
                k(f"L_{tag}_xpolld:")
                k("s_cmp_eq_u32 s61, s54")
                k(f"s_cselect_b32 s61, {0 if FORCE_FAR else 1}, 0")
            def sends(flags, lab):
                k("s_cmp_eq_u32 s62, 0")
                k(f"s_cbranch_scc1 L_{tag}_k0{lab}")
                for half, l2 in ((0, None), (32, f"L_{tag}_k0{lab}:")):
                    if l2: k(l2)
                    if XBF16:
                        for i in range(16): k(f"{CVT} v{Y+32+i}, v{ACC+half+2*i}, v{ACC+half+2*i+1}")
                        for i in range(4):
                            k(f"s_add_u32 s39, s43, {1024*i}")
                            k(f"buffer_store_dwordx4 {vr(Y+32+4*i,4)}, v2, s[44:47], s39 offen {flags}")
                    else:
                        for i in range(8):
                            k(f"s_add_u32 s39, s43, {1024*i}")
                            k(f"buffer_store_dwordx4 {vr(ACC+half+4*i,4)}, v2, s[44:47], s39 offen {flags}")
                    if half == 0: k(f"s_branch L_{tag}_k1{lab}")
                k(f"L_{tag}_k1{lab}:")
            def handoff(stf, ldf, lab):
                sends(stf, lab)
                k("s_waitcnt vmcnt(0)")
                k("s_lshl_b32 s39, s42, 6")
                k("s_lshl_b32 s41, s28, 2")
                k("s_add_u32 s39, s39, s41")
                k("v_mov_b32 v3, 1")
                k("s_mov_b64 exec, 1")
                k(f"buffer_store_dword v3, v4, s[56:59], s39 offen offset:16 {stf}")
                k("s_lshl_b32 s39, s2, 6")
                k("s_add_u32 s39, s39, s41")
                k("s_mov_b32 s41, 0")
                k(f"L_{tag}_poll{lab}:")
                k(f"buffer_load_dword v3, v4, s[56:59], s39 offen offset:16 {ldf}")
                k("s_waitcnt vmcnt(0)")
                k("v_readfirstlane_b32 s43, v3")
                k("s_add_u32 s41, s41, 1")
                k("s_cmp_ge_u32 s41, 0x40000")
                k(f"s_cbranch_scc1 L_{tag}_polld{lab}")
                k("s_cmp_eq_u32 s43, 1")
                k(f"s_cbranch_scc0 L_{tag}_poll{lab}")
                k(f"L_{tag}_polld{lab}:")
                k("s_mov_b64 exec, -1")
                k(f"s_lshl_b32 s43, s2, {14 if XBF16 else 15}")
                k(f"s_lshl_b32 s39, s28, {12 if XBF16 else 13}")
                k("s_add_u32 s43, s43, s39")
                for i in range(4 if XBF16 else 8):
                    k(f"s_add_u32 s39, s43, {1024*i}")
                    k(f"buffer_load_dwordx4 {vr(Y+(32 if XBF16 else 0)+4*i,4)}, v2, s[44:47], s39 offen {ldf}")
            if XSENT:
                assert XBF16
                sends('sc0 sc1', 's')
                k("s_lshl_b32 s43, s2, 14")
                k("s_lshl_b32 s39, s28, 12")
                k("s_add_u32 s43, s43, s39")
                k("s_mov_b32 s41, 0")
                k("s_waitcnt vmcnt(0)")
                k(f"L_{tag}_spoll:")
                for i in range(4):
                    k(f"s_add_u32 s39, s43, {1024*i}")
                    k(f"buffer_load_dwordx4 {vr(Y+32+4*i,4)}, v2, s[44:47], s39 offen sc0 sc1")
                k("s_add_u32 s41, s41, 1")
                k("s_waitcnt vmcnt(0)")
                k(f"v_max3_u32 v3, v{Y+32}, v{Y+33}, v{Y+34}")
                for i in range(3, 15, 2): k(f"v_max3_u32 v3, v3, v{Y+32+i}, v{Y+32+i+1}")
                k(f"v_max_u32 v3, v3, v{Y+47}")
                k("v_cmp_eq_u32 vcc, -1, v3")
                k("s_nop 4")
                k("s_cmp_ge_u32 s41, 0x20000")
                k(f"s_cbranch_scc1 L_{tag}_spolld")
                k(f"s_cbranch_vccnz L_{tag}_spoll")
                k(f"L_{tag}_spolld:")
            else:
                k("s_cmp_eq_u32 s61, 1")
                k(f"s_cbranch_scc0 L_{tag}_far")
                handoff('', 'sc1', 'n')
                k(f"s_branch L_{tag}_xdone")
                k(f"L_{tag}_far:")
                handoff('sc0 sc1', 'sc0 sc1', 'f')
                k(f"L_{tag}_xdone:")
            k("s_cmp_eq_u32 s62, 0")
            k(f"s_cbranch_scc1 L_{tag}_kept")
            for i in range(32): k(f"v_mov_b32 v{ACC+i}, v{ACC+32+i}")
            k(f"v_mov_b32 v{BIAS}, v{BIAS+2}"); k(f"v_mov_b32 v{BIAS+1}, v{BIAS+3}")
            k(f"L_{tag}_kept:")
            mark(k, 4)
            k(f"v_lshlrev_b32 v{BIAS}, 16, v{BIAS}"); k(f"v_lshlrev_b32 v{BIAS+1}, 16, v{BIAS+1}")
            if PERTURB:
                k(f"v_add_f32 v{BIAS}, {f32(PERTURB)}, v{BIAS}"); k(f"v_add_f32 v{BIAS+1}, {f32(PERTURB)}, v{BIAS+1}")
            k("s_lshl_b32 s39, s62, 16")
            k("s_add_u32 s38, s38, s39")
            set_ovs()
            for tnl in range(2):
                for tp in range(2):
                    i0 = 4*tnl + 2*tp
                    if XSENT: pass
                    elif XBF16: k(f"s_waitcnt vmcnt({3 - i0//2})")
                    else:     k(f"s_waitcnt vmcnt({6 - i0 if i0 < 6 else 0})")
                    if i0 == 0: mark(k, 5)
                    P = T + 4*tp + 24*tnl
                    for q in range(4):
                        td = 2*tp + q//2
                        a = ACC + 4*(4*tnl+td) + 2*(q % 2); y = Y + 4*(4*tnl+td) + 2*(q % 2)
                        u, w = T+8+4*q, T+10+4*q
                        if XBF16:
                            pk = Y + 32 + (4*(4*tnl+td) + 2*(q % 2))//2
                            k(f"v_lshlrev_b32 v{y}, 16, v{pk}")
                            k(f"v_and_b32 v{y+1}, s40, v{pk}")
                        k(f"v_pk_add_f32 {vr(a,2)}, {vr(a,2)}, {vr(y,2)}")
                        if EMU_Y:
                            k(f"{CVT} v{w}, v{a}, v{a+1}")
                            k(f"v_lshlrev_b32 v{u}, 16, v{w}")
                            k(f"v_and_b32 v{u+1}, s40, v{w}")
                            k(f"v_add_f32 v{u}, v{u}, v{BIAS+tnl}")
                            k(f"v_add_f32 v{u+1}, v{u+1}, v{BIAS+tnl}")
                        else:
                            k(f"v_add_f32 v{u}, v{a}, v{BIAS+tnl}")
                            k(f"v_add_f32 v{u+1}, v{a+1}, v{BIAS+tnl}")
                        k(f"{CVT} v{P+q}, v{u}, v{u+1}")
                    pack_swap(P)
                    for q in range(4):
                        u, w = T+8+4*q, T+10+4*q
                        hp = HL+8*tnl+4*tp+q
                        k(f"v_lshlrev_b32 v{u}, 16, v{P+q}")
                        k(f"v_and_b32 v{u+1}, s40, v{P+q}")
                        k(f"v_lshlrev_b32 v{w}, 16, v{hp}")
                        k(f"v_and_b32 v{w+1}, s40, v{hp}")
                        k(f"v_pk_add_f32 {vr(u,2)}, {vr(u,2)}, {vr(w,2)}")
                        k(f"{CVT} v{P+q}, v{u}, v{u+1}")
                store_lines(T+24*tnl, T+24*tnl+4, T+32, tnl*16*2048, 48)
    stamp_end(k, tag)
    k(f"s_branch {'L_gbar' if (fused and g1) else ENDL}")
    k(f"L_{tag}_prod:")
    if PPRIO: k(f"s_setprio {PPRIO}")
    k("s_sub_u32 s33, s28, 4")
    k("v_lshrrev_b32 v2, 4, v1")
    k("s_and_b32 s34, s33, 1")
    k("s_lshl_b32 s34, s34, 2")
    k("v_add_u32 v3, s34, v2")
    k("v_lshlrev_b32 v3, 1, v3")
    k("v_and_b32 v4, 15, v1")
    k("v_xor_b32 v3, v3, v4")
    k("v_lshlrev_b32 v3, 4, v3")
    k("v_lshl_add_u32 v8, v2, 11, v3")
    k(f"v_mul_u32_u24 v2, {BSTR}, v2")
    k("v_add_u32 v9, v2, v3")
    k("s_lshl_b32 s34, s33, 13")
    k("s_add_u32 s40, s32, s34")
    k(f"s_mul_i32 s34, s33, {4*BSTR}")
    k("s_add_u32 s41, s31, s34")
    k("s_lshl_b32 s42, s33, 10")
    k("s_mov_b32 s43, 0")
    k("s_add_u32 s46, s52, s53")
    k("s_mov_b32 s47, 0")
    def issue():
        k("s_add_u32 s58, s46, s47")
        k("s_and_b32 s58, s58, 3")
        k("s_cmp_eq_u32 s58, 0")
        k(f"s_cselect_b32 s58, {3+NIT}, {NIT-1}")
        k("s_add_u32 s58, s58, s47")
        k("s_add_u32 s58, s58, s55")
        k(f"s_cmp_ge_u32 s58, {2*NIT}")
        k(f"s_cselect_b32 s59, {2*NIT}, {NIT}")
        k(f"s_cmp_ge_u32 s58, {NIT}")
        k(f"s_cselect_b32 s59, s59, 0")
        k("s_sub_u32 s58, s58, s59")
        if not KPERM: k("s_mov_b32 s58, s47")
        if KWRAP: k(f"s_and_b32 s58, s58, {KWRAP-1}")
        k("s_add_u32 s58, s58, s63")
        k(f"s_mul_i32 s59, s58, {64*BSTR}")
        k(f"s_lshl_b32 s58, s58, 17")
        k("s_add_u32 s58, s58, s40")
        k("s_add_u32 s59, s59, s41")
        k("s_add_u32 s44, s43, s42")
        for m in range(4):
            k(f"s_add_u32 m0, s44, {4096*m}")
            k(f"s_add_u32 s45, s58, {m*16*2048}")
            k(f"buffer_load_dwordx4 v8, s[12:15], s45 offen lds")
            k(f"s_add_u32 m0, s44, {ASZ+4096*m}")
            k(f"s_add_u32 s45, s59, {m*16*BSTR}")
            k(f"buffer_load_dwordx4 v9, s[8:11], s45 offen {NT_B1 if g1 else NT_B2} lds")
        k("s_add_u32 s47, s47, 1")
        k(f"s_add_u32 s43, s43, {STG}")
        k(f"s_cmp_eq_u32 s43, {STG*NS}")
        k("s_cselect_b32 s43, 0, s43")
    if fused and not g1:
        k("s_cmp_eq_u32 s33, 0")
        k("s_cbranch_scc0 L_gbar_nopoll")
        srd(k, 36, 26, 1024, BAR_OFF)
        k("v_and_b32 v2, 7, v1")
        k("v_lshlrev_b32 v2, 7, v2")
        k("s_mov_b32 s34, 0")
        k("L_gbar_poll:")
        if PSLEEP: k(f"s_sleep {PSLEEP}")
        k(f"buffer_load_dword v3, v2, s[36:39], 0 offen {POLLF}")
        k("s_waitcnt vmcnt(0)")
        k("v_cmp_gt_u32 vcc, 32, v3")
        k("s_add_u32 s34, s34, 1")
        k("s_cmp_ge_u32 s34, 0x20000")
        k("s_cbranch_scc1 L_gbar_nopoll")
        k("s_cbranch_vccnz L_gbar_poll")
        k("L_gbar_nopoll:")
        k("s_barrier")
    if BAR2:
        per = 8
        mark(k, 1)
        issue(); mark(k, 2); issue()
        k(f"s_waitcnt vmcnt({per})")
        mark(k, 3)
        k("s_barrier")
        issue(); issue()
        mark(k, 4)
        k("s_mov_b32 s60, 0")
        k(f"L_{tag}_ploop:")
        k(f"s_waitcnt vmcnt({per})")
        k("s_barrier")
        issue(); issue()
        k("s_add_u32 s60, s60, 2")
        k(f"s_cmp_lt_u32 s60, {NIT-4}")
        k(f"s_cbranch_scc1 L_{tag}_ploop")
        k(f"s_waitcnt vmcnt({per})")
        k("s_barrier")
        k("s_waitcnt vmcnt(0)")
        k("s_barrier")
    else:
        producer_loop(k, tag, 8, issue, 3 if STATIC else NS, NIT)
    if g1:
        k("s_and_b32 s34, s33, 1")
        k("s_lshr_b32 s36, s33, 1")
        k("v_and_b32 v2, 15, v1")
        k("v_lshlrev_b32 v2, 1, v2")
        k("s_lshl_b32 s37, s36, 7")
        k("s_add_u32 s37, s37, s31")
        for t in range(2):
            k(f"buffer_load_ushort v{BIAS+t}, v2, s[20:23], s37 offen offset:{64+32*t}")
        k("v_and_b32 v2, 15, v1")
        k("v_lshlrev_b32 v2, 11, v2")
        k("v_lshrrev_b32 v3, 4, v1")
        k(f"v_lshl_add_u32 v{OV}, v3, 4, v2")
        k("s_lshl_b32 s38, s29, 7")
        k("s_lshl_b32 s39, s36, 6")
        k("s_add_u32 s38, s38, s39")
        k("s_add_u32 s38, s38, 32")
        k("s_lshl_b32 s38, s38, 11")
        k("s_add_u32 s38, s38, s32")
        k("s_lshl_b32 s39, s34, 7")
        k("s_add_u32 s38, s38, s39")
        k("s_lshl_b32 s39, s33, 13")
        k(f"s_add_u32 s39, s39, {32768 if STATIC else (98304 if BAR2 else 65536)}")
        k("v_lshl_add_u32 v2, v1, 4, s39")
        k("s_setprio 0")
        k("s_barrier")
        for i in range(8): k(f"ds_read_b128 {vr(ACC+4*i,4)}, v2 offset:{1024*i}")
        k("s_waitcnt vmcnt(0) lgkmcnt(0)")
        k(f"s_branch L_{tag}_epi")
    if (not g1) and XSHARE:
        SHX, SHY = 0, 16384
        k("s_setprio 0")
        k("s_and_b32 s34, s33, 1")
        k("s_lshr_b32 s36, s33, 1")
        k("v_and_b32 v2, 15, v1")
        k("v_lshlrev_b32 v2, 1, v2")
        k("s_lshl_b32 s37, s36, 7")
        k("s_add_u32 s37, s37, s31")
        k("s_lshl_b32 s39, s62, 6")
        k("s_add_u32 s37, s37, s39")
        k(f"buffer_load_ushort v{BIAS}, v2, s[20:23], s37 offen offset:32")
        k("v_and_b32 v2, 15, v1")
        k("v_lshlrev_b32 v2, 11, v2")
        k("v_lshrrev_b32 v3, 4, v1")
        k(f"v_lshl_add_u32 v{OV}, v3, 4, v2")
        k("s_lshl_b32 s38, s29, 7")
        k("s_lshl_b32 s39, s36, 6")
        k("s_add_u32 s38, s38, s39")
        k("s_lshl_b32 s39, s62, 5")
        k("s_add_u32 s38, s38, s39")
        k("s_add_u32 s38, s38, 16")
        k("s_lshl_b32 s38, s38, 11")
        k("s_add_u32 s38, s38, s32")
        k("s_lshl_b32 s39, s34, 7")
        k("s_add_u32 s38, s38, s39")
        for tp in range(2):
            k(f"s_add_u32 s40, s38, {tp*64}")
            k(f"buffer_load_dwordx4 {vr(HL+4*tp,4)}, v{OV}, s[16:19], s40 offen")
        srd(k, 44, 26, 256*16384, 0x1E00000 if XB_SEP else VB_OFF)
        k("s_lshl_b32 s43, s2, 14")
        k("s_lshl_b32 s39, s33, 12")
        k("s_add_u32 s43, s43, s39")
        k("v_lshlrev_b32 v2, 4, v1")
        k("s_lshl_b32 s39, s33, 12")
        k("v_add_u32 v3, s39, v2")
        k("s_barrier")
        for i in range(4): k(f"ds_read_b128 {vr(ACC+4*i,4)}, v3 offset:{SHX+1024*i}")
        k("s_mov_b32 s41, 0")
        k(f"L_{tag}_spoll:")
        for i in range(4):
            k(f"s_add_u32 s39, s43, {1024*i}")
            k(f"buffer_load_dwordx4 {vr(Y+32+4*i,4)}, v2, s[44:47], s39 offen sc0 sc1")
        k("s_add_u32 s41, s41, 1")
        k("s_waitcnt vmcnt(0)")
        k(f"v_max3_u32 v5, v{Y+32}, v{Y+33}, v{Y+34}")
        for i in range(3, 15, 2): k(f"v_max3_u32 v5, v5, v{Y+32+i}, v{Y+32+i+1}")
        k(f"v_max_u32 v5, v5, v{Y+47}")
        k("v_cmp_eq_u32 vcc, -1, v5")
        k("s_nop 4")
        k("s_cmp_ge_u32 s41, 0x20000")
        k(f"s_cbranch_scc1 L_{tag}_spolld")
        k(f"s_cbranch_vccnz L_{tag}_spoll")
        k(f"L_{tag}_spolld:")
        k("s_lshl_b32 s39, s33, 11")
        k("v_add_u32 v3, s39, v2")
        k(f"ds_write_b128 v3, {vr(Y+32,4)} offset:{SHY}")
        k(f"ds_write_b128 v3, {vr(Y+36,4)} offset:{SHY+1024}")
        k("s_waitcnt lgkmcnt(0)")
        k("s_barrier")
        k(f"s_branch L_{tag}_epi")
    stamp_end(k, tag, tid=256, slot=256, sfx='p')
    if fused and g1:
        return k, NV, STG*NS
    k(f"{ENDL}:")
    k("s_endpgm")
    return k, NV, STG*NS

def gelu_pair(k, src, u, w, bias, dst):
    if EMU_U:
        k(f"{CVT} v{w}, v{src}, v{src+1}")
        k(f"v_lshlrev_b32 v{u}, 16, v{w}")
        k(f"v_and_b32 v{u+1}, s40, v{w}")
        k(f"v_add_f32 v{u}, v{u}, v{bias}")
        k(f"v_add_f32 v{u+1}, v{u+1}, v{bias}")
        k(f"{CVT} v{w}, v{u}, v{u+1}")
        k(f"v_lshlrev_b32 v{u}, 16, v{w}")
        k(f"v_and_b32 v{u+1}, s40, v{w}")
    else:
        k(f"v_add_f32 v{u}, v{src}, v{bias}")
        k(f"v_add_f32 v{u+1}, v{src+1}, v{bias}")
    k(f"v_pk_mul_f32 {vr(w,2)}, {vr(u,2)}, {vr(u,2)}")
    k(f"v_pk_fma_f32 {vr(w,2)}, {vr(w,2)}, s[42:43], {vr(4,2)} op_sel_hi:[1,0,1]")
    k(f"v_pk_mul_f32 {vr(w,2)}, {vr(w,2)}, {vr(u,2)}")
    k(f"v_exp_f32 v{w}, v{w}")
    k(f"v_exp_f32 v{w+1}, v{w+1}")
    k(f"s_nop 0")
    k(f"v_pk_add_f32 {vr(w,2)}, {vr(w,2)}, {vr(6,2)}")
    k(f"v_rcp_f32 v{w}, v{w}")
    k(f"v_rcp_f32 v{w+1}, v{w+1}")
    k(f"s_nop 0")
    k(f"v_pk_mul_f32 {vr(w,2)}, {vr(w,2)}, {vr(u,2)}")
    k(f"{CVT} v{dst}, v{w}, v{w+1}")

RPAT = [2, 1]
FUSE_GG = 0
W1IDLE = 0
EMU_LN = 0
EMU_L2 = 0
NT_B1 = ''
NT_B2 = ''
NT_X = ''
NT_W = ''
KHALF = 1
XSENT = 1
XSHARE = 0
XWAIT = 1
XBF16 = 1
EMU_Y = 0
PERTURB = 0
PSLEEP = 4
POLLF = 'sc0 sc1'
STATIC = 1
LOOPSTAMP = 0
BAR2 = 0
FAKE32 = 0
MAP2 = 0
XB_SEP = 1
FORCE_FAR = 0
PPRIO = 3
PFD = 0
KPERM = 1
FAKE16 = 0
NS1 = 3
NS2 = 3
KWRAP = 0
W2PF = 7
EMU_U = 0
RPG1 = 3
RPG2 = 4
def gen_gg():
    k1, nv1, l1 = gemm_kernel('g1', True)
    k2, nv2, l2 = gemm_kernel('g2', True)
    k1.l += k2.l
    return k1, max(nv1, nv2), max(l1, l2)
def gen_g1(): return gemm_kernel('g1')
def gen_g2(): return gemm_kernel('g2')

KERNELS = [('p1_kernel', gen_p1, (256,1,1), (256,1,1)), ('p2_kernel', gen_p2, (256,1,1), (256,1,1)), ('p3_kernel', gen_p3, (256,1,1), (256,1,1)),
 ('g1_kernel', gen_g1, (256,1,1), (512,1,1)), ('g2_kernel', gen_g2, (256,1,1), (512,1,1))]

def build_all(kernels=None):
    ks = []
    if kernels is None:
        kernels = KERNELS[:3] + [('gg_kernel', gen_gg, (256,1,1), (512,1,1))] if FUSE_GG else KERNELS
    for name, fn, grid, block in kernels:
        if W1PF and name in ('p2_kernel', 'p3_kernel'): block = (320, 1, 1)
        k, nv, lds = fn()
        if ST_ALL:
            k.l = [ (x + ' ' + ST_ALL) if ('buffer_store' in x and 'sc1' not in x and 'sc0' not in x and ' nt' not in x) else x for x in k.l]
        if name.startswith('g'):
            if NO_DMA: k.l = [x for x in k.l if not ('offen lds' in x)]
            if NO_MFMA: k.l = [x for x in k.l if 'v_mfma' not in x]
            if NO_ADV: k.l = [x for x in k.l if not (x.strip().startswith('s_add_u32 s40, s40,') or x.strip().startswith('s_add_u32 s41, s41,'))]
            if NO_A: k.l = [x for x in k.l if not ('s[12:15]' in x and 'offen lds' in x)]
            if NO_B: k.l = [x for x in k.l if not ('s[8:11]' in x and 'offen lds' in x)]
            if NO_BAR: k.l = [x for x in k.l if 's_barrier' not in x]
            if NO_READ: k.l = [x for x in k.l if 'ds_read_b64_tr' not in x]
        ks.append((name, k, nv, lds, grid, block))
    hdr = open('sequential_preLN__spectral_gfnet__mixer_token_mlp__prompt.s.ref').read().split('; Override launch')[0]
    s = hdr
    for name, k, nv, lds, grid, block in ks:
        s += f"; @launch kernel={name} grid=({grid[0]},{grid[1]},{grid[2]}) block=({block[0]},{block[1]},{block[2]}) lds={lds}\n"
    s += '.amdgcn_target "amdgcn-amd-amdhsa--gfx950"\n.text\n'
    for name, k, nv, lds, grid, block in ks: s += k.text()
    s += 'L_text_end:\n'
    s += '.section .rodata,"a"\n'
    for name, k, nv, lds, grid, block in ks: s += descriptor(name, nv)
    return s, ks

if __name__ == '__main__':
    s, ks = build_all()
    open(sys.argv[1] if len(sys.argv) > 1 else 'out.s', 'w').write(s)
    print('written', len(s), 'bytes')
```

```python
import sys, math, struct
sys.path.insert(0, 'work')
from asmlib import *

ZW_OFF = 0x0          ; ZW_SIZE = 257*32768
ZD_OFF = 0x0 ; WB_OFF = 0x480000
VB_OFF = 0x900000     ; VB_BLK = 256*64
H_OFF  = 0xE00000
HN_OFF = 0x1200000
GT_OFF = 0x1600000
WS_USED = 0x1D00000
S, D, F = 2048, 1024, 3584

def f32(x):
    return '0x%08x' % struct.unpack('<I', struct.pack('<f', x))[0]

CVT = 'v_cvt_pk_bf16_f32'
STAMP = False
NO_DMA = False
NO_MFMA = False
NO_READ = False
NO_BAR = False
NO_ADV = False
NO_A = False
NO_B = False
STAMP_OFF = 0x3000000
KIDX = {'p1':0,'p2':1,'p3':2,'g1':3,'g2':4}
NMARK = 8
def mark(k, i):
    if STAMP and not (LOOPSTAMP and k.name.startswith('g') and 1 <= i <= 4): k(f"s_memrealtime s[{64+2*i}:{65+2*i}]")
def stamp_begin(k):
    if STAMP:
        for i in range(1, NMARK): k(f"s_mov_b64 s[{64+2*i}:{65+2*i}], 0")
        k("s_memrealtime s[64:65]")
        k("s_memtime s[94:95]")
def stamp_end(k, tag, tid=0, slot=0, sfx=''):
    if not STAMP: return
    mark(k, 6)
    k("s_waitcnt vmcnt(0) lgkmcnt(0)")
    mark(k, 7)
    k("s_memtime s[84:85]")
    k("s_load_dwordx2 s[88:89], s[0:1], 80")
    k("s_waitcnt lgkmcnt(0)")
    k(f"s_add_u32 s88, s88, {STAMP_OFF + KIDX[tag]*65536}")
    k("s_addc_u32 s89, s89, 0")
    k(f"s_add_u32 s87, s2, {slot}")
    k("s_lshl_b32 s87, s87, 7")
    k("v_mov_b32 v8, s87")
    k(f"v_cmp_eq_u32 vcc, {tid}, v0" if tid <= 64 else f"v_cmp_eq_u32 vcc, {hex(tid)}, v0")
    k("s_and_saveexec_b64 s[86:87], vcc")
    k(f"s_cbranch_execz L_{tag}_nostamp{sfx}")
    for i in range(0, NMARK, 2):
        for j in range(4): k(f"v_mov_b32 v{4+j}, s{64+2*i+j}")
        k(f"global_store_dwordx4 v8, v[4:7], s[88:89] offset:{8*i}")
        k("s_nop 1")
    k("v_mov_b32 v4, s94"); k("v_mov_b32 v5, s95"); k("v_mov_b32 v6, s84"); k("v_mov_b32 v7, s85")
    k("global_store_dwordx4 v8, v[4:7], s[88:89] offset:64")
    k("s_getreg_b32 s84, hwreg(HW_REG_XCC_ID, 0, 4)")
    k("s_nop 1")
    k("v_mov_b32 v4, s84")
    k("global_store_dword v8, v4, s[88:89] offset:80")
    k(f"L_{tag}_nostamp{sfx}:")

MF32 = 'v_mfma_f32_32x32x16_bf16'

CODEPF = 1
W1PF = 0
W1PF0 = 0
W1L2 = 0
ST_FLAGS = ''
ST_ALL = ''
ST_P1 = 'sc1'
ST_P2 = 'sc1'
ST_P3 = 'sc1'
ST_G1 = 'sc1'
ST_G2 = 'nt'
OUT_TOUCH = 0
def code_prefetch(k, tag, first_label, last_label, vtmp, stmp, nwaves_cond=None):
    if not CODEPF: return
    k(f"s_getpc_b64 s[{stmp}:{stmp+1}]")
    k(f"L_{tag}_pc:")
    k(f"s_add_u32 s{stmp}, s{stmp}, {first_label}-L_{tag}_pc")
    k(f"s_addc_u32 s{stmp+1}, s{stmp+1}, 0")

WS_BASE = 0
def srd(k, s, base, size, off=0):
    if base == 26: off += WS_BASE
    if off:
        k(f"s_add_u32 s{s}, s{base}, {hex(off)}")
        k(f"s_addc_u32 s{s+1}, s{base+1}, 0")
    else:
        k(f"s_mov_b32 s{s}, s{base}")
        k(f"s_mov_b32 s{s+1}, s{base+1}")
    k(f"s_mov_b32 s{s+2}, {hex(size)}")
    k(f"s_mov_b32 s{s+3}, 0x20000")

SEQ = [(r, c) for r in range(4) for c in range(4)]

def rot_setup(k, vA, t):
    k(f"v_mul_f32 v{t+4}, {f32(5.0)}, v{vA}")
    k(f"v_cos_f32 v{t}, v{vA}")
    k(f"v_sin_f32 v{t+1}, v{vA}")
    k(f"v_cos_f32 v{t+2}, v{t+4}")
    k(f"v_sin_f32 v{t+3}, v{t+4}")

def rot(k, dst, src, st, tmp, sign):
    k(f"v_pk_mul_f32 {vr(tmp,2)}, {vr(src,2)}, {vr(st,2)} op_sel_hi:[1,0]")
    neg = "neg_lo:[0,1,0]" if sign > 0 else "neg_hi:[0,1,0]"
    k(f"v_pk_fma_f32 {vr(dst,2)}, {vr(src,2)}, {vr(st,2)}, {vr(tmp,2)} op_sel:[1,1,0] op_sel_hi:[0,1,1] {neg}")

def gen_matrix(k, Mr, Mi, vA, vB, t):
    rot_setup(k, vA, t)
    cur = [t+6, t+8]
    k(f"v_cos_f32 v{cur[0]}, v{vB}")
    k(f"v_sin_f32 v{cur[0]+1}, v{vB}")
    k("s_nop 0")
    for i, (r, c) in enumerate(SEQ):
        a_, b_ = cur[i % 2], cur[(i+1) % 2]
        if i < 15: rot(k, b_, a_, t+2 if c == 3 else t, t+4, +1)
        k(f"{CVT} v{Mr+i}, v{a_}, v{a_+1}")
        k(f"{CVT} v{Mi+i}, -v{a_+1}, v{a_}")

def gen_twiddle(k, tw, vA, vB, t, scale=None):
    rot_setup(k, vA, t)
    k(f"v_cos_f32 v{tw}, v{vB}")
    k(f"v_sin_f32_e64 v{tw+1}, -v{vB}")
    if scale is not None:
        k(f"v_mul_f32 v{tw}, {f32(scale)}, v{tw}")
        k(f"v_mul_f32 v{tw+1}, {f32(scale)}, v{tw+1}")
    else: k("s_nop 0")
    for i, (r, c) in enumerate(SEQ):
        if i < 15: rot(k, tw+2*(i+1), tw+2*i, t+2 if c == 3 else t, t+4, -1)

def stage(k, typ, Dr, Di, data, Mr, Mi, first=True):
    for r in range(4):
        for (Dx, M) in ((Dr, Mr), (Di, Mi)):
            c = '0' if (r == 0 and first) else vr(Dx, 16)
            if typ == 'A': k(f"{MF32} {vr(Dx,16)}, {vr(data+4*r,4)}, {vr(M+4*r,4)}, {c}")
            else:          k(f"{MF32} {vr(Dx,16)}, {vr(M+4*r,4)}, {vr(data+4*r,4)}, {c}")

def cmul_pack(k, Dr, Di, w, out, t, conj=False):
    for j in range(16):
        o = t + 2*(j % 4); jp = j & ~1; x = j & 1
        k(f"v_pk_mul_f32 {vr(o,2)}, {vr(w+2*j,2)}, {vr(Dr+jp,2)} op_sel:[0,{x}] op_sel_hi:[1,{x}]")
        k(f"v_pk_fma_f32 {vr(o,2)}, {vr(w+2*j,2)}, {vr(Di+jp,2)}, {vr(o,2)} op_sel:[1,{x},0] op_sel_hi:[0,{x},1] neg_lo:[1,0,0]")
        if j >= 1:
            po = t + 2*((j-1) % 4); n = '-' if conj else ''
            k(f"{CVT} v{out+j-1}, v{po}, {n}v{po+1}")
    po = t + 2*(15 % 4); n = '-' if conj else ''
    k(f"{CVT} v{out+15}, v{po}, {n}v{po+1}")

def wave_reduce2(k, a, b):
    for m in ("quad_perm:[1,0,3,2] row_mask:0xf", "quad_perm:[2,3,0,1] row_mask:0xf", "row_half_mirror row_mask:0xf",
              "row_mirror row_mask:0xf", "row_bcast:15 row_mask:0xa", "row_bcast:31 row_mask:0xc"):
        k(f"v_add_f32_dpp v{a}, v{a}, v{a} {m} bank_mask:0xf")
        k(f"v_add_f32_dpp v{b}, v{b}, v{b} {m} bank_mask:0xf")

def tree_sum(k, X, n, t, op='add'):
    acc = [t, t+2, t+4, t+6]
    for i in range(4):
        k(f"v_pk_add_f32 {vr(acc[i],2)}, {vr(X+2*i,2)}, {vr(X+2*(i+4),2)}")
    for i in range(8, n):
        k(f"v_pk_add_f32 {vr(acc[i%4],2)}, {vr(acc[i%4],2)}, {vr(X+2*i,2)}")
    k(f"v_pk_add_f32 {vr(acc[0],2)}, {vr(acc[0],2)}, {vr(acc[1],2)}")
    k(f"v_pk_add_f32 {vr(acc[2],2)}, {vr(acc[2],2)}, {vr(acc[3],2)}")
    k(f"v_pk_add_f32 {vr(acc[0],2)}, {vr(acc[0],2)}, {vr(acc[2],2)}")

def ln_scalars(k, t):
    k(f"v_mul_f32 v{t}, {f32(1/1024)}, v{t}")
    k(f"v_mul_f32 v{t+1}, {f32(1/1024)}, v{t+1}")
    if EMU_LN:
        k(f"{CVT} v{t+2}, v{t}, v{t+1}")
        k(f"v_lshlrev_b32 v{t}, 16, v{t+2}")
        k(f"v_and_b32 v{t+1}, 0xffff0000, v{t+2}")
    k(f"v_add_f32 v{t}, {f32(1e-5)}, v{t}")
    k(f"v_add_f32 v{t+1}, {f32(1e-5)}, v{t+1}")
    if EMU_LN:
        k(f"{CVT} v{t+2}, v{t}, v{t+1}")
        k(f"v_lshlrev_b32 v{t}, 16, v{t+2}")
        k(f"v_and_b32 v{t+1}, 0xffff0000, v{t+2}")
        k(f"v_sqrt_f32 v{t}, v{t}")
        k(f"v_sqrt_f32 v{t+1}, v{t+1}")
        k(f"s_nop 0")
        k(f"{CVT} v{t+2}, v{t}, v{t+1}")
        k(f"v_lshlrev_b32 v{t}, 16, v{t+2}")
        k(f"v_and_b32 v{t+1}, 0xffff0000, v{t+2}")
        k(f"v_rcp_f32 v{t}, v{t}")
        k(f"v_rcp_f32 v{t+1}, v{t+1}")
    else:
        k(f"v_rsq_f32 v{t}, v{t}")
        k(f"v_rsq_f32 v{t+1}, v{t+1}")
    k(f"s_nop 0")
    k(f"v_mul_f32 v{t+12}, v{t+12}, v{t}")
    k(f"v_mul_f32 v{t+13}, v{t+13}, v{t+1}")

def ln_mean(k, t, sTmp):
    k(f"v_mul_f32 v{t}, {f32(1/1024)}, v{t}")
    k(f"v_mul_f32 v{t+1}, {f32(1/1024)}, v{t+1}")
    if EMU_LN:
        k(f"{CVT} v{t+2}, v{t}, v{t+1}")
        k(f"v_readlane_b32 s{sTmp}, v{t}, 63")
        k(f"v_readlane_b32 s{sTmp+1}, v{t+1}, 63")
        k(f"v_lshlrev_b32 v{t+12}, 16, v{t+2}")
        k(f"v_and_b32 v{t+13}, 0xffff0000, v{t+2}")
    else:
        k(f"v_mov_b32 v{t+12}, v{t}")
        k(f"v_mov_b32 v{t+13}, v{t+1}")
        k(f"v_readlane_b32 s{sTmp}, v{t}, 63")
        k(f"v_readlane_b32 s{sTmp+1}, v{t+1}, 63")

def ln_stats_xrow(k, X, t, sM, sR, sTmp):
    tree_sum(k, X, 16, t)
    wave_reduce2(k, t, t+1)
    ln_mean(k, t, sTmp)
    acc = [t, t+2]; tmp = [t+4, t+6, t+8, t+10]
    for i in range(16):
        d = tmp[i % 4]
        k(f"v_pk_add_f32 {vr(d,2)}, {vr(X+2*i,2)}, {sr(sTmp,2)} neg_lo:[0,1] neg_hi:[0,1]")
        a = acc[i % 2]
        if i < 2: k(f"v_pk_mul_f32 {vr(a,2)}, {vr(d,2)}, {vr(d,2)}")
        else:     k(f"v_pk_fma_f32 {vr(a,2)}, {vr(d,2)}, {vr(d,2)}, {vr(a,2)}")
    k(f"v_pk_add_f32 {vr(t,2)}, {vr(t,2)}, {vr(t+2,2)}")
    wave_reduce2(k, t, t+1)
    ln_scalars(k, t)
    k(f"v_readlane_b32 s{sR}, v{t}, 63")
    k(f"v_readlane_b32 s{sR+1}, v{t+1}, 63")
    k(f"v_readlane_b32 s{sM}, v{t+12}, 63")
    k(f"v_readlane_b32 s{sM+1}, v{t+13}, 63")

def gen_p1():
    k = Kern('p1_kernel')
    k("s_cmp_ge_u32 s2, 256")
    k("s_cbranch_scc1 L_p1_end")
    stamp_begin(k)
    k("s_load_dwordx4 s[4:7], s[0:1], 0")
    k("s_load_dwordx2 s[24:25], s[0:1], 16")
    k("s_load_dwordx2 s[60:61], s[0:1], 32")
    k("s_load_dwordx2 s[26:27], s[0:1], 80")
    TID, LANE = 0, 1
    if CODEPF:
        k("s_getpc_b64 s[52:53]")
        k("L_p1_pc:")
        k("s_sub_u32 s52, s52, L_p1_pc-p1_kernel")
        k("s_subb_u32 s53, s53, 0")
        k("v_lshlrev_b32 v210, 7, v0")
        k("v_mov_b32 v211, s53")
        k("v_add_co_u32 v210, vcc, s52, v210")
        k("v_addc_co_u32 v211, vcc, 0, v211, vcc")
        k("v_cmp_gt_u32 vcc, (L_p1_endc-p1_kernel+127)/128, v0")
        k("s_and_saveexec_b64 s[54:55], vcc")
        k("s_cbranch_execz L_p1_cp0")
        k("global_load_dword v212, v[210:211], off")
        k("L_p1_cp0:")
        k("s_mov_b64 exec, -1")
        k("s_bfe_u32 s54, s2, 0x10003")
        k("s_lshl_b32 s54, s54, 15")
        k("s_add_u32 s54, s54, L_p1_endc-p1_kernel")
        k("v_add_co_u32 v210, vcc, s54, v210")
        k("v_addc_co_u32 v211, vcc, 0, v211, vcc")
        k("v_lshlrev_b32 v213, 7, v0")
        k("v_add_u32 v213, s54, v213")
        k("v_cmp_gt_u32 vcc, L_text_end-p1_kernel, v213")
        k("s_and_saveexec_b64 s[54:55], vcc")
        k("s_cbranch_execz L_p1_cp1")
        k("global_load_dword v212, v[210:211], off")
        k("L_p1_cp1:")
        k("s_mov_b64 exec, -1")
    k("v_and_b32 v1, 63, v0")
    k("v_lshrrev_b32 v2, 6, v0")
    k("v_readfirstlane_b32 s28, v2")
    k("s_lshr_b32 s29, s2, 5")
    k("s_lshl_b32 s29, s29, 2")
    k("s_and_b32 s30, s2, 31")
    k("s_add_u32 s31, s29, s28")
    k("s_lshl_b32 s31, s31, 5")
    k("s_add_u32 s31, s31, s30")
    k("s_lshl_b32 s31, s31, 11")
    k("s_add_u32 s32, s31, 0x200000")
    k("s_waitcnt lgkmcnt(0)")
    srd(k, 8, 4, S*D*2)
    srd(k, 12, 6, S*513*2)
    srd(k, 16, 24, S*513*2)
    srd(k, 20, 26, 257*16384, ZD_OFF)
    srd(k, 72 if False else 52, 26, 257*16384, WB_OFF) if False else None
    XL = 4
    if FUSE_GG:
        srd(k, 56, 26, 1024, BAR_OFF)
        k("s_cmp_lt_u32 s2, 8")
        k("s_cbranch_scc0 L_p1_nozb")
        k("s_lshl_b32 s33, s2, 7")
        k("v_mov_b32 v2, 0")
        k("v_cmp_eq_u32 vcc, 0, v0")
        k("s_and_saveexec_b64 s[34:35], vcc")
        k("s_cbranch_execz L_p1_nozb")
        k("buffer_store_dword v2, v2, s[56:59], s33 offen sc0 sc1")
        k("L_p1_nozb:")
        k("s_mov_b64 exec, -1")
    k("v_lshlrev_b32 v2, 4, v1")
    k(f"buffer_load_dwordx4 {vr(XL,4)}, v2, s[8:11], s31 offen {NT_X}")
    k(f"buffer_load_dwordx4 {vr(XL+4,4)}, v2, s[8:11], s31 offen offset:1024 {NT_X}")
    k(f"buffer_load_dwordx4 {vr(XL+8,4)}, v2, s[8:11], s32 offen {NT_X}")
    k(f"buffer_load_dwordx4 {vr(XL+12,4)}, v2, s[8:11], s32 offen offset:1024 {NT_X}")
    WL = 20
    def w_loads():
        k("v_lshlrev_b32 v220, 2, v0")
        k("s_lshl_b32 s33, s29, 6")
        k("s_lshl_b32 s34, s30, 1")
        k("s_add_u32 s33, s33, s34")
        k("s_mul_i32 s33, s33, 1026")
        for pi in range(2):
            for cc in range(4):
                off = (64*cc + pi)*1026
                k(f"s_add_u32 s34, s33, {off}")
                k(f"buffer_load_dword v{WL+4*pi+cc}, v220, s[12:15], s34 offen {NT_W}")
                k(f"buffer_load_dword v{WL+8+4*pi+cc}, v220, s[16:19], s34 offen {NT_W}")
        WX = 200
        k("v_and_b32 v200, 3, v1")
        k("v_lshlrev_b32 v200, 6, v200")
        k("v_bfe_u32 v201, v1, 2, 1")
        k("v_add_u32 v200, v200, v201")
        k("v_mul_u32_u24 v200, 1026, v200")
        k("v_add_u32 v200, 1024, v200")
        k("v_and_b32 v226, 3, v1")
        k("v_lshlrev_b32 v226, 6, v226")
        k("v_add_u32 v226, v226, v201")
        k("s_lshl_b32 s49, s29, 6")
        k("s_lshl_b32 s50, s30, 1")
        k("s_add_u32 s49, s49, s50")
        k("v_add_u32 v226, s49, v226")
        k("v_sub_u32 v226, 2048, v226")
        k("v_and_b32 v226, 2047, v226")
        k("v_mul_u32_u24 v226, 1026, v226")
        k("v_subrev_u32 v227, 1024, v200")
        k("v_cmp_gt_u32 vcc, 8, v0")
        k("s_and_saveexec_b64 s[36:37], vcc")
        k("s_cbranch_execz L_p1_nox")
        k("buffer_load_ushort v202, v200, s[12:15], s33 offen")
        k("buffer_load_ushort v203, v200, s[16:19], s33 offen")
        k("buffer_load_ushort v228, v227, s[12:15], s33 offen")
        k("buffer_load_ushort v229, v227, s[16:19], s33 offen")
        k("buffer_load_ushort v230, v226, s[12:15], 0 offen")
        k("buffer_load_ushort v231, v226, s[16:19], 0 offen")
        k("buffer_load_ushort v232, v226, s[12:15], 0 offen offset:1024")
        k("buffer_load_ushort v233, v226, s[16:19], 0 offen offset:1024")
        k("L_p1_nox:")
        k("s_mov_b64 exec, -1")
    if WEARLY: w_loads()
    WL = 20
    Mr, Mi, TW = 36, 52, 68
    XF, DR, DI, OP, T = 100, 132, 148, 164, 180
    k("v_and_b32 v2, 31, v1")
    k("v_cvt_f32_u32 v2, v2")
    k("v_lshrrev_b32 v3, 5, v1")
    k("v_lshlrev_b32 v3, 2, v3")
    k("v_cvt_f32_u32 v3, v3")
    k(f"v_mul_f32 v204, {f32(1/32)}, v2")
    k("v_mul_f32 v205, v204, v3")
    gen_matrix(k, Mr, Mi, 204, 205, T)
    k(f"v_mul_f32 v204, {f32(1/1024)}, v2")
    k("v_mul_f32 v205, v204, v3")
    gen_twiddle(k, TW, 204, 205, T)
    STG = 16384; WST = STG + 257*64 + 64
    k("s_lshr_b32 s44, s2, 2")
    k("s_and_b32 s44, s44, 3")
    k("s_mov_b32 s45, 0x05040100")
    k("s_mov_b32 s46, 0x07060302")
    k("s_lshl_b32 s47, s2, 6")
    k("s_lshl_b32 s48, s28, 2")
    k(f"s_add_u32 s48, s48, {STG}")
    B1, B2, AWJ, AX, ARD, AGL, AT1, AT2, AWR, AWG = 206, 207, 208, 209, 216, 217, 218, 219, 221, 222
    k("v_and_b32 v2, 31, v1")
    k("v_lshrrev_b32 v3, 5, v1")
    k("v_and_b32 v204, 1, v2")
    k("v_lshrrev_b32 v205, 1, v2")
    k(f"v_xor_b32 v{B1}, s44, v204")
    k(f"v_lshlrev_b32 v{B1}, 4, v{B1}")
    k(f"v_lshl_add_u32 v{B1}, v205, 6, v{B1}")
    k(f"v_lshl_add_u32 v{B1}, v3, 12, v{B1}")
    k(f"v_add_u32 v{B1}, s48, v{B1}")
    k("v_add_u32 v205, 1, v2")
    k("v_lshrrev_b32 v205, 1, v205")
    k("v_add_u32 v204, 2, v204")
    k(f"v_xor_b32 v{B2}, s44, v204")
    k(f"v_lshlrev_b32 v{B2}, 4, v{B2}")
    k("v_lshlrev_b32 v205, 6, v205")
    k(f"v_sub_u32 v{B2}, v{B2}, v205")
    k("v_lshlrev_b32 v205, 12, v3")
    k(f"v_sub_u32 v{B2}, v{B2}, v205")
    k(f"v_add_u32 v{B2}, s48, v{B2}")
    k("s_lshl_b32 s49, s28, 12")
    k(f"s_add_u32 s49, s49, {WST}")
    k("v_bfe_u32 v204, v1, 1, 2")
    k("v_xor_b32 v204, s44, v204")
    k("v_lshlrev_b32 v204, 4, v204")
    k(f"v_lshl_add_u32 v{AWJ}, v1, 6, v204")
    k(f"v_add_u32 v{AWJ}, s49, v{AWJ}")
    k("v_lshrrev_b32 v204, 2, v1")
    k("v_and_b32 v205, 3, v1")
    k(f"v_bfe_u32 v{AT1}, v204, 1, 2")
    k(f"v_xor_b32 v{AT1}, v{AT1}, v205")
    k(f"v_lshlrev_b32 v{AT1}, 4, v{AT1}")
    k(f"v_lshl_add_u32 v{AWR}, v204, 6, v{AT1}")
    k(f"v_add_u32 v{AWR}, s49, v{AWR}")
    k("s_lshl_b32 s49, s28, 6")
    k("v_add_u32 v204, s49, v204")
    k("v_lshlrev_b32 v204, 14, v204")
    k(f"v_lshl_add_u32 v{AWG}, v205, 4, v204")
    k("v_bfe_u32 v204, v1, 2, 1")
    k("v_xor_b32 v204, s44, v204")
    k("v_lshlrev_b32 v204, 4, v204")
    k("v_and_b32 v205, 3, v1")
    k(f"v_lshl_add_u32 v{AX}, v205, 2, v204")
    APW = 223
    k(f"v_add_u32 v{APW}, {WST}, v{AX}")
    k(f"v_lshlrev_b32 v{ARD}, 4, v0")
    k(f"v_add_u32 v{ARD}, {STG}, v{ARD}")
    k("v_lshrrev_b32 v204, 2, v0")
    k("v_lshlrev_b32 v204, 14, v204")
    k("v_and_b32 v205, 3, v0")
    k(f"v_lshl_add_u32 v{AGL}, v205, 4, v204")
    k("s_xor_b32 s49, s44, 2")
    k("s_lshl_b32 s49, s49, 4")
    k("s_add_u32 s49, s49, s48")
    k("s_lshl_b32 s50, s44, 4")
    k("s_add_u32 s50, s50, s48")
    k(f"v_mov_b32 v{AT1}, s49")
    k(f"v_mov_b32 v{AT2}, s50")
    k("s_lshl_b32 s36, s28, 12")
    k("v_lshlrev_b32 v2, 5, v1")
    k("v_add_u32 v2, s36, v2")
    k("v_and_b32 v3, 31, v1")
    k("v_lshlrev_b32 v3, 2, v3")
    k("v_lshrrev_b32 v204, 5, v1")
    k("v_lshlrev_b32 v204, 9, v204")
    k("v_add3_u32 v3, v3, v204, s36")
    k("s_mov_b32 s35, 0xffff0000")
    mark(k, 1)
    k("s_waitcnt vmcnt(16)" if WEARLY else "s_waitcnt vmcnt(0)")
    mark(k, 2)
    if not WEARLY: w_loads()
    for i in range(16):
        for row in range(2):
            src = XL + 8*row + (i >> 1)
            if i % 2 == 0: k(f"v_lshlrev_b32 v{XF+2*i+row}, 16, v{src}")
            else:          k(f"v_and_b32 v{XF+2*i+row}, s35, v{src}")
    ln_stats_xrow(k, XF, T, 38, 40, 42)
    k(f"v_mov_b32 v{T+8}, s40"); k(f"v_mov_b32 v{T+9}, s41")
    k(f"v_mov_b32 v{T+10}, s38"); k(f"v_mov_b32 v{T+11}, s39")
    for i in range(16):
        d = T + 2*(i % 4)
        k(f"v_pk_fma_f32 {vr(d,2)}, {vr(XF+2*i,2)}, {vr(T+8,2)}, {vr(T+10,2)} neg_lo:[0,0,1] neg_hi:[0,0,1]")
        k(f"{CVT} v{OP+i}, v{d}, v{d+1}")
    k(f"ds_write_b128 v2, {vr(OP,4)}")
    k(f"ds_write_b128 v2, {vr(OP+4,4)} offset:16")
    k(f"ds_write_b128 v2, {vr(OP+8,4)} offset:2048")
    k(f"ds_write_b128 v2, {vr(OP+12,4)} offset:2064")
    k("s_waitcnt lgkmcnt(0)")
    for i, (r, c) in enumerate(SEQ):
        k(f"ds_read_b32 v{OP+i}, v3 offset:{(8*r+c)*128}")
    mark(k, 3)
    k("s_waitcnt lgkmcnt(0)")
    stage(k, 'A', DR, DI, OP, Mr, Mi)
    srd(k, 56, 26, 257*16384, WB_OFF)
    k("s_waitcnt vmcnt(0)")
    WO = XF
    for e in range(2):
        for pi in range(2):
            for cc in range(4):
                k(f"v_perm_b32 v{WO+4*(2*e+pi)+cc}, v{WL+8+4*pi+cc}, v{WL+4*pi+cc}, s{45+e}")
    for sl in range(4):
        if sl: k(f"v_xor_b32 v204, {16*sl}, v{AWJ}")
        k(f"ds_write_b128 v{204 if sl else AWJ}, {vr(WO+4*sl,4)}")
    k("s_add_u32 s49, s47, 0x400000")
    k("v_cmp_gt_u32 vcc, 8, v0")
    k("s_and_saveexec_b64 s[36:37], vcc")
    k("s_cbranch_execz L_p1_nox2")
    for r_ in (202, 203, 228, 229, 230, 231, 232, 233): k(f"v_lshlrev_b32 v{r_}, 16, v{r_}")
    k("v_add_f32 v228, v228, v230")
    k("v_sub_f32 v229, v229, v231")
    k("v_add_f32 v202, v202, v232")
    k("v_sub_f32 v203, v203, v233")
    k("v_add_f32 v230, v228, v202")
    k("v_add_f32 v231, v229, v203")
    k("v_sub_f32 v232, v228, v202")
    k("v_sub_f32 v233, v229, v203")
    for r_ in (230, 231, 232, 233): k(f"v_mul_f32 v{r_}, 0x3e800000, v{r_}")
    k(f"{CVT} v202, v230, v231")
    k(f"{CVT} v203, v232, v233")
    k(f"ds_write_b32 v{APW}, v202")
    k(f"buffer_store_dword v203, v{AX}, s[56:59], s49 offen {ST_P1}")
    k("L_p1_nox2:")
    k("s_mov_b64 exec, -1")
    k("s_waitcnt lgkmcnt(0)")
    for j in range(4): k(f"ds_read_b128 {vr(WO+16+4*j,4)}, v{AWR} offset:{1024*j}")
    k("s_mov_b32 s49, s47")
    for j in range(4):
        k(f"s_waitcnt lgkmcnt({3-j})")
        k(f"buffer_store_dwordx4 {vr(WO+16+4*j,4)}, v{AWG}, s[56:59], s49 offen {ST_P1}")
        if j < 3: k(f"s_add_u32 s49, s49, {16*16384}")
    cmul_pack(k, DR, DI, TW, OP, T)
    stage(k, 'B', DR, DI, OP, Mr, Mi)
    mark(k, 4)
    for i, (r, c) in enumerate(SEQ):
        if r < 2: k(f"{CVT} v{OP+i}, v{DR+i}, v{DI+i}")
        else:     k(f"{CVT} v{OP+i}, v{DI+i}, v{DR+i}")
        if r < 2: k(f"ds_write_b32 v{B1}, v{OP+i} offset:{(8*r+c)*1024}")
        else:     k(f"ds_write_b32 v{B2}, v{OP+i} offset:{(32-8*r-c)*1024}")
    k(f"v_sub_f32 v{T+2}, v{DR}, v{DI+8}")
    k(f"v_add_f32 v{T+3}, v{DI}, v{DR+8}")
    k(f"v_sub_f32 v{T+4}, v{DI}, v{DR+8}")
    k(f"v_add_f32 v{T+5}, v{DR}, v{DI+8}")
    k(f"{CVT} v{T}, v{T+4}, v{T+5}")
    k(f"{CVT} v{T+1}, v{T+2}, v{T+3}")
    k("s_mov_b64 exec, 1")
    k(f"ds_write_b32 v{AT1}, v{T}")
    k(f"ds_write_b32 v{AT2}, v{T+1}")
    k("s_mov_b64 exec, -1")
    k("s_waitcnt lgkmcnt(0)")
    k("s_barrier")
    RO = XF
    for j in range(4):
        k(f"ds_read_b128 {vr(RO+4*j,4)}, v{ARD} offset:{4096*j}")
    for j in range(4):
        k(f"s_waitcnt lgkmcnt({3-j})")
        k(f"buffer_store_dwordx4 {vr(RO+4*j,4)}, v{AGL}, s[20:23], s47 offen {ST_P1}")
        if j < 3: k("s_add_u32 s47, s47, 0x100000")
    stamp_end(k, 'p1')
    k("L_p1_end:")
    k("s_endpgm")
    k("L_p1_endc:")
    return k, 236, WST + 16384

def pf_wave(k, tag, first_line):
    if not W1PF: return
    k("s_cmp_eq_u32 s28, 4")
    k(f"s_cbranch_scc0 L_{tag}_nopf")
    k("s_waitcnt lgkmcnt(0)")
    srd(k, 16, 24, S*F*2)
    k(f"s_mul_i32 s33, s2, {W1PF*128}")
    k(f"s_add_u32 s33, s33, {first_line*128}")
    k("v_lshlrev_b32 v3, 7, v1")
    for i in range(W1PF//64):
        k("buffer_load_dword v4, v3, s[16:19], s33 offen")
        k("s_add_u32 s33, s33, 8192")
    k("s_endpgm")
    k(f"L_{tag}_nopf:")

def gen_p2():
    k = Kern('p2_kernel')
    k("s_cmp_ge_u32 s2, 256")
    k("s_cbranch_scc1 L_p2_end")
    stamp_begin(k)
    k("s_load_dwordx2 s[26:27], s[0:1], 80")
    k("s_load_dwordx2 s[24:25], s[0:1], 32")
    k("v_and_b32 v1, 63, v0")
    k("v_lshrrev_b32 v2, 6, v0")
    k("v_readfirstlane_b32 s28, v2")
    pf_wave(k, 'p2', W1PF0)
    k("v_lshlrev_b32 v2, 4, v1")
    k("s_lshr_b32 s29, s28, 1")
    k("s_and_b32 s30, s28, 1")
    k("s_lshl_b32 s31, s2, 14")
    k("s_lshl_b32 s32, s28, 12")
    k("s_add_u32 s31, s31, s32")
    k("s_waitcnt lgkmcnt(0)")
    srd(k, 8, 26, 257*16384, ZD_OFF)
    srd(k, 20, 26, 257*16384, WB_OFF)
    srd(k, 12, 26, 256*VB_BLK, VB_OFF)
    for i in range(4):
        k(f"s_add_u32 m0, s32, {1024*i}")
        k(f"s_add_u32 s33, s31, {1024*i}")
        k(f"buffer_load_dwordx4 v2, s[8:11], s33 offen lds")
    Z1, Z2 = 4, 20
    M1r, M1i, MFr, MFi, MIr, MIi = 36, 52, 68, 84, 100, 116
    T1, T2 = 132, 164
    DR, DI, T = 196, 212, 228
    A, B, J, H4, PI = 244, 245, 246, 247, 248
    k(f"v_and_b32 v{J}, 31, v1")
    k(f"v_cvt_f32_u32 v{J}, v{J}")
    k(f"v_lshrrev_b32 v{H4}, 5, v1")
    k(f"v_lshlrev_b32 v{H4}, 2, v{H4}")
    k(f"v_cvt_f32_u32 v{H4}, v{H4}")
    k(f"v_mov_b32 v{PI}, s30")
    k(f"v_cvt_f32_u32 v{PI}, v{PI}")
    k(f"v_mul_f32 v{A}, {f32(1/32)}, v{J}")
    k(f"v_mul_f32 v{B}, v{A}, v{H4}")
    gen_matrix(k, MFr, MFi, A, B, T)
    k(f"v_fma_f32 v{A}, v{J}, 2.0, v{PI}")
    k(f"v_mul_f32 v{A}, {f32(1/64)}, v{A}")
    k(f"v_mul_f32 v{B}, v{A}, v{H4}")
    gen_matrix(k, M1r, M1i, A, B, T)
    k("s_lshl_b32 s33, s30, 4")
    k(f"v_and_b32 v{T}, 31, v1")
    k(f"v_xor_b32 v{T}, s33, v{T}")
    k(f"v_cvt_f32_u32 v{T}, v{T}")
    k(f"v_mul_f32 v{A}, {f32(1/32)}, v{T}")
    k(f"v_mul_f32 v{B}, v{A}, v{H4}")
    k(f"v_mul_f32 v{T}, {f32(1/64)}, v{T}")
    k(f"v_fma_f32 v{B}, v{T}, v{PI}, v{B}")
    gen_matrix(k, MIr, MIi, A, B, T)
    k(f"v_fma_f32 v{A}, v{J}, 2.0, v{PI}")
    k(f"v_mul_f32 v{A}, {f32(1/2048)}, v{A}")
    k(f"v_mov_b32 v{T}, {f32(0.125)}")
    k(f"v_mul_f32 v{T+1}, {f32(-0.25)}, v{PI}")
    k(f"v_add_f32 v{T}, v{T}, v{T+1}")
    k(f"v_fma_f32 v{B}, v{A}, v{H4}, v{T}")
    gen_twiddle(k, T1, A, B, T)
    k(f"v_mul_f32 v{A}, {f32(1/1024)}, v{J}")
    k(f"v_mul_f32 v{B}, v{A}, v{H4}")
    k(f"v_mul_f32 v{T}, {f32(1/2048)}, v{J}")
    k(f"v_fma_f32 v{B}, v{T}, v{PI}, v{B}")
    gen_twiddle(k, T2, A, B, T)
    AZ1, AZ2, AW = 249, 250, 251
    k(f"v_bfe_u32 v{T}, v1, 2, 2")
    k(f"v_lshlrev_b32 v{T+1}, 6, v1")
    k(f"v_xor_b32 v{AZ1}, s29, v{T}")
    k(f"v_lshl_add_u32 v{AZ1}, v{AZ1}, 4, v{T+1}")
    k(f"v_xor_b32 v{AZ2}, 32, v{AZ1}")
    k("s_lshl_b32 s33, s29, 1")
    k("s_add_u32 s33, s33, s30")
    k(f"v_xor_b32 v{AW}, s33, v{T}")
    k(f"v_lshl_add_u32 v{AW}, v{AW}, 4, v{T+1}")
    k(f"v_add_u32 v{AW}, 16384, v{AW}")
    k("s_mul_i32 s34, s30, 0x80008000")
    k("s_mov_b32 s35, 0xffff0000")
    mark(k, 1)
    k("s_waitcnt vmcnt(0)")
    for i in range(4):
        k(f"s_add_u32 m0, s32, {16384+1024*i}")
        k(f"s_add_u32 s33, s31, {1024*i}")
        k(f"buffer_load_dwordx4 v2, s[20:23], s33 offen lds")
    k("s_barrier")
    mark(k, 2)
    for r in range(4):
        k(f"ds_read_b128 {vr(Z1+4*r,4)}, v{AZ1} offset:{4096*r}")
        k(f"ds_read_b128 {vr(Z2+4*r,4)}, v{AZ2} offset:{4096*r}")
    k("s_waitcnt lgkmcnt(0)")
    for i in range(16):
        k(f"v_xor_b32 v{Z2+i}, s34, v{Z2+i}")
    stage(k, 'A', DR, DI, Z1, M1r, M1i, first=True)
    stage(k, 'A', DR, DI, Z2, M1r, M1i, first=False)
    OP = Z1
    cmul_pack(k, DR, DI, T1, OP, T)
    k("s_waitcnt vmcnt(0)")
    k("s_barrier")
    for r in range(4):
        k(f"ds_read_b128 {vr(Z2+4*r,4)}, v{AW} offset:{4096*r}")
    stage(k, 'B', DR, DI, OP, MFr, MFi)
    WP = M1r
    k("s_waitcnt lgkmcnt(0)")
    for i in range(16):
        k(f"v_lshlrev_b32 v{WP+2*i}, 16, v{Z2+i}")
        k(f"v_and_b32 v{WP+2*i+1}, s35, v{Z2+i}")
    k("s_or_b32 s46, s2, s29")
    k("s_cmp_eq_u32 s46, 0")
    k("s_cbranch_scc1 L_p2_spec")
    cmul_pack(k, DR, DI, WP, OP, T, conj=True)
    k("L_p2_specd:")
    stage(k, 'A', DR, DI, OP, MFr, MFi)
    cmul_pack(k, DR, DI, T2, OP, T)
    stage(k, 'B', DR, DI, OP, MIr, MIi)
    mark(k, 4)
    XCH, STG = 32768, 49152
    AX = 252
    k("s_lshl_b32 s36, s28, 12")
    k(f"s_add_u32 s36, s36, {XCH}")
    k(f"v_lshl_add_u32 v{AX}, v1, 4, s36")
    k(f"ds_write_b128 v{AX}, {vr(DR+8,4)}")
    k(f"ds_write_b128 v{AX}, {vr(DR+12,4)} offset:1024")
    k(f"ds_write_b128 v{AX}, {vr(DI+8,4)} offset:2048")
    k(f"ds_write_b128 v{AX}, {vr(DI+12,4)} offset:3072")
    k(f"v_xor_b32 v{AX}, 4096, v{AX}")
    k("s_cmp_eq_u32 s30, 0")
    k(f"s_cselect_b32 s40, {f32(1.0)}, {f32(-1.0)}")
    k("s_mov_b32 s42, s40")
    k("s_waitcnt lgkmcnt(0)")
    k("s_barrier")
    OR_, OI = 36, 44
    k(f"ds_read_b128 {vr(OR_,4)}, v{AX}")
    k(f"ds_read_b128 {vr(OR_+4,4)}, v{AX} offset:1024")
    k(f"ds_read_b128 {vr(OI,4)}, v{AX} offset:2048")
    k(f"ds_read_b128 {vr(OI+4,4)}, v{AX} offset:3072")
    k(f"v_bfe_u32 v{T}, v1, 1, 2")
    k(f"v_xor_b32 v{T+1}, s29, v{T}")
    k(f"v_xor_b32 v{T+2}, 2, v{T+1}")
    k("s_lshl_b32 s43, s30, 13")
    k(f"s_add_u32 s43, s43, {STG}")
    k(f"v_lshl_add_u32 v{T+3}, v1, 6, s43")
    k(f"v_lshl_add_u32 v253, v{T+1}, 4, v{T+3}")
    k(f"v_lshl_add_u32 v254, v{T+2}, 4, v{T+3}")
    k("s_waitcnt lgkmcnt(0)")
    UA, UB = 52, 60
    Ur, Ui, Er, Ei, Ar, Ai, Br, Bi = 68, 70, 72, 74, 76, 78, 80, 82
    bc = "op_sel_hi:[1,0,1]"
    k("s_cmp_eq_u32 s46, 0")
    k("s_cbranch_scc1 L_p2_spost")
    for j in range(0, 8, 2):
        o = 16*((j//2) % 2)
        ur, ui, er, ei, a_r, a_i, b_r, b_i = [x+o for x in (Ur, Ui, Er, Ei, Ar, Ai, Br, Bi)]
        k(f"v_pk_add_f32 {vr(ur,2)}, {vr(DR+j,2)}, {vr(OR_+j,2)}")
        k(f"v_pk_add_f32 {vr(ui,2)}, {vr(DI+j,2)}, {vr(OI+j,2)}")
        k(f"v_pk_add_f32 {vr(er,2)}, {vr(DR+j,2)}, {vr(OR_+j,2)} neg_lo:[0,1] neg_hi:[0,1]")
        k(f"v_pk_add_f32 {vr(ei,2)}, {vr(DI+j,2)}, {vr(OI+j,2)} neg_lo:[0,1] neg_hi:[0,1]")
        k(f"v_pk_fma_f32 {vr(a_r,2)}, {vr(ei,2)}, s[42:43], {vr(ur,2)} {bc}")
        k(f"v_pk_fma_f32 {vr(b_r,2)}, {vr(ei,2)}, s[42:43], {vr(ur,2)} {bc} neg_lo:[1,0,0] neg_hi:[1,0,0]")
        k(f"v_pk_fma_f32 {vr(a_i,2)}, {vr(er,2)}, s[40:41], {vr(ui,2)} {bc} neg_lo:[1,0,0] neg_hi:[1,0,0]")
        k(f"v_pk_fma_f32 {vr(b_i,2)}, {vr(er,2)}, s[40:41], {vr(ui,2)} {bc} neg_lo:[1,0,1] neg_hi:[1,0,1]")
        k(f"{CVT} v{UA+j}, v{a_r}, v{a_i}")
        k(f"{CVT} v{UA+j+1}, v{a_r+1}, v{a_i+1}")
        k(f"{CVT} v{UB+j}, v{b_r}, v{b_i}")
        k(f"{CVT} v{UB+j+1}, v{b_r+1}, v{b_i+1}")
    k("s_branch L_p2_postd")
    k("L_p2_spost:")
    for j in range(0, 8, 2):
        o = 16*((j//2) % 2)
        ur, ui, er, ei, a_r, a_i, b_r, b_i = [x+o for x in (Ur, Ui, Er, Ei, Ar, Ai, Br, Bi)]
        k(f"v_pk_add_f32 {vr(ur,2)}, {vr(DR+j,2)}, {vr(OR_+j,2)}")
        k(f"v_pk_add_f32 {vr(ui,2)}, {vr(DI+j,2)}, {vr(OI+j,2)}")
        k(f"v_pk_add_f32 {vr(er,2)}, {vr(DR+j,2)}, {vr(OR_+j,2)} neg_lo:[0,1] neg_hi:[0,1]")
        k(f"v_pk_add_f32 {vr(ei,2)}, {vr(DI+j,2)}, {vr(OI+j,2)} neg_lo:[0,1] neg_hi:[0,1]")
        k(f"v_pk_mul_f32 {vr(a_i,2)}, {vr(er,2)}, s[40:41] op_sel_hi:[1,0] neg_lo:[1,0] neg_hi:[1,0]")
        k(f"v_pk_mul_f32 {vr(b_i,2)}, {vr(ei,2)}, s[40:41] op_sel_hi:[1,0]")
        k(f"{CVT} v{UA+j}, v{ur}, v{a_i}")
        k(f"{CVT} v{UA+j+1}, v{ur+1}, v{a_i+1}")
        k(f"{CVT} v{UB+j}, -v{ui}, v{b_i}")
        k(f"{CVT} v{UB+j+1}, -v{ui+1}, v{b_i+1}")
    k("L_p2_postd:")
    for rl in range(2):
        k(f"ds_write_b128 v253, {vr(UA+4*rl,4)} offset:{4096*rl}")
        k(f"ds_write_b128 v254, {vr(UB+4*rl,4)} offset:{4096*rl}")
    k(f"v_and_b32 v{T}, 3, v0")
    k(f"v_bfe_u32 v{T+1}, v0, 3, 2")
    k(f"v_xor_b32 v{T+1}, v{T}, v{T+1}")
    k(f"v_lshrrev_b32 v{T+2}, 2, v0")
    k(f"v_lshlrev_b32 v{T+3}, 6, v{T+2}")
    k(f"v_lshl_add_u32 v{T+3}, v{T+1}, 4, v{T+3}")
    k(f"v_add_u32 v{T+3}, {STG}, v{T+3}")
    k(f"v_mul_u32_u24 v{T+2}, {VB_BLK}, v{T+2}")
    k("s_and_b32 s44, s2, 2")
    k(f"v_xor_b32 v{T}, s44, v{T}")
    k(f"v_lshl_add_u32 v{T+2}, v{T}, 4, v{T+2}")
    k("s_lshl_b32 s45, s2, 6")
    k("s_waitcnt lgkmcnt(0)")
    k("s_barrier")
    for j in range(4):
        k(f"ds_read_b128 {vr(4+4*j,4)}, v{T+3} offset:{4096*j}")
    k("s_waitcnt lgkmcnt(0)")
    for j in range(4):
        k(f"buffer_store_dwordx4 {vr(4+4*j,4)}, v{T+2}, s[12:15], s45 offen {ST_P2}")
        if j < 3: k(f"s_add_u32 s45, s45, {64*VB_BLK}")
    stamp_end(k, 'p2')
    k("L_p2_end:")
    k("s_endpgm")
    k("L_p2_spec:")
    QP = T1
    XB_ = Z2
    k(f"v_bfe_u32 v{T}, v1, 2, 2")
    k(f"v_xor_b32 v{T}, s30, v{T}")
    k(f"v_lshlrev_b32 v{T}, 4, v{T}")
    k(f"v_lshl_add_u32 v{T}, v1, 6, v{T}")
    k("s_mov_b32 s47, 0x400000")
    for r in range(4):
        k(f"buffer_load_dwordx4 {vr(XB_+4*r,4)}, v{T}, s[20:23], s47 offen")
        if r < 3: k("s_add_u32 s47, s47, 4096")
    k("s_lshl_b32 s47, s30, 13")
    k(f"v_and_b32 v{T+1}, 31, v1")
    k(f"v_lshrrev_b32 v{T+2}, 5, v1")
    k(f"v_lshlrev_b32 v{T+3}, 2, v{T+1}")
    k(f"v_lshl_add_u32 v{T+3}, v{T+2}, 10, v{T+3}")
    k(f"v_add_u32 v{T+3}, s47, v{T+3}")
    for i, (r, c) in enumerate(SEQ):
        k(f"ds_write_b32 v{T+3}, v{DR+i} offset:{(8*r+c)*256}")
        k(f"ds_write_b32 v{T+3}, v{DI+i} offset:{(8*r+c)*256+128}")
    k(f"v_add_u32 v{T+4}, s30, v{T+1}")
    k(f"v_sub_u32 v{T+5}, 32, v{T+4}")
    k(f"v_lshlrev_b32 v{T+5}, 2, v{T+5}")
    k(f"v_cmp_eq_u32 vcc, 0, v{T+4}")
    k(f"v_mov_b32 v{T+6}, 256")
    k(f"v_cndmask_b32 v{T+5}, v{T+5}, v{T+6}, vcc")
    k(f"v_lshlrev_b32 v{T+6}, 10, v{T+2}")
    k(f"v_sub_u32 v{T+5}, v{T+5}, v{T+6}")
    k(f"v_add_u32 v{T+5}, 1024, v{T+5}")
    k(f"v_add_u32 v{T+5}, s47, v{T+5}")
    k(f"v_add_u32 v{T+6}, {27*256}, v{T+5}")
    k(f"v_or_b32 v{T+7}, v{T+4}, v{T+2}")
    k(f"v_cmp_eq_u32 vcc, 0, v{T+7}")
    k(f"v_mov_b32 v{T+7}, s47")
    k(f"v_cndmask_b32 v{T+6}, v{T+6}, v{T+7}, vcc")
    k("s_waitcnt vmcnt(0)")
    for i in range(16):
        k(f"v_lshlrev_b32 v{QP+2*i}, 16, v{XB_+i}")
        k(f"v_and_b32 v{QP+2*i+1}, s35, v{XB_+i}")
    k("s_waitcnt lgkmcnt(0)")
    for half in range(2):
        for jj in range(8):
            i = 8*half + jj; r, c = SEQ[i]
            if i == 0:
                k(f"ds_read_b32 v{XB_+2*jj}, v{T+6}")
                k(f"ds_read_b32 v{XB_+2*jj+1}, v{T+6} offset:128")
            else:
                k(f"ds_read_b32 v{XB_+2*jj}, v{T+5} offset:{(27-8*r-c)*256}")
                k(f"ds_read_b32 v{XB_+2*jj+1}, v{T+5} offset:{(27-8*r-c)*256+128}")
        k("s_waitcnt lgkmcnt(0)")
        for jj in range(8):
            j = 8*half + jj; o = T + 8 + 2*(jj % 4); jp = j & ~1; x = j & 1
            k(f"v_pk_mul_f32 {vr(o,2)}, {vr(WP+2*j,2)}, {vr(DR+jp,2)} op_sel:[0,{x}] op_sel_hi:[1,{x}]")
            k(f"v_pk_fma_f32 {vr(o,2)}, {vr(WP+2*j,2)}, {vr(DI+jp,2)}, {vr(o,2)} op_sel:[1,{x},0] op_sel_hi:[0,{x},1] neg_lo:[1,0,0]")
            k(f"v_pk_fma_f32 {vr(o,2)}, {vr(QP+2*j,2)}, {vr(XB_+2*jj,2)}, {vr(o,2)} op_sel:[0,0,0] op_sel_hi:[1,0,1]")
            k(f"v_pk_fma_f32 {vr(o,2)}, {vr(QP+2*j,2)}, {vr(XB_+2*jj,2)}, {vr(o,2)} op_sel:[1,1,0] op_sel_hi:[0,1,1] neg_hi:[1,0,0]")
            k(f"{CVT} v{OP+j}, v{o}, -v{o+1}")
    k("s_branch L_p2_specd")
    return k, 256, 65536

def ln_stats_rows(k, R0, R1, t, vRM, sTmp):
    for (R, o) in ((R0, 0), (R1, 4)):
        a, b = t+o, t+o+2
        k(f"v_pk_add_f32 {vr(a,2)}, {vr(R,2)}, {vr(R+2,2)}")
        k(f"v_pk_add_f32 {vr(b,2)}, {vr(R+4,2)}, {vr(R+6,2)}")
    for i in range(4, 8):
        for (R, o) in ((R0, 0), (R1, 4)):
            a = t+o+2*(i % 2)
            k(f"v_pk_add_f32 {vr(a,2)}, {vr(a,2)}, {vr(R+2*i,2)}")
    for o in (0, 4):
        k(f"v_pk_add_f32 {vr(t+o,2)}, {vr(t+o,2)}, {vr(t+o+2,2)}")
    k(f"v_add_f32 v{t}, v{t}, v{t+1}")
    k(f"v_add_f32 v{t+1}, v{t+4}, v{t+5}")
    wave_reduce2(k, t, t+1)
    ln_mean(k, t, sTmp)
    acc = {0: t, 1: t+2}; tmp = [t+4, t+6, t+8, t+10]
    n = 0
    for i in range(8):
        for row, R in ((0, R0), (1, R1)):
            d = tmp[n % 4]; n += 1
            sel = "op_sel_hi:[1,0]" if row == 0 else "op_sel:[0,1] op_sel_hi:[1,1]"
            k(f"v_pk_add_f32 {vr(d,2)}, {vr(R+2*i,2)}, {sr(sTmp,2)} {sel} neg_lo:[0,1] neg_hi:[0,1]")
            a = acc[row]
            if i == 0: k(f"v_pk_mul_f32 {vr(a,2)}, {vr(d,2)}, {vr(d,2)}")
            else:      k(f"v_pk_fma_f32 {vr(a,2)}, {vr(d,2)}, {vr(d,2)}, {vr(a,2)}")
    k(f"v_add_f32 v{t}, v{t}, v{t+1}")
    k(f"v_add_f32 v{t+1}, v{t+2}, v{t+3}")
    wave_reduce2(k, t, t+1)
    ln_scalars(k, t)
    k(f"v_readlane_b32 s{sTmp}, v{t}, 63")
    k(f"v_readlane_b32 s{sTmp+1}, v{t+1}, 63")
    k(f"v_readlane_b32 s{sTmp+2}, v{t+12}, 63")
    k(f"v_readlane_b32 s{sTmp+3}, v{t+13}, 63")
    for i in range(4):
        k(f"v_mov_b32 v{vRM+i}, s{sTmp+i}")

def ln_apply_rows(k, R0, R1, vRM, dst0, dst1):
    for i in range(8):
        k(f"v_pk_fma_f32 {vr(dst0+2*i,2)}, {vr(R0+2*i,2)}, {vr(vRM,2)}, {vr(vRM+2,2)} op_sel_hi:[1,0,0] neg_lo:[0,0,1] neg_hi:[0,0,1]")
        k(f"v_pk_fma_f32 {vr(dst1+2*i,2)}, {vr(R1+2*i,2)}, {vr(vRM,2)}, {vr(vRM+2,2)} op_sel:[0,1,1] op_sel_hi:[1,1,1] neg_lo:[0,0,1] neg_hi:[0,0,1]")

def gen_p3():
    k = Kern('p3_kernel')
    k("s_cmp_ge_u32 s2, 256")
    k("s_cbranch_scc1 L_p3_end")
    stamp_begin(k)
    k("s_load_dwordx2 s[4:5], s[0:1], 0")
    k("s_load_dwordx2 s[26:27], s[0:1], 80")
    k("s_load_dwordx2 s[24:25], s[0:1], 32")
    k("v_and_b32 v1, 63, v0")
    k("v_lshrrev_b32 v2, 6, v0")
    k("v_readfirstlane_b32 s28, v2")
    pf_wave(k, 'p3', W1PF0 + 256*W1PF)
    k("s_lshr_b32 s29, s2, 5")
    k("s_lshl_b32 s29, s29, 2")
    k("s_and_b32 s30, s2, 31")
    k("s_add_u32 s31, s29, s28")
    k("s_lshl_b32 s31, s31, 5")
    k("s_add_u32 s31, s31, s30")
    k("s_lshl_b32 s31, s31, 11")
    k("s_add_u32 s32, s31, 0x200000")
    k(f"s_mul_i32 s33, s2, {VB_BLK}")
    k("s_lshl_b32 s34, s28, 12")
    k("s_add_u32 s33, s33, s34")
    k("v_lshlrev_b32 v2, 4, v1")
    k("s_waitcnt lgkmcnt(0)")
    srd(k, 8, 4, S*D*2)
    srd(k, 12, 26, 256*VB_BLK, VB_OFF)
    srd(k, 16, 26, S*D*2, H_OFF)
    srd(k, 20, 26, S*D*2, HN_OFF)
    for i in range(4):
        k(f"s_add_u32 m0, s34, {1024*i}")
        k(f"buffer_load_dwordx4 v2, s[12:15], s33 offen lds")
        k("s_add_u32 s33, s33, 1024")
    XL = 4
    OP, Mr, Mi, TW, DR, DI, T = 20, 36, 52, 68, 100, 116, 132
    R0, R1, Y0, Y1 = 148, 164, 180, 196
    k("v_and_b32 v212, 31, v1")
    k("v_cvt_f32_u32 v212, v212")
    k("v_lshrrev_b32 v213, 5, v1")
    k("v_lshlrev_b32 v213, 2, v213")
    k("v_cvt_f32_u32 v213, v213")
    k(f"v_mul_f32 v214, {f32(1/32)}, v212")
    k("v_mul_f32 v215, v214, v213")
    gen_matrix(k, Mr, Mi, 214, 215, T)
    k(f"v_mul_f32 v214, {f32(1/1024)}, v212")
    k("v_mul_f32 v215, v214, v213")
    gen_twiddle(k, TW, 214, 215, T, scale=2.0**-21.5)
    k("v_and_b32 v2, 31, v1")
    k("v_lshrrev_b32 v3, 5, v1")
    k("v_and_b32 v216, 1, v2")
    k("v_lshrrev_b32 v217, 1, v2")
    k("v_and_b32 v218, 2, v217")
    k("v_xor_b32 v218, v218, v216")
    k("v_lshlrev_b32 v218, 4, v218")
    k("v_lshl_add_u32 v218, v217, 6, v218")
    k("v_lshl_add_u32 v218, v3, 12, v218")
    k("s_lshl_b32 s37, s28, 2")
    k("v_add_u32 v218, s37, v218")
    k("v_add_u32 v217, 1, v2")
    k("v_lshrrev_b32 v217, 1, v217")
    k("v_sub_u32 v219, 0, v217")
    k("v_and_b32 v219, 2, v219")
    k("v_add_u32 v216, 2, v216")
    k("v_xor_b32 v219, v219, v216")
    k("v_lshlrev_b32 v219, 4, v219")
    k("v_lshlrev_b32 v217, 6, v217")
    k("v_sub_u32 v219, v219, v217")
    k("v_lshlrev_b32 v217, 12, v3")
    k("v_sub_u32 v219, v219, v217")
    k("s_add_u32 s37, s37, 5120")
    k("v_add_u32 v219, s37, v219")
    k(f"v_add_u32 v227, {16*1024-5120}, v219")
    k("s_lshl_b32 s38, s28, 2")
    k("s_add_u32 s38, s38, 32")
    k("v_mov_b32 v226, s38")
    k("v_cmp_eq_u32 vcc, 0, v1")
    k("v_cndmask_b32 v227, v227, v226, vcc")
    k("s_mov_b32 s35, 0xffff0000")
    mark(k, 1)
    k("s_waitcnt vmcnt(0)")
    k("v_lshlrev_b32 v225, 4, v1")
    k(f"buffer_load_dwordx4 {vr(XL,4)}, v225, s[8:11], s31 offen")
    k(f"buffer_load_dwordx4 {vr(XL+4,4)}, v225, s[8:11], s31 offen offset:1024")
    k(f"buffer_load_dwordx4 {vr(XL+8,4)}, v225, s[8:11], s32 offen")
    k(f"buffer_load_dwordx4 {vr(XL+12,4)}, v225, s[8:11], s32 offen offset:1024")
    k("s_barrier")
    mark(k, 2)
    for i, (r, c) in enumerate(SEQ):
        if r < 2: k(f"ds_read_b32 v{OP+i}, v218 offset:{(8*r+c)*1024}")
        elif i == 8: k(f"ds_read_b32 v{OP+i}, v227")
        else:     k(f"ds_read_b32 v{OP+i}, v219 offset:{(32-8*r-c)*1024-5120}")
    k("s_waitcnt lgkmcnt(0)")
    stage(k, 'A', DR, DI, OP, Mr, Mi)
    cmul_pack(k, DR, DI, TW, OP, T)
    stage(k, 'B', DR, DI, OP, Mr, Mi)
    k("s_waitcnt vmcnt(0)")
    for i in range(8):
        k(f"v_lshlrev_b32 v{R0+2*i}, 16, v{XL+i}")
        k(f"v_and_b32 v{R0+2*i+1}, s35, v{XL+i}")
        k(f"v_lshlrev_b32 v{R1+2*i}, 16, v{XL+8+i}")
        k(f"v_and_b32 v{R1+2*i+1}, s35, v{XL+8+i}")
    TR = 17408
    mark(k, 3)
    k("s_lshl_b32 s36, s28, 12")
    k(f"s_add_u32 s36, s36, {TR}")
    k("v_and_b32 v3, 31, v1")
    k("v_lshlrev_b32 v3, 2, v3")
    k("v_lshrrev_b32 v216, 5, v1")
    k("v_lshlrev_b32 v216, 9, v216")
    k("v_add3_u32 v3, v3, v216, s36")
    k("v_lshl_add_u32 v2, v1, 5, s36")
    for i in range(16):
        k(f"{CVT} v{OP+i}, v{DR+i}, -v{DI+i}")
    for i, (r, c) in enumerate(SEQ):
        k(f"ds_write_b32 v3, v{OP+i} offset:{(8*r+c)*128}")
    k("s_waitcnt lgkmcnt(0)")
    k(f"ds_read_b128 {vr(OP,4)}, v2")
    k(f"ds_read_b128 {vr(OP+4,4)}, v2 offset:16")
    k(f"ds_read_b128 {vr(OP+8,4)}, v2 offset:2048")
    k(f"ds_read_b128 {vr(OP+12,4)}, v2 offset:2064")
    k("s_waitcnt lgkmcnt(0)")
    for i in range(16):
        k(f"v_lshlrev_b32 v{Y0+i}, 16, v{OP+i}")
        k(f"v_and_b32 v{Y1+i}, s35, v{OP+i}")
    for i in range(8):
        k(f"v_pk_add_f32 {vr(Y0+2*i,2)}, {vr(Y0+2*i,2)}, {vr(R0+2*i,2)}")
        k(f"v_pk_add_f32 {vr(Y1+2*i,2)}, {vr(Y1+2*i,2)}, {vr(R1+2*i,2)}")
    HP = 36
    for i in range(8):
        k(f"{CVT} v{HP+i}, v{Y0+2*i}, v{Y0+2*i+1}")
        k(f"{CVT} v{HP+8+i}, v{Y1+2*i}, v{Y1+2*i+1}")
    k("v_lshlrev_b32 v2, 4, v1")
    k(f"buffer_store_dwordx4 {vr(HP,4)}, v2, s[16:19], s31 offen {ST_P3}")
    k(f"buffer_store_dwordx4 {vr(HP+4,4)}, v2, s[16:19], s31 offen offset:1024 {ST_P3}")
    k(f"buffer_store_dwordx4 {vr(HP+8,4)}, v2, s[16:19], s32 offen {ST_P3}")
    k(f"buffer_store_dwordx4 {vr(HP+12,4)}, v2, s[16:19], s32 offen offset:1024 {ST_P3}")
    for i in range(8):
        k(f"v_lshlrev_b32 v{R0+2*i}, 16, v{HP+i}")
        k(f"v_and_b32 v{R0+2*i+1}, s35, v{HP+i}")
        k(f"v_lshlrev_b32 v{R1+2*i}, 16, v{HP+8+i}")
        k(f"v_and_b32 v{R1+2*i+1}, s35, v{HP+8+i}")
    RM = 220
    mark(k, 4)
    ln_stats_rows(k, R0, R1, T, RM, 40)
    if EMU_L2:
        ln_apply_rows(k, R0, R1, RM, Y0, Y1)
        LP = 52
        for i in range(8):
            k(f"{CVT} v{LP+i}, v{Y0+2*i}, v{Y0+2*i+1}")
            k(f"{CVT} v{LP+8+i}, v{Y1+2*i}, v{Y1+2*i+1}")
        for i in range(8):
            k(f"v_lshlrev_b32 v{R0+2*i}, 16, v{LP+i}")
            k(f"v_and_b32 v{R0+2*i+1}, s35, v{LP+i}")
            k(f"v_lshlrev_b32 v{R1+2*i}, 16, v{LP+8+i}")
            k(f"v_and_b32 v{R1+2*i+1}, s35, v{LP+8+i}")
    else:
        ln_apply_rows(k, R0, R1, RM, R0, R1)
    ln_stats_rows(k, R0, R1, T, RM, 40)
    ln_apply_rows(k, R0, R1, RM, Y0, Y1)
    NP = 68
    for i in range(8):
        k(f"{CVT} v{NP+i}, v{Y0+2*i}, v{Y0+2*i+1}")
        k(f"{CVT} v{NP+8+i}, v{Y1+2*i}, v{Y1+2*i+1}")
    k(f"buffer_store_dwordx4 {vr(NP,4)}, v2, s[20:23], s31 offen {ST_P3}")
    k(f"buffer_store_dwordx4 {vr(NP+4,4)}, v2, s[20:23], s31 offen offset:1024 {ST_P3}")
    k(f"buffer_store_dwordx4 {vr(NP+8,4)}, v2, s[20:23], s32 offen {ST_P3}")
    k(f"buffer_store_dwordx4 {vr(NP+12,4)}, v2, s[20:23], s32 offen offset:1024 {ST_P3}")
    stamp_end(k, 'p3')
    k("L_p3_end:")
    k("s_endpgm")
    return k, 228, 33792

MF16 = 'v_mfma_f32_16x16x32_bf16'

def interleave(mf, rd, lead=0):
    out = []; n = len(mf); m = len(rd); ri = 0
    for i in range(n):
        out.append(mf[i])
        tgt = min(m, (m*(i+1) + n - 1)//n)
        while ri < tgt:
            out.append(rd[ri]); ri += 1
    out += rd[ri:]
    return out

def producer_loop(k, tag, per, issue, NS, NIT):
    mark(k, 1)
    issue()
    mark(k, 2)
    issue()
    k(f"s_waitcnt vmcnt({per})")
    mark(k, 3)
    k("s_barrier")
    for n in range(2, NS): issue()
    mark(k, 4)
    nmain = NIT - NS
    k(f"s_mov_b32 s60, 0")
    k(f"L_{tag}_ploop:")
    k(f"s_waitcnt vmcnt({(NS-2)*per})")
    k("s_barrier")
    issue()
    k("s_add_u32 s60, s60, 1")
    k(f"s_cmp_lt_u32 s60, {nmain}")
    k(f"s_cbranch_scc1 L_{tag}_ploop")
    for n in range(nmain, NIT-1):
        k(f"s_waitcnt vmcnt({(NIT-1-(n+1))*per})")
        k("s_barrier")


XB_OFF = ZW_OFF
FL_OFF = 0x2800000
BAR_OFF = 0x2810000
def gemm_kernel(tag, fused=False):
    g1 = tag == 'g1'
    k = Kern('gg_kernel' if fused else tag + '_kernel')
    ENDL = 'L_gg_end' if fused else f'L_{tag}_end'
    ASZ = 16384; STG = 32768; NS = 4 if STATIC else (5 if BAR2 else 3)
    NIT = 32 if g1 else 28
    BSTR = 7168 if g1 else 4096
    if not (fused and not g1):
        k(f"s_cmp_ge_u32 s2, 256")
        k(f"s_cbranch_scc1 {ENDL}")
    else:
        k("L_gbar:")
        k("s_load_dwordx2 s[26:27], s[0:1], 80")
        k("s_waitcnt vmcnt(0) lgkmcnt(0)")
        k("s_barrier")
        srd(k, 36, 26, 1024, BAR_OFF)
        k("v_cmp_eq_u32 vcc, 0, v0")
        k("s_and_saveexec_b64 s[34:35], vcc")
        k("s_cbranch_execz L_gbar_noarr")
        k("s_and_b32 s33, s2, 7")
        k("s_lshl_b32 s33, s33, 7")
        k("v_mov_b32 v2, 1")
        k("v_mov_b32 v3, 0")
        k("buffer_atomic_add v2, v3, s[36:39], s33 offen sc1")
        k("L_gbar_noarr:")
        k("s_mov_b64 exec, -1")
    stamp_begin(k)
    if g1:
        k("s_load_dwordx4 s[4:7], s[0:1], 32")
        k("s_load_dwordx2 s[24:25], s[0:1], 48")
    else:
        k("s_load_dwordx4 s[4:7], s[0:1], 48")
        k("s_load_dwordx2 s[24:25], s[0:1], 64")
    k("s_load_dwordx2 s[26:27], s[0:1], 80")
    k("v_and_b32 v1, 63, v0")
    k("v_lshrrev_b32 v2, 6, v0")
    k("v_readfirstlane_b32 s28, v2")
    if g1:
        k("s_and_b32 s30, s2, 1")
        k("s_lshl_b32 s30, s30, 2")
        k("s_bfe_u32 s52, s2, 0x20003")
        k("s_add_u32 s30, s30, s52")
        k("s_bfe_u32 s29, s2, 0x20001")
        k("s_mul_i32 s29, s29, 7")
        k("s_lshr_b32 s53, s2, 5")
        k("s_add_u32 s29, s29, s53")
        k("s_mov_b32 s63, 0")
        k("s_and_b32 s55, s2, 1")
        k(f"s_mul_i32 s55, s55, {16 if KHALF else 0}")
    else:
        if MAP2 == 1:
            k("s_bfe_u32 s62, s2, 0x10003")
            k("s_bfe_u32 s29, s2, 0x20001")
            k("s_lshl_b32 s29, s29, 2")
            k("s_bfe_u32 s52, s2, 0x20004")
            k("s_add_u32 s29, s29, s52")
            k("s_lshr_b32 s53, s2, 6")
            k("s_and_b32 s30, s2, 1")
            k("s_lshl_b32 s30, s30, 2")
            k("s_add_u32 s30, s30, s53")
        else:
            k("s_and_b32 s62, s2, 1")
            k("s_bfe_u32 s29, s2, 0x20001")
            k("s_lshl_b32 s29, s29, 2")
            k("s_bfe_u32 s52, s2, 0x20003")
            k("s_add_u32 s29, s29, s52")
            k("s_lshr_b32 s53, s2, 5")
            k("s_mov_b32 s30, s53")
        k("s_mov_b32 s55, 0")
        k("s_mul_i32 s63, s62, 28")
        srd(k, 56, 26, 256*64, FL_OFF) if False else None
    k("s_lshl_b32 s31, s29, 8")
    k("s_lshl_b32 s32, s30, 8")
    k("s_waitcnt lgkmcnt(0)")
    if g1:
        srd(k, 8, 4, S*F*2)
        srd(k, 12, 26, S*D*2, HN_OFF)
        srd(k, 16, 26, F*D*2, GT_OFF)
        srd(k, 20, 6, F*2)
        if not XSENT:
            srd(k, 44, 26, 256*64, FL_OFF)
            k("s_lshl_b32 s33, s2, 6")
            k("v_mov_b32 v2, 0")
            k("v_lshlrev_b32 v3, 2, v0")
            k("v_cmp_gt_u32 vcc, 16, v0")
            k("s_and_saveexec_b64 s[34:35], vcc")
            k(f"s_cbranch_execz L_{tag}_nozf")
            k("buffer_store_dword v2, v3, s[44:47], s33 offen sc0 sc1")
            k(f"L_{tag}_nozf:")
            k("s_mov_b64 exec, -1")
        k("s_cmp_lt_u32 s2, 224")
        k(f"s_cbranch_scc1 L_{tag}_main")
        if W1IDLE:
            k("s_sub_u32 s33, s2, 224")
            k("s_mul_i32 s33, s33, 112")
            k("v_mul_u32_u24 v3, 586, v0")
            k("v_lshrrev_b32 v3, 16, v3")
            k("v_mul_u32_u24 v4, 112, v3")
            k("v_sub_u32 v4, v0, v4")
            k("v_add_u32 v4, s33, v4")
            k("v_mul_u32_u24 v5, 4682, v4")
            k("v_lshrrev_b32 v5, 18, v5")
            k("v_mul_u32_u24 v6, 56, v5")
            k("v_sub_u32 v6, v4, v6")
            k("v_and_b32 v7, 1, v3")
            k("v_lshrrev_b32 v8, 1, v3")
            k("v_lshl_add_u32 v7, v7, 4, v8")
            k("v_lshl_add_u32 v5, v7, 6, v5")
            k("v_mul_u32_u24 v5, 7168, v5")
            k("v_lshl_add_u32 v2, v6, 7, v5")
            k("v_cmp_gt_u32 vcc, 448, v0")
            k("s_and_saveexec_b64 s[34:35], vcc")
            k(f"s_cbranch_execz L_{tag}_now1")
            k(f"s_mov_b32 s33, {W1IDLE*64*7168}")
            for i in range((16-W1IDLE)//2):
                k(f"buffer_load_dword v9, v2, s[8:11], s33 offen")
                k(f"s_add_u32 s33, s33, {2*64*7168}")
            k(f"L_{tag}_now1:")
            k("s_mov_b64 exec, -1")
        if W2PF:
            srd(k, 48, 24, F*S*2)
            k("s_sub_u32 s33, s2, 224")
            k("s_and_b32 s34, s33, 15")
            k("s_lshr_b32 s35, s33, 4")
            k(f"s_mul_i32 s35, s35, {1792*4096}")
            k("s_lshl_b32 s33, s34, 16")
            k("s_add_u32 s33, s33, s35")
            k("v_lshlrev_b32 v2, 7, v0")
            for i in range(W2PF):
                k(f"buffer_load_dword v9, v2, s[48:51], s33 offen")
                k(f"s_add_u32 s33, s33, {16*65536}")
        if XSENT:
            srd(k, 44, 26, 256*(16384 if XBF16 else 32768), 0x1E00000 if XB_SEP else VB_OFF)
            k("s_sub_u32 s33, s2, 224")
            k("s_lshl_b32 s33, s33, 17")
            k("v_lshlrev_b32 v2, 4, v0")
            for i in range(4): k(f"v_mov_b32 v{4+i}, -1")
            k("s_mov_b32 s34, 0")
            k(f"L_{tag}_clr:")
            k("buffer_store_dwordx4 v[4:7], v2, s[44:47], s33 offen sc0 sc1")
            k("s_add_u32 s33, s33, 8192")
            k("s_add_u32 s34, s34, 1")
            k("s_cmp_lt_u32 s34, 16")
            k(f"s_cbranch_scc1 L_{tag}_clr")
        stamp_end(k, tag, tid=0, slot=256, sfx='idle')
        k(f"s_branch {'L_gbar' if fused else ENDL}")
        k(f"L_{tag}_main:")
    else:
        srd(k, 8, 4, F*S*2)
        srd(k, 12, 26, F*D*2, GT_OFF)
        srd(k, 16, 26, S*D*2, H_OFF)
        srd(k, 20, 6, S*2)
        srd(k, 48, 24, S*D*2)
        if not XSENT:
            k("s_getreg_b32 s54, hwreg(HW_REG_XCC_ID, 0, 4)")
            k("s_add_u32 s54, s54, 1")
            srd(k, 56, 26, 256*64, FL_OFF)
            k("s_lshl_b32 s33, s2, 6")
            k("v_mov_b32 v2, s54")
            k("v_mov_b32 v3, 0")
            k("v_cmp_eq_u32 vcc, 0, v0")
            k("s_and_saveexec_b64 s[34:35], vcc")
            k(f"s_cbranch_execz L_{tag}_nopub")
            k("buffer_store_dword v2, v3, s[56:59], s33 offen offset:4 sc0 sc1")
            k(f"L_{tag}_nopub:")
            k("s_mov_b64 exec, -1")
    k("s_cmp_ge_u32 s28, 4")
    k(f"s_cbranch_scc1 L_{tag}_prod")
    ACC = 8; X = 72; Y = 136; R = 200
    AA = [R+i for i in range(4)]; AB = [R+4+i for i in range(4)]
    BA = [R+8+i for i in range(4)]; BB = [R+12+i for i in range(4)]
    MISC = R + 16
    k("s_and_b32 s33, s28, 1")
    k("s_lshr_b32 s36, s28, 1")
    k("v_lshrrev_b32 v2, 4, v1")
    k("v_bfe_u32 v3, v1, 2, 2")
    k("v_and_b32 v4, 3, v1")
    k("v_lshl_add_u32 v5, v2, 2, v3")
    k("v_and_b32 v6, 7, v5")
    k("v_lshlrev_b32 v6, 1, v6")
    k("v_lshrrev_b32 v7, 1, v4")
    k("v_and_b32 v9, 1, v4")
    for (base, w, add) in ((BA, 's33', 0), (BB, 's36', ASZ)):
        k(f"s_lshl_b32 s35, {w}, 3")
        k("v_add_u32 v10, s35, v7")
        k("v_xor_b32 v10, v10, v6")
        k("v_lshlrev_b32 v10, 4, v10")
        k("v_lshl_add_u32 v10, v9, 3, v10")
        k("v_lshl_add_u32 v10, v5, 8, v10")
        if add: k(f"v_add_u32 v10, {add}, v10")
        k(f"v_mov_b32 v{base[0]}, v10")
        for t in range(1, 4): k(f"v_xor_b32 v{base[t]}, {32*t}, v10")
    for t in range(4):
        k(f"v_mov_b32 v{AA[t]}, v{BA[t]}"); k(f"v_mov_b32 v{AB[t]}, v{BB[t]}")
    BIAS = MISC
    k("v_and_b32 v2, 15, v1")
    k("v_lshlrev_b32 v2, 1, v2")
    k("s_lshl_b32 s37, s36, 7")
    k("s_add_u32 s37, s37, s31")
    for t in range(4):
        k(f"buffer_load_ushort v{BIAS+t}, v2, s[20:23], s37 offen offset:{32*t}")
    OV = MISC+4
    k("v_and_b32 v2, 15, v1")
    k("v_lshlrev_b32 v2, 11, v2")
    k("v_lshrrev_b32 v3, 4, v1")
    k(f"v_lshl_add_u32 v{OV}, v3, 4, v2")
    k("s_lshl_b32 s38, s29, 7")
    k("s_lshl_b32 s39, s36, 6")
    k("s_add_u32 s38, s38, s39")
    k("s_lshl_b32 s38, s38, 11")
    k("s_add_u32 s38, s38, s32")
    k("s_lshl_b32 s39, s33, 7")
    k("s_add_u32 s38, s38, s39")
    if not g1:
        HL = MISC+6
        NV = HL+16
        if OUT_TOUCH:
            k("s_lshl_b32 s39, s62, 16")
            k("s_add_u32 s39, s39, s38")
            k(f"buffer_load_dword v{NV}, v{OV}, s[48:51], s39 offen")
            NV += 1
    else:
        NV = MISC+5
    def reads(dst, buf=None):
        r = []
        for ks in range(2):
            b = dst + 32*ks; ko = 32*ks
            for t in range(4):
                if buf is None: regs = (AA[t], AB[t]); bo = 0
                else:
                    regs = (BA[t], BB[t]) if buf < 2 else (AA[t], AB[t]); bo = (buf % 2)*STG
                for (o, a) in ((0, regs[0]), (16, regs[1])):
                    r.append(f"ds_read_b64_tr_b16 {vr(b+o+4*t,2)}, v{a} offset:{bo+ko*256}")
                    r.append(f"ds_read_b64_tr_b16 {vr(b+o+4*t+2,2)}, v{a} offset:{bo+(ko+16)*256}")
        return r
    def mfmas(src):
        m = []
        for ks in range(2):
            b = src + 32*ks
            order = sorted([(td, tn) for td in range(4) for tn in range(4)], key=lambda x: (max(x), x))
            if FAKE32:
                for i in range(8):
                    a = ACC + 16*(i % 4)
                    m.append(f"{MF32} {vr(a,16)}, {vr(b+4*(i%4),4)}, {vr(b+16+4*((i//2)%4),4)}, {vr(a,16)}")
                continue
            for td, tn in order:
                a = ACC + 4*(4*tn+td)
                m.append(f"{MF16} {vr(a,4)}, {vr(b+4*td,4)}, {vr(b+16+4*tn,4)}, {vr(a,4)}")
        return m
    def sched(mf, rd, extra):
        out = []; ri = 0; ei = 0
        for i, m in enumerate(mf):
            out.append(m)
            if ri < len(rd):
                for _ in range(RPAT[i % len(RPAT)]):
                    if ri < len(rd): out.append(rd[ri]); ri += 1
            elif ei < len(extra):
                out.append(extra[ei]); ei += 1
        out += rd[ri:] + extra[ei:]
        return out
    def upd():
        e = [f"s_add_u32 s34, s34, {STG}", f"s_cmp_eq_u32 s34, {STG*NS}", "s_cselect_b32 s34, 0, s34"]
        e += [f"v_add_u32 v{AA[t]}, s34, v{BA[t]}" for t in range(4)]
        e += [f"v_add_u32 v{AB[t]}, s34, v{BB[t]}" for t in range(4)]
        return e
    for i in range(64): k(f"v_mov_b32 v{ACC+i}, 0")
    k("s_mov_b32 s34, 0")
    k("s_mov_b32 s35, 0")
    if fused and not g1: k("s_barrier")
    mark(k, 1)
    k("s_barrier")
    mark(k, 2)
    if STATIC:
        for t in range(4):
            k(f"v_add_u32 v{AA[t]}, 65536, v{BA[t]}"); k(f"v_add_u32 v{AB[t]}, 65536, v{BB[t]}")
        for x in reads(X, 0): k(x)
        k(f"L_{tag}_cloop:")
        for u in range(4):
            cur, nxt = (X, Y) if u % 2 == 0 else (Y, X)
            k("s_waitcnt lgkmcnt(0)")
            k("s_barrier")
            ex = ["s_add_u32 s35, s35, 4", f"s_cmp_lt_u32 s35, {NIT-4}"] if u == 3 else []
            for x in sched(mfmas(cur), reads(nxt, (u+1) % 4), ex): k(x)
        k(f"s_cbranch_scc1 L_{tag}_cloop")
        for u in range(2):
            cur, nxt = (X, Y) if u % 2 == 0 else (Y, X)
            k("s_waitcnt lgkmcnt(0)")
            k("s_barrier")
            for x in sched(mfmas(cur), reads(nxt, u+1), []): k(x)
    else:
        for x in reads(X): k(x)
        for x in upd(): k(x)
        k(f"L_{tag}_cloop:")
        k("s_waitcnt lgkmcnt(0)")
        if LOOPSTAMP:
            k(f"s_cmp_eq_u32 s35, {LOOPSTAMP}")
            k(f"s_cbranch_scc0 L_{tag}_nolatch")
            for i in range(4): k(f"s_mov_b64 s[{96-20+2*i}:{97-20+2*i}], s[{66+2*i}:{67+2*i}]") if False else None
            k("s_sub_u32 s90, s68, s66"); k("s_sub_u32 s91, s70, s68"); k("s_sub_u32 s92, s72, s70")
            k("s_memtime s[82:83]"); k("s_waitcnt lgkmcnt(0)"); k("s_sub_u32 s93, s82, s72")
            k(f"L_{tag}_nolatch:")
        k("s_barrier")
        if LOOPSTAMP: k("s_memtime s[66:67]")
        for x in sched(mfmas(X), reads(Y), upd()): k(x)
        if LOOPSTAMP: k("s_memtime s[68:69]")
        k("s_waitcnt lgkmcnt(0)")
        if not BAR2: k("s_barrier")
        if LOOPSTAMP: k("s_memtime s[70:71]")
        for x in sched(mfmas(Y), reads(X), upd() + ["s_add_u32 s35, s35, 2", f"s_cmp_lt_u32 s35, {NIT-2}"]): k(x)
        if LOOPSTAMP: k("s_memtime s[72:73]")
        k(f"s_cbranch_scc1 L_{tag}_cloop")
    if LOOPSTAMP:
        k("s_waitcnt lgkmcnt(0)")
        for i in range(4):
            k(f"s_mov_b32 s{66+2*i}, s{90+i}"); k(f"s_mov_b32 s{67+2*i}, 0")
    XID = 3
    if not g1:
        if not XSENT:
            k(f"s_xor_b32 s42, s2, {8 if MAP2 == 1 else 1}")
            k("s_lshl_b32 s39, s42, 6")
            k("v_mov_b32 v4, 0")
            k(f"buffer_load_dword v{XID}, v4, s[56:59], s39 offen offset:4 sc0 sc1")
        k("s_lshl_b32 s39, s62, 16")
        k("s_add_u32 s39, s39, s38")
        for tnl in range(1 if XSHARE else 2):
            for tp in range(2):
                k(f"s_add_u32 s40, s39, {tnl*16*2048 + tp*64}")
                k(f"buffer_load_dwordx4 {vr(HL+8*tnl+4*tp,4)}, v{OV}, s[16:19], s40 offen")
    k("s_waitcnt lgkmcnt(0)")
    k("s_barrier")
    for x in sched(mfmas(X), reads(Y, 3 if STATIC else None), []): k(x)
    k("s_waitcnt lgkmcnt(0)")
    for x in mfmas(Y): k(x)
    mark(k, 3)
    k("s_mov_b32 s40, 0xffff0000")
    T = X
    def pack_swap(P):
        k(f"v_permlane32_swap_b32 v{P}, v{P+2}")
        k(f"v_permlane32_swap_b32 v{P+1}, v{P+3}")
        k(f"v_permlane16_swap_b32 v{P}, v{P+2}")
        k(f"v_permlane16_swap_b32 v{P+1}, v{P+3}")
    def store_lines(P0, P1, tmp, so, srdreg):
        for i in range(4): k(f"v_mov_b32 v{tmp+i}, v{P0+i}")
        for i in range(4): k(f"v_mov_b32_dpp v{P0+i}, v{P1+i} row_ror:8 row_mask:0xf bank_mask:0xc")
        for i in range(4): k(f"v_mov_b32_dpp v{P1+i}, v{tmp+i} row_ror:8 row_mask:0xf bank_mask:0x3")
        fl = ST_G1 if g1 else ST_G2
        k(f"s_add_u32 s41, s38, {so}")
        k(f"buffer_store_dwordx4 {vr(P0,4)}, v{OVS}, s[{srdreg}:{srdreg+3}], s41 offen {fl}")
        k(f"s_add_u32 s41, s38, {so + 8*2048}")
        k(f"buffer_store_dwordx4 {vr(P1,4)}, v{OVS}, s[{srdreg}:{srdreg+3}], s41 offen {fl}")
    OVS = 3
    def set_ovs():
        k("v_and_b32 v2, 7, v1")
        k("v_lshlrev_b32 v2, 11, v2")
        k("v_bfe_u32 v3, v1, 3, 1")
        k("v_lshl_add_u32 v2, v3, 6, v2")
        k("v_lshrrev_b32 v3, 4, v1")
        k(f"v_lshl_add_u32 v{OVS}, v3, 4, v2")
    if g1:
        SH = 32768 if STATIC else (98304 if BAR2 else 65536)
        k("s_lshl_b32 s39, s28, 13")
        k(f"s_add_u32 s39, s39, {SH}")
        k("v_lshl_add_u32 v2, v1, 4, s39")
        for i in range(8): k(f"ds_write_b128 v2, {vr(ACC+32+4*i,4)} offset:{1024*i}")
        k("s_waitcnt vmcnt(0) lgkmcnt(0)")
        k("s_barrier")
        mark(k, 4)
        k(f"L_{tag}_epi:")
        for t in range(2): k(f"v_lshlrev_b32 v{BIAS+t}, 16, v{BIAS+t}")
        c0 = -2.0*math.log2(math.e)*math.sqrt(2.0/math.pi); c1 = c0*0.044715
        k("s_mov_b32 s40, 0xffff0000")
        k(f"s_mov_b32 s42, {f32(c1)}")
        k(f"v_mov_b32 v4, {f32(c0)}"); k(f"v_mov_b32 v5, {f32(c0)}")
        k(f"v_mov_b32 v6, 1.0"); k(f"v_mov_b32 v7, 1.0")
        set_ovs()
        for tn in range(2):
            for tp in range(2):
                P = T + 4*tp + 24*tn
                for q in range(4):
                    td = 2*tp + q//2
                    src = ACC + 4*(4*tn+td) + 2*(q % 2)
                    u, w = T+8+4*q, T+10+4*q
                    gelu_pair(k, src, u, w, BIAS+tn, P+q)
                pack_swap(P)
            store_lines(T+24*tn, T+24*tn+4, T+32, tn*16*2048, 16)
    else:
        if XSHARE:
            assert XSENT and XBF16
            SHX, SHY = 0, 16384
            k("s_waitcnt vmcnt(0)")
            srd(k, 44, 26, 256*16384, 0x1E00000 if XB_SEP else VB_OFF)
            k(f"s_xor_b32 s42, s2, {8 if MAP2 == 1 else 1}")
            k("s_lshl_b32 s43, s42, 14")
            k("s_lshl_b32 s39, s28, 12")
            k("s_add_u32 s43, s43, s39")
            k("v_lshlrev_b32 v2, 4, v1")
            k("s_cmp_eq_u32 s62, 0")
            k(f"s_cbranch_scc1 L_{tag}_k0")
            for half, l2 in ((0, None), (32, f"L_{tag}_k0:")):
                if l2: k(l2)
                for i in range(16): k(f"{CVT} v{Y+32+i}, v{ACC+half+2*i}, v{ACC+half+2*i+1}")
                for i in range(4):
                    k(f"s_add_u32 s39, s43, {1024*i}")
                    k(f"buffer_store_dwordx4 {vr(Y+32+4*i,4)}, v2, s[44:47], s39 offen sc0 sc1")
                if half == 0:
                    for i in range(32): k(f"v_mov_b32 v{ACC+i}, v{ACC+32+i}")
                    k(f"v_mov_b32 v{BIAS}, v{BIAS+2}")
                    k(f"s_branch L_{tag}_k1")
            k(f"L_{tag}_k1:")
            k("s_lshl_b32 s39, s28, 12")
            k(f"v_add_u32 v3, s39, v2")
            for i in range(4): k(f"ds_write_b128 v3, {vr(ACC+16+4*i,4)} offset:{SHX+1024*i}")
            k("s_lshl_b32 s39, s62, 16")
            k("s_add_u32 s38, s38, s39")
            k("s_lshl_b32 s39, s28, 11")
            k(f"v_add_u32 v3, s39, v2")
            k("s_waitcnt vmcnt(0) lgkmcnt(0)" if XWAIT else "s_waitcnt lgkmcnt(0)")
            k("s_barrier")
            k("s_barrier")
            k(f"ds_read_b128 {vr(Y+40,4)}, v3 offset:{SHY}")
            k(f"ds_read_b128 {vr(Y+44,4)}, v3 offset:{SHY+1024}")
            k("s_waitcnt lgkmcnt(0)")
            mark(k, 4)
            k(f"L_{tag}_epi:")
            k("s_mov_b32 s40, 0xffff0000")
            k(f"v_lshlrev_b32 v{BIAS}, 16, v{BIAS}")
            if PERTURB: k(f"v_add_f32 v{BIAS}, {f32(PERTURB)}, v{BIAS}")
            set_ovs()
            for tp in range(2):
                P = T + 4*tp
                for q in range(4):
                    td = 2*tp + q//2
                    a_ = ACC + 4*td + 2*(q % 2); y = Y + 4*td + 2*(q % 2)
                    u, w = T+8+4*q, T+10+4*q
                    pk = Y + 40 + (4*td + 2*(q % 2))//2
                    k(f"v_lshlrev_b32 v{y}, 16, v{pk}")
                    k(f"v_and_b32 v{y+1}, s40, v{pk}")
                    k(f"v_pk_add_f32 {vr(a_,2)}, {vr(a_,2)}, {vr(y,2)}")
                    k(f"v_add_f32 v{u}, v{a_}, v{BIAS}")
                    k(f"v_add_f32 v{u+1}, v{a_+1}, v{BIAS}")
                    k(f"{CVT} v{P+q}, v{u}, v{u+1}")
                pack_swap(P)
                for q in range(4):
                    u, w = T+8+4*q, T+10+4*q
                    hp = HL+4*tp+q
                    k(f"v_lshlrev_b32 v{u}, 16, v{P+q}")
                    k(f"v_and_b32 v{u+1}, s40, v{P+q}")
                    k(f"v_lshlrev_b32 v{w}, 16, v{hp}")
                    k(f"v_and_b32 v{w+1}, s40, v{hp}")
                    k(f"v_pk_add_f32 {vr(u,2)}, {vr(u,2)}, {vr(w,2)}")
                    k(f"{CVT} v{P+q}, v{u}, v{u+1}")
            store_lines(T, T+4, T+32, 0, 48)
        else:
            k("s_waitcnt vmcnt(0)")
            srd(k, 44, 26, 256*(16384 if XBF16 else 32768), 0x1E00000 if XB_SEP else VB_OFF)
            if not XSENT: srd(k, 56, 26, 256*64, FL_OFF)
            k(f"s_xor_b32 s42, s2, {8 if MAP2 == 1 else 1}")
            k(f"s_lshl_b32 s43, s42, {14 if XBF16 else 15}")
            k(f"s_lshl_b32 s39, s28, {12 if XBF16 else 13}")
            k("s_add_u32 s43, s43, s39")
            k("v_lshlrev_b32 v2, 4, v1")
            k("v_mov_b32 v4, 0")
            if not XSENT:
                k("s_lshl_b32 s39, s42, 6")
                k("s_mov_b32 s41, 0")
                k("v_readfirstlane_b32 s61, v3")
                k("s_cmp_eq_u32 s61, 0")
                k(f"s_cbranch_scc0 L_{tag}_xpolld")
                k(f"L_{tag}_xpoll:")
                k("buffer_load_dword v3, v4, s[56:59], s39 offen offset:4 sc0 sc1")
                k("s_waitcnt vmcnt(0)")
                k("v_readfirstlane_b32 s61, v3")
                k("s_add_u32 s41, s41, 1")
                k("s_cmp_ge_u32 s41, 0x40000")
                k(f"s_cbranch_scc1 L_{tag}_xpolld")
                k("s_cmp_eq_u32 s61, 0")
                k(f"s_cbranch_scc1 L_{tag}_xpoll")
                k(f"L_{tag}_xpolld:")
                k("s_cmp_eq_u32 s61, s54")
                k(f"s_cselect_b32 s61, {0 if FORCE_FAR else 1}, 0")
            def sends(flags, lab):
                k("s_cmp_eq_u32 s62, 0")
                k(f"s_cbranch_scc1 L_{tag}_k0{lab}")
                for half, l2 in ((0, None), (32, f"L_{tag}_k0{lab}:")):
                    if l2: k(l2)
                    if XBF16:
                        for i in range(16): k(f"{CVT} v{Y+32+i}, v{ACC+half+2*i}, v{ACC+half+2*i+1}")
                        for i in range(4):
                            k(f"s_add_u32 s39, s43, {1024*i}")
                            k(f"buffer_store_dwordx4 {vr(Y+32+4*i,4)}, v2, s[44:47], s39 offen {flags}")
                    else:
                        for i in range(8):
                            k(f"s_add_u32 s39, s43, {1024*i}")
                            k(f"buffer_store_dwordx4 {vr(ACC+half+4*i,4)}, v2, s[44:47], s39 offen {flags}")
                    if half == 0: k(f"s_branch L_{tag}_k1{lab}")
                k(f"L_{tag}_k1{lab}:")
            def handoff(stf, ldf, lab):
                sends(stf, lab)
                k("s_waitcnt vmcnt(0)")
                k("s_lshl_b32 s39, s42, 6")
                k("s_lshl_b32 s41, s28, 2")
                k("s_add_u32 s39, s39, s41")
                k("v_mov_b32 v3, 1")
                k("s_mov_b64 exec, 1")
                k(f"buffer_store_dword v3, v4, s[56:59], s39 offen offset:16 {stf}")
                k("s_lshl_b32 s39, s2, 6")
                k("s_add_u32 s39, s39, s41")
                k("s_mov_b32 s41, 0")
                k(f"L_{tag}_poll{lab}:")
                k(f"buffer_load_dword v3, v4, s[56:59], s39 offen offset:16 {ldf}")
                k("s_waitcnt vmcnt(0)")
                k("v_readfirstlane_b32 s43, v3")
                k("s_add_u32 s41, s41, 1")
                k("s_cmp_ge_u32 s41, 0x40000")
                k(f"s_cbranch_scc1 L_{tag}_polld{lab}")
                k("s_cmp_eq_u32 s43, 1")
                k(f"s_cbranch_scc0 L_{tag}_poll{lab}")
                k(f"L_{tag}_polld{lab}:")
                k("s_mov_b64 exec, -1")
                k(f"s_lshl_b32 s43, s2, {14 if XBF16 else 15}")
                k(f"s_lshl_b32 s39, s28, {12 if XBF16 else 13}")
                k("s_add_u32 s43, s43, s39")
                for i in range(4 if XBF16 else 8):
                    k(f"s_add_u32 s39, s43, {1024*i}")
                    k(f"buffer_load_dwordx4 {vr(Y+(32 if XBF16 else 0)+4*i,4)}, v2, s[44:47], s39 offen {ldf}")
            if XSENT:
                assert XBF16
                sends('sc0 sc1', 's')
                k("s_lshl_b32 s43, s2, 14")
                k("s_lshl_b32 s39, s28, 12")
                k("s_add_u32 s43, s43, s39")
                k("s_mov_b32 s41, 0")
                k("s_waitcnt vmcnt(0)")
                k(f"L_{tag}_spoll:")
                for i in range(4):
                    k(f"s_add_u32 s39, s43, {1024*i}")
                    k(f"buffer_load_dwordx4 {vr(Y+32+4*i,4)}, v2, s[44:47], s39 offen sc0 sc1")
                k("s_add_u32 s41, s41, 1")
                k("s_waitcnt vmcnt(0)")
                k(f"v_max3_u32 v3, v{Y+32}, v{Y+33}, v{Y+34}")
                for i in range(3, 15, 2): k(f"v_max3_u32 v3, v3, v{Y+32+i}, v{Y+32+i+1}")
                k(f"v_max_u32 v3, v3, v{Y+47}")
                k("v_cmp_eq_u32 vcc, -1, v3")
                k("s_nop 4")
                k("s_cmp_ge_u32 s41, 0x20000")
                k(f"s_cbranch_scc1 L_{tag}_spolld")
                k(f"s_cbranch_vccnz L_{tag}_spoll")
                k(f"L_{tag}_spolld:")
            else:
                k("s_cmp_eq_u32 s61, 1")
                k(f"s_cbranch_scc0 L_{tag}_far")
                handoff('', 'sc1', 'n')
                k(f"s_branch L_{tag}_xdone")
                k(f"L_{tag}_far:")
                handoff('sc0 sc1', 'sc0 sc1', 'f')
                k(f"L_{tag}_xdone:")
            k("s_cmp_eq_u32 s62, 0")
            k(f"s_cbranch_scc1 L_{tag}_kept")
            for i in range(32): k(f"v_mov_b32 v{ACC+i}, v{ACC+32+i}")
            k(f"v_mov_b32 v{BIAS}, v{BIAS+2}"); k(f"v_mov_b32 v{BIAS+1}, v{BIAS+3}")
            k(f"L_{tag}_kept:")
            mark(k, 4)
            k(f"v_lshlrev_b32 v{BIAS}, 16, v{BIAS}"); k(f"v_lshlrev_b32 v{BIAS+1}, 16, v{BIAS+1}")
            if PERTURB:
                k(f"v_add_f32 v{BIAS}, {f32(PERTURB)}, v{BIAS}"); k(f"v_add_f32 v{BIAS+1}, {f32(PERTURB)}, v{BIAS+1}")
            k("s_lshl_b32 s39, s62, 16")
            k("s_add_u32 s38, s38, s39")
            set_ovs()
            for tnl in range(2):
                for tp in range(2):
                    i0 = 4*tnl + 2*tp
                    if XSENT: pass
                    elif XBF16: k(f"s_waitcnt vmcnt({3 - i0//2})")
                    else:     k(f"s_waitcnt vmcnt({6 - i0 if i0 < 6 else 0})")
                    if i0 == 0: mark(k, 5)
                    P = T + 4*tp + 24*tnl
                    for q in range(4):
                        td = 2*tp + q//2
                        a = ACC + 4*(4*tnl+td) + 2*(q % 2); y = Y + 4*(4*tnl+td) + 2*(q % 2)
                        u, w = T+8+4*q, T+10+4*q
                        if XBF16:
                            pk = Y + 32 + (4*(4*tnl+td) + 2*(q % 2))//2
                            k(f"v_lshlrev_b32 v{y}, 16, v{pk}")
                            k(f"v_and_b32 v{y+1}, s40, v{pk}")
                        k(f"v_pk_add_f32 {vr(a,2)}, {vr(a,2)}, {vr(y,2)}")
                        if EMU_Y:
                            k(f"{CVT} v{w}, v{a}, v{a+1}")
                            k(f"v_lshlrev_b32 v{u}, 16, v{w}")
                            k(f"v_and_b32 v{u+1}, s40, v{w}")
                            k(f"v_add_f32 v{u}, v{u}, v{BIAS+tnl}")
                            k(f"v_add_f32 v{u+1}, v{u+1}, v{BIAS+tnl}")
                        else:
                            k(f"v_add_f32 v{u}, v{a}, v{BIAS+tnl}")
                            k(f"v_add_f32 v{u+1}, v{a+1}, v{BIAS+tnl}")
                        k(f"{CVT} v{P+q}, v{u}, v{u+1}")
                    pack_swap(P)
                    for q in range(4):
                        u, w = T+8+4*q, T+10+4*q
                        hp = HL+8*tnl+4*tp+q
                        k(f"v_lshlrev_b32 v{u}, 16, v{P+q}")
                        k(f"v_and_b32 v{u+1}, s40, v{P+q}")
                        k(f"v_lshlrev_b32 v{w}, 16, v{hp}")
                        k(f"v_and_b32 v{w+1}, s40, v{hp}")
                        k(f"v_pk_add_f32 {vr(u,2)}, {vr(u,2)}, {vr(w,2)}")
                        k(f"{CVT} v{P+q}, v{u}, v{u+1}")
                store_lines(T+24*tnl, T+24*tnl+4, T+32, tnl*16*2048, 48)
    stamp_end(k, tag)
    k(f"s_branch {'L_gbar' if (fused and g1) else ENDL}")
    k(f"L_{tag}_prod:")
    if PPRIO: k(f"s_setprio {PPRIO}")
    k("s_sub_u32 s33, s28, 4")
    k("v_lshrrev_b32 v2, 4, v1")
    k("s_and_b32 s34, s33, 1")
    k("s_lshl_b32 s34, s34, 2")
    k("v_add_u32 v3, s34, v2")
    k("v_lshlrev_b32 v3, 1, v3")
    k("v_and_b32 v4, 15, v1")
    k("v_xor_b32 v3, v3, v4")
    k("v_lshlrev_b32 v3, 4, v3")
    k("v_lshl_add_u32 v8, v2, 11, v3")
    k(f"v_mul_u32_u24 v2, {BSTR}, v2")
    k("v_add_u32 v9, v2, v3")
    k("s_lshl_b32 s34, s33, 13")
    k("s_add_u32 s40, s32, s34")
    k(f"s_mul_i32 s34, s33, {4*BSTR}")
    k("s_add_u32 s41, s31, s34")
    k("s_lshl_b32 s42, s33, 10")
    k("s_mov_b32 s43, 0")
    k("s_add_u32 s46, s52, s53")
    k("s_mov_b32 s47, 0")
    def issue():
        k("s_add_u32 s58, s46, s47")
        k("s_and_b32 s58, s58, 3")
        k("s_cmp_eq_u32 s58, 0")
        k(f"s_cselect_b32 s58, {3+NIT}, {NIT-1}")
        k("s_add_u32 s58, s58, s47")
        k("s_add_u32 s58, s58, s55")
        k(f"s_cmp_ge_u32 s58, {2*NIT}")
        k(f"s_cselect_b32 s59, {2*NIT}, {NIT}")
        k(f"s_cmp_ge_u32 s58, {NIT}")
        k(f"s_cselect_b32 s59, s59, 0")
        k("s_sub_u32 s58, s58, s59")
        if not KPERM: k("s_mov_b32 s58, s47")
        if KWRAP: k(f"s_and_b32 s58, s58, {KWRAP-1}")
        k("s_add_u32 s58, s58, s63")
        k(f"s_mul_i32 s59, s58, {64*BSTR}")
        k(f"s_lshl_b32 s58, s58, 17")
        k("s_add_u32 s58, s58, s40")
        k("s_add_u32 s59, s59, s41")
        k("s_add_u32 s44, s43, s42")
        for m in range(4):
            k(f"s_add_u32 m0, s44, {4096*m}")
            k(f"s_add_u32 s45, s58, {m*16*2048}")
            k(f"buffer_load_dwordx4 v8, s[12:15], s45 offen lds")
            k(f"s_add_u32 m0, s44, {ASZ+4096*m}")
            k(f"s_add_u32 s45, s59, {m*16*BSTR}")
            k(f"buffer_load_dwordx4 v9, s[8:11], s45 offen {NT_B1 if g1 else NT_B2} lds")
        k("s_add_u32 s47, s47, 1")
        k(f"s_add_u32 s43, s43, {STG}")
        k(f"s_cmp_eq_u32 s43, {STG*NS}")
        k("s_cselect_b32 s43, 0, s43")
    if fused and not g1:
        k("s_cmp_eq_u32 s33, 0")
        k("s_cbranch_scc0 L_gbar_nopoll")
        srd(k, 36, 26, 1024, BAR_OFF)
        k("v_and_b32 v2, 7, v1")
        k("v_lshlrev_b32 v2, 7, v2")
        k("s_mov_b32 s34, 0")
        k("L_gbar_poll:")
        if PSLEEP: k(f"s_sleep {PSLEEP}")
        k(f"buffer_load_dword v3, v2, s[36:39], 0 offen {POLLF}")
        k("s_waitcnt vmcnt(0)")
        k("v_cmp_gt_u32 vcc, 32, v3")
        k("s_add_u32 s34, s34, 1")
        k("s_cmp_ge_u32 s34, 0x20000")
        k("s_cbranch_scc1 L_gbar_nopoll")
        k("s_cbranch_vccnz L_gbar_poll")
        k("L_gbar_nopoll:")
        k("s_barrier")
    if BAR2:
        per = 8
        mark(k, 1)
        issue(); mark(k, 2); issue()
        k(f"s_waitcnt vmcnt({per})")
        mark(k, 3)
        k("s_barrier")
        issue(); issue()
        mark(k, 4)
        k("s_mov_b32 s60, 0")
        k(f"L_{tag}_ploop:")
        k(f"s_waitcnt vmcnt({per})")
        k("s_barrier")
        issue(); issue()
        k("s_add_u32 s60, s60, 2")
        k(f"s_cmp_lt_u32 s60, {NIT-4}")
        k(f"s_cbranch_scc1 L_{tag}_ploop")
        k(f"s_waitcnt vmcnt({per})")
        k("s_barrier")
        k("s_waitcnt vmcnt(0)")
        k("s_barrier")
    else:
        producer_loop(k, tag, 8, issue, 3 if STATIC else NS, NIT)
    if g1:
        k("s_and_b32 s34, s33, 1")
        k("s_lshr_b32 s36, s33, 1")
        k("v_and_b32 v2, 15, v1")
        k("v_lshlrev_b32 v2, 1, v2")
        k("s_lshl_b32 s37, s36, 7")
        k("s_add_u32 s37, s37, s31")
        for t in range(2):
            k(f"buffer_load_ushort v{BIAS+t}, v2, s[20:23], s37 offen offset:{64+32*t}")
        k("v_and_b32 v2, 15, v1")
        k("v_lshlrev_b32 v2, 11, v2")
        k("v_lshrrev_b32 v3, 4, v1")
        k(f"v_lshl_add_u32 v{OV}, v3, 4, v2")
        k("s_lshl_b32 s38, s29, 7")
        k("s_lshl_b32 s39, s36, 6")
        k("s_add_u32 s38, s38, s39")
        k("s_add_u32 s38, s38, 32")
        k("s_lshl_b32 s38, s38, 11")
        k("s_add_u32 s38, s38, s32")
        k("s_lshl_b32 s39, s34, 7")
        k("s_add_u32 s38, s38, s39")
        k("s_lshl_b32 s39, s33, 13")
        k(f"s_add_u32 s39, s39, {32768 if STATIC else (98304 if BAR2 else 65536)}")
        k("v_lshl_add_u32 v2, v1, 4, s39")
        k("s_setprio 0")
        k("s_barrier")
        for i in range(8): k(f"ds_read_b128 {vr(ACC+4*i,4)}, v2 offset:{1024*i}")
        k("s_waitcnt vmcnt(0) lgkmcnt(0)")
        k(f"s_branch L_{tag}_epi")
    if (not g1) and XSHARE:
        SHX, SHY = 0, 16384
        k("s_setprio 0")
        k("s_and_b32 s34, s33, 1")
        k("s_lshr_b32 s36, s33, 1")
        k("v_and_b32 v2, 15, v1")
        k("v_lshlrev_b32 v2, 1, v2")
        k("s_lshl_b32 s37, s36, 7")
        k("s_add_u32 s37, s37, s31")
        k("s_lshl_b32 s39, s62, 6")
        k("s_add_u32 s37, s37, s39")
        k(f"buffer_load_ushort v{BIAS}, v2, s[20:23], s37 offen offset:32")
        k("v_and_b32 v2, 15, v1")
        k("v_lshlrev_b32 v2, 11, v2")
        k("v_lshrrev_b32 v3, 4, v1")
        k(f"v_lshl_add_u32 v{OV}, v3, 4, v2")
        k("s_lshl_b32 s38, s29, 7")
        k("s_lshl_b32 s39, s36, 6")
        k("s_add_u32 s38, s38, s39")
        k("s_lshl_b32 s39, s62, 5")
        k("s_add_u32 s38, s38, s39")
        k("s_add_u32 s38, s38, 16")
        k("s_lshl_b32 s38, s38, 11")
        k("s_add_u32 s38, s38, s32")
        k("s_lshl_b32 s39, s34, 7")
        k("s_add_u32 s38, s38, s39")
        for tp in range(2):
            k(f"s_add_u32 s40, s38, {tp*64}")
            k(f"buffer_load_dwordx4 {vr(HL+4*tp,4)}, v{OV}, s[16:19], s40 offen")
        srd(k, 44, 26, 256*16384, 0x1E00000 if XB_SEP else VB_OFF)
        k("s_lshl_b32 s43, s2, 14")
        k("s_lshl_b32 s39, s33, 12")
        k("s_add_u32 s43, s43, s39")
        k("v_lshlrev_b32 v2, 4, v1")
        k("s_lshl_b32 s39, s33, 12")
        k("v_add_u32 v3, s39, v2")
        k("s_barrier")
        for i in range(4): k(f"ds_read_b128 {vr(ACC+4*i,4)}, v3 offset:{SHX+1024*i}")
        k("s_mov_b32 s41, 0")
        k(f"L_{tag}_spoll:")
        for i in range(4):
            k(f"s_add_u32 s39, s43, {1024*i}")
            k(f"buffer_load_dwordx4 {vr(Y+32+4*i,4)}, v2, s[44:47], s39 offen sc0 sc1")
        k("s_add_u32 s41, s41, 1")
        k("s_waitcnt vmcnt(0)")
        k(f"v_max3_u32 v5, v{Y+32}, v{Y+33}, v{Y+34}")
        for i in range(3, 15, 2): k(f"v_max3_u32 v5, v5, v{Y+32+i}, v{Y+32+i+1}")
        k(f"v_max_u32 v5, v5, v{Y+47}")
        k("v_cmp_eq_u32 vcc, -1, v5")
        k("s_nop 4")
        k("s_cmp_ge_u32 s41, 0x20000")
        k(f"s_cbranch_scc1 L_{tag}_spolld")
        k(f"s_cbranch_vccnz L_{tag}_spoll")
        k(f"L_{tag}_spolld:")
        k("s_lshl_b32 s39, s33, 11")
        k("v_add_u32 v3, s39, v2")
        k(f"ds_write_b128 v3, {vr(Y+32,4)} offset:{SHY}")
        k(f"ds_write_b128 v3, {vr(Y+36,4)} offset:{SHY+1024}")
        k("s_waitcnt lgkmcnt(0)")
        k("s_barrier")
        k(f"s_branch L_{tag}_epi")
    stamp_end(k, tag, tid=256, slot=256, sfx='p')
    if fused and g1:
        return k, NV, STG*NS
    k(f"{ENDL}:")
    k("s_endpgm")
    return k, NV, STG*NS

def gelu_pair(k, src, u, w, bias, dst):
    if EMU_U:
        k(f"{CVT} v{w}, v{src}, v{src+1}")
        k(f"v_lshlrev_b32 v{u}, 16, v{w}")
        k(f"v_and_b32 v{u+1}, s40, v{w}")
        k(f"v_add_f32 v{u}, v{u}, v{bias}")
        k(f"v_add_f32 v{u+1}, v{u+1}, v{bias}")
        k(f"{CVT} v{w}, v{u}, v{u+1}")
        k(f"v_lshlrev_b32 v{u}, 16, v{w}")
        k(f"v_and_b32 v{u+1}, s40, v{w}")
    else:
        k(f"v_add_f32 v{u}, v{src}, v{bias}")
        k(f"v_add_f32 v{u+1}, v{src+1}, v{bias}")
    k(f"v_pk_mul_f32 {vr(w,2)}, {vr(u,2)}, {vr(u,2)}")
    k(f"v_pk_fma_f32 {vr(w,2)}, {vr(w,2)}, s[42:43], {vr(4,2)} op_sel_hi:[1,0,1]")
    k(f"v_pk_mul_f32 {vr(w,2)}, {vr(w,2)}, {vr(u,2)}")
    k(f"v_exp_f32 v{w}, v{w}")
    k(f"v_exp_f32 v{w+1}, v{w+1}")
    k(f"s_nop 0")
    k(f"v_pk_add_f32 {vr(w,2)}, {vr(w,2)}, {vr(6,2)}")
    k(f"v_rcp_f32 v{w}, v{w}")
    k(f"v_rcp_f32 v{w+1}, v{w+1}")
    k(f"s_nop 0")
    k(f"v_pk_mul_f32 {vr(w,2)}, {vr(w,2)}, {vr(u,2)}")
    k(f"{CVT} v{dst}, v{w}, v{w+1}")

RPAT = [2, 1]
FUSE_GG = 0
WEARLY = 1
W1IDLE = 0
EMU_LN = 0
EMU_L2 = 0
NT_B1 = ''
NT_B2 = ''
NT_X = ''
NT_W = ''
KHALF = 1
XSENT = 1
XSHARE = 0
XWAIT = 1
XBF16 = 1
EMU_Y = 0
PERTURB = 0
PSLEEP = 4
POLLF = 'sc0 sc1'
STATIC = 1
LOOPSTAMP = 0
BAR2 = 0
FAKE32 = 0
MAP2 = 0
XB_SEP = 1
FORCE_FAR = 0
PPRIO = 3
PFD = 0
KPERM = 1
FAKE16 = 0
NS1 = 3
NS2 = 3
KWRAP = 0
W2PF = 7
EMU_U = 0
RPG1 = 3
RPG2 = 4
def gen_gg():
    k1, nv1, l1 = gemm_kernel('g1', True)
    k2, nv2, l2 = gemm_kernel('g2', True)
    k1.l += k2.l
    return k1, max(nv1, nv2), max(l1, l2)
def gen_g1(): return gemm_kernel('g1')
def gen_g2(): return gemm_kernel('g2')

KERNELS = [('p1_kernel', gen_p1, (256,1,1), (256,1,1)), ('p2_kernel', gen_p2, (256,1,1), (256,1,1)), ('p3_kernel', gen_p3, (256,1,1), (256,1,1)),
 ('g1_kernel', gen_g1, (256,1,1), (512,1,1)), ('g2_kernel', gen_g2, (256,1,1), (512,1,1))]

def build_all(kernels=None):
    ks = []
    if kernels is None:
        kernels = KERNELS[:3] + [('gg_kernel', gen_gg, (256,1,1), (512,1,1))] if FUSE_GG else KERNELS
    for name, fn, grid, block in kernels:
        if W1PF and name in ('p2_kernel', 'p3_kernel'): block = (320, 1, 1)
        k, nv, lds = fn()
        if ST_ALL:
            k.l = [ (x + ' ' + ST_ALL) if ('buffer_store' in x and 'sc1' not in x and 'sc0' not in x and ' nt' not in x) else x for x in k.l]
        if name.startswith('g'):
            if NO_DMA: k.l = [x for x in k.l if not ('offen lds' in x)]
            if NO_MFMA: k.l = [x for x in k.l if 'v_mfma' not in x]
            if NO_ADV: k.l = [x for x in k.l if not (x.strip().startswith('s_add_u32 s40, s40,') or x.strip().startswith('s_add_u32 s41, s41,'))]
            if NO_A: k.l = [x for x in k.l if not ('s[12:15]' in x and 'offen lds' in x)]
            if NO_B: k.l = [x for x in k.l if not ('s[8:11]' in x and 'offen lds' in x)]
            if NO_BAR: k.l = [x for x in k.l if 's_barrier' not in x]
            if NO_READ: k.l = [x for x in k.l if 'ds_read_b64_tr' not in x]
        ks.append((name, k, nv, lds, grid, block))
    hdr = open('sequential_preLN__spectral_gfnet__mixer_token_mlp__prompt.s.ref').read().split('; Override launch')[0]
    s = hdr
    for name, k, nv, lds, grid, block in ks:
        s += f"; @launch kernel={name} grid=({grid[0]},{grid[1]},{grid[2]}) block=({block[0]},{block[1]},{block[2]}) lds={lds}\n"
    s += '.amdgcn_target "amdgcn-amd-amdhsa--gfx950"\n.text\n'
    for name, k, nv, lds, grid, block in ks: s += k.text()
    s += 'L_text_end:\n'
    s += '.section .rodata,"a"\n'
    for name, k, nv, lds, grid, block in ks: s += descriptor(name, nv)
    return s, ks

if __name__ == '__main__':
    s, ks = build_all()
    open(sys.argv[1] if len(sys.argv) > 1 else 'out.s', 'w').write(s)
    print('written', len(s), 'bytes')
```

```python
import sys, math, struct
sys.path.insert(0, 'work')
from asmlib import *

ZW_OFF = 0x0          ; ZW_SIZE = 257*32768
ZD_OFF = 0x0 ; WB_OFF = 0x480000
VB_OFF = 0x900000     ; VB_BLK = 256*64
H_OFF  = 0xE00000
HN_OFF = 0x1200000
GT_OFF = 0x1600000
WS_USED = 0x1D00000
S, D, F = 2048, 1024, 3584

def f32(x):
    return '0x%08x' % struct.unpack('<I', struct.pack('<f', x))[0]

CVT = 'v_cvt_pk_bf16_f32'
STAMP = False
NO_DMA = False
NO_MFMA = False
NO_READ = False
NO_BAR = False
NO_ADV = False
NO_A = False
NO_B = False
STAMP_OFF = 0x3000000
KIDX = {'p1':0,'p2':1,'p3':2,'g1':3,'g2':4}
NMARK = 8
def mark(k, i):
    if STAMP and not (LOOPSTAMP and k.name.startswith('g') and 1 <= i <= 4): k(f"s_memrealtime s[{64+2*i}:{65+2*i}]")
def stamp_begin(k):
    if STAMP:
        for i in range(1, NMARK): k(f"s_mov_b64 s[{64+2*i}:{65+2*i}], 0")
        k("s_memrealtime s[64:65]")
        k("s_memtime s[94:95]")
def stamp_end(k, tag, tid=0, slot=0, sfx=''):
    if not STAMP: return
    mark(k, 6)
    k("s_waitcnt vmcnt(0) lgkmcnt(0)")
    mark(k, 7)
    k("s_memtime s[84:85]")
    k("s_load_dwordx2 s[88:89], s[0:1], 80")
    k("s_waitcnt lgkmcnt(0)")
    k(f"s_add_u32 s88, s88, {STAMP_OFF + KIDX[tag]*65536}")
    k("s_addc_u32 s89, s89, 0")
    k(f"s_add_u32 s87, s2, {slot}")
    k("s_lshl_b32 s87, s87, 7")
    k("v_mov_b32 v8, s87")
    k(f"v_cmp_eq_u32 vcc, {tid}, v0" if tid <= 64 else f"v_cmp_eq_u32 vcc, {hex(tid)}, v0")
    k("s_and_saveexec_b64 s[86:87], vcc")
    k(f"s_cbranch_execz L_{tag}_nostamp{sfx}")
    for i in range(0, NMARK, 2):
        for j in range(4): k(f"v_mov_b32 v{4+j}, s{64+2*i+j}")
        k(f"global_store_dwordx4 v8, v[4:7], s[88:89] offset:{8*i}")
        k("s_nop 1")
    k("v_mov_b32 v4, s94"); k("v_mov_b32 v5, s95"); k("v_mov_b32 v6, s84"); k("v_mov_b32 v7, s85")
    k("global_store_dwordx4 v8, v[4:7], s[88:89] offset:64")
    k("s_getreg_b32 s84, hwreg(HW_REG_XCC_ID, 0, 4)")
    k("s_nop 1")
    k("v_mov_b32 v4, s84")
    k("global_store_dword v8, v4, s[88:89] offset:80")
    k(f"L_{tag}_nostamp{sfx}:")

MF32 = 'v_mfma_f32_32x32x16_bf16'

CODEPF = 1
W1PF = 0
W1PF0 = 0
W1L2 = 0
ST_FLAGS = ''
ST_ALL = ''
ST_P1 = 'sc1'
ST_P2 = 'sc1'
ST_P3 = 'sc1'
ST_G1 = 'sc1'
ST_G2 = 'nt'
OUT_TOUCH = 0
def code_prefetch(k, tag, first_label, last_label, vtmp, stmp, nwaves_cond=None):
    if not CODEPF: return
    k(f"s_getpc_b64 s[{stmp}:{stmp+1}]")
    k(f"L_{tag}_pc:")
    k(f"s_add_u32 s{stmp}, s{stmp}, {first_label}-L_{tag}_pc")
    k(f"s_addc_u32 s{stmp+1}, s{stmp+1}, 0")

WS_BASE = 0
def srd(k, s, base, size, off=0):
    if base == 26: off += WS_BASE
    if off:
        k(f"s_add_u32 s{s}, s{base}, {hex(off)}")
        k(f"s_addc_u32 s{s+1}, s{base+1}, 0")
    else:
        k(f"s_mov_b32 s{s}, s{base}")
        k(f"s_mov_b32 s{s+1}, s{base+1}")
    k(f"s_mov_b32 s{s+2}, {hex(size)}")
    k(f"s_mov_b32 s{s+3}, 0x20000")

SEQ = [(r, c) for r in range(4) for c in range(4)]

def rot_setup(k, vA, t):
    k(f"v_mul_f32 v{t+4}, {f32(5.0)}, v{vA}")
    k(f"v_cos_f32 v{t}, v{vA}")
    k(f"v_sin_f32 v{t+1}, v{vA}")
    k(f"v_cos_f32 v{t+2}, v{t+4}")
    k(f"v_sin_f32 v{t+3}, v{t+4}")

def rot(k, dst, src, st, tmp, sign):
    k(f"v_pk_mul_f32 {vr(tmp,2)}, {vr(src,2)}, {vr(st,2)} op_sel_hi:[1,0]")
    neg = "neg_lo:[0,1,0]" if sign > 0 else "neg_hi:[0,1,0]"
    k(f"v_pk_fma_f32 {vr(dst,2)}, {vr(src,2)}, {vr(st,2)}, {vr(tmp,2)} op_sel:[1,1,0] op_sel_hi:[0,1,1] {neg}")

def gen_matrix(k, Mr, Mi, vA, vB, t):
    rot_setup(k, vA, t)
    cur = [t+6, t+8]
    k(f"v_cos_f32 v{cur[0]}, v{vB}")
    k(f"v_sin_f32 v{cur[0]+1}, v{vB}")
    k("s_nop 0")
    for i, (r, c) in enumerate(SEQ):
        a_, b_ = cur[i % 2], cur[(i+1) % 2]
        if i < 15: rot(k, b_, a_, t+2 if c == 3 else t, t+4, +1)
        k(f"{CVT} v{Mr+i}, v{a_}, v{a_+1}")
        k(f"{CVT} v{Mi+i}, -v{a_+1}, v{a_}")

def gen_twiddle(k, tw, vA, vB, t, scale=None):
    rot_setup(k, vA, t)
    k(f"v_cos_f32 v{tw}, v{vB}")
    k(f"v_sin_f32_e64 v{tw+1}, -v{vB}")
    if scale is not None:
        k(f"v_mul_f32 v{tw}, {f32(scale)}, v{tw}")
        k(f"v_mul_f32 v{tw+1}, {f32(scale)}, v{tw+1}")
    else: k("s_nop 0")
    for i, (r, c) in enumerate(SEQ):
        if i < 15: rot(k, tw+2*(i+1), tw+2*i, t+2 if c == 3 else t, t+4, -1)

def stage(k, typ, Dr, Di, data, Mr, Mi, first=True):
    for r in range(4):
        for (Dx, M) in ((Dr, Mr), (Di, Mi)):
            c = '0' if (r == 0 and first) else vr(Dx, 16)
            if typ == 'A': k(f"{MF32} {vr(Dx,16)}, {vr(data+4*r,4)}, {vr(M+4*r,4)}, {c}")
            else:          k(f"{MF32} {vr(Dx,16)}, {vr(M+4*r,4)}, {vr(data+4*r,4)}, {c}")

def cmul_pack(k, Dr, Di, w, out, t, conj=False):
    for j in range(16):
        o = t + 2*(j % 4); jp = j & ~1; x = j & 1
        k(f"v_pk_mul_f32 {vr(o,2)}, {vr(w+2*j,2)}, {vr(Dr+jp,2)} op_sel:[0,{x}] op_sel_hi:[1,{x}]")
        k(f"v_pk_fma_f32 {vr(o,2)}, {vr(w+2*j,2)}, {vr(Di+jp,2)}, {vr(o,2)} op_sel:[1,{x},0] op_sel_hi:[0,{x},1] neg_lo:[1,0,0]")
        if j >= 1:
            po = t + 2*((j-1) % 4); n = '-' if conj else ''
            k(f"{CVT} v{out+j-1}, v{po}, {n}v{po+1}")
    po = t + 2*(15 % 4); n = '-' if conj else ''
    k(f"{CVT} v{out+15}, v{po}, {n}v{po+1}")

def wave_reduce2(k, a, b):
    for m in ("quad_perm:[1,0,3,2] row_mask:0xf", "quad_perm:[2,3,0,1] row_mask:0xf", "row_half_mirror row_mask:0xf",
              "row_mirror row_mask:0xf", "row_bcast:15 row_mask:0xa", "row_bcast:31 row_mask:0xc"):
        k(f"v_add_f32_dpp v{a}, v{a}, v{a} {m} bank_mask:0xf")
        k(f"v_add_f32_dpp v{b}, v{b}, v{b} {m} bank_mask:0xf")

def tree_sum(k, X, n, t, op='add'):
    acc = [t, t+2, t+4, t+6]
    for i in range(4):
        k(f"v_pk_add_f32 {vr(acc[i],2)}, {vr(X+2*i,2)}, {vr(X+2*(i+4),2)}")
    for i in range(8, n):
        k(f"v_pk_add_f32 {vr(acc[i%4],2)}, {vr(acc[i%4],2)}, {vr(X+2*i,2)}")
    k(f"v_pk_add_f32 {vr(acc[0],2)}, {vr(acc[0],2)}, {vr(acc[1],2)}")
    k(f"v_pk_add_f32 {vr(acc[2],2)}, {vr(acc[2],2)}, {vr(acc[3],2)}")
    k(f"v_pk_add_f32 {vr(acc[0],2)}, {vr(acc[0],2)}, {vr(acc[2],2)}")

def ln_scalars(k, t, twice=False):
    k(f"v_mul_f32 v{t}, {f32(1/1024)}, v{t}")
    k(f"v_mul_f32 v{t+1}, {f32(1/1024)}, v{t+1}")
    if twice:
        k(f"v_add_f32 v{t+2}, {f32(1e-5)}, v{t}")
        k(f"v_add_f32 v{t+3}, {f32(1e-5)}, v{t+1}")
        k(f"v_rsq_f32 v{t+2}, v{t+2}")
        k(f"v_rsq_f32 v{t+3}, v{t+3}")
        k("s_nop 0")
        k(f"v_mul_f32 v{t}, v{t}, v{t+2}")
        k(f"v_mul_f32 v{t+1}, v{t+1}, v{t+3}")
        k(f"v_mul_f32 v{t}, v{t}, v{t+2}")
        k(f"v_mul_f32 v{t+1}, v{t+1}, v{t+3}")
        k(f"v_add_f32 v{t}, {f32(1e-5)}, v{t}")
        k(f"v_add_f32 v{t+1}, {f32(1e-5)}, v{t+1}")
        k(f"v_rsq_f32 v{t}, v{t}")
        k(f"v_rsq_f32 v{t+1}, v{t+1}")
        k("s_nop 0")
        k(f"v_mul_f32 v{t}, v{t}, v{t+2}")
        k(f"v_mul_f32 v{t+1}, v{t+1}, v{t+3}")
        k(f"v_mul_f32 v{t+12}, v{t+12}, v{t}")
        k(f"v_mul_f32 v{t+13}, v{t+13}, v{t+1}")
        return
    if EMU_LN:
        k(f"{CVT} v{t+2}, v{t}, v{t+1}")
        k(f"v_lshlrev_b32 v{t}, 16, v{t+2}")
        k(f"v_and_b32 v{t+1}, 0xffff0000, v{t+2}")
    k(f"v_add_f32 v{t}, {f32(1e-5)}, v{t}")
    k(f"v_add_f32 v{t+1}, {f32(1e-5)}, v{t+1}")
    if EMU_LN:
        k(f"{CVT} v{t+2}, v{t}, v{t+1}")
        k(f"v_lshlrev_b32 v{t}, 16, v{t+2}")
        k(f"v_and_b32 v{t+1}, 0xffff0000, v{t+2}")
        k(f"v_sqrt_f32 v{t}, v{t}")
        k(f"v_sqrt_f32 v{t+1}, v{t+1}")
        k(f"s_nop 0")
        k(f"{CVT} v{t+2}, v{t}, v{t+1}")
        k(f"v_lshlrev_b32 v{t}, 16, v{t+2}")
        k(f"v_and_b32 v{t+1}, 0xffff0000, v{t+2}")
        k(f"v_rcp_f32 v{t}, v{t}")
        k(f"v_rcp_f32 v{t+1}, v{t+1}")
    else:
        k(f"v_rsq_f32 v{t}, v{t}")
        k(f"v_rsq_f32 v{t+1}, v{t+1}")
    k(f"s_nop 0")
    k(f"v_mul_f32 v{t+12}, v{t+12}, v{t}")
    k(f"v_mul_f32 v{t+13}, v{t+13}, v{t+1}")

def ln_mean(k, t, sTmp):
    k(f"v_mul_f32 v{t}, {f32(1/1024)}, v{t}")
    k(f"v_mul_f32 v{t+1}, {f32(1/1024)}, v{t+1}")
    if EMU_LN:
        k(f"{CVT} v{t+2}, v{t}, v{t+1}")
        k(f"v_readlane_b32 s{sTmp}, v{t}, 63")
        k(f"v_readlane_b32 s{sTmp+1}, v{t+1}, 63")
        k(f"v_lshlrev_b32 v{t+12}, 16, v{t+2}")
        k(f"v_and_b32 v{t+13}, 0xffff0000, v{t+2}")
    else:
        k(f"v_mov_b32 v{t+12}, v{t}")
        k(f"v_mov_b32 v{t+13}, v{t+1}")
        k(f"v_readlane_b32 s{sTmp}, v{t}, 63")
        k(f"v_readlane_b32 s{sTmp+1}, v{t+1}, 63")

def ln_stats_xrow(k, X, t, sM, sR, sTmp):
    tree_sum(k, X, 16, t)
    wave_reduce2(k, t, t+1)
    ln_mean(k, t, sTmp)
    acc = [t, t+2]; tmp = [t+4, t+6, t+8, t+10]
    for i in range(16):
        d = tmp[i % 4]
        k(f"v_pk_add_f32 {vr(d,2)}, {vr(X+2*i,2)}, {sr(sTmp,2)} neg_lo:[0,1] neg_hi:[0,1]")
        a = acc[i % 2]
        if i < 2: k(f"v_pk_mul_f32 {vr(a,2)}, {vr(d,2)}, {vr(d,2)}")
        else:     k(f"v_pk_fma_f32 {vr(a,2)}, {vr(d,2)}, {vr(d,2)}, {vr(a,2)}")
    k(f"v_pk_add_f32 {vr(t,2)}, {vr(t,2)}, {vr(t+2,2)}")
    wave_reduce2(k, t, t+1)
    ln_scalars(k, t)
    k(f"v_readlane_b32 s{sR}, v{t}, 63")
    k(f"v_readlane_b32 s{sR+1}, v{t+1}, 63")
    k(f"v_readlane_b32 s{sM}, v{t+12}, 63")
    k(f"v_readlane_b32 s{sM+1}, v{t+13}, 63")

def gen_p1():
    k = Kern('p1_kernel')
    k("s_cmp_ge_u32 s2, 256")
    k("s_cbranch_scc1 L_p1_end")
    stamp_begin(k)
    k("s_load_dwordx4 s[4:7], s[0:1], 0")
    k("s_load_dwordx2 s[24:25], s[0:1], 16")
    k("s_load_dwordx2 s[60:61], s[0:1], 32")
    k("s_load_dwordx2 s[26:27], s[0:1], 80")
    TID, LANE = 0, 1
    if CODEPF:
        k("s_getpc_b64 s[52:53]")
        k("L_p1_pc:")
        k("s_sub_u32 s52, s52, L_p1_pc-p1_kernel")
        k("s_subb_u32 s53, s53, 0")
        k("v_lshlrev_b32 v210, 7, v0")
        k("v_mov_b32 v211, s53")
        k("v_add_co_u32 v210, vcc, s52, v210")
        k("v_addc_co_u32 v211, vcc, 0, v211, vcc")
        k("v_cmp_gt_u32 vcc, (L_p1_endc-p1_kernel+127)/128, v0")
        k("s_and_saveexec_b64 s[54:55], vcc")
        k("s_cbranch_execz L_p1_cp0")
        k("global_load_dword v212, v[210:211], off")
        k("L_p1_cp0:")
        k("s_mov_b64 exec, -1")
        k("s_bfe_u32 s54, s2, 0x10003")
        k("s_lshl_b32 s54, s54, 15")
        k("s_add_u32 s54, s54, L_p1_endc-p1_kernel")
        k("v_add_co_u32 v210, vcc, s54, v210")
        k("v_addc_co_u32 v211, vcc, 0, v211, vcc")
        k("v_lshlrev_b32 v213, 7, v0")
        k("v_add_u32 v213, s54, v213")
        k("v_cmp_gt_u32 vcc, L_text_end-p1_kernel, v213")
        k("s_and_saveexec_b64 s[54:55], vcc")
        k("s_cbranch_execz L_p1_cp1")
        k("global_load_dword v212, v[210:211], off")
        k("L_p1_cp1:")
        k("s_mov_b64 exec, -1")
    k("v_and_b32 v1, 63, v0")
    k("v_lshrrev_b32 v2, 6, v0")
    k("v_readfirstlane_b32 s28, v2")
    k("s_lshr_b32 s29, s2, 5")
    k("s_lshl_b32 s29, s29, 2")
    k("s_and_b32 s30, s2, 31")
    k("s_add_u32 s31, s29, s28")
    k("s_lshl_b32 s31, s31, 5")
    k("s_add_u32 s31, s31, s30")
    k("s_lshl_b32 s31, s31, 11")
    k("s_add_u32 s32, s31, 0x200000")
    k("s_waitcnt lgkmcnt(0)")
    srd(k, 8, 4, S*D*2)
    srd(k, 12, 6, S*513*2)
    srd(k, 16, 24, S*513*2)
    srd(k, 20, 26, 257*16384, ZD_OFF)
    srd(k, 72 if False else 52, 26, 257*16384, WB_OFF) if False else None
    XL = 4
    if FUSE_GG:
        srd(k, 56, 26, 1024, BAR_OFF)
        k("s_cmp_lt_u32 s2, 8")
        k("s_cbranch_scc0 L_p1_nozb")
        k("s_lshl_b32 s33, s2, 7")
        k("v_mov_b32 v2, 0")
        k("v_cmp_eq_u32 vcc, 0, v0")
        k("s_and_saveexec_b64 s[34:35], vcc")
        k("s_cbranch_execz L_p1_nozb")
        k("buffer_store_dword v2, v2, s[56:59], s33 offen sc0 sc1")
        k("L_p1_nozb:")
        k("s_mov_b64 exec, -1")
    k("v_lshlrev_b32 v2, 4, v1")
    k(f"buffer_load_dwordx4 {vr(XL,4)}, v2, s[8:11], s31 offen {NT_X}")
    k(f"buffer_load_dwordx4 {vr(XL+4,4)}, v2, s[8:11], s31 offen offset:1024 {NT_X}")
    k(f"buffer_load_dwordx4 {vr(XL+8,4)}, v2, s[8:11], s32 offen {NT_X}")
    k(f"buffer_load_dwordx4 {vr(XL+12,4)}, v2, s[8:11], s32 offen offset:1024 {NT_X}")
    WL = 20
    def w_loads():
        k("v_lshlrev_b32 v220, 2, v0")
        k("s_lshl_b32 s33, s29, 6")
        k("s_lshl_b32 s34, s30, 1")
        k("s_add_u32 s33, s33, s34")
        k("s_mul_i32 s33, s33, 1026")
        for pi in range(2):
            for cc in range(4):
                off = (64*cc + pi)*1026
                k(f"s_add_u32 s34, s33, {off}")
                k(f"buffer_load_dword v{WL+4*pi+cc}, v220, s[12:15], s34 offen {NT_W}")
                k(f"buffer_load_dword v{WL+8+4*pi+cc}, v220, s[16:19], s34 offen {NT_W}")
        WX = 200
        k("v_and_b32 v200, 3, v1")
        k("v_lshlrev_b32 v200, 6, v200")
        k("v_bfe_u32 v201, v1, 2, 1")
        k("v_add_u32 v200, v200, v201")
        k("v_mul_u32_u24 v200, 1026, v200")
        k("v_add_u32 v200, 1024, v200")
        k("v_and_b32 v226, 3, v1")
        k("v_lshlrev_b32 v226, 6, v226")
        k("v_add_u32 v226, v226, v201")
        k("s_lshl_b32 s49, s29, 6")
        k("s_lshl_b32 s50, s30, 1")
        k("s_add_u32 s49, s49, s50")
        k("v_add_u32 v226, s49, v226")
        k("v_sub_u32 v226, 2048, v226")
        k("v_and_b32 v226, 2047, v226")
        k("v_mul_u32_u24 v226, 1026, v226")
        k("v_subrev_u32 v227, 1024, v200")
        k("v_cmp_gt_u32 vcc, 8, v0")
        k("s_and_saveexec_b64 s[36:37], vcc")
        k("s_cbranch_execz L_p1_nox")
        k("buffer_load_ushort v202, v200, s[12:15], s33 offen")
        k("buffer_load_ushort v203, v200, s[16:19], s33 offen")
        k("buffer_load_ushort v228, v227, s[12:15], s33 offen")
        k("buffer_load_ushort v229, v227, s[16:19], s33 offen")
        k("buffer_load_ushort v230, v226, s[12:15], 0 offen")
        k("buffer_load_ushort v231, v226, s[16:19], 0 offen")
        k("buffer_load_ushort v232, v226, s[12:15], 0 offen offset:1024")
        k("buffer_load_ushort v233, v226, s[16:19], 0 offen offset:1024")
        k("L_p1_nox:")
        k("s_mov_b64 exec, -1")
    if WEARLY: w_loads()
    WL = 20
    Mr, Mi, TW = 36, 52, 68
    XF, DR, DI, OP, T = 100, 132, 148, 164, 180
    k("v_and_b32 v2, 31, v1")
    k("v_cvt_f32_u32 v2, v2")
    k("v_lshrrev_b32 v3, 5, v1")
    k("v_lshlrev_b32 v3, 2, v3")
    k("v_cvt_f32_u32 v3, v3")
    k(f"v_mul_f32 v204, {f32(1/32)}, v2")
    k("v_mul_f32 v205, v204, v3")
    gen_matrix(k, Mr, Mi, 204, 205, T)
    k(f"v_mul_f32 v204, {f32(1/1024)}, v2")
    k("v_mul_f32 v205, v204, v3")
    gen_twiddle(k, TW, 204, 205, T)
    STG = 16384; WST = STG + 257*64 + 64
    k("s_lshr_b32 s44, s2, 2")
    k("s_and_b32 s44, s44, 3")
    k("s_mov_b32 s45, 0x05040100")
    k("s_mov_b32 s46, 0x07060302")
    k("s_lshl_b32 s47, s2, 6")
    k("s_lshl_b32 s48, s28, 2")
    k(f"s_add_u32 s48, s48, {STG}")
    B1, B2, AWJ, AX, ARD, AGL, AT1, AT2, AWR, AWG = 206, 207, 208, 209, 216, 217, 218, 219, 221, 222
    k("v_and_b32 v2, 31, v1")
    k("v_lshrrev_b32 v3, 5, v1")
    k("v_and_b32 v204, 1, v2")
    k("v_lshrrev_b32 v205, 1, v2")
    k(f"v_xor_b32 v{B1}, s44, v204")
    k(f"v_lshlrev_b32 v{B1}, 4, v{B1}")
    k(f"v_lshl_add_u32 v{B1}, v205, 6, v{B1}")
    k(f"v_lshl_add_u32 v{B1}, v3, 12, v{B1}")
    k(f"v_add_u32 v{B1}, s48, v{B1}")
    k("v_add_u32 v205, 1, v2")
    k("v_lshrrev_b32 v205, 1, v205")
    k("v_add_u32 v204, 2, v204")
    k(f"v_xor_b32 v{B2}, s44, v204")
    k(f"v_lshlrev_b32 v{B2}, 4, v{B2}")
    k("v_lshlrev_b32 v205, 6, v205")
    k(f"v_sub_u32 v{B2}, v{B2}, v205")
    k("v_lshlrev_b32 v205, 12, v3")
    k(f"v_sub_u32 v{B2}, v{B2}, v205")
    k(f"v_add_u32 v{B2}, s48, v{B2}")
    k("s_lshl_b32 s49, s28, 12")
    k(f"s_add_u32 s49, s49, {WST}")
    k("v_bfe_u32 v204, v1, 1, 2")
    k("v_xor_b32 v204, s44, v204")
    k("v_lshlrev_b32 v204, 4, v204")
    k(f"v_lshl_add_u32 v{AWJ}, v1, 6, v204")
    k(f"v_add_u32 v{AWJ}, s49, v{AWJ}")
    k("v_lshrrev_b32 v204, 2, v1")
    k("v_and_b32 v205, 3, v1")
    k(f"v_bfe_u32 v{AT1}, v204, 1, 2")
    k(f"v_xor_b32 v{AT1}, v{AT1}, v205")
    k(f"v_lshlrev_b32 v{AT1}, 4, v{AT1}")
    k(f"v_lshl_add_u32 v{AWR}, v204, 6, v{AT1}")
    k(f"v_add_u32 v{AWR}, s49, v{AWR}")
    k("s_lshl_b32 s49, s28, 6")
    k("v_add_u32 v204, s49, v204")
    k("v_lshlrev_b32 v204, 14, v204")
    k(f"v_lshl_add_u32 v{AWG}, v205, 4, v204")
    k("v_bfe_u32 v204, v1, 2, 1")
    k("v_xor_b32 v204, s44, v204")
    k("v_lshlrev_b32 v204, 4, v204")
    k("v_and_b32 v205, 3, v1")
    k(f"v_lshl_add_u32 v{AX}, v205, 2, v204")
    APW = 223
    k(f"v_add_u32 v{APW}, {WST}, v{AX}")
    k(f"v_lshlrev_b32 v{ARD}, 4, v0")
    k(f"v_add_u32 v{ARD}, {STG}, v{ARD}")
    k("v_lshrrev_b32 v204, 2, v0")
    k("v_lshlrev_b32 v204, 14, v204")
    k("v_and_b32 v205, 3, v0")
    k(f"v_lshl_add_u32 v{AGL}, v205, 4, v204")
    k("s_xor_b32 s49, s44, 2")
    k("s_lshl_b32 s49, s49, 4")
    k("s_add_u32 s49, s49, s48")
    k("s_lshl_b32 s50, s44, 4")
    k("s_add_u32 s50, s50, s48")
    k(f"v_mov_b32 v{AT1}, s49")
    k(f"v_mov_b32 v{AT2}, s50")
    k("s_lshl_b32 s36, s28, 12")
    k("v_lshlrev_b32 v2, 5, v1")
    k("v_add_u32 v2, s36, v2")
    k("v_and_b32 v3, 31, v1")
    k("v_lshlrev_b32 v3, 2, v3")
    k("v_lshrrev_b32 v204, 5, v1")
    k("v_lshlrev_b32 v204, 9, v204")
    k("v_add3_u32 v3, v3, v204, s36")
    k("s_mov_b32 s35, 0xffff0000")
    mark(k, 1)
    k("s_waitcnt vmcnt(16)" if WEARLY else "s_waitcnt vmcnt(0)")
    mark(k, 2)
    if not WEARLY: w_loads()
    for i in range(16):
        for row in range(2):
            src = XL + 8*row + (i >> 1)
            if i % 2 == 0: k(f"v_lshlrev_b32 v{XF+2*i+row}, 16, v{src}")
            else:          k(f"v_and_b32 v{XF+2*i+row}, s35, v{src}")
    ln_stats_xrow(k, XF, T, 38, 40, 42)
    k(f"v_mov_b32 v{T+8}, s40"); k(f"v_mov_b32 v{T+9}, s41")
    k(f"v_mov_b32 v{T+10}, s38"); k(f"v_mov_b32 v{T+11}, s39")
    for i in range(16):
        d = T + 2*(i % 4)
        k(f"v_pk_fma_f32 {vr(d,2)}, {vr(XF+2*i,2)}, {vr(T+8,2)}, {vr(T+10,2)} neg_lo:[0,0,1] neg_hi:[0,0,1]")
        k(f"{CVT} v{OP+i}, v{d}, v{d+1}")
    k(f"ds_write_b128 v2, {vr(OP,4)}")
    k(f"ds_write_b128 v2, {vr(OP+4,4)} offset:16")
    k(f"ds_write_b128 v2, {vr(OP+8,4)} offset:2048")
    k(f"ds_write_b128 v2, {vr(OP+12,4)} offset:2064")
    k("s_waitcnt lgkmcnt(0)")
    for i, (r, c) in enumerate(SEQ):
        k(f"ds_read_b32 v{OP+i}, v3 offset:{(8*r+c)*128}")
    mark(k, 3)
    k("s_waitcnt lgkmcnt(0)")
    stage(k, 'A', DR, DI, OP, Mr, Mi)
    srd(k, 56, 26, 257*16384, WB_OFF)
    k("s_waitcnt vmcnt(0)")
    WO = XF
    for e in range(2):
        for pi in range(2):
            for cc in range(4):
                k(f"v_perm_b32 v{WO+4*(2*e+pi)+cc}, v{WL+8+4*pi+cc}, v{WL+4*pi+cc}, s{45+e}")
    for sl in range(4):
        if sl: k(f"v_xor_b32 v204, {16*sl}, v{AWJ}")
        k(f"ds_write_b128 v{204 if sl else AWJ}, {vr(WO+4*sl,4)}")
    k("s_add_u32 s49, s47, 0x400000")
    k("v_cmp_gt_u32 vcc, 8, v0")
    k("s_and_saveexec_b64 s[36:37], vcc")
    k("s_cbranch_execz L_p1_nox2")
    for r_ in (202, 203, 228, 229, 230, 231, 232, 233): k(f"v_lshlrev_b32 v{r_}, 16, v{r_}")
    k("v_add_f32 v228, v228, v230")
    k("v_sub_f32 v229, v229, v231")
    k("v_add_f32 v202, v202, v232")
    k("v_sub_f32 v203, v203, v233")
    k("v_add_f32 v230, v228, v202")
    k("v_add_f32 v231, v229, v203")
    k("v_sub_f32 v232, v228, v202")
    k("v_sub_f32 v233, v229, v203")
    for r_ in (230, 231, 232, 233): k(f"v_mul_f32 v{r_}, 0x3e800000, v{r_}")
    k(f"{CVT} v202, v230, v231")
    k(f"{CVT} v203, v232, v233")
    k(f"ds_write_b32 v{APW}, v202")
    k(f"buffer_store_dword v203, v{AX}, s[56:59], s49 offen {ST_P1}")
    k("L_p1_nox2:")
    k("s_mov_b64 exec, -1")
    k("s_waitcnt lgkmcnt(0)")
    for j in range(4): k(f"ds_read_b128 {vr(WO+16+4*j,4)}, v{AWR} offset:{1024*j}")
    k("s_mov_b32 s49, s47")
    for j in range(4):
        k(f"s_waitcnt lgkmcnt({3-j})")
        k(f"buffer_store_dwordx4 {vr(WO+16+4*j,4)}, v{AWG}, s[56:59], s49 offen {ST_P1}")
        if j < 3: k(f"s_add_u32 s49, s49, {16*16384}")
    cmul_pack(k, DR, DI, TW, OP, T)
    stage(k, 'B', DR, DI, OP, Mr, Mi)
    mark(k, 4)
    for i, (r, c) in enumerate(SEQ):
        if r < 2: k(f"{CVT} v{OP+i}, v{DR+i}, v{DI+i}")
        else:     k(f"{CVT} v{OP+i}, v{DI+i}, v{DR+i}")
        if r < 2: k(f"ds_write_b32 v{B1}, v{OP+i} offset:{(8*r+c)*1024}")
        else:     k(f"ds_write_b32 v{B2}, v{OP+i} offset:{(32-8*r-c)*1024}")
    k(f"v_sub_f32 v{T+2}, v{DR}, v{DI+8}")
    k(f"v_add_f32 v{T+3}, v{DI}, v{DR+8}")
    k(f"v_sub_f32 v{T+4}, v{DI}, v{DR+8}")
    k(f"v_add_f32 v{T+5}, v{DR}, v{DI+8}")
    k(f"{CVT} v{T}, v{T+4}, v{T+5}")
    k(f"{CVT} v{T+1}, v{T+2}, v{T+3}")
    k("s_mov_b64 exec, 1")
    k(f"ds_write_b32 v{AT1}, v{T}")
    k(f"ds_write_b32 v{AT2}, v{T+1}")
    k("s_mov_b64 exec, -1")
    k("s_waitcnt lgkmcnt(0)")
    k("s_barrier")
    RO = XF
    for j in range(4):
        k(f"ds_read_b128 {vr(RO+4*j,4)}, v{ARD} offset:{4096*j}")
    for j in range(4):
        k(f"s_waitcnt lgkmcnt({3-j})")
        k(f"buffer_store_dwordx4 {vr(RO+4*j,4)}, v{AGL}, s[20:23], s47 offen {ST_P1}")
        if j < 3: k("s_add_u32 s47, s47, 0x100000")
    stamp_end(k, 'p1')
    k("L_p1_end:")
    k("s_endpgm")
    k("L_p1_endc:")
    return k, 236, WST + 16384

def pf_wave(k, tag, first_line):
    if not W1PF: return
    k("s_cmp_eq_u32 s28, 4")
    k(f"s_cbranch_scc0 L_{tag}_nopf")
    k("s_waitcnt lgkmcnt(0)")
    srd(k, 16, 24, S*F*2)
    k(f"s_mul_i32 s33, s2, {W1PF*128}")
    k(f"s_add_u32 s33, s33, {first_line*128}")
    k("v_lshlrev_b32 v3, 7, v1")
    for i in range(W1PF//64):
        k("buffer_load_dword v4, v3, s[16:19], s33 offen")
        k("s_add_u32 s33, s33, 8192")
    k("s_endpgm")
    k(f"L_{tag}_nopf:")

def gen_p2():
    k = Kern('p2_kernel')
    k("s_cmp_ge_u32 s2, 256")
    k("s_cbranch_scc1 L_p2_end")
    stamp_begin(k)
    k("s_load_dwordx2 s[26:27], s[0:1], 80")
    k("s_load_dwordx2 s[24:25], s[0:1], 32")
    k("v_and_b32 v1, 63, v0")
    k("v_lshrrev_b32 v2, 6, v0")
    k("v_readfirstlane_b32 s28, v2")
    pf_wave(k, 'p2', W1PF0)
    k("v_lshlrev_b32 v2, 4, v1")
    k("s_lshr_b32 s29, s28, 1")
    k("s_and_b32 s30, s28, 1")
    k("s_lshl_b32 s31, s2, 14")
    k("s_lshl_b32 s32, s28, 12")
    k("s_add_u32 s31, s31, s32")
    k("s_waitcnt lgkmcnt(0)")
    srd(k, 8, 26, 257*16384, ZD_OFF)
    srd(k, 20, 26, 257*16384, WB_OFF)
    srd(k, 12, 26, 256*VB_BLK, VB_OFF)
    for i in range(4):
        k(f"s_add_u32 m0, s32, {1024*i}")
        k(f"s_add_u32 s33, s31, {1024*i}")
        k(f"buffer_load_dwordx4 v2, s[8:11], s33 offen lds")
    Z1, Z2 = 4, 20
    M1r, M1i, MFr, MFi, MIr, MIi = 36, 52, 68, 84, 100, 116
    T1, T2 = 132, 164
    DR, DI, T = 196, 212, 228
    A, B, J, H4, PI = 244, 245, 246, 247, 248
    k(f"v_and_b32 v{J}, 31, v1")
    k(f"v_cvt_f32_u32 v{J}, v{J}")
    k(f"v_lshrrev_b32 v{H4}, 5, v1")
    k(f"v_lshlrev_b32 v{H4}, 2, v{H4}")
    k(f"v_cvt_f32_u32 v{H4}, v{H4}")
    k(f"v_mov_b32 v{PI}, s30")
    k(f"v_cvt_f32_u32 v{PI}, v{PI}")
    k(f"v_mul_f32 v{A}, {f32(1/32)}, v{J}")
    k(f"v_mul_f32 v{B}, v{A}, v{H4}")
    gen_matrix(k, MFr, MFi, A, B, T)
    k(f"v_fma_f32 v{A}, v{J}, 2.0, v{PI}")
    k(f"v_mul_f32 v{A}, {f32(1/64)}, v{A}")
    k(f"v_mul_f32 v{B}, v{A}, v{H4}")
    gen_matrix(k, M1r, M1i, A, B, T)
    k("s_lshl_b32 s33, s30, 4")
    k(f"v_and_b32 v{T}, 31, v1")
    k(f"v_xor_b32 v{T}, s33, v{T}")
    k(f"v_cvt_f32_u32 v{T}, v{T}")
    k(f"v_mul_f32 v{A}, {f32(1/32)}, v{T}")
    k(f"v_mul_f32 v{B}, v{A}, v{H4}")
    k(f"v_mul_f32 v{T}, {f32(1/64)}, v{T}")
    k(f"v_fma_f32 v{B}, v{T}, v{PI}, v{B}")
    gen_matrix(k, MIr, MIi, A, B, T)
    k(f"v_fma_f32 v{A}, v{J}, 2.0, v{PI}")
    k(f"v_mul_f32 v{A}, {f32(1/2048)}, v{A}")
    k(f"v_mov_b32 v{T}, {f32(0.125)}")
    k(f"v_mul_f32 v{T+1}, {f32(-0.25)}, v{PI}")
    k(f"v_add_f32 v{T}, v{T}, v{T+1}")
    k(f"v_fma_f32 v{B}, v{A}, v{H4}, v{T}")
    gen_twiddle(k, T1, A, B, T)
    k(f"v_mul_f32 v{A}, {f32(1/1024)}, v{J}")
    k(f"v_mul_f32 v{B}, v{A}, v{H4}")
    k(f"v_mul_f32 v{T}, {f32(1/2048)}, v{J}")
    k(f"v_fma_f32 v{B}, v{T}, v{PI}, v{B}")
    gen_twiddle(k, T2, A, B, T)
    AZ1, AZ2, AW = 249, 250, 251
    k(f"v_bfe_u32 v{T}, v1, 2, 2")
    k(f"v_lshlrev_b32 v{T+1}, 6, v1")
    k(f"v_xor_b32 v{AZ1}, s29, v{T}")
    k(f"v_lshl_add_u32 v{AZ1}, v{AZ1}, 4, v{T+1}")
    k(f"v_xor_b32 v{AZ2}, 32, v{AZ1}")
    k("s_lshl_b32 s33, s29, 1")
    k("s_add_u32 s33, s33, s30")
    k(f"v_xor_b32 v{AW}, s33, v{T}")
    k(f"v_lshl_add_u32 v{AW}, v{AW}, 4, v{T+1}")
    k(f"v_add_u32 v{AW}, 16384, v{AW}")
    k("s_mul_i32 s34, s30, 0x80008000")
    k("s_mov_b32 s35, 0xffff0000")
    mark(k, 1)
    k("s_waitcnt vmcnt(0)")
    for i in range(4):
        k(f"s_add_u32 m0, s32, {16384+1024*i}")
        k(f"s_add_u32 s33, s31, {1024*i}")
        k(f"buffer_load_dwordx4 v2, s[20:23], s33 offen lds")
    k("s_barrier")
    mark(k, 2)
    for r in range(4):
        k(f"ds_read_b128 {vr(Z1+4*r,4)}, v{AZ1} offset:{4096*r}")
        k(f"ds_read_b128 {vr(Z2+4*r,4)}, v{AZ2} offset:{4096*r}")
    k("s_waitcnt lgkmcnt(0)")
    for i in range(16):
        k(f"v_xor_b32 v{Z2+i}, s34, v{Z2+i}")
    stage(k, 'A', DR, DI, Z1, M1r, M1i, first=True)
    stage(k, 'A', DR, DI, Z2, M1r, M1i, first=False)
    OP = Z1
    cmul_pack(k, DR, DI, T1, OP, T)
    k("s_waitcnt vmcnt(0)")
    k("s_barrier")
    for r in range(4):
        k(f"ds_read_b128 {vr(Z2+4*r,4)}, v{AW} offset:{4096*r}")
    stage(k, 'B', DR, DI, OP, MFr, MFi)
    WP = M1r
    k("s_waitcnt lgkmcnt(0)")
    for i in range(16):
        k(f"v_lshlrev_b32 v{WP+2*i}, 16, v{Z2+i}")
        k(f"v_and_b32 v{WP+2*i+1}, s35, v{Z2+i}")
    k("s_or_b32 s46, s2, s29")
    k("s_cmp_eq_u32 s46, 0")
    k("s_cbranch_scc1 L_p2_spec")
    cmul_pack(k, DR, DI, WP, OP, T, conj=True)
    k("L_p2_specd:")
    stage(k, 'A', DR, DI, OP, MFr, MFi)
    cmul_pack(k, DR, DI, T2, OP, T)
    stage(k, 'B', DR, DI, OP, MIr, MIi)
    mark(k, 4)
    XCH, STG = 32768, 49152
    AX = 252
    k("s_lshl_b32 s36, s28, 12")
    k(f"s_add_u32 s36, s36, {XCH}")
    k(f"v_lshl_add_u32 v{AX}, v1, 4, s36")
    k(f"ds_write_b128 v{AX}, {vr(DR+8,4)}")
    k(f"ds_write_b128 v{AX}, {vr(DR+12,4)} offset:1024")
    k(f"ds_write_b128 v{AX}, {vr(DI+8,4)} offset:2048")
    k(f"ds_write_b128 v{AX}, {vr(DI+12,4)} offset:3072")
    k(f"v_xor_b32 v{AX}, 4096, v{AX}")
    k("s_cmp_eq_u32 s30, 0")
    k(f"s_cselect_b32 s40, {f32(1.0)}, {f32(-1.0)}")
    k("s_mov_b32 s42, s40")
    k("s_waitcnt lgkmcnt(0)")
    k("s_barrier")
    OR_, OI = 36, 44
    k(f"ds_read_b128 {vr(OR_,4)}, v{AX}")
    k(f"ds_read_b128 {vr(OR_+4,4)}, v{AX} offset:1024")
    k(f"ds_read_b128 {vr(OI,4)}, v{AX} offset:2048")
    k(f"ds_read_b128 {vr(OI+4,4)}, v{AX} offset:3072")
    k(f"v_bfe_u32 v{T}, v1, 1, 2")
    k(f"v_xor_b32 v{T+1}, s29, v{T}")
    k(f"v_xor_b32 v{T+2}, 2, v{T+1}")
    k("s_lshl_b32 s43, s30, 13")
    k(f"s_add_u32 s43, s43, {STG}")
    k(f"v_lshl_add_u32 v{T+3}, v1, 6, s43")
    k(f"v_lshl_add_u32 v253, v{T+1}, 4, v{T+3}")
    k(f"v_lshl_add_u32 v254, v{T+2}, 4, v{T+3}")
    k("s_waitcnt lgkmcnt(0)")
    UA, UB = 52, 60
    Ur, Ui, Er, Ei, Ar, Ai, Br, Bi = 68, 70, 72, 74, 76, 78, 80, 82
    bc = "op_sel_hi:[1,0,1]"
    k("s_cmp_eq_u32 s46, 0")
    k("s_cbranch_scc1 L_p2_spost")
    for j in range(0, 8, 2):
        o = 16*((j//2) % 2)
        ur, ui, er, ei, a_r, a_i, b_r, b_i = [x+o for x in (Ur, Ui, Er, Ei, Ar, Ai, Br, Bi)]
        k(f"v_pk_add_f32 {vr(ur,2)}, {vr(DR+j,2)}, {vr(OR_+j,2)}")
        k(f"v_pk_add_f32 {vr(ui,2)}, {vr(DI+j,2)}, {vr(OI+j,2)}")
        k(f"v_pk_add_f32 {vr(er,2)}, {vr(DR+j,2)}, {vr(OR_+j,2)} neg_lo:[0,1] neg_hi:[0,1]")
        k(f"v_pk_add_f32 {vr(ei,2)}, {vr(DI+j,2)}, {vr(OI+j,2)} neg_lo:[0,1] neg_hi:[0,1]")
        k(f"v_pk_fma_f32 {vr(a_r,2)}, {vr(ei,2)}, s[42:43], {vr(ur,2)} {bc}")
        k(f"v_pk_fma_f32 {vr(b_r,2)}, {vr(ei,2)}, s[42:43], {vr(ur,2)} {bc} neg_lo:[1,0,0] neg_hi:[1,0,0]")
        k(f"v_pk_fma_f32 {vr(a_i,2)}, {vr(er,2)}, s[40:41], {vr(ui,2)} {bc} neg_lo:[1,0,0] neg_hi:[1,0,0]")
        k(f"v_pk_fma_f32 {vr(b_i,2)}, {vr(er,2)}, s[40:41], {vr(ui,2)} {bc} neg_lo:[1,0,1] neg_hi:[1,0,1]")
        k(f"{CVT} v{UA+j}, v{a_r}, v{a_i}")
        k(f"{CVT} v{UA+j+1}, v{a_r+1}, v{a_i+1}")
        k(f"{CVT} v{UB+j}, v{b_r}, v{b_i}")
        k(f"{CVT} v{UB+j+1}, v{b_r+1}, v{b_i+1}")
    k("s_branch L_p2_postd")
    k("L_p2_spost:")
    for j in range(0, 8, 2):
        o = 16*((j//2) % 2)
        ur, ui, er, ei, a_r, a_i, b_r, b_i = [x+o for x in (Ur, Ui, Er, Ei, Ar, Ai, Br, Bi)]
        k(f"v_pk_add_f32 {vr(ur,2)}, {vr(DR+j,2)}, {vr(OR_+j,2)}")
        k(f"v_pk_add_f32 {vr(ui,2)}, {vr(DI+j,2)}, {vr(OI+j,2)}")
        k(f"v_pk_add_f32 {vr(er,2)}, {vr(DR+j,2)}, {vr(OR_+j,2)} neg_lo:[0,1] neg_hi:[0,1]")
        k(f"v_pk_add_f32 {vr(ei,2)}, {vr(DI+j,2)}, {vr(OI+j,2)} neg_lo:[0,1] neg_hi:[0,1]")
        k(f"v_pk_mul_f32 {vr(a_i,2)}, {vr(er,2)}, s[40:41] op_sel_hi:[1,0] neg_lo:[1,0] neg_hi:[1,0]")
        k(f"v_pk_mul_f32 {vr(b_i,2)}, {vr(ei,2)}, s[40:41] op_sel_hi:[1,0]")
        k(f"{CVT} v{UA+j}, v{ur}, v{a_i}")
        k(f"{CVT} v{UA+j+1}, v{ur+1}, v{a_i+1}")
        k(f"{CVT} v{UB+j}, -v{ui}, v{b_i}")
        k(f"{CVT} v{UB+j+1}, -v{ui+1}, v{b_i+1}")
    k("L_p2_postd:")
    for rl in range(2):
        k(f"ds_write_b128 v253, {vr(UA+4*rl,4)} offset:{4096*rl}")
        k(f"ds_write_b128 v254, {vr(UB+4*rl,4)} offset:{4096*rl}")
    k(f"v_and_b32 v{T}, 3, v0")
    k(f"v_bfe_u32 v{T+1}, v0, 3, 2")
    k(f"v_xor_b32 v{T+1}, v{T}, v{T+1}")
    k(f"v_lshrrev_b32 v{T+2}, 2, v0")
    k(f"v_lshlrev_b32 v{T+3}, 6, v{T+2}")
    k(f"v_lshl_add_u32 v{T+3}, v{T+1}, 4, v{T+3}")
    k(f"v_add_u32 v{T+3}, {STG}, v{T+3}")
    k(f"v_mul_u32_u24 v{T+2}, {VB_BLK}, v{T+2}")
    k("s_and_b32 s44, s2, 2")
    k(f"v_xor_b32 v{T}, s44, v{T}")
    k(f"v_lshl_add_u32 v{T+2}, v{T}, 4, v{T+2}")
    k("s_lshl_b32 s45, s2, 6")
    k("s_waitcnt lgkmcnt(0)")
    k("s_barrier")
    for j in range(4):
        k(f"ds_read_b128 {vr(4+4*j,4)}, v{T+3} offset:{4096*j}")
    k("s_waitcnt lgkmcnt(0)")
    for j in range(4):
        k(f"buffer_store_dwordx4 {vr(4+4*j,4)}, v{T+2}, s[12:15], s45 offen {ST_P2}")
        if j < 3: k(f"s_add_u32 s45, s45, {64*VB_BLK}")
    stamp_end(k, 'p2')
    k("L_p2_end:")
    k("s_endpgm")
    k("L_p2_spec:")
    QP = T1
    XB_ = Z2
    k(f"v_bfe_u32 v{T}, v1, 2, 2")
    k(f"v_xor_b32 v{T}, s30, v{T}")
    k(f"v_lshlrev_b32 v{T}, 4, v{T}")
    k(f"v_lshl_add_u32 v{T}, v1, 6, v{T}")
    k("s_mov_b32 s47, 0x400000")
    for r in range(4):
        k(f"buffer_load_dwordx4 {vr(XB_+4*r,4)}, v{T}, s[20:23], s47 offen")
        if r < 3: k("s_add_u32 s47, s47, 4096")
    k("s_lshl_b32 s47, s30, 13")
    k(f"v_and_b32 v{T+1}, 31, v1")
    k(f"v_lshrrev_b32 v{T+2}, 5, v1")
    k(f"v_lshlrev_b32 v{T+3}, 2, v{T+1}")
    k(f"v_lshl_add_u32 v{T+3}, v{T+2}, 10, v{T+3}")
    k(f"v_add_u32 v{T+3}, s47, v{T+3}")
    for i, (r, c) in enumerate(SEQ):
        k(f"ds_write_b32 v{T+3}, v{DR+i} offset:{(8*r+c)*256}")
        k(f"ds_write_b32 v{T+3}, v{DI+i} offset:{(8*r+c)*256+128}")
    k(f"v_add_u32 v{T+4}, s30, v{T+1}")
    k(f"v_sub_u32 v{T+5}, 32, v{T+4}")
    k(f"v_lshlrev_b32 v{T+5}, 2, v{T+5}")
    k(f"v_cmp_eq_u32 vcc, 0, v{T+4}")
    k(f"v_mov_b32 v{T+6}, 256")
    k(f"v_cndmask_b32 v{T+5}, v{T+5}, v{T+6}, vcc")
    k(f"v_lshlrev_b32 v{T+6}, 10, v{T+2}")
    k(f"v_sub_u32 v{T+5}, v{T+5}, v{T+6}")
    k(f"v_add_u32 v{T+5}, 1024, v{T+5}")
    k(f"v_add_u32 v{T+5}, s47, v{T+5}")
    k(f"v_add_u32 v{T+6}, {27*256}, v{T+5}")
    k(f"v_or_b32 v{T+7}, v{T+4}, v{T+2}")
    k(f"v_cmp_eq_u32 vcc, 0, v{T+7}")
    k(f"v_mov_b32 v{T+7}, s47")
    k(f"v_cndmask_b32 v{T+6}, v{T+6}, v{T+7}, vcc")
    k("s_waitcnt vmcnt(0)")
    for i in range(16):
        k(f"v_lshlrev_b32 v{QP+2*i}, 16, v{XB_+i}")
        k(f"v_and_b32 v{QP+2*i+1}, s35, v{XB_+i}")
    k("s_waitcnt lgkmcnt(0)")
    for half in range(2):
        for jj in range(8):
            i = 8*half + jj; r, c = SEQ[i]
            if i == 0:
                k(f"ds_read_b32 v{XB_+2*jj}, v{T+6}")
                k(f"ds_read_b32 v{XB_+2*jj+1}, v{T+6} offset:128")
            else:
                k(f"ds_read_b32 v{XB_+2*jj}, v{T+5} offset:{(27-8*r-c)*256}")
                k(f"ds_read_b32 v{XB_+2*jj+1}, v{T+5} offset:{(27-8*r-c)*256+128}")
        k("s_waitcnt lgkmcnt(0)")
        for jj in range(8):
            j = 8*half + jj; o = T + 8 + 2*(jj % 4); jp = j & ~1; x = j & 1
            k(f"v_pk_mul_f32 {vr(o,2)}, {vr(WP+2*j,2)}, {vr(DR+jp,2)} op_sel:[0,{x}] op_sel_hi:[1,{x}]")
            k(f"v_pk_fma_f32 {vr(o,2)}, {vr(WP+2*j,2)}, {vr(DI+jp,2)}, {vr(o,2)} op_sel:[1,{x},0] op_sel_hi:[0,{x},1] neg_lo:[1,0,0]")
            k(f"v_pk_fma_f32 {vr(o,2)}, {vr(QP+2*j,2)}, {vr(XB_+2*jj,2)}, {vr(o,2)} op_sel:[0,0,0] op_sel_hi:[1,0,1]")
            k(f"v_pk_fma_f32 {vr(o,2)}, {vr(QP+2*j,2)}, {vr(XB_+2*jj,2)}, {vr(o,2)} op_sel:[1,1,0] op_sel_hi:[0,1,1] neg_hi:[1,0,0]")
            k(f"{CVT} v{OP+j}, v{o}, -v{o+1}")
    k("s_branch L_p2_specd")
    return k, 256, 65536

def ln_stats_rows(k, R0, R1, t, vRM, sTmp, twice=False):
    for (R, o) in ((R0, 0), (R1, 4)):
        a, b = t+o, t+o+2
        k(f"v_pk_add_f32 {vr(a,2)}, {vr(R,2)}, {vr(R+2,2)}")
        k(f"v_pk_add_f32 {vr(b,2)}, {vr(R+4,2)}, {vr(R+6,2)}")
    for i in range(4, 8):
        for (R, o) in ((R0, 0), (R1, 4)):
            a = t+o+2*(i % 2)
            k(f"v_pk_add_f32 {vr(a,2)}, {vr(a,2)}, {vr(R+2*i,2)}")
    for o in (0, 4):
        k(f"v_pk_add_f32 {vr(t+o,2)}, {vr(t+o,2)}, {vr(t+o+2,2)}")
    k(f"v_add_f32 v{t}, v{t}, v{t+1}")
    k(f"v_add_f32 v{t+1}, v{t+4}, v{t+5}")
    wave_reduce2(k, t, t+1)
    ln_mean(k, t, sTmp)
    acc = {0: t, 1: t+2}; tmp = [t+4, t+6, t+8, t+10]
    n = 0
    for i in range(8):
        for row, R in ((0, R0), (1, R1)):
            d = tmp[n % 4]; n += 1
            sel = "op_sel_hi:[1,0]" if row == 0 else "op_sel:[0,1] op_sel_hi:[1,1]"
            k(f"v_pk_add_f32 {vr(d,2)}, {vr(R+2*i,2)}, {sr(sTmp,2)} {sel} neg_lo:[0,1] neg_hi:[0,1]")
            a = acc[row]
            if i == 0: k(f"v_pk_mul_f32 {vr(a,2)}, {vr(d,2)}, {vr(d,2)}")
            else:      k(f"v_pk_fma_f32 {vr(a,2)}, {vr(d,2)}, {vr(d,2)}, {vr(a,2)}")
    k(f"v_add_f32 v{t}, v{t}, v{t+1}")
    k(f"v_add_f32 v{t+1}, v{t+2}, v{t+3}")
    wave_reduce2(k, t, t+1)
    ln_scalars(k, t, twice)
    k(f"v_readlane_b32 s{sTmp}, v{t}, 63")
    k(f"v_readlane_b32 s{sTmp+1}, v{t+1}, 63")
    k(f"v_readlane_b32 s{sTmp+2}, v{t+12}, 63")
    k(f"v_readlane_b32 s{sTmp+3}, v{t+13}, 63")
    for i in range(4):
        k(f"v_mov_b32 v{vRM+i}, s{sTmp+i}")

def ln_apply_rows(k, R0, R1, vRM, dst0, dst1):
    for i in range(8):
        k(f"v_pk_fma_f32 {vr(dst0+2*i,2)}, {vr(R0+2*i,2)}, {vr(vRM,2)}, {vr(vRM+2,2)} op_sel_hi:[1,0,0] neg_lo:[0,0,1] neg_hi:[0,0,1]")
        k(f"v_pk_fma_f32 {vr(dst1+2*i,2)}, {vr(R1+2*i,2)}, {vr(vRM,2)}, {vr(vRM+2,2)} op_sel:[0,1,1] op_sel_hi:[1,1,1] neg_lo:[0,0,1] neg_hi:[0,0,1]")

def gen_p3():
    k = Kern('p3_kernel')
    k("s_cmp_ge_u32 s2, 256")
    k("s_cbranch_scc1 L_p3_end")
    stamp_begin(k)
    k("s_load_dwordx2 s[4:5], s[0:1], 0")
    k("s_load_dwordx2 s[26:27], s[0:1], 80")
    k("s_load_dwordx2 s[24:25], s[0:1], 32")
    k("v_and_b32 v1, 63, v0")
    k("v_lshrrev_b32 v2, 6, v0")
    k("v_readfirstlane_b32 s28, v2")
    pf_wave(k, 'p3', W1PF0 + 256*W1PF)
    k("s_lshr_b32 s29, s2, 5")
    k("s_lshl_b32 s29, s29, 2")
    k("s_and_b32 s30, s2, 31")
    k("s_add_u32 s31, s29, s28")
    k("s_lshl_b32 s31, s31, 5")
    k("s_add_u32 s31, s31, s30")
    k("s_lshl_b32 s31, s31, 11")
    k("s_add_u32 s32, s31, 0x200000")
    k(f"s_mul_i32 s33, s2, {VB_BLK}")
    k("s_lshl_b32 s34, s28, 12")
    k("s_add_u32 s33, s33, s34")
    k("v_lshlrev_b32 v2, 4, v1")
    k("s_waitcnt lgkmcnt(0)")
    srd(k, 8, 4, S*D*2)
    srd(k, 12, 26, 256*VB_BLK, VB_OFF)
    srd(k, 16, 26, S*D*2, H_OFF)
    srd(k, 20, 26, S*D*2, HN_OFF)
    for i in range(4):
        k(f"s_add_u32 m0, s34, {1024*i}")
        k(f"buffer_load_dwordx4 v2, s[12:15], s33 offen lds")
        k("s_add_u32 s33, s33, 1024")
    XL = 4
    OP, Mr, Mi, TW, DR, DI, T = 20, 36, 52, 68, 100, 116, 132
    R0, R1, Y0, Y1 = 148, 164, 180, 196
    k("v_and_b32 v212, 31, v1")
    k("v_cvt_f32_u32 v212, v212")
    k("v_lshrrev_b32 v213, 5, v1")
    k("v_lshlrev_b32 v213, 2, v213")
    k("v_cvt_f32_u32 v213, v213")
    k(f"v_mul_f32 v214, {f32(1/32)}, v212")
    k("v_mul_f32 v215, v214, v213")
    gen_matrix(k, Mr, Mi, 214, 215, T)
    k(f"v_mul_f32 v214, {f32(1/1024)}, v212")
    k("v_mul_f32 v215, v214, v213")
    gen_twiddle(k, TW, 214, 215, T, scale=2.0**-21.5)
    k("v_and_b32 v2, 31, v1")
    k("v_lshrrev_b32 v3, 5, v1")
    k("v_and_b32 v216, 1, v2")
    k("v_lshrrev_b32 v217, 1, v2")
    k("v_and_b32 v218, 2, v217")
    k("v_xor_b32 v218, v218, v216")
    k("v_lshlrev_b32 v218, 4, v218")
    k("v_lshl_add_u32 v218, v217, 6, v218")
    k("v_lshl_add_u32 v218, v3, 12, v218")
    k("s_lshl_b32 s37, s28, 2")
    k("v_add_u32 v218, s37, v218")
    k("v_add_u32 v217, 1, v2")
    k("v_lshrrev_b32 v217, 1, v217")
    k("v_sub_u32 v219, 0, v217")
    k("v_and_b32 v219, 2, v219")
    k("v_add_u32 v216, 2, v216")
    k("v_xor_b32 v219, v219, v216")
    k("v_lshlrev_b32 v219, 4, v219")
    k("v_lshlrev_b32 v217, 6, v217")
    k("v_sub_u32 v219, v219, v217")
    k("v_lshlrev_b32 v217, 12, v3")
    k("v_sub_u32 v219, v219, v217")
    k("s_add_u32 s37, s37, 5120")
    k("v_add_u32 v219, s37, v219")
    k(f"v_add_u32 v227, {16*1024-5120}, v219")
    k("s_lshl_b32 s38, s28, 2")
    k("s_add_u32 s38, s38, 32")
    k("v_mov_b32 v226, s38")
    k("v_cmp_eq_u32 vcc, 0, v1")
    k("v_cndmask_b32 v227, v227, v226, vcc")
    k("s_mov_b32 s35, 0xffff0000")
    mark(k, 1)
    k("s_waitcnt vmcnt(0)")
    k("v_lshlrev_b32 v225, 4, v1")
    k(f"buffer_load_dwordx4 {vr(XL,4)}, v225, s[8:11], s31 offen")
    k(f"buffer_load_dwordx4 {vr(XL+4,4)}, v225, s[8:11], s31 offen offset:1024")
    k(f"buffer_load_dwordx4 {vr(XL+8,4)}, v225, s[8:11], s32 offen")
    k(f"buffer_load_dwordx4 {vr(XL+12,4)}, v225, s[8:11], s32 offen offset:1024")
    k("s_barrier")
    mark(k, 2)
    for i, (r, c) in enumerate(SEQ):
        if r < 2: k(f"ds_read_b32 v{OP+i}, v218 offset:{(8*r+c)*1024}")
        elif i == 8: k(f"ds_read_b32 v{OP+i}, v227")
        else:     k(f"ds_read_b32 v{OP+i}, v219 offset:{(32-8*r-c)*1024-5120}")
    k("s_waitcnt lgkmcnt(0)")
    stage(k, 'A', DR, DI, OP, Mr, Mi)
    cmul_pack(k, DR, DI, TW, OP, T)
    stage(k, 'B', DR, DI, OP, Mr, Mi)
    k("s_waitcnt vmcnt(0)")
    for i in range(8):
        k(f"v_lshlrev_b32 v{R0+2*i}, 16, v{XL+i}")
        k(f"v_and_b32 v{R0+2*i+1}, s35, v{XL+i}")
        k(f"v_lshlrev_b32 v{R1+2*i}, 16, v{XL+8+i}")
        k(f"v_and_b32 v{R1+2*i+1}, s35, v{XL+8+i}")
    TR = 17408
    mark(k, 3)
    k("s_lshl_b32 s36, s28, 12")
    k(f"s_add_u32 s36, s36, {TR}")
    k("v_and_b32 v3, 31, v1")
    k("v_lshlrev_b32 v3, 2, v3")
    k("v_lshrrev_b32 v216, 5, v1")
    k("v_lshlrev_b32 v216, 9, v216")
    k("v_add3_u32 v3, v3, v216, s36")
    k("v_lshl_add_u32 v2, v1, 5, s36")
    for i in range(16):
        k(f"{CVT} v{OP+i}, v{DR+i}, -v{DI+i}")
    for i, (r, c) in enumerate(SEQ):
        k(f"ds_write_b32 v3, v{OP+i} offset:{(8*r+c)*128}")
    k("s_waitcnt lgkmcnt(0)")
    k(f"ds_read_b128 {vr(OP,4)}, v2")
    k(f"ds_read_b128 {vr(OP+4,4)}, v2 offset:16")
    k(f"ds_read_b128 {vr(OP+8,4)}, v2 offset:2048")
    k(f"ds_read_b128 {vr(OP+12,4)}, v2 offset:2064")
    k("s_waitcnt lgkmcnt(0)")
    for i in range(16):
        k(f"v_lshlrev_b32 v{Y0+i}, 16, v{OP+i}")
        k(f"v_and_b32 v{Y1+i}, s35, v{OP+i}")
    for i in range(8):
        k(f"v_pk_add_f32 {vr(Y0+2*i,2)}, {vr(Y0+2*i,2)}, {vr(R0+2*i,2)}")
        k(f"v_pk_add_f32 {vr(Y1+2*i,2)}, {vr(Y1+2*i,2)}, {vr(R1+2*i,2)}")
    HP = 36
    for i in range(8):
        k(f"{CVT} v{HP+i}, v{Y0+2*i}, v{Y0+2*i+1}")
        k(f"{CVT} v{HP+8+i}, v{Y1+2*i}, v{Y1+2*i+1}")
    k("v_lshlrev_b32 v2, 4, v1")
    k(f"buffer_store_dwordx4 {vr(HP,4)}, v2, s[16:19], s31 offen {ST_P3}")
    k(f"buffer_store_dwordx4 {vr(HP+4,4)}, v2, s[16:19], s31 offen offset:1024 {ST_P3}")
    k(f"buffer_store_dwordx4 {vr(HP+8,4)}, v2, s[16:19], s32 offen {ST_P3}")
    k(f"buffer_store_dwordx4 {vr(HP+12,4)}, v2, s[16:19], s32 offen offset:1024 {ST_P3}")
    for i in range(8):
        k(f"v_lshlrev_b32 v{R0+2*i}, 16, v{HP+i}")
        k(f"v_and_b32 v{R0+2*i+1}, s35, v{HP+i}")
        k(f"v_lshlrev_b32 v{R1+2*i}, 16, v{HP+8+i}")
        k(f"v_and_b32 v{R1+2*i+1}, s35, v{HP+8+i}")
    RM = 220
    mark(k, 4)
    if LN_FUSE:
        assert not (EMU_LN or EMU_L2)
        ln_stats_rows(k, R0, R1, T, RM, 40, twice=True)
        ln_apply_rows(k, R0, R1, RM, Y0, Y1)
    else:
        ln_stats_rows(k, R0, R1, T, RM, 40)
        if EMU_L2:
            ln_apply_rows(k, R0, R1, RM, Y0, Y1)
            LP = 52
            for i in range(8):
                k(f"{CVT} v{LP+i}, v{Y0+2*i}, v{Y0+2*i+1}")
                k(f"{CVT} v{LP+8+i}, v{Y1+2*i}, v{Y1+2*i+1}")
            for i in range(8):
                k(f"v_lshlrev_b32 v{R0+2*i}, 16, v{LP+i}")
                k(f"v_and_b32 v{R0+2*i+1}, s35, v{LP+i}")
                k(f"v_lshlrev_b32 v{R1+2*i}, 16, v{LP+8+i}")
                k(f"v_and_b32 v{R1+2*i+1}, s35, v{LP+8+i}")
        else:
            ln_apply_rows(k, R0, R1, RM, R0, R1)
        ln_stats_rows(k, R0, R1, T, RM, 40)
        ln_apply_rows(k, R0, R1, RM, Y0, Y1)
    NP = 68
    for i in range(8):
        k(f"{CVT} v{NP+i}, v{Y0+2*i}, v{Y0+2*i+1}")
        k(f"{CVT} v{NP+8+i}, v{Y1+2*i}, v{Y1+2*i+1}")
    k(f"buffer_store_dwordx4 {vr(NP,4)}, v2, s[20:23], s31 offen {ST_P3}")
    k(f"buffer_store_dwordx4 {vr(NP+4,4)}, v2, s[20:23], s31 offen offset:1024 {ST_P3}")
    k(f"buffer_store_dwordx4 {vr(NP+8,4)}, v2, s[20:23], s32 offen {ST_P3}")
    k(f"buffer_store_dwordx4 {vr(NP+12,4)}, v2, s[20:23], s32 offen offset:1024 {ST_P3}")
    stamp_end(k, 'p3')
    k("L_p3_end:")
    k("s_endpgm")
    return k, 228, 33792

MF16 = 'v_mfma_f32_16x16x32_bf16'

def interleave(mf, rd, lead=0):
    out = []; n = len(mf); m = len(rd); ri = 0
    for i in range(n):
        out.append(mf[i])
        tgt = min(m, (m*(i+1) + n - 1)//n)
        while ri < tgt:
            out.append(rd[ri]); ri += 1
    out += rd[ri:]
    return out

def producer_loop(k, tag, per, issue, NS, NIT):
    mark(k, 1)
    issue()
    mark(k, 2)
    issue()
    k(f"s_waitcnt vmcnt({per})")
    mark(k, 3)
    k("s_barrier")
    for n in range(2, NS): issue()
    mark(k, 4)
    nmain = NIT - NS
    k(f"s_mov_b32 s60, 0")
    k(f"L_{tag}_ploop:")
    k(f"s_waitcnt vmcnt({(NS-2)*per})")
    k("s_barrier")
    issue()
    k("s_add_u32 s60, s60, 1")
    k(f"s_cmp_lt_u32 s60, {nmain}")
    k(f"s_cbranch_scc1 L_{tag}_ploop")
    for n in range(nmain, NIT-1):
        k(f"s_waitcnt vmcnt({(NIT-1-(n+1))*per})")
        k("s_barrier")


XB_OFF = ZW_OFF
FL_OFF = 0x2800000
BAR_OFF = 0x2810000
def gemm_kernel(tag, fused=False):
    g1 = tag == 'g1'
    k = Kern('gg_kernel' if fused else tag + '_kernel')
    ENDL = 'L_gg_end' if fused else f'L_{tag}_end'
    ASZ = 16384; STG = 32768; NS = 4 if STATIC else (5 if BAR2 else 3)
    NIT = 32 if g1 else 28
    BSTR = 7168 if g1 else 4096
    if not (fused and not g1):
        k(f"s_cmp_ge_u32 s2, 256")
        k(f"s_cbranch_scc1 {ENDL}")
    else:
        k("L_gbar:")
        k("s_load_dwordx2 s[26:27], s[0:1], 80")
        k("s_waitcnt vmcnt(0) lgkmcnt(0)")
        k("s_barrier")
        srd(k, 36, 26, 1024, BAR_OFF)
        k("v_cmp_eq_u32 vcc, 0, v0")
        k("s_and_saveexec_b64 s[34:35], vcc")
        k("s_cbranch_execz L_gbar_noarr")
        k("s_and_b32 s33, s2, 7")
        k("s_lshl_b32 s33, s33, 7")
        k("v_mov_b32 v2, 1")
        k("v_mov_b32 v3, 0")
        k("buffer_atomic_add v2, v3, s[36:39], s33 offen sc1")
        k("L_gbar_noarr:")
        k("s_mov_b64 exec, -1")
    stamp_begin(k)
    if g1:
        k("s_load_dwordx4 s[4:7], s[0:1], 32")
        k("s_load_dwordx2 s[24:25], s[0:1], 48")
    else:
        k("s_load_dwordx4 s[4:7], s[0:1], 48")
        k("s_load_dwordx2 s[24:25], s[0:1], 64")
    k("s_load_dwordx2 s[26:27], s[0:1], 80")
    k("v_and_b32 v1, 63, v0")
    k("v_lshrrev_b32 v2, 6, v0")
    k("v_readfirstlane_b32 s28, v2")
    if g1:
        k("s_and_b32 s30, s2, 1")
        k("s_lshl_b32 s30, s30, 2")
        k("s_bfe_u32 s52, s2, 0x20003")
        k("s_add_u32 s30, s30, s52")
        k("s_bfe_u32 s29, s2, 0x20001")
        k("s_mul_i32 s29, s29, 7")
        k("s_lshr_b32 s53, s2, 5")
        k("s_add_u32 s29, s29, s53")
        k("s_mov_b32 s63, 0")
        k("s_and_b32 s55, s2, 1")
        k(f"s_mul_i32 s55, s55, {16 if KHALF else 0}")
    else:
        if MAP2 == 1:
            k("s_bfe_u32 s62, s2, 0x10003")
            k("s_bfe_u32 s29, s2, 0x20001")
            k("s_lshl_b32 s29, s29, 2")
            k("s_bfe_u32 s52, s2, 0x20004")
            k("s_add_u32 s29, s29, s52")
            k("s_lshr_b32 s53, s2, 6")
            k("s_and_b32 s30, s2, 1")
            k("s_lshl_b32 s30, s30, 2")
            k("s_add_u32 s30, s30, s53")
        else:
            k("s_and_b32 s62, s2, 1")
            k("s_bfe_u32 s29, s2, 0x20001")
            k("s_lshl_b32 s29, s29, 2")
            k("s_bfe_u32 s52, s2, 0x20003")
            k("s_add_u32 s29, s29, s52")
            k("s_lshr_b32 s53, s2, 5")
            k("s_mov_b32 s30, s53")
        k("s_mov_b32 s55, 0")
        k("s_mul_i32 s63, s62, 28")
        srd(k, 56, 26, 256*64, FL_OFF) if False else None
    k("s_lshl_b32 s31, s29, 8")
    k("s_lshl_b32 s32, s30, 8")
    k("s_waitcnt lgkmcnt(0)")
    if g1:
        srd(k, 8, 4, S*F*2)
        srd(k, 12, 26, S*D*2, HN_OFF)
        srd(k, 16, 26, F*D*2, GT_OFF)
        srd(k, 20, 6, F*2)
        if not XSENT:
            srd(k, 44, 26, 256*64, FL_OFF)
            k("s_lshl_b32 s33, s2, 6")
            k("v_mov_b32 v2, 0")
            k("v_lshlrev_b32 v3, 2, v0")
            k("v_cmp_gt_u32 vcc, 16, v0")
            k("s_and_saveexec_b64 s[34:35], vcc")
            k(f"s_cbranch_execz L_{tag}_nozf")
            k("buffer_store_dword v2, v3, s[44:47], s33 offen sc0 sc1")
            k(f"L_{tag}_nozf:")
            k("s_mov_b64 exec, -1")
        k("s_cmp_lt_u32 s2, 224")
        k(f"s_cbranch_scc1 L_{tag}_main")
        if W1IDLE:
            k("s_sub_u32 s33, s2, 224")
            k("s_mul_i32 s33, s33, 112")
            k("v_mul_u32_u24 v3, 586, v0")
            k("v_lshrrev_b32 v3, 16, v3")
            k("v_mul_u32_u24 v4, 112, v3")
            k("v_sub_u32 v4, v0, v4")
            k("v_add_u32 v4, s33, v4")
            k("v_mul_u32_u24 v5, 4682, v4")
            k("v_lshrrev_b32 v5, 18, v5")
            k("v_mul_u32_u24 v6, 56, v5")
            k("v_sub_u32 v6, v4, v6")
            k("v_and_b32 v7, 1, v3")
            k("v_lshrrev_b32 v8, 1, v3")
            k("v_lshl_add_u32 v7, v7, 4, v8")
            k("v_lshl_add_u32 v5, v7, 6, v5")
            k("v_mul_u32_u24 v5, 7168, v5")
            k("v_lshl_add_u32 v2, v6, 7, v5")
            k("v_cmp_gt_u32 vcc, 448, v0")
            k("s_and_saveexec_b64 s[34:35], vcc")
            k(f"s_cbranch_execz L_{tag}_now1")
            k(f"s_mov_b32 s33, {W1IDLE*64*7168}")
            for i in range((16-W1IDLE)//2):
                k(f"buffer_load_dword v9, v2, s[8:11], s33 offen")
                k(f"s_add_u32 s33, s33, {2*64*7168}")
            k(f"L_{tag}_now1:")
            k("s_mov_b64 exec, -1")
        if W2PF:
            srd(k, 48, 24, F*S*2)
            k("s_sub_u32 s33, s2, 224")
            k("s_and_b32 s34, s33, 15")
            k("s_lshr_b32 s35, s33, 4")
            k(f"s_mul_i32 s35, s35, {1792*4096}")
            k("s_lshl_b32 s33, s34, 16")
            k("s_add_u32 s33, s33, s35")
            k("v_lshlrev_b32 v2, 7, v0")
            for i in range(W2PF):
                k(f"buffer_load_dword v9, v2, s[48:51], s33 offen")
                k(f"s_add_u32 s33, s33, {16*65536}")
        if XSENT:
            srd(k, 44, 26, 256*(16384 if XBF16 else 32768), 0x1E00000 if XB_SEP else VB_OFF)
            k("s_sub_u32 s33, s2, 224")
            k("s_lshl_b32 s33, s33, 17")
            k("v_lshlrev_b32 v2, 4, v0")
            for i in range(4): k(f"v_mov_b32 v{4+i}, -1")
            k("s_mov_b32 s34, 0")
            k(f"L_{tag}_clr:")
            k("buffer_store_dwordx4 v[4:7], v2, s[44:47], s33 offen sc0 sc1")
            k("s_add_u32 s33, s33, 8192")
            k("s_add_u32 s34, s34, 1")
            k("s_cmp_lt_u32 s34, 16")
            k(f"s_cbranch_scc1 L_{tag}_clr")
        stamp_end(k, tag, tid=0, slot=256, sfx='idle')
        k(f"s_branch {'L_gbar' if fused else ENDL}")
        k(f"L_{tag}_main:")
    else:
        srd(k, 8, 4, F*S*2)
        srd(k, 12, 26, F*D*2, GT_OFF)
        srd(k, 16, 26, S*D*2, H_OFF)
        srd(k, 20, 6, S*2)
        srd(k, 48, 24, S*D*2)
        if not XSENT:
            k("s_getreg_b32 s54, hwreg(HW_REG_XCC_ID, 0, 4)")
            k("s_add_u32 s54, s54, 1")
            srd(k, 56, 26, 256*64, FL_OFF)
            k("s_lshl_b32 s33, s2, 6")
            k("v_mov_b32 v2, s54")
            k("v_mov_b32 v3, 0")
            k("v_cmp_eq_u32 vcc, 0, v0")
            k("s_and_saveexec_b64 s[34:35], vcc")
            k(f"s_cbranch_execz L_{tag}_nopub")
            k("buffer_store_dword v2, v3, s[56:59], s33 offen offset:4 sc0 sc1")
            k(f"L_{tag}_nopub:")
            k("s_mov_b64 exec, -1")
    k("s_cmp_ge_u32 s28, 4")
    k(f"s_cbranch_scc1 L_{tag}_prod")
    ACC = 8; X = 72; Y = 136; R = 200
    AA = [R+i for i in range(4)]; AB = [R+4+i for i in range(4)]
    BA = [R+8+i for i in range(4)]; BB = [R+12+i for i in range(4)]
    MISC = R + 16
    k("s_and_b32 s33, s28, 1")
    k("s_lshr_b32 s36, s28, 1")
    k("v_lshrrev_b32 v2, 4, v1")
    k("v_bfe_u32 v3, v1, 2, 2")
    k("v_and_b32 v4, 3, v1")
    k("v_lshl_add_u32 v5, v2, 2, v3")
    k("v_and_b32 v6, 7, v5")
    k("v_lshlrev_b32 v6, 1, v6")
    k("v_lshrrev_b32 v7, 1, v4")
    k("v_and_b32 v9, 1, v4")
    for (base, w, add) in ((BA, 's33', 0), (BB, 's36', ASZ)):
        k(f"s_lshl_b32 s35, {w}, 3")
        k("v_add_u32 v10, s35, v7")
        k("v_xor_b32 v10, v10, v6")
        k("v_lshlrev_b32 v10, 4, v10")
        k("v_lshl_add_u32 v10, v9, 3, v10")
        k("v_lshl_add_u32 v10, v5, 8, v10")
        if add: k(f"v_add_u32 v10, {add}, v10")
        k(f"v_mov_b32 v{base[0]}, v10")
        for t in range(1, 4): k(f"v_xor_b32 v{base[t]}, {32*t}, v10")
    for t in range(4):
        k(f"v_mov_b32 v{AA[t]}, v{BA[t]}"); k(f"v_mov_b32 v{AB[t]}, v{BB[t]}")
    BIAS = MISC
    k("v_and_b32 v2, 15, v1")
    k("v_lshlrev_b32 v2, 1, v2")
    k("s_lshl_b32 s37, s36, 7")
    k("s_add_u32 s37, s37, s31")
    for t in range(4):
        k(f"buffer_load_ushort v{BIAS+t}, v2, s[20:23], s37 offen offset:{32*t}")
    OV = MISC+4
    k("v_and_b32 v2, 15, v1")
    k("v_lshlrev_b32 v2, 11, v2")
    k("v_lshrrev_b32 v3, 4, v1")
    k(f"v_lshl_add_u32 v{OV}, v3, 4, v2")
    k("s_lshl_b32 s38, s29, 7")
    k("s_lshl_b32 s39, s36, 6")
    k("s_add_u32 s38, s38, s39")
    k("s_lshl_b32 s38, s38, 11")
    k("s_add_u32 s38, s38, s32")
    k("s_lshl_b32 s39, s33, 7")
    k("s_add_u32 s38, s38, s39")
    if not g1:
        HL = MISC+6
        NV = HL+16
        if OUT_TOUCH:
            k("s_lshl_b32 s39, s62, 16")
            k("s_add_u32 s39, s39, s38")
            k(f"buffer_load_dword v{NV}, v{OV}, s[48:51], s39 offen")
            NV += 1
    else:
        NV = MISC+5
    def reads(dst, buf=None):
        r = []
        for ks in range(2):
            b = dst + 32*ks; ko = 32*ks
            for t in range(4):
                if buf is None: regs = (AA[t], AB[t]); bo = 0
                else:
                    regs = (BA[t], BB[t]) if buf < 2 else (AA[t], AB[t]); bo = (buf % 2)*STG
                for (o, a) in ((0, regs[0]), (16, regs[1])):
                    r.append(f"ds_read_b64_tr_b16 {vr(b+o+4*t,2)}, v{a} offset:{bo+ko*256}")
                    r.append(f"ds_read_b64_tr_b16 {vr(b+o+4*t+2,2)}, v{a} offset:{bo+(ko+16)*256}")
        return r
    def mfmas(src):
        m = []
        for ks in range(2):
            b = src + 32*ks
            order = sorted([(td, tn) for td in range(4) for tn in range(4)], key=lambda x: (max(x), x))
            if FAKE32:
                for i in range(8):
                    a = ACC + 16*(i % 4)
                    m.append(f"{MF32} {vr(a,16)}, {vr(b+4*(i%4),4)}, {vr(b+16+4*((i//2)%4),4)}, {vr(a,16)}")
                continue
            for td, tn in order:
                a = ACC + 4*(4*tn+td)
                m.append(f"{MF16} {vr(a,4)}, {vr(b+4*td,4)}, {vr(b+16+4*tn,4)}, {vr(a,4)}")
        return m
    def sched(mf, rd, extra):
        out = []; ri = 0; ei = 0
        for i, m in enumerate(mf):
            out.append(m)
            if ri < len(rd):
                for _ in range(RPAT[i % len(RPAT)]):
                    if ri < len(rd): out.append(rd[ri]); ri += 1
            elif ei < len(extra):
                out.append(extra[ei]); ei += 1
        out += rd[ri:] + extra[ei:]
        return out
    def upd():
        e = [f"s_add_u32 s34, s34, {STG}", f"s_cmp_eq_u32 s34, {STG*NS}", "s_cselect_b32 s34, 0, s34"]
        e += [f"v_add_u32 v{AA[t]}, s34, v{BA[t]}" for t in range(4)]
        e += [f"v_add_u32 v{AB[t]}, s34, v{BB[t]}" for t in range(4)]
        return e
    for i in range(64): k(f"v_mov_b32 v{ACC+i}, 0")
    k("s_mov_b32 s34, 0")
    k("s_mov_b32 s35, 0")
    if fused and not g1: k("s_barrier")
    mark(k, 1)
    k("s_barrier")
    mark(k, 2)
    if STATIC:
        for t in range(4):
            k(f"v_add_u32 v{AA[t]}, 65536, v{BA[t]}"); k(f"v_add_u32 v{AB[t]}, 65536, v{BB[t]}")
        for x in reads(X, 0): k(x)
        k(f"L_{tag}_cloop:")
        for u in range(4):
            cur, nxt = (X, Y) if u % 2 == 0 else (Y, X)
            k("s_waitcnt lgkmcnt(0)")
            k("s_barrier")
            ex = ["s_add_u32 s35, s35, 4", f"s_cmp_lt_u32 s35, {NIT-4}"] if u == 3 else []
            for x in sched(mfmas(cur), reads(nxt, (u+1) % 4), ex): k(x)
        k(f"s_cbranch_scc1 L_{tag}_cloop")
        for u in range(2):
            cur, nxt = (X, Y) if u % 2 == 0 else (Y, X)
            k("s_waitcnt lgkmcnt(0)")
            k("s_barrier")
            for x in sched(mfmas(cur), reads(nxt, u+1), []): k(x)
    else:
        for x in reads(X): k(x)
        for x in upd(): k(x)
        k(f"L_{tag}_cloop:")
        k("s_waitcnt lgkmcnt(0)")
        if LOOPSTAMP:
            k(f"s_cmp_eq_u32 s35, {LOOPSTAMP}")
            k(f"s_cbranch_scc0 L_{tag}_nolatch")
            for i in range(4): k(f"s_mov_b64 s[{96-20+2*i}:{97-20+2*i}], s[{66+2*i}:{67+2*i}]") if False else None
            k("s_sub_u32 s90, s68, s66"); k("s_sub_u32 s91, s70, s68"); k("s_sub_u32 s92, s72, s70")
            k("s_memtime s[82:83]"); k("s_waitcnt lgkmcnt(0)"); k("s_sub_u32 s93, s82, s72")
            k(f"L_{tag}_nolatch:")
        k("s_barrier")
        if LOOPSTAMP: k("s_memtime s[66:67]")
        for x in sched(mfmas(X), reads(Y), upd()): k(x)
        if LOOPSTAMP: k("s_memtime s[68:69]")
        k("s_waitcnt lgkmcnt(0)")
        if not BAR2: k("s_barrier")
        if LOOPSTAMP: k("s_memtime s[70:71]")
        for x in sched(mfmas(Y), reads(X), upd() + ["s_add_u32 s35, s35, 2", f"s_cmp_lt_u32 s35, {NIT-2}"]): k(x)
        if LOOPSTAMP: k("s_memtime s[72:73]")
        k(f"s_cbranch_scc1 L_{tag}_cloop")
    if LOOPSTAMP:
        k("s_waitcnt lgkmcnt(0)")
        for i in range(4):
            k(f"s_mov_b32 s{66+2*i}, s{90+i}"); k(f"s_mov_b32 s{67+2*i}, 0")
    XID = 3
    if not g1:
        if not XSENT:
            k(f"s_xor_b32 s42, s2, {8 if MAP2 == 1 else 1}")
            k("s_lshl_b32 s39, s42, 6")
            k("v_mov_b32 v4, 0")
            k(f"buffer_load_dword v{XID}, v4, s[56:59], s39 offen offset:4 sc0 sc1")
        k("s_lshl_b32 s39, s62, 16")
        k("s_add_u32 s39, s39, s38")
        for tnl in range(1 if XSHARE else 2):
            for tp in range(2):
                k(f"s_add_u32 s40, s39, {tnl*16*2048 + tp*64}")
                k(f"buffer_load_dwordx4 {vr(HL+8*tnl+4*tp,4)}, v{OV}, s[16:19], s40 offen")
    k("s_waitcnt lgkmcnt(0)")
    k("s_barrier")
    for x in sched(mfmas(X), reads(Y, 3 if STATIC else None), []): k(x)
    k("s_waitcnt lgkmcnt(0)")
    for x in mfmas(Y): k(x)
    mark(k, 3)
    k("s_mov_b32 s40, 0xffff0000")
    T = X
    def pack_swap(P):
        k(f"v_permlane32_swap_b32 v{P}, v{P+2}")
        k(f"v_permlane32_swap_b32 v{P+1}, v{P+3}")
        k(f"v_permlane16_swap_b32 v{P}, v{P+2}")
        k(f"v_permlane16_swap_b32 v{P+1}, v{P+3}")
    def store_lines(P0, P1, tmp, so, srdreg):
        for i in range(4): k(f"v_mov_b32 v{tmp+i}, v{P0+i}")
        for i in range(4): k(f"v_mov_b32_dpp v{P0+i}, v{P1+i} row_ror:8 row_mask:0xf bank_mask:0xc")
        for i in range(4): k(f"v_mov_b32_dpp v{P1+i}, v{tmp+i} row_ror:8 row_mask:0xf bank_mask:0x3")
        fl = ST_G1 if g1 else ST_G2
        k(f"s_add_u32 s41, s38, {so}")
        k(f"buffer_store_dwordx4 {vr(P0,4)}, v{OVS}, s[{srdreg}:{srdreg+3}], s41 offen {fl}")
        k(f"s_add_u32 s41, s38, {so + 8*2048}")
        k(f"buffer_store_dwordx4 {vr(P1,4)}, v{OVS}, s[{srdreg}:{srdreg+3}], s41 offen {fl}")
    OVS = 3
    def set_ovs():
        k("v_and_b32 v2, 7, v1")
        k("v_lshlrev_b32 v2, 11, v2")
        k("v_bfe_u32 v3, v1, 3, 1")
        k("v_lshl_add_u32 v2, v3, 6, v2")
        k("v_lshrrev_b32 v3, 4, v1")
        k(f"v_lshl_add_u32 v{OVS}, v3, 4, v2")
    if g1:
        SH = 32768 if STATIC else (98304 if BAR2 else 65536)
        k("s_lshl_b32 s39, s28, 13")
        k(f"s_add_u32 s39, s39, {SH}")
        k("v_lshl_add_u32 v2, v1, 4, s39")
        for i in range(8): k(f"ds_write_b128 v2, {vr(ACC+32+4*i,4)} offset:{1024*i}")
        k("s_waitcnt vmcnt(0) lgkmcnt(0)")
        k("s_barrier")
        mark(k, 4)
        k(f"L_{tag}_epi:")
        for t in range(2): k(f"v_lshlrev_b32 v{BIAS+t}, 16, v{BIAS+t}")
        c0 = -2.0*math.log2(math.e)*math.sqrt(2.0/math.pi); c1 = c0*0.044715
        k("s_mov_b32 s40, 0xffff0000")
        k(f"s_mov_b32 s42, {f32(c1)}")
        k(f"v_mov_b32 v4, {f32(c0)}"); k(f"v_mov_b32 v5, {f32(c0)}")
        k(f"v_mov_b32 v6, 1.0"); k(f"v_mov_b32 v7, 1.0")
        set_ovs()
        for tn in range(2):
            for tp in range(2):
                P = T + 4*tp + 24*tn
                for q in range(4):
                    td = 2*tp + q//2
                    src = ACC + 4*(4*tn+td) + 2*(q % 2)
                    u, w = T+8+4*q, T+10+4*q
                    gelu_pair(k, src, u, w, BIAS+tn, P+q)
                pack_swap(P)
            store_lines(T+24*tn, T+24*tn+4, T+32, tn*16*2048, 16)
    else:
        if XSHARE:
            assert XSENT and XBF16
            SHX, SHY = 0, 16384
            k("s_waitcnt vmcnt(0)")
            srd(k, 44, 26, 256*16384, 0x1E00000 if XB_SEP else VB_OFF)
            k(f"s_xor_b32 s42, s2, {8 if MAP2 == 1 else 1}")
            k("s_lshl_b32 s43, s42, 14")
            k("s_lshl_b32 s39, s28, 12")
            k("s_add_u32 s43, s43, s39")
            k("v_lshlrev_b32 v2, 4, v1")
            k("s_cmp_eq_u32 s62, 0")
            k(f"s_cbranch_scc1 L_{tag}_k0")
            for half, l2 in ((0, None), (32, f"L_{tag}_k0:")):
                if l2: k(l2)
                for i in range(16): k(f"{CVT} v{Y+32+i}, v{ACC+half+2*i}, v{ACC+half+2*i+1}")
                for i in range(4):
                    k(f"s_add_u32 s39, s43, {1024*i}")
                    k(f"buffer_store_dwordx4 {vr(Y+32+4*i,4)}, v2, s[44:47], s39 offen sc0 sc1")
                if half == 0:
                    for i in range(32): k(f"v_mov_b32 v{ACC+i}, v{ACC+32+i}")
                    k(f"v_mov_b32 v{BIAS}, v{BIAS+2}")
                    k(f"s_branch L_{tag}_k1")
            k(f"L_{tag}_k1:")
            k("s_lshl_b32 s39, s28, 12")
            k(f"v_add_u32 v3, s39, v2")
            for i in range(4): k(f"ds_write_b128 v3, {vr(ACC+16+4*i,4)} offset:{SHX+1024*i}")
            k("s_lshl_b32 s39, s62, 16")
            k("s_add_u32 s38, s38, s39")
            k("s_lshl_b32 s39, s28, 11")
            k(f"v_add_u32 v3, s39, v2")
            k("s_waitcnt vmcnt(0) lgkmcnt(0)" if XWAIT else "s_waitcnt lgkmcnt(0)")
            k("s_barrier")
            k("s_barrier")
            k(f"ds_read_b128 {vr(Y+40,4)}, v3 offset:{SHY}")
            k(f"ds_read_b128 {vr(Y+44,4)}, v3 offset:{SHY+1024}")
            k("s_waitcnt lgkmcnt(0)")
            mark(k, 4)
            k(f"L_{tag}_epi:")
            k("s_mov_b32 s40, 0xffff0000")
            k(f"v_lshlrev_b32 v{BIAS}, 16, v{BIAS}")
            if PERTURB: k(f"v_add_f32 v{BIAS}, {f32(PERTURB)}, v{BIAS}")
            set_ovs()
            for tp in range(2):
                P = T + 4*tp
                for q in range(4):
                    td = 2*tp + q//2
                    a_ = ACC + 4*td + 2*(q % 2); y = Y + 4*td + 2*(q % 2)
                    u, w = T+8+4*q, T+10+4*q
                    pk = Y + 40 + (4*td + 2*(q % 2))//2
                    k(f"v_lshlrev_b32 v{y}, 16, v{pk}")
                    k(f"v_and_b32 v{y+1}, s40, v{pk}")
                    k(f"v_pk_add_f32 {vr(a_,2)}, {vr(a_,2)}, {vr(y,2)}")
                    k(f"v_add_f32 v{u}, v{a_}, v{BIAS}")
                    k(f"v_add_f32 v{u+1}, v{a_+1}, v{BIAS}")
                    k(f"{CVT} v{P+q}, v{u}, v{u+1}")
                pack_swap(P)
                for q in range(4):
                    u, w = T+8+4*q, T+10+4*q
                    hp = HL+4*tp+q
                    k(f"v_lshlrev_b32 v{u}, 16, v{P+q}")
                    k(f"v_and_b32 v{u+1}, s40, v{P+q}")
                    k(f"v_lshlrev_b32 v{w}, 16, v{hp}")
                    k(f"v_and_b32 v{w+1}, s40, v{hp}")
                    k(f"v_pk_add_f32 {vr(u,2)}, {vr(u,2)}, {vr(w,2)}")
                    k(f"{CVT} v{P+q}, v{u}, v{u+1}")
            store_lines(T, T+4, T+32, 0, 48)
        else:
            k("s_waitcnt vmcnt(0)")
            srd(k, 44, 26, 256*(16384 if XBF16 else 32768), 0x1E00000 if XB_SEP else VB_OFF)
            if not XSENT: srd(k, 56, 26, 256*64, FL_OFF)
            k(f"s_xor_b32 s42, s2, {8 if MAP2 == 1 else 1}")
            k(f"s_lshl_b32 s43, s42, {14 if XBF16 else 15}")
            k(f"s_lshl_b32 s39, s28, {12 if XBF16 else 13}")
            k("s_add_u32 s43, s43, s39")
            k("v_lshlrev_b32 v2, 4, v1")
            k("v_mov_b32 v4, 0")
            if not XSENT:
                k("s_lshl_b32 s39, s42, 6")
                k("s_mov_b32 s41, 0")
                k("v_readfirstlane_b32 s61, v3")
                k("s_cmp_eq_u32 s61, 0")
                k(f"s_cbranch_scc0 L_{tag}_xpolld")
                k(f"L_{tag}_xpoll:")
                k("buffer_load_dword v3, v4, s[56:59], s39 offen offset:4 sc0 sc1")
                k("s_waitcnt vmcnt(0)")
                k("v_readfirstlane_b32 s61, v3")
                k("s_add_u32 s41, s41, 1")
                k("s_cmp_ge_u32 s41, 0x40000")
                k(f"s_cbranch_scc1 L_{tag}_xpolld")
                k("s_cmp_eq_u32 s61, 0")
                k(f"s_cbranch_scc1 L_{tag}_xpoll")
                k(f"L_{tag}_xpolld:")
                k("s_cmp_eq_u32 s61, s54")
                k(f"s_cselect_b32 s61, {0 if FORCE_FAR else 1}, 0")
            def sends(flags, lab):
                k("s_cmp_eq_u32 s62, 0")
                k(f"s_cbranch_scc1 L_{tag}_k0{lab}")
                for half, l2 in ((0, None), (32, f"L_{tag}_k0{lab}:")):
                    if l2: k(l2)
                    if XBF16:
                        for i in range(16): k(f"{CVT} v{Y+32+i}, v{ACC+half+2*i}, v{ACC+half+2*i+1}")
                        for i in range(4):
                            k(f"s_add_u32 s39, s43, {1024*i}")
                            k(f"buffer_store_dwordx4 {vr(Y+32+4*i,4)}, v2, s[44:47], s39 offen {flags}")
                    else:
                        for i in range(8):
                            k(f"s_add_u32 s39, s43, {1024*i}")
                            k(f"buffer_store_dwordx4 {vr(ACC+half+4*i,4)}, v2, s[44:47], s39 offen {flags}")
                    if half == 0: k(f"s_branch L_{tag}_k1{lab}")
                k(f"L_{tag}_k1{lab}:")
            def handoff(stf, ldf, lab):
                sends(stf, lab)
                k("s_waitcnt vmcnt(0)")
                k("s_lshl_b32 s39, s42, 6")
                k("s_lshl_b32 s41, s28, 2")
                k("s_add_u32 s39, s39, s41")
                k("v_mov_b32 v3, 1")
                k("s_mov_b64 exec, 1")
                k(f"buffer_store_dword v3, v4, s[56:59], s39 offen offset:16 {stf}")
                k("s_lshl_b32 s39, s2, 6")
                k("s_add_u32 s39, s39, s41")
                k("s_mov_b32 s41, 0")
                k(f"L_{tag}_poll{lab}:")
                k(f"buffer_load_dword v3, v4, s[56:59], s39 offen offset:16 {ldf}")
                k("s_waitcnt vmcnt(0)")
                k("v_readfirstlane_b32 s43, v3")
                k("s_add_u32 s41, s41, 1")
                k("s_cmp_ge_u32 s41, 0x40000")
                k(f"s_cbranch_scc1 L_{tag}_polld{lab}")
                k("s_cmp_eq_u32 s43, 1")
                k(f"s_cbranch_scc0 L_{tag}_poll{lab}")
                k(f"L_{tag}_polld{lab}:")
                k("s_mov_b64 exec, -1")
                k(f"s_lshl_b32 s43, s2, {14 if XBF16 else 15}")
                k(f"s_lshl_b32 s39, s28, {12 if XBF16 else 13}")
                k("s_add_u32 s43, s43, s39")
                for i in range(4 if XBF16 else 8):
                    k(f"s_add_u32 s39, s43, {1024*i}")
                    k(f"buffer_load_dwordx4 {vr(Y+(32 if XBF16 else 0)+4*i,4)}, v2, s[44:47], s39 offen {ldf}")
            if XSENT:
                assert XBF16
                sends('sc0 sc1', 's')
                k("s_lshl_b32 s43, s2, 14")
                k("s_lshl_b32 s39, s28, 12")
                k("s_add_u32 s43, s43, s39")
                k("s_mov_b32 s41, 0")
                k("s_waitcnt vmcnt(0)")
                k(f"L_{tag}_spoll:")
                for i in range(4):
                    k(f"s_add_u32 s39, s43, {1024*i}")
                    k(f"buffer_load_dwordx4 {vr(Y+32+4*i,4)}, v2, s[44:47], s39 offen sc0 sc1")
                k("s_add_u32 s41, s41, 1")
                k("s_waitcnt vmcnt(0)")
                k(f"v_max3_u32 v3, v{Y+32}, v{Y+33}, v{Y+34}")
                for i in range(3, 15, 2): k(f"v_max3_u32 v3, v3, v{Y+32+i}, v{Y+32+i+1}")
                k(f"v_max_u32 v3, v3, v{Y+47}")
                k("v_cmp_eq_u32 vcc, -1, v3")
                k("s_nop 4")
                k("s_cmp_ge_u32 s41, 0x20000")
                k(f"s_cbranch_scc1 L_{tag}_spolld")
                k(f"s_cbranch_vccnz L_{tag}_spoll")
                k(f"L_{tag}_spolld:")
            else:
                k("s_cmp_eq_u32 s61, 1")
                k(f"s_cbranch_scc0 L_{tag}_far")
                handoff('', 'sc1', 'n')
                k(f"s_branch L_{tag}_xdone")
                k(f"L_{tag}_far:")
                handoff('sc0 sc1', 'sc0 sc1', 'f')
                k(f"L_{tag}_xdone:")
            k("s_cmp_eq_u32 s62, 0")
            k(f"s_cbranch_scc1 L_{tag}_kept")
            for i in range(32): k(f"v_mov_b32 v{ACC+i}, v{ACC+32+i}")
            k(f"v_mov_b32 v{BIAS}, v{BIAS+2}"); k(f"v_mov_b32 v{BIAS+1}, v{BIAS+3}")
            k(f"L_{tag}_kept:")
            mark(k, 4)
            k(f"v_lshlrev_b32 v{BIAS}, 16, v{BIAS}"); k(f"v_lshlrev_b32 v{BIAS+1}, 16, v{BIAS+1}")
            if PERTURB:
                k(f"v_add_f32 v{BIAS}, {f32(PERTURB)}, v{BIAS}"); k(f"v_add_f32 v{BIAS+1}, {f32(PERTURB)}, v{BIAS+1}")
            k("s_lshl_b32 s39, s62, 16")
            k("s_add_u32 s38, s38, s39")
            set_ovs()
            for tnl in range(2):
                for tp in range(2):
                    i0 = 4*tnl + 2*tp
                    if XSENT: pass
                    elif XBF16: k(f"s_waitcnt vmcnt({3 - i0//2})")
                    else:     k(f"s_waitcnt vmcnt({6 - i0 if i0 < 6 else 0})")
                    if i0 == 0: mark(k, 5)
                    P = T + 4*tp + 24*tnl
                    for q in range(4):
                        td = 2*tp + q//2
                        a = ACC + 4*(4*tnl+td) + 2*(q % 2); y = Y + 4*(4*tnl+td) + 2*(q % 2)
                        u, w = T+8+4*q, T+10+4*q
                        if XBF16:
                            pk = Y + 32 + (4*(4*tnl+td) + 2*(q % 2))//2
                            k(f"v_lshlrev_b32 v{y}, 16, v{pk}")
                            k(f"v_and_b32 v{y+1}, s40, v{pk}")
                        k(f"v_pk_add_f32 {vr(a,2)}, {vr(a,2)}, {vr(y,2)}")
                        if EMU_Y:
                            k(f"{CVT} v{w}, v{a}, v{a+1}")
                            k(f"v_lshlrev_b32 v{u}, 16, v{w}")
                            k(f"v_and_b32 v{u+1}, s40, v{w}")
                            k(f"v_add_f32 v{u}, v{u}, v{BIAS+tnl}")
                            k(f"v_add_f32 v{u+1}, v{u+1}, v{BIAS+tnl}")
                        else:
                            k(f"v_add_f32 v{u}, v{a}, v{BIAS+tnl}")
                            k(f"v_add_f32 v{u+1}, v{a+1}, v{BIAS+tnl}")
                        k(f"{CVT} v{P+q}, v{u}, v{u+1}")
                    pack_swap(P)
                    for q in range(4):
                        u, w = T+8+4*q, T+10+4*q
                        hp = HL+8*tnl+4*tp+q
                        k(f"v_lshlrev_b32 v{u}, 16, v{P+q}")
                        k(f"v_and_b32 v{u+1}, s40, v{P+q}")
                        k(f"v_lshlrev_b32 v{w}, 16, v{hp}")
                        k(f"v_and_b32 v{w+1}, s40, v{hp}")
                        k(f"v_pk_add_f32 {vr(u,2)}, {vr(u,2)}, {vr(w,2)}")
                        k(f"{CVT} v{P+q}, v{u}, v{u+1}")
                store_lines(T+24*tnl, T+24*tnl+4, T+32, tnl*16*2048, 48)
    stamp_end(k, tag)
    k(f"s_branch {'L_gbar' if (fused and g1) else ENDL}")
    k(f"L_{tag}_prod:")
    if PPRIO: k(f"s_setprio {PPRIO}")
    k("s_sub_u32 s33, s28, 4")
    k("v_lshrrev_b32 v2, 4, v1")
    k("s_and_b32 s34, s33, 1")
    k("s_lshl_b32 s34, s34, 2")
    k("v_add_u32 v3, s34, v2")
    k("v_lshlrev_b32 v3, 1, v3")
    k("v_and_b32 v4, 15, v1")
    k("v_xor_b32 v3, v3, v4")
    k("v_lshlrev_b32 v3, 4, v3")
    k("v_lshl_add_u32 v8, v2, 11, v3")
    k(f"v_mul_u32_u24 v2, {BSTR}, v2")
    k("v_add_u32 v9, v2, v3")
    k("s_lshl_b32 s34, s33, 13")
    k("s_add_u32 s40, s32, s34")
    k(f"s_mul_i32 s34, s33, {4*BSTR}")
    k("s_add_u32 s41, s31, s34")
    k("s_lshl_b32 s42, s33, 10")
    k("s_mov_b32 s43, 0")
    k("s_add_u32 s46, s52, s53")
    k("s_mov_b32 s47, 0")
    def issue():
        k("s_add_u32 s58, s46, s47")
        k("s_and_b32 s58, s58, 3")
        k("s_cmp_eq_u32 s58, 0")
        k(f"s_cselect_b32 s58, {3+NIT}, {NIT-1}")
        k("s_add_u32 s58, s58, s47")
        k("s_add_u32 s58, s58, s55")
        k(f"s_cmp_ge_u32 s58, {2*NIT}")
        k(f"s_cselect_b32 s59, {2*NIT}, {NIT}")
        k(f"s_cmp_ge_u32 s58, {NIT}")
        k(f"s_cselect_b32 s59, s59, 0")
        k("s_sub_u32 s58, s58, s59")
        if not KPERM: k("s_mov_b32 s58, s47")
        if KWRAP: k(f"s_and_b32 s58, s58, {KWRAP-1}")
        k("s_add_u32 s58, s58, s63")
        k(f"s_mul_i32 s59, s58, {64*BSTR}")
        k(f"s_lshl_b32 s58, s58, 17")
        k("s_add_u32 s58, s58, s40")
        k("s_add_u32 s59, s59, s41")
        k("s_add_u32 s44, s43, s42")
        for m in range(4):
            k(f"s_add_u32 m0, s44, {4096*m}")
            k(f"s_add_u32 s45, s58, {m*16*2048}")
            k(f"buffer_load_dwordx4 v8, s[12:15], s45 offen lds")
            k(f"s_add_u32 m0, s44, {ASZ+4096*m}")
            k(f"s_add_u32 s45, s59, {m*16*BSTR}")
            k(f"buffer_load_dwordx4 v9, s[8:11], s45 offen {NT_B1 if g1 else NT_B2} lds")
        k("s_add_u32 s47, s47, 1")
        k(f"s_add_u32 s43, s43, {STG}")
        k(f"s_cmp_eq_u32 s43, {STG*NS}")
        k("s_cselect_b32 s43, 0, s43")
    if fused and not g1:
        k("s_cmp_eq_u32 s33, 0")
        k("s_cbranch_scc0 L_gbar_nopoll")
        srd(k, 36, 26, 1024, BAR_OFF)
        k("v_and_b32 v2, 7, v1")
        k("v_lshlrev_b32 v2, 7, v2")
        k("s_mov_b32 s34, 0")
        k("L_gbar_poll:")
        if PSLEEP: k(f"s_sleep {PSLEEP}")
        k(f"buffer_load_dword v3, v2, s[36:39], 0 offen {POLLF}")
        k("s_waitcnt vmcnt(0)")
        k("v_cmp_gt_u32 vcc, 32, v3")
        k("s_add_u32 s34, s34, 1")
        k("s_cmp_ge_u32 s34, 0x20000")
        k("s_cbranch_scc1 L_gbar_nopoll")
        k("s_cbranch_vccnz L_gbar_poll")
        k("L_gbar_nopoll:")
        k("s_barrier")
    if BAR2:
        per = 8
        mark(k, 1)
        issue(); mark(k, 2); issue()
        k(f"s_waitcnt vmcnt({per})")
        mark(k, 3)
        k("s_barrier")
        issue(); issue()
        mark(k, 4)
        k("s_mov_b32 s60, 0")
        k(f"L_{tag}_ploop:")
        k(f"s_waitcnt vmcnt({per})")
        k("s_barrier")
        issue(); issue()
        k("s_add_u32 s60, s60, 2")
        k(f"s_cmp_lt_u32 s60, {NIT-4}")
        k(f"s_cbranch_scc1 L_{tag}_ploop")
        k(f"s_waitcnt vmcnt({per})")
        k("s_barrier")
        k("s_waitcnt vmcnt(0)")
        k("s_barrier")
    else:
        producer_loop(k, tag, 8, issue, 3 if STATIC else NS, NIT)
    if g1:
        k("s_and_b32 s34, s33, 1")
        k("s_lshr_b32 s36, s33, 1")
        k("v_and_b32 v2, 15, v1")
        k("v_lshlrev_b32 v2, 1, v2")
        k("s_lshl_b32 s37, s36, 7")
        k("s_add_u32 s37, s37, s31")
        for t in range(2):
            k(f"buffer_load_ushort v{BIAS+t}, v2, s[20:23], s37 offen offset:{64+32*t}")
        k("v_and_b32 v2, 15, v1")
        k("v_lshlrev_b32 v2, 11, v2")
        k("v_lshrrev_b32 v3, 4, v1")
        k(f"v_lshl_add_u32 v{OV}, v3, 4, v2")
        k("s_lshl_b32 s38, s29, 7")
        k("s_lshl_b32 s39, s36, 6")
        k("s_add_u32 s38, s38, s39")
        k("s_add_u32 s38, s38, 32")
        k("s_lshl_b32 s38, s38, 11")
        k("s_add_u32 s38, s38, s32")
        k("s_lshl_b32 s39, s34, 7")
        k("s_add_u32 s38, s38, s39")
        k("s_lshl_b32 s39, s33, 13")
        k(f"s_add_u32 s39, s39, {32768 if STATIC else (98304 if BAR2 else 65536)}")
        k("v_lshl_add_u32 v2, v1, 4, s39")
        k("s_setprio 0")
        k("s_barrier")
        for i in range(8): k(f"ds_read_b128 {vr(ACC+4*i,4)}, v2 offset:{1024*i}")
        k("s_waitcnt vmcnt(0) lgkmcnt(0)")
        k(f"s_branch L_{tag}_epi")
    if (not g1) and XSHARE:
        SHX, SHY = 0, 16384
        k("s_setprio 0")
        k("s_and_b32 s34, s33, 1")
        k("s_lshr_b32 s36, s33, 1")
        k("v_and_b32 v2, 15, v1")
        k("v_lshlrev_b32 v2, 1, v2")
        k("s_lshl_b32 s37, s36, 7")
        k("s_add_u32 s37, s37, s31")
        k("s_lshl_b32 s39, s62, 6")
        k("s_add_u32 s37, s37, s39")
        k(f"buffer_load_ushort v{BIAS}, v2, s[20:23], s37 offen offset:32")
        k("v_and_b32 v2, 15, v1")
        k("v_lshlrev_b32 v2, 11, v2")
        k("v_lshrrev_b32 v3, 4, v1")
        k(f"v_lshl_add_u32 v{OV}, v3, 4, v2")
        k("s_lshl_b32 s38, s29, 7")
        k("s_lshl_b32 s39, s36, 6")
        k("s_add_u32 s38, s38, s39")
        k("s_lshl_b32 s39, s62, 5")
        k("s_add_u32 s38, s38, s39")
        k("s_add_u32 s38, s38, 16")
        k("s_lshl_b32 s38, s38, 11")
        k("s_add_u32 s38, s38, s32")
        k("s_lshl_b32 s39, s34, 7")
        k("s_add_u32 s38, s38, s39")
        for tp in range(2):
            k(f"s_add_u32 s40, s38, {tp*64}")
            k(f"buffer_load_dwordx4 {vr(HL+4*tp,4)}, v{OV}, s[16:19], s40 offen")
        srd(k, 44, 26, 256*16384, 0x1E00000 if XB_SEP else VB_OFF)
        k("s_lshl_b32 s43, s2, 14")
        k("s_lshl_b32 s39, s33, 12")
        k("s_add_u32 s43, s43, s39")
        k("v_lshlrev_b32 v2, 4, v1")
        k("s_lshl_b32 s39, s33, 12")
        k("v_add_u32 v3, s39, v2")
        k("s_barrier")
        for i in range(4): k(f"ds_read_b128 {vr(ACC+4*i,4)}, v3 offset:{SHX+1024*i}")
        k("s_mov_b32 s41, 0")
        k(f"L_{tag}_spoll:")
        for i in range(4):
            k(f"s_add_u32 s39, s43, {1024*i}")
            k(f"buffer_load_dwordx4 {vr(Y+32+4*i,4)}, v2, s[44:47], s39 offen sc0 sc1")
        k("s_add_u32 s41, s41, 1")
        k("s_waitcnt vmcnt(0)")
        k(f"v_max3_u32 v5, v{Y+32}, v{Y+33}, v{Y+34}")
        for i in range(3, 15, 2): k(f"v_max3_u32 v5, v5, v{Y+32+i}, v{Y+32+i+1}")
        k(f"v_max_u32 v5, v5, v{Y+47}")
        k("v_cmp_eq_u32 vcc, -1, v5")
        k("s_nop 4")
        k("s_cmp_ge_u32 s41, 0x20000")
        k(f"s_cbranch_scc1 L_{tag}_spolld")
        k(f"s_cbranch_vccnz L_{tag}_spoll")
        k(f"L_{tag}_spolld:")
        k("s_lshl_b32 s39, s33, 11")
        k("v_add_u32 v3, s39, v2")
        k(f"ds_write_b128 v3, {vr(Y+32,4)} offset:{SHY}")
        k(f"ds_write_b128 v3, {vr(Y+36,4)} offset:{SHY+1024}")
        k("s_waitcnt lgkmcnt(0)")
        k("s_barrier")
        k(f"s_branch L_{tag}_epi")
    stamp_end(k, tag, tid=256, slot=256, sfx='p')
    if fused and g1:
        return k, NV, STG*NS
    k(f"{ENDL}:")
    k("s_endpgm")
    return k, NV, STG*NS

def gelu_pair(k, src, u, w, bias, dst):
    if EMU_U:
        k(f"{CVT} v{w}, v{src}, v{src+1}")
        k(f"v_lshlrev_b32 v{u}, 16, v{w}")
        k(f"v_and_b32 v{u+1}, s40, v{w}")
        k(f"v_add_f32 v{u}, v{u}, v{bias}")
        k(f"v_add_f32 v{u+1}, v{u+1}, v{bias}")
        k(f"{CVT} v{w}, v{u}, v{u+1}")
        k(f"v_lshlrev_b32 v{u}, 16, v{w}")
        k(f"v_and_b32 v{u+1}, s40, v{w}")
    else:
        k(f"v_add_f32 v{u}, v{src}, v{bias}")
        k(f"v_add_f32 v{u+1}, v{src+1}, v{bias}")
    k(f"v_pk_mul_f32 {vr(w,2)}, {vr(u,2)}, {vr(u,2)}")
    k(f"v_pk_fma_f32 {vr(w,2)}, {vr(w,2)}, s[42:43], {vr(4,2)} op_sel_hi:[1,0,1]")
    k(f"v_pk_mul_f32 {vr(w,2)}, {vr(w,2)}, {vr(u,2)}")
    k(f"v_exp_f32 v{w}, v{w}")
    k(f"v_exp_f32 v{w+1}, v{w+1}")
    k(f"s_nop 0")
    k(f"v_pk_add_f32 {vr(w,2)}, {vr(w,2)}, {vr(6,2)}")
    k(f"v_rcp_f32 v{w}, v{w}")
    k(f"v_rcp_f32 v{w+1}, v{w+1}")
    k(f"s_nop 0")
    k(f"v_pk_mul_f32 {vr(w,2)}, {vr(w,2)}, {vr(u,2)}")
    k(f"{CVT} v{dst}, v{w}, v{w+1}")

RPAT = [2, 1]
FUSE_GG = 0
LN_FUSE = 1
WEARLY = 1
W1IDLE = 0
EMU_LN = 0
EMU_L2 = 0
NT_B1 = ''
NT_B2 = ''
NT_X = ''
NT_W = ''
KHALF = 1
XSENT = 1
XSHARE = 0
XWAIT = 1
XBF16 = 1
EMU_Y = 0
PERTURB = 0
PSLEEP = 4
POLLF = 'sc0 sc1'
STATIC = 1
LOOPSTAMP = 0
BAR2 = 0
FAKE32 = 0
MAP2 = 0
XB_SEP = 1
FORCE_FAR = 0
PPRIO = 3
PFD = 0
KPERM = 1
FAKE16 = 0
NS1 = 3
NS2 = 3
KWRAP = 0
W2PF = 7
EMU_U = 0
RPG1 = 3
RPG2 = 4
def gen_gg():
    k1, nv1, l1 = gemm_kernel('g1', True)
    k2, nv2, l2 = gemm_kernel('g2', True)
    k1.l += k2.l
    return k1, max(nv1, nv2), max(l1, l2)
def gen_g1(): return gemm_kernel('g1')
def gen_g2(): return gemm_kernel('g2')

KERNELS = [('p1_kernel', gen_p1, (256,1,1), (256,1,1)), ('p2_kernel', gen_p2, (256,1,1), (256,1,1)), ('p3_kernel', gen_p3, (256,1,1), (256,1,1)),
 ('g1_kernel', gen_g1, (256,1,1), (512,1,1)), ('g2_kernel', gen_g2, (256,1,1), (512,1,1))]

def build_all(kernels=None):
    ks = []
    if kernels is None:
        kernels = KERNELS[:3] + [('gg_kernel', gen_gg, (256,1,1), (512,1,1))] if FUSE_GG else KERNELS
    for name, fn, grid, block in kernels:
        if W1PF and name in ('p2_kernel', 'p3_kernel'): block = (320, 1, 1)
        k, nv, lds = fn()
        if ST_ALL:
            k.l = [ (x + ' ' + ST_ALL) if ('buffer_store' in x and 'sc1' not in x and 'sc0' not in x and ' nt' not in x) else x for x in k.l]
        if name.startswith('g'):
            if NO_DMA: k.l = [x for x in k.l if not ('offen lds' in x)]
            if NO_MFMA: k.l = [x for x in k.l if 'v_mfma' not in x]
            if NO_ADV: k.l = [x for x in k.l if not (x.strip().startswith('s_add_u32 s40, s40,') or x.strip().startswith('s_add_u32 s41, s41,'))]
            if NO_A: k.l = [x for x in k.l if not ('s[12:15]' in x and 'offen lds' in x)]
            if NO_B: k.l = [x for x in k.l if not ('s[8:11]' in x and 'offen lds' in x)]
            if NO_BAR: k.l = [x for x in k.l if 's_barrier' not in x]
            if NO_READ: k.l = [x for x in k.l if 'ds_read_b64_tr' not in x]
        ks.append((name, k, nv, lds, grid, block))
    hdr = open('sequential_preLN__spectral_gfnet__mixer_token_mlp__prompt.s.ref').read().split('; Override launch')[0]
    s = hdr
    for name, k, nv, lds, grid, block in ks:
        s += f"; @launch kernel={name} grid=({grid[0]},{grid[1]},{grid[2]}) block=({block[0]},{block[1]},{block[2]}) lds={lds}\n"
    s += '.amdgcn_target "amdgcn-amd-amdhsa--gfx950"\n.text\n'
    for name, k, nv, lds, grid, block in ks: s += k.text()
    s += 'L_text_end:\n'
    s += '.section .rodata,"a"\n'
    for name, k, nv, lds, grid, block in ks: s += descriptor(name, nv)
    return s, ks

if __name__ == '__main__':
    s, ks = build_all()
    open(sys.argv[1] if len(sys.argv) > 1 else 'out.s', 'w').write(s)
    print('written', len(s), 'bytes')
```

```python
import sys, math, struct
sys.path.insert(0, 'work')
from asmlib import *

ZW_OFF = 0x0          ; ZW_SIZE = 257*32768
ZD_OFF = 0x0 ; WB_OFF = 0x480000
VB_OFF = 0x900000     ; VB_BLK = 256*64
H_OFF  = 0xE00000
HN_OFF = 0x1200000
GT_OFF = 0x1600000
WS_USED = 0x1D00000
S, D, F = 2048, 1024, 3584

def f32(x):
    return '0x%08x' % struct.unpack('<I', struct.pack('<f', x))[0]

CVT = 'v_cvt_pk_bf16_f32'
STAMP = False
NO_DMA = False
NO_MFMA = False
NO_READ = False
NO_BAR = False
NO_ADV = False
NO_A = False
NO_B = False
STAMP_OFF = 0x3000000
KIDX = {'p1':0,'p2':1,'p3':2,'g1':3,'g2':4}
NMARK = 8
def mark(k, i):
    if STAMP and not (LOOPSTAMP and k.name.startswith('g') and 1 <= i <= 4): k(f"s_memrealtime s[{64+2*i}:{65+2*i}]")
def stamp_begin(k):
    if STAMP:
        for i in range(1, NMARK): k(f"s_mov_b64 s[{64+2*i}:{65+2*i}], 0")
        k("s_memrealtime s[64:65]")
        k("s_memtime s[94:95]")
def stamp_end(k, tag, tid=0, slot=0, sfx=''):
    if not STAMP: return
    mark(k, 6)
    k("s_waitcnt vmcnt(0) lgkmcnt(0)")
    mark(k, 7)
    k("s_memtime s[84:85]")
    k("s_load_dwordx2 s[88:89], s[0:1], 80")
    k("s_waitcnt lgkmcnt(0)")
    k(f"s_add_u32 s88, s88, {STAMP_OFF + KIDX[tag]*65536}")
    k("s_addc_u32 s89, s89, 0")
    k(f"s_add_u32 s87, s2, {slot}")
    k("s_lshl_b32 s87, s87, 7")
    k("v_mov_b32 v8, s87")
    k(f"v_cmp_eq_u32 vcc, {tid}, v0" if tid <= 64 else f"v_cmp_eq_u32 vcc, {hex(tid)}, v0")
    k("s_and_saveexec_b64 s[86:87], vcc")
    k(f"s_cbranch_execz L_{tag}_nostamp{sfx}")
    for i in range(0, NMARK, 2):
        for j in range(4): k(f"v_mov_b32 v{4+j}, s{64+2*i+j}")
        k(f"global_store_dwordx4 v8, v[4:7], s[88:89] offset:{8*i}")
        k("s_nop 1")
    k("v_mov_b32 v4, s94"); k("v_mov_b32 v5, s95"); k("v_mov_b32 v6, s84"); k("v_mov_b32 v7, s85")
    k("global_store_dwordx4 v8, v[4:7], s[88:89] offset:64")
    k("s_getreg_b32 s84, hwreg(HW_REG_XCC_ID, 0, 4)")
    k("s_nop 1")
    k("v_mov_b32 v4, s84")
    k("global_store_dword v8, v4, s[88:89] offset:80")
    k(f"L_{tag}_nostamp{sfx}:")

MF32 = 'v_mfma_f32_32x32x16_bf16'

CODEPF = 1
W1PF = 0
W1PF0 = 0
W1L2 = 0
ST_FLAGS = ''
ST_ALL = ''
ST_P1 = 'sc1'
ST_P2 = 'sc1'
ST_P3 = 'sc1'
ST_G1 = 'sc1'
ST_G2 = 'nt'
OUT_TOUCH = 0
def code_prefetch(k, tag, first_label, last_label, vtmp, stmp, nwaves_cond=None):
    if not CODEPF: return
    k(f"s_getpc_b64 s[{stmp}:{stmp+1}]")
    k(f"L_{tag}_pc:")
    k(f"s_add_u32 s{stmp}, s{stmp}, {first_label}-L_{tag}_pc")
    k(f"s_addc_u32 s{stmp+1}, s{stmp+1}, 0")

WS_BASE = 0
def srd(k, s, base, size, off=0):
    if base == 26: off += WS_BASE
    if off:
        k(f"s_add_u32 s{s}, s{base}, {hex(off)}")
        k(f"s_addc_u32 s{s+1}, s{base+1}, 0")
    else:
        k(f"s_mov_b32 s{s}, s{base}")
        k(f"s_mov_b32 s{s+1}, s{base+1}")
    k(f"s_mov_b32 s{s+2}, {hex(size)}")
    k(f"s_mov_b32 s{s+3}, 0x20000")

SEQ = [(r, c) for r in range(4) for c in range(4)]

def rot_setup(k, vA, t):
    k(f"v_mul_f32 v{t+4}, {f32(5.0)}, v{vA}")
    k(f"v_cos_f32 v{t}, v{vA}")
    k(f"v_sin_f32 v{t+1}, v{vA}")
    k(f"v_cos_f32 v{t+2}, v{t+4}")
    k(f"v_sin_f32 v{t+3}, v{t+4}")

def rot(k, dst, src, st, tmp, sign):
    k(f"v_pk_mul_f32 {vr(tmp,2)}, {vr(src,2)}, {vr(st,2)} op_sel_hi:[1,0]")
    neg = "neg_lo:[0,1,0]" if sign > 0 else "neg_hi:[0,1,0]"
    k(f"v_pk_fma_f32 {vr(dst,2)}, {vr(src,2)}, {vr(st,2)}, {vr(tmp,2)} op_sel:[1,1,0] op_sel_hi:[0,1,1] {neg}")

def gen_matrix(k, Mr, Mi, vA, vB, t):
    rot_setup(k, vA, t)
    cur = [t+6, t+8]
    k(f"v_cos_f32 v{cur[0]}, v{vB}")
    k(f"v_sin_f32 v{cur[0]+1}, v{vB}")
    k("s_nop 0")
    for i, (r, c) in enumerate(SEQ):
        a_, b_ = cur[i % 2], cur[(i+1) % 2]
        if i < 15: rot(k, b_, a_, t+2 if c == 3 else t, t+4, +1)
        k(f"{CVT} v{Mr+i}, v{a_}, v{a_+1}")
        k(f"{CVT} v{Mi+i}, -v{a_+1}, v{a_}")

def gen_twiddle(k, tw, vA, vB, t, scale=None):
    rot_setup(k, vA, t)
    k(f"v_cos_f32 v{tw}, v{vB}")
    k(f"v_sin_f32_e64 v{tw+1}, -v{vB}")
    if scale is not None:
        k(f"v_mul_f32 v{tw}, {f32(scale)}, v{tw}")
        k(f"v_mul_f32 v{tw+1}, {f32(scale)}, v{tw+1}")
    else: k("s_nop 0")
    for i, (r, c) in enumerate(SEQ):
        if i < 15: rot(k, tw+2*(i+1), tw+2*i, t+2 if c == 3 else t, t+4, -1)

def stage(k, typ, Dr, Di, data, Mr, Mi, first=True):
    for r in range(4):
        for (Dx, M) in ((Dr, Mr), (Di, Mi)):
            c = '0' if (r == 0 and first) else vr(Dx, 16)
            if typ == 'A': k(f"{MF32} {vr(Dx,16)}, {vr(data+4*r,4)}, {vr(M+4*r,4)}, {c}")
            else:          k(f"{MF32} {vr(Dx,16)}, {vr(M+4*r,4)}, {vr(data+4*r,4)}, {c}")

def cmul_pack(k, Dr, Di, w, out, t, conj=False):
    for j in range(16):
        o = t + 2*(j % 4); jp = j & ~1; x = j & 1
        k(f"v_pk_mul_f32 {vr(o,2)}, {vr(w+2*j,2)}, {vr(Dr+jp,2)} op_sel:[0,{x}] op_sel_hi:[1,{x}]")
        k(f"v_pk_fma_f32 {vr(o,2)}, {vr(w+2*j,2)}, {vr(Di+jp,2)}, {vr(o,2)} op_sel:[1,{x},0] op_sel_hi:[0,{x},1] neg_lo:[1,0,0]")
        if j >= 1:
            po = t + 2*((j-1) % 4); n = '-' if conj else ''
            k(f"{CVT} v{out+j-1}, v{po}, {n}v{po+1}")
    po = t + 2*(15 % 4); n = '-' if conj else ''
    k(f"{CVT} v{out+15}, v{po}, {n}v{po+1}")

def wave_reduce2(k, a, b):
    for m in ("quad_perm:[1,0,3,2] row_mask:0xf", "quad_perm:[2,3,0,1] row_mask:0xf", "row_half_mirror row_mask:0xf",
              "row_mirror row_mask:0xf", "row_bcast:15 row_mask:0xa", "row_bcast:31 row_mask:0xc"):
        k(f"v_add_f32_dpp v{a}, v{a}, v{a} {m} bank_mask:0xf")
        k(f"v_add_f32_dpp v{b}, v{b}, v{b} {m} bank_mask:0xf")

def tree_sum(k, X, n, t, op='add'):
    acc = [t, t+2, t+4, t+6]
    for i in range(4):
        k(f"v_pk_add_f32 {vr(acc[i],2)}, {vr(X+2*i,2)}, {vr(X+2*(i+4),2)}")
    for i in range(8, n):
        k(f"v_pk_add_f32 {vr(acc[i%4],2)}, {vr(acc[i%4],2)}, {vr(X+2*i,2)}")
    k(f"v_pk_add_f32 {vr(acc[0],2)}, {vr(acc[0],2)}, {vr(acc[1],2)}")
    k(f"v_pk_add_f32 {vr(acc[2],2)}, {vr(acc[2],2)}, {vr(acc[3],2)}")
    k(f"v_pk_add_f32 {vr(acc[0],2)}, {vr(acc[0],2)}, {vr(acc[2],2)}")

def ln_scalars(k, t, twice=False):
    k(f"v_mul_f32 v{t}, {f32(1/1024)}, v{t}")
    k(f"v_mul_f32 v{t+1}, {f32(1/1024)}, v{t+1}")
    if twice:
        k(f"v_add_f32 v{t+2}, {f32(1e-5)}, v{t}")
        k(f"v_add_f32 v{t+3}, {f32(1e-5)}, v{t+1}")
        k(f"v_rsq_f32 v{t+2}, v{t+2}")
        k(f"v_rsq_f32 v{t+3}, v{t+3}")
        k("s_nop 0")
        k(f"v_mul_f32 v{t}, v{t}, v{t+2}")
        k(f"v_mul_f32 v{t+1}, v{t+1}, v{t+3}")
        k(f"v_mul_f32 v{t}, v{t}, v{t+2}")
        k(f"v_mul_f32 v{t+1}, v{t+1}, v{t+3}")
        k(f"v_add_f32 v{t}, {f32(1e-5)}, v{t}")
        k(f"v_add_f32 v{t+1}, {f32(1e-5)}, v{t+1}")
        k(f"v_rsq_f32 v{t}, v{t}")
        k(f"v_rsq_f32 v{t+1}, v{t+1}")
        k("s_nop 0")
        k(f"v_mul_f32 v{t}, v{t}, v{t+2}")
        k(f"v_mul_f32 v{t+1}, v{t+1}, v{t+3}")
        k(f"v_mul_f32 v{t+12}, v{t+12}, v{t}")
        k(f"v_mul_f32 v{t+13}, v{t+13}, v{t+1}")
        return
    if EMU_LN:
        k(f"{CVT} v{t+2}, v{t}, v{t+1}")
        k(f"v_lshlrev_b32 v{t}, 16, v{t+2}")
        k(f"v_and_b32 v{t+1}, 0xffff0000, v{t+2}")
    k(f"v_add_f32 v{t}, {f32(1e-5)}, v{t}")
    k(f"v_add_f32 v{t+1}, {f32(1e-5)}, v{t+1}")
    if EMU_LN:
        k(f"{CVT} v{t+2}, v{t}, v{t+1}")
        k(f"v_lshlrev_b32 v{t}, 16, v{t+2}")
        k(f"v_and_b32 v{t+1}, 0xffff0000, v{t+2}")
        k(f"v_sqrt_f32 v{t}, v{t}")
        k(f"v_sqrt_f32 v{t+1}, v{t+1}")
        k(f"s_nop 0")
        k(f"{CVT} v{t+2}, v{t}, v{t+1}")
        k(f"v_lshlrev_b32 v{t}, 16, v{t+2}")
        k(f"v_and_b32 v{t+1}, 0xffff0000, v{t+2}")
        k(f"v_rcp_f32 v{t}, v{t}")
        k(f"v_rcp_f32 v{t+1}, v{t+1}")
    else:
        k(f"v_rsq_f32 v{t}, v{t}")
        k(f"v_rsq_f32 v{t+1}, v{t+1}")
    k(f"s_nop 0")
    k(f"v_mul_f32 v{t+12}, v{t+12}, v{t}")
    k(f"v_mul_f32 v{t+13}, v{t+13}, v{t+1}")

def ln_mean(k, t, sTmp):
    k(f"v_mul_f32 v{t}, {f32(1/1024)}, v{t}")
    k(f"v_mul_f32 v{t+1}, {f32(1/1024)}, v{t+1}")
    if EMU_LN:
        k(f"{CVT} v{t+2}, v{t}, v{t+1}")
        k(f"v_readlane_b32 s{sTmp}, v{t}, 63")
        k(f"v_readlane_b32 s{sTmp+1}, v{t+1}, 63")
        k(f"v_lshlrev_b32 v{t+12}, 16, v{t+2}")
        k(f"v_and_b32 v{t+13}, 0xffff0000, v{t+2}")
    else:
        k(f"v_mov_b32 v{t+12}, v{t}")
        k(f"v_mov_b32 v{t+13}, v{t+1}")
        k(f"v_readlane_b32 s{sTmp}, v{t}, 63")
        k(f"v_readlane_b32 s{sTmp+1}, v{t+1}, 63")

def ln_stats_xrow(k, X, t, sM, sR, sTmp):
    tree_sum(k, X, 16, t)
    wave_reduce2(k, t, t+1)
    ln_mean(k, t, sTmp)
    acc = [t, t+2]; tmp = [t+4, t+6, t+8, t+10]
    for i in range(16):
        d = tmp[i % 4]
        k(f"v_pk_add_f32 {vr(d,2)}, {vr(X+2*i,2)}, {sr(sTmp,2)} neg_lo:[0,1] neg_hi:[0,1]")
        a = acc[i % 2]
        if i < 2: k(f"v_pk_mul_f32 {vr(a,2)}, {vr(d,2)}, {vr(d,2)}")
        else:     k(f"v_pk_fma_f32 {vr(a,2)}, {vr(d,2)}, {vr(d,2)}, {vr(a,2)}")
    k(f"v_pk_add_f32 {vr(t,2)}, {vr(t,2)}, {vr(t+2,2)}")
    wave_reduce2(k, t, t+1)
    ln_scalars(k, t)
    k(f"v_readlane_b32 s{sR}, v{t}, 63")
    k(f"v_readlane_b32 s{sR+1}, v{t+1}, 63")
    k(f"v_readlane_b32 s{sM}, v{t+12}, 63")
    k(f"v_readlane_b32 s{sM+1}, v{t+13}, 63")

def gen_p1():
    k = Kern('p1_kernel')
    k("s_cmp_ge_u32 s2, 256")
    k("s_cbranch_scc1 L_p1_end")
    stamp_begin(k)
    k("s_load_dwordx4 s[4:7], s[0:1], 0")
    k("s_load_dwordx2 s[24:25], s[0:1], 16")
    k("s_load_dwordx2 s[60:61], s[0:1], 32")
    k("s_load_dwordx2 s[26:27], s[0:1], 80")
    TID, LANE = 0, 1
    if CODEPF:
        k("s_getpc_b64 s[52:53]")
        k("L_p1_pc:")
        k("s_sub_u32 s52, s52, L_p1_pc-p1_kernel")
        k("s_subb_u32 s53, s53, 0")
        k("s_lshr_b32 s54, s2, 3")
        k("s_mul_i32 s54, s54, (L_text_end-p1_kernel+4095)/4096")
        k("v_add_u32 v213, s54, v0")
        k("v_lshlrev_b32 v213, 7, v213")
        k("v_mov_b32 v211, s53")
        k("v_add_co_u32 v210, vcc, s52, v213")
        k("v_addc_co_u32 v211, vcc, 0, v211, vcc")
        k("v_cmp_gt_u32 vcc, (L_text_end-p1_kernel+4095)/4096, v0")
        k("s_and_saveexec_b64 s[54:55], vcc")
        k("s_cbranch_execz L_p1_cp0")
        k("v_cmp_gt_u32 vcc, L_text_end-p1_kernel, v213")
        k("s_and_b64 exec, exec, vcc")
        k("s_cbranch_execz L_p1_cp0")
        k("global_load_dword v212, v[210:211], off")
        k("L_p1_cp0:")
        k("s_mov_b64 exec, -1")
    k("v_and_b32 v1, 63, v0")
    k("v_lshrrev_b32 v2, 6, v0")
    k("v_readfirstlane_b32 s28, v2")
    k("s_lshr_b32 s29, s2, 5")
    k("s_lshl_b32 s29, s29, 2")
    k("s_and_b32 s30, s2, 31")
    k("s_add_u32 s31, s29, s28")
    k("s_lshl_b32 s31, s31, 5")
    k("s_add_u32 s31, s31, s30")
    k("s_lshl_b32 s31, s31, 11")
    k("s_add_u32 s32, s31, 0x200000")
    k("s_waitcnt lgkmcnt(0)")
    srd(k, 8, 4, S*D*2)
    srd(k, 12, 6, S*513*2)
    srd(k, 16, 24, S*513*2)
    srd(k, 20, 26, 257*16384, ZD_OFF)
    srd(k, 72 if False else 52, 26, 257*16384, WB_OFF) if False else None
    XL = 4
    if FUSE_GG:
        srd(k, 56, 26, 1024, BAR_OFF)
        k("s_cmp_lt_u32 s2, 8")
        k("s_cbranch_scc0 L_p1_nozb")
        k("s_lshl_b32 s33, s2, 7")
        k("v_mov_b32 v2, 0")
        k("v_cmp_eq_u32 vcc, 0, v0")
        k("s_and_saveexec_b64 s[34:35], vcc")
        k("s_cbranch_execz L_p1_nozb")
        k("buffer_store_dword v2, v2, s[56:59], s33 offen sc0 sc1")
        k("L_p1_nozb:")
        k("s_mov_b64 exec, -1")
    k("v_lshlrev_b32 v2, 4, v1")
    k(f"buffer_load_dwordx4 {vr(XL,4)}, v2, s[8:11], s31 offen {NT_X}")
    k(f"buffer_load_dwordx4 {vr(XL+4,4)}, v2, s[8:11], s31 offen offset:1024 {NT_X}")
    k(f"buffer_load_dwordx4 {vr(XL+8,4)}, v2, s[8:11], s32 offen {NT_X}")
    k(f"buffer_load_dwordx4 {vr(XL+12,4)}, v2, s[8:11], s32 offen offset:1024 {NT_X}")
    WL = 20
    def w_loads():
        k("v_lshlrev_b32 v220, 2, v0")
        k("s_lshl_b32 s33, s29, 6")
        k("s_lshl_b32 s34, s30, 1")
        k("s_add_u32 s33, s33, s34")
        k("s_mul_i32 s33, s33, 1026")
        for pi in range(2):
            for cc in range(4):
                off = (64*cc + pi)*1026
                k(f"s_add_u32 s34, s33, {off}")
                k(f"buffer_load_dword v{WL+4*pi+cc}, v220, s[12:15], s34 offen {NT_W}")
                k(f"buffer_load_dword v{WL+8+4*pi+cc}, v220, s[16:19], s34 offen {NT_W}")
        WX = 200
        k("v_and_b32 v200, 3, v1")
        k("v_lshlrev_b32 v200, 6, v200")
        k("v_bfe_u32 v201, v1, 2, 1")
        k("v_add_u32 v200, v200, v201")
        k("v_mul_u32_u24 v200, 1026, v200")
        k("v_add_u32 v200, 1024, v200")
        k("v_and_b32 v226, 3, v1")
        k("v_lshlrev_b32 v226, 6, v226")
        k("v_add_u32 v226, v226, v201")
        k("s_lshl_b32 s49, s29, 6")
        k("s_lshl_b32 s50, s30, 1")
        k("s_add_u32 s49, s49, s50")
        k("v_add_u32 v226, s49, v226")
        k("v_sub_u32 v226, 2048, v226")
        k("v_and_b32 v226, 2047, v226")
        k("v_mul_u32_u24 v226, 1026, v226")
        k("v_subrev_u32 v227, 1024, v200")
        k("v_cmp_gt_u32 vcc, 8, v0")
        k("s_and_saveexec_b64 s[36:37], vcc")
        k("s_cbranch_execz L_p1_nox")
        k("buffer_load_ushort v202, v200, s[12:15], s33 offen")
        k("buffer_load_ushort v203, v200, s[16:19], s33 offen")
        k("buffer_load_ushort v228, v227, s[12:15], s33 offen")
        k("buffer_load_ushort v229, v227, s[16:19], s33 offen")
        k("buffer_load_ushort v230, v226, s[12:15], 0 offen")
        k("buffer_load_ushort v231, v226, s[16:19], 0 offen")
        k("buffer_load_ushort v232, v226, s[12:15], 0 offen offset:1024")
        k("buffer_load_ushort v233, v226, s[16:19], 0 offen offset:1024")
        k("L_p1_nox:")
        k("s_mov_b64 exec, -1")
    if WEARLY: w_loads()
    WL = 20
    Mr, Mi, TW = 36, 52, 68
    XF, DR, DI, OP, T = 100, 132, 148, 164, 180
    k("v_and_b32 v2, 31, v1")
    k("v_cvt_f32_u32 v2, v2")
    k("v_lshrrev_b32 v3, 5, v1")
    k("v_lshlrev_b32 v3, 2, v3")
    k("v_cvt_f32_u32 v3, v3")
    k(f"v_mul_f32 v204, {f32(1/32)}, v2")
    k("v_mul_f32 v205, v204, v3")
    gen_matrix(k, Mr, Mi, 204, 205, T)
    k(f"v_mul_f32 v204, {f32(1/1024)}, v2")
    k("v_mul_f32 v205, v204, v3")
    gen_twiddle(k, TW, 204, 205, T)
    STG = 16384; WST = STG + 257*64 + 64
    k("s_lshr_b32 s44, s2, 2")
    k("s_and_b32 s44, s44, 3")
    k("s_mov_b32 s45, 0x05040100")
    k("s_mov_b32 s46, 0x07060302")
    k("s_lshl_b32 s47, s2, 6")
    k("s_lshl_b32 s48, s28, 2")
    k(f"s_add_u32 s48, s48, {STG}")
    B1, B2, AWJ, AX, ARD, AGL, AT1, AT2, AWR, AWG = 206, 207, 208, 209, 216, 217, 218, 219, 221, 222
    k("v_and_b32 v2, 31, v1")
    k("v_lshrrev_b32 v3, 5, v1")
    k("v_and_b32 v204, 1, v2")
    k("v_lshrrev_b32 v205, 1, v2")
    k(f"v_xor_b32 v{B1}, s44, v204")
    k(f"v_lshlrev_b32 v{B1}, 4, v{B1}")
    k(f"v_lshl_add_u32 v{B1}, v205, 6, v{B1}")
    k(f"v_lshl_add_u32 v{B1}, v3, 12, v{B1}")
    k(f"v_add_u32 v{B1}, s48, v{B1}")
    k("v_add_u32 v205, 1, v2")
    k("v_lshrrev_b32 v205, 1, v205")
    k("v_add_u32 v204, 2, v204")
    k(f"v_xor_b32 v{B2}, s44, v204")
    k(f"v_lshlrev_b32 v{B2}, 4, v{B2}")
    k("v_lshlrev_b32 v205, 6, v205")
    k(f"v_sub_u32 v{B2}, v{B2}, v205")
    k("v_lshlrev_b32 v205, 12, v3")
    k(f"v_sub_u32 v{B2}, v{B2}, v205")
    k(f"v_add_u32 v{B2}, s48, v{B2}")
    k("s_lshl_b32 s49, s28, 12")
    k(f"s_add_u32 s49, s49, {WST}")
    k("v_bfe_u32 v204, v1, 1, 2")
    k("v_xor_b32 v204, s44, v204")
    k("v_lshlrev_b32 v204, 4, v204")
    k(f"v_lshl_add_u32 v{AWJ}, v1, 6, v204")
    k(f"v_add_u32 v{AWJ}, s49, v{AWJ}")
    k("v_lshrrev_b32 v204, 2, v1")
    k("v_and_b32 v205, 3, v1")
    k(f"v_bfe_u32 v{AT1}, v204, 1, 2")
    k(f"v_xor_b32 v{AT1}, v{AT1}, v205")
    k(f"v_lshlrev_b32 v{AT1}, 4, v{AT1}")
    k(f"v_lshl_add_u32 v{AWR}, v204, 6, v{AT1}")
    k(f"v_add_u32 v{AWR}, s49, v{AWR}")
    k("s_lshl_b32 s49, s28, 6")
    k("v_add_u32 v204, s49, v204")
    k("v_lshlrev_b32 v204, 14, v204")
    k(f"v_lshl_add_u32 v{AWG}, v205, 4, v204")
    k("v_bfe_u32 v204, v1, 2, 1")
    k("v_xor_b32 v204, s44, v204")
    k("v_lshlrev_b32 v204, 4, v204")
    k("v_and_b32 v205, 3, v1")
    k(f"v_lshl_add_u32 v{AX}, v205, 2, v204")
    APW = 223
    k(f"v_add_u32 v{APW}, {WST}, v{AX}")
    k(f"v_lshlrev_b32 v{ARD}, 4, v0")
    k(f"v_add_u32 v{ARD}, {STG}, v{ARD}")
    k("v_lshrrev_b32 v204, 2, v0")
    k("v_lshlrev_b32 v204, 14, v204")
    k("v_and_b32 v205, 3, v0")
    k(f"v_lshl_add_u32 v{AGL}, v205, 4, v204")
    k("s_xor_b32 s49, s44, 2")
    k("s_lshl_b32 s49, s49, 4")
    k("s_add_u32 s49, s49, s48")
    k("s_lshl_b32 s50, s44, 4")
    k("s_add_u32 s50, s50, s48")
    k(f"v_mov_b32 v{AT1}, s49")
    k(f"v_mov_b32 v{AT2}, s50")
    k("s_lshl_b32 s36, s28, 12")
    k("v_lshlrev_b32 v2, 5, v1")
    k("v_add_u32 v2, s36, v2")
    k("v_and_b32 v3, 31, v1")
    k("v_lshlrev_b32 v3, 2, v3")
    k("v_lshrrev_b32 v204, 5, v1")
    k("v_lshlrev_b32 v204, 9, v204")
    k("v_add3_u32 v3, v3, v204, s36")
    k("s_mov_b32 s35, 0xffff0000")
    mark(k, 1)
    k("s_waitcnt vmcnt(16)" if WEARLY else "s_waitcnt vmcnt(0)")
    mark(k, 2)
    if not WEARLY: w_loads()
    for i in range(16):
        for row in range(2):
            src = XL + 8*row + (i >> 1)
            if i % 2 == 0: k(f"v_lshlrev_b32 v{XF+2*i+row}, 16, v{src}")
            else:          k(f"v_and_b32 v{XF+2*i+row}, s35, v{src}")
    ln_stats_xrow(k, XF, T, 38, 40, 42)
    k(f"v_mov_b32 v{T+8}, s40"); k(f"v_mov_b32 v{T+9}, s41")
    k(f"v_mov_b32 v{T+10}, s38"); k(f"v_mov_b32 v{T+11}, s39")
    for i in range(16):
        d = T + 2*(i % 4)
        k(f"v_pk_fma_f32 {vr(d,2)}, {vr(XF+2*i,2)}, {vr(T+8,2)}, {vr(T+10,2)} neg_lo:[0,0,1] neg_hi:[0,0,1]")
        k(f"{CVT} v{OP+i}, v{d}, v{d+1}")
    k(f"ds_write_b128 v2, {vr(OP,4)}")
    k(f"ds_write_b128 v2, {vr(OP+4,4)} offset:16")
    k(f"ds_write_b128 v2, {vr(OP+8,4)} offset:2048")
    k(f"ds_write_b128 v2, {vr(OP+12,4)} offset:2064")
    k("s_waitcnt lgkmcnt(0)")
    for i, (r, c) in enumerate(SEQ):
        k(f"ds_read_b32 v{OP+i}, v3 offset:{(8*r+c)*128}")
    mark(k, 3)
    k("s_waitcnt lgkmcnt(0)")
    stage(k, 'A', DR, DI, OP, Mr, Mi)
    def w_job():
        srd(k, 56, 26, 257*16384, WB_OFF)
        k("s_waitcnt vmcnt(4)" if WJOB == 2 else "s_waitcnt vmcnt(0)")
        WO = XF
        for e in range(2):
            for pi in range(2):
                for cc in range(4):
                    k(f"v_perm_b32 v{WO+4*(2*e+pi)+cc}, v{WL+8+4*pi+cc}, v{WL+4*pi+cc}, s{45+e}")
        for sl in range(4):
            if sl: k(f"v_xor_b32 v204, {16*sl}, v{AWJ}")
            k(f"ds_write_b128 v{204 if sl else AWJ}, {vr(WO+4*sl,4)}")
        k("s_add_u32 s49, s47, 0x400000")
        k("v_cmp_gt_u32 vcc, 8, v0")
        k("s_and_saveexec_b64 s[36:37], vcc")
        k("s_cbranch_execz L_p1_nox2")
        for r_ in (202, 203, 228, 229, 230, 231, 232, 233): k(f"v_lshlrev_b32 v{r_}, 16, v{r_}")
        k("v_add_f32 v228, v228, v230")
        k("v_sub_f32 v229, v229, v231")
        k("v_add_f32 v202, v202, v232")
        k("v_sub_f32 v203, v203, v233")
        k("v_add_f32 v230, v228, v202")
        k("v_add_f32 v231, v229, v203")
        k("v_sub_f32 v232, v228, v202")
        k("v_sub_f32 v233, v229, v203")
        for r_ in (230, 231, 232, 233): k(f"v_mul_f32 v{r_}, 0x3e800000, v{r_}")
        k(f"{CVT} v202, v230, v231")
        k(f"{CVT} v203, v232, v233")
        k(f"ds_write_b32 v{APW}, v202")
        k(f"buffer_store_dword v203, v{AX}, s[56:59], s49 offen {ST_P1}")
        k("L_p1_nox2:")
        k("s_mov_b64 exec, -1")
        k("s_waitcnt lgkmcnt(0)")
        for j in range(4): k(f"ds_read_b128 {vr(WO+16+4*j,4)}, v{AWR} offset:{1024*j}")
        k("s_mov_b32 s49, s47")
        for j in range(4):
            k(f"s_waitcnt lgkmcnt({3-j})")
            k(f"buffer_store_dwordx4 {vr(WO+16+4*j,4)}, v{AWG}, s[56:59], s49 offen {ST_P1}")
            if j < 3: k(f"s_add_u32 s49, s49, {16*16384}")
    if WJOB == 0: w_job()
    cmul_pack(k, DR, DI, TW, OP, T)
    stage(k, 'B', DR, DI, OP, Mr, Mi)
    mark(k, 4)
    for i, (r, c) in enumerate(SEQ):
        if r < 2: k(f"{CVT} v{OP+i}, v{DR+i}, v{DI+i}")
        else:     k(f"{CVT} v{OP+i}, v{DI+i}, v{DR+i}")
        if r < 2: k(f"ds_write_b32 v{B1}, v{OP+i} offset:{(8*r+c)*1024}")
        else:     k(f"ds_write_b32 v{B2}, v{OP+i} offset:{(32-8*r-c)*1024}")
    k(f"v_sub_f32 v{T+2}, v{DR}, v{DI+8}")
    k(f"v_add_f32 v{T+3}, v{DI}, v{DR+8}")
    k(f"v_sub_f32 v{T+4}, v{DI}, v{DR+8}")
    k(f"v_add_f32 v{T+5}, v{DR}, v{DI+8}")
    k(f"{CVT} v{T}, v{T+4}, v{T+5}")
    k(f"{CVT} v{T+1}, v{T+2}, v{T+3}")
    k("s_mov_b64 exec, 1")
    k(f"ds_write_b32 v{AT1}, v{T}")
    k(f"ds_write_b32 v{AT2}, v{T+1}")
    k("s_mov_b64 exec, -1")
    if WJOB == 1: w_job()
    k("s_waitcnt lgkmcnt(0)")
    k("s_barrier")
    RO = XF
    for j in range(4):
        k(f"ds_read_b128 {vr(RO+4*j,4)}, v{ARD} offset:{4096*j}")
    for j in range(4):
        k(f"s_waitcnt lgkmcnt({3-j})")
        k(f"buffer_store_dwordx4 {vr(RO+4*j,4)}, v{AGL}, s[20:23], s47 offen {ST_P1}")
        if j < 3: k("s_add_u32 s47, s47, 0x100000")
    if WJOB == 2:
        k("s_sub_u32 s47, s47, 0x300000")
        w_job()
    stamp_end(k, 'p1')
    k("L_p1_end:")
    k("s_endpgm")
    k("L_p1_endc:")
    return k, 236, WST + 16384

def pf_wave(k, tag, first_line):
    if not W1PF: return
    k("s_cmp_eq_u32 s28, 4")
    k(f"s_cbranch_scc0 L_{tag}_nopf")
    k("s_waitcnt lgkmcnt(0)")
    srd(k, 16, 24, S*F*2)
    k(f"s_mul_i32 s33, s2, {W1PF*128}")
    k(f"s_add_u32 s33, s33, {first_line*128}")
    k("v_lshlrev_b32 v3, 7, v1")
    for i in range(W1PF//64):
        k("buffer_load_dword v4, v3, s[16:19], s33 offen")
        k("s_add_u32 s33, s33, 8192")
    k("s_endpgm")
    k(f"L_{tag}_nopf:")

def gen_p2():
    k = Kern('p2_kernel')
    k("s_cmp_ge_u32 s2, 256")
    k("s_cbranch_scc1 L_p2_end")
    stamp_begin(k)
    k("s_load_dwordx2 s[26:27], s[0:1], 80")
    k("s_load_dwordx2 s[24:25], s[0:1], 32")
    k("v_and_b32 v1, 63, v0")
    k("v_lshrrev_b32 v2, 6, v0")
    k("v_readfirstlane_b32 s28, v2")
    pf_wave(k, 'p2', W1PF0)
    k("v_lshlrev_b32 v2, 4, v1")
    k("s_lshr_b32 s29, s28, 1")
    k("s_and_b32 s30, s28, 1")
    k("s_lshl_b32 s31, s2, 14")
    k("s_lshl_b32 s32, s28, 12")
    k("s_add_u32 s31, s31, s32")
    k("s_waitcnt lgkmcnt(0)")
    srd(k, 8, 26, 257*16384, ZD_OFF)
    srd(k, 20, 26, 257*16384, WB_OFF)
    srd(k, 12, 26, 256*VB_BLK, VB_OFF)
    for i in range(4):
        k(f"s_add_u32 m0, s32, {1024*i}")
        k(f"s_add_u32 s33, s31, {1024*i}")
        k(f"buffer_load_dwordx4 v2, s[8:11], s33 offen lds")
    Z1, Z2 = 4, 20
    M1r, M1i, MFr, MFi, MIr, MIi = 36, 52, 68, 84, 100, 116
    T1, T2 = 132, 164
    DR, DI, T = 196, 212, 228
    A, B, J, H4, PI = 244, 245, 246, 247, 248
    k(f"v_and_b32 v{J}, 31, v1")
    k(f"v_cvt_f32_u32 v{J}, v{J}")
    k(f"v_lshrrev_b32 v{H4}, 5, v1")
    k(f"v_lshlrev_b32 v{H4}, 2, v{H4}")
    k(f"v_cvt_f32_u32 v{H4}, v{H4}")
    k(f"v_mov_b32 v{PI}, s30")
    k(f"v_cvt_f32_u32 v{PI}, v{PI}")
    k(f"v_mul_f32 v{A}, {f32(1/32)}, v{J}")
    k(f"v_mul_f32 v{B}, v{A}, v{H4}")
    gen_matrix(k, MFr, MFi, A, B, T)
    k(f"v_fma_f32 v{A}, v{J}, 2.0, v{PI}")
    k(f"v_mul_f32 v{A}, {f32(1/64)}, v{A}")
    k(f"v_mul_f32 v{B}, v{A}, v{H4}")
    gen_matrix(k, M1r, M1i, A, B, T)
    k("s_lshl_b32 s33, s30, 4")
    k(f"v_and_b32 v{T}, 31, v1")
    k(f"v_xor_b32 v{T}, s33, v{T}")
    k(f"v_cvt_f32_u32 v{T}, v{T}")
    k(f"v_mul_f32 v{A}, {f32(1/32)}, v{T}")
    k(f"v_mul_f32 v{B}, v{A}, v{H4}")
    k(f"v_mul_f32 v{T}, {f32(1/64)}, v{T}")
    k(f"v_fma_f32 v{B}, v{T}, v{PI}, v{B}")
    gen_matrix(k, MIr, MIi, A, B, T)
    k(f"v_fma_f32 v{A}, v{J}, 2.0, v{PI}")
    k(f"v_mul_f32 v{A}, {f32(1/2048)}, v{A}")
    k(f"v_mov_b32 v{T}, {f32(0.125)}")
    k(f"v_mul_f32 v{T+1}, {f32(-0.25)}, v{PI}")
    k(f"v_add_f32 v{T}, v{T}, v{T+1}")
    k(f"v_fma_f32 v{B}, v{A}, v{H4}, v{T}")
    gen_twiddle(k, T1, A, B, T)
    k(f"v_mul_f32 v{A}, {f32(1/1024)}, v{J}")
    k(f"v_mul_f32 v{B}, v{A}, v{H4}")
    k(f"v_mul_f32 v{T}, {f32(1/2048)}, v{J}")
    k(f"v_fma_f32 v{B}, v{T}, v{PI}, v{B}")
    gen_twiddle(k, T2, A, B, T)
    AZ1, AZ2, AW = 249, 250, 251
    k(f"v_bfe_u32 v{T}, v1, 2, 2")
    k(f"v_lshlrev_b32 v{T+1}, 6, v1")
    k(f"v_xor_b32 v{AZ1}, s29, v{T}")
    k(f"v_lshl_add_u32 v{AZ1}, v{AZ1}, 4, v{T+1}")
    k(f"v_xor_b32 v{AZ2}, 32, v{AZ1}")
    k("s_lshl_b32 s33, s29, 1")
    k("s_add_u32 s33, s33, s30")
    k(f"v_xor_b32 v{AW}, s33, v{T}")
    k(f"v_lshl_add_u32 v{AW}, v{AW}, 4, v{T+1}")
    k(f"v_add_u32 v{AW}, 16384, v{AW}")
    k("s_mul_i32 s34, s30, 0x80008000")
    k("s_mov_b32 s35, 0xffff0000")
    mark(k, 1)
    k("s_waitcnt vmcnt(0)")
    for i in range(4):
        k(f"s_add_u32 m0, s32, {16384+1024*i}")
        k(f"s_add_u32 s33, s31, {1024*i}")
        k(f"buffer_load_dwordx4 v2, s[20:23], s33 offen lds")
    k("s_barrier")
    mark(k, 2)
    for r in range(4):
        k(f"ds_read_b128 {vr(Z1+4*r,4)}, v{AZ1} offset:{4096*r}")
        k(f"ds_read_b128 {vr(Z2+4*r,4)}, v{AZ2} offset:{4096*r}")
    k("s_waitcnt lgkmcnt(0)")
    for i in range(16):
        k(f"v_xor_b32 v{Z2+i}, s34, v{Z2+i}")
    stage(k, 'A', DR, DI, Z1, M1r, M1i, first=True)
    stage(k, 'A', DR, DI, Z2, M1r, M1i, first=False)
    OP = Z1
    cmul_pack(k, DR, DI, T1, OP, T)
    k("s_waitcnt vmcnt(0)")
    k("s_barrier")
    for r in range(4):
        k(f"ds_read_b128 {vr(Z2+4*r,4)}, v{AW} offset:{4096*r}")
    stage(k, 'B', DR, DI, OP, MFr, MFi)
    WP = M1r
    k("s_waitcnt lgkmcnt(0)")
    for i in range(16):
        k(f"v_lshlrev_b32 v{WP+2*i}, 16, v{Z2+i}")
        k(f"v_and_b32 v{WP+2*i+1}, s35, v{Z2+i}")
    k("s_or_b32 s46, s2, s29")
    k("s_cmp_eq_u32 s46, 0")
    k("s_cbranch_scc1 L_p2_spec")
    cmul_pack(k, DR, DI, WP, OP, T, conj=True)
    k("L_p2_specd:")
    stage(k, 'A', DR, DI, OP, MFr, MFi)
    cmul_pack(k, DR, DI, T2, OP, T)
    stage(k, 'B', DR, DI, OP, MIr, MIi)
    mark(k, 4)
    XCH, STG = 32768, 49152
    AX = 252
    k("s_lshl_b32 s36, s28, 12")
    k(f"s_add_u32 s36, s36, {XCH}")
    k(f"v_lshl_add_u32 v{AX}, v1, 4, s36")
    k(f"ds_write_b128 v{AX}, {vr(DR+8,4)}")
    k(f"ds_write_b128 v{AX}, {vr(DR+12,4)} offset:1024")
    k(f"ds_write_b128 v{AX}, {vr(DI+8,4)} offset:2048")
    k(f"ds_write_b128 v{AX}, {vr(DI+12,4)} offset:3072")
    k(f"v_xor_b32 v{AX}, 4096, v{AX}")
    k("s_cmp_eq_u32 s30, 0")
    k(f"s_cselect_b32 s40, {f32(1.0)}, {f32(-1.0)}")
    k("s_mov_b32 s42, s40")
    k("s_waitcnt lgkmcnt(0)")
    k("s_barrier")
    OR_, OI = 36, 44
    k(f"ds_read_b128 {vr(OR_,4)}, v{AX}")
    k(f"ds_read_b128 {vr(OR_+4,4)}, v{AX} offset:1024")
    k(f"ds_read_b128 {vr(OI,4)}, v{AX} offset:2048")
    k(f"ds_read_b128 {vr(OI+4,4)}, v{AX} offset:3072")
    k(f"v_bfe_u32 v{T}, v1, 1, 2")
    k(f"v_xor_b32 v{T+1}, s29, v{T}")
    k(f"v_xor_b32 v{T+2}, 2, v{T+1}")
    k("s_lshl_b32 s43, s30, 13")
    k(f"s_add_u32 s43, s43, {STG}")
    k(f"v_lshl_add_u32 v{T+3}, v1, 6, s43")
    k(f"v_lshl_add_u32 v253, v{T+1}, 4, v{T+3}")
    k(f"v_lshl_add_u32 v254, v{T+2}, 4, v{T+3}")
    k("s_waitcnt lgkmcnt(0)")
    UA, UB = 52, 60
    Ur, Ui, Er, Ei, Ar, Ai, Br, Bi = 68, 70, 72, 74, 76, 78, 80, 82
    bc = "op_sel_hi:[1,0,1]"
    k("s_cmp_eq_u32 s46, 0")
    k("s_cbranch_scc1 L_p2_spost")
    for j in range(0, 8, 2):
        o = 16*((j//2) % 2)
        ur, ui, er, ei, a_r, a_i, b_r, b_i = [x+o for x in (Ur, Ui, Er, Ei, Ar, Ai, Br, Bi)]
        k(f"v_pk_add_f32 {vr(ur,2)}, {vr(DR+j,2)}, {vr(OR_+j,2)}")
        k(f"v_pk_add_f32 {vr(ui,2)}, {vr(DI+j,2)}, {vr(OI+j,2)}")
        k(f"v_pk_add_f32 {vr(er,2)}, {vr(DR+j,2)}, {vr(OR_+j,2)} neg_lo:[0,1] neg_hi:[0,1]")
        k(f"v_pk_add_f32 {vr(ei,2)}, {vr(DI+j,2)}, {vr(OI+j,2)} neg_lo:[0,1] neg_hi:[0,1]")
        k(f"v_pk_fma_f32 {vr(a_r,2)}, {vr(ei,2)}, s[42:43], {vr(ur,2)} {bc}")
        k(f"v_pk_fma_f32 {vr(b_r,2)}, {vr(ei,2)}, s[42:43], {vr(ur,2)} {bc} neg_lo:[1,0,0] neg_hi:[1,0,0]")
        k(f"v_pk_fma_f32 {vr(a_i,2)}, {vr(er,2)}, s[40:41], {vr(ui,2)} {bc} neg_lo:[1,0,0] neg_hi:[1,0,0]")
        k(f"v_pk_fma_f32 {vr(b_i,2)}, {vr(er,2)}, s[40:41], {vr(ui,2)} {bc} neg_lo:[1,0,1] neg_hi:[1,0,1]")
        k(f"{CVT} v{UA+j}, v{a_r}, v{a_i}")
        k(f"{CVT} v{UA+j+1}, v{a_r+1}, v{a_i+1}")
        k(f"{CVT} v{UB+j}, v{b_r}, v{b_i}")
        k(f"{CVT} v{UB+j+1}, v{b_r+1}, v{b_i+1}")
    k("s_branch L_p2_postd")
    k("L_p2_spost:")
    for j in range(0, 8, 2):
        o = 16*((j//2) % 2)
        ur, ui, er, ei, a_r, a_i, b_r, b_i = [x+o for x in (Ur, Ui, Er, Ei, Ar, Ai, Br, Bi)]
        k(f"v_pk_add_f32 {vr(ur,2)}, {vr(DR+j,2)}, {vr(OR_+j,2)}")
        k(f"v_pk_add_f32 {vr(ui,2)}, {vr(DI+j,2)}, {vr(OI+j,2)}")
        k(f"v_pk_add_f32 {vr(er,2)}, {vr(DR+j,2)}, {vr(OR_+j,2)} neg_lo:[0,1] neg_hi:[0,1]")
        k(f"v_pk_add_f32 {vr(ei,2)}, {vr(DI+j,2)}, {vr(OI+j,2)} neg_lo:[0,1] neg_hi:[0,1]")
        k(f"v_pk_mul_f32 {vr(a_i,2)}, {vr(er,2)}, s[40:41] op_sel_hi:[1,0] neg_lo:[1,0] neg_hi:[1,0]")
        k(f"v_pk_mul_f32 {vr(b_i,2)}, {vr(ei,2)}, s[40:41] op_sel_hi:[1,0]")
        k(f"{CVT} v{UA+j}, v{ur}, v{a_i}")
        k(f"{CVT} v{UA+j+1}, v{ur+1}, v{a_i+1}")
        k(f"{CVT} v{UB+j}, -v{ui}, v{b_i}")
        k(f"{CVT} v{UB+j+1}, -v{ui+1}, v{b_i+1}")
    k("L_p2_postd:")
    for rl in range(2):
        k(f"ds_write_b128 v253, {vr(UA+4*rl,4)} offset:{4096*rl}")
        k(f"ds_write_b128 v254, {vr(UB+4*rl,4)} offset:{4096*rl}")
    k(f"v_and_b32 v{T}, 3, v0")
    k(f"v_bfe_u32 v{T+1}, v0, 3, 2")
    k(f"v_xor_b32 v{T+1}, v{T}, v{T+1}")
    k(f"v_lshrrev_b32 v{T+2}, 2, v0")
    k(f"v_lshlrev_b32 v{T+3}, 6, v{T+2}")
    k(f"v_lshl_add_u32 v{T+3}, v{T+1}, 4, v{T+3}")
    k(f"v_add_u32 v{T+3}, {STG}, v{T+3}")
    k(f"v_mul_u32_u24 v{T+2}, {VB_BLK}, v{T+2}")
    k("s_and_b32 s44, s2, 2")
    k(f"v_xor_b32 v{T}, s44, v{T}")
    k(f"v_lshl_add_u32 v{T+2}, v{T}, 4, v{T+2}")
    k("s_lshl_b32 s45, s2, 6")
    k("s_waitcnt lgkmcnt(0)")
    k("s_barrier")
    for j in range(4):
        k(f"ds_read_b128 {vr(4+4*j,4)}, v{T+3} offset:{4096*j}")
    k("s_waitcnt lgkmcnt(0)")
    for j in range(4):
        k(f"buffer_store_dwordx4 {vr(4+4*j,4)}, v{T+2}, s[12:15], s45 offen {ST_P2}")
        if j < 3: k(f"s_add_u32 s45, s45, {64*VB_BLK}")
    stamp_end(k, 'p2')
    k("L_p2_end:")
    k("s_endpgm")
    k("L_p2_spec:")
    QP = T1
    XB_ = Z2
    k(f"v_bfe_u32 v{T}, v1, 2, 2")
    k(f"v_xor_b32 v{T}, s30, v{T}")
    k(f"v_lshlrev_b32 v{T}, 4, v{T}")
    k(f"v_lshl_add_u32 v{T}, v1, 6, v{T}")
    k("s_mov_b32 s47, 0x400000")
    for r in range(4):
        k(f"buffer_load_dwordx4 {vr(XB_+4*r,4)}, v{T}, s[20:23], s47 offen")
        if r < 3: k("s_add_u32 s47, s47, 4096")
    k("s_lshl_b32 s47, s30, 13")
    k(f"v_and_b32 v{T+1}, 31, v1")
    k(f"v_lshrrev_b32 v{T+2}, 5, v1")
    k(f"v_lshlrev_b32 v{T+3}, 2, v{T+1}")
    k(f"v_lshl_add_u32 v{T+3}, v{T+2}, 10, v{T+3}")
    k(f"v_add_u32 v{T+3}, s47, v{T+3}")
    for i, (r, c) in enumerate(SEQ):
        k(f"ds_write_b32 v{T+3}, v{DR+i} offset:{(8*r+c)*256}")
        k(f"ds_write_b32 v{T+3}, v{DI+i} offset:{(8*r+c)*256+128}")
    k(f"v_add_u32 v{T+4}, s30, v{T+1}")
    k(f"v_sub_u32 v{T+5}, 32, v{T+4}")
    k(f"v_lshlrev_b32 v{T+5}, 2, v{T+5}")
    k(f"v_cmp_eq_u32 vcc, 0, v{T+4}")
    k(f"v_mov_b32 v{T+6}, 256")
    k(f"v_cndmask_b32 v{T+5}, v{T+5}, v{T+6}, vcc")
    k(f"v_lshlrev_b32 v{T+6}, 10, v{T+2}")
    k(f"v_sub_u32 v{T+5}, v{T+5}, v{T+6}")
    k(f"v_add_u32 v{T+5}, 1024, v{T+5}")
    k(f"v_add_u32 v{T+5}, s47, v{T+5}")
    k(f"v_add_u32 v{T+6}, {27*256}, v{T+5}")
    k(f"v_or_b32 v{T+7}, v{T+4}, v{T+2}")
    k(f"v_cmp_eq_u32 vcc, 0, v{T+7}")
    k(f"v_mov_b32 v{T+7}, s47")
    k(f"v_cndmask_b32 v{T+6}, v{T+6}, v{T+7}, vcc")
    k("s_waitcnt vmcnt(0)")
    for i in range(16):
        k(f"v_lshlrev_b32 v{QP+2*i}, 16, v{XB_+i}")
        k(f"v_and_b32 v{QP+2*i+1}, s35, v{XB_+i}")
    k("s_waitcnt lgkmcnt(0)")
    for half in range(2):
        for jj in range(8):
            i = 8*half + jj; r, c = SEQ[i]
            if i == 0:
                k(f"ds_read_b32 v{XB_+2*jj}, v{T+6}")
                k(f"ds_read_b32 v{XB_+2*jj+1}, v{T+6} offset:128")
            else:
                k(f"ds_read_b32 v{XB_+2*jj}, v{T+5} offset:{(27-8*r-c)*256}")
                k(f"ds_read_b32 v{XB_+2*jj+1}, v{T+5} offset:{(27-8*r-c)*256+128}")
        k("s_waitcnt lgkmcnt(0)")
        for jj in range(8):
            j = 8*half + jj; o = T + 8 + 2*(jj % 4); jp = j & ~1; x = j & 1
            k(f"v_pk_mul_f32 {vr(o,2)}, {vr(WP+2*j,2)}, {vr(DR+jp,2)} op_sel:[0,{x}] op_sel_hi:[1,{x}]")
            k(f"v_pk_fma_f32 {vr(o,2)}, {vr(WP+2*j,2)}, {vr(DI+jp,2)}, {vr(o,2)} op_sel:[1,{x},0] op_sel_hi:[0,{x},1] neg_lo:[1,0,0]")
            k(f"v_pk_fma_f32 {vr(o,2)}, {vr(QP+2*j,2)}, {vr(XB_+2*jj,2)}, {vr(o,2)} op_sel:[0,0,0] op_sel_hi:[1,0,1]")
            k(f"v_pk_fma_f32 {vr(o,2)}, {vr(QP+2*j,2)}, {vr(XB_+2*jj,2)}, {vr(o,2)} op_sel:[1,1,0] op_sel_hi:[0,1,1] neg_hi:[1,0,0]")
            k(f"{CVT} v{OP+j}, v{o}, -v{o+1}")
    k("s_branch L_p2_specd")
    return k, 256, 65536

def ln_stats_rows(k, R0, R1, t, vRM, sTmp, twice=False):
    for (R, o) in ((R0, 0), (R1, 4)):
        a, b = t+o, t+o+2
        k(f"v_pk_add_f32 {vr(a,2)}, {vr(R,2)}, {vr(R+2,2)}")
        k(f"v_pk_add_f32 {vr(b,2)}, {vr(R+4,2)}, {vr(R+6,2)}")
    for i in range(4, 8):
        for (R, o) in ((R0, 0), (R1, 4)):
            a = t+o+2*(i % 2)
            k(f"v_pk_add_f32 {vr(a,2)}, {vr(a,2)}, {vr(R+2*i,2)}")
    for o in (0, 4):
        k(f"v_pk_add_f32 {vr(t+o,2)}, {vr(t+o,2)}, {vr(t+o+2,2)}")
    k(f"v_add_f32 v{t}, v{t}, v{t+1}")
    k(f"v_add_f32 v{t+1}, v{t+4}, v{t+5}")
    wave_reduce2(k, t, t+1)
    ln_mean(k, t, sTmp)
    acc = {0: t, 1: t+2}; tmp = [t+4, t+6, t+8, t+10]
    n = 0
    for i in range(8):
        for row, R in ((0, R0), (1, R1)):
            d = tmp[n % 4]; n += 1
            sel = "op_sel_hi:[1,0]" if row == 0 else "op_sel:[0,1] op_sel_hi:[1,1]"
            k(f"v_pk_add_f32 {vr(d,2)}, {vr(R+2*i,2)}, {sr(sTmp,2)} {sel} neg_lo:[0,1] neg_hi:[0,1]")
            a = acc[row]
            if i == 0: k(f"v_pk_mul_f32 {vr(a,2)}, {vr(d,2)}, {vr(d,2)}")
            else:      k(f"v_pk_fma_f32 {vr(a,2)}, {vr(d,2)}, {vr(d,2)}, {vr(a,2)}")
    k(f"v_add_f32 v{t}, v{t}, v{t+1}")
    k(f"v_add_f32 v{t+1}, v{t+2}, v{t+3}")
    wave_reduce2(k, t, t+1)
    ln_scalars(k, t, twice)
    k(f"v_readlane_b32 s{sTmp}, v{t}, 63")
    k(f"v_readlane_b32 s{sTmp+1}, v{t+1}, 63")
    k(f"v_readlane_b32 s{sTmp+2}, v{t+12}, 63")
    k(f"v_readlane_b32 s{sTmp+3}, v{t+13}, 63")
    for i in range(4):
        k(f"v_mov_b32 v{vRM+i}, s{sTmp+i}")

def ln_apply_rows(k, R0, R1, vRM, dst0, dst1):
    for i in range(8):
        k(f"v_pk_fma_f32 {vr(dst0+2*i,2)}, {vr(R0+2*i,2)}, {vr(vRM,2)}, {vr(vRM+2,2)} op_sel_hi:[1,0,0] neg_lo:[0,0,1] neg_hi:[0,0,1]")
        k(f"v_pk_fma_f32 {vr(dst1+2*i,2)}, {vr(R1+2*i,2)}, {vr(vRM,2)}, {vr(vRM+2,2)} op_sel:[0,1,1] op_sel_hi:[1,1,1] neg_lo:[0,0,1] neg_hi:[0,0,1]")

def gen_p3():
    k = Kern('p3_kernel')
    k("s_cmp_ge_u32 s2, 256")
    k("s_cbranch_scc1 L_p3_end")
    stamp_begin(k)
    k("s_load_dwordx2 s[4:5], s[0:1], 0")
    k("s_load_dwordx2 s[26:27], s[0:1], 80")
    k("s_load_dwordx2 s[24:25], s[0:1], 32")
    k("v_and_b32 v1, 63, v0")
    k("v_lshrrev_b32 v2, 6, v0")
    k("v_readfirstlane_b32 s28, v2")
    pf_wave(k, 'p3', W1PF0 + 256*W1PF)
    k("s_lshr_b32 s29, s2, 5")
    k("s_lshl_b32 s29, s29, 2")
    k("s_and_b32 s30, s2, 31")
    k("s_add_u32 s31, s29, s28")
    k("s_lshl_b32 s31, s31, 5")
    k("s_add_u32 s31, s31, s30")
    k("s_lshl_b32 s31, s31, 11")
    k("s_add_u32 s32, s31, 0x200000")
    k(f"s_mul_i32 s33, s2, {VB_BLK}")
    k("s_lshl_b32 s34, s28, 12")
    k("s_add_u32 s33, s33, s34")
    k("v_lshlrev_b32 v2, 4, v1")
    k("s_waitcnt lgkmcnt(0)")
    srd(k, 8, 4, S*D*2)
    srd(k, 12, 26, 256*VB_BLK, VB_OFF)
    srd(k, 16, 26, S*D*2, H_OFF)
    srd(k, 20, 26, S*D*2, HN_OFF)
    for i in range(4):
        k(f"s_add_u32 m0, s34, {1024*i}")
        k(f"buffer_load_dwordx4 v2, s[12:15], s33 offen lds")
        k("s_add_u32 s33, s33, 1024")
    XL = 4
    OP, Mr, Mi, TW, DR, DI, T = 20, 36, 52, 68, 100, 116, 132
    R0, R1, Y0, Y1 = 148, 164, 180, 196
    k("v_and_b32 v212, 31, v1")
    k("v_cvt_f32_u32 v212, v212")
    k("v_lshrrev_b32 v213, 5, v1")
    k("v_lshlrev_b32 v213, 2, v213")
    k("v_cvt_f32_u32 v213, v213")
    k(f"v_mul_f32 v214, {f32(1/32)}, v212")
    k("v_mul_f32 v215, v214, v213")
    gen_matrix(k, Mr, Mi, 214, 215, T)
    k(f"v_mul_f32 v214, {f32(1/1024)}, v212")
    k("v_mul_f32 v215, v214, v213")
    gen_twiddle(k, TW, 214, 215, T, scale=2.0**-21.5)
    k("v_and_b32 v2, 31, v1")
    k("v_lshrrev_b32 v3, 5, v1")
    k("v_and_b32 v216, 1, v2")
    k("v_lshrrev_b32 v217, 1, v2")
    k("v_and_b32 v218, 2, v217")
    k("v_xor_b32 v218, v218, v216")
    k("v_lshlrev_b32 v218, 4, v218")
    k("v_lshl_add_u32 v218, v217, 6, v218")
    k("v_lshl_add_u32 v218, v3, 12, v218")
    k("s_lshl_b32 s37, s28, 2")
    k("v_add_u32 v218, s37, v218")
    k("v_add_u32 v217, 1, v2")
    k("v_lshrrev_b32 v217, 1, v217")
    k("v_sub_u32 v219, 0, v217")
    k("v_and_b32 v219, 2, v219")
    k("v_add_u32 v216, 2, v216")
    k("v_xor_b32 v219, v219, v216")
    k("v_lshlrev_b32 v219, 4, v219")
    k("v_lshlrev_b32 v217, 6, v217")
    k("v_sub_u32 v219, v219, v217")
    k("v_lshlrev_b32 v217, 12, v3")
    k("v_sub_u32 v219, v219, v217")
    k("s_add_u32 s37, s37, 5120")
    k("v_add_u32 v219, s37, v219")
    k(f"v_add_u32 v227, {16*1024-5120}, v219")
    k("s_lshl_b32 s38, s28, 2")
    k("s_add_u32 s38, s38, 32")
    k("v_mov_b32 v226, s38")
    k("v_cmp_eq_u32 vcc, 0, v1")
    k("v_cndmask_b32 v227, v227, v226, vcc")
    k("s_mov_b32 s35, 0xffff0000")
    mark(k, 1)
    k("s_waitcnt vmcnt(0)")
    k("v_lshlrev_b32 v225, 4, v1")
    k(f"buffer_load_dwordx4 {vr(XL,4)}, v225, s[8:11], s31 offen")
    k(f"buffer_load_dwordx4 {vr(XL+4,4)}, v225, s[8:11], s31 offen offset:1024")
    k(f"buffer_load_dwordx4 {vr(XL+8,4)}, v225, s[8:11], s32 offen")
    k(f"buffer_load_dwordx4 {vr(XL+12,4)}, v225, s[8:11], s32 offen offset:1024")
    k("s_barrier")
    mark(k, 2)
    for i, (r, c) in enumerate(SEQ):
        if r < 2: k(f"ds_read_b32 v{OP+i}, v218 offset:{(8*r+c)*1024}")
        elif i == 8: k(f"ds_read_b32 v{OP+i}, v227")
        else:     k(f"ds_read_b32 v{OP+i}, v219 offset:{(32-8*r-c)*1024-5120}")
    k("s_waitcnt lgkmcnt(0)")
    stage(k, 'A', DR, DI, OP, Mr, Mi)
    cmul_pack(k, DR, DI, TW, OP, T)
    stage(k, 'B', DR, DI, OP, Mr, Mi)
    k("s_waitcnt vmcnt(0)")
    for i in range(8):
        k(f"v_lshlrev_b32 v{R0+2*i}, 16, v{XL+i}")
        k(f"v_and_b32 v{R0+2*i+1}, s35, v{XL+i}")
        k(f"v_lshlrev_b32 v{R1+2*i}, 16, v{XL+8+i}")
        k(f"v_and_b32 v{R1+2*i+1}, s35, v{XL+8+i}")
    TR = 17408
    mark(k, 3)
    k("s_lshl_b32 s36, s28, 12")
    k(f"s_add_u32 s36, s36, {TR}")
    k("v_and_b32 v3, 31, v1")
    k("v_lshlrev_b32 v3, 2, v3")
    k("v_lshrrev_b32 v216, 5, v1")
    k("v_lshlrev_b32 v216, 9, v216")
    k("v_add3_u32 v3, v3, v216, s36")
    k("v_lshl_add_u32 v2, v1, 5, s36")
    for i in range(16):
        k(f"{CVT} v{OP+i}, v{DR+i}, -v{DI+i}")
    for i, (r, c) in enumerate(SEQ):
        k(f"ds_write_b32 v3, v{OP+i} offset:{(8*r+c)*128}")
    k("s_waitcnt lgkmcnt(0)")
    k(f"ds_read_b128 {vr(OP,4)}, v2")
    k(f"ds_read_b128 {vr(OP+4,4)}, v2 offset:16")
    k(f"ds_read_b128 {vr(OP+8,4)}, v2 offset:2048")
    k(f"ds_read_b128 {vr(OP+12,4)}, v2 offset:2064")
    k("s_waitcnt lgkmcnt(0)")
    for i in range(16):
        k(f"v_lshlrev_b32 v{Y0+i}, 16, v{OP+i}")
        k(f"v_and_b32 v{Y1+i}, s35, v{OP+i}")
    for i in range(8):
        k(f"v_pk_add_f32 {vr(Y0+2*i,2)}, {vr(Y0+2*i,2)}, {vr(R0+2*i,2)}")
        k(f"v_pk_add_f32 {vr(Y1+2*i,2)}, {vr(Y1+2*i,2)}, {vr(R1+2*i,2)}")
    HP = 36
    for i in range(8):
        k(f"{CVT} v{HP+i}, v{Y0+2*i}, v{Y0+2*i+1}")
        k(f"{CVT} v{HP+8+i}, v{Y1+2*i}, v{Y1+2*i+1}")
    k("v_lshlrev_b32 v2, 4, v1")
    k(f"buffer_store_dwordx4 {vr(HP,4)}, v2, s[16:19], s31 offen {ST_P3}")
    k(f"buffer_store_dwordx4 {vr(HP+4,4)}, v2, s[16:19], s31 offen offset:1024 {ST_P3}")
    k(f"buffer_store_dwordx4 {vr(HP+8,4)}, v2, s[16:19], s32 offen {ST_P3}")
    k(f"buffer_store_dwordx4 {vr(HP+12,4)}, v2, s[16:19], s32 offen offset:1024 {ST_P3}")
    for i in range(8):
        k(f"v_lshlrev_b32 v{R0+2*i}, 16, v{HP+i}")
        k(f"v_and_b32 v{R0+2*i+1}, s35, v{HP+i}")
        k(f"v_lshlrev_b32 v{R1+2*i}, 16, v{HP+8+i}")
        k(f"v_and_b32 v{R1+2*i+1}, s35, v{HP+8+i}")
    RM = 220
    mark(k, 4)
    if LN_FUSE:
        assert not (EMU_LN or EMU_L2)
        ln_stats_rows(k, R0, R1, T, RM, 40, twice=True)
        ln_apply_rows(k, R0, R1, RM, Y0, Y1)
    else:
        ln_stats_rows(k, R0, R1, T, RM, 40)
        if EMU_L2:
            ln_apply_rows(k, R0, R1, RM, Y0, Y1)
            LP = 52
            for i in range(8):
                k(f"{CVT} v{LP+i}, v{Y0+2*i}, v{Y0+2*i+1}")
                k(f"{CVT} v{LP+8+i}, v{Y1+2*i}, v{Y1+2*i+1}")
            for i in range(8):
                k(f"v_lshlrev_b32 v{R0+2*i}, 16, v{LP+i}")
                k(f"v_and_b32 v{R0+2*i+1}, s35, v{LP+i}")
                k(f"v_lshlrev_b32 v{R1+2*i}, 16, v{LP+8+i}")
                k(f"v_and_b32 v{R1+2*i+1}, s35, v{LP+8+i}")
        else:
            ln_apply_rows(k, R0, R1, RM, R0, R1)
        ln_stats_rows(k, R0, R1, T, RM, 40)
        ln_apply_rows(k, R0, R1, RM, Y0, Y1)
    NP = 68
    for i in range(8):
        k(f"{CVT} v{NP+i}, v{Y0+2*i}, v{Y0+2*i+1}")
        k(f"{CVT} v{NP+8+i}, v{Y1+2*i}, v{Y1+2*i+1}")
    k(f"buffer_store_dwordx4 {vr(NP,4)}, v2, s[20:23], s31 offen {ST_P3}")
    k(f"buffer_store_dwordx4 {vr(NP+4,4)}, v2, s[20:23], s31 offen offset:1024 {ST_P3}")
    k(f"buffer_store_dwordx4 {vr(NP+8,4)}, v2, s[20:23], s32 offen {ST_P3}")
    k(f"buffer_store_dwordx4 {vr(NP+12,4)}, v2, s[20:23], s32 offen offset:1024 {ST_P3}")
    stamp_end(k, 'p3')
    k("L_p3_end:")
    k("s_endpgm")
    return k, 228, 33792

MF16 = 'v_mfma_f32_16x16x32_bf16'

def interleave(mf, rd, lead=0):
    out = []; n = len(mf); m = len(rd); ri = 0
    for i in range(n):
        out.append(mf[i])
        tgt = min(m, (m*(i+1) + n - 1)//n)
        while ri < tgt:
            out.append(rd[ri]); ri += 1
    out += rd[ri:]
    return out

def producer_loop(k, tag, per, issue, NS, NIT):
    mark(k, 1)
    issue()
    mark(k, 2)
    issue()
    k(f"s_waitcnt vmcnt({per})")
    mark(k, 3)
    k("s_barrier")
    for n in range(2, NS): issue()
    mark(k, 4)
    nmain = NIT - NS
    k(f"s_mov_b32 s60, 0")
    k(f"L_{tag}_ploop:")
    k(f"s_waitcnt vmcnt({(NS-2)*per})")
    k("s_barrier")
    issue()
    k("s_add_u32 s60, s60, 1")
    k(f"s_cmp_lt_u32 s60, {nmain}")
    k(f"s_cbranch_scc1 L_{tag}_ploop")
    for n in range(nmain, NIT-1):
        k(f"s_waitcnt vmcnt({(NIT-1-(n+1))*per})")
        k("s_barrier")


XB_OFF = ZW_OFF
FL_OFF = 0x2800000
BAR_OFF = 0x2810000
def gemm_kernel(tag, fused=False):
    g1 = tag == 'g1'
    k = Kern('gg_kernel' if fused else tag + '_kernel')
    ENDL = 'L_gg_end' if fused else f'L_{tag}_end'
    ASZ = 16384; STG = 32768; NS = 4 if STATIC else (5 if BAR2 else 3)
    NIT = 32 if g1 else 28
    BSTR = 7168 if g1 else 4096
    if not (fused and not g1):
        k(f"s_cmp_ge_u32 s2, 256")
        k(f"s_cbranch_scc1 {ENDL}")
    else:
        k("L_gbar:")
        k("s_load_dwordx2 s[26:27], s[0:1], 80")
        k("s_waitcnt vmcnt(0) lgkmcnt(0)")
        k("s_barrier")
        srd(k, 36, 26, 1024, BAR_OFF)
        k("v_cmp_eq_u32 vcc, 0, v0")
        k("s_and_saveexec_b64 s[34:35], vcc")
        k("s_cbranch_execz L_gbar_noarr")
        k("s_and_b32 s33, s2, 7")
        k("s_lshl_b32 s33, s33, 7")
        k("v_mov_b32 v2, 1")
        k("v_mov_b32 v3, 0")
        k("buffer_atomic_add v2, v3, s[36:39], s33 offen sc1")
        k("L_gbar_noarr:")
        k("s_mov_b64 exec, -1")
    stamp_begin(k)
    if g1:
        k("s_load_dwordx4 s[4:7], s[0:1], 32")
        k("s_load_dwordx2 s[24:25], s[0:1], 48")
    else:
        k("s_load_dwordx4 s[4:7], s[0:1], 48")
        k("s_load_dwordx2 s[24:25], s[0:1], 64")
    k("s_load_dwordx2 s[26:27], s[0:1], 80")
    k("v_and_b32 v1, 63, v0")
    k("v_lshrrev_b32 v2, 6, v0")
    k("v_readfirstlane_b32 s28, v2")
    if g1:
        k("s_and_b32 s30, s2, 1")
        k("s_lshl_b32 s30, s30, 2")
        k("s_bfe_u32 s52, s2, 0x20003")
        k("s_add_u32 s30, s30, s52")
        k("s_bfe_u32 s29, s2, 0x20001")
        k("s_mul_i32 s29, s29, 7")
        k("s_lshr_b32 s53, s2, 5")
        k("s_add_u32 s29, s29, s53")
        k("s_mov_b32 s63, 0")
        k("s_and_b32 s55, s2, 1")
        k(f"s_mul_i32 s55, s55, {16 if KHALF else 0}")
    else:
        if MAP2 == 1:
            k("s_bfe_u32 s62, s2, 0x10003")
            k("s_bfe_u32 s29, s2, 0x20001")
            k("s_lshl_b32 s29, s29, 2")
            k("s_bfe_u32 s52, s2, 0x20004")
            k("s_add_u32 s29, s29, s52")
            k("s_lshr_b32 s53, s2, 6")
            k("s_and_b32 s30, s2, 1")
            k("s_lshl_b32 s30, s30, 2")
            k("s_add_u32 s30, s30, s53")
        else:
            k("s_and_b32 s62, s2, 1")
            k("s_bfe_u32 s29, s2, 0x20001")
            k("s_lshl_b32 s29, s29, 2")
            k("s_bfe_u32 s52, s2, 0x20003")
            k("s_add_u32 s29, s29, s52")
            k("s_lshr_b32 s53, s2, 5")
            k("s_mov_b32 s30, s53")
        k("s_mov_b32 s55, 0")
        k("s_mul_i32 s63, s62, 28")
        srd(k, 56, 26, 256*64, FL_OFF) if False else None
    k("s_lshl_b32 s31, s29, 8")
    k("s_lshl_b32 s32, s30, 8")
    k("s_waitcnt lgkmcnt(0)")
    if g1:
        srd(k, 8, 4, S*F*2)
        srd(k, 12, 26, S*D*2, HN_OFF)
        srd(k, 16, 26, F*D*2, GT_OFF)
        srd(k, 20, 6, F*2)
        if not XSENT:
            srd(k, 44, 26, 256*64, FL_OFF)
            k("s_lshl_b32 s33, s2, 6")
            k("v_mov_b32 v2, 0")
            k("v_lshlrev_b32 v3, 2, v0")
            k("v_cmp_gt_u32 vcc, 16, v0")
            k("s_and_saveexec_b64 s[34:35], vcc")
            k(f"s_cbranch_execz L_{tag}_nozf")
            k("buffer_store_dword v2, v3, s[44:47], s33 offen sc0 sc1")
            k(f"L_{tag}_nozf:")
            k("s_mov_b64 exec, -1")
        k("s_cmp_lt_u32 s2, 224")
        k(f"s_cbranch_scc1 L_{tag}_main")
        if W1IDLE:
            k("s_sub_u32 s33, s2, 224")
            k("s_mul_i32 s33, s33, 112")
            k("v_mul_u32_u24 v3, 586, v0")
            k("v_lshrrev_b32 v3, 16, v3")
            k("v_mul_u32_u24 v4, 112, v3")
            k("v_sub_u32 v4, v0, v4")
            k("v_add_u32 v4, s33, v4")
            k("v_mul_u32_u24 v5, 4682, v4")
            k("v_lshrrev_b32 v5, 18, v5")
            k("v_mul_u32_u24 v6, 56, v5")
            k("v_sub_u32 v6, v4, v6")
            k("v_and_b32 v7, 1, v3")
            k("v_lshrrev_b32 v8, 1, v3")
            k("v_lshl_add_u32 v7, v7, 4, v8")
            k("v_lshl_add_u32 v5, v7, 6, v5")
            k("v_mul_u32_u24 v5, 7168, v5")
            k("v_lshl_add_u32 v2, v6, 7, v5")
            k("v_cmp_gt_u32 vcc, 448, v0")
            k("s_and_saveexec_b64 s[34:35], vcc")
            k(f"s_cbranch_execz L_{tag}_now1")
            k(f"s_mov_b32 s33, {W1IDLE*64*7168}")
            for i in range((16-W1IDLE)//2):
                k(f"buffer_load_dword v9, v2, s[8:11], s33 offen")
                k(f"s_add_u32 s33, s33, {2*64*7168}")
            k(f"L_{tag}_now1:")
            k("s_mov_b64 exec, -1")
        if W2PF:
            srd(k, 48, 24, F*S*2)
            k("s_sub_u32 s33, s2, 224")
            k("s_and_b32 s34, s33, 15")
            k("s_lshr_b32 s35, s33, 4")
            k(f"s_mul_i32 s35, s35, {1792*4096}")
            k("s_lshl_b32 s33, s34, 16")
            k("s_add_u32 s33, s33, s35")
            k("v_lshlrev_b32 v2, 7, v0")
            for i in range(W2PF):
                k(f"buffer_load_dword v9, v2, s[48:51], s33 offen")
                k(f"s_add_u32 s33, s33, {16*65536}")
        if XSENT:
            srd(k, 44, 26, 256*(16384 if XBF16 else 32768), 0x1E00000 if XB_SEP else VB_OFF)
            k("s_sub_u32 s33, s2, 224")
            k("s_lshl_b32 s33, s33, 17")
            k("v_lshlrev_b32 v2, 4, v0")
            for i in range(4): k(f"v_mov_b32 v{4+i}, -1")
            k("s_mov_b32 s34, 0")
            k(f"L_{tag}_clr:")
            k("buffer_store_dwordx4 v[4:7], v2, s[44:47], s33 offen sc0 sc1")
            k("s_add_u32 s33, s33, 8192")
            k("s_add_u32 s34, s34, 1")
            k("s_cmp_lt_u32 s34, 16")
            k(f"s_cbranch_scc1 L_{tag}_clr")
        stamp_end(k, tag, tid=0, slot=256, sfx='idle')
        k(f"s_branch {'L_gbar' if fused else ENDL}")
        k(f"L_{tag}_main:")
    else:
        srd(k, 8, 4, F*S*2)
        srd(k, 12, 26, F*D*2, GT_OFF)
        srd(k, 16, 26, S*D*2, H_OFF)
        srd(k, 20, 6, S*2)
        srd(k, 48, 24, S*D*2)
        if not XSENT:
            k("s_getreg_b32 s54, hwreg(HW_REG_XCC_ID, 0, 4)")
            k("s_add_u32 s54, s54, 1")
            srd(k, 56, 26, 256*64, FL_OFF)
            k("s_lshl_b32 s33, s2, 6")
            k("v_mov_b32 v2, s54")
            k("v_mov_b32 v3, 0")
            k("v_cmp_eq_u32 vcc, 0, v0")
            k("s_and_saveexec_b64 s[34:35], vcc")
            k(f"s_cbranch_execz L_{tag}_nopub")
            k("buffer_store_dword v2, v3, s[56:59], s33 offen offset:4 sc0 sc1")
            k(f"L_{tag}_nopub:")
            k("s_mov_b64 exec, -1")
    k("s_cmp_ge_u32 s28, 4")
    k(f"s_cbranch_scc1 L_{tag}_prod")
    ACC = 8; X = 72; Y = 136; R = 200
    AA = [R+i for i in range(4)]; AB = [R+4+i for i in range(4)]
    BA = [R+8+i for i in range(4)]; BB = [R+12+i for i in range(4)]
    MISC = R + 16
    k("s_and_b32 s33, s28, 1")
    k("s_lshr_b32 s36, s28, 1")
    k("v_lshrrev_b32 v2, 4, v1")
    k("v_bfe_u32 v3, v1, 2, 2")
    k("v_and_b32 v4, 3, v1")
    k("v_lshl_add_u32 v5, v2, 2, v3")
    k("v_and_b32 v6, 7, v5")
    k("v_lshlrev_b32 v6, 1, v6")
    k("v_lshrrev_b32 v7, 1, v4")
    k("v_and_b32 v9, 1, v4")
    for (base, w, add) in ((BA, 's33', 0), (BB, 's36', ASZ)):
        k(f"s_lshl_b32 s35, {w}, 3")
        k("v_add_u32 v10, s35, v7")
        k("v_xor_b32 v10, v10, v6")
        k("v_lshlrev_b32 v10, 4, v10")
        k("v_lshl_add_u32 v10, v9, 3, v10")
        k("v_lshl_add_u32 v10, v5, 8, v10")
        if add: k(f"v_add_u32 v10, {add}, v10")
        k(f"v_mov_b32 v{base[0]}, v10")
        for t in range(1, 4): k(f"v_xor_b32 v{base[t]}, {32*t}, v10")
    for t in range(4):
        k(f"v_mov_b32 v{AA[t]}, v{BA[t]}"); k(f"v_mov_b32 v{AB[t]}, v{BB[t]}")
    BIAS = MISC
    k("v_and_b32 v2, 15, v1")
    k("v_lshlrev_b32 v2, 1, v2")
    k("s_lshl_b32 s37, s36, 7")
    k("s_add_u32 s37, s37, s31")
    for t in range(4):
        k(f"buffer_load_ushort v{BIAS+t}, v2, s[20:23], s37 offen offset:{32*t}")
    OV = MISC+4
    k("v_and_b32 v2, 15, v1")
    k("v_lshlrev_b32 v2, 11, v2")
    k("v_lshrrev_b32 v3, 4, v1")
    k(f"v_lshl_add_u32 v{OV}, v3, 4, v2")
    k("s_lshl_b32 s38, s29, 7")
    k("s_lshl_b32 s39, s36, 6")
    k("s_add_u32 s38, s38, s39")
    k("s_lshl_b32 s38, s38, 11")
    k("s_add_u32 s38, s38, s32")
    k("s_lshl_b32 s39, s33, 7")
    k("s_add_u32 s38, s38, s39")
    if not g1:
        HL = MISC+6
        NV = HL+16
        if OUT_TOUCH:
            k("s_lshl_b32 s39, s62, 16")
            k("s_add_u32 s39, s39, s38")
            k(f"buffer_load_dword v{NV}, v{OV}, s[48:51], s39 offen")
            NV += 1
    else:
        NV = MISC+5
    def reads(dst, buf=None):
        r = []
        for ks in range(2):
            b = dst + 32*ks; ko = 32*ks
            for t in range(4):
                if buf is None: regs = (AA[t], AB[t]); bo = 0
                else:
                    regs = (BA[t], BB[t]) if buf < 2 else (AA[t], AB[t]); bo = (buf % 2)*STG
                for (o, a) in ((0, regs[0]), (16, regs[1])):
                    r.append(f"ds_read_b64_tr_b16 {vr(b+o+4*t,2)}, v{a} offset:{bo+ko*256}")
                    r.append(f"ds_read_b64_tr_b16 {vr(b+o+4*t+2,2)}, v{a} offset:{bo+(ko+16)*256}")
        return r
    def mfmas(src):
        m = []
        for ks in range(2):
            b = src + 32*ks
            order = sorted([(td, tn) for td in range(4) for tn in range(4)], key=lambda x: (max(x), x))
            if FAKE32:
                for i in range(8):
                    a = ACC + 16*(i % 4)
                    m.append(f"{MF32} {vr(a,16)}, {vr(b+4*(i%4),4)}, {vr(b+16+4*((i//2)%4),4)}, {vr(a,16)}")
                continue
            for td, tn in order:
                a = ACC + 4*(4*tn+td)
                m.append(f"{MF16} {vr(a,4)}, {vr(b+4*td,4)}, {vr(b+16+4*tn,4)}, {vr(a,4)}")
        return m
    def sched(mf, rd, extra):
        out = []; ri = 0; ei = 0
        for i, m in enumerate(mf):
            out.append(m)
            if ri < len(rd):
                for _ in range(RPAT[i % len(RPAT)]):
                    if ri < len(rd): out.append(rd[ri]); ri += 1
            elif ei < len(extra):
                out.append(extra[ei]); ei += 1
        out += rd[ri:] + extra[ei:]
        return out
    def upd():
        e = [f"s_add_u32 s34, s34, {STG}", f"s_cmp_eq_u32 s34, {STG*NS}", "s_cselect_b32 s34, 0, s34"]
        e += [f"v_add_u32 v{AA[t]}, s34, v{BA[t]}" for t in range(4)]
        e += [f"v_add_u32 v{AB[t]}, s34, v{BB[t]}" for t in range(4)]
        return e
    for i in range(64): k(f"v_mov_b32 v{ACC+i}, 0")
    k("s_mov_b32 s34, 0")
    k("s_mov_b32 s35, 0")
    if fused and not g1: k("s_barrier")
    mark(k, 1)
    k("s_barrier")
    mark(k, 2)
    if STATIC:
        for t in range(4):
            k(f"v_add_u32 v{AA[t]}, 65536, v{BA[t]}"); k(f"v_add_u32 v{AB[t]}, 65536, v{BB[t]}")
        for x in reads(X, 0): k(x)
        k(f"L_{tag}_cloop:")
        for u in range(4):
            cur, nxt = (X, Y) if u % 2 == 0 else (Y, X)
            k("s_waitcnt lgkmcnt(0)")
            k("s_barrier")
            ex = ["s_add_u32 s35, s35, 4", f"s_cmp_lt_u32 s35, {NIT-4}"] if u == 3 else []
            for x in sched(mfmas(cur), reads(nxt, (u+1) % 4), ex): k(x)
        k(f"s_cbranch_scc1 L_{tag}_cloop")
        for u in range(2):
            cur, nxt = (X, Y) if u % 2 == 0 else (Y, X)
            k("s_waitcnt lgkmcnt(0)")
            k("s_barrier")
            for x in sched(mfmas(cur), reads(nxt, u+1), []): k(x)
    else:
        for x in reads(X): k(x)
        for x in upd(): k(x)
        k(f"L_{tag}_cloop:")
        k("s_waitcnt lgkmcnt(0)")
        if LOOPSTAMP:
            k(f"s_cmp_eq_u32 s35, {LOOPSTAMP}")
            k(f"s_cbranch_scc0 L_{tag}_nolatch")
            for i in range(4): k(f"s_mov_b64 s[{96-20+2*i}:{97-20+2*i}], s[{66+2*i}:{67+2*i}]") if False else None
            k("s_sub_u32 s90, s68, s66"); k("s_sub_u32 s91, s70, s68"); k("s_sub_u32 s92, s72, s70")
            k("s_memtime s[82:83]"); k("s_waitcnt lgkmcnt(0)"); k("s_sub_u32 s93, s82, s72")
            k(f"L_{tag}_nolatch:")
        k("s_barrier")
        if LOOPSTAMP: k("s_memtime s[66:67]")
        for x in sched(mfmas(X), reads(Y), upd()): k(x)
        if LOOPSTAMP: k("s_memtime s[68:69]")
        k("s_waitcnt lgkmcnt(0)")
        if not BAR2: k("s_barrier")
        if LOOPSTAMP: k("s_memtime s[70:71]")
        for x in sched(mfmas(Y), reads(X), upd() + ["s_add_u32 s35, s35, 2", f"s_cmp_lt_u32 s35, {NIT-2}"]): k(x)
        if LOOPSTAMP: k("s_memtime s[72:73]")
        k(f"s_cbranch_scc1 L_{tag}_cloop")
    if LOOPSTAMP:
        k("s_waitcnt lgkmcnt(0)")
        for i in range(4):
            k(f"s_mov_b32 s{66+2*i}, s{90+i}"); k(f"s_mov_b32 s{67+2*i}, 0")
    XID = 3
    if not g1:
        if not XSENT:
            k(f"s_xor_b32 s42, s2, {8 if MAP2 == 1 else 1}")
            k("s_lshl_b32 s39, s42, 6")
            k("v_mov_b32 v4, 0")
            k(f"buffer_load_dword v{XID}, v4, s[56:59], s39 offen offset:4 sc0 sc1")
        k("s_lshl_b32 s39, s62, 16")
        k("s_add_u32 s39, s39, s38")
        for tnl in range(1 if XSHARE else 2):
            for tp in range(2):
                k(f"s_add_u32 s40, s39, {tnl*16*2048 + tp*64}")
                k(f"buffer_load_dwordx4 {vr(HL+8*tnl+4*tp,4)}, v{OV}, s[16:19], s40 offen")
    k("s_waitcnt lgkmcnt(0)")
    k("s_barrier")
    for x in sched(mfmas(X), reads(Y, 3 if STATIC else None), []): k(x)
    k("s_waitcnt lgkmcnt(0)")
    for x in mfmas(Y): k(x)
    mark(k, 3)
    k("s_mov_b32 s40, 0xffff0000")
    T = X
    def pack_swap(P):
        k(f"v_permlane32_swap_b32 v{P}, v{P+2}")
        k(f"v_permlane32_swap_b32 v{P+1}, v{P+3}")
        k(f"v_permlane16_swap_b32 v{P}, v{P+2}")
        k(f"v_permlane16_swap_b32 v{P+1}, v{P+3}")
    def store_lines(P0, P1, tmp, so, srdreg):
        for i in range(4): k(f"v_mov_b32 v{tmp+i}, v{P0+i}")
        for i in range(4): k(f"v_mov_b32_dpp v{P0+i}, v{P1+i} row_ror:8 row_mask:0xf bank_mask:0xc")
        for i in range(4): k(f"v_mov_b32_dpp v{P1+i}, v{tmp+i} row_ror:8 row_mask:0xf bank_mask:0x3")
        fl = ST_G1 if g1 else ST_G2
        k(f"s_add_u32 s41, s38, {so}")
        k(f"buffer_store_dwordx4 {vr(P0,4)}, v{OVS}, s[{srdreg}:{srdreg+3}], s41 offen {fl}")
        k(f"s_add_u32 s41, s38, {so + 8*2048}")
        k(f"buffer_store_dwordx4 {vr(P1,4)}, v{OVS}, s[{srdreg}:{srdreg+3}], s41 offen {fl}")
    OVS = 3
    def set_ovs():
        k("v_and_b32 v2, 7, v1")
        k("v_lshlrev_b32 v2, 11, v2")
        k("v_bfe_u32 v3, v1, 3, 1")
        k("v_lshl_add_u32 v2, v3, 6, v2")
        k("v_lshrrev_b32 v3, 4, v1")
        k(f"v_lshl_add_u32 v{OVS}, v3, 4, v2")
    if g1:
        SH = 32768 if STATIC else (98304 if BAR2 else 65536)
        k("s_lshl_b32 s39, s28, 13")
        k(f"s_add_u32 s39, s39, {SH}")
        k("v_lshl_add_u32 v2, v1, 4, s39")
        for i in range(8): k(f"ds_write_b128 v2, {vr(ACC+32+4*i,4)} offset:{1024*i}")
        k("s_waitcnt vmcnt(0) lgkmcnt(0)")
        k("s_barrier")
        mark(k, 4)
        k(f"L_{tag}_epi:")
        for t in range(2): k(f"v_lshlrev_b32 v{BIAS+t}, 16, v{BIAS+t}")
        c0 = -2.0*math.log2(math.e)*math.sqrt(2.0/math.pi); c1 = c0*0.044715
        k("s_mov_b32 s40, 0xffff0000")
        k(f"s_mov_b32 s42, {f32(c1)}")
        k(f"v_mov_b32 v4, {f32(c0)}"); k(f"v_mov_b32 v5, {f32(c0)}")
        k(f"v_mov_b32 v6, 1.0"); k(f"v_mov_b32 v7, 1.0")
        set_ovs()
        for tn in range(2):
            for tp in range(2):
                P = T + 4*tp + 24*tn
                for q in range(4):
                    td = 2*tp + q//2
                    src = ACC + 4*(4*tn+td) + 2*(q % 2)
                    u, w = T+8+4*q, T+10+4*q
                    gelu_pair(k, src, u, w, BIAS+tn, P+q)
                pack_swap(P)
            store_lines(T+24*tn, T+24*tn+4, T+32, tn*16*2048, 16)
    else:
        if XSHARE:
            assert XSENT and XBF16
            SHX, SHY = 0, 16384
            k("s_waitcnt vmcnt(0)")
            srd(k, 44, 26, 256*16384, 0x1E00000 if XB_SEP else VB_OFF)
            k(f"s_xor_b32 s42, s2, {8 if MAP2 == 1 else 1}")
            k("s_lshl_b32 s43, s42, 14")
            k("s_lshl_b32 s39, s28, 12")
            k("s_add_u32 s43, s43, s39")
            k("v_lshlrev_b32 v2, 4, v1")
            k("s_cmp_eq_u32 s62, 0")
            k(f"s_cbranch_scc1 L_{tag}_k0")
            for half, l2 in ((0, None), (32, f"L_{tag}_k0:")):
                if l2: k(l2)
                for i in range(16): k(f"{CVT} v{Y+32+i}, v{ACC+half+2*i}, v{ACC+half+2*i+1}")
                for i in range(4):
                    k(f"s_add_u32 s39, s43, {1024*i}")
                    k(f"buffer_store_dwordx4 {vr(Y+32+4*i,4)}, v2, s[44:47], s39 offen sc0 sc1")
                if half == 0:
                    for i in range(32): k(f"v_mov_b32 v{ACC+i}, v{ACC+32+i}")
                    k(f"v_mov_b32 v{BIAS}, v{BIAS+2}")
                    k(f"s_branch L_{tag}_k1")
            k(f"L_{tag}_k1:")
            k("s_lshl_b32 s39, s28, 12")
            k(f"v_add_u32 v3, s39, v2")
            for i in range(4): k(f"ds_write_b128 v3, {vr(ACC+16+4*i,4)} offset:{SHX+1024*i}")
            k("s_lshl_b32 s39, s62, 16")
            k("s_add_u32 s38, s38, s39")
            k("s_lshl_b32 s39, s28, 11")
            k(f"v_add_u32 v3, s39, v2")
            k("s_waitcnt vmcnt(0) lgkmcnt(0)" if XWAIT else "s_waitcnt lgkmcnt(0)")
            k("s_barrier")
            k("s_barrier")
            k(f"ds_read_b128 {vr(Y+40,4)}, v3 offset:{SHY}")
            k(f"ds_read_b128 {vr(Y+44,4)}, v3 offset:{SHY+1024}")
            k("s_waitcnt lgkmcnt(0)")
            mark(k, 4)
            k(f"L_{tag}_epi:")
            k("s_mov_b32 s40, 0xffff0000")
            k(f"v_lshlrev_b32 v{BIAS}, 16, v{BIAS}")
            if PERTURB: k(f"v_add_f32 v{BIAS}, {f32(PERTURB)}, v{BIAS}")
            set_ovs()
            for tp in range(2):
                P = T + 4*tp
                for q in range(4):
                    td = 2*tp + q//2
                    a_ = ACC + 4*td + 2*(q % 2); y = Y + 4*td + 2*(q % 2)
                    u, w = T+8+4*q, T+10+4*q
                    pk = Y + 40 + (4*td + 2*(q % 2))//2
                    k(f"v_lshlrev_b32 v{y}, 16, v{pk}")
                    k(f"v_and_b32 v{y+1}, s40, v{pk}")
                    k(f"v_pk_add_f32 {vr(a_,2)}, {vr(a_,2)}, {vr(y,2)}")
                    k(f"v_add_f32 v{u}, v{a_}, v{BIAS}")
                    k(f"v_add_f32 v{u+1}, v{a_+1}, v{BIAS}")
                    k(f"{CVT} v{P+q}, v{u}, v{u+1}")
                pack_swap(P)
                for q in range(4):
                    u, w = T+8+4*q, T+10+4*q
                    hp = HL+4*tp+q
                    k(f"v_lshlrev_b32 v{u}, 16, v{P+q}")
                    k(f"v_and_b32 v{u+1}, s40, v{P+q}")
                    k(f"v_lshlrev_b32 v{w}, 16, v{hp}")
                    k(f"v_and_b32 v{w+1}, s40, v{hp}")
                    k(f"v_pk_add_f32 {vr(u,2)}, {vr(u,2)}, {vr(w,2)}")
                    k(f"{CVT} v{P+q}, v{u}, v{u+1}")
            store_lines(T, T+4, T+32, 0, 48)
        else:
            k("s_waitcnt vmcnt(0)")
            srd(k, 44, 26, 256*(16384 if XBF16 else 32768), 0x1E00000 if XB_SEP else VB_OFF)
            if not XSENT: srd(k, 56, 26, 256*64, FL_OFF)
            k(f"s_xor_b32 s42, s2, {8 if MAP2 == 1 else 1}")
            k(f"s_lshl_b32 s43, s42, {14 if XBF16 else 15}")
            k(f"s_lshl_b32 s39, s28, {12 if XBF16 else 13}")
            k("s_add_u32 s43, s43, s39")
            k("v_lshlrev_b32 v2, 4, v1")
            k("v_mov_b32 v4, 0")
            if not XSENT:
                k("s_lshl_b32 s39, s42, 6")
                k("s_mov_b32 s41, 0")
                k("v_readfirstlane_b32 s61, v3")
                k("s_cmp_eq_u32 s61, 0")
                k(f"s_cbranch_scc0 L_{tag}_xpolld")
                k(f"L_{tag}_xpoll:")
                k("buffer_load_dword v3, v4, s[56:59], s39 offen offset:4 sc0 sc1")
                k("s_waitcnt vmcnt(0)")
                k("v_readfirstlane_b32 s61, v3")
                k("s_add_u32 s41, s41, 1")
                k("s_cmp_ge_u32 s41, 0x40000")
                k(f"s_cbranch_scc1 L_{tag}_xpolld")
                k("s_cmp_eq_u32 s61, 0")
                k(f"s_cbranch_scc1 L_{tag}_xpoll")
                k(f"L_{tag}_xpolld:")
                k("s_cmp_eq_u32 s61, s54")
                k(f"s_cselect_b32 s61, {0 if FORCE_FAR else 1}, 0")
            def sends(flags, lab):
                k("s_cmp_eq_u32 s62, 0")
                k(f"s_cbranch_scc1 L_{tag}_k0{lab}")
                for half, l2 in ((0, None), (32, f"L_{tag}_k0{lab}:")):
                    if l2: k(l2)
                    if XBF16:
                        for i in range(16): k(f"{CVT} v{Y+32+i}, v{ACC+half+2*i}, v{ACC+half+2*i+1}")
                        for i in range(4):
                            k(f"s_add_u32 s39, s43, {1024*i}")
                            k(f"buffer_store_dwordx4 {vr(Y+32+4*i,4)}, v2, s[44:47], s39 offen {flags}")
                    else:
                        for i in range(8):
                            k(f"s_add_u32 s39, s43, {1024*i}")
                            k(f"buffer_store_dwordx4 {vr(ACC+half+4*i,4)}, v2, s[44:47], s39 offen {flags}")
                    if half == 0: k(f"s_branch L_{tag}_k1{lab}")
                k(f"L_{tag}_k1{lab}:")
            def handoff(stf, ldf, lab):
                sends(stf, lab)
                k("s_waitcnt vmcnt(0)")
                k("s_lshl_b32 s39, s42, 6")
                k("s_lshl_b32 s41, s28, 2")
                k("s_add_u32 s39, s39, s41")
                k("v_mov_b32 v3, 1")
                k("s_mov_b64 exec, 1")
                k(f"buffer_store_dword v3, v4, s[56:59], s39 offen offset:16 {stf}")
                k("s_lshl_b32 s39, s2, 6")
                k("s_add_u32 s39, s39, s41")
                k("s_mov_b32 s41, 0")
                k(f"L_{tag}_poll{lab}:")
                k(f"buffer_load_dword v3, v4, s[56:59], s39 offen offset:16 {ldf}")
                k("s_waitcnt vmcnt(0)")
                k("v_readfirstlane_b32 s43, v3")
                k("s_add_u32 s41, s41, 1")
                k("s_cmp_ge_u32 s41, 0x40000")
                k(f"s_cbranch_scc1 L_{tag}_polld{lab}")
                k("s_cmp_eq_u32 s43, 1")
                k(f"s_cbranch_scc0 L_{tag}_poll{lab}")
                k(f"L_{tag}_polld{lab}:")
                k("s_mov_b64 exec, -1")
                k(f"s_lshl_b32 s43, s2, {14 if XBF16 else 15}")
                k(f"s_lshl_b32 s39, s28, {12 if XBF16 else 13}")
                k("s_add_u32 s43, s43, s39")
                for i in range(4 if XBF16 else 8):
                    k(f"s_add_u32 s39, s43, {1024*i}")
                    k(f"buffer_load_dwordx4 {vr(Y+(32 if XBF16 else 0)+4*i,4)}, v2, s[44:47], s39 offen {ldf}")
            if XSENT:
                assert XBF16
                sends('sc0 sc1', 's')
                k("s_lshl_b32 s43, s2, 14")
                k("s_lshl_b32 s39, s28, 12")
                k("s_add_u32 s43, s43, s39")
                k("s_mov_b32 s41, 0")
                k("s_waitcnt vmcnt(0)")
                k(f"L_{tag}_spoll:")
                for i in range(4):
                    k(f"s_add_u32 s39, s43, {1024*i}")
                    k(f"buffer_load_dwordx4 {vr(Y+32+4*i,4)}, v2, s[44:47], s39 offen sc0 sc1")
                k("s_add_u32 s41, s41, 1")
                k("s_waitcnt vmcnt(0)")
                k(f"v_max3_u32 v3, v{Y+32}, v{Y+33}, v{Y+34}")
                for i in range(3, 15, 2): k(f"v_max3_u32 v3, v3, v{Y+32+i}, v{Y+32+i+1}")
                k(f"v_max_u32 v3, v3, v{Y+47}")
                k("v_cmp_eq_u32 vcc, -1, v3")
                k("s_nop 4")
                k("s_cmp_ge_u32 s41, 0x20000")
                k(f"s_cbranch_scc1 L_{tag}_spolld")
                k(f"s_cbranch_vccnz L_{tag}_spoll")
                k(f"L_{tag}_spolld:")
            else:
                k("s_cmp_eq_u32 s61, 1")
                k(f"s_cbranch_scc0 L_{tag}_far")
                handoff('', 'sc1', 'n')
                k(f"s_branch L_{tag}_xdone")
                k(f"L_{tag}_far:")
                handoff('sc0 sc1', 'sc0 sc1', 'f')
                k(f"L_{tag}_xdone:")
            k("s_cmp_eq_u32 s62, 0")
            k(f"s_cbranch_scc1 L_{tag}_kept")
            for i in range(32): k(f"v_mov_b32 v{ACC+i}, v{ACC+32+i}")
            k(f"v_mov_b32 v{BIAS}, v{BIAS+2}"); k(f"v_mov_b32 v{BIAS+1}, v{BIAS+3}")
            k(f"L_{tag}_kept:")
            mark(k, 4)
            k(f"v_lshlrev_b32 v{BIAS}, 16, v{BIAS}"); k(f"v_lshlrev_b32 v{BIAS+1}, 16, v{BIAS+1}")
            if PERTURB:
                k(f"v_add_f32 v{BIAS}, {f32(PERTURB)}, v{BIAS}"); k(f"v_add_f32 v{BIAS+1}, {f32(PERTURB)}, v{BIAS+1}")
            k("s_lshl_b32 s39, s62, 16")
            k("s_add_u32 s38, s38, s39")
            set_ovs()
            for tnl in range(2):
                for tp in range(2):
                    i0 = 4*tnl + 2*tp
                    if XSENT: pass
                    elif XBF16: k(f"s_waitcnt vmcnt({3 - i0//2})")
                    else:     k(f"s_waitcnt vmcnt({6 - i0 if i0 < 6 else 0})")
                    if i0 == 0: mark(k, 5)
                    P = T + 4*tp + 24*tnl
                    for q in range(4):
                        td = 2*tp + q//2
                        a = ACC + 4*(4*tnl+td) + 2*(q % 2); y = Y + 4*(4*tnl+td) + 2*(q % 2)
                        u, w = T+8+4*q, T+10+4*q
                        if XBF16:
                            pk = Y + 32 + (4*(4*tnl+td) + 2*(q % 2))//2
                            k(f"v_lshlrev_b32 v{y}, 16, v{pk}")
                            k(f"v_and_b32 v{y+1}, s40, v{pk}")
                        k(f"v_pk_add_f32 {vr(a,2)}, {vr(a,2)}, {vr(y,2)}")
                        if EMU_Y:
                            k(f"{CVT} v{w}, v{a}, v{a+1}")
                            k(f"v_lshlrev_b32 v{u}, 16, v{w}")
                            k(f"v_and_b32 v{u+1}, s40, v{w}")
                            k(f"v_add_f32 v{u}, v{u}, v{BIAS+tnl}")
                            k(f"v_add_f32 v{u+1}, v{u+1}, v{BIAS+tnl}")
                        else:
                            k(f"v_add_f32 v{u}, v{a}, v{BIAS+tnl}")
                            k(f"v_add_f32 v{u+1}, v{a+1}, v{BIAS+tnl}")
                        k(f"{CVT} v{P+q}, v{u}, v{u+1}")
                    pack_swap(P)
                    for q in range(4):
                        u, w = T+8+4*q, T+10+4*q
                        hp = HL+8*tnl+4*tp+q
                        k(f"v_lshlrev_b32 v{u}, 16, v{P+q}")
                        k(f"v_and_b32 v{u+1}, s40, v{P+q}")
                        k(f"v_lshlrev_b32 v{w}, 16, v{hp}")
                        k(f"v_and_b32 v{w+1}, s40, v{hp}")
                        k(f"v_pk_add_f32 {vr(u,2)}, {vr(u,2)}, {vr(w,2)}")
                        k(f"{CVT} v{P+q}, v{u}, v{u+1}")
                store_lines(T+24*tnl, T+24*tnl+4, T+32, tnl*16*2048, 48)
    stamp_end(k, tag)
    k(f"s_branch {'L_gbar' if (fused and g1) else ENDL}")
    k(f"L_{tag}_prod:")
    if PPRIO: k(f"s_setprio {PPRIO}")
    k("s_sub_u32 s33, s28, 4")
    k("v_lshrrev_b32 v2, 4, v1")
    k("s_and_b32 s34, s33, 1")
    k("s_lshl_b32 s34, s34, 2")
    k("v_add_u32 v3, s34, v2")
    k("v_lshlrev_b32 v3, 1, v3")
    k("v_and_b32 v4, 15, v1")
    k("v_xor_b32 v3, v3, v4")
    k("v_lshlrev_b32 v3, 4, v3")
    k("v_lshl_add_u32 v8, v2, 11, v3")
    k(f"v_mul_u32_u24 v2, {BSTR}, v2")
    k("v_add_u32 v9, v2, v3")
    k("s_lshl_b32 s34, s33, 13")
    k("s_add_u32 s40, s32, s34")
    k(f"s_mul_i32 s34, s33, {4*BSTR}")
    k("s_add_u32 s41, s31, s34")
    k("s_lshl_b32 s42, s33, 10")
    k("s_mov_b32 s43, 0")
    k("s_add_u32 s46, s52, s53")
    k("s_mov_b32 s47, 0")
    def issue():
        k("s_add_u32 s58, s46, s47")
        k("s_and_b32 s58, s58, 3")
        k("s_cmp_eq_u32 s58, 0")
        k(f"s_cselect_b32 s58, {3+NIT}, {NIT-1}")
        k("s_add_u32 s58, s58, s47")
        k("s_add_u32 s58, s58, s55")
        k(f"s_cmp_ge_u32 s58, {2*NIT}")
        k(f"s_cselect_b32 s59, {2*NIT}, {NIT}")
        k(f"s_cmp_ge_u32 s58, {NIT}")
        k(f"s_cselect_b32 s59, s59, 0")
        k("s_sub_u32 s58, s58, s59")
        if not KPERM: k("s_mov_b32 s58, s47")
        if KWRAP: k(f"s_and_b32 s58, s58, {KWRAP-1}")
        k("s_add_u32 s58, s58, s63")
        k(f"s_mul_i32 s59, s58, {64*BSTR}")
        k(f"s_lshl_b32 s58, s58, 17")
        k("s_add_u32 s58, s58, s40")
        k("s_add_u32 s59, s59, s41")
        k("s_add_u32 s44, s43, s42")
        for m in range(4):
            k(f"s_add_u32 m0, s44, {4096*m}")
            k(f"s_add_u32 s45, s58, {m*16*2048}")
            k(f"buffer_load_dwordx4 v8, s[12:15], s45 offen lds")
            k(f"s_add_u32 m0, s44, {ASZ+4096*m}")
            k(f"s_add_u32 s45, s59, {m*16*BSTR}")
            k(f"buffer_load_dwordx4 v9, s[8:11], s45 offen {NT_B1 if g1 else NT_B2} lds")
        k("s_add_u32 s47, s47, 1")
        k(f"s_add_u32 s43, s43, {STG}")
        k(f"s_cmp_eq_u32 s43, {STG*NS}")
        k("s_cselect_b32 s43, 0, s43")
    if fused and not g1:
        k("s_cmp_eq_u32 s33, 0")
        k("s_cbranch_scc0 L_gbar_nopoll")
        srd(k, 36, 26, 1024, BAR_OFF)
        k("v_and_b32 v2, 7, v1")
        k("v_lshlrev_b32 v2, 7, v2")
        k("s_mov_b32 s34, 0")
        k("L_gbar_poll:")
        if PSLEEP: k(f"s_sleep {PSLEEP}")
        k(f"buffer_load_dword v3, v2, s[36:39], 0 offen {POLLF}")
        k("s_waitcnt vmcnt(0)")
        k("v_cmp_gt_u32 vcc, 32, v3")
        k("s_add_u32 s34, s34, 1")
        k("s_cmp_ge_u32 s34, 0x20000")
        k("s_cbranch_scc1 L_gbar_nopoll")
        k("s_cbranch_vccnz L_gbar_poll")
        k("L_gbar_nopoll:")
        k("s_barrier")
    if BAR2:
        per = 8
        mark(k, 1)
        issue(); mark(k, 2); issue()
        k(f"s_waitcnt vmcnt({per})")
        mark(k, 3)
        k("s_barrier")
        issue(); issue()
        mark(k, 4)
        k("s_mov_b32 s60, 0")
        k(f"L_{tag}_ploop:")
        k(f"s_waitcnt vmcnt({per})")
        k("s_barrier")
        issue(); issue()
        k("s_add_u32 s60, s60, 2")
        k(f"s_cmp_lt_u32 s60, {NIT-4}")
        k(f"s_cbranch_scc1 L_{tag}_ploop")
        k(f"s_waitcnt vmcnt({per})")
        k("s_barrier")
        k("s_waitcnt vmcnt(0)")
        k("s_barrier")
    else:
        producer_loop(k, tag, 8, issue, 3 if STATIC else NS, NIT)
    if g1:
        k("s_and_b32 s34, s33, 1")
        k("s_lshr_b32 s36, s33, 1")
        k("v_and_b32 v2, 15, v1")
        k("v_lshlrev_b32 v2, 1, v2")
        k("s_lshl_b32 s37, s36, 7")
        k("s_add_u32 s37, s37, s31")
        for t in range(2):
            k(f"buffer_load_ushort v{BIAS+t}, v2, s[20:23], s37 offen offset:{64+32*t}")
        k("v_and_b32 v2, 15, v1")
        k("v_lshlrev_b32 v2, 11, v2")
        k("v_lshrrev_b32 v3, 4, v1")
        k(f"v_lshl_add_u32 v{OV}, v3, 4, v2")
        k("s_lshl_b32 s38, s29, 7")
        k("s_lshl_b32 s39, s36, 6")
        k("s_add_u32 s38, s38, s39")
        k("s_add_u32 s38, s38, 32")
        k("s_lshl_b32 s38, s38, 11")
        k("s_add_u32 s38, s38, s32")
        k("s_lshl_b32 s39, s34, 7")
        k("s_add_u32 s38, s38, s39")
        k("s_lshl_b32 s39, s33, 13")
        k(f"s_add_u32 s39, s39, {32768 if STATIC else (98304 if BAR2 else 65536)}")
        k("v_lshl_add_u32 v2, v1, 4, s39")
        k("s_setprio 0")
        k("s_barrier")
        for i in range(8): k(f"ds_read_b128 {vr(ACC+4*i,4)}, v2 offset:{1024*i}")
        k("s_waitcnt vmcnt(0) lgkmcnt(0)")
        k(f"s_branch L_{tag}_epi")
    if (not g1) and XSHARE:
        SHX, SHY = 0, 16384
        k("s_setprio 0")
        k("s_and_b32 s34, s33, 1")
        k("s_lshr_b32 s36, s33, 1")
        k("v_and_b32 v2, 15, v1")
        k("v_lshlrev_b32 v2, 1, v2")
        k("s_lshl_b32 s37, s36, 7")
        k("s_add_u32 s37, s37, s31")
        k("s_lshl_b32 s39, s62, 6")
        k("s_add_u32 s37, s37, s39")
        k(f"buffer_load_ushort v{BIAS}, v2, s[20:23], s37 offen offset:32")
        k("v_and_b32 v2, 15, v1")
        k("v_lshlrev_b32 v2, 11, v2")
        k("v_lshrrev_b32 v3, 4, v1")
        k(f"v_lshl_add_u32 v{OV}, v3, 4, v2")
        k("s_lshl_b32 s38, s29, 7")
        k("s_lshl_b32 s39, s36, 6")
        k("s_add_u32 s38, s38, s39")
        k("s_lshl_b32 s39, s62, 5")
        k("s_add_u32 s38, s38, s39")
        k("s_add_u32 s38, s38, 16")
        k("s_lshl_b32 s38, s38, 11")
        k("s_add_u32 s38, s38, s32")
        k("s_lshl_b32 s39, s34, 7")
        k("s_add_u32 s38, s38, s39")
        for tp in range(2):
            k(f"s_add_u32 s40, s38, {tp*64}")
            k(f"buffer_load_dwordx4 {vr(HL+4*tp,4)}, v{OV}, s[16:19], s40 offen")
        srd(k, 44, 26, 256*16384, 0x1E00000 if XB_SEP else VB_OFF)
        k("s_lshl_b32 s43, s2, 14")
        k("s_lshl_b32 s39, s33, 12")
        k("s_add_u32 s43, s43, s39")
        k("v_lshlrev_b32 v2, 4, v1")
        k("s_lshl_b32 s39, s33, 12")
        k("v_add_u32 v3, s39, v2")
        k("s_barrier")
        for i in range(4): k(f"ds_read_b128 {vr(ACC+4*i,4)}, v3 offset:{SHX+1024*i}")
        k("s_mov_b32 s41, 0")
        k(f"L_{tag}_spoll:")
        for i in range(4):
            k(f"s_add_u32 s39, s43, {1024*i}")
            k(f"buffer_load_dwordx4 {vr(Y+32+4*i,4)}, v2, s[44:47], s39 offen sc0 sc1")
        k("s_add_u32 s41, s41, 1")
        k("s_waitcnt vmcnt(0)")
        k(f"v_max3_u32 v5, v{Y+32}, v{Y+33}, v{Y+34}")
        for i in range(3, 15, 2): k(f"v_max3_u32 v5, v5, v{Y+32+i}, v{Y+32+i+1}")
        k(f"v_max_u32 v5, v5, v{Y+47}")
        k("v_cmp_eq_u32 vcc, -1, v5")
        k("s_nop 4")
        k("s_cmp_ge_u32 s41, 0x20000")
        k(f"s_cbranch_scc1 L_{tag}_spolld")
        k(f"s_cbranch_vccnz L_{tag}_spoll")
        k(f"L_{tag}_spolld:")
        k("s_lshl_b32 s39, s33, 11")
        k("v_add_u32 v3, s39, v2")
        k(f"ds_write_b128 v3, {vr(Y+32,4)} offset:{SHY}")
        k(f"ds_write_b128 v3, {vr(Y+36,4)} offset:{SHY+1024}")
        k("s_waitcnt lgkmcnt(0)")
        k("s_barrier")
        k(f"s_branch L_{tag}_epi")
    stamp_end(k, tag, tid=256, slot=256, sfx='p')
    if fused and g1:
        return k, NV, STG*NS
    k(f"{ENDL}:")
    k("s_endpgm")
    return k, NV, STG*NS

def gelu_pair(k, src, u, w, bias, dst):
    if EMU_U:
        k(f"{CVT} v{w}, v{src}, v{src+1}")
        k(f"v_lshlrev_b32 v{u}, 16, v{w}")
        k(f"v_and_b32 v{u+1}, s40, v{w}")
        k(f"v_add_f32 v{u}, v{u}, v{bias}")
        k(f"v_add_f32 v{u+1}, v{u+1}, v{bias}")
        k(f"{CVT} v{w}, v{u}, v{u+1}")
        k(f"v_lshlrev_b32 v{u}, 16, v{w}")
        k(f"v_and_b32 v{u+1}, s40, v{w}")
    else:
        k(f"v_add_f32 v{u}, v{src}, v{bias}")
        k(f"v_add_f32 v{u+1}, v{src+1}, v{bias}")
    k(f"v_pk_mul_f32 {vr(w,2)}, {vr(u,2)}, {vr(u,2)}")
    k(f"v_pk_fma_f32 {vr(w,2)}, {vr(w,2)}, s[42:43], {vr(4,2)} op_sel_hi:[1,0,1]")
    k(f"v_pk_mul_f32 {vr(w,2)}, {vr(w,2)}, {vr(u,2)}")
    k(f"v_exp_f32 v{w}, v{w}")
    k(f"v_exp_f32 v{w+1}, v{w+1}")
    k(f"s_nop 0")
    k(f"v_pk_add_f32 {vr(w,2)}, {vr(w,2)}, {vr(6,2)}")
    k(f"v_rcp_f32 v{w}, v{w}")
    k(f"v_rcp_f32 v{w+1}, v{w+1}")
    k(f"s_nop 0")
    k(f"v_pk_mul_f32 {vr(w,2)}, {vr(w,2)}, {vr(u,2)}")
    k(f"{CVT} v{dst}, v{w}, v{w+1}")

RPAT = [2, 1]
FUSE_GG = 0
WJOB = 2
LN_FUSE = 1
WEARLY = 1
W1IDLE = 0
EMU_LN = 0
EMU_L2 = 0
NT_B1 = ''
NT_B2 = ''
NT_X = ''
NT_W = ''
KHALF = 1
XSENT = 1
XSHARE = 0
XWAIT = 1
XBF16 = 1
EMU_Y = 0
PERTURB = 0
PSLEEP = 4
POLLF = 'sc0 sc1'
STATIC = 1
LOOPSTAMP = 0
BAR2 = 0
FAKE32 = 0
MAP2 = 0
XB_SEP = 1
FORCE_FAR = 0
PPRIO = 3
PFD = 0
KPERM = 1
FAKE16 = 0
NS1 = 3
NS2 = 3
KWRAP = 0
W2PF = 7
EMU_U = 0
RPG1 = 3
RPG2 = 4
def gen_gg():
    k1, nv1, l1 = gemm_kernel('g1', True)
    k2, nv2, l2 = gemm_kernel('g2', True)
    k1.l += k2.l
    return k1, max(nv1, nv2), max(l1, l2)
def gen_g1(): return gemm_kernel('g1')
def gen_g2(): return gemm_kernel('g2')

KERNELS = [('p1_kernel', gen_p1, (256,1,1), (256,1,1)), ('p2_kernel', gen_p2, (256,1,1), (256,1,1)), ('p3_kernel', gen_p3, (256,1,1), (256,1,1)),
 ('g1_kernel', gen_g1, (256,1,1), (512,1,1)), ('g2_kernel', gen_g2, (256,1,1), (512,1,1))]

def build_all(kernels=None):
    ks = []
    if kernels is None:
        kernels = KERNELS[:3] + [('gg_kernel', gen_gg, (256,1,1), (512,1,1))] if FUSE_GG else KERNELS
    for name, fn, grid, block in kernels:
        if W1PF and name in ('p2_kernel', 'p3_kernel'): block = (320, 1, 1)
        k, nv, lds = fn()
        if ST_ALL:
            k.l = [ (x + ' ' + ST_ALL) if ('buffer_store' in x and 'sc1' not in x and 'sc0' not in x and ' nt' not in x) else x for x in k.l]
        if name.startswith('g'):
            if NO_DMA: k.l = [x for x in k.l if not ('offen lds' in x)]
            if NO_MFMA: k.l = [x for x in k.l if 'v_mfma' not in x]
            if NO_ADV: k.l = [x for x in k.l if not (x.strip().startswith('s_add_u32 s40, s40,') or x.strip().startswith('s_add_u32 s41, s41,'))]
            if NO_A: k.l = [x for x in k.l if not ('s[12:15]' in x and 'offen lds' in x)]
            if NO_B: k.l = [x for x in k.l if not ('s[8:11]' in x and 'offen lds' in x)]
            if NO_BAR: k.l = [x for x in k.l if 's_barrier' not in x]
            if NO_READ: k.l = [x for x in k.l if 'ds_read_b64_tr' not in x]
        ks.append((name, k, nv, lds, grid, block))
    hdr = open('sequential_preLN__spectral_gfnet__mixer_token_mlp__prompt.s.ref').read().split('; Override launch')[0]
    s = hdr
    for name, k, nv, lds, grid, block in ks:
        s += f"; @launch kernel={name} grid=({grid[0]},{grid[1]},{grid[2]}) block=({block[0]},{block[1]},{block[2]}) lds={lds}\n"
    s += '.amdgcn_target "amdgcn-amd-amdhsa--gfx950"\n.text\n'
    for name, k, nv, lds, grid, block in ks: s += k.text()
    s += 'L_text_end:\n'
    s += '.section .rodata,"a"\n'
    for name, k, nv, lds, grid, block in ks: s += descriptor(name, nv)
    return s, ks

if __name__ == '__main__':
    s, ks = build_all()
    open(sys.argv[1] if len(sys.argv) > 1 else 'out.s', 'w').write(s)
    print('written', len(s), 'bytes')
```

```python
import sys, math, struct
sys.path.insert(0, 'work')
from asmlib import *

ZW_OFF = 0x0          ; ZW_SIZE = 257*32768
ZD_OFF = 0x0 ; WB_OFF = 0x480000
VB_OFF = 0x900000     ; VB_BLK = 256*64
H_OFF  = 0xE00000
HN_OFF = 0x1200000
GT_OFF = 0x1600000
WS_USED = 0x1D00000
S, D, F = 2048, 1024, 3584

def f32(x):
    return '0x%08x' % struct.unpack('<I', struct.pack('<f', x))[0]

CVT = 'v_cvt_pk_bf16_f32'
STAMP = False
NO_DMA = False
NO_MFMA = False
NO_READ = False
NO_BAR = False
NO_ADV = False
NO_A = False
NO_B = False
STAMP_OFF = 0x3000000
KIDX = {'p1':0,'p2':1,'p3':2,'g1':3,'g2':4}
NMARK = 8
def mark(k, i):
    if STAMP and not (LOOPSTAMP and k.name.startswith('g') and 1 <= i <= 4): k(f"s_memrealtime s[{64+2*i}:{65+2*i}]")
def stamp_begin(k):
    if STAMP:
        for i in range(1, NMARK): k(f"s_mov_b64 s[{64+2*i}:{65+2*i}], 0")
        k("s_memrealtime s[64:65]")
        k("s_memtime s[94:95]")
def stamp_end(k, tag, tid=0, slot=0, sfx=''):
    if not STAMP: return
    mark(k, 6)
    k("s_waitcnt vmcnt(0) lgkmcnt(0)")
    mark(k, 7)
    k("s_memtime s[84:85]")
    k("s_load_dwordx2 s[88:89], s[0:1], 80")
    k("s_waitcnt lgkmcnt(0)")
    k(f"s_add_u32 s88, s88, {STAMP_OFF + KIDX[tag]*65536}")
    k("s_addc_u32 s89, s89, 0")
    k(f"s_add_u32 s87, s2, {slot}")
    k("s_lshl_b32 s87, s87, 7")
    k("v_mov_b32 v8, s87")
    k(f"v_cmp_eq_u32 vcc, {tid}, v0" if tid <= 64 else f"v_cmp_eq_u32 vcc, {hex(tid)}, v0")
    k("s_and_saveexec_b64 s[86:87], vcc")
    k(f"s_cbranch_execz L_{tag}_nostamp{sfx}")
    for i in range(0, NMARK, 2):
        for j in range(4): k(f"v_mov_b32 v{4+j}, s{64+2*i+j}")
        k(f"global_store_dwordx4 v8, v[4:7], s[88:89] offset:{8*i}")
        k("s_nop 1")
    k("v_mov_b32 v4, s94"); k("v_mov_b32 v5, s95"); k("v_mov_b32 v6, s84"); k("v_mov_b32 v7, s85")
    k("global_store_dwordx4 v8, v[4:7], s[88:89] offset:64")
    k("s_getreg_b32 s84, hwreg(HW_REG_XCC_ID, 0, 4)")
    k("s_nop 1")
    k("v_mov_b32 v4, s84")
    k("global_store_dword v8, v4, s[88:89] offset:80")
    k(f"L_{tag}_nostamp{sfx}:")

MF32 = 'v_mfma_f32_32x32x16_bf16'

CODEPF = 1
W1PF = 0
W1PF0 = 0
W1L2 = 0
ST_FLAGS = ''
ST_ALL = ''
ST_P1 = 'sc1'
ST_P2 = 'sc1'
ST_P3 = 'sc1'
ST_G1 = 'sc1'
ST_G2 = 'nt'
OUT_TOUCH = 0
def code_prefetch(k, tag, first_label, last_label, vtmp, stmp, nwaves_cond=None):
    if not CODEPF: return
    k(f"s_getpc_b64 s[{stmp}:{stmp+1}]")
    k(f"L_{tag}_pc:")
    k(f"s_add_u32 s{stmp}, s{stmp}, {first_label}-L_{tag}_pc")
    k(f"s_addc_u32 s{stmp+1}, s{stmp+1}, 0")

WS_BASE = 0
def srd(k, s, base, size, off=0):
    if base == 26: off += WS_BASE
    if off:
        k(f"s_add_u32 s{s}, s{base}, {hex(off)}")
        k(f"s_addc_u32 s{s+1}, s{base+1}, 0")
    else:
        k(f"s_mov_b32 s{s}, s{base}")
        k(f"s_mov_b32 s{s+1}, s{base+1}")
    k(f"s_mov_b32 s{s+2}, {hex(size)}")
    k(f"s_mov_b32 s{s+3}, 0x20000")

SEQ = [(r, c) for r in range(4) for c in range(4)]

def rot_setup(k, vA, t):
    k(f"v_mul_f32 v{t+4}, {f32(5.0)}, v{vA}")
    k(f"v_cos_f32 v{t}, v{vA}")
    k(f"v_sin_f32 v{t+1}, v{vA}")
    k(f"v_cos_f32 v{t+2}, v{t+4}")
    k(f"v_sin_f32 v{t+3}, v{t+4}")

def rot(k, dst, src, st, tmp, sign):
    k(f"v_pk_mul_f32 {vr(tmp,2)}, {vr(src,2)}, {vr(st,2)} op_sel_hi:[1,0]")
    neg = "neg_lo:[0,1,0]" if sign > 0 else "neg_hi:[0,1,0]"
    k(f"v_pk_fma_f32 {vr(dst,2)}, {vr(src,2)}, {vr(st,2)}, {vr(tmp,2)} op_sel:[1,1,0] op_sel_hi:[0,1,1] {neg}")

def gen_matrix(k, Mr, Mi, vA, vB, t):
    rot_setup(k, vA, t)
    cur = [t+6, t+8]
    k(f"v_cos_f32 v{cur[0]}, v{vB}")
    k(f"v_sin_f32 v{cur[0]+1}, v{vB}")
    k("s_nop 0")
    for i, (r, c) in enumerate(SEQ):
        a_, b_ = cur[i % 2], cur[(i+1) % 2]
        if i < 15: rot(k, b_, a_, t+2 if c == 3 else t, t+4, +1)
        k(f"{CVT} v{Mr+i}, v{a_}, v{a_+1}")
        k(f"{CVT} v{Mi+i}, -v{a_+1}, v{a_}")

def gen_twiddle(k, tw, vA, vB, t, scale=None):
    rot_setup(k, vA, t)
    k(f"v_cos_f32 v{tw}, v{vB}")
    k(f"v_sin_f32_e64 v{tw+1}, -v{vB}")
    if scale is not None:
        k(f"v_mul_f32 v{tw}, {f32(scale)}, v{tw}")
        k(f"v_mul_f32 v{tw+1}, {f32(scale)}, v{tw+1}")
    else: k("s_nop 0")
    for i, (r, c) in enumerate(SEQ):
        if i < 15: rot(k, tw+2*(i+1), tw+2*i, t+2 if c == 3 else t, t+4, -1)

def stage(k, typ, Dr, Di, data, Mr, Mi, first=True):
    for r in range(4):
        for (Dx, M) in ((Dr, Mr), (Di, Mi)):
            c = '0' if (r == 0 and first) else vr(Dx, 16)
            if typ == 'A': k(f"{MF32} {vr(Dx,16)}, {vr(data+4*r,4)}, {vr(M+4*r,4)}, {c}")
            else:          k(f"{MF32} {vr(Dx,16)}, {vr(M+4*r,4)}, {vr(data+4*r,4)}, {c}")

def cmul_pack(k, Dr, Di, w, out, t, conj=False):
    for j in range(16):
        o = t + 2*(j % 4); jp = j & ~1; x = j & 1
        k(f"v_pk_mul_f32 {vr(o,2)}, {vr(w+2*j,2)}, {vr(Dr+jp,2)} op_sel:[0,{x}] op_sel_hi:[1,{x}]")
        k(f"v_pk_fma_f32 {vr(o,2)}, {vr(w+2*j,2)}, {vr(Di+jp,2)}, {vr(o,2)} op_sel:[1,{x},0] op_sel_hi:[0,{x},1] neg_lo:[1,0,0]")
        if j >= 1:
            po = t + 2*((j-1) % 4); n = '-' if conj else ''
            k(f"{CVT} v{out+j-1}, v{po}, {n}v{po+1}")
    po = t + 2*(15 % 4); n = '-' if conj else ''
    k(f"{CVT} v{out+15}, v{po}, {n}v{po+1}")

def wave_reduce2(k, a, b):
    for m in ("quad_perm:[1,0,3,2] row_mask:0xf", "quad_perm:[2,3,0,1] row_mask:0xf", "row_half_mirror row_mask:0xf",
              "row_mirror row_mask:0xf", "row_bcast:15 row_mask:0xa", "row_bcast:31 row_mask:0xc"):
        k(f"v_add_f32_dpp v{a}, v{a}, v{a} {m} bank_mask:0xf")
        k(f"v_add_f32_dpp v{b}, v{b}, v{b} {m} bank_mask:0xf")

def tree_sum(k, X, n, t, op='add'):
    acc = [t, t+2, t+4, t+6]
    for i in range(4):
        k(f"v_pk_add_f32 {vr(acc[i],2)}, {vr(X+2*i,2)}, {vr(X+2*(i+4),2)}")
    for i in range(8, n):
        k(f"v_pk_add_f32 {vr(acc[i%4],2)}, {vr(acc[i%4],2)}, {vr(X+2*i,2)}")
    k(f"v_pk_add_f32 {vr(acc[0],2)}, {vr(acc[0],2)}, {vr(acc[1],2)}")
    k(f"v_pk_add_f32 {vr(acc[2],2)}, {vr(acc[2],2)}, {vr(acc[3],2)}")
    k(f"v_pk_add_f32 {vr(acc[0],2)}, {vr(acc[0],2)}, {vr(acc[2],2)}")

def ln_scalars(k, t, twice=False):
    k(f"v_mul_f32 v{t}, {f32(1/1024)}, v{t}")
    k(f"v_mul_f32 v{t+1}, {f32(1/1024)}, v{t+1}")
    if twice:
        k(f"v_add_f32 v{t+2}, {f32(1e-5)}, v{t}")
        k(f"v_add_f32 v{t+3}, {f32(1e-5)}, v{t+1}")
        k(f"v_rsq_f32 v{t+2}, v{t+2}")
        k(f"v_rsq_f32 v{t+3}, v{t+3}")
        k("s_nop 0")
        k(f"v_mul_f32 v{t}, v{t}, v{t+2}")
        k(f"v_mul_f32 v{t+1}, v{t+1}, v{t+3}")
        k(f"v_mul_f32 v{t}, v{t}, v{t+2}")
        k(f"v_mul_f32 v{t+1}, v{t+1}, v{t+3}")
        k(f"v_add_f32 v{t}, {f32(1e-5)}, v{t}")
        k(f"v_add_f32 v{t+1}, {f32(1e-5)}, v{t+1}")
        k(f"v_rsq_f32 v{t}, v{t}")
        k(f"v_rsq_f32 v{t+1}, v{t+1}")
        k("s_nop 0")
        k(f"v_mul_f32 v{t}, v{t}, v{t+2}")
        k(f"v_mul_f32 v{t+1}, v{t+1}, v{t+3}")
        k(f"v_mul_f32 v{t+12}, v{t+12}, v{t}")
        k(f"v_mul_f32 v{t+13}, v{t+13}, v{t+1}")
        return
    if EMU_LN:
        k(f"{CVT} v{t+2}, v{t}, v{t+1}")
        k(f"v_lshlrev_b32 v{t}, 16, v{t+2}")
        k(f"v_and_b32 v{t+1}, 0xffff0000, v{t+2}")
    k(f"v_add_f32 v{t}, {f32(1e-5)}, v{t}")
    k(f"v_add_f32 v{t+1}, {f32(1e-5)}, v{t+1}")
    if EMU_LN:
        k(f"{CVT} v{t+2}, v{t}, v{t+1}")
        k(f"v_lshlrev_b32 v{t}, 16, v{t+2}")
        k(f"v_and_b32 v{t+1}, 0xffff0000, v{t+2}")
        k(f"v_sqrt_f32 v{t}, v{t}")
        k(f"v_sqrt_f32 v{t+1}, v{t+1}")
        k(f"s_nop 0")
        k(f"{CVT} v{t+2}, v{t}, v{t+1}")
        k(f"v_lshlrev_b32 v{t}, 16, v{t+2}")
        k(f"v_and_b32 v{t+1}, 0xffff0000, v{t+2}")
        k(f"v_rcp_f32 v{t}, v{t}")
        k(f"v_rcp_f32 v{t+1}, v{t+1}")
    else:
        k(f"v_rsq_f32 v{t}, v{t}")
        k(f"v_rsq_f32 v{t+1}, v{t+1}")
    k(f"s_nop 0")
    k(f"v_mul_f32 v{t+12}, v{t+12}, v{t}")
    k(f"v_mul_f32 v{t+13}, v{t+13}, v{t+1}")

def ln_mean(k, t, sTmp):
    k(f"v_mul_f32 v{t}, {f32(1/1024)}, v{t}")
    k(f"v_mul_f32 v{t+1}, {f32(1/1024)}, v{t+1}")
    if EMU_LN:
        k(f"{CVT} v{t+2}, v{t}, v{t+1}")
        k(f"v_readlane_b32 s{sTmp}, v{t}, 63")
        k(f"v_readlane_b32 s{sTmp+1}, v{t+1}, 63")
        k(f"v_lshlrev_b32 v{t+12}, 16, v{t+2}")
        k(f"v_and_b32 v{t+13}, 0xffff0000, v{t+2}")
    else:
        k(f"v_mov_b32 v{t+12}, v{t}")
        k(f"v_mov_b32 v{t+13}, v{t+1}")
        k(f"v_readlane_b32 s{sTmp}, v{t}, 63")
        k(f"v_readlane_b32 s{sTmp+1}, v{t+1}, 63")

def ln_stats_xrow(k, X, t, sM, sR, sTmp):
    tree_sum(k, X, 16, t)
    wave_reduce2(k, t, t+1)
    ln_mean(k, t, sTmp)
    acc = [t, t+2]; tmp = [t+4, t+6, t+8, t+10]
    for i in range(16):
        d = tmp[i % 4]
        k(f"v_pk_add_f32 {vr(d,2)}, {vr(X+2*i,2)}, {sr(sTmp,2)} neg_lo:[0,1] neg_hi:[0,1]")
        a = acc[i % 2]
        if i < 2: k(f"v_pk_mul_f32 {vr(a,2)}, {vr(d,2)}, {vr(d,2)}")
        else:     k(f"v_pk_fma_f32 {vr(a,2)}, {vr(d,2)}, {vr(d,2)}, {vr(a,2)}")
    k(f"v_pk_add_f32 {vr(t,2)}, {vr(t,2)}, {vr(t+2,2)}")
    wave_reduce2(k, t, t+1)
    ln_scalars(k, t)
    k(f"v_readlane_b32 s{sR}, v{t}, 63")
    k(f"v_readlane_b32 s{sR+1}, v{t+1}, 63")
    k(f"v_readlane_b32 s{sM}, v{t+12}, 63")
    k(f"v_readlane_b32 s{sM+1}, v{t+13}, 63")

def gen_p1():
    k = Kern('p1_kernel')
    k("s_cmp_ge_u32 s2, 256")
    k("s_cbranch_scc1 L_p1_end")
    stamp_begin(k)
    k("s_load_dwordx4 s[4:7], s[0:1], 0")
    k("s_load_dwordx2 s[24:25], s[0:1], 16")
    k("s_load_dwordx2 s[60:61], s[0:1], 32")
    k("s_load_dwordx2 s[26:27], s[0:1], 80")
    TID, LANE = 0, 1
    if CODEPF:
        k("s_getpc_b64 s[52:53]")
        k("L_p1_pc:")
        k("s_sub_u32 s52, s52, L_p1_pc-p1_kernel")
        k("s_subb_u32 s53, s53, 0")
        k("s_lshr_b32 s54, s2, 3")
        k("s_mul_i32 s54, s54, (L_text_end-p1_kernel+4095)/4096")
        k("v_add_u32 v213, s54, v0")
        k("v_lshlrev_b32 v213, 7, v213")
        k("v_mov_b32 v211, s53")
        k("v_add_co_u32 v210, vcc, s52, v213")
        k("v_addc_co_u32 v211, vcc, 0, v211, vcc")
        k("v_cmp_gt_u32 vcc, (L_text_end-p1_kernel+4095)/4096, v0")
        k("s_and_saveexec_b64 s[54:55], vcc")
        k("s_cbranch_execz L_p1_cp0")
        k("v_cmp_gt_u32 vcc, L_text_end-p1_kernel, v213")
        k("s_and_b64 exec, exec, vcc")
        k("s_cbranch_execz L_p1_cp0")
        k("global_load_dword v212, v[210:211], off")
        k("L_p1_cp0:")
        k("s_mov_b64 exec, -1")
    k("v_and_b32 v1, 63, v0")
    k("v_lshrrev_b32 v2, 6, v0")
    k("v_readfirstlane_b32 s28, v2")
    k("s_lshr_b32 s29, s2, 5")
    k("s_lshl_b32 s29, s29, 2")
    k("s_and_b32 s30, s2, 31")
    k("s_add_u32 s31, s29, s28")
    k("s_lshl_b32 s31, s31, 5")
    k("s_add_u32 s31, s31, s30")
    k("s_lshl_b32 s31, s31, 11")
    k("s_add_u32 s32, s31, 0x200000")
    k("s_waitcnt lgkmcnt(0)")
    srd(k, 8, 4, S*D*2)
    srd(k, 12, 6, S*513*2)
    srd(k, 16, 24, S*513*2)
    srd(k, 20, 26, 257*16384, ZD_OFF)
    srd(k, 72 if False else 52, 26, 257*16384, WB_OFF) if False else None
    XL = 4
    if FUSE_GG:
        srd(k, 56, 26, 1024, BAR_OFF)
        k("s_cmp_lt_u32 s2, 8")
        k("s_cbranch_scc0 L_p1_nozb")
        k("s_lshl_b32 s33, s2, 7")
        k("v_mov_b32 v2, 0")
        k("v_cmp_eq_u32 vcc, 0, v0")
        k("s_and_saveexec_b64 s[34:35], vcc")
        k("s_cbranch_execz L_p1_nozb")
        k("buffer_store_dword v2, v2, s[56:59], s33 offen sc0 sc1")
        k("L_p1_nozb:")
        k("s_mov_b64 exec, -1")
    k("v_lshlrev_b32 v2, 4, v1")
    k(f"buffer_load_dwordx4 {vr(XL,4)}, v2, s[8:11], s31 offen {NT_X}")
    k(f"buffer_load_dwordx4 {vr(XL+4,4)}, v2, s[8:11], s31 offen offset:1024 {NT_X}")
    k(f"buffer_load_dwordx4 {vr(XL+8,4)}, v2, s[8:11], s32 offen {NT_X}")
    k(f"buffer_load_dwordx4 {vr(XL+12,4)}, v2, s[8:11], s32 offen offset:1024 {NT_X}")
    WL = 20
    def w_loads():
        k("v_lshlrev_b32 v220, 2, v0")
        k("s_lshl_b32 s33, s29, 6")
        k("s_lshl_b32 s34, s30, 1")
        k("s_add_u32 s33, s33, s34")
        k("s_mul_i32 s33, s33, 1026")
        for pi in range(2):
            for cc in range(4):
                off = (64*cc + pi)*1026
                k(f"s_add_u32 s34, s33, {off}")
                k(f"buffer_load_dword v{WL+4*pi+cc}, v220, s[12:15], s34 offen {NT_W}")
                k(f"buffer_load_dword v{WL+8+4*pi+cc}, v220, s[16:19], s34 offen {NT_W}")
        WX = 200
        k("v_and_b32 v200, 3, v1")
        k("v_lshlrev_b32 v200, 6, v200")
        k("v_bfe_u32 v201, v1, 2, 1")
        k("v_add_u32 v200, v200, v201")
        k("v_mul_u32_u24 v200, 1026, v200")
        k("v_add_u32 v200, 1024, v200")
        k("v_and_b32 v226, 3, v1")
        k("v_lshlrev_b32 v226, 6, v226")
        k("v_add_u32 v226, v226, v201")
        k("s_lshl_b32 s49, s29, 6")
        k("s_lshl_b32 s50, s30, 1")
        k("s_add_u32 s49, s49, s50")
        k("v_add_u32 v226, s49, v226")
        k("v_sub_u32 v226, 2048, v226")
        k("v_and_b32 v226, 2047, v226")
        k("v_mul_u32_u24 v226, 1026, v226")
        k("v_subrev_u32 v227, 1024, v200")
        k("v_cmp_gt_u32 vcc, 8, v0")
        k("s_and_saveexec_b64 s[36:37], vcc")
        k("s_cbranch_execz L_p1_nox")
        k("buffer_load_ushort v202, v200, s[12:15], s33 offen")
        k("buffer_load_ushort v203, v200, s[16:19], s33 offen")
        k("buffer_load_ushort v228, v227, s[12:15], s33 offen")
        k("buffer_load_ushort v229, v227, s[16:19], s33 offen")
        k("buffer_load_ushort v230, v226, s[12:15], 0 offen")
        k("buffer_load_ushort v231, v226, s[16:19], 0 offen")
        k("buffer_load_ushort v232, v226, s[12:15], 0 offen offset:1024")
        k("buffer_load_ushort v233, v226, s[16:19], 0 offen offset:1024")
        k("L_p1_nox:")
        k("s_mov_b64 exec, -1")
    if WEARLY: w_loads()
    WL = 20
    Mr, Mi, TW = 36, 52, 68
    XF, DR, DI, OP, T = 100, 132, 148, 164, 180
    k("v_and_b32 v2, 31, v1")
    k("v_cvt_f32_u32 v2, v2")
    k("v_lshrrev_b32 v3, 5, v1")
    k("v_lshlrev_b32 v3, 2, v3")
    k("v_cvt_f32_u32 v3, v3")
    k(f"v_mul_f32 v204, {f32(1/32)}, v2")
    k("v_mul_f32 v205, v204, v3")
    gen_matrix(k, Mr, Mi, 204, 205, T)
    k(f"v_mul_f32 v204, {f32(1/1024)}, v2")
    k("v_mul_f32 v205, v204, v3")
    gen_twiddle(k, TW, 204, 205, T)
    STG = 16384; WST = STG + 257*64 + 64
    k("s_lshr_b32 s44, s2, 2")
    k("s_and_b32 s44, s44, 3")
    k("s_mov_b32 s45, 0x05040100")
    k("s_mov_b32 s46, 0x07060302")
    k("s_lshl_b32 s47, s2, 6")
    k("s_lshl_b32 s48, s28, 2")
    k(f"s_add_u32 s48, s48, {STG}")
    B1, B2, AWJ, AX, ARD, AGL, AT1, AT2, AWR, AWG = 206, 207, 208, 209, 216, 217, 218, 219, 221, 222
    k("v_and_b32 v2, 31, v1")
    k("v_lshrrev_b32 v3, 5, v1")
    k("v_and_b32 v204, 1, v2")
    k("v_lshrrev_b32 v205, 1, v2")
    k(f"v_xor_b32 v{B1}, s44, v204")
    k(f"v_lshlrev_b32 v{B1}, 4, v{B1}")
    k(f"v_lshl_add_u32 v{B1}, v205, 6, v{B1}")
    k(f"v_lshl_add_u32 v{B1}, v3, 12, v{B1}")
    k(f"v_add_u32 v{B1}, s48, v{B1}")
    k("v_add_u32 v205, 1, v2")
    k("v_lshrrev_b32 v205, 1, v205")
    k("v_add_u32 v204, 2, v204")
    k(f"v_xor_b32 v{B2}, s44, v204")
    k(f"v_lshlrev_b32 v{B2}, 4, v{B2}")
    k("v_lshlrev_b32 v205, 6, v205")
    k(f"v_sub_u32 v{B2}, v{B2}, v205")
    k("v_lshlrev_b32 v205, 12, v3")
    k(f"v_sub_u32 v{B2}, v{B2}, v205")
    k(f"v_add_u32 v{B2}, s48, v{B2}")
    k("s_lshl_b32 s49, s28, 12")
    k(f"s_add_u32 s49, s49, {WST}")
    k("v_bfe_u32 v204, v1, 1, 2")
    k("v_xor_b32 v204, s44, v204")
    k("v_lshlrev_b32 v204, 4, v204")
    k(f"v_lshl_add_u32 v{AWJ}, v1, 6, v204")
    k(f"v_add_u32 v{AWJ}, s49, v{AWJ}")
    k("v_lshrrev_b32 v204, 2, v1")
    k("v_and_b32 v205, 3, v1")
    k(f"v_bfe_u32 v{AT1}, v204, 1, 2")
    k(f"v_xor_b32 v{AT1}, v{AT1}, v205")
    k(f"v_lshlrev_b32 v{AT1}, 4, v{AT1}")
    k(f"v_lshl_add_u32 v{AWR}, v204, 6, v{AT1}")
    k(f"v_add_u32 v{AWR}, s49, v{AWR}")
    k("s_lshl_b32 s49, s28, 6")
    k("v_add_u32 v204, s49, v204")
    k("v_lshlrev_b32 v204, 14, v204")
    k(f"v_lshl_add_u32 v{AWG}, v205, 4, v204")
    k("v_bfe_u32 v204, v1, 2, 1")
    k("v_xor_b32 v204, s44, v204")
    k("v_lshlrev_b32 v204, 4, v204")
    k("v_and_b32 v205, 3, v1")
    k(f"v_lshl_add_u32 v{AX}, v205, 2, v204")
    APW = 223
    k(f"v_add_u32 v{APW}, {WST}, v{AX}")
    k(f"v_lshlrev_b32 v{ARD}, 4, v0")
    k(f"v_add_u32 v{ARD}, {STG}, v{ARD}")
    k("v_lshrrev_b32 v204, 2, v0")
    k("v_lshlrev_b32 v204, 14, v204")
    k("v_and_b32 v205, 3, v0")
    k(f"v_lshl_add_u32 v{AGL}, v205, 4, v204")
    k("s_xor_b32 s49, s44, 2")
    k("s_lshl_b32 s49, s49, 4")
    k("s_add_u32 s49, s49, s48")
    k("s_lshl_b32 s50, s44, 4")
    k("s_add_u32 s50, s50, s48")
    k(f"v_mov_b32 v{AT1}, s49")
    k(f"v_mov_b32 v{AT2}, s50")
    k("s_lshl_b32 s36, s28, 12")
    k("v_lshlrev_b32 v2, 5, v1")
    k("v_add_u32 v2, s36, v2")
    k("v_and_b32 v3, 31, v1")
    k("v_lshlrev_b32 v3, 2, v3")
    k("v_lshrrev_b32 v204, 5, v1")
    k("v_lshlrev_b32 v204, 9, v204")
    k("v_add3_u32 v3, v3, v204, s36")
    k("s_mov_b32 s35, 0xffff0000")
    mark(k, 1)
    k("s_waitcnt vmcnt(16)" if WEARLY else "s_waitcnt vmcnt(0)")
    mark(k, 2)
    if not WEARLY: w_loads()
    for i in range(16):
        for row in range(2):
            src = XL + 8*row + (i >> 1)
            if i % 2 == 0: k(f"v_lshlrev_b32 v{XF+2*i+row}, 16, v{src}")
            else:          k(f"v_and_b32 v{XF+2*i+row}, s35, v{src}")
    ln_stats_xrow(k, XF, T, 38, 40, 42)
    k(f"v_mov_b32 v{T+8}, s40"); k(f"v_mov_b32 v{T+9}, s41")
    k(f"v_mov_b32 v{T+10}, s38"); k(f"v_mov_b32 v{T+11}, s39")
    for i in range(16):
        d = T + 2*(i % 4)
        k(f"v_pk_fma_f32 {vr(d,2)}, {vr(XF+2*i,2)}, {vr(T+8,2)}, {vr(T+10,2)} neg_lo:[0,0,1] neg_hi:[0,0,1]")
        k(f"{CVT} v{OP+i}, v{d}, v{d+1}")
    k(f"ds_write_b128 v2, {vr(OP,4)}")
    k(f"ds_write_b128 v2, {vr(OP+4,4)} offset:16")
    k(f"ds_write_b128 v2, {vr(OP+8,4)} offset:2048")
    k(f"ds_write_b128 v2, {vr(OP+12,4)} offset:2064")
    k("s_waitcnt lgkmcnt(0)")
    for i, (r, c) in enumerate(SEQ):
        k(f"ds_read_b32 v{OP+i}, v3 offset:{(8*r+c)*128}")
    mark(k, 3)
    k("s_waitcnt lgkmcnt(0)")
    stage(k, 'A', DR, DI, OP, Mr, Mi)
    def w_job():
        srd(k, 56, 26, 257*16384, WB_OFF)
        k("s_waitcnt vmcnt(4)" if WJOB == 2 else "s_waitcnt vmcnt(0)")
        WO = XF
        for e in range(2):
            for pi in range(2):
                for cc in range(4):
                    k(f"v_perm_b32 v{WO+4*(2*e+pi)+cc}, v{WL+8+4*pi+cc}, v{WL+4*pi+cc}, s{45+e}")
        for sl in range(4):
            if sl: k(f"v_xor_b32 v204, {16*sl}, v{AWJ}")
            k(f"ds_write_b128 v{204 if sl else AWJ}, {vr(WO+4*sl,4)}")
        k("s_add_u32 s49, s47, 0x400000")
        k("v_cmp_gt_u32 vcc, 8, v0")
        k("s_and_saveexec_b64 s[36:37], vcc")
        k("s_cbranch_execz L_p1_nox2")
        for r_ in (202, 203, 228, 229, 230, 231, 232, 233): k(f"v_lshlrev_b32 v{r_}, 16, v{r_}")
        k("v_add_f32 v228, v228, v230")
        k("v_sub_f32 v229, v229, v231")
        k("v_add_f32 v202, v202, v232")
        k("v_sub_f32 v203, v203, v233")
        k("v_add_f32 v230, v228, v202")
        k("v_add_f32 v231, v229, v203")
        k("v_sub_f32 v232, v228, v202")
        k("v_sub_f32 v233, v229, v203")
        for r_ in (230, 231, 232, 233): k(f"v_mul_f32 v{r_}, 0x3e800000, v{r_}")
        k(f"{CVT} v202, v230, v231")
        k(f"{CVT} v203, v232, v233")
        k(f"ds_write_b32 v{APW}, v202")
        k(f"buffer_store_dword v203, v{AX}, s[56:59], s49 offen {ST_P1}")
        k("L_p1_nox2:")
        k("s_mov_b64 exec, -1")
        k("s_waitcnt lgkmcnt(0)")
        for j in range(4): k(f"ds_read_b128 {vr(WO+16+4*j,4)}, v{AWR} offset:{1024*j}")
        k("s_mov_b32 s49, s47")
        for j in range(4):
            k(f"s_waitcnt lgkmcnt({3-j})")
            k(f"buffer_store_dwordx4 {vr(WO+16+4*j,4)}, v{AWG}, s[56:59], s49 offen {ST_P1}")
            if j < 3: k(f"s_add_u32 s49, s49, {16*16384}")
    if WJOB == 0: w_job()
    cmul_pack(k, DR, DI, TW, OP, T)
    stage(k, 'B', DR, DI, OP, Mr, Mi)
    mark(k, 4)
    for i, (r, c) in enumerate(SEQ):
        if r < 2: k(f"{CVT} v{OP+i}, v{DR+i}, v{DI+i}")
        else:     k(f"{CVT} v{OP+i}, v{DI+i}, v{DR+i}")
        if r < 2: k(f"ds_write_b32 v{B1}, v{OP+i} offset:{(8*r+c)*1024}")
        else:     k(f"ds_write_b32 v{B2}, v{OP+i} offset:{(32-8*r-c)*1024}")
    k(f"v_sub_f32 v{T+2}, v{DR}, v{DI+8}")
    k(f"v_add_f32 v{T+3}, v{DI}, v{DR+8}")
    k(f"v_sub_f32 v{T+4}, v{DI}, v{DR+8}")
    k(f"v_add_f32 v{T+5}, v{DR}, v{DI+8}")
    k(f"{CVT} v{T}, v{T+4}, v{T+5}")
    k(f"{CVT} v{T+1}, v{T+2}, v{T+3}")
    k("s_mov_b64 exec, 1")
    k(f"ds_write_b32 v{AT1}, v{T}")
    k(f"ds_write_b32 v{AT2}, v{T+1}")
    k("s_mov_b64 exec, -1")
    if WJOB == 1: w_job()
    k("s_waitcnt lgkmcnt(0)")
    k("s_barrier")
    RO = XF
    for j in range(4):
        k(f"ds_read_b128 {vr(RO+4*j,4)}, v{ARD} offset:{4096*j}")
    for j in range(4):
        k(f"s_waitcnt lgkmcnt({3-j})")
        k(f"buffer_store_dwordx4 {vr(RO+4*j,4)}, v{AGL}, s[20:23], s47 offen {ST_P1}")
        if j < 3: k("s_add_u32 s47, s47, 0x100000")
    if WJOB == 2:
        k("s_sub_u32 s47, s47, 0x300000")
        w_job()
    stamp_end(k, 'p1')
    k("L_p1_end:")
    k("s_endpgm")
    k("L_p1_endc:")
    return k, 236, WST + 16384

def pf_wave(k, tag, first_line):
    if not W1PF: return
    k("s_cmp_eq_u32 s28, 4")
    k(f"s_cbranch_scc0 L_{tag}_nopf")
    k("s_waitcnt lgkmcnt(0)")
    srd(k, 16, 24, S*F*2)
    k(f"s_mul_i32 s33, s2, {W1PF*128}")
    k(f"s_add_u32 s33, s33, {first_line*128}")
    k("v_lshlrev_b32 v3, 7, v1")
    for i in range(W1PF//64):
        k("buffer_load_dword v4, v3, s[16:19], s33 offen")
        k("s_add_u32 s33, s33, 8192")
    k("s_endpgm")
    k(f"L_{tag}_nopf:")

def next_code_pf(k, tag, first, last, nwg, vt, st, lane):
    if not CODEPF2: return
    per = f"(({last}-{first})/128+{nwg})/{nwg}"
    k(f"s_getpc_b64 s[{st}:{st+1}]")
    k(f"L_{tag}_npc:")
    k(f"s_add_u32 s{st}, s{st}, {first}-L_{tag}_npc")
    k(f"s_addc_u32 s{st+1}, s{st+1}, 0")
    k(f"s_lshr_b32 s{st+2}, s2, 3")
    k(f"s_mul_i32 s{st+2}, s{st+2}, {per}")
    k(f"v_add_u32 v{vt+2}, s{st+2}, v{lane}")
    k(f"v_lshlrev_b32 v{vt+2}, 7, v{vt+2}")
    k(f"v_mov_b32 v{vt+1}, s{st+1}")
    k(f"v_add_co_u32 v{vt}, vcc, s{st}, v{vt+2}")
    k(f"v_addc_co_u32 v{vt+1}, vcc, 0, v{vt+1}, vcc")
    k(f"v_cmp_gt_u32 vcc, {per}, v{lane}")
    k(f"s_mov_b64 exec, vcc")
    k(f"v_cmp_gt_u32 vcc, {last}-{first}, v{vt+2}")
    k(f"s_and_b64 exec, exec, vcc")
    k(f"s_cbranch_execz L_{tag}_npe")
    k(f"global_load_dword v{vt+3}, v[{vt}:{vt+1}], off")
    k(f"L_{tag}_npe:")
    k("s_mov_b64 exec, -1")

def gen_p2():
    k = Kern('p2_kernel')
    k("s_cmp_ge_u32 s2, 256")
    k("s_cbranch_scc1 L_p2_end")
    stamp_begin(k)
    k("s_load_dwordx2 s[26:27], s[0:1], 80")
    k("s_load_dwordx2 s[24:25], s[0:1], 32")
    k("v_and_b32 v1, 63, v0")
    k("v_lshrrev_b32 v2, 6, v0")
    k("v_readfirstlane_b32 s28, v2")
    pf_wave(k, 'p2', W1PF0)
    k("v_lshlrev_b32 v2, 4, v1")
    k("s_lshr_b32 s29, s28, 1")
    k("s_and_b32 s30, s28, 1")
    k("s_lshl_b32 s31, s2, 14")
    k("s_lshl_b32 s32, s28, 12")
    k("s_add_u32 s31, s31, s32")
    k("s_waitcnt lgkmcnt(0)")
    srd(k, 8, 26, 257*16384, ZD_OFF)
    srd(k, 20, 26, 257*16384, WB_OFF)
    srd(k, 12, 26, 256*VB_BLK, VB_OFF)
    for i in range(4):
        k(f"s_add_u32 m0, s32, {1024*i}")
        k(f"s_add_u32 s33, s31, {1024*i}")
        k(f"buffer_load_dwordx4 v2, s[8:11], s33 offen lds")
    Z1, Z2 = 4, 20
    M1r, M1i, MFr, MFi, MIr, MIi = 36, 52, 68, 84, 100, 116
    T1, T2 = 132, 164
    DR, DI, T = 196, 212, 228
    A, B, J, H4, PI = 244, 245, 246, 247, 248
    k(f"v_and_b32 v{J}, 31, v1")
    k(f"v_cvt_f32_u32 v{J}, v{J}")
    k(f"v_lshrrev_b32 v{H4}, 5, v1")
    k(f"v_lshlrev_b32 v{H4}, 2, v{H4}")
    k(f"v_cvt_f32_u32 v{H4}, v{H4}")
    k(f"v_mov_b32 v{PI}, s30")
    k(f"v_cvt_f32_u32 v{PI}, v{PI}")
    k(f"v_mul_f32 v{A}, {f32(1/32)}, v{J}")
    k(f"v_mul_f32 v{B}, v{A}, v{H4}")
    gen_matrix(k, MFr, MFi, A, B, T)
    k(f"v_fma_f32 v{A}, v{J}, 2.0, v{PI}")
    k(f"v_mul_f32 v{A}, {f32(1/64)}, v{A}")
    k(f"v_mul_f32 v{B}, v{A}, v{H4}")
    gen_matrix(k, M1r, M1i, A, B, T)
    k("s_lshl_b32 s33, s30, 4")
    k(f"v_and_b32 v{T}, 31, v1")
    k(f"v_xor_b32 v{T}, s33, v{T}")
    k(f"v_cvt_f32_u32 v{T}, v{T}")
    k(f"v_mul_f32 v{A}, {f32(1/32)}, v{T}")
    k(f"v_mul_f32 v{B}, v{A}, v{H4}")
    k(f"v_mul_f32 v{T}, {f32(1/64)}, v{T}")
    k(f"v_fma_f32 v{B}, v{T}, v{PI}, v{B}")
    gen_matrix(k, MIr, MIi, A, B, T)
    k(f"v_fma_f32 v{A}, v{J}, 2.0, v{PI}")
    k(f"v_mul_f32 v{A}, {f32(1/2048)}, v{A}")
    k(f"v_mov_b32 v{T}, {f32(0.125)}")
    k(f"v_mul_f32 v{T+1}, {f32(-0.25)}, v{PI}")
    k(f"v_add_f32 v{T}, v{T}, v{T+1}")
    k(f"v_fma_f32 v{B}, v{A}, v{H4}, v{T}")
    gen_twiddle(k, T1, A, B, T)
    k(f"v_mul_f32 v{A}, {f32(1/1024)}, v{J}")
    k(f"v_mul_f32 v{B}, v{A}, v{H4}")
    k(f"v_mul_f32 v{T}, {f32(1/2048)}, v{J}")
    k(f"v_fma_f32 v{B}, v{T}, v{PI}, v{B}")
    gen_twiddle(k, T2, A, B, T)
    AZ1, AZ2, AW = 249, 250, 251
    k(f"v_bfe_u32 v{T}, v1, 2, 2")
    k(f"v_lshlrev_b32 v{T+1}, 6, v1")
    k(f"v_xor_b32 v{AZ1}, s29, v{T}")
    k(f"v_lshl_add_u32 v{AZ1}, v{AZ1}, 4, v{T+1}")
    k(f"v_xor_b32 v{AZ2}, 32, v{AZ1}")
    k("s_lshl_b32 s33, s29, 1")
    k("s_add_u32 s33, s33, s30")
    k(f"v_xor_b32 v{AW}, s33, v{T}")
    k(f"v_lshl_add_u32 v{AW}, v{AW}, 4, v{T+1}")
    k(f"v_add_u32 v{AW}, 16384, v{AW}")
    k("s_mul_i32 s34, s30, 0x80008000")
    k("s_mov_b32 s35, 0xffff0000")
    mark(k, 1)
    k("s_waitcnt vmcnt(0)")
    for i in range(4):
        k(f"s_add_u32 m0, s32, {16384+1024*i}")
        k(f"s_add_u32 s33, s31, {1024*i}")
        k(f"buffer_load_dwordx4 v2, s[20:23], s33 offen lds")
    k("s_barrier")
    mark(k, 2)
    for r in range(4):
        k(f"ds_read_b128 {vr(Z1+4*r,4)}, v{AZ1} offset:{4096*r}")
        k(f"ds_read_b128 {vr(Z2+4*r,4)}, v{AZ2} offset:{4096*r}")
    k("s_waitcnt lgkmcnt(0)")
    for i in range(16):
        k(f"v_xor_b32 v{Z2+i}, s34, v{Z2+i}")
    stage(k, 'A', DR, DI, Z1, M1r, M1i, first=True)
    stage(k, 'A', DR, DI, Z2, M1r, M1i, first=False)
    OP = Z1
    cmul_pack(k, DR, DI, T1, OP, T)
    k("s_waitcnt vmcnt(0)")
    k("s_barrier")
    for r in range(4):
        k(f"ds_read_b128 {vr(Z2+4*r,4)}, v{AW} offset:{4096*r}")
    stage(k, 'B', DR, DI, OP, MFr, MFi)
    WP = M1r
    k("s_waitcnt lgkmcnt(0)")
    for i in range(16):
        k(f"v_lshlrev_b32 v{WP+2*i}, 16, v{Z2+i}")
        k(f"v_and_b32 v{WP+2*i+1}, s35, v{Z2+i}")
    k("s_or_b32 s46, s2, s29")
    k("s_cmp_eq_u32 s46, 0")
    k("s_cbranch_scc1 L_p2_spec")
    cmul_pack(k, DR, DI, WP, OP, T, conj=True)
    k("L_p2_specd:")
    stage(k, 'A', DR, DI, OP, MFr, MFi)
    cmul_pack(k, DR, DI, T2, OP, T)
    stage(k, 'B', DR, DI, OP, MIr, MIi)
    mark(k, 4)
    XCH, STG = 32768, 49152
    AX = 252
    k("s_lshl_b32 s36, s28, 12")
    k(f"s_add_u32 s36, s36, {XCH}")
    k(f"v_lshl_add_u32 v{AX}, v1, 4, s36")
    k(f"ds_write_b128 v{AX}, {vr(DR+8,4)}")
    k(f"ds_write_b128 v{AX}, {vr(DR+12,4)} offset:1024")
    k(f"ds_write_b128 v{AX}, {vr(DI+8,4)} offset:2048")
    k(f"ds_write_b128 v{AX}, {vr(DI+12,4)} offset:3072")
    k(f"v_xor_b32 v{AX}, 4096, v{AX}")
    k("s_cmp_eq_u32 s30, 0")
    k(f"s_cselect_b32 s40, {f32(1.0)}, {f32(-1.0)}")
    k("s_mov_b32 s42, s40")
    k("s_waitcnt lgkmcnt(0)")
    k("s_barrier")
    OR_, OI = 36, 44
    k(f"ds_read_b128 {vr(OR_,4)}, v{AX}")
    k(f"ds_read_b128 {vr(OR_+4,4)}, v{AX} offset:1024")
    k(f"ds_read_b128 {vr(OI,4)}, v{AX} offset:2048")
    k(f"ds_read_b128 {vr(OI+4,4)}, v{AX} offset:3072")
    k(f"v_bfe_u32 v{T}, v1, 1, 2")
    k(f"v_xor_b32 v{T+1}, s29, v{T}")
    k(f"v_xor_b32 v{T+2}, 2, v{T+1}")
    k("s_lshl_b32 s43, s30, 13")
    k(f"s_add_u32 s43, s43, {STG}")
    k(f"v_lshl_add_u32 v{T+3}, v1, 6, s43")
    k(f"v_lshl_add_u32 v253, v{T+1}, 4, v{T+3}")
    k(f"v_lshl_add_u32 v254, v{T+2}, 4, v{T+3}")
    k("s_waitcnt lgkmcnt(0)")
    UA, UB = 52, 60
    Ur, Ui, Er, Ei, Ar, Ai, Br, Bi = 68, 70, 72, 74, 76, 78, 80, 82
    bc = "op_sel_hi:[1,0,1]"
    k("s_cmp_eq_u32 s46, 0")
    k("s_cbranch_scc1 L_p2_spost")
    for j in range(0, 8, 2):
        o = 16*((j//2) % 2)
        ur, ui, er, ei, a_r, a_i, b_r, b_i = [x+o for x in (Ur, Ui, Er, Ei, Ar, Ai, Br, Bi)]
        k(f"v_pk_add_f32 {vr(ur,2)}, {vr(DR+j,2)}, {vr(OR_+j,2)}")
        k(f"v_pk_add_f32 {vr(ui,2)}, {vr(DI+j,2)}, {vr(OI+j,2)}")
        k(f"v_pk_add_f32 {vr(er,2)}, {vr(DR+j,2)}, {vr(OR_+j,2)} neg_lo:[0,1] neg_hi:[0,1]")
        k(f"v_pk_add_f32 {vr(ei,2)}, {vr(DI+j,2)}, {vr(OI+j,2)} neg_lo:[0,1] neg_hi:[0,1]")
        k(f"v_pk_fma_f32 {vr(a_r,2)}, {vr(ei,2)}, s[42:43], {vr(ur,2)} {bc}")
        k(f"v_pk_fma_f32 {vr(b_r,2)}, {vr(ei,2)}, s[42:43], {vr(ur,2)} {bc} neg_lo:[1,0,0] neg_hi:[1,0,0]")
        k(f"v_pk_fma_f32 {vr(a_i,2)}, {vr(er,2)}, s[40:41], {vr(ui,2)} {bc} neg_lo:[1,0,0] neg_hi:[1,0,0]")
        k(f"v_pk_fma_f32 {vr(b_i,2)}, {vr(er,2)}, s[40:41], {vr(ui,2)} {bc} neg_lo:[1,0,1] neg_hi:[1,0,1]")
        k(f"{CVT} v{UA+j}, v{a_r}, v{a_i}")
        k(f"{CVT} v{UA+j+1}, v{a_r+1}, v{a_i+1}")
        k(f"{CVT} v{UB+j}, v{b_r}, v{b_i}")
        k(f"{CVT} v{UB+j+1}, v{b_r+1}, v{b_i+1}")
    k("s_branch L_p2_postd")
    k("L_p2_spost:")
    for j in range(0, 8, 2):
        o = 16*((j//2) % 2)
        ur, ui, er, ei, a_r, a_i, b_r, b_i = [x+o for x in (Ur, Ui, Er, Ei, Ar, Ai, Br, Bi)]
        k(f"v_pk_add_f32 {vr(ur,2)}, {vr(DR+j,2)}, {vr(OR_+j,2)}")
        k(f"v_pk_add_f32 {vr(ui,2)}, {vr(DI+j,2)}, {vr(OI+j,2)}")
        k(f"v_pk_add_f32 {vr(er,2)}, {vr(DR+j,2)}, {vr(OR_+j,2)} neg_lo:[0,1] neg_hi:[0,1]")
        k(f"v_pk_add_f32 {vr(ei,2)}, {vr(DI+j,2)}, {vr(OI+j,2)} neg_lo:[0,1] neg_hi:[0,1]")
        k(f"v_pk_mul_f32 {vr(a_i,2)}, {vr(er,2)}, s[40:41] op_sel_hi:[1,0] neg_lo:[1,0] neg_hi:[1,0]")
        k(f"v_pk_mul_f32 {vr(b_i,2)}, {vr(ei,2)}, s[40:41] op_sel_hi:[1,0]")
        k(f"{CVT} v{UA+j}, v{ur}, v{a_i}")
        k(f"{CVT} v{UA+j+1}, v{ur+1}, v{a_i+1}")
        k(f"{CVT} v{UB+j}, -v{ui}, v{b_i}")
        k(f"{CVT} v{UB+j+1}, -v{ui+1}, v{b_i+1}")
    k("L_p2_postd:")
    for rl in range(2):
        k(f"ds_write_b128 v253, {vr(UA+4*rl,4)} offset:{4096*rl}")
        k(f"ds_write_b128 v254, {vr(UB+4*rl,4)} offset:{4096*rl}")
    k(f"v_and_b32 v{T}, 3, v0")
    k(f"v_bfe_u32 v{T+1}, v0, 3, 2")
    k(f"v_xor_b32 v{T+1}, v{T}, v{T+1}")
    k(f"v_lshrrev_b32 v{T+2}, 2, v0")
    k(f"v_lshlrev_b32 v{T+3}, 6, v{T+2}")
    k(f"v_lshl_add_u32 v{T+3}, v{T+1}, 4, v{T+3}")
    k(f"v_add_u32 v{T+3}, {STG}, v{T+3}")
    k(f"v_mul_u32_u24 v{T+2}, {VB_BLK}, v{T+2}")
    k("s_and_b32 s44, s2, 2")
    k(f"v_xor_b32 v{T}, s44, v{T}")
    k(f"v_lshl_add_u32 v{T+2}, v{T}, 4, v{T+2}")
    k("s_lshl_b32 s45, s2, 6")
    k("s_waitcnt lgkmcnt(0)")
    k("s_barrier")
    for j in range(4):
        k(f"ds_read_b128 {vr(4+4*j,4)}, v{T+3} offset:{4096*j}")
    k("s_waitcnt lgkmcnt(0)")
    for j in range(4):
        k(f"buffer_store_dwordx4 {vr(4+4*j,4)}, v{T+2}, s[12:15], s45 offen {ST_P2}")
        if j < 3: k(f"s_add_u32 s45, s45, {64*VB_BLK}")
    stamp_end(k, 'p2')
    k("L_p2_end:")
    k("s_endpgm")
    k("L_p2_spec:")
    QP = T1
    XB_ = Z2
    k(f"v_bfe_u32 v{T}, v1, 2, 2")
    k(f"v_xor_b32 v{T}, s30, v{T}")
    k(f"v_lshlrev_b32 v{T}, 4, v{T}")
    k(f"v_lshl_add_u32 v{T}, v1, 6, v{T}")
    k("s_mov_b32 s47, 0x400000")
    for r in range(4):
        k(f"buffer_load_dwordx4 {vr(XB_+4*r,4)}, v{T}, s[20:23], s47 offen")
        if r < 3: k("s_add_u32 s47, s47, 4096")
    k("s_lshl_b32 s47, s30, 13")
    k(f"v_and_b32 v{T+1}, 31, v1")
    k(f"v_lshrrev_b32 v{T+2}, 5, v1")
    k(f"v_lshlrev_b32 v{T+3}, 2, v{T+1}")
    k(f"v_lshl_add_u32 v{T+3}, v{T+2}, 10, v{T+3}")
    k(f"v_add_u32 v{T+3}, s47, v{T+3}")
    for i, (r, c) in enumerate(SEQ):
        k(f"ds_write_b32 v{T+3}, v{DR+i} offset:{(8*r+c)*256}")
        k(f"ds_write_b32 v{T+3}, v{DI+i} offset:{(8*r+c)*256+128}")
    k(f"v_add_u32 v{T+4}, s30, v{T+1}")
    k(f"v_sub_u32 v{T+5}, 32, v{T+4}")
    k(f"v_lshlrev_b32 v{T+5}, 2, v{T+5}")
    k(f"v_cmp_eq_u32 vcc, 0, v{T+4}")
    k(f"v_mov_b32 v{T+6}, 256")
    k(f"v_cndmask_b32 v{T+5}, v{T+5}, v{T+6}, vcc")
    k(f"v_lshlrev_b32 v{T+6}, 10, v{T+2}")
    k(f"v_sub_u32 v{T+5}, v{T+5}, v{T+6}")
    k(f"v_add_u32 v{T+5}, 1024, v{T+5}")
    k(f"v_add_u32 v{T+5}, s47, v{T+5}")
    k(f"v_add_u32 v{T+6}, {27*256}, v{T+5}")
    k(f"v_or_b32 v{T+7}, v{T+4}, v{T+2}")
    k(f"v_cmp_eq_u32 vcc, 0, v{T+7}")
    k(f"v_mov_b32 v{T+7}, s47")
    k(f"v_cndmask_b32 v{T+6}, v{T+6}, v{T+7}, vcc")
    k("s_waitcnt vmcnt(0)")
    for i in range(16):
        k(f"v_lshlrev_b32 v{QP+2*i}, 16, v{XB_+i}")
        k(f"v_and_b32 v{QP+2*i+1}, s35, v{XB_+i}")
    k("s_waitcnt lgkmcnt(0)")
    for half in range(2):
        for jj in range(8):
            i = 8*half + jj; r, c = SEQ[i]
            if i == 0:
                k(f"ds_read_b32 v{XB_+2*jj}, v{T+6}")
                k(f"ds_read_b32 v{XB_+2*jj+1}, v{T+6} offset:128")
            else:
                k(f"ds_read_b32 v{XB_+2*jj}, v{T+5} offset:{(27-8*r-c)*256}")
                k(f"ds_read_b32 v{XB_+2*jj+1}, v{T+5} offset:{(27-8*r-c)*256+128}")
        k("s_waitcnt lgkmcnt(0)")
        for jj in range(8):
            j = 8*half + jj; o = T + 8 + 2*(jj % 4); jp = j & ~1; x = j & 1
            k(f"v_pk_mul_f32 {vr(o,2)}, {vr(WP+2*j,2)}, {vr(DR+jp,2)} op_sel:[0,{x}] op_sel_hi:[1,{x}]")
            k(f"v_pk_fma_f32 {vr(o,2)}, {vr(WP+2*j,2)}, {vr(DI+jp,2)}, {vr(o,2)} op_sel:[1,{x},0] op_sel_hi:[0,{x},1] neg_lo:[1,0,0]")
            k(f"v_pk_fma_f32 {vr(o,2)}, {vr(QP+2*j,2)}, {vr(XB_+2*jj,2)}, {vr(o,2)} op_sel:[0,0,0] op_sel_hi:[1,0,1]")
            k(f"v_pk_fma_f32 {vr(o,2)}, {vr(QP+2*j,2)}, {vr(XB_+2*jj,2)}, {vr(o,2)} op_sel:[1,1,0] op_sel_hi:[0,1,1] neg_hi:[1,0,0]")
            k(f"{CVT} v{OP+j}, v{o}, -v{o+1}")
    k("s_branch L_p2_specd")
    return k, 256, 65536

def ln_stats_rows(k, R0, R1, t, vRM, sTmp, twice=False):
    for (R, o) in ((R0, 0), (R1, 4)):
        a, b = t+o, t+o+2
        k(f"v_pk_add_f32 {vr(a,2)}, {vr(R,2)}, {vr(R+2,2)}")
        k(f"v_pk_add_f32 {vr(b,2)}, {vr(R+4,2)}, {vr(R+6,2)}")
    for i in range(4, 8):
        for (R, o) in ((R0, 0), (R1, 4)):
            a = t+o+2*(i % 2)
            k(f"v_pk_add_f32 {vr(a,2)}, {vr(a,2)}, {vr(R+2*i,2)}")
    for o in (0, 4):
        k(f"v_pk_add_f32 {vr(t+o,2)}, {vr(t+o,2)}, {vr(t+o+2,2)}")
    k(f"v_add_f32 v{t}, v{t}, v{t+1}")
    k(f"v_add_f32 v{t+1}, v{t+4}, v{t+5}")
    wave_reduce2(k, t, t+1)
    ln_mean(k, t, sTmp)
    acc = {0: t, 1: t+2}; tmp = [t+4, t+6, t+8, t+10]
    n = 0
    for i in range(8):
        for row, R in ((0, R0), (1, R1)):
            d = tmp[n % 4]; n += 1
            sel = "op_sel_hi:[1,0]" if row == 0 else "op_sel:[0,1] op_sel_hi:[1,1]"
            k(f"v_pk_add_f32 {vr(d,2)}, {vr(R+2*i,2)}, {sr(sTmp,2)} {sel} neg_lo:[0,1] neg_hi:[0,1]")
            a = acc[row]
            if i == 0: k(f"v_pk_mul_f32 {vr(a,2)}, {vr(d,2)}, {vr(d,2)}")
            else:      k(f"v_pk_fma_f32 {vr(a,2)}, {vr(d,2)}, {vr(d,2)}, {vr(a,2)}")
    k(f"v_add_f32 v{t}, v{t}, v{t+1}")
    k(f"v_add_f32 v{t+1}, v{t+2}, v{t+3}")
    wave_reduce2(k, t, t+1)
    ln_scalars(k, t, twice)
    k(f"v_readlane_b32 s{sTmp}, v{t}, 63")
    k(f"v_readlane_b32 s{sTmp+1}, v{t+1}, 63")
    k(f"v_readlane_b32 s{sTmp+2}, v{t+12}, 63")
    k(f"v_readlane_b32 s{sTmp+3}, v{t+13}, 63")
    for i in range(4):
        k(f"v_mov_b32 v{vRM+i}, s{sTmp+i}")

def ln_apply_rows(k, R0, R1, vRM, dst0, dst1):
    for i in range(8):
        k(f"v_pk_fma_f32 {vr(dst0+2*i,2)}, {vr(R0+2*i,2)}, {vr(vRM,2)}, {vr(vRM+2,2)} op_sel_hi:[1,0,0] neg_lo:[0,0,1] neg_hi:[0,0,1]")
        k(f"v_pk_fma_f32 {vr(dst1+2*i,2)}, {vr(R1+2*i,2)}, {vr(vRM,2)}, {vr(vRM+2,2)} op_sel:[0,1,1] op_sel_hi:[1,1,1] neg_lo:[0,0,1] neg_hi:[0,0,1]")

def gen_p3():
    k = Kern('p3_kernel')
    k("s_cmp_ge_u32 s2, 256")
    k("s_cbranch_scc1 L_p3_end")
    stamp_begin(k)
    k("s_load_dwordx2 s[4:5], s[0:1], 0")
    k("s_load_dwordx2 s[26:27], s[0:1], 80")
    k("s_load_dwordx2 s[24:25], s[0:1], 32")
    k("v_and_b32 v1, 63, v0")
    k("v_lshrrev_b32 v2, 6, v0")
    k("v_readfirstlane_b32 s28, v2")
    pf_wave(k, 'p3', W1PF0 + 256*W1PF)
    k("s_lshr_b32 s29, s2, 5")
    k("s_lshl_b32 s29, s29, 2")
    k("s_and_b32 s30, s2, 31")
    k("s_add_u32 s31, s29, s28")
    k("s_lshl_b32 s31, s31, 5")
    k("s_add_u32 s31, s31, s30")
    k("s_lshl_b32 s31, s31, 11")
    k("s_add_u32 s32, s31, 0x200000")
    k(f"s_mul_i32 s33, s2, {VB_BLK}")
    k("s_lshl_b32 s34, s28, 12")
    k("s_add_u32 s33, s33, s34")
    k("v_lshlrev_b32 v2, 4, v1")
    k("s_waitcnt lgkmcnt(0)")
    srd(k, 8, 4, S*D*2)
    srd(k, 12, 26, 256*VB_BLK, VB_OFF)
    srd(k, 16, 26, S*D*2, H_OFF)
    srd(k, 20, 26, S*D*2, HN_OFF)
    for i in range(4):
        k(f"s_add_u32 m0, s34, {1024*i}")
        k(f"buffer_load_dwordx4 v2, s[12:15], s33 offen lds")
        k("s_add_u32 s33, s33, 1024")
    XL = 4
    if CODEPF2:
        k("s_cmp_eq_u32 s28, 0")
        k("s_cbranch_scc0 L_p3_nonp")
        next_code_pf(k, 'p3', 'g1_kernel', 'g2_kernel', 32, 220, 40, 1)
        k("L_p3_nonp:")
    OP, Mr, Mi, TW, DR, DI, T = 20, 36, 52, 68, 100, 116, 132
    R0, R1, Y0, Y1 = 148, 164, 180, 196
    k("v_and_b32 v212, 31, v1")
    k("v_cvt_f32_u32 v212, v212")
    k("v_lshrrev_b32 v213, 5, v1")
    k("v_lshlrev_b32 v213, 2, v213")
    k("v_cvt_f32_u32 v213, v213")
    k(f"v_mul_f32 v214, {f32(1/32)}, v212")
    k("v_mul_f32 v215, v214, v213")
    gen_matrix(k, Mr, Mi, 214, 215, T)
    k(f"v_mul_f32 v214, {f32(1/1024)}, v212")
    k("v_mul_f32 v215, v214, v213")
    gen_twiddle(k, TW, 214, 215, T, scale=2.0**-21.5)
    k("v_and_b32 v2, 31, v1")
    k("v_lshrrev_b32 v3, 5, v1")
    k("v_and_b32 v216, 1, v2")
    k("v_lshrrev_b32 v217, 1, v2")
    k("v_and_b32 v218, 2, v217")
    k("v_xor_b32 v218, v218, v216")
    k("v_lshlrev_b32 v218, 4, v218")
    k("v_lshl_add_u32 v218, v217, 6, v218")
    k("v_lshl_add_u32 v218, v3, 12, v218")
    k("s_lshl_b32 s37, s28, 2")
    k("v_add_u32 v218, s37, v218")
    k("v_add_u32 v217, 1, v2")
    k("v_lshrrev_b32 v217, 1, v217")
    k("v_sub_u32 v219, 0, v217")
    k("v_and_b32 v219, 2, v219")
    k("v_add_u32 v216, 2, v216")
    k("v_xor_b32 v219, v219, v216")
    k("v_lshlrev_b32 v219, 4, v219")
    k("v_lshlrev_b32 v217, 6, v217")
    k("v_sub_u32 v219, v219, v217")
    k("v_lshlrev_b32 v217, 12, v3")
    k("v_sub_u32 v219, v219, v217")
    k("s_add_u32 s37, s37, 5120")
    k("v_add_u32 v219, s37, v219")
    k(f"v_add_u32 v227, {16*1024-5120}, v219")
    k("s_lshl_b32 s38, s28, 2")
    k("s_add_u32 s38, s38, 32")
    k("v_mov_b32 v226, s38")
    k("v_cmp_eq_u32 vcc, 0, v1")
    k("v_cndmask_b32 v227, v227, v226, vcc")
    k("s_mov_b32 s35, 0xffff0000")
    mark(k, 1)
    k("s_waitcnt vmcnt(0)")
    k("v_lshlrev_b32 v225, 4, v1")
    k(f"buffer_load_dwordx4 {vr(XL,4)}, v225, s[8:11], s31 offen")
    k(f"buffer_load_dwordx4 {vr(XL+4,4)}, v225, s[8:11], s31 offen offset:1024")
    k(f"buffer_load_dwordx4 {vr(XL+8,4)}, v225, s[8:11], s32 offen")
    k(f"buffer_load_dwordx4 {vr(XL+12,4)}, v225, s[8:11], s32 offen offset:1024")
    k("s_barrier")
    mark(k, 2)
    for i, (r, c) in enumerate(SEQ):
        if r < 2: k(f"ds_read_b32 v{OP+i}, v218 offset:{(8*r+c)*1024}")
        elif i == 8: k(f"ds_read_b32 v{OP+i}, v227")
        else:     k(f"ds_read_b32 v{OP+i}, v219 offset:{(32-8*r-c)*1024-5120}")
    k("s_waitcnt lgkmcnt(0)")
    stage(k, 'A', DR, DI, OP, Mr, Mi)
    cmul_pack(k, DR, DI, TW, OP, T)
    stage(k, 'B', DR, DI, OP, Mr, Mi)
    k("s_waitcnt vmcnt(0)")
    for i in range(8):
        k(f"v_lshlrev_b32 v{R0+2*i}, 16, v{XL+i}")
        k(f"v_and_b32 v{R0+2*i+1}, s35, v{XL+i}")
        k(f"v_lshlrev_b32 v{R1+2*i}, 16, v{XL+8+i}")
        k(f"v_and_b32 v{R1+2*i+1}, s35, v{XL+8+i}")
    TR = 17408
    mark(k, 3)
    k("s_lshl_b32 s36, s28, 12")
    k(f"s_add_u32 s36, s36, {TR}")
    k("v_and_b32 v3, 31, v1")
    k("v_lshlrev_b32 v3, 2, v3")
    k("v_lshrrev_b32 v216, 5, v1")
    k("v_lshlrev_b32 v216, 9, v216")
    k("v_add3_u32 v3, v3, v216, s36")
    k("v_lshl_add_u32 v2, v1, 5, s36")
    for i in range(16):
        k(f"{CVT} v{OP+i}, v{DR+i}, -v{DI+i}")
    for i, (r, c) in enumerate(SEQ):
        k(f"ds_write_b32 v3, v{OP+i} offset:{(8*r+c)*128}")
    k("s_waitcnt lgkmcnt(0)")
    k(f"ds_read_b128 {vr(OP,4)}, v2")
    k(f"ds_read_b128 {vr(OP+4,4)}, v2 offset:16")
    k(f"ds_read_b128 {vr(OP+8,4)}, v2 offset:2048")
    k(f"ds_read_b128 {vr(OP+12,4)}, v2 offset:2064")
    k("s_waitcnt lgkmcnt(0)")
    for i in range(16):
        k(f"v_lshlrev_b32 v{Y0+i}, 16, v{OP+i}")
        k(f"v_and_b32 v{Y1+i}, s35, v{OP+i}")
    for i in range(8):
        k(f"v_pk_add_f32 {vr(Y0+2*i,2)}, {vr(Y0+2*i,2)}, {vr(R0+2*i,2)}")
        k(f"v_pk_add_f32 {vr(Y1+2*i,2)}, {vr(Y1+2*i,2)}, {vr(R1+2*i,2)}")
    HP = 36
    for i in range(8):
        k(f"{CVT} v{HP+i}, v{Y0+2*i}, v{Y0+2*i+1}")
        k(f"{CVT} v{HP+8+i}, v{Y1+2*i}, v{Y1+2*i+1}")
    k("v_lshlrev_b32 v2, 4, v1")
    k(f"buffer_store_dwordx4 {vr(HP,4)}, v2, s[16:19], s31 offen {ST_P3}")
    k(f"buffer_store_dwordx4 {vr(HP+4,4)}, v2, s[16:19], s31 offen offset:1024 {ST_P3}")
    k(f"buffer_store_dwordx4 {vr(HP+8,4)}, v2, s[16:19], s32 offen {ST_P3}")
    k(f"buffer_store_dwordx4 {vr(HP+12,4)}, v2, s[16:19], s32 offen offset:1024 {ST_P3}")
    for i in range(8):
        k(f"v_lshlrev_b32 v{R0+2*i}, 16, v{HP+i}")
        k(f"v_and_b32 v{R0+2*i+1}, s35, v{HP+i}")
        k(f"v_lshlrev_b32 v{R1+2*i}, 16, v{HP+8+i}")
        k(f"v_and_b32 v{R1+2*i+1}, s35, v{HP+8+i}")
    RM = 220
    mark(k, 4)
    if LN_FUSE:
        assert not (EMU_LN or EMU_L2)
        ln_stats_rows(k, R0, R1, T, RM, 40, twice=True)
        ln_apply_rows(k, R0, R1, RM, Y0, Y1)
    else:
        ln_stats_rows(k, R0, R1, T, RM, 40)
        if EMU_L2:
            ln_apply_rows(k, R0, R1, RM, Y0, Y1)
            LP = 52
            for i in range(8):
                k(f"{CVT} v{LP+i}, v{Y0+2*i}, v{Y0+2*i+1}")
                k(f"{CVT} v{LP+8+i}, v{Y1+2*i}, v{Y1+2*i+1}")
            for i in range(8):
                k(f"v_lshlrev_b32 v{R0+2*i}, 16, v{LP+i}")
                k(f"v_and_b32 v{R0+2*i+1}, s35, v{LP+i}")
                k(f"v_lshlrev_b32 v{R1+2*i}, 16, v{LP+8+i}")
                k(f"v_and_b32 v{R1+2*i+1}, s35, v{LP+8+i}")
        else:
            ln_apply_rows(k, R0, R1, RM, R0, R1)
        ln_stats_rows(k, R0, R1, T, RM, 40)
        ln_apply_rows(k, R0, R1, RM, Y0, Y1)
    NP = 68
    for i in range(8):
        k(f"{CVT} v{NP+i}, v{Y0+2*i}, v{Y0+2*i+1}")
        k(f"{CVT} v{NP+8+i}, v{Y1+2*i}, v{Y1+2*i+1}")
    k(f"buffer_store_dwordx4 {vr(NP,4)}, v2, s[20:23], s31 offen {ST_P3}")
    k(f"buffer_store_dwordx4 {vr(NP+4,4)}, v2, s[20:23], s31 offen offset:1024 {ST_P3}")
    k(f"buffer_store_dwordx4 {vr(NP+8,4)}, v2, s[20:23], s32 offen {ST_P3}")
    k(f"buffer_store_dwordx4 {vr(NP+12,4)}, v2, s[20:23], s32 offen offset:1024 {ST_P3}")
    stamp_end(k, 'p3')
    k("L_p3_end:")
    k("s_endpgm")
    return k, 228, 33792

MF16 = 'v_mfma_f32_16x16x32_bf16'

def interleave(mf, rd, lead=0):
    out = []; n = len(mf); m = len(rd); ri = 0
    for i in range(n):
        out.append(mf[i])
        tgt = min(m, (m*(i+1) + n - 1)//n)
        while ri < tgt:
            out.append(rd[ri]); ri += 1
    out += rd[ri:]
    return out

def producer_loop(k, tag, per, issue, NS, NIT):
    mark(k, 1)
    issue()
    mark(k, 2)
    issue()
    k(f"s_waitcnt vmcnt({per})")
    mark(k, 3)
    k("s_barrier")
    for n in range(2, NS): issue()
    mark(k, 4)
    nmain = NIT - NS
    k(f"s_mov_b32 s60, 0")
    k(f"L_{tag}_ploop:")
    k(f"s_waitcnt vmcnt({(NS-2)*per})")
    k("s_barrier")
    issue()
    k("s_add_u32 s60, s60, 1")
    k(f"s_cmp_lt_u32 s60, {nmain}")
    k(f"s_cbranch_scc1 L_{tag}_ploop")
    for n in range(nmain, NIT-1):
        k(f"s_waitcnt vmcnt({(NIT-1-(n+1))*per})")
        k("s_barrier")


XB_OFF = ZW_OFF
FL_OFF = 0x2800000
BAR_OFF = 0x2810000
def gemm_kernel(tag, fused=False):
    g1 = tag == 'g1'
    k = Kern('gg_kernel' if fused else tag + '_kernel')
    ENDL = 'L_gg_end' if fused else f'L_{tag}_end'
    ASZ = 16384; STG = 32768; NS = 4 if STATIC else (5 if BAR2 else 3)
    NIT = 32 if g1 else 28
    BSTR = 7168 if g1 else 4096
    if not (fused and not g1):
        k(f"s_cmp_ge_u32 s2, 256")
        k(f"s_cbranch_scc1 {ENDL}")
    else:
        k("L_gbar:")
        k("s_load_dwordx2 s[26:27], s[0:1], 80")
        k("s_waitcnt vmcnt(0) lgkmcnt(0)")
        k("s_barrier")
        srd(k, 36, 26, 1024, BAR_OFF)
        k("v_cmp_eq_u32 vcc, 0, v0")
        k("s_and_saveexec_b64 s[34:35], vcc")
        k("s_cbranch_execz L_gbar_noarr")
        k("s_and_b32 s33, s2, 7")
        k("s_lshl_b32 s33, s33, 7")
        k("v_mov_b32 v2, 1")
        k("v_mov_b32 v3, 0")
        k("buffer_atomic_add v2, v3, s[36:39], s33 offen sc1")
        k("L_gbar_noarr:")
        k("s_mov_b64 exec, -1")
    stamp_begin(k)
    if g1:
        k("s_load_dwordx4 s[4:7], s[0:1], 32")
        k("s_load_dwordx2 s[24:25], s[0:1], 48")
    else:
        k("s_load_dwordx4 s[4:7], s[0:1], 48")
        k("s_load_dwordx2 s[24:25], s[0:1], 64")
    k("s_load_dwordx2 s[26:27], s[0:1], 80")
    k("v_and_b32 v1, 63, v0")
    k("v_lshrrev_b32 v2, 6, v0")
    k("v_readfirstlane_b32 s28, v2")
    if g1:
        k("s_and_b32 s30, s2, 1")
        k("s_lshl_b32 s30, s30, 2")
        k("s_bfe_u32 s52, s2, 0x20003")
        k("s_add_u32 s30, s30, s52")
        k("s_bfe_u32 s29, s2, 0x20001")
        k("s_mul_i32 s29, s29, 7")
        k("s_lshr_b32 s53, s2, 5")
        k("s_add_u32 s29, s29, s53")
        k("s_mov_b32 s63, 0")
        k("s_and_b32 s55, s2, 1")
        k(f"s_mul_i32 s55, s55, {16 if KHALF else 0}")
    else:
        if MAP2 == 1:
            k("s_bfe_u32 s62, s2, 0x10003")
            k("s_bfe_u32 s29, s2, 0x20001")
            k("s_lshl_b32 s29, s29, 2")
            k("s_bfe_u32 s52, s2, 0x20004")
            k("s_add_u32 s29, s29, s52")
            k("s_lshr_b32 s53, s2, 6")
            k("s_and_b32 s30, s2, 1")
            k("s_lshl_b32 s30, s30, 2")
            k("s_add_u32 s30, s30, s53")
        else:
            k("s_and_b32 s62, s2, 1")
            k("s_bfe_u32 s29, s2, 0x20001")
            k("s_lshl_b32 s29, s29, 2")
            k("s_bfe_u32 s52, s2, 0x20003")
            k("s_add_u32 s29, s29, s52")
            k("s_lshr_b32 s53, s2, 5")
            k("s_mov_b32 s30, s53")
        k("s_mov_b32 s55, 0")
        k("s_mul_i32 s63, s62, 28")
        srd(k, 56, 26, 256*64, FL_OFF) if False else None
    k("s_lshl_b32 s31, s29, 8")
    k("s_lshl_b32 s32, s30, 8")
    k("s_waitcnt lgkmcnt(0)")
    if g1:
        srd(k, 8, 4, S*F*2)
        srd(k, 12, 26, S*D*2, HN_OFF)
        srd(k, 16, 26, F*D*2, GT_OFF)
        srd(k, 20, 6, F*2)
        if not XSENT:
            srd(k, 44, 26, 256*64, FL_OFF)
            k("s_lshl_b32 s33, s2, 6")
            k("v_mov_b32 v2, 0")
            k("v_lshlrev_b32 v3, 2, v0")
            k("v_cmp_gt_u32 vcc, 16, v0")
            k("s_and_saveexec_b64 s[34:35], vcc")
            k(f"s_cbranch_execz L_{tag}_nozf")
            k("buffer_store_dword v2, v3, s[44:47], s33 offen sc0 sc1")
            k(f"L_{tag}_nozf:")
            k("s_mov_b64 exec, -1")
        k("s_cmp_lt_u32 s2, 224")
        k(f"s_cbranch_scc1 L_{tag}_main")
        if W1IDLE:
            k("s_sub_u32 s33, s2, 224")
            k("s_mul_i32 s33, s33, 112")
            k("v_mul_u32_u24 v3, 586, v0")
            k("v_lshrrev_b32 v3, 16, v3")
            k("v_mul_u32_u24 v4, 112, v3")
            k("v_sub_u32 v4, v0, v4")
            k("v_add_u32 v4, s33, v4")
            k("v_mul_u32_u24 v5, 4682, v4")
            k("v_lshrrev_b32 v5, 18, v5")
            k("v_mul_u32_u24 v6, 56, v5")
            k("v_sub_u32 v6, v4, v6")
            k("v_and_b32 v7, 1, v3")
            k("v_lshrrev_b32 v8, 1, v3")
            k("v_lshl_add_u32 v7, v7, 4, v8")
            k("v_lshl_add_u32 v5, v7, 6, v5")
            k("v_mul_u32_u24 v5, 7168, v5")
            k("v_lshl_add_u32 v2, v6, 7, v5")
            k("v_cmp_gt_u32 vcc, 448, v0")
            k("s_and_saveexec_b64 s[34:35], vcc")
            k(f"s_cbranch_execz L_{tag}_now1")
            k(f"s_mov_b32 s33, {W1IDLE*64*7168}")
            for i in range((16-W1IDLE)//2):
                k(f"buffer_load_dword v9, v2, s[8:11], s33 offen")
                k(f"s_add_u32 s33, s33, {2*64*7168}")
            k(f"L_{tag}_now1:")
            k("s_mov_b64 exec, -1")
        if W2PF:
            srd(k, 48, 24, F*S*2)
            k("s_sub_u32 s33, s2, 224")
            k("s_and_b32 s34, s33, 15")
            k("s_lshr_b32 s35, s33, 4")
            k(f"s_mul_i32 s35, s35, {1792*4096}")
            k("s_lshl_b32 s33, s34, 16")
            k("s_add_u32 s33, s33, s35")
            k("v_lshlrev_b32 v2, 7, v0")
            for i in range(W2PF):
                k(f"buffer_load_dword v9, v2, s[48:51], s33 offen")
                k(f"s_add_u32 s33, s33, {16*65536}")
        if XSENT:
            srd(k, 44, 26, 256*(16384 if XBF16 else 32768), 0x1E00000 if XB_SEP else VB_OFF)
            k("s_sub_u32 s33, s2, 224")
            k("s_lshl_b32 s33, s33, 17")
            k("v_lshlrev_b32 v2, 4, v0")
            for i in range(4): k(f"v_mov_b32 v{4+i}, -1")
            k("s_mov_b32 s34, 0")
            k(f"L_{tag}_clr:")
            k("buffer_store_dwordx4 v[4:7], v2, s[44:47], s33 offen sc0 sc1")
            k("s_add_u32 s33, s33, 8192")
            k("s_add_u32 s34, s34, 1")
            k("s_cmp_lt_u32 s34, 16")
            k(f"s_cbranch_scc1 L_{tag}_clr")
        stamp_end(k, tag, tid=0, slot=256, sfx='idle')
        k(f"s_branch {'L_gbar' if fused else ENDL}")
        k(f"L_{tag}_main:")
    else:
        srd(k, 8, 4, F*S*2)
        srd(k, 12, 26, F*D*2, GT_OFF)
        srd(k, 16, 26, S*D*2, H_OFF)
        srd(k, 20, 6, S*2)
        srd(k, 48, 24, S*D*2)
        if not XSENT:
            k("s_getreg_b32 s54, hwreg(HW_REG_XCC_ID, 0, 4)")
            k("s_add_u32 s54, s54, 1")
            srd(k, 56, 26, 256*64, FL_OFF)
            k("s_lshl_b32 s33, s2, 6")
            k("v_mov_b32 v2, s54")
            k("v_mov_b32 v3, 0")
            k("v_cmp_eq_u32 vcc, 0, v0")
            k("s_and_saveexec_b64 s[34:35], vcc")
            k(f"s_cbranch_execz L_{tag}_nopub")
            k("buffer_store_dword v2, v3, s[56:59], s33 offen offset:4 sc0 sc1")
            k(f"L_{tag}_nopub:")
            k("s_mov_b64 exec, -1")
    k("s_cmp_ge_u32 s28, 4")
    k(f"s_cbranch_scc1 L_{tag}_prod")
    ACC = 8; X = 72; Y = 136; R = 200
    AA = [R+i for i in range(4)]; AB = [R+4+i for i in range(4)]
    BA = [R+8+i for i in range(4)]; BB = [R+12+i for i in range(4)]
    MISC = R + 16
    k("s_and_b32 s33, s28, 1")
    k("s_lshr_b32 s36, s28, 1")
    k("v_lshrrev_b32 v2, 4, v1")
    k("v_bfe_u32 v3, v1, 2, 2")
    k("v_and_b32 v4, 3, v1")
    k("v_lshl_add_u32 v5, v2, 2, v3")
    k("v_and_b32 v6, 7, v5")
    k("v_lshlrev_b32 v6, 1, v6")
    k("v_lshrrev_b32 v7, 1, v4")
    k("v_and_b32 v9, 1, v4")
    for (base, w, add) in ((BA, 's33', 0), (BB, 's36', ASZ)):
        k(f"s_lshl_b32 s35, {w}, 3")
        k("v_add_u32 v10, s35, v7")
        k("v_xor_b32 v10, v10, v6")
        k("v_lshlrev_b32 v10, 4, v10")
        k("v_lshl_add_u32 v10, v9, 3, v10")
        k("v_lshl_add_u32 v10, v5, 8, v10")
        if add: k(f"v_add_u32 v10, {add}, v10")
        k(f"v_mov_b32 v{base[0]}, v10")
        for t in range(1, 4): k(f"v_xor_b32 v{base[t]}, {32*t}, v10")
    for t in range(4):
        k(f"v_mov_b32 v{AA[t]}, v{BA[t]}"); k(f"v_mov_b32 v{AB[t]}, v{BB[t]}")
    BIAS = MISC
    k("v_and_b32 v2, 15, v1")
    k("v_lshlrev_b32 v2, 1, v2")
    k("s_lshl_b32 s37, s36, 7")
    k("s_add_u32 s37, s37, s31")
    for t in range(4):
        k(f"buffer_load_ushort v{BIAS+t}, v2, s[20:23], s37 offen offset:{32*t}")
    OV = MISC+4
    k("v_and_b32 v2, 15, v1")
    k("v_lshlrev_b32 v2, 11, v2")
    k("v_lshrrev_b32 v3, 4, v1")
    k(f"v_lshl_add_u32 v{OV}, v3, 4, v2")
    k("s_lshl_b32 s38, s29, 7")
    k("s_lshl_b32 s39, s36, 6")
    k("s_add_u32 s38, s38, s39")
    k("s_lshl_b32 s38, s38, 11")
    k("s_add_u32 s38, s38, s32")
    k("s_lshl_b32 s39, s33, 7")
    k("s_add_u32 s38, s38, s39")
    if not g1:
        HL = MISC+6
        NV = HL+16
        if OUT_TOUCH:
            k("s_lshl_b32 s39, s62, 16")
            k("s_add_u32 s39, s39, s38")
            k(f"buffer_load_dword v{NV}, v{OV}, s[48:51], s39 offen")
            NV += 1
    else:
        NV = MISC+5
    def reads(dst, buf=None):
        r = []
        for ks in range(2):
            b = dst + 32*ks; ko = 32*ks
            for t in range(4):
                if buf is None: regs = (AA[t], AB[t]); bo = 0
                else:
                    regs = (BA[t], BB[t]) if buf < 2 else (AA[t], AB[t]); bo = (buf % 2)*STG
                for (o, a) in ((0, regs[0]), (16, regs[1])):
                    r.append(f"ds_read_b64_tr_b16 {vr(b+o+4*t,2)}, v{a} offset:{bo+ko*256}")
                    r.append(f"ds_read_b64_tr_b16 {vr(b+o+4*t+2,2)}, v{a} offset:{bo+(ko+16)*256}")
        return r
    def mfmas(src):
        m = []
        for ks in range(2):
            b = src + 32*ks
            order = sorted([(td, tn) for td in range(4) for tn in range(4)], key=lambda x: (max(x), x))
            if FAKE32:
                for i in range(8):
                    a = ACC + 16*(i % 4)
                    m.append(f"{MF32} {vr(a,16)}, {vr(b+4*(i%4),4)}, {vr(b+16+4*((i//2)%4),4)}, {vr(a,16)}")
                continue
            for td, tn in order:
                a = ACC + 4*(4*tn+td)
                m.append(f"{MF16} {vr(a,4)}, {vr(b+4*td,4)}, {vr(b+16+4*tn,4)}, {vr(a,4)}")
        return m
    def sched(mf, rd, extra):
        out = []; ri = 0; ei = 0
        for i, m in enumerate(mf):
            out.append(m)
            if ri < len(rd):
                for _ in range(RPAT[i % len(RPAT)]):
                    if ri < len(rd): out.append(rd[ri]); ri += 1
            elif ei < len(extra):
                out.append(extra[ei]); ei += 1
        out += rd[ri:] + extra[ei:]
        return out
    def upd():
        e = [f"s_add_u32 s34, s34, {STG}", f"s_cmp_eq_u32 s34, {STG*NS}", "s_cselect_b32 s34, 0, s34"]
        e += [f"v_add_u32 v{AA[t]}, s34, v{BA[t]}" for t in range(4)]
        e += [f"v_add_u32 v{AB[t]}, s34, v{BB[t]}" for t in range(4)]
        return e
    for i in range(64): k(f"v_mov_b32 v{ACC+i}, 0")
    k("s_mov_b32 s34, 0")
    k("s_mov_b32 s35, 0")
    if fused and not g1: k("s_barrier")
    mark(k, 1)
    k("s_barrier")
    mark(k, 2)
    if STATIC:
        for t in range(4):
            k(f"v_add_u32 v{AA[t]}, 65536, v{BA[t]}"); k(f"v_add_u32 v{AB[t]}, 65536, v{BB[t]}")
        for x in reads(X, 0): k(x)
        k(f"L_{tag}_cloop:")
        for u in range(4):
            cur, nxt = (X, Y) if u % 2 == 0 else (Y, X)
            k("s_waitcnt lgkmcnt(0)")
            k("s_barrier")
            ex = ["s_add_u32 s35, s35, 4", f"s_cmp_lt_u32 s35, {NIT-4}"] if u == 3 else []
            for x in sched(mfmas(cur), reads(nxt, (u+1) % 4), ex): k(x)
        k(f"s_cbranch_scc1 L_{tag}_cloop")
        for u in range(2):
            cur, nxt = (X, Y) if u % 2 == 0 else (Y, X)
            k("s_waitcnt lgkmcnt(0)")
            k("s_barrier")
            for x in sched(mfmas(cur), reads(nxt, u+1), []): k(x)
    else:
        for x in reads(X): k(x)
        for x in upd(): k(x)
        k(f"L_{tag}_cloop:")
        k("s_waitcnt lgkmcnt(0)")
        if LOOPSTAMP:
            k(f"s_cmp_eq_u32 s35, {LOOPSTAMP}")
            k(f"s_cbranch_scc0 L_{tag}_nolatch")
            for i in range(4): k(f"s_mov_b64 s[{96-20+2*i}:{97-20+2*i}], s[{66+2*i}:{67+2*i}]") if False else None
            k("s_sub_u32 s90, s68, s66"); k("s_sub_u32 s91, s70, s68"); k("s_sub_u32 s92, s72, s70")
            k("s_memtime s[82:83]"); k("s_waitcnt lgkmcnt(0)"); k("s_sub_u32 s93, s82, s72")
            k(f"L_{tag}_nolatch:")
        k("s_barrier")
        if LOOPSTAMP: k("s_memtime s[66:67]")
        for x in sched(mfmas(X), reads(Y), upd()): k(x)
        if LOOPSTAMP: k("s_memtime s[68:69]")
        k("s_waitcnt lgkmcnt(0)")
        if not BAR2: k("s_barrier")
        if LOOPSTAMP: k("s_memtime s[70:71]")
        for x in sched(mfmas(Y), reads(X), upd() + ["s_add_u32 s35, s35, 2", f"s_cmp_lt_u32 s35, {NIT-2}"]): k(x)
        if LOOPSTAMP: k("s_memtime s[72:73]")
        k(f"s_cbranch_scc1 L_{tag}_cloop")
    if LOOPSTAMP:
        k("s_waitcnt lgkmcnt(0)")
        for i in range(4):
            k(f"s_mov_b32 s{66+2*i}, s{90+i}"); k(f"s_mov_b32 s{67+2*i}, 0")
    XID = 3
    if not g1:
        if not XSENT:
            k(f"s_xor_b32 s42, s2, {8 if MAP2 == 1 else 1}")
            k("s_lshl_b32 s39, s42, 6")
            k("v_mov_b32 v4, 0")
            k(f"buffer_load_dword v{XID}, v4, s[56:59], s39 offen offset:4 sc0 sc1")
        k("s_lshl_b32 s39, s62, 16")
        k("s_add_u32 s39, s39, s38")
        for tnl in range(1 if XSHARE else 2):
            for tp in range(2):
                k(f"s_add_u32 s40, s39, {tnl*16*2048 + tp*64}")
                k(f"buffer_load_dwordx4 {vr(HL+8*tnl+4*tp,4)}, v{OV}, s[16:19], s40 offen")
    k("s_waitcnt lgkmcnt(0)")
    k("s_barrier")
    for x in sched(mfmas(X), reads(Y, 3 if STATIC else None), []): k(x)
    k("s_waitcnt lgkmcnt(0)")
    for x in mfmas(Y): k(x)
    mark(k, 3)
    k("s_mov_b32 s40, 0xffff0000")
    T = X
    def pack_swap(P):
        k(f"v_permlane32_swap_b32 v{P}, v{P+2}")
        k(f"v_permlane32_swap_b32 v{P+1}, v{P+3}")
        k(f"v_permlane16_swap_b32 v{P}, v{P+2}")
        k(f"v_permlane16_swap_b32 v{P+1}, v{P+3}")
    def store_lines(P0, P1, tmp, so, srdreg):
        for i in range(4): k(f"v_mov_b32 v{tmp+i}, v{P0+i}")
        for i in range(4): k(f"v_mov_b32_dpp v{P0+i}, v{P1+i} row_ror:8 row_mask:0xf bank_mask:0xc")
        for i in range(4): k(f"v_mov_b32_dpp v{P1+i}, v{tmp+i} row_ror:8 row_mask:0xf bank_mask:0x3")
        fl = ST_G1 if g1 else ST_G2
        k(f"s_add_u32 s41, s38, {so}")
        k(f"buffer_store_dwordx4 {vr(P0,4)}, v{OVS}, s[{srdreg}:{srdreg+3}], s41 offen {fl}")
        k(f"s_add_u32 s41, s38, {so + 8*2048}")
        k(f"buffer_store_dwordx4 {vr(P1,4)}, v{OVS}, s[{srdreg}:{srdreg+3}], s41 offen {fl}")
    OVS = 3
    def set_ovs():
        k("v_and_b32 v2, 7, v1")
        k("v_lshlrev_b32 v2, 11, v2")
        k("v_bfe_u32 v3, v1, 3, 1")
        k("v_lshl_add_u32 v2, v3, 6, v2")
        k("v_lshrrev_b32 v3, 4, v1")
        k(f"v_lshl_add_u32 v{OVS}, v3, 4, v2")
    if g1:
        SH = 32768 if STATIC else (98304 if BAR2 else 65536)
        k("s_lshl_b32 s39, s28, 13")
        k(f"s_add_u32 s39, s39, {SH}")
        k("v_lshl_add_u32 v2, v1, 4, s39")
        for i in range(8): k(f"ds_write_b128 v2, {vr(ACC+32+4*i,4)} offset:{1024*i}")
        k("s_waitcnt vmcnt(0) lgkmcnt(0)")
        k("s_barrier")
        mark(k, 4)
        k(f"L_{tag}_epi:")
        for t in range(2): k(f"v_lshlrev_b32 v{BIAS+t}, 16, v{BIAS+t}")
        c0 = -2.0*math.log2(math.e)*math.sqrt(2.0/math.pi); c1 = c0*0.044715
        k("s_mov_b32 s40, 0xffff0000")
        k(f"s_mov_b32 s42, {f32(c1)}")
        k(f"v_mov_b32 v4, {f32(c0)}"); k(f"v_mov_b32 v5, {f32(c0)}")
        k(f"v_mov_b32 v6, 1.0"); k(f"v_mov_b32 v7, 1.0")
        set_ovs()
        for tn in range(2):
            for tp in range(2):
                P = T + 4*tp + 24*tn
                for q in range(4):
                    td = 2*tp + q//2
                    src = ACC + 4*(4*tn+td) + 2*(q % 2)
                    u, w = T+8+4*q, T+10+4*q
                    gelu_pair(k, src, u, w, BIAS+tn, P+q)
                pack_swap(P)
            store_lines(T+24*tn, T+24*tn+4, T+32, tn*16*2048, 16)
    else:
        if XSHARE:
            assert XSENT and XBF16
            SHX, SHY = 0, 16384
            k("s_waitcnt vmcnt(0)")
            srd(k, 44, 26, 256*16384, 0x1E00000 if XB_SEP else VB_OFF)
            k(f"s_xor_b32 s42, s2, {8 if MAP2 == 1 else 1}")
            k("s_lshl_b32 s43, s42, 14")
            k("s_lshl_b32 s39, s28, 12")
            k("s_add_u32 s43, s43, s39")
            k("v_lshlrev_b32 v2, 4, v1")
            k("s_cmp_eq_u32 s62, 0")
            k(f"s_cbranch_scc1 L_{tag}_k0")
            for half, l2 in ((0, None), (32, f"L_{tag}_k0:")):
                if l2: k(l2)
                for i in range(16): k(f"{CVT} v{Y+32+i}, v{ACC+half+2*i}, v{ACC+half+2*i+1}")
                for i in range(4):
                    k(f"s_add_u32 s39, s43, {1024*i}")
                    k(f"buffer_store_dwordx4 {vr(Y+32+4*i,4)}, v2, s[44:47], s39 offen sc0 sc1")
                if half == 0:
                    for i in range(32): k(f"v_mov_b32 v{ACC+i}, v{ACC+32+i}")
                    k(f"v_mov_b32 v{BIAS}, v{BIAS+2}")
                    k(f"s_branch L_{tag}_k1")
            k(f"L_{tag}_k1:")
            k("s_lshl_b32 s39, s28, 12")
            k(f"v_add_u32 v3, s39, v2")
            for i in range(4): k(f"ds_write_b128 v3, {vr(ACC+16+4*i,4)} offset:{SHX+1024*i}")
            k("s_lshl_b32 s39, s62, 16")
            k("s_add_u32 s38, s38, s39")
            k("s_lshl_b32 s39, s28, 11")
            k(f"v_add_u32 v3, s39, v2")
            k("s_waitcnt vmcnt(0) lgkmcnt(0)" if XWAIT else "s_waitcnt lgkmcnt(0)")
            k("s_barrier")
            k("s_barrier")
            k(f"ds_read_b128 {vr(Y+40,4)}, v3 offset:{SHY}")
            k(f"ds_read_b128 {vr(Y+44,4)}, v3 offset:{SHY+1024}")
            k("s_waitcnt lgkmcnt(0)")
            mark(k, 4)
            k(f"L_{tag}_epi:")
            k("s_mov_b32 s40, 0xffff0000")
            k(f"v_lshlrev_b32 v{BIAS}, 16, v{BIAS}")
            if PERTURB: k(f"v_add_f32 v{BIAS}, {f32(PERTURB)}, v{BIAS}")
            set_ovs()
            for tp in range(2):
                P = T + 4*tp
                for q in range(4):
                    td = 2*tp + q//2
                    a_ = ACC + 4*td + 2*(q % 2); y = Y + 4*td + 2*(q % 2)
                    u, w = T+8+4*q, T+10+4*q
                    pk = Y + 40 + (4*td + 2*(q % 2))//2
                    k(f"v_lshlrev_b32 v{y}, 16, v{pk}")
                    k(f"v_and_b32 v{y+1}, s40, v{pk}")
                    k(f"v_pk_add_f32 {vr(a_,2)}, {vr(a_,2)}, {vr(y,2)}")
                    k(f"v_add_f32 v{u}, v{a_}, v{BIAS}")
                    k(f"v_add_f32 v{u+1}, v{a_+1}, v{BIAS}")
                    k(f"{CVT} v{P+q}, v{u}, v{u+1}")
                pack_swap(P)
                for q in range(4):
                    u, w = T+8+4*q, T+10+4*q
                    hp = HL+4*tp+q
                    k(f"v_lshlrev_b32 v{u}, 16, v{P+q}")
                    k(f"v_and_b32 v{u+1}, s40, v{P+q}")
                    k(f"v_lshlrev_b32 v{w}, 16, v{hp}")
                    k(f"v_and_b32 v{w+1}, s40, v{hp}")
                    k(f"v_pk_add_f32 {vr(u,2)}, {vr(u,2)}, {vr(w,2)}")
                    k(f"{CVT} v{P+q}, v{u}, v{u+1}")
            store_lines(T, T+4, T+32, 0, 48)
        else:
            k("s_waitcnt vmcnt(0)")
            srd(k, 44, 26, 256*(16384 if XBF16 else 32768), 0x1E00000 if XB_SEP else VB_OFF)
            if not XSENT: srd(k, 56, 26, 256*64, FL_OFF)
            k(f"s_xor_b32 s42, s2, {8 if MAP2 == 1 else 1}")
            k(f"s_lshl_b32 s43, s42, {14 if XBF16 else 15}")
            k(f"s_lshl_b32 s39, s28, {12 if XBF16 else 13}")
            k("s_add_u32 s43, s43, s39")
            k("v_lshlrev_b32 v2, 4, v1")
            k("v_mov_b32 v4, 0")
            if not XSENT:
                k("s_lshl_b32 s39, s42, 6")
                k("s_mov_b32 s41, 0")
                k("v_readfirstlane_b32 s61, v3")
                k("s_cmp_eq_u32 s61, 0")
                k(f"s_cbranch_scc0 L_{tag}_xpolld")
                k(f"L_{tag}_xpoll:")
                k("buffer_load_dword v3, v4, s[56:59], s39 offen offset:4 sc0 sc1")
                k("s_waitcnt vmcnt(0)")
                k("v_readfirstlane_b32 s61, v3")
                k("s_add_u32 s41, s41, 1")
                k("s_cmp_ge_u32 s41, 0x40000")
                k(f"s_cbranch_scc1 L_{tag}_xpolld")
                k("s_cmp_eq_u32 s61, 0")
                k(f"s_cbranch_scc1 L_{tag}_xpoll")
                k(f"L_{tag}_xpolld:")
                k("s_cmp_eq_u32 s61, s54")
                k(f"s_cselect_b32 s61, {0 if FORCE_FAR else 1}, 0")
            def sends(flags, lab):
                k("s_cmp_eq_u32 s62, 0")
                k(f"s_cbranch_scc1 L_{tag}_k0{lab}")
                for half, l2 in ((0, None), (32, f"L_{tag}_k0{lab}:")):
                    if l2: k(l2)
                    if XBF16:
                        for i in range(16): k(f"{CVT} v{Y+32+i}, v{ACC+half+2*i}, v{ACC+half+2*i+1}")
                        for i in range(4):
                            k(f"s_add_u32 s39, s43, {1024*i}")
                            k(f"buffer_store_dwordx4 {vr(Y+32+4*i,4)}, v2, s[44:47], s39 offen {flags}")
                    else:
                        for i in range(8):
                            k(f"s_add_u32 s39, s43, {1024*i}")
                            k(f"buffer_store_dwordx4 {vr(ACC+half+4*i,4)}, v2, s[44:47], s39 offen {flags}")
                    if half == 0: k(f"s_branch L_{tag}_k1{lab}")
                k(f"L_{tag}_k1{lab}:")
            def handoff(stf, ldf, lab):
                sends(stf, lab)
                k("s_waitcnt vmcnt(0)")
                k("s_lshl_b32 s39, s42, 6")
                k("s_lshl_b32 s41, s28, 2")
                k("s_add_u32 s39, s39, s41")
                k("v_mov_b32 v3, 1")
                k("s_mov_b64 exec, 1")
                k(f"buffer_store_dword v3, v4, s[56:59], s39 offen offset:16 {stf}")
                k("s_lshl_b32 s39, s2, 6")
                k("s_add_u32 s39, s39, s41")
                k("s_mov_b32 s41, 0")
                k(f"L_{tag}_poll{lab}:")
                k(f"buffer_load_dword v3, v4, s[56:59], s39 offen offset:16 {ldf}")
                k("s_waitcnt vmcnt(0)")
                k("v_readfirstlane_b32 s43, v3")
                k("s_add_u32 s41, s41, 1")
                k("s_cmp_ge_u32 s41, 0x40000")
                k(f"s_cbranch_scc1 L_{tag}_polld{lab}")
                k("s_cmp_eq_u32 s43, 1")
                k(f"s_cbranch_scc0 L_{tag}_poll{lab}")
                k(f"L_{tag}_polld{lab}:")
                k("s_mov_b64 exec, -1")
                k(f"s_lshl_b32 s43, s2, {14 if XBF16 else 15}")
                k(f"s_lshl_b32 s39, s28, {12 if XBF16 else 13}")
                k("s_add_u32 s43, s43, s39")
                for i in range(4 if XBF16 else 8):
                    k(f"s_add_u32 s39, s43, {1024*i}")
                    k(f"buffer_load_dwordx4 {vr(Y+(32 if XBF16 else 0)+4*i,4)}, v2, s[44:47], s39 offen {ldf}")
            if XSENT:
                assert XBF16
                sends('sc0 sc1', 's')
                k("s_lshl_b32 s43, s2, 14")
                k("s_lshl_b32 s39, s28, 12")
                k("s_add_u32 s43, s43, s39")
                k("s_mov_b32 s41, 0")
                k("s_waitcnt vmcnt(0)")
                k(f"L_{tag}_spoll:")
                for i in range(4):
                    k(f"s_add_u32 s39, s43, {1024*i}")
                    k(f"buffer_load_dwordx4 {vr(Y+32+4*i,4)}, v2, s[44:47], s39 offen sc0 sc1")
                k("s_add_u32 s41, s41, 1")
                k("s_waitcnt vmcnt(0)")
                k(f"v_max3_u32 v3, v{Y+32}, v{Y+33}, v{Y+34}")
                for i in range(3, 15, 2): k(f"v_max3_u32 v3, v3, v{Y+32+i}, v{Y+32+i+1}")
                k(f"v_max_u32 v3, v3, v{Y+47}")
                k("v_cmp_eq_u32 vcc, -1, v3")
                k("s_nop 4")
                k("s_cmp_ge_u32 s41, 0x20000")
                k(f"s_cbranch_scc1 L_{tag}_spolld")
                k(f"s_cbranch_vccnz L_{tag}_spoll")
                k(f"L_{tag}_spolld:")
            else:
                k("s_cmp_eq_u32 s61, 1")
                k(f"s_cbranch_scc0 L_{tag}_far")
                handoff('', 'sc1', 'n')
                k(f"s_branch L_{tag}_xdone")
                k(f"L_{tag}_far:")
                handoff('sc0 sc1', 'sc0 sc1', 'f')
                k(f"L_{tag}_xdone:")
            k("s_cmp_eq_u32 s62, 0")
            k(f"s_cbranch_scc1 L_{tag}_kept")
            for i in range(32): k(f"v_mov_b32 v{ACC+i}, v{ACC+32+i}")
            k(f"v_mov_b32 v{BIAS}, v{BIAS+2}"); k(f"v_mov_b32 v{BIAS+1}, v{BIAS+3}")
            k(f"L_{tag}_kept:")
            mark(k, 4)
            k(f"v_lshlrev_b32 v{BIAS}, 16, v{BIAS}"); k(f"v_lshlrev_b32 v{BIAS+1}, 16, v{BIAS+1}")
            if PERTURB:
                k(f"v_add_f32 v{BIAS}, {f32(PERTURB)}, v{BIAS}"); k(f"v_add_f32 v{BIAS+1}, {f32(PERTURB)}, v{BIAS+1}")
            k("s_lshl_b32 s39, s62, 16")
            k("s_add_u32 s38, s38, s39")
            set_ovs()
            for tnl in range(2):
                for tp in range(2):
                    i0 = 4*tnl + 2*tp
                    if XSENT: pass
                    elif XBF16: k(f"s_waitcnt vmcnt({3 - i0//2})")
                    else:     k(f"s_waitcnt vmcnt({6 - i0 if i0 < 6 else 0})")
                    if i0 == 0: mark(k, 5)
                    P = T + 4*tp + 24*tnl
                    for q in range(4):
                        td = 2*tp + q//2
                        a = ACC + 4*(4*tnl+td) + 2*(q % 2); y = Y + 4*(4*tnl+td) + 2*(q % 2)
                        u, w = T+8+4*q, T+10+4*q
                        if XBF16:
                            pk = Y + 32 + (4*(4*tnl+td) + 2*(q % 2))//2
                            k(f"v_lshlrev_b32 v{y}, 16, v{pk}")
                            k(f"v_and_b32 v{y+1}, s40, v{pk}")
                        k(f"v_pk_add_f32 {vr(a,2)}, {vr(a,2)}, {vr(y,2)}")
                        if EMU_Y:
                            k(f"{CVT} v{w}, v{a}, v{a+1}")
                            k(f"v_lshlrev_b32 v{u}, 16, v{w}")
                            k(f"v_and_b32 v{u+1}, s40, v{w}")
                            k(f"v_add_f32 v{u}, v{u}, v{BIAS+tnl}")
                            k(f"v_add_f32 v{u+1}, v{u+1}, v{BIAS+tnl}")
                        else:
                            k(f"v_add_f32 v{u}, v{a}, v{BIAS+tnl}")
                            k(f"v_add_f32 v{u+1}, v{a+1}, v{BIAS+tnl}")
                        k(f"{CVT} v{P+q}, v{u}, v{u+1}")
                    pack_swap(P)
                    for q in range(4):
                        u, w = T+8+4*q, T+10+4*q
                        hp = HL+8*tnl+4*tp+q
                        k(f"v_lshlrev_b32 v{u}, 16, v{P+q}")
                        k(f"v_and_b32 v{u+1}, s40, v{P+q}")
                        k(f"v_lshlrev_b32 v{w}, 16, v{hp}")
                        k(f"v_and_b32 v{w+1}, s40, v{hp}")
                        k(f"v_pk_add_f32 {vr(u,2)}, {vr(u,2)}, {vr(w,2)}")
                        k(f"{CVT} v{P+q}, v{u}, v{u+1}")
                store_lines(T+24*tnl, T+24*tnl+4, T+32, tnl*16*2048, 48)
    stamp_end(k, tag)
    k(f"s_branch {'L_gbar' if (fused and g1) else ENDL}")
    k(f"L_{tag}_prod:")
    if PPRIO: k(f"s_setprio {PPRIO}")
    k("s_sub_u32 s33, s28, 4")
    k("v_lshrrev_b32 v2, 4, v1")
    k("s_and_b32 s34, s33, 1")
    k("s_lshl_b32 s34, s34, 2")
    k("v_add_u32 v3, s34, v2")
    k("v_lshlrev_b32 v3, 1, v3")
    k("v_and_b32 v4, 15, v1")
    k("v_xor_b32 v3, v3, v4")
    k("v_lshlrev_b32 v3, 4, v3")
    k("v_lshl_add_u32 v8, v2, 11, v3")
    k(f"v_mul_u32_u24 v2, {BSTR}, v2")
    k("v_add_u32 v9, v2, v3")
    k("s_lshl_b32 s34, s33, 13")
    k("s_add_u32 s40, s32, s34")
    k(f"s_mul_i32 s34, s33, {4*BSTR}")
    k("s_add_u32 s41, s31, s34")
    k("s_lshl_b32 s42, s33, 10")
    k("s_mov_b32 s43, 0")
    k("s_add_u32 s46, s52, s53")
    k("s_mov_b32 s47, 0")
    def issue():
        k("s_add_u32 s58, s46, s47")
        k("s_and_b32 s58, s58, 3")
        k("s_cmp_eq_u32 s58, 0")
        k(f"s_cselect_b32 s58, {3+NIT}, {NIT-1}")
        k("s_add_u32 s58, s58, s47")
        k("s_add_u32 s58, s58, s55")
        k(f"s_cmp_ge_u32 s58, {2*NIT}")
        k(f"s_cselect_b32 s59, {2*NIT}, {NIT}")
        k(f"s_cmp_ge_u32 s58, {NIT}")
        k(f"s_cselect_b32 s59, s59, 0")
        k("s_sub_u32 s58, s58, s59")
        if not KPERM: k("s_mov_b32 s58, s47")
        if KWRAP: k(f"s_and_b32 s58, s58, {KWRAP-1}")
        k("s_add_u32 s58, s58, s63")
        k(f"s_mul_i32 s59, s58, {64*BSTR}")
        k(f"s_lshl_b32 s58, s58, 17")
        k("s_add_u32 s58, s58, s40")
        k("s_add_u32 s59, s59, s41")
        k("s_add_u32 s44, s43, s42")
        for m in range(4):
            k(f"s_add_u32 m0, s44, {4096*m}")
            k(f"s_add_u32 s45, s58, {m*16*2048}")
            k(f"buffer_load_dwordx4 v8, s[12:15], s45 offen lds")
            k(f"s_add_u32 m0, s44, {ASZ+4096*m}")
            k(f"s_add_u32 s45, s59, {m*16*BSTR}")
            k(f"buffer_load_dwordx4 v9, s[8:11], s45 offen {NT_B1 if g1 else NT_B2} lds")
        k("s_add_u32 s47, s47, 1")
        k(f"s_add_u32 s43, s43, {STG}")
        k(f"s_cmp_eq_u32 s43, {STG*NS}")
        k("s_cselect_b32 s43, 0, s43")
    if fused and not g1:
        k("s_cmp_eq_u32 s33, 0")
        k("s_cbranch_scc0 L_gbar_nopoll")
        srd(k, 36, 26, 1024, BAR_OFF)
        k("v_and_b32 v2, 7, v1")
        k("v_lshlrev_b32 v2, 7, v2")
        k("s_mov_b32 s34, 0")
        k("L_gbar_poll:")
        if PSLEEP: k(f"s_sleep {PSLEEP}")
        k(f"buffer_load_dword v3, v2, s[36:39], 0 offen {POLLF}")
        k("s_waitcnt vmcnt(0)")
        k("v_cmp_gt_u32 vcc, 32, v3")
        k("s_add_u32 s34, s34, 1")
        k("s_cmp_ge_u32 s34, 0x20000")
        k("s_cbranch_scc1 L_gbar_nopoll")
        k("s_cbranch_vccnz L_gbar_poll")
        k("L_gbar_nopoll:")
        k("s_barrier")
    if BAR2:
        per = 8
        mark(k, 1)
        issue(); mark(k, 2); issue()
        k(f"s_waitcnt vmcnt({per})")
        mark(k, 3)
        k("s_barrier")
        issue(); issue()
        mark(k, 4)
        k("s_mov_b32 s60, 0")
        k(f"L_{tag}_ploop:")
        k(f"s_waitcnt vmcnt({per})")
        k("s_barrier")
        issue(); issue()
        k("s_add_u32 s60, s60, 2")
        k(f"s_cmp_lt_u32 s60, {NIT-4}")
        k(f"s_cbranch_scc1 L_{tag}_ploop")
        k(f"s_waitcnt vmcnt({per})")
        k("s_barrier")
        k("s_waitcnt vmcnt(0)")
        k("s_barrier")
    else:
        producer_loop(k, tag, 8, issue, 3 if STATIC else NS, NIT)
    if g1 and CODEPF2 and not fused:
        k("s_cmp_eq_u32 s33, 0")
        k(f"s_cbranch_scc0 L_{tag}_nonp")
        next_code_pf(k, 'g1', 'g2_kernel', 'L_text_end', 28, 120, 56, 1)
        k(f"L_{tag}_nonp:")
    if g1:
        k("s_and_b32 s34, s33, 1")
        k("s_lshr_b32 s36, s33, 1")
        k("v_and_b32 v2, 15, v1")
        k("v_lshlrev_b32 v2, 1, v2")
        k("s_lshl_b32 s37, s36, 7")
        k("s_add_u32 s37, s37, s31")
        for t in range(2):
            k(f"buffer_load_ushort v{BIAS+t}, v2, s[20:23], s37 offen offset:{64+32*t}")
        k("v_and_b32 v2, 15, v1")
        k("v_lshlrev_b32 v2, 11, v2")
        k("v_lshrrev_b32 v3, 4, v1")
        k(f"v_lshl_add_u32 v{OV}, v3, 4, v2")
        k("s_lshl_b32 s38, s29, 7")
        k("s_lshl_b32 s39, s36, 6")
        k("s_add_u32 s38, s38, s39")
        k("s_add_u32 s38, s38, 32")
        k("s_lshl_b32 s38, s38, 11")
        k("s_add_u32 s38, s38, s32")
        k("s_lshl_b32 s39, s34, 7")
        k("s_add_u32 s38, s38, s39")
        k("s_lshl_b32 s39, s33, 13")
        k(f"s_add_u32 s39, s39, {32768 if STATIC else (98304 if BAR2 else 65536)}")
        k("v_lshl_add_u32 v2, v1, 4, s39")
        k("s_setprio 0")
        k("s_barrier")
        for i in range(8): k(f"ds_read_b128 {vr(ACC+4*i,4)}, v2 offset:{1024*i}")
        k("s_waitcnt vmcnt(0) lgkmcnt(0)")
        k(f"s_branch L_{tag}_epi")
    if (not g1) and XSHARE:
        SHX, SHY = 0, 16384
        k("s_setprio 0")
        k("s_and_b32 s34, s33, 1")
        k("s_lshr_b32 s36, s33, 1")
        k("v_and_b32 v2, 15, v1")
        k("v_lshlrev_b32 v2, 1, v2")
        k("s_lshl_b32 s37, s36, 7")
        k("s_add_u32 s37, s37, s31")
        k("s_lshl_b32 s39, s62, 6")
        k("s_add_u32 s37, s37, s39")
        k(f"buffer_load_ushort v{BIAS}, v2, s[20:23], s37 offen offset:32")
        k("v_and_b32 v2, 15, v1")
        k("v_lshlrev_b32 v2, 11, v2")
        k("v_lshrrev_b32 v3, 4, v1")
        k(f"v_lshl_add_u32 v{OV}, v3, 4, v2")
        k("s_lshl_b32 s38, s29, 7")
        k("s_lshl_b32 s39, s36, 6")
        k("s_add_u32 s38, s38, s39")
        k("s_lshl_b32 s39, s62, 5")
        k("s_add_u32 s38, s38, s39")
        k("s_add_u32 s38, s38, 16")
        k("s_lshl_b32 s38, s38, 11")
        k("s_add_u32 s38, s38, s32")
        k("s_lshl_b32 s39, s34, 7")
        k("s_add_u32 s38, s38, s39")
        for tp in range(2):
            k(f"s_add_u32 s40, s38, {tp*64}")
            k(f"buffer_load_dwordx4 {vr(HL+4*tp,4)}, v{OV}, s[16:19], s40 offen")
        srd(k, 44, 26, 256*16384, 0x1E00000 if XB_SEP else VB_OFF)
        k("s_lshl_b32 s43, s2, 14")
        k("s_lshl_b32 s39, s33, 12")
        k("s_add_u32 s43, s43, s39")
        k("v_lshlrev_b32 v2, 4, v1")
        k("s_lshl_b32 s39, s33, 12")
        k("v_add_u32 v3, s39, v2")
        k("s_barrier")
        for i in range(4): k(f"ds_read_b128 {vr(ACC+4*i,4)}, v3 offset:{SHX+1024*i}")
        k("s_mov_b32 s41, 0")
        k(f"L_{tag}_spoll:")
        for i in range(4):
            k(f"s_add_u32 s39, s43, {1024*i}")
            k(f"buffer_load_dwordx4 {vr(Y+32+4*i,4)}, v2, s[44:47], s39 offen sc0 sc1")
        k("s_add_u32 s41, s41, 1")
        k("s_waitcnt vmcnt(0)")
        k(f"v_max3_u32 v5, v{Y+32}, v{Y+33}, v{Y+34}")
        for i in range(3, 15, 2): k(f"v_max3_u32 v5, v5, v{Y+32+i}, v{Y+32+i+1}")
        k(f"v_max_u32 v5, v5, v{Y+47}")
        k("v_cmp_eq_u32 vcc, -1, v5")
        k("s_nop 4")
        k("s_cmp_ge_u32 s41, 0x20000")
        k(f"s_cbranch_scc1 L_{tag}_spolld")
        k(f"s_cbranch_vccnz L_{tag}_spoll")
        k(f"L_{tag}_spolld:")
        k("s_lshl_b32 s39, s33, 11")
        k("v_add_u32 v3, s39, v2")
        k(f"ds_write_b128 v3, {vr(Y+32,4)} offset:{SHY}")
        k(f"ds_write_b128 v3, {vr(Y+36,4)} offset:{SHY+1024}")
        k("s_waitcnt lgkmcnt(0)")
        k("s_barrier")
        k(f"s_branch L_{tag}_epi")
    stamp_end(k, tag, tid=256, slot=256, sfx='p')
    if fused and g1:
        return k, NV, STG*NS
    k(f"{ENDL}:")
    k("s_endpgm")
    return k, NV, STG*NS

def gelu_pair(k, src, u, w, bias, dst):
    if EMU_U:
        k(f"{CVT} v{w}, v{src}, v{src+1}")
        k(f"v_lshlrev_b32 v{u}, 16, v{w}")
        k(f"v_and_b32 v{u+1}, s40, v{w}")
        k(f"v_add_f32 v{u}, v{u}, v{bias}")
        k(f"v_add_f32 v{u+1}, v{u+1}, v{bias}")
        k(f"{CVT} v{w}, v{u}, v{u+1}")
        k(f"v_lshlrev_b32 v{u}, 16, v{w}")
        k(f"v_and_b32 v{u+1}, s40, v{w}")
    else:
        k(f"v_add_f32 v{u}, v{src}, v{bias}")
        k(f"v_add_f32 v{u+1}, v{src+1}, v{bias}")
    k(f"v_pk_mul_f32 {vr(w,2)}, {vr(u,2)}, {vr(u,2)}")
    k(f"v_pk_fma_f32 {vr(w,2)}, {vr(w,2)}, s[42:43], {vr(4,2)} op_sel_hi:[1,0,1]")
    k(f"v_pk_mul_f32 {vr(w,2)}, {vr(w,2)}, {vr(u,2)}")
    k(f"v_exp_f32 v{w}, v{w}")
    k(f"v_exp_f32 v{w+1}, v{w+1}")
    k(f"s_nop 0")
    k(f"v_pk_add_f32 {vr(w,2)}, {vr(w,2)}, {vr(6,2)}")
    k(f"v_rcp_f32 v{w}, v{w}")
    k(f"v_rcp_f32 v{w+1}, v{w+1}")
    k(f"s_nop 0")
    k(f"v_pk_mul_f32 {vr(w,2)}, {vr(w,2)}, {vr(u,2)}")
    k(f"{CVT} v{dst}, v{w}, v{w+1}")

RPAT = [2, 1]
FUSE_GG = 0
CODEPF2 = 1
WJOB = 2
LN_FUSE = 1
WEARLY = 1
W1IDLE = 0
EMU_LN = 0
EMU_L2 = 0
NT_B1 = ''
NT_B2 = ''
NT_X = ''
NT_W = ''
KHALF = 1
XSENT = 1
XSHARE = 0
XWAIT = 1
XBF16 = 1
EMU_Y = 0
PERTURB = 0
PSLEEP = 4
POLLF = 'sc0 sc1'
STATIC = 1
LOOPSTAMP = 0
BAR2 = 0
FAKE32 = 0
MAP2 = 0
XB_SEP = 1
FORCE_FAR = 0
PPRIO = 3
PFD = 0
KPERM = 1
FAKE16 = 0
NS1 = 3
NS2 = 3
KWRAP = 0
W2PF = 7
EMU_U = 0
RPG1 = 3
RPG2 = 4
def gen_gg():
    k1, nv1, l1 = gemm_kernel('g1', True)
    k2, nv2, l2 = gemm_kernel('g2', True)
    k1.l += k2.l
    return k1, max(nv1, nv2), max(l1, l2)
def gen_g1(): return gemm_kernel('g1')
def gen_g2(): return gemm_kernel('g2')

KERNELS = [('p1_kernel', gen_p1, (256,1,1), (256,1,1)), ('p2_kernel', gen_p2, (256,1,1), (256,1,1)), ('p3_kernel', gen_p3, (256,1,1), (256,1,1)),
 ('g1_kernel', gen_g1, (256,1,1), (512,1,1)), ('g2_kernel', gen_g2, (256,1,1), (512,1,1))]

def build_all(kernels=None):
    ks = []
    if kernels is None:
        kernels = KERNELS[:3] + [('gg_kernel', gen_gg, (256,1,1), (512,1,1))] if FUSE_GG else KERNELS
    for name, fn, grid, block in kernels:
        if W1PF and name in ('p2_kernel', 'p3_kernel'): block = (320, 1, 1)
        k, nv, lds = fn()
        if ST_ALL:
            k.l = [ (x + ' ' + ST_ALL) if ('buffer_store' in x and 'sc1' not in x and 'sc0' not in x and ' nt' not in x) else x for x in k.l]
        if name.startswith('g'):
            if NO_DMA: k.l = [x for x in k.l if not ('offen lds' in x)]
            if NO_MFMA: k.l = [x for x in k.l if 'v_mfma' not in x]
            if NO_ADV: k.l = [x for x in k.l if not (x.strip().startswith('s_add_u32 s40, s40,') or x.strip().startswith('s_add_u32 s41, s41,'))]
            if NO_A: k.l = [x for x in k.l if not ('s[12:15]' in x and 'offen lds' in x)]
            if NO_B: k.l = [x for x in k.l if not ('s[8:11]' in x and 'offen lds' in x)]
            if NO_BAR: k.l = [x for x in k.l if 's_barrier' not in x]
            if NO_READ: k.l = [x for x in k.l if 'ds_read_b64_tr' not in x]
        ks.append((name, k, nv, lds, grid, block))
    hdr = open('sequential_preLN__spectral_gfnet__mixer_token_mlp__prompt.s.ref').read().split('; Override launch')[0]
    s = hdr
    for name, k, nv, lds, grid, block in ks:
        s += f"; @launch kernel={name} grid=({grid[0]},{grid[1]},{grid[2]}) block=({block[0]},{block[1]},{block[2]}) lds={lds}\n"
    s += '.amdgcn_target "amdgcn-amd-amdhsa--gfx950"\n.text\n'
    for name, k, nv, lds, grid, block in ks: s += k.text()
    s += 'L_text_end:\n'
    s += '.section .rodata,"a"\n'
    for name, k, nv, lds, grid, block in ks: s += descriptor(name, nv)
    return s, ks

if __name__ == '__main__':
    s, ks = build_all()
    open(sys.argv[1] if len(sys.argv) > 1 else 'out.s', 'w').write(s)
    print('written', len(s), 'bytes')
```

```python
import sys, math, struct
sys.path.insert(0, 'work')
from asmlib import *

ZW_OFF = 0x0          ; ZW_SIZE = 257*32768
ZD_OFF = 0x0 ; WB_OFF = 0x480000
VB_OFF = 0x900000     ; VB_BLK = 256*64
H_OFF  = 0xE00000
HN_OFF = 0x1200000
GT_OFF = 0x1600000
BAR_OFF = 0x2810000
WS_USED = 0x1D00000
S, D, F = 2048, 1024, 3584

def f32(x):
    return '0x%08x' % struct.unpack('<I', struct.pack('<f', x))[0]

CVT = 'v_cvt_pk_bf16_f32'
STAMP = False
NO_DMA = False
NO_MFMA = False
NO_READ = False
NO_BAR = False
NO_ADV = False
NO_A = False
NO_B = False
STAMP_OFF = 0x3000000
KIDX = {'p1':0,'p2':1,'p3':2,'g1':3,'g2':4}
NMARK = 8
def mark(k, i):
    if STAMP and not (LOOPSTAMP and k.name.startswith('g') and 1 <= i <= 4): k(f"s_memrealtime s[{64+2*i}:{65+2*i}]")
def stamp_begin(k):
    if STAMP:
        for i in range(1, NMARK): k(f"s_mov_b64 s[{64+2*i}:{65+2*i}], 0")
        k("s_memrealtime s[64:65]")
        k("s_memtime s[94:95]")
def stamp_end(k, tag, tid=0, slot=0, sfx=''):
    if not STAMP: return
    mark(k, 6)
    k("s_waitcnt vmcnt(0) lgkmcnt(0)")
    mark(k, 7)
    k("s_memtime s[84:85]")
    k("s_load_dwordx2 s[88:89], s[0:1], 80")
    k("s_waitcnt lgkmcnt(0)")
    k(f"s_add_u32 s88, s88, {STAMP_OFF + KIDX[tag]*65536}")
    k("s_addc_u32 s89, s89, 0")
    k(f"s_add_u32 s87, s2, {slot}")
    k("s_lshl_b32 s87, s87, 7")
    k("v_mov_b32 v8, s87")
    k(f"v_cmp_eq_u32 vcc, {tid}, v0" if tid <= 64 else f"v_cmp_eq_u32 vcc, {hex(tid)}, v0")
    k("s_and_saveexec_b64 s[86:87], vcc")
    k(f"s_cbranch_execz L_{tag}_nostamp{sfx}")
    for i in range(0, NMARK, 2):
        for j in range(4): k(f"v_mov_b32 v{4+j}, s{64+2*i+j}")
        k(f"global_store_dwordx4 v8, v[4:7], s[88:89] offset:{8*i}")
        k("s_nop 1")
    k("v_mov_b32 v4, s94"); k("v_mov_b32 v5, s95"); k("v_mov_b32 v6, s84"); k("v_mov_b32 v7, s85")
    k("global_store_dwordx4 v8, v[4:7], s[88:89] offset:64")
    k("s_getreg_b32 s84, hwreg(HW_REG_XCC_ID, 0, 4)")
    k("s_nop 1")
    k("v_mov_b32 v4, s84")
    k("global_store_dword v8, v4, s[88:89] offset:80")
    k(f"L_{tag}_nostamp{sfx}:")

MF32 = 'v_mfma_f32_32x32x16_bf16'

CODEPF = 1
W1PF = 0
W1PF0 = 0
W1L2 = 0
ST_FLAGS = ''
ST_ALL = ''
ST_P1 = 'sc1'
ST_P2 = 'sc1'
ST_P3 = 'sc1'
ST_G1 = 'sc1'
ST_G2 = 'nt'
OUT_TOUCH = 0
def code_prefetch(k, tag, first_label, last_label, vtmp, stmp, nwaves_cond=None):
    if not CODEPF: return
    k(f"s_getpc_b64 s[{stmp}:{stmp+1}]")
    k(f"L_{tag}_pc:")
    k(f"s_add_u32 s{stmp}, s{stmp}, {first_label}-L_{tag}_pc")
    k(f"s_addc_u32 s{stmp+1}, s{stmp+1}, 0")

WS_BASE = 0
def srd(k, s, base, size, off=0):
    if base == 26: off += WS_BASE
    if off:
        k(f"s_add_u32 s{s}, s{base}, {hex(off)}")
        k(f"s_addc_u32 s{s+1}, s{base+1}, 0")
    else:
        k(f"s_mov_b32 s{s}, s{base}")
        k(f"s_mov_b32 s{s+1}, s{base+1}")
    k(f"s_mov_b32 s{s+2}, {hex(size)}")
    k(f"s_mov_b32 s{s+3}, 0x20000")

SEQ = [(r, c) for r in range(4) for c in range(4)]

def rot_setup(k, vA, t):
    k(f"v_mul_f32 v{t+4}, {f32(5.0)}, v{vA}")
    k(f"v_cos_f32 v{t}, v{vA}")
    k(f"v_sin_f32 v{t+1}, v{vA}")
    k(f"v_cos_f32 v{t+2}, v{t+4}")
    k(f"v_sin_f32 v{t+3}, v{t+4}")

def rot(k, dst, src, st, tmp, sign):
    k(f"v_pk_mul_f32 {vr(tmp,2)}, {vr(src,2)}, {vr(st,2)} op_sel_hi:[1,0]")
    neg = "neg_lo:[0,1,0]" if sign > 0 else "neg_hi:[0,1,0]"
    k(f"v_pk_fma_f32 {vr(dst,2)}, {vr(src,2)}, {vr(st,2)}, {vr(tmp,2)} op_sel:[1,1,0] op_sel_hi:[0,1,1] {neg}")

def gen_matrix(k, Mr, Mi, vA, vB, t):
    rot_setup(k, vA, t)
    cur = [t+6, t+8]
    k(f"v_cos_f32 v{cur[0]}, v{vB}")
    k(f"v_sin_f32 v{cur[0]+1}, v{vB}")
    k("s_nop 0")
    for i, (r, c) in enumerate(SEQ):
        a_, b_ = cur[i % 2], cur[(i+1) % 2]
        if i < 15: rot(k, b_, a_, t+2 if c == 3 else t, t+4, +1)
        k(f"{CVT} v{Mr+i}, v{a_}, v{a_+1}")
        k(f"{CVT} v{Mi+i}, -v{a_+1}, v{a_}")

def gen_twiddle(k, tw, vA, vB, t, scale=None):
    rot_setup(k, vA, t)
    k(f"v_cos_f32 v{tw}, v{vB}")
    k(f"v_sin_f32_e64 v{tw+1}, -v{vB}")
    if scale is not None:
        k(f"v_mul_f32 v{tw}, {f32(scale)}, v{tw}")
        k(f"v_mul_f32 v{tw+1}, {f32(scale)}, v{tw+1}")
    else: k("s_nop 0")
    for i, (r, c) in enumerate(SEQ):
        if i < 15: rot(k, tw+2*(i+1), tw+2*i, t+2 if c == 3 else t, t+4, -1)

def stage(k, typ, Dr, Di, data, Mr, Mi, first=True):
    for r in range(4):
        for (Dx, M) in ((Dr, Mr), (Di, Mi)):
            c = '0' if (r == 0 and first) else vr(Dx, 16)
            if typ == 'A': k(f"{MF32} {vr(Dx,16)}, {vr(data+4*r,4)}, {vr(M+4*r,4)}, {c}")
            else:          k(f"{MF32} {vr(Dx,16)}, {vr(M+4*r,4)}, {vr(data+4*r,4)}, {c}")

def cmul_pack(k, Dr, Di, w, out, t, conj=False):
    for j in range(16):
        o = t + 2*(j % 4); jp = j & ~1; x = j & 1
        k(f"v_pk_mul_f32 {vr(o,2)}, {vr(w+2*j,2)}, {vr(Dr+jp,2)} op_sel:[0,{x}] op_sel_hi:[1,{x}]")
        k(f"v_pk_fma_f32 {vr(o,2)}, {vr(w+2*j,2)}, {vr(Di+jp,2)}, {vr(o,2)} op_sel:[1,{x},0] op_sel_hi:[0,{x},1] neg_lo:[1,0,0]")
        if j >= 1:
            po = t + 2*((j-1) % 4); n = '-' if conj else ''
            k(f"{CVT} v{out+j-1}, v{po}, {n}v{po+1}")
    po = t + 2*(15 % 4); n = '-' if conj else ''
    k(f"{CVT} v{out+15}, v{po}, {n}v{po+1}")

def wave_reduce2(k, a, b):
    for m in ("quad_perm:[1,0,3,2] row_mask:0xf", "quad_perm:[2,3,0,1] row_mask:0xf", "row_half_mirror row_mask:0xf",
              "row_mirror row_mask:0xf", "row_bcast:15 row_mask:0xa", "row_bcast:31 row_mask:0xc"):
        k(f"v_add_f32_dpp v{a}, v{a}, v{a} {m} bank_mask:0xf")
        k(f"v_add_f32_dpp v{b}, v{b}, v{b} {m} bank_mask:0xf")

def tree_sum(k, X, n, t, op='add'):
    acc = [t, t+2, t+4, t+6]
    for i in range(4):
        k(f"v_pk_add_f32 {vr(acc[i],2)}, {vr(X+2*i,2)}, {vr(X+2*(i+4),2)}")
    for i in range(8, n):
        k(f"v_pk_add_f32 {vr(acc[i%4],2)}, {vr(acc[i%4],2)}, {vr(X+2*i,2)}")
    k(f"v_pk_add_f32 {vr(acc[0],2)}, {vr(acc[0],2)}, {vr(acc[1],2)}")
    k(f"v_pk_add_f32 {vr(acc[2],2)}, {vr(acc[2],2)}, {vr(acc[3],2)}")
    k(f"v_pk_add_f32 {vr(acc[0],2)}, {vr(acc[0],2)}, {vr(acc[2],2)}")

def ln_scalars(k, t, twice=False):
    k(f"v_mul_f32 v{t}, {f32(1/1024)}, v{t}")
    k(f"v_mul_f32 v{t+1}, {f32(1/1024)}, v{t+1}")
    if twice:
        k(f"v_add_f32 v{t+2}, {f32(1e-5)}, v{t}")
        k(f"v_add_f32 v{t+3}, {f32(1e-5)}, v{t+1}")
        k(f"v_rsq_f32 v{t+2}, v{t+2}")
        k(f"v_rsq_f32 v{t+3}, v{t+3}")
        k("s_nop 0")
        k(f"v_mul_f32 v{t}, v{t}, v{t+2}")
        k(f"v_mul_f32 v{t+1}, v{t+1}, v{t+3}")
        k(f"v_mul_f32 v{t}, v{t}, v{t+2}")
        k(f"v_mul_f32 v{t+1}, v{t+1}, v{t+3}")
        k(f"v_add_f32 v{t}, {f32(1e-5)}, v{t}")
        k(f"v_add_f32 v{t+1}, {f32(1e-5)}, v{t+1}")
        k(f"v_rsq_f32 v{t}, v{t}")
        k(f"v_rsq_f32 v{t+1}, v{t+1}")
        k("s_nop 0")
        k(f"v_mul_f32 v{t}, v{t}, v{t+2}")
        k(f"v_mul_f32 v{t+1}, v{t+1}, v{t+3}")
        k(f"v_mul_f32 v{t+12}, v{t+12}, v{t}")
        k(f"v_mul_f32 v{t+13}, v{t+13}, v{t+1}")
        return
    if EMU_LN:
        k(f"{CVT} v{t+2}, v{t}, v{t+1}")
        k(f"v_lshlrev_b32 v{t}, 16, v{t+2}")
        k(f"v_and_b32 v{t+1}, 0xffff0000, v{t+2}")
    k(f"v_add_f32 v{t}, {f32(1e-5)}, v{t}")
    k(f"v_add_f32 v{t+1}, {f32(1e-5)}, v{t+1}")
    if EMU_LN:
        k(f"{CVT} v{t+2}, v{t}, v{t+1}")
        k(f"v_lshlrev_b32 v{t}, 16, v{t+2}")
        k(f"v_and_b32 v{t+1}, 0xffff0000, v{t+2}")
        k(f"v_sqrt_f32 v{t}, v{t}")
        k(f"v_sqrt_f32 v{t+1}, v{t+1}")
        k(f"s_nop 0")
        k(f"{CVT} v{t+2}, v{t}, v{t+1}")
        k(f"v_lshlrev_b32 v{t}, 16, v{t+2}")
        k(f"v_and_b32 v{t+1}, 0xffff0000, v{t+2}")
        k(f"v_rcp_f32 v{t}, v{t}")
        k(f"v_rcp_f32 v{t+1}, v{t+1}")
    else:
        k(f"v_rsq_f32 v{t}, v{t}")
        k(f"v_rsq_f32 v{t+1}, v{t+1}")
    k(f"s_nop 0")
    k(f"v_mul_f32 v{t+12}, v{t+12}, v{t}")
    k(f"v_mul_f32 v{t+13}, v{t+13}, v{t+1}")

def ln_mean(k, t, sTmp):
    k(f"v_mul_f32 v{t}, {f32(1/1024)}, v{t}")
    k(f"v_mul_f32 v{t+1}, {f32(1/1024)}, v{t+1}")
    if EMU_LN:
        k(f"{CVT} v{t+2}, v{t}, v{t+1}")
        k(f"v_readlane_b32 s{sTmp}, v{t}, 63")
        k(f"v_readlane_b32 s{sTmp+1}, v{t+1}, 63")
        k(f"v_lshlrev_b32 v{t+12}, 16, v{t+2}")
        k(f"v_and_b32 v{t+13}, 0xffff0000, v{t+2}")
    else:
        k(f"v_mov_b32 v{t+12}, v{t}")
        k(f"v_mov_b32 v{t+13}, v{t+1}")
        k(f"v_readlane_b32 s{sTmp}, v{t}, 63")
        k(f"v_readlane_b32 s{sTmp+1}, v{t+1}, 63")

def ln_stats_xrow(k, X, t, sM, sR, sTmp):
    tree_sum(k, X, 16, t)
    wave_reduce2(k, t, t+1)
    ln_mean(k, t, sTmp)
    acc = [t, t+2]; tmp = [t+4, t+6, t+8, t+10]
    for i in range(16):
        d = tmp[i % 4]
        k(f"v_pk_add_f32 {vr(d,2)}, {vr(X+2*i,2)}, {sr(sTmp,2)} neg_lo:[0,1] neg_hi:[0,1]")
        a = acc[i % 2]
        if i < 2: k(f"v_pk_mul_f32 {vr(a,2)}, {vr(d,2)}, {vr(d,2)}")
        else:     k(f"v_pk_fma_f32 {vr(a,2)}, {vr(d,2)}, {vr(d,2)}, {vr(a,2)}")
    k(f"v_pk_add_f32 {vr(t,2)}, {vr(t,2)}, {vr(t+2,2)}")
    wave_reduce2(k, t, t+1)
    ln_scalars(k, t)
    k(f"v_readlane_b32 s{sR}, v{t}, 63")
    k(f"v_readlane_b32 s{sR+1}, v{t+1}, 63")
    k(f"v_readlane_b32 s{sM}, v{t+12}, 63")
    k(f"v_readlane_b32 s{sM+1}, v{t+13}, 63")

def gen_p1():
    k = Kern('p1_kernel')
    k("s_cmp_ge_u32 s2, 256")
    k("s_cbranch_scc1 L_p1_end")
    stamp_begin(k)
    k("s_load_dwordx4 s[4:7], s[0:1], 0")
    k("s_load_dwordx2 s[24:25], s[0:1], 16")
    k("s_load_dwordx2 s[60:61], s[0:1], 32")
    k("s_load_dwordx2 s[26:27], s[0:1], 80")
    TID, LANE = 0, 1
    if CODEPF:
        k("s_getpc_b64 s[52:53]")
        k("L_p1_pc:")
        k("s_sub_u32 s52, s52, L_p1_pc-p1_kernel")
        k("s_subb_u32 s53, s53, 0")
        k("s_lshr_b32 s54, s2, 3")
        k("s_mul_i32 s54, s54, (L_text_end-p1_kernel+4095)/4096")
        k("v_add_u32 v213, s54, v0")
        k("v_lshlrev_b32 v213, 7, v213")
        k("v_mov_b32 v211, s53")
        k("v_add_co_u32 v210, vcc, s52, v213")
        k("v_addc_co_u32 v211, vcc, 0, v211, vcc")
        k("v_cmp_gt_u32 vcc, (L_text_end-p1_kernel+4095)/4096, v0")
        k("s_and_saveexec_b64 s[54:55], vcc")
        k("s_cbranch_execz L_p1_cp0")
        k("v_cmp_gt_u32 vcc, L_text_end-p1_kernel, v213")
        k("s_and_b64 exec, exec, vcc")
        k("s_cbranch_execz L_p1_cp0")
        k("global_load_dword v212, v[210:211], off")
        k("L_p1_cp0:")
        k("s_mov_b64 exec, -1")
    k("v_and_b32 v1, 63, v0")
    k("v_lshrrev_b32 v2, 6, v0")
    k("v_readfirstlane_b32 s28, v2")
    k("s_lshr_b32 s29, s2, 5")
    k("s_lshl_b32 s29, s29, 2")
    k("s_and_b32 s30, s2, 31")
    k("s_add_u32 s31, s29, s28")
    k("s_lshl_b32 s31, s31, 5")
    k("s_add_u32 s31, s31, s30")
    k("s_lshl_b32 s31, s31, 11")
    k("s_add_u32 s32, s31, 0x200000")
    k("s_waitcnt lgkmcnt(0)")
    srd(k, 8, 4, S*D*2)
    srd(k, 12, 6, S*513*2)
    srd(k, 16, 24, S*513*2)
    srd(k, 20, 26, 257*16384, ZD_OFF)
    srd(k, 72 if False else 52, 26, 257*16384, WB_OFF) if False else None
    XL = 4
    if FUSE_GG or (FUSE23 and FILLPOS != 2):
        srd(k, 56, 26, 1024, BAR_OFF)
        k("s_cmp_lt_u32 s2, 8")
        k("s_cbranch_scc0 L_p1_nozb")
        k("s_lshl_b32 s33, s2, 7")
        k("v_mov_b32 v2, 0")
        k("v_cmp_eq_u32 vcc, 0, v0")
        k("s_and_saveexec_b64 s[34:35], vcc")
        k("s_cbranch_execz L_p1_nozb")
        k("buffer_store_dword v2, v2, s[56:59], s33 offen sc0 sc1")
        k("L_p1_nozb:")
        k("s_mov_b64 exec, -1")
    k("v_lshlrev_b32 v2, 4, v1")
    k(f"buffer_load_dwordx4 {vr(XL,4)}, v2, s[8:11], s31 offen {NT_X}")
    k(f"buffer_load_dwordx4 {vr(XL+4,4)}, v2, s[8:11], s31 offen offset:1024 {NT_X}")
    k(f"buffer_load_dwordx4 {vr(XL+8,4)}, v2, s[8:11], s32 offen {NT_X}")
    k(f"buffer_load_dwordx4 {vr(XL+12,4)}, v2, s[8:11], s32 offen offset:1024 {NT_X}")
    WL = 20
    def w_loads():
        k("v_lshlrev_b32 v220, 2, v0")
        k("s_lshl_b32 s33, s29, 6")
        k("s_lshl_b32 s34, s30, 1")
        k("s_add_u32 s33, s33, s34")
        k("s_mul_i32 s33, s33, 1026")
        for pi in range(2):
            for cc in range(4):
                off = (64*cc + pi)*1026
                k(f"s_add_u32 s34, s33, {off}")
                k(f"buffer_load_dword v{WL+4*pi+cc}, v220, s[12:15], s34 offen {NT_W}")
                k(f"buffer_load_dword v{WL+8+4*pi+cc}, v220, s[16:19], s34 offen {NT_W}")
        WX = 200
        k("v_and_b32 v200, 3, v1")
        k("v_lshlrev_b32 v200, 6, v200")
        k("v_bfe_u32 v201, v1, 2, 1")
        k("v_add_u32 v200, v200, v201")
        k("v_mul_u32_u24 v200, 1026, v200")
        k("v_add_u32 v200, 1024, v200")
        k("v_and_b32 v226, 3, v1")
        k("v_lshlrev_b32 v226, 6, v226")
        k("v_add_u32 v226, v226, v201")
        k("s_lshl_b32 s49, s29, 6")
        k("s_lshl_b32 s50, s30, 1")
        k("s_add_u32 s49, s49, s50")
        k("v_add_u32 v226, s49, v226")
        k("v_sub_u32 v226, 2048, v226")
        k("v_and_b32 v226, 2047, v226")
        k("v_mul_u32_u24 v226, 1026, v226")
        k("v_subrev_u32 v227, 1024, v200")
        k("v_cmp_gt_u32 vcc, 8, v0")
        k("s_and_saveexec_b64 s[36:37], vcc")
        k("s_cbranch_execz L_p1_nox")
        k("buffer_load_ushort v202, v200, s[12:15], s33 offen")
        k("buffer_load_ushort v203, v200, s[16:19], s33 offen")
        k("buffer_load_ushort v228, v227, s[12:15], s33 offen")
        k("buffer_load_ushort v229, v227, s[16:19], s33 offen")
        k("buffer_load_ushort v230, v226, s[12:15], 0 offen")
        k("buffer_load_ushort v231, v226, s[16:19], 0 offen")
        k("buffer_load_ushort v232, v226, s[12:15], 0 offen offset:1024")
        k("buffer_load_ushort v233, v226, s[16:19], 0 offen offset:1024")
        k("L_p1_nox:")
        k("s_mov_b64 exec, -1")
    if WEARLY == 1: w_loads()
    if FUSE23 and FILLPOS == 2:
        srd(k, 56, 26, 256*VB_BLK, VB_OFF)
        for i in range(4): k(f"v_mov_b32 v{36+i}, -1")
        k("v_lshlrev_b32 v3, 4, v0")
        k("s_lshl_b32 s33, s2, 14")
        for j in range(4):
            k(f"buffer_store_dwordx4 v[36:39], v3, s[56:59], s33 offen sc0 sc1")
            if j < 3: k("s_add_u32 s33, s33, 4096")
    WL = 20
    Mr, Mi, TW = 36, 52, 68
    XF, DR, DI, OP, T = 100, 132, 148, 164, 180
    k("v_and_b32 v2, 31, v1")
    k("v_cvt_f32_u32 v2, v2")
    k("v_lshrrev_b32 v3, 5, v1")
    k("v_lshlrev_b32 v3, 2, v3")
    k("v_cvt_f32_u32 v3, v3")
    k(f"v_mul_f32 v204, {f32(1/32)}, v2")
    k("v_mul_f32 v205, v204, v3")
    gen_matrix(k, Mr, Mi, 204, 205, T)
    k(f"v_mul_f32 v204, {f32(1/1024)}, v2")
    k("v_mul_f32 v205, v204, v3")
    gen_twiddle(k, TW, 204, 205, T)
    STG = 16384; WST = STG + 257*64 + 64
    k("s_lshr_b32 s44, s2, 2")
    k("s_and_b32 s44, s44, 3")
    k("s_mov_b32 s45, 0x05040100")
    k("s_mov_b32 s46, 0x07060302")
    k("s_lshl_b32 s47, s2, 6")
    k("s_lshl_b32 s48, s28, 2")
    k(f"s_add_u32 s48, s48, {STG}")
    B1, B2, AWJ, AX, ARD, AGL, AT1, AT2, AWR, AWG = 206, 207, 208, 209, 216, 217, 218, 219, 221, 222
    k("v_and_b32 v2, 31, v1")
    k("v_lshrrev_b32 v3, 5, v1")
    k("v_and_b32 v204, 1, v2")
    k("v_lshrrev_b32 v205, 1, v2")
    k(f"v_xor_b32 v{B1}, s44, v204")
    k(f"v_lshlrev_b32 v{B1}, 4, v{B1}")
    k(f"v_lshl_add_u32 v{B1}, v205, 6, v{B1}")
    k(f"v_lshl_add_u32 v{B1}, v3, 12, v{B1}")
    k(f"v_add_u32 v{B1}, s48, v{B1}")
    k("v_add_u32 v205, 1, v2")
    k("v_lshrrev_b32 v205, 1, v205")
    k("v_add_u32 v204, 2, v204")
    k(f"v_xor_b32 v{B2}, s44, v204")
    k(f"v_lshlrev_b32 v{B2}, 4, v{B2}")
    k("v_lshlrev_b32 v205, 6, v205")
    k(f"v_sub_u32 v{B2}, v{B2}, v205")
    k("v_lshlrev_b32 v205, 12, v3")
    k(f"v_sub_u32 v{B2}, v{B2}, v205")
    k(f"v_add_u32 v{B2}, s48, v{B2}")
    k("s_lshl_b32 s49, s28, 12")
    k(f"s_add_u32 s49, s49, {WST}")
    k("v_bfe_u32 v204, v1, 1, 2")
    k("v_xor_b32 v204, s44, v204")
    k("v_lshlrev_b32 v204, 4, v204")
    k(f"v_lshl_add_u32 v{AWJ}, v1, 6, v204")
    k(f"v_add_u32 v{AWJ}, s49, v{AWJ}")
    k("v_lshrrev_b32 v204, 2, v1")
    k("v_and_b32 v205, 3, v1")
    k(f"v_bfe_u32 v{AT1}, v204, 1, 2")
    k(f"v_xor_b32 v{AT1}, v{AT1}, v205")
    k(f"v_lshlrev_b32 v{AT1}, 4, v{AT1}")
    k(f"v_lshl_add_u32 v{AWR}, v204, 6, v{AT1}")
    k(f"v_add_u32 v{AWR}, s49, v{AWR}")
    k("s_lshl_b32 s49, s28, 6")
    k("v_add_u32 v204, s49, v204")
    k("v_lshlrev_b32 v204, 14, v204")
    k(f"v_lshl_add_u32 v{AWG}, v205, 4, v204")
    k("v_bfe_u32 v204, v1, 2, 1")
    k("v_xor_b32 v204, s44, v204")
    k("v_lshlrev_b32 v204, 4, v204")
    k("v_and_b32 v205, 3, v1")
    k(f"v_lshl_add_u32 v{AX}, v205, 2, v204")
    APW = 223
    k(f"v_add_u32 v{APW}, {WST}, v{AX}")
    k(f"v_lshlrev_b32 v{ARD}, 4, v0")
    k(f"v_add_u32 v{ARD}, {STG}, v{ARD}")
    k("v_lshrrev_b32 v204, 2, v0")
    k("v_lshlrev_b32 v204, 14, v204")
    k("v_and_b32 v205, 3, v0")
    k(f"v_lshl_add_u32 v{AGL}, v205, 4, v204")
    k("s_xor_b32 s49, s44, 2")
    k("s_lshl_b32 s49, s49, 4")
    k("s_add_u32 s49, s49, s48")
    k("s_lshl_b32 s50, s44, 4")
    k("s_add_u32 s50, s50, s48")
    k(f"v_mov_b32 v{AT1}, s49")
    k(f"v_mov_b32 v{AT2}, s50")
    k("s_lshl_b32 s36, s28, 12")
    k("v_lshlrev_b32 v2, 5, v1")
    k("v_add_u32 v2, s36, v2")
    k("v_and_b32 v3, 31, v1")
    k("v_lshlrev_b32 v3, 2, v3")
    k("v_lshrrev_b32 v204, 5, v1")
    k("v_lshlrev_b32 v204, 9, v204")
    k("v_add3_u32 v3, v3, v204, s36")
    k("s_mov_b32 s35, 0xffff0000")
    if WEARLY == 2: w_loads()
    mark(k, 1)
    k(("s_waitcnt vmcnt(20)" if (FUSE23 and FILLPOS == 2) else "s_waitcnt vmcnt(16)") if WEARLY else "s_waitcnt vmcnt(0)")
    mark(k, 2)
    if not WEARLY: w_loads()
    for i in range(16):
        for row in range(2):
            src = XL + 8*row + (i >> 1)
            if i % 2 == 0: k(f"v_lshlrev_b32 v{XF+2*i+row}, 16, v{src}")
            else:          k(f"v_and_b32 v{XF+2*i+row}, s35, v{src}")
    ln_stats_xrow(k, XF, T, 38, 40, 42)
    k(f"v_mov_b32 v{T+8}, s40"); k(f"v_mov_b32 v{T+9}, s41")
    k(f"v_mov_b32 v{T+10}, s38"); k(f"v_mov_b32 v{T+11}, s39")
    for i in range(16):
        d = T + 2*(i % 4)
        k(f"v_pk_fma_f32 {vr(d,2)}, {vr(XF+2*i,2)}, {vr(T+8,2)}, {vr(T+10,2)} neg_lo:[0,0,1] neg_hi:[0,0,1]")
        k(f"{CVT} v{OP+i}, v{d}, v{d+1}")
    k(f"ds_write_b128 v2, {vr(OP,4)}")
    k(f"ds_write_b128 v2, {vr(OP+4,4)} offset:16")
    k(f"ds_write_b128 v2, {vr(OP+8,4)} offset:2048")
    k(f"ds_write_b128 v2, {vr(OP+12,4)} offset:2064")
    k("s_waitcnt lgkmcnt(0)")
    for i, (r, c) in enumerate(SEQ):
        k(f"ds_read_b32 v{OP+i}, v3 offset:{(8*r+c)*128}")
    mark(k, 3)
    k("s_waitcnt lgkmcnt(0)")
    stage(k, 'A', DR, DI, OP, Mr, Mi)
    def w_job():
        srd(k, 56, 26, 257*16384, WB_OFF)
        k("s_waitcnt vmcnt(4)" if WJOB == 2 else "s_waitcnt vmcnt(0)")
        WO = XF
        for e in range(2):
            for pi in range(2):
                for cc in range(4):
                    k(f"v_perm_b32 v{WO+4*(2*e+pi)+cc}, v{WL+8+4*pi+cc}, v{WL+4*pi+cc}, s{45+e}")
        for sl in range(4):
            if sl: k(f"v_xor_b32 v204, {16*sl}, v{AWJ}")
            k(f"ds_write_b128 v{204 if sl else AWJ}, {vr(WO+4*sl,4)}")
        k("s_add_u32 s49, s47, 0x400000")
        k("v_cmp_gt_u32 vcc, 8, v0")
        k("s_and_saveexec_b64 s[36:37], vcc")
        k("s_cbranch_execz L_p1_nox2")
        for r_ in (202, 203, 228, 229, 230, 231, 232, 233): k(f"v_lshlrev_b32 v{r_}, 16, v{r_}")
        k("v_add_f32 v228, v228, v230")
        k("v_sub_f32 v229, v229, v231")
        k("v_add_f32 v202, v202, v232")
        k("v_sub_f32 v203, v203, v233")
        k("v_add_f32 v230, v228, v202")
        k("v_add_f32 v231, v229, v203")
        k("v_sub_f32 v232, v228, v202")
        k("v_sub_f32 v233, v229, v203")
        for r_ in (230, 231, 232, 233): k(f"v_mul_f32 v{r_}, 0x3e800000, v{r_}")
        k(f"{CVT} v202, v230, v231")
        k(f"{CVT} v203, v232, v233")
        k(f"ds_write_b32 v{APW}, v202")
        k(f"buffer_store_dword v203, v{AX}, s[56:59], s49 offen {ST_P1}")
        k("L_p1_nox2:")
        k("s_mov_b64 exec, -1")
        k("s_waitcnt lgkmcnt(0)")
        for j in range(4): k(f"ds_read_b128 {vr(WO+16+4*j,4)}, v{AWR} offset:{1024*j}")
        k("s_mov_b32 s49, s47")
        for j in range(4):
            k(f"s_waitcnt lgkmcnt({3-j})")
            k(f"buffer_store_dwordx4 {vr(WO+16+4*j,4)}, v{AWG}, s[56:59], s49 offen {ST_P1}")
            if j < 3: k(f"s_add_u32 s49, s49, {16*16384}")
    if WJOB == 0: w_job()
    cmul_pack(k, DR, DI, TW, OP, T)
    stage(k, 'B', DR, DI, OP, Mr, Mi)
    mark(k, 4)
    for i, (r, c) in enumerate(SEQ):
        if r < 2: k(f"{CVT} v{OP+i}, v{DR+i}, v{DI+i}")
        else:     k(f"{CVT} v{OP+i}, v{DI+i}, v{DR+i}")
        if r < 2: k(f"ds_write_b32 v{B1}, v{OP+i} offset:{(8*r+c)*1024}")
        else:     k(f"ds_write_b32 v{B2}, v{OP+i} offset:{(32-8*r-c)*1024}")
    k(f"v_sub_f32 v{T+2}, v{DR}, v{DI+8}")
    k(f"v_add_f32 v{T+3}, v{DI}, v{DR+8}")
    k(f"v_sub_f32 v{T+4}, v{DI}, v{DR+8}")
    k(f"v_add_f32 v{T+5}, v{DR}, v{DI+8}")
    k(f"{CVT} v{T}, v{T+4}, v{T+5}")
    k(f"{CVT} v{T+1}, v{T+2}, v{T+3}")
    k("s_mov_b64 exec, 1")
    k(f"ds_write_b32 v{AT1}, v{T}")
    k(f"ds_write_b32 v{AT2}, v{T+1}")
    k("s_mov_b64 exec, -1")
    if WJOB == 1: w_job()
    k("s_waitcnt lgkmcnt(0)")
    k("s_barrier")
    RO = XF
    for j in range(4):
        k(f"ds_read_b128 {vr(RO+4*j,4)}, v{ARD} offset:{4096*j}")
    for j in range(4):
        k(f"s_waitcnt lgkmcnt({3-j})")
        k(f"buffer_store_dwordx4 {vr(RO+4*j,4)}, v{AGL}, s[20:23], s47 offen {ST_P1}")
        if j < 3: k("s_add_u32 s47, s47, 0x100000")
    if WJOB == 2:
        k("s_sub_u32 s47, s47, 0x300000")
        w_job()
    stamp_end(k, 'p1')
    k("L_p1_end:")
    k("s_endpgm")
    k("L_p1_endc:")
    return k, 236, WST + 16384

def pf_wave(k, tag, first_line):
    if not W1PF: return
    k("s_cmp_eq_u32 s28, 4")
    k(f"s_cbranch_scc0 L_{tag}_nopf")
    k("s_waitcnt lgkmcnt(0)")
    srd(k, 16, 24, S*F*2)
    k(f"s_mul_i32 s33, s2, {W1PF*128}")
    k(f"s_add_u32 s33, s33, {first_line*128}")
    k("v_lshlrev_b32 v3, 7, v1")
    for i in range(W1PF//64):
        k("buffer_load_dword v4, v3, s[16:19], s33 offen")
        k("s_add_u32 s33, s33, 8192")
    k("s_endpgm")
    k(f"L_{tag}_nopf:")

def first_tiles_wave(k):
    if not FIRSTPF: return
    k("s_cmp_eq_u32 s28, 4")
    k("s_cbranch_scc0 L_p3_noft")
    k("s_waitcnt lgkmcnt(0)")
    srd(k, 16, 24, S*F*2)
    k("s_lshr_b32 s33, s2, 6")
    k("s_lshl_b32 s33, s33, 3")
    k("s_lshr_b32 s33, 0x0400031f, s33")
    k("s_and_b32 s33, s33, 31")
    k("s_and_b32 s34, s2, 1")
    k("s_lshl_b32 s34, s34, 4")
    k("s_add_u32 s33, s33, s34")
    k("s_and_b32 s33, s33, 31")
    k(f"s_mul_i32 s33, s33, {64*7168}")
    k("s_bfe_u32 s34, s2, 0x20001")
    k("s_mul_i32 s34, s34, 1792")
    k("s_add_u32 s33, s33, s34")
    k("s_bfe_u32 s34, s2, 0x30003")
    k("s_mul_i32 s34, s34, 112")
    for h in range(2):
        k(f"v_add_u32 v2, {64*h}, v1")
        k("v_min_u32 v2, 111, v2")
        k("v_add_u32 v2, s34, v2")
        k("v_mul_u32_u24 v3, 4682, v2")
        k("v_lshrrev_b32 v3, 16, v3")
        k("v_mul_u32_u24 v4, 14, v3")
        k("v_sub_u32 v4, v2, v4")
        k("v_mul_u32_u24 v3, 7168, v3")
        k("v_lshl_add_u32 v3, v4, 7, v3")
        k(f"buffer_load_dword v{5+h}, v3, s[16:19], s33 offen")
    k("s_endpgm")
    k("L_p3_noft:")

def next_code_pf(k, tag, first, last, nwg, vt, st, lane):
    if not CODEPF2: return
    per = f"(({last}-{first})/128+{nwg})/{nwg}"
    k(f"s_getpc_b64 s[{st}:{st+1}]")
    k(f"L_{tag}_npc:")
    k(f"s_add_u32 s{st}, s{st}, {first}-L_{tag}_npc")
    k(f"s_addc_u32 s{st+1}, s{st+1}, 0")
    k(f"s_lshr_b32 s{st+2}, s2, 3")
    k(f"s_mul_i32 s{st+2}, s{st+2}, {per}")
    k(f"v_add_u32 v{vt+2}, s{st+2}, v{lane}")
    k(f"v_lshlrev_b32 v{vt+2}, 7, v{vt+2}")
    k(f"v_mov_b32 v{vt+1}, s{st+1}")
    k(f"v_add_co_u32 v{vt}, vcc, s{st}, v{vt+2}")
    k(f"v_addc_co_u32 v{vt+1}, vcc, 0, v{vt+1}, vcc")
    k(f"v_cmp_gt_u32 vcc, {per}, v{lane}")
    k(f"s_mov_b64 exec, vcc")
    k(f"v_cmp_gt_u32 vcc, {last}-{first}, v{vt+2}")
    k(f"s_and_b64 exec, exec, vcc")
    k(f"s_cbranch_execz L_{tag}_npe")
    k(f"global_load_dword v{vt+3}, v[{vt}:{vt+1}], off")
    k(f"L_{tag}_npe:")
    k("s_mov_b64 exec, -1")

def gen_p2(fused=False):
    k = Kern('p23_kernel' if fused else 'p2_kernel')
    k("s_cmp_ge_u32 s2, 256")
    k("s_cbranch_scc1 L_p2_end")
    stamp_begin(k)
    k("s_load_dwordx2 s[26:27], s[0:1], 80")
    k("s_load_dwordx2 s[24:25], s[0:1], 32")
    if fused: k("s_load_dwordx2 s[4:5], s[0:1], 0")
    k("v_and_b32 v1, 63, v0")
    k("v_lshrrev_b32 v2, 6, v0")
    k("v_readfirstlane_b32 s28, v2")
    pf_wave(k, 'p2', W1PF0)
    k("v_lshlrev_b32 v2, 4, v1")
    k("s_lshr_b32 s29, s28, 1")
    k("s_and_b32 s30, s28, 1")
    k("s_lshl_b32 s31, s2, 14")
    k("s_lshl_b32 s32, s28, 12")
    k("s_add_u32 s31, s31, s32")
    k("s_waitcnt lgkmcnt(0)")
    srd(k, 8, 26, 257*16384, ZD_OFF)
    srd(k, 20, 26, 257*16384, WB_OFF)
    srd(k, 12, 26, 256*VB_BLK, VB_OFF)
    for i in range(4):
        k(f"s_add_u32 m0, s32, {1024*i}")
        k(f"s_add_u32 s33, s31, {1024*i}")
        k(f"buffer_load_dwordx4 v2, s[8:11], s33 offen lds")
    def own_fill(reg):
        for i in range(4): k(f"v_mov_b32 v{reg+i}, -1")
        k("v_lshlrev_b32 v3, 4, v0")
        k("s_lshl_b32 s33, s2, 14")
        for j in range(4):
            k(f"buffer_store_dwordx4 {vr(reg,4)}, v3, s[12:15], s33 offen sc0 sc1")
            if j < 3: k("s_add_u32 s33, s33, 4096")
    if fused and FILLPOS != 2: srd(k, 16, 26, 1024, BAR_OFF)
    if fused and FILLPOS == 0: own_fill(4)
    Z1, Z2 = 4, 20
    M1r, M1i, MFr, MFi, MIr, MIi = 36, 52, 68, 84, 100, 116
    T1, T2 = 132, 164
    DR, DI, T = 196, 212, 228
    A, B, J, H4, PI = 244, 245, 246, 247, 248
    k(f"v_and_b32 v{J}, 31, v1")
    k(f"v_cvt_f32_u32 v{J}, v{J}")
    k(f"v_lshrrev_b32 v{H4}, 5, v1")
    k(f"v_lshlrev_b32 v{H4}, 2, v{H4}")
    k(f"v_cvt_f32_u32 v{H4}, v{H4}")
    k(f"v_mov_b32 v{PI}, s30")
    k(f"v_cvt_f32_u32 v{PI}, v{PI}")
    k(f"v_mul_f32 v{A}, {f32(1/32)}, v{J}")
    k(f"v_mul_f32 v{B}, v{A}, v{H4}")
    gen_matrix(k, MFr, MFi, A, B, T)
    k(f"v_fma_f32 v{A}, v{J}, 2.0, v{PI}")
    k(f"v_mul_f32 v{A}, {f32(1/64)}, v{A}")
    k(f"v_mul_f32 v{B}, v{A}, v{H4}")
    gen_matrix(k, M1r, M1i, A, B, T)
    k("s_lshl_b32 s33, s30, 4")
    k(f"v_and_b32 v{T}, 31, v1")
    k(f"v_xor_b32 v{T}, s33, v{T}")
    k(f"v_cvt_f32_u32 v{T}, v{T}")
    k(f"v_mul_f32 v{A}, {f32(1/32)}, v{T}")
    k(f"v_mul_f32 v{B}, v{A}, v{H4}")
    k(f"v_mul_f32 v{T}, {f32(1/64)}, v{T}")
    k(f"v_fma_f32 v{B}, v{T}, v{PI}, v{B}")
    gen_matrix(k, MIr, MIi, A, B, T)
    k(f"v_fma_f32 v{A}, v{J}, 2.0, v{PI}")
    k(f"v_mul_f32 v{A}, {f32(1/2048)}, v{A}")
    k(f"v_mov_b32 v{T}, {f32(0.125)}")
    k(f"v_mul_f32 v{T+1}, {f32(-0.25)}, v{PI}")
    k(f"v_add_f32 v{T}, v{T}, v{T+1}")
    k(f"v_fma_f32 v{B}, v{A}, v{H4}, v{T}")
    gen_twiddle(k, T1, A, B, T)
    k(f"v_mul_f32 v{A}, {f32(1/1024)}, v{J}")
    k(f"v_mul_f32 v{B}, v{A}, v{H4}")
    k(f"v_mul_f32 v{T}, {f32(1/2048)}, v{J}")
    k(f"v_fma_f32 v{B}, v{T}, v{PI}, v{B}")
    gen_twiddle(k, T2, A, B, T)
    AZ1, AZ2, AW = 249, 250, 251
    k(f"v_bfe_u32 v{T}, v1, 2, 2")
    k(f"v_lshlrev_b32 v{T+1}, 6, v1")
    k(f"v_xor_b32 v{AZ1}, s29, v{T}")
    k(f"v_lshl_add_u32 v{AZ1}, v{AZ1}, 4, v{T+1}")
    k(f"v_xor_b32 v{AZ2}, 32, v{AZ1}")
    k("s_lshl_b32 s33, s29, 1")
    k("s_add_u32 s33, s33, s30")
    k(f"v_xor_b32 v{AW}, s33, v{T}")
    k(f"v_lshl_add_u32 v{AW}, v{AW}, 4, v{T+1}")
    k(f"v_add_u32 v{AW}, 16384, v{AW}")
    k("s_mul_i32 s34, s30, 0x80008000")
    k("s_mov_b32 s35, 0xffff0000")
    mark(k, 1)
    k("s_waitcnt vmcnt(4)" if (fused and FILLPOS == 0) else "s_waitcnt vmcnt(0)")
    for i in range(4):
        k(f"s_add_u32 m0, s32, {16384+1024*i}")
        k(f"s_add_u32 s33, s31, {1024*i}")
        k(f"buffer_load_dwordx4 v2, s[20:23], s33 offen lds")
    if fused and FILLPOS == 1: own_fill(DR)
    k("s_barrier")
    mark(k, 2)
    for r in range(4):
        k(f"ds_read_b128 {vr(Z1+4*r,4)}, v{AZ1} offset:{4096*r}")
        k(f"ds_read_b128 {vr(Z2+4*r,4)}, v{AZ2} offset:{4096*r}")
    k("s_waitcnt lgkmcnt(0)")
    for i in range(16):
        k(f"v_xor_b32 v{Z2+i}, s34, v{Z2+i}")
    stage(k, 'A', DR, DI, Z1, M1r, M1i, first=True)
    stage(k, 'A', DR, DI, Z2, M1r, M1i, first=False)
    OP = Z1
    cmul_pack(k, DR, DI, T1, OP, T)
    k("s_waitcnt vmcnt(0)")
    k("s_barrier")
    if fused and FILLPOS != 2:
        k("s_cmp_eq_u32 s28, 0")
        k("s_cbranch_scc0 L_p2_noarr")
        k("s_and_b32 s33, s2, 7")
        k("s_lshl_b32 s33, s33, 7")
        k("v_mov_b32 v249, 1")
        k("v_mov_b32 v250, 0")
        k("s_mov_b64 exec, 1")
        k("buffer_atomic_add v249, v250, s[16:19], s33 offen sc1")
        k("s_mov_b64 exec, -1")
        k("L_p2_noarr:")
    for r in range(4):
        k(f"ds_read_b128 {vr(Z2+4*r,4)}, v{AW} offset:{4096*r}")
    stage(k, 'B', DR, DI, OP, MFr, MFi)
    WP = M1r
    k("s_waitcnt lgkmcnt(0)")
    for i in range(16):
        k(f"v_lshlrev_b32 v{WP+2*i}, 16, v{Z2+i}")
        k(f"v_and_b32 v{WP+2*i+1}, s35, v{Z2+i}")
    k("s_or_b32 s46, s2, s29")
    k("s_cmp_eq_u32 s46, 0")
    k("s_cbranch_scc1 L_p2_spec")
    cmul_pack(k, DR, DI, WP, OP, T, conj=True)
    k("L_p2_specd:")
    stage(k, 'A', DR, DI, OP, MFr, MFi)
    cmul_pack(k, DR, DI, T2, OP, T)
    stage(k, 'B', DR, DI, OP, MIr, MIi)
    mark(k, 4)
    if fused and FILLPOS != 2:
        k("s_cmp_eq_u32 s28, 0")
        k("s_cbranch_scc0 L_p2_nochk0")
        k("v_and_b32 v249, 7, v1")
        k("v_lshlrev_b32 v249, 7, v249")
        k("buffer_load_dword v250, v249, s[16:19], 0 offen sc0 sc1")
        k("L_p2_nochk0:")
    XCH, STG = 32768, 49152
    AX = 252
    k("s_lshl_b32 s36, s28, 12")
    k(f"s_add_u32 s36, s36, {XCH}")
    k(f"v_lshl_add_u32 v{AX}, v1, 4, s36")
    k(f"ds_write_b128 v{AX}, {vr(DR+8,4)}")
    k(f"ds_write_b128 v{AX}, {vr(DR+12,4)} offset:1024")
    k(f"ds_write_b128 v{AX}, {vr(DI+8,4)} offset:2048")
    k(f"ds_write_b128 v{AX}, {vr(DI+12,4)} offset:3072")
    k(f"v_xor_b32 v{AX}, 4096, v{AX}")
    k("s_cmp_eq_u32 s30, 0")
    k(f"s_cselect_b32 s40, {f32(1.0)}, {f32(-1.0)}")
    k("s_mov_b32 s42, s40")
    k("s_waitcnt lgkmcnt(0)")
    k("s_barrier")
    OR_, OI = 36, 44
    k(f"ds_read_b128 {vr(OR_,4)}, v{AX}")
    k(f"ds_read_b128 {vr(OR_+4,4)}, v{AX} offset:1024")
    k(f"ds_read_b128 {vr(OI,4)}, v{AX} offset:2048")
    k(f"ds_read_b128 {vr(OI+4,4)}, v{AX} offset:3072")
    k(f"v_bfe_u32 v{T}, v1, 1, 2")
    k(f"v_xor_b32 v{T+1}, s29, v{T}")
    k(f"v_xor_b32 v{T+2}, 2, v{T+1}")
    k("s_lshl_b32 s43, s30, 13")
    k(f"s_add_u32 s43, s43, {STG}")
    k(f"v_lshl_add_u32 v{T+3}, v1, 6, s43")
    k(f"v_lshl_add_u32 v253, v{T+1}, 4, v{T+3}")
    k(f"v_lshl_add_u32 v254, v{T+2}, 4, v{T+3}")
    k("s_waitcnt lgkmcnt(0)")
    UA, UB = 52, 60
    Ur, Ui, Er, Ei, Ar, Ai, Br, Bi = [x + (64 if fused else 0) for x in (68, 70, 72, 74, 76, 78, 80, 82)]
    bc = "op_sel_hi:[1,0,1]"
    k("s_cmp_eq_u32 s46, 0")
    k("s_cbranch_scc1 L_p2_spost")
    for j in range(0, 8, 2):
        o = 16*((j//2) % 2)
        ur, ui, er, ei, a_r, a_i, b_r, b_i = [x+o for x in (Ur, Ui, Er, Ei, Ar, Ai, Br, Bi)]
        k(f"v_pk_add_f32 {vr(ur,2)}, {vr(DR+j,2)}, {vr(OR_+j,2)}")
        k(f"v_pk_add_f32 {vr(ui,2)}, {vr(DI+j,2)}, {vr(OI+j,2)}")
        k(f"v_pk_add_f32 {vr(er,2)}, {vr(DR+j,2)}, {vr(OR_+j,2)} neg_lo:[0,1] neg_hi:[0,1]")
        k(f"v_pk_add_f32 {vr(ei,2)}, {vr(DI+j,2)}, {vr(OI+j,2)} neg_lo:[0,1] neg_hi:[0,1]")
        k(f"v_pk_fma_f32 {vr(a_r,2)}, {vr(ei,2)}, s[42:43], {vr(ur,2)} {bc}")
        k(f"v_pk_fma_f32 {vr(b_r,2)}, {vr(ei,2)}, s[42:43], {vr(ur,2)} {bc} neg_lo:[1,0,0] neg_hi:[1,0,0]")
        k(f"v_pk_fma_f32 {vr(a_i,2)}, {vr(er,2)}, s[40:41], {vr(ui,2)} {bc} neg_lo:[1,0,0] neg_hi:[1,0,0]")
        k(f"v_pk_fma_f32 {vr(b_i,2)}, {vr(er,2)}, s[40:41], {vr(ui,2)} {bc} neg_lo:[1,0,1] neg_hi:[1,0,1]")
        k(f"{CVT} v{UA+j}, v{a_r}, v{a_i}")
        k(f"{CVT} v{UA+j+1}, v{a_r+1}, v{a_i+1}")
        k(f"{CVT} v{UB+j}, v{b_r}, v{b_i}")
        k(f"{CVT} v{UB+j+1}, v{b_r+1}, v{b_i+1}")
    k("s_branch L_p2_postd")
    k("L_p2_spost:")
    for j in range(0, 8, 2):
        o = 16*((j//2) % 2)
        ur, ui, er, ei, a_r, a_i, b_r, b_i = [x+o for x in (Ur, Ui, Er, Ei, Ar, Ai, Br, Bi)]
        k(f"v_pk_add_f32 {vr(ur,2)}, {vr(DR+j,2)}, {vr(OR_+j,2)}")
        k(f"v_pk_add_f32 {vr(ui,2)}, {vr(DI+j,2)}, {vr(OI+j,2)}")
        k(f"v_pk_add_f32 {vr(er,2)}, {vr(DR+j,2)}, {vr(OR_+j,2)} neg_lo:[0,1] neg_hi:[0,1]")
        k(f"v_pk_add_f32 {vr(ei,2)}, {vr(DI+j,2)}, {vr(OI+j,2)} neg_lo:[0,1] neg_hi:[0,1]")
        k(f"v_pk_mul_f32 {vr(a_i,2)}, {vr(er,2)}, s[40:41] op_sel_hi:[1,0] neg_lo:[1,0] neg_hi:[1,0]")
        k(f"v_pk_mul_f32 {vr(b_i,2)}, {vr(ei,2)}, s[40:41] op_sel_hi:[1,0]")
        k(f"{CVT} v{UA+j}, v{ur}, v{a_i}")
        k(f"{CVT} v{UA+j+1}, v{ur+1}, v{a_i+1}")
        k(f"{CVT} v{UB+j}, -v{ui}, v{b_i}")
        k(f"{CVT} v{UB+j+1}, -v{ui+1}, v{b_i+1}")
    k("L_p2_postd:")
    for rl in range(2):
        k(f"ds_write_b128 v253, {vr(UA+4*rl,4)} offset:{4096*rl}")
        k(f"ds_write_b128 v254, {vr(UB+4*rl,4)} offset:{4096*rl}")
    k(f"v_and_b32 v{T}, 3, v0")
    k(f"v_bfe_u32 v{T+1}, v0, 3, 2")
    k(f"v_xor_b32 v{T+1}, v{T}, v{T+1}")
    k(f"v_lshrrev_b32 v{T+2}, 2, v0")
    k(f"v_lshlrev_b32 v{T+3}, 6, v{T+2}")
    k(f"v_lshl_add_u32 v{T+3}, v{T+1}, 4, v{T+3}")
    k(f"v_add_u32 v{T+3}, {STG}, v{T+3}")
    k(f"v_mul_u32_u24 v{T+2}, {VB_BLK}, v{T+2}")
    k("s_and_b32 s44, s2, 2")
    k(f"v_xor_b32 v{T}, s44, v{T}")
    k(f"v_lshl_add_u32 v{T+2}, v{T}, 4, v{T+2}")
    k("s_lshl_b32 s45, s2, 6")
    if fused and FILLPOS != 2:
        k("s_cmp_eq_u32 s28, 0")
        k("s_cbranch_scc0 L_p2_chkd")
        k("s_mov_b32 s47, 0")
        k("L_p2_chk:")
        k("s_waitcnt vmcnt(0)")
        k("v_cmp_gt_u32 vcc, 32, v250")
        k("s_add_u32 s47, s47, 1")
        k("s_cmp_ge_u32 s47, 0x20000")
        k("s_cbranch_scc1 L_p2_chkd")
        k("s_nop 2")
        k("s_cbranch_vccz L_p2_chkd")
        k("buffer_load_dword v250, v249, s[16:19], 0 offen sc0 sc1")
        k("s_branch L_p2_chk")
        k("L_p2_chkd:")
    k("s_waitcnt lgkmcnt(0)")
    k("s_barrier")
    for j in range(4):
        k(f"ds_read_b128 {vr(4+4*j,4)}, v{T+3} offset:{4096*j}")
    k("s_waitcnt lgkmcnt(0)")
    for j in range(4):
        k(f"buffer_store_dwordx4 {vr(4+4*j,4)}, v{T+2}, s[12:15], s45 offen {ST_P2}")
        if j < 3: k(f"s_add_u32 s45, s45, {64*VB_BLK}")
    if fused:
        mark(k, 3)
        p3_body(k, True)
    stamp_end(k, 'p2')
    k("L_p2_end:")
    k("s_endpgm")
    k("L_p2_spec:")
    QP = T1
    XB_ = Z2
    k(f"v_bfe_u32 v{T}, v1, 2, 2")
    k(f"v_xor_b32 v{T}, s30, v{T}")
    k(f"v_lshlrev_b32 v{T}, 4, v{T}")
    k(f"v_lshl_add_u32 v{T}, v1, 6, v{T}")
    k("s_mov_b32 s47, 0x400000")
    for r in range(4):
        k(f"buffer_load_dwordx4 {vr(XB_+4*r,4)}, v{T}, s[20:23], s47 offen")
        if r < 3: k("s_add_u32 s47, s47, 4096")
    k("s_lshl_b32 s47, s30, 13")
    k(f"v_and_b32 v{T+1}, 31, v1")
    k(f"v_lshrrev_b32 v{T+2}, 5, v1")
    k(f"v_lshlrev_b32 v{T+3}, 2, v{T+1}")
    k(f"v_lshl_add_u32 v{T+3}, v{T+2}, 10, v{T+3}")
    k(f"v_add_u32 v{T+3}, s47, v{T+3}")
    for i, (r, c) in enumerate(SEQ):
        k(f"ds_write_b32 v{T+3}, v{DR+i} offset:{(8*r+c)*256}")
        k(f"ds_write_b32 v{T+3}, v{DI+i} offset:{(8*r+c)*256+128}")
    k(f"v_add_u32 v{T+4}, s30, v{T+1}")
    k(f"v_sub_u32 v{T+5}, 32, v{T+4}")
    k(f"v_lshlrev_b32 v{T+5}, 2, v{T+5}")
    k(f"v_cmp_eq_u32 vcc, 0, v{T+4}")
    k(f"v_mov_b32 v{T+6}, 256")
    k(f"v_cndmask_b32 v{T+5}, v{T+5}, v{T+6}, vcc")
    k(f"v_lshlrev_b32 v{T+6}, 10, v{T+2}")
    k(f"v_sub_u32 v{T+5}, v{T+5}, v{T+6}")
    k(f"v_add_u32 v{T+5}, 1024, v{T+5}")
    k(f"v_add_u32 v{T+5}, s47, v{T+5}")
    k(f"v_add_u32 v{T+6}, {27*256}, v{T+5}")
    k(f"v_or_b32 v{T+7}, v{T+4}, v{T+2}")
    k(f"v_cmp_eq_u32 vcc, 0, v{T+7}")
    k(f"v_mov_b32 v{T+7}, s47")
    k(f"v_cndmask_b32 v{T+6}, v{T+6}, v{T+7}, vcc")
    k("s_waitcnt vmcnt(0)")
    for i in range(16):
        k(f"v_lshlrev_b32 v{QP+2*i}, 16, v{XB_+i}")
        k(f"v_and_b32 v{QP+2*i+1}, s35, v{XB_+i}")
    k("s_waitcnt lgkmcnt(0)")
    for half in range(2):
        for jj in range(8):
            i = 8*half + jj; r, c = SEQ[i]
            if i == 0:
                k(f"ds_read_b32 v{XB_+2*jj}, v{T+6}")
                k(f"ds_read_b32 v{XB_+2*jj+1}, v{T+6} offset:128")
            else:
                k(f"ds_read_b32 v{XB_+2*jj}, v{T+5} offset:{(27-8*r-c)*256}")
                k(f"ds_read_b32 v{XB_+2*jj+1}, v{T+5} offset:{(27-8*r-c)*256+128}")
        k("s_waitcnt lgkmcnt(0)")
        for jj in range(8):
            j = 8*half + jj; o = T + 8 + 2*(jj % 4); jp = j & ~1; x = j & 1
            k(f"v_pk_mul_f32 {vr(o,2)}, {vr(WP+2*j,2)}, {vr(DR+jp,2)} op_sel:[0,{x}] op_sel_hi:[1,{x}]")
            k(f"v_pk_fma_f32 {vr(o,2)}, {vr(WP+2*j,2)}, {vr(DI+jp,2)}, {vr(o,2)} op_sel:[1,{x},0] op_sel_hi:[0,{x},1] neg_lo:[1,0,0]")
            k(f"v_pk_fma_f32 {vr(o,2)}, {vr(QP+2*j,2)}, {vr(XB_+2*jj,2)}, {vr(o,2)} op_sel:[0,0,0] op_sel_hi:[1,0,1]")
            k(f"v_pk_fma_f32 {vr(o,2)}, {vr(QP+2*j,2)}, {vr(XB_+2*jj,2)}, {vr(o,2)} op_sel:[1,1,0] op_sel_hi:[0,1,1] neg_hi:[1,0,0]")
            k(f"{CVT} v{OP+j}, v{o}, -v{o+1}")
    k("s_branch L_p2_specd")
    return k, 256, 65536

def ln_stats_rows(k, R0, R1, t, vRM, sTmp, twice=False):
    for (R, o) in ((R0, 0), (R1, 4)):
        a, b = t+o, t+o+2
        k(f"v_pk_add_f32 {vr(a,2)}, {vr(R,2)}, {vr(R+2,2)}")
        k(f"v_pk_add_f32 {vr(b,2)}, {vr(R+4,2)}, {vr(R+6,2)}")
    for i in range(4, 8):
        for (R, o) in ((R0, 0), (R1, 4)):
            a = t+o+2*(i % 2)
            k(f"v_pk_add_f32 {vr(a,2)}, {vr(a,2)}, {vr(R+2*i,2)}")
    for o in (0, 4):
        k(f"v_pk_add_f32 {vr(t+o,2)}, {vr(t+o,2)}, {vr(t+o+2,2)}")
    k(f"v_add_f32 v{t}, v{t}, v{t+1}")
    k(f"v_add_f32 v{t+1}, v{t+4}, v{t+5}")
    wave_reduce2(k, t, t+1)
    ln_mean(k, t, sTmp)
    acc = {0: t, 1: t+2}; tmp = [t+4, t+6, t+8, t+10]
    n = 0
    for i in range(8):
        for row, R in ((0, R0), (1, R1)):
            d = tmp[n % 4]; n += 1
            sel = "op_sel_hi:[1,0]" if row == 0 else "op_sel:[0,1] op_sel_hi:[1,1]"
            k(f"v_pk_add_f32 {vr(d,2)}, {vr(R+2*i,2)}, {sr(sTmp,2)} {sel} neg_lo:[0,1] neg_hi:[0,1]")
            a = acc[row]
            if i == 0: k(f"v_pk_mul_f32 {vr(a,2)}, {vr(d,2)}, {vr(d,2)}")
            else:      k(f"v_pk_fma_f32 {vr(a,2)}, {vr(d,2)}, {vr(d,2)}, {vr(a,2)}")
    k(f"v_add_f32 v{t}, v{t}, v{t+1}")
    k(f"v_add_f32 v{t+1}, v{t+2}, v{t+3}")
    wave_reduce2(k, t, t+1)
    ln_scalars(k, t, twice)
    k(f"v_readlane_b32 s{sTmp}, v{t}, 63")
    k(f"v_readlane_b32 s{sTmp+1}, v{t+1}, 63")
    k(f"v_readlane_b32 s{sTmp+2}, v{t+12}, 63")
    k(f"v_readlane_b32 s{sTmp+3}, v{t+13}, 63")
    for i in range(4):
        k(f"v_mov_b32 v{vRM+i}, s{sTmp+i}")

def ln_apply_rows(k, R0, R1, vRM, dst0, dst1):
    for i in range(8):
        k(f"v_pk_fma_f32 {vr(dst0+2*i,2)}, {vr(R0+2*i,2)}, {vr(vRM,2)}, {vr(vRM+2,2)} op_sel_hi:[1,0,0] neg_lo:[0,0,1] neg_hi:[0,0,1]")
        k(f"v_pk_fma_f32 {vr(dst1+2*i,2)}, {vr(R1+2*i,2)}, {vr(vRM,2)}, {vr(vRM+2,2)} op_sel:[0,1,1] op_sel_hi:[1,1,1] neg_lo:[0,0,1] neg_hi:[0,0,1]")

def p3_body(k, fused):
    if fused:
        XL, OP, Mr, Mi, TW, DR, DI, T = 36, 20, 68, 84, 164, 196, 212, 228
        R0, R1, Y0, Y1, HP, NP, RM = 100, 116, 132, 148, 52, 4, 244
        B1, B2, AJ8, t0, t1, t2, cj, ch, cA, cB, XV = 248, 249, 250, 251, 252, 253, 251, 252, 253, 254, 255
    else:
        XL, OP, Mr, Mi, TW, DR, DI, T = 4, 20, 36, 52, 68, 100, 116, 132
        R0, R1, Y0, Y1, HP, NP, RM = 148, 164, 180, 196, 36, 68, 220
        B1, B2, AJ8, t0, t1, t2, cj, ch, cA, cB, XV = 218, 219, 227, 216, 217, 226, 212, 213, 214, 215, 225
    k("s_lshr_b32 s29, s2, 5")
    k("s_lshl_b32 s29, s29, 2")
    k("s_and_b32 s30, s2, 31")
    k("s_add_u32 s31, s29, s28")
    k("s_lshl_b32 s31, s31, 5")
    k("s_add_u32 s31, s31, s30")
    k("s_lshl_b32 s31, s31, 11")
    k("s_add_u32 s32, s31, 0x200000")
    k(f"s_mul_i32 s33, s2, {VB_BLK}")
    k("s_lshl_b32 s34, s28, 12")
    k("s_add_u32 s33, s33, s34")
    k("v_lshlrev_b32 v2, 4, v1")
    if not fused: k("s_waitcnt lgkmcnt(0)")
    srd(k, 8, 4, S*D*2)
    if not fused: srd(k, 12, 26, 256*VB_BLK, VB_OFF)
    srd(k, 16, 26, S*D*2, H_OFF)
    srd(k, 20, 26, S*D*2, HN_OFF)
    def x_loads():
        k(f"v_lshlrev_b32 v{XV}, 4, v1")
        k(f"buffer_load_dwordx4 {vr(XL,4)}, v{XV}, s[8:11], s31 offen")
        k(f"buffer_load_dwordx4 {vr(XL+4,4)}, v{XV}, s[8:11], s31 offen offset:1024")
        k(f"buffer_load_dwordx4 {vr(XL+8,4)}, v{XV}, s[8:11], s32 offen")
        k(f"buffer_load_dwordx4 {vr(XL+12,4)}, v{XV}, s[8:11], s32 offen offset:1024")
    if fused:
        x_loads()
    else:
        for i in range(4):
            k(f"s_add_u32 m0, s34, {1024*i}")
            k(f"buffer_load_dwordx4 v2, s[12:15], s33 offen lds")
            k("s_add_u32 s33, s33, 1024")
    if CODEPF2:
        k("s_cmp_eq_u32 s28, 0")
        k("s_cbranch_scc0 L_p3_nonp")
        next_code_pf(k, 'p3', 'g1_kernel', 'g2_kernel', 32, RM, 40, 1)
        k("L_p3_nonp:")
    k(f"v_and_b32 v{cj}, 31, v1")
    k(f"v_cvt_f32_u32 v{cj}, v{cj}")
    k(f"v_lshrrev_b32 v{ch}, 5, v1")
    k(f"v_lshlrev_b32 v{ch}, 2, v{ch}")
    k(f"v_cvt_f32_u32 v{ch}, v{ch}")
    if not fused:
        k(f"v_mul_f32 v{cA}, {f32(1/32)}, v{cj}")
        k(f"v_mul_f32 v{cB}, v{cA}, v{ch}")
        gen_matrix(k, Mr, Mi, cA, cB, T)
    k(f"v_mul_f32 v{cA}, {f32(1/1024)}, v{cj}")
    k(f"v_mul_f32 v{cB}, v{cA}, v{ch}")
    gen_twiddle(k, TW, cA, cB, T, scale=2.0**-21.5)
    k("v_and_b32 v2, 31, v1")
    k("v_lshrrev_b32 v3, 5, v1")
    k(f"v_and_b32 v{t0}, 1, v2")
    k(f"v_lshrrev_b32 v{t1}, 1, v2")
    k(f"v_and_b32 v{B1}, 2, v{t1}")
    k(f"v_xor_b32 v{B1}, v{B1}, v{t0}")
    k(f"v_lshlrev_b32 v{B1}, 4, v{B1}")
    k(f"v_lshl_add_u32 v{B1}, v{t1}, 6, v{B1}")
    k(f"v_lshl_add_u32 v{B1}, v3, 12, v{B1}")
    k("s_lshl_b32 s37, s28, 2")
    k(f"v_add_u32 v{B1}, s37, v{B1}")
    k(f"v_add_u32 v{t1}, 1, v2")
    k(f"v_lshrrev_b32 v{t1}, 1, v{t1}")
    k(f"v_sub_u32 v{B2}, 0, v{t1}")
    k(f"v_and_b32 v{B2}, 2, v{B2}")
    k(f"v_add_u32 v{t0}, 2, v{t0}")
    k(f"v_xor_b32 v{B2}, v{B2}, v{t0}")
    k(f"v_lshlrev_b32 v{B2}, 4, v{B2}")
    k(f"v_lshlrev_b32 v{t1}, 6, v{t1}")
    k(f"v_sub_u32 v{B2}, v{B2}, v{t1}")
    k(f"v_lshlrev_b32 v{t1}, 12, v3")
    k(f"v_sub_u32 v{B2}, v{B2}, v{t1}")
    k("s_add_u32 s37, s37, 5120")
    k(f"v_add_u32 v{B2}, s37, v{B2}")
    k(f"v_add_u32 v{AJ8}, {16*1024-5120}, v{B2}")
    k("s_lshl_b32 s38, s28, 2")
    k("s_add_u32 s38, s38, 32")
    k(f"v_mov_b32 v{t2}, s38")
    k("v_cmp_eq_u32 vcc, 0, v1")
    k(f"v_cndmask_b32 v{AJ8}, v{AJ8}, v{t2}, vcc")
    k("s_mov_b32 s35, 0xffff0000")
    if fused:
        k("v_lshlrev_b32 v2, 4, v1")
        k("s_mov_b32 s41, 0")
        k("s_waitcnt vmcnt(0)")
        k("L_p3_poll:")
        for i in range(4):
            k(f"s_add_u32 s39, s33, {1024*i}")
            k(f"buffer_load_dwordx4 {vr(OP+4*i,4)}, v2, s[12:15], s39 offen sc0 sc1")
        k("s_add_u32 s41, s41, 1")
        k("s_waitcnt vmcnt(0)")
        k(f"v_max3_u32 v3, v{OP}, v{OP+1}, v{OP+2}")
        for i in range(3, 15, 2): k(f"v_max3_u32 v3, v3, v{OP+i}, v{OP+i+1}")
        k(f"v_max_u32 v3, v3, v{OP+15}")
        k("v_cmp_eq_u32 vcc, -1, v3")
        k("s_nop 4")
        k("s_cmp_ge_u32 s41, 0x20000")
        k("s_cbranch_scc1 L_p3_polld")
        k("s_cbranch_vccnz L_p3_poll")
        k("L_p3_polld:")
        mark(k, 5)
        k("v_add_u32 v2, s34, v2")
        for i in range(4): k(f"ds_write_b128 v2, {vr(OP+4*i,4)} offset:{1024*i}")
        k("s_waitcnt lgkmcnt(0)")
        k("s_barrier")
    else:
        mark(k, 1)
        k("s_waitcnt vmcnt(0)")
        x_loads()
        k("s_barrier")
        mark(k, 2)
    for i, (r, c) in enumerate(SEQ):
        if r < 2: k(f"ds_read_b32 v{OP+i}, v{B1} offset:{(8*r+c)*1024}")
        elif i == 8: k(f"ds_read_b32 v{OP+i}, v{AJ8}")
        else:     k(f"ds_read_b32 v{OP+i}, v{B2} offset:{(32-8*r-c)*1024-5120}")
    k("s_waitcnt lgkmcnt(0)")
    stage(k, 'A', DR, DI, OP, Mr, Mi)
    cmul_pack(k, DR, DI, TW, OP, T)
    stage(k, 'B', DR, DI, OP, Mr, Mi)
    if not fused: k("s_waitcnt vmcnt(0)")
    for i in range(8):
        k(f"v_lshlrev_b32 v{R0+2*i}, 16, v{XL+i}")
        k(f"v_and_b32 v{R0+2*i+1}, s35, v{XL+i}")
        k(f"v_lshlrev_b32 v{R1+2*i}, 16, v{XL+8+i}")
        k(f"v_and_b32 v{R1+2*i+1}, s35, v{XL+8+i}")
    TR = 17408
    if not fused: mark(k, 3)
    k("s_lshl_b32 s36, s28, 12")
    k(f"s_add_u32 s36, s36, {TR}")
    k("v_and_b32 v3, 31, v1")
    k("v_lshlrev_b32 v3, 2, v3")
    k(f"v_lshrrev_b32 v{t0}, 5, v1")
    k(f"v_lshlrev_b32 v{t0}, 9, v{t0}")
    k(f"v_add3_u32 v3, v3, v{t0}, s36")
    k("v_lshl_add_u32 v2, v1, 5, s36")
    for i in range(16):
        k(f"{CVT} v{OP+i}, v{DR+i}, -v{DI+i}")
    for i, (r, c) in enumerate(SEQ):
        k(f"ds_write_b32 v3, v{OP+i} offset:{(8*r+c)*128}")
    k("s_waitcnt lgkmcnt(0)")
    k(f"ds_read_b128 {vr(OP,4)}, v2")
    k(f"ds_read_b128 {vr(OP+4,4)}, v2 offset:16")
    k(f"ds_read_b128 {vr(OP+8,4)}, v2 offset:2048")
    k(f"ds_read_b128 {vr(OP+12,4)}, v2 offset:2064")
    k("s_waitcnt lgkmcnt(0)")
    for i in range(16):
        k(f"v_lshlrev_b32 v{Y0+i}, 16, v{OP+i}")
        k(f"v_and_b32 v{Y1+i}, s35, v{OP+i}")
    for i in range(8):
        k(f"v_pk_add_f32 {vr(Y0+2*i,2)}, {vr(Y0+2*i,2)}, {vr(R0+2*i,2)}")
        k(f"v_pk_add_f32 {vr(Y1+2*i,2)}, {vr(Y1+2*i,2)}, {vr(R1+2*i,2)}")
    for i in range(8):
        k(f"{CVT} v{HP+i}, v{Y0+2*i}, v{Y0+2*i+1}")
        k(f"{CVT} v{HP+8+i}, v{Y1+2*i}, v{Y1+2*i+1}")
    k("v_lshlrev_b32 v2, 4, v1")
    k(f"buffer_store_dwordx4 {vr(HP,4)}, v2, s[16:19], s31 offen {ST_P3}")
    k(f"buffer_store_dwordx4 {vr(HP+4,4)}, v2, s[16:19], s31 offen offset:1024 {ST_P3}")
    k(f"buffer_store_dwordx4 {vr(HP+8,4)}, v2, s[16:19], s32 offen {ST_P3}")
    k(f"buffer_store_dwordx4 {vr(HP+12,4)}, v2, s[16:19], s32 offen offset:1024 {ST_P3}")
    for i in range(8):
        k(f"v_lshlrev_b32 v{R0+2*i}, 16, v{HP+i}")
        k(f"v_and_b32 v{R0+2*i+1}, s35, v{HP+i}")
        k(f"v_lshlrev_b32 v{R1+2*i}, 16, v{HP+8+i}")
        k(f"v_and_b32 v{R1+2*i+1}, s35, v{HP+8+i}")
    if not fused: mark(k, 4)
    if LN_FUSE:
        assert not (EMU_LN or EMU_L2)
        ln_stats_rows(k, R0, R1, T, RM, 40, twice=True)
        ln_apply_rows(k, R0, R1, RM, Y0, Y1)
    else:
        ln_stats_rows(k, R0, R1, T, RM, 40)
        if EMU_L2:
            ln_apply_rows(k, R0, R1, RM, Y0, Y1)
            LP = OP
            for i in range(8):
                k(f"{CVT} v{LP+i}, v{Y0+2*i}, v{Y0+2*i+1}")
                k(f"{CVT} v{LP+8+i}, v{Y1+2*i}, v{Y1+2*i+1}")
            for i in range(8):
                k(f"v_lshlrev_b32 v{R0+2*i}, 16, v{LP+i}")
                k(f"v_and_b32 v{R0+2*i+1}, s35, v{LP+i}")
                k(f"v_lshlrev_b32 v{R1+2*i}, 16, v{LP+8+i}")
                k(f"v_and_b32 v{R1+2*i+1}, s35, v{LP+8+i}")
        else:
            ln_apply_rows(k, R0, R1, RM, R0, R1)
        ln_stats_rows(k, R0, R1, T, RM, 40)
        ln_apply_rows(k, R0, R1, RM, Y0, Y1)
    for i in range(8):
        k(f"{CVT} v{NP+i}, v{Y0+2*i}, v{Y0+2*i+1}")
        k(f"{CVT} v{NP+8+i}, v{Y1+2*i}, v{Y1+2*i+1}")
    k(f"buffer_store_dwordx4 {vr(NP,4)}, v2, s[20:23], s31 offen {ST_P3}")
    k(f"buffer_store_dwordx4 {vr(NP+4,4)}, v2, s[20:23], s31 offen offset:1024 {ST_P3}")
    k(f"buffer_store_dwordx4 {vr(NP+8,4)}, v2, s[20:23], s32 offen {ST_P3}")
    k(f"buffer_store_dwordx4 {vr(NP+12,4)}, v2, s[20:23], s32 offen offset:1024 {ST_P3}")

def gen_p3():
    k = Kern('p3_kernel')
    k("s_cmp_ge_u32 s2, 256")
    k("s_cbranch_scc1 L_p3_end")
    stamp_begin(k)
    k("s_load_dwordx2 s[4:5], s[0:1], 0")
    k("s_load_dwordx2 s[26:27], s[0:1], 80")
    k("s_load_dwordx2 s[24:25], s[0:1], 32")
    k("v_and_b32 v1, 63, v0")
    k("v_lshrrev_b32 v2, 6, v0")
    k("v_readfirstlane_b32 s28, v2")
    pf_wave(k, 'p3', W1PF0 + 256*W1PF)
    first_tiles_wave(k)
    p3_body(k, False)
    stamp_end(k, 'p3')
    k("L_p3_end:")
    k("s_endpgm")
    return k, 228, 33792

def gen_p23(): return gen_p2(True)

MF16 = 'v_mfma_f32_16x16x32_bf16'

def interleave(mf, rd, lead=0):
    out = []; n = len(mf); m = len(rd); ri = 0
    for i in range(n):
        out.append(mf[i])
        tgt = min(m, (m*(i+1) + n - 1)//n)
        while ri < tgt:
            out.append(rd[ri]); ri += 1
    out += rd[ri:]
    return out

def producer_loop(k, tag, per, issue, NS, NIT):
    mark(k, 1)
    issue()
    mark(k, 2)
    issue()
    k(f"s_waitcnt vmcnt({per})")
    mark(k, 3)
    k("s_barrier")
    for n in range(2, NS): issue()
    mark(k, 4)
    nmain = NIT - NS
    k(f"s_mov_b32 s60, 0")
    k(f"L_{tag}_ploop:")
    k(f"s_waitcnt vmcnt({(NS-2)*per})")
    k("s_barrier")
    issue()
    k("s_add_u32 s60, s60, 1")
    k(f"s_cmp_lt_u32 s60, {nmain}")
    k(f"s_cbranch_scc1 L_{tag}_ploop")
    for n in range(nmain, NIT-1):
        k(f"s_waitcnt vmcnt({(NIT-1-(n+1))*per})")
        k("s_barrier")


XB_OFF = ZW_OFF
FL_OFF = 0x2800000
def gemm_kernel(tag, fused=False):
    g1 = tag == 'g1'
    k = Kern('gg_kernel' if fused else tag + '_kernel')
    ENDL = 'L_gg_end' if fused else f'L_{tag}_end'
    ASZ = 16384; STG = 32768; NS = 4 if STATIC else (5 if BAR2 else 3)
    NIT = 32 if g1 else 28
    BSTR = 7168 if g1 else 4096
    if not (fused and not g1):
        k(f"s_cmp_ge_u32 s2, 256")
        k(f"s_cbranch_scc1 {ENDL}")
    else:
        k("L_gbar:")
        k("s_load_dwordx2 s[26:27], s[0:1], 80")
        k("s_waitcnt vmcnt(0) lgkmcnt(0)")
        k("s_barrier")
        srd(k, 36, 26, 1024, BAR_OFF)
        k("v_cmp_eq_u32 vcc, 0, v0")
        k("s_and_saveexec_b64 s[34:35], vcc")
        k("s_cbranch_execz L_gbar_noarr")
        k("s_and_b32 s33, s2, 7")
        k("s_lshl_b32 s33, s33, 7")
        k("v_mov_b32 v2, 1")
        k("v_mov_b32 v3, 0")
        k("buffer_atomic_add v2, v3, s[36:39], s33 offen sc1")
        k("L_gbar_noarr:")
        k("s_mov_b64 exec, -1")
    stamp_begin(k)
    if g1:
        k("s_load_dwordx4 s[4:7], s[0:1], 32")
        k("s_load_dwordx2 s[24:25], s[0:1], 48")
    else:
        k("s_load_dwordx4 s[4:7], s[0:1], 48")
        k("s_load_dwordx2 s[24:25], s[0:1], 64")
    k("s_load_dwordx2 s[26:27], s[0:1], 80")
    k("v_and_b32 v1, 63, v0")
    k("v_lshrrev_b32 v2, 6, v0")
    k("v_readfirstlane_b32 s28, v2")
    if g1:
        k("s_and_b32 s30, s2, 1")
        k("s_lshl_b32 s30, s30, 2")
        k("s_bfe_u32 s52, s2, 0x20003")
        k("s_add_u32 s30, s30, s52")
        k("s_bfe_u32 s29, s2, 0x20001")
        k("s_mul_i32 s29, s29, 7")
        k("s_lshr_b32 s53, s2, 5")
        k("s_add_u32 s29, s29, s53")
        k("s_mov_b32 s63, 0")
        k("s_and_b32 s55, s2, 1")
        k(f"s_mul_i32 s55, s55, {16 if KHALF else 0}")
    else:
        if MAP2 == 1:
            k("s_bfe_u32 s62, s2, 0x10003")
            k("s_bfe_u32 s29, s2, 0x20001")
            k("s_lshl_b32 s29, s29, 2")
            k("s_bfe_u32 s52, s2, 0x20004")
            k("s_add_u32 s29, s29, s52")
            k("s_lshr_b32 s53, s2, 6")
            k("s_and_b32 s30, s2, 1")
            k("s_lshl_b32 s30, s30, 2")
            k("s_add_u32 s30, s30, s53")
        else:
            k("s_and_b32 s62, s2, 1")
            k("s_bfe_u32 s29, s2, 0x20001")
            k("s_lshl_b32 s29, s29, 2")
            k("s_bfe_u32 s52, s2, 0x20003")
            k("s_add_u32 s29, s29, s52")
            k("s_lshr_b32 s53, s2, 5")
            k("s_mov_b32 s30, s53")
        k("s_mov_b32 s55, 0")
        k("s_mul_i32 s63, s62, 28")
        srd(k, 56, 26, 256*64, FL_OFF) if False else None
    k("s_lshl_b32 s31, s29, 8")
    k("s_lshl_b32 s32, s30, 8")
    k("s_waitcnt lgkmcnt(0)")
    if g1:
        srd(k, 8, 4, S*F*2)
        srd(k, 12, 26, S*D*2, HN_OFF)
        srd(k, 16, 26, F*D*2, GT_OFF)
        srd(k, 20, 6, F*2)
        if not XSENT:
            srd(k, 44, 26, 256*64, FL_OFF)
            k("s_lshl_b32 s33, s2, 6")
            k("v_mov_b32 v2, 0")
            k("v_lshlrev_b32 v3, 2, v0")
            k("v_cmp_gt_u32 vcc, 16, v0")
            k("s_and_saveexec_b64 s[34:35], vcc")
            k(f"s_cbranch_execz L_{tag}_nozf")
            k("buffer_store_dword v2, v3, s[44:47], s33 offen sc0 sc1")
            k(f"L_{tag}_nozf:")
            k("s_mov_b64 exec, -1")
        k("s_cmp_lt_u32 s2, 224")
        k(f"s_cbranch_scc1 L_{tag}_main")
        if W1IDLE:
            k("s_sub_u32 s33, s2, 224")
            k("s_mul_i32 s33, s33, 112")
            k("v_mul_u32_u24 v3, 586, v0")
            k("v_lshrrev_b32 v3, 16, v3")
            k("v_mul_u32_u24 v4, 112, v3")
            k("v_sub_u32 v4, v0, v4")
            k("v_add_u32 v4, s33, v4")
            k("v_mul_u32_u24 v5, 4682, v4")
            k("v_lshrrev_b32 v5, 18, v5")
            k("v_mul_u32_u24 v6, 56, v5")
            k("v_sub_u32 v6, v4, v6")
            k("v_and_b32 v7, 1, v3")
            k("v_lshrrev_b32 v8, 1, v3")
            k("v_lshl_add_u32 v7, v7, 4, v8")
            k("v_lshl_add_u32 v5, v7, 6, v5")
            k("v_mul_u32_u24 v5, 7168, v5")
            k("v_lshl_add_u32 v2, v6, 7, v5")
            k("v_cmp_gt_u32 vcc, 448, v0")
            k("s_and_saveexec_b64 s[34:35], vcc")
            k(f"s_cbranch_execz L_{tag}_now1")
            k(f"s_mov_b32 s33, {W1IDLE*64*7168}")
            for i in range((16-W1IDLE)//2):
                k(f"buffer_load_dword v9, v2, s[8:11], s33 offen")
                k(f"s_add_u32 s33, s33, {2*64*7168}")
            k(f"L_{tag}_now1:")
            k("s_mov_b64 exec, -1")
        if W2PF:
            srd(k, 48, 24, F*S*2)
            k("s_sub_u32 s33, s2, 224")
            k("s_and_b32 s34, s33, 15")
            k("s_lshr_b32 s35, s33, 4")
            k(f"s_mul_i32 s35, s35, {1792*4096}")
            k("s_lshl_b32 s33, s34, 16")
            k("s_add_u32 s33, s33, s35")
            if W2WAVES == 8:
                k("v_lshlrev_b32 v2, 7, v0")
                for i in range(W2PF):
                    k(f"buffer_load_dword v9, v2, s[48:51], s33 offen")
                    k(f"s_add_u32 s33, s33, {16*65536}")
            else:
                k(f"s_cmp_ge_u32 s28, {W2WAVES}")
                k(f"s_cbranch_scc1 L_{tag}_now2")
                k("v_lshlrev_b32 v2, 7, v1")
                k(f"s_mul_i32 s34, s28, {8192*(8//W2WAVES)}")
                k("s_add_u32 s33, s33, s34")
                k("s_mov_b32 s35, 0")
                k(f"L_{tag}_w2l:")
                for q in range(8//W2WAVES):
                    k(f"s_add_u32 s34, s33, {8192*q}")
                    k(f"buffer_load_dword v9, v2, s[48:51], s34 offen")
                    k(f"s_waitcnt vmcnt({W2DEPTH})")
                k(f"s_add_u32 s33, s33, {16*65536}")
                k("s_add_u32 s35, s35, 1")
                k(f"s_cmp_lt_u32 s35, {W2PF}")
                k(f"s_cbranch_scc1 L_{tag}_w2l")
                k(f"L_{tag}_now2:")
        if XSENT:
            srd(k, 44, 26, 256*(16384 if XBF16 else 32768), 0x1E00000 if XB_SEP else VB_OFF)
            k("s_sub_u32 s33, s2, 224")
            k("s_lshl_b32 s33, s33, 17")
            k("v_lshlrev_b32 v2, 4, v0")
            for i in range(4): k(f"v_mov_b32 v{4+i}, -1")
            k("s_mov_b32 s34, 0")
            k(f"L_{tag}_clr:")
            k("buffer_store_dwordx4 v[4:7], v2, s[44:47], s33 offen sc0 sc1")
            k("s_add_u32 s33, s33, 8192")
            k("s_add_u32 s34, s34, 1")
            k("s_cmp_lt_u32 s34, 16")
            k(f"s_cbranch_scc1 L_{tag}_clr")
        stamp_end(k, tag, tid=0, slot=256, sfx='idle')
        k(f"s_branch {'L_gbar' if fused else ENDL}")
        k(f"L_{tag}_main:")
    else:
        srd(k, 8, 4, F*S*2)
        srd(k, 12, 26, F*D*2, GT_OFF)
        srd(k, 16, 26, S*D*2, H_OFF)
        srd(k, 20, 6, S*2)
        srd(k, 48, 24, S*D*2)
        if not XSENT:
            k("s_getreg_b32 s54, hwreg(HW_REG_XCC_ID, 0, 4)")
            k("s_add_u32 s54, s54, 1")
            srd(k, 56, 26, 256*64, FL_OFF)
            k("s_lshl_b32 s33, s2, 6")
            k("v_mov_b32 v2, s54")
            k("v_mov_b32 v3, 0")
            k("v_cmp_eq_u32 vcc, 0, v0")
            k("s_and_saveexec_b64 s[34:35], vcc")
            k(f"s_cbranch_execz L_{tag}_nopub")
            k("buffer_store_dword v2, v3, s[56:59], s33 offen offset:4 sc0 sc1")
            k(f"L_{tag}_nopub:")
            k("s_mov_b64 exec, -1")
    if PRODFIRST:
        k("s_cmp_lt_u32 s28, 4")
        k(f"s_cbranch_scc1 L_{tag}_cons")
    else:
        k("s_cmp_ge_u32 s28, 4")
        k(f"s_cbranch_scc1 L_{tag}_prod")
    i_cons = len(k.l)
    k(f"L_{tag}_cons:")
    ACC = 8; X = 72; Y = 136; R = 200
    AA = [R+i for i in range(4)]; AB = [R+4+i for i in range(4)]
    BA = [R+8+i for i in range(4)]; BB = [R+12+i for i in range(4)]
    MISC = R + 16
    k("s_and_b32 s33, s28, 1")
    k("s_lshr_b32 s36, s28, 1")
    k("v_lshrrev_b32 v2, 4, v1")
    k("v_bfe_u32 v3, v1, 2, 2")
    k("v_and_b32 v4, 3, v1")
    k("v_lshl_add_u32 v5, v2, 2, v3")
    k("v_and_b32 v6, 7, v5")
    k("v_lshlrev_b32 v6, 1, v6")
    k("v_lshrrev_b32 v7, 1, v4")
    k("v_and_b32 v9, 1, v4")
    for (base, w, add) in ((BA, 's33', 0), (BB, 's36', ASZ)):
        k(f"s_lshl_b32 s35, {w}, 3")
        k("v_add_u32 v10, s35, v7")
        k("v_xor_b32 v10, v10, v6")
        k("v_lshlrev_b32 v10, 4, v10")
        k("v_lshl_add_u32 v10, v9, 3, v10")
        k("v_lshl_add_u32 v10, v5, 8, v10")
        if add: k(f"v_add_u32 v10, {add}, v10")
        k(f"v_mov_b32 v{base[0]}, v10")
        for t in range(1, 4): k(f"v_xor_b32 v{base[t]}, {32*t}, v10")
    for t in range(4):
        k(f"v_mov_b32 v{AA[t]}, v{BA[t]}"); k(f"v_mov_b32 v{AB[t]}, v{BB[t]}")
    BIAS = MISC
    k("v_and_b32 v2, 15, v1")
    k("v_lshlrev_b32 v2, 1, v2")
    k("s_lshl_b32 s37, s36, 7")
    k("s_add_u32 s37, s37, s31")
    for t in range(4):
        k(f"buffer_load_ushort v{BIAS+t}, v2, s[20:23], s37 offen offset:{32*t}")
    OV = MISC+4
    k("v_and_b32 v2, 15, v1")
    k("v_lshlrev_b32 v2, 11, v2")
    k("v_lshrrev_b32 v3, 4, v1")
    k(f"v_lshl_add_u32 v{OV}, v3, 4, v2")
    k("s_lshl_b32 s38, s29, 7")
    k("s_lshl_b32 s39, s36, 6")
    k("s_add_u32 s38, s38, s39")
    k("s_lshl_b32 s38, s38, 11")
    k("s_add_u32 s38, s38, s32")
    k("s_lshl_b32 s39, s33, 7")
    k("s_add_u32 s38, s38, s39")
    if not g1:
        HL = MISC+6
        NV = HL+16
        if OUT_TOUCH:
            k("s_lshl_b32 s39, s62, 16")
            k("s_add_u32 s39, s39, s38")
            k(f"buffer_load_dword v{NV}, v{OV}, s[48:51], s39 offen")
            NV += 1
    else:
        NV = MISC+5
    def reads(dst, buf=None):
        r = []
        for ks in range(2):
            b = dst + 32*ks; ko = 32*ks
            for t in range(4):
                if buf is None: regs = (AA[t], AB[t]); bo = 0
                else:
                    regs = (BA[t], BB[t]) if buf < 2 else (AA[t], AB[t]); bo = (buf % 2)*STG
                for (o, a) in ((0, regs[0]), (16, regs[1])):
                    r.append(f"ds_read_b64_tr_b16 {vr(b+o+4*t,2)}, v{a} offset:{bo+ko*256}")
                    r.append(f"ds_read_b64_tr_b16 {vr(b+o+4*t+2,2)}, v{a} offset:{bo+(ko+16)*256}")
        return r
    def mfmas(src):
        m = []
        for ks in range(2):
            b = src + 32*ks
            order = sorted([(td, tn) for td in range(4) for tn in range(4)], key=lambda x: (max(x), x))
            if FAKE32:
                for i in range(8):
                    a = ACC + 16*(i % 4)
                    m.append(f"{MF32} {vr(a,16)}, {vr(b+4*(i%4),4)}, {vr(b+16+4*((i//2)%4),4)}, {vr(a,16)}")
                continue
            for td, tn in order:
                a = ACC + 4*(4*tn+td)
                m.append(f"{MF16} {vr(a,4)}, {vr(b+4*td,4)}, {vr(b+16+4*tn,4)}, {vr(a,4)}")
        return m
    def sched(mf, rd, extra):
        out = []; ri = 0; ei = 0
        for i, m in enumerate(mf):
            out.append(m)
            if ri < len(rd):
                for _ in range(RPAT[i % len(RPAT)]):
                    if ri < len(rd): out.append(rd[ri]); ri += 1
            elif ei < len(extra):
                out.append(extra[ei]); ei += 1
        out += rd[ri:] + extra[ei:]
        return out
    def upd():
        e = [f"s_add_u32 s34, s34, {STG}", f"s_cmp_eq_u32 s34, {STG*NS}", "s_cselect_b32 s34, 0, s34"]
        e += [f"v_add_u32 v{AA[t]}, s34, v{BA[t]}" for t in range(4)]
        e += [f"v_add_u32 v{AB[t]}, s34, v{BB[t]}" for t in range(4)]
        return e
    for i in range(64): k(f"v_mov_b32 v{ACC+i}, 0")
    k("s_mov_b32 s34, 0")
    k("s_mov_b32 s35, 0")
    if fused and not g1: k("s_barrier")
    mark(k, 1)
    k("s_barrier")
    mark(k, 2)
    if STATIC:
        for t in range(4):
            k(f"v_add_u32 v{AA[t]}, 65536, v{BA[t]}"); k(f"v_add_u32 v{AB[t]}, 65536, v{BB[t]}")
        for x in reads(X, 0): k(x)
        k(f"L_{tag}_cloop:")
        for u in range(4):
            cur, nxt = (X, Y) if u % 2 == 0 else (Y, X)
            k("s_waitcnt lgkmcnt(0)")
            k("s_barrier")
            ex = ["s_add_u32 s35, s35, 4", f"s_cmp_lt_u32 s35, {NIT-4}"] if u == 3 else []
            for x in sched(mfmas(cur), reads(nxt, (u+1) % 4), ex): k(x)
        k(f"s_cbranch_scc1 L_{tag}_cloop")
        for u in range(2):
            cur, nxt = (X, Y) if u % 2 == 0 else (Y, X)
            k("s_waitcnt lgkmcnt(0)")
            k("s_barrier")
            for x in sched(mfmas(cur), reads(nxt, u+1), []): k(x)
    else:
        for x in reads(X): k(x)
        for x in upd(): k(x)
        k(f"L_{tag}_cloop:")
        k("s_waitcnt lgkmcnt(0)")
        if LOOPSTAMP:
            k(f"s_cmp_eq_u32 s35, {LOOPSTAMP}")
            k(f"s_cbranch_scc0 L_{tag}_nolatch")
            for i in range(4): k(f"s_mov_b64 s[{96-20+2*i}:{97-20+2*i}], s[{66+2*i}:{67+2*i}]") if False else None
            k("s_sub_u32 s90, s68, s66"); k("s_sub_u32 s91, s70, s68"); k("s_sub_u32 s92, s72, s70")
            k("s_memtime s[82:83]"); k("s_waitcnt lgkmcnt(0)"); k("s_sub_u32 s93, s82, s72")
            k(f"L_{tag}_nolatch:")
        k("s_barrier")
        if LOOPSTAMP: k("s_memtime s[66:67]")
        for x in sched(mfmas(X), reads(Y), upd()): k(x)
        if LOOPSTAMP: k("s_memtime s[68:69]")
        k("s_waitcnt lgkmcnt(0)")
        if not BAR2: k("s_barrier")
        if LOOPSTAMP: k("s_memtime s[70:71]")
        for x in sched(mfmas(Y), reads(X), upd() + ["s_add_u32 s35, s35, 2", f"s_cmp_lt_u32 s35, {NIT-2}"]): k(x)
        if LOOPSTAMP: k("s_memtime s[72:73]")
        k(f"s_cbranch_scc1 L_{tag}_cloop")
    if LOOPSTAMP:
        k("s_waitcnt lgkmcnt(0)")
        for i in range(4):
            k(f"s_mov_b32 s{66+2*i}, s{90+i}"); k(f"s_mov_b32 s{67+2*i}, 0")
    XID = 3
    if not g1:
        if not XSENT:
            k(f"s_xor_b32 s42, s2, {8 if MAP2 == 1 else 1}")
            k("s_lshl_b32 s39, s42, 6")
            k("v_mov_b32 v4, 0")
            k(f"buffer_load_dword v{XID}, v4, s[56:59], s39 offen offset:4 sc0 sc1")
        k("s_lshl_b32 s39, s62, 16")
        k("s_add_u32 s39, s39, s38")
        for tnl in range(1 if XSHARE else 2):
            for tp in range(2):
                k(f"s_add_u32 s40, s39, {tnl*16*2048 + tp*64}")
                k(f"buffer_load_dwordx4 {vr(HL+8*tnl+4*tp,4)}, v{OV}, s[16:19], s40 offen")
    k("s_waitcnt lgkmcnt(0)")
    k("s_barrier")
    for x in sched(mfmas(X), reads(Y, 3 if STATIC else None), []): k(x)
    k("s_waitcnt lgkmcnt(0)")
    for x in mfmas(Y): k(x)
    mark(k, 3)
    k("s_mov_b32 s40, 0xffff0000")
    T = X
    def pack_swap(P):
        k(f"v_permlane32_swap_b32 v{P}, v{P+2}")
        k(f"v_permlane32_swap_b32 v{P+1}, v{P+3}")
        k(f"v_permlane16_swap_b32 v{P}, v{P+2}")
        k(f"v_permlane16_swap_b32 v{P+1}, v{P+3}")
    def store_lines(P0, P1, tmp, so, srdreg):
        for i in range(4): k(f"v_mov_b32 v{tmp+i}, v{P0+i}")
        for i in range(4): k(f"v_mov_b32_dpp v{P0+i}, v{P1+i} row_ror:8 row_mask:0xf bank_mask:0xc")
        for i in range(4): k(f"v_mov_b32_dpp v{P1+i}, v{tmp+i} row_ror:8 row_mask:0xf bank_mask:0x3")
        fl = ST_G1 if g1 else ST_G2
        k(f"s_add_u32 s41, s38, {so}")
        k(f"buffer_store_dwordx4 {vr(P0,4)}, v{OVS}, s[{srdreg}:{srdreg+3}], s41 offen {fl}")
        k(f"s_add_u32 s41, s38, {so + 8*2048}")
        k(f"buffer_store_dwordx4 {vr(P1,4)}, v{OVS}, s[{srdreg}:{srdreg+3}], s41 offen {fl}")
    OVS = 3
    def set_ovs():
        k("v_and_b32 v2, 7, v1")
        k("v_lshlrev_b32 v2, 11, v2")
        k("v_bfe_u32 v3, v1, 3, 1")
        k("v_lshl_add_u32 v2, v3, 6, v2")
        k("v_lshrrev_b32 v3, 4, v1")
        k(f"v_lshl_add_u32 v{OVS}, v3, 4, v2")
    if g1:
        SH = 32768 if STATIC else (98304 if BAR2 else 65536)
        k("s_lshl_b32 s39, s28, 13")
        k(f"s_add_u32 s39, s39, {SH}")
        k("v_lshl_add_u32 v2, v1, 4, s39")
        for i in range(8): k(f"ds_write_b128 v2, {vr(ACC+32+4*i,4)} offset:{1024*i}")
        k("s_waitcnt vmcnt(0) lgkmcnt(0)")
        k("s_barrier")
        mark(k, 4)
        k(f"L_{tag}_epi:")
        for t in range(2): k(f"v_lshlrev_b32 v{BIAS+t}, 16, v{BIAS+t}")
        c0 = -2.0*math.log2(math.e)*math.sqrt(2.0/math.pi); c1 = c0*0.044715
        k("s_mov_b32 s40, 0xffff0000")
        k(f"s_mov_b32 s42, {f32(c1)}")
        k(f"v_mov_b32 v4, {f32(c0)}"); k(f"v_mov_b32 v5, {f32(c0)}")
        k(f"v_mov_b32 v6, 1.0"); k(f"v_mov_b32 v7, 1.0")
        set_ovs()
        for tn in range(2):
            for tp in range(2):
                P = T + 4*tp + 24*tn
                for q in range(4):
                    td = 2*tp + q//2
                    src = ACC + 4*(4*tn+td) + 2*(q % 2)
                    u, w = T+8+4*q, T+10+4*q
                    gelu_pair(k, src, u, w, BIAS+tn, P+q)
                pack_swap(P)
            store_lines(T+24*tn, T+24*tn+4, T+32, tn*16*2048, 16)
    else:
        if XSHARE:
            assert XSENT and XBF16
            SHX, SHY = 0, 16384
            k("s_waitcnt vmcnt(0)")
            srd(k, 44, 26, 256*16384, 0x1E00000 if XB_SEP else VB_OFF)
            k(f"s_xor_b32 s42, s2, {8 if MAP2 == 1 else 1}")
            k("s_lshl_b32 s43, s42, 14")
            k("s_lshl_b32 s39, s28, 12")
            k("s_add_u32 s43, s43, s39")
            k("v_lshlrev_b32 v2, 4, v1")
            k("s_cmp_eq_u32 s62, 0")
            k(f"s_cbranch_scc1 L_{tag}_k0")
            for half, l2 in ((0, None), (32, f"L_{tag}_k0:")):
                if l2: k(l2)
                for i in range(16): k(f"{CVT} v{Y+32+i}, v{ACC+half+2*i}, v{ACC+half+2*i+1}")
                for i in range(4):
                    k(f"s_add_u32 s39, s43, {1024*i}")
                    k(f"buffer_store_dwordx4 {vr(Y+32+4*i,4)}, v2, s[44:47], s39 offen sc0 sc1")
                if half == 0:
                    for i in range(32): k(f"v_mov_b32 v{ACC+i}, v{ACC+32+i}")
                    k(f"v_mov_b32 v{BIAS}, v{BIAS+2}")
                    k(f"s_branch L_{tag}_k1")
            k(f"L_{tag}_k1:")
            k("s_lshl_b32 s39, s28, 12")
            k(f"v_add_u32 v3, s39, v2")
            for i in range(4): k(f"ds_write_b128 v3, {vr(ACC+16+4*i,4)} offset:{SHX+1024*i}")
            k("s_lshl_b32 s39, s62, 16")
            k("s_add_u32 s38, s38, s39")
            k("s_lshl_b32 s39, s28, 11")
            k(f"v_add_u32 v3, s39, v2")
            k("s_waitcnt vmcnt(0) lgkmcnt(0)" if XWAIT else "s_waitcnt lgkmcnt(0)")
            k("s_barrier")
            k("s_barrier")
            k(f"ds_read_b128 {vr(Y+40,4)}, v3 offset:{SHY}")
            k(f"ds_read_b128 {vr(Y+44,4)}, v3 offset:{SHY+1024}")
            k("s_waitcnt lgkmcnt(0)")
            mark(k, 4)
            k(f"L_{tag}_epi:")
            k("s_mov_b32 s40, 0xffff0000")
            k(f"v_lshlrev_b32 v{BIAS}, 16, v{BIAS}")
            if PERTURB: k(f"v_add_f32 v{BIAS}, {f32(PERTURB)}, v{BIAS}")
            set_ovs()
            for tp in range(2):
                P = T + 4*tp
                for q in range(4):
                    td = 2*tp + q//2
                    a_ = ACC + 4*td + 2*(q % 2); y = Y + 4*td + 2*(q % 2)
                    u, w = T+8+4*q, T+10+4*q
                    pk = Y + 40 + (4*td + 2*(q % 2))//2
                    k(f"v_lshlrev_b32 v{y}, 16, v{pk}")
                    k(f"v_and_b32 v{y+1}, s40, v{pk}")
                    k(f"v_pk_add_f32 {vr(a_,2)}, {vr(a_,2)}, {vr(y,2)}")
                    k(f"v_add_f32 v{u}, v{a_}, v{BIAS}")
                    k(f"v_add_f32 v{u+1}, v{a_+1}, v{BIAS}")
                    k(f"{CVT} v{P+q}, v{u}, v{u+1}")
                pack_swap(P)
                for q in range(4):
                    u, w = T+8+4*q, T+10+4*q
                    hp = HL+4*tp+q
                    k(f"v_lshlrev_b32 v{u}, 16, v{P+q}")
                    k(f"v_and_b32 v{u+1}, s40, v{P+q}")
                    k(f"v_lshlrev_b32 v{w}, 16, v{hp}")
                    k(f"v_and_b32 v{w+1}, s40, v{hp}")
                    k(f"v_pk_add_f32 {vr(u,2)}, {vr(u,2)}, {vr(w,2)}")
                    k(f"{CVT} v{P+q}, v{u}, v{u+1}")
            store_lines(T, T+4, T+32, 0, 48)
        else:
            k("s_waitcnt vmcnt(0)")
            srd(k, 44, 26, 256*(16384 if XBF16 else 32768), 0x1E00000 if XB_SEP else VB_OFF)
            if not XSENT: srd(k, 56, 26, 256*64, FL_OFF)
            k(f"s_xor_b32 s42, s2, {8 if MAP2 == 1 else 1}")
            k(f"s_lshl_b32 s43, s42, {14 if XBF16 else 15}")
            k(f"s_lshl_b32 s39, s28, {12 if XBF16 else 13}")
            k("s_add_u32 s43, s43, s39")
            k("v_lshlrev_b32 v2, 4, v1")
            k("v_mov_b32 v4, 0")
            if not XSENT:
                k("s_lshl_b32 s39, s42, 6")
                k("s_mov_b32 s41, 0")
                k("v_readfirstlane_b32 s61, v3")
                k("s_cmp_eq_u32 s61, 0")
                k(f"s_cbranch_scc0 L_{tag}_xpolld")
                k(f"L_{tag}_xpoll:")
                k("buffer_load_dword v3, v4, s[56:59], s39 offen offset:4 sc0 sc1")
                k("s_waitcnt vmcnt(0)")
                k("v_readfirstlane_b32 s61, v3")
                k("s_add_u32 s41, s41, 1")
                k("s_cmp_ge_u32 s41, 0x40000")
                k(f"s_cbranch_scc1 L_{tag}_xpolld")
                k("s_cmp_eq_u32 s61, 0")
                k(f"s_cbranch_scc1 L_{tag}_xpoll")
                k(f"L_{tag}_xpolld:")
                k("s_cmp_eq_u32 s61, s54")
                k(f"s_cselect_b32 s61, {0 if FORCE_FAR else 1}, 0")
            def sends(flags, lab):
                k("s_cmp_eq_u32 s62, 0")
                k(f"s_cbranch_scc1 L_{tag}_k0{lab}")
                for half, l2 in ((0, None), (32, f"L_{tag}_k0{lab}:")):
                    if l2: k(l2)
                    if XBF16:
                        for i in range(16): k(f"{CVT} v{Y+32+i}, v{ACC+half+2*i}, v{ACC+half+2*i+1}")
                        for i in range(4):
                            k(f"s_add_u32 s39, s43, {1024*i}")
                            k(f"buffer_store_dwordx4 {vr(Y+32+4*i,4)}, v2, s[44:47], s39 offen {flags}")
                    else:
                        for i in range(8):
                            k(f"s_add_u32 s39, s43, {1024*i}")
                            k(f"buffer_store_dwordx4 {vr(ACC+half+4*i,4)}, v2, s[44:47], s39 offen {flags}")
                    if half == 0: k(f"s_branch L_{tag}_k1{lab}")
                k(f"L_{tag}_k1{lab}:")
            def handoff(stf, ldf, lab):
                sends(stf, lab)
                k("s_waitcnt vmcnt(0)")
                k("s_lshl_b32 s39, s42, 6")
                k("s_lshl_b32 s41, s28, 2")
                k("s_add_u32 s39, s39, s41")
                k("v_mov_b32 v3, 1")
                k("s_mov_b64 exec, 1")
                k(f"buffer_store_dword v3, v4, s[56:59], s39 offen offset:16 {stf}")
                k("s_lshl_b32 s39, s2, 6")
                k("s_add_u32 s39, s39, s41")
                k("s_mov_b32 s41, 0")
                k(f"L_{tag}_poll{lab}:")
                k(f"buffer_load_dword v3, v4, s[56:59], s39 offen offset:16 {ldf}")
                k("s_waitcnt vmcnt(0)")
                k("v_readfirstlane_b32 s43, v3")
                k("s_add_u32 s41, s41, 1")
                k("s_cmp_ge_u32 s41, 0x40000")
                k(f"s_cbranch_scc1 L_{tag}_polld{lab}")
                k("s_cmp_eq_u32 s43, 1")
                k(f"s_cbranch_scc0 L_{tag}_poll{lab}")
                k(f"L_{tag}_polld{lab}:")
                k("s_mov_b64 exec, -1")
                k(f"s_lshl_b32 s43, s2, {14 if XBF16 else 15}")
                k(f"s_lshl_b32 s39, s28, {12 if XBF16 else 13}")
                k("s_add_u32 s43, s43, s39")
                for i in range(4 if XBF16 else 8):
                    k(f"s_add_u32 s39, s43, {1024*i}")
                    k(f"buffer_load_dwordx4 {vr(Y+(32 if XBF16 else 0)+4*i,4)}, v2, s[44:47], s39 offen {ldf}")
            if XSENT:
                assert XBF16
                sends('sc0 sc1', 's')
                k("s_lshl_b32 s43, s2, 14")
                k("s_lshl_b32 s39, s28, 12")
                k("s_add_u32 s43, s43, s39")
                k("s_mov_b32 s41, 0")
                if XPRE: k("s_waitcnt vmcnt(0)")
                k(f"L_{tag}_spoll:")
                for i in range(4):
                    k(f"s_add_u32 s39, s43, {1024*i}")
                    k(f"buffer_load_dwordx4 {vr(Y+32+4*i,4)}, v2, s[44:47], s39 offen sc0 sc1")
                k("s_add_u32 s41, s41, 1")
                k("s_waitcnt vmcnt(0)")
                k(f"v_max3_u32 v3, v{Y+32}, v{Y+33}, v{Y+34}")
                for i in range(3, 15, 2): k(f"v_max3_u32 v3, v3, v{Y+32+i}, v{Y+32+i+1}")
                k(f"v_max_u32 v3, v3, v{Y+47}")
                k("v_cmp_eq_u32 vcc, -1, v3")
                k("s_nop 4")
                k("s_cmp_ge_u32 s41, 0x20000")
                k(f"s_cbranch_scc1 L_{tag}_spolld")
                k(f"s_cbranch_vccnz L_{tag}_spoll")
                k(f"L_{tag}_spolld:")
            else:
                k("s_cmp_eq_u32 s61, 1")
                k(f"s_cbranch_scc0 L_{tag}_far")
                handoff('', 'sc1', 'n')
                k(f"s_branch L_{tag}_xdone")
                k(f"L_{tag}_far:")
                handoff('sc0 sc1', 'sc0 sc1', 'f')
                k(f"L_{tag}_xdone:")
            k("s_cmp_eq_u32 s62, 0")
            k(f"s_cbranch_scc1 L_{tag}_kept")
            for i in range(32): k(f"v_mov_b32 v{ACC+i}, v{ACC+32+i}")
            k(f"v_mov_b32 v{BIAS}, v{BIAS+2}"); k(f"v_mov_b32 v{BIAS+1}, v{BIAS+3}")
            k(f"L_{tag}_kept:")
            mark(k, 4)
            k(f"v_lshlrev_b32 v{BIAS}, 16, v{BIAS}"); k(f"v_lshlrev_b32 v{BIAS+1}, 16, v{BIAS+1}")
            if PERTURB:
                k(f"v_add_f32 v{BIAS}, {f32(PERTURB)}, v{BIAS}"); k(f"v_add_f32 v{BIAS+1}, {f32(PERTURB)}, v{BIAS+1}")
            k("s_lshl_b32 s39, s62, 16")
            k("s_add_u32 s38, s38, s39")
            set_ovs()
            for tnl in range(2):
                for tp in range(2):
                    i0 = 4*tnl + 2*tp
                    if XSENT: pass
                    elif XBF16: k(f"s_waitcnt vmcnt({3 - i0//2})")
                    else:     k(f"s_waitcnt vmcnt({6 - i0 if i0 < 6 else 0})")
                    if i0 == 0: mark(k, 5)
                    P = T + 4*tp + 24*tnl
                    for q in range(4):
                        td = 2*tp + q//2
                        a = ACC + 4*(4*tnl+td) + 2*(q % 2); y = Y + 4*(4*tnl+td) + 2*(q % 2)
                        u, w = T+8+4*q, T+10+4*q
                        if XBF16:
                            pk = Y + 32 + (4*(4*tnl+td) + 2*(q % 2))//2
                            k(f"v_lshlrev_b32 v{y}, 16, v{pk}")
                            k(f"v_and_b32 v{y+1}, s40, v{pk}")
                        k(f"v_pk_add_f32 {vr(a,2)}, {vr(a,2)}, {vr(y,2)}")
                        if EMU_Y:
                            k(f"{CVT} v{w}, v{a}, v{a+1}")
                            k(f"v_lshlrev_b32 v{u}, 16, v{w}")
                            k(f"v_and_b32 v{u+1}, s40, v{w}")
                            k(f"v_add_f32 v{u}, v{u}, v{BIAS+tnl}")
                            k(f"v_add_f32 v{u+1}, v{u+1}, v{BIAS+tnl}")
                        else:
                            k(f"v_add_f32 v{u}, v{a}, v{BIAS+tnl}")
                            k(f"v_add_f32 v{u+1}, v{a+1}, v{BIAS+tnl}")
                        k(f"{CVT} v{P+q}, v{u}, v{u+1}")
                    pack_swap(P)
                    for q in range(4):
                        u, w = T+8+4*q, T+10+4*q
                        hp = HL+8*tnl+4*tp+q
                        k(f"v_lshlrev_b32 v{u}, 16, v{P+q}")
                        k(f"v_and_b32 v{u+1}, s40, v{P+q}")
                        k(f"v_lshlrev_b32 v{w}, 16, v{hp}")
                        k(f"v_and_b32 v{w+1}, s40, v{hp}")
                        k(f"v_pk_add_f32 {vr(u,2)}, {vr(u,2)}, {vr(w,2)}")
                        k(f"{CVT} v{P+q}, v{u}, v{u+1}")
                store_lines(T+24*tnl, T+24*tnl+4, T+32, tnl*16*2048, 48)
    stamp_end(k, tag)
    k(f"s_branch {'L_gbar' if (fused and g1) else ENDL}")
    i_prod = len(k.l)
    k(f"L_{tag}_prod:")
    if PPRIO: k(f"s_setprio {PPRIO}")
    k("s_sub_u32 s33, s28, 4")
    k("v_lshrrev_b32 v2, 4, v1")
    k("s_and_b32 s34, s33, 1")
    k("s_lshl_b32 s34, s34, 2")
    k("v_add_u32 v3, s34, v2")
    k("v_lshlrev_b32 v3, 1, v3")
    k("v_and_b32 v4, 15, v1")
    k("v_xor_b32 v3, v3, v4")
    k("v_lshlrev_b32 v3, 4, v3")
    k("v_lshl_add_u32 v8, v2, 11, v3")
    k(f"v_mul_u32_u24 v2, {BSTR}, v2")
    k("v_add_u32 v9, v2, v3")
    k("s_lshl_b32 s34, s33, 13")
    k("s_add_u32 s40, s32, s34")
    k(f"s_mul_i32 s34, s33, {4*BSTR}")
    k("s_add_u32 s41, s31, s34")
    k("s_lshl_b32 s42, s33, 10")
    k("s_mov_b32 s43, 0")
    k("s_add_u32 s46, s52, s53")
    k("s_mov_b32 s47, 0")
    def issue():
        k("s_add_u32 s58, s46, s47")
        k("s_and_b32 s58, s58, 3")
        k("s_cmp_eq_u32 s58, 0")
        k(f"s_cselect_b32 s58, {3+NIT}, {NIT-1}")
        k("s_add_u32 s58, s58, s47")
        k("s_add_u32 s58, s58, s55")
        k(f"s_cmp_ge_u32 s58, {2*NIT}")
        k(f"s_cselect_b32 s59, {2*NIT}, {NIT}")
        k(f"s_cmp_ge_u32 s58, {NIT}")
        k(f"s_cselect_b32 s59, s59, 0")
        k("s_sub_u32 s58, s58, s59")
        if not KPERM: k("s_mov_b32 s58, s47")
        if KWRAP: k(f"s_and_b32 s58, s58, {KWRAP-1}")
        k("s_add_u32 s58, s58, s63")
        k(f"s_mul_i32 s59, s58, {64*BSTR}")
        k(f"s_lshl_b32 s58, s58, 17")
        k("s_add_u32 s58, s58, s40")
        k("s_add_u32 s59, s59, s41")
        k("s_add_u32 s44, s43, s42")
        for m in range(4):
            k(f"s_add_u32 m0, s44, {4096*m}")
            k(f"s_add_u32 s45, s58, {m*16*2048}")
            k(f"buffer_load_dwordx4 v8, s[12:15], s45 offen lds")
            k(f"s_add_u32 m0, s44, {ASZ+4096*m}")
            k(f"s_add_u32 s45, s59, {m*16*BSTR}")
            k(f"buffer_load_dwordx4 v9, s[8:11], s45 offen {NT_B1 if g1 else NT_B2} lds")
        k("s_add_u32 s47, s47, 1")
        k(f"s_add_u32 s43, s43, {STG}")
        k(f"s_cmp_eq_u32 s43, {STG*NS}")
        k("s_cselect_b32 s43, 0, s43")
    if fused and not g1:
        k("s_cmp_eq_u32 s33, 0")
        k("s_cbranch_scc0 L_gbar_nopoll")
        srd(k, 36, 26, 1024, BAR_OFF)
        k("v_and_b32 v2, 7, v1")
        k("v_lshlrev_b32 v2, 7, v2")
        k("s_mov_b32 s34, 0")
        k("L_gbar_poll:")
        if PSLEEP: k(f"s_sleep {PSLEEP}")
        k(f"buffer_load_dword v3, v2, s[36:39], 0 offen {POLLF}")
        k("s_waitcnt vmcnt(0)")
        k("v_cmp_gt_u32 vcc, 32, v3")
        k("s_add_u32 s34, s34, 1")
        k("s_cmp_ge_u32 s34, 0x20000")
        k("s_cbranch_scc1 L_gbar_nopoll")
        k("s_cbranch_vccnz L_gbar_poll")
        k("L_gbar_nopoll:")
        k("s_barrier")
    if BAR2:
        per = 8
        mark(k, 1)
        issue(); mark(k, 2); issue()
        k(f"s_waitcnt vmcnt({per})")
        mark(k, 3)
        k("s_barrier")
        issue(); issue()
        mark(k, 4)
        k("s_mov_b32 s60, 0")
        k(f"L_{tag}_ploop:")
        k(f"s_waitcnt vmcnt({per})")
        k("s_barrier")
        issue(); issue()
        k("s_add_u32 s60, s60, 2")
        k(f"s_cmp_lt_u32 s60, {NIT-4}")
        k(f"s_cbranch_scc1 L_{tag}_ploop")
        k(f"s_waitcnt vmcnt({per})")
        k("s_barrier")
        k("s_waitcnt vmcnt(0)")
        k("s_barrier")
    else:
        producer_loop(k, tag, 8, issue, 3 if STATIC else NS, NIT)
    if g1 and CODEPF2 and not fused:
        k("s_cmp_eq_u32 s33, 0")
        k(f"s_cbranch_scc0 L_{tag}_nonp")
        next_code_pf(k, 'g1', 'g2_kernel', 'L_text_end', 28, 120, 56, 1)
        k(f"L_{tag}_nonp:")
    if g1:
        k("s_and_b32 s34, s33, 1")
        k("s_lshr_b32 s36, s33, 1")
        k("v_and_b32 v2, 15, v1")
        k("v_lshlrev_b32 v2, 1, v2")
        k("s_lshl_b32 s37, s36, 7")
        k("s_add_u32 s37, s37, s31")
        for t in range(2):
            k(f"buffer_load_ushort v{BIAS+t}, v2, s[20:23], s37 offen offset:{64+32*t}")
        k("v_and_b32 v2, 15, v1")
        k("v_lshlrev_b32 v2, 11, v2")
        k("v_lshrrev_b32 v3, 4, v1")
        k(f"v_lshl_add_u32 v{OV}, v3, 4, v2")
        k("s_lshl_b32 s38, s29, 7")
        k("s_lshl_b32 s39, s36, 6")
        k("s_add_u32 s38, s38, s39")
        k("s_add_u32 s38, s38, 32")
        k("s_lshl_b32 s38, s38, 11")
        k("s_add_u32 s38, s38, s32")
        k("s_lshl_b32 s39, s34, 7")
        k("s_add_u32 s38, s38, s39")
        k("s_lshl_b32 s39, s33, 13")
        k(f"s_add_u32 s39, s39, {32768 if STATIC else (98304 if BAR2 else 65536)}")
        k("v_lshl_add_u32 v2, v1, 4, s39")
        k("s_setprio 0")
        k("s_barrier")
        for i in range(8): k(f"ds_read_b128 {vr(ACC+4*i,4)}, v2 offset:{1024*i}")
        k("s_waitcnt vmcnt(0) lgkmcnt(0)")
        k(f"s_branch L_{tag}_epi")
    if (not g1) and XSHARE:
        SHX, SHY = 0, 16384
        k("s_setprio 0")
        k("s_and_b32 s34, s33, 1")
        k("s_lshr_b32 s36, s33, 1")
        k("v_and_b32 v2, 15, v1")
        k("v_lshlrev_b32 v2, 1, v2")
        k("s_lshl_b32 s37, s36, 7")
        k("s_add_u32 s37, s37, s31")
        k("s_lshl_b32 s39, s62, 6")
        k("s_add_u32 s37, s37, s39")
        k(f"buffer_load_ushort v{BIAS}, v2, s[20:23], s37 offen offset:32")
        k("v_and_b32 v2, 15, v1")
        k("v_lshlrev_b32 v2, 11, v2")
        k("v_lshrrev_b32 v3, 4, v1")
        k(f"v_lshl_add_u32 v{OV}, v3, 4, v2")
        k("s_lshl_b32 s38, s29, 7")
        k("s_lshl_b32 s39, s36, 6")
        k("s_add_u32 s38, s38, s39")
        k("s_lshl_b32 s39, s62, 5")
        k("s_add_u32 s38, s38, s39")
        k("s_add_u32 s38, s38, 16")
        k("s_lshl_b32 s38, s38, 11")
        k("s_add_u32 s38, s38, s32")
        k("s_lshl_b32 s39, s34, 7")
        k("s_add_u32 s38, s38, s39")
        for tp in range(2):
            k(f"s_add_u32 s40, s38, {tp*64}")
            k(f"buffer_load_dwordx4 {vr(HL+4*tp,4)}, v{OV}, s[16:19], s40 offen")
        srd(k, 44, 26, 256*16384, 0x1E00000 if XB_SEP else VB_OFF)
        k("s_lshl_b32 s43, s2, 14")
        k("s_lshl_b32 s39, s33, 12")
        k("s_add_u32 s43, s43, s39")
        k("v_lshlrev_b32 v2, 4, v1")
        k("s_lshl_b32 s39, s33, 12")
        k("v_add_u32 v3, s39, v2")
        k("s_barrier")
        for i in range(4): k(f"ds_read_b128 {vr(ACC+4*i,4)}, v3 offset:{SHX+1024*i}")
        k("s_mov_b32 s41, 0")
        k(f"L_{tag}_spoll:")
        for i in range(4):
            k(f"s_add_u32 s39, s43, {1024*i}")
            k(f"buffer_load_dwordx4 {vr(Y+32+4*i,4)}, v2, s[44:47], s39 offen sc0 sc1")
        k("s_add_u32 s41, s41, 1")
        k("s_waitcnt vmcnt(0)")
        k(f"v_max3_u32 v5, v{Y+32}, v{Y+33}, v{Y+34}")
        for i in range(3, 15, 2): k(f"v_max3_u32 v5, v5, v{Y+32+i}, v{Y+32+i+1}")
        k(f"v_max_u32 v5, v5, v{Y+47}")
        k("v_cmp_eq_u32 vcc, -1, v5")
        k("s_nop 4")
        k("s_cmp_ge_u32 s41, 0x20000")
        k(f"s_cbranch_scc1 L_{tag}_spolld")
        k(f"s_cbranch_vccnz L_{tag}_spoll")
        k(f"L_{tag}_spolld:")
        k("s_lshl_b32 s39, s33, 11")
        k("v_add_u32 v3, s39, v2")
        k(f"ds_write_b128 v3, {vr(Y+32,4)} offset:{SHY}")
        k(f"ds_write_b128 v3, {vr(Y+36,4)} offset:{SHY+1024}")
        k("s_waitcnt lgkmcnt(0)")
        k("s_barrier")
        k(f"s_branch L_{tag}_epi")
    stamp_end(k, tag, tid=256, slot=256, sfx='p')
    if PRODFIRST and not fused:
        k(f"s_branch {ENDL}")
        k.l = k.l[:i_cons] + k.l[i_prod:] + k.l[i_cons:i_prod]
    if fused and g1:
        return k, NV, STG*NS
    k(f"{ENDL}:")
    k("s_endpgm")
    return k, NV, STG*NS

def gelu_pair(k, src, u, w, bias, dst):
    if EMU_U:
        k(f"{CVT} v{w}, v{src}, v{src+1}")
        k(f"v_lshlrev_b32 v{u}, 16, v{w}")
        k(f"v_and_b32 v{u+1}, s40, v{w}")
        k(f"v_add_f32 v{u}, v{u}, v{bias}")
        k(f"v_add_f32 v{u+1}, v{u+1}, v{bias}")
        k(f"{CVT} v{w}, v{u}, v{u+1}")
        k(f"v_lshlrev_b32 v{u}, 16, v{w}")
        k(f"v_and_b32 v{u+1}, s40, v{w}")
    else:
        k(f"v_add_f32 v{u}, v{src}, v{bias}")
        k(f"v_add_f32 v{u+1}, v{src+1}, v{bias}")
    k(f"v_pk_mul_f32 {vr(w,2)}, {vr(u,2)}, {vr(u,2)}")
    k(f"v_pk_fma_f32 {vr(w,2)}, {vr(w,2)}, s[42:43], {vr(4,2)} op_sel_hi:[1,0,1]")
    k(f"v_pk_mul_f32 {vr(w,2)}, {vr(w,2)}, {vr(u,2)}")
    k(f"v_exp_f32 v{w}, v{w}")
    k(f"v_exp_f32 v{w+1}, v{w+1}")
    k(f"s_nop 0")
    k(f"v_pk_add_f32 {vr(w,2)}, {vr(w,2)}, {vr(6,2)}")
    k(f"v_rcp_f32 v{w}, v{w}")
    k(f"v_rcp_f32 v{w+1}, v{w+1}")
    k(f"s_nop 0")
    k(f"v_pk_mul_f32 {vr(w,2)}, {vr(w,2)}, {vr(u,2)}")
    k(f"{CVT} v{dst}, v{w}, v{w+1}")

RPAT = [2, 1]
FUSE_GG = 0
FUSE23 = 1
FILLPOS = 2
W2WAVES = 8
W2DEPTH = 1
XPRE = 1
PRODFIRST = 0
FIRSTPF = 0
CODEPF2 = 1
WJOB = 2
LN_FUSE = 1
WEARLY = 1
W1IDLE = 0
EMU_LN = 0
EMU_L2 = 0
NT_B1 = ''
NT_B2 = ''
NT_X = ''
NT_W = ''
KHALF = 1
XSENT = 1
XSHARE = 0
XWAIT = 1
XBF16 = 1
EMU_Y = 0
PERTURB = 0
PSLEEP = 4
POLLF = 'sc0 sc1'
STATIC = 1
LOOPSTAMP = 0
BAR2 = 0
FAKE32 = 0
MAP2 = 0
XB_SEP = 1
FORCE_FAR = 0
PPRIO = 3
PFD = 0
KPERM = 1
FAKE16 = 0
NS1 = 3
NS2 = 3
KWRAP = 0
W2PF = 7
EMU_U = 0
RPG1 = 3
RPG2 = 4
def gen_gg():
    k1, nv1, l1 = gemm_kernel('g1', True)
    k2, nv2, l2 = gemm_kernel('g2', True)
    k1.l += k2.l
    return k1, max(nv1, nv2), max(l1, l2)
def gen_g1(): return gemm_kernel('g1')
def gen_g2(): return gemm_kernel('g2')

KERNELS = [('p1_kernel', gen_p1, (256,1,1), (256,1,1)), ('p2_kernel', gen_p2, (256,1,1), (256,1,1)), ('p3_kernel', gen_p3, (256,1,1), (256,1,1)),
 ('g1_kernel', gen_g1, (256,1,1), (512,1,1)), ('g2_kernel', gen_g2, (256,1,1), (512,1,1))]

def build_all(kernels=None):
    ks = []
    if kernels is None:
        kernels = KERNELS[:3] + [('gg_kernel', gen_gg, (256,1,1), (512,1,1))] if FUSE_GG else KERNELS
        if FUSE23: kernels = [kernels[0], ('p23_kernel', gen_p23, (256,1,1), (256,1,1))] + list(kernels[3:])
    for name, fn, grid, block in kernels:
        if W1PF and name in ('p2_kernel', 'p3_kernel'): block = (320, 1, 1)
        if FIRSTPF and name == 'p3_kernel': block = (320, 1, 1)
        k, nv, lds = fn()
        if ST_ALL:
            k.l = [ (x + ' ' + ST_ALL) if ('buffer_store' in x and 'sc1' not in x and 'sc0' not in x and ' nt' not in x) else x for x in k.l]
        if name.startswith('g'):
            if NO_DMA: k.l = [x for x in k.l if not ('offen lds' in x)]
            if NO_MFMA: k.l = [x for x in k.l if 'v_mfma' not in x]
            if NO_ADV: k.l = [x for x in k.l if not (x.strip().startswith('s_add_u32 s40, s40,') or x.strip().startswith('s_add_u32 s41, s41,'))]
            if NO_A: k.l = [x for x in k.l if not ('s[12:15]' in x and 'offen lds' in x)]
            if NO_B: k.l = [x for x in k.l if not ('s[8:11]' in x and 'offen lds' in x)]
            if NO_BAR: k.l = [x for x in k.l if 's_barrier' not in x]
            if NO_READ: k.l = [x for x in k.l if 'ds_read_b64_tr' not in x]
        ks.append((name, k, nv, lds, grid, block))
    hdr = open('sequential_preLN__spectral_gfnet__mixer_token_mlp__prompt.s.ref').read().split('; Override launch')[0]
    s = hdr
    for name, k, nv, lds, grid, block in ks:
        s += f"; @launch kernel={name} grid=({grid[0]},{grid[1]},{grid[2]}) block=({block[0]},{block[1]},{block[2]}) lds={lds}\n"
    s += '.amdgcn_target "amdgcn-amd-amdhsa--gfx950"\n.text\n'
    for name, k, nv, lds, grid, block in ks: s += k.text()
    s += 'L_text_end:\n'
    s += '.section .rodata,"a"\n'
    for name, k, nv, lds, grid, block in ks: s += descriptor(name, nv)
    return s, ks

if __name__ == '__main__':
    s, ks = build_all()
    open(sys.argv[1] if len(sys.argv) > 1 else 'out.s', 'w').write(s)
    print('written', len(s), 'bytes')
```

```python
import sys, math, struct
sys.path.insert(0, 'work')
from asmlib import *

ZW_OFF = 0x0          ; ZW_SIZE = 257*32768
ZD_OFF = 0x0 ; WB_OFF = 0x480000
VB_OFF = 0x900000     ; VB_BLK = 256*64
H_OFF  = 0xE00000
HN_OFF = 0x1200000
GT_OFF = 0x1600000
BAR_OFF = 0x2810000
WS_USED = 0x1D00000
S, D, F = 2048, 1024, 3584

def f32(x):
    return '0x%08x' % struct.unpack('<I', struct.pack('<f', x))[0]

CVT = 'v_cvt_pk_bf16_f32'
STAMP = False
NO_DMA = False
NO_MFMA = False
NO_READ = False
NO_BAR = False
NO_ADV = False
NO_A = False
NO_B = False
STAMP_OFF = 0x3000000
KIDX = {'p1':0,'p2':1,'p3':2,'g1':3,'g2':4}
NMARK = 8
def mark(k, i):
    if STAMP and not (LOOPSTAMP and k.name.startswith('g') and 1 <= i <= 4): k(f"s_memrealtime s[{64+2*i}:{65+2*i}]")
def stamp_begin(k):
    if STAMP:
        for i in range(1, NMARK): k(f"s_mov_b64 s[{64+2*i}:{65+2*i}], 0")
        k("s_memrealtime s[64:65]")
        k("s_memtime s[94:95]")
def stamp_end(k, tag, tid=0, slot=0, sfx=''):
    if not STAMP: return
    mark(k, 6)
    k("s_waitcnt vmcnt(0) lgkmcnt(0)")
    mark(k, 7)
    k("s_memtime s[84:85]")
    k("s_load_dwordx2 s[88:89], s[0:1], 80")
    k("s_waitcnt lgkmcnt(0)")
    k(f"s_add_u32 s88, s88, {STAMP_OFF + KIDX[tag]*65536}")
    k("s_addc_u32 s89, s89, 0")
    k(f"s_add_u32 s87, s2, {slot}")
    k("s_lshl_b32 s87, s87, 7")
    k("v_mov_b32 v8, s87")
    k(f"v_cmp_eq_u32 vcc, {tid}, v0" if tid <= 64 else f"v_cmp_eq_u32 vcc, {hex(tid)}, v0")
    k("s_and_saveexec_b64 s[86:87], vcc")
    k(f"s_cbranch_execz L_{tag}_nostamp{sfx}")
    for i in range(0, NMARK, 2):
        for j in range(4): k(f"v_mov_b32 v{4+j}, s{64+2*i+j}")
        k(f"global_store_dwordx4 v8, v[4:7], s[88:89] offset:{8*i}")
        k("s_nop 1")
    k("v_mov_b32 v4, s94"); k("v_mov_b32 v5, s95"); k("v_mov_b32 v6, s84"); k("v_mov_b32 v7, s85")
    k("global_store_dwordx4 v8, v[4:7], s[88:89] offset:64")
    k("s_getreg_b32 s84, hwreg(HW_REG_XCC_ID, 0, 4)")
    k("s_nop 1")
    k("v_mov_b32 v4, s84")
    k("global_store_dword v8, v4, s[88:89] offset:80")
    k(f"L_{tag}_nostamp{sfx}:")

MF32 = 'v_mfma_f32_32x32x16_bf16'

CODEPF = 1
W1PF = 0
W1PF0 = 0
W1L2 = 0
ST_FLAGS = ''
ST_ALL = ''
ST_P1 = 'sc1'
ST_P2 = 'sc1'
ST_P3 = 'sc1'
ST_G1 = 'sc1'
ST_G2 = 'nt'
OUT_TOUCH = 0
def code_prefetch(k, tag, first_label, last_label, vtmp, stmp, nwaves_cond=None):
    if not CODEPF: return
    k(f"s_getpc_b64 s[{stmp}:{stmp+1}]")
    k(f"L_{tag}_pc:")
    k(f"s_add_u32 s{stmp}, s{stmp}, {first_label}-L_{tag}_pc")
    k(f"s_addc_u32 s{stmp+1}, s{stmp+1}, 0")

WS_BASE = 0
def srd(k, s, base, size, off=0):
    if base == 26: off += WS_BASE
    if off:
        k(f"s_add_u32 s{s}, s{base}, {hex(off)}")
        k(f"s_addc_u32 s{s+1}, s{base+1}, 0")
    else:
        k(f"s_mov_b32 s{s}, s{base}")
        k(f"s_mov_b32 s{s+1}, s{base+1}")
    k(f"s_mov_b32 s{s+2}, {hex(size)}")
    k(f"s_mov_b32 s{s+3}, 0x20000")

SEQ = [(r, c) for r in range(4) for c in range(4)]

def rot_setup(k, vA, t):
    k(f"v_mul_f32 v{t+4}, {f32(5.0)}, v{vA}")
    k(f"v_cos_f32 v{t}, v{vA}")
    k(f"v_sin_f32 v{t+1}, v{vA}")
    k(f"v_cos_f32 v{t+2}, v{t+4}")
    k(f"v_sin_f32 v{t+3}, v{t+4}")

def rot(k, dst, src, st, tmp, sign):
    k(f"v_pk_mul_f32 {vr(tmp,2)}, {vr(src,2)}, {vr(st,2)} op_sel_hi:[1,0]")
    neg = "neg_lo:[0,1,0]" if sign > 0 else "neg_hi:[0,1,0]"
    k(f"v_pk_fma_f32 {vr(dst,2)}, {vr(src,2)}, {vr(st,2)}, {vr(tmp,2)} op_sel:[1,1,0] op_sel_hi:[0,1,1] {neg}")

def gen_matrix(k, Mr, Mi, vA, vB, t):
    rot_setup(k, vA, t)
    cur = [t+6, t+8]
    k(f"v_cos_f32 v{cur[0]}, v{vB}")
    k(f"v_sin_f32 v{cur[0]+1}, v{vB}")
    k("s_nop 0")
    for i, (r, c) in enumerate(SEQ):
        a_, b_ = cur[i % 2], cur[(i+1) % 2]
        if i < 15: rot(k, b_, a_, t+2 if c == 3 else t, t+4, +1)
        k(f"{CVT} v{Mr+i}, v{a_}, v{a_+1}")
        k(f"{CVT} v{Mi+i}, -v{a_+1}, v{a_}")

def gen_twiddle(k, tw, vA, vB, t, scale=None):
    rot_setup(k, vA, t)
    k(f"v_cos_f32 v{tw}, v{vB}")
    k(f"v_sin_f32_e64 v{tw+1}, -v{vB}")
    if scale is not None:
        k(f"v_mul_f32 v{tw}, {f32(scale)}, v{tw}")
        k(f"v_mul_f32 v{tw+1}, {f32(scale)}, v{tw+1}")
    else: k("s_nop 0")
    for i, (r, c) in enumerate(SEQ):
        if i < 15: rot(k, tw+2*(i+1), tw+2*i, t+2 if c == 3 else t, t+4, -1)

def stage(k, typ, Dr, Di, data, Mr, Mi, first=True):
    for r in range(4):
        for (Dx, M) in ((Dr, Mr), (Di, Mi)):
            c = '0' if (r == 0 and first) else vr(Dx, 16)
            if typ == 'A': k(f"{MF32} {vr(Dx,16)}, {vr(data+4*r,4)}, {vr(M+4*r,4)}, {c}")
            else:          k(f"{MF32} {vr(Dx,16)}, {vr(M+4*r,4)}, {vr(data+4*r,4)}, {c}")

def cmul_pack(k, Dr, Di, w, out, t, conj=False):
    for j in range(16):
        o = t + 2*(j % 4); jp = j & ~1; x = j & 1
        k(f"v_pk_mul_f32 {vr(o,2)}, {vr(w+2*j,2)}, {vr(Dr+jp,2)} op_sel:[0,{x}] op_sel_hi:[1,{x}]")
        k(f"v_pk_fma_f32 {vr(o,2)}, {vr(w+2*j,2)}, {vr(Di+jp,2)}, {vr(o,2)} op_sel:[1,{x},0] op_sel_hi:[0,{x},1] neg_lo:[1,0,0]")
        if j >= 1:
            po = t + 2*((j-1) % 4); n = '-' if conj else ''
            k(f"{CVT} v{out+j-1}, v{po}, {n}v{po+1}")
    po = t + 2*(15 % 4); n = '-' if conj else ''
    k(f"{CVT} v{out+15}, v{po}, {n}v{po+1}")

def wave_reduce2(k, a, b):
    for m in ("quad_perm:[1,0,3,2] row_mask:0xf", "quad_perm:[2,3,0,1] row_mask:0xf", "row_half_mirror row_mask:0xf",
              "row_mirror row_mask:0xf", "row_bcast:15 row_mask:0xa", "row_bcast:31 row_mask:0xc"):
        k(f"v_add_f32_dpp v{a}, v{a}, v{a} {m} bank_mask:0xf")
        k(f"v_add_f32_dpp v{b}, v{b}, v{b} {m} bank_mask:0xf")

def tree_sum(k, X, n, t, op='add'):
    acc = [t, t+2, t+4, t+6]
    for i in range(4):
        k(f"v_pk_add_f32 {vr(acc[i],2)}, {vr(X+2*i,2)}, {vr(X+2*(i+4),2)}")
    for i in range(8, n):
        k(f"v_pk_add_f32 {vr(acc[i%4],2)}, {vr(acc[i%4],2)}, {vr(X+2*i,2)}")
    k(f"v_pk_add_f32 {vr(acc[0],2)}, {vr(acc[0],2)}, {vr(acc[1],2)}")
    k(f"v_pk_add_f32 {vr(acc[2],2)}, {vr(acc[2],2)}, {vr(acc[3],2)}")
    k(f"v_pk_add_f32 {vr(acc[0],2)}, {vr(acc[0],2)}, {vr(acc[2],2)}")

def ln_scalars(k, t, twice=False):
    k(f"v_mul_f32 v{t}, {f32(1/1024)}, v{t}")
    k(f"v_mul_f32 v{t+1}, {f32(1/1024)}, v{t+1}")
    if twice:
        k(f"v_add_f32 v{t+2}, {f32(1e-5)}, v{t}")
        k(f"v_add_f32 v{t+3}, {f32(1e-5)}, v{t+1}")
        k(f"v_rsq_f32 v{t+2}, v{t+2}")
        k(f"v_rsq_f32 v{t+3}, v{t+3}")
        k("s_nop 0")
        k(f"v_mul_f32 v{t}, v{t}, v{t+2}")
        k(f"v_mul_f32 v{t+1}, v{t+1}, v{t+3}")
        k(f"v_mul_f32 v{t}, v{t}, v{t+2}")
        k(f"v_mul_f32 v{t+1}, v{t+1}, v{t+3}")
        k(f"v_add_f32 v{t}, {f32(1e-5)}, v{t}")
        k(f"v_add_f32 v{t+1}, {f32(1e-5)}, v{t+1}")
        k(f"v_rsq_f32 v{t}, v{t}")
        k(f"v_rsq_f32 v{t+1}, v{t+1}")
        k("s_nop 0")
        k(f"v_mul_f32 v{t}, v{t}, v{t+2}")
        k(f"v_mul_f32 v{t+1}, v{t+1}, v{t+3}")
        k(f"v_mul_f32 v{t+12}, v{t+12}, v{t}")
        k(f"v_mul_f32 v{t+13}, v{t+13}, v{t+1}")
        return
    if EMU_LN:
        k(f"{CVT} v{t+2}, v{t}, v{t+1}")
        k(f"v_lshlrev_b32 v{t}, 16, v{t+2}")
        k(f"v_and_b32 v{t+1}, 0xffff0000, v{t+2}")
    k(f"v_add_f32 v{t}, {f32(1e-5)}, v{t}")
    k(f"v_add_f32 v{t+1}, {f32(1e-5)}, v{t+1}")
    if EMU_LN:
        k(f"{CVT} v{t+2}, v{t}, v{t+1}")
        k(f"v_lshlrev_b32 v{t}, 16, v{t+2}")
        k(f"v_and_b32 v{t+1}, 0xffff0000, v{t+2}")
        k(f"v_sqrt_f32 v{t}, v{t}")
        k(f"v_sqrt_f32 v{t+1}, v{t+1}")
        k(f"s_nop 0")
        k(f"{CVT} v{t+2}, v{t}, v{t+1}")
        k(f"v_lshlrev_b32 v{t}, 16, v{t+2}")
        k(f"v_and_b32 v{t+1}, 0xffff0000, v{t+2}")
        k(f"v_rcp_f32 v{t}, v{t}")
        k(f"v_rcp_f32 v{t+1}, v{t+1}")
    else:
        k(f"v_rsq_f32 v{t}, v{t}")
        k(f"v_rsq_f32 v{t+1}, v{t+1}")
    k(f"s_nop 0")
    k(f"v_mul_f32 v{t+12}, v{t+12}, v{t}")
    k(f"v_mul_f32 v{t+13}, v{t+13}, v{t+1}")

def ln_mean(k, t, sTmp):
    k(f"v_mul_f32 v{t}, {f32(1/1024)}, v{t}")
    k(f"v_mul_f32 v{t+1}, {f32(1/1024)}, v{t+1}")
    if EMU_LN:
        k(f"{CVT} v{t+2}, v{t}, v{t+1}")
        k(f"v_readlane_b32 s{sTmp}, v{t}, 63")
        k(f"v_readlane_b32 s{sTmp+1}, v{t+1}, 63")
        k(f"v_lshlrev_b32 v{t+12}, 16, v{t+2}")
        k(f"v_and_b32 v{t+13}, 0xffff0000, v{t+2}")
    else:
        k(f"v_mov_b32 v{t+12}, v{t}")
        k(f"v_mov_b32 v{t+13}, v{t+1}")
        k(f"v_readlane_b32 s{sTmp}, v{t}, 63")
        k(f"v_readlane_b32 s{sTmp+1}, v{t+1}, 63")

def ln_stats_xrow(k, X, t, sM, sR, sTmp):
    tree_sum(k, X, 16, t)
    wave_reduce2(k, t, t+1)
    ln_mean(k, t, sTmp)
    acc = [t, t+2]; tmp = [t+4, t+6, t+8, t+10]
    for i in range(16):
        d = tmp[i % 4]
        k(f"v_pk_add_f32 {vr(d,2)}, {vr(X+2*i,2)}, {sr(sTmp,2)} neg_lo:[0,1] neg_hi:[0,1]")
        a = acc[i % 2]
        if i < 2: k(f"v_pk_mul_f32 {vr(a,2)}, {vr(d,2)}, {vr(d,2)}")
        else:     k(f"v_pk_fma_f32 {vr(a,2)}, {vr(d,2)}, {vr(d,2)}, {vr(a,2)}")
    k(f"v_pk_add_f32 {vr(t,2)}, {vr(t,2)}, {vr(t+2,2)}")
    wave_reduce2(k, t, t+1)
    ln_scalars(k, t)
    k(f"v_readlane_b32 s{sR}, v{t}, 63")
    k(f"v_readlane_b32 s{sR+1}, v{t+1}, 63")
    k(f"v_readlane_b32 s{sM}, v{t+12}, 63")
    k(f"v_readlane_b32 s{sM+1}, v{t+13}, 63")

def gen_p1():
    k = Kern('p1_kernel')
    k("s_cmp_ge_u32 s2, 256")
    k("s_cbranch_scc1 L_p1_end")
    stamp_begin(k)
    k("s_load_dwordx4 s[4:7], s[0:1], 0")
    k("s_load_dwordx2 s[24:25], s[0:1], 16")
    k("s_load_dwordx2 s[60:61], s[0:1], 32")
    k("s_load_dwordx2 s[26:27], s[0:1], 80")
    TID, LANE = 0, 1
    if CODEPF:
        k("s_getpc_b64 s[52:53]")
        k("L_p1_pc:")
        k("s_sub_u32 s52, s52, L_p1_pc-p1_kernel")
        k("s_subb_u32 s53, s53, 0")
        k("s_lshr_b32 s54, s2, 3")
        k("s_mul_i32 s54, s54, (L_text_end-p1_kernel+4095)/4096")
        k("v_add_u32 v213, s54, v0")
        k("v_lshlrev_b32 v213, 7, v213")
        k("v_mov_b32 v211, s53")
        k("v_add_co_u32 v210, vcc, s52, v213")
        k("v_addc_co_u32 v211, vcc, 0, v211, vcc")
        k("v_cmp_gt_u32 vcc, (L_text_end-p1_kernel+4095)/4096, v0")
        k("s_and_saveexec_b64 s[54:55], vcc")
        k("s_cbranch_execz L_p1_cp0")
        k("v_cmp_gt_u32 vcc, L_text_end-p1_kernel, v213")
        k("s_and_b64 exec, exec, vcc")
        k("s_cbranch_execz L_p1_cp0")
        k("global_load_dword v212, v[210:211], off")
        k("L_p1_cp0:")
        k("s_mov_b64 exec, -1")
    k("v_and_b32 v1, 63, v0")
    k("v_lshrrev_b32 v2, 6, v0")
    k("v_readfirstlane_b32 s28, v2")
    k("s_lshr_b32 s29, s2, 5")
    k("s_lshl_b32 s29, s29, 2")
    k("s_and_b32 s30, s2, 31")
    k("s_add_u32 s31, s29, s28")
    k("s_lshl_b32 s31, s31, 5")
    k("s_add_u32 s31, s31, s30")
    k("s_lshl_b32 s31, s31, 11")
    k("s_add_u32 s32, s31, 0x200000")
    k("s_waitcnt lgkmcnt(0)")
    srd(k, 8, 4, S*D*2)
    srd(k, 12, 6, S*513*2)
    srd(k, 16, 24, S*513*2)
    srd(k, 20, 26, 257*16384, ZD_OFF)
    srd(k, 72 if False else 52, 26, 257*16384, WB_OFF) if False else None
    XL = 4
    if FUSE_GG or (FUSE23 and FILLPOS != 2):
        srd(k, 56, 26, 1024, BAR_OFF)
        k("s_cmp_lt_u32 s2, 8")
        k("s_cbranch_scc0 L_p1_nozb")
        k("s_lshl_b32 s33, s2, 7")
        k("v_mov_b32 v2, 0")
        k("v_cmp_eq_u32 vcc, 0, v0")
        k("s_and_saveexec_b64 s[34:35], vcc")
        k("s_cbranch_execz L_p1_nozb")
        k("buffer_store_dword v2, v2, s[56:59], s33 offen sc0 sc1")
        k("L_p1_nozb:")
        k("s_mov_b64 exec, -1")
    k("v_lshlrev_b32 v2, 4, v1")
    k(f"buffer_load_dwordx4 {vr(XL,4)}, v2, s[8:11], s31 offen {NT_X}")
    k(f"buffer_load_dwordx4 {vr(XL+4,4)}, v2, s[8:11], s31 offen offset:1024 {NT_X}")
    k(f"buffer_load_dwordx4 {vr(XL+8,4)}, v2, s[8:11], s32 offen {NT_X}")
    k(f"buffer_load_dwordx4 {vr(XL+12,4)}, v2, s[8:11], s32 offen offset:1024 {NT_X}")
    WL = 20
    def w_loads():
        k("v_lshlrev_b32 v220, 2, v0")
        k("s_lshl_b32 s33, s29, 6")
        k("s_lshl_b32 s34, s30, 1")
        k("s_add_u32 s33, s33, s34")
        k("s_mul_i32 s33, s33, 1026")
        for pi in range(2):
            for cc in range(4):
                off = (64*cc + pi)*1026
                k(f"s_add_u32 s34, s33, {off}")
                k(f"buffer_load_dword v{WL+4*pi+cc}, v220, s[12:15], s34 offen {NT_W}")
                k(f"buffer_load_dword v{WL+8+4*pi+cc}, v220, s[16:19], s34 offen {NT_W}")
        WX = 200
        k("v_and_b32 v200, 3, v1")
        k("v_lshlrev_b32 v200, 6, v200")
        k("v_bfe_u32 v201, v1, 2, 1")
        k("v_add_u32 v200, v200, v201")
        k("v_mul_u32_u24 v200, 1026, v200")
        k("v_add_u32 v200, 1024, v200")
        k("v_and_b32 v226, 3, v1")
        k("v_lshlrev_b32 v226, 6, v226")
        k("v_add_u32 v226, v226, v201")
        k("s_lshl_b32 s49, s29, 6")
        k("s_lshl_b32 s50, s30, 1")
        k("s_add_u32 s49, s49, s50")
        k("v_add_u32 v226, s49, v226")
        k("v_sub_u32 v226, 2048, v226")
        k("v_and_b32 v226, 2047, v226")
        k("v_mul_u32_u24 v226, 1026, v226")
        k("v_subrev_u32 v227, 1024, v200")
        k("v_cmp_gt_u32 vcc, 8, v0")
        k("s_and_saveexec_b64 s[36:37], vcc")
        k("s_cbranch_execz L_p1_nox")
        k("buffer_load_ushort v202, v200, s[12:15], s33 offen")
        k("buffer_load_ushort v203, v200, s[16:19], s33 offen")
        k("buffer_load_ushort v228, v227, s[12:15], s33 offen")
        k("buffer_load_ushort v229, v227, s[16:19], s33 offen")
        k("buffer_load_ushort v230, v226, s[12:15], 0 offen")
        k("buffer_load_ushort v231, v226, s[16:19], 0 offen")
        k("buffer_load_ushort v232, v226, s[12:15], 0 offen offset:1024")
        k("buffer_load_ushort v233, v226, s[16:19], 0 offen offset:1024")
        k("L_p1_nox:")
        k("s_mov_b64 exec, -1")
    if WEARLY == 1: w_loads()
    def vb_fill(reg):
        srd(k, 56, 26, 256*VB_BLK, VB_OFF)
        for i in range(4): k(f"v_mov_b32 v{reg+i}, -1")
        k("v_lshlrev_b32 v234, 4, v0")
        k("s_lshl_b32 s51, s2, 14")
        for j in range(4):
            k(f"buffer_store_dwordx4 {vr(reg,4)}, v234, s[56:59], s51 offen sc0 sc1")
            if j < 3: k("s_add_u32 s51, s51, 4096")
    if FUSE23 and FILLPOS == 2 and FILL1 == 0: vb_fill(36)
    WL = 20
    Mr, Mi, TW = 36, 52, 68
    XF, DR, DI, OP, T = 100, 132, 148, 164, 180
    k("v_and_b32 v2, 31, v1")
    k("v_cvt_f32_u32 v2, v2")
    k("v_lshrrev_b32 v3, 5, v1")
    k("v_lshlrev_b32 v3, 2, v3")
    k("v_cvt_f32_u32 v3, v3")
    k(f"v_mul_f32 v204, {f32(1/32)}, v2")
    k("v_mul_f32 v205, v204, v3")
    gen_matrix(k, Mr, Mi, 204, 205, T)
    k(f"v_mul_f32 v204, {f32(1/1024)}, v2")
    k("v_mul_f32 v205, v204, v3")
    gen_twiddle(k, TW, 204, 205, T)
    STG = 16384; WST = STG + 257*64 + 64
    k("s_lshr_b32 s44, s2, 2")
    k("s_and_b32 s44, s44, 3")
    k("s_mov_b32 s45, 0x05040100")
    k("s_mov_b32 s46, 0x07060302")
    k("s_lshl_b32 s47, s2, 6")
    k("s_lshl_b32 s48, s28, 2")
    k(f"s_add_u32 s48, s48, {STG}")
    B1, B2, AWJ, AX, ARD, AGL, AT1, AT2, AWR, AWG = 206, 207, 208, 209, 216, 217, 218, 219, 221, 222
    k("v_and_b32 v2, 31, v1")
    k("v_lshrrev_b32 v3, 5, v1")
    k("v_and_b32 v204, 1, v2")
    k("v_lshrrev_b32 v205, 1, v2")
    k(f"v_xor_b32 v{B1}, s44, v204")
    k(f"v_lshlrev_b32 v{B1}, 4, v{B1}")
    k(f"v_lshl_add_u32 v{B1}, v205, 6, v{B1}")
    k(f"v_lshl_add_u32 v{B1}, v3, 12, v{B1}")
    k(f"v_add_u32 v{B1}, s48, v{B1}")
    k("v_add_u32 v205, 1, v2")
    k("v_lshrrev_b32 v205, 1, v205")
    k("v_add_u32 v204, 2, v204")
    k(f"v_xor_b32 v{B2}, s44, v204")
    k(f"v_lshlrev_b32 v{B2}, 4, v{B2}")
    k("v_lshlrev_b32 v205, 6, v205")
    k(f"v_sub_u32 v{B2}, v{B2}, v205")
    k("v_lshlrev_b32 v205, 12, v3")
    k(f"v_sub_u32 v{B2}, v{B2}, v205")
    k(f"v_add_u32 v{B2}, s48, v{B2}")
    k("s_lshl_b32 s49, s28, 12")
    k(f"s_add_u32 s49, s49, {WST}")
    k("v_bfe_u32 v204, v1, 1, 2")
    k("v_xor_b32 v204, s44, v204")
    k("v_lshlrev_b32 v204, 4, v204")
    k(f"v_lshl_add_u32 v{AWJ}, v1, 6, v204")
    k(f"v_add_u32 v{AWJ}, s49, v{AWJ}")
    k("v_lshrrev_b32 v204, 2, v1")
    k("v_and_b32 v205, 3, v1")
    k(f"v_bfe_u32 v{AT1}, v204, 1, 2")
    k(f"v_xor_b32 v{AT1}, v{AT1}, v205")
    k(f"v_lshlrev_b32 v{AT1}, 4, v{AT1}")
    k(f"v_lshl_add_u32 v{AWR}, v204, 6, v{AT1}")
    k(f"v_add_u32 v{AWR}, s49, v{AWR}")
    k("s_lshl_b32 s49, s28, 6")
    k("v_add_u32 v204, s49, v204")
    k("v_lshlrev_b32 v204, 14, v204")
    k(f"v_lshl_add_u32 v{AWG}, v205, 4, v204")
    k("v_bfe_u32 v204, v1, 2, 1")
    k("v_xor_b32 v204, s44, v204")
    k("v_lshlrev_b32 v204, 4, v204")
    k("v_and_b32 v205, 3, v1")
    k(f"v_lshl_add_u32 v{AX}, v205, 2, v204")
    APW = 223
    k(f"v_add_u32 v{APW}, {WST}, v{AX}")
    k(f"v_lshlrev_b32 v{ARD}, 4, v0")
    k(f"v_add_u32 v{ARD}, {STG}, v{ARD}")
    k("v_lshrrev_b32 v204, 2, v0")
    k("v_lshlrev_b32 v204, 14, v204")
    k("v_and_b32 v205, 3, v0")
    k(f"v_lshl_add_u32 v{AGL}, v205, 4, v204")
    k("s_xor_b32 s49, s44, 2")
    k("s_lshl_b32 s49, s49, 4")
    k("s_add_u32 s49, s49, s48")
    k("s_lshl_b32 s50, s44, 4")
    k("s_add_u32 s50, s50, s48")
    k(f"v_mov_b32 v{AT1}, s49")
    k(f"v_mov_b32 v{AT2}, s50")
    k("s_lshl_b32 s36, s28, 12")
    k("v_lshlrev_b32 v2, 5, v1")
    k("v_add_u32 v2, s36, v2")
    k("v_and_b32 v3, 31, v1")
    k("v_lshlrev_b32 v3, 2, v3")
    k("v_lshrrev_b32 v204, 5, v1")
    k("v_lshlrev_b32 v204, 9, v204")
    k("v_add3_u32 v3, v3, v204, s36")
    k("s_mov_b32 s35, 0xffff0000")
    if WEARLY == 2: w_loads()
    mark(k, 1)
    k(("s_waitcnt vmcnt(20)" if (FUSE23 and FILLPOS == 2 and FILL1 == 0) else "s_waitcnt vmcnt(16)") if WEARLY else "s_waitcnt vmcnt(0)")
    mark(k, 2)
    if FUSE23 and FILLPOS == 2 and FILL1 == 1: vb_fill(180)
    if not WEARLY: w_loads()
    for i in range(16):
        for row in range(2):
            src = XL + 8*row + (i >> 1)
            if i % 2 == 0: k(f"v_lshlrev_b32 v{XF+2*i+row}, 16, v{src}")
            else:          k(f"v_and_b32 v{XF+2*i+row}, s35, v{src}")
    ln_stats_xrow(k, XF, T, 38, 40, 42)
    k(f"v_mov_b32 v{T+8}, s40"); k(f"v_mov_b32 v{T+9}, s41")
    k(f"v_mov_b32 v{T+10}, s38"); k(f"v_mov_b32 v{T+11}, s39")
    for i in range(16):
        d = T + 2*(i % 4)
        k(f"v_pk_fma_f32 {vr(d,2)}, {vr(XF+2*i,2)}, {vr(T+8,2)}, {vr(T+10,2)} neg_lo:[0,0,1] neg_hi:[0,0,1]")
        k(f"{CVT} v{OP+i}, v{d}, v{d+1}")
    k(f"ds_write_b128 v2, {vr(OP,4)}")
    k(f"ds_write_b128 v2, {vr(OP+4,4)} offset:16")
    k(f"ds_write_b128 v2, {vr(OP+8,4)} offset:2048")
    k(f"ds_write_b128 v2, {vr(OP+12,4)} offset:2064")
    k("s_waitcnt lgkmcnt(0)")
    for i, (r, c) in enumerate(SEQ):
        k(f"ds_read_b32 v{OP+i}, v3 offset:{(8*r+c)*128}")
    mark(k, 3)
    k("s_waitcnt lgkmcnt(0)")
    stage(k, 'A', DR, DI, OP, Mr, Mi)
    def w_job():
        srd(k, 56, 26, 257*16384, WB_OFF)
        k("s_waitcnt vmcnt(4)" if WJOB == 2 else "s_waitcnt vmcnt(0)")
        WO = XF
        for e in range(2):
            for pi in range(2):
                for cc in range(4):
                    k(f"v_perm_b32 v{WO+4*(2*e+pi)+cc}, v{WL+8+4*pi+cc}, v{WL+4*pi+cc}, s{45+e}")
        for sl in range(4):
            if sl: k(f"v_xor_b32 v204, {16*sl}, v{AWJ}")
            k(f"ds_write_b128 v{204 if sl else AWJ}, {vr(WO+4*sl,4)}")
        k("s_add_u32 s49, s47, 0x400000")
        k("v_cmp_gt_u32 vcc, 8, v0")
        k("s_and_saveexec_b64 s[36:37], vcc")
        k("s_cbranch_execz L_p1_nox2")
        for r_ in (202, 203, 228, 229, 230, 231, 232, 233): k(f"v_lshlrev_b32 v{r_}, 16, v{r_}")
        k("v_add_f32 v228, v228, v230")
        k("v_sub_f32 v229, v229, v231")
        k("v_add_f32 v202, v202, v232")
        k("v_sub_f32 v203, v203, v233")
        k("v_add_f32 v230, v228, v202")
        k("v_add_f32 v231, v229, v203")
        k("v_sub_f32 v232, v228, v202")
        k("v_sub_f32 v233, v229, v203")
        for r_ in (230, 231, 232, 233): k(f"v_mul_f32 v{r_}, 0x3e800000, v{r_}")
        k(f"{CVT} v202, v230, v231")
        k(f"{CVT} v203, v232, v233")
        k(f"ds_write_b32 v{APW}, v202")
        k(f"buffer_store_dword v203, v{AX}, s[56:59], s49 offen {ST_P1}")
        k("L_p1_nox2:")
        k("s_mov_b64 exec, -1")
        k("s_waitcnt lgkmcnt(0)")
        for j in range(4): k(f"ds_read_b128 {vr(WO+16+4*j,4)}, v{AWR} offset:{1024*j}")
        k("s_mov_b32 s49, s47")
        for j in range(4):
            k(f"s_waitcnt lgkmcnt({3-j})")
            k(f"buffer_store_dwordx4 {vr(WO+16+4*j,4)}, v{AWG}, s[56:59], s49 offen {ST_P1}")
            if j < 3: k(f"s_add_u32 s49, s49, {16*16384}")
    if WJOB == 0: w_job()
    cmul_pack(k, DR, DI, TW, OP, T)
    stage(k, 'B', DR, DI, OP, Mr, Mi)
    mark(k, 4)
    for i, (r, c) in enumerate(SEQ):
        if r < 2: k(f"{CVT} v{OP+i}, v{DR+i}, v{DI+i}")
        else:     k(f"{CVT} v{OP+i}, v{DI+i}, v{DR+i}")
        if r < 2: k(f"ds_write_b32 v{B1}, v{OP+i} offset:{(8*r+c)*1024}")
        else:     k(f"ds_write_b32 v{B2}, v{OP+i} offset:{(32-8*r-c)*1024}")
    k(f"v_sub_f32 v{T+2}, v{DR}, v{DI+8}")
    k(f"v_add_f32 v{T+3}, v{DI}, v{DR+8}")
    k(f"v_sub_f32 v{T+4}, v{DI}, v{DR+8}")
    k(f"v_add_f32 v{T+5}, v{DR}, v{DI+8}")
    k(f"{CVT} v{T}, v{T+4}, v{T+5}")
    k(f"{CVT} v{T+1}, v{T+2}, v{T+3}")
    k("s_mov_b64 exec, 1")
    k(f"ds_write_b32 v{AT1}, v{T}")
    k(f"ds_write_b32 v{AT2}, v{T+1}")
    k("s_mov_b64 exec, -1")
    if WJOB == 1: w_job()
    k("s_waitcnt lgkmcnt(0)")
    k("s_barrier")
    RO = XF
    for j in range(4):
        k(f"ds_read_b128 {vr(RO+4*j,4)}, v{ARD} offset:{4096*j}")
    for j in range(4):
        k(f"s_waitcnt lgkmcnt({3-j})")
        k(f"buffer_store_dwordx4 {vr(RO+4*j,4)}, v{AGL}, s[20:23], s47 offen {ST_P1}")
        if j < 3: k("s_add_u32 s47, s47, 0x100000")
    if WJOB == 2:
        k("s_sub_u32 s47, s47, 0x300000")
        w_job()
    stamp_end(k, 'p1')
    k("L_p1_end:")
    k("s_endpgm")
    k("L_p1_endc:")
    return k, 236, WST + 16384

def pf_wave(k, tag, first_line):
    if not W1PF: return
    k("s_cmp_eq_u32 s28, 4")
    k(f"s_cbranch_scc0 L_{tag}_nopf")
    k("s_waitcnt lgkmcnt(0)")
    srd(k, 16, 24, S*F*2)
    k(f"s_mul_i32 s33, s2, {W1PF*128}")
    k(f"s_add_u32 s33, s33, {first_line*128}")
    k("v_lshlrev_b32 v3, 7, v1")
    for i in range(W1PF//64):
        k("buffer_load_dword v4, v3, s[16:19], s33 offen")
        k("s_add_u32 s33, s33, 8192")
    k("s_endpgm")
    k(f"L_{tag}_nopf:")

def first_tiles_wave(k):
    if not FIRSTPF: return
    k("s_cmp_eq_u32 s28, 4")
    k("s_cbranch_scc0 L_p3_noft")
    k("s_waitcnt lgkmcnt(0)")
    srd(k, 16, 24, S*F*2)
    k("s_lshr_b32 s33, s2, 6")
    k("s_lshl_b32 s33, s33, 3")
    k("s_lshr_b32 s33, 0x0400031f, s33")
    k("s_and_b32 s33, s33, 31")
    k("s_and_b32 s34, s2, 1")
    k("s_lshl_b32 s34, s34, 4")
    k("s_add_u32 s33, s33, s34")
    k("s_and_b32 s33, s33, 31")
    k(f"s_mul_i32 s33, s33, {64*7168}")
    k("s_bfe_u32 s34, s2, 0x20001")
    k("s_mul_i32 s34, s34, 1792")
    k("s_add_u32 s33, s33, s34")
    k("s_bfe_u32 s34, s2, 0x30003")
    k("s_mul_i32 s34, s34, 112")
    for h in range(2):
        k(f"v_add_u32 v2, {64*h}, v1")
        k("v_min_u32 v2, 111, v2")
        k("v_add_u32 v2, s34, v2")
        k("v_mul_u32_u24 v3, 4682, v2")
        k("v_lshrrev_b32 v3, 16, v3")
        k("v_mul_u32_u24 v4, 14, v3")
        k("v_sub_u32 v4, v2, v4")
        k("v_mul_u32_u24 v3, 7168, v3")
        k("v_lshl_add_u32 v3, v4, 7, v3")
        k(f"buffer_load_dword v{5+h}, v3, s[16:19], s33 offen")
    k("s_endpgm")
    k("L_p3_noft:")

def next_code_pf(k, tag, first, last, nwg, vt, st, lane):
    if not CODEPF2: return
    per = f"(({last}-{first})/128+{nwg})/{nwg}"
    k(f"s_getpc_b64 s[{st}:{st+1}]")
    k(f"L_{tag}_npc:")
    k(f"s_add_u32 s{st}, s{st}, {first}-L_{tag}_npc")
    k(f"s_addc_u32 s{st+1}, s{st+1}, 0")
    k(f"s_lshr_b32 s{st+2}, s2, 3")
    k(f"s_mul_i32 s{st+2}, s{st+2}, {per}")
    k(f"v_add_u32 v{vt+2}, s{st+2}, v{lane}")
    k(f"v_lshlrev_b32 v{vt+2}, 7, v{vt+2}")
    k(f"v_mov_b32 v{vt+1}, s{st+1}")
    k(f"v_add_co_u32 v{vt}, vcc, s{st}, v{vt+2}")
    k(f"v_addc_co_u32 v{vt+1}, vcc, 0, v{vt+1}, vcc")
    k(f"v_cmp_gt_u32 vcc, {per}, v{lane}")
    k(f"s_mov_b64 exec, vcc")
    k(f"v_cmp_gt_u32 vcc, {last}-{first}, v{vt+2}")
    k(f"s_and_b64 exec, exec, vcc")
    k(f"s_cbranch_execz L_{tag}_npe")
    k(f"global_load_dword v{vt+3}, v[{vt}:{vt+1}], off")
    k(f"L_{tag}_npe:")
    k("s_mov_b64 exec, -1")

def gen_p2(fused=False):
    k = Kern('p23_kernel' if fused else 'p2_kernel')
    k("s_cmp_ge_u32 s2, 256")
    k("s_cbranch_scc1 L_p2_end")
    stamp_begin(k)
    k("s_load_dwordx2 s[26:27], s[0:1], 80")
    k("s_load_dwordx2 s[24:25], s[0:1], 32")
    if fused: k("s_load_dwordx2 s[4:5], s[0:1], 0")
    k("v_and_b32 v1, 63, v0")
    k("v_lshrrev_b32 v2, 6, v0")
    k("v_readfirstlane_b32 s28, v2")
    pf_wave(k, 'p2', W1PF0)
    k("v_lshlrev_b32 v2, 4, v1")
    k("s_lshr_b32 s29, s28, 1")
    k("s_and_b32 s30, s28, 1")
    k("s_lshl_b32 s31, s2, 14")
    k("s_lshl_b32 s32, s28, 12")
    k("s_add_u32 s31, s31, s32")
    k("s_waitcnt lgkmcnt(0)")
    srd(k, 8, 26, 257*16384, ZD_OFF)
    srd(k, 20, 26, 257*16384, WB_OFF)
    srd(k, 12, 26, 256*VB_BLK, VB_OFF)
    for i in range(4):
        k(f"s_add_u32 m0, s32, {1024*i}")
        k(f"s_add_u32 s33, s31, {1024*i}")
        k(f"buffer_load_dwordx4 v2, s[8:11], s33 offen lds")
    k("s_or_b32 s46, s2, s29")
    k("s_cmp_eq_u32 s46, 0")
    k("s_cbranch_scc0 L_p2_noq")
    k("v_bfe_u32 v3, v1, 2, 2")
    k("v_xor_b32 v3, s30, v3")
    k("v_lshlrev_b32 v3, 4, v3")
    k("v_lshl_add_u32 v3, v1, 6, v3")
    k("s_lshl_b32 s47, s30, 12")
    for r in range(4):
        k(f"s_add_u32 m0, s47, {32768+1024*r}")
        k(f"s_mov_b32 s33, {0x400000+4096*r}")
        k("buffer_load_dwordx4 v3, s[20:23], s33 offen lds")
    k("L_p2_noq:")
    def own_fill(reg):
        for i in range(4): k(f"v_mov_b32 v{reg+i}, -1")
        k("v_lshlrev_b32 v3, 4, v0")
        k("s_lshl_b32 s33, s2, 14")
        for j in range(4):
            k(f"buffer_store_dwordx4 {vr(reg,4)}, v3, s[12:15], s33 offen sc0 sc1")
            if j < 3: k("s_add_u32 s33, s33, 4096")
    if fused and FILLPOS != 2: srd(k, 16, 26, 1024, BAR_OFF)
    if fused and FILLPOS == 0: own_fill(4)
    Z1, Z2 = 4, 20
    M1r, M1i, MFr, MFi, MIr, MIi = 36, 52, 68, 84, 100, 116
    T1, T2 = 132, 164
    DR, DI, T = 196, 212, 228
    A, B, J, H4, PI = 244, 245, 246, 247, 248
    k(f"v_and_b32 v{J}, 31, v1")
    k(f"v_cvt_f32_u32 v{J}, v{J}")
    k(f"v_lshrrev_b32 v{H4}, 5, v1")
    k(f"v_lshlrev_b32 v{H4}, 2, v{H4}")
    k(f"v_cvt_f32_u32 v{H4}, v{H4}")
    k(f"v_mov_b32 v{PI}, s30")
    k(f"v_cvt_f32_u32 v{PI}, v{PI}")
    k(f"v_mul_f32 v{A}, {f32(1/32)}, v{J}")
    k(f"v_mul_f32 v{B}, v{A}, v{H4}")
    gen_matrix(k, MFr, MFi, A, B, T)
    k(f"v_fma_f32 v{A}, v{J}, 2.0, v{PI}")
    k(f"v_mul_f32 v{A}, {f32(1/64)}, v{A}")
    k(f"v_mul_f32 v{B}, v{A}, v{H4}")
    gen_matrix(k, M1r, M1i, A, B, T)
    k("s_lshl_b32 s33, s30, 4")
    k(f"v_and_b32 v{T}, 31, v1")
    k(f"v_xor_b32 v{T}, s33, v{T}")
    k(f"v_cvt_f32_u32 v{T}, v{T}")
    k(f"v_mul_f32 v{A}, {f32(1/32)}, v{T}")
    k(f"v_mul_f32 v{B}, v{A}, v{H4}")
    k(f"v_mul_f32 v{T}, {f32(1/64)}, v{T}")
    k(f"v_fma_f32 v{B}, v{T}, v{PI}, v{B}")
    gen_matrix(k, MIr, MIi, A, B, T)
    k(f"v_fma_f32 v{A}, v{J}, 2.0, v{PI}")
    k(f"v_mul_f32 v{A}, {f32(1/2048)}, v{A}")
    k(f"v_mov_b32 v{T}, {f32(0.125)}")
    k(f"v_mul_f32 v{T+1}, {f32(-0.25)}, v{PI}")
    k(f"v_add_f32 v{T}, v{T}, v{T+1}")
    k(f"v_fma_f32 v{B}, v{A}, v{H4}, v{T}")
    gen_twiddle(k, T1, A, B, T)
    k(f"v_mul_f32 v{A}, {f32(1/1024)}, v{J}")
    k(f"v_mul_f32 v{B}, v{A}, v{H4}")
    k(f"v_mul_f32 v{T}, {f32(1/2048)}, v{J}")
    k(f"v_fma_f32 v{B}, v{T}, v{PI}, v{B}")
    gen_twiddle(k, T2, A, B, T)
    AZ1, AZ2, AW = 249, 250, 251
    k(f"v_bfe_u32 v{T}, v1, 2, 2")
    k(f"v_lshlrev_b32 v{T+1}, 6, v1")
    k(f"v_xor_b32 v{AZ1}, s29, v{T}")
    k(f"v_lshl_add_u32 v{AZ1}, v{AZ1}, 4, v{T+1}")
    k(f"v_xor_b32 v{AZ2}, 32, v{AZ1}")
    k("s_lshl_b32 s33, s29, 1")
    k("s_add_u32 s33, s33, s30")
    k(f"v_xor_b32 v{AW}, s33, v{T}")
    k(f"v_lshl_add_u32 v{AW}, v{AW}, 4, v{T+1}")
    k(f"v_add_u32 v{AW}, 16384, v{AW}")
    k("s_mul_i32 s34, s30, 0x80008000")
    k("s_mov_b32 s35, 0xffff0000")
    mark(k, 1)
    k("s_waitcnt vmcnt(4)" if (fused and FILLPOS == 0) else "s_waitcnt vmcnt(0)")
    for i in range(4):
        k(f"s_add_u32 m0, s32, {16384+1024*i}")
        k(f"s_add_u32 s33, s31, {1024*i}")
        k(f"buffer_load_dwordx4 v2, s[20:23], s33 offen lds")
    if fused and FILLPOS == 1: own_fill(DR)
    k("s_barrier")
    mark(k, 2)
    for r in range(4):
        k(f"ds_read_b128 {vr(Z1+4*r,4)}, v{AZ1} offset:{4096*r}")
        k(f"ds_read_b128 {vr(Z2+4*r,4)}, v{AZ2} offset:{4096*r}")
    k("s_waitcnt lgkmcnt(0)")
    for i in range(16):
        k(f"v_xor_b32 v{Z2+i}, s34, v{Z2+i}")
    stage(k, 'A', DR, DI, Z1, M1r, M1i, first=True)
    stage(k, 'A', DR, DI, Z2, M1r, M1i, first=False)
    OP = Z1
    cmul_pack(k, DR, DI, T1, OP, T)
    k("s_waitcnt vmcnt(0)")
    k("s_barrier")
    if fused and FILLPOS != 2:
        k("s_cmp_eq_u32 s28, 0")
        k("s_cbranch_scc0 L_p2_noarr")
        k("s_and_b32 s33, s2, 7")
        k("s_lshl_b32 s33, s33, 7")
        k("v_mov_b32 v249, 1")
        k("v_mov_b32 v250, 0")
        k("s_mov_b64 exec, 1")
        k("buffer_atomic_add v249, v250, s[16:19], s33 offen sc1")
        k("s_mov_b64 exec, -1")
        k("L_p2_noarr:")
    for r in range(4):
        k(f"ds_read_b128 {vr(Z2+4*r,4)}, v{AW} offset:{4096*r}")
    stage(k, 'B', DR, DI, OP, MFr, MFi)
    WP = M1r
    k("s_waitcnt lgkmcnt(0)")
    for i in range(16):
        k(f"v_lshlrev_b32 v{WP+2*i}, 16, v{Z2+i}")
        k(f"v_and_b32 v{WP+2*i+1}, s35, v{Z2+i}")
    k("s_or_b32 s46, s2, s29")
    k("s_cmp_eq_u32 s46, 0")
    k("s_cbranch_scc1 L_p2_spec")
    cmul_pack(k, DR, DI, WP, OP, T, conj=True)
    k("L_p2_specd:")
    stage(k, 'A', DR, DI, OP, MFr, MFi)
    cmul_pack(k, DR, DI, T2, OP, T)
    stage(k, 'B', DR, DI, OP, MIr, MIi)
    mark(k, 4)
    if fused and FILLPOS != 2:
        k("s_cmp_eq_u32 s28, 0")
        k("s_cbranch_scc0 L_p2_nochk0")
        k("v_and_b32 v249, 7, v1")
        k("v_lshlrev_b32 v249, 7, v249")
        k("buffer_load_dword v250, v249, s[16:19], 0 offen sc0 sc1")
        k("L_p2_nochk0:")
    XCH, STG = 32768, 49152
    AX = 252
    k("s_lshl_b32 s36, s28, 12")
    k(f"s_add_u32 s36, s36, {XCH}")
    k(f"v_lshl_add_u32 v{AX}, v1, 4, s36")
    k(f"ds_write_b128 v{AX}, {vr(DR+8,4)}")
    k(f"ds_write_b128 v{AX}, {vr(DR+12,4)} offset:1024")
    k(f"ds_write_b128 v{AX}, {vr(DI+8,4)} offset:2048")
    k(f"ds_write_b128 v{AX}, {vr(DI+12,4)} offset:3072")
    k(f"v_xor_b32 v{AX}, 4096, v{AX}")
    k("s_cmp_eq_u32 s30, 0")
    k(f"s_cselect_b32 s40, {f32(1.0)}, {f32(-1.0)}")
    k("s_mov_b32 s42, s40")
    k("s_waitcnt lgkmcnt(0)")
    k("s_barrier")
    OR_, OI = 36, 44
    k(f"ds_read_b128 {vr(OR_,4)}, v{AX}")
    k(f"ds_read_b128 {vr(OR_+4,4)}, v{AX} offset:1024")
    k(f"ds_read_b128 {vr(OI,4)}, v{AX} offset:2048")
    k(f"ds_read_b128 {vr(OI+4,4)}, v{AX} offset:3072")
    k(f"v_bfe_u32 v{T}, v1, 1, 2")
    k(f"v_xor_b32 v{T+1}, s29, v{T}")
    k(f"v_xor_b32 v{T+2}, 2, v{T+1}")
    k("s_lshl_b32 s43, s30, 13")
    k(f"s_add_u32 s43, s43, {STG}")
    k(f"v_lshl_add_u32 v{T+3}, v1, 6, s43")
    k(f"v_lshl_add_u32 v253, v{T+1}, 4, v{T+3}")
    k(f"v_lshl_add_u32 v254, v{T+2}, 4, v{T+3}")
    k("s_waitcnt lgkmcnt(0)")
    UA, UB = 52, 60
    Ur, Ui, Er, Ei, Ar, Ai, Br, Bi = [x + (64 if fused else 0) for x in (68, 70, 72, 74, 76, 78, 80, 82)]
    bc = "op_sel_hi:[1,0,1]"
    k("s_cmp_eq_u32 s46, 0")
    k("s_cbranch_scc1 L_p2_spost")
    for j in range(0, 8, 2):
        o = 16*((j//2) % 2)
        ur, ui, er, ei, a_r, a_i, b_r, b_i = [x+o for x in (Ur, Ui, Er, Ei, Ar, Ai, Br, Bi)]
        k(f"v_pk_add_f32 {vr(ur,2)}, {vr(DR+j,2)}, {vr(OR_+j,2)}")
        k(f"v_pk_add_f32 {vr(ui,2)}, {vr(DI+j,2)}, {vr(OI+j,2)}")
        k(f"v_pk_add_f32 {vr(er,2)}, {vr(DR+j,2)}, {vr(OR_+j,2)} neg_lo:[0,1] neg_hi:[0,1]")
        k(f"v_pk_add_f32 {vr(ei,2)}, {vr(DI+j,2)}, {vr(OI+j,2)} neg_lo:[0,1] neg_hi:[0,1]")
        k(f"v_pk_fma_f32 {vr(a_r,2)}, {vr(ei,2)}, s[42:43], {vr(ur,2)} {bc}")
        k(f"v_pk_fma_f32 {vr(b_r,2)}, {vr(ei,2)}, s[42:43], {vr(ur,2)} {bc} neg_lo:[1,0,0] neg_hi:[1,0,0]")
        k(f"v_pk_fma_f32 {vr(a_i,2)}, {vr(er,2)}, s[40:41], {vr(ui,2)} {bc} neg_lo:[1,0,0] neg_hi:[1,0,0]")
        k(f"v_pk_fma_f32 {vr(b_i,2)}, {vr(er,2)}, s[40:41], {vr(ui,2)} {bc} neg_lo:[1,0,1] neg_hi:[1,0,1]")
        k(f"{CVT} v{UA+j}, v{a_r}, v{a_i}")
        k(f"{CVT} v{UA+j+1}, v{a_r+1}, v{a_i+1}")
        k(f"{CVT} v{UB+j}, v{b_r}, v{b_i}")
        k(f"{CVT} v{UB+j+1}, v{b_r+1}, v{b_i+1}")
    k("s_branch L_p2_postd")
    k("L_p2_spost:")
    for j in range(0, 8, 2):
        o = 16*((j//2) % 2)
        ur, ui, er, ei, a_r, a_i, b_r, b_i = [x+o for x in (Ur, Ui, Er, Ei, Ar, Ai, Br, Bi)]
        k(f"v_pk_add_f32 {vr(ur,2)}, {vr(DR+j,2)}, {vr(OR_+j,2)}")
        k(f"v_pk_add_f32 {vr(ui,2)}, {vr(DI+j,2)}, {vr(OI+j,2)}")
        k(f"v_pk_add_f32 {vr(er,2)}, {vr(DR+j,2)}, {vr(OR_+j,2)} neg_lo:[0,1] neg_hi:[0,1]")
        k(f"v_pk_add_f32 {vr(ei,2)}, {vr(DI+j,2)}, {vr(OI+j,2)} neg_lo:[0,1] neg_hi:[0,1]")
        k(f"v_pk_mul_f32 {vr(a_i,2)}, {vr(er,2)}, s[40:41] op_sel_hi:[1,0] neg_lo:[1,0] neg_hi:[1,0]")
        k(f"v_pk_mul_f32 {vr(b_i,2)}, {vr(ei,2)}, s[40:41] op_sel_hi:[1,0]")
        k(f"{CVT} v{UA+j}, v{ur}, v{a_i}")
        k(f"{CVT} v{UA+j+1}, v{ur+1}, v{a_i+1}")
        k(f"{CVT} v{UB+j}, -v{ui}, v{b_i}")
        k(f"{CVT} v{UB+j+1}, -v{ui+1}, v{b_i+1}")
    k("L_p2_postd:")
    for rl in range(2):
        k(f"ds_write_b128 v253, {vr(UA+4*rl,4)} offset:{4096*rl}")
        k(f"ds_write_b128 v254, {vr(UB+4*rl,4)} offset:{4096*rl}")
    k(f"v_and_b32 v{T}, 3, v0")
    k(f"v_bfe_u32 v{T+1}, v0, 3, 2")
    k(f"v_xor_b32 v{T+1}, v{T}, v{T+1}")
    k(f"v_lshrrev_b32 v{T+2}, 2, v0")
    k(f"v_lshlrev_b32 v{T+3}, 6, v{T+2}")
    k(f"v_lshl_add_u32 v{T+3}, v{T+1}, 4, v{T+3}")
    k(f"v_add_u32 v{T+3}, {STG}, v{T+3}")
    k(f"v_mul_u32_u24 v{T+2}, {VB_BLK}, v{T+2}")
    k("s_and_b32 s44, s2, 2")
    k(f"v_xor_b32 v{T}, s44, v{T}")
    k(f"v_lshl_add_u32 v{T+2}, v{T}, 4, v{T+2}")
    k("s_lshl_b32 s45, s2, 6")
    if fused and FILLPOS != 2:
        k("s_cmp_eq_u32 s28, 0")
        k("s_cbranch_scc0 L_p2_chkd")
        k("s_mov_b32 s47, 0")
        k("L_p2_chk:")
        k("s_waitcnt vmcnt(0)")
        k("v_cmp_gt_u32 vcc, 32, v250")
        k("s_add_u32 s47, s47, 1")
        k("s_cmp_ge_u32 s47, 0x20000")
        k("s_cbranch_scc1 L_p2_chkd")
        k("s_nop 2")
        k("s_cbranch_vccz L_p2_chkd")
        k("buffer_load_dword v250, v249, s[16:19], 0 offen sc0 sc1")
        k("s_branch L_p2_chk")
        k("L_p2_chkd:")
    k("s_waitcnt lgkmcnt(0)")
    k("s_barrier")
    for j in range(4):
        k(f"ds_read_b128 {vr(4+4*j,4)}, v{T+3} offset:{4096*j}")
    k("s_waitcnt lgkmcnt(0)")
    for j in range(4):
        k(f"buffer_store_dwordx4 {vr(4+4*j,4)}, v{T+2}, s[12:15], s45 offen {ST_P2}")
        if j < 3: k(f"s_add_u32 s45, s45, {64*VB_BLK}")
    if fused:
        mark(k, 3)
        p3_body(k, True)
    stamp_end(k, 'p2')
    k("L_p2_end:")
    k("s_endpgm")
    k("L_p2_spec:")
    QP = T1
    XB_ = Z2
    k("s_lshl_b32 s47, s30, 12")
    k(f"v_lshl_add_u32 v{T}, v1, 4, s47")
    for r in range(4):
        k(f"ds_read_b128 {vr(XB_+4*r,4)}, v{T} offset:{32768+1024*r}")
    k("s_lshl_b32 s47, s30, 13")
    k(f"v_and_b32 v{T+1}, 31, v1")
    k(f"v_lshrrev_b32 v{T+2}, 5, v1")
    k(f"v_lshlrev_b32 v{T+3}, 2, v{T+1}")
    k(f"v_lshl_add_u32 v{T+3}, v{T+2}, 10, v{T+3}")
    k(f"v_add_u32 v{T+3}, s47, v{T+3}")
    for i, (r, c) in enumerate(SEQ):
        k(f"ds_write_b32 v{T+3}, v{DR+i} offset:{(8*r+c)*256}")
        k(f"ds_write_b32 v{T+3}, v{DI+i} offset:{(8*r+c)*256+128}")
    k(f"v_add_u32 v{T+4}, s30, v{T+1}")
    k(f"v_sub_u32 v{T+5}, 32, v{T+4}")
    k(f"v_lshlrev_b32 v{T+5}, 2, v{T+5}")
    k(f"v_cmp_eq_u32 vcc, 0, v{T+4}")
    k(f"v_mov_b32 v{T+6}, 256")
    k(f"v_cndmask_b32 v{T+5}, v{T+5}, v{T+6}, vcc")
    k(f"v_lshlrev_b32 v{T+6}, 10, v{T+2}")
    k(f"v_sub_u32 v{T+5}, v{T+5}, v{T+6}")
    k(f"v_add_u32 v{T+5}, 1024, v{T+5}")
    k(f"v_add_u32 v{T+5}, s47, v{T+5}")
    k(f"v_add_u32 v{T+6}, {27*256}, v{T+5}")
    k(f"v_or_b32 v{T+7}, v{T+4}, v{T+2}")
    k(f"v_cmp_eq_u32 vcc, 0, v{T+7}")
    k(f"v_mov_b32 v{T+7}, s47")
    k(f"v_cndmask_b32 v{T+6}, v{T+6}, v{T+7}, vcc")
    k("s_waitcnt lgkmcnt(0)")
    for i in range(16):
        k(f"v_lshlrev_b32 v{QP+2*i}, 16, v{XB_+i}")
        k(f"v_and_b32 v{QP+2*i+1}, s35, v{XB_+i}")
    for half in range(2):
        for jj in range(8):
            i = 8*half + jj; r, c = SEQ[i]
            if i == 0:
                k(f"ds_read_b32 v{XB_+2*jj}, v{T+6}")
                k(f"ds_read_b32 v{XB_+2*jj+1}, v{T+6} offset:128")
            else:
                k(f"ds_read_b32 v{XB_+2*jj}, v{T+5} offset:{(27-8*r-c)*256}")
                k(f"ds_read_b32 v{XB_+2*jj+1}, v{T+5} offset:{(27-8*r-c)*256+128}")
        k("s_waitcnt lgkmcnt(0)")
        for jj in range(8):
            j = 8*half + jj; o = T + 8 + 2*(jj % 4); jp = j & ~1; x = j & 1
            k(f"v_pk_mul_f32 {vr(o,2)}, {vr(WP+2*j,2)}, {vr(DR+jp,2)} op_sel:[0,{x}] op_sel_hi:[1,{x}]")
            k(f"v_pk_fma_f32 {vr(o,2)}, {vr(WP+2*j,2)}, {vr(DI+jp,2)}, {vr(o,2)} op_sel:[1,{x},0] op_sel_hi:[0,{x},1] neg_lo:[1,0,0]")
            k(f"v_pk_fma_f32 {vr(o,2)}, {vr(QP+2*j,2)}, {vr(XB_+2*jj,2)}, {vr(o,2)} op_sel:[0,0,0] op_sel_hi:[1,0,1]")
            k(f"v_pk_fma_f32 {vr(o,2)}, {vr(QP+2*j,2)}, {vr(XB_+2*jj,2)}, {vr(o,2)} op_sel:[1,1,0] op_sel_hi:[0,1,1] neg_hi:[1,0,0]")
            k(f"{CVT} v{OP+j}, v{o}, -v{o+1}")
    k("s_branch L_p2_specd")
    return k, 256, 65536

def ln_stats_rows(k, R0, R1, t, vRM, sTmp, twice=False):
    for (R, o) in ((R0, 0), (R1, 4)):
        a, b = t+o, t+o+2
        k(f"v_pk_add_f32 {vr(a,2)}, {vr(R,2)}, {vr(R+2,2)}")
        k(f"v_pk_add_f32 {vr(b,2)}, {vr(R+4,2)}, {vr(R+6,2)}")
    for i in range(4, 8):
        for (R, o) in ((R0, 0), (R1, 4)):
            a = t+o+2*(i % 2)
            k(f"v_pk_add_f32 {vr(a,2)}, {vr(a,2)}, {vr(R+2*i,2)}")
    for o in (0, 4):
        k(f"v_pk_add_f32 {vr(t+o,2)}, {vr(t+o,2)}, {vr(t+o+2,2)}")
    k(f"v_add_f32 v{t}, v{t}, v{t+1}")
    k(f"v_add_f32 v{t+1}, v{t+4}, v{t+5}")
    wave_reduce2(k, t, t+1)
    ln_mean(k, t, sTmp)
    acc = {0: t, 1: t+2}; tmp = [t+4, t+6, t+8, t+10]
    n = 0
    for i in range(8):
        for row, R in ((0, R0), (1, R1)):
            d = tmp[n % 4]; n += 1
            sel = "op_sel_hi:[1,0]" if row == 0 else "op_sel:[0,1] op_sel_hi:[1,1]"
            k(f"v_pk_add_f32 {vr(d,2)}, {vr(R+2*i,2)}, {sr(sTmp,2)} {sel} neg_lo:[0,1] neg_hi:[0,1]")
            a = acc[row]
            if i == 0: k(f"v_pk_mul_f32 {vr(a,2)}, {vr(d,2)}, {vr(d,2)}")
            else:      k(f"v_pk_fma_f32 {vr(a,2)}, {vr(d,2)}, {vr(d,2)}, {vr(a,2)}")
    k(f"v_add_f32 v{t}, v{t}, v{t+1}")
    k(f"v_add_f32 v{t+1}, v{t+2}, v{t+3}")
    wave_reduce2(k, t, t+1)
    ln_scalars(k, t, twice)
    k(f"v_readlane_b32 s{sTmp}, v{t}, 63")
    k(f"v_readlane_b32 s{sTmp+1}, v{t+1}, 63")
    k(f"v_readlane_b32 s{sTmp+2}, v{t+12}, 63")
    k(f"v_readlane_b32 s{sTmp+3}, v{t+13}, 63")
    for i in range(4):
        k(f"v_mov_b32 v{vRM+i}, s{sTmp+i}")

def ln_apply_rows(k, R0, R1, vRM, dst0, dst1):
    for i in range(8):
        k(f"v_pk_fma_f32 {vr(dst0+2*i,2)}, {vr(R0+2*i,2)}, {vr(vRM,2)}, {vr(vRM+2,2)} op_sel_hi:[1,0,0] neg_lo:[0,0,1] neg_hi:[0,0,1]")
        k(f"v_pk_fma_f32 {vr(dst1+2*i,2)}, {vr(R1+2*i,2)}, {vr(vRM,2)}, {vr(vRM+2,2)} op_sel:[0,1,1] op_sel_hi:[1,1,1] neg_lo:[0,0,1] neg_hi:[0,0,1]")

def p3_body(k, fused):
    if fused:
        XL, OP, Mr, Mi, TW, DR, DI, T = 36, 20, 68, 84, 164, 196, 212, 228
        R0, R1, Y0, Y1, HP, NP, RM = 100, 116, 132, 148, 52, 4, 244
        B1, B2, AJ8, t0, t1, t2, cj, ch, cA, cB, XV = 248, 249, 250, 251, 252, 253, 251, 252, 253, 254, 255
    else:
        XL, OP, Mr, Mi, TW, DR, DI, T = 4, 20, 36, 52, 68, 100, 116, 132
        R0, R1, Y0, Y1, HP, NP, RM = 148, 164, 180, 196, 36, 68, 220
        B1, B2, AJ8, t0, t1, t2, cj, ch, cA, cB, XV = 218, 219, 227, 216, 217, 226, 212, 213, 214, 215, 225
    k("s_lshr_b32 s29, s2, 5")
    k("s_lshl_b32 s29, s29, 2")
    k("s_and_b32 s30, s2, 31")
    k("s_add_u32 s31, s29, s28")
    k("s_lshl_b32 s31, s31, 5")
    k("s_add_u32 s31, s31, s30")
    k("s_lshl_b32 s31, s31, 11")
    k("s_add_u32 s32, s31, 0x200000")
    k(f"s_mul_i32 s33, s2, {VB_BLK}")
    k("s_lshl_b32 s34, s28, 12")
    k("s_add_u32 s33, s33, s34")
    k("v_lshlrev_b32 v2, 4, v1")
    if not fused: k("s_waitcnt lgkmcnt(0)")
    srd(k, 8, 4, S*D*2)
    if not fused: srd(k, 12, 26, 256*VB_BLK, VB_OFF)
    srd(k, 16, 26, S*D*2, H_OFF)
    srd(k, 20, 26, S*D*2, HN_OFF)
    def x_loads():
        k(f"v_lshlrev_b32 v{XV}, 4, v1")
        k(f"buffer_load_dwordx4 {vr(XL,4)}, v{XV}, s[8:11], s31 offen")
        k(f"buffer_load_dwordx4 {vr(XL+4,4)}, v{XV}, s[8:11], s31 offen offset:1024")
        k(f"buffer_load_dwordx4 {vr(XL+8,4)}, v{XV}, s[8:11], s32 offen")
        k(f"buffer_load_dwordx4 {vr(XL+12,4)}, v{XV}, s[8:11], s32 offen offset:1024")
    if fused:
        x_loads()
    else:
        for i in range(4):
            k(f"s_add_u32 m0, s34, {1024*i}")
            k(f"buffer_load_dwordx4 v2, s[12:15], s33 offen lds")
            k("s_add_u32 s33, s33, 1024")
    if CODEPF2:
        k("s_cmp_eq_u32 s28, 0")
        k("s_cbranch_scc0 L_p3_nonp")
        next_code_pf(k, 'p3', 'g1_kernel', 'g2_kernel', 32, RM, 40, 1)
        k("L_p3_nonp:")
    k(f"v_and_b32 v{cj}, 31, v1")
    k(f"v_cvt_f32_u32 v{cj}, v{cj}")
    k(f"v_lshrrev_b32 v{ch}, 5, v1")
    k(f"v_lshlrev_b32 v{ch}, 2, v{ch}")
    k(f"v_cvt_f32_u32 v{ch}, v{ch}")
    if not fused:
        k(f"v_mul_f32 v{cA}, {f32(1/32)}, v{cj}")
        k(f"v_mul_f32 v{cB}, v{cA}, v{ch}")
        gen_matrix(k, Mr, Mi, cA, cB, T)
    k(f"v_mul_f32 v{cA}, {f32(1/1024)}, v{cj}")
    k(f"v_mul_f32 v{cB}, v{cA}, v{ch}")
    gen_twiddle(k, TW, cA, cB, T, scale=2.0**-21.5)
    k("v_and_b32 v2, 31, v1")
    k("v_lshrrev_b32 v3, 5, v1")
    k(f"v_and_b32 v{t0}, 1, v2")
    k(f"v_lshrrev_b32 v{t1}, 1, v2")
    k(f"v_and_b32 v{B1}, 2, v{t1}")
    k(f"v_xor_b32 v{B1}, v{B1}, v{t0}")
    k(f"v_lshlrev_b32 v{B1}, 4, v{B1}")
    k(f"v_lshl_add_u32 v{B1}, v{t1}, 6, v{B1}")
    k(f"v_lshl_add_u32 v{B1}, v3, 12, v{B1}")
    k("s_lshl_b32 s37, s28, 2")
    k(f"v_add_u32 v{B1}, s37, v{B1}")
    k(f"v_add_u32 v{t1}, 1, v2")
    k(f"v_lshrrev_b32 v{t1}, 1, v{t1}")
    k(f"v_sub_u32 v{B2}, 0, v{t1}")
    k(f"v_and_b32 v{B2}, 2, v{B2}")
    k(f"v_add_u32 v{t0}, 2, v{t0}")
    k(f"v_xor_b32 v{B2}, v{B2}, v{t0}")
    k(f"v_lshlrev_b32 v{B2}, 4, v{B2}")
    k(f"v_lshlrev_b32 v{t1}, 6, v{t1}")
    k(f"v_sub_u32 v{B2}, v{B2}, v{t1}")
    k(f"v_lshlrev_b32 v{t1}, 12, v3")
    k(f"v_sub_u32 v{B2}, v{B2}, v{t1}")
    k("s_add_u32 s37, s37, 5120")
    k(f"v_add_u32 v{B2}, s37, v{B2}")
    k(f"v_add_u32 v{AJ8}, {16*1024-5120}, v{B2}")
    k("s_lshl_b32 s38, s28, 2")
    k("s_add_u32 s38, s38, 32")
    k(f"v_mov_b32 v{t2}, s38")
    k("v_cmp_eq_u32 vcc, 0, v1")
    k(f"v_cndmask_b32 v{AJ8}, v{AJ8}, v{t2}, vcc")
    k("s_mov_b32 s35, 0xffff0000")
    if fused:
        k("v_lshlrev_b32 v2, 4, v1")
        k("s_mov_b32 s41, 0")
        k("s_waitcnt vmcnt(0)")
        k("L_p3_poll:")
        for i in range(4):
            k(f"s_add_u32 s39, s33, {1024*i}")
            k(f"buffer_load_dwordx4 {vr(OP+4*i,4)}, v2, s[12:15], s39 offen sc0 sc1")
        k("s_add_u32 s41, s41, 1")
        k("s_waitcnt vmcnt(0)")
        k(f"v_max3_u32 v3, v{OP}, v{OP+1}, v{OP+2}")
        for i in range(3, 15, 2): k(f"v_max3_u32 v3, v3, v{OP+i}, v{OP+i+1}")
        k(f"v_max_u32 v3, v3, v{OP+15}")
        k("v_cmp_eq_u32 vcc, -1, v3")
        k("s_nop 4")
        k("s_cmp_ge_u32 s41, 0x20000")
        k("s_cbranch_scc1 L_p3_polld")
        k("s_cbranch_vccnz L_p3_poll")
        k("L_p3_polld:")
        mark(k, 5)
        k("v_add_u32 v2, s34, v2")
        for i in range(4): k(f"ds_write_b128 v2, {vr(OP+4*i,4)} offset:{1024*i}")
        k("s_waitcnt lgkmcnt(0)")
        k("s_barrier")
    else:
        mark(k, 1)
        k("s_waitcnt vmcnt(0)")
        x_loads()
        k("s_barrier")
        mark(k, 2)
    for i, (r, c) in enumerate(SEQ):
        if r < 2: k(f"ds_read_b32 v{OP+i}, v{B1} offset:{(8*r+c)*1024}")
        elif i == 8: k(f"ds_read_b32 v{OP+i}, v{AJ8}")
        else:     k(f"ds_read_b32 v{OP+i}, v{B2} offset:{(32-8*r-c)*1024-5120}")
    k("s_waitcnt lgkmcnt(0)")
    stage(k, 'A', DR, DI, OP, Mr, Mi)
    cmul_pack(k, DR, DI, TW, OP, T)
    stage(k, 'B', DR, DI, OP, Mr, Mi)
    if not fused: k("s_waitcnt vmcnt(0)")
    for i in range(8):
        k(f"v_lshlrev_b32 v{R0+2*i}, 16, v{XL+i}")
        k(f"v_and_b32 v{R0+2*i+1}, s35, v{XL+i}")
        k(f"v_lshlrev_b32 v{R1+2*i}, 16, v{XL+8+i}")
        k(f"v_and_b32 v{R1+2*i+1}, s35, v{XL+8+i}")
    TR = 17408
    if not fused: mark(k, 3)
    k("s_lshl_b32 s36, s28, 12")
    k(f"s_add_u32 s36, s36, {TR}")
    k("v_and_b32 v3, 31, v1")
    k("v_lshlrev_b32 v3, 2, v3")
    k(f"v_lshrrev_b32 v{t0}, 5, v1")
    k(f"v_lshlrev_b32 v{t0}, 9, v{t0}")
    k(f"v_add3_u32 v3, v3, v{t0}, s36")
    k("v_lshl_add_u32 v2, v1, 5, s36")
    for i in range(16):
        k(f"{CVT} v{OP+i}, v{DR+i}, -v{DI+i}")
    for i, (r, c) in enumerate(SEQ):
        k(f"ds_write_b32 v3, v{OP+i} offset:{(8*r+c)*128}")
    k("s_waitcnt lgkmcnt(0)")
    k(f"ds_read_b128 {vr(OP,4)}, v2")
    k(f"ds_read_b128 {vr(OP+4,4)}, v2 offset:16")
    k(f"ds_read_b128 {vr(OP+8,4)}, v2 offset:2048")
    k(f"ds_read_b128 {vr(OP+12,4)}, v2 offset:2064")
    k("s_waitcnt lgkmcnt(0)")
    for i in range(16):
        k(f"v_lshlrev_b32 v{Y0+i}, 16, v{OP+i}")
        k(f"v_and_b32 v{Y1+i}, s35, v{OP+i}")
    for i in range(8):
        k(f"v_pk_add_f32 {vr(Y0+2*i,2)}, {vr(Y0+2*i,2)}, {vr(R0+2*i,2)}")
        k(f"v_pk_add_f32 {vr(Y1+2*i,2)}, {vr(Y1+2*i,2)}, {vr(R1+2*i,2)}")
    for i in range(8):
        k(f"{CVT} v{HP+i}, v{Y0+2*i}, v{Y0+2*i+1}")
        k(f"{CVT} v{HP+8+i}, v{Y1+2*i}, v{Y1+2*i+1}")
    k("v_lshlrev_b32 v2, 4, v1")
    k(f"buffer_store_dwordx4 {vr(HP,4)}, v2, s[16:19], s31 offen {ST_P3}")
    k(f"buffer_store_dwordx4 {vr(HP+4,4)}, v2, s[16:19], s31 offen offset:1024 {ST_P3}")
    k(f"buffer_store_dwordx4 {vr(HP+8,4)}, v2, s[16:19], s32 offen {ST_P3}")
    k(f"buffer_store_dwordx4 {vr(HP+12,4)}, v2, s[16:19], s32 offen offset:1024 {ST_P3}")
    for i in range(8):
        k(f"v_lshlrev_b32 v{R0+2*i}, 16, v{HP+i}")
        k(f"v_and_b32 v{R0+2*i+1}, s35, v{HP+i}")
        k(f"v_lshlrev_b32 v{R1+2*i}, 16, v{HP+8+i}")
        k(f"v_and_b32 v{R1+2*i+1}, s35, v{HP+8+i}")
    if not fused: mark(k, 4)
    if LN_FUSE:
        assert not (EMU_LN or EMU_L2)
        ln_stats_rows(k, R0, R1, T, RM, 40, twice=True)
        ln_apply_rows(k, R0, R1, RM, Y0, Y1)
    else:
        ln_stats_rows(k, R0, R1, T, RM, 40)
        if EMU_L2:
            ln_apply_rows(k, R0, R1, RM, Y0, Y1)
            LP = OP
            for i in range(8):
                k(f"{CVT} v{LP+i}, v{Y0+2*i}, v{Y0+2*i+1}")
                k(f"{CVT} v{LP+8+i}, v{Y1+2*i}, v{Y1+2*i+1}")
            for i in range(8):
                k(f"v_lshlrev_b32 v{R0+2*i}, 16, v{LP+i}")
                k(f"v_and_b32 v{R0+2*i+1}, s35, v{LP+i}")
                k(f"v_lshlrev_b32 v{R1+2*i}, 16, v{LP+8+i}")
                k(f"v_and_b32 v{R1+2*i+1}, s35, v{LP+8+i}")
        else:
            ln_apply_rows(k, R0, R1, RM, R0, R1)
        ln_stats_rows(k, R0, R1, T, RM, 40)
        ln_apply_rows(k, R0, R1, RM, Y0, Y1)
    for i in range(8):
        k(f"{CVT} v{NP+i}, v{Y0+2*i}, v{Y0+2*i+1}")
        k(f"{CVT} v{NP+8+i}, v{Y1+2*i}, v{Y1+2*i+1}")
    k(f"buffer_store_dwordx4 {vr(NP,4)}, v2, s[20:23], s31 offen {ST_P3}")
    k(f"buffer_store_dwordx4 {vr(NP+4,4)}, v2, s[20:23], s31 offen offset:1024 {ST_P3}")
    k(f"buffer_store_dwordx4 {vr(NP+8,4)}, v2, s[20:23], s32 offen {ST_P3}")
    k(f"buffer_store_dwordx4 {vr(NP+12,4)}, v2, s[20:23], s32 offen offset:1024 {ST_P3}")

def gen_p3():
    k = Kern('p3_kernel')
    k("s_cmp_ge_u32 s2, 256")
    k("s_cbranch_scc1 L_p3_end")
    stamp_begin(k)
    k("s_load_dwordx2 s[4:5], s[0:1], 0")
    k("s_load_dwordx2 s[26:27], s[0:1], 80")
    k("s_load_dwordx2 s[24:25], s[0:1], 32")
    k("v_and_b32 v1, 63, v0")
    k("v_lshrrev_b32 v2, 6, v0")
    k("v_readfirstlane_b32 s28, v2")
    pf_wave(k, 'p3', W1PF0 + 256*W1PF)
    first_tiles_wave(k)
    p3_body(k, False)
    stamp_end(k, 'p3')
    k("L_p3_end:")
    k("s_endpgm")
    return k, 228, 33792

def gen_p23(): return gen_p2(True)

MF16 = 'v_mfma_f32_16x16x32_bf16'

def interleave(mf, rd, lead=0):
    out = []; n = len(mf); m = len(rd); ri = 0
    for i in range(n):
        out.append(mf[i])
        tgt = min(m, (m*(i+1) + n - 1)//n)
        while ri < tgt:
            out.append(rd[ri]); ri += 1
    out += rd[ri:]
    return out

def producer_loop(k, tag, per, issue, NS, NIT):
    mark(k, 1)
    issue()
    mark(k, 2)
    issue()
    k(f"s_waitcnt vmcnt({per})")
    mark(k, 3)
    k("s_barrier")
    for n in range(2, NS): issue()
    mark(k, 4)
    nmain = NIT - NS
    k(f"s_mov_b32 s60, 0")
    k(f"L_{tag}_ploop:")
    k(f"s_waitcnt vmcnt({(NS-2)*per})")
    k("s_barrier")
    issue()
    k("s_add_u32 s60, s60, 1")
    k(f"s_cmp_lt_u32 s60, {nmain}")
    k(f"s_cbranch_scc1 L_{tag}_ploop")
    for n in range(nmain, NIT-1):
        k(f"s_waitcnt vmcnt({(NIT-1-(n+1))*per})")
        k("s_barrier")


XB_OFF = ZW_OFF
FL_OFF = 0x2800000
def gemm_kernel(tag, fused=False):
    g1 = tag == 'g1'
    k = Kern('gg_kernel' if fused else tag + '_kernel')
    ENDL = 'L_gg_end' if fused else f'L_{tag}_end'
    ASZ = 16384; STG = 32768; NS = 4 if STATIC else (5 if BAR2 else 3)
    NIT = 32 if g1 else 28
    BSTR = 7168 if g1 else 4096
    if not (fused and not g1):
        k(f"s_cmp_ge_u32 s2, 256")
        k(f"s_cbranch_scc1 {ENDL}")
    else:
        k("L_gbar:")
        k("s_load_dwordx2 s[26:27], s[0:1], 80")
        k("s_waitcnt vmcnt(0) lgkmcnt(0)")
        k("s_barrier")
        srd(k, 36, 26, 1024, BAR_OFF)
        k("v_cmp_eq_u32 vcc, 0, v0")
        k("s_and_saveexec_b64 s[34:35], vcc")
        k("s_cbranch_execz L_gbar_noarr")
        k("s_and_b32 s33, s2, 7")
        k("s_lshl_b32 s33, s33, 7")
        k("v_mov_b32 v2, 1")
        k("v_mov_b32 v3, 0")
        k("buffer_atomic_add v2, v3, s[36:39], s33 offen sc1")
        k("L_gbar_noarr:")
        k("s_mov_b64 exec, -1")
    stamp_begin(k)
    if g1:
        k("s_load_dwordx4 s[4:7], s[0:1], 32")
        k("s_load_dwordx2 s[24:25], s[0:1], 48")
    else:
        k("s_load_dwordx4 s[4:7], s[0:1], 48")
        k("s_load_dwordx2 s[24:25], s[0:1], 64")
    k("s_load_dwordx2 s[26:27], s[0:1], 80")
    k("v_and_b32 v1, 63, v0")
    k("v_lshrrev_b32 v2, 6, v0")
    k("v_readfirstlane_b32 s28, v2")
    if g1:
        k("s_and_b32 s30, s2, 1")
        k("s_lshl_b32 s30, s30, 2")
        k("s_bfe_u32 s52, s2, 0x20003")
        k("s_add_u32 s30, s30, s52")
        k("s_bfe_u32 s29, s2, 0x20001")
        k("s_mul_i32 s29, s29, 7")
        k("s_lshr_b32 s53, s2, 5")
        k("s_add_u32 s29, s29, s53")
        k("s_mov_b32 s63, 0")
        k("s_and_b32 s55, s2, 1")
        k(f"s_mul_i32 s55, s55, {16 if KHALF else 0}")
    else:
        if MAP2 == 1:
            k("s_bfe_u32 s62, s2, 0x10003")
            k("s_bfe_u32 s29, s2, 0x20001")
            k("s_lshl_b32 s29, s29, 2")
            k("s_bfe_u32 s52, s2, 0x20004")
            k("s_add_u32 s29, s29, s52")
            k("s_lshr_b32 s53, s2, 6")
            k("s_and_b32 s30, s2, 1")
            k("s_lshl_b32 s30, s30, 2")
            k("s_add_u32 s30, s30, s53")
        else:
            k("s_and_b32 s62, s2, 1")
            k("s_bfe_u32 s29, s2, 0x20001")
            k("s_lshl_b32 s29, s29, 2")
            k("s_bfe_u32 s52, s2, 0x20003")
            k("s_add_u32 s29, s29, s52")
            k("s_lshr_b32 s53, s2, 5")
            k("s_mov_b32 s30, s53")
        k("s_mov_b32 s55, 0")
        k("s_mul_i32 s63, s62, 28")
        srd(k, 56, 26, 256*64, FL_OFF) if False else None
    k("s_lshl_b32 s31, s29, 8")
    k("s_lshl_b32 s32, s30, 8")
    k("s_waitcnt lgkmcnt(0)")
    if g1:
        srd(k, 8, 4, S*F*2)
        srd(k, 12, 26, S*D*2, HN_OFF)
        srd(k, 16, 26, F*D*2, GT_OFF)
        srd(k, 20, 6, F*2)
        if not XSENT:
            srd(k, 44, 26, 256*64, FL_OFF)
            k("s_lshl_b32 s33, s2, 6")
            k("v_mov_b32 v2, 0")
            k("v_lshlrev_b32 v3, 2, v0")
            k("v_cmp_gt_u32 vcc, 16, v0")
            k("s_and_saveexec_b64 s[34:35], vcc")
            k(f"s_cbranch_execz L_{tag}_nozf")
            k("buffer_store_dword v2, v3, s[44:47], s33 offen sc0 sc1")
            k(f"L_{tag}_nozf:")
            k("s_mov_b64 exec, -1")
        k("s_cmp_lt_u32 s2, 224")
        k(f"s_cbranch_scc1 L_{tag}_main")
        if W1IDLE:
            k("s_sub_u32 s33, s2, 224")
            k("s_mul_i32 s33, s33, 112")
            k("v_mul_u32_u24 v3, 586, v0")
            k("v_lshrrev_b32 v3, 16, v3")
            k("v_mul_u32_u24 v4, 112, v3")
            k("v_sub_u32 v4, v0, v4")
            k("v_add_u32 v4, s33, v4")
            k("v_mul_u32_u24 v5, 4682, v4")
            k("v_lshrrev_b32 v5, 18, v5")
            k("v_mul_u32_u24 v6, 56, v5")
            k("v_sub_u32 v6, v4, v6")
            k("v_and_b32 v7, 1, v3")
            k("v_lshrrev_b32 v8, 1, v3")
            k("v_lshl_add_u32 v7, v7, 4, v8")
            k("v_lshl_add_u32 v5, v7, 6, v5")
            k("v_mul_u32_u24 v5, 7168, v5")
            k("v_lshl_add_u32 v2, v6, 7, v5")
            k("v_cmp_gt_u32 vcc, 448, v0")
            k("s_and_saveexec_b64 s[34:35], vcc")
            k(f"s_cbranch_execz L_{tag}_now1")
            k(f"s_mov_b32 s33, {W1IDLE*64*7168}")
            for i in range((16-W1IDLE)//2):
                k(f"buffer_load_dword v9, v2, s[8:11], s33 offen")
                k(f"s_add_u32 s33, s33, {2*64*7168}")
            k(f"L_{tag}_now1:")
            k("s_mov_b64 exec, -1")
        if W2PF:
            srd(k, 48, 24, F*S*2)
            k("s_sub_u32 s33, s2, 224")
            k("s_and_b32 s34, s33, 15")
            k("s_lshr_b32 s35, s33, 4")
            k(f"s_mul_i32 s35, s35, {1792*4096}")
            k("s_lshl_b32 s33, s34, 16")
            k("s_add_u32 s33, s33, s35")
            if W2WAVES == 8:
                k("v_lshlrev_b32 v2, 7, v0")
                for i in range(W2PF):
                    k(f"buffer_load_dword v9, v2, s[48:51], s33 offen")
                    k(f"s_add_u32 s33, s33, {16*65536}")
            else:
                k(f"s_cmp_ge_u32 s28, {W2WAVES}")
                k(f"s_cbranch_scc1 L_{tag}_now2")
                k("v_lshlrev_b32 v2, 7, v1")
                k(f"s_mul_i32 s34, s28, {8192*(8//W2WAVES)}")
                k("s_add_u32 s33, s33, s34")
                k("s_mov_b32 s35, 0")
                k(f"L_{tag}_w2l:")
                for q in range(8//W2WAVES):
                    k(f"s_add_u32 s34, s33, {8192*q}")
                    k(f"buffer_load_dword v9, v2, s[48:51], s34 offen")
                    k(f"s_waitcnt vmcnt({W2DEPTH})")
                k(f"s_add_u32 s33, s33, {16*65536}")
                k("s_add_u32 s35, s35, 1")
                k(f"s_cmp_lt_u32 s35, {W2PF}")
                k(f"s_cbranch_scc1 L_{tag}_w2l")
                k(f"L_{tag}_now2:")
        if XSENT:
            srd(k, 44, 26, 256*(16384 if XBF16 else 32768), 0x1E00000 if XB_SEP else VB_OFF)
            k("s_sub_u32 s33, s2, 224")
            k("s_lshl_b32 s33, s33, 17")
            k("v_lshlrev_b32 v2, 4, v0")
            for i in range(4): k(f"v_mov_b32 v{4+i}, -1")
            k("s_mov_b32 s34, 0")
            k(f"L_{tag}_clr:")
            k("buffer_store_dwordx4 v[4:7], v2, s[44:47], s33 offen sc0 sc1")
            k("s_add_u32 s33, s33, 8192")
            k("s_add_u32 s34, s34, 1")
            k("s_cmp_lt_u32 s34, 16")
            k(f"s_cbranch_scc1 L_{tag}_clr")
        stamp_end(k, tag, tid=0, slot=256, sfx='idle')
        k(f"s_branch {'L_gbar' if fused else ENDL}")
        k(f"L_{tag}_main:")
    else:
        srd(k, 8, 4, F*S*2)
        srd(k, 12, 26, F*D*2, GT_OFF)
        srd(k, 16, 26, S*D*2, H_OFF)
        srd(k, 20, 6, S*2)
        srd(k, 48, 24, S*D*2)
        if not XSENT:
            k("s_getreg_b32 s54, hwreg(HW_REG_XCC_ID, 0, 4)")
            k("s_add_u32 s54, s54, 1")
            srd(k, 56, 26, 256*64, FL_OFF)
            k("s_lshl_b32 s33, s2, 6")
            k("v_mov_b32 v2, s54")
            k("v_mov_b32 v3, 0")
            k("v_cmp_eq_u32 vcc, 0, v0")
            k("s_and_saveexec_b64 s[34:35], vcc")
            k(f"s_cbranch_execz L_{tag}_nopub")
            k("buffer_store_dword v2, v3, s[56:59], s33 offen offset:4 sc0 sc1")
            k(f"L_{tag}_nopub:")
            k("s_mov_b64 exec, -1")
    if PRODFIRST:
        k("s_cmp_lt_u32 s28, 4")
        k(f"s_cbranch_scc1 L_{tag}_cons")
    else:
        k("s_cmp_ge_u32 s28, 4")
        k(f"s_cbranch_scc1 L_{tag}_prod")
    i_cons = len(k.l)
    k(f"L_{tag}_cons:")
    ACC = 8; X = 72; Y = 136; R = 200
    AA = [R+i for i in range(4)]; AB = [R+4+i for i in range(4)]
    BA = [R+8+i for i in range(4)]; BB = [R+12+i for i in range(4)]
    MISC = R + 16
    k("s_and_b32 s33, s28, 1")
    k("s_lshr_b32 s36, s28, 1")
    k("v_lshrrev_b32 v2, 4, v1")
    k("v_bfe_u32 v3, v1, 2, 2")
    k("v_and_b32 v4, 3, v1")
    k("v_lshl_add_u32 v5, v2, 2, v3")
    k("v_and_b32 v6, 7, v5")
    k("v_lshlrev_b32 v6, 1, v6")
    k("v_lshrrev_b32 v7, 1, v4")
    k("v_and_b32 v9, 1, v4")
    for (base, w, add) in ((BA, 's33', 0), (BB, 's36', ASZ)):
        k(f"s_lshl_b32 s35, {w}, 3")
        k("v_add_u32 v10, s35, v7")
        k("v_xor_b32 v10, v10, v6")
        k("v_lshlrev_b32 v10, 4, v10")
        k("v_lshl_add_u32 v10, v9, 3, v10")
        k("v_lshl_add_u32 v10, v5, 8, v10")
        if add: k(f"v_add_u32 v10, {add}, v10")
        k(f"v_mov_b32 v{base[0]}, v10")
        for t in range(1, 4): k(f"v_xor_b32 v{base[t]}, {32*t}, v10")
    for t in range(4):
        k(f"v_mov_b32 v{AA[t]}, v{BA[t]}"); k(f"v_mov_b32 v{AB[t]}, v{BB[t]}")
    BIAS = MISC
    k("v_and_b32 v2, 15, v1")
    k("v_lshlrev_b32 v2, 1, v2")
    k("s_lshl_b32 s37, s36, 7")
    k("s_add_u32 s37, s37, s31")
    for t in range(4):
        k(f"buffer_load_ushort v{BIAS+t}, v2, s[20:23], s37 offen offset:{32*t}")
    OV = MISC+4
    k("v_and_b32 v2, 15, v1")
    k("v_lshlrev_b32 v2, 11, v2")
    k("v_lshrrev_b32 v3, 4, v1")
    k(f"v_lshl_add_u32 v{OV}, v3, 4, v2")
    k("s_lshl_b32 s38, s29, 7")
    k("s_lshl_b32 s39, s36, 6")
    k("s_add_u32 s38, s38, s39")
    k("s_lshl_b32 s38, s38, 11")
    k("s_add_u32 s38, s38, s32")
    k("s_lshl_b32 s39, s33, 7")
    k("s_add_u32 s38, s38, s39")
    if not g1:
        HL = MISC+6
        NV = HL+16
        if OUT_TOUCH:
            k("s_lshl_b32 s39, s62, 16")
            k("s_add_u32 s39, s39, s38")
            k(f"buffer_load_dword v{NV}, v{OV}, s[48:51], s39 offen")
            NV += 1
    else:
        NV = MISC+5
    def reads(dst, buf=None):
        r = []
        for ks in range(2):
            b = dst + 32*ks; ko = 32*ks
            for t in range(4):
                if buf is None: regs = (AA[t], AB[t]); bo = 0
                else:
                    regs = (BA[t], BB[t]) if buf < 2 else (AA[t], AB[t]); bo = (buf % 2)*STG
                for (o, a) in ((0, regs[0]), (16, regs[1])):
                    r.append(f"ds_read_b64_tr_b16 {vr(b+o+4*t,2)}, v{a} offset:{bo+ko*256}")
                    r.append(f"ds_read_b64_tr_b16 {vr(b+o+4*t+2,2)}, v{a} offset:{bo+(ko+16)*256}")
        return r
    def mfmas(src):
        m = []
        for ks in range(2):
            b = src + 32*ks
            order = sorted([(td, tn) for td in range(4) for tn in range(4)], key=lambda x: (max(x), x))
            if FAKE32:
                for i in range(8):
                    a = ACC + 16*(i % 4)
                    m.append(f"{MF32} {vr(a,16)}, {vr(b+4*(i%4),4)}, {vr(b+16+4*((i//2)%4),4)}, {vr(a,16)}")
                continue
            for td, tn in order:
                a = ACC + 4*(4*tn+td)
                m.append(f"{MF16} {vr(a,4)}, {vr(b+4*td,4)}, {vr(b+16+4*tn,4)}, {vr(a,4)}")
        return m
    def sched(mf, rd, extra):
        out = []; ri = 0; ei = 0
        for i, m in enumerate(mf):
            out.append(m)
            if ri < len(rd):
                for _ in range(RPAT[i % len(RPAT)]):
                    if ri < len(rd): out.append(rd[ri]); ri += 1
            elif ei < len(extra):
                out.append(extra[ei]); ei += 1
        out += rd[ri:] + extra[ei:]
        return out
    def upd():
        e = [f"s_add_u32 s34, s34, {STG}", f"s_cmp_eq_u32 s34, {STG*NS}", "s_cselect_b32 s34, 0, s34"]
        e += [f"v_add_u32 v{AA[t]}, s34, v{BA[t]}" for t in range(4)]
        e += [f"v_add_u32 v{AB[t]}, s34, v{BB[t]}" for t in range(4)]
        return e
    for i in range(64): k(f"v_mov_b32 v{ACC+i}, 0")
    k("s_mov_b32 s34, 0")
    k("s_mov_b32 s35, 0")
    if fused and not g1: k("s_barrier")
    mark(k, 1)
    k("s_barrier")
    mark(k, 2)
    if STATIC:
        for t in range(4):
            k(f"v_add_u32 v{AA[t]}, 65536, v{BA[t]}"); k(f"v_add_u32 v{AB[t]}, 65536, v{BB[t]}")
        for x in reads(X, 0): k(x)
        k(f"L_{tag}_cloop:")
        for u in range(4):
            cur, nxt = (X, Y) if u % 2 == 0 else (Y, X)
            k("s_waitcnt lgkmcnt(0)")
            k("s_barrier")
            ex = ["s_add_u32 s35, s35, 4", f"s_cmp_lt_u32 s35, {NIT-4}"] if u == 3 else []
            for x in sched(mfmas(cur), reads(nxt, (u+1) % 4), ex): k(x)
        k(f"s_cbranch_scc1 L_{tag}_cloop")
        for u in range(2):
            cur, nxt = (X, Y) if u % 2 == 0 else (Y, X)
            k("s_waitcnt lgkmcnt(0)")
            k("s_barrier")
            for x in sched(mfmas(cur), reads(nxt, u+1), []): k(x)
    else:
        for x in reads(X): k(x)
        for x in upd(): k(x)
        k(f"L_{tag}_cloop:")
        k("s_waitcnt lgkmcnt(0)")
        if LOOPSTAMP:
            k(f"s_cmp_eq_u32 s35, {LOOPSTAMP}")
            k(f"s_cbranch_scc0 L_{tag}_nolatch")
            for i in range(4): k(f"s_mov_b64 s[{96-20+2*i}:{97-20+2*i}], s[{66+2*i}:{67+2*i}]") if False else None
            k("s_sub_u32 s90, s68, s66"); k("s_sub_u32 s91, s70, s68"); k("s_sub_u32 s92, s72, s70")
            k("s_memtime s[82:83]"); k("s_waitcnt lgkmcnt(0)"); k("s_sub_u32 s93, s82, s72")
            k(f"L_{tag}_nolatch:")
        k("s_barrier")
        if LOOPSTAMP: k("s_memtime s[66:67]")
        for x in sched(mfmas(X), reads(Y), upd()): k(x)
        if LOOPSTAMP: k("s_memtime s[68:69]")
        k("s_waitcnt lgkmcnt(0)")
        if not BAR2: k("s_barrier")
        if LOOPSTAMP: k("s_memtime s[70:71]")
        for x in sched(mfmas(Y), reads(X), upd() + ["s_add_u32 s35, s35, 2", f"s_cmp_lt_u32 s35, {NIT-2}"]): k(x)
        if LOOPSTAMP: k("s_memtime s[72:73]")
        k(f"s_cbranch_scc1 L_{tag}_cloop")
    if LOOPSTAMP:
        k("s_waitcnt lgkmcnt(0)")
        for i in range(4):
            k(f"s_mov_b32 s{66+2*i}, s{90+i}"); k(f"s_mov_b32 s{67+2*i}, 0")
    XID = 3
    if not g1:
        if not XSENT:
            k(f"s_xor_b32 s42, s2, {8 if MAP2 == 1 else 1}")
            k("s_lshl_b32 s39, s42, 6")
            k("v_mov_b32 v4, 0")
            k(f"buffer_load_dword v{XID}, v4, s[56:59], s39 offen offset:4 sc0 sc1")
        k("s_lshl_b32 s39, s62, 16")
        k("s_add_u32 s39, s39, s38")
        for tnl in range(1 if XSHARE else 2):
            for tp in range(2):
                k(f"s_add_u32 s40, s39, {tnl*16*2048 + tp*64}")
                k(f"buffer_load_dwordx4 {vr(HL+8*tnl+4*tp,4)}, v{OV}, s[16:19], s40 offen")
    k("s_waitcnt lgkmcnt(0)")
    k("s_barrier")
    for x in sched(mfmas(X), reads(Y, 3 if STATIC else None), []): k(x)
    k("s_waitcnt lgkmcnt(0)")
    for x in mfmas(Y): k(x)
    mark(k, 3)
    k("s_mov_b32 s40, 0xffff0000")
    T = X
    def pack_swap(P):
        k(f"v_permlane32_swap_b32 v{P}, v{P+2}")
        k(f"v_permlane32_swap_b32 v{P+1}, v{P+3}")
        k(f"v_permlane16_swap_b32 v{P}, v{P+2}")
        k(f"v_permlane16_swap_b32 v{P+1}, v{P+3}")
    def store_lines(P0, P1, tmp, so, srdreg):
        for i in range(4): k(f"v_mov_b32 v{tmp+i}, v{P0+i}")
        for i in range(4): k(f"v_mov_b32_dpp v{P0+i}, v{P1+i} row_ror:8 row_mask:0xf bank_mask:0xc")
        for i in range(4): k(f"v_mov_b32_dpp v{P1+i}, v{tmp+i} row_ror:8 row_mask:0xf bank_mask:0x3")
        fl = ST_G1 if g1 else ST_G2
        k(f"s_add_u32 s41, s38, {so}")
        k(f"buffer_store_dwordx4 {vr(P0,4)}, v{OVS}, s[{srdreg}:{srdreg+3}], s41 offen {fl}")
        k(f"s_add_u32 s41, s38, {so + 8*2048}")
        k(f"buffer_store_dwordx4 {vr(P1,4)}, v{OVS}, s[{srdreg}:{srdreg+3}], s41 offen {fl}")
    OVS = 3
    def set_ovs():
        k("v_and_b32 v2, 7, v1")
        k("v_lshlrev_b32 v2, 11, v2")
        k("v_bfe_u32 v3, v1, 3, 1")
        k("v_lshl_add_u32 v2, v3, 6, v2")
        k("v_lshrrev_b32 v3, 4, v1")
        k(f"v_lshl_add_u32 v{OVS}, v3, 4, v2")
    if g1:
        SH = 32768 if STATIC else (98304 if BAR2 else 65536)
        k("s_lshl_b32 s39, s28, 13")
        k(f"s_add_u32 s39, s39, {SH}")
        k("v_lshl_add_u32 v2, v1, 4, s39")
        for i in range(8): k(f"ds_write_b128 v2, {vr(ACC+32+4*i,4)} offset:{1024*i}")
        k("s_waitcnt vmcnt(0) lgkmcnt(0)")
        k("s_barrier")
        mark(k, 4)
        k(f"L_{tag}_epi:")
        for t in range(2): k(f"v_lshlrev_b32 v{BIAS+t}, 16, v{BIAS+t}")
        c0 = -2.0*math.log2(math.e)*math.sqrt(2.0/math.pi); c1 = c0*0.044715
        k("s_mov_b32 s40, 0xffff0000")
        k(f"s_mov_b32 s42, {f32(c1)}")
        k(f"v_mov_b32 v4, {f32(c0)}"); k(f"v_mov_b32 v5, {f32(c0)}")
        k(f"v_mov_b32 v6, 1.0"); k(f"v_mov_b32 v7, 1.0")
        set_ovs()
        for tn in range(2):
            for tp in range(2):
                P = T + 4*tp + 24*tn
                for q in range(4):
                    td = 2*tp + q//2
                    src = ACC + 4*(4*tn+td) + 2*(q % 2)
                    u, w = T+8+4*q, T+10+4*q
                    gelu_pair(k, src, u, w, BIAS+tn, P+q)
                pack_swap(P)
            store_lines(T+24*tn, T+24*tn+4, T+32, tn*16*2048, 16)
    else:
        if XSHARE:
            assert XSENT and XBF16
            SHX, SHY = 0, 16384
            k("s_waitcnt vmcnt(0)")
            srd(k, 44, 26, 256*16384, 0x1E00000 if XB_SEP else VB_OFF)
            k(f"s_xor_b32 s42, s2, {8 if MAP2 == 1 else 1}")
            k("s_lshl_b32 s43, s42, 14")
            k("s_lshl_b32 s39, s28, 12")
            k("s_add_u32 s43, s43, s39")
            k("v_lshlrev_b32 v2, 4, v1")
            k("s_cmp_eq_u32 s62, 0")
            k(f"s_cbranch_scc1 L_{tag}_k0")
            for half, l2 in ((0, None), (32, f"L_{tag}_k0:")):
                if l2: k(l2)
                for i in range(16): k(f"{CVT} v{Y+32+i}, v{ACC+half+2*i}, v{ACC+half+2*i+1}")
                for i in range(4):
                    k(f"s_add_u32 s39, s43, {1024*i}")
                    k(f"buffer_store_dwordx4 {vr(Y+32+4*i,4)}, v2, s[44:47], s39 offen sc0 sc1")
                if half == 0:
                    for i in range(32): k(f"v_mov_b32 v{ACC+i}, v{ACC+32+i}")
                    k(f"v_mov_b32 v{BIAS}, v{BIAS+2}")
                    k(f"s_branch L_{tag}_k1")
            k(f"L_{tag}_k1:")
            k("s_lshl_b32 s39, s28, 12")
            k(f"v_add_u32 v3, s39, v2")
            for i in range(4): k(f"ds_write_b128 v3, {vr(ACC+16+4*i,4)} offset:{SHX+1024*i}")
            k("s_lshl_b32 s39, s62, 16")
            k("s_add_u32 s38, s38, s39")
            k("s_lshl_b32 s39, s28, 11")
            k(f"v_add_u32 v3, s39, v2")
            k("s_waitcnt vmcnt(0) lgkmcnt(0)" if XWAIT else "s_waitcnt lgkmcnt(0)")
            k("s_barrier")
            k("s_barrier")
            k(f"ds_read_b128 {vr(Y+40,4)}, v3 offset:{SHY}")
            k(f"ds_read_b128 {vr(Y+44,4)}, v3 offset:{SHY+1024}")
            k("s_waitcnt lgkmcnt(0)")
            mark(k, 4)
            k(f"L_{tag}_epi:")
            k("s_mov_b32 s40, 0xffff0000")
            k(f"v_lshlrev_b32 v{BIAS}, 16, v{BIAS}")
            if PERTURB: k(f"v_add_f32 v{BIAS}, {f32(PERTURB)}, v{BIAS}")
            set_ovs()
            for tp in range(2):
                P = T + 4*tp
                for q in range(4):
                    td = 2*tp + q//2
                    a_ = ACC + 4*td + 2*(q % 2); y = Y + 4*td + 2*(q % 2)
                    u, w = T+8+4*q, T+10+4*q
                    pk = Y + 40 + (4*td + 2*(q % 2))//2
                    k(f"v_lshlrev_b32 v{y}, 16, v{pk}")
                    k(f"v_and_b32 v{y+1}, s40, v{pk}")
                    k(f"v_pk_add_f32 {vr(a_,2)}, {vr(a_,2)}, {vr(y,2)}")
                    k(f"v_add_f32 v{u}, v{a_}, v{BIAS}")
                    k(f"v_add_f32 v{u+1}, v{a_+1}, v{BIAS}")
                    k(f"{CVT} v{P+q}, v{u}, v{u+1}")
                pack_swap(P)
                for q in range(4):
                    u, w = T+8+4*q, T+10+4*q
                    hp = HL+4*tp+q
                    k(f"v_lshlrev_b32 v{u}, 16, v{P+q}")
                    k(f"v_and_b32 v{u+1}, s40, v{P+q}")
                    k(f"v_lshlrev_b32 v{w}, 16, v{hp}")
                    k(f"v_and_b32 v{w+1}, s40, v{hp}")
                    k(f"v_pk_add_f32 {vr(u,2)}, {vr(u,2)}, {vr(w,2)}")
                    k(f"{CVT} v{P+q}, v{u}, v{u+1}")
            store_lines(T, T+4, T+32, 0, 48)
        else:
            k("s_waitcnt vmcnt(0)")
            srd(k, 44, 26, 256*(16384 if XBF16 else 32768), 0x1E00000 if XB_SEP else VB_OFF)
            if not XSENT: srd(k, 56, 26, 256*64, FL_OFF)
            k(f"s_xor_b32 s42, s2, {8 if MAP2 == 1 else 1}")
            k(f"s_lshl_b32 s43, s42, {14 if XBF16 else 15}")
            k(f"s_lshl_b32 s39, s28, {12 if XBF16 else 13}")
            k("s_add_u32 s43, s43, s39")
            k("v_lshlrev_b32 v2, 4, v1")
            k("v_mov_b32 v4, 0")
            if not XSENT:
                k("s_lshl_b32 s39, s42, 6")
                k("s_mov_b32 s41, 0")
                k("v_readfirstlane_b32 s61, v3")
                k("s_cmp_eq_u32 s61, 0")
                k(f"s_cbranch_scc0 L_{tag}_xpolld")
                k(f"L_{tag}_xpoll:")
                k("buffer_load_dword v3, v4, s[56:59], s39 offen offset:4 sc0 sc1")
                k("s_waitcnt vmcnt(0)")
                k("v_readfirstlane_b32 s61, v3")
                k("s_add_u32 s41, s41, 1")
                k("s_cmp_ge_u32 s41, 0x40000")
                k(f"s_cbranch_scc1 L_{tag}_xpolld")
                k("s_cmp_eq_u32 s61, 0")
                k(f"s_cbranch_scc1 L_{tag}_xpoll")
                k(f"L_{tag}_xpolld:")
                k("s_cmp_eq_u32 s61, s54")
                k(f"s_cselect_b32 s61, {0 if FORCE_FAR else 1}, 0")
            def sends(flags, lab):
                k("s_cmp_eq_u32 s62, 0")
                k(f"s_cbranch_scc1 L_{tag}_k0{lab}")
                for half, l2 in ((0, None), (32, f"L_{tag}_k0{lab}:")):
                    if l2: k(l2)
                    if XBF16:
                        for i in range(16): k(f"{CVT} v{Y+32+i}, v{ACC+half+2*i}, v{ACC+half+2*i+1}")
                        for i in range(4):
                            k(f"s_add_u32 s39, s43, {1024*i}")
                            k(f"buffer_store_dwordx4 {vr(Y+32+4*i,4)}, v2, s[44:47], s39 offen {flags}")
                    else:
                        for i in range(8):
                            k(f"s_add_u32 s39, s43, {1024*i}")
                            k(f"buffer_store_dwordx4 {vr(ACC+half+4*i,4)}, v2, s[44:47], s39 offen {flags}")
                    if half == 0: k(f"s_branch L_{tag}_k1{lab}")
                k(f"L_{tag}_k1{lab}:")
            def handoff(stf, ldf, lab):
                sends(stf, lab)
                k("s_waitcnt vmcnt(0)")
                k("s_lshl_b32 s39, s42, 6")
                k("s_lshl_b32 s41, s28, 2")
                k("s_add_u32 s39, s39, s41")
                k("v_mov_b32 v3, 1")
                k("s_mov_b64 exec, 1")
                k(f"buffer_store_dword v3, v4, s[56:59], s39 offen offset:16 {stf}")
                k("s_lshl_b32 s39, s2, 6")
                k("s_add_u32 s39, s39, s41")
                k("s_mov_b32 s41, 0")
                k(f"L_{tag}_poll{lab}:")
                k(f"buffer_load_dword v3, v4, s[56:59], s39 offen offset:16 {ldf}")
                k("s_waitcnt vmcnt(0)")
                k("v_readfirstlane_b32 s43, v3")
                k("s_add_u32 s41, s41, 1")
                k("s_cmp_ge_u32 s41, 0x40000")
                k(f"s_cbranch_scc1 L_{tag}_polld{lab}")
                k("s_cmp_eq_u32 s43, 1")
                k(f"s_cbranch_scc0 L_{tag}_poll{lab}")
                k(f"L_{tag}_polld{lab}:")
                k("s_mov_b64 exec, -1")
                k(f"s_lshl_b32 s43, s2, {14 if XBF16 else 15}")
                k(f"s_lshl_b32 s39, s28, {12 if XBF16 else 13}")
                k("s_add_u32 s43, s43, s39")
                for i in range(4 if XBF16 else 8):
                    k(f"s_add_u32 s39, s43, {1024*i}")
                    k(f"buffer_load_dwordx4 {vr(Y+(32 if XBF16 else 0)+4*i,4)}, v2, s[44:47], s39 offen {ldf}")
            if XSENT:
                assert XBF16
                sends('sc0 sc1', 's')
                k("s_lshl_b32 s43, s2, 14")
                k("s_lshl_b32 s39, s28, 12")
                k("s_add_u32 s43, s43, s39")
                k("s_mov_b32 s41, 0")
                if XPRE: k("s_waitcnt vmcnt(0)")
                k(f"L_{tag}_spoll:")
                for i in range(4):
                    k(f"s_add_u32 s39, s43, {1024*i}")
                    k(f"buffer_load_dwordx4 {vr(Y+32+4*i,4)}, v2, s[44:47], s39 offen sc0 sc1")
                k("s_add_u32 s41, s41, 1")
                k("s_waitcnt vmcnt(0)")
                k(f"v_max3_u32 v3, v{Y+32}, v{Y+33}, v{Y+34}")
                for i in range(3, 15, 2): k(f"v_max3_u32 v3, v3, v{Y+32+i}, v{Y+32+i+1}")
                k(f"v_max_u32 v3, v3, v{Y+47}")
                k("v_cmp_eq_u32 vcc, -1, v3")
                k("s_nop 4")
                k("s_cmp_ge_u32 s41, 0x20000")
                k(f"s_cbranch_scc1 L_{tag}_spolld")
                k(f"s_cbranch_vccnz L_{tag}_spoll")
                k(f"L_{tag}_spolld:")
            else:
                k("s_cmp_eq_u32 s61, 1")
                k(f"s_cbranch_scc0 L_{tag}_far")
                handoff('', 'sc1', 'n')
                k(f"s_branch L_{tag}_xdone")
                k(f"L_{tag}_far:")
                handoff('sc0 sc1', 'sc0 sc1', 'f')
                k(f"L_{tag}_xdone:")
            k("s_cmp_eq_u32 s62, 0")
            k(f"s_cbranch_scc1 L_{tag}_kept")
            for i in range(32): k(f"v_mov_b32 v{ACC+i}, v{ACC+32+i}")
            k(f"v_mov_b32 v{BIAS}, v{BIAS+2}"); k(f"v_mov_b32 v{BIAS+1}, v{BIAS+3}")
            k(f"L_{tag}_kept:")
            mark(k, 4)
            k(f"v_lshlrev_b32 v{BIAS}, 16, v{BIAS}"); k(f"v_lshlrev_b32 v{BIAS+1}, 16, v{BIAS+1}")
            if PERTURB:
                k(f"v_add_f32 v{BIAS}, {f32(PERTURB)}, v{BIAS}"); k(f"v_add_f32 v{BIAS+1}, {f32(PERTURB)}, v{BIAS+1}")
            k("s_lshl_b32 s39, s62, 16")
            k("s_add_u32 s38, s38, s39")
            set_ovs()
            for tnl in range(2):
                for tp in range(2):
                    i0 = 4*tnl + 2*tp
                    if XSENT: pass
                    elif XBF16: k(f"s_waitcnt vmcnt({3 - i0//2})")
                    else:     k(f"s_waitcnt vmcnt({6 - i0 if i0 < 6 else 0})")
                    if i0 == 0: mark(k, 5)
                    P = T + 4*tp + 24*tnl
                    for q in range(4):
                        td = 2*tp + q//2
                        a = ACC + 4*(4*tnl+td) + 2*(q % 2); y = Y + 4*(4*tnl+td) + 2*(q % 2)
                        u, w = T+8+4*q, T+10+4*q
                        if XBF16:
                            pk = Y + 32 + (4*(4*tnl+td) + 2*(q % 2))//2
                            k(f"v_lshlrev_b32 v{y}, 16, v{pk}")
                            k(f"v_and_b32 v{y+1}, s40, v{pk}")
                        k(f"v_pk_add_f32 {vr(a,2)}, {vr(a,2)}, {vr(y,2)}")
                        if EMU_Y:
                            k(f"{CVT} v{w}, v{a}, v{a+1}")
                            k(f"v_lshlrev_b32 v{u}, 16, v{w}")
                            k(f"v_and_b32 v{u+1}, s40, v{w}")
                            k(f"v_add_f32 v{u}, v{u}, v{BIAS+tnl}")
                            k(f"v_add_f32 v{u+1}, v{u+1}, v{BIAS+tnl}")
                        else:
                            k(f"v_add_f32 v{u}, v{a}, v{BIAS+tnl}")
                            k(f"v_add_f32 v{u+1}, v{a+1}, v{BIAS+tnl}")
                        k(f"{CVT} v{P+q}, v{u}, v{u+1}")
                    pack_swap(P)
                    for q in range(4):
                        u, w = T+8+4*q, T+10+4*q
                        hp = HL+8*tnl+4*tp+q
                        k(f"v_lshlrev_b32 v{u}, 16, v{P+q}")
                        k(f"v_and_b32 v{u+1}, s40, v{P+q}")
                        k(f"v_lshlrev_b32 v{w}, 16, v{hp}")
                        k(f"v_and_b32 v{w+1}, s40, v{hp}")
                        k(f"v_pk_add_f32 {vr(u,2)}, {vr(u,2)}, {vr(w,2)}")
                        k(f"{CVT} v{P+q}, v{u}, v{u+1}")
                store_lines(T+24*tnl, T+24*tnl+4, T+32, tnl*16*2048, 48)
    stamp_end(k, tag)
    k(f"s_branch {'L_gbar' if (fused and g1) else ENDL}")
    i_prod = len(k.l)
    k(f"L_{tag}_prod:")
    if PPRIO: k(f"s_setprio {PPRIO}")
    k("s_sub_u32 s33, s28, 4")
    k("v_lshrrev_b32 v2, 4, v1")
    k("s_and_b32 s34, s33, 1")
    k("s_lshl_b32 s34, s34, 2")
    k("v_add_u32 v3, s34, v2")
    k("v_lshlrev_b32 v3, 1, v3")
    k("v_and_b32 v4, 15, v1")
    k("v_xor_b32 v3, v3, v4")
    k("v_lshlrev_b32 v3, 4, v3")
    k("v_lshl_add_u32 v8, v2, 11, v3")
    k(f"v_mul_u32_u24 v2, {BSTR}, v2")
    k("v_add_u32 v9, v2, v3")
    k("s_lshl_b32 s34, s33, 13")
    k("s_add_u32 s40, s32, s34")
    k(f"s_mul_i32 s34, s33, {4*BSTR}")
    k("s_add_u32 s41, s31, s34")
    k("s_lshl_b32 s42, s33, 10")
    k("s_mov_b32 s43, 0")
    k("s_add_u32 s46, s52, s53")
    k("s_mov_b32 s47, 0")
    def issue():
        k("s_add_u32 s58, s46, s47")
        k("s_and_b32 s58, s58, 3")
        k("s_cmp_eq_u32 s58, 0")
        k(f"s_cselect_b32 s58, {3+NIT}, {NIT-1}")
        k("s_add_u32 s58, s58, s47")
        k("s_add_u32 s58, s58, s55")
        k(f"s_cmp_ge_u32 s58, {2*NIT}")
        k(f"s_cselect_b32 s59, {2*NIT}, {NIT}")
        k(f"s_cmp_ge_u32 s58, {NIT}")
        k(f"s_cselect_b32 s59, s59, 0")
        k("s_sub_u32 s58, s58, s59")
        if not KPERM: k("s_mov_b32 s58, s47")
        if KWRAP: k(f"s_and_b32 s58, s58, {KWRAP-1}")
        k("s_add_u32 s58, s58, s63")
        k(f"s_mul_i32 s59, s58, {64*BSTR}")
        k(f"s_lshl_b32 s58, s58, 17")
        k("s_add_u32 s58, s58, s40")
        k("s_add_u32 s59, s59, s41")
        k("s_add_u32 s44, s43, s42")
        for m in range(4):
            k(f"s_add_u32 m0, s44, {4096*m}")
            k(f"s_add_u32 s45, s58, {m*16*2048}")
            k(f"buffer_load_dwordx4 v8, s[12:15], s45 offen lds")
            k(f"s_add_u32 m0, s44, {ASZ+4096*m}")
            k(f"s_add_u32 s45, s59, {m*16*BSTR}")
            k(f"buffer_load_dwordx4 v9, s[8:11], s45 offen {NT_B1 if g1 else NT_B2} lds")
        k("s_add_u32 s47, s47, 1")
        k(f"s_add_u32 s43, s43, {STG}")
        k(f"s_cmp_eq_u32 s43, {STG*NS}")
        k("s_cselect_b32 s43, 0, s43")
    if fused and not g1:
        k("s_cmp_eq_u32 s33, 0")
        k("s_cbranch_scc0 L_gbar_nopoll")
        srd(k, 36, 26, 1024, BAR_OFF)
        k("v_and_b32 v2, 7, v1")
        k("v_lshlrev_b32 v2, 7, v2")
        k("s_mov_b32 s34, 0")
        k("L_gbar_poll:")
        if PSLEEP: k(f"s_sleep {PSLEEP}")
        k(f"buffer_load_dword v3, v2, s[36:39], 0 offen {POLLF}")
        k("s_waitcnt vmcnt(0)")
        k("v_cmp_gt_u32 vcc, 32, v3")
        k("s_add_u32 s34, s34, 1")
        k("s_cmp_ge_u32 s34, 0x20000")
        k("s_cbranch_scc1 L_gbar_nopoll")
        k("s_cbranch_vccnz L_gbar_poll")
        k("L_gbar_nopoll:")
        k("s_barrier")
    if BAR2:
        per = 8
        mark(k, 1)
        issue(); mark(k, 2); issue()
        k(f"s_waitcnt vmcnt({per})")
        mark(k, 3)
        k("s_barrier")
        issue(); issue()
        mark(k, 4)
        k("s_mov_b32 s60, 0")
        k(f"L_{tag}_ploop:")
        k(f"s_waitcnt vmcnt({per})")
        k("s_barrier")
        issue(); issue()
        k("s_add_u32 s60, s60, 2")
        k(f"s_cmp_lt_u32 s60, {NIT-4}")
        k(f"s_cbranch_scc1 L_{tag}_ploop")
        k(f"s_waitcnt vmcnt({per})")
        k("s_barrier")
        k("s_waitcnt vmcnt(0)")
        k("s_barrier")
    else:
        producer_loop(k, tag, 8, issue, 3 if STATIC else NS, NIT)
    if g1 and CODEPF2 and not fused:
        k("s_cmp_eq_u32 s33, 0")
        k(f"s_cbranch_scc0 L_{tag}_nonp")
        next_code_pf(k, 'g1', 'g2_kernel', 'L_text_end', 28, 120, 56, 1)
        k(f"L_{tag}_nonp:")
    if g1:
        k("s_and_b32 s34, s33, 1")
        k("s_lshr_b32 s36, s33, 1")
        k("v_and_b32 v2, 15, v1")
        k("v_lshlrev_b32 v2, 1, v2")
        k("s_lshl_b32 s37, s36, 7")
        k("s_add_u32 s37, s37, s31")
        for t in range(2):
            k(f"buffer_load_ushort v{BIAS+t}, v2, s[20:23], s37 offen offset:{64+32*t}")
        k("v_and_b32 v2, 15, v1")
        k("v_lshlrev_b32 v2, 11, v2")
        k("v_lshrrev_b32 v3, 4, v1")
        k(f"v_lshl_add_u32 v{OV}, v3, 4, v2")
        k("s_lshl_b32 s38, s29, 7")
        k("s_lshl_b32 s39, s36, 6")
        k("s_add_u32 s38, s38, s39")
        k("s_add_u32 s38, s38, 32")
        k("s_lshl_b32 s38, s38, 11")
        k("s_add_u32 s38, s38, s32")
        k("s_lshl_b32 s39, s34, 7")
        k("s_add_u32 s38, s38, s39")
        k("s_lshl_b32 s39, s33, 13")
        k(f"s_add_u32 s39, s39, {32768 if STATIC else (98304 if BAR2 else 65536)}")
        k("v_lshl_add_u32 v2, v1, 4, s39")
        k("s_setprio 0")
        k("s_barrier")
        for i in range(8): k(f"ds_read_b128 {vr(ACC+4*i,4)}, v2 offset:{1024*i}")
        k("s_waitcnt vmcnt(0) lgkmcnt(0)")
        k(f"s_branch L_{tag}_epi")
    if (not g1) and XSHARE:
        SHX, SHY = 0, 16384
        k("s_setprio 0")
        k("s_and_b32 s34, s33, 1")
        k("s_lshr_b32 s36, s33, 1")
        k("v_and_b32 v2, 15, v1")
        k("v_lshlrev_b32 v2, 1, v2")
        k("s_lshl_b32 s37, s36, 7")
        k("s_add_u32 s37, s37, s31")
        k("s_lshl_b32 s39, s62, 6")
        k("s_add_u32 s37, s37, s39")
        k(f"buffer_load_ushort v{BIAS}, v2, s[20:23], s37 offen offset:32")
        k("v_and_b32 v2, 15, v1")
        k("v_lshlrev_b32 v2, 11, v2")
        k("v_lshrrev_b32 v3, 4, v1")
        k(f"v_lshl_add_u32 v{OV}, v3, 4, v2")
        k("s_lshl_b32 s38, s29, 7")
        k("s_lshl_b32 s39, s36, 6")
        k("s_add_u32 s38, s38, s39")
        k("s_lshl_b32 s39, s62, 5")
        k("s_add_u32 s38, s38, s39")
        k("s_add_u32 s38, s38, 16")
        k("s_lshl_b32 s38, s38, 11")
        k("s_add_u32 s38, s38, s32")
        k("s_lshl_b32 s39, s34, 7")
        k("s_add_u32 s38, s38, s39")
        for tp in range(2):
            k(f"s_add_u32 s40, s38, {tp*64}")
            k(f"buffer_load_dwordx4 {vr(HL+4*tp,4)}, v{OV}, s[16:19], s40 offen")
        srd(k, 44, 26, 256*16384, 0x1E00000 if XB_SEP else VB_OFF)
        k("s_lshl_b32 s43, s2, 14")
        k("s_lshl_b32 s39, s33, 12")
        k("s_add_u32 s43, s43, s39")
        k("v_lshlrev_b32 v2, 4, v1")
        k("s_lshl_b32 s39, s33, 12")
        k("v_add_u32 v3, s39, v2")
        k("s_barrier")
        for i in range(4): k(f"ds_read_b128 {vr(ACC+4*i,4)}, v3 offset:{SHX+1024*i}")
        k("s_mov_b32 s41, 0")
        k(f"L_{tag}_spoll:")
        for i in range(4):
            k(f"s_add_u32 s39, s43, {1024*i}")
            k(f"buffer_load_dwordx4 {vr(Y+32+4*i,4)}, v2, s[44:47], s39 offen sc0 sc1")
        k("s_add_u32 s41, s41, 1")
        k("s_waitcnt vmcnt(0)")
        k(f"v_max3_u32 v5, v{Y+32}, v{Y+33}, v{Y+34}")
        for i in range(3, 15, 2): k(f"v_max3_u32 v5, v5, v{Y+32+i}, v{Y+32+i+1}")
        k(f"v_max_u32 v5, v5, v{Y+47}")
        k("v_cmp_eq_u32 vcc, -1, v5")
        k("s_nop 4")
        k("s_cmp_ge_u32 s41, 0x20000")
        k(f"s_cbranch_scc1 L_{tag}_spolld")
        k(f"s_cbranch_vccnz L_{tag}_spoll")
        k(f"L_{tag}_spolld:")
        k("s_lshl_b32 s39, s33, 11")
        k("v_add_u32 v3, s39, v2")
        k(f"ds_write_b128 v3, {vr(Y+32,4)} offset:{SHY}")
        k(f"ds_write_b128 v3, {vr(Y+36,4)} offset:{SHY+1024}")
        k("s_waitcnt lgkmcnt(0)")
        k("s_barrier")
        k(f"s_branch L_{tag}_epi")
    stamp_end(k, tag, tid=256, slot=256, sfx='p')
    if PRODFIRST and not fused:
        k(f"s_branch {ENDL}")
        k.l = k.l[:i_cons] + k.l[i_prod:] + k.l[i_cons:i_prod]
    if fused and g1:
        return k, NV, STG*NS
    k(f"{ENDL}:")
    k("s_endpgm")
    return k, NV, STG*NS

def gelu_pair(k, src, u, w, bias, dst):
    if EMU_U:
        k(f"{CVT} v{w}, v{src}, v{src+1}")
        k(f"v_lshlrev_b32 v{u}, 16, v{w}")
        k(f"v_and_b32 v{u+1}, s40, v{w}")
        k(f"v_add_f32 v{u}, v{u}, v{bias}")
        k(f"v_add_f32 v{u+1}, v{u+1}, v{bias}")
        k(f"{CVT} v{w}, v{u}, v{u+1}")
        k(f"v_lshlrev_b32 v{u}, 16, v{w}")
        k(f"v_and_b32 v{u+1}, s40, v{w}")
    else:
        k(f"v_add_f32 v{u}, v{src}, v{bias}")
        k(f"v_add_f32 v{u+1}, v{src+1}, v{bias}")
    k(f"v_pk_mul_f32 {vr(w,2)}, {vr(u,2)}, {vr(u,2)}")
    k(f"v_pk_fma_f32 {vr(w,2)}, {vr(w,2)}, s[42:43], {vr(4,2)} op_sel_hi:[1,0,1]")
    k(f"v_pk_mul_f32 {vr(w,2)}, {vr(w,2)}, {vr(u,2)}")
    k(f"v_exp_f32 v{w}, v{w}")
    k(f"v_exp_f32 v{w+1}, v{w+1}")
    k(f"s_nop 0")
    k(f"v_pk_add_f32 {vr(w,2)}, {vr(w,2)}, {vr(6,2)}")
    k(f"v_rcp_f32 v{w}, v{w}")
    k(f"v_rcp_f32 v{w+1}, v{w+1}")
    k(f"s_nop 0")
    k(f"v_pk_mul_f32 {vr(w,2)}, {vr(w,2)}, {vr(u,2)}")
    k(f"{CVT} v{dst}, v{w}, v{w+1}")

RPAT = [2, 1]
FUSE_GG = 0
FUSE23 = 1
FILL1 = 0
FILLPOS = 2
W2WAVES = 8
W2DEPTH = 1
XPRE = 1
PRODFIRST = 0
FIRSTPF = 0
CODEPF2 = 1
WJOB = 2
LN_FUSE = 1
WEARLY = 1
W1IDLE = 0
EMU_LN = 0
EMU_L2 = 0
NT_B1 = ''
NT_B2 = ''
NT_X = ''
NT_W = ''
KHALF = 1
XSENT = 1
XSHARE = 0
XWAIT = 1
XBF16 = 1
EMU_Y = 0
PERTURB = 0
PSLEEP = 4
POLLF = 'sc0 sc1'
STATIC = 1
LOOPSTAMP = 0
BAR2 = 0
FAKE32 = 0
MAP2 = 0
XB_SEP = 1
FORCE_FAR = 0
PPRIO = 3
PFD = 0
KPERM = 1
FAKE16 = 0
NS1 = 3
NS2 = 3
KWRAP = 0
W2PF = 7
EMU_U = 0
RPG1 = 3
RPG2 = 4
def gen_gg():
    k1, nv1, l1 = gemm_kernel('g1', True)
    k2, nv2, l2 = gemm_kernel('g2', True)
    k1.l += k2.l
    return k1, max(nv1, nv2), max(l1, l2)
def gen_g1(): return gemm_kernel('g1')
def gen_g2(): return gemm_kernel('g2')

KERNELS = [('p1_kernel', gen_p1, (256,1,1), (256,1,1)), ('p2_kernel', gen_p2, (256,1,1), (256,1,1)), ('p3_kernel', gen_p3, (256,1,1), (256,1,1)),
 ('g1_kernel', gen_g1, (256,1,1), (512,1,1)), ('g2_kernel', gen_g2, (256,1,1), (512,1,1))]

def build_all(kernels=None):
    ks = []
    if kernels is None:
        kernels = KERNELS[:3] + [('gg_kernel', gen_gg, (256,1,1), (512,1,1))] if FUSE_GG else KERNELS
        if FUSE23: kernels = [kernels[0], ('p23_kernel', gen_p23, (256,1,1), (256,1,1))] + list(kernels[3:])
    for name, fn, grid, block in kernels:
        if W1PF and name in ('p2_kernel', 'p3_kernel'): block = (320, 1, 1)
        if FIRSTPF and name == 'p3_kernel': block = (320, 1, 1)
        k, nv, lds = fn()
        if ST_ALL:
            k.l = [ (x + ' ' + ST_ALL) if ('buffer_store' in x and 'sc1' not in x and 'sc0' not in x and ' nt' not in x) else x for x in k.l]
        if name.startswith('g'):
            if NO_DMA: k.l = [x for x in k.l if not ('offen lds' in x)]
            if NO_MFMA: k.l = [x for x in k.l if 'v_mfma' not in x]
            if NO_ADV: k.l = [x for x in k.l if not (x.strip().startswith('s_add_u32 s40, s40,') or x.strip().startswith('s_add_u32 s41, s41,'))]
            if NO_A: k.l = [x for x in k.l if not ('s[12:15]' in x and 'offen lds' in x)]
            if NO_B: k.l = [x for x in k.l if not ('s[8:11]' in x and 'offen lds' in x)]
            if NO_BAR: k.l = [x for x in k.l if 's_barrier' not in x]
            if NO_READ: k.l = [x for x in k.l if 'ds_read_b64_tr' not in x]
        ks.append((name, k, nv, lds, grid, block))
    hdr = open('sequential_preLN__spectral_gfnet__mixer_token_mlp__prompt.s.ref').read().split('; Override launch')[0]
    s = hdr
    for name, k, nv, lds, grid, block in ks:
        s += f"; @launch kernel={name} grid=({grid[0]},{grid[1]},{grid[2]}) block=({block[0]},{block[1]},{block[2]}) lds={lds}\n"
    s += '.amdgcn_target "amdgcn-amd-amdhsa--gfx950"\n.text\n'
    for name, k, nv, lds, grid, block in ks: s += k.text()
    s += 'L_text_end:\n'
    s += '.section .rodata,"a"\n'
    for name, k, nv, lds, grid, block in ks: s += descriptor(name, nv)
    return s, ks

if __name__ == '__main__':
    s, ks = build_all()
    open(sys.argv[1] if len(sys.argv) > 1 else 'out.s', 'w').write(s)
    print('written', len(s), 'bytes')
```

```python
import sys, math, struct
sys.path.insert(0, 'work')
from asmlib import *

ZW_OFF = 0x0          ; ZW_SIZE = 257*32768
ZD_OFF = 0x0 ; WB_OFF = 0x480000
VB_OFF = 0x900000     ; VB_BLK = 256*64
H_OFF  = 0xE00000
HN_OFF = 0x1200000
GT_OFF = 0x1600000
BAR_OFF = 0x2810000
FG_OFF = 0x2820000
WS_USED = 0x1D00000
S, D, F = 2048, 1024, 3584

def f32(x):
    return '0x%08x' % struct.unpack('<I', struct.pack('<f', x))[0]

CVT = 'v_cvt_pk_bf16_f32'
STAMP = False
NO_DMA = False
NO_MFMA = False
NO_READ = False
NO_BAR = False
NO_ADV = False
NO_A = False
NO_B = False
STAMP_OFF = 0x3000000
KIDX = {'p1':0,'p2':1,'p3':2,'g1':3,'g2':4}
NMARK = 8
def mark(k, i):
    if STAMP and not (LOOPSTAMP and k.name.startswith('g') and 1 <= i <= 4): k(f"s_memrealtime s[{64+2*i}:{65+2*i}]")
def stamp_begin(k):
    if STAMP:
        for i in range(1, NMARK): k(f"s_mov_b64 s[{64+2*i}:{65+2*i}], 0")
        k("s_memrealtime s[64:65]")
        k("s_memtime s[94:95]")
def stamp_end(k, tag, tid=0, slot=0, sfx=''):
    if not STAMP: return
    mark(k, 6)
    k("s_waitcnt vmcnt(0) lgkmcnt(0)")
    mark(k, 7)
    k("s_memtime s[84:85]")
    k("s_load_dwordx2 s[88:89], s[0:1], 80")
    k("s_waitcnt lgkmcnt(0)")
    k(f"s_add_u32 s88, s88, {STAMP_OFF + KIDX[tag]*65536}")
    k("s_addc_u32 s89, s89, 0")
    k(f"s_add_u32 s87, s2, {slot}")
    k("s_lshl_b32 s87, s87, 7")
    k("v_mov_b32 v8, s87")
    k(f"v_cmp_eq_u32 vcc, {tid}, v0" if tid <= 64 else f"v_cmp_eq_u32 vcc, {hex(tid)}, v0")
    k("s_and_saveexec_b64 s[86:87], vcc")
    k(f"s_cbranch_execz L_{tag}_nostamp{sfx}")
    for i in range(0, NMARK, 2):
        for j in range(4): k(f"v_mov_b32 v{4+j}, s{64+2*i+j}")
        k(f"global_store_dwordx4 v8, v[4:7], s[88:89] offset:{8*i}")
        k("s_nop 1")
    k("v_mov_b32 v4, s94"); k("v_mov_b32 v5, s95"); k("v_mov_b32 v6, s84"); k("v_mov_b32 v7, s85")
    k("global_store_dwordx4 v8, v[4:7], s[88:89] offset:64")
    k("s_getreg_b32 s84, hwreg(HW_REG_XCC_ID, 0, 4)")
    k("s_nop 1")
    k("v_mov_b32 v4, s84")
    k("global_store_dword v8, v4, s[88:89] offset:80")
    k(f"L_{tag}_nostamp{sfx}:")

MF32 = 'v_mfma_f32_32x32x16_bf16'

CODEPF = 1
W1PF = 0
W1PF0 = 0
W1L2 = 0
ST_FLAGS = ''
ST_ALL = ''
ST_P1 = 'sc1'
ST_P2 = 'sc1'
ST_P3 = 'sc1'
ST_G1 = 'sc1'
ST_G2 = 'nt'
OUT_TOUCH = 0
def code_prefetch(k, tag, first_label, last_label, vtmp, stmp, nwaves_cond=None):
    if not CODEPF: return
    k(f"s_getpc_b64 s[{stmp}:{stmp+1}]")
    k(f"L_{tag}_pc:")
    k(f"s_add_u32 s{stmp}, s{stmp}, {first_label}-L_{tag}_pc")
    k(f"s_addc_u32 s{stmp+1}, s{stmp+1}, 0")

WS_BASE = 0
def srd(k, s, base, size, off=0):
    if base == 26: off += WS_BASE
    if off:
        k(f"s_add_u32 s{s}, s{base}, {hex(off)}")
        k(f"s_addc_u32 s{s+1}, s{base+1}, 0")
    else:
        k(f"s_mov_b32 s{s}, s{base}")
        k(f"s_mov_b32 s{s+1}, s{base+1}")
    k(f"s_mov_b32 s{s+2}, {hex(size)}")
    k(f"s_mov_b32 s{s+3}, 0x20000")

SEQ = [(r, c) for r in range(4) for c in range(4)]

def rot_setup(k, vA, t):
    k(f"v_mul_f32 v{t+4}, {f32(5.0)}, v{vA}")
    k(f"v_cos_f32 v{t}, v{vA}")
    k(f"v_sin_f32 v{t+1}, v{vA}")
    k(f"v_cos_f32 v{t+2}, v{t+4}")
    k(f"v_sin_f32 v{t+3}, v{t+4}")

def rot(k, dst, src, st, tmp, sign):
    k(f"v_pk_mul_f32 {vr(tmp,2)}, {vr(src,2)}, {vr(st,2)} op_sel_hi:[1,0]")
    neg = "neg_lo:[0,1,0]" if sign > 0 else "neg_hi:[0,1,0]"
    k(f"v_pk_fma_f32 {vr(dst,2)}, {vr(src,2)}, {vr(st,2)}, {vr(tmp,2)} op_sel:[1,1,0] op_sel_hi:[0,1,1] {neg}")

def gen_matrix(k, Mr, Mi, vA, vB, t):
    rot_setup(k, vA, t)
    cur = [t+6, t+8]
    k(f"v_cos_f32 v{cur[0]}, v{vB}")
    k(f"v_sin_f32 v{cur[0]+1}, v{vB}")
    k("s_nop 0")
    for i, (r, c) in enumerate(SEQ):
        a_, b_ = cur[i % 2], cur[(i+1) % 2]
        if i < 15: rot(k, b_, a_, t+2 if c == 3 else t, t+4, +1)
        k(f"{CVT} v{Mr+i}, v{a_}, v{a_+1}")
        k(f"{CVT} v{Mi+i}, -v{a_+1}, v{a_}")

def gen_twiddle(k, tw, vA, vB, t, scale=None):
    rot_setup(k, vA, t)
    k(f"v_cos_f32 v{tw}, v{vB}")
    k(f"v_sin_f32_e64 v{tw+1}, -v{vB}")
    if scale is not None:
        k(f"v_mul_f32 v{tw}, {f32(scale)}, v{tw}")
        k(f"v_mul_f32 v{tw+1}, {f32(scale)}, v{tw+1}")
    else: k("s_nop 0")
    for i, (r, c) in enumerate(SEQ):
        if i < 15: rot(k, tw+2*(i+1), tw+2*i, t+2 if c == 3 else t, t+4, -1)

def stage(k, typ, Dr, Di, data, Mr, Mi, first=True):
    for r in range(4):
        for (Dx, M) in ((Dr, Mr), (Di, Mi)):
            c = '0' if (r == 0 and first) else vr(Dx, 16)
            if typ == 'A': k(f"{MF32} {vr(Dx,16)}, {vr(data+4*r,4)}, {vr(M+4*r,4)}, {c}")
            else:          k(f"{MF32} {vr(Dx,16)}, {vr(M+4*r,4)}, {vr(data+4*r,4)}, {c}")

def cmul_pack(k, Dr, Di, w, out, t, conj=False):
    for j in range(16):
        o = t + 2*(j % 4); jp = j & ~1; x = j & 1
        k(f"v_pk_mul_f32 {vr(o,2)}, {vr(w+2*j,2)}, {vr(Dr+jp,2)} op_sel:[0,{x}] op_sel_hi:[1,{x}]")
        k(f"v_pk_fma_f32 {vr(o,2)}, {vr(w+2*j,2)}, {vr(Di+jp,2)}, {vr(o,2)} op_sel:[1,{x},0] op_sel_hi:[0,{x},1] neg_lo:[1,0,0]")
        if j >= 1:
            po = t + 2*((j-1) % 4); n = '-' if conj else ''
            k(f"{CVT} v{out+j-1}, v{po}, {n}v{po+1}")
    po = t + 2*(15 % 4); n = '-' if conj else ''
    k(f"{CVT} v{out+15}, v{po}, {n}v{po+1}")

def wave_reduce2(k, a, b):
    for m in ("quad_perm:[1,0,3,2] row_mask:0xf", "quad_perm:[2,3,0,1] row_mask:0xf", "row_half_mirror row_mask:0xf",
              "row_mirror row_mask:0xf", "row_bcast:15 row_mask:0xa", "row_bcast:31 row_mask:0xc"):
        k(f"v_add_f32_dpp v{a}, v{a}, v{a} {m} bank_mask:0xf")
        k(f"v_add_f32_dpp v{b}, v{b}, v{b} {m} bank_mask:0xf")

def tree_sum(k, X, n, t, op='add'):
    acc = [t, t+2, t+4, t+6]
    for i in range(4):
        k(f"v_pk_add_f32 {vr(acc[i],2)}, {vr(X+2*i,2)}, {vr(X+2*(i+4),2)}")
    for i in range(8, n):
        k(f"v_pk_add_f32 {vr(acc[i%4],2)}, {vr(acc[i%4],2)}, {vr(X+2*i,2)}")
    k(f"v_pk_add_f32 {vr(acc[0],2)}, {vr(acc[0],2)}, {vr(acc[1],2)}")
    k(f"v_pk_add_f32 {vr(acc[2],2)}, {vr(acc[2],2)}, {vr(acc[3],2)}")
    k(f"v_pk_add_f32 {vr(acc[0],2)}, {vr(acc[0],2)}, {vr(acc[2],2)}")

def ln_scalars(k, t, twice=False):
    k(f"v_mul_f32 v{t}, {f32(1/1024)}, v{t}")
    k(f"v_mul_f32 v{t+1}, {f32(1/1024)}, v{t+1}")
    if twice:
        k(f"v_add_f32 v{t+2}, {f32(1e-5)}, v{t}")
        k(f"v_add_f32 v{t+3}, {f32(1e-5)}, v{t+1}")
        k(f"v_rsq_f32 v{t+2}, v{t+2}")
        k(f"v_rsq_f32 v{t+3}, v{t+3}")
        k("s_nop 0")
        k(f"v_mul_f32 v{t}, v{t}, v{t+2}")
        k(f"v_mul_f32 v{t+1}, v{t+1}, v{t+3}")
        k(f"v_mul_f32 v{t}, v{t}, v{t+2}")
        k(f"v_mul_f32 v{t+1}, v{t+1}, v{t+3}")
        k(f"v_add_f32 v{t}, {f32(1e-5)}, v{t}")
        k(f"v_add_f32 v{t+1}, {f32(1e-5)}, v{t+1}")
        k(f"v_rsq_f32 v{t}, v{t}")
        k(f"v_rsq_f32 v{t+1}, v{t+1}")
        k("s_nop 0")
        k(f"v_mul_f32 v{t}, v{t}, v{t+2}")
        k(f"v_mul_f32 v{t+1}, v{t+1}, v{t+3}")
        k(f"v_mul_f32 v{t+12}, v{t+12}, v{t}")
        k(f"v_mul_f32 v{t+13}, v{t+13}, v{t+1}")
        return
    if EMU_LN:
        k(f"{CVT} v{t+2}, v{t}, v{t+1}")
        k(f"v_lshlrev_b32 v{t}, 16, v{t+2}")
        k(f"v_and_b32 v{t+1}, 0xffff0000, v{t+2}")
    k(f"v_add_f32 v{t}, {f32(1e-5)}, v{t}")
    k(f"v_add_f32 v{t+1}, {f32(1e-5)}, v{t+1}")
    if EMU_LN:
        k(f"{CVT} v{t+2}, v{t}, v{t+1}")
        k(f"v_lshlrev_b32 v{t}, 16, v{t+2}")
        k(f"v_and_b32 v{t+1}, 0xffff0000, v{t+2}")
        k(f"v_sqrt_f32 v{t}, v{t}")
        k(f"v_sqrt_f32 v{t+1}, v{t+1}")
        k(f"s_nop 0")
        k(f"{CVT} v{t+2}, v{t}, v{t+1}")
        k(f"v_lshlrev_b32 v{t}, 16, v{t+2}")
        k(f"v_and_b32 v{t+1}, 0xffff0000, v{t+2}")
        k(f"v_rcp_f32 v{t}, v{t}")
        k(f"v_rcp_f32 v{t+1}, v{t+1}")
    else:
        k(f"v_rsq_f32 v{t}, v{t}")
        k(f"v_rsq_f32 v{t+1}, v{t+1}")
    k(f"s_nop 0")
    k(f"v_mul_f32 v{t+12}, v{t+12}, v{t}")
    k(f"v_mul_f32 v{t+13}, v{t+13}, v{t+1}")

def ln_mean(k, t, sTmp):
    k(f"v_mul_f32 v{t}, {f32(1/1024)}, v{t}")
    k(f"v_mul_f32 v{t+1}, {f32(1/1024)}, v{t+1}")
    if EMU_LN:
        k(f"{CVT} v{t+2}, v{t}, v{t+1}")
        k(f"v_readlane_b32 s{sTmp}, v{t}, 63")
        k(f"v_readlane_b32 s{sTmp+1}, v{t+1}, 63")
        k(f"v_lshlrev_b32 v{t+12}, 16, v{t+2}")
        k(f"v_and_b32 v{t+13}, 0xffff0000, v{t+2}")
    else:
        k(f"v_mov_b32 v{t+12}, v{t}")
        k(f"v_mov_b32 v{t+13}, v{t+1}")
        k(f"v_readlane_b32 s{sTmp}, v{t}, 63")
        k(f"v_readlane_b32 s{sTmp+1}, v{t+1}, 63")

def ln_stats_xrow(k, X, t, sM, sR, sTmp):
    tree_sum(k, X, 16, t)
    wave_reduce2(k, t, t+1)
    ln_mean(k, t, sTmp)
    acc = [t, t+2]; tmp = [t+4, t+6, t+8, t+10]
    for i in range(16):
        d = tmp[i % 4]
        k(f"v_pk_add_f32 {vr(d,2)}, {vr(X+2*i,2)}, {sr(sTmp,2)} neg_lo:[0,1] neg_hi:[0,1]")
        a = acc[i % 2]
        if i < 2: k(f"v_pk_mul_f32 {vr(a,2)}, {vr(d,2)}, {vr(d,2)}")
        else:     k(f"v_pk_fma_f32 {vr(a,2)}, {vr(d,2)}, {vr(d,2)}, {vr(a,2)}")
    k(f"v_pk_add_f32 {vr(t,2)}, {vr(t,2)}, {vr(t+2,2)}")
    wave_reduce2(k, t, t+1)
    ln_scalars(k, t)
    k(f"v_readlane_b32 s{sR}, v{t}, 63")
    k(f"v_readlane_b32 s{sR+1}, v{t+1}, 63")
    k(f"v_readlane_b32 s{sM}, v{t+12}, 63")
    k(f"v_readlane_b32 s{sM+1}, v{t+13}, 63")

def gen_p1():
    k = Kern('p1_kernel')
    k("s_cmp_ge_u32 s2, 256")
    k("s_cbranch_scc1 L_p1_end")
    stamp_begin(k)
    k("s_load_dwordx4 s[4:7], s[0:1], 0")
    k("s_load_dwordx2 s[24:25], s[0:1], 16")
    k("s_load_dwordx2 s[60:61], s[0:1], 32")
    k("s_load_dwordx2 s[26:27], s[0:1], 80")
    TID, LANE = 0, 1
    if CODEPF:
        k("s_getpc_b64 s[52:53]")
        k("L_p1_pc:")
        k("s_sub_u32 s52, s52, L_p1_pc-p1_kernel")
        k("s_subb_u32 s53, s53, 0")
        k("s_lshr_b32 s54, s2, 3")
        k("s_mul_i32 s54, s54, (L_text_end-p1_kernel+4095)/4096")
        k("v_add_u32 v213, s54, v0")
        k("v_lshlrev_b32 v213, 7, v213")
        k("v_mov_b32 v211, s53")
        k("v_add_co_u32 v210, vcc, s52, v213")
        k("v_addc_co_u32 v211, vcc, 0, v211, vcc")
        k("v_cmp_gt_u32 vcc, (L_text_end-p1_kernel+4095)/4096, v0")
        k("s_and_saveexec_b64 s[54:55], vcc")
        k("s_cbranch_execz L_p1_cp0")
        k("v_cmp_gt_u32 vcc, L_text_end-p1_kernel, v213")
        k("s_and_b64 exec, exec, vcc")
        k("s_cbranch_execz L_p1_cp0")
        k("global_load_dword v212, v[210:211], off")
        k("L_p1_cp0:")
        k("s_mov_b64 exec, -1")
    k("v_and_b32 v1, 63, v0")
    k("v_lshrrev_b32 v2, 6, v0")
    k("v_readfirstlane_b32 s28, v2")
    k("s_lshr_b32 s29, s2, 5")
    k("s_lshl_b32 s29, s29, 2")
    k("s_and_b32 s30, s2, 31")
    k("s_add_u32 s31, s29, s28")
    k("s_lshl_b32 s31, s31, 5")
    k("s_add_u32 s31, s31, s30")
    k("s_lshl_b32 s31, s31, 11")
    k("s_add_u32 s32, s31, 0x200000")
    k("s_waitcnt lgkmcnt(0)")
    srd(k, 8, 4, S*D*2)
    srd(k, 12, 6, S*513*2)
    srd(k, 16, 24, S*513*2)
    srd(k, 20, 26, 257*16384, ZD_OFF)
    srd(k, 72 if False else 52, 26, 257*16384, WB_OFF) if False else None
    XL = 4
    if FUSE_GG == 2:
        srd(k, 56, 26, 288*128, FG_OFF)
        k("s_lshl_b32 s33, s2, 7")
        k("v_mov_b32 v2, 0")
        k("v_lshlrev_b32 v3, 15, v0")
        k("s_cmp_lt_u32 s2, 32")
        k("s_cselect_b32 s34, 2, 1")
        k("v_cmp_gt_u32 vcc, s34, v0")
        k("s_and_saveexec_b64 s[34:35], vcc")
        k("s_cbranch_execz L_p1_nozf")
        k("buffer_store_dword v2, v3, s[56:59], s33 offen sc0 sc1")
        k("L_p1_nozf:")
        k("s_mov_b64 exec, -1")
    if FUSE_GG == 1 or (FUSE23 and FILLPOS != 2):
        srd(k, 56, 26, 1024, BAR_OFF)
        k("s_cmp_lt_u32 s2, 8")
        k("s_cbranch_scc0 L_p1_nozb")
        k("s_lshl_b32 s33, s2, 7")
        k("v_mov_b32 v2, 0")
        k("v_cmp_eq_u32 vcc, 0, v0")
        k("s_and_saveexec_b64 s[34:35], vcc")
        k("s_cbranch_execz L_p1_nozb")
        k("buffer_store_dword v2, v2, s[56:59], s33 offen sc0 sc1")
        k("L_p1_nozb:")
        k("s_mov_b64 exec, -1")
    k("v_lshlrev_b32 v2, 4, v1")
    k(f"buffer_load_dwordx4 {vr(XL,4)}, v2, s[8:11], s31 offen {NT_X}")
    k(f"buffer_load_dwordx4 {vr(XL+4,4)}, v2, s[8:11], s31 offen offset:1024 {NT_X}")
    k(f"buffer_load_dwordx4 {vr(XL+8,4)}, v2, s[8:11], s32 offen {NT_X}")
    k(f"buffer_load_dwordx4 {vr(XL+12,4)}, v2, s[8:11], s32 offen offset:1024 {NT_X}")
    WL = 20
    def w_loads():
        k("v_lshlrev_b32 v220, 2, v0")
        k("s_lshl_b32 s33, s29, 6")
        k("s_lshl_b32 s34, s30, 1")
        k("s_add_u32 s33, s33, s34")
        k("s_mul_i32 s33, s33, 1026")
        for pi in range(2):
            for cc in range(4):
                off = (64*cc + pi)*1026
                k(f"s_add_u32 s34, s33, {off}")
                k(f"buffer_load_dword v{WL+4*pi+cc}, v220, s[12:15], s34 offen {NT_W}")
                k(f"buffer_load_dword v{WL+8+4*pi+cc}, v220, s[16:19], s34 offen {NT_W}")
        WX = 200
        k("v_and_b32 v200, 3, v1")
        k("v_lshlrev_b32 v200, 6, v200")
        k("v_bfe_u32 v201, v1, 2, 1")
        k("v_add_u32 v200, v200, v201")
        k("v_mul_u32_u24 v200, 1026, v200")
        k("v_add_u32 v200, 1024, v200")
        k("v_and_b32 v226, 3, v1")
        k("v_lshlrev_b32 v226, 6, v226")
        k("v_add_u32 v226, v226, v201")
        k("s_lshl_b32 s49, s29, 6")
        k("s_lshl_b32 s50, s30, 1")
        k("s_add_u32 s49, s49, s50")
        k("v_add_u32 v226, s49, v226")
        k("v_sub_u32 v226, 2048, v226")
        k("v_and_b32 v226, 2047, v226")
        k("v_mul_u32_u24 v226, 1026, v226")
        k("v_subrev_u32 v227, 1024, v200")
        k("v_cmp_gt_u32 vcc, 8, v0")
        k("s_and_saveexec_b64 s[36:37], vcc")
        k("s_cbranch_execz L_p1_nox")
        k("buffer_load_ushort v202, v200, s[12:15], s33 offen")
        k("buffer_load_ushort v203, v200, s[16:19], s33 offen")
        k("buffer_load_ushort v228, v227, s[12:15], s33 offen")
        k("buffer_load_ushort v229, v227, s[16:19], s33 offen")
        k("buffer_load_ushort v230, v226, s[12:15], 0 offen")
        k("buffer_load_ushort v231, v226, s[16:19], 0 offen")
        k("buffer_load_ushort v232, v226, s[12:15], 0 offen offset:1024")
        k("buffer_load_ushort v233, v226, s[16:19], 0 offen offset:1024")
        k("L_p1_nox:")
        k("s_mov_b64 exec, -1")
    if WEARLY == 1: w_loads()
    def vb_fill(reg):
        srd(k, 56, 26, 256*VB_BLK, VB_OFF)
        for i in range(4): k(f"v_mov_b32 v{reg+i}, -1")
        k("v_lshlrev_b32 v234, 4, v0")
        k("s_lshl_b32 s51, s2, 14")
        for j in range(4):
            k(f"buffer_store_dwordx4 {vr(reg,4)}, v234, s[56:59], s51 offen sc0 sc1")
            if j < 3: k("s_add_u32 s51, s51, 4096")
    if FUSE23 and FILLPOS == 2 and FILL1 == 0: vb_fill(36)
    WL = 20
    Mr, Mi, TW = 36, 52, 68
    XF, DR, DI, OP, T = 100, 132, 148, 164, 180
    k("v_and_b32 v2, 31, v1")
    k("v_cvt_f32_u32 v2, v2")
    k("v_lshrrev_b32 v3, 5, v1")
    k("v_lshlrev_b32 v3, 2, v3")
    k("v_cvt_f32_u32 v3, v3")
    k(f"v_mul_f32 v204, {f32(1/32)}, v2")
    k("v_mul_f32 v205, v204, v3")
    gen_matrix(k, Mr, Mi, 204, 205, T)
    k(f"v_mul_f32 v204, {f32(1/1024)}, v2")
    k("v_mul_f32 v205, v204, v3")
    gen_twiddle(k, TW, 204, 205, T)
    STG = 16384; WST = STG + 257*64 + 64
    k("s_lshr_b32 s44, s2, 2")
    k("s_and_b32 s44, s44, 3")
    k("s_mov_b32 s45, 0x05040100")
    k("s_mov_b32 s46, 0x07060302")
    k("s_lshl_b32 s47, s2, 6")
    k("s_lshl_b32 s48, s28, 2")
    k(f"s_add_u32 s48, s48, {STG}")
    B1, B2, AWJ, AX, ARD, AGL, AT1, AT2, AWR, AWG = 206, 207, 208, 209, 216, 217, 218, 219, 221, 222
    k("v_and_b32 v2, 31, v1")
    k("v_lshrrev_b32 v3, 5, v1")
    k("v_and_b32 v204, 1, v2")
    k("v_lshrrev_b32 v205, 1, v2")
    k(f"v_xor_b32 v{B1}, s44, v204")
    k(f"v_lshlrev_b32 v{B1}, 4, v{B1}")
    k(f"v_lshl_add_u32 v{B1}, v205, 6, v{B1}")
    k(f"v_lshl_add_u32 v{B1}, v3, 12, v{B1}")
    k(f"v_add_u32 v{B1}, s48, v{B1}")
    k("v_add_u32 v205, 1, v2")
    k("v_lshrrev_b32 v205, 1, v205")
    k("v_add_u32 v204, 2, v204")
    k(f"v_xor_b32 v{B2}, s44, v204")
    k(f"v_lshlrev_b32 v{B2}, 4, v{B2}")
    k("v_lshlrev_b32 v205, 6, v205")
    k(f"v_sub_u32 v{B2}, v{B2}, v205")
    k("v_lshlrev_b32 v205, 12, v3")
    k(f"v_sub_u32 v{B2}, v{B2}, v205")
    k(f"v_add_u32 v{B2}, s48, v{B2}")
    k("s_lshl_b32 s49, s28, 12")
    k(f"s_add_u32 s49, s49, {WST}")
    k("v_bfe_u32 v204, v1, 1, 2")
    k("v_xor_b32 v204, s44, v204")
    k("v_lshlrev_b32 v204, 4, v204")
    k(f"v_lshl_add_u32 v{AWJ}, v1, 6, v204")
    k(f"v_add_u32 v{AWJ}, s49, v{AWJ}")
    k("v_lshrrev_b32 v204, 2, v1")
    k("v_and_b32 v205, 3, v1")
    k(f"v_bfe_u32 v{AT1}, v204, 1, 2")
    k(f"v_xor_b32 v{AT1}, v{AT1}, v205")
    k(f"v_lshlrev_b32 v{AT1}, 4, v{AT1}")
    k(f"v_lshl_add_u32 v{AWR}, v204, 6, v{AT1}")
    k(f"v_add_u32 v{AWR}, s49, v{AWR}")
    k("s_lshl_b32 s49, s28, 6")
    k("v_add_u32 v204, s49, v204")
    k("v_lshlrev_b32 v204, 14, v204")
    k(f"v_lshl_add_u32 v{AWG}, v205, 4, v204")
    k("v_bfe_u32 v204, v1, 2, 1")
    k("v_xor_b32 v204, s44, v204")
    k("v_lshlrev_b32 v204, 4, v204")
    k("v_and_b32 v205, 3, v1")
    k(f"v_lshl_add_u32 v{AX}, v205, 2, v204")
    APW = 223
    k(f"v_add_u32 v{APW}, {WST}, v{AX}")
    k(f"v_lshlrev_b32 v{ARD}, 4, v0")
    k(f"v_add_u32 v{ARD}, {STG}, v{ARD}")
    k("v_lshrrev_b32 v204, 2, v0")
    k("v_lshlrev_b32 v204, 14, v204")
    k("v_and_b32 v205, 3, v0")
    k(f"v_lshl_add_u32 v{AGL}, v205, 4, v204")
    k("s_xor_b32 s49, s44, 2")
    k("s_lshl_b32 s49, s49, 4")
    k("s_add_u32 s49, s49, s48")
    k("s_lshl_b32 s50, s44, 4")
    k("s_add_u32 s50, s50, s48")
    k(f"v_mov_b32 v{AT1}, s49")
    k(f"v_mov_b32 v{AT2}, s50")
    k("s_lshl_b32 s36, s28, 12")
    k("v_lshlrev_b32 v2, 5, v1")
    k("v_add_u32 v2, s36, v2")
    k("v_and_b32 v3, 31, v1")
    k("v_lshlrev_b32 v3, 2, v3")
    k("v_lshrrev_b32 v204, 5, v1")
    k("v_lshlrev_b32 v204, 9, v204")
    k("v_add3_u32 v3, v3, v204, s36")
    k("s_mov_b32 s35, 0xffff0000")
    if WEARLY == 2: w_loads()
    mark(k, 1)
    k(("s_waitcnt vmcnt(20)" if (FUSE23 and FILLPOS == 2 and FILL1 == 0) else "s_waitcnt vmcnt(16)") if WEARLY else "s_waitcnt vmcnt(0)")
    mark(k, 2)
    if FUSE23 and FILLPOS == 2 and FILL1 == 1: vb_fill(180)
    if not WEARLY: w_loads()
    for i in range(16):
        for row in range(2):
            src = XL + 8*row + (i >> 1)
            if i % 2 == 0: k(f"v_lshlrev_b32 v{XF+2*i+row}, 16, v{src}")
            else:          k(f"v_and_b32 v{XF+2*i+row}, s35, v{src}")
    ln_stats_xrow(k, XF, T, 38, 40, 42)
    k(f"v_mov_b32 v{T+8}, s40"); k(f"v_mov_b32 v{T+9}, s41")
    k(f"v_mov_b32 v{T+10}, s38"); k(f"v_mov_b32 v{T+11}, s39")
    for i in range(16):
        d = T + 2*(i % 4)
        k(f"v_pk_fma_f32 {vr(d,2)}, {vr(XF+2*i,2)}, {vr(T+8,2)}, {vr(T+10,2)} neg_lo:[0,0,1] neg_hi:[0,0,1]")
        k(f"{CVT} v{OP+i}, v{d}, v{d+1}")
    k(f"ds_write_b128 v2, {vr(OP,4)}")
    k(f"ds_write_b128 v2, {vr(OP+4,4)} offset:16")
    k(f"ds_write_b128 v2, {vr(OP+8,4)} offset:2048")
    k(f"ds_write_b128 v2, {vr(OP+12,4)} offset:2064")
    k("s_waitcnt lgkmcnt(0)")
    for i, (r, c) in enumerate(SEQ):
        k(f"ds_read_b32 v{OP+i}, v3 offset:{(8*r+c)*128}")
    mark(k, 3)
    k("s_waitcnt lgkmcnt(0)")
    stage(k, 'A', DR, DI, OP, Mr, Mi)
    def w_job():
        srd(k, 56, 26, 257*16384, WB_OFF)
        k("s_waitcnt vmcnt(4)" if WJOB == 2 else "s_waitcnt vmcnt(0)")
        WO = XF
        for e in range(2):
            for pi in range(2):
                for cc in range(4):
                    k(f"v_perm_b32 v{WO+4*(2*e+pi)+cc}, v{WL+8+4*pi+cc}, v{WL+4*pi+cc}, s{45+e}")
        for sl in range(4):
            if sl: k(f"v_xor_b32 v204, {16*sl}, v{AWJ}")
            k(f"ds_write_b128 v{204 if sl else AWJ}, {vr(WO+4*sl,4)}")
        k("s_add_u32 s49, s47, 0x400000")
        k("v_cmp_gt_u32 vcc, 8, v0")
        k("s_and_saveexec_b64 s[36:37], vcc")
        k("s_cbranch_execz L_p1_nox2")
        for r_ in (202, 203, 228, 229, 230, 231, 232, 233): k(f"v_lshlrev_b32 v{r_}, 16, v{r_}")
        k("v_add_f32 v228, v228, v230")
        k("v_sub_f32 v229, v229, v231")
        k("v_add_f32 v202, v202, v232")
        k("v_sub_f32 v203, v203, v233")
        k("v_add_f32 v230, v228, v202")
        k("v_add_f32 v231, v229, v203")
        k("v_sub_f32 v232, v228, v202")
        k("v_sub_f32 v233, v229, v203")
        for r_ in (230, 231, 232, 233): k(f"v_mul_f32 v{r_}, 0x3e800000, v{r_}")
        k(f"{CVT} v202, v230, v231")
        k(f"{CVT} v203, v232, v233")
        k(f"ds_write_b32 v{APW}, v202")
        k(f"buffer_store_dword v203, v{AX}, s[56:59], s49 offen {ST_P1}")
        k("L_p1_nox2:")
        k("s_mov_b64 exec, -1")
        k("s_waitcnt lgkmcnt(0)")
        for j in range(4): k(f"ds_read_b128 {vr(WO+16+4*j,4)}, v{AWR} offset:{1024*j}")
        k("s_mov_b32 s49, s47")
        for j in range(4):
            k(f"s_waitcnt lgkmcnt({3-j})")
            k(f"buffer_store_dwordx4 {vr(WO+16+4*j,4)}, v{AWG}, s[56:59], s49 offen {ST_P1}")
            if j < 3: k(f"s_add_u32 s49, s49, {16*16384}")
    if WJOB == 0: w_job()
    cmul_pack(k, DR, DI, TW, OP, T)
    stage(k, 'B', DR, DI, OP, Mr, Mi)
    mark(k, 4)
    for i, (r, c) in enumerate(SEQ):
        if r < 2: k(f"{CVT} v{OP+i}, v{DR+i}, v{DI+i}")
        else:     k(f"{CVT} v{OP+i}, v{DI+i}, v{DR+i}")
        if r < 2: k(f"ds_write_b32 v{B1}, v{OP+i} offset:{(8*r+c)*1024}")
        else:     k(f"ds_write_b32 v{B2}, v{OP+i} offset:{(32-8*r-c)*1024}")
    k(f"v_sub_f32 v{T+2}, v{DR}, v{DI+8}")
    k(f"v_add_f32 v{T+3}, v{DI}, v{DR+8}")
    k(f"v_sub_f32 v{T+4}, v{DI}, v{DR+8}")
    k(f"v_add_f32 v{T+5}, v{DR}, v{DI+8}")
    k(f"{CVT} v{T}, v{T+4}, v{T+5}")
    k(f"{CVT} v{T+1}, v{T+2}, v{T+3}")
    k("s_mov_b64 exec, 1")
    k(f"ds_write_b32 v{AT1}, v{T}")
    k(f"ds_write_b32 v{AT2}, v{T+1}")
    k("s_mov_b64 exec, -1")
    if WJOB == 1: w_job()
    k("s_waitcnt lgkmcnt(0)")
    k("s_barrier")
    RO = XF
    for j in range(4):
        k(f"ds_read_b128 {vr(RO+4*j,4)}, v{ARD} offset:{4096*j}")
    for j in range(4):
        k(f"s_waitcnt lgkmcnt({3-j})")
        k(f"buffer_store_dwordx4 {vr(RO+4*j,4)}, v{AGL}, s[20:23], s47 offen {ST_P1}")
        if j < 3: k("s_add_u32 s47, s47, 0x100000")
    if WJOB == 2:
        k("s_sub_u32 s47, s47, 0x300000")
        w_job()
    stamp_end(k, 'p1')
    k("L_p1_end:")
    k("s_endpgm")
    k("L_p1_endc:")
    return k, 236, WST + 16384

def pf_wave(k, tag, first_line):
    if not W1PF: return
    k("s_cmp_eq_u32 s28, 4")
    k(f"s_cbranch_scc0 L_{tag}_nopf")
    k("s_waitcnt lgkmcnt(0)")
    srd(k, 16, 24, S*F*2)
    k(f"s_mul_i32 s33, s2, {W1PF*128}")
    k(f"s_add_u32 s33, s33, {first_line*128}")
    k("v_lshlrev_b32 v3, 7, v1")
    for i in range(W1PF//64):
        k("buffer_load_dword v4, v3, s[16:19], s33 offen")
        k("s_add_u32 s33, s33, 8192")
    k("s_endpgm")
    k(f"L_{tag}_nopf:")

def first_tiles_wave(k):
    if not FIRSTPF: return
    k("s_cmp_eq_u32 s28, 4")
    k("s_cbranch_scc0 L_p3_noft")
    k("s_waitcnt lgkmcnt(0)")
    srd(k, 16, 24, S*F*2)
    k("s_lshr_b32 s33, s2, 6")
    k("s_lshl_b32 s33, s33, 3")
    k("s_lshr_b32 s33, 0x0400031f, s33")
    k("s_and_b32 s33, s33, 31")
    k("s_and_b32 s34, s2, 1")
    k("s_lshl_b32 s34, s34, 4")
    k("s_add_u32 s33, s33, s34")
    k("s_and_b32 s33, s33, 31")
    k(f"s_mul_i32 s33, s33, {64*7168}")
    k("s_bfe_u32 s34, s2, 0x20001")
    k("s_mul_i32 s34, s34, 1792")
    k("s_add_u32 s33, s33, s34")
    k("s_bfe_u32 s34, s2, 0x30003")
    k("s_mul_i32 s34, s34, 112")
    for h in range(2):
        k(f"v_add_u32 v2, {64*h}, v1")
        k("v_min_u32 v2, 111, v2")
        k("v_add_u32 v2, s34, v2")
        k("v_mul_u32_u24 v3, 4682, v2")
        k("v_lshrrev_b32 v3, 16, v3")
        k("v_mul_u32_u24 v4, 14, v3")
        k("v_sub_u32 v4, v2, v4")
        k("v_mul_u32_u24 v3, 7168, v3")
        k("v_lshl_add_u32 v3, v4, 7, v3")
        k(f"buffer_load_dword v{5+h}, v3, s[16:19], s33 offen")
    k("s_endpgm")
    k("L_p3_noft:")

def next_code_pf(k, tag, first, last, nwg, vt, st, lane):
    if not CODEPF2: return
    per = f"(({last}-{first})/128+{nwg})/{nwg}"
    k(f"s_getpc_b64 s[{st}:{st+1}]")
    k(f"L_{tag}_npc:")
    k(f"s_add_u32 s{st}, s{st}, {first}-L_{tag}_npc")
    k(f"s_addc_u32 s{st+1}, s{st+1}, 0")
    k(f"s_lshr_b32 s{st+2}, s2, 3")
    k(f"s_mul_i32 s{st+2}, s{st+2}, {per}")
    k(f"v_add_u32 v{vt+2}, s{st+2}, v{lane}")
    k(f"v_lshlrev_b32 v{vt+2}, 7, v{vt+2}")
    k(f"v_mov_b32 v{vt+1}, s{st+1}")
    k(f"v_add_co_u32 v{vt}, vcc, s{st}, v{vt+2}")
    k(f"v_addc_co_u32 v{vt+1}, vcc, 0, v{vt+1}, vcc")
    k(f"v_cmp_gt_u32 vcc, {per}, v{lane}")
    k(f"s_mov_b64 exec, vcc")
    k(f"v_cmp_gt_u32 vcc, {last}-{first}, v{vt+2}")
    k(f"s_and_b64 exec, exec, vcc")
    k(f"s_cbranch_execz L_{tag}_npe")
    k(f"global_load_dword v{vt+3}, v[{vt}:{vt+1}], off")
    k(f"L_{tag}_npe:")
    k("s_mov_b64 exec, -1")

def gen_p2(fused=False):
    k = Kern('p23_kernel' if fused else 'p2_kernel')
    k("s_cmp_ge_u32 s2, 256")
    k("s_cbranch_scc1 L_p2_end")
    stamp_begin(k)
    k("s_load_dwordx2 s[26:27], s[0:1], 80")
    k("s_load_dwordx2 s[24:25], s[0:1], 32")
    if fused: k("s_load_dwordx2 s[4:5], s[0:1], 0")
    k("v_and_b32 v1, 63, v0")
    k("v_lshrrev_b32 v2, 6, v0")
    k("v_readfirstlane_b32 s28, v2")
    pf_wave(k, 'p2', W1PF0)
    k("v_lshlrev_b32 v2, 4, v1")
    k("s_lshr_b32 s29, s28, 1")
    k("s_and_b32 s30, s28, 1")
    k("s_lshl_b32 s31, s2, 14")
    k("s_lshl_b32 s32, s28, 12")
    k("s_add_u32 s31, s31, s32")
    k("s_waitcnt lgkmcnt(0)")
    srd(k, 8, 26, 257*16384, ZD_OFF)
    srd(k, 20, 26, 257*16384, WB_OFF)
    srd(k, 12, 26, 256*VB_BLK, VB_OFF)
    for i in range(4):
        k(f"s_add_u32 m0, s32, {1024*i}")
        k(f"s_add_u32 s33, s31, {1024*i}")
        k(f"buffer_load_dwordx4 v2, s[8:11], s33 offen lds")
    k("s_or_b32 s46, s2, s29")
    k("s_cmp_eq_u32 s46, 0")
    k("s_cbranch_scc0 L_p2_noq")
    k("v_bfe_u32 v3, v1, 2, 2")
    k("v_xor_b32 v3, s30, v3")
    k("v_lshlrev_b32 v3, 4, v3")
    k("v_lshl_add_u32 v3, v1, 6, v3")
    k("s_lshl_b32 s47, s30, 12")
    for r in range(4):
        k(f"s_add_u32 m0, s47, {32768+1024*r}")
        k(f"s_mov_b32 s33, {0x400000+4096*r}")
        k("buffer_load_dwordx4 v3, s[20:23], s33 offen lds")
    k("L_p2_noq:")
    def own_fill(reg):
        for i in range(4): k(f"v_mov_b32 v{reg+i}, -1")
        k("v_lshlrev_b32 v3, 4, v0")
        k("s_lshl_b32 s33, s2, 14")
        for j in range(4):
            k(f"buffer_store_dwordx4 {vr(reg,4)}, v3, s[12:15], s33 offen sc0 sc1")
            if j < 3: k("s_add_u32 s33, s33, 4096")
    if fused and FILLPOS != 2: srd(k, 16, 26, 1024, BAR_OFF)
    if fused and FILLPOS == 0: own_fill(4)
    Z1, Z2 = 4, 20
    M1r, M1i, MFr, MFi, MIr, MIi = 36, 52, 68, 84, 100, 116
    T1, T2 = 132, 164
    DR, DI, T = 196, 212, 228
    A, B, J, H4, PI = 244, 245, 246, 247, 248
    k(f"v_and_b32 v{J}, 31, v1")
    k(f"v_cvt_f32_u32 v{J}, v{J}")
    k(f"v_lshrrev_b32 v{H4}, 5, v1")
    k(f"v_lshlrev_b32 v{H4}, 2, v{H4}")
    k(f"v_cvt_f32_u32 v{H4}, v{H4}")
    k(f"v_mov_b32 v{PI}, s30")
    k(f"v_cvt_f32_u32 v{PI}, v{PI}")
    k(f"v_mul_f32 v{A}, {f32(1/32)}, v{J}")
    k(f"v_mul_f32 v{B}, v{A}, v{H4}")
    gen_matrix(k, MFr, MFi, A, B, T)
    k(f"v_fma_f32 v{A}, v{J}, 2.0, v{PI}")
    k(f"v_mul_f32 v{A}, {f32(1/64)}, v{A}")
    k(f"v_mul_f32 v{B}, v{A}, v{H4}")
    gen_matrix(k, M1r, M1i, A, B, T)
    k("s_lshl_b32 s33, s30, 4")
    k(f"v_and_b32 v{T}, 31, v1")
    k(f"v_xor_b32 v{T}, s33, v{T}")
    k(f"v_cvt_f32_u32 v{T}, v{T}")
    k(f"v_mul_f32 v{A}, {f32(1/32)}, v{T}")
    k(f"v_mul_f32 v{B}, v{A}, v{H4}")
    k(f"v_mul_f32 v{T}, {f32(1/64)}, v{T}")
    k(f"v_fma_f32 v{B}, v{T}, v{PI}, v{B}")
    gen_matrix(k, MIr, MIi, A, B, T)
    k(f"v_fma_f32 v{A}, v{J}, 2.0, v{PI}")
    k(f"v_mul_f32 v{A}, {f32(1/2048)}, v{A}")
    k(f"v_mov_b32 v{T}, {f32(0.125)}")
    k(f"v_mul_f32 v{T+1}, {f32(-0.25)}, v{PI}")
    k(f"v_add_f32 v{T}, v{T}, v{T+1}")
    k(f"v_fma_f32 v{B}, v{A}, v{H4}, v{T}")
    gen_twiddle(k, T1, A, B, T)
    k(f"v_mul_f32 v{A}, {f32(1/1024)}, v{J}")
    k(f"v_mul_f32 v{B}, v{A}, v{H4}")
    k(f"v_mul_f32 v{T}, {f32(1/2048)}, v{J}")
    k(f"v_fma_f32 v{B}, v{T}, v{PI}, v{B}")
    gen_twiddle(k, T2, A, B, T)
    AZ1, AZ2, AW = 249, 250, 251
    k(f"v_bfe_u32 v{T}, v1, 2, 2")
    k(f"v_lshlrev_b32 v{T+1}, 6, v1")
    k(f"v_xor_b32 v{AZ1}, s29, v{T}")
    k(f"v_lshl_add_u32 v{AZ1}, v{AZ1}, 4, v{T+1}")
    k(f"v_xor_b32 v{AZ2}, 32, v{AZ1}")
    k("s_lshl_b32 s33, s29, 1")
    k("s_add_u32 s33, s33, s30")
    k(f"v_xor_b32 v{AW}, s33, v{T}")
    k(f"v_lshl_add_u32 v{AW}, v{AW}, 4, v{T+1}")
    k(f"v_add_u32 v{AW}, 16384, v{AW}")
    k("s_mul_i32 s34, s30, 0x80008000")
    k("s_mov_b32 s35, 0xffff0000")
    mark(k, 1)
    k("s_waitcnt vmcnt(4)" if (fused and FILLPOS == 0) else "s_waitcnt vmcnt(0)")
    for i in range(4):
        k(f"s_add_u32 m0, s32, {16384+1024*i}")
        k(f"s_add_u32 s33, s31, {1024*i}")
        k(f"buffer_load_dwordx4 v2, s[20:23], s33 offen lds")
    if fused and FILLPOS == 1: own_fill(DR)
    k("s_barrier")
    mark(k, 2)
    for r in range(4):
        k(f"ds_read_b128 {vr(Z1+4*r,4)}, v{AZ1} offset:{4096*r}")
        k(f"ds_read_b128 {vr(Z2+4*r,4)}, v{AZ2} offset:{4096*r}")
    k("s_waitcnt lgkmcnt(0)")
    for i in range(16):
        k(f"v_xor_b32 v{Z2+i}, s34, v{Z2+i}")
    stage(k, 'A', DR, DI, Z1, M1r, M1i, first=True)
    stage(k, 'A', DR, DI, Z2, M1r, M1i, first=False)
    OP = Z1
    cmul_pack(k, DR, DI, T1, OP, T)
    k("s_waitcnt vmcnt(0)")
    k("s_barrier")
    if fused and FILLPOS != 2:
        k("s_cmp_eq_u32 s28, 0")
        k("s_cbranch_scc0 L_p2_noarr")
        k("s_and_b32 s33, s2, 7")
        k("s_lshl_b32 s33, s33, 7")
        k("v_mov_b32 v249, 1")
        k("v_mov_b32 v250, 0")
        k("s_mov_b64 exec, 1")
        k("buffer_atomic_add v249, v250, s[16:19], s33 offen sc1")
        k("s_mov_b64 exec, -1")
        k("L_p2_noarr:")
    for r in range(4):
        k(f"ds_read_b128 {vr(Z2+4*r,4)}, v{AW} offset:{4096*r}")
    stage(k, 'B', DR, DI, OP, MFr, MFi)
    WP = M1r
    k("s_waitcnt lgkmcnt(0)")
    for i in range(16):
        k(f"v_lshlrev_b32 v{WP+2*i}, 16, v{Z2+i}")
        k(f"v_and_b32 v{WP+2*i+1}, s35, v{Z2+i}")
    k("s_or_b32 s46, s2, s29")
    k("s_cmp_eq_u32 s46, 0")
    k("s_cbranch_scc1 L_p2_spec")
    cmul_pack(k, DR, DI, WP, OP, T, conj=True)
    k("L_p2_specd:")
    stage(k, 'A', DR, DI, OP, MFr, MFi)
    cmul_pack(k, DR, DI, T2, OP, T)
    stage(k, 'B', DR, DI, OP, MIr, MIi)
    mark(k, 4)
    if fused and FILLPOS != 2:
        k("s_cmp_eq_u32 s28, 0")
        k("s_cbranch_scc0 L_p2_nochk0")
        k("v_and_b32 v249, 7, v1")
        k("v_lshlrev_b32 v249, 7, v249")
        k("buffer_load_dword v250, v249, s[16:19], 0 offen sc0 sc1")
        k("L_p2_nochk0:")
    XCH, STG = 32768, 49152
    AX = 252
    k("s_lshl_b32 s36, s28, 12")
    k(f"s_add_u32 s36, s36, {XCH}")
    k(f"v_lshl_add_u32 v{AX}, v1, 4, s36")
    k(f"ds_write_b128 v{AX}, {vr(DR+8,4)}")
    k(f"ds_write_b128 v{AX}, {vr(DR+12,4)} offset:1024")
    k(f"ds_write_b128 v{AX}, {vr(DI+8,4)} offset:2048")
    k(f"ds_write_b128 v{AX}, {vr(DI+12,4)} offset:3072")
    k(f"v_xor_b32 v{AX}, 4096, v{AX}")
    k("s_cmp_eq_u32 s30, 0")
    k(f"s_cselect_b32 s40, {f32(1.0)}, {f32(-1.0)}")
    k("s_mov_b32 s42, s40")
    k("s_waitcnt lgkmcnt(0)")
    k("s_barrier")
    OR_, OI = 36, 44
    k(f"ds_read_b128 {vr(OR_,4)}, v{AX}")
    k(f"ds_read_b128 {vr(OR_+4,4)}, v{AX} offset:1024")
    k(f"ds_read_b128 {vr(OI,4)}, v{AX} offset:2048")
    k(f"ds_read_b128 {vr(OI+4,4)}, v{AX} offset:3072")
    k(f"v_bfe_u32 v{T}, v1, 1, 2")
    k(f"v_xor_b32 v{T+1}, s29, v{T}")
    k(f"v_xor_b32 v{T+2}, 2, v{T+1}")
    k("s_lshl_b32 s43, s30, 13")
    k(f"s_add_u32 s43, s43, {STG}")
    k(f"v_lshl_add_u32 v{T+3}, v1, 6, s43")
    k(f"v_lshl_add_u32 v253, v{T+1}, 4, v{T+3}")
    k(f"v_lshl_add_u32 v254, v{T+2}, 4, v{T+3}")
    k("s_waitcnt lgkmcnt(0)")
    UA, UB = 52, 60
    Ur, Ui, Er, Ei, Ar, Ai, Br, Bi = [x + (64 if fused else 0) for x in (68, 70, 72, 74, 76, 78, 80, 82)]
    bc = "op_sel_hi:[1,0,1]"
    k("s_cmp_eq_u32 s46, 0")
    k("s_cbranch_scc1 L_p2_spost")
    for j in range(0, 8, 2):
        o = 16*((j//2) % 2)
        ur, ui, er, ei, a_r, a_i, b_r, b_i = [x+o for x in (Ur, Ui, Er, Ei, Ar, Ai, Br, Bi)]
        k(f"v_pk_add_f32 {vr(ur,2)}, {vr(DR+j,2)}, {vr(OR_+j,2)}")
        k(f"v_pk_add_f32 {vr(ui,2)}, {vr(DI+j,2)}, {vr(OI+j,2)}")
        k(f"v_pk_add_f32 {vr(er,2)}, {vr(DR+j,2)}, {vr(OR_+j,2)} neg_lo:[0,1] neg_hi:[0,1]")
        k(f"v_pk_add_f32 {vr(ei,2)}, {vr(DI+j,2)}, {vr(OI+j,2)} neg_lo:[0,1] neg_hi:[0,1]")
        k(f"v_pk_fma_f32 {vr(a_r,2)}, {vr(ei,2)}, s[42:43], {vr(ur,2)} {bc}")
        k(f"v_pk_fma_f32 {vr(b_r,2)}, {vr(ei,2)}, s[42:43], {vr(ur,2)} {bc} neg_lo:[1,0,0] neg_hi:[1,0,0]")
        k(f"v_pk_fma_f32 {vr(a_i,2)}, {vr(er,2)}, s[40:41], {vr(ui,2)} {bc} neg_lo:[1,0,0] neg_hi:[1,0,0]")
        k(f"v_pk_fma_f32 {vr(b_i,2)}, {vr(er,2)}, s[40:41], {vr(ui,2)} {bc} neg_lo:[1,0,1] neg_hi:[1,0,1]")
        k(f"{CVT} v{UA+j}, v{a_r}, v{a_i}")
        k(f"{CVT} v{UA+j+1}, v{a_r+1}, v{a_i+1}")
        k(f"{CVT} v{UB+j}, v{b_r}, v{b_i}")
        k(f"{CVT} v{UB+j+1}, v{b_r+1}, v{b_i+1}")
    k("s_branch L_p2_postd")
    k("L_p2_spost:")
    for j in range(0, 8, 2):
        o = 16*((j//2) % 2)
        ur, ui, er, ei, a_r, a_i, b_r, b_i = [x+o for x in (Ur, Ui, Er, Ei, Ar, Ai, Br, Bi)]
        k(f"v_pk_add_f32 {vr(ur,2)}, {vr(DR+j,2)}, {vr(OR_+j,2)}")
        k(f"v_pk_add_f32 {vr(ui,2)}, {vr(DI+j,2)}, {vr(OI+j,2)}")
        k(f"v_pk_add_f32 {vr(er,2)}, {vr(DR+j,2)}, {vr(OR_+j,2)} neg_lo:[0,1] neg_hi:[0,1]")
        k(f"v_pk_add_f32 {vr(ei,2)}, {vr(DI+j,2)}, {vr(OI+j,2)} neg_lo:[0,1] neg_hi:[0,1]")
        k(f"v_pk_mul_f32 {vr(a_i,2)}, {vr(er,2)}, s[40:41] op_sel_hi:[1,0] neg_lo:[1,0] neg_hi:[1,0]")
        k(f"v_pk_mul_f32 {vr(b_i,2)}, {vr(ei,2)}, s[40:41] op_sel_hi:[1,0]")
        k(f"{CVT} v{UA+j}, v{ur}, v{a_i}")
        k(f"{CVT} v{UA+j+1}, v{ur+1}, v{a_i+1}")
        k(f"{CVT} v{UB+j}, -v{ui}, v{b_i}")
        k(f"{CVT} v{UB+j+1}, -v{ui+1}, v{b_i+1}")
    k("L_p2_postd:")
    for rl in range(2):
        k(f"ds_write_b128 v253, {vr(UA+4*rl,4)} offset:{4096*rl}")
        k(f"ds_write_b128 v254, {vr(UB+4*rl,4)} offset:{4096*rl}")
    k(f"v_and_b32 v{T}, 3, v0")
    k(f"v_bfe_u32 v{T+1}, v0, 3, 2")
    k(f"v_xor_b32 v{T+1}, v{T}, v{T+1}")
    k(f"v_lshrrev_b32 v{T+2}, 2, v0")
    k(f"v_lshlrev_b32 v{T+3}, 6, v{T+2}")
    k(f"v_lshl_add_u32 v{T+3}, v{T+1}, 4, v{T+3}")
    k(f"v_add_u32 v{T+3}, {STG}, v{T+3}")
    k(f"v_mul_u32_u24 v{T+2}, {VB_BLK}, v{T+2}")
    k("s_and_b32 s44, s2, 2")
    k(f"v_xor_b32 v{T}, s44, v{T}")
    k(f"v_lshl_add_u32 v{T+2}, v{T}, 4, v{T+2}")
    k("s_lshl_b32 s45, s2, 6")
    if fused and FILLPOS != 2:
        k("s_cmp_eq_u32 s28, 0")
        k("s_cbranch_scc0 L_p2_chkd")
        k("s_mov_b32 s47, 0")
        k("L_p2_chk:")
        k("s_waitcnt vmcnt(0)")
        k("v_cmp_gt_u32 vcc, 32, v250")
        k("s_add_u32 s47, s47, 1")
        k("s_cmp_ge_u32 s47, 0x20000")
        k("s_cbranch_scc1 L_p2_chkd")
        k("s_nop 2")
        k("s_cbranch_vccz L_p2_chkd")
        k("buffer_load_dword v250, v249, s[16:19], 0 offen sc0 sc1")
        k("s_branch L_p2_chk")
        k("L_p2_chkd:")
    k("s_waitcnt lgkmcnt(0)")
    k("s_barrier")
    for j in range(4):
        k(f"ds_read_b128 {vr(4+4*j,4)}, v{T+3} offset:{4096*j}")
    k("s_waitcnt lgkmcnt(0)")
    for j in range(4):
        k(f"buffer_store_dwordx4 {vr(4+4*j,4)}, v{T+2}, s[12:15], s45 offen {ST_P2}")
        if j < 3: k(f"s_add_u32 s45, s45, {64*VB_BLK}")
    if fused:
        mark(k, 3)
        p3_body(k, True)
    stamp_end(k, 'p2')
    k("L_p2_end:")
    k("s_endpgm")
    k("L_p2_spec:")
    QP = T1
    XB_ = Z2
    k("s_lshl_b32 s47, s30, 12")
    k(f"v_lshl_add_u32 v{T}, v1, 4, s47")
    for r in range(4):
        k(f"ds_read_b128 {vr(XB_+4*r,4)}, v{T} offset:{32768+1024*r}")
    k("s_lshl_b32 s47, s30, 13")
    k(f"v_and_b32 v{T+1}, 31, v1")
    k(f"v_lshrrev_b32 v{T+2}, 5, v1")
    k(f"v_lshlrev_b32 v{T+3}, 2, v{T+1}")
    k(f"v_lshl_add_u32 v{T+3}, v{T+2}, 10, v{T+3}")
    k(f"v_add_u32 v{T+3}, s47, v{T+3}")
    for i, (r, c) in enumerate(SEQ):
        k(f"ds_write_b32 v{T+3}, v{DR+i} offset:{(8*r+c)*256}")
        k(f"ds_write_b32 v{T+3}, v{DI+i} offset:{(8*r+c)*256+128}")
    k(f"v_add_u32 v{T+4}, s30, v{T+1}")
    k(f"v_sub_u32 v{T+5}, 32, v{T+4}")
    k(f"v_lshlrev_b32 v{T+5}, 2, v{T+5}")
    k(f"v_cmp_eq_u32 vcc, 0, v{T+4}")
    k(f"v_mov_b32 v{T+6}, 256")
    k(f"v_cndmask_b32 v{T+5}, v{T+5}, v{T+6}, vcc")
    k(f"v_lshlrev_b32 v{T+6}, 10, v{T+2}")
    k(f"v_sub_u32 v{T+5}, v{T+5}, v{T+6}")
    k(f"v_add_u32 v{T+5}, 1024, v{T+5}")
    k(f"v_add_u32 v{T+5}, s47, v{T+5}")
    k(f"v_add_u32 v{T+6}, {27*256}, v{T+5}")
    k(f"v_or_b32 v{T+7}, v{T+4}, v{T+2}")
    k(f"v_cmp_eq_u32 vcc, 0, v{T+7}")
    k(f"v_mov_b32 v{T+7}, s47")
    k(f"v_cndmask_b32 v{T+6}, v{T+6}, v{T+7}, vcc")
    k("s_waitcnt lgkmcnt(0)")
    for i in range(16):
        k(f"v_lshlrev_b32 v{QP+2*i}, 16, v{XB_+i}")
        k(f"v_and_b32 v{QP+2*i+1}, s35, v{XB_+i}")
    for half in range(2):
        for jj in range(8):
            i = 8*half + jj; r, c = SEQ[i]
            if i == 0:
                k(f"ds_read_b32 v{XB_+2*jj}, v{T+6}")
                k(f"ds_read_b32 v{XB_+2*jj+1}, v{T+6} offset:128")
            else:
                k(f"ds_read_b32 v{XB_+2*jj}, v{T+5} offset:{(27-8*r-c)*256}")
                k(f"ds_read_b32 v{XB_+2*jj+1}, v{T+5} offset:{(27-8*r-c)*256+128}")
        k("s_waitcnt lgkmcnt(0)")
        for jj in range(8):
            j = 8*half + jj; o = T + 8 + 2*(jj % 4); jp = j & ~1; x = j & 1
            k(f"v_pk_mul_f32 {vr(o,2)}, {vr(WP+2*j,2)}, {vr(DR+jp,2)} op_sel:[0,{x}] op_sel_hi:[1,{x}]")
            k(f"v_pk_fma_f32 {vr(o,2)}, {vr(WP+2*j,2)}, {vr(DI+jp,2)}, {vr(o,2)} op_sel:[1,{x},0] op_sel_hi:[0,{x},1] neg_lo:[1,0,0]")
            k(f"v_pk_fma_f32 {vr(o,2)}, {vr(QP+2*j,2)}, {vr(XB_+2*jj,2)}, {vr(o,2)} op_sel:[0,0,0] op_sel_hi:[1,0,1]")
            k(f"v_pk_fma_f32 {vr(o,2)}, {vr(QP+2*j,2)}, {vr(XB_+2*jj,2)}, {vr(o,2)} op_sel:[1,1,0] op_sel_hi:[0,1,1] neg_hi:[1,0,0]")
            k(f"{CVT} v{OP+j}, v{o}, -v{o+1}")
    k("s_branch L_p2_specd")
    return k, 256, 65536

def ln_stats_rows(k, R0, R1, t, vRM, sTmp, twice=False):
    for (R, o) in ((R0, 0), (R1, 4)):
        a, b = t+o, t+o+2
        k(f"v_pk_add_f32 {vr(a,2)}, {vr(R,2)}, {vr(R+2,2)}")
        k(f"v_pk_add_f32 {vr(b,2)}, {vr(R+4,2)}, {vr(R+6,2)}")
    for i in range(4, 8):
        for (R, o) in ((R0, 0), (R1, 4)):
            a = t+o+2*(i % 2)
            k(f"v_pk_add_f32 {vr(a,2)}, {vr(a,2)}, {vr(R+2*i,2)}")
    for o in (0, 4):
        k(f"v_pk_add_f32 {vr(t+o,2)}, {vr(t+o,2)}, {vr(t+o+2,2)}")
    k(f"v_add_f32 v{t}, v{t}, v{t+1}")
    k(f"v_add_f32 v{t+1}, v{t+4}, v{t+5}")
    wave_reduce2(k, t, t+1)
    ln_mean(k, t, sTmp)
    acc = {0: t, 1: t+2}; tmp = [t+4, t+6, t+8, t+10]
    n = 0
    for i in range(8):
        for row, R in ((0, R0), (1, R1)):
            d = tmp[n % 4]; n += 1
            sel = "op_sel_hi:[1,0]" if row == 0 else "op_sel:[0,1] op_sel_hi:[1,1]"
            k(f"v_pk_add_f32 {vr(d,2)}, {vr(R+2*i,2)}, {sr(sTmp,2)} {sel} neg_lo:[0,1] neg_hi:[0,1]")
            a = acc[row]
            if i == 0: k(f"v_pk_mul_f32 {vr(a,2)}, {vr(d,2)}, {vr(d,2)}")
            else:      k(f"v_pk_fma_f32 {vr(a,2)}, {vr(d,2)}, {vr(d,2)}, {vr(a,2)}")
    k(f"v_add_f32 v{t}, v{t}, v{t+1}")
    k(f"v_add_f32 v{t+1}, v{t+2}, v{t+3}")
    wave_reduce2(k, t, t+1)
    ln_scalars(k, t, twice)
    k(f"v_readlane_b32 s{sTmp}, v{t}, 63")
    k(f"v_readlane_b32 s{sTmp+1}, v{t+1}, 63")
    k(f"v_readlane_b32 s{sTmp+2}, v{t+12}, 63")
    k(f"v_readlane_b32 s{sTmp+3}, v{t+13}, 63")
    for i in range(4):
        k(f"v_mov_b32 v{vRM+i}, s{sTmp+i}")

def ln_apply_rows(k, R0, R1, vRM, dst0, dst1):
    for i in range(8):
        k(f"v_pk_fma_f32 {vr(dst0+2*i,2)}, {vr(R0+2*i,2)}, {vr(vRM,2)}, {vr(vRM+2,2)} op_sel_hi:[1,0,0] neg_lo:[0,0,1] neg_hi:[0,0,1]")
        k(f"v_pk_fma_f32 {vr(dst1+2*i,2)}, {vr(R1+2*i,2)}, {vr(vRM,2)}, {vr(vRM+2,2)} op_sel:[0,1,1] op_sel_hi:[1,1,1] neg_lo:[0,0,1] neg_hi:[0,0,1]")

def p3_body(k, fused):
    if fused:
        XL, OP, Mr, Mi, TW, DR, DI, T = 36, 20, 68, 84, 164, 196, 212, 228
        R0, R1, Y0, Y1, HP, NP, RM = 100, 116, 132, 148, 52, 4, 244
        B1, B2, AJ8, t0, t1, t2, cj, ch, cA, cB, XV = 248, 249, 250, 251, 252, 253, 251, 252, 253, 254, 255
    else:
        XL, OP, Mr, Mi, TW, DR, DI, T = 4, 20, 36, 52, 68, 100, 116, 132
        R0, R1, Y0, Y1, HP, NP, RM = 148, 164, 180, 196, 36, 68, 220
        B1, B2, AJ8, t0, t1, t2, cj, ch, cA, cB, XV = 218, 219, 227, 216, 217, 226, 212, 213, 214, 215, 225
    k("s_lshr_b32 s29, s2, 5")
    k("s_lshl_b32 s29, s29, 2")
    k("s_and_b32 s30, s2, 31")
    k("s_add_u32 s31, s29, s28")
    k("s_lshl_b32 s31, s31, 5")
    k("s_add_u32 s31, s31, s30")
    k("s_lshl_b32 s31, s31, 11")
    k("s_add_u32 s32, s31, 0x200000")
    k(f"s_mul_i32 s33, s2, {VB_BLK}")
    k("s_lshl_b32 s34, s28, 12")
    k("s_add_u32 s33, s33, s34")
    k("v_lshlrev_b32 v2, 4, v1")
    if not fused: k("s_waitcnt lgkmcnt(0)")
    srd(k, 8, 4, S*D*2)
    if not fused: srd(k, 12, 26, 256*VB_BLK, VB_OFF)
    srd(k, 16, 26, S*D*2, H_OFF)
    srd(k, 20, 26, S*D*2, HN_OFF)
    def x_loads():
        k(f"v_lshlrev_b32 v{XV}, 4, v1")
        k(f"buffer_load_dwordx4 {vr(XL,4)}, v{XV}, s[8:11], s31 offen")
        k(f"buffer_load_dwordx4 {vr(XL+4,4)}, v{XV}, s[8:11], s31 offen offset:1024")
        k(f"buffer_load_dwordx4 {vr(XL+8,4)}, v{XV}, s[8:11], s32 offen")
        k(f"buffer_load_dwordx4 {vr(XL+12,4)}, v{XV}, s[8:11], s32 offen offset:1024")
    if fused:
        x_loads()
    else:
        for i in range(4):
            k(f"s_add_u32 m0, s34, {1024*i}")
            k(f"buffer_load_dwordx4 v2, s[12:15], s33 offen lds")
            k("s_add_u32 s33, s33, 1024")
    if CODEPF2:
        k("s_cmp_eq_u32 s28, 0")
        k("s_cbranch_scc0 L_p3_nonp")
        next_code_pf(k, 'p3', 'gg_kernel' if FUSE_GG else 'g1_kernel', 'L_gbar' if FUSE_GG else 'g2_kernel', 32, RM, 40, 1)
        k("L_p3_nonp:")
    k(f"v_and_b32 v{cj}, 31, v1")
    k(f"v_cvt_f32_u32 v{cj}, v{cj}")
    k(f"v_lshrrev_b32 v{ch}, 5, v1")
    k(f"v_lshlrev_b32 v{ch}, 2, v{ch}")
    k(f"v_cvt_f32_u32 v{ch}, v{ch}")
    if not fused:
        k(f"v_mul_f32 v{cA}, {f32(1/32)}, v{cj}")
        k(f"v_mul_f32 v{cB}, v{cA}, v{ch}")
        gen_matrix(k, Mr, Mi, cA, cB, T)
    k(f"v_mul_f32 v{cA}, {f32(1/1024)}, v{cj}")
    k(f"v_mul_f32 v{cB}, v{cA}, v{ch}")
    gen_twiddle(k, TW, cA, cB, T, scale=2.0**-21.5)
    k("v_and_b32 v2, 31, v1")
    k("v_lshrrev_b32 v3, 5, v1")
    k(f"v_and_b32 v{t0}, 1, v2")
    k(f"v_lshrrev_b32 v{t1}, 1, v2")
    k(f"v_and_b32 v{B1}, 2, v{t1}")
    k(f"v_xor_b32 v{B1}, v{B1}, v{t0}")
    k(f"v_lshlrev_b32 v{B1}, 4, v{B1}")
    k(f"v_lshl_add_u32 v{B1}, v{t1}, 6, v{B1}")
    k(f"v_lshl_add_u32 v{B1}, v3, 12, v{B1}")
    k("s_lshl_b32 s37, s28, 2")
    k(f"v_add_u32 v{B1}, s37, v{B1}")
    k(f"v_add_u32 v{t1}, 1, v2")
    k(f"v_lshrrev_b32 v{t1}, 1, v{t1}")
    k(f"v_sub_u32 v{B2}, 0, v{t1}")
    k(f"v_and_b32 v{B2}, 2, v{B2}")
    k(f"v_add_u32 v{t0}, 2, v{t0}")
    k(f"v_xor_b32 v{B2}, v{B2}, v{t0}")
    k(f"v_lshlrev_b32 v{B2}, 4, v{B2}")
    k(f"v_lshlrev_b32 v{t1}, 6, v{t1}")
    k(f"v_sub_u32 v{B2}, v{B2}, v{t1}")
    k(f"v_lshlrev_b32 v{t1}, 12, v3")
    k(f"v_sub_u32 v{B2}, v{B2}, v{t1}")
    k("s_add_u32 s37, s37, 5120")
    k(f"v_add_u32 v{B2}, s37, v{B2}")
    k(f"v_add_u32 v{AJ8}, {16*1024-5120}, v{B2}")
    k("s_lshl_b32 s38, s28, 2")
    k("s_add_u32 s38, s38, 32")
    k(f"v_mov_b32 v{t2}, s38")
    k("v_cmp_eq_u32 vcc, 0, v1")
    k(f"v_cndmask_b32 v{AJ8}, v{AJ8}, v{t2}, vcc")
    k("s_mov_b32 s35, 0xffff0000")
    if fused:
        k("v_lshlrev_b32 v2, 4, v1")
        k("s_mov_b32 s41, 0")
        k("s_waitcnt vmcnt(0)")
        k("L_p3_poll:")
        for i in range(4):
            k(f"s_add_u32 s39, s33, {1024*i}")
            k(f"buffer_load_dwordx4 {vr(OP+4*i,4)}, v2, s[12:15], s39 offen sc0 sc1")
        k("s_add_u32 s41, s41, 1")
        k("s_waitcnt vmcnt(0)")
        k(f"v_max3_u32 v3, v{OP}, v{OP+1}, v{OP+2}")
        for i in range(3, 15, 2): k(f"v_max3_u32 v3, v3, v{OP+i}, v{OP+i+1}")
        k(f"v_max_u32 v3, v3, v{OP+15}")
        k("v_cmp_eq_u32 vcc, -1, v3")
        k("s_nop 4")
        k("s_cmp_ge_u32 s41, 0x20000")
        k("s_cbranch_scc1 L_p3_polld")
        k("s_cbranch_vccnz L_p3_poll")
        k("L_p3_polld:")
        mark(k, 5)
        k("v_add_u32 v2, s34, v2")
        for i in range(4): k(f"ds_write_b128 v2, {vr(OP+4*i,4)} offset:{1024*i}")
        k("s_waitcnt lgkmcnt(0)")
        k("s_barrier")
    else:
        mark(k, 1)
        k("s_waitcnt vmcnt(0)")
        x_loads()
        k("s_barrier")
        mark(k, 2)
    for i, (r, c) in enumerate(SEQ):
        if r < 2: k(f"ds_read_b32 v{OP+i}, v{B1} offset:{(8*r+c)*1024}")
        elif i == 8: k(f"ds_read_b32 v{OP+i}, v{AJ8}")
        else:     k(f"ds_read_b32 v{OP+i}, v{B2} offset:{(32-8*r-c)*1024-5120}")
    k("s_waitcnt lgkmcnt(0)")
    stage(k, 'A', DR, DI, OP, Mr, Mi)
    cmul_pack(k, DR, DI, TW, OP, T)
    stage(k, 'B', DR, DI, OP, Mr, Mi)
    if not fused: k("s_waitcnt vmcnt(0)")
    for i in range(8):
        k(f"v_lshlrev_b32 v{R0+2*i}, 16, v{XL+i}")
        k(f"v_and_b32 v{R0+2*i+1}, s35, v{XL+i}")
        k(f"v_lshlrev_b32 v{R1+2*i}, 16, v{XL+8+i}")
        k(f"v_and_b32 v{R1+2*i+1}, s35, v{XL+8+i}")
    TR = 17408
    if not fused: mark(k, 3)
    k("s_lshl_b32 s36, s28, 12")
    k(f"s_add_u32 s36, s36, {TR}")
    k("v_and_b32 v3, 31, v1")
    k("v_lshlrev_b32 v3, 2, v3")
    k(f"v_lshrrev_b32 v{t0}, 5, v1")
    k(f"v_lshlrev_b32 v{t0}, 9, v{t0}")
    k(f"v_add3_u32 v3, v3, v{t0}, s36")
    k("v_lshl_add_u32 v2, v1, 5, s36")
    for i in range(16):
        k(f"{CVT} v{OP+i}, v{DR+i}, -v{DI+i}")
    for i, (r, c) in enumerate(SEQ):
        k(f"ds_write_b32 v3, v{OP+i} offset:{(8*r+c)*128}")
    k("s_waitcnt lgkmcnt(0)")
    k(f"ds_read_b128 {vr(OP,4)}, v2")
    k(f"ds_read_b128 {vr(OP+4,4)}, v2 offset:16")
    k(f"ds_read_b128 {vr(OP+8,4)}, v2 offset:2048")
    k(f"ds_read_b128 {vr(OP+12,4)}, v2 offset:2064")
    k("s_waitcnt lgkmcnt(0)")
    for i in range(16):
        k(f"v_lshlrev_b32 v{Y0+i}, 16, v{OP+i}")
        k(f"v_and_b32 v{Y1+i}, s35, v{OP+i}")
    for i in range(8):
        k(f"v_pk_add_f32 {vr(Y0+2*i,2)}, {vr(Y0+2*i,2)}, {vr(R0+2*i,2)}")
        k(f"v_pk_add_f32 {vr(Y1+2*i,2)}, {vr(Y1+2*i,2)}, {vr(R1+2*i,2)}")
    for i in range(8):
        k(f"{CVT} v{HP+i}, v{Y0+2*i}, v{Y0+2*i+1}")
        k(f"{CVT} v{HP+8+i}, v{Y1+2*i}, v{Y1+2*i+1}")
    k("v_lshlrev_b32 v2, 4, v1")
    k(f"buffer_store_dwordx4 {vr(HP,4)}, v2, s[16:19], s31 offen {ST_P3}")
    k(f"buffer_store_dwordx4 {vr(HP+4,4)}, v2, s[16:19], s31 offen offset:1024 {ST_P3}")
    k(f"buffer_store_dwordx4 {vr(HP+8,4)}, v2, s[16:19], s32 offen {ST_P3}")
    k(f"buffer_store_dwordx4 {vr(HP+12,4)}, v2, s[16:19], s32 offen offset:1024 {ST_P3}")
    for i in range(8):
        k(f"v_lshlrev_b32 v{R0+2*i}, 16, v{HP+i}")
        k(f"v_and_b32 v{R0+2*i+1}, s35, v{HP+i}")
        k(f"v_lshlrev_b32 v{R1+2*i}, 16, v{HP+8+i}")
        k(f"v_and_b32 v{R1+2*i+1}, s35, v{HP+8+i}")
    if not fused: mark(k, 4)
    if LN_FUSE:
        assert not (EMU_LN or EMU_L2)
        ln_stats_rows(k, R0, R1, T, RM, 40, twice=True)
        ln_apply_rows(k, R0, R1, RM, Y0, Y1)
    else:
        ln_stats_rows(k, R0, R1, T, RM, 40)
        if EMU_L2:
            ln_apply_rows(k, R0, R1, RM, Y0, Y1)
            LP = OP
            for i in range(8):
                k(f"{CVT} v{LP+i}, v{Y0+2*i}, v{Y0+2*i+1}")
                k(f"{CVT} v{LP+8+i}, v{Y1+2*i}, v{Y1+2*i+1}")
            for i in range(8):
                k(f"v_lshlrev_b32 v{R0+2*i}, 16, v{LP+i}")
                k(f"v_and_b32 v{R0+2*i+1}, s35, v{LP+i}")
                k(f"v_lshlrev_b32 v{R1+2*i}, 16, v{LP+8+i}")
                k(f"v_and_b32 v{R1+2*i+1}, s35, v{LP+8+i}")
        else:
            ln_apply_rows(k, R0, R1, RM, R0, R1)
        ln_stats_rows(k, R0, R1, T, RM, 40)
        ln_apply_rows(k, R0, R1, RM, Y0, Y1)
    for i in range(8):
        k(f"{CVT} v{NP+i}, v{Y0+2*i}, v{Y0+2*i+1}")
        k(f"{CVT} v{NP+8+i}, v{Y1+2*i}, v{Y1+2*i+1}")
    k(f"buffer_store_dwordx4 {vr(NP,4)}, v2, s[20:23], s31 offen {ST_P3}")
    k(f"buffer_store_dwordx4 {vr(NP+4,4)}, v2, s[20:23], s31 offen offset:1024 {ST_P3}")
    k(f"buffer_store_dwordx4 {vr(NP+8,4)}, v2, s[20:23], s32 offen {ST_P3}")
    k(f"buffer_store_dwordx4 {vr(NP+12,4)}, v2, s[20:23], s32 offen offset:1024 {ST_P3}")

def gen_p3():
    k = Kern('p3_kernel')
    k("s_cmp_ge_u32 s2, 256")
    k("s_cbranch_scc1 L_p3_end")
    stamp_begin(k)
    k("s_load_dwordx2 s[4:5], s[0:1], 0")
    k("s_load_dwordx2 s[26:27], s[0:1], 80")
    k("s_load_dwordx2 s[24:25], s[0:1], 32")
    k("v_and_b32 v1, 63, v0")
    k("v_lshrrev_b32 v2, 6, v0")
    k("v_readfirstlane_b32 s28, v2")
    pf_wave(k, 'p3', W1PF0 + 256*W1PF)
    first_tiles_wave(k)
    p3_body(k, False)
    stamp_end(k, 'p3')
    k("L_p3_end:")
    k("s_endpgm")
    return k, 228, 33792

def gen_p23(): return gen_p2(True)

MF16 = 'v_mfma_f32_16x16x32_bf16'

def interleave(mf, rd, lead=0):
    out = []; n = len(mf); m = len(rd); ri = 0
    for i in range(n):
        out.append(mf[i])
        tgt = min(m, (m*(i+1) + n - 1)//n)
        while ri < tgt:
            out.append(rd[ri]); ri += 1
    out += rd[ri:]
    return out

def producer_loop(k, tag, per, issue, NS, NIT):
    mark(k, 1)
    issue()
    mark(k, 2)
    issue()
    k(f"s_waitcnt vmcnt({per})")
    mark(k, 3)
    k("s_barrier")
    for n in range(2, NS): issue()
    mark(k, 4)
    nmain = NIT - NS
    k(f"s_mov_b32 s60, 0")
    k(f"L_{tag}_ploop:")
    k(f"s_waitcnt vmcnt({(NS-2)*per})")
    k("s_barrier")
    issue()
    k("s_add_u32 s60, s60, 1")
    k(f"s_cmp_lt_u32 s60, {nmain}")
    k(f"s_cbranch_scc1 L_{tag}_ploop")
    for n in range(nmain, NIT-1):
        k(f"s_waitcnt vmcnt({(NIT-1-(n+1))*per})")
        k("s_barrier")


XB_OFF = ZW_OFF
FL_OFF = 0x2800000
def gemm_kernel(tag, fused=False):
    g1 = tag == 'g1'
    k = Kern('gg_kernel' if fused else tag + '_kernel')
    ENDL = 'L_gg_end' if fused else f'L_{tag}_end'
    ASZ = 16384; STG = 32768; NS = 4 if STATIC else (5 if BAR2 else 3)
    NIT = 32 if g1 else 28
    BSTR = 7168 if g1 else 4096
    if not (fused and not g1):
        k(f"s_cmp_ge_u32 s2, 256")
        k(f"s_cbranch_scc1 {ENDL}")
    elif FUSE_GG == 2:
        k("L_gbar:")
        k("s_waitcnt vmcnt(0)")
        k("s_barrier")
        srd(k, 36, 26, 288*128, FG_OFF)
        k("v_cmp_eq_u32 vcc, 0, v0")
        k("s_and_saveexec_b64 s[34:35], vcc")
        k("s_cbranch_execz L_gbar_noarr")
        k("s_lshl_b32 s33, s30, 5")
        k("s_add_u32 s33, s33, s29")
        k("s_lshl_b32 s33, s33, 7")
        k("v_mov_b32 v2, 1")
        k("v_mov_b32 v3, 0")
        k("buffer_store_dword v2, v3, s[36:39], s33 offen sc0 sc1")
        k("L_gbar_noarr:")
        k("s_mov_b64 exec, -1")
        k("L_g2start:")
    else:
        k("L_gbar:")
        k("s_load_dwordx2 s[26:27], s[0:1], 80")
        k("s_waitcnt vmcnt(0) lgkmcnt(0)")
        k("s_barrier")
        srd(k, 36, 26, 1024, BAR_OFF)
        k("v_cmp_eq_u32 vcc, 0, v0")
        k("s_and_saveexec_b64 s[34:35], vcc")
        k("s_cbranch_execz L_gbar_noarr")
        k("s_and_b32 s33, s2, 7")
        k("s_lshl_b32 s33, s33, 7")
        k("v_mov_b32 v2, 1")
        k("v_mov_b32 v3, 0")
        k("buffer_atomic_add v2, v3, s[36:39], s33 offen sc1")
        k("L_gbar_noarr:")
        k("s_mov_b64 exec, -1")
    stamp_begin(k)
    if g1:
        k("s_load_dwordx4 s[4:7], s[0:1], 32")
        k("s_load_dwordx2 s[24:25], s[0:1], 48")
    else:
        k("s_load_dwordx4 s[4:7], s[0:1], 48")
        k("s_load_dwordx2 s[24:25], s[0:1], 64")
    k("s_load_dwordx2 s[26:27], s[0:1], 80")
    k("v_and_b32 v1, 63, v0")
    k("v_lshrrev_b32 v2, 6, v0")
    k("v_readfirstlane_b32 s28, v2")
    if g1:
        k("s_and_b32 s30, s2, 1")
        k("s_lshl_b32 s30, s30, 2")
        k("s_bfe_u32 s52, s2, 0x20003")
        k("s_add_u32 s30, s30, s52")
        k("s_bfe_u32 s29, s2, 0x20001")
        k("s_mul_i32 s29, s29, 7")
        k("s_lshr_b32 s53, s2, 5")
        k("s_add_u32 s29, s29, s53")
        k("s_mov_b32 s63, 0")
        k("s_and_b32 s55, s2, 1")
        k(f"s_mul_i32 s55, s55, {16 if KHALF else 0}")
    else:
        if MAP2 == 1:
            k("s_bfe_u32 s62, s2, 0x10003")
            k("s_bfe_u32 s29, s2, 0x20001")
            k("s_lshl_b32 s29, s29, 2")
            k("s_bfe_u32 s52, s2, 0x20004")
            k("s_add_u32 s29, s29, s52")
            k("s_lshr_b32 s53, s2, 6")
            k("s_and_b32 s30, s2, 1")
            k("s_lshl_b32 s30, s30, 2")
            k("s_add_u32 s30, s30, s53")
        else:
            k("s_and_b32 s62, s2, 1")
            k("s_bfe_u32 s29, s2, 0x20001")
            k("s_lshl_b32 s29, s29, 2")
            k("s_bfe_u32 s52, s2, 0x20003")
            k("s_add_u32 s29, s29, s52")
            k("s_lshr_b32 s53, s2, 5")
            k("s_mov_b32 s30, s53")
        k("s_mov_b32 s55, 0")
        k("s_mul_i32 s63, s62, 28")
        srd(k, 56, 26, 256*64, FL_OFF) if False else None
    k("s_lshl_b32 s31, s29, 8")
    k("s_lshl_b32 s32, s30, 8")
    k("s_waitcnt lgkmcnt(0)")
    if g1:
        srd(k, 8, 4, S*F*2)
        srd(k, 12, 26, S*D*2, HN_OFF)
        srd(k, 16, 26, F*D*2, GT_OFF)
        srd(k, 20, 6, F*2)
        if not XSENT:
            srd(k, 44, 26, 256*64, FL_OFF)
            k("s_lshl_b32 s33, s2, 6")
            k("v_mov_b32 v2, 0")
            k("v_lshlrev_b32 v3, 2, v0")
            k("v_cmp_gt_u32 vcc, 16, v0")
            k("s_and_saveexec_b64 s[34:35], vcc")
            k(f"s_cbranch_execz L_{tag}_nozf")
            k("buffer_store_dword v2, v3, s[44:47], s33 offen sc0 sc1")
            k(f"L_{tag}_nozf:")
            k("s_mov_b64 exec, -1")
        k("s_cmp_lt_u32 s2, 224")
        k(f"s_cbranch_scc1 L_{tag}_main")
        def idle_fill():
            srd(k, 44, 26, 256*(16384 if XBF16 else 32768), 0x1E00000 if XB_SEP else VB_OFF)
            k("s_sub_u32 s33, s2, 224")
            k("s_lshl_b32 s33, s33, 17")
            k("v_lshlrev_b32 v2, 4, v0")
            for i in range(4): k(f"v_mov_b32 v{4+i}, -1")
            k("s_mov_b32 s34, 0")
            k(f"L_{tag}_clr:")
            k("buffer_store_dwordx4 v[4:7], v2, s[44:47], s33 offen sc0 sc1")
            k("s_add_u32 s33, s33, 8192")
            k("s_add_u32 s34, s34, 1")
            k("s_cmp_lt_u32 s34, 16")
            k(f"s_cbranch_scc1 L_{tag}_clr")
        if fused and FUSE_GG == 2:
            idle_fill()
            k("s_waitcnt vmcnt(0)")
            k("s_barrier")
            srd(k, 36, 26, 288*128, FG_OFF)
            k("s_add_u32 s33, s2, 32")
            k("s_lshl_b32 s33, s33, 7")
            k("v_mov_b32 v2, 1")
            k("v_mov_b32 v3, 0")
            k("v_cmp_eq_u32 vcc, 0, v0")
            k("s_and_saveexec_b64 s[34:35], vcc")
            k(f"s_cbranch_execz L_{tag}_nofl")
            k("buffer_store_dword v2, v3, s[36:39], s33 offen sc0 sc1")
            k(f"L_{tag}_nofl:")
            k("s_mov_b64 exec, -1")
        if W1IDLE:
            k("s_sub_u32 s33, s2, 224")
            k("s_mul_i32 s33, s33, 112")
            k("v_mul_u32_u24 v3, 586, v0")
            k("v_lshrrev_b32 v3, 16, v3")
            k("v_mul_u32_u24 v4, 112, v3")
            k("v_sub_u32 v4, v0, v4")
            k("v_add_u32 v4, s33, v4")
            k("v_mul_u32_u24 v5, 4682, v4")
            k("v_lshrrev_b32 v5, 18, v5")
            k("v_mul_u32_u24 v6, 56, v5")
            k("v_sub_u32 v6, v4, v6")
            k("v_and_b32 v7, 1, v3")
            k("v_lshrrev_b32 v8, 1, v3")
            k("v_lshl_add_u32 v7, v7, 4, v8")
            k("v_lshl_add_u32 v5, v7, 6, v5")
            k("v_mul_u32_u24 v5, 7168, v5")
            k("v_lshl_add_u32 v2, v6, 7, v5")
            k("v_cmp_gt_u32 vcc, 448, v0")
            k("s_and_saveexec_b64 s[34:35], vcc")
            k(f"s_cbranch_execz L_{tag}_now1")
            k(f"s_mov_b32 s33, {W1IDLE*64*7168}")
            for i in range((16-W1IDLE)//2):
                k(f"buffer_load_dword v9, v2, s[8:11], s33 offen")
                k(f"s_add_u32 s33, s33, {2*64*7168}")
            k(f"L_{tag}_now1:")
            k("s_mov_b64 exec, -1")
        if W2PF:
            srd(k, 48, 24, F*S*2)
            k("s_sub_u32 s33, s2, 224")
            k("s_and_b32 s34, s33, 15")
            k("s_lshr_b32 s35, s33, 4")
            k(f"s_mul_i32 s35, s35, {1792*4096}")
            k("s_lshl_b32 s33, s34, 16")
            k("s_add_u32 s33, s33, s35")
            if W2WAVES == 8:
                k("v_lshlrev_b32 v2, 7, v0")
                for i in range(W2PF):
                    k(f"buffer_load_dword v9, v2, s[48:51], s33 offen")
                    k(f"s_add_u32 s33, s33, {16*65536}")
            else:
                k(f"s_cmp_ge_u32 s28, {W2WAVES}")
                k(f"s_cbranch_scc1 L_{tag}_now2")
                k("v_lshlrev_b32 v2, 7, v1")
                k(f"s_mul_i32 s34, s28, {8192*(8//W2WAVES)}")
                k("s_add_u32 s33, s33, s34")
                k("s_mov_b32 s35, 0")
                k(f"L_{tag}_w2l:")
                for q in range(8//W2WAVES):
                    k(f"s_add_u32 s34, s33, {8192*q}")
                    k(f"buffer_load_dword v9, v2, s[48:51], s34 offen")
                    k(f"s_waitcnt vmcnt({W2DEPTH})")
                k(f"s_add_u32 s33, s33, {16*65536}")
                k("s_add_u32 s35, s35, 1")
                k(f"s_cmp_lt_u32 s35, {W2PF}")
                k(f"s_cbranch_scc1 L_{tag}_w2l")
                k(f"L_{tag}_now2:")
        if XSENT and not (fused and FUSE_GG == 2): idle_fill()
        if fused and FUSE_GG == 2: k("s_waitcnt vmcnt(0)")
        stamp_end(k, tag, tid=0, slot=256, sfx='idle')
        k(f"s_branch {('L_g2start' if FUSE_GG == 2 else 'L_gbar') if fused else ENDL}")
        k(f"L_{tag}_main:")
    else:
        srd(k, 8, 4, F*S*2)
        srd(k, 12, 26, F*D*2, GT_OFF)
        srd(k, 16, 26, S*D*2, H_OFF)
        srd(k, 20, 6, S*2)
        srd(k, 48, 24, S*D*2)
        if not XSENT:
            k("s_getreg_b32 s54, hwreg(HW_REG_XCC_ID, 0, 4)")
            k("s_add_u32 s54, s54, 1")
            srd(k, 56, 26, 256*64, FL_OFF)
            k("s_lshl_b32 s33, s2, 6")
            k("v_mov_b32 v2, s54")
            k("v_mov_b32 v3, 0")
            k("v_cmp_eq_u32 vcc, 0, v0")
            k("s_and_saveexec_b64 s[34:35], vcc")
            k(f"s_cbranch_execz L_{tag}_nopub")
            k("buffer_store_dword v2, v3, s[56:59], s33 offen offset:4 sc0 sc1")
            k(f"L_{tag}_nopub:")
            k("s_mov_b64 exec, -1")
    if PRODFIRST:
        k("s_cmp_lt_u32 s28, 4")
        k(f"s_cbranch_scc1 L_{tag}_cons")
    else:
        k("s_cmp_ge_u32 s28, 4")
        k(f"s_cbranch_scc1 L_{tag}_prod")
    i_cons = len(k.l)
    k(f"L_{tag}_cons:")
    ACC = 8; X = 72; Y = 136; R = 200
    AA = [R+i for i in range(4)]; AB = [R+4+i for i in range(4)]
    BA = [R+8+i for i in range(4)]; BB = [R+12+i for i in range(4)]
    MISC = R + 16
    k("s_and_b32 s33, s28, 1")
    k("s_lshr_b32 s36, s28, 1")
    k("v_lshrrev_b32 v2, 4, v1")
    k("v_bfe_u32 v3, v1, 2, 2")
    k("v_and_b32 v4, 3, v1")
    k("v_lshl_add_u32 v5, v2, 2, v3")
    k("v_and_b32 v6, 7, v5")
    k("v_lshlrev_b32 v6, 1, v6")
    k("v_lshrrev_b32 v7, 1, v4")
    k("v_and_b32 v9, 1, v4")
    for (base, w, add) in ((BA, 's33', 0), (BB, 's36', ASZ)):
        k(f"s_lshl_b32 s35, {w}, 3")
        k("v_add_u32 v10, s35, v7")
        k("v_xor_b32 v10, v10, v6")
        k("v_lshlrev_b32 v10, 4, v10")
        k("v_lshl_add_u32 v10, v9, 3, v10")
        k("v_lshl_add_u32 v10, v5, 8, v10")
        if add: k(f"v_add_u32 v10, {add}, v10")
        k(f"v_mov_b32 v{base[0]}, v10")
        for t in range(1, 4): k(f"v_xor_b32 v{base[t]}, {32*t}, v10")
    for t in range(4):
        k(f"v_mov_b32 v{AA[t]}, v{BA[t]}"); k(f"v_mov_b32 v{AB[t]}, v{BB[t]}")
    BIAS = MISC
    k("v_and_b32 v2, 15, v1")
    k("v_lshlrev_b32 v2, 1, v2")
    k("s_lshl_b32 s37, s36, 7")
    k("s_add_u32 s37, s37, s31")
    for t in range(4):
        k(f"buffer_load_ushort v{BIAS+t}, v2, s[20:23], s37 offen offset:{32*t}")
    OV = MISC+4
    k("v_and_b32 v2, 15, v1")
    k("v_lshlrev_b32 v2, 11, v2")
    k("v_lshrrev_b32 v3, 4, v1")
    k(f"v_lshl_add_u32 v{OV}, v3, 4, v2")
    k("s_lshl_b32 s38, s29, 7")
    k("s_lshl_b32 s39, s36, 6")
    k("s_add_u32 s38, s38, s39")
    k("s_lshl_b32 s38, s38, 11")
    k("s_add_u32 s38, s38, s32")
    k("s_lshl_b32 s39, s33, 7")
    k("s_add_u32 s38, s38, s39")
    if not g1:
        HL = MISC+6
        NV = HL+16
        if OUT_TOUCH:
            k("s_lshl_b32 s39, s62, 16")
            k("s_add_u32 s39, s39, s38")
            k(f"buffer_load_dword v{NV}, v{OV}, s[48:51], s39 offen")
            NV += 1
    else:
        NV = MISC+5
    def reads(dst, buf=None):
        r = []
        for ks in range(2):
            b = dst + 32*ks; ko = 32*ks
            for t in range(4):
                if buf is None: regs = (AA[t], AB[t]); bo = 0
                else:
                    regs = (BA[t], BB[t]) if buf < 2 else (AA[t], AB[t]); bo = (buf % 2)*STG
                for (o, a) in ((0, regs[0]), (16, regs[1])):
                    r.append(f"ds_read_b64_tr_b16 {vr(b+o+4*t,2)}, v{a} offset:{bo+ko*256}")
                    r.append(f"ds_read_b64_tr_b16 {vr(b+o+4*t+2,2)}, v{a} offset:{bo+(ko+16)*256}")
        return r
    def mfmas(src):
        m = []
        for ks in range(2):
            b = src + 32*ks
            order = sorted([(td, tn) for td in range(4) for tn in range(4)], key=lambda x: (max(x), x))
            if FAKE32:
                for i in range(8):
                    a = ACC + 16*(i % 4)
                    m.append(f"{MF32} {vr(a,16)}, {vr(b+4*(i%4),4)}, {vr(b+16+4*((i//2)%4),4)}, {vr(a,16)}")
                continue
            for td, tn in order:
                a = ACC + 4*(4*tn+td)
                m.append(f"{MF16} {vr(a,4)}, {vr(b+4*td,4)}, {vr(b+16+4*tn,4)}, {vr(a,4)}")
        return m
    def sched(mf, rd, extra):
        out = []; ri = 0; ei = 0
        for i, m in enumerate(mf):
            out.append(m)
            if ri < len(rd):
                for _ in range(RPAT[i % len(RPAT)]):
                    if ri < len(rd): out.append(rd[ri]); ri += 1
            elif ei < len(extra):
                out.append(extra[ei]); ei += 1
        out += rd[ri:] + extra[ei:]
        return out
    def upd():
        e = [f"s_add_u32 s34, s34, {STG}", f"s_cmp_eq_u32 s34, {STG*NS}", "s_cselect_b32 s34, 0, s34"]
        e += [f"v_add_u32 v{AA[t]}, s34, v{BA[t]}" for t in range(4)]
        e += [f"v_add_u32 v{AB[t]}, s34, v{BB[t]}" for t in range(4)]
        return e
    for i in range(64): k(f"v_mov_b32 v{ACC+i}, 0")
    k("s_mov_b32 s34, 0")
    k("s_mov_b32 s35, 0")
    if fused and not g1 and FUSE_GG == 1: k("s_barrier")
    mark(k, 1)
    k("s_barrier")
    mark(k, 2)
    if STATIC:
        for t in range(4):
            k(f"v_add_u32 v{AA[t]}, 65536, v{BA[t]}"); k(f"v_add_u32 v{AB[t]}, 65536, v{BB[t]}")
        for x in reads(X, 0): k(x)
        k(f"L_{tag}_cloop:")
        for u in range(4):
            cur, nxt = (X, Y) if u % 2 == 0 else (Y, X)
            k("s_waitcnt lgkmcnt(0)")
            k("s_barrier")
            ex = ["s_add_u32 s35, s35, 4", f"s_cmp_lt_u32 s35, {NIT-4}"] if u == 3 else []
            for x in sched(mfmas(cur), reads(nxt, (u+1) % 4), ex): k(x)
        k(f"s_cbranch_scc1 L_{tag}_cloop")
        for u in range(2):
            cur, nxt = (X, Y) if u % 2 == 0 else (Y, X)
            k("s_waitcnt lgkmcnt(0)")
            k("s_barrier")
            for x in sched(mfmas(cur), reads(nxt, u+1), []): k(x)
    else:
        for x in reads(X): k(x)
        for x in upd(): k(x)
        k(f"L_{tag}_cloop:")
        k("s_waitcnt lgkmcnt(0)")
        if LOOPSTAMP:
            k(f"s_cmp_eq_u32 s35, {LOOPSTAMP}")
            k(f"s_cbranch_scc0 L_{tag}_nolatch")
            for i in range(4): k(f"s_mov_b64 s[{96-20+2*i}:{97-20+2*i}], s[{66+2*i}:{67+2*i}]") if False else None
            k("s_sub_u32 s90, s68, s66"); k("s_sub_u32 s91, s70, s68"); k("s_sub_u32 s92, s72, s70")
            k("s_memtime s[82:83]"); k("s_waitcnt lgkmcnt(0)"); k("s_sub_u32 s93, s82, s72")
            k(f"L_{tag}_nolatch:")
        k("s_barrier")
        if LOOPSTAMP: k("s_memtime s[66:67]")
        for x in sched(mfmas(X), reads(Y), upd()): k(x)
        if LOOPSTAMP: k("s_memtime s[68:69]")
        k("s_waitcnt lgkmcnt(0)")
        if not BAR2: k("s_barrier")
        if LOOPSTAMP: k("s_memtime s[70:71]")
        for x in sched(mfmas(Y), reads(X), upd() + ["s_add_u32 s35, s35, 2", f"s_cmp_lt_u32 s35, {NIT-2}"]): k(x)
        if LOOPSTAMP: k("s_memtime s[72:73]")
        k(f"s_cbranch_scc1 L_{tag}_cloop")
    if LOOPSTAMP:
        k("s_waitcnt lgkmcnt(0)")
        for i in range(4):
            k(f"s_mov_b32 s{66+2*i}, s{90+i}"); k(f"s_mov_b32 s{67+2*i}, 0")
    XID = 3
    if not g1:
        if not XSENT:
            k(f"s_xor_b32 s42, s2, {8 if MAP2 == 1 else 1}")
            k("s_lshl_b32 s39, s42, 6")
            k("v_mov_b32 v4, 0")
            k(f"buffer_load_dword v{XID}, v4, s[56:59], s39 offen offset:4 sc0 sc1")
        if fused and FUSE_GG == 2:
            srd(k, 56, 26, 288*128, FG_OFF)
            k("s_lshr_b32 s39, s2, 3")
            k("s_add_u32 s39, s39, 256")
            k("s_lshl_b32 s60, s39, 7")
            k("v_mov_b32 v4, 0")
            k(f"buffer_load_dword v{XID}, v4, s[56:59], s60 offen sc0 sc1")
        k("s_lshl_b32 s39, s62, 16")
        k("s_add_u32 s39, s39, s38")
        for tnl in range(1 if XSHARE else 2):
            for tp in range(2):
                k(f"s_add_u32 s40, s39, {tnl*16*2048 + tp*64}")
                k(f"buffer_load_dwordx4 {vr(HL+8*tnl+4*tp,4)}, v{OV}, s[16:19], s40 offen")
    k("s_waitcnt lgkmcnt(0)")
    k("s_barrier")
    for x in sched(mfmas(X), reads(Y, 3 if STATIC else None), []): k(x)
    k("s_waitcnt lgkmcnt(0)")
    for x in mfmas(Y): k(x)
    mark(k, 3)
    k("s_mov_b32 s40, 0xffff0000")
    T = X
    def pack_swap(P):
        k(f"v_permlane32_swap_b32 v{P}, v{P+2}")
        k(f"v_permlane32_swap_b32 v{P+1}, v{P+3}")
        k(f"v_permlane16_swap_b32 v{P}, v{P+2}")
        k(f"v_permlane16_swap_b32 v{P+1}, v{P+3}")
    def store_lines(P0, P1, tmp, so, srdreg):
        for i in range(4): k(f"v_mov_b32 v{tmp+i}, v{P0+i}")
        for i in range(4): k(f"v_mov_b32_dpp v{P0+i}, v{P1+i} row_ror:8 row_mask:0xf bank_mask:0xc")
        for i in range(4): k(f"v_mov_b32_dpp v{P1+i}, v{tmp+i} row_ror:8 row_mask:0xf bank_mask:0x3")
        fl = ST_G1 if g1 else ST_G2
        k(f"s_add_u32 s41, s38, {so}")
        k(f"buffer_store_dwordx4 {vr(P0,4)}, v{OVS}, s[{srdreg}:{srdreg+3}], s41 offen {fl}")
        k(f"s_add_u32 s41, s38, {so + 8*2048}")
        k(f"buffer_store_dwordx4 {vr(P1,4)}, v{OVS}, s[{srdreg}:{srdreg+3}], s41 offen {fl}")
    OVS = 3
    def set_ovs():
        k("v_and_b32 v2, 7, v1")
        k("v_lshlrev_b32 v2, 11, v2")
        k("v_bfe_u32 v3, v1, 3, 1")
        k("v_lshl_add_u32 v2, v3, 6, v2")
        k("v_lshrrev_b32 v3, 4, v1")
        k(f"v_lshl_add_u32 v{OVS}, v3, 4, v2")
    if g1:
        SH = 32768 if STATIC else (98304 if BAR2 else 65536)
        k("s_lshl_b32 s39, s28, 13")
        k(f"s_add_u32 s39, s39, {SH}")
        k("v_lshl_add_u32 v2, v1, 4, s39")
        for i in range(8): k(f"ds_write_b128 v2, {vr(ACC+32+4*i,4)} offset:{1024*i}")
        k("s_waitcnt vmcnt(0) lgkmcnt(0)")
        k("s_barrier")
        mark(k, 4)
        k(f"L_{tag}_epi:")
        for t in range(2): k(f"v_lshlrev_b32 v{BIAS+t}, 16, v{BIAS+t}")
        c0 = -2.0*math.log2(math.e)*math.sqrt(2.0/math.pi); c1 = c0*0.044715
        k("s_mov_b32 s40, 0xffff0000")
        k(f"s_mov_b32 s42, {f32(c1)}")
        k(f"v_mov_b32 v4, {f32(c0)}"); k(f"v_mov_b32 v5, {f32(c0)}")
        k(f"v_mov_b32 v6, 1.0"); k(f"v_mov_b32 v7, 1.0")
        set_ovs()
        for tn in range(2):
            for tp in range(2):
                P = T + 4*tp + 24*tn
                for q in range(4):
                    td = 2*tp + q//2
                    src = ACC + 4*(4*tn+td) + 2*(q % 2)
                    u, w = T+8+4*q, T+10+4*q
                    gelu_pair(k, src, u, w, BIAS+tn, P+q)
                pack_swap(P)
            store_lines(T+24*tn, T+24*tn+4, T+32, tn*16*2048, 16)
    else:
        if XSHARE:
            assert XSENT and XBF16
            SHX, SHY = 0, 16384
            k("s_waitcnt vmcnt(0)")
            srd(k, 44, 26, 256*16384, 0x1E00000 if XB_SEP else VB_OFF)
            k(f"s_xor_b32 s42, s2, {8 if MAP2 == 1 else 1}")
            k("s_lshl_b32 s43, s42, 14")
            k("s_lshl_b32 s39, s28, 12")
            k("s_add_u32 s43, s43, s39")
            k("v_lshlrev_b32 v2, 4, v1")
            k("s_cmp_eq_u32 s62, 0")
            k(f"s_cbranch_scc1 L_{tag}_k0")
            for half, l2 in ((0, None), (32, f"L_{tag}_k0:")):
                if l2: k(l2)
                for i in range(16): k(f"{CVT} v{Y+32+i}, v{ACC+half+2*i}, v{ACC+half+2*i+1}")
                for i in range(4):
                    k(f"s_add_u32 s39, s43, {1024*i}")
                    k(f"buffer_store_dwordx4 {vr(Y+32+4*i,4)}, v2, s[44:47], s39 offen sc0 sc1")
                if half == 0:
                    for i in range(32): k(f"v_mov_b32 v{ACC+i}, v{ACC+32+i}")
                    k(f"v_mov_b32 v{BIAS}, v{BIAS+2}")
                    k(f"s_branch L_{tag}_k1")
            k(f"L_{tag}_k1:")
            k("s_lshl_b32 s39, s28, 12")
            k(f"v_add_u32 v3, s39, v2")
            for i in range(4): k(f"ds_write_b128 v3, {vr(ACC+16+4*i,4)} offset:{SHX+1024*i}")
            k("s_lshl_b32 s39, s62, 16")
            k("s_add_u32 s38, s38, s39")
            k("s_lshl_b32 s39, s28, 11")
            k(f"v_add_u32 v3, s39, v2")
            k("s_waitcnt vmcnt(0) lgkmcnt(0)" if XWAIT else "s_waitcnt lgkmcnt(0)")
            k("s_barrier")
            k("s_barrier")
            k(f"ds_read_b128 {vr(Y+40,4)}, v3 offset:{SHY}")
            k(f"ds_read_b128 {vr(Y+44,4)}, v3 offset:{SHY+1024}")
            k("s_waitcnt lgkmcnt(0)")
            mark(k, 4)
            k(f"L_{tag}_epi:")
            k("s_mov_b32 s40, 0xffff0000")
            k(f"v_lshlrev_b32 v{BIAS}, 16, v{BIAS}")
            if PERTURB: k(f"v_add_f32 v{BIAS}, {f32(PERTURB)}, v{BIAS}")
            set_ovs()
            for tp in range(2):
                P = T + 4*tp
                for q in range(4):
                    td = 2*tp + q//2
                    a_ = ACC + 4*td + 2*(q % 2); y = Y + 4*td + 2*(q % 2)
                    u, w = T+8+4*q, T+10+4*q
                    pk = Y + 40 + (4*td + 2*(q % 2))//2
                    k(f"v_lshlrev_b32 v{y}, 16, v{pk}")
                    k(f"v_and_b32 v{y+1}, s40, v{pk}")
                    k(f"v_pk_add_f32 {vr(a_,2)}, {vr(a_,2)}, {vr(y,2)}")
                    k(f"v_add_f32 v{u}, v{a_}, v{BIAS}")
                    k(f"v_add_f32 v{u+1}, v{a_+1}, v{BIAS}")
                    k(f"{CVT} v{P+q}, v{u}, v{u+1}")
                pack_swap(P)
                for q in range(4):
                    u, w = T+8+4*q, T+10+4*q
                    hp = HL+4*tp+q
                    k(f"v_lshlrev_b32 v{u}, 16, v{P+q}")
                    k(f"v_and_b32 v{u+1}, s40, v{P+q}")
                    k(f"v_lshlrev_b32 v{w}, 16, v{hp}")
                    k(f"v_and_b32 v{w+1}, s40, v{hp}")
                    k(f"v_pk_add_f32 {vr(u,2)}, {vr(u,2)}, {vr(w,2)}")
                    k(f"{CVT} v{P+q}, v{u}, v{u+1}")
            store_lines(T, T+4, T+32, 0, 48)
        else:
            k("s_waitcnt vmcnt(0)")
            srd(k, 44, 26, 256*(16384 if XBF16 else 32768), 0x1E00000 if XB_SEP else VB_OFF)
            if not XSENT: srd(k, 56, 26, 256*64, FL_OFF)
            k(f"s_xor_b32 s42, s2, {8 if MAP2 == 1 else 1}")
            k(f"s_lshl_b32 s43, s42, {14 if XBF16 else 15}")
            k(f"s_lshl_b32 s39, s28, {12 if XBF16 else 13}")
            k("s_add_u32 s43, s43, s39")
            k("v_lshlrev_b32 v2, 4, v1")
            k("v_mov_b32 v4, 0")
            if fused and FUSE_GG == 2:
                k("s_mov_b32 s41, 0")
                k(f"L_{tag}_ffp:")
                k("v_readfirstlane_b32 s61, v3")
                k("s_add_u32 s41, s41, 1")
                k("s_cmp_ge_u32 s41, 0x20000")
                k(f"s_cbranch_scc1 L_{tag}_ffd")
                k("s_cmp_lg_u32 s61, 0")
                k(f"s_cbranch_scc1 L_{tag}_ffd")
                k("buffer_load_dword v3, v4, s[56:59], s60 offen sc0 sc1")
                k("s_waitcnt vmcnt(0)")
                k(f"s_branch L_{tag}_ffp")
                k(f"L_{tag}_ffd:")
            if not XSENT:
                k("s_lshl_b32 s39, s42, 6")
                k("s_mov_b32 s41, 0")
                k("v_readfirstlane_b32 s61, v3")
                k("s_cmp_eq_u32 s61, 0")
                k(f"s_cbranch_scc0 L_{tag}_xpolld")
                k(f"L_{tag}_xpoll:")
                k("buffer_load_dword v3, v4, s[56:59], s39 offen offset:4 sc0 sc1")
                k("s_waitcnt vmcnt(0)")
                k("v_readfirstlane_b32 s61, v3")
                k("s_add_u32 s41, s41, 1")
                k("s_cmp_ge_u32 s41, 0x40000")
                k(f"s_cbranch_scc1 L_{tag}_xpolld")
                k("s_cmp_eq_u32 s61, 0")
                k(f"s_cbranch_scc1 L_{tag}_xpoll")
                k(f"L_{tag}_xpolld:")
                k("s_cmp_eq_u32 s61, s54")
                k(f"s_cselect_b32 s61, {0 if FORCE_FAR else 1}, 0")
            def sends(flags, lab):
                k("s_cmp_eq_u32 s62, 0")
                k(f"s_cbranch_scc1 L_{tag}_k0{lab}")
                for half, l2 in ((0, None), (32, f"L_{tag}_k0{lab}:")):
                    if l2: k(l2)
                    if XBF16:
                        for i in range(16): k(f"{CVT} v{Y+32+i}, v{ACC+half+2*i}, v{ACC+half+2*i+1}")
                        for i in range(4):
                            k(f"s_add_u32 s39, s43, {1024*i}")
                            k(f"buffer_store_dwordx4 {vr(Y+32+4*i,4)}, v2, s[44:47], s39 offen {flags}")
                    else:
                        for i in range(8):
                            k(f"s_add_u32 s39, s43, {1024*i}")
                            k(f"buffer_store_dwordx4 {vr(ACC+half+4*i,4)}, v2, s[44:47], s39 offen {flags}")
                    if half == 0: k(f"s_branch L_{tag}_k1{lab}")
                k(f"L_{tag}_k1{lab}:")
            def handoff(stf, ldf, lab):
                sends(stf, lab)
                k("s_waitcnt vmcnt(0)")
                k("s_lshl_b32 s39, s42, 6")
                k("s_lshl_b32 s41, s28, 2")
                k("s_add_u32 s39, s39, s41")
                k("v_mov_b32 v3, 1")
                k("s_mov_b64 exec, 1")
                k(f"buffer_store_dword v3, v4, s[56:59], s39 offen offset:16 {stf}")
                k("s_lshl_b32 s39, s2, 6")
                k("s_add_u32 s39, s39, s41")
                k("s_mov_b32 s41, 0")
                k(f"L_{tag}_poll{lab}:")
                k(f"buffer_load_dword v3, v4, s[56:59], s39 offen offset:16 {ldf}")
                k("s_waitcnt vmcnt(0)")
                k("v_readfirstlane_b32 s43, v3")
                k("s_add_u32 s41, s41, 1")
                k("s_cmp_ge_u32 s41, 0x40000")
                k(f"s_cbranch_scc1 L_{tag}_polld{lab}")
                k("s_cmp_eq_u32 s43, 1")
                k(f"s_cbranch_scc0 L_{tag}_poll{lab}")
                k(f"L_{tag}_polld{lab}:")
                k("s_mov_b64 exec, -1")
                k(f"s_lshl_b32 s43, s2, {14 if XBF16 else 15}")
                k(f"s_lshl_b32 s39, s28, {12 if XBF16 else 13}")
                k("s_add_u32 s43, s43, s39")
                for i in range(4 if XBF16 else 8):
                    k(f"s_add_u32 s39, s43, {1024*i}")
                    k(f"buffer_load_dwordx4 {vr(Y+(32 if XBF16 else 0)+4*i,4)}, v2, s[44:47], s39 offen {ldf}")
            if XSENT:
                assert XBF16
                sends('sc0 sc1', 's')
                k("s_lshl_b32 s43, s2, 14")
                k("s_lshl_b32 s39, s28, 12")
                k("s_add_u32 s43, s43, s39")
                k("s_mov_b32 s41, 0")
                if XPRE: k("s_waitcnt vmcnt(0)")
                k(f"L_{tag}_spoll:")
                for i in range(4):
                    k(f"s_add_u32 s39, s43, {1024*i}")
                    k(f"buffer_load_dwordx4 {vr(Y+32+4*i,4)}, v2, s[44:47], s39 offen sc0 sc1")
                k("s_add_u32 s41, s41, 1")
                k("s_waitcnt vmcnt(0)")
                k(f"v_max3_u32 v3, v{Y+32}, v{Y+33}, v{Y+34}")
                for i in range(3, 15, 2): k(f"v_max3_u32 v3, v3, v{Y+32+i}, v{Y+32+i+1}")
                k(f"v_max_u32 v3, v3, v{Y+47}")
                k("v_cmp_eq_u32 vcc, -1, v3")
                k("s_nop 4")
                k("s_cmp_ge_u32 s41, 0x20000")
                k(f"s_cbranch_scc1 L_{tag}_spolld")
                k(f"s_cbranch_vccnz L_{tag}_spoll")
                k(f"L_{tag}_spolld:")
            else:
                k("s_cmp_eq_u32 s61, 1")
                k(f"s_cbranch_scc0 L_{tag}_far")
                handoff('', 'sc1', 'n')
                k(f"s_branch L_{tag}_xdone")
                k(f"L_{tag}_far:")
                handoff('sc0 sc1', 'sc0 sc1', 'f')
                k(f"L_{tag}_xdone:")
            k("s_cmp_eq_u32 s62, 0")
            k(f"s_cbranch_scc1 L_{tag}_kept")
            for i in range(32): k(f"v_mov_b32 v{ACC+i}, v{ACC+32+i}")
            k(f"v_mov_b32 v{BIAS}, v{BIAS+2}"); k(f"v_mov_b32 v{BIAS+1}, v{BIAS+3}")
            k(f"L_{tag}_kept:")
            mark(k, 4)
            k(f"v_lshlrev_b32 v{BIAS}, 16, v{BIAS}"); k(f"v_lshlrev_b32 v{BIAS+1}, 16, v{BIAS+1}")
            if PERTURB:
                k(f"v_add_f32 v{BIAS}, {f32(PERTURB)}, v{BIAS}"); k(f"v_add_f32 v{BIAS+1}, {f32(PERTURB)}, v{BIAS+1}")
            k("s_lshl_b32 s39, s62, 16")
            k("s_add_u32 s38, s38, s39")
            set_ovs()
            for tnl in range(2):
                for tp in range(2):
                    i0 = 4*tnl + 2*tp
                    if XSENT: pass
                    elif XBF16: k(f"s_waitcnt vmcnt({3 - i0//2})")
                    else:     k(f"s_waitcnt vmcnt({6 - i0 if i0 < 6 else 0})")
                    if i0 == 0: mark(k, 5)
                    P = T + 4*tp + 24*tnl
                    for q in range(4):
                        td = 2*tp + q//2
                        a = ACC + 4*(4*tnl+td) + 2*(q % 2); y = Y + 4*(4*tnl+td) + 2*(q % 2)
                        u, w = T+8+4*q, T+10+4*q
                        if XBF16:
                            pk = Y + 32 + (4*(4*tnl+td) + 2*(q % 2))//2
                            k(f"v_lshlrev_b32 v{y}, 16, v{pk}")
                            k(f"v_and_b32 v{y+1}, s40, v{pk}")
                        k(f"v_pk_add_f32 {vr(a,2)}, {vr(a,2)}, {vr(y,2)}")
                        if EMU_Y:
                            k(f"{CVT} v{w}, v{a}, v{a+1}")
                            k(f"v_lshlrev_b32 v{u}, 16, v{w}")
                            k(f"v_and_b32 v{u+1}, s40, v{w}")
                            k(f"v_add_f32 v{u}, v{u}, v{BIAS+tnl}")
                            k(f"v_add_f32 v{u+1}, v{u+1}, v{BIAS+tnl}")
                        else:
                            k(f"v_add_f32 v{u}, v{a}, v{BIAS+tnl}")
                            k(f"v_add_f32 v{u+1}, v{a+1}, v{BIAS+tnl}")
                        k(f"{CVT} v{P+q}, v{u}, v{u+1}")
                    pack_swap(P)
                    for q in range(4):
                        u, w = T+8+4*q, T+10+4*q
                        hp = HL+8*tnl+4*tp+q
                        k(f"v_lshlrev_b32 v{u}, 16, v{P+q}")
                        k(f"v_and_b32 v{u+1}, s40, v{P+q}")
                        k(f"v_lshlrev_b32 v{w}, 16, v{hp}")
                        k(f"v_and_b32 v{w+1}, s40, v{hp}")
                        k(f"v_pk_add_f32 {vr(u,2)}, {vr(u,2)}, {vr(w,2)}")
                        k(f"{CVT} v{P+q}, v{u}, v{u+1}")
                store_lines(T+24*tnl, T+24*tnl+4, T+32, tnl*16*2048, 48)
    stamp_end(k, tag)
    k(f"s_branch {'L_gbar' if (fused and g1) else ENDL}")
    i_prod = len(k.l)
    k(f"L_{tag}_prod:")
    if PPRIO: k(f"s_setprio {PPRIO}")
    k("s_sub_u32 s33, s28, 4")
    k("v_lshrrev_b32 v2, 4, v1")
    k("s_and_b32 s34, s33, 1")
    k("s_lshl_b32 s34, s34, 2")
    k("v_add_u32 v3, s34, v2")
    k("v_lshlrev_b32 v3, 1, v3")
    k("v_and_b32 v4, 15, v1")
    k("v_xor_b32 v3, v3, v4")
    k("v_lshlrev_b32 v3, 4, v3")
    k("v_lshl_add_u32 v8, v2, 11, v3")
    k(f"v_mul_u32_u24 v2, {BSTR}, v2")
    k("v_add_u32 v9, v2, v3")
    k("s_lshl_b32 s34, s33, 13")
    k("s_add_u32 s40, s32, s34")
    k(f"s_mul_i32 s34, s33, {4*BSTR}")
    k("s_add_u32 s41, s31, s34")
    k("s_lshl_b32 s42, s33, 10")
    k("s_mov_b32 s43, 0")
    k("s_add_u32 s46, s52, s53")
    k("s_mov_b32 s47, 0")
    if fused and (not g1) and FUSE_GG == 2: srd(k, 36, 26, 288*128, FG_OFF)
    DF = fused and (not g1) and FUSE_GG == 2
    nissue = [0]
    def calc_stage(t, dst, tmp):
        k(f"s_add_u32 s{dst}, s46, s{t}")
        k(f"s_and_b32 s{dst}, s{dst}, 3")
        k(f"s_cmp_eq_u32 s{dst}, 0")
        k(f"s_cselect_b32 s{dst}, {3+NIT}, {NIT-1}")
        k(f"s_add_u32 s{dst}, s{dst}, s{t}")
        k(f"s_add_u32 s{dst}, s{dst}, s55")
        k(f"s_cmp_ge_u32 s{dst}, {2*NIT}")
        k(f"s_cselect_b32 s{tmp}, {2*NIT}, {NIT}")
        k(f"s_cmp_ge_u32 s{dst}, {NIT}")
        k(f"s_cselect_b32 s{tmp}, s{tmp}, 0")
        k(f"s_sub_u32 s{dst}, s{dst}, s{tmp}")
        if not KPERM: k(f"s_mov_b32 s{dst}, s{t}")
        if KWRAP: k(f"s_and_b32 s{dst}, s{dst}, {KWRAP-1}")
        k(f"s_add_u32 s{dst}, s{dst}, s63")
    def flag_off(stage, dst):
        k(f"s_lshr_b32 s{dst}, s{stage}, 1")
        k(f"s_lshl_b32 s{dst}, s{dst}, 7")
        k(f"s_add_u32 s{dst}, s{dst}, s57")
    def issue():
        n = nissue[0]; nissue[0] += 1
        if DF:
            if n == 0:
                k("s_lshl_b32 s57, s30, 12")
                k("v_mov_b32 v11, 0")
                calc_stage(47, 56, 59); flag_off(56, 54)
                k("buffer_load_dword v10, v11, s[36:39], s54 offen sc0 sc1")
                k("s_waitcnt vmcnt(0)")
            elif n == 1:
                k("s_waitcnt vmcnt(8)")
            k("v_readfirstlane_b32 s56, v10")
            k("s_cmp_lg_u32 s56, 0")
            k(f"s_cbranch_scc1 L_{tag}_fok{n}")
            k("s_mov_b32 s61, 0")
            k(f"L_{tag}_fpoll{n}:")
            k("s_sleep 4")
            k("buffer_load_dword v10, v11, s[36:39], s54 offen sc0 sc1")
            k("s_waitcnt vmcnt(0)")
            k("v_readfirstlane_b32 s56, v10")
            k("s_add_u32 s61, s61, 1")
            k("s_cmp_ge_u32 s61, 0x20000")
            k(f"s_cbranch_scc1 L_{tag}_fok{n}")
            k("s_cmp_eq_u32 s56, 0")
            k(f"s_cbranch_scc1 L_{tag}_fpoll{n}")
            k(f"L_{tag}_fok{n}:")
            k("s_add_u32 s61, s47, 1")
            calc_stage(61, 56, 59); flag_off(56, 54)
            k("buffer_load_dword v10, v11, s[36:39], s54 offen sc0 sc1")
        calc_stage(47, 58, 59)
        k(f"s_mul_i32 s59, s58, {64*BSTR}")
        k(f"s_lshl_b32 s58, s58, 17")
        k("s_add_u32 s58, s58, s40")
        k("s_add_u32 s59, s59, s41")
        k("s_add_u32 s44, s43, s42")
        for m in range(4):
            k(f"s_add_u32 m0, s44, {4096*m}")
            k(f"s_add_u32 s45, s58, {m*16*2048}")
            k(f"buffer_load_dwordx4 v8, s[12:15], s45 offen {'sc1 ' if DF else ''}lds")
            k(f"s_add_u32 m0, s44, {ASZ+4096*m}")
            k(f"s_add_u32 s45, s59, {m*16*BSTR}")
            k(f"buffer_load_dwordx4 v9, s[8:11], s45 offen {NT_B1 if g1 else NT_B2} lds")
        k("s_add_u32 s47, s47, 1")
        k(f"s_add_u32 s43, s43, {STG}")
        k(f"s_cmp_eq_u32 s43, {STG*NS}")
        k("s_cselect_b32 s43, 0, s43")
    if fused and not g1 and FUSE_GG == 1:
        k("s_cmp_eq_u32 s33, 0")
        k("s_cbranch_scc0 L_gbar_nopoll")
        srd(k, 36, 26, 1024, BAR_OFF)
        k("v_and_b32 v2, 7, v1")
        k("v_lshlrev_b32 v2, 7, v2")
        k("s_mov_b32 s34, 0")
        k("L_gbar_poll:")
        if PSLEEP: k(f"s_sleep {PSLEEP}")
        k(f"buffer_load_dword v3, v2, s[36:39], 0 offen {POLLF}")
        k("s_waitcnt vmcnt(0)")
        k("v_cmp_gt_u32 vcc, 32, v3")
        k("s_add_u32 s34, s34, 1")
        k("s_cmp_ge_u32 s34, 0x20000")
        k("s_cbranch_scc1 L_gbar_nopoll")
        k("s_cbranch_vccnz L_gbar_poll")
        k("L_gbar_nopoll:")
        k("s_barrier")
    if BAR2:
        per = 8
        mark(k, 1)
        issue(); mark(k, 2); issue()
        k(f"s_waitcnt vmcnt({per})")
        mark(k, 3)
        k("s_barrier")
        issue(); issue()
        mark(k, 4)
        k("s_mov_b32 s60, 0")
        k(f"L_{tag}_ploop:")
        k(f"s_waitcnt vmcnt({per})")
        k("s_barrier")
        issue(); issue()
        k("s_add_u32 s60, s60, 2")
        k(f"s_cmp_lt_u32 s60, {NIT-4}")
        k(f"s_cbranch_scc1 L_{tag}_ploop")
        k(f"s_waitcnt vmcnt({per})")
        k("s_barrier")
        k("s_waitcnt vmcnt(0)")
        k("s_barrier")
    else:
        producer_loop(k, tag, 8, issue, 3 if STATIC else NS, NIT)
    if g1 and CODEPF2:
        k("s_cmp_eq_u32 s33, 0")
        k(f"s_cbranch_scc0 L_{tag}_nonp")
        next_code_pf(k, 'g1', 'L_gbar' if fused else 'g2_kernel', 'L_text_end', 28, 120, 56, 1)
        k(f"L_{tag}_nonp:")
    if g1:
        k("s_and_b32 s34, s33, 1")
        k("s_lshr_b32 s36, s33, 1")
        k("v_and_b32 v2, 15, v1")
        k("v_lshlrev_b32 v2, 1, v2")
        k("s_lshl_b32 s37, s36, 7")
        k("s_add_u32 s37, s37, s31")
        for t in range(2):
            k(f"buffer_load_ushort v{BIAS+t}, v2, s[20:23], s37 offen offset:{64+32*t}")
        k("v_and_b32 v2, 15, v1")
        k("v_lshlrev_b32 v2, 11, v2")
        k("v_lshrrev_b32 v3, 4, v1")
        k(f"v_lshl_add_u32 v{OV}, v3, 4, v2")
        k("s_lshl_b32 s38, s29, 7")
        k("s_lshl_b32 s39, s36, 6")
        k("s_add_u32 s38, s38, s39")
        k("s_add_u32 s38, s38, 32")
        k("s_lshl_b32 s38, s38, 11")
        k("s_add_u32 s38, s38, s32")
        k("s_lshl_b32 s39, s34, 7")
        k("s_add_u32 s38, s38, s39")
        k("s_lshl_b32 s39, s33, 13")
        k(f"s_add_u32 s39, s39, {32768 if STATIC else (98304 if BAR2 else 65536)}")
        k("v_lshl_add_u32 v2, v1, 4, s39")
        k("s_setprio 0")
        k("s_barrier")
        for i in range(8): k(f"ds_read_b128 {vr(ACC+4*i,4)}, v2 offset:{1024*i}")
        k("s_waitcnt vmcnt(0) lgkmcnt(0)")
        k(f"s_branch L_{tag}_epi")
    if (not g1) and XSHARE:
        SHX, SHY = 0, 16384
        k("s_setprio 0")
        k("s_and_b32 s34, s33, 1")
        k("s_lshr_b32 s36, s33, 1")
        k("v_and_b32 v2, 15, v1")
        k("v_lshlrev_b32 v2, 1, v2")
        k("s_lshl_b32 s37, s36, 7")
        k("s_add_u32 s37, s37, s31")
        k("s_lshl_b32 s39, s62, 6")
        k("s_add_u32 s37, s37, s39")
        k(f"buffer_load_ushort v{BIAS}, v2, s[20:23], s37 offen offset:32")
        k("v_and_b32 v2, 15, v1")
        k("v_lshlrev_b32 v2, 11, v2")
        k("v_lshrrev_b32 v3, 4, v1")
        k(f"v_lshl_add_u32 v{OV}, v3, 4, v2")
        k("s_lshl_b32 s38, s29, 7")
        k("s_lshl_b32 s39, s36, 6")
        k("s_add_u32 s38, s38, s39")
        k("s_lshl_b32 s39, s62, 5")
        k("s_add_u32 s38, s38, s39")
        k("s_add_u32 s38, s38, 16")
        k("s_lshl_b32 s38, s38, 11")
        k("s_add_u32 s38, s38, s32")
        k("s_lshl_b32 s39, s34, 7")
        k("s_add_u32 s38, s38, s39")
        for tp in range(2):
            k(f"s_add_u32 s40, s38, {tp*64}")
            k(f"buffer_load_dwordx4 {vr(HL+4*tp,4)}, v{OV}, s[16:19], s40 offen")
        srd(k, 44, 26, 256*16384, 0x1E00000 if XB_SEP else VB_OFF)
        k("s_lshl_b32 s43, s2, 14")
        k("s_lshl_b32 s39, s33, 12")
        k("s_add_u32 s43, s43, s39")
        k("v_lshlrev_b32 v2, 4, v1")
        k("s_lshl_b32 s39, s33, 12")
        k("v_add_u32 v3, s39, v2")
        k("s_barrier")
        for i in range(4): k(f"ds_read_b128 {vr(ACC+4*i,4)}, v3 offset:{SHX+1024*i}")
        k("s_mov_b32 s41, 0")
        k(f"L_{tag}_spoll:")
        for i in range(4):
            k(f"s_add_u32 s39, s43, {1024*i}")
            k(f"buffer_load_dwordx4 {vr(Y+32+4*i,4)}, v2, s[44:47], s39 offen sc0 sc1")
        k("s_add_u32 s41, s41, 1")
        k("s_waitcnt vmcnt(0)")
        k(f"v_max3_u32 v5, v{Y+32}, v{Y+33}, v{Y+34}")
        for i in range(3, 15, 2): k(f"v_max3_u32 v5, v5, v{Y+32+i}, v{Y+32+i+1}")
        k(f"v_max_u32 v5, v5, v{Y+47}")
        k("v_cmp_eq_u32 vcc, -1, v5")
        k("s_nop 4")
        k("s_cmp_ge_u32 s41, 0x20000")
        k(f"s_cbranch_scc1 L_{tag}_spolld")
        k(f"s_cbranch_vccnz L_{tag}_spoll")
        k(f"L_{tag}_spolld:")
        k("s_lshl_b32 s39, s33, 11")
        k("v_add_u32 v3, s39, v2")
        k(f"ds_write_b128 v3, {vr(Y+32,4)} offset:{SHY}")
        k(f"ds_write_b128 v3, {vr(Y+36,4)} offset:{SHY+1024}")
        k("s_waitcnt lgkmcnt(0)")
        k("s_barrier")
        k(f"s_branch L_{tag}_epi")
    stamp_end(k, tag, tid=256, slot=256, sfx='p')
    if PRODFIRST and not fused:
        k(f"s_branch {ENDL}")
        k.l = k.l[:i_cons] + k.l[i_prod:] + k.l[i_cons:i_prod]
    if fused and g1:
        return k, NV, STG*NS
    k(f"{ENDL}:")
    k("s_endpgm")
    return k, NV, STG*NS

def gelu_pair(k, src, u, w, bias, dst):
    if EMU_U:
        k(f"{CVT} v{w}, v{src}, v{src+1}")
        k(f"v_lshlrev_b32 v{u}, 16, v{w}")
        k(f"v_and_b32 v{u+1}, s40, v{w}")
        k(f"v_add_f32 v{u}, v{u}, v{bias}")
        k(f"v_add_f32 v{u+1}, v{u+1}, v{bias}")
        k(f"{CVT} v{w}, v{u}, v{u+1}")
        k(f"v_lshlrev_b32 v{u}, 16, v{w}")
        k(f"v_and_b32 v{u+1}, s40, v{w}")
    else:
        k(f"v_add_f32 v{u}, v{src}, v{bias}")
        k(f"v_add_f32 v{u+1}, v{src+1}, v{bias}")
    k(f"v_pk_mul_f32 {vr(w,2)}, {vr(u,2)}, {vr(u,2)}")
    k(f"v_pk_fma_f32 {vr(w,2)}, {vr(w,2)}, s[42:43], {vr(4,2)} op_sel_hi:[1,0,1]")
    k(f"v_pk_mul_f32 {vr(w,2)}, {vr(w,2)}, {vr(u,2)}")
    k(f"v_exp_f32 v{w}, v{w}")
    k(f"v_exp_f32 v{w+1}, v{w+1}")
    k(f"s_nop 0")
    k(f"v_pk_add_f32 {vr(w,2)}, {vr(w,2)}, {vr(6,2)}")
    k(f"v_rcp_f32 v{w}, v{w}")
    k(f"v_rcp_f32 v{w+1}, v{w+1}")
    k(f"s_nop 0")
    k(f"v_pk_mul_f32 {vr(w,2)}, {vr(w,2)}, {vr(u,2)}")
    k(f"{CVT} v{dst}, v{w}, v{w+1}")

RPAT = [2, 1]
FUSE_GG = 2
FUSE23 = 1
FILL1 = 1
FILLPOS = 2
W2WAVES = 8
W2DEPTH = 1
XPRE = 1
PRODFIRST = 0
FIRSTPF = 0
CODEPF2 = 1
WJOB = 2
LN_FUSE = 1
WEARLY = 1
W1IDLE = 0
EMU_LN = 0
EMU_L2 = 0
NT_B1 = ''
NT_B2 = ''
NT_X = ''
NT_W = ''
KHALF = 1
XSENT = 1
XSHARE = 0
XWAIT = 1
XBF16 = 1
EMU_Y = 0
PERTURB = 0
PSLEEP = 4
POLLF = 'sc0 sc1'
STATIC = 1
LOOPSTAMP = 0
BAR2 = 0
FAKE32 = 0
MAP2 = 0
XB_SEP = 1
FORCE_FAR = 0
PPRIO = 3
PFD = 0
KPERM = 1
FAKE16 = 0
NS1 = 3
NS2 = 3
KWRAP = 0
W2PF = 7
EMU_U = 0
RPG1 = 3
RPG2 = 4
def gen_gg():
    k1, nv1, l1 = gemm_kernel('g1', True)
    k2, nv2, l2 = gemm_kernel('g2', True)
    k1.l += k2.l
    return k1, max(nv1, nv2), max(l1, l2)
def gen_g1(): return gemm_kernel('g1')
def gen_g2(): return gemm_kernel('g2')

KERNELS = [('p1_kernel', gen_p1, (256,1,1), (256,1,1)), ('p2_kernel', gen_p2, (256,1,1), (256,1,1)), ('p3_kernel', gen_p3, (256,1,1), (256,1,1)),
 ('g1_kernel', gen_g1, (256,1,1), (512,1,1)), ('g2_kernel', gen_g2, (256,1,1), (512,1,1))]

HEADER = """;
; Pipeline (S=2048 tokens, D=1024 channels, F=3584); all FFT stages are 32-point DFTs on bf16 MFMA with fp32 accumulation:
;   p1  : LayerNorm(x), two real rows packed as one complex row, 1024-point FFT along D; filter W transposed into column blocks
;   p23 : phase A: 2048-point FFT along S (even/odd halves, DC and Nyquist columns packed), multiply by W, inverse FFT
;         p1 fills the blocks with a marker, each workgroup re-reads its block until no marker is left (bounded spin).
;   g1  : G^T = gelu(hn^T w1 + b1), 128x128 tiles, producer waves (LDS-DMA ring) + consumer waves (MFMA 16x16x32)
;         (marker written by g1's spare workgroups).
; Workgroup -> tile maps assume ids congruent mod 8 share an L2 for speed only; correctness does not depend on placement.
"""

def build_all(kernels=None):
    ks = []
    if kernels is None:
        kernels = list(KERNELS[:3]) + [('gg_kernel', gen_gg, (256,1,1), (512,1,1))] if FUSE_GG else list(KERNELS)
        if FUSE23: kernels = [kernels[0], ('p23_kernel', gen_p23, (256,1,1), (256,1,1))] + list(kernels[3:])
    for name, fn, grid, block in kernels:
        if W1PF and name in ('p2_kernel', 'p3_kernel'): block = (320, 1, 1)
        if FIRSTPF and name == 'p3_kernel': block = (320, 1, 1)
        k, nv, lds = fn()
        if ST_ALL:
            k.l = [ (x + ' ' + ST_ALL) if ('buffer_store' in x and 'sc1' not in x and 'sc0' not in x and ' nt' not in x) else x for x in k.l]
        if name.startswith('g'):
            if NO_DMA: k.l = [x for x in k.l if not ('offen lds' in x)]
            if NO_MFMA: k.l = [x for x in k.l if 'v_mfma' not in x]
            if NO_ADV: k.l = [x for x in k.l if not (x.strip().startswith('s_add_u32 s40, s40,') or x.strip().startswith('s_add_u32 s41, s41,'))]
            if NO_A: k.l = [x for x in k.l if not ('s[12:15]' in x and 'offen lds' in x)]
            if NO_B: k.l = [x for x in k.l if not ('s[8:11]' in x and 'offen lds' in x)]
            if NO_BAR: k.l = [x for x in k.l if 's_barrier' not in x]
            if NO_READ: k.l = [x for x in k.l if 'ds_read_b64_tr' not in x]
        ks.append((name, k, nv, lds, grid, block))
    hdr = open('sequential_preLN__spectral_gfnet__mixer_token_mlp__prompt.s.ref').read().split('; Override launch')[0]
    s = hdr + HEADER
    for name, k, nv, lds, grid, block in ks:
        s += f"; @launch kernel={name} grid=({grid[0]},{grid[1]},{grid[2]}) block=({block[0]},{block[1]},{block[2]}) lds={lds}\n"
    s += '.amdgcn_target "amdgcn-amd-amdhsa--gfx950"\n.text\n'
    for name, k, nv, lds, grid, block in ks: s += k.text()
    s += 'L_text_end:\n'
    s += '.section .rodata,"a"\n'
    for name, k, nv, lds, grid, block in ks: s += descriptor(name, nv)
    return s, ks

if __name__ == '__main__':
    s, ks = build_all()
    open(sys.argv[1] if len(sys.argv) > 1 else 'out.s', 'w').write(s)
    print('written', len(s), 'bytes')
```

```python
import sys, math, struct
sys.path.insert(0, 'work')
from asmlib import *

ZW_OFF = 0x0          ; ZW_SIZE = 257*32768
ZD_OFF = 0x0 ; WB_OFF = 0x480000
VB_OFF = 0x900000     ; VB_BLK = 256*64
H_OFF  = 0xE00000
HN_OFF = 0x1200000
GT_OFF = 0x1600000
BAR_OFF = 0x2810000
FG_OFF = 0x2820000
FH_OFF = 0x2830000
WS_USED = 0x1D00000
S, D, F = 2048, 1024, 3584

def f32(x):
    return '0x%08x' % struct.unpack('<I', struct.pack('<f', x))[0]

CVT = 'v_cvt_pk_bf16_f32'
STAMP = False
NO_DMA = False
NO_MFMA = False
NO_READ = False
NO_BAR = False
NO_ADV = False
NO_A = False
NO_B = False
STAMP_OFF = 0x3000000
KIDX = {'p1':0,'p2':1,'p3':2,'g1':3,'g2':4}
NMARK = 8
def mark(k, i):
    if STAMP and not (LOOPSTAMP and k.name.startswith('g') and 1 <= i <= 4): k(f"s_memrealtime s[{64+2*i}:{65+2*i}]")
def stamp_begin(k):
    if STAMP:
        for i in range(1, NMARK): k(f"s_mov_b64 s[{64+2*i}:{65+2*i}], 0")
        k("s_memrealtime s[64:65]")
        k("s_memtime s[94:95]")
def stamp_end(k, tag, tid=0, slot=0, sfx=''):
    if not STAMP: return
    mark(k, 6)
    k("s_waitcnt vmcnt(0) lgkmcnt(0)")
    mark(k, 7)
    k("s_memtime s[84:85]")
    k("s_load_dwordx2 s[88:89], s[0:1], 80")
    k("s_waitcnt lgkmcnt(0)")
    k(f"s_add_u32 s88, s88, {STAMP_OFF + KIDX[tag]*65536}")
    k("s_addc_u32 s89, s89, 0")
    k(f"s_add_u32 s87, s2, {slot}")
    k("s_lshl_b32 s87, s87, 7")
    k("v_mov_b32 v8, s87")
    k(f"v_cmp_eq_u32 vcc, {tid}, v0" if tid <= 64 else f"v_cmp_eq_u32 vcc, {hex(tid)}, v0")
    k("s_and_saveexec_b64 s[86:87], vcc")
    k(f"s_cbranch_execz L_{tag}_nostamp{sfx}")
    for i in range(0, NMARK, 2):
        for j in range(4): k(f"v_mov_b32 v{4+j}, s{64+2*i+j}")
        k(f"global_store_dwordx4 v8, v[4:7], s[88:89] offset:{8*i}")
        k("s_nop 1")
    k("v_mov_b32 v4, s94"); k("v_mov_b32 v5, s95"); k("v_mov_b32 v6, s84"); k("v_mov_b32 v7, s85")
    k("global_store_dwordx4 v8, v[4:7], s[88:89] offset:64")
    k("s_getreg_b32 s84, hwreg(HW_REG_XCC_ID, 0, 4)")
    k("s_nop 1")
    k("v_mov_b32 v4, s84")
    k("global_store_dword v8, v4, s[88:89] offset:80")
    k(f"L_{tag}_nostamp{sfx}:")
    k("s_mov_b64 exec, -1")

MF32 = 'v_mfma_f32_32x32x16_bf16'

CODEPF = 1
W1PF = 0
W1PF0 = 0
W1L2 = 0
ST_FLAGS = ''
ST_ALL = ''
ST_P1 = 'sc1'
ST_P2 = 'sc1'
ST_P3 = 'sc1'
ST_G1 = 'sc1'
ST_G2 = 'nt'
OUT_TOUCH = 0
def code_prefetch(k, tag, first_label, last_label, vtmp, stmp, nwaves_cond=None):
    if not CODEPF: return
    k(f"s_getpc_b64 s[{stmp}:{stmp+1}]")
    k(f"L_{tag}_pc:")
    k(f"s_add_u32 s{stmp}, s{stmp}, {first_label}-L_{tag}_pc")
    k(f"s_addc_u32 s{stmp+1}, s{stmp+1}, 0")

WS_BASE = 0
def srd(k, s, base, size, off=0):
    if base == 26: off += WS_BASE
    if off:
        k(f"s_add_u32 s{s}, s{base}, {hex(off)}")
        k(f"s_addc_u32 s{s+1}, s{base+1}, 0")
    else:
        k(f"s_mov_b32 s{s}, s{base}")
        k(f"s_mov_b32 s{s+1}, s{base+1}")
    k(f"s_mov_b32 s{s+2}, {hex(size)}")
    k(f"s_mov_b32 s{s+3}, 0x20000")

SEQ = [(r, c) for r in range(4) for c in range(4)]

def rot_setup(k, vA, t):
    k(f"v_mul_f32 v{t+4}, {f32(5.0)}, v{vA}")
    k(f"v_cos_f32 v{t}, v{vA}")
    k(f"v_sin_f32 v{t+1}, v{vA}")
    k(f"v_cos_f32 v{t+2}, v{t+4}")
    k(f"v_sin_f32 v{t+3}, v{t+4}")

def rot(k, dst, src, st, tmp, sign):
    k(f"v_pk_mul_f32 {vr(tmp,2)}, {vr(src,2)}, {vr(st,2)} op_sel_hi:[1,0]")
    neg = "neg_lo:[0,1,0]" if sign > 0 else "neg_hi:[0,1,0]"
    k(f"v_pk_fma_f32 {vr(dst,2)}, {vr(src,2)}, {vr(st,2)}, {vr(tmp,2)} op_sel:[1,1,0] op_sel_hi:[0,1,1] {neg}")

def gen_matrix(k, Mr, Mi, vA, vB, t):
    rot_setup(k, vA, t)
    cur = [t+6, t+8]
    k(f"v_cos_f32 v{cur[0]}, v{vB}")
    k(f"v_sin_f32 v{cur[0]+1}, v{vB}")
    k("s_nop 0")
    for i, (r, c) in enumerate(SEQ):
        a_, b_ = cur[i % 2], cur[(i+1) % 2]
        if i < 15: rot(k, b_, a_, t+2 if c == 3 else t, t+4, +1)
        k(f"{CVT} v{Mr+i}, v{a_}, v{a_+1}")
        k(f"{CVT} v{Mi+i}, -v{a_+1}, v{a_}")

def gen_twiddle(k, tw, vA, vB, t, scale=None):
    rot_setup(k, vA, t)
    k(f"v_cos_f32 v{tw}, v{vB}")
    k(f"v_sin_f32_e64 v{tw+1}, -v{vB}")
    if scale is not None:
        k(f"v_mul_f32 v{tw}, {f32(scale)}, v{tw}")
        k(f"v_mul_f32 v{tw+1}, {f32(scale)}, v{tw+1}")
    else: k("s_nop 0")
    for i, (r, c) in enumerate(SEQ):
        if i < 15: rot(k, tw+2*(i+1), tw+2*i, t+2 if c == 3 else t, t+4, -1)

def stage(k, typ, Dr, Di, data, Mr, Mi, first=True):
    for r in range(4):
        for (Dx, M) in ((Dr, Mr), (Di, Mi)):
            c = '0' if (r == 0 and first) else vr(Dx, 16)
            if typ == 'A': k(f"{MF32} {vr(Dx,16)}, {vr(data+4*r,4)}, {vr(M+4*r,4)}, {c}")
            else:          k(f"{MF32} {vr(Dx,16)}, {vr(M+4*r,4)}, {vr(data+4*r,4)}, {c}")

def cmul_pack(k, Dr, Di, w, out, t, conj=False):
    for j in range(16):
        o = t + 2*(j % 4); jp = j & ~1; x = j & 1
        k(f"v_pk_mul_f32 {vr(o,2)}, {vr(w+2*j,2)}, {vr(Dr+jp,2)} op_sel:[0,{x}] op_sel_hi:[1,{x}]")
        k(f"v_pk_fma_f32 {vr(o,2)}, {vr(w+2*j,2)}, {vr(Di+jp,2)}, {vr(o,2)} op_sel:[1,{x},0] op_sel_hi:[0,{x},1] neg_lo:[1,0,0]")
        if j >= 1:
            po = t + 2*((j-1) % 4); n = '-' if conj else ''
            k(f"{CVT} v{out+j-1}, v{po}, {n}v{po+1}")
    po = t + 2*(15 % 4); n = '-' if conj else ''
    k(f"{CVT} v{out+15}, v{po}, {n}v{po+1}")

def wave_reduce2(k, a, b):
    for m in ("quad_perm:[1,0,3,2] row_mask:0xf", "quad_perm:[2,3,0,1] row_mask:0xf", "row_half_mirror row_mask:0xf",
              "row_mirror row_mask:0xf", "row_bcast:15 row_mask:0xa", "row_bcast:31 row_mask:0xc"):
        k(f"v_add_f32_dpp v{a}, v{a}, v{a} {m} bank_mask:0xf")
        k(f"v_add_f32_dpp v{b}, v{b}, v{b} {m} bank_mask:0xf")

def tree_sum(k, X, n, t, op='add'):
    acc = [t, t+2, t+4, t+6]
    for i in range(4):
        k(f"v_pk_add_f32 {vr(acc[i],2)}, {vr(X+2*i,2)}, {vr(X+2*(i+4),2)}")
    for i in range(8, n):
        k(f"v_pk_add_f32 {vr(acc[i%4],2)}, {vr(acc[i%4],2)}, {vr(X+2*i,2)}")
    k(f"v_pk_add_f32 {vr(acc[0],2)}, {vr(acc[0],2)}, {vr(acc[1],2)}")
    k(f"v_pk_add_f32 {vr(acc[2],2)}, {vr(acc[2],2)}, {vr(acc[3],2)}")
    k(f"v_pk_add_f32 {vr(acc[0],2)}, {vr(acc[0],2)}, {vr(acc[2],2)}")

def ln_scalars(k, t, twice=False):
    k(f"v_mul_f32 v{t}, {f32(1/1024)}, v{t}")
    k(f"v_mul_f32 v{t+1}, {f32(1/1024)}, v{t+1}")
    if twice:
        k(f"v_add_f32 v{t+2}, {f32(1e-5)}, v{t}")
        k(f"v_add_f32 v{t+3}, {f32(1e-5)}, v{t+1}")
        k(f"v_rsq_f32 v{t+2}, v{t+2}")
        k(f"v_rsq_f32 v{t+3}, v{t+3}")
        k("s_nop 0")
        k(f"v_mul_f32 v{t}, v{t}, v{t+2}")
        k(f"v_mul_f32 v{t+1}, v{t+1}, v{t+3}")
        k(f"v_mul_f32 v{t}, v{t}, v{t+2}")
        k(f"v_mul_f32 v{t+1}, v{t+1}, v{t+3}")
        k(f"v_add_f32 v{t}, {f32(1e-5)}, v{t}")
        k(f"v_add_f32 v{t+1}, {f32(1e-5)}, v{t+1}")
        k(f"v_rsq_f32 v{t}, v{t}")
        k(f"v_rsq_f32 v{t+1}, v{t+1}")
        k("s_nop 0")
        k(f"v_mul_f32 v{t}, v{t}, v{t+2}")
        k(f"v_mul_f32 v{t+1}, v{t+1}, v{t+3}")
        k(f"v_mul_f32 v{t+12}, v{t+12}, v{t}")
        k(f"v_mul_f32 v{t+13}, v{t+13}, v{t+1}")
        return
    if EMU_LN:
        k(f"{CVT} v{t+2}, v{t}, v{t+1}")
        k(f"v_lshlrev_b32 v{t}, 16, v{t+2}")
        k(f"v_and_b32 v{t+1}, 0xffff0000, v{t+2}")
    k(f"v_add_f32 v{t}, {f32(1e-5)}, v{t}")
    k(f"v_add_f32 v{t+1}, {f32(1e-5)}, v{t+1}")
    if EMU_LN:
        k(f"{CVT} v{t+2}, v{t}, v{t+1}")
        k(f"v_lshlrev_b32 v{t}, 16, v{t+2}")
        k(f"v_and_b32 v{t+1}, 0xffff0000, v{t+2}")
        k(f"v_sqrt_f32 v{t}, v{t}")
        k(f"v_sqrt_f32 v{t+1}, v{t+1}")
        k(f"s_nop 0")
        k(f"{CVT} v{t+2}, v{t}, v{t+1}")
        k(f"v_lshlrev_b32 v{t}, 16, v{t+2}")
        k(f"v_and_b32 v{t+1}, 0xffff0000, v{t+2}")
        k(f"v_rcp_f32 v{t}, v{t}")
        k(f"v_rcp_f32 v{t+1}, v{t+1}")
    else:
        k(f"v_rsq_f32 v{t}, v{t}")
        k(f"v_rsq_f32 v{t+1}, v{t+1}")
    k(f"s_nop 0")
    k(f"v_mul_f32 v{t+12}, v{t+12}, v{t}")
    k(f"v_mul_f32 v{t+13}, v{t+13}, v{t+1}")

def ln_mean(k, t, sTmp):
    k(f"v_mul_f32 v{t}, {f32(1/1024)}, v{t}")
    k(f"v_mul_f32 v{t+1}, {f32(1/1024)}, v{t+1}")
    if EMU_LN:
        k(f"{CVT} v{t+2}, v{t}, v{t+1}")
        k(f"v_readlane_b32 s{sTmp}, v{t}, 63")
        k(f"v_readlane_b32 s{sTmp+1}, v{t+1}, 63")
        k(f"v_lshlrev_b32 v{t+12}, 16, v{t+2}")
        k(f"v_and_b32 v{t+13}, 0xffff0000, v{t+2}")
    else:
        k(f"v_mov_b32 v{t+12}, v{t}")
        k(f"v_mov_b32 v{t+13}, v{t+1}")
        k(f"v_readlane_b32 s{sTmp}, v{t}, 63")
        k(f"v_readlane_b32 s{sTmp+1}, v{t+1}, 63")

def ln_stats_xrow(k, X, t, sM, sR, sTmp):
    tree_sum(k, X, 16, t)
    wave_reduce2(k, t, t+1)
    ln_mean(k, t, sTmp)
    acc = [t, t+2]; tmp = [t+4, t+6, t+8, t+10]
    for i in range(16):
        d = tmp[i % 4]
        k(f"v_pk_add_f32 {vr(d,2)}, {vr(X+2*i,2)}, {sr(sTmp,2)} neg_lo:[0,1] neg_hi:[0,1]")
        a = acc[i % 2]
        if i < 2: k(f"v_pk_mul_f32 {vr(a,2)}, {vr(d,2)}, {vr(d,2)}")
        else:     k(f"v_pk_fma_f32 {vr(a,2)}, {vr(d,2)}, {vr(d,2)}, {vr(a,2)}")
    k(f"v_pk_add_f32 {vr(t,2)}, {vr(t,2)}, {vr(t+2,2)}")
    wave_reduce2(k, t, t+1)
    ln_scalars(k, t)
    k(f"v_readlane_b32 s{sR}, v{t}, 63")
    k(f"v_readlane_b32 s{sR+1}, v{t+1}, 63")
    k(f"v_readlane_b32 s{sM}, v{t+12}, 63")
    k(f"v_readlane_b32 s{sM+1}, v{t+13}, 63")

def gen_p1():
    k = Kern('p1_kernel')
    k("s_cmp_ge_u32 s2, 256")
    k("s_cbranch_scc1 L_p1_end")
    stamp_begin(k)
    k("s_load_dwordx4 s[4:7], s[0:1], 0")
    k("s_load_dwordx2 s[24:25], s[0:1], 16")
    k("s_load_dwordx2 s[60:61], s[0:1], 32")
    k("s_load_dwordx2 s[26:27], s[0:1], 80")
    TID, LANE = 0, 1
    if CODEPF:
        k("s_getpc_b64 s[52:53]")
        k("L_p1_pc:")
        k("s_sub_u32 s52, s52, L_p1_pc-p1_kernel")
        k("s_subb_u32 s53, s53, 0")
        k("s_lshr_b32 s54, s2, 3")
        k("s_mul_i32 s54, s54, (L_text_end-p1_kernel+4095)/4096")
        k("v_add_u32 v213, s54, v0")
        k("v_lshlrev_b32 v213, 7, v213")
        k("v_mov_b32 v211, s53")
        k("v_add_co_u32 v210, vcc, s52, v213")
        k("v_addc_co_u32 v211, vcc, 0, v211, vcc")
        k("v_cmp_gt_u32 vcc, (L_text_end-p1_kernel+4095)/4096, v0")
        k("s_and_saveexec_b64 s[54:55], vcc")
        k("s_cbranch_execz L_p1_cp0")
        k("v_cmp_gt_u32 vcc, L_text_end-p1_kernel, v213")
        k("s_and_b64 exec, exec, vcc")
        k("s_cbranch_execz L_p1_cp0")
        k("global_load_dword v212, v[210:211], off")
        k("L_p1_cp0:")
        k("s_mov_b64 exec, -1")
    k("v_and_b32 v1, 63, v0")
    k("v_lshrrev_b32 v2, 6, v0")
    k("v_readfirstlane_b32 s28, v2")
    k("s_lshr_b32 s29, s2, 5")
    k("s_lshl_b32 s29, s29, 2")
    k("s_and_b32 s30, s2, 31")
    k("s_add_u32 s31, s29, s28")
    k("s_lshl_b32 s31, s31, 5")
    k("s_add_u32 s31, s31, s30")
    k("s_lshl_b32 s31, s31, 11")
    k("s_add_u32 s32, s31, 0x200000")
    k("s_waitcnt lgkmcnt(0)")
    srd(k, 8, 4, S*D*2)
    srd(k, 12, 6, S*513*2)
    srd(k, 16, 24, S*513*2)
    srd(k, 20, 26, 257*16384, ZD_OFF)
    srd(k, 72 if False else 52, 26, 257*16384, WB_OFF) if False else None
    XL = 4
    if FUSE_GG == 2:
        srd(k, 56, 26, 288*128, FG_OFF)
        k("s_lshl_b32 s33, s2, 7")
        k("v_mov_b32 v2, 0")
        k("v_lshlrev_b32 v3, 15, v0")
        k("s_cmp_lt_u32 s2, 32")
        k("s_cselect_b32 s34, 2, 1")
        k("v_cmp_gt_u32 vcc, s34, v0")
        k("s_and_saveexec_b64 s[34:35], vcc")
        k("s_cbranch_execz L_p1_nozf")
        k("buffer_store_dword v2, v3, s[56:59], s33 offen sc0 sc1")
        k("L_p1_nozf:")
        k("s_mov_b64 exec, -1")
    if FUSE_ALL:
        srd(k, 56, 26, 256*128, FH_OFF)
        k("s_lshl_b32 s33, s2, 7")
        k("v_mov_b32 v2, 0")
        k("v_cmp_eq_u32 vcc, 0, v0")
        k("s_and_saveexec_b64 s[34:35], vcc")
        k("s_cbranch_execz L_p1_nozh")
        k("buffer_store_dword v2, v2, s[56:59], s33 offen sc0 sc1")
        k("L_p1_nozh:")
        k("s_mov_b64 exec, -1")
    if FUSE_GG == 1 or (FUSE23 and FILLPOS != 2):
        srd(k, 56, 26, 1024, BAR_OFF)
        k("s_cmp_lt_u32 s2, 8")
        k("s_cbranch_scc0 L_p1_nozb")
        k("s_lshl_b32 s33, s2, 7")
        k("v_mov_b32 v2, 0")
        k("v_cmp_eq_u32 vcc, 0, v0")
        k("s_and_saveexec_b64 s[34:35], vcc")
        k("s_cbranch_execz L_p1_nozb")
        k("buffer_store_dword v2, v2, s[56:59], s33 offen sc0 sc1")
        k("L_p1_nozb:")
        k("s_mov_b64 exec, -1")
    k("v_lshlrev_b32 v2, 4, v1")
    k(f"buffer_load_dwordx4 {vr(XL,4)}, v2, s[8:11], s31 offen {NT_X}")
    k(f"buffer_load_dwordx4 {vr(XL+4,4)}, v2, s[8:11], s31 offen offset:1024 {NT_X}")
    k(f"buffer_load_dwordx4 {vr(XL+8,4)}, v2, s[8:11], s32 offen {NT_X}")
    k(f"buffer_load_dwordx4 {vr(XL+12,4)}, v2, s[8:11], s32 offen offset:1024 {NT_X}")
    WL = 20
    def w_loads():
        k("v_lshlrev_b32 v220, 2, v0")
        k("s_lshl_b32 s33, s29, 6")
        k("s_lshl_b32 s34, s30, 1")
        k("s_add_u32 s33, s33, s34")
        k("s_mul_i32 s33, s33, 1026")
        for pi in range(2):
            for cc in range(4):
                off = (64*cc + pi)*1026
                k(f"s_add_u32 s34, s33, {off}")
                k(f"buffer_load_dword v{WL+4*pi+cc}, v220, s[12:15], s34 offen {NT_W}")
                k(f"buffer_load_dword v{WL+8+4*pi+cc}, v220, s[16:19], s34 offen {NT_W}")
        WX = 200
        k("v_and_b32 v200, 3, v1")
        k("v_lshlrev_b32 v200, 6, v200")
        k("v_bfe_u32 v201, v1, 2, 1")
        k("v_add_u32 v200, v200, v201")
        k("v_mul_u32_u24 v200, 1026, v200")
        k("v_add_u32 v200, 1024, v200")
        k("v_and_b32 v226, 3, v1")
        k("v_lshlrev_b32 v226, 6, v226")
        k("v_add_u32 v226, v226, v201")
        k("s_lshl_b32 s49, s29, 6")
        k("s_lshl_b32 s50, s30, 1")
        k("s_add_u32 s49, s49, s50")
        k("v_add_u32 v226, s49, v226")
        k("v_sub_u32 v226, 2048, v226")
        k("v_and_b32 v226, 2047, v226")
        k("v_mul_u32_u24 v226, 1026, v226")
        k("v_subrev_u32 v227, 1024, v200")
        k("v_cmp_gt_u32 vcc, 8, v0")
        k("s_and_saveexec_b64 s[36:37], vcc")
        k("s_cbranch_execz L_p1_nox")
        k("buffer_load_ushort v202, v200, s[12:15], s33 offen")
        k("buffer_load_ushort v203, v200, s[16:19], s33 offen")
        k("buffer_load_ushort v228, v227, s[12:15], s33 offen")
        k("buffer_load_ushort v229, v227, s[16:19], s33 offen")
        k("buffer_load_ushort v230, v226, s[12:15], 0 offen")
        k("buffer_load_ushort v231, v226, s[16:19], 0 offen")
        k("buffer_load_ushort v232, v226, s[12:15], 0 offen offset:1024")
        k("buffer_load_ushort v233, v226, s[16:19], 0 offen offset:1024")
        k("L_p1_nox:")
        k("s_mov_b64 exec, -1")
    if WEARLY == 1: w_loads()
    def vb_fill(reg):
        srd(k, 56, 26, 256*VB_BLK, VB_OFF)
        for i in range(4): k(f"v_mov_b32 v{reg+i}, -1")
        k("v_lshlrev_b32 v234, 4, v0")
        k("s_lshl_b32 s51, s2, 14")
        for j in range(4):
            k(f"buffer_store_dwordx4 {vr(reg,4)}, v234, s[56:59], s51 offen sc0 sc1")
            if j < 3: k("s_add_u32 s51, s51, 4096")
    if FUSE23 and FILLPOS == 2 and FILL1 == 0: vb_fill(36)
    WL = 20
    Mr, Mi, TW = 36, 52, 68
    XF, DR, DI, OP, T = 100, 132, 148, 164, 180
    k("v_and_b32 v2, 31, v1")
    k("v_cvt_f32_u32 v2, v2")
    k("v_lshrrev_b32 v3, 5, v1")
    k("v_lshlrev_b32 v3, 2, v3")
    k("v_cvt_f32_u32 v3, v3")
    k(f"v_mul_f32 v204, {f32(1/32)}, v2")
    k("v_mul_f32 v205, v204, v3")
    gen_matrix(k, Mr, Mi, 204, 205, T)
    k(f"v_mul_f32 v204, {f32(1/1024)}, v2")
    k("v_mul_f32 v205, v204, v3")
    gen_twiddle(k, TW, 204, 205, T)
    STG = 16384; WST = STG + 257*64 + 64
    k("s_lshr_b32 s44, s2, 2")
    k("s_and_b32 s44, s44, 3")
    k("s_mov_b32 s45, 0x05040100")
    k("s_mov_b32 s46, 0x07060302")
    k("s_lshl_b32 s47, s2, 6")
    k("s_lshl_b32 s48, s28, 2")
    k(f"s_add_u32 s48, s48, {STG}")
    B1, B2, AWJ, AX, ARD, AGL, AT1, AT2, AWR, AWG = 206, 207, 208, 209, 216, 217, 218, 219, 221, 222
    k("v_and_b32 v2, 31, v1")
    k("v_lshrrev_b32 v3, 5, v1")
    k("v_and_b32 v204, 1, v2")
    k("v_lshrrev_b32 v205, 1, v2")
    k(f"v_xor_b32 v{B1}, s44, v204")
    k(f"v_lshlrev_b32 v{B1}, 4, v{B1}")
    k(f"v_lshl_add_u32 v{B1}, v205, 6, v{B1}")
    k(f"v_lshl_add_u32 v{B1}, v3, 12, v{B1}")
    k(f"v_add_u32 v{B1}, s48, v{B1}")
    k("v_add_u32 v205, 1, v2")
    k("v_lshrrev_b32 v205, 1, v205")
    k("v_add_u32 v204, 2, v204")
    k(f"v_xor_b32 v{B2}, s44, v204")
    k(f"v_lshlrev_b32 v{B2}, 4, v{B2}")
    k("v_lshlrev_b32 v205, 6, v205")
    k(f"v_sub_u32 v{B2}, v{B2}, v205")
    k("v_lshlrev_b32 v205, 12, v3")
    k(f"v_sub_u32 v{B2}, v{B2}, v205")
    k(f"v_add_u32 v{B2}, s48, v{B2}")
    k("s_lshl_b32 s49, s28, 12")
    k(f"s_add_u32 s49, s49, {WST}")
    k("v_bfe_u32 v204, v1, 1, 2")
    k("v_xor_b32 v204, s44, v204")
    k("v_lshlrev_b32 v204, 4, v204")
    k(f"v_lshl_add_u32 v{AWJ}, v1, 6, v204")
    k(f"v_add_u32 v{AWJ}, s49, v{AWJ}")
    k("v_lshrrev_b32 v204, 2, v1")
    k("v_and_b32 v205, 3, v1")
    k(f"v_bfe_u32 v{AT1}, v204, 1, 2")
    k(f"v_xor_b32 v{AT1}, v{AT1}, v205")
    k(f"v_lshlrev_b32 v{AT1}, 4, v{AT1}")
    k(f"v_lshl_add_u32 v{AWR}, v204, 6, v{AT1}")
    k(f"v_add_u32 v{AWR}, s49, v{AWR}")
    k("s_lshl_b32 s49, s28, 6")
    k("v_add_u32 v204, s49, v204")
    k("v_lshlrev_b32 v204, 14, v204")
    k(f"v_lshl_add_u32 v{AWG}, v205, 4, v204")
    k("v_bfe_u32 v204, v1, 2, 1")
    k("v_xor_b32 v204, s44, v204")
    k("v_lshlrev_b32 v204, 4, v204")
    k("v_and_b32 v205, 3, v1")
    k(f"v_lshl_add_u32 v{AX}, v205, 2, v204")
    APW = 223
    k(f"v_add_u32 v{APW}, {WST}, v{AX}")
    k(f"v_lshlrev_b32 v{ARD}, 4, v0")
    k(f"v_add_u32 v{ARD}, {STG}, v{ARD}")
    k("v_lshrrev_b32 v204, 2, v0")
    k("v_lshlrev_b32 v204, 14, v204")
    k("v_and_b32 v205, 3, v0")
    k(f"v_lshl_add_u32 v{AGL}, v205, 4, v204")
    k("s_xor_b32 s49, s44, 2")
    k("s_lshl_b32 s49, s49, 4")
    k("s_add_u32 s49, s49, s48")
    k("s_lshl_b32 s50, s44, 4")
    k("s_add_u32 s50, s50, s48")
    k(f"v_mov_b32 v{AT1}, s49")
    k(f"v_mov_b32 v{AT2}, s50")
    k("s_lshl_b32 s36, s28, 12")
    k("v_lshlrev_b32 v2, 5, v1")
    k("v_add_u32 v2, s36, v2")
    k("v_and_b32 v3, 31, v1")
    k("v_lshlrev_b32 v3, 2, v3")
    k("v_lshrrev_b32 v204, 5, v1")
    k("v_lshlrev_b32 v204, 9, v204")
    k("v_add3_u32 v3, v3, v204, s36")
    k("s_mov_b32 s35, 0xffff0000")
    if WEARLY == 2: w_loads()
    mark(k, 1)
    k(("s_waitcnt vmcnt(20)" if (FUSE23 and FILLPOS == 2 and FILL1 == 0) else "s_waitcnt vmcnt(16)") if WEARLY else "s_waitcnt vmcnt(0)")
    mark(k, 2)
    if FUSE23 and FILLPOS == 2 and FILL1 == 1: vb_fill(180)
    if not WEARLY: w_loads()
    for i in range(16):
        for row in range(2):
            src = XL + 8*row + (i >> 1)
            if i % 2 == 0: k(f"v_lshlrev_b32 v{XF+2*i+row}, 16, v{src}")
            else:          k(f"v_and_b32 v{XF+2*i+row}, s35, v{src}")
    ln_stats_xrow(k, XF, T, 38, 40, 42)
    k(f"v_mov_b32 v{T+8}, s40"); k(f"v_mov_b32 v{T+9}, s41")
    k(f"v_mov_b32 v{T+10}, s38"); k(f"v_mov_b32 v{T+11}, s39")
    for i in range(16):
        d = T + 2*(i % 4)
        k(f"v_pk_fma_f32 {vr(d,2)}, {vr(XF+2*i,2)}, {vr(T+8,2)}, {vr(T+10,2)} neg_lo:[0,0,1] neg_hi:[0,0,1]")
        k(f"{CVT} v{OP+i}, v{d}, v{d+1}")
    k(f"ds_write_b128 v2, {vr(OP,4)}")
    k(f"ds_write_b128 v2, {vr(OP+4,4)} offset:16")
    k(f"ds_write_b128 v2, {vr(OP+8,4)} offset:2048")
    k(f"ds_write_b128 v2, {vr(OP+12,4)} offset:2064")
    k("s_waitcnt lgkmcnt(0)")
    for i, (r, c) in enumerate(SEQ):
        k(f"ds_read_b32 v{OP+i}, v3 offset:{(8*r+c)*128}")
    mark(k, 3)
    k("s_waitcnt lgkmcnt(0)")
    stage(k, 'A', DR, DI, OP, Mr, Mi)
    def w_job():
        srd(k, 56, 26, 257*16384, WB_OFF)
        k("s_waitcnt vmcnt(4)" if WJOB == 2 else "s_waitcnt vmcnt(0)")
        WO = XF
        for e in range(2):
            for pi in range(2):
                for cc in range(4):
                    k(f"v_perm_b32 v{WO+4*(2*e+pi)+cc}, v{WL+8+4*pi+cc}, v{WL+4*pi+cc}, s{45+e}")
        for sl in range(4):
            if sl: k(f"v_xor_b32 v204, {16*sl}, v{AWJ}")
            k(f"ds_write_b128 v{204 if sl else AWJ}, {vr(WO+4*sl,4)}")
        k("s_add_u32 s49, s47, 0x400000")
        k("v_cmp_gt_u32 vcc, 8, v0")
        k("s_and_saveexec_b64 s[36:37], vcc")
        k("s_cbranch_execz L_p1_nox2")
        for r_ in (202, 203, 228, 229, 230, 231, 232, 233): k(f"v_lshlrev_b32 v{r_}, 16, v{r_}")
        k("v_add_f32 v228, v228, v230")
        k("v_sub_f32 v229, v229, v231")
        k("v_add_f32 v202, v202, v232")
        k("v_sub_f32 v203, v203, v233")
        k("v_add_f32 v230, v228, v202")
        k("v_add_f32 v231, v229, v203")
        k("v_sub_f32 v232, v228, v202")
        k("v_sub_f32 v233, v229, v203")
        for r_ in (230, 231, 232, 233): k(f"v_mul_f32 v{r_}, 0x3e800000, v{r_}")
        k(f"{CVT} v202, v230, v231")
        k(f"{CVT} v203, v232, v233")
        k(f"ds_write_b32 v{APW}, v202")
        k(f"buffer_store_dword v203, v{AX}, s[56:59], s49 offen {ST_P1}")
        k("L_p1_nox2:")
        k("s_mov_b64 exec, -1")
        k("s_waitcnt lgkmcnt(0)")
        for j in range(4): k(f"ds_read_b128 {vr(WO+16+4*j,4)}, v{AWR} offset:{1024*j}")
        k("s_mov_b32 s49, s47")
        for j in range(4):
            k(f"s_waitcnt lgkmcnt({3-j})")
            k(f"buffer_store_dwordx4 {vr(WO+16+4*j,4)}, v{AWG}, s[56:59], s49 offen {ST_P1}")
            if j < 3: k(f"s_add_u32 s49, s49, {16*16384}")
    if WJOB == 0: w_job()
    cmul_pack(k, DR, DI, TW, OP, T)
    stage(k, 'B', DR, DI, OP, Mr, Mi)
    mark(k, 4)
    for i, (r, c) in enumerate(SEQ):
        if r < 2: k(f"{CVT} v{OP+i}, v{DR+i}, v{DI+i}")
        else:     k(f"{CVT} v{OP+i}, v{DI+i}, v{DR+i}")
        if r < 2: k(f"ds_write_b32 v{B1}, v{OP+i} offset:{(8*r+c)*1024}")
        else:     k(f"ds_write_b32 v{B2}, v{OP+i} offset:{(32-8*r-c)*1024}")
    k(f"v_sub_f32 v{T+2}, v{DR}, v{DI+8}")
    k(f"v_add_f32 v{T+3}, v{DI}, v{DR+8}")
    k(f"v_sub_f32 v{T+4}, v{DI}, v{DR+8}")
    k(f"v_add_f32 v{T+5}, v{DR}, v{DI+8}")
    k(f"{CVT} v{T}, v{T+4}, v{T+5}")
    k(f"{CVT} v{T+1}, v{T+2}, v{T+3}")
    k("s_mov_b64 exec, 1")
    k(f"ds_write_b32 v{AT1}, v{T}")
    k(f"ds_write_b32 v{AT2}, v{T+1}")
    k("s_mov_b64 exec, -1")
    if WJOB == 1: w_job()
    k("s_waitcnt lgkmcnt(0)")
    k("s_barrier")
    RO = XF
    for j in range(4):
        k(f"ds_read_b128 {vr(RO+4*j,4)}, v{ARD} offset:{4096*j}")
    for j in range(4):
        k(f"s_waitcnt lgkmcnt({3-j})")
        k(f"buffer_store_dwordx4 {vr(RO+4*j,4)}, v{AGL}, s[20:23], s47 offen {ST_P1}")
        if j < 3: k("s_add_u32 s47, s47, 0x100000")
    if WJOB == 2:
        k("s_sub_u32 s47, s47, 0x300000")
        w_job()
    stamp_end(k, 'p1')
    k("L_p1_end:")
    k("s_endpgm")
    k("L_p1_endc:")
    return k, 236, WST + 16384

def pf_wave(k, tag, first_line):
    if not W1PF: return
    k("s_cmp_eq_u32 s28, 4")
    k(f"s_cbranch_scc0 L_{tag}_nopf")
    k("s_waitcnt lgkmcnt(0)")
    srd(k, 16, 24, S*F*2)
    k(f"s_mul_i32 s33, s2, {W1PF*128}")
    k(f"s_add_u32 s33, s33, {first_line*128}")
    k("v_lshlrev_b32 v3, 7, v1")
    for i in range(W1PF//64):
        k("buffer_load_dword v4, v3, s[16:19], s33 offen")
        k("s_add_u32 s33, s33, 8192")
    k("s_endpgm")
    k(f"L_{tag}_nopf:")

def first_tiles_wave(k):
    if not FIRSTPF: return
    k("s_cmp_eq_u32 s28, 4")
    k("s_cbranch_scc0 L_p3_noft")
    k("s_waitcnt lgkmcnt(0)")
    srd(k, 16, 24, S*F*2)
    k("s_lshr_b32 s33, s2, 6")
    k("s_lshl_b32 s33, s33, 3")
    k("s_lshr_b32 s33, 0x0400031f, s33")
    k("s_and_b32 s33, s33, 31")
    k("s_and_b32 s34, s2, 1")
    k("s_lshl_b32 s34, s34, 4")
    k("s_add_u32 s33, s33, s34")
    k("s_and_b32 s33, s33, 31")
    k(f"s_mul_i32 s33, s33, {64*7168}")
    k("s_bfe_u32 s34, s2, 0x20001")
    k("s_mul_i32 s34, s34, 1792")
    k("s_add_u32 s33, s33, s34")
    k("s_bfe_u32 s34, s2, 0x30003")
    k("s_mul_i32 s34, s34, 112")
    for h in range(2):
        k(f"v_add_u32 v2, {64*h}, v1")
        k("v_min_u32 v2, 111, v2")
        k("v_add_u32 v2, s34, v2")
        k("v_mul_u32_u24 v3, 4682, v2")
        k("v_lshrrev_b32 v3, 16, v3")
        k("v_mul_u32_u24 v4, 14, v3")
        k("v_sub_u32 v4, v2, v4")
        k("v_mul_u32_u24 v3, 7168, v3")
        k("v_lshl_add_u32 v3, v4, 7, v3")
        k(f"buffer_load_dword v{5+h}, v3, s[16:19], s33 offen")
    k("s_endpgm")
    k("L_p3_noft:")

def next_code_pf(k, tag, first, last, nwg, vt, st, lane):
    if not CODEPF2: return
    per = f"(({last}-{first})/128+{nwg})/{nwg}"
    k(f"s_getpc_b64 s[{st}:{st+1}]")
    k(f"L_{tag}_npc:")
    k(f"s_add_u32 s{st}, s{st}, {first}-L_{tag}_npc")
    k(f"s_addc_u32 s{st+1}, s{st+1}, 0")
    k(f"s_lshr_b32 s{st+2}, s2, 3")
    k(f"s_mul_i32 s{st+2}, s{st+2}, {per}")
    k(f"v_add_u32 v{vt+2}, s{st+2}, v{lane}")
    k(f"v_lshlrev_b32 v{vt+2}, 7, v{vt+2}")
    k(f"v_mov_b32 v{vt+1}, s{st+1}")
    k(f"v_add_co_u32 v{vt}, vcc, s{st}, v{vt+2}")
    k(f"v_addc_co_u32 v{vt+1}, vcc, 0, v{vt+1}, vcc")
    k(f"v_cmp_gt_u32 vcc, {per}, v{lane}")
    k(f"s_mov_b64 exec, vcc")
    k(f"v_cmp_gt_u32 vcc, {last}-{first}, v{vt+2}")
    k(f"s_and_b64 exec, exec, vcc")
    k(f"s_cbranch_execz L_{tag}_npe")
    k(f"global_load_dword v{vt+3}, v[{vt}:{vt+1}], off")
    k(f"L_{tag}_npe:")
    k("s_mov_b64 exec, -1")

def gen_p2(fused=False, mega=False):
    k = Kern('mega_kernel' if mega else ('p23_kernel' if fused else 'p2_kernel'))
    k("s_cmp_ge_u32 s2, 256")
    k("s_cbranch_scc1 L_p2_end")
    stamp_begin(k)
    k("s_load_dwordx2 s[26:27], s[0:1], 80")
    k("s_load_dwordx2 s[24:25], s[0:1], 32")
    if fused: k("s_load_dwordx2 s[4:5], s[0:1], 0")
    k("v_and_b32 v1, 63, v0")
    k("v_lshrrev_b32 v2, 6, v0")
    k("v_readfirstlane_b32 s28, v2")
    if mega:
        k("s_cmp_lt_u32 s28, 4")
        k("s_cbranch_scc1 L_p2_lo")
        k("s_waitcnt lgkmcnt(0)")
        k("s_branch L_g1_entry")
        k("L_p2_lo:")
    pf_wave(k, 'p2', W1PF0)
    k("v_lshlrev_b32 v2, 4, v1")
    k("s_lshr_b32 s29, s28, 1")
    k("s_and_b32 s30, s28, 1")
    k("s_lshl_b32 s31, s2, 14")
    k("s_lshl_b32 s32, s28, 12")
    k("s_add_u32 s31, s31, s32")
    k("s_waitcnt lgkmcnt(0)")
    srd(k, 8, 26, 257*16384, ZD_OFF)
    srd(k, 20, 26, 257*16384, WB_OFF)
    srd(k, 12, 26, 256*VB_BLK, VB_OFF)
    for i in range(4):
        k(f"s_add_u32 m0, s32, {1024*i}")
        k(f"s_add_u32 s33, s31, {1024*i}")
        k(f"buffer_load_dwordx4 v2, s[8:11], s33 offen lds")
    k("s_or_b32 s46, s2, s29")
    k("s_cmp_eq_u32 s46, 0")
    k("s_cbranch_scc0 L_p2_noq")
    k("v_bfe_u32 v3, v1, 2, 2")
    k("v_xor_b32 v3, s30, v3")
    k("v_lshlrev_b32 v3, 4, v3")
    k("v_lshl_add_u32 v3, v1, 6, v3")
    k("s_lshl_b32 s47, s30, 12")
    for r in range(4):
        k(f"s_add_u32 m0, s47, {32768+1024*r}")
        k(f"s_mov_b32 s33, {0x400000+4096*r}")
        k("buffer_load_dwordx4 v3, s[20:23], s33 offen lds")
    k("L_p2_noq:")
    def own_fill(reg):
        for i in range(4): k(f"v_mov_b32 v{reg+i}, -1")
        k("v_lshlrev_b32 v3, 4, v0")
        k("s_lshl_b32 s33, s2, 14")
        for j in range(4):
            k(f"buffer_store_dwordx4 {vr(reg,4)}, v3, s[12:15], s33 offen sc0 sc1")
            if j < 3: k("s_add_u32 s33, s33, 4096")
    if fused and FILLPOS != 2: srd(k, 16, 26, 1024, BAR_OFF)
    if fused and FILLPOS == 0: own_fill(4)
    Z1, Z2 = 4, 20
    M1r, M1i, MFr, MFi, MIr, MIi = 36, 52, 68, 84, 100, 116
    T1, T2 = 132, 164
    DR, DI, T = 196, 212, 228
    A, B, J, H4, PI = 244, 245, 246, 247, 248
    k(f"v_and_b32 v{J}, 31, v1")
    k(f"v_cvt_f32_u32 v{J}, v{J}")
    k(f"v_lshrrev_b32 v{H4}, 5, v1")
    k(f"v_lshlrev_b32 v{H4}, 2, v{H4}")
    k(f"v_cvt_f32_u32 v{H4}, v{H4}")
    k(f"v_mov_b32 v{PI}, s30")
    k(f"v_cvt_f32_u32 v{PI}, v{PI}")
    k(f"v_mul_f32 v{A}, {f32(1/32)}, v{J}")
    k(f"v_mul_f32 v{B}, v{A}, v{H4}")
    gen_matrix(k, MFr, MFi, A, B, T)
    k(f"v_fma_f32 v{A}, v{J}, 2.0, v{PI}")
    k(f"v_mul_f32 v{A}, {f32(1/64)}, v{A}")
    k(f"v_mul_f32 v{B}, v{A}, v{H4}")
    gen_matrix(k, M1r, M1i, A, B, T)
    k("s_lshl_b32 s33, s30, 4")
    k(f"v_and_b32 v{T}, 31, v1")
    k(f"v_xor_b32 v{T}, s33, v{T}")
    k(f"v_cvt_f32_u32 v{T}, v{T}")
    k(f"v_mul_f32 v{A}, {f32(1/32)}, v{T}")
    k(f"v_mul_f32 v{B}, v{A}, v{H4}")
    k(f"v_mul_f32 v{T}, {f32(1/64)}, v{T}")
    k(f"v_fma_f32 v{B}, v{T}, v{PI}, v{B}")
    gen_matrix(k, MIr, MIi, A, B, T)
    k(f"v_fma_f32 v{A}, v{J}, 2.0, v{PI}")
    k(f"v_mul_f32 v{A}, {f32(1/2048)}, v{A}")
    k(f"v_mov_b32 v{T}, {f32(0.125)}")
    k(f"v_mul_f32 v{T+1}, {f32(-0.25)}, v{PI}")
    k(f"v_add_f32 v{T}, v{T}, v{T+1}")
    k(f"v_fma_f32 v{B}, v{A}, v{H4}, v{T}")
    gen_twiddle(k, T1, A, B, T)
    k(f"v_mul_f32 v{A}, {f32(1/1024)}, v{J}")
    k(f"v_mul_f32 v{B}, v{A}, v{H4}")
    k(f"v_mul_f32 v{T}, {f32(1/2048)}, v{J}")
    k(f"v_fma_f32 v{B}, v{T}, v{PI}, v{B}")
    gen_twiddle(k, T2, A, B, T)
    AZ1, AZ2, AW = 249, 250, 251
    k(f"v_bfe_u32 v{T}, v1, 2, 2")
    k(f"v_lshlrev_b32 v{T+1}, 6, v1")
    k(f"v_xor_b32 v{AZ1}, s29, v{T}")
    k(f"v_lshl_add_u32 v{AZ1}, v{AZ1}, 4, v{T+1}")
    k(f"v_xor_b32 v{AZ2}, 32, v{AZ1}")
    k("s_lshl_b32 s33, s29, 1")
    k("s_add_u32 s33, s33, s30")
    k(f"v_xor_b32 v{AW}, s33, v{T}")
    k(f"v_lshl_add_u32 v{AW}, v{AW}, 4, v{T+1}")
    k(f"v_add_u32 v{AW}, 16384, v{AW}")
    k("s_mul_i32 s34, s30, 0x80008000")
    k("s_mov_b32 s35, 0xffff0000")
    mark(k, 1)
    k("s_waitcnt vmcnt(4)" if (fused and FILLPOS == 0) else "s_waitcnt vmcnt(0)")
    for i in range(4):
        k(f"s_add_u32 m0, s32, {16384+1024*i}")
        k(f"s_add_u32 s33, s31, {1024*i}")
        k(f"buffer_load_dwordx4 v2, s[20:23], s33 offen lds")
    if fused and FILLPOS == 1: own_fill(DR)
    k("s_barrier")
    mark(k, 2)
    for r in range(4):
        k(f"ds_read_b128 {vr(Z1+4*r,4)}, v{AZ1} offset:{4096*r}")
        k(f"ds_read_b128 {vr(Z2+4*r,4)}, v{AZ2} offset:{4096*r}")
    k("s_waitcnt lgkmcnt(0)")
    for i in range(16):
        k(f"v_xor_b32 v{Z2+i}, s34, v{Z2+i}")
    stage(k, 'A', DR, DI, Z1, M1r, M1i, first=True)
    stage(k, 'A', DR, DI, Z2, M1r, M1i, first=False)
    OP = Z1
    cmul_pack(k, DR, DI, T1, OP, T)
    k("s_waitcnt vmcnt(0)")
    k("s_barrier")
    if fused and FILLPOS != 2:
        k("s_cmp_eq_u32 s28, 0")
        k("s_cbranch_scc0 L_p2_noarr")
        k("s_and_b32 s33, s2, 7")
        k("s_lshl_b32 s33, s33, 7")
        k("v_mov_b32 v249, 1")
        k("v_mov_b32 v250, 0")
        k("s_mov_b64 exec, 1")
        k("buffer_atomic_add v249, v250, s[16:19], s33 offen sc1")
        k("s_mov_b64 exec, -1")
        k("L_p2_noarr:")
    for r in range(4):
        k(f"ds_read_b128 {vr(Z2+4*r,4)}, v{AW} offset:{4096*r}")
    stage(k, 'B', DR, DI, OP, MFr, MFi)
    WP = M1r
    k("s_waitcnt lgkmcnt(0)")
    for i in range(16):
        k(f"v_lshlrev_b32 v{WP+2*i}, 16, v{Z2+i}")
        k(f"v_and_b32 v{WP+2*i+1}, s35, v{Z2+i}")
    k("s_or_b32 s46, s2, s29")
    k("s_cmp_eq_u32 s46, 0")
    k("s_cbranch_scc1 L_p2_spec")
    cmul_pack(k, DR, DI, WP, OP, T, conj=True)
    k("L_p2_specd:")
    stage(k, 'A', DR, DI, OP, MFr, MFi)
    cmul_pack(k, DR, DI, T2, OP, T)
    stage(k, 'B', DR, DI, OP, MIr, MIi)
    mark(k, 4)
    if fused and FILLPOS != 2:
        k("s_cmp_eq_u32 s28, 0")
        k("s_cbranch_scc0 L_p2_nochk0")
        k("v_and_b32 v249, 7, v1")
        k("v_lshlrev_b32 v249, 7, v249")
        k("buffer_load_dword v250, v249, s[16:19], 0 offen sc0 sc1")
        k("L_p2_nochk0:")
    XCH, STG = 32768, 49152
    AX = 252
    k("s_lshl_b32 s36, s28, 12")
    k(f"s_add_u32 s36, s36, {XCH}")
    k(f"v_lshl_add_u32 v{AX}, v1, 4, s36")
    k(f"ds_write_b128 v{AX}, {vr(DR+8,4)}")
    k(f"ds_write_b128 v{AX}, {vr(DR+12,4)} offset:1024")
    k(f"ds_write_b128 v{AX}, {vr(DI+8,4)} offset:2048")
    k(f"ds_write_b128 v{AX}, {vr(DI+12,4)} offset:3072")
    k(f"v_xor_b32 v{AX}, 4096, v{AX}")
    k("s_cmp_eq_u32 s30, 0")
    k(f"s_cselect_b32 s40, {f32(1.0)}, {f32(-1.0)}")
    k("s_mov_b32 s42, s40")
    k("s_waitcnt lgkmcnt(0)")
    k("s_barrier")
    OR_, OI = 36, 44
    k(f"ds_read_b128 {vr(OR_,4)}, v{AX}")
    k(f"ds_read_b128 {vr(OR_+4,4)}, v{AX} offset:1024")
    k(f"ds_read_b128 {vr(OI,4)}, v{AX} offset:2048")
    k(f"ds_read_b128 {vr(OI+4,4)}, v{AX} offset:3072")
    k(f"v_bfe_u32 v{T}, v1, 1, 2")
    k(f"v_xor_b32 v{T+1}, s29, v{T}")
    k(f"v_xor_b32 v{T+2}, 2, v{T+1}")
    k("s_lshl_b32 s43, s30, 13")
    k(f"s_add_u32 s43, s43, {STG}")
    k(f"v_lshl_add_u32 v{T+3}, v1, 6, s43")
    k(f"v_lshl_add_u32 v253, v{T+1}, 4, v{T+3}")
    k(f"v_lshl_add_u32 v254, v{T+2}, 4, v{T+3}")
    k("s_waitcnt lgkmcnt(0)")
    UA, UB = 52, 60
    Ur, Ui, Er, Ei, Ar, Ai, Br, Bi = [x + (64 if fused else 0) for x in (68, 70, 72, 74, 76, 78, 80, 82)]
    bc = "op_sel_hi:[1,0,1]"
    k("s_cmp_eq_u32 s46, 0")
    k("s_cbranch_scc1 L_p2_spost")
    for j in range(0, 8, 2):
        o = 16*((j//2) % 2)
        ur, ui, er, ei, a_r, a_i, b_r, b_i = [x+o for x in (Ur, Ui, Er, Ei, Ar, Ai, Br, Bi)]
        k(f"v_pk_add_f32 {vr(ur,2)}, {vr(DR+j,2)}, {vr(OR_+j,2)}")
        k(f"v_pk_add_f32 {vr(ui,2)}, {vr(DI+j,2)}, {vr(OI+j,2)}")
        k(f"v_pk_add_f32 {vr(er,2)}, {vr(DR+j,2)}, {vr(OR_+j,2)} neg_lo:[0,1] neg_hi:[0,1]")
        k(f"v_pk_add_f32 {vr(ei,2)}, {vr(DI+j,2)}, {vr(OI+j,2)} neg_lo:[0,1] neg_hi:[0,1]")
        k(f"v_pk_fma_f32 {vr(a_r,2)}, {vr(ei,2)}, s[42:43], {vr(ur,2)} {bc}")
        k(f"v_pk_fma_f32 {vr(b_r,2)}, {vr(ei,2)}, s[42:43], {vr(ur,2)} {bc} neg_lo:[1,0,0] neg_hi:[1,0,0]")
        k(f"v_pk_fma_f32 {vr(a_i,2)}, {vr(er,2)}, s[40:41], {vr(ui,2)} {bc} neg_lo:[1,0,0] neg_hi:[1,0,0]")
        k(f"v_pk_fma_f32 {vr(b_i,2)}, {vr(er,2)}, s[40:41], {vr(ui,2)} {bc} neg_lo:[1,0,1] neg_hi:[1,0,1]")
        k(f"{CVT} v{UA+j}, v{a_r}, v{a_i}")
        k(f"{CVT} v{UA+j+1}, v{a_r+1}, v{a_i+1}")
        k(f"{CVT} v{UB+j}, v{b_r}, v{b_i}")
        k(f"{CVT} v{UB+j+1}, v{b_r+1}, v{b_i+1}")
    k("s_branch L_p2_postd")
    k("L_p2_spost:")
    for j in range(0, 8, 2):
        o = 16*((j//2) % 2)
        ur, ui, er, ei, a_r, a_i, b_r, b_i = [x+o for x in (Ur, Ui, Er, Ei, Ar, Ai, Br, Bi)]
        k(f"v_pk_add_f32 {vr(ur,2)}, {vr(DR+j,2)}, {vr(OR_+j,2)}")
        k(f"v_pk_add_f32 {vr(ui,2)}, {vr(DI+j,2)}, {vr(OI+j,2)}")
        k(f"v_pk_add_f32 {vr(er,2)}, {vr(DR+j,2)}, {vr(OR_+j,2)} neg_lo:[0,1] neg_hi:[0,1]")
        k(f"v_pk_add_f32 {vr(ei,2)}, {vr(DI+j,2)}, {vr(OI+j,2)} neg_lo:[0,1] neg_hi:[0,1]")
        k(f"v_pk_mul_f32 {vr(a_i,2)}, {vr(er,2)}, s[40:41] op_sel_hi:[1,0] neg_lo:[1,0] neg_hi:[1,0]")
        k(f"v_pk_mul_f32 {vr(b_i,2)}, {vr(ei,2)}, s[40:41] op_sel_hi:[1,0]")
        k(f"{CVT} v{UA+j}, v{ur}, v{a_i}")
        k(f"{CVT} v{UA+j+1}, v{ur+1}, v{a_i+1}")
        k(f"{CVT} v{UB+j}, -v{ui}, v{b_i}")
        k(f"{CVT} v{UB+j+1}, -v{ui+1}, v{b_i+1}")
    k("L_p2_postd:")
    for rl in range(2):
        k(f"ds_write_b128 v253, {vr(UA+4*rl,4)} offset:{4096*rl}")
        k(f"ds_write_b128 v254, {vr(UB+4*rl,4)} offset:{4096*rl}")
    k(f"v_and_b32 v{T}, 3, v0")
    k(f"v_bfe_u32 v{T+1}, v0, 3, 2")
    k(f"v_xor_b32 v{T+1}, v{T}, v{T+1}")
    k(f"v_lshrrev_b32 v{T+2}, 2, v0")
    k(f"v_lshlrev_b32 v{T+3}, 6, v{T+2}")
    k(f"v_lshl_add_u32 v{T+3}, v{T+1}, 4, v{T+3}")
    k(f"v_add_u32 v{T+3}, {STG}, v{T+3}")
    k(f"v_mul_u32_u24 v{T+2}, {VB_BLK}, v{T+2}")
    k("s_and_b32 s44, s2, 2")
    k(f"v_xor_b32 v{T}, s44, v{T}")
    k(f"v_lshl_add_u32 v{T+2}, v{T}, 4, v{T+2}")
    k("s_lshl_b32 s45, s2, 6")
    if fused and FILLPOS != 2:
        k("s_cmp_eq_u32 s28, 0")
        k("s_cbranch_scc0 L_p2_chkd")
        k("s_mov_b32 s47, 0")
        k("L_p2_chk:")
        k("s_waitcnt vmcnt(0)")
        k("v_cmp_gt_u32 vcc, 32, v250")
        k("s_add_u32 s47, s47, 1")
        k("s_cmp_ge_u32 s47, 0x20000")
        k("s_cbranch_scc1 L_p2_chkd")
        k("s_nop 2")
        k("s_cbranch_vccz L_p2_chkd")
        k("buffer_load_dword v250, v249, s[16:19], 0 offen sc0 sc1")
        k("s_branch L_p2_chk")
        k("L_p2_chkd:")
    k("s_waitcnt lgkmcnt(0)")
    k("s_barrier")
    for j in range(4):
        k(f"ds_read_b128 {vr(4+4*j,4)}, v{T+3} offset:{4096*j}")
    k("s_waitcnt lgkmcnt(0)")
    for j in range(4):
        k(f"buffer_store_dwordx4 {vr(4+4*j,4)}, v{T+2}, s[12:15], s45 offen {ST_P2}")
        if j < 3: k(f"s_add_u32 s45, s45, {64*VB_BLK}")
    if fused:
        mark(k, 3)
        p3_body(k, True)
    stamp_end(k, 'p2')
    if mega:
        k("s_waitcnt vmcnt(0)")
        k("s_barrier")
        srd(k, 16, 26, 256*128, FH_OFF)
        k("s_lshl_b32 s33, s2, 7")
        k("v_mov_b32 v2, 1")
        k("v_mov_b32 v3, 0")
        k("v_cmp_eq_u32 vcc, 0, v0")
        k("s_and_saveexec_b64 s[34:35], vcc")
        k("s_cbranch_execz L_p2_nocnt")
        k("buffer_store_dword v2, v3, s[16:19], s33 offen sc0 sc1")
        k("L_p2_nocnt:")
        k("s_mov_b64 exec, -1")
        k("s_branch L_g1_entry")
    k("L_p2_end:")
    k("s_endpgm")
    k("L_p2_spec:")
    QP = T1
    XB_ = Z2
    k("s_lshl_b32 s47, s30, 12")
    k(f"v_lshl_add_u32 v{T}, v1, 4, s47")
    for r in range(4):
        k(f"ds_read_b128 {vr(XB_+4*r,4)}, v{T} offset:{32768+1024*r}")
    k("s_lshl_b32 s47, s30, 13")
    k(f"v_and_b32 v{T+1}, 31, v1")
    k(f"v_lshrrev_b32 v{T+2}, 5, v1")
    k(f"v_lshlrev_b32 v{T+3}, 2, v{T+1}")
    k(f"v_lshl_add_u32 v{T+3}, v{T+2}, 10, v{T+3}")
    k(f"v_add_u32 v{T+3}, s47, v{T+3}")
    for i, (r, c) in enumerate(SEQ):
        k(f"ds_write_b32 v{T+3}, v{DR+i} offset:{(8*r+c)*256}")
        k(f"ds_write_b32 v{T+3}, v{DI+i} offset:{(8*r+c)*256+128}")
    k(f"v_add_u32 v{T+4}, s30, v{T+1}")
    k(f"v_sub_u32 v{T+5}, 32, v{T+4}")
    k(f"v_lshlrev_b32 v{T+5}, 2, v{T+5}")
    k(f"v_cmp_eq_u32 vcc, 0, v{T+4}")
    k(f"v_mov_b32 v{T+6}, 256")
    k(f"v_cndmask_b32 v{T+5}, v{T+5}, v{T+6}, vcc")
    k(f"v_lshlrev_b32 v{T+6}, 10, v{T+2}")
    k(f"v_sub_u32 v{T+5}, v{T+5}, v{T+6}")
    k(f"v_add_u32 v{T+5}, 1024, v{T+5}")
    k(f"v_add_u32 v{T+5}, s47, v{T+5}")
    k(f"v_add_u32 v{T+6}, {27*256}, v{T+5}")
    k(f"v_or_b32 v{T+7}, v{T+4}, v{T+2}")
    k(f"v_cmp_eq_u32 vcc, 0, v{T+7}")
    k(f"v_mov_b32 v{T+7}, s47")
    k(f"v_cndmask_b32 v{T+6}, v{T+6}, v{T+7}, vcc")
    k("s_waitcnt lgkmcnt(0)")
    for i in range(16):
        k(f"v_lshlrev_b32 v{QP+2*i}, 16, v{XB_+i}")
        k(f"v_and_b32 v{QP+2*i+1}, s35, v{XB_+i}")
    for half in range(2):
        for jj in range(8):
            i = 8*half + jj; r, c = SEQ[i]
            if i == 0:
                k(f"ds_read_b32 v{XB_+2*jj}, v{T+6}")
                k(f"ds_read_b32 v{XB_+2*jj+1}, v{T+6} offset:128")
            else:
                k(f"ds_read_b32 v{XB_+2*jj}, v{T+5} offset:{(27-8*r-c)*256}")
                k(f"ds_read_b32 v{XB_+2*jj+1}, v{T+5} offset:{(27-8*r-c)*256+128}")
        k("s_waitcnt lgkmcnt(0)")
        for jj in range(8):
            j = 8*half + jj; o = T + 8 + 2*(jj % 4); jp = j & ~1; x = j & 1
            k(f"v_pk_mul_f32 {vr(o,2)}, {vr(WP+2*j,2)}, {vr(DR+jp,2)} op_sel:[0,{x}] op_sel_hi:[1,{x}]")
            k(f"v_pk_fma_f32 {vr(o,2)}, {vr(WP+2*j,2)}, {vr(DI+jp,2)}, {vr(o,2)} op_sel:[1,{x},0] op_sel_hi:[0,{x},1] neg_lo:[1,0,0]")
            k(f"v_pk_fma_f32 {vr(o,2)}, {vr(QP+2*j,2)}, {vr(XB_+2*jj,2)}, {vr(o,2)} op_sel:[0,0,0] op_sel_hi:[1,0,1]")
            k(f"v_pk_fma_f32 {vr(o,2)}, {vr(QP+2*j,2)}, {vr(XB_+2*jj,2)}, {vr(o,2)} op_sel:[1,1,0] op_sel_hi:[0,1,1] neg_hi:[1,0,0]")
            k(f"{CVT} v{OP+j}, v{o}, -v{o+1}")
    k("s_branch L_p2_specd")
    return k, 256, 65536

def ln_stats_rows(k, R0, R1, t, vRM, sTmp, twice=False):
    for (R, o) in ((R0, 0), (R1, 4)):
        a, b = t+o, t+o+2
        k(f"v_pk_add_f32 {vr(a,2)}, {vr(R,2)}, {vr(R+2,2)}")
        k(f"v_pk_add_f32 {vr(b,2)}, {vr(R+4,2)}, {vr(R+6,2)}")
    for i in range(4, 8):
        for (R, o) in ((R0, 0), (R1, 4)):
            a = t+o+2*(i % 2)
            k(f"v_pk_add_f32 {vr(a,2)}, {vr(a,2)}, {vr(R+2*i,2)}")
    for o in (0, 4):
        k(f"v_pk_add_f32 {vr(t+o,2)}, {vr(t+o,2)}, {vr(t+o+2,2)}")
    k(f"v_add_f32 v{t}, v{t}, v{t+1}")
    k(f"v_add_f32 v{t+1}, v{t+4}, v{t+5}")
    wave_reduce2(k, t, t+1)
    ln_mean(k, t, sTmp)
    acc = {0: t, 1: t+2}; tmp = [t+4, t+6, t+8, t+10]
    n = 0
    for i in range(8):
        for row, R in ((0, R0), (1, R1)):
            d = tmp[n % 4]; n += 1
            sel = "op_sel_hi:[1,0]" if row == 0 else "op_sel:[0,1] op_sel_hi:[1,1]"
            k(f"v_pk_add_f32 {vr(d,2)}, {vr(R+2*i,2)}, {sr(sTmp,2)} {sel} neg_lo:[0,1] neg_hi:[0,1]")
            a = acc[row]
            if i == 0: k(f"v_pk_mul_f32 {vr(a,2)}, {vr(d,2)}, {vr(d,2)}")
            else:      k(f"v_pk_fma_f32 {vr(a,2)}, {vr(d,2)}, {vr(d,2)}, {vr(a,2)}")
    k(f"v_add_f32 v{t}, v{t}, v{t+1}")
    k(f"v_add_f32 v{t+1}, v{t+2}, v{t+3}")
    wave_reduce2(k, t, t+1)
    ln_scalars(k, t, twice)
    k(f"v_readlane_b32 s{sTmp}, v{t}, 63")
    k(f"v_readlane_b32 s{sTmp+1}, v{t+1}, 63")
    k(f"v_readlane_b32 s{sTmp+2}, v{t+12}, 63")
    k(f"v_readlane_b32 s{sTmp+3}, v{t+13}, 63")
    for i in range(4):
        k(f"v_mov_b32 v{vRM+i}, s{sTmp+i}")

def ln_apply_rows(k, R0, R1, vRM, dst0, dst1):
    for i in range(8):
        k(f"v_pk_fma_f32 {vr(dst0+2*i,2)}, {vr(R0+2*i,2)}, {vr(vRM,2)}, {vr(vRM+2,2)} op_sel_hi:[1,0,0] neg_lo:[0,0,1] neg_hi:[0,0,1]")
        k(f"v_pk_fma_f32 {vr(dst1+2*i,2)}, {vr(R1+2*i,2)}, {vr(vRM,2)}, {vr(vRM+2,2)} op_sel:[0,1,1] op_sel_hi:[1,1,1] neg_lo:[0,0,1] neg_hi:[0,0,1]")

def p3_body(k, fused):
    if fused:
        XL, OP, Mr, Mi, TW, DR, DI, T = 36, 20, 68, 84, 164, 196, 212, 228
        R0, R1, Y0, Y1, HP, NP, RM = 100, 116, 132, 148, 52, 4, 244
        B1, B2, AJ8, t0, t1, t2, cj, ch, cA, cB, XV = 248, 249, 250, 251, 252, 253, 251, 252, 253, 254, 255
    else:
        XL, OP, Mr, Mi, TW, DR, DI, T = 4, 20, 36, 52, 68, 100, 116, 132
        R0, R1, Y0, Y1, HP, NP, RM = 148, 164, 180, 196, 36, 68, 220
        B1, B2, AJ8, t0, t1, t2, cj, ch, cA, cB, XV = 218, 219, 227, 216, 217, 226, 212, 213, 214, 215, 225
    k("s_lshr_b32 s29, s2, 5")
    k("s_lshl_b32 s29, s29, 2")
    k("s_and_b32 s30, s2, 31")
    k("s_add_u32 s31, s29, s28")
    k("s_lshl_b32 s31, s31, 5")
    k("s_add_u32 s31, s31, s30")
    k("s_lshl_b32 s31, s31, 11")
    k("s_add_u32 s32, s31, 0x200000")
    k(f"s_mul_i32 s33, s2, {VB_BLK}")
    k("s_lshl_b32 s34, s28, 12")
    k("s_add_u32 s33, s33, s34")
    k("v_lshlrev_b32 v2, 4, v1")
    if not fused: k("s_waitcnt lgkmcnt(0)")
    srd(k, 8, 4, S*D*2)
    if not fused: srd(k, 12, 26, 256*VB_BLK, VB_OFF)
    srd(k, 16, 26, S*D*2, H_OFF)
    srd(k, 20, 26, S*D*2, HN_OFF)
    def x_loads():
        k(f"v_lshlrev_b32 v{XV}, 4, v1")
        k(f"buffer_load_dwordx4 {vr(XL,4)}, v{XV}, s[8:11], s31 offen")
        k(f"buffer_load_dwordx4 {vr(XL+4,4)}, v{XV}, s[8:11], s31 offen offset:1024")
        k(f"buffer_load_dwordx4 {vr(XL+8,4)}, v{XV}, s[8:11], s32 offen")
        k(f"buffer_load_dwordx4 {vr(XL+12,4)}, v{XV}, s[8:11], s32 offen offset:1024")
    if fused:
        x_loads()
    else:
        for i in range(4):
            k(f"s_add_u32 m0, s34, {1024*i}")
            k(f"buffer_load_dwordx4 v2, s[12:15], s33 offen lds")
            k("s_add_u32 s33, s33, 1024")
    if CODEPF2:
        k("s_cmp_eq_u32 s28, 0")
        k("s_cbranch_scc0 L_p3_nonp")
        next_code_pf(k, 'p3', 'L_g1_entry' if FUSE_ALL else ('gg_kernel' if FUSE_GG else 'g1_kernel'), 'L_gbar' if FUSE_GG else 'g2_kernel', 32, RM, 40, 1)
        k("L_p3_nonp:")
    k(f"v_and_b32 v{cj}, 31, v1")
    k(f"v_cvt_f32_u32 v{cj}, v{cj}")
    k(f"v_lshrrev_b32 v{ch}, 5, v1")
    k(f"v_lshlrev_b32 v{ch}, 2, v{ch}")
    k(f"v_cvt_f32_u32 v{ch}, v{ch}")
    if not fused:
        k(f"v_mul_f32 v{cA}, {f32(1/32)}, v{cj}")
        k(f"v_mul_f32 v{cB}, v{cA}, v{ch}")
        gen_matrix(k, Mr, Mi, cA, cB, T)
    k(f"v_mul_f32 v{cA}, {f32(1/1024)}, v{cj}")
    k(f"v_mul_f32 v{cB}, v{cA}, v{ch}")
    gen_twiddle(k, TW, cA, cB, T, scale=2.0**-21.5)
    k("v_and_b32 v2, 31, v1")
    k("v_lshrrev_b32 v3, 5, v1")
    k(f"v_and_b32 v{t0}, 1, v2")
    k(f"v_lshrrev_b32 v{t1}, 1, v2")
    k(f"v_and_b32 v{B1}, 2, v{t1}")
    k(f"v_xor_b32 v{B1}, v{B1}, v{t0}")
    k(f"v_lshlrev_b32 v{B1}, 4, v{B1}")
    k(f"v_lshl_add_u32 v{B1}, v{t1}, 6, v{B1}")
    k(f"v_lshl_add_u32 v{B1}, v3, 12, v{B1}")
    k("s_lshl_b32 s37, s28, 2")
    k(f"v_add_u32 v{B1}, s37, v{B1}")
    k(f"v_add_u32 v{t1}, 1, v2")
    k(f"v_lshrrev_b32 v{t1}, 1, v{t1}")
    k(f"v_sub_u32 v{B2}, 0, v{t1}")
    k(f"v_and_b32 v{B2}, 2, v{B2}")
    k(f"v_add_u32 v{t0}, 2, v{t0}")
    k(f"v_xor_b32 v{B2}, v{B2}, v{t0}")
    k(f"v_lshlrev_b32 v{B2}, 4, v{B2}")
    k(f"v_lshlrev_b32 v{t1}, 6, v{t1}")
    k(f"v_sub_u32 v{B2}, v{B2}, v{t1}")
    k(f"v_lshlrev_b32 v{t1}, 12, v3")
    k(f"v_sub_u32 v{B2}, v{B2}, v{t1}")
    k("s_add_u32 s37, s37, 5120")
    k(f"v_add_u32 v{B2}, s37, v{B2}")
    k(f"v_add_u32 v{AJ8}, {16*1024-5120}, v{B2}")
    k("s_lshl_b32 s38, s28, 2")
    k("s_add_u32 s38, s38, 32")
    k(f"v_mov_b32 v{t2}, s38")
    k("v_cmp_eq_u32 vcc, 0, v1")
    k(f"v_cndmask_b32 v{AJ8}, v{AJ8}, v{t2}, vcc")
    k("s_mov_b32 s35, 0xffff0000")
    if fused:
        k("v_lshlrev_b32 v2, 4, v1")
        k("s_mov_b32 s41, 0")
        k("s_waitcnt vmcnt(0)")
        k("L_p3_poll:")
        for i in range(4):
            k(f"s_add_u32 s39, s33, {1024*i}")
            k(f"buffer_load_dwordx4 {vr(OP+4*i,4)}, v2, s[12:15], s39 offen sc0 sc1")
        k("s_add_u32 s41, s41, 1")
        k("s_waitcnt vmcnt(0)")
        k(f"v_max3_u32 v3, v{OP}, v{OP+1}, v{OP+2}")
        for i in range(3, 15, 2): k(f"v_max3_u32 v3, v3, v{OP+i}, v{OP+i+1}")
        k(f"v_max_u32 v3, v3, v{OP+15}")
        k("v_cmp_eq_u32 vcc, -1, v3")
        k("s_nop 4")
        k("s_cmp_ge_u32 s41, 0x20000")
        k("s_cbranch_scc1 L_p3_polld")
        k("s_cbranch_vccnz L_p3_poll")
        k("L_p3_polld:")
        mark(k, 5)
        k("v_add_u32 v2, s34, v2")
        for i in range(4): k(f"ds_write_b128 v2, {vr(OP+4*i,4)} offset:{1024*i}")
        k("s_waitcnt lgkmcnt(0)")
        k("s_barrier")
    else:
        mark(k, 1)
        k("s_waitcnt vmcnt(0)")
        x_loads()
        k("s_barrier")
        mark(k, 2)
    for i, (r, c) in enumerate(SEQ):
        if r < 2: k(f"ds_read_b32 v{OP+i}, v{B1} offset:{(8*r+c)*1024}")
        elif i == 8: k(f"ds_read_b32 v{OP+i}, v{AJ8}")
        else:     k(f"ds_read_b32 v{OP+i}, v{B2} offset:{(32-8*r-c)*1024-5120}")
    k("s_waitcnt lgkmcnt(0)")
    stage(k, 'A', DR, DI, OP, Mr, Mi)
    cmul_pack(k, DR, DI, TW, OP, T)
    stage(k, 'B', DR, DI, OP, Mr, Mi)
    if not fused: k("s_waitcnt vmcnt(0)")
    for i in range(8):
        k(f"v_lshlrev_b32 v{R0+2*i}, 16, v{XL+i}")
        k(f"v_and_b32 v{R0+2*i+1}, s35, v{XL+i}")
        k(f"v_lshlrev_b32 v{R1+2*i}, 16, v{XL+8+i}")
        k(f"v_and_b32 v{R1+2*i+1}, s35, v{XL+8+i}")
    TR = 17408
    if not fused: mark(k, 3)
    k("s_lshl_b32 s36, s28, 12")
    k(f"s_add_u32 s36, s36, {TR}")
    k("v_and_b32 v3, 31, v1")
    k("v_lshlrev_b32 v3, 2, v3")
    k(f"v_lshrrev_b32 v{t0}, 5, v1")
    k(f"v_lshlrev_b32 v{t0}, 9, v{t0}")
    k(f"v_add3_u32 v3, v3, v{t0}, s36")
    k("v_lshl_add_u32 v2, v1, 5, s36")
    for i in range(16):
        k(f"{CVT} v{OP+i}, v{DR+i}, -v{DI+i}")
    for i, (r, c) in enumerate(SEQ):
        k(f"ds_write_b32 v3, v{OP+i} offset:{(8*r+c)*128}")
    k("s_waitcnt lgkmcnt(0)")
    k(f"ds_read_b128 {vr(OP,4)}, v2")
    k(f"ds_read_b128 {vr(OP+4,4)}, v2 offset:16")
    k(f"ds_read_b128 {vr(OP+8,4)}, v2 offset:2048")
    k(f"ds_read_b128 {vr(OP+12,4)}, v2 offset:2064")
    k("s_waitcnt lgkmcnt(0)")
    for i in range(16):
        k(f"v_lshlrev_b32 v{Y0+i}, 16, v{OP+i}")
        k(f"v_and_b32 v{Y1+i}, s35, v{OP+i}")
    for i in range(8):
        k(f"v_pk_add_f32 {vr(Y0+2*i,2)}, {vr(Y0+2*i,2)}, {vr(R0+2*i,2)}")
        k(f"v_pk_add_f32 {vr(Y1+2*i,2)}, {vr(Y1+2*i,2)}, {vr(R1+2*i,2)}")
    for i in range(8):
        k(f"{CVT} v{HP+i}, v{Y0+2*i}, v{Y0+2*i+1}")
        k(f"{CVT} v{HP+8+i}, v{Y1+2*i}, v{Y1+2*i+1}")
    k("v_lshlrev_b32 v2, 4, v1")
    k(f"buffer_store_dwordx4 {vr(HP,4)}, v2, s[16:19], s31 offen {ST_P3}")
    k(f"buffer_store_dwordx4 {vr(HP+4,4)}, v2, s[16:19], s31 offen offset:1024 {ST_P3}")
    k(f"buffer_store_dwordx4 {vr(HP+8,4)}, v2, s[16:19], s32 offen {ST_P3}")
    k(f"buffer_store_dwordx4 {vr(HP+12,4)}, v2, s[16:19], s32 offen offset:1024 {ST_P3}")
    for i in range(8):
        k(f"v_lshlrev_b32 v{R0+2*i}, 16, v{HP+i}")
        k(f"v_and_b32 v{R0+2*i+1}, s35, v{HP+i}")
        k(f"v_lshlrev_b32 v{R1+2*i}, 16, v{HP+8+i}")
        k(f"v_and_b32 v{R1+2*i+1}, s35, v{HP+8+i}")
    if not fused: mark(k, 4)
    if LN_FUSE:
        assert not (EMU_LN or EMU_L2)
        ln_stats_rows(k, R0, R1, T, RM, 40, twice=True)
        ln_apply_rows(k, R0, R1, RM, Y0, Y1)
    else:
        ln_stats_rows(k, R0, R1, T, RM, 40)
        if EMU_L2:
            ln_apply_rows(k, R0, R1, RM, Y0, Y1)
            LP = OP
            for i in range(8):
                k(f"{CVT} v{LP+i}, v{Y0+2*i}, v{Y0+2*i+1}")
                k(f"{CVT} v{LP+8+i}, v{Y1+2*i}, v{Y1+2*i+1}")
            for i in range(8):
                k(f"v_lshlrev_b32 v{R0+2*i}, 16, v{LP+i}")
                k(f"v_and_b32 v{R0+2*i+1}, s35, v{LP+i}")
                k(f"v_lshlrev_b32 v{R1+2*i}, 16, v{LP+8+i}")
                k(f"v_and_b32 v{R1+2*i+1}, s35, v{LP+8+i}")
        else:
            ln_apply_rows(k, R0, R1, RM, R0, R1)
        ln_stats_rows(k, R0, R1, T, RM, 40)
        ln_apply_rows(k, R0, R1, RM, Y0, Y1)
    for i in range(8):
        k(f"{CVT} v{NP+i}, v{Y0+2*i}, v{Y0+2*i+1}")
        k(f"{CVT} v{NP+8+i}, v{Y1+2*i}, v{Y1+2*i+1}")
    k(f"buffer_store_dwordx4 {vr(NP,4)}, v2, s[20:23], s31 offen {ST_P3}")
    k(f"buffer_store_dwordx4 {vr(NP+4,4)}, v2, s[20:23], s31 offen offset:1024 {ST_P3}")
    k(f"buffer_store_dwordx4 {vr(NP+8,4)}, v2, s[20:23], s32 offen {ST_P3}")
    k(f"buffer_store_dwordx4 {vr(NP+12,4)}, v2, s[20:23], s32 offen offset:1024 {ST_P3}")

def gen_p3():
    k = Kern('p3_kernel')
    k("s_cmp_ge_u32 s2, 256")
    k("s_cbranch_scc1 L_p3_end")
    stamp_begin(k)
    k("s_load_dwordx2 s[4:5], s[0:1], 0")
    k("s_load_dwordx2 s[26:27], s[0:1], 80")
    k("s_load_dwordx2 s[24:25], s[0:1], 32")
    k("v_and_b32 v1, 63, v0")
    k("v_lshrrev_b32 v2, 6, v0")
    k("v_readfirstlane_b32 s28, v2")
    pf_wave(k, 'p3', W1PF0 + 256*W1PF)
    first_tiles_wave(k)
    p3_body(k, False)
    stamp_end(k, 'p3')
    k("L_p3_end:")
    k("s_endpgm")
    return k, 228, 33792

def gen_p23(): return gen_p2(True)

MF16 = 'v_mfma_f32_16x16x32_bf16'

def interleave(mf, rd, lead=0):
    out = []; n = len(mf); m = len(rd); ri = 0
    for i in range(n):
        out.append(mf[i])
        tgt = min(m, (m*(i+1) + n - 1)//n)
        while ri < tgt:
            out.append(rd[ri]); ri += 1
    out += rd[ri:]
    return out

def producer_loop(k, tag, per, issue, NS, NIT, check=None):
    mark(k, 1)
    issue()
    mark(k, 2)
    issue()
    k(f"s_waitcnt vmcnt({per})")
    mark(k, 3)
    if check: check()
    k("s_barrier")
    for n in range(2, NS): issue()
    mark(k, 4)
    nmain = NIT - NS
    k(f"s_mov_b32 s60, 0")
    k(f"L_{tag}_ploop:")
    k(f"s_waitcnt vmcnt({(NS-2)*per})")
    if check: check()
    k("s_barrier")
    issue()
    k("s_add_u32 s60, s60, 1")
    k(f"s_cmp_lt_u32 s60, {nmain}")
    k(f"s_cbranch_scc1 L_{tag}_ploop")
    for n in range(nmain, NIT-1):
        k(f"s_waitcnt vmcnt({(NIT-1-(n+1))*per})")
        k("s_barrier")


XB_OFF = ZW_OFF
FL_OFF = 0x2800000
def gemm_kernel(tag, fused=False, mega=False):
    g1 = tag == 'g1'
    k = Kern('gg_kernel' if fused else tag + '_kernel')
    ENDL = 'L_gg_end' if fused else f'L_{tag}_end'
    ASZ = 16384; STG = 32768; NS = 4 if STATIC else (5 if BAR2 else 3)
    NIT = 32 if g1 else 28
    BSTR = 7168 if g1 else 4096
    NB23 = 6
    if mega and g1:
        k("L_g1_entry:")
    elif not (fused and not g1):
        k(f"s_cmp_ge_u32 s2, 256")
        k(f"s_cbranch_scc1 {ENDL}")
    elif FUSE_GG == 2 and EARLY2:
        k("L_gbar:")
        k("s_lshl_b32 s3, s30, 5")
        k("s_add_u32 s3, s3, s29")
        k("s_lshl_b32 s3, s3, 7")
        k("L_g2start:")
        k("s_cmp_ge_u32 s28, 4")
        k("s_cbranch_scc1 L_g2_pro")
        k("s_waitcnt vmcnt(0)")
        k("s_barrier")
        k("s_cmp_eq_u32 s3, -1")
        k("s_cbranch_scc1 L_g2_pro")
        srd(k, 56, 26, 288*128, FG_OFF)
        k("v_mov_b32 v2, 1")
        k("v_mov_b32 v3, 0")
        k("v_cmp_eq_u32 vcc, 0, v0")
        k("s_and_saveexec_b64 s[44:45], vcc")
        k("s_cbranch_execz L_g2_nopubx")
        k("buffer_store_dword v2, v3, s[56:59], s3 offen sc0 sc1")
        k("L_g2_nopubx:")
        k("s_mov_b64 exec, -1")
        k("L_g2_pro:")
    elif FUSE_GG == 2:
        k("L_gbar:")
        k("s_waitcnt vmcnt(0)")
        k("s_barrier")
        srd(k, 36, 26, 288*128, FG_OFF)
        k("v_cmp_eq_u32 vcc, 0, v0")
        k("s_and_saveexec_b64 s[34:35], vcc")
        k("s_cbranch_execz L_gbar_noarr")
        k("s_lshl_b32 s33, s30, 5")
        k("s_add_u32 s33, s33, s29")
        k("s_lshl_b32 s33, s33, 7")
        k("v_mov_b32 v2, 1")
        k("v_mov_b32 v3, 0")
        k("buffer_store_dword v2, v3, s[36:39], s33 offen sc0 sc1")
        k("L_gbar_noarr:")
        k("s_mov_b64 exec, -1")
        k("L_g2start:")
    else:
        k("L_gbar:")
        k("s_load_dwordx2 s[26:27], s[0:1], 80")
        k("s_waitcnt vmcnt(0) lgkmcnt(0)")
        k("s_barrier")
        srd(k, 36, 26, 1024, BAR_OFF)
        k("v_cmp_eq_u32 vcc, 0, v0")
        k("s_and_saveexec_b64 s[34:35], vcc")
        k("s_cbranch_execz L_gbar_noarr")
        k("s_and_b32 s33, s2, 7")
        k("s_lshl_b32 s33, s33, 7")
        k("v_mov_b32 v2, 1")
        k("v_mov_b32 v3, 0")
        k("buffer_atomic_add v2, v3, s[36:39], s33 offen sc1")
        k("L_gbar_noarr:")
        k("s_mov_b64 exec, -1")
    stamp_begin(k)
    if g1:
        k("s_load_dwordx4 s[4:7], s[0:1], 32")
        k("s_load_dwordx2 s[24:25], s[0:1], 48")
    else:
        k("s_load_dwordx4 s[4:7], s[0:1], 48")
        k("s_load_dwordx2 s[24:25], s[0:1], 64")
    k("s_load_dwordx2 s[26:27], s[0:1], 80")
    k("v_and_b32 v1, 63, v0")
    k("v_lshrrev_b32 v2, 6, v0")
    k("v_readfirstlane_b32 s28, v2")
    if g1:
        k("s_and_b32 s30, s2, 1")
        k("s_lshl_b32 s30, s30, 2")
        k("s_bfe_u32 s52, s2, 0x20003")
        k("s_add_u32 s30, s30, s52")
        k("s_bfe_u32 s29, s2, 0x20001")
        k("s_mul_i32 s29, s29, 7")
        k("s_lshr_b32 s53, s2, 5")
        k("s_add_u32 s29, s29, s53")
        k("s_mov_b32 s63, 0")
        k("s_and_b32 s55, s2, 1")
        k(f"s_mul_i32 s55, s55, {16 if KHALF else 0}")
    else:
        if MAP2 == 1:
            k("s_bfe_u32 s62, s2, 0x10003")
            k("s_bfe_u32 s29, s2, 0x20001")
            k("s_lshl_b32 s29, s29, 2")
            k("s_bfe_u32 s52, s2, 0x20004")
            k("s_add_u32 s29, s29, s52")
            k("s_lshr_b32 s53, s2, 6")
            k("s_and_b32 s30, s2, 1")
            k("s_lshl_b32 s30, s30, 2")
            k("s_add_u32 s30, s30, s53")
        else:
            k("s_and_b32 s62, s2, 1")
            k("s_bfe_u32 s29, s2, 0x20001")
            k("s_lshl_b32 s29, s29, 2")
            k("s_bfe_u32 s52, s2, 0x20003")
            k("s_add_u32 s29, s29, s52")
            k("s_lshr_b32 s53, s2, 5")
            k("s_mov_b32 s30, s53")
        k("s_mov_b32 s55, 0")
        k("s_mul_i32 s63, s62, 28")
        srd(k, 56, 26, 256*64, FL_OFF) if False else None
    k("s_lshl_b32 s31, s29, 8")
    k("s_lshl_b32 s32, s30, 8")
    k("s_waitcnt lgkmcnt(0)")
    if g1:
        srd(k, 8, 4, S*F*2)
        srd(k, 12, 26, S*D*2, HN_OFF)
        srd(k, 16, 26, F*D*2, GT_OFF)
        srd(k, 20, 6, F*2)
        if not XSENT:
            srd(k, 44, 26, 256*64, FL_OFF)
            k("s_lshl_b32 s33, s2, 6")
            k("v_mov_b32 v2, 0")
            k("v_lshlrev_b32 v3, 2, v0")
            k("v_cmp_gt_u32 vcc, 16, v0")
            k("s_and_saveexec_b64 s[34:35], vcc")
            k(f"s_cbranch_execz L_{tag}_nozf")
            k("buffer_store_dword v2, v3, s[44:47], s33 offen sc0 sc1")
            k(f"L_{tag}_nozf:")
            k("s_mov_b64 exec, -1")
        k("s_cmp_lt_u32 s2, 224")
        k(f"s_cbranch_scc1 L_{tag}_main")
        def idle_fill():
            srd(k, 44, 26, 256*(16384 if XBF16 else 32768), 0x1E00000 if XB_SEP else VB_OFF)
            k("s_sub_u32 s33, s2, 224")
            k("s_lshl_b32 s33, s33, 17")
            k("v_lshlrev_b32 v2, 4, v0")
            for i in range(4): k(f"v_mov_b32 v{4+i}, -1")
            k("s_mov_b32 s34, 0")
            k(f"L_{tag}_clr:")
            k("buffer_store_dwordx4 v[4:7], v2, s[44:47], s33 offen sc0 sc1")
            k("s_add_u32 s33, s33, 8192")
            k("s_add_u32 s34, s34, 1")
            k("s_cmp_lt_u32 s34, 16")
            k(f"s_cbranch_scc1 L_{tag}_clr")
        if mega:
            k("s_cmp_ge_u32 s28, 4")
            k(f"s_cbranch_scc0 L_{tag}_nb23")
            for i in range(NB23): k("s_barrier")
            k(f"L_{tag}_nb23:")
        if fused and FUSE_GG == 2:
            idle_fill()
            k("s_waitcnt vmcnt(0)")
            k("s_barrier")
            srd(k, 36, 26, 288*128, FG_OFF)
            k("s_add_u32 s33, s2, 32")
            k("s_lshl_b32 s33, s33, 7")
            k("v_mov_b32 v2, 1")
            k("v_mov_b32 v3, 0")
            k("v_cmp_eq_u32 vcc, 0, v0")
            k("s_and_saveexec_b64 s[34:35], vcc")
            k(f"s_cbranch_execz L_{tag}_nofl")
            k("buffer_store_dword v2, v3, s[36:39], s33 offen sc0 sc1")
            k(f"L_{tag}_nofl:")
            k("s_mov_b64 exec, -1")
        if W1IDLE:
            k("s_sub_u32 s33, s2, 224")
            k("s_mul_i32 s33, s33, 112")
            k("v_mul_u32_u24 v3, 586, v0")
            k("v_lshrrev_b32 v3, 16, v3")
            k("v_mul_u32_u24 v4, 112, v3")
            k("v_sub_u32 v4, v0, v4")
            k("v_add_u32 v4, s33, v4")
            k("v_mul_u32_u24 v5, 4682, v4")
            k("v_lshrrev_b32 v5, 18, v5")
            k("v_mul_u32_u24 v6, 56, v5")
            k("v_sub_u32 v6, v4, v6")
            k("v_and_b32 v7, 1, v3")
            k("v_lshrrev_b32 v8, 1, v3")
            k("v_lshl_add_u32 v7, v7, 4, v8")
            k("v_lshl_add_u32 v5, v7, 6, v5")
            k("v_mul_u32_u24 v5, 7168, v5")
            k("v_lshl_add_u32 v2, v6, 7, v5")
            k("v_cmp_gt_u32 vcc, 448, v0")
            k("s_and_saveexec_b64 s[34:35], vcc")
            k(f"s_cbranch_execz L_{tag}_now1")
            k(f"s_mov_b32 s33, {W1IDLE*64*7168}")
            for i in range((16-W1IDLE)//2):
                k(f"buffer_load_dword v9, v2, s[8:11], s33 offen")
                k(f"s_add_u32 s33, s33, {2*64*7168}")
            k(f"L_{tag}_now1:")
            k("s_mov_b64 exec, -1")
        if W2PF:
            srd(k, 48, 24, F*S*2)
            k("s_sub_u32 s33, s2, 224")
            k("s_and_b32 s34, s33, 15")
            k("s_lshr_b32 s35, s33, 4")
            k(f"s_mul_i32 s35, s35, {1792*4096}")
            k("s_lshl_b32 s33, s34, 16")
            k("s_add_u32 s33, s33, s35")
            if W2WAVES == 8:
                k("v_lshlrev_b32 v2, 7, v0")
                for i in range(W2PF):
                    k(f"buffer_load_dword v9, v2, s[48:51], s33 offen")
                    k(f"s_add_u32 s33, s33, {16*65536}")
            else:
                k(f"s_cmp_ge_u32 s28, {W2WAVES}")
                k(f"s_cbranch_scc1 L_{tag}_now2")
                k("v_lshlrev_b32 v2, 7, v1")
                k(f"s_mul_i32 s34, s28, {8192*(8//W2WAVES)}")
                k("s_add_u32 s33, s33, s34")
                k("s_mov_b32 s35, 0")
                k(f"L_{tag}_w2l:")
                for q in range(8//W2WAVES):
                    k(f"s_add_u32 s34, s33, {8192*q}")
                    k(f"buffer_load_dword v9, v2, s[48:51], s34 offen")
                    k(f"s_waitcnt vmcnt({W2DEPTH})")
                k(f"s_add_u32 s33, s33, {16*65536}")
                k("s_add_u32 s35, s35, 1")
                k(f"s_cmp_lt_u32 s35, {W2PF}")
                k(f"s_cbranch_scc1 L_{tag}_w2l")
                k(f"L_{tag}_now2:")
        if XSENT and not (fused and FUSE_GG == 2): idle_fill()
        if fused and FUSE_GG == 2: k("s_waitcnt vmcnt(0)")
        if fused and FUSE_GG == 2 and EARLY2: k("s_mov_b32 s3, -1")
        stamp_end(k, tag, tid=0, slot=256, sfx='idle')
        k(f"s_branch {('L_g2start' if FUSE_GG == 2 else 'L_gbar') if fused else ENDL}")
        k(f"L_{tag}_main:")
    else:
        srd(k, 8, 4, F*S*2)
        srd(k, 12, 26, F*D*2, GT_OFF)
        srd(k, 16, 26, S*D*2, H_OFF)
        srd(k, 20, 6, S*2)
        srd(k, 48, 24, S*D*2)
        if not XSENT:
            k("s_getreg_b32 s54, hwreg(HW_REG_XCC_ID, 0, 4)")
            k("s_add_u32 s54, s54, 1")
            srd(k, 56, 26, 256*64, FL_OFF)
            k("s_lshl_b32 s33, s2, 6")
            k("v_mov_b32 v2, s54")
            k("v_mov_b32 v3, 0")
            k("v_cmp_eq_u32 vcc, 0, v0")
            k("s_and_saveexec_b64 s[34:35], vcc")
            k(f"s_cbranch_execz L_{tag}_nopub")
            k("buffer_store_dword v2, v3, s[56:59], s33 offen offset:4 sc0 sc1")
            k(f"L_{tag}_nopub:")
            k("s_mov_b64 exec, -1")
    if PRODFIRST:
        k("s_cmp_lt_u32 s28, 4")
        k(f"s_cbranch_scc1 L_{tag}_cons")
    else:
        k("s_cmp_ge_u32 s28, 4")
        k(f"s_cbranch_scc1 L_{tag}_prod")
    i_cons = len(k.l)
    k(f"L_{tag}_cons:")
    ACC = 8; X = 72; Y = 136; R = 200
    AA = [R+i for i in range(4)]; AB = [R+4+i for i in range(4)]
    BA = [R+8+i for i in range(4)]; BB = [R+12+i for i in range(4)]
    MISC = R + 16
    k("s_and_b32 s33, s28, 1")
    k("s_lshr_b32 s36, s28, 1")
    k("v_lshrrev_b32 v2, 4, v1")
    k("v_bfe_u32 v3, v1, 2, 2")
    k("v_and_b32 v4, 3, v1")
    k("v_lshl_add_u32 v5, v2, 2, v3")
    k("v_and_b32 v6, 7, v5")
    k("v_lshlrev_b32 v6, 1, v6")
    k("v_lshrrev_b32 v7, 1, v4")
    k("v_and_b32 v9, 1, v4")
    for (base, w, add) in ((BA, 's33', 0), (BB, 's36', ASZ)):
        k(f"s_lshl_b32 s35, {w}, 3")
        k("v_add_u32 v10, s35, v7")
        k("v_xor_b32 v10, v10, v6")
        k("v_lshlrev_b32 v10, 4, v10")
        k("v_lshl_add_u32 v10, v9, 3, v10")
        k("v_lshl_add_u32 v10, v5, 8, v10")
        if add: k(f"v_add_u32 v10, {add}, v10")
        k(f"v_mov_b32 v{base[0]}, v10")
        for t in range(1, 4): k(f"v_xor_b32 v{base[t]}, {32*t}, v10")
    for t in range(4):
        k(f"v_mov_b32 v{AA[t]}, v{BA[t]}"); k(f"v_mov_b32 v{AB[t]}, v{BB[t]}")
    BIAS = MISC
    k("v_and_b32 v2, 15, v1")
    k("v_lshlrev_b32 v2, 1, v2")
    k("s_lshl_b32 s37, s36, 7")
    k("s_add_u32 s37, s37, s31")
    for t in range(4):
        k(f"buffer_load_ushort v{BIAS+t}, v2, s[20:23], s37 offen offset:{32*t}")
    OV = MISC+4
    k("v_and_b32 v2, 15, v1")
    k("v_lshlrev_b32 v2, 11, v2")
    k("v_lshrrev_b32 v3, 4, v1")
    k(f"v_lshl_add_u32 v{OV}, v3, 4, v2")
    k("s_lshl_b32 s38, s29, 7")
    k("s_lshl_b32 s39, s36, 6")
    k("s_add_u32 s38, s38, s39")
    k("s_lshl_b32 s38, s38, 11")
    k("s_add_u32 s38, s38, s32")
    k("s_lshl_b32 s39, s33, 7")
    k("s_add_u32 s38, s38, s39")
    if not g1:
        HL = MISC+6
        NV = HL+16
        if OUT_TOUCH:
            k("s_lshl_b32 s39, s62, 16")
            k("s_add_u32 s39, s39, s38")
            k(f"buffer_load_dword v{NV}, v{OV}, s[48:51], s39 offen")
            NV += 1
    else:
        NV = MISC+5
    def reads(dst, buf=None):
        r = []
        for ks in range(2):
            b = dst + 32*ks; ko = 32*ks
            for t in range(4):
                if buf is None: regs = (AA[t], AB[t]); bo = 0
                else:
                    regs = (BA[t], BB[t]) if buf < 2 else (AA[t], AB[t]); bo = (buf % 2)*STG
                for (o, a) in ((0, regs[0]), (16, regs[1])):
                    r.append(f"ds_read_b64_tr_b16 {vr(b+o+4*t,2)}, v{a} offset:{bo+ko*256}")
                    r.append(f"ds_read_b64_tr_b16 {vr(b+o+4*t+2,2)}, v{a} offset:{bo+(ko+16)*256}")
        return r
    def mfmas(src):
        m = []
        for ks in range(2):
            b = src + 32*ks
            order = sorted([(td, tn) for td in range(4) for tn in range(4)], key=lambda x: (max(x), x))
            if FAKE32:
                for i in range(8):
                    a = ACC + 16*(i % 4)
                    m.append(f"{MF32} {vr(a,16)}, {vr(b+4*(i%4),4)}, {vr(b+16+4*((i//2)%4),4)}, {vr(a,16)}")
                continue
            for td, tn in order:
                a = ACC + 4*(4*tn+td)
                m.append(f"{MF16} {vr(a,4)}, {vr(b+4*td,4)}, {vr(b+16+4*tn,4)}, {vr(a,4)}")
        return m
    def sched(mf, rd, extra):
        out = []; ri = 0; ei = 0
        for i, m in enumerate(mf):
            out.append(m)
            if ri < len(rd):
                for _ in range(RPAT[i % len(RPAT)]):
                    if ri < len(rd): out.append(rd[ri]); ri += 1
            elif ei < len(extra):
                out.append(extra[ei]); ei += 1
        out += rd[ri:] + extra[ei:]
        return out
    def upd():
        e = [f"s_add_u32 s34, s34, {STG}", f"s_cmp_eq_u32 s34, {STG*NS}", "s_cselect_b32 s34, 0, s34"]
        e += [f"v_add_u32 v{AA[t]}, s34, v{BA[t]}" for t in range(4)]
        e += [f"v_add_u32 v{AB[t]}, s34, v{BB[t]}" for t in range(4)]
        return e
    for i in range(64): k(f"v_mov_b32 v{ACC+i}, 0")
    k("s_mov_b32 s34, 0")
    k("s_mov_b32 s35, 0")
    if fused and not g1 and FUSE_GG == 1: k("s_barrier")
    if mega and g1: k("s_barrier")
    mark(k, 1)
    k("s_barrier")
    mark(k, 2)
    if STATIC:
        for t in range(4):
            k(f"v_add_u32 v{AA[t]}, 65536, v{BA[t]}"); k(f"v_add_u32 v{AB[t]}, 65536, v{BB[t]}")
        for x in reads(X, 0): k(x)
        k(f"L_{tag}_cloop:")
        for u in range(4):
            cur, nxt = (X, Y) if u % 2 == 0 else (Y, X)
            k("s_waitcnt lgkmcnt(0)")
            k("s_barrier")
            ex = ["s_add_u32 s35, s35, 4", f"s_cmp_lt_u32 s35, {NIT-4}"] if u == 3 else []
            for x in sched(mfmas(cur), reads(nxt, (u+1) % 4), ex): k(x)
        k(f"s_cbranch_scc1 L_{tag}_cloop")
        for u in range(2):
            cur, nxt = (X, Y) if u % 2 == 0 else (Y, X)
            k("s_waitcnt lgkmcnt(0)")
            k("s_barrier")
            for x in sched(mfmas(cur), reads(nxt, u+1), []): k(x)
    else:
        for x in reads(X): k(x)
        for x in upd(): k(x)
        k(f"L_{tag}_cloop:")
        k("s_waitcnt lgkmcnt(0)")
        if LOOPSTAMP:
            k(f"s_cmp_eq_u32 s35, {LOOPSTAMP}")
            k(f"s_cbranch_scc0 L_{tag}_nolatch")
            for i in range(4): k(f"s_mov_b64 s[{96-20+2*i}:{97-20+2*i}], s[{66+2*i}:{67+2*i}]") if False else None
            k("s_sub_u32 s90, s68, s66"); k("s_sub_u32 s91, s70, s68"); k("s_sub_u32 s92, s72, s70")
            k("s_memtime s[82:83]"); k("s_waitcnt lgkmcnt(0)"); k("s_sub_u32 s93, s82, s72")
            k(f"L_{tag}_nolatch:")
        k("s_barrier")
        if LOOPSTAMP: k("s_memtime s[66:67]")
        for x in sched(mfmas(X), reads(Y), upd()): k(x)
        if LOOPSTAMP: k("s_memtime s[68:69]")
        k("s_waitcnt lgkmcnt(0)")
        if not BAR2: k("s_barrier")
        if LOOPSTAMP: k("s_memtime s[70:71]")
        for x in sched(mfmas(Y), reads(X), upd() + ["s_add_u32 s35, s35, 2", f"s_cmp_lt_u32 s35, {NIT-2}"]): k(x)
        if LOOPSTAMP: k("s_memtime s[72:73]")
        k(f"s_cbranch_scc1 L_{tag}_cloop")
    if LOOPSTAMP:
        k("s_waitcnt lgkmcnt(0)")
        for i in range(4):
            k(f"s_mov_b32 s{66+2*i}, s{90+i}"); k(f"s_mov_b32 s{67+2*i}, 0")
    XID = 3
    if not g1:
        if not XSENT:
            k(f"s_xor_b32 s42, s2, {8 if MAP2 == 1 else 1}")
            k("s_lshl_b32 s39, s42, 6")
            k("v_mov_b32 v4, 0")
            k(f"buffer_load_dword v{XID}, v4, s[56:59], s39 offen offset:4 sc0 sc1")
        if fused and FUSE_GG == 2:
            srd(k, 56, 26, 288*128, FG_OFF)
            k("s_lshr_b32 s39, s2, 3")
            k("s_add_u32 s39, s39, 256")
            k("s_lshl_b32 s60, s39, 7")
            k("v_mov_b32 v4, 0")
            k(f"buffer_load_dword v{XID}, v4, s[56:59], s60 offen sc0 sc1")
        k("s_lshl_b32 s39, s62, 16")
        k("s_add_u32 s39, s39, s38")
        for tnl in range(1 if XSHARE else 2):
            for tp in range(2):
                k(f"s_add_u32 s40, s39, {tnl*16*2048 + tp*64}")
                k(f"buffer_load_dwordx4 {vr(HL+8*tnl+4*tp,4)}, v{OV}, s[16:19], s40 offen")
    k("s_waitcnt lgkmcnt(0)")
    k("s_barrier")
    for x in sched(mfmas(X), reads(Y, 3 if STATIC else None), []): k(x)
    k("s_waitcnt lgkmcnt(0)")
    for x in mfmas(Y): k(x)
    mark(k, 3)
    k("s_mov_b32 s40, 0xffff0000")
    T = X
    def pack_swap(P):
        k(f"v_permlane32_swap_b32 v{P}, v{P+2}")
        k(f"v_permlane32_swap_b32 v{P+1}, v{P+3}")
        k(f"v_permlane16_swap_b32 v{P}, v{P+2}")
        k(f"v_permlane16_swap_b32 v{P+1}, v{P+3}")
    def store_lines(P0, P1, tmp, so, srdreg):
        for i in range(4): k(f"v_mov_b32 v{tmp+i}, v{P0+i}")
        for i in range(4): k(f"v_mov_b32_dpp v{P0+i}, v{P1+i} row_ror:8 row_mask:0xf bank_mask:0xc")
        for i in range(4): k(f"v_mov_b32_dpp v{P1+i}, v{tmp+i} row_ror:8 row_mask:0xf bank_mask:0x3")
        fl = ST_G1 if g1 else ST_G2
        k(f"s_add_u32 s41, s38, {so}")
        k(f"buffer_store_dwordx4 {vr(P0,4)}, v{OVS}, s[{srdreg}:{srdreg+3}], s41 offen {fl}")
        k(f"s_add_u32 s41, s38, {so + 8*2048}")
        k(f"buffer_store_dwordx4 {vr(P1,4)}, v{OVS}, s[{srdreg}:{srdreg+3}], s41 offen {fl}")
    OVS = 3
    def set_ovs():
        k("v_and_b32 v2, 7, v1")
        k("v_lshlrev_b32 v2, 11, v2")
        k("v_bfe_u32 v3, v1, 3, 1")
        k("v_lshl_add_u32 v2, v3, 6, v2")
        k("v_lshrrev_b32 v3, 4, v1")
        k(f"v_lshl_add_u32 v{OVS}, v3, 4, v2")
    if g1:
        SH = (65536 if (fused and EARLY2) else 32768) if STATIC else (98304 if BAR2 else 65536)
        k("s_lshl_b32 s39, s28, 13")
        k(f"s_add_u32 s39, s39, {SH}")
        k("v_lshl_add_u32 v2, v1, 4, s39")
        for i in range(8): k(f"ds_write_b128 v2, {vr(ACC+32+4*i,4)} offset:{1024*i}")
        k("s_waitcnt vmcnt(0) lgkmcnt(0)")
        k("s_barrier")
        mark(k, 4)
        k(f"L_{tag}_epi:")
        for t in range(2): k(f"v_lshlrev_b32 v{BIAS+t}, 16, v{BIAS+t}")
        c0 = -2.0*math.log2(math.e)*math.sqrt(2.0/math.pi); c1 = c0*0.044715
        k("s_mov_b32 s40, 0xffff0000")
        k(f"s_mov_b32 s42, {f32(c1)}")
        k(f"v_mov_b32 v4, {f32(c0)}"); k(f"v_mov_b32 v5, {f32(c0)}")
        k(f"v_mov_b32 v6, 1.0"); k(f"v_mov_b32 v7, 1.0")
        set_ovs()
        for tn in range(2):
            for tp in range(2):
                P = T + 4*tp + 24*tn
                for q in range(4):
                    td = 2*tp + q//2
                    src = ACC + 4*(4*tn+td) + 2*(q % 2)
                    u, w = T+8+4*q, T+10+4*q
                    gelu_pair(k, src, u, w, BIAS+tn, P+q)
                pack_swap(P)
            store_lines(T+24*tn, T+24*tn+4, T+32, tn*16*2048, 16)
    else:
        if XSHARE:
            assert XSENT and XBF16
            SHX, SHY = 0, 16384
            k("s_waitcnt vmcnt(0)")
            srd(k, 44, 26, 256*16384, 0x1E00000 if XB_SEP else VB_OFF)
            k(f"s_xor_b32 s42, s2, {8 if MAP2 == 1 else 1}")
            k("s_lshl_b32 s43, s42, 14")
            k("s_lshl_b32 s39, s28, 12")
            k("s_add_u32 s43, s43, s39")
            k("v_lshlrev_b32 v2, 4, v1")
            k("s_cmp_eq_u32 s62, 0")
            k(f"s_cbranch_scc1 L_{tag}_k0")
            for half, l2 in ((0, None), (32, f"L_{tag}_k0:")):
                if l2: k(l2)
                for i in range(16): k(f"{CVT} v{Y+32+i}, v{ACC+half+2*i}, v{ACC+half+2*i+1}")
                for i in range(4):
                    k(f"s_add_u32 s39, s43, {1024*i}")
                    k(f"buffer_store_dwordx4 {vr(Y+32+4*i,4)}, v2, s[44:47], s39 offen sc0 sc1")
                if half == 0:
                    for i in range(32): k(f"v_mov_b32 v{ACC+i}, v{ACC+32+i}")
                    k(f"v_mov_b32 v{BIAS}, v{BIAS+2}")
                    k(f"s_branch L_{tag}_k1")
            k(f"L_{tag}_k1:")
            k("s_lshl_b32 s39, s28, 12")
            k(f"v_add_u32 v3, s39, v2")
            for i in range(4): k(f"ds_write_b128 v3, {vr(ACC+16+4*i,4)} offset:{SHX+1024*i}")
            k("s_lshl_b32 s39, s62, 16")
            k("s_add_u32 s38, s38, s39")
            k("s_lshl_b32 s39, s28, 11")
            k(f"v_add_u32 v3, s39, v2")
            k("s_waitcnt vmcnt(0) lgkmcnt(0)" if XWAIT else "s_waitcnt lgkmcnt(0)")
            k("s_barrier")
            k("s_barrier")
            k(f"ds_read_b128 {vr(Y+40,4)}, v3 offset:{SHY}")
            k(f"ds_read_b128 {vr(Y+44,4)}, v3 offset:{SHY+1024}")
            k("s_waitcnt lgkmcnt(0)")
            mark(k, 4)
            k(f"L_{tag}_epi:")
            k("s_mov_b32 s40, 0xffff0000")
            k(f"v_lshlrev_b32 v{BIAS}, 16, v{BIAS}")
            if PERTURB: k(f"v_add_f32 v{BIAS}, {f32(PERTURB)}, v{BIAS}")
            set_ovs()
            for tp in range(2):
                P = T + 4*tp
                for q in range(4):
                    td = 2*tp + q//2
                    a_ = ACC + 4*td + 2*(q % 2); y = Y + 4*td + 2*(q % 2)
                    u, w = T+8+4*q, T+10+4*q
                    pk = Y + 40 + (4*td + 2*(q % 2))//2
                    k(f"v_lshlrev_b32 v{y}, 16, v{pk}")
                    k(f"v_and_b32 v{y+1}, s40, v{pk}")
                    k(f"v_pk_add_f32 {vr(a_,2)}, {vr(a_,2)}, {vr(y,2)}")
                    k(f"v_add_f32 v{u}, v{a_}, v{BIAS}")
                    k(f"v_add_f32 v{u+1}, v{a_+1}, v{BIAS}")
                    k(f"{CVT} v{P+q}, v{u}, v{u+1}")
                pack_swap(P)
                for q in range(4):
                    u, w = T+8+4*q, T+10+4*q
                    hp = HL+4*tp+q
                    k(f"v_lshlrev_b32 v{u}, 16, v{P+q}")
                    k(f"v_and_b32 v{u+1}, s40, v{P+q}")
                    k(f"v_lshlrev_b32 v{w}, 16, v{hp}")
                    k(f"v_and_b32 v{w+1}, s40, v{hp}")
                    k(f"v_pk_add_f32 {vr(u,2)}, {vr(u,2)}, {vr(w,2)}")
                    k(f"{CVT} v{P+q}, v{u}, v{u+1}")
            store_lines(T, T+4, T+32, 0, 48)
        else:
            k("s_waitcnt vmcnt(0)")
            srd(k, 44, 26, 256*(16384 if XBF16 else 32768), 0x1E00000 if XB_SEP else VB_OFF)
            if not XSENT: srd(k, 56, 26, 256*64, FL_OFF)
            k(f"s_xor_b32 s42, s2, {8 if MAP2 == 1 else 1}")
            k(f"s_lshl_b32 s43, s42, {14 if XBF16 else 15}")
            k(f"s_lshl_b32 s39, s28, {12 if XBF16 else 13}")
            k("s_add_u32 s43, s43, s39")
            k("v_lshlrev_b32 v2, 4, v1")
            k("v_mov_b32 v4, 0")
            if fused and FUSE_GG == 2:
                k("s_mov_b32 s41, 0")
                k(f"L_{tag}_ffp:")
                k("v_readfirstlane_b32 s61, v3")
                k("s_add_u32 s41, s41, 1")
                k("s_cmp_ge_u32 s41, 0x20000")
                k(f"s_cbranch_scc1 L_{tag}_ffd")
                k("s_cmp_lg_u32 s61, 0")
                k(f"s_cbranch_scc1 L_{tag}_ffd")
                k("buffer_load_dword v3, v4, s[56:59], s60 offen sc0 sc1")
                k("s_waitcnt vmcnt(0)")
                k(f"s_branch L_{tag}_ffp")
                k(f"L_{tag}_ffd:")
            if not XSENT:
                k("s_lshl_b32 s39, s42, 6")
                k("s_mov_b32 s41, 0")
                k("v_readfirstlane_b32 s61, v3")
                k("s_cmp_eq_u32 s61, 0")
                k(f"s_cbranch_scc0 L_{tag}_xpolld")
                k(f"L_{tag}_xpoll:")
                k("buffer_load_dword v3, v4, s[56:59], s39 offen offset:4 sc0 sc1")
                k("s_waitcnt vmcnt(0)")
                k("v_readfirstlane_b32 s61, v3")
                k("s_add_u32 s41, s41, 1")
                k("s_cmp_ge_u32 s41, 0x40000")
                k(f"s_cbranch_scc1 L_{tag}_xpolld")
                k("s_cmp_eq_u32 s61, 0")
                k(f"s_cbranch_scc1 L_{tag}_xpoll")
                k(f"L_{tag}_xpolld:")
                k("s_cmp_eq_u32 s61, s54")
                k(f"s_cselect_b32 s61, {0 if FORCE_FAR else 1}, 0")
            def sends(flags, lab):
                k("s_cmp_eq_u32 s62, 0")
                k(f"s_cbranch_scc1 L_{tag}_k0{lab}")
                for half, l2 in ((0, None), (32, f"L_{tag}_k0{lab}:")):
                    if l2: k(l2)
                    if XBF16:
                        for i in range(16): k(f"{CVT} v{Y+32+i}, v{ACC+half+2*i}, v{ACC+half+2*i+1}")
                        for i in range(4):
                            k(f"s_add_u32 s39, s43, {1024*i}")
                            k(f"buffer_store_dwordx4 {vr(Y+32+4*i,4)}, v2, s[44:47], s39 offen {flags}")
                    else:
                        for i in range(8):
                            k(f"s_add_u32 s39, s43, {1024*i}")
                            k(f"buffer_store_dwordx4 {vr(ACC+half+4*i,4)}, v2, s[44:47], s39 offen {flags}")
                    if half == 0: k(f"s_branch L_{tag}_k1{lab}")
                k(f"L_{tag}_k1{lab}:")
            def handoff(stf, ldf, lab):
                sends(stf, lab)
                k("s_waitcnt vmcnt(0)")
                k("s_lshl_b32 s39, s42, 6")
                k("s_lshl_b32 s41, s28, 2")
                k("s_add_u32 s39, s39, s41")
                k("v_mov_b32 v3, 1")
                k("s_mov_b64 exec, 1")
                k(f"buffer_store_dword v3, v4, s[56:59], s39 offen offset:16 {stf}")
                k("s_lshl_b32 s39, s2, 6")
                k("s_add_u32 s39, s39, s41")
                k("s_mov_b32 s41, 0")
                k(f"L_{tag}_poll{lab}:")
                k(f"buffer_load_dword v3, v4, s[56:59], s39 offen offset:16 {ldf}")
                k("s_waitcnt vmcnt(0)")
                k("v_readfirstlane_b32 s43, v3")
                k("s_add_u32 s41, s41, 1")
                k("s_cmp_ge_u32 s41, 0x40000")
                k(f"s_cbranch_scc1 L_{tag}_polld{lab}")
                k("s_cmp_eq_u32 s43, 1")
                k(f"s_cbranch_scc0 L_{tag}_poll{lab}")
                k(f"L_{tag}_polld{lab}:")
                k("s_mov_b64 exec, -1")
                k(f"s_lshl_b32 s43, s2, {14 if XBF16 else 15}")
                k(f"s_lshl_b32 s39, s28, {12 if XBF16 else 13}")
                k("s_add_u32 s43, s43, s39")
                for i in range(4 if XBF16 else 8):
                    k(f"s_add_u32 s39, s43, {1024*i}")
                    k(f"buffer_load_dwordx4 {vr(Y+(32 if XBF16 else 0)+4*i,4)}, v2, s[44:47], s39 offen {ldf}")
            if XSENT:
                assert XBF16
                sends('sc0 sc1', 's')
                k("s_lshl_b32 s43, s2, 14")
                k("s_lshl_b32 s39, s28, 12")
                k("s_add_u32 s43, s43, s39")
                k("s_mov_b32 s41, 0")
                if XPRE: k("s_waitcnt vmcnt(0)")
                k(f"L_{tag}_spoll:")
                for i in range(4):
                    k(f"s_add_u32 s39, s43, {1024*i}")
                    k(f"buffer_load_dwordx4 {vr(Y+32+4*i,4)}, v2, s[44:47], s39 offen sc0 sc1")
                k("s_add_u32 s41, s41, 1")
                k("s_waitcnt vmcnt(0)")
                k(f"v_max3_u32 v3, v{Y+32}, v{Y+33}, v{Y+34}")
                for i in range(3, 15, 2): k(f"v_max3_u32 v3, v3, v{Y+32+i}, v{Y+32+i+1}")
                k(f"v_max_u32 v3, v3, v{Y+47}")
                k("v_cmp_eq_u32 vcc, -1, v3")
                k("s_nop 4")
                k("s_cmp_ge_u32 s41, 0x20000")
                k(f"s_cbranch_scc1 L_{tag}_spolld")
                k(f"s_cbranch_vccnz L_{tag}_spoll")
                k(f"L_{tag}_spolld:")
            else:
                k("s_cmp_eq_u32 s61, 1")
                k(f"s_cbranch_scc0 L_{tag}_far")
                handoff('', 'sc1', 'n')
                k(f"s_branch L_{tag}_xdone")
                k(f"L_{tag}_far:")
                handoff('sc0 sc1', 'sc0 sc1', 'f')
                k(f"L_{tag}_xdone:")
            k("s_cmp_eq_u32 s62, 0")
            k(f"s_cbranch_scc1 L_{tag}_kept")
            for i in range(32): k(f"v_mov_b32 v{ACC+i}, v{ACC+32+i}")
            k(f"v_mov_b32 v{BIAS}, v{BIAS+2}"); k(f"v_mov_b32 v{BIAS+1}, v{BIAS+3}")
            k(f"L_{tag}_kept:")
            mark(k, 4)
            k(f"v_lshlrev_b32 v{BIAS}, 16, v{BIAS}"); k(f"v_lshlrev_b32 v{BIAS+1}, 16, v{BIAS+1}")
            if PERTURB:
                k(f"v_add_f32 v{BIAS}, {f32(PERTURB)}, v{BIAS}"); k(f"v_add_f32 v{BIAS+1}, {f32(PERTURB)}, v{BIAS+1}")
            k("s_lshl_b32 s39, s62, 16")
            k("s_add_u32 s38, s38, s39")
            set_ovs()
            for tnl in range(2):
                for tp in range(2):
                    i0 = 4*tnl + 2*tp
                    if XSENT: pass
                    elif XBF16: k(f"s_waitcnt vmcnt({3 - i0//2})")
                    else:     k(f"s_waitcnt vmcnt({6 - i0 if i0 < 6 else 0})")
                    if i0 == 0: mark(k, 5)
                    P = T + 4*tp + 24*tnl
                    for q in range(4):
                        td = 2*tp + q//2
                        a = ACC + 4*(4*tnl+td) + 2*(q % 2); y = Y + 4*(4*tnl+td) + 2*(q % 2)
                        u, w = T+8+4*q, T+10+4*q
                        if XBF16:
                            pk = Y + 32 + (4*(4*tnl+td) + 2*(q % 2))//2
                            k(f"v_lshlrev_b32 v{y}, 16, v{pk}")
                            k(f"v_and_b32 v{y+1}, s40, v{pk}")
                        k(f"v_pk_add_f32 {vr(a,2)}, {vr(a,2)}, {vr(y,2)}")
                        if EMU_Y:
                            k(f"{CVT} v{w}, v{a}, v{a+1}")
                            k(f"v_lshlrev_b32 v{u}, 16, v{w}")
                            k(f"v_and_b32 v{u+1}, s40, v{w}")
                            k(f"v_add_f32 v{u}, v{u}, v{BIAS+tnl}")
                            k(f"v_add_f32 v{u+1}, v{u+1}, v{BIAS+tnl}")
                        else:
                            k(f"v_add_f32 v{u}, v{a}, v{BIAS+tnl}")
                            k(f"v_add_f32 v{u+1}, v{a+1}, v{BIAS+tnl}")
                        k(f"{CVT} v{P+q}, v{u}, v{u+1}")
                    pack_swap(P)
                    for q in range(4):
                        u, w = T+8+4*q, T+10+4*q
                        hp = HL+8*tnl+4*tp+q
                        k(f"v_lshlrev_b32 v{u}, 16, v{P+q}")
                        k(f"v_and_b32 v{u+1}, s40, v{P+q}")
                        k(f"v_lshlrev_b32 v{w}, 16, v{hp}")
                        k(f"v_and_b32 v{w+1}, s40, v{hp}")
                        k(f"v_pk_add_f32 {vr(u,2)}, {vr(u,2)}, {vr(w,2)}")
                        k(f"{CVT} v{P+q}, v{u}, v{u+1}")
                store_lines(T+24*tnl, T+24*tnl+4, T+32, tnl*16*2048, 48)
    stamp_end(k, tag)
    k(f"s_branch {'L_gbar' if (fused and g1) else ENDL}")
    i_prod = len(k.l)
    k(f"L_{tag}_prod:")
    if PPRIO: k(f"s_setprio {PPRIO}")
    k("s_sub_u32 s33, s28, 4")
    k("v_lshrrev_b32 v2, 4, v1")
    k("s_and_b32 s34, s33, 1")
    k("s_lshl_b32 s34, s34, 2")
    k("v_add_u32 v3, s34, v2")
    k("v_lshlrev_b32 v3, 1, v3")
    k("v_and_b32 v4, 15, v1")
    k("v_xor_b32 v3, v3, v4")
    k("v_lshlrev_b32 v3, 4, v3")
    k("v_lshl_add_u32 v8, v2, 11, v3")
    k(f"v_mul_u32_u24 v2, {BSTR}, v2")
    k("v_add_u32 v9, v2, v3")
    k("s_lshl_b32 s34, s33, 13")
    k("s_add_u32 s40, s32, s34")
    k(f"s_mul_i32 s34, s33, {4*BSTR}")
    k("s_add_u32 s41, s31, s34")
    k("s_lshl_b32 s42, s33, 10")
    k("s_mov_b32 s43, 0")
    k("s_add_u32 s46, s52, s53")
    k("s_mov_b32 s47, 0")
    if fused and (not g1) and FUSE_GG == 2: srd(k, 36, 26, 288*128, FG_OFF)
    if mega and g1:
        srd(k, 36, 26, 256*128, FH_OFF)
        k("v_and_b32 v11, 31, v1")
        k("v_lshlrev_b32 v11, 7, v11")
        for i in range(NB23): k("s_barrier")
    DF = fused and (not g1) and FUSE_GG == 2
    DH = mega and g1
    DFT = 1
    nissue = [0]
    def calc_stage(t, dst, tmp):
        k(f"s_add_u32 s{dst}, s46, s{t}")
        k(f"s_and_b32 s{dst}, s{dst}, 3")
        k(f"s_cmp_eq_u32 s{dst}, 0")
        k(f"s_cselect_b32 s{dst}, {3+NIT}, {NIT-1}")
        k(f"s_add_u32 s{dst}, s{dst}, s{t}")
        k(f"s_add_u32 s{dst}, s{dst}, s55")
        k(f"s_cmp_ge_u32 s{dst}, {2*NIT}")
        k(f"s_cselect_b32 s{tmp}, {2*NIT}, {NIT}")
        k(f"s_cmp_ge_u32 s{dst}, {NIT}")
        k(f"s_cselect_b32 s{tmp}, s{tmp}, 0")
        k(f"s_sub_u32 s{dst}, s{dst}, s{tmp}")
        if not KPERM: k(f"s_mov_b32 s{dst}, s{t}")
        if KWRAP: k(f"s_and_b32 s{dst}, s{dst}, {KWRAP-1}")
        k(f"s_add_u32 s{dst}, s{dst}, s63")
    def flag_off(stage, dst):
        if g1:
            k(f"s_bfe_u32 s{dst}, s{stage}, 0x30001")
            k(f"s_lshl_b32 s{dst}, s{dst}, 12")
            return
        k(f"s_lshr_b32 s{dst}, s{stage}, 1")
        k(f"s_lshl_b32 s{dst}, s{dst}, 7")
        k(f"s_add_u32 s{dst}, s{dst}, s57")
    def issue(part='AB', advance=True):
        n = nissue[0]; nissue[0] += 1
        if DF and not (EARLY2 and n < 4):
            if n == 0:
                k("s_lshl_b32 s57, s30, 12")
                k("v_mov_b32 v11, 0")
                calc_stage(47, 56, 59); flag_off(56, 54)
                k("buffer_load_dword v10, v11, s[36:39], s54 offen sc0 sc1")
                k("s_waitcnt vmcnt(0)")
            elif n == 1 and not EARLY2:
                k("s_waitcnt vmcnt(8)")
            k("v_readfirstlane_b32 s56, v10")
            k("s_cmp_lg_u32 s56, 0")
            k(f"s_cbranch_scc1 L_{tag}_fok{n}")
            k("s_mov_b32 s61, 0")
            k(f"L_{tag}_fpoll{n}:")
            k("s_sleep 4")
            k("buffer_load_dword v10, v11, s[36:39], s54 offen sc0 sc1")
            k("s_waitcnt vmcnt(0)")
            k("v_readfirstlane_b32 s56, v10")
            k("s_add_u32 s61, s61, 1")
            k("s_cmp_ge_u32 s61, 0x20000")
            k(f"s_cbranch_scc1 L_{tag}_fok{n}")
            k("s_cmp_eq_u32 s56, 0")
            k(f"s_cbranch_scc1 L_{tag}_fpoll{n}")
            k(f"L_{tag}_fok{n}:")
            k("s_add_u32 s61, s47, 1")
            calc_stage(61, 56, 59); flag_off(56, 54)
            k("buffer_load_dword v10, v11, s[36:39], s54 offen sc0 sc1")
        if DH and n >= 4:
            k("s_cmp_eq_u32 s33, 0")
            k(f"s_cbranch_scc0 L_{tag}_nh{n}")
            k("s_add_u32 s61, s47, 1")
            calc_stage(61, 56, 59); flag_off(56, 54)
            k("buffer_load_dword v10, v11, s[36:39], s54 offen sc0 sc1")
            k(f"L_{tag}_nh{n}:")
        calc_stage(47, 58, 59)
        k(f"s_mul_i32 s59, s58, {64*BSTR}")
        k(f"s_lshl_b32 s58, s58, 17")
        k("s_add_u32 s58, s58, s40")
        k("s_add_u32 s59, s59, s41")
        k("s_add_u32 s44, s43, s42")
        for m in range(4):
            if 'A' in part:
                k(f"s_add_u32 m0, s44, {4096*m}")
                k(f"s_add_u32 s45, s58, {m*16*2048}")
                k(f"buffer_load_dwordx4 v8, s[12:15], s45 offen {'sc1 ' if (DF or DH) else ''}lds")
            if 'B' in part:
                k(f"s_add_u32 m0, s44, {ASZ+4096*m}")
                k(f"s_add_u32 s45, s59, {m*16*BSTR}")
                k(f"buffer_load_dwordx4 v9, s[8:11], s45 offen {NT_B1 if g1 else NT_B2} lds")
        if not advance: return
        k("s_add_u32 s47, s47, 1")
        k(f"s_add_u32 s43, s43, {STG}")
        k(f"s_cmp_eq_u32 s43, {STG*NS}")
        k("s_cselect_b32 s43, 0, s43")
    if fused and not g1 and FUSE_GG == 1:
        k("s_cmp_eq_u32 s33, 0")
        k("s_cbranch_scc0 L_gbar_nopoll")
        srd(k, 36, 26, 1024, BAR_OFF)
        k("v_and_b32 v2, 7, v1")
        k("v_lshlrev_b32 v2, 7, v2")
        k("s_mov_b32 s34, 0")
        k("L_gbar_poll:")
        if PSLEEP: k(f"s_sleep {PSLEEP}")
        k(f"buffer_load_dword v3, v2, s[36:39], 0 offen {POLLF}")
        k("s_waitcnt vmcnt(0)")
        k("v_cmp_gt_u32 vcc, 32, v3")
        k("s_add_u32 s34, s34, 1")
        k("s_cmp_ge_u32 s34, 0x20000")
        k("s_cbranch_scc1 L_gbar_nopoll")
        k("s_cbranch_vccnz L_gbar_poll")
        k("L_gbar_nopoll:")
        k("s_barrier")
    if BAR2:
        per = 8
        mark(k, 1)
        issue(); mark(k, 2); issue()
        k(f"s_waitcnt vmcnt({per})")
        mark(k, 3)
        k("s_barrier")
        issue(); issue()
        mark(k, 4)
        k("s_mov_b32 s60, 0")
        k(f"L_{tag}_ploop:")
        k(f"s_waitcnt vmcnt({per})")
        k("s_barrier")
        issue(); issue()
        k("s_add_u32 s60, s60, 2")
        k(f"s_cmp_lt_u32 s60, {NIT-4}")
        k(f"s_cbranch_scc1 L_{tag}_ploop")
        k(f"s_waitcnt vmcnt({per})")
        k("s_barrier")
        k("s_waitcnt vmcnt(0)")
        k("s_barrier")
    else:
        ncheck = [0]
        def hpoll(lab):
            k("s_mov_b32 s61, 0")
            k(f"L_{tag}_hp{lab}:")
            k("v_cmp_eq_u32 vcc, 0, v10")
            k("s_add_u32 s61, s61, 1")
            k("s_cmp_ge_u32 s61, 0x20000")
            k(f"s_cbranch_scc1 L_{tag}_hd{lab}")
            k("s_nop 2")
            k(f"s_cbranch_vccz L_{tag}_hd{lab}")
            k("s_sleep 2")
            k("buffer_load_dword v10, v11, s[36:39], s54 offen sc0 sc1")
            k("s_waitcnt vmcnt(0)")
            k(f"s_branch L_{tag}_hp{lab}")
            k(f"L_{tag}_hd{lab}:")
        def hcheck():
            i = ncheck[0]; ncheck[0] += 1
            k("s_cmp_eq_u32 s33, 0")
            k(f"s_cbranch_scc0 L_{tag}_hc{i}")
            hpoll(f"c{i}")
            k(f"L_{tag}_hc{i}:")
        if DF and EARLY2:
            def fwait(reg, off, lab):
                k(f"v_readfirstlane_b32 s56, v{reg}")
                k("s_cmp_lg_u32 s56, 0")
                k(f"s_cbranch_scc1 L_{tag}_e{lab}")
                k("s_mov_b32 s61, 0")
                k(f"L_{tag}_ep{lab}:")
                k("s_sleep 4")
                k(f"buffer_load_dword v{reg}, v11, s[36:39], s{off} offen sc0 sc1")
                k("s_waitcnt vmcnt(0)")
                k(f"v_readfirstlane_b32 s56, v{reg}")
                k("s_add_u32 s61, s61, 1")
                k("s_cmp_ge_u32 s61, 0x20000")
                k(f"s_cbranch_scc1 L_{tag}_e{lab}")
                k("s_cmp_eq_u32 s56, 0")
                k(f"s_cbranch_scc1 L_{tag}_ep{lab}")
                k(f"L_{tag}_e{lab}:")
            k("s_lshl_b32 s57, s30, 12")
            k("v_mov_b32 v11, 0")
            k("s_mov_b32 s61, 0")
            calc_stage(61, 56, 59); flag_off(56, 54)
            k("s_mov_b32 s61, 1")
            calc_stage(61, 56, 59); flag_off(56, 64 if False else 35)
            k("buffer_load_dword v10, v11, s[36:39], s54 offen sc0 sc1")
            k("buffer_load_dword v12, v11, s[36:39], s35 offen sc0 sc1")
            issue('B'); issue('B')
            k("s_mov_b32 s47, 0"); k("s_mov_b32 s43, 0")
            k("s_waitcnt vmcnt(10)")
            k("s_barrier")
            k("s_waitcnt vmcnt(8)")
            fwait(10, 54, 'a')
            k("s_mov_b32 s61, 2")
            calc_stage(61, 56, 59); flag_off(56, 54)
            k("buffer_load_dword v10, v11, s[36:39], s54 offen sc0 sc1")
            mark(k, 1)
            issue('A')
            fwait(12, 35, 'b')
            issue('A')
            k("s_waitcnt vmcnt(4)")
            mark(k, 3)
            k("s_barrier")
            issue()
            nmain = NIT - 3
            k("s_mov_b32 s60, 0")
            k(f"L_{tag}_ploop:")
            k("s_waitcnt vmcnt(8)")
            k("s_barrier")
            issue()
            k("s_add_u32 s60, s60, 1")
            k(f"s_cmp_lt_u32 s60, {nmain}")
            k(f"s_cbranch_scc1 L_{tag}_ploop")
            for n_ in range(nmain, NIT-1):
                k(f"s_waitcnt vmcnt({(NIT-1-(n_+1))*8})")
                k("s_barrier")
        elif DH:
            issue('B'); issue('B')
            k("s_mov_b32 s47, 0"); k("s_mov_b32 s43, 0")
            k("s_cmp_eq_u32 s33, 0")
            k(f"s_cbranch_scc0 L_{tag}_hpre")
            k("s_mov_b32 s61, 0")
            calc_stage(61, 56, 59); flag_off(56, 54)
            k("s_mov_b32 s61, 1")
            calc_stage(61, 56, 59); flag_off(56, 57)
            k("v_mov_b32 v12, s54")
            k("v_mov_b32 v13, s57")
            k("v_cmp_gt_u32 vcc, 32, v1")
            k("v_cndmask_b32 v12, v13, v12, vcc")
            k("v_add_u32 v12, v12, v11")
            k("s_mov_b32 s61, 0")
            k(f"L_{tag}_hsp:")
            k("buffer_load_dword v10, v12, s[36:39], 0 offen sc0 sc1")
            k("s_waitcnt vmcnt(0)")
            k("v_cmp_eq_u32 vcc, 0, v10")
            k("s_add_u32 s61, s61, 1")
            k("s_cmp_ge_u32 s61, 0x20000")
            k(f"s_cbranch_scc1 L_{tag}_hsd")
            k("s_nop 2")
            k(f"s_cbranch_vccnz L_{tag}_hsp")
            k(f"L_{tag}_hsd:")
            k("s_mov_b32 s61, 2")
            calc_stage(61, 56, 59); flag_off(56, 54)
            k("buffer_load_dword v10, v11, s[36:39], s54 offen sc0 sc1")
            k(f"L_{tag}_hpre:")
            k("s_barrier")
            issue('A'); issue('A')
            k("s_waitcnt vmcnt(4)")
            mark(k, 3)
            hcheck()
            k("s_barrier")
            issue()
            NSe = 3; nmain = NIT - NSe
            k("s_mov_b32 s60, 0")
            k(f"L_{tag}_ploop:")
            k("s_waitcnt vmcnt(8)")
            hcheck()
            k("s_barrier")
            issue()
            k("s_add_u32 s60, s60, 1")
            k(f"s_cmp_lt_u32 s60, {nmain}")
            k(f"s_cbranch_scc1 L_{tag}_ploop")
            for n_ in range(nmain, NIT-1):
                k(f"s_waitcnt vmcnt({(NIT-1-(n_+1))*8})")
                k("s_barrier")
        else:
            producer_loop(k, tag, 8, issue, 3 if STATIC else NS, NIT)
    if g1 and CODEPF2:
        k("s_cmp_eq_u32 s33, 0")
        k(f"s_cbranch_scc0 L_{tag}_nonp")
        next_code_pf(k, 'g1', 'L_gbar' if fused else 'g2_kernel', 'L_text_end', 28, 120, 56, 1)
        k(f"L_{tag}_nonp:")
    if g1:
        k("s_and_b32 s34, s33, 1")
        k("s_lshr_b32 s36, s33, 1")
        k("v_and_b32 v2, 15, v1")
        k("v_lshlrev_b32 v2, 1, v2")
        k("s_lshl_b32 s37, s36, 7")
        k("s_add_u32 s37, s37, s31")
        for t in range(2):
            k(f"buffer_load_ushort v{BIAS+t}, v2, s[20:23], s37 offen offset:{64+32*t}")
        k("v_and_b32 v2, 15, v1")
        k("v_lshlrev_b32 v2, 11, v2")
        k("v_lshrrev_b32 v3, 4, v1")
        k(f"v_lshl_add_u32 v{OV}, v3, 4, v2")
        k("s_lshl_b32 s38, s29, 7")
        k("s_lshl_b32 s39, s36, 6")
        k("s_add_u32 s38, s38, s39")
        k("s_add_u32 s38, s38, 32")
        k("s_lshl_b32 s38, s38, 11")
        k("s_add_u32 s38, s38, s32")
        k("s_lshl_b32 s39, s34, 7")
        k("s_add_u32 s38, s38, s39")
        k("s_lshl_b32 s39, s33, 13")
        k(f"s_add_u32 s39, s39, {(65536 if (fused and EARLY2) else 32768) if STATIC else (98304 if BAR2 else 65536)}")
        k("v_lshl_add_u32 v2, v1, 4, s39")
        k("s_setprio 0")
        k("s_barrier")
        for i in range(8): k(f"ds_read_b128 {vr(ACC+4*i,4)}, v2 offset:{1024*i}")
        k("s_waitcnt vmcnt(0) lgkmcnt(0)")
        if STAMP:
            for i in range(5): k(f"v_mov_b32 v{120+i}, v{4+i}")
            k("v_mov_b32 v125, v8")
            stamp_end(k, tag, tid=256, slot=256, sfx='pp')
            k("s_mov_b64 exec, -1")
            for i in range(4): k(f"v_mov_b32 v{4+i}, v{120+i}")
            k("v_mov_b32 v8, v124")
        k(f"s_branch L_{tag}_epi")
    if (not g1) and XSHARE:
        SHX, SHY = 0, 16384
        k("s_setprio 0")
        k("s_and_b32 s34, s33, 1")
        k("s_lshr_b32 s36, s33, 1")
        k("v_and_b32 v2, 15, v1")
        k("v_lshlrev_b32 v2, 1, v2")
        k("s_lshl_b32 s37, s36, 7")
        k("s_add_u32 s37, s37, s31")
        k("s_lshl_b32 s39, s62, 6")
        k("s_add_u32 s37, s37, s39")
        k(f"buffer_load_ushort v{BIAS}, v2, s[20:23], s37 offen offset:32")
        k("v_and_b32 v2, 15, v1")
        k("v_lshlrev_b32 v2, 11, v2")
        k("v_lshrrev_b32 v3, 4, v1")
        k(f"v_lshl_add_u32 v{OV}, v3, 4, v2")
        k("s_lshl_b32 s38, s29, 7")
        k("s_lshl_b32 s39, s36, 6")
        k("s_add_u32 s38, s38, s39")
        k("s_lshl_b32 s39, s62, 5")
        k("s_add_u32 s38, s38, s39")
        k("s_add_u32 s38, s38, 16")
        k("s_lshl_b32 s38, s38, 11")
        k("s_add_u32 s38, s38, s32")
        k("s_lshl_b32 s39, s34, 7")
        k("s_add_u32 s38, s38, s39")
        for tp in range(2):
            k(f"s_add_u32 s40, s38, {tp*64}")
            k(f"buffer_load_dwordx4 {vr(HL+4*tp,4)}, v{OV}, s[16:19], s40 offen")
        srd(k, 44, 26, 256*16384, 0x1E00000 if XB_SEP else VB_OFF)
        k("s_lshl_b32 s43, s2, 14")
        k("s_lshl_b32 s39, s33, 12")
        k("s_add_u32 s43, s43, s39")
        k("v_lshlrev_b32 v2, 4, v1")
        k("s_lshl_b32 s39, s33, 12")
        k("v_add_u32 v3, s39, v2")
        k("s_barrier")
        for i in range(4): k(f"ds_read_b128 {vr(ACC+4*i,4)}, v3 offset:{SHX+1024*i}")
        k("s_mov_b32 s41, 0")
        k(f"L_{tag}_spoll:")
        for i in range(4):
            k(f"s_add_u32 s39, s43, {1024*i}")
            k(f"buffer_load_dwordx4 {vr(Y+32+4*i,4)}, v2, s[44:47], s39 offen sc0 sc1")
        k("s_add_u32 s41, s41, 1")
        k("s_waitcnt vmcnt(0)")
        k(f"v_max3_u32 v5, v{Y+32}, v{Y+33}, v{Y+34}")
        for i in range(3, 15, 2): k(f"v_max3_u32 v5, v5, v{Y+32+i}, v{Y+32+i+1}")
        k(f"v_max_u32 v5, v5, v{Y+47}")
        k("v_cmp_eq_u32 vcc, -1, v5")
        k("s_nop 4")
        k("s_cmp_ge_u32 s41, 0x20000")
        k(f"s_cbranch_scc1 L_{tag}_spolld")
        k(f"s_cbranch_vccnz L_{tag}_spoll")
        k(f"L_{tag}_spolld:")
        k("s_lshl_b32 s39, s33, 11")
        k("v_add_u32 v3, s39, v2")
        k(f"ds_write_b128 v3, {vr(Y+32,4)} offset:{SHY}")
        k(f"ds_write_b128 v3, {vr(Y+36,4)} offset:{SHY+1024}")
        k("s_waitcnt lgkmcnt(0)")
        k("s_barrier")
        k(f"s_branch L_{tag}_epi")
    stamp_end(k, tag, tid=256, slot=256, sfx='p')
    if PRODFIRST and not fused:
        k(f"s_branch {ENDL}")
        k.l = k.l[:i_cons] + k.l[i_prod:] + k.l[i_cons:i_prod]
    if fused and g1:
        return k, NV, STG*NS
    k(f"{ENDL}:")
    k("s_endpgm")
    return k, NV, STG*NS

def gelu_pair(k, src, u, w, bias, dst):
    if EMU_U:
        k(f"{CVT} v{w}, v{src}, v{src+1}")
        k(f"v_lshlrev_b32 v{u}, 16, v{w}")
        k(f"v_and_b32 v{u+1}, s40, v{w}")
        k(f"v_add_f32 v{u}, v{u}, v{bias}")
        k(f"v_add_f32 v{u+1}, v{u+1}, v{bias}")
        k(f"{CVT} v{w}, v{u}, v{u+1}")
        k(f"v_lshlrev_b32 v{u}, 16, v{w}")
        k(f"v_and_b32 v{u+1}, s40, v{w}")
    else:
        k(f"v_add_f32 v{u}, v{src}, v{bias}")
        k(f"v_add_f32 v{u+1}, v{src+1}, v{bias}")
    k(f"v_pk_mul_f32 {vr(w,2)}, {vr(u,2)}, {vr(u,2)}")
    k(f"v_pk_fma_f32 {vr(w,2)}, {vr(w,2)}, s[42:43], {vr(4,2)} op_sel_hi:[1,0,1]")
    k(f"v_pk_mul_f32 {vr(w,2)}, {vr(w,2)}, {vr(u,2)}")
    k(f"v_exp_f32 v{w}, v{w}")
    k(f"v_exp_f32 v{w+1}, v{w+1}")
    k(f"s_nop 0")
    k(f"v_pk_add_f32 {vr(w,2)}, {vr(w,2)}, {vr(6,2)}")
    k(f"v_rcp_f32 v{w}, v{w}")
    k(f"v_rcp_f32 v{w+1}, v{w+1}")
    k(f"s_nop 0")
    k(f"v_pk_mul_f32 {vr(w,2)}, {vr(w,2)}, {vr(u,2)}")
    k(f"{CVT} v{dst}, v{w}, v{w+1}")

RPAT = [2, 1]
FUSE_GG = 2
FUSE23 = 1
FUSE_ALL = 0
EARLY2 = 0
FILL1 = 1
FILLPOS = 2
W2WAVES = 8
W2DEPTH = 1
XPRE = 1
PRODFIRST = 0
FIRSTPF = 0
CODEPF2 = 1
WJOB = 2
LN_FUSE = 1
WEARLY = 1
W1IDLE = 0
EMU_LN = 0
EMU_L2 = 0
NT_B1 = ''
NT_B2 = ''
NT_X = ''
NT_W = ''
KHALF = 1
XSENT = 1
XSHARE = 0
XWAIT = 1
XBF16 = 1
EMU_Y = 0
PERTURB = 0
PSLEEP = 4
POLLF = 'sc0 sc1'
STATIC = 1
LOOPSTAMP = 0
BAR2 = 0
FAKE32 = 0
MAP2 = 0
XB_SEP = 1
FORCE_FAR = 0
PPRIO = 3
PFD = 0
KPERM = 1
FAKE16 = 0
NS1 = 3
NS2 = 3
KWRAP = 0
W2PF = 7
EMU_U = 0
RPG1 = 3
RPG2 = 4
def gen_mega():
    k0, nv0, l0 = gen_p2(True, True)
    k1, nv1, l1 = gemm_kernel('g1', True, True)
    k2, nv2, l2 = gemm_kernel('g2', True, True)
    k0.l += k1.l + k2.l
    return k0, 256, max(l0, l1, l2)
def gen_gg():
    k1, nv1, l1 = gemm_kernel('g1', True)
    k2, nv2, l2 = gemm_kernel('g2', True)
    k1.l += k2.l
    return k1, max(nv1, nv2), max(l1, l2)
def gen_g1(): return gemm_kernel('g1')
def gen_g2(): return gemm_kernel('g2')

KERNELS = [('p1_kernel', gen_p1, (256,1,1), (256,1,1)), ('p2_kernel', gen_p2, (256,1,1), (256,1,1)), ('p3_kernel', gen_p3, (256,1,1), (256,1,1)),
 ('g1_kernel', gen_g1, (256,1,1), (512,1,1)), ('g2_kernel', gen_g2, (256,1,1), (512,1,1))]

HEADER = """;
; Pipeline (S=2048 tokens, D=1024 channels, F=3584); all FFT stages are 32-point DFTs on bf16 MFMA with fp32 accumulation:
;   p1  : LayerNorm(x), two real rows packed as one complex row, 1024-point FFT along D; filter W transposed into column blocks;
;   p23 : phase A: 2048-point FFT along S (even/odd halves, DC and Nyquist columns packed), multiply by W, inverse FFT
;         p1 fills the blocks with a marker, each workgroup re-reads its block until no marker is left (bounded spin).
; Workgroup -> tile maps assume ids congruent mod 8 share an L2 for speed only; correctness does not depend on placement.
"""

def build_all(kernels=None):
    ks = []
    if kernels is None:
        kernels = list(KERNELS[:3]) + [('gg_kernel', gen_gg, (256,1,1), (512,1,1))] if FUSE_GG else list(KERNELS)
        if FUSE23: kernels = [kernels[0], ('p23_kernel', gen_p23, (256,1,1), (256,1,1))] + list(kernels[3:])
        if FUSE_ALL: kernels = [kernels[0], ('mega_kernel', gen_mega, (256,1,1), (512,1,1))]
    for name, fn, grid, block in kernels:
        if W1PF and name in ('p2_kernel', 'p3_kernel'): block = (320, 1, 1)
        if FIRSTPF and name == 'p3_kernel': block = (320, 1, 1)
        k, nv, lds = fn()
        if ST_ALL:
            k.l = [ (x + ' ' + ST_ALL) if ('buffer_store' in x and 'sc1' not in x and 'sc0' not in x and ' nt' not in x) else x for x in k.l]
        if name.startswith('g'):
            if NO_DMA: k.l = [x for x in k.l if not ('offen lds' in x)]
            if NO_MFMA: k.l = [x for x in k.l if 'v_mfma' not in x]
            if NO_ADV: k.l = [x for x in k.l if not (x.strip().startswith('s_add_u32 s40, s40,') or x.strip().startswith('s_add_u32 s41, s41,'))]
            if NO_A: k.l = [x for x in k.l if not ('s[12:15]' in x and 'offen lds' in x)]
            if NO_B: k.l = [x for x in k.l if not ('s[8:11]' in x and 'offen lds' in x)]
            if NO_BAR: k.l = [x for x in k.l if 's_barrier' not in x]
            if NO_READ: k.l = [x for x in k.l if 'ds_read_b64_tr' not in x]
        ks.append((name, k, nv, lds, grid, block))
    hdr = open('sequential_preLN__spectral_gfnet__mixer_token_mlp__prompt.s.ref').read().split('; Override launch')[0]
    s = hdr + HEADER
    for name, k, nv, lds, grid, block in ks:
        s += f"; @launch kernel={name} grid=({grid[0]},{grid[1]},{grid[2]}) block=({block[0]},{block[1]},{block[2]}) lds={lds}\n"
    s += '.amdgcn_target "amdgcn-amd-amdhsa--gfx950"\n.text\n'
    for name, k, nv, lds, grid, block in ks: s += k.text()
    s += 'L_text_end:\n'
    s += '.section .rodata,"a"\n'
    for name, k, nv, lds, grid, block in ks: s += descriptor(name, nv)
    return s, ks

if __name__ == '__main__':
    s, ks = build_all()
    open(sys.argv[1] if len(sys.argv) > 1 else 'out.s', 'w').write(s)
    print('written', len(s), 'bytes')
```

```python
import sys, math, struct
sys.path.insert(0, 'work')
from asmlib import *

ZW_OFF = 0x0          ; ZW_SIZE = 257*32768
ZD_OFF = 0x0 ; WB_OFF = 0x480000
VB_OFF = 0x900000     ; VB_BLK = 256*64
H_OFF  = 0xE00000
HN_OFF = 0x1200000
GT_OFF = 0x1600000
BAR_OFF = 0x2810000
FG_OFF = 0x2820000
FH_OFF = 0x2830000
WS_USED = 0x1D00000
S, D, F = 2048, 1024, 3584

def f32(x):
    return '0x%08x' % struct.unpack('<I', struct.pack('<f', x))[0]

CVT = 'v_cvt_pk_bf16_f32'
STAMP = False
NO_DMA = False
NO_MFMA = False
NO_READ = False
NO_BAR = False
NO_ADV = False
NO_A = False
NO_B = False
STAMP_OFF = 0x3000000
KIDX = {'p1':0,'p2':1,'p3':2,'g1':3,'g2':4}
NMARK = 8
def mark(k, i):
    if STAMP and not (LOOPSTAMP and k.name.startswith('g') and 1 <= i <= 4): k(f"s_memrealtime s[{64+2*i}:{65+2*i}]")
def stamp_begin(k):
    if STAMP:
        for i in range(1, NMARK): k(f"s_mov_b64 s[{64+2*i}:{65+2*i}], 0")
        k("s_memrealtime s[64:65]")
        k("s_memtime s[94:95]")
def stamp_end(k, tag, tid=0, slot=0, sfx=''):
    if not STAMP: return
    mark(k, 6)
    k("s_waitcnt vmcnt(0) lgkmcnt(0)")
    mark(k, 7)
    k("s_memtime s[84:85]")
    k("s_load_dwordx2 s[88:89], s[0:1], 80")
    k("s_waitcnt lgkmcnt(0)")
    k(f"s_add_u32 s88, s88, {STAMP_OFF + KIDX[tag]*65536}")
    k("s_addc_u32 s89, s89, 0")
    k(f"s_add_u32 s87, s2, {slot}")
    k("s_lshl_b32 s87, s87, 7")
    k("v_mov_b32 v8, s87")
    k(f"v_cmp_eq_u32 vcc, {tid}, v0" if tid <= 64 else f"v_cmp_eq_u32 vcc, {hex(tid)}, v0")
    k("s_and_saveexec_b64 s[86:87], vcc")
    k(f"s_cbranch_execz L_{tag}_nostamp{sfx}")
    for i in range(0, NMARK, 2):
        for j in range(4): k(f"v_mov_b32 v{4+j}, s{64+2*i+j}")
        k(f"global_store_dwordx4 v8, v[4:7], s[88:89] offset:{8*i}")
        k("s_nop 1")
    k("v_mov_b32 v4, s94"); k("v_mov_b32 v5, s95"); k("v_mov_b32 v6, s84"); k("v_mov_b32 v7, s85")
    k("global_store_dwordx4 v8, v[4:7], s[88:89] offset:64")
    k("s_getreg_b32 s84, hwreg(HW_REG_XCC_ID, 0, 4)")
    k("s_nop 1")
    k("v_mov_b32 v4, s84")
    k("global_store_dword v8, v4, s[88:89] offset:80")
    k(f"L_{tag}_nostamp{sfx}:")
    k("s_mov_b64 exec, -1")

MF32 = 'v_mfma_f32_32x32x16_bf16'

CODEPF = 1
W1PF = 0
W1PF0 = 0
W1L2 = 0
ST_FLAGS = ''
ST_ALL = ''
ST_P1 = 'sc1'
ST_P2 = 'sc1'
ST_P3 = 'sc1'
ST_G1 = 'sc1'
ST_G2 = 'nt'
OUT_TOUCH = 0
def code_prefetch(k, tag, first_label, last_label, vtmp, stmp, nwaves_cond=None):
    if not CODEPF: return
    k(f"s_getpc_b64 s[{stmp}:{stmp+1}]")
    k(f"L_{tag}_pc:")
    k(f"s_add_u32 s{stmp}, s{stmp}, {first_label}-L_{tag}_pc")
    k(f"s_addc_u32 s{stmp+1}, s{stmp+1}, 0")

WS_BASE = 0
def srd(k, s, base, size, off=0):
    if base == 26: off += WS_BASE
    if off:
        k(f"s_add_u32 s{s}, s{base}, {hex(off)}")
        k(f"s_addc_u32 s{s+1}, s{base+1}, 0")
    else:
        k(f"s_mov_b32 s{s}, s{base}")
        k(f"s_mov_b32 s{s+1}, s{base+1}")
    k(f"s_mov_b32 s{s+2}, {hex(size)}")
    k(f"s_mov_b32 s{s+3}, 0x20000")

SEQ = [(r, c) for r in range(4) for c in range(4)]

def rot_setup(k, vA, t):
    k(f"v_mul_f32 v{t+4}, {f32(5.0)}, v{vA}")
    k(f"v_cos_f32 v{t}, v{vA}")
    k(f"v_sin_f32 v{t+1}, v{vA}")
    k(f"v_cos_f32 v{t+2}, v{t+4}")
    k(f"v_sin_f32 v{t+3}, v{t+4}")

def rot(k, dst, src, st, tmp, sign):
    k(f"v_pk_mul_f32 {vr(tmp,2)}, {vr(src,2)}, {vr(st,2)} op_sel_hi:[1,0]")
    neg = "neg_lo:[0,1,0]" if sign > 0 else "neg_hi:[0,1,0]"
    k(f"v_pk_fma_f32 {vr(dst,2)}, {vr(src,2)}, {vr(st,2)}, {vr(tmp,2)} op_sel:[1,1,0] op_sel_hi:[0,1,1] {neg}")

def gen_matrix(k, Mr, Mi, vA, vB, t):
    rot_setup(k, vA, t)
    cur = [t+6, t+8]
    k(f"v_cos_f32 v{cur[0]}, v{vB}")
    k(f"v_sin_f32 v{cur[0]+1}, v{vB}")
    k("s_nop 0")
    for i, (r, c) in enumerate(SEQ):
        a_, b_ = cur[i % 2], cur[(i+1) % 2]
        if i < 15: rot(k, b_, a_, t+2 if c == 3 else t, t+4, +1)
        k(f"{CVT} v{Mr+i}, v{a_}, v{a_+1}")
        k(f"{CVT} v{Mi+i}, -v{a_+1}, v{a_}")

def gen_twiddle(k, tw, vA, vB, t, scale=None):
    rot_setup(k, vA, t)
    k(f"v_cos_f32 v{tw}, v{vB}")
    k(f"v_sin_f32_e64 v{tw+1}, -v{vB}")
    if scale is not None:
        k(f"v_mul_f32 v{tw}, {f32(scale)}, v{tw}")
        k(f"v_mul_f32 v{tw+1}, {f32(scale)}, v{tw+1}")
    else: k("s_nop 0")
    for i, (r, c) in enumerate(SEQ):
        if i < 15: rot(k, tw+2*(i+1), tw+2*i, t+2 if c == 3 else t, t+4, -1)

def stage(k, typ, Dr, Di, data, Mr, Mi, first=True):
    for r in range(4):
        for (Dx, M) in ((Dr, Mr), (Di, Mi)):
            c = '0' if (r == 0 and first) else vr(Dx, 16)
            if typ == 'A': k(f"{MF32} {vr(Dx,16)}, {vr(data+4*r,4)}, {vr(M+4*r,4)}, {c}")
            else:          k(f"{MF32} {vr(Dx,16)}, {vr(M+4*r,4)}, {vr(data+4*r,4)}, {c}")

def cmul_pack(k, Dr, Di, w, out, t, conj=False):
    for j in range(16):
        o = t + 2*(j % 4); jp = j & ~1; x = j & 1
        k(f"v_pk_mul_f32 {vr(o,2)}, {vr(w+2*j,2)}, {vr(Dr+jp,2)} op_sel:[0,{x}] op_sel_hi:[1,{x}]")
        k(f"v_pk_fma_f32 {vr(o,2)}, {vr(w+2*j,2)}, {vr(Di+jp,2)}, {vr(o,2)} op_sel:[1,{x},0] op_sel_hi:[0,{x},1] neg_lo:[1,0,0]")
        if j >= 1:
            po = t + 2*((j-1) % 4); n = '-' if conj else ''
            k(f"{CVT} v{out+j-1}, v{po}, {n}v{po+1}")
    po = t + 2*(15 % 4); n = '-' if conj else ''
    k(f"{CVT} v{out+15}, v{po}, {n}v{po+1}")

def wave_reduce2(k, a, b):
    for m in ("quad_perm:[1,0,3,2] row_mask:0xf", "quad_perm:[2,3,0,1] row_mask:0xf", "row_half_mirror row_mask:0xf",
              "row_mirror row_mask:0xf", "row_bcast:15 row_mask:0xa", "row_bcast:31 row_mask:0xc"):
        k(f"v_add_f32_dpp v{a}, v{a}, v{a} {m} bank_mask:0xf")
        k(f"v_add_f32_dpp v{b}, v{b}, v{b} {m} bank_mask:0xf")

def tree_sum(k, X, n, t, op='add'):
    acc = [t, t+2, t+4, t+6]
    for i in range(4):
        k(f"v_pk_add_f32 {vr(acc[i],2)}, {vr(X+2*i,2)}, {vr(X+2*(i+4),2)}")
    for i in range(8, n):
        k(f"v_pk_add_f32 {vr(acc[i%4],2)}, {vr(acc[i%4],2)}, {vr(X+2*i,2)}")
    k(f"v_pk_add_f32 {vr(acc[0],2)}, {vr(acc[0],2)}, {vr(acc[1],2)}")
    k(f"v_pk_add_f32 {vr(acc[2],2)}, {vr(acc[2],2)}, {vr(acc[3],2)}")
    k(f"v_pk_add_f32 {vr(acc[0],2)}, {vr(acc[0],2)}, {vr(acc[2],2)}")

def ln_scalars(k, t, twice=False):
    k(f"v_mul_f32 v{t}, {f32(1/1024)}, v{t}")
    k(f"v_mul_f32 v{t+1}, {f32(1/1024)}, v{t+1}")
    if twice:
        k(f"v_add_f32 v{t+2}, {f32(1e-5)}, v{t}")
        k(f"v_add_f32 v{t+3}, {f32(1e-5)}, v{t+1}")
        k(f"v_rsq_f32 v{t+2}, v{t+2}")
        k(f"v_rsq_f32 v{t+3}, v{t+3}")
        k("s_nop 0")
        k(f"v_mul_f32 v{t}, v{t}, v{t+2}")
        k(f"v_mul_f32 v{t+1}, v{t+1}, v{t+3}")
        k(f"v_mul_f32 v{t}, v{t}, v{t+2}")
        k(f"v_mul_f32 v{t+1}, v{t+1}, v{t+3}")
        k(f"v_add_f32 v{t}, {f32(1e-5)}, v{t}")
        k(f"v_add_f32 v{t+1}, {f32(1e-5)}, v{t+1}")
        k(f"v_rsq_f32 v{t}, v{t}")
        k(f"v_rsq_f32 v{t+1}, v{t+1}")
        k("s_nop 0")
        k(f"v_mul_f32 v{t}, v{t}, v{t+2}")
        k(f"v_mul_f32 v{t+1}, v{t+1}, v{t+3}")
        k(f"v_mul_f32 v{t+12}, v{t+12}, v{t}")
        k(f"v_mul_f32 v{t+13}, v{t+13}, v{t+1}")
        return
    if EMU_LN:
        k(f"{CVT} v{t+2}, v{t}, v{t+1}")
        k(f"v_lshlrev_b32 v{t}, 16, v{t+2}")
        k(f"v_and_b32 v{t+1}, 0xffff0000, v{t+2}")
    k(f"v_add_f32 v{t}, {f32(1e-5)}, v{t}")
    k(f"v_add_f32 v{t+1}, {f32(1e-5)}, v{t+1}")
    if EMU_LN:
        k(f"{CVT} v{t+2}, v{t}, v{t+1}")
        k(f"v_lshlrev_b32 v{t}, 16, v{t+2}")
        k(f"v_and_b32 v{t+1}, 0xffff0000, v{t+2}")
        k(f"v_sqrt_f32 v{t}, v{t}")
        k(f"v_sqrt_f32 v{t+1}, v{t+1}")
        k(f"s_nop 0")
        k(f"{CVT} v{t+2}, v{t}, v{t+1}")
        k(f"v_lshlrev_b32 v{t}, 16, v{t+2}")
        k(f"v_and_b32 v{t+1}, 0xffff0000, v{t+2}")
        k(f"v_rcp_f32 v{t}, v{t}")
        k(f"v_rcp_f32 v{t+1}, v{t+1}")
    else:
        k(f"v_rsq_f32 v{t}, v{t}")
        k(f"v_rsq_f32 v{t+1}, v{t+1}")
    k(f"s_nop 0")
    k(f"v_mul_f32 v{t+12}, v{t+12}, v{t}")
    k(f"v_mul_f32 v{t+13}, v{t+13}, v{t+1}")

def ln_mean(k, t, sTmp):
    k(f"v_mul_f32 v{t}, {f32(1/1024)}, v{t}")
    k(f"v_mul_f32 v{t+1}, {f32(1/1024)}, v{t+1}")
    if EMU_LN:
        k(f"{CVT} v{t+2}, v{t}, v{t+1}")
        k(f"v_readlane_b32 s{sTmp}, v{t}, 63")
        k(f"v_readlane_b32 s{sTmp+1}, v{t+1}, 63")
        k(f"v_lshlrev_b32 v{t+12}, 16, v{t+2}")
        k(f"v_and_b32 v{t+13}, 0xffff0000, v{t+2}")
    else:
        k(f"v_mov_b32 v{t+12}, v{t}")
        k(f"v_mov_b32 v{t+13}, v{t+1}")
        k(f"v_readlane_b32 s{sTmp}, v{t}, 63")
        k(f"v_readlane_b32 s{sTmp+1}, v{t+1}, 63")

def ln_stats_xrow(k, X, t, sM, sR, sTmp):
    tree_sum(k, X, 16, t)
    wave_reduce2(k, t, t+1)
    ln_mean(k, t, sTmp)
    acc = [t, t+2]; tmp = [t+4, t+6, t+8, t+10]
    for i in range(16):
        d = tmp[i % 4]
        k(f"v_pk_add_f32 {vr(d,2)}, {vr(X+2*i,2)}, {sr(sTmp,2)} neg_lo:[0,1] neg_hi:[0,1]")
        a = acc[i % 2]
        if i < 2: k(f"v_pk_mul_f32 {vr(a,2)}, {vr(d,2)}, {vr(d,2)}")
        else:     k(f"v_pk_fma_f32 {vr(a,2)}, {vr(d,2)}, {vr(d,2)}, {vr(a,2)}")
    k(f"v_pk_add_f32 {vr(t,2)}, {vr(t,2)}, {vr(t+2,2)}")
    wave_reduce2(k, t, t+1)
    ln_scalars(k, t)
    k(f"v_readlane_b32 s{sR}, v{t}, 63")
    k(f"v_readlane_b32 s{sR+1}, v{t+1}, 63")
    k(f"v_readlane_b32 s{sM}, v{t+12}, 63")
    k(f"v_readlane_b32 s{sM+1}, v{t+13}, 63")

def gen_p1():
    k = Kern('p1_kernel')
    k("s_cmp_ge_u32 s2, 256")
    k("s_cbranch_scc1 L_p1_end")
    stamp_begin(k)
    k("s_load_dwordx4 s[4:7], s[0:1], 0")
    k("s_load_dwordx2 s[24:25], s[0:1], 16")
    k("s_load_dwordx2 s[60:61], s[0:1], 32")
    k("s_load_dwordx2 s[26:27], s[0:1], 80")
    TID, LANE = 0, 1
    if CODEPF:
        k("s_getpc_b64 s[52:53]")
        k("L_p1_pc:")
        k("s_sub_u32 s52, s52, L_p1_pc-p1_kernel")
        k("s_subb_u32 s53, s53, 0")
        k("s_lshr_b32 s54, s2, 3")
        k("s_mul_i32 s54, s54, (L_text_end-p1_kernel+4095)/4096")
        k("v_add_u32 v213, s54, v0")
        k("v_lshlrev_b32 v213, 7, v213")
        k("v_mov_b32 v211, s53")
        k("v_add_co_u32 v210, vcc, s52, v213")
        k("v_addc_co_u32 v211, vcc, 0, v211, vcc")
        k("v_cmp_gt_u32 vcc, (L_text_end-p1_kernel+4095)/4096, v0")
        k("s_and_saveexec_b64 s[54:55], vcc")
        k("s_cbranch_execz L_p1_cp0")
        k("v_cmp_gt_u32 vcc, L_text_end-p1_kernel, v213")
        k("s_and_b64 exec, exec, vcc")
        k("s_cbranch_execz L_p1_cp0")
        k("global_load_dword v212, v[210:211], off")
        k("L_p1_cp0:")
        k("s_mov_b64 exec, -1")
    k("v_and_b32 v1, 63, v0")
    k("v_lshrrev_b32 v2, 6, v0")
    k("v_readfirstlane_b32 s28, v2")
    k("s_lshr_b32 s29, s2, 5")
    k("s_lshl_b32 s29, s29, 2")
    k("s_and_b32 s30, s2, 31")
    k("s_add_u32 s31, s29, s28")
    k("s_lshl_b32 s31, s31, 5")
    k("s_add_u32 s31, s31, s30")
    k("s_lshl_b32 s31, s31, 11")
    k("s_add_u32 s32, s31, 0x200000")
    k("s_waitcnt lgkmcnt(0)")
    srd(k, 8, 4, S*D*2)
    srd(k, 12, 6, S*513*2)
    srd(k, 16, 24, S*513*2)
    srd(k, 20, 26, 257*16384, ZD_OFF)
    srd(k, 72 if False else 52, 26, 257*16384, WB_OFF) if False else None
    XL = 4
    if FUSE_GG == 2:
        srd(k, 56, 26, 288*128, FG_OFF)
        k("s_lshl_b32 s33, s2, 7")
        k("v_mov_b32 v2, 0")
        k("v_lshlrev_b32 v3, 15, v0")
        k("s_cmp_lt_u32 s2, 32")
        k("s_cselect_b32 s34, 2, 1")
        k("v_cmp_gt_u32 vcc, s34, v0")
        k("s_and_saveexec_b64 s[34:35], vcc")
        k("s_cbranch_execz L_p1_nozf")
        k("buffer_store_dword v2, v3, s[56:59], s33 offen sc0 sc1")
        k("L_p1_nozf:")
        k("s_mov_b64 exec, -1")
    if FUSE_ALL:
        srd(k, 56, 26, 256*128, FH_OFF)
        k("s_lshl_b32 s33, s2, 7")
        k("v_mov_b32 v2, 0")
        k("v_cmp_eq_u32 vcc, 0, v0")
        k("s_and_saveexec_b64 s[34:35], vcc")
        k("s_cbranch_execz L_p1_nozh")
        k("buffer_store_dword v2, v2, s[56:59], s33 offen sc0 sc1")
        k("L_p1_nozh:")
        k("s_mov_b64 exec, -1")
    if FUSE_GG == 1 or (FUSE23 and FILLPOS != 2):
        srd(k, 56, 26, 1024, BAR_OFF)
        k("s_cmp_lt_u32 s2, 8")
        k("s_cbranch_scc0 L_p1_nozb")
        k("s_lshl_b32 s33, s2, 7")
        k("v_mov_b32 v2, 0")
        k("v_cmp_eq_u32 vcc, 0, v0")
        k("s_and_saveexec_b64 s[34:35], vcc")
        k("s_cbranch_execz L_p1_nozb")
        k("buffer_store_dword v2, v2, s[56:59], s33 offen sc0 sc1")
        k("L_p1_nozb:")
        k("s_mov_b64 exec, -1")
    k("v_lshlrev_b32 v2, 4, v1")
    k(f"buffer_load_dwordx4 {vr(XL,4)}, v2, s[8:11], s31 offen {NT_X}")
    k(f"buffer_load_dwordx4 {vr(XL+4,4)}, v2, s[8:11], s31 offen offset:1024 {NT_X}")
    k(f"buffer_load_dwordx4 {vr(XL+8,4)}, v2, s[8:11], s32 offen {NT_X}")
    k(f"buffer_load_dwordx4 {vr(XL+12,4)}, v2, s[8:11], s32 offen offset:1024 {NT_X}")
    WL = 20
    def w_loads():
        k("v_lshlrev_b32 v220, 2, v0")
        k("s_lshl_b32 s33, s29, 6")
        k("s_lshl_b32 s34, s30, 1")
        k("s_add_u32 s33, s33, s34")
        k("s_mul_i32 s33, s33, 1026")
        for pi in range(2):
            for cc in range(4):
                off = (64*cc + pi)*1026
                k(f"s_add_u32 s34, s33, {off}")
                k(f"buffer_load_dword v{WL+4*pi+cc}, v220, s[12:15], s34 offen {NT_W}")
                k(f"buffer_load_dword v{WL+8+4*pi+cc}, v220, s[16:19], s34 offen {NT_W}")
        WX = 200
        k("v_and_b32 v200, 3, v1")
        k("v_lshlrev_b32 v200, 6, v200")
        k("v_bfe_u32 v201, v1, 2, 1")
        k("v_add_u32 v200, v200, v201")
        k("v_mul_u32_u24 v200, 1026, v200")
        k("v_add_u32 v200, 1024, v200")
        k("v_and_b32 v226, 3, v1")
        k("v_lshlrev_b32 v226, 6, v226")
        k("v_add_u32 v226, v226, v201")
        k("s_lshl_b32 s49, s29, 6")
        k("s_lshl_b32 s50, s30, 1")
        k("s_add_u32 s49, s49, s50")
        k("v_add_u32 v226, s49, v226")
        k("v_sub_u32 v226, 2048, v226")
        k("v_and_b32 v226, 2047, v226")
        k("v_mul_u32_u24 v226, 1026, v226")
        k("v_subrev_u32 v227, 1024, v200")
        k("v_cmp_gt_u32 vcc, 8, v0")
        k("s_and_saveexec_b64 s[36:37], vcc")
        k("s_cbranch_execz L_p1_nox")
        k("buffer_load_ushort v202, v200, s[12:15], s33 offen")
        k("buffer_load_ushort v203, v200, s[16:19], s33 offen")
        k("buffer_load_ushort v228, v227, s[12:15], s33 offen")
        k("buffer_load_ushort v229, v227, s[16:19], s33 offen")
        k("buffer_load_ushort v230, v226, s[12:15], 0 offen")
        k("buffer_load_ushort v231, v226, s[16:19], 0 offen")
        k("buffer_load_ushort v232, v226, s[12:15], 0 offen offset:1024")
        k("buffer_load_ushort v233, v226, s[16:19], 0 offen offset:1024")
        k("L_p1_nox:")
        k("s_mov_b64 exec, -1")
    if WEARLY == 1: w_loads()
    def vb_fill(reg):
        srd(k, 56, 26, 256*VB_BLK, VB_OFF)
        for i in range(4): k(f"v_mov_b32 v{reg+i}, -1")
        k("v_lshlrev_b32 v234, 4, v0")
        k("s_lshl_b32 s51, s2, 14")
        for j in range(4):
            k(f"buffer_store_dwordx4 {vr(reg,4)}, v234, s[56:59], s51 offen sc0 sc1")
            if j < 3: k("s_add_u32 s51, s51, 4096")
    if FUSE23 and FILLPOS == 2 and FILL1 == 0: vb_fill(36)
    WL = 20
    Mr, Mi, TW = 36, 52, 68
    XF, DR, DI, OP, T = 100, 132, 148, 164, 180
    k("v_and_b32 v2, 31, v1")
    k("v_cvt_f32_u32 v2, v2")
    k("v_lshrrev_b32 v3, 5, v1")
    k("v_lshlrev_b32 v3, 2, v3")
    k("v_cvt_f32_u32 v3, v3")
    k(f"v_mul_f32 v204, {f32(1/32)}, v2")
    k("v_mul_f32 v205, v204, v3")
    gen_matrix(k, Mr, Mi, 204, 205, T)
    k(f"v_mul_f32 v204, {f32(1/1024)}, v2")
    k("v_mul_f32 v205, v204, v3")
    gen_twiddle(k, TW, 204, 205, T)
    STG = 16384; WST = STG + 257*64 + 64
    k("s_lshr_b32 s44, s2, 2")
    k("s_and_b32 s44, s44, 3")
    k("s_mov_b32 s45, 0x05040100")
    k("s_mov_b32 s46, 0x07060302")
    k("s_lshl_b32 s47, s2, 6")
    k("s_lshl_b32 s48, s28, 2")
    k(f"s_add_u32 s48, s48, {STG}")
    B1, B2, AWJ, AX, ARD, AGL, AT1, AT2, AWR, AWG = 206, 207, 208, 209, 216, 217, 218, 219, 221, 222
    k("v_and_b32 v2, 31, v1")
    k("v_lshrrev_b32 v3, 5, v1")
    k("v_and_b32 v204, 1, v2")
    k("v_lshrrev_b32 v205, 1, v2")
    k(f"v_xor_b32 v{B1}, s44, v204")
    k(f"v_lshlrev_b32 v{B1}, 4, v{B1}")
    k(f"v_lshl_add_u32 v{B1}, v205, 6, v{B1}")
    k(f"v_lshl_add_u32 v{B1}, v3, 12, v{B1}")
    k(f"v_add_u32 v{B1}, s48, v{B1}")
    k("v_add_u32 v205, 1, v2")
    k("v_lshrrev_b32 v205, 1, v205")
    k("v_add_u32 v204, 2, v204")
    k(f"v_xor_b32 v{B2}, s44, v204")
    k(f"v_lshlrev_b32 v{B2}, 4, v{B2}")
    k("v_lshlrev_b32 v205, 6, v205")
    k(f"v_sub_u32 v{B2}, v{B2}, v205")
    k("v_lshlrev_b32 v205, 12, v3")
    k(f"v_sub_u32 v{B2}, v{B2}, v205")
    k(f"v_add_u32 v{B2}, s48, v{B2}")
    k("s_lshl_b32 s49, s28, 12")
    k(f"s_add_u32 s49, s49, {WST}")
    k("v_bfe_u32 v204, v1, 1, 2")
    k("v_xor_b32 v204, s44, v204")
    k("v_lshlrev_b32 v204, 4, v204")
    k(f"v_lshl_add_u32 v{AWJ}, v1, 6, v204")
    k(f"v_add_u32 v{AWJ}, s49, v{AWJ}")
    k("v_lshrrev_b32 v204, 2, v1")
    k("v_and_b32 v205, 3, v1")
    k(f"v_bfe_u32 v{AT1}, v204, 1, 2")
    k(f"v_xor_b32 v{AT1}, v{AT1}, v205")
    k(f"v_lshlrev_b32 v{AT1}, 4, v{AT1}")
    k(f"v_lshl_add_u32 v{AWR}, v204, 6, v{AT1}")
    k(f"v_add_u32 v{AWR}, s49, v{AWR}")
    k("s_lshl_b32 s49, s28, 6")
    k("v_add_u32 v204, s49, v204")
    k("v_lshlrev_b32 v204, 14, v204")
    k(f"v_lshl_add_u32 v{AWG}, v205, 4, v204")
    k("v_bfe_u32 v204, v1, 2, 1")
    k("v_xor_b32 v204, s44, v204")
    k("v_lshlrev_b32 v204, 4, v204")
    k("v_and_b32 v205, 3, v1")
    k(f"v_lshl_add_u32 v{AX}, v205, 2, v204")
    APW = 223
    k(f"v_add_u32 v{APW}, {WST}, v{AX}")
    k(f"v_lshlrev_b32 v{ARD}, 4, v0")
    k(f"v_add_u32 v{ARD}, {STG}, v{ARD}")
    k("v_lshrrev_b32 v204, 2, v0")
    k("v_lshlrev_b32 v204, 14, v204")
    k("v_and_b32 v205, 3, v0")
    k(f"v_lshl_add_u32 v{AGL}, v205, 4, v204")
    k("s_xor_b32 s49, s44, 2")
    k("s_lshl_b32 s49, s49, 4")
    k("s_add_u32 s49, s49, s48")
    k("s_lshl_b32 s50, s44, 4")
    k("s_add_u32 s50, s50, s48")
    k(f"v_mov_b32 v{AT1}, s49")
    k(f"v_mov_b32 v{AT2}, s50")
    k("s_lshl_b32 s36, s28, 12")
    k("v_lshlrev_b32 v2, 5, v1")
    k("v_add_u32 v2, s36, v2")
    k("v_and_b32 v3, 31, v1")
    k("v_lshlrev_b32 v3, 2, v3")
    k("v_lshrrev_b32 v204, 5, v1")
    k("v_lshlrev_b32 v204, 9, v204")
    k("v_add3_u32 v3, v3, v204, s36")
    k("s_mov_b32 s35, 0xffff0000")
    if WEARLY == 2: w_loads()
    mark(k, 1)
    k(("s_waitcnt vmcnt(20)" if (FUSE23 and FILLPOS == 2 and FILL1 == 0) else "s_waitcnt vmcnt(16)") if WEARLY else "s_waitcnt vmcnt(0)")
    mark(k, 2)
    if FUSE23 and FILLPOS == 2 and FILL1 == 1: vb_fill(180)
    if not WEARLY: w_loads()
    for i in range(16):
        for row in range(2):
            src = XL + 8*row + (i >> 1)
            if i % 2 == 0: k(f"v_lshlrev_b32 v{XF+2*i+row}, 16, v{src}")
            else:          k(f"v_and_b32 v{XF+2*i+row}, s35, v{src}")
    ln_stats_xrow(k, XF, T, 38, 40, 42)
    k(f"v_mov_b32 v{T+8}, s40"); k(f"v_mov_b32 v{T+9}, s41")
    k(f"v_mov_b32 v{T+10}, s38"); k(f"v_mov_b32 v{T+11}, s39")
    for i in range(16):
        d = T + 2*(i % 4)
        k(f"v_pk_fma_f32 {vr(d,2)}, {vr(XF+2*i,2)}, {vr(T+8,2)}, {vr(T+10,2)} neg_lo:[0,0,1] neg_hi:[0,0,1]")
        k(f"{CVT} v{OP+i}, v{d}, v{d+1}")
    k(f"ds_write_b128 v2, {vr(OP,4)}")
    k(f"ds_write_b128 v2, {vr(OP+4,4)} offset:16")
    k(f"ds_write_b128 v2, {vr(OP+8,4)} offset:2048")
    k(f"ds_write_b128 v2, {vr(OP+12,4)} offset:2064")
    k("s_waitcnt lgkmcnt(0)")
    for i, (r, c) in enumerate(SEQ):
        k(f"ds_read_b32 v{OP+i}, v3 offset:{(8*r+c)*128}")
    mark(k, 3)
    k("s_waitcnt lgkmcnt(0)")
    stage(k, 'A', DR, DI, OP, Mr, Mi)
    def w_job():
        srd(k, 56, 26, 257*16384, WB_OFF)
        k("s_waitcnt vmcnt(4)" if WJOB == 2 else "s_waitcnt vmcnt(0)")
        WO = XF
        for e in range(2):
            for pi in range(2):
                for cc in range(4):
                    k(f"v_perm_b32 v{WO+4*(2*e+pi)+cc}, v{WL+8+4*pi+cc}, v{WL+4*pi+cc}, s{45+e}")
        for sl in range(4):
            if sl: k(f"v_xor_b32 v204, {16*sl}, v{AWJ}")
            k(f"ds_write_b128 v{204 if sl else AWJ}, {vr(WO+4*sl,4)}")
        k("s_add_u32 s49, s47, 0x400000")
        k("v_cmp_gt_u32 vcc, 8, v0")
        k("s_and_saveexec_b64 s[36:37], vcc")
        k("s_cbranch_execz L_p1_nox2")
        for r_ in (202, 203, 228, 229, 230, 231, 232, 233): k(f"v_lshlrev_b32 v{r_}, 16, v{r_}")
        k("v_add_f32 v228, v228, v230")
        k("v_sub_f32 v229, v229, v231")
        k("v_add_f32 v202, v202, v232")
        k("v_sub_f32 v203, v203, v233")
        k("v_add_f32 v230, v228, v202")
        k("v_add_f32 v231, v229, v203")
        k("v_sub_f32 v232, v228, v202")
        k("v_sub_f32 v233, v229, v203")
        for r_ in (230, 231, 232, 233): k(f"v_mul_f32 v{r_}, 0x3e800000, v{r_}")
        k(f"{CVT} v202, v230, v231")
        k(f"{CVT} v203, v232, v233")
        k(f"ds_write_b32 v{APW}, v202")
        k(f"buffer_store_dword v203, v{AX}, s[56:59], s49 offen {ST_P1}")
        k("L_p1_nox2:")
        k("s_mov_b64 exec, -1")
        k("s_waitcnt lgkmcnt(0)")
        for j in range(4): k(f"ds_read_b128 {vr(WO+16+4*j,4)}, v{AWR} offset:{1024*j}")
        k("s_mov_b32 s49, s47")
        for j in range(4):
            k(f"s_waitcnt lgkmcnt({3-j})")
            k(f"buffer_store_dwordx4 {vr(WO+16+4*j,4)}, v{AWG}, s[56:59], s49 offen {ST_P1}")
            if j < 3: k(f"s_add_u32 s49, s49, {16*16384}")
    if WJOB == 0: w_job()
    cmul_pack(k, DR, DI, TW, OP, T)
    stage(k, 'B', DR, DI, OP, Mr, Mi)
    mark(k, 4)
    for i, (r, c) in enumerate(SEQ):
        if r < 2: k(f"{CVT} v{OP+i}, v{DR+i}, v{DI+i}")
        else:     k(f"{CVT} v{OP+i}, v{DI+i}, v{DR+i}")
        if r < 2: k(f"ds_write_b32 v{B1}, v{OP+i} offset:{(8*r+c)*1024}")
        else:     k(f"ds_write_b32 v{B2}, v{OP+i} offset:{(32-8*r-c)*1024}")
    k(f"v_sub_f32 v{T+2}, v{DR}, v{DI+8}")
    k(f"v_add_f32 v{T+3}, v{DI}, v{DR+8}")
    k(f"v_sub_f32 v{T+4}, v{DI}, v{DR+8}")
    k(f"v_add_f32 v{T+5}, v{DR}, v{DI+8}")
    k(f"{CVT} v{T}, v{T+4}, v{T+5}")
    k(f"{CVT} v{T+1}, v{T+2}, v{T+3}")
    k("s_mov_b64 exec, 1")
    k(f"ds_write_b32 v{AT1}, v{T}")
    k(f"ds_write_b32 v{AT2}, v{T+1}")
    k("s_mov_b64 exec, -1")
    if WJOB == 1: w_job()
    k("s_waitcnt lgkmcnt(0)")
    k("s_barrier")
    RO = XF
    for j in range(4):
        k(f"ds_read_b128 {vr(RO+4*j,4)}, v{ARD} offset:{4096*j}")
    for j in range(4):
        k(f"s_waitcnt lgkmcnt({3-j})")
        k(f"buffer_store_dwordx4 {vr(RO+4*j,4)}, v{AGL}, s[20:23], s47 offen {ST_P1}")
        if j < 3: k("s_add_u32 s47, s47, 0x100000")
    if WJOB == 2:
        k("s_sub_u32 s47, s47, 0x300000")
        w_job()
    stamp_end(k, 'p1')
    k("L_p1_end:")
    k("s_endpgm")
    k("L_p1_endc:")
    return k, 236, WST + 16384

def pf_wave(k, tag, first_line):
    if not W1PF: return
    k("s_cmp_eq_u32 s28, 4")
    k(f"s_cbranch_scc0 L_{tag}_nopf")
    k("s_waitcnt lgkmcnt(0)")
    srd(k, 16, 24, S*F*2)
    k(f"s_mul_i32 s33, s2, {W1PF*128}")
    k(f"s_add_u32 s33, s33, {first_line*128}")
    k("v_lshlrev_b32 v3, 7, v1")
    for i in range(W1PF//64):
        k("buffer_load_dword v4, v3, s[16:19], s33 offen")
        k("s_add_u32 s33, s33, 8192")
    k("s_endpgm")
    k(f"L_{tag}_nopf:")

def first_tiles_wave(k):
    if not FIRSTPF: return
    k("s_cmp_eq_u32 s28, 4")
    k("s_cbranch_scc0 L_p3_noft")
    k("s_waitcnt lgkmcnt(0)")
    srd(k, 16, 24, S*F*2)
    k("s_lshr_b32 s33, s2, 6")
    k("s_lshl_b32 s33, s33, 3")
    k("s_lshr_b32 s33, 0x0400031f, s33")
    k("s_and_b32 s33, s33, 31")
    k("s_and_b32 s34, s2, 1")
    k("s_lshl_b32 s34, s34, 4")
    k("s_add_u32 s33, s33, s34")
    k("s_and_b32 s33, s33, 31")
    k(f"s_mul_i32 s33, s33, {64*7168}")
    k("s_bfe_u32 s34, s2, 0x20001")
    k("s_mul_i32 s34, s34, 1792")
    k("s_add_u32 s33, s33, s34")
    k("s_bfe_u32 s34, s2, 0x30003")
    k("s_mul_i32 s34, s34, 112")
    for h in range(2):
        k(f"v_add_u32 v2, {64*h}, v1")
        k("v_min_u32 v2, 111, v2")
        k("v_add_u32 v2, s34, v2")
        k("v_mul_u32_u24 v3, 4682, v2")
        k("v_lshrrev_b32 v3, 16, v3")
        k("v_mul_u32_u24 v4, 14, v3")
        k("v_sub_u32 v4, v2, v4")
        k("v_mul_u32_u24 v3, 7168, v3")
        k("v_lshl_add_u32 v3, v4, 7, v3")
        k(f"buffer_load_dword v{5+h}, v3, s[16:19], s33 offen")
    k("s_endpgm")
    k("L_p3_noft:")

def next_code_pf(k, tag, first, last, nwg, vt, st, lane):
    if not CODEPF2: return
    per = f"(({last}-{first})/128+{nwg})/{nwg}"
    k(f"s_getpc_b64 s[{st}:{st+1}]")
    k(f"L_{tag}_npc:")
    k(f"s_add_u32 s{st}, s{st}, {first}-L_{tag}_npc")
    k(f"s_addc_u32 s{st+1}, s{st+1}, 0")
    k(f"s_lshr_b32 s{st+2}, s2, 3")
    k(f"s_mul_i32 s{st+2}, s{st+2}, {per}")
    k(f"v_add_u32 v{vt+2}, s{st+2}, v{lane}")
    k(f"v_lshlrev_b32 v{vt+2}, 7, v{vt+2}")
    k(f"v_mov_b32 v{vt+1}, s{st+1}")
    k(f"v_add_co_u32 v{vt}, vcc, s{st}, v{vt+2}")
    k(f"v_addc_co_u32 v{vt+1}, vcc, 0, v{vt+1}, vcc")
    k(f"v_cmp_gt_u32 vcc, {per}, v{lane}")
    k(f"s_mov_b64 exec, vcc")
    k(f"v_cmp_gt_u32 vcc, {last}-{first}, v{vt+2}")
    k(f"s_and_b64 exec, exec, vcc")
    k(f"s_cbranch_execz L_{tag}_npe")
    k(f"global_load_dword v{vt+3}, v[{vt}:{vt+1}], off")
    k(f"L_{tag}_npe:")
    k("s_mov_b64 exec, -1")

def gen_p2(fused=False, mega=False):
    k = Kern('mega_kernel' if mega else ('p23_kernel' if fused else 'p2_kernel'))
    k("s_cmp_ge_u32 s2, 256")
    k("s_cbranch_scc1 L_p2_end")
    stamp_begin(k)
    k("s_load_dwordx2 s[26:27], s[0:1], 80")
    k("s_load_dwordx2 s[24:25], s[0:1], 32")
    if fused: k("s_load_dwordx2 s[4:5], s[0:1], 0")
    k("v_and_b32 v1, 63, v0")
    k("v_lshrrev_b32 v2, 6, v0")
    k("v_readfirstlane_b32 s28, v2")
    if mega:
        k("s_cmp_lt_u32 s28, 4")
        k("s_cbranch_scc1 L_p2_lo")
        k("s_waitcnt lgkmcnt(0)")
        k("s_branch L_g1_entry")
        k("L_p2_lo:")
    pf_wave(k, 'p2', W1PF0)
    k("v_lshlrev_b32 v2, 4, v1")
    k("s_lshr_b32 s29, s28, 1")
    k("s_and_b32 s30, s28, 1")
    k("s_lshl_b32 s31, s2, 14")
    k("s_lshl_b32 s32, s28, 12")
    k("s_add_u32 s31, s31, s32")
    k("s_waitcnt lgkmcnt(0)")
    srd(k, 8, 26, 257*16384, ZD_OFF)
    srd(k, 20, 26, 257*16384, WB_OFF)
    srd(k, 12, 26, 256*VB_BLK, VB_OFF)
    for i in range(4):
        k(f"s_add_u32 m0, s32, {1024*i}")
        k(f"s_add_u32 s33, s31, {1024*i}")
        k(f"buffer_load_dwordx4 v2, s[8:11], s33 offen lds")
    k("s_or_b32 s46, s2, s29")
    k("s_cmp_eq_u32 s46, 0")
    k("s_cbranch_scc0 L_p2_noq")
    k("v_bfe_u32 v3, v1, 2, 2")
    k("v_xor_b32 v3, s30, v3")
    k("v_lshlrev_b32 v3, 4, v3")
    k("v_lshl_add_u32 v3, v1, 6, v3")
    k("s_lshl_b32 s47, s30, 12")
    for r in range(4):
        k(f"s_add_u32 m0, s47, {32768+1024*r}")
        k(f"s_mov_b32 s33, {0x400000+4096*r}")
        k("buffer_load_dwordx4 v3, s[20:23], s33 offen lds")
    k("L_p2_noq:")
    def own_fill(reg):
        for i in range(4): k(f"v_mov_b32 v{reg+i}, -1")
        k("v_lshlrev_b32 v3, 4, v0")
        k("s_lshl_b32 s33, s2, 14")
        for j in range(4):
            k(f"buffer_store_dwordx4 {vr(reg,4)}, v3, s[12:15], s33 offen sc0 sc1")
            if j < 3: k("s_add_u32 s33, s33, 4096")
    if fused and FILLPOS != 2: srd(k, 16, 26, 1024, BAR_OFF)
    if fused and FILLPOS == 0: own_fill(4)
    Z1, Z2 = 4, 20
    M1r, M1i, MFr, MFi, MIr, MIi = 36, 52, 68, 84, 100, 116
    T1, T2 = 132, 164
    DR, DI, T = 196, 212, 228
    A, B, J, H4, PI = 244, 245, 246, 247, 248
    k(f"v_and_b32 v{J}, 31, v1")
    k(f"v_cvt_f32_u32 v{J}, v{J}")
    k(f"v_lshrrev_b32 v{H4}, 5, v1")
    k(f"v_lshlrev_b32 v{H4}, 2, v{H4}")
    k(f"v_cvt_f32_u32 v{H4}, v{H4}")
    k(f"v_mov_b32 v{PI}, s30")
    k(f"v_cvt_f32_u32 v{PI}, v{PI}")
    k(f"v_mul_f32 v{A}, {f32(1/32)}, v{J}")
    k(f"v_mul_f32 v{B}, v{A}, v{H4}")
    gen_matrix(k, MFr, MFi, A, B, T)
    k(f"v_fma_f32 v{A}, v{J}, 2.0, v{PI}")
    k(f"v_mul_f32 v{A}, {f32(1/64)}, v{A}")
    k(f"v_mul_f32 v{B}, v{A}, v{H4}")
    gen_matrix(k, M1r, M1i, A, B, T)
    k("s_lshl_b32 s33, s30, 4")
    k(f"v_and_b32 v{T}, 31, v1")
    k(f"v_xor_b32 v{T}, s33, v{T}")
    k(f"v_cvt_f32_u32 v{T}, v{T}")
    k(f"v_mul_f32 v{A}, {f32(1/32)}, v{T}")
    k(f"v_mul_f32 v{B}, v{A}, v{H4}")
    k(f"v_mul_f32 v{T}, {f32(1/64)}, v{T}")
    k(f"v_fma_f32 v{B}, v{T}, v{PI}, v{B}")
    gen_matrix(k, MIr, MIi, A, B, T)
    k(f"v_fma_f32 v{A}, v{J}, 2.0, v{PI}")
    k(f"v_mul_f32 v{A}, {f32(1/2048)}, v{A}")
    k(f"v_mov_b32 v{T}, {f32(0.125)}")
    k(f"v_mul_f32 v{T+1}, {f32(-0.25)}, v{PI}")
    k(f"v_add_f32 v{T}, v{T}, v{T+1}")
    k(f"v_fma_f32 v{B}, v{A}, v{H4}, v{T}")
    gen_twiddle(k, T1, A, B, T)
    k(f"v_mul_f32 v{A}, {f32(1/1024)}, v{J}")
    k(f"v_mul_f32 v{B}, v{A}, v{H4}")
    k(f"v_mul_f32 v{T}, {f32(1/2048)}, v{J}")
    k(f"v_fma_f32 v{B}, v{T}, v{PI}, v{B}")
    gen_twiddle(k, T2, A, B, T)
    AZ1, AZ2, AW = 249, 250, 251
    k(f"v_bfe_u32 v{T}, v1, 2, 2")
    k(f"v_lshlrev_b32 v{T+1}, 6, v1")
    k(f"v_xor_b32 v{AZ1}, s29, v{T}")
    k(f"v_lshl_add_u32 v{AZ1}, v{AZ1}, 4, v{T+1}")
    k(f"v_xor_b32 v{AZ2}, 32, v{AZ1}")
    k("s_lshl_b32 s33, s29, 1")
    k("s_add_u32 s33, s33, s30")
    k(f"v_xor_b32 v{AW}, s33, v{T}")
    k(f"v_lshl_add_u32 v{AW}, v{AW}, 4, v{T+1}")
    k(f"v_add_u32 v{AW}, 16384, v{AW}")
    k("s_mul_i32 s34, s30, 0x80008000")
    k("s_mov_b32 s35, 0xffff0000")
    mark(k, 1)
    k("s_waitcnt vmcnt(4)" if (fused and FILLPOS == 0) else "s_waitcnt vmcnt(0)")
    for i in range(4):
        k(f"s_add_u32 m0, s32, {16384+1024*i}")
        k(f"s_add_u32 s33, s31, {1024*i}")
        k(f"buffer_load_dwordx4 v2, s[20:23], s33 offen lds")
    if fused and FILLPOS == 1: own_fill(DR)
    k("s_barrier")
    mark(k, 2)
    for r in range(4):
        k(f"ds_read_b128 {vr(Z1+4*r,4)}, v{AZ1} offset:{4096*r}")
        k(f"ds_read_b128 {vr(Z2+4*r,4)}, v{AZ2} offset:{4096*r}")
    k("s_waitcnt lgkmcnt(0)")
    for i in range(16):
        k(f"v_xor_b32 v{Z2+i}, s34, v{Z2+i}")
    stage(k, 'A', DR, DI, Z1, M1r, M1i, first=True)
    stage(k, 'A', DR, DI, Z2, M1r, M1i, first=False)
    OP = Z1
    cmul_pack(k, DR, DI, T1, OP, T)
    k("s_waitcnt vmcnt(0)")
    k("s_barrier")
    if fused and FILLPOS != 2:
        k("s_cmp_eq_u32 s28, 0")
        k("s_cbranch_scc0 L_p2_noarr")
        k("s_and_b32 s33, s2, 7")
        k("s_lshl_b32 s33, s33, 7")
        k("v_mov_b32 v249, 1")
        k("v_mov_b32 v250, 0")
        k("s_mov_b64 exec, 1")
        k("buffer_atomic_add v249, v250, s[16:19], s33 offen sc1")
        k("s_mov_b64 exec, -1")
        k("L_p2_noarr:")
    for r in range(4):
        k(f"ds_read_b128 {vr(Z2+4*r,4)}, v{AW} offset:{4096*r}")
    stage(k, 'B', DR, DI, OP, MFr, MFi)
    WP = M1r
    k("s_waitcnt lgkmcnt(0)")
    for i in range(16):
        k(f"v_lshlrev_b32 v{WP+2*i}, 16, v{Z2+i}")
        k(f"v_and_b32 v{WP+2*i+1}, s35, v{Z2+i}")
    k("s_or_b32 s46, s2, s29")
    k("s_cmp_eq_u32 s46, 0")
    k("s_cbranch_scc1 L_p2_spec")
    cmul_pack(k, DR, DI, WP, OP, T, conj=True)
    k("L_p2_specd:")
    stage(k, 'A', DR, DI, OP, MFr, MFi)
    cmul_pack(k, DR, DI, T2, OP, T)
    stage(k, 'B', DR, DI, OP, MIr, MIi)
    mark(k, 4)
    if fused and FILLPOS != 2:
        k("s_cmp_eq_u32 s28, 0")
        k("s_cbranch_scc0 L_p2_nochk0")
        k("v_and_b32 v249, 7, v1")
        k("v_lshlrev_b32 v249, 7, v249")
        k("buffer_load_dword v250, v249, s[16:19], 0 offen sc0 sc1")
        k("L_p2_nochk0:")
    XCH, STG = 32768, 49152
    AX = 252
    k("s_lshl_b32 s36, s28, 12")
    k(f"s_add_u32 s36, s36, {XCH}")
    k(f"v_lshl_add_u32 v{AX}, v1, 4, s36")
    k(f"ds_write_b128 v{AX}, {vr(DR+8,4)}")
    k(f"ds_write_b128 v{AX}, {vr(DR+12,4)} offset:1024")
    k(f"ds_write_b128 v{AX}, {vr(DI+8,4)} offset:2048")
    k(f"ds_write_b128 v{AX}, {vr(DI+12,4)} offset:3072")
    k(f"v_xor_b32 v{AX}, 4096, v{AX}")
    k("s_cmp_eq_u32 s30, 0")
    k(f"s_cselect_b32 s40, {f32(1.0)}, {f32(-1.0)}")
    k("s_mov_b32 s42, s40")
    k("s_waitcnt lgkmcnt(0)")
    k("s_barrier")
    OR_, OI = 36, 44
    k(f"ds_read_b128 {vr(OR_,4)}, v{AX}")
    k(f"ds_read_b128 {vr(OR_+4,4)}, v{AX} offset:1024")
    k(f"ds_read_b128 {vr(OI,4)}, v{AX} offset:2048")
    k(f"ds_read_b128 {vr(OI+4,4)}, v{AX} offset:3072")
    k(f"v_bfe_u32 v{T}, v1, 1, 2")
    k(f"v_xor_b32 v{T+1}, s29, v{T}")
    k(f"v_xor_b32 v{T+2}, 2, v{T+1}")
    k("s_lshl_b32 s43, s30, 13")
    k(f"s_add_u32 s43, s43, {STG}")
    k(f"v_lshl_add_u32 v{T+3}, v1, 6, s43")
    k(f"v_lshl_add_u32 v253, v{T+1}, 4, v{T+3}")
    k(f"v_lshl_add_u32 v254, v{T+2}, 4, v{T+3}")
    k("s_waitcnt lgkmcnt(0)")
    UA, UB = 52, 60
    Ur, Ui, Er, Ei, Ar, Ai, Br, Bi = [x + (64 if fused else 0) for x in (68, 70, 72, 74, 76, 78, 80, 82)]
    bc = "op_sel_hi:[1,0,1]"
    k("s_cmp_eq_u32 s46, 0")
    k("s_cbranch_scc1 L_p2_spost")
    for j in range(0, 8, 2):
        o = 16*((j//2) % 2)
        ur, ui, er, ei, a_r, a_i, b_r, b_i = [x+o for x in (Ur, Ui, Er, Ei, Ar, Ai, Br, Bi)]
        k(f"v_pk_add_f32 {vr(ur,2)}, {vr(DR+j,2)}, {vr(OR_+j,2)}")
        k(f"v_pk_add_f32 {vr(ui,2)}, {vr(DI+j,2)}, {vr(OI+j,2)}")
        k(f"v_pk_add_f32 {vr(er,2)}, {vr(DR+j,2)}, {vr(OR_+j,2)} neg_lo:[0,1] neg_hi:[0,1]")
        k(f"v_pk_add_f32 {vr(ei,2)}, {vr(DI+j,2)}, {vr(OI+j,2)} neg_lo:[0,1] neg_hi:[0,1]")
        k(f"v_pk_fma_f32 {vr(a_r,2)}, {vr(ei,2)}, s[42:43], {vr(ur,2)} {bc}")
        k(f"v_pk_fma_f32 {vr(b_r,2)}, {vr(ei,2)}, s[42:43], {vr(ur,2)} {bc} neg_lo:[1,0,0] neg_hi:[1,0,0]")
        k(f"v_pk_fma_f32 {vr(a_i,2)}, {vr(er,2)}, s[40:41], {vr(ui,2)} {bc} neg_lo:[1,0,0] neg_hi:[1,0,0]")
        k(f"v_pk_fma_f32 {vr(b_i,2)}, {vr(er,2)}, s[40:41], {vr(ui,2)} {bc} neg_lo:[1,0,1] neg_hi:[1,0,1]")
        k(f"{CVT} v{UA+j}, v{a_r}, v{a_i}")
        k(f"{CVT} v{UA+j+1}, v{a_r+1}, v{a_i+1}")
        k(f"{CVT} v{UB+j}, v{b_r}, v{b_i}")
        k(f"{CVT} v{UB+j+1}, v{b_r+1}, v{b_i+1}")
    k("s_branch L_p2_postd")
    k("L_p2_spost:")
    for j in range(0, 8, 2):
        o = 16*((j//2) % 2)
        ur, ui, er, ei, a_r, a_i, b_r, b_i = [x+o for x in (Ur, Ui, Er, Ei, Ar, Ai, Br, Bi)]
        k(f"v_pk_add_f32 {vr(ur,2)}, {vr(DR+j,2)}, {vr(OR_+j,2)}")
        k(f"v_pk_add_f32 {vr(ui,2)}, {vr(DI+j,2)}, {vr(OI+j,2)}")
        k(f"v_pk_add_f32 {vr(er,2)}, {vr(DR+j,2)}, {vr(OR_+j,2)} neg_lo:[0,1] neg_hi:[0,1]")
        k(f"v_pk_add_f32 {vr(ei,2)}, {vr(DI+j,2)}, {vr(OI+j,2)} neg_lo:[0,1] neg_hi:[0,1]")
        k(f"v_pk_mul_f32 {vr(a_i,2)}, {vr(er,2)}, s[40:41] op_sel_hi:[1,0] neg_lo:[1,0] neg_hi:[1,0]")
        k(f"v_pk_mul_f32 {vr(b_i,2)}, {vr(ei,2)}, s[40:41] op_sel_hi:[1,0]")
        k(f"{CVT} v{UA+j}, v{ur}, v{a_i}")
        k(f"{CVT} v{UA+j+1}, v{ur+1}, v{a_i+1}")
        k(f"{CVT} v{UB+j}, -v{ui}, v{b_i}")
        k(f"{CVT} v{UB+j+1}, -v{ui+1}, v{b_i+1}")
    k("L_p2_postd:")
    for rl in range(2):
        k(f"ds_write_b128 v253, {vr(UA+4*rl,4)} offset:{4096*rl}")
        k(f"ds_write_b128 v254, {vr(UB+4*rl,4)} offset:{4096*rl}")
    k(f"v_and_b32 v{T}, 3, v0")
    k(f"v_bfe_u32 v{T+1}, v0, 3, 2")
    k(f"v_xor_b32 v{T+1}, v{T}, v{T+1}")
    k(f"v_lshrrev_b32 v{T+2}, 2, v0")
    k(f"v_lshlrev_b32 v{T+3}, 6, v{T+2}")
    k(f"v_lshl_add_u32 v{T+3}, v{T+1}, 4, v{T+3}")
    k(f"v_add_u32 v{T+3}, {STG}, v{T+3}")
    k(f"v_mul_u32_u24 v{T+2}, {VB_BLK}, v{T+2}")
    k("s_and_b32 s44, s2, 2")
    k(f"v_xor_b32 v{T}, s44, v{T}")
    k(f"v_lshl_add_u32 v{T+2}, v{T}, 4, v{T+2}")
    k("s_lshl_b32 s45, s2, 6")
    if fused and FILLPOS != 2:
        k("s_cmp_eq_u32 s28, 0")
        k("s_cbranch_scc0 L_p2_chkd")
        k("s_mov_b32 s47, 0")
        k("L_p2_chk:")
        k("s_waitcnt vmcnt(0)")
        k("v_cmp_gt_u32 vcc, 32, v250")
        k("s_add_u32 s47, s47, 1")
        k("s_cmp_ge_u32 s47, 0x20000")
        k("s_cbranch_scc1 L_p2_chkd")
        k("s_nop 2")
        k("s_cbranch_vccz L_p2_chkd")
        k("buffer_load_dword v250, v249, s[16:19], 0 offen sc0 sc1")
        k("s_branch L_p2_chk")
        k("L_p2_chkd:")
    k("s_waitcnt lgkmcnt(0)")
    k("s_barrier")
    for j in range(4):
        k(f"ds_read_b128 {vr(4+4*j,4)}, v{T+3} offset:{4096*j}")
    k("s_waitcnt lgkmcnt(0)")
    for j in range(4):
        k(f"buffer_store_dwordx4 {vr(4+4*j,4)}, v{T+2}, s[12:15], s45 offen {ST_P2}")
        if j < 3: k(f"s_add_u32 s45, s45, {64*VB_BLK}")
    if fused:
        mark(k, 3)
        p3_body(k, True)
    stamp_end(k, 'p2')
    if mega:
        k("s_waitcnt vmcnt(0)")
        k("s_barrier")
        srd(k, 16, 26, 256*128, FH_OFF)
        k("s_lshl_b32 s33, s2, 7")
        k("v_mov_b32 v2, 1")
        k("v_mov_b32 v3, 0")
        k("v_cmp_eq_u32 vcc, 0, v0")
        k("s_and_saveexec_b64 s[34:35], vcc")
        k("s_cbranch_execz L_p2_nocnt")
        k("buffer_store_dword v2, v3, s[16:19], s33 offen sc0 sc1")
        k("L_p2_nocnt:")
        k("s_mov_b64 exec, -1")
        k("s_branch L_g1_entry")
    k("L_p2_end:")
    k("s_endpgm")
    k("L_p2_spec:")
    QP = T1
    XB_ = Z2
    k("s_lshl_b32 s47, s30, 12")
    k(f"v_lshl_add_u32 v{T}, v1, 4, s47")
    for r in range(4):
        k(f"ds_read_b128 {vr(XB_+4*r,4)}, v{T} offset:{32768+1024*r}")
    k("s_lshl_b32 s47, s30, 13")
    k(f"v_and_b32 v{T+1}, 31, v1")
    k(f"v_lshrrev_b32 v{T+2}, 5, v1")
    k(f"v_lshlrev_b32 v{T+3}, 2, v{T+1}")
    k(f"v_lshl_add_u32 v{T+3}, v{T+2}, 10, v{T+3}")
    k(f"v_add_u32 v{T+3}, s47, v{T+3}")
    for i, (r, c) in enumerate(SEQ):
        k(f"ds_write_b32 v{T+3}, v{DR+i} offset:{(8*r+c)*256}")
        k(f"ds_write_b32 v{T+3}, v{DI+i} offset:{(8*r+c)*256+128}")
    k(f"v_add_u32 v{T+4}, s30, v{T+1}")
    k(f"v_sub_u32 v{T+5}, 32, v{T+4}")
    k(f"v_lshlrev_b32 v{T+5}, 2, v{T+5}")
    k(f"v_cmp_eq_u32 vcc, 0, v{T+4}")
    k(f"v_mov_b32 v{T+6}, 256")
    k(f"v_cndmask_b32 v{T+5}, v{T+5}, v{T+6}, vcc")
    k(f"v_lshlrev_b32 v{T+6}, 10, v{T+2}")
    k(f"v_sub_u32 v{T+5}, v{T+5}, v{T+6}")
    k(f"v_add_u32 v{T+5}, 1024, v{T+5}")
    k(f"v_add_u32 v{T+5}, s47, v{T+5}")
    k(f"v_add_u32 v{T+6}, {27*256}, v{T+5}")
    k(f"v_or_b32 v{T+7}, v{T+4}, v{T+2}")
    k(f"v_cmp_eq_u32 vcc, 0, v{T+7}")
    k(f"v_mov_b32 v{T+7}, s47")
    k(f"v_cndmask_b32 v{T+6}, v{T+6}, v{T+7}, vcc")
    k("s_waitcnt lgkmcnt(0)")
    for i in range(16):
        k(f"v_lshlrev_b32 v{QP+2*i}, 16, v{XB_+i}")
        k(f"v_and_b32 v{QP+2*i+1}, s35, v{XB_+i}")
    for half in range(2):
        for jj in range(8):
            i = 8*half + jj; r, c = SEQ[i]
            if i == 0:
                k(f"ds_read_b32 v{XB_+2*jj}, v{T+6}")
                k(f"ds_read_b32 v{XB_+2*jj+1}, v{T+6} offset:128")
            else:
                k(f"ds_read_b32 v{XB_+2*jj}, v{T+5} offset:{(27-8*r-c)*256}")
                k(f"ds_read_b32 v{XB_+2*jj+1}, v{T+5} offset:{(27-8*r-c)*256+128}")
        k("s_waitcnt lgkmcnt(0)")
        for jj in range(8):
            j = 8*half + jj; o = T + 8 + 2*(jj % 4); jp = j & ~1; x = j & 1
            k(f"v_pk_mul_f32 {vr(o,2)}, {vr(WP+2*j,2)}, {vr(DR+jp,2)} op_sel:[0,{x}] op_sel_hi:[1,{x}]")
            k(f"v_pk_fma_f32 {vr(o,2)}, {vr(WP+2*j,2)}, {vr(DI+jp,2)}, {vr(o,2)} op_sel:[1,{x},0] op_sel_hi:[0,{x},1] neg_lo:[1,0,0]")
            k(f"v_pk_fma_f32 {vr(o,2)}, {vr(QP+2*j,2)}, {vr(XB_+2*jj,2)}, {vr(o,2)} op_sel:[0,0,0] op_sel_hi:[1,0,1]")
            k(f"v_pk_fma_f32 {vr(o,2)}, {vr(QP+2*j,2)}, {vr(XB_+2*jj,2)}, {vr(o,2)} op_sel:[1,1,0] op_sel_hi:[0,1,1] neg_hi:[1,0,0]")
            k(f"{CVT} v{OP+j}, v{o}, -v{o+1}")
    k("s_branch L_p2_specd")
    return k, 256, 65536

def ln_stats_rows(k, R0, R1, t, vRM, sTmp, twice=False):
    for (R, o) in ((R0, 0), (R1, 4)):
        a, b = t+o, t+o+2
        k(f"v_pk_add_f32 {vr(a,2)}, {vr(R,2)}, {vr(R+2,2)}")
        k(f"v_pk_add_f32 {vr(b,2)}, {vr(R+4,2)}, {vr(R+6,2)}")
    for i in range(4, 8):
        for (R, o) in ((R0, 0), (R1, 4)):
            a = t+o+2*(i % 2)
            k(f"v_pk_add_f32 {vr(a,2)}, {vr(a,2)}, {vr(R+2*i,2)}")
    for o in (0, 4):
        k(f"v_pk_add_f32 {vr(t+o,2)}, {vr(t+o,2)}, {vr(t+o+2,2)}")
    k(f"v_add_f32 v{t}, v{t}, v{t+1}")
    k(f"v_add_f32 v{t+1}, v{t+4}, v{t+5}")
    wave_reduce2(k, t, t+1)
    ln_mean(k, t, sTmp)
    acc = {0: t, 1: t+2}; tmp = [t+4, t+6, t+8, t+10]
    n = 0
    for i in range(8):
        for row, R in ((0, R0), (1, R1)):
            d = tmp[n % 4]; n += 1
            sel = "op_sel_hi:[1,0]" if row == 0 else "op_sel:[0,1] op_sel_hi:[1,1]"
            k(f"v_pk_add_f32 {vr(d,2)}, {vr(R+2*i,2)}, {sr(sTmp,2)} {sel} neg_lo:[0,1] neg_hi:[0,1]")
            a = acc[row]
            if i == 0: k(f"v_pk_mul_f32 {vr(a,2)}, {vr(d,2)}, {vr(d,2)}")
            else:      k(f"v_pk_fma_f32 {vr(a,2)}, {vr(d,2)}, {vr(d,2)}, {vr(a,2)}")
    k(f"v_add_f32 v{t}, v{t}, v{t+1}")
    k(f"v_add_f32 v{t+1}, v{t+2}, v{t+3}")
    wave_reduce2(k, t, t+1)
    ln_scalars(k, t, twice)
    k(f"v_readlane_b32 s{sTmp}, v{t}, 63")
    k(f"v_readlane_b32 s{sTmp+1}, v{t+1}, 63")
    k(f"v_readlane_b32 s{sTmp+2}, v{t+12}, 63")
    k(f"v_readlane_b32 s{sTmp+3}, v{t+13}, 63")
    for i in range(4):
        k(f"v_mov_b32 v{vRM+i}, s{sTmp+i}")

def ln_apply_rows(k, R0, R1, vRM, dst0, dst1):
    for i in range(8):
        k(f"v_pk_fma_f32 {vr(dst0+2*i,2)}, {vr(R0+2*i,2)}, {vr(vRM,2)}, {vr(vRM+2,2)} op_sel_hi:[1,0,0] neg_lo:[0,0,1] neg_hi:[0,0,1]")
        k(f"v_pk_fma_f32 {vr(dst1+2*i,2)}, {vr(R1+2*i,2)}, {vr(vRM,2)}, {vr(vRM+2,2)} op_sel:[0,1,1] op_sel_hi:[1,1,1] neg_lo:[0,0,1] neg_hi:[0,0,1]")

def p3_body(k, fused):
    if fused:
        XL, OP, Mr, Mi, TW, DR, DI, T = 36, 20, 68, 84, 164, 196, 212, 228
        R0, R1, Y0, Y1, HP, NP, RM = 100, 116, 132, 148, 52, 4, 244
        B1, B2, AJ8, t0, t1, t2, cj, ch, cA, cB, XV = 248, 249, 250, 251, 252, 253, 251, 252, 253, 254, 255
    else:
        XL, OP, Mr, Mi, TW, DR, DI, T = 4, 20, 36, 52, 68, 100, 116, 132
        R0, R1, Y0, Y1, HP, NP, RM = 148, 164, 180, 196, 36, 68, 220
        B1, B2, AJ8, t0, t1, t2, cj, ch, cA, cB, XV = 218, 219, 227, 216, 217, 226, 212, 213, 214, 215, 225
    k("s_lshr_b32 s29, s2, 5")
    k("s_lshl_b32 s29, s29, 2")
    k("s_and_b32 s30, s2, 31")
    k("s_add_u32 s31, s29, s28")
    k("s_lshl_b32 s31, s31, 5")
    k("s_add_u32 s31, s31, s30")
    k("s_lshl_b32 s31, s31, 11")
    k("s_add_u32 s32, s31, 0x200000")
    k(f"s_mul_i32 s33, s2, {VB_BLK}")
    k("s_lshl_b32 s34, s28, 12")
    k("s_add_u32 s33, s33, s34")
    k("v_lshlrev_b32 v2, 4, v1")
    if not fused: k("s_waitcnt lgkmcnt(0)")
    srd(k, 8, 4, S*D*2)
    if not fused: srd(k, 12, 26, 256*VB_BLK, VB_OFF)
    srd(k, 16, 26, S*D*2, H_OFF)
    srd(k, 20, 26, S*D*2, HN_OFF)
    def x_loads():
        k(f"v_lshlrev_b32 v{XV}, 4, v1")
        k(f"buffer_load_dwordx4 {vr(XL,4)}, v{XV}, s[8:11], s31 offen")
        k(f"buffer_load_dwordx4 {vr(XL+4,4)}, v{XV}, s[8:11], s31 offen offset:1024")
        k(f"buffer_load_dwordx4 {vr(XL+8,4)}, v{XV}, s[8:11], s32 offen")
        k(f"buffer_load_dwordx4 {vr(XL+12,4)}, v{XV}, s[8:11], s32 offen offset:1024")
    if fused:
        x_loads()
    else:
        for i in range(4):
            k(f"s_add_u32 m0, s34, {1024*i}")
            k(f"buffer_load_dwordx4 v2, s[12:15], s33 offen lds")
            k("s_add_u32 s33, s33, 1024")
    if CODEPF2:
        k("s_cmp_eq_u32 s28, 0")
        k("s_cbranch_scc0 L_p3_nonp")
        next_code_pf(k, 'p3', 'L_g1_entry' if FUSE_ALL else ('gg_kernel' if FUSE_GG else 'g1_kernel'), 'L_gbar' if FUSE_GG else 'g2_kernel', 32, RM, 40, 1)
        k("L_p3_nonp:")
    k(f"v_and_b32 v{cj}, 31, v1")
    k(f"v_cvt_f32_u32 v{cj}, v{cj}")
    k(f"v_lshrrev_b32 v{ch}, 5, v1")
    k(f"v_lshlrev_b32 v{ch}, 2, v{ch}")
    k(f"v_cvt_f32_u32 v{ch}, v{ch}")
    if not fused:
        k(f"v_mul_f32 v{cA}, {f32(1/32)}, v{cj}")
        k(f"v_mul_f32 v{cB}, v{cA}, v{ch}")
        gen_matrix(k, Mr, Mi, cA, cB, T)
    k(f"v_mul_f32 v{cA}, {f32(1/1024)}, v{cj}")
    k(f"v_mul_f32 v{cB}, v{cA}, v{ch}")
    gen_twiddle(k, TW, cA, cB, T, scale=2.0**-21.5)
    k("v_and_b32 v2, 31, v1")
    k("v_lshrrev_b32 v3, 5, v1")
    k(f"v_and_b32 v{t0}, 1, v2")
    k(f"v_lshrrev_b32 v{t1}, 1, v2")
    k(f"v_and_b32 v{B1}, 2, v{t1}")
    k(f"v_xor_b32 v{B1}, v{B1}, v{t0}")
    k(f"v_lshlrev_b32 v{B1}, 4, v{B1}")
    k(f"v_lshl_add_u32 v{B1}, v{t1}, 6, v{B1}")
    k(f"v_lshl_add_u32 v{B1}, v3, 12, v{B1}")
    k("s_lshl_b32 s37, s28, 2")
    k(f"v_add_u32 v{B1}, s37, v{B1}")
    k(f"v_add_u32 v{t1}, 1, v2")
    k(f"v_lshrrev_b32 v{t1}, 1, v{t1}")
    k(f"v_sub_u32 v{B2}, 0, v{t1}")
    k(f"v_and_b32 v{B2}, 2, v{B2}")
    k(f"v_add_u32 v{t0}, 2, v{t0}")
    k(f"v_xor_b32 v{B2}, v{B2}, v{t0}")
    k(f"v_lshlrev_b32 v{B2}, 4, v{B2}")
    k(f"v_lshlrev_b32 v{t1}, 6, v{t1}")
    k(f"v_sub_u32 v{B2}, v{B2}, v{t1}")
    k(f"v_lshlrev_b32 v{t1}, 12, v3")
    k(f"v_sub_u32 v{B2}, v{B2}, v{t1}")
    k("s_add_u32 s37, s37, 5120")
    k(f"v_add_u32 v{B2}, s37, v{B2}")
    k(f"v_add_u32 v{AJ8}, {16*1024-5120}, v{B2}")
    k("s_lshl_b32 s38, s28, 2")
    k("s_add_u32 s38, s38, 32")
    k(f"v_mov_b32 v{t2}, s38")
    k("v_cmp_eq_u32 vcc, 0, v1")
    k(f"v_cndmask_b32 v{AJ8}, v{AJ8}, v{t2}, vcc")
    k("s_mov_b32 s35, 0xffff0000")
    if fused:
        k("v_lshlrev_b32 v2, 4, v1")
        k("s_mov_b32 s41, 0")
        k("s_waitcnt vmcnt(0)")
        k("L_p3_poll:")
        for i in range(4):
            k(f"s_add_u32 s39, s33, {1024*i}")
            k(f"buffer_load_dwordx4 {vr(OP+4*i,4)}, v2, s[12:15], s39 offen sc0 sc1")
        k("s_add_u32 s41, s41, 1")
        k("s_waitcnt vmcnt(0)")
        k(f"v_max3_u32 v3, v{OP}, v{OP+1}, v{OP+2}")
        for i in range(3, 15, 2): k(f"v_max3_u32 v3, v3, v{OP+i}, v{OP+i+1}")
        k(f"v_max_u32 v3, v3, v{OP+15}")
        k("v_cmp_eq_u32 vcc, -1, v3")
        k("s_nop 4")
        k("s_cmp_ge_u32 s41, 0x20000")
        k("s_cbranch_scc1 L_p3_polld")
        k("s_cbranch_vccnz L_p3_poll")
        k("L_p3_polld:")
        mark(k, 5)
        k("v_add_u32 v2, s34, v2")
        for i in range(4): k(f"ds_write_b128 v2, {vr(OP+4*i,4)} offset:{1024*i}")
        k("s_waitcnt lgkmcnt(0)")
        k("s_barrier")
    else:
        mark(k, 1)
        k("s_waitcnt vmcnt(0)")
        x_loads()
        k("s_barrier")
        mark(k, 2)
    for i, (r, c) in enumerate(SEQ):
        if r < 2: k(f"ds_read_b32 v{OP+i}, v{B1} offset:{(8*r+c)*1024}")
        elif i == 8: k(f"ds_read_b32 v{OP+i}, v{AJ8}")
        else:     k(f"ds_read_b32 v{OP+i}, v{B2} offset:{(32-8*r-c)*1024-5120}")
    k("s_waitcnt lgkmcnt(0)")
    stage(k, 'A', DR, DI, OP, Mr, Mi)
    cmul_pack(k, DR, DI, TW, OP, T)
    stage(k, 'B', DR, DI, OP, Mr, Mi)
    if not fused: k("s_waitcnt vmcnt(0)")
    for i in range(8):
        k(f"v_lshlrev_b32 v{R0+2*i}, 16, v{XL+i}")
        k(f"v_and_b32 v{R0+2*i+1}, s35, v{XL+i}")
        k(f"v_lshlrev_b32 v{R1+2*i}, 16, v{XL+8+i}")
        k(f"v_and_b32 v{R1+2*i+1}, s35, v{XL+8+i}")
    TR = 17408
    if not fused: mark(k, 3)
    k("s_lshl_b32 s36, s28, 12")
    k(f"s_add_u32 s36, s36, {TR}")
    k("v_and_b32 v3, 31, v1")
    k("v_lshlrev_b32 v3, 2, v3")
    k(f"v_lshrrev_b32 v{t0}, 5, v1")
    k(f"v_lshlrev_b32 v{t0}, 9, v{t0}")
    k(f"v_add3_u32 v3, v3, v{t0}, s36")
    k("v_lshl_add_u32 v2, v1, 5, s36")
    for i in range(16):
        k(f"{CVT} v{OP+i}, v{DR+i}, -v{DI+i}")
    for i, (r, c) in enumerate(SEQ):
        k(f"ds_write_b32 v3, v{OP+i} offset:{(8*r+c)*128}")
    k("s_waitcnt lgkmcnt(0)")
    k(f"ds_read_b128 {vr(OP,4)}, v2")
    k(f"ds_read_b128 {vr(OP+4,4)}, v2 offset:16")
    k(f"ds_read_b128 {vr(OP+8,4)}, v2 offset:2048")
    k(f"ds_read_b128 {vr(OP+12,4)}, v2 offset:2064")
    k("s_waitcnt lgkmcnt(0)")
    for i in range(16):
        k(f"v_lshlrev_b32 v{Y0+i}, 16, v{OP+i}")
        k(f"v_and_b32 v{Y1+i}, s35, v{OP+i}")
    for i in range(8):
        k(f"v_pk_add_f32 {vr(Y0+2*i,2)}, {vr(Y0+2*i,2)}, {vr(R0+2*i,2)}")
        k(f"v_pk_add_f32 {vr(Y1+2*i,2)}, {vr(Y1+2*i,2)}, {vr(R1+2*i,2)}")
    for i in range(8):
        k(f"{CVT} v{HP+i}, v{Y0+2*i}, v{Y0+2*i+1}")
        k(f"{CVT} v{HP+8+i}, v{Y1+2*i}, v{Y1+2*i+1}")
    k("v_lshlrev_b32 v2, 4, v1")
    k(f"buffer_store_dwordx4 {vr(HP,4)}, v2, s[16:19], s31 offen {ST_P3}")
    k(f"buffer_store_dwordx4 {vr(HP+4,4)}, v2, s[16:19], s31 offen offset:1024 {ST_P3}")
    k(f"buffer_store_dwordx4 {vr(HP+8,4)}, v2, s[16:19], s32 offen {ST_P3}")
    k(f"buffer_store_dwordx4 {vr(HP+12,4)}, v2, s[16:19], s32 offen offset:1024 {ST_P3}")
    for i in range(8):
        k(f"v_lshlrev_b32 v{R0+2*i}, 16, v{HP+i}")
        k(f"v_and_b32 v{R0+2*i+1}, s35, v{HP+i}")
        k(f"v_lshlrev_b32 v{R1+2*i}, 16, v{HP+8+i}")
        k(f"v_and_b32 v{R1+2*i+1}, s35, v{HP+8+i}")
    if not fused: mark(k, 4)
    if LN_FUSE:
        assert not (EMU_LN or EMU_L2)
        ln_stats_rows(k, R0, R1, T, RM, 40, twice=True)
        ln_apply_rows(k, R0, R1, RM, Y0, Y1)
    else:
        ln_stats_rows(k, R0, R1, T, RM, 40)
        if EMU_L2:
            ln_apply_rows(k, R0, R1, RM, Y0, Y1)
            LP = OP
            for i in range(8):
                k(f"{CVT} v{LP+i}, v{Y0+2*i}, v{Y0+2*i+1}")
                k(f"{CVT} v{LP+8+i}, v{Y1+2*i}, v{Y1+2*i+1}")
            for i in range(8):
                k(f"v_lshlrev_b32 v{R0+2*i}, 16, v{LP+i}")
                k(f"v_and_b32 v{R0+2*i+1}, s35, v{LP+i}")
                k(f"v_lshlrev_b32 v{R1+2*i}, 16, v{LP+8+i}")
                k(f"v_and_b32 v{R1+2*i+1}, s35, v{LP+8+i}")
        else:
            ln_apply_rows(k, R0, R1, RM, R0, R1)
        ln_stats_rows(k, R0, R1, T, RM, 40)
        ln_apply_rows(k, R0, R1, RM, Y0, Y1)
    for i in range(8):
        k(f"{CVT} v{NP+i}, v{Y0+2*i}, v{Y0+2*i+1}")
        k(f"{CVT} v{NP+8+i}, v{Y1+2*i}, v{Y1+2*i+1}")
    k(f"buffer_store_dwordx4 {vr(NP,4)}, v2, s[20:23], s31 offen {ST_P3}")
    k(f"buffer_store_dwordx4 {vr(NP+4,4)}, v2, s[20:23], s31 offen offset:1024 {ST_P3}")
    k(f"buffer_store_dwordx4 {vr(NP+8,4)}, v2, s[20:23], s32 offen {ST_P3}")
    k(f"buffer_store_dwordx4 {vr(NP+12,4)}, v2, s[20:23], s32 offen offset:1024 {ST_P3}")

def gen_p3():
    k = Kern('p3_kernel')
    k("s_cmp_ge_u32 s2, 256")
    k("s_cbranch_scc1 L_p3_end")
    stamp_begin(k)
    k("s_load_dwordx2 s[4:5], s[0:1], 0")
    k("s_load_dwordx2 s[26:27], s[0:1], 80")
    k("s_load_dwordx2 s[24:25], s[0:1], 32")
    k("v_and_b32 v1, 63, v0")
    k("v_lshrrev_b32 v2, 6, v0")
    k("v_readfirstlane_b32 s28, v2")
    pf_wave(k, 'p3', W1PF0 + 256*W1PF)
    first_tiles_wave(k)
    p3_body(k, False)
    stamp_end(k, 'p3')
    k("L_p3_end:")
    k("s_endpgm")
    return k, 228, 33792

def gen_p23(): return gen_p2(True)

MF16 = 'v_mfma_f32_16x16x32_bf16'

def interleave(mf, rd, lead=0):
    out = []; n = len(mf); m = len(rd); ri = 0
    for i in range(n):
        out.append(mf[i])
        tgt = min(m, (m*(i+1) + n - 1)//n)
        while ri < tgt:
            out.append(rd[ri]); ri += 1
    out += rd[ri:]
    return out

def producer_loop(k, tag, per, issue, NS, NIT, check=None):
    mark(k, 1)
    issue()
    mark(k, 2)
    issue()
    k(f"s_waitcnt vmcnt({per})")
    mark(k, 3)
    if check: check()
    k("s_barrier")
    for n in range(2, NS): issue()
    mark(k, 4)
    nmain = NIT - NS
    k(f"s_mov_b32 s60, 0")
    k(f"L_{tag}_ploop:")
    k(f"s_waitcnt vmcnt({(NS-2)*per})")
    if check: check()
    k("s_barrier")
    issue()
    k("s_add_u32 s60, s60, 1")
    k(f"s_cmp_lt_u32 s60, {nmain}")
    k(f"s_cbranch_scc1 L_{tag}_ploop")
    for n in range(nmain, NIT-1):
        k(f"s_waitcnt vmcnt({(NIT-1-(n+1))*per})")
        k("s_barrier")


XB_OFF = ZW_OFF
FL_OFF = 0x2800000
def gemm_kernel(tag, fused=False, mega=False):
    g1 = tag == 'g1'
    k = Kern('gg_kernel' if fused else tag + '_kernel')
    ENDL = 'L_gg_end' if fused else f'L_{tag}_end'
    ASZ = 16384; STG = 32768; NS = 4 if STATIC else (5 if BAR2 else 3)
    NIT = 32 if g1 else 28
    BSTR = 7168 if g1 else 4096
    NB23 = 6
    if mega and g1:
        k("L_g1_entry:")
    elif not (fused and not g1):
        k(f"s_cmp_ge_u32 s2, 256")
        k(f"s_cbranch_scc1 {ENDL}")
    elif FUSE_GG == 2 and EARLY2:
        k("L_gbar:")
        k("s_lshl_b32 s3, s30, 5")
        k("s_add_u32 s3, s3, s29")
        k("s_lshl_b32 s3, s3, 7")
        k("L_g2start:")
        k("s_cmp_ge_u32 s28, 4")
        k("s_cbranch_scc1 L_g2_pro")
        k("s_waitcnt vmcnt(0)")
        k("s_barrier")
        k("s_cmp_eq_u32 s3, -1")
        k("s_cbranch_scc1 L_g2_pro")
        srd(k, 56, 26, 288*128, FG_OFF)
        k("v_mov_b32 v2, 1")
        k("v_mov_b32 v3, 0")
        k("v_cmp_eq_u32 vcc, 0, v0")
        k("s_and_saveexec_b64 s[44:45], vcc")
        k("s_cbranch_execz L_g2_nopubx")
        k("buffer_store_dword v2, v3, s[56:59], s3 offen sc0 sc1")
        k("L_g2_nopubx:")
        k("s_mov_b64 exec, -1")
        k("L_g2_pro:")
    elif FUSE_GG == 2:
        k("L_gbar:")
        k("s_waitcnt vmcnt(0)")
        k("s_barrier")
        srd(k, 36, 26, 288*128, FG_OFF)
        k("v_cmp_eq_u32 vcc, 0, v0")
        k("s_and_saveexec_b64 s[34:35], vcc")
        k("s_cbranch_execz L_gbar_noarr")
        k("s_lshl_b32 s33, s30, 5")
        k("s_add_u32 s33, s33, s29")
        k("s_lshl_b32 s33, s33, 7")
        k("v_mov_b32 v2, 1")
        k("v_mov_b32 v3, 0")
        k("buffer_store_dword v2, v3, s[36:39], s33 offen sc0 sc1")
        k("L_gbar_noarr:")
        k("s_mov_b64 exec, -1")
        k("L_g2start:")
    else:
        k("L_gbar:")
        k("s_load_dwordx2 s[26:27], s[0:1], 80")
        k("s_waitcnt vmcnt(0) lgkmcnt(0)")
        k("s_barrier")
        srd(k, 36, 26, 1024, BAR_OFF)
        k("v_cmp_eq_u32 vcc, 0, v0")
        k("s_and_saveexec_b64 s[34:35], vcc")
        k("s_cbranch_execz L_gbar_noarr")
        k("s_and_b32 s33, s2, 7")
        k("s_lshl_b32 s33, s33, 7")
        k("v_mov_b32 v2, 1")
        k("v_mov_b32 v3, 0")
        k("buffer_atomic_add v2, v3, s[36:39], s33 offen sc1")
        k("L_gbar_noarr:")
        k("s_mov_b64 exec, -1")
    stamp_begin(k)
    if g1:
        k("s_load_dwordx4 s[4:7], s[0:1], 32")
        k("s_load_dwordx2 s[24:25], s[0:1], 48")
    else:
        k("s_load_dwordx4 s[4:7], s[0:1], 48")
        k("s_load_dwordx2 s[24:25], s[0:1], 64")
    k("s_load_dwordx2 s[26:27], s[0:1], 80")
    k("v_and_b32 v1, 63, v0")
    k("v_lshrrev_b32 v2, 6, v0")
    k("v_readfirstlane_b32 s28, v2")
    if g1:
        k("s_and_b32 s30, s2, 1")
        k("s_lshl_b32 s30, s30, 2")
        k("s_bfe_u32 s52, s2, 0x20003")
        k("s_add_u32 s30, s30, s52")
        k("s_bfe_u32 s29, s2, 0x20001")
        k("s_mul_i32 s29, s29, 7")
        k("s_lshr_b32 s53, s2, 5")
        k("s_add_u32 s29, s29, s53")
        k("s_mov_b32 s63, 0")
        k("s_and_b32 s55, s2, 1")
        k(f"s_mul_i32 s55, s55, {16 if KHALF else 0}")
    else:
        if MAP2 == 1:
            k("s_bfe_u32 s62, s2, 0x10003")
            k("s_bfe_u32 s29, s2, 0x20001")
            k("s_lshl_b32 s29, s29, 2")
            k("s_bfe_u32 s52, s2, 0x20004")
            k("s_add_u32 s29, s29, s52")
            k("s_lshr_b32 s53, s2, 6")
            k("s_and_b32 s30, s2, 1")
            k("s_lshl_b32 s30, s30, 2")
            k("s_add_u32 s30, s30, s53")
        elif MAP2 == 2:
            k("s_bfe_u32 s62, s2, 0x10002")
            k("s_bfe_u32 s52, s2, 0x20003")
            k("s_lshr_b32 s53, s2, 5")
            k("s_and_b32 s30, s2, 1")
            k("s_lshl_b32 s30, s30, 2")
            k("s_add_u32 s30, s30, s52")
            k("s_bfe_u32 s34, s2, 0x10001")
            k("s_lshl_b32 s29, s34, 3")
            k("s_add_u32 s29, s29, s53")
        else:
            k("s_and_b32 s62, s2, 1")
            k("s_bfe_u32 s29, s2, 0x20001")
            k("s_lshl_b32 s29, s29, 2")
            k("s_bfe_u32 s52, s2, 0x20003")
            k("s_add_u32 s29, s29, s52")
            k("s_lshr_b32 s53, s2, 5")
            k("s_mov_b32 s30, s53")
        k("s_mov_b32 s55, 0")
        if MAP2 == 2:
            k("s_mul_i32 s55, s34, 7")
            k("s_add_u32 s55, s55, s53")
            k("s_lshl_b32 s55, s55, 1")
            k("s_add_u32 s55, s55, 1")
            k("s_cmp_ge_u32 s55, 28")
            k("s_cselect_b32 s34, 28, 0")
            k("s_sub_u32 s55, s55, s34")
        k("s_mul_i32 s63, s62, 28")
        srd(k, 56, 26, 256*64, FL_OFF) if False else None
    k("s_lshl_b32 s31, s29, 8")
    k("s_lshl_b32 s32, s30, 8")
    k("s_waitcnt lgkmcnt(0)")
    if g1:
        srd(k, 8, 4, S*F*2)
        srd(k, 12, 26, S*D*2, HN_OFF)
        srd(k, 16, 26, F*D*2, GT_OFF)
        srd(k, 20, 6, F*2)
        if not XSENT:
            srd(k, 44, 26, 256*64, FL_OFF)
            k("s_lshl_b32 s33, s2, 6")
            k("v_mov_b32 v2, 0")
            k("v_lshlrev_b32 v3, 2, v0")
            k("v_cmp_gt_u32 vcc, 16, v0")
            k("s_and_saveexec_b64 s[34:35], vcc")
            k(f"s_cbranch_execz L_{tag}_nozf")
            k("buffer_store_dword v2, v3, s[44:47], s33 offen sc0 sc1")
            k(f"L_{tag}_nozf:")
            k("s_mov_b64 exec, -1")
        k("s_cmp_lt_u32 s2, 224")
        k(f"s_cbranch_scc1 L_{tag}_main")
        def idle_fill():
            srd(k, 44, 26, 256*(16384 if XBF16 else 32768), 0x1E00000 if XB_SEP else VB_OFF)
            k("s_sub_u32 s33, s2, 224")
            k("s_lshl_b32 s33, s33, 17")
            k("v_lshlrev_b32 v2, 4, v0")
            for i in range(4): k(f"v_mov_b32 v{4+i}, -1")
            k("s_mov_b32 s34, 0")
            k(f"L_{tag}_clr:")
            k("buffer_store_dwordx4 v[4:7], v2, s[44:47], s33 offen sc0 sc1")
            k("s_add_u32 s33, s33, 8192")
            k("s_add_u32 s34, s34, 1")
            k("s_cmp_lt_u32 s34, 16")
            k(f"s_cbranch_scc1 L_{tag}_clr")
        if mega:
            k("s_cmp_ge_u32 s28, 4")
            k(f"s_cbranch_scc0 L_{tag}_nb23")
            for i in range(NB23): k("s_barrier")
            k(f"L_{tag}_nb23:")
        if fused and FUSE_GG == 2:
            idle_fill()
            k("s_waitcnt vmcnt(0)")
            k("s_barrier")
            srd(k, 36, 26, 288*128, FG_OFF)
            k("s_add_u32 s33, s2, 32")
            k("s_lshl_b32 s33, s33, 7")
            k("v_mov_b32 v2, 1")
            k("v_mov_b32 v3, 0")
            k("v_cmp_eq_u32 vcc, 0, v0")
            k("s_and_saveexec_b64 s[34:35], vcc")
            k(f"s_cbranch_execz L_{tag}_nofl")
            k("buffer_store_dword v2, v3, s[36:39], s33 offen sc0 sc1")
            k(f"L_{tag}_nofl:")
            k("s_mov_b64 exec, -1")
        if W1IDLE:
            k("s_sub_u32 s33, s2, 224")
            k("s_mul_i32 s33, s33, 112")
            k("v_mul_u32_u24 v3, 586, v0")
            k("v_lshrrev_b32 v3, 16, v3")
            k("v_mul_u32_u24 v4, 112, v3")
            k("v_sub_u32 v4, v0, v4")
            k("v_add_u32 v4, s33, v4")
            k("v_mul_u32_u24 v5, 4682, v4")
            k("v_lshrrev_b32 v5, 18, v5")
            k("v_mul_u32_u24 v6, 56, v5")
            k("v_sub_u32 v6, v4, v6")
            k("v_and_b32 v7, 1, v3")
            k("v_lshrrev_b32 v8, 1, v3")
            k("v_lshl_add_u32 v7, v7, 4, v8")
            k("v_lshl_add_u32 v5, v7, 6, v5")
            k("v_mul_u32_u24 v5, 7168, v5")
            k("v_lshl_add_u32 v2, v6, 7, v5")
            k("v_cmp_gt_u32 vcc, 448, v0")
            k("s_and_saveexec_b64 s[34:35], vcc")
            k(f"s_cbranch_execz L_{tag}_now1")
            k(f"s_mov_b32 s33, {W1IDLE*64*7168}")
            for i in range((16-W1IDLE)//2):
                k(f"buffer_load_dword v9, v2, s[8:11], s33 offen")
                k(f"s_add_u32 s33, s33, {2*64*7168}")
            k(f"L_{tag}_now1:")
            k("s_mov_b64 exec, -1")
        if W2PF:
            srd(k, 48, 24, F*S*2)
            k("s_sub_u32 s33, s2, 224")
            k("s_and_b32 s34, s33, 15")
            k("s_lshr_b32 s35, s33, 4")
            k(f"s_mul_i32 s35, s35, {1792*4096}")
            k("s_lshl_b32 s33, s34, 16")
            k("s_add_u32 s33, s33, s35")
            if W2WAVES == 8:
                k("v_lshlrev_b32 v2, 7, v0")
                for i in range(W2PF):
                    k(f"buffer_load_dword v9, v2, s[48:51], s33 offen")
                    k(f"s_add_u32 s33, s33, {16*65536}")
            else:
                k(f"s_cmp_ge_u32 s28, {W2WAVES}")
                k(f"s_cbranch_scc1 L_{tag}_now2")
                k("v_lshlrev_b32 v2, 7, v1")
                k(f"s_mul_i32 s34, s28, {8192*(8//W2WAVES)}")
                k("s_add_u32 s33, s33, s34")
                k("s_mov_b32 s35, 0")
                k(f"L_{tag}_w2l:")
                for q in range(8//W2WAVES):
                    k(f"s_add_u32 s34, s33, {8192*q}")
                    k(f"buffer_load_dword v9, v2, s[48:51], s34 offen")
                    k(f"s_waitcnt vmcnt({W2DEPTH})")
                k(f"s_add_u32 s33, s33, {16*65536}")
                k("s_add_u32 s35, s35, 1")
                k(f"s_cmp_lt_u32 s35, {W2PF}")
                k(f"s_cbranch_scc1 L_{tag}_w2l")
                k(f"L_{tag}_now2:")
        if XSENT and not (fused and FUSE_GG == 2): idle_fill()
        if fused and FUSE_GG == 2: k("s_waitcnt vmcnt(0)")
        if fused and FUSE_GG == 2 and EARLY2: k("s_mov_b32 s3, -1")
        stamp_end(k, tag, tid=0, slot=256, sfx='idle')
        k(f"s_branch {('L_g2start' if FUSE_GG == 2 else 'L_gbar') if fused else ENDL}")
        k(f"L_{tag}_main:")
    else:
        srd(k, 8, 4, F*S*2)
        srd(k, 12, 26, F*D*2, GT_OFF)
        srd(k, 16, 26, S*D*2, H_OFF)
        srd(k, 20, 6, S*2)
        srd(k, 48, 24, S*D*2)
        if not XSENT:
            k("s_getreg_b32 s54, hwreg(HW_REG_XCC_ID, 0, 4)")
            k("s_add_u32 s54, s54, 1")
            srd(k, 56, 26, 256*64, FL_OFF)
            k("s_lshl_b32 s33, s2, 6")
            k("v_mov_b32 v2, s54")
            k("v_mov_b32 v3, 0")
            k("v_cmp_eq_u32 vcc, 0, v0")
            k("s_and_saveexec_b64 s[34:35], vcc")
            k(f"s_cbranch_execz L_{tag}_nopub")
            k("buffer_store_dword v2, v3, s[56:59], s33 offen offset:4 sc0 sc1")
            k(f"L_{tag}_nopub:")
            k("s_mov_b64 exec, -1")
    if PRODFIRST:
        k("s_cmp_lt_u32 s28, 4")
        k(f"s_cbranch_scc1 L_{tag}_cons")
    else:
        k("s_cmp_ge_u32 s28, 4")
        k(f"s_cbranch_scc1 L_{tag}_prod")
    i_cons = len(k.l)
    k(f"L_{tag}_cons:")
    ACC = 8; X = 72; Y = 136; R = 200
    AA = [R+i for i in range(4)]; AB = [R+4+i for i in range(4)]
    BA = [R+8+i for i in range(4)]; BB = [R+12+i for i in range(4)]
    MISC = R + 16
    k("s_and_b32 s33, s28, 1")
    k("s_lshr_b32 s36, s28, 1")
    k("v_lshrrev_b32 v2, 4, v1")
    k("v_bfe_u32 v3, v1, 2, 2")
    k("v_and_b32 v4, 3, v1")
    k("v_lshl_add_u32 v5, v2, 2, v3")
    k("v_and_b32 v6, 7, v5")
    k("v_lshlrev_b32 v6, 1, v6")
    k("v_lshrrev_b32 v7, 1, v4")
    k("v_and_b32 v9, 1, v4")
    for (base, w, add) in ((BA, 's33', 0), (BB, 's36', ASZ)):
        k(f"s_lshl_b32 s35, {w}, 3")
        k("v_add_u32 v10, s35, v7")
        k("v_xor_b32 v10, v10, v6")
        k("v_lshlrev_b32 v10, 4, v10")
        k("v_lshl_add_u32 v10, v9, 3, v10")
        k("v_lshl_add_u32 v10, v5, 8, v10")
        if add: k(f"v_add_u32 v10, {add}, v10")
        k(f"v_mov_b32 v{base[0]}, v10")
        for t in range(1, 4): k(f"v_xor_b32 v{base[t]}, {32*t}, v10")
    for t in range(4):
        k(f"v_mov_b32 v{AA[t]}, v{BA[t]}"); k(f"v_mov_b32 v{AB[t]}, v{BB[t]}")
    BIAS = MISC
    k("v_and_b32 v2, 15, v1")
    k("v_lshlrev_b32 v2, 1, v2")
    k("s_lshl_b32 s37, s36, 7")
    k("s_add_u32 s37, s37, s31")
    for t in range(4):
        k(f"buffer_load_ushort v{BIAS+t}, v2, s[20:23], s37 offen offset:{32*t}")
    OV = MISC+4
    k("v_and_b32 v2, 15, v1")
    k("v_lshlrev_b32 v2, 11, v2")
    k("v_lshrrev_b32 v3, 4, v1")
    k(f"v_lshl_add_u32 v{OV}, v3, 4, v2")
    k("s_lshl_b32 s38, s29, 7")
    k("s_lshl_b32 s39, s36, 6")
    k("s_add_u32 s38, s38, s39")
    k("s_lshl_b32 s38, s38, 11")
    k("s_add_u32 s38, s38, s32")
    k("s_lshl_b32 s39, s33, 7")
    k("s_add_u32 s38, s38, s39")
    if not g1:
        HL = MISC+6
        NV = HL+16
        if OUT_TOUCH:
            k("s_lshl_b32 s39, s62, 16")
            k("s_add_u32 s39, s39, s38")
            k(f"buffer_load_dword v{NV}, v{OV}, s[48:51], s39 offen")
            NV += 1
    else:
        NV = MISC+5
    def reads(dst, buf=None):
        r = []
        for ks in range(2):
            b = dst + 32*ks; ko = 32*ks
            for t in range(4):
                if buf is None: regs = (AA[t], AB[t]); bo = 0
                else:
                    regs = (BA[t], BB[t]) if buf < 2 else (AA[t], AB[t]); bo = (buf % 2)*STG
                for (o, a) in ((0, regs[0]), (16, regs[1])):
                    r.append(f"ds_read_b64_tr_b16 {vr(b+o+4*t,2)}, v{a} offset:{bo+ko*256}")
                    r.append(f"ds_read_b64_tr_b16 {vr(b+o+4*t+2,2)}, v{a} offset:{bo+(ko+16)*256}")
        return r
    def mfmas(src):
        m = []
        for ks in range(2):
            b = src + 32*ks
            order = sorted([(td, tn) for td in range(4) for tn in range(4)], key=lambda x: (max(x), x))
            if FAKE32:
                for i in range(8):
                    a = ACC + 16*(i % 4)
                    m.append(f"{MF32} {vr(a,16)}, {vr(b+4*(i%4),4)}, {vr(b+16+4*((i//2)%4),4)}, {vr(a,16)}")
                continue
            for td, tn in order:
                a = ACC + 4*(4*tn+td)
                m.append(f"{MF16} {vr(a,4)}, {vr(b+4*td,4)}, {vr(b+16+4*tn,4)}, {vr(a,4)}")
        return m
    def sched(mf, rd, extra):
        out = []; ri = 0; ei = 0
        for i, m in enumerate(mf):
            out.append(m)
            if ri < len(rd):
                for _ in range(RPAT[i % len(RPAT)]):
                    if ri < len(rd): out.append(rd[ri]); ri += 1
            elif ei < len(extra):
                out.append(extra[ei]); ei += 1
        out += rd[ri:] + extra[ei:]
        return out
    def upd():
        e = [f"s_add_u32 s34, s34, {STG}", f"s_cmp_eq_u32 s34, {STG*NS}", "s_cselect_b32 s34, 0, s34"]
        e += [f"v_add_u32 v{AA[t]}, s34, v{BA[t]}" for t in range(4)]
        e += [f"v_add_u32 v{AB[t]}, s34, v{BB[t]}" for t in range(4)]
        return e
    for i in range(64): k(f"v_mov_b32 v{ACC+i}, 0")
    k("s_mov_b32 s34, 0")
    k("s_mov_b32 s35, 0")
    if fused and not g1 and FUSE_GG == 1: k("s_barrier")
    if mega and g1: k("s_barrier")
    mark(k, 1)
    k("s_barrier")
    mark(k, 2)
    if STATIC:
        for t in range(4):
            k(f"v_add_u32 v{AA[t]}, 65536, v{BA[t]}"); k(f"v_add_u32 v{AB[t]}, 65536, v{BB[t]}")
        for x in reads(X, 0): k(x)
        k(f"L_{tag}_cloop:")
        for u in range(4):
            cur, nxt = (X, Y) if u % 2 == 0 else (Y, X)
            k("s_waitcnt lgkmcnt(0)")
            k("s_barrier")
            ex = ["s_add_u32 s35, s35, 4", f"s_cmp_lt_u32 s35, {NIT-4}"] if u == 3 else []
            for x in sched(mfmas(cur), reads(nxt, (u+1) % 4), ex): k(x)
        k(f"s_cbranch_scc1 L_{tag}_cloop")
        for u in range(2):
            cur, nxt = (X, Y) if u % 2 == 0 else (Y, X)
            k("s_waitcnt lgkmcnt(0)")
            k("s_barrier")
            for x in sched(mfmas(cur), reads(nxt, u+1), []): k(x)
    else:
        for x in reads(X): k(x)
        for x in upd(): k(x)
        k(f"L_{tag}_cloop:")
        k("s_waitcnt lgkmcnt(0)")
        if LOOPSTAMP:
            k(f"s_cmp_eq_u32 s35, {LOOPSTAMP}")
            k(f"s_cbranch_scc0 L_{tag}_nolatch")
            for i in range(4): k(f"s_mov_b64 s[{96-20+2*i}:{97-20+2*i}], s[{66+2*i}:{67+2*i}]") if False else None
            k("s_sub_u32 s90, s68, s66"); k("s_sub_u32 s91, s70, s68"); k("s_sub_u32 s92, s72, s70")
            k("s_memtime s[82:83]"); k("s_waitcnt lgkmcnt(0)"); k("s_sub_u32 s93, s82, s72")
            k(f"L_{tag}_nolatch:")
        k("s_barrier")
        if LOOPSTAMP: k("s_memtime s[66:67]")
        for x in sched(mfmas(X), reads(Y), upd()): k(x)
        if LOOPSTAMP: k("s_memtime s[68:69]")
        k("s_waitcnt lgkmcnt(0)")
        if not BAR2: k("s_barrier")
        if LOOPSTAMP: k("s_memtime s[70:71]")
        for x in sched(mfmas(Y), reads(X), upd() + ["s_add_u32 s35, s35, 2", f"s_cmp_lt_u32 s35, {NIT-2}"]): k(x)
        if LOOPSTAMP: k("s_memtime s[72:73]")
        k(f"s_cbranch_scc1 L_{tag}_cloop")
    if LOOPSTAMP:
        k("s_waitcnt lgkmcnt(0)")
        for i in range(4):
            k(f"s_mov_b32 s{66+2*i}, s{90+i}"); k(f"s_mov_b32 s{67+2*i}, 0")
    XID = 3
    if not g1:
        if not XSENT:
            k(f"s_xor_b32 s42, s2, {8 if MAP2 == 1 else (4 if MAP2 == 2 else 1)}")
            k("s_lshl_b32 s39, s42, 6")
            k("v_mov_b32 v4, 0")
            k(f"buffer_load_dword v{XID}, v4, s[56:59], s39 offen offset:4 sc0 sc1")
        if fused and FUSE_GG == 2:
            srd(k, 56, 26, 288*128, FG_OFF)
            k("s_lshr_b32 s39, s2, 3")
            k("s_add_u32 s39, s39, 256")
            k("s_lshl_b32 s60, s39, 7")
            k("v_mov_b32 v4, 0")
            k(f"buffer_load_dword v{XID}, v4, s[56:59], s60 offen sc0 sc1")
        k("s_lshl_b32 s39, s62, 16")
        k("s_add_u32 s39, s39, s38")
        for tnl in range(1 if XSHARE else 2):
            for tp in range(2):
                k(f"s_add_u32 s40, s39, {tnl*16*2048 + tp*64}")
                k(f"buffer_load_dwordx4 {vr(HL+8*tnl+4*tp,4)}, v{OV}, s[16:19], s40 offen")
    k("s_waitcnt lgkmcnt(0)")
    k("s_barrier")
    for x in sched(mfmas(X), reads(Y, 3 if STATIC else None), []): k(x)
    k("s_waitcnt lgkmcnt(0)")
    for x in mfmas(Y): k(x)
    mark(k, 3)
    k("s_mov_b32 s40, 0xffff0000")
    T = X
    def pack_swap(P):
        k(f"v_permlane32_swap_b32 v{P}, v{P+2}")
        k(f"v_permlane32_swap_b32 v{P+1}, v{P+3}")
        k(f"v_permlane16_swap_b32 v{P}, v{P+2}")
        k(f"v_permlane16_swap_b32 v{P+1}, v{P+3}")
    def store_lines(P0, P1, tmp, so, srdreg):
        for i in range(4): k(f"v_mov_b32 v{tmp+i}, v{P0+i}")
        for i in range(4): k(f"v_mov_b32_dpp v{P0+i}, v{P1+i} row_ror:8 row_mask:0xf bank_mask:0xc")
        for i in range(4): k(f"v_mov_b32_dpp v{P1+i}, v{tmp+i} row_ror:8 row_mask:0xf bank_mask:0x3")
        fl = ST_G1 if g1 else ST_G2
        k(f"s_add_u32 s41, s38, {so}")
        k(f"buffer_store_dwordx4 {vr(P0,4)}, v{OVS}, s[{srdreg}:{srdreg+3}], s41 offen {fl}")
        k(f"s_add_u32 s41, s38, {so + 8*2048}")
        k(f"buffer_store_dwordx4 {vr(P1,4)}, v{OVS}, s[{srdreg}:{srdreg+3}], s41 offen {fl}")
    OVS = 3
    def set_ovs():
        k("v_and_b32 v2, 7, v1")
        k("v_lshlrev_b32 v2, 11, v2")
        k("v_bfe_u32 v3, v1, 3, 1")
        k("v_lshl_add_u32 v2, v3, 6, v2")
        k("v_lshrrev_b32 v3, 4, v1")
        k(f"v_lshl_add_u32 v{OVS}, v3, 4, v2")
    if g1:
        SH = (65536 if (fused and EARLY2) else 32768) if STATIC else (98304 if BAR2 else 65536)
        k("s_lshl_b32 s39, s28, 13")
        k(f"s_add_u32 s39, s39, {SH}")
        k("v_lshl_add_u32 v2, v1, 4, s39")
        for i in range(8): k(f"ds_write_b128 v2, {vr(ACC+32+4*i,4)} offset:{1024*i}")
        k("s_waitcnt vmcnt(0) lgkmcnt(0)")
        k("s_barrier")
        mark(k, 4)
        k(f"L_{tag}_epi:")
        for t in range(2): k(f"v_lshlrev_b32 v{BIAS+t}, 16, v{BIAS+t}")
        c0 = -2.0*math.log2(math.e)*math.sqrt(2.0/math.pi); c1 = c0*0.044715
        k("s_mov_b32 s40, 0xffff0000")
        k(f"s_mov_b32 s42, {f32(c1)}")
        k(f"v_mov_b32 v4, {f32(c0)}"); k(f"v_mov_b32 v5, {f32(c0)}")
        k(f"v_mov_b32 v6, 1.0"); k(f"v_mov_b32 v7, 1.0")
        set_ovs()
        for tn in range(2):
            for tp in range(2):
                P = T + 4*tp + 24*tn
                for q in range(4):
                    td = 2*tp + q//2
                    src = ACC + 4*(4*tn+td) + 2*(q % 2)
                    u, w = T+8+4*q, T+10+4*q
                    gelu_pair(k, src, u, w, BIAS+tn, P+q)
                pack_swap(P)
            store_lines(T+24*tn, T+24*tn+4, T+32, tn*16*2048, 16)
    else:
        if XSHARE:
            assert XSENT and XBF16
            SHX, SHY = 0, 16384
            k("s_waitcnt vmcnt(0)")
            srd(k, 44, 26, 256*16384, 0x1E00000 if XB_SEP else VB_OFF)
            k(f"s_xor_b32 s42, s2, {8 if MAP2 == 1 else (4 if MAP2 == 2 else 1)}")
            k("s_lshl_b32 s43, s42, 14")
            k("s_lshl_b32 s39, s28, 12")
            k("s_add_u32 s43, s43, s39")
            k("v_lshlrev_b32 v2, 4, v1")
            k("s_cmp_eq_u32 s62, 0")
            k(f"s_cbranch_scc1 L_{tag}_k0")
            for half, l2 in ((0, None), (32, f"L_{tag}_k0:")):
                if l2: k(l2)
                for i in range(16): k(f"{CVT} v{Y+32+i}, v{ACC+half+2*i}, v{ACC+half+2*i+1}")
                for i in range(4):
                    k(f"s_add_u32 s39, s43, {1024*i}")
                    k(f"buffer_store_dwordx4 {vr(Y+32+4*i,4)}, v2, s[44:47], s39 offen sc0 sc1")
                if half == 0:
                    for i in range(32): k(f"v_mov_b32 v{ACC+i}, v{ACC+32+i}")
                    k(f"v_mov_b32 v{BIAS}, v{BIAS+2}")
                    k(f"s_branch L_{tag}_k1")
            k(f"L_{tag}_k1:")
            k("s_lshl_b32 s39, s28, 12")
            k(f"v_add_u32 v3, s39, v2")
            for i in range(4): k(f"ds_write_b128 v3, {vr(ACC+16+4*i,4)} offset:{SHX+1024*i}")
            k("s_lshl_b32 s39, s62, 16")
            k("s_add_u32 s38, s38, s39")
            k("s_lshl_b32 s39, s28, 11")
            k(f"v_add_u32 v3, s39, v2")
            k("s_waitcnt vmcnt(0) lgkmcnt(0)" if XWAIT else "s_waitcnt lgkmcnt(0)")
            k("s_barrier")
            k("s_barrier")
            k(f"ds_read_b128 {vr(Y+40,4)}, v3 offset:{SHY}")
            k(f"ds_read_b128 {vr(Y+44,4)}, v3 offset:{SHY+1024}")
            k("s_waitcnt lgkmcnt(0)")
            mark(k, 4)
            k(f"L_{tag}_epi:")
            k("s_mov_b32 s40, 0xffff0000")
            k(f"v_lshlrev_b32 v{BIAS}, 16, v{BIAS}")
            if PERTURB: k(f"v_add_f32 v{BIAS}, {f32(PERTURB)}, v{BIAS}")
            set_ovs()
            for tp in range(2):
                P = T + 4*tp
                for q in range(4):
                    td = 2*tp + q//2
                    a_ = ACC + 4*td + 2*(q % 2); y = Y + 4*td + 2*(q % 2)
                    u, w = T+8+4*q, T+10+4*q
                    pk = Y + 40 + (4*td + 2*(q % 2))//2
                    k(f"v_lshlrev_b32 v{y}, 16, v{pk}")
                    k(f"v_and_b32 v{y+1}, s40, v{pk}")
                    k(f"v_pk_add_f32 {vr(a_,2)}, {vr(a_,2)}, {vr(y,2)}")
                    k(f"v_add_f32 v{u}, v{a_}, v{BIAS}")
                    k(f"v_add_f32 v{u+1}, v{a_+1}, v{BIAS}")
                    k(f"{CVT} v{P+q}, v{u}, v{u+1}")
                pack_swap(P)
                for q in range(4):
                    u, w = T+8+4*q, T+10+4*q
                    hp = HL+4*tp+q
                    k(f"v_lshlrev_b32 v{u}, 16, v{P+q}")
                    k(f"v_and_b32 v{u+1}, s40, v{P+q}")
                    k(f"v_lshlrev_b32 v{w}, 16, v{hp}")
                    k(f"v_and_b32 v{w+1}, s40, v{hp}")
                    k(f"v_pk_add_f32 {vr(u,2)}, {vr(u,2)}, {vr(w,2)}")
                    k(f"{CVT} v{P+q}, v{u}, v{u+1}")
            store_lines(T, T+4, T+32, 0, 48)
        else:
            k("s_waitcnt vmcnt(0)")
            srd(k, 44, 26, 256*(16384 if XBF16 else 32768), 0x1E00000 if XB_SEP else VB_OFF)
            if not XSENT: srd(k, 56, 26, 256*64, FL_OFF)
            k(f"s_xor_b32 s42, s2, {8 if MAP2 == 1 else (4 if MAP2 == 2 else 1)}")
            k(f"s_lshl_b32 s43, s42, {14 if XBF16 else 15}")
            k(f"s_lshl_b32 s39, s28, {12 if XBF16 else 13}")
            k("s_add_u32 s43, s43, s39")
            k("v_lshlrev_b32 v2, 4, v1")
            k("v_mov_b32 v4, 0")
            if fused and FUSE_GG == 2:
                k("s_mov_b32 s41, 0")
                k(f"L_{tag}_ffp:")
                k("v_readfirstlane_b32 s61, v3")
                k("s_add_u32 s41, s41, 1")
                k("s_cmp_ge_u32 s41, 0x20000")
                k(f"s_cbranch_scc1 L_{tag}_ffd")
                k("s_cmp_lg_u32 s61, 0")
                k(f"s_cbranch_scc1 L_{tag}_ffd")
                k("buffer_load_dword v3, v4, s[56:59], s60 offen sc0 sc1")
                k("s_waitcnt vmcnt(0)")
                k(f"s_branch L_{tag}_ffp")
                k(f"L_{tag}_ffd:")
            if not XSENT:
                k("s_lshl_b32 s39, s42, 6")
                k("s_mov_b32 s41, 0")
                k("v_readfirstlane_b32 s61, v3")
                k("s_cmp_eq_u32 s61, 0")
                k(f"s_cbranch_scc0 L_{tag}_xpolld")
                k(f"L_{tag}_xpoll:")
                k("buffer_load_dword v3, v4, s[56:59], s39 offen offset:4 sc0 sc1")
                k("s_waitcnt vmcnt(0)")
                k("v_readfirstlane_b32 s61, v3")
                k("s_add_u32 s41, s41, 1")
                k("s_cmp_ge_u32 s41, 0x40000")
                k(f"s_cbranch_scc1 L_{tag}_xpolld")
                k("s_cmp_eq_u32 s61, 0")
                k(f"s_cbranch_scc1 L_{tag}_xpoll")
                k(f"L_{tag}_xpolld:")
                k("s_cmp_eq_u32 s61, s54")
                k(f"s_cselect_b32 s61, {0 if FORCE_FAR else 1}, 0")
            def sends(flags, lab):
                k("s_cmp_eq_u32 s62, 0")
                k(f"s_cbranch_scc1 L_{tag}_k0{lab}")
                for half, l2 in ((0, None), (32, f"L_{tag}_k0{lab}:")):
                    if l2: k(l2)
                    if XBF16:
                        for i in range(16): k(f"{CVT} v{Y+32+i}, v{ACC+half+2*i}, v{ACC+half+2*i+1}")
                        for i in range(4):
                            k(f"s_add_u32 s39, s43, {1024*i}")
                            k(f"buffer_store_dwordx4 {vr(Y+32+4*i,4)}, v2, s[44:47], s39 offen {flags}")
                    else:
                        for i in range(8):
                            k(f"s_add_u32 s39, s43, {1024*i}")
                            k(f"buffer_store_dwordx4 {vr(ACC+half+4*i,4)}, v2, s[44:47], s39 offen {flags}")
                    if half == 0: k(f"s_branch L_{tag}_k1{lab}")
                k(f"L_{tag}_k1{lab}:")
            def handoff(stf, ldf, lab):
                sends(stf, lab)
                k("s_waitcnt vmcnt(0)")
                k("s_lshl_b32 s39, s42, 6")
                k("s_lshl_b32 s41, s28, 2")
                k("s_add_u32 s39, s39, s41")
                k("v_mov_b32 v3, 1")
                k("s_mov_b64 exec, 1")
                k(f"buffer_store_dword v3, v4, s[56:59], s39 offen offset:16 {stf}")
                k("s_lshl_b32 s39, s2, 6")
                k("s_add_u32 s39, s39, s41")
                k("s_mov_b32 s41, 0")
                k(f"L_{tag}_poll{lab}:")
                k(f"buffer_load_dword v3, v4, s[56:59], s39 offen offset:16 {ldf}")
                k("s_waitcnt vmcnt(0)")
                k("v_readfirstlane_b32 s43, v3")
                k("s_add_u32 s41, s41, 1")
                k("s_cmp_ge_u32 s41, 0x40000")
                k(f"s_cbranch_scc1 L_{tag}_polld{lab}")
                k("s_cmp_eq_u32 s43, 1")
                k(f"s_cbranch_scc0 L_{tag}_poll{lab}")
                k(f"L_{tag}_polld{lab}:")
                k("s_mov_b64 exec, -1")
                k(f"s_lshl_b32 s43, s2, {14 if XBF16 else 15}")
                k(f"s_lshl_b32 s39, s28, {12 if XBF16 else 13}")
                k("s_add_u32 s43, s43, s39")
                for i in range(4 if XBF16 else 8):
                    k(f"s_add_u32 s39, s43, {1024*i}")
                    k(f"buffer_load_dwordx4 {vr(Y+(32 if XBF16 else 0)+4*i,4)}, v2, s[44:47], s39 offen {ldf}")
            if XSENT:
                assert XBF16
                sends('sc0 sc1', 's')
                k("s_lshl_b32 s43, s2, 14")
                k("s_lshl_b32 s39, s28, 12")
                k("s_add_u32 s43, s43, s39")
                k("s_mov_b32 s41, 0")
                if XPRE: k("s_waitcnt vmcnt(0)")
                k(f"L_{tag}_spoll:")
                for i in range(4):
                    k(f"s_add_u32 s39, s43, {1024*i}")
                    k(f"buffer_load_dwordx4 {vr(Y+32+4*i,4)}, v2, s[44:47], s39 offen sc0 sc1")
                k("s_add_u32 s41, s41, 1")
                k("s_waitcnt vmcnt(0)")
                k(f"v_max3_u32 v3, v{Y+32}, v{Y+33}, v{Y+34}")
                for i in range(3, 15, 2): k(f"v_max3_u32 v3, v3, v{Y+32+i}, v{Y+32+i+1}")
                k(f"v_max_u32 v3, v3, v{Y+47}")
                k("v_cmp_eq_u32 vcc, -1, v3")
                k("s_nop 4")
                k("s_cmp_ge_u32 s41, 0x20000")
                k(f"s_cbranch_scc1 L_{tag}_spolld")
                k(f"s_cbranch_vccnz L_{tag}_spoll")
                k(f"L_{tag}_spolld:")
            else:
                k("s_cmp_eq_u32 s61, 1")
                k(f"s_cbranch_scc0 L_{tag}_far")
                handoff('', 'sc1', 'n')
                k(f"s_branch L_{tag}_xdone")
                k(f"L_{tag}_far:")
                handoff('sc0 sc1', 'sc0 sc1', 'f')
                k(f"L_{tag}_xdone:")
            k("s_cmp_eq_u32 s62, 0")
            k(f"s_cbranch_scc1 L_{tag}_kept")
            for i in range(32): k(f"v_mov_b32 v{ACC+i}, v{ACC+32+i}")
            k(f"v_mov_b32 v{BIAS}, v{BIAS+2}"); k(f"v_mov_b32 v{BIAS+1}, v{BIAS+3}")
            k(f"L_{tag}_kept:")
            mark(k, 4)
            k(f"v_lshlrev_b32 v{BIAS}, 16, v{BIAS}"); k(f"v_lshlrev_b32 v{BIAS+1}, 16, v{BIAS+1}")
            if PERTURB:
                k(f"v_add_f32 v{BIAS}, {f32(PERTURB)}, v{BIAS}"); k(f"v_add_f32 v{BIAS+1}, {f32(PERTURB)}, v{BIAS+1}")
            k("s_lshl_b32 s39, s62, 16")
            k("s_add_u32 s38, s38, s39")
            set_ovs()
            for tnl in range(2):
                for tp in range(2):
                    i0 = 4*tnl + 2*tp
                    if XSENT: pass
                    elif XBF16: k(f"s_waitcnt vmcnt({3 - i0//2})")
                    else:     k(f"s_waitcnt vmcnt({6 - i0 if i0 < 6 else 0})")
                    if i0 == 0: mark(k, 5)
                    P = T + 4*tp + 24*tnl
                    for q in range(4):
                        td = 2*tp + q//2
                        a = ACC + 4*(4*tnl+td) + 2*(q % 2); y = Y + 4*(4*tnl+td) + 2*(q % 2)
                        u, w = T+8+4*q, T+10+4*q
                        if XBF16:
                            pk = Y + 32 + (4*(4*tnl+td) + 2*(q % 2))//2
                            k(f"v_lshlrev_b32 v{y}, 16, v{pk}")
                            k(f"v_and_b32 v{y+1}, s40, v{pk}")
                        k(f"v_pk_add_f32 {vr(a,2)}, {vr(a,2)}, {vr(y,2)}")
                        if EMU_Y:
                            k(f"{CVT} v{w}, v{a}, v{a+1}")
                            k(f"v_lshlrev_b32 v{u}, 16, v{w}")
                            k(f"v_and_b32 v{u+1}, s40, v{w}")
                            k(f"v_add_f32 v{u}, v{u}, v{BIAS+tnl}")
                            k(f"v_add_f32 v{u+1}, v{u+1}, v{BIAS+tnl}")
                        else:
                            k(f"v_add_f32 v{u}, v{a}, v{BIAS+tnl}")
                            k(f"v_add_f32 v{u+1}, v{a+1}, v{BIAS+tnl}")
                        k(f"{CVT} v{P+q}, v{u}, v{u+1}")
                    pack_swap(P)
                    for q in range(4):
                        u, w = T+8+4*q, T+10+4*q
                        hp = HL+8*tnl+4*tp+q
                        k(f"v_lshlrev_b32 v{u}, 16, v{P+q}")
                        k(f"v_and_b32 v{u+1}, s40, v{P+q}")
                        k(f"v_lshlrev_b32 v{w}, 16, v{hp}")
                        k(f"v_and_b32 v{w+1}, s40, v{hp}")
                        k(f"v_pk_add_f32 {vr(u,2)}, {vr(u,2)}, {vr(w,2)}")
                        k(f"{CVT} v{P+q}, v{u}, v{u+1}")
                store_lines(T+24*tnl, T+24*tnl+4, T+32, tnl*16*2048, 48)
    stamp_end(k, tag)
    k(f"s_branch {'L_gbar' if (fused and g1) else ENDL}")
    i_prod = len(k.l)
    k(f"L_{tag}_prod:")
    if PPRIO: k(f"s_setprio {PPRIO}")
    k("s_sub_u32 s33, s28, 4")
    k("v_lshrrev_b32 v2, 4, v1")
    k("s_and_b32 s34, s33, 1")
    k("s_lshl_b32 s34, s34, 2")
    k("v_add_u32 v3, s34, v2")
    k("v_lshlrev_b32 v3, 1, v3")
    k("v_and_b32 v4, 15, v1")
    k("v_xor_b32 v3, v3, v4")
    k("v_lshlrev_b32 v3, 4, v3")
    k("v_lshl_add_u32 v8, v2, 11, v3")
    k(f"v_mul_u32_u24 v2, {BSTR}, v2")
    k("v_add_u32 v9, v2, v3")
    k("s_lshl_b32 s34, s33, 13")
    k("s_add_u32 s40, s32, s34")
    k(f"s_mul_i32 s34, s33, {4*BSTR}")
    k("s_add_u32 s41, s31, s34")
    k("s_lshl_b32 s42, s33, 10")
    k("s_mov_b32 s43, 0")
    k("s_add_u32 s46, s52, s53")
    k("s_mov_b32 s47, 0")
    if fused and (not g1) and FUSE_GG == 2: srd(k, 36, 26, 288*128, FG_OFF)
    if mega and g1:
        srd(k, 36, 26, 256*128, FH_OFF)
        k("v_and_b32 v11, 31, v1")
        k("v_lshlrev_b32 v11, 7, v11")
        for i in range(NB23): k("s_barrier")
    DF = fused and (not g1) and FUSE_GG == 2
    DH = mega and g1
    DFT = 1
    nissue = [0]
    def calc_stage(t, dst, tmp):
        if (not g1) and MAP2 == 2:
            k(f"s_add_u32 s{dst}, s52, s{t}")
            k(f"s_and_b32 s{dst}, s{dst}, 3")
            k(f"s_cmp_lt_u32 s{t}, 2")
            k(f"s_cselect_b32 s{dst}, 1, s{dst}")
            k(f"s_and_b32 s{tmp}, s{t}, 0xfffffffe")
            k(f"s_cmp_eq_u32 s{tmp}, 24")
            k(f"s_cselect_b32 s{tmp}, {NIT-21}, {NIT+3}")
            k(f"s_cmp_eq_u32 s{dst}, 0")
            k(f"s_cselect_b32 s{dst}, s{tmp}, {NIT-1}")
            k(f"s_add_u32 s{dst}, s{dst}, s{t}")
        else:
            k(f"s_add_u32 s{dst}, s46, s{t}")
            k(f"s_and_b32 s{dst}, s{dst}, 3")
            k(f"s_cmp_eq_u32 s{dst}, 0")
            k(f"s_cselect_b32 s{dst}, {3+NIT}, {NIT-1}")
            k(f"s_add_u32 s{dst}, s{dst}, s{t}")
        k(f"s_add_u32 s{dst}, s{dst}, s55")
        k(f"s_cmp_ge_u32 s{dst}, {2*NIT}")
        k(f"s_cselect_b32 s{tmp}, {2*NIT}, {NIT}")
        k(f"s_cmp_ge_u32 s{dst}, {NIT}")
        k(f"s_cselect_b32 s{tmp}, s{tmp}, 0")
        k(f"s_sub_u32 s{dst}, s{dst}, s{tmp}")
        if (not g1) and MAP2 == 2:
            k(f"s_cmp_ge_u32 s{dst}, {NIT}")
            k(f"s_cselect_b32 s{tmp}, {NIT}, 0")
            k(f"s_sub_u32 s{dst}, s{dst}, s{tmp}")
        if not KPERM: k(f"s_mov_b32 s{dst}, s{t}")
        if KWRAP: k(f"s_and_b32 s{dst}, s{dst}, {KWRAP-1}")
        k(f"s_add_u32 s{dst}, s{dst}, s63")
    def flag_off(stage, dst):
        if g1:
            k(f"s_bfe_u32 s{dst}, s{stage}, 0x30001")
            k(f"s_lshl_b32 s{dst}, s{dst}, 12")
            return
        k(f"s_lshr_b32 s{dst}, s{stage}, 1")
        k(f"s_lshl_b32 s{dst}, s{dst}, 7")
        k(f"s_add_u32 s{dst}, s{dst}, s57")
    def issue(part='AB', advance=True):
        n = nissue[0]; nissue[0] += 1
        if DF and not (EARLY2 and n < 4):
            if n == 0:
                k("s_lshl_b32 s57, s30, 12")
                k("v_mov_b32 v11, 0")
                calc_stage(47, 56, 59); flag_off(56, 54)
                k("buffer_load_dword v10, v11, s[36:39], s54 offen sc0 sc1")
                k("s_waitcnt vmcnt(0)")
            elif n == 1 and not EARLY2:
                k("s_waitcnt vmcnt(8)")
            k("v_readfirstlane_b32 s56, v10")
            k("s_cmp_lg_u32 s56, 0")
            k(f"s_cbranch_scc1 L_{tag}_fok{n}")
            k("s_mov_b32 s61, 0")
            k(f"L_{tag}_fpoll{n}:")
            k("s_sleep 4")
            k("buffer_load_dword v10, v11, s[36:39], s54 offen sc0 sc1")
            k("s_waitcnt vmcnt(0)")
            k("v_readfirstlane_b32 s56, v10")
            k("s_add_u32 s61, s61, 1")
            k("s_cmp_ge_u32 s61, 0x20000")
            k(f"s_cbranch_scc1 L_{tag}_fok{n}")
            k("s_cmp_eq_u32 s56, 0")
            k(f"s_cbranch_scc1 L_{tag}_fpoll{n}")
            k(f"L_{tag}_fok{n}:")
            k("s_add_u32 s61, s47, 1")
            calc_stage(61, 56, 59); flag_off(56, 54)
            k("buffer_load_dword v10, v11, s[36:39], s54 offen sc0 sc1")
        if DH and n >= 4:
            k("s_cmp_eq_u32 s33, 0")
            k(f"s_cbranch_scc0 L_{tag}_nh{n}")
            k("s_add_u32 s61, s47, 1")
            calc_stage(61, 56, 59); flag_off(56, 54)
            k("buffer_load_dword v10, v11, s[36:39], s54 offen sc0 sc1")
            k(f"L_{tag}_nh{n}:")
        calc_stage(47, 58, 59)
        k(f"s_mul_i32 s59, s58, {64*BSTR}")
        k(f"s_lshl_b32 s58, s58, 17")
        k("s_add_u32 s58, s58, s40")
        k("s_add_u32 s59, s59, s41")
        k("s_add_u32 s44, s43, s42")
        for m in range(4):
            if 'A' in part:
                k(f"s_add_u32 m0, s44, {4096*m}")
                k(f"s_add_u32 s45, s58, {m*16*2048}")
                k(f"buffer_load_dwordx4 v8, s[12:15], s45 offen {'sc1 ' if (DF or DH) else ''}lds")
            if 'B' in part:
                k(f"s_add_u32 m0, s44, {ASZ+4096*m}")
                k(f"s_add_u32 s45, s59, {m*16*BSTR}")
                k(f"buffer_load_dwordx4 v9, s[8:11], s45 offen {NT_B1 if g1 else NT_B2} lds")
        if not advance: return
        k("s_add_u32 s47, s47, 1")
        k(f"s_add_u32 s43, s43, {STG}")
        k(f"s_cmp_eq_u32 s43, {STG*NS}")
        k("s_cselect_b32 s43, 0, s43")
    if fused and not g1 and FUSE_GG == 1:
        k("s_cmp_eq_u32 s33, 0")
        k("s_cbranch_scc0 L_gbar_nopoll")
        srd(k, 36, 26, 1024, BAR_OFF)
        k("v_and_b32 v2, 7, v1")
        k("v_lshlrev_b32 v2, 7, v2")
        k("s_mov_b32 s34, 0")
        k("L_gbar_poll:")
        if PSLEEP: k(f"s_sleep {PSLEEP}")
        k(f"buffer_load_dword v3, v2, s[36:39], 0 offen {POLLF}")
        k("s_waitcnt vmcnt(0)")
        k("v_cmp_gt_u32 vcc, 32, v3")
        k("s_add_u32 s34, s34, 1")
        k("s_cmp_ge_u32 s34, 0x20000")
        k("s_cbranch_scc1 L_gbar_nopoll")
        k("s_cbranch_vccnz L_gbar_poll")
        k("L_gbar_nopoll:")
        k("s_barrier")
    if BAR2:
        per = 8
        mark(k, 1)
        issue(); mark(k, 2); issue()
        k(f"s_waitcnt vmcnt({per})")
        mark(k, 3)
        k("s_barrier")
        issue(); issue()
        mark(k, 4)
        k("s_mov_b32 s60, 0")
        k(f"L_{tag}_ploop:")
        k(f"s_waitcnt vmcnt({per})")
        k("s_barrier")
        issue(); issue()
        k("s_add_u32 s60, s60, 2")
        k(f"s_cmp_lt_u32 s60, {NIT-4}")
        k(f"s_cbranch_scc1 L_{tag}_ploop")
        k(f"s_waitcnt vmcnt({per})")
        k("s_barrier")
        k("s_waitcnt vmcnt(0)")
        k("s_barrier")
    else:
        ncheck = [0]
        def hpoll(lab):
            k("s_mov_b32 s61, 0")
            k(f"L_{tag}_hp{lab}:")
            k("v_cmp_eq_u32 vcc, 0, v10")
            k("s_add_u32 s61, s61, 1")
            k("s_cmp_ge_u32 s61, 0x20000")
            k(f"s_cbranch_scc1 L_{tag}_hd{lab}")
            k("s_nop 2")
            k(f"s_cbranch_vccz L_{tag}_hd{lab}")
            k("s_sleep 2")
            k("buffer_load_dword v10, v11, s[36:39], s54 offen sc0 sc1")
            k("s_waitcnt vmcnt(0)")
            k(f"s_branch L_{tag}_hp{lab}")
            k(f"L_{tag}_hd{lab}:")
        def hcheck():
            i = ncheck[0]; ncheck[0] += 1
            k("s_cmp_eq_u32 s33, 0")
            k(f"s_cbranch_scc0 L_{tag}_hc{i}")
            hpoll(f"c{i}")
            k(f"L_{tag}_hc{i}:")
        if DF and EARLY2:
            def fwait(reg, off, lab):
                k(f"v_readfirstlane_b32 s56, v{reg}")
                k("s_cmp_lg_u32 s56, 0")
                k(f"s_cbranch_scc1 L_{tag}_e{lab}")
                k("s_mov_b32 s61, 0")
                k(f"L_{tag}_ep{lab}:")
                k("s_sleep 4")
                k(f"buffer_load_dword v{reg}, v11, s[36:39], s{off} offen sc0 sc1")
                k("s_waitcnt vmcnt(0)")
                k(f"v_readfirstlane_b32 s56, v{reg}")
                k("s_add_u32 s61, s61, 1")
                k("s_cmp_ge_u32 s61, 0x20000")
                k(f"s_cbranch_scc1 L_{tag}_e{lab}")
                k("s_cmp_eq_u32 s56, 0")
                k(f"s_cbranch_scc1 L_{tag}_ep{lab}")
                k(f"L_{tag}_e{lab}:")
            k("s_lshl_b32 s57, s30, 12")
            k("v_mov_b32 v11, 0")
            k("s_mov_b32 s61, 0")
            calc_stage(61, 56, 59); flag_off(56, 54)
            k("s_mov_b32 s61, 1")
            calc_stage(61, 56, 59); flag_off(56, 64 if False else 35)
            k("buffer_load_dword v10, v11, s[36:39], s54 offen sc0 sc1")
            k("buffer_load_dword v12, v11, s[36:39], s35 offen sc0 sc1")
            issue('B'); issue('B')
            k("s_mov_b32 s47, 0"); k("s_mov_b32 s43, 0")
            k("s_waitcnt vmcnt(10)")
            k("s_barrier")
            k("s_waitcnt vmcnt(8)")
            if MAP2 == 2:
                k("s_cmp_eq_u32 s3, -1")
                k(f"s_cbranch_scc1 L_{tag}_notown")
                k("v_mov_b32 v10, 1")
                k("v_mov_b32 v12, 1")
                k(f"L_{tag}_notown:")
            fwait(10, 54, 'a')
            k("s_mov_b32 s61, 2")
            calc_stage(61, 56, 59); flag_off(56, 54)
            k("buffer_load_dword v10, v11, s[36:39], s54 offen sc0 sc1")
            mark(k, 1)
            issue('A')
            fwait(12, 35, 'b')
            issue('A')
            k("s_waitcnt vmcnt(4)")
            mark(k, 3)
            k("s_barrier")
            issue()
            nmain = NIT - 3
            k("s_mov_b32 s60, 0")
            k(f"L_{tag}_ploop:")
            k("s_waitcnt vmcnt(8)")
            k("s_barrier")
            issue()
            k("s_add_u32 s60, s60, 1")
            k(f"s_cmp_lt_u32 s60, {nmain}")
            k(f"s_cbranch_scc1 L_{tag}_ploop")
            for n_ in range(nmain, NIT-1):
                k(f"s_waitcnt vmcnt({(NIT-1-(n_+1))*8})")
                k("s_barrier")
        elif DH:
            issue('B'); issue('B')
            k("s_mov_b32 s47, 0"); k("s_mov_b32 s43, 0")
            k("s_cmp_eq_u32 s33, 0")
            k(f"s_cbranch_scc0 L_{tag}_hpre")
            k("s_mov_b32 s61, 0")
            calc_stage(61, 56, 59); flag_off(56, 54)
            k("s_mov_b32 s61, 1")
            calc_stage(61, 56, 59); flag_off(56, 57)
            k("v_mov_b32 v12, s54")
            k("v_mov_b32 v13, s57")
            k("v_cmp_gt_u32 vcc, 32, v1")
            k("v_cndmask_b32 v12, v13, v12, vcc")
            k("v_add_u32 v12, v12, v11")
            k("s_mov_b32 s61, 0")
            k(f"L_{tag}_hsp:")
            k("buffer_load_dword v10, v12, s[36:39], 0 offen sc0 sc1")
            k("s_waitcnt vmcnt(0)")
            k("v_cmp_eq_u32 vcc, 0, v10")
            k("s_add_u32 s61, s61, 1")
            k("s_cmp_ge_u32 s61, 0x20000")
            k(f"s_cbranch_scc1 L_{tag}_hsd")
            k("s_nop 2")
            k(f"s_cbranch_vccnz L_{tag}_hsp")
            k(f"L_{tag}_hsd:")
            k("s_mov_b32 s61, 2")
            calc_stage(61, 56, 59); flag_off(56, 54)
            k("buffer_load_dword v10, v11, s[36:39], s54 offen sc0 sc1")
            k(f"L_{tag}_hpre:")
            k("s_barrier")
            issue('A'); issue('A')
            k("s_waitcnt vmcnt(4)")
            mark(k, 3)
            hcheck()
            k("s_barrier")
            issue()
            NSe = 3; nmain = NIT - NSe
            k("s_mov_b32 s60, 0")
            k(f"L_{tag}_ploop:")
            k("s_waitcnt vmcnt(8)")
            hcheck()
            k("s_barrier")
            issue()
            k("s_add_u32 s60, s60, 1")
            k(f"s_cmp_lt_u32 s60, {nmain}")
            k(f"s_cbranch_scc1 L_{tag}_ploop")
            for n_ in range(nmain, NIT-1):
                k(f"s_waitcnt vmcnt({(NIT-1-(n_+1))*8})")
                k("s_barrier")
        else:
            producer_loop(k, tag, 8, issue, 3 if STATIC else NS, NIT)
    if g1 and CODEPF2:
        k("s_cmp_eq_u32 s33, 0")
        k(f"s_cbranch_scc0 L_{tag}_nonp")
        next_code_pf(k, 'g1', 'L_gbar' if fused else 'g2_kernel', 'L_text_end', 28, 120, 56, 1)
        k(f"L_{tag}_nonp:")
    if g1:
        k("s_and_b32 s34, s33, 1")
        k("s_lshr_b32 s36, s33, 1")
        k("v_and_b32 v2, 15, v1")
        k("v_lshlrev_b32 v2, 1, v2")
        k("s_lshl_b32 s37, s36, 7")
        k("s_add_u32 s37, s37, s31")
        for t in range(2):
            k(f"buffer_load_ushort v{BIAS+t}, v2, s[20:23], s37 offen offset:{64+32*t}")
        k("v_and_b32 v2, 15, v1")
        k("v_lshlrev_b32 v2, 11, v2")
        k("v_lshrrev_b32 v3, 4, v1")
        k(f"v_lshl_add_u32 v{OV}, v3, 4, v2")
        k("s_lshl_b32 s38, s29, 7")
        k("s_lshl_b32 s39, s36, 6")
        k("s_add_u32 s38, s38, s39")
        k("s_add_u32 s38, s38, 32")
        k("s_lshl_b32 s38, s38, 11")
        k("s_add_u32 s38, s38, s32")
        k("s_lshl_b32 s39, s34, 7")
        k("s_add_u32 s38, s38, s39")
        k("s_lshl_b32 s39, s33, 13")
        k(f"s_add_u32 s39, s39, {(65536 if (fused and EARLY2) else 32768) if STATIC else (98304 if BAR2 else 65536)}")
        k("v_lshl_add_u32 v2, v1, 4, s39")
        k("s_setprio 0")
        k("s_barrier")
        for i in range(8): k(f"ds_read_b128 {vr(ACC+4*i,4)}, v2 offset:{1024*i}")
        k("s_waitcnt vmcnt(0) lgkmcnt(0)")
        if STAMP:
            for i in range(5): k(f"v_mov_b32 v{120+i}, v{4+i}")
            k("v_mov_b32 v125, v8")
            stamp_end(k, tag, tid=256, slot=256, sfx='pp')
            k("s_mov_b64 exec, -1")
            for i in range(4): k(f"v_mov_b32 v{4+i}, v{120+i}")
            k("v_mov_b32 v8, v124")
        k(f"s_branch L_{tag}_epi")
    if (not g1) and XSHARE:
        SHX, SHY = 0, 16384
        k("s_setprio 0")
        k("s_and_b32 s34, s33, 1")
        k("s_lshr_b32 s36, s33, 1")
        k("v_and_b32 v2, 15, v1")
        k("v_lshlrev_b32 v2, 1, v2")
        k("s_lshl_b32 s37, s36, 7")
        k("s_add_u32 s37, s37, s31")
        k("s_lshl_b32 s39, s62, 6")
        k("s_add_u32 s37, s37, s39")
        k(f"buffer_load_ushort v{BIAS}, v2, s[20:23], s37 offen offset:32")
        k("v_and_b32 v2, 15, v1")
        k("v_lshlrev_b32 v2, 11, v2")
        k("v_lshrrev_b32 v3, 4, v1")
        k(f"v_lshl_add_u32 v{OV}, v3, 4, v2")
        k("s_lshl_b32 s38, s29, 7")
        k("s_lshl_b32 s39, s36, 6")
        k("s_add_u32 s38, s38, s39")
        k("s_lshl_b32 s39, s62, 5")
        k("s_add_u32 s38, s38, s39")
        k("s_add_u32 s38, s38, 16")
        k("s_lshl_b32 s38, s38, 11")
        k("s_add_u32 s38, s38, s32")
        k("s_lshl_b32 s39, s34, 7")
        k("s_add_u32 s38, s38, s39")
        for tp in range(2):
            k(f"s_add_u32 s40, s38, {tp*64}")
            k(f"buffer_load_dwordx4 {vr(HL+4*tp,4)}, v{OV}, s[16:19], s40 offen")
        srd(k, 44, 26, 256*16384, 0x1E00000 if XB_SEP else VB_OFF)
        k("s_lshl_b32 s43, s2, 14")
        k("s_lshl_b32 s39, s33, 12")
        k("s_add_u32 s43, s43, s39")
        k("v_lshlrev_b32 v2, 4, v1")
        k("s_lshl_b32 s39, s33, 12")
        k("v_add_u32 v3, s39, v2")
        k("s_barrier")
        for i in range(4): k(f"ds_read_b128 {vr(ACC+4*i,4)}, v3 offset:{SHX+1024*i}")
        k("s_mov_b32 s41, 0")
        k(f"L_{tag}_spoll:")
        for i in range(4):
            k(f"s_add_u32 s39, s43, {1024*i}")
            k(f"buffer_load_dwordx4 {vr(Y+32+4*i,4)}, v2, s[44:47], s39 offen sc0 sc1")
        k("s_add_u32 s41, s41, 1")
        k("s_waitcnt vmcnt(0)")
        k(f"v_max3_u32 v5, v{Y+32}, v{Y+33}, v{Y+34}")
        for i in range(3, 15, 2): k(f"v_max3_u32 v5, v5, v{Y+32+i}, v{Y+32+i+1}")
        k(f"v_max_u32 v5, v5, v{Y+47}")
        k("v_cmp_eq_u32 vcc, -1, v5")
        k("s_nop 4")
        k("s_cmp_ge_u32 s41, 0x20000")
        k(f"s_cbranch_scc1 L_{tag}_spolld")
        k(f"s_cbranch_vccnz L_{tag}_spoll")
        k(f"L_{tag}_spolld:")
        k("s_lshl_b32 s39, s33, 11")
        k("v_add_u32 v3, s39, v2")
        k(f"ds_write_b128 v3, {vr(Y+32,4)} offset:{SHY}")
        k(f"ds_write_b128 v3, {vr(Y+36,4)} offset:{SHY+1024}")
        k("s_waitcnt lgkmcnt(0)")
        k("s_barrier")
        k(f"s_branch L_{tag}_epi")
    stamp_end(k, tag, tid=256, slot=256, sfx='p')
    if PRODFIRST and not fused:
        k(f"s_branch {ENDL}")
        k.l = k.l[:i_cons] + k.l[i_prod:] + k.l[i_cons:i_prod]
    if fused and g1:
        return k, NV, STG*NS
    k(f"{ENDL}:")
    k("s_endpgm")
    return k, NV, STG*NS

def gelu_pair(k, src, u, w, bias, dst):
    if EMU_U:
        k(f"{CVT} v{w}, v{src}, v{src+1}")
        k(f"v_lshlrev_b32 v{u}, 16, v{w}")
        k(f"v_and_b32 v{u+1}, s40, v{w}")
        k(f"v_add_f32 v{u}, v{u}, v{bias}")
        k(f"v_add_f32 v{u+1}, v{u+1}, v{bias}")
        k(f"{CVT} v{w}, v{u}, v{u+1}")
        k(f"v_lshlrev_b32 v{u}, 16, v{w}")
        k(f"v_and_b32 v{u+1}, s40, v{w}")
    else:
        k(f"v_add_f32 v{u}, v{src}, v{bias}")
        k(f"v_add_f32 v{u+1}, v{src+1}, v{bias}")
    k(f"v_pk_mul_f32 {vr(w,2)}, {vr(u,2)}, {vr(u,2)}")
    k(f"v_pk_fma_f32 {vr(w,2)}, {vr(w,2)}, s[42:43], {vr(4,2)} op_sel_hi:[1,0,1]")
    k(f"v_pk_mul_f32 {vr(w,2)}, {vr(w,2)}, {vr(u,2)}")
    k(f"v_exp_f32 v{w}, v{w}")
    k(f"v_exp_f32 v{w+1}, v{w+1}")
    k(f"s_nop 0")
    k(f"v_pk_add_f32 {vr(w,2)}, {vr(w,2)}, {vr(6,2)}")
    k(f"v_rcp_f32 v{w}, v{w}")
    k(f"v_rcp_f32 v{w+1}, v{w+1}")
    k(f"s_nop 0")
    k(f"v_pk_mul_f32 {vr(w,2)}, {vr(w,2)}, {vr(u,2)}")
    k(f"{CVT} v{dst}, v{w}, v{w+1}")

RPAT = [2, 1]
FUSE_GG = 2
FUSE23 = 1
FUSE_ALL = 0
EARLY2 = 1
FILL1 = 1
FILLPOS = 2
W2WAVES = 4
W2DEPTH = 0
XPRE = 1
PRODFIRST = 0
FIRSTPF = 0
CODEPF2 = 1
WJOB = 2
LN_FUSE = 1
WEARLY = 1
W1IDLE = 0
EMU_LN = 0
EMU_L2 = 0
NT_B1 = ''
NT_B2 = ''
NT_X = ''
NT_W = ''
KHALF = 1
XSENT = 1
XSHARE = 0
XWAIT = 1
XBF16 = 1
EMU_Y = 0
PERTURB = 0
PSLEEP = 4
POLLF = 'sc0 sc1'
STATIC = 1
LOOPSTAMP = 0
BAR2 = 0
FAKE32 = 0
MAP2 = 2
XB_SEP = 1
FORCE_FAR = 0
PPRIO = 3
PFD = 0
KPERM = 1
FAKE16 = 0
NS1 = 3
NS2 = 3
KWRAP = 0
W2PF = 7
EMU_U = 0
RPG1 = 3
RPG2 = 4
def gen_mega():
    k0, nv0, l0 = gen_p2(True, True)
    k1, nv1, l1 = gemm_kernel('g1', True, True)
    k2, nv2, l2 = gemm_kernel('g2', True, True)
    k0.l += k1.l + k2.l
    return k0, 256, max(l0, l1, l2)
def gen_gg():
    k1, nv1, l1 = gemm_kernel('g1', True)
    k2, nv2, l2 = gemm_kernel('g2', True)
    k1.l += k2.l
    return k1, max(nv1, nv2), max(l1, l2)
def gen_g1(): return gemm_kernel('g1')
def gen_g2(): return gemm_kernel('g2')

KERNELS = [('p1_kernel', gen_p1, (256,1,1), (256,1,1)), ('p2_kernel', gen_p2, (256,1,1), (256,1,1)), ('p3_kernel', gen_p3, (256,1,1), (256,1,1)),
 ('g1_kernel', gen_g1, (256,1,1), (512,1,1)), ('g2_kernel', gen_g2, (256,1,1), (512,1,1))]

HEADER = """;
; Pipeline (S=2048 tokens, D=1024 channels, F=3584); all FFT stages are 32-point DFTs on bf16 MFMA with fp32 accumulation:
;   p1  : LayerNorm(x), two real rows packed as one complex row, 1024-point FFT along D; filter W transposed into column blocks;
;   p23 : phase A: 2048-point FFT along S (even/odd halves, DC and Nyquist columns packed), multiply by W, inverse FFT
;         p1 fills the blocks with a marker, each workgroup re-reads its block until no marker is left (bounded spin).
; Workgroup -> tile maps assume ids congruent mod 8 share an L2 for speed only; correctness does not depend on placement.
"""

def build_all(kernels=None):
    ks = []
    if kernels is None:
        kernels = list(KERNELS[:3]) + [('gg_kernel', gen_gg, (256,1,1), (512,1,1))] if FUSE_GG else list(KERNELS)
        if FUSE23: kernels = [kernels[0], ('p23_kernel', gen_p23, (256,1,1), (256,1,1))] + list(kernels[3:])
        if FUSE_ALL: kernels = [kernels[0], ('mega_kernel', gen_mega, (256,1,1), (512,1,1))]
    for name, fn, grid, block in kernels:
        if W1PF and name in ('p2_kernel', 'p3_kernel'): block = (320, 1, 1)
        if FIRSTPF and name == 'p3_kernel': block = (320, 1, 1)
        k, nv, lds = fn()
        if ST_ALL:
            k.l = [ (x + ' ' + ST_ALL) if ('buffer_store' in x and 'sc1' not in x and 'sc0' not in x and ' nt' not in x) else x for x in k.l]
        if name.startswith('g'):
            if NO_DMA: k.l = [x for x in k.l if not ('offen lds' in x)]
            if NO_MFMA: k.l = [x for x in k.l if 'v_mfma' not in x]
            if NO_ADV: k.l = [x for x in k.l if not (x.strip().startswith('s_add_u32 s40, s40,') or x.strip().startswith('s_add_u32 s41, s41,'))]
            if NO_A: k.l = [x for x in k.l if not ('s[12:15]' in x and 'offen lds' in x)]
            if NO_B: k.l = [x for x in k.l if not ('s[8:11]' in x and 'offen lds' in x)]
            if NO_BAR: k.l = [x for x in k.l if 's_barrier' not in x]
            if NO_READ: k.l = [x for x in k.l if 'ds_read_b64_tr' not in x]
        ks.append((name, k, nv, lds, grid, block))
    hdr = open('sequential_preLN__spectral_gfnet__mixer_token_mlp__prompt.s.ref').read().split('; Override launch')[0]
    s = hdr + HEADER
    for name, k, nv, lds, grid, block in ks:
        s += f"; @launch kernel={name} grid=({grid[0]},{grid[1]},{grid[2]}) block=({block[0]},{block[1]},{block[2]}) lds={lds}\n"
    s += '.amdgcn_target "amdgcn-amd-amdhsa--gfx950"\n.text\n'
    for name, k, nv, lds, grid, block in ks: s += k.text()
    s += 'L_text_end:\n'
    s += '.section .rodata,"a"\n'
    for name, k, nv, lds, grid, block in ks: s += descriptor(name, nv)
    return s, ks

if __name__ == '__main__':
    s, ks = build_all()
    open(sys.argv[1] if len(sys.argv) > 1 else 'out.s', 'w').write(s)
    print('written', len(s), 'bytes')
```

```python
import sys, math, struct
sys.path.insert(0, 'work')
from asmlib import *

ZW_OFF = 0x0          ; ZW_SIZE = 257*32768
ZD_OFF = 0x0 ; WB_OFF = 0x480000
VB_OFF = 0x900000     ; VB_BLK = 256*64
H_OFF  = 0xE00000
HN_OFF = 0x1200000
GT_OFF = 0x1600000
BAR_OFF = 0x2810000
FG_OFF = 0x2820000
FH_OFF = 0x2830000
WS_USED = 0x1D00000
S, D, F = 2048, 1024, 3584

def f32(x):
    return '0x%08x' % struct.unpack('<I', struct.pack('<f', x))[0]

CVT = 'v_cvt_pk_bf16_f32'
STAMP = False
NO_DMA = False
NO_MFMA = False
NO_READ = False
NO_BAR = False
NO_ADV = False
NO_A = False
NO_B = False
STAMP_OFF = 0x3000000
KIDX = {'p1':0,'p2':1,'p3':2,'g1':3,'g2':4}
NMARK = 8
def mark(k, i):
    if STAMP and not (LOOPSTAMP and k.name.startswith('g') and 1 <= i <= 4): k(f"s_memrealtime s[{64+2*i}:{65+2*i}]")
def stamp_begin(k):
    if STAMP:
        for i in range(1, NMARK): k(f"s_mov_b64 s[{64+2*i}:{65+2*i}], 0")
        k("s_memrealtime s[64:65]")
        k("s_memtime s[94:95]")
def stamp_end(k, tag, tid=0, slot=0, sfx=''):
    if not STAMP: return
    mark(k, 6)
    k("s_waitcnt vmcnt(0) lgkmcnt(0)")
    mark(k, 7)
    k("s_memtime s[84:85]")
    k("s_load_dwordx2 s[88:89], s[0:1], 80")
    k("s_waitcnt lgkmcnt(0)")
    k(f"s_add_u32 s88, s88, {STAMP_OFF + KIDX[tag]*65536}")
    k("s_addc_u32 s89, s89, 0")
    k(f"s_add_u32 s87, s2, {slot}")
    k("s_lshl_b32 s87, s87, 7")
    k("v_mov_b32 v8, s87")
    k(f"v_cmp_eq_u32 vcc, {tid}, v0" if tid <= 64 else f"v_cmp_eq_u32 vcc, {hex(tid)}, v0")
    k("s_and_saveexec_b64 s[86:87], vcc")
    k(f"s_cbranch_execz L_{tag}_nostamp{sfx}")
    for i in range(0, NMARK, 2):
        for j in range(4): k(f"v_mov_b32 v{4+j}, s{64+2*i+j}")
        k(f"global_store_dwordx4 v8, v[4:7], s[88:89] offset:{8*i}")
        k("s_nop 1")
    k("v_mov_b32 v4, s94"); k("v_mov_b32 v5, s95"); k("v_mov_b32 v6, s84"); k("v_mov_b32 v7, s85")
    k("global_store_dwordx4 v8, v[4:7], s[88:89] offset:64")
    k("s_getreg_b32 s84, hwreg(HW_REG_XCC_ID, 0, 4)")
    k("s_nop 1")
    k("v_mov_b32 v4, s84")
    k("global_store_dword v8, v4, s[88:89] offset:80")
    k(f"L_{tag}_nostamp{sfx}:")
    k("s_mov_b64 exec, -1")

MF32 = 'v_mfma_f32_32x32x16_bf16'

CODEPF = 1
W1PF = 0
W1PF0 = 0
W1L2 = 0
ST_FLAGS = ''
ST_ALL = ''
ST_P1 = 'sc1'
ST_P2 = 'sc1'
ST_P3 = 'sc1'
ST_G1 = 'sc1'
ST_G2 = 'nt'
OUT_TOUCH = 0
def code_prefetch(k, tag, first_label, last_label, vtmp, stmp, nwaves_cond=None):
    if not CODEPF: return
    k(f"s_getpc_b64 s[{stmp}:{stmp+1}]")
    k(f"L_{tag}_pc:")
    k(f"s_add_u32 s{stmp}, s{stmp}, {first_label}-L_{tag}_pc")
    k(f"s_addc_u32 s{stmp+1}, s{stmp+1}, 0")

WS_BASE = 0
def srd(k, s, base, size, off=0):
    if base == 26: off += WS_BASE
    if off:
        k(f"s_add_u32 s{s}, s{base}, {hex(off)}")
        k(f"s_addc_u32 s{s+1}, s{base+1}, 0")
    else:
        k(f"s_mov_b32 s{s}, s{base}")
        k(f"s_mov_b32 s{s+1}, s{base+1}")
    k(f"s_mov_b32 s{s+2}, {hex(size)}")
    k(f"s_mov_b32 s{s+3}, 0x20000")

SEQ = [(r, c) for r in range(4) for c in range(4)]

def rot_setup(k, vA, t):
    k(f"v_mul_f32 v{t+4}, {f32(5.0)}, v{vA}")
    k(f"v_cos_f32 v{t}, v{vA}")
    k(f"v_sin_f32 v{t+1}, v{vA}")
    k(f"v_cos_f32 v{t+2}, v{t+4}")
    k(f"v_sin_f32 v{t+3}, v{t+4}")

def rot(k, dst, src, st, tmp, sign):
    k(f"v_pk_mul_f32 {vr(tmp,2)}, {vr(src,2)}, {vr(st,2)} op_sel_hi:[1,0]")
    neg = "neg_lo:[0,1,0]" if sign > 0 else "neg_hi:[0,1,0]"
    k(f"v_pk_fma_f32 {vr(dst,2)}, {vr(src,2)}, {vr(st,2)}, {vr(tmp,2)} op_sel:[1,1,0] op_sel_hi:[0,1,1] {neg}")

def gen_matrix(k, Mr, Mi, vA, vB, t):
    rot_setup(k, vA, t)
    cur = [t+6, t+8]
    k(f"v_cos_f32 v{cur[0]}, v{vB}")
    k(f"v_sin_f32 v{cur[0]+1}, v{vB}")
    k("s_nop 0")
    for i, (r, c) in enumerate(SEQ):
        a_, b_ = cur[i % 2], cur[(i+1) % 2]
        if i < 15: rot(k, b_, a_, t+2 if c == 3 else t, t+4, +1)
        k(f"{CVT} v{Mr+i}, v{a_}, v{a_+1}")
        k(f"{CVT} v{Mi+i}, -v{a_+1}, v{a_}")

def gen_twiddle(k, tw, vA, vB, t, scale=None):
    rot_setup(k, vA, t)
    k(f"v_cos_f32 v{tw}, v{vB}")
    k(f"v_sin_f32_e64 v{tw+1}, -v{vB}")
    if scale is not None:
        k(f"v_mul_f32 v{tw}, {f32(scale)}, v{tw}")
        k(f"v_mul_f32 v{tw+1}, {f32(scale)}, v{tw+1}")
    else: k("s_nop 0")
    for i, (r, c) in enumerate(SEQ):
        if i < 15: rot(k, tw+2*(i+1), tw+2*i, t+2 if c == 3 else t, t+4, -1)

def stage(k, typ, Dr, Di, data, Mr, Mi, first=True):
    for r in range(4):
        for (Dx, M) in ((Dr, Mr), (Di, Mi)):
            c = '0' if (r == 0 and first) else vr(Dx, 16)
            if typ == 'A': k(f"{MF32} {vr(Dx,16)}, {vr(data+4*r,4)}, {vr(M+4*r,4)}, {c}")
            else:          k(f"{MF32} {vr(Dx,16)}, {vr(M+4*r,4)}, {vr(data+4*r,4)}, {c}")

def cmul_pack(k, Dr, Di, w, out, t, conj=False):
    for j in range(16):
        o = t + 2*(j % 4); jp = j & ~1; x = j & 1
        k(f"v_pk_mul_f32 {vr(o,2)}, {vr(w+2*j,2)}, {vr(Dr+jp,2)} op_sel:[0,{x}] op_sel_hi:[1,{x}]")
        k(f"v_pk_fma_f32 {vr(o,2)}, {vr(w+2*j,2)}, {vr(Di+jp,2)}, {vr(o,2)} op_sel:[1,{x},0] op_sel_hi:[0,{x},1] neg_lo:[1,0,0]")
        if j >= 1:
            po = t + 2*((j-1) % 4); n = '-' if conj else ''
            k(f"{CVT} v{out+j-1}, v{po}, {n}v{po+1}")
    po = t + 2*(15 % 4); n = '-' if conj else ''
    k(f"{CVT} v{out+15}, v{po}, {n}v{po+1}")

def wave_reduce2(k, a, b):
    for m in ("quad_perm:[1,0,3,2] row_mask:0xf", "quad_perm:[2,3,0,1] row_mask:0xf", "row_half_mirror row_mask:0xf",
              "row_mirror row_mask:0xf", "row_bcast:15 row_mask:0xa", "row_bcast:31 row_mask:0xc"):
        k(f"v_add_f32_dpp v{a}, v{a}, v{a} {m} bank_mask:0xf")
        k(f"v_add_f32_dpp v{b}, v{b}, v{b} {m} bank_mask:0xf")

def tree_sum(k, X, n, t, op='add'):
    acc = [t, t+2, t+4, t+6]
    for i in range(4):
        k(f"v_pk_add_f32 {vr(acc[i],2)}, {vr(X+2*i,2)}, {vr(X+2*(i+4),2)}")
    for i in range(8, n):
        k(f"v_pk_add_f32 {vr(acc[i%4],2)}, {vr(acc[i%4],2)}, {vr(X+2*i,2)}")
    k(f"v_pk_add_f32 {vr(acc[0],2)}, {vr(acc[0],2)}, {vr(acc[1],2)}")
    k(f"v_pk_add_f32 {vr(acc[2],2)}, {vr(acc[2],2)}, {vr(acc[3],2)}")
    k(f"v_pk_add_f32 {vr(acc[0],2)}, {vr(acc[0],2)}, {vr(acc[2],2)}")

def ln_scalars(k, t, twice=False):
    k(f"v_mul_f32 v{t}, {f32(1/1024)}, v{t}")
    k(f"v_mul_f32 v{t+1}, {f32(1/1024)}, v{t+1}")
    if twice:
        k(f"v_add_f32 v{t+2}, {f32(1e-5)}, v{t}")
        k(f"v_add_f32 v{t+3}, {f32(1e-5)}, v{t+1}")
        k(f"v_rsq_f32 v{t+2}, v{t+2}")
        k(f"v_rsq_f32 v{t+3}, v{t+3}")
        k("s_nop 0")
        k(f"v_mul_f32 v{t}, v{t}, v{t+2}")
        k(f"v_mul_f32 v{t+1}, v{t+1}, v{t+3}")
        k(f"v_mul_f32 v{t}, v{t}, v{t+2}")
        k(f"v_mul_f32 v{t+1}, v{t+1}, v{t+3}")
        k(f"v_add_f32 v{t}, {f32(1e-5)}, v{t}")
        k(f"v_add_f32 v{t+1}, {f32(1e-5)}, v{t+1}")
        k(f"v_rsq_f32 v{t}, v{t}")
        k(f"v_rsq_f32 v{t+1}, v{t+1}")
        k("s_nop 0")
        k(f"v_mul_f32 v{t}, v{t}, v{t+2}")
        k(f"v_mul_f32 v{t+1}, v{t+1}, v{t+3}")
        k(f"v_mul_f32 v{t+12}, v{t+12}, v{t}")
        k(f"v_mul_f32 v{t+13}, v{t+13}, v{t+1}")
        return
    if EMU_LN:
        k(f"{CVT} v{t+2}, v{t}, v{t+1}")
        k(f"v_lshlrev_b32 v{t}, 16, v{t+2}")
        k(f"v_and_b32 v{t+1}, 0xffff0000, v{t+2}")
    k(f"v_add_f32 v{t}, {f32(1e-5)}, v{t}")
    k(f"v_add_f32 v{t+1}, {f32(1e-5)}, v{t+1}")
    if EMU_LN:
        k(f"{CVT} v{t+2}, v{t}, v{t+1}")
        k(f"v_lshlrev_b32 v{t}, 16, v{t+2}")
        k(f"v_and_b32 v{t+1}, 0xffff0000, v{t+2}")
        k(f"v_sqrt_f32 v{t}, v{t}")
        k(f"v_sqrt_f32 v{t+1}, v{t+1}")
        k(f"s_nop 0")
        k(f"{CVT} v{t+2}, v{t}, v{t+1}")
        k(f"v_lshlrev_b32 v{t}, 16, v{t+2}")
        k(f"v_and_b32 v{t+1}, 0xffff0000, v{t+2}")
        k(f"v_rcp_f32 v{t}, v{t}")
        k(f"v_rcp_f32 v{t+1}, v{t+1}")
    else:
        k(f"v_rsq_f32 v{t}, v{t}")
        k(f"v_rsq_f32 v{t+1}, v{t+1}")
    k(f"s_nop 0")
    k(f"v_mul_f32 v{t+12}, v{t+12}, v{t}")
    k(f"v_mul_f32 v{t+13}, v{t+13}, v{t+1}")

def ln_mean(k, t, sTmp):
    k(f"v_mul_f32 v{t}, {f32(1/1024)}, v{t}")
    k(f"v_mul_f32 v{t+1}, {f32(1/1024)}, v{t+1}")
    if EMU_LN:
        k(f"{CVT} v{t+2}, v{t}, v{t+1}")
        k(f"v_readlane_b32 s{sTmp}, v{t}, 63")
        k(f"v_readlane_b32 s{sTmp+1}, v{t+1}, 63")
        k(f"v_lshlrev_b32 v{t+12}, 16, v{t+2}")
        k(f"v_and_b32 v{t+13}, 0xffff0000, v{t+2}")
    else:
        k(f"v_mov_b32 v{t+12}, v{t}")
        k(f"v_mov_b32 v{t+13}, v{t+1}")
        k(f"v_readlane_b32 s{sTmp}, v{t}, 63")
        k(f"v_readlane_b32 s{sTmp+1}, v{t+1}, 63")

def ln_stats_xrow(k, X, t, sM, sR, sTmp):
    tree_sum(k, X, 16, t)
    wave_reduce2(k, t, t+1)
    ln_mean(k, t, sTmp)
    acc = [t, t+2]; tmp = [t+4, t+6, t+8, t+10]
    for i in range(16):
        d = tmp[i % 4]
        k(f"v_pk_add_f32 {vr(d,2)}, {vr(X+2*i,2)}, {sr(sTmp,2)} neg_lo:[0,1] neg_hi:[0,1]")
        a = acc[i % 2]
        if i < 2: k(f"v_pk_mul_f32 {vr(a,2)}, {vr(d,2)}, {vr(d,2)}")
        else:     k(f"v_pk_fma_f32 {vr(a,2)}, {vr(d,2)}, {vr(d,2)}, {vr(a,2)}")
    k(f"v_pk_add_f32 {vr(t,2)}, {vr(t,2)}, {vr(t+2,2)}")
    wave_reduce2(k, t, t+1)
    ln_scalars(k, t)
    k(f"v_readlane_b32 s{sR}, v{t}, 63")
    k(f"v_readlane_b32 s{sR+1}, v{t+1}, 63")
    k(f"v_readlane_b32 s{sM}, v{t+12}, 63")
    k(f"v_readlane_b32 s{sM+1}, v{t+13}, 63")

def gen_p1():
    k = Kern('p1_kernel')
    k("s_cmp_ge_u32 s2, 256")
    k("s_cbranch_scc1 L_p1_end")
    stamp_begin(k)
    k("s_load_dwordx4 s[4:7], s[0:1], 0")
    k("s_load_dwordx2 s[24:25], s[0:1], 16")
    k("s_load_dwordx2 s[60:61], s[0:1], 32")
    k("s_load_dwordx2 s[26:27], s[0:1], 80")
    TID, LANE = 0, 1
    if CODEPF:
        k("s_getpc_b64 s[52:53]")
        k("L_p1_pc:")
        k("s_sub_u32 s52, s52, L_p1_pc-p1_kernel")
        k("s_subb_u32 s53, s53, 0")
        k("s_lshr_b32 s54, s2, 3")
        k("s_mul_i32 s54, s54, (L_text_end-p1_kernel+4095)/4096")
        k("v_add_u32 v213, s54, v0")
        k("v_lshlrev_b32 v213, 7, v213")
        k("v_mov_b32 v211, s53")
        k("v_add_co_u32 v210, vcc, s52, v213")
        k("v_addc_co_u32 v211, vcc, 0, v211, vcc")
        k("v_cmp_gt_u32 vcc, (L_text_end-p1_kernel+4095)/4096, v0")
        k("s_and_saveexec_b64 s[54:55], vcc")
        k("s_cbranch_execz L_p1_cp0")
        k("v_cmp_gt_u32 vcc, L_text_end-p1_kernel, v213")
        k("s_and_b64 exec, exec, vcc")
        k("s_cbranch_execz L_p1_cp0")
        k("global_load_dword v212, v[210:211], off")
        k("L_p1_cp0:")
        k("s_mov_b64 exec, -1")
    k("v_and_b32 v1, 63, v0")
    k("v_lshrrev_b32 v2, 6, v0")
    k("v_readfirstlane_b32 s28, v2")
    k("s_lshr_b32 s29, s2, 5")
    k("s_lshl_b32 s29, s29, 2")
    k("s_and_b32 s30, s2, 31")
    k("s_add_u32 s31, s29, s28")
    k("s_lshl_b32 s31, s31, 5")
    k("s_add_u32 s31, s31, s30")
    k("s_lshl_b32 s31, s31, 11")
    k("s_add_u32 s32, s31, 0x200000")
    k("s_waitcnt lgkmcnt(0)")
    srd(k, 8, 4, S*D*2)
    srd(k, 12, 6, S*513*2)
    srd(k, 16, 24, S*513*2)
    srd(k, 20, 26, 257*16384, ZD_OFF)
    srd(k, 72 if False else 52, 26, 257*16384, WB_OFF) if False else None
    XL = 4
    if FUSE_GG == 2:
        srd(k, 56, 26, 288*128, FG_OFF)
        k("s_lshl_b32 s33, s2, 7")
        k("v_mov_b32 v2, 0")
        k("v_lshlrev_b32 v3, 15, v0")
        k("s_cmp_lt_u32 s2, 32")
        k("s_cselect_b32 s34, 2, 1")
        k("v_cmp_gt_u32 vcc, s34, v0")
        k("s_and_saveexec_b64 s[34:35], vcc")
        k("s_cbranch_execz L_p1_nozf")
        k("buffer_store_dword v2, v3, s[56:59], s33 offen sc0 sc1")
        k("L_p1_nozf:")
        k("s_mov_b64 exec, -1")
    if FUSE_ALL:
        srd(k, 56, 26, 256*128, FH_OFF)
        k("s_lshl_b32 s33, s2, 7")
        k("v_mov_b32 v2, 0")
        k("v_cmp_eq_u32 vcc, 0, v0")
        k("s_and_saveexec_b64 s[34:35], vcc")
        k("s_cbranch_execz L_p1_nozh")
        k("buffer_store_dword v2, v2, s[56:59], s33 offen sc0 sc1")
        k("L_p1_nozh:")
        k("s_mov_b64 exec, -1")
    if FUSE_GG == 1 or (FUSE23 and FILLPOS != 2):
        srd(k, 56, 26, 1024, BAR_OFF)
        k("s_cmp_lt_u32 s2, 8")
        k("s_cbranch_scc0 L_p1_nozb")
        k("s_lshl_b32 s33, s2, 7")
        k("v_mov_b32 v2, 0")
        k("v_cmp_eq_u32 vcc, 0, v0")
        k("s_and_saveexec_b64 s[34:35], vcc")
        k("s_cbranch_execz L_p1_nozb")
        k("buffer_store_dword v2, v2, s[56:59], s33 offen sc0 sc1")
        k("L_p1_nozb:")
        k("s_mov_b64 exec, -1")
    k("v_lshlrev_b32 v2, 4, v1")
    k(f"buffer_load_dwordx4 {vr(XL,4)}, v2, s[8:11], s31 offen {NT_X}")
    k(f"buffer_load_dwordx4 {vr(XL+4,4)}, v2, s[8:11], s31 offen offset:1024 {NT_X}")
    k(f"buffer_load_dwordx4 {vr(XL+8,4)}, v2, s[8:11], s32 offen {NT_X}")
    k(f"buffer_load_dwordx4 {vr(XL+12,4)}, v2, s[8:11], s32 offen offset:1024 {NT_X}")
    WL = 20
    def w_loads():
        k("v_lshlrev_b32 v220, 2, v0")
        k("s_lshl_b32 s33, s29, 6")
        k("s_lshl_b32 s34, s30, 1")
        k("s_add_u32 s33, s33, s34")
        k("s_mul_i32 s33, s33, 1026")
        for pi in range(2):
            for cc in range(4):
                off = (64*cc + pi)*1026
                k(f"s_add_u32 s34, s33, {off}")
                k(f"buffer_load_dword v{WL+4*pi+cc}, v220, s[12:15], s34 offen {NT_W}")
                k(f"buffer_load_dword v{WL+8+4*pi+cc}, v220, s[16:19], s34 offen {NT_W}")
        WX = 200
        k("v_and_b32 v200, 3, v1")
        k("v_lshlrev_b32 v200, 6, v200")
        k("v_bfe_u32 v201, v1, 2, 1")
        k("v_add_u32 v200, v200, v201")
        k("v_mul_u32_u24 v200, 1026, v200")
        k("v_add_u32 v200, 1024, v200")
        k("v_and_b32 v226, 3, v1")
        k("v_lshlrev_b32 v226, 6, v226")
        k("v_add_u32 v226, v226, v201")
        k("s_lshl_b32 s49, s29, 6")
        k("s_lshl_b32 s50, s30, 1")
        k("s_add_u32 s49, s49, s50")
        k("v_add_u32 v226, s49, v226")
        k("v_sub_u32 v226, 2048, v226")
        k("v_and_b32 v226, 2047, v226")
        k("v_mul_u32_u24 v226, 1026, v226")
        k("v_subrev_u32 v227, 1024, v200")
        k("v_cmp_gt_u32 vcc, 8, v0")
        k("s_and_saveexec_b64 s[36:37], vcc")
        k("s_cbranch_execz L_p1_nox")
        k("buffer_load_ushort v202, v200, s[12:15], s33 offen")
        k("buffer_load_ushort v203, v200, s[16:19], s33 offen")
        k("buffer_load_ushort v228, v227, s[12:15], s33 offen")
        k("buffer_load_ushort v229, v227, s[16:19], s33 offen")
        k("buffer_load_ushort v230, v226, s[12:15], 0 offen")
        k("buffer_load_ushort v231, v226, s[16:19], 0 offen")
        k("buffer_load_ushort v232, v226, s[12:15], 0 offen offset:1024")
        k("buffer_load_ushort v233, v226, s[16:19], 0 offen offset:1024")
        k("L_p1_nox:")
        k("s_mov_b64 exec, -1")
    if WEARLY == 1: w_loads()
    def vb_fill(reg):
        srd(k, 56, 26, 256*VB_BLK, VB_OFF)
        for i in range(4): k(f"v_mov_b32 v{reg+i}, -1")
        k("v_lshlrev_b32 v234, 4, v0")
        k("s_lshl_b32 s51, s2, 14")
        for j in range(4):
            k(f"buffer_store_dwordx4 {vr(reg,4)}, v234, s[56:59], s51 offen sc0 sc1")
            if j < 3: k("s_add_u32 s51, s51, 4096")
    if FUSE23 and FILLPOS == 2 and FILL1 == 0: vb_fill(36)
    WL = 20
    Mr, Mi, TW = 36, 52, 68
    XF, DR, DI, OP, T = 100, 132, 148, 164, 180
    k("v_and_b32 v2, 31, v1")
    k("v_cvt_f32_u32 v2, v2")
    k("v_lshrrev_b32 v3, 5, v1")
    k("v_lshlrev_b32 v3, 2, v3")
    k("v_cvt_f32_u32 v3, v3")
    k(f"v_mul_f32 v204, {f32(1/32)}, v2")
    k("v_mul_f32 v205, v204, v3")
    gen_matrix(k, Mr, Mi, 204, 205, T)
    k(f"v_mul_f32 v204, {f32(1/1024)}, v2")
    k("v_mul_f32 v205, v204, v3")
    gen_twiddle(k, TW, 204, 205, T)
    STG = 16384; WST = STG + 257*64 + 64
    k("s_lshr_b32 s44, s2, 2")
    k("s_and_b32 s44, s44, 3")
    k("s_mov_b32 s45, 0x05040100")
    k("s_mov_b32 s46, 0x07060302")
    k("s_lshl_b32 s47, s2, 6")
    k("s_lshl_b32 s48, s28, 2")
    k(f"s_add_u32 s48, s48, {STG}")
    B1, B2, AWJ, AX, ARD, AGL, AT1, AT2, AWR, AWG = 206, 207, 208, 209, 216, 217, 218, 219, 221, 222
    k("v_and_b32 v2, 31, v1")
    k("v_lshrrev_b32 v3, 5, v1")
    k("v_and_b32 v204, 1, v2")
    k("v_lshrrev_b32 v205, 1, v2")
    k(f"v_xor_b32 v{B1}, s44, v204")
    k(f"v_lshlrev_b32 v{B1}, 4, v{B1}")
    k(f"v_lshl_add_u32 v{B1}, v205, 6, v{B1}")
    k(f"v_lshl_add_u32 v{B1}, v3, 12, v{B1}")
    k(f"v_add_u32 v{B1}, s48, v{B1}")
    k("v_add_u32 v205, 1, v2")
    k("v_lshrrev_b32 v205, 1, v205")
    k("v_add_u32 v204, 2, v204")
    k(f"v_xor_b32 v{B2}, s44, v204")
    k(f"v_lshlrev_b32 v{B2}, 4, v{B2}")
    k("v_lshlrev_b32 v205, 6, v205")
    k(f"v_sub_u32 v{B2}, v{B2}, v205")
    k("v_lshlrev_b32 v205, 12, v3")
    k(f"v_sub_u32 v{B2}, v{B2}, v205")
    k(f"v_add_u32 v{B2}, s48, v{B2}")
    k("s_lshl_b32 s49, s28, 12")
    k(f"s_add_u32 s49, s49, {WST}")
    k("v_bfe_u32 v204, v1, 1, 2")
    k("v_xor_b32 v204, s44, v204")
    k("v_lshlrev_b32 v204, 4, v204")
    k(f"v_lshl_add_u32 v{AWJ}, v1, 6, v204")
    k(f"v_add_u32 v{AWJ}, s49, v{AWJ}")
    k("v_lshrrev_b32 v204, 2, v1")
    k("v_and_b32 v205, 3, v1")
    k(f"v_bfe_u32 v{AT1}, v204, 1, 2")
    k(f"v_xor_b32 v{AT1}, v{AT1}, v205")
    k(f"v_lshlrev_b32 v{AT1}, 4, v{AT1}")
    k(f"v_lshl_add_u32 v{AWR}, v204, 6, v{AT1}")
    k(f"v_add_u32 v{AWR}, s49, v{AWR}")
    k("s_lshl_b32 s49, s28, 6")
    k("v_add_u32 v204, s49, v204")
    k("v_lshlrev_b32 v204, 14, v204")
    k(f"v_lshl_add_u32 v{AWG}, v205, 4, v204")
    k("v_bfe_u32 v204, v1, 2, 1")
    k("v_xor_b32 v204, s44, v204")
    k("v_lshlrev_b32 v204, 4, v204")
    k("v_and_b32 v205, 3, v1")
    k(f"v_lshl_add_u32 v{AX}, v205, 2, v204")
    APW = 223
    k(f"v_add_u32 v{APW}, {WST}, v{AX}")
    k(f"v_lshlrev_b32 v{ARD}, 4, v0")
    k(f"v_add_u32 v{ARD}, {STG}, v{ARD}")
    k("v_lshrrev_b32 v204, 2, v0")
    k("v_lshlrev_b32 v204, 14, v204")
    k("v_and_b32 v205, 3, v0")
    k(f"v_lshl_add_u32 v{AGL}, v205, 4, v204")
    k("s_xor_b32 s49, s44, 2")
    k("s_lshl_b32 s49, s49, 4")
    k("s_add_u32 s49, s49, s48")
    k("s_lshl_b32 s50, s44, 4")
    k("s_add_u32 s50, s50, s48")
    k(f"v_mov_b32 v{AT1}, s49")
    k(f"v_mov_b32 v{AT2}, s50")
    k("s_lshl_b32 s36, s28, 12")
    k("v_lshlrev_b32 v2, 5, v1")
    k("v_add_u32 v2, s36, v2")
    k("v_and_b32 v3, 31, v1")
    k("v_lshlrev_b32 v3, 2, v3")
    k("v_lshrrev_b32 v204, 5, v1")
    k("v_lshlrev_b32 v204, 9, v204")
    k("v_add3_u32 v3, v3, v204, s36")
    k("s_mov_b32 s35, 0xffff0000")
    if WEARLY == 2: w_loads()
    mark(k, 1)
    k(("s_waitcnt vmcnt(20)" if (FUSE23 and FILLPOS == 2 and FILL1 == 0) else "s_waitcnt vmcnt(16)") if WEARLY else "s_waitcnt vmcnt(0)")
    mark(k, 2)
    if FUSE23 and FILLPOS == 2 and FILL1 == 1: vb_fill(180)
    if not WEARLY: w_loads()
    for i in range(16):
        for row in range(2):
            src = XL + 8*row + (i >> 1)
            if i % 2 == 0: k(f"v_lshlrev_b32 v{XF+2*i+row}, 16, v{src}")
            else:          k(f"v_and_b32 v{XF+2*i+row}, s35, v{src}")
    ln_stats_xrow(k, XF, T, 38, 40, 42)
    k(f"v_mov_b32 v{T+8}, s40"); k(f"v_mov_b32 v{T+9}, s41")
    k(f"v_mov_b32 v{T+10}, s38"); k(f"v_mov_b32 v{T+11}, s39")
    for i in range(16):
        d = T + 2*(i % 4)
        k(f"v_pk_fma_f32 {vr(d,2)}, {vr(XF+2*i,2)}, {vr(T+8,2)}, {vr(T+10,2)} neg_lo:[0,0,1] neg_hi:[0,0,1]")
        k(f"{CVT} v{OP+i}, v{d}, v{d+1}")
    k(f"ds_write_b128 v2, {vr(OP,4)}")
    k(f"ds_write_b128 v2, {vr(OP+4,4)} offset:16")
    k(f"ds_write_b128 v2, {vr(OP+8,4)} offset:2048")
    k(f"ds_write_b128 v2, {vr(OP+12,4)} offset:2064")
    k("s_waitcnt lgkmcnt(0)")
    for i, (r, c) in enumerate(SEQ):
        k(f"ds_read_b32 v{OP+i}, v3 offset:{(8*r+c)*128}")
    mark(k, 3)
    k("s_waitcnt lgkmcnt(0)")
    stage(k, 'A', DR, DI, OP, Mr, Mi)
    def w_job():
        srd(k, 56, 26, 257*16384, WB_OFF)
        k("s_waitcnt vmcnt(4)" if WJOB == 2 else "s_waitcnt vmcnt(0)")
        WO = XF
        for e in range(2):
            for pi in range(2):
                for cc in range(4):
                    k(f"v_perm_b32 v{WO+4*(2*e+pi)+cc}, v{WL+8+4*pi+cc}, v{WL+4*pi+cc}, s{45+e}")
        for sl in range(4):
            if sl: k(f"v_xor_b32 v204, {16*sl}, v{AWJ}")
            k(f"ds_write_b128 v{204 if sl else AWJ}, {vr(WO+4*sl,4)}")
        k("s_add_u32 s49, s47, 0x400000")
        k("v_cmp_gt_u32 vcc, 8, v0")
        k("s_and_saveexec_b64 s[36:37], vcc")
        k("s_cbranch_execz L_p1_nox2")
        for r_ in (202, 203, 228, 229, 230, 231, 232, 233): k(f"v_lshlrev_b32 v{r_}, 16, v{r_}")
        k("v_add_f32 v228, v228, v230")
        k("v_sub_f32 v229, v229, v231")
        k("v_add_f32 v202, v202, v232")
        k("v_sub_f32 v203, v203, v233")
        k("v_add_f32 v230, v228, v202")
        k("v_add_f32 v231, v229, v203")
        k("v_sub_f32 v232, v228, v202")
        k("v_sub_f32 v233, v229, v203")
        for r_ in (230, 231, 232, 233): k(f"v_mul_f32 v{r_}, 0x3e800000, v{r_}")
        k(f"{CVT} v202, v230, v231")
        k(f"{CVT} v203, v232, v233")
        k(f"ds_write_b32 v{APW}, v202")
        k(f"buffer_store_dword v203, v{AX}, s[56:59], s49 offen {ST_P1}")
        k("L_p1_nox2:")
        k("s_mov_b64 exec, -1")
        k("s_waitcnt lgkmcnt(0)")
        for j in range(4): k(f"ds_read_b128 {vr(WO+16+4*j,4)}, v{AWR} offset:{1024*j}")
        k("s_mov_b32 s49, s47")
        for j in range(4):
            k(f"s_waitcnt lgkmcnt({3-j})")
            k(f"buffer_store_dwordx4 {vr(WO+16+4*j,4)}, v{AWG}, s[56:59], s49 offen {ST_P1}")
            if j < 3: k(f"s_add_u32 s49, s49, {16*16384}")
    if WJOB == 0: w_job()
    cmul_pack(k, DR, DI, TW, OP, T)
    stage(k, 'B', DR, DI, OP, Mr, Mi)
    mark(k, 4)
    for i, (r, c) in enumerate(SEQ):
        if r < 2: k(f"{CVT} v{OP+i}, v{DR+i}, v{DI+i}")
        else:     k(f"{CVT} v{OP+i}, v{DI+i}, v{DR+i}")
        if r < 2: k(f"ds_write_b32 v{B1}, v{OP+i} offset:{(8*r+c)*1024}")
        else:     k(f"ds_write_b32 v{B2}, v{OP+i} offset:{(32-8*r-c)*1024}")
    k(f"v_sub_f32 v{T+2}, v{DR}, v{DI+8}")
    k(f"v_add_f32 v{T+3}, v{DI}, v{DR+8}")
    k(f"v_sub_f32 v{T+4}, v{DI}, v{DR+8}")
    k(f"v_add_f32 v{T+5}, v{DR}, v{DI+8}")
    k(f"{CVT} v{T}, v{T+4}, v{T+5}")
    k(f"{CVT} v{T+1}, v{T+2}, v{T+3}")
    k("s_mov_b64 exec, 1")
    k(f"ds_write_b32 v{AT1}, v{T}")
    k(f"ds_write_b32 v{AT2}, v{T+1}")
    k("s_mov_b64 exec, -1")
    if WJOB == 1: w_job()
    k("s_waitcnt lgkmcnt(0)")
    k("s_barrier")
    RO = XF
    for j in range(4):
        k(f"ds_read_b128 {vr(RO+4*j,4)}, v{ARD} offset:{4096*j}")
    for j in range(4):
        k(f"s_waitcnt lgkmcnt({3-j})")
        k(f"buffer_store_dwordx4 {vr(RO+4*j,4)}, v{AGL}, s[20:23], s47 offen {ST_P1}")
        if j < 3: k("s_add_u32 s47, s47, 0x100000")
    if WJOB == 2:
        k("s_sub_u32 s47, s47, 0x300000")
        w_job()
    stamp_end(k, 'p1')
    k("L_p1_end:")
    k("s_endpgm")
    k("L_p1_endc:")
    return k, 236, WST + 16384

def pf_wave(k, tag, first_line):
    if not W1PF: return
    k("s_cmp_eq_u32 s28, 4")
    k(f"s_cbranch_scc0 L_{tag}_nopf")
    k("s_waitcnt lgkmcnt(0)")
    srd(k, 16, 24, S*F*2)
    k(f"s_mul_i32 s33, s2, {W1PF*128}")
    k(f"s_add_u32 s33, s33, {first_line*128}")
    k("v_lshlrev_b32 v3, 7, v1")
    for i in range(W1PF//64):
        k("buffer_load_dword v4, v3, s[16:19], s33 offen")
        k("s_add_u32 s33, s33, 8192")
    k("s_endpgm")
    k(f"L_{tag}_nopf:")

def first_tiles_wave(k):
    if not FIRSTPF: return
    k("s_cmp_eq_u32 s28, 4")
    k("s_cbranch_scc0 L_p3_noft")
    k("s_waitcnt lgkmcnt(0)")
    srd(k, 16, 24, S*F*2)
    k("s_lshr_b32 s33, s2, 6")
    k("s_lshl_b32 s33, s33, 3")
    k("s_lshr_b32 s33, 0x0400031f, s33")
    k("s_and_b32 s33, s33, 31")
    k("s_and_b32 s34, s2, 1")
    k("s_lshl_b32 s34, s34, 4")
    k("s_add_u32 s33, s33, s34")
    k("s_and_b32 s33, s33, 31")
    k(f"s_mul_i32 s33, s33, {64*7168}")
    k("s_bfe_u32 s34, s2, 0x20001")
    k("s_mul_i32 s34, s34, 1792")
    k("s_add_u32 s33, s33, s34")
    k("s_bfe_u32 s34, s2, 0x30003")
    k("s_mul_i32 s34, s34, 112")
    for h in range(2):
        k(f"v_add_u32 v2, {64*h}, v1")
        k("v_min_u32 v2, 111, v2")
        k("v_add_u32 v2, s34, v2")
        k("v_mul_u32_u24 v3, 4682, v2")
        k("v_lshrrev_b32 v3, 16, v3")
        k("v_mul_u32_u24 v4, 14, v3")
        k("v_sub_u32 v4, v2, v4")
        k("v_mul_u32_u24 v3, 7168, v3")
        k("v_lshl_add_u32 v3, v4, 7, v3")
        k(f"buffer_load_dword v{5+h}, v3, s[16:19], s33 offen")
    k("s_endpgm")
    k("L_p3_noft:")

def next_code_pf(k, tag, first, last, nwg, vt, st, lane):
    if not CODEPF2: return
    per = f"(({last}-{first})/128+{nwg})/{nwg}"
    k(f"s_getpc_b64 s[{st}:{st+1}]")
    k(f"L_{tag}_npc:")
    k(f"s_add_u32 s{st}, s{st}, {first}-L_{tag}_npc")
    k(f"s_addc_u32 s{st+1}, s{st+1}, 0")
    k(f"s_lshr_b32 s{st+2}, s2, 3")
    k(f"s_mul_i32 s{st+2}, s{st+2}, {per}")
    k(f"v_add_u32 v{vt+2}, s{st+2}, v{lane}")
    k(f"v_lshlrev_b32 v{vt+2}, 7, v{vt+2}")
    k(f"v_mov_b32 v{vt+1}, s{st+1}")
    k(f"v_add_co_u32 v{vt}, vcc, s{st}, v{vt+2}")
    k(f"v_addc_co_u32 v{vt+1}, vcc, 0, v{vt+1}, vcc")
    k(f"v_cmp_gt_u32 vcc, {per}, v{lane}")
    k(f"s_mov_b64 exec, vcc")
    k(f"v_cmp_gt_u32 vcc, {last}-{first}, v{vt+2}")
    k(f"s_and_b64 exec, exec, vcc")
    k(f"s_cbranch_execz L_{tag}_npe")
    k(f"global_load_dword v{vt+3}, v[{vt}:{vt+1}], off")
    k(f"L_{tag}_npe:")
    k("s_mov_b64 exec, -1")

def gen_p2(fused=False, mega=False):
    k = Kern('mega_kernel' if mega else ('p23_kernel' if fused else 'p2_kernel'))
    k("s_cmp_ge_u32 s2, 256")
    k("s_cbranch_scc1 L_p2_end")
    stamp_begin(k)
    k("s_load_dwordx2 s[26:27], s[0:1], 80")
    k("s_load_dwordx2 s[24:25], s[0:1], 32")
    if fused: k("s_load_dwordx2 s[4:5], s[0:1], 0")
    k("v_and_b32 v1, 63, v0")
    k("v_lshrrev_b32 v2, 6, v0")
    k("v_readfirstlane_b32 s28, v2")
    if mega:
        k("s_cmp_lt_u32 s28, 4")
        k("s_cbranch_scc1 L_p2_lo")
        k("s_waitcnt lgkmcnt(0)")
        k("s_branch L_g1_entry")
        k("L_p2_lo:")
    pf_wave(k, 'p2', W1PF0)
    k("v_lshlrev_b32 v2, 4, v1")
    k("s_lshr_b32 s29, s28, 1")
    k("s_and_b32 s30, s28, 1")
    k("s_lshl_b32 s31, s2, 14")
    k("s_lshl_b32 s32, s28, 12")
    k("s_add_u32 s31, s31, s32")
    k("s_waitcnt lgkmcnt(0)")
    srd(k, 8, 26, 257*16384, ZD_OFF)
    srd(k, 20, 26, 257*16384, WB_OFF)
    srd(k, 12, 26, 256*VB_BLK, VB_OFF)
    for i in range(4):
        k(f"s_add_u32 m0, s32, {1024*i}")
        k(f"s_add_u32 s33, s31, {1024*i}")
        k(f"buffer_load_dwordx4 v2, s[8:11], s33 offen lds")
    k("s_or_b32 s46, s2, s29")
    k("s_cmp_eq_u32 s46, 0")
    k("s_cbranch_scc0 L_p2_noq")
    k("v_bfe_u32 v3, v1, 2, 2")
    k("v_xor_b32 v3, s30, v3")
    k("v_lshlrev_b32 v3, 4, v3")
    k("v_lshl_add_u32 v3, v1, 6, v3")
    k("s_lshl_b32 s47, s30, 12")
    for r in range(4):
        k(f"s_add_u32 m0, s47, {32768+1024*r}")
        k(f"s_mov_b32 s33, {0x400000+4096*r}")
        k("buffer_load_dwordx4 v3, s[20:23], s33 offen lds")
    k("L_p2_noq:")
    def own_fill(reg):
        for i in range(4): k(f"v_mov_b32 v{reg+i}, -1")
        k("v_lshlrev_b32 v3, 4, v0")
        k("s_lshl_b32 s33, s2, 14")
        for j in range(4):
            k(f"buffer_store_dwordx4 {vr(reg,4)}, v3, s[12:15], s33 offen sc0 sc1")
            if j < 3: k("s_add_u32 s33, s33, 4096")
    if fused and FILLPOS != 2: srd(k, 16, 26, 1024, BAR_OFF)
    if fused and FILLPOS == 0: own_fill(4)
    Z1, Z2 = 4, 20
    M1r, M1i, MFr, MFi, MIr, MIi = 36, 52, 68, 84, 100, 116
    T1, T2 = 132, 164
    DR, DI, T = 196, 212, 228
    A, B, J, H4, PI = 244, 245, 246, 247, 248
    k(f"v_and_b32 v{J}, 31, v1")
    k(f"v_cvt_f32_u32 v{J}, v{J}")
    k(f"v_lshrrev_b32 v{H4}, 5, v1")
    k(f"v_lshlrev_b32 v{H4}, 2, v{H4}")
    k(f"v_cvt_f32_u32 v{H4}, v{H4}")
    k(f"v_mov_b32 v{PI}, s30")
    k(f"v_cvt_f32_u32 v{PI}, v{PI}")
    k(f"v_mul_f32 v{A}, {f32(1/32)}, v{J}")
    k(f"v_mul_f32 v{B}, v{A}, v{H4}")
    gen_matrix(k, MFr, MFi, A, B, T)
    k(f"v_fma_f32 v{A}, v{J}, 2.0, v{PI}")
    k(f"v_mul_f32 v{A}, {f32(1/64)}, v{A}")
    k(f"v_mul_f32 v{B}, v{A}, v{H4}")
    gen_matrix(k, M1r, M1i, A, B, T)
    k("s_lshl_b32 s33, s30, 4")
    k(f"v_and_b32 v{T}, 31, v1")
    k(f"v_xor_b32 v{T}, s33, v{T}")
    k(f"v_cvt_f32_u32 v{T}, v{T}")
    k(f"v_mul_f32 v{A}, {f32(1/32)}, v{T}")
    k(f"v_mul_f32 v{B}, v{A}, v{H4}")
    k(f"v_mul_f32 v{T}, {f32(1/64)}, v{T}")
    k(f"v_fma_f32 v{B}, v{T}, v{PI}, v{B}")
    gen_matrix(k, MIr, MIi, A, B, T)
    k(f"v_fma_f32 v{A}, v{J}, 2.0, v{PI}")
    k(f"v_mul_f32 v{A}, {f32(1/2048)}, v{A}")
    k(f"v_mov_b32 v{T}, {f32(0.125)}")
    k(f"v_mul_f32 v{T+1}, {f32(-0.25)}, v{PI}")
    k(f"v_add_f32 v{T}, v{T}, v{T+1}")
    k(f"v_fma_f32 v{B}, v{A}, v{H4}, v{T}")
    gen_twiddle(k, T1, A, B, T)
    k(f"v_mul_f32 v{A}, {f32(1/1024)}, v{J}")
    k(f"v_mul_f32 v{B}, v{A}, v{H4}")
    k(f"v_mul_f32 v{T}, {f32(1/2048)}, v{J}")
    k(f"v_fma_f32 v{B}, v{T}, v{PI}, v{B}")
    gen_twiddle(k, T2, A, B, T)
    AZ1, AZ2, AW = 249, 250, 251
    k(f"v_bfe_u32 v{T}, v1, 2, 2")
    k(f"v_lshlrev_b32 v{T+1}, 6, v1")
    k(f"v_xor_b32 v{AZ1}, s29, v{T}")
    k(f"v_lshl_add_u32 v{AZ1}, v{AZ1}, 4, v{T+1}")
    k(f"v_xor_b32 v{AZ2}, 32, v{AZ1}")
    k("s_lshl_b32 s33, s29, 1")
    k("s_add_u32 s33, s33, s30")
    k(f"v_xor_b32 v{AW}, s33, v{T}")
    k(f"v_lshl_add_u32 v{AW}, v{AW}, 4, v{T+1}")
    k(f"v_add_u32 v{AW}, 16384, v{AW}")
    k("s_mul_i32 s34, s30, 0x80008000")
    k("s_mov_b32 s35, 0xffff0000")
    mark(k, 1)
    k("s_waitcnt vmcnt(4)" if (fused and FILLPOS == 0) else "s_waitcnt vmcnt(0)")
    for i in range(4):
        k(f"s_add_u32 m0, s32, {16384+1024*i}")
        k(f"s_add_u32 s33, s31, {1024*i}")
        k(f"buffer_load_dwordx4 v2, s[20:23], s33 offen lds")
    if fused and FILLPOS == 1: own_fill(DR)
    k("s_barrier")
    mark(k, 2)
    for r in range(4):
        k(f"ds_read_b128 {vr(Z1+4*r,4)}, v{AZ1} offset:{4096*r}")
        k(f"ds_read_b128 {vr(Z2+4*r,4)}, v{AZ2} offset:{4096*r}")
    k("s_waitcnt lgkmcnt(0)")
    for i in range(16):
        k(f"v_xor_b32 v{Z2+i}, s34, v{Z2+i}")
    stage(k, 'A', DR, DI, Z1, M1r, M1i, first=True)
    stage(k, 'A', DR, DI, Z2, M1r, M1i, first=False)
    OP = Z1
    cmul_pack(k, DR, DI, T1, OP, T)
    k("s_waitcnt vmcnt(0)")
    k("s_barrier")
    if fused and FILLPOS != 2:
        k("s_cmp_eq_u32 s28, 0")
        k("s_cbranch_scc0 L_p2_noarr")
        k("s_and_b32 s33, s2, 7")
        k("s_lshl_b32 s33, s33, 7")
        k("v_mov_b32 v249, 1")
        k("v_mov_b32 v250, 0")
        k("s_mov_b64 exec, 1")
        k("buffer_atomic_add v249, v250, s[16:19], s33 offen sc1")
        k("s_mov_b64 exec, -1")
        k("L_p2_noarr:")
    for r in range(4):
        k(f"ds_read_b128 {vr(Z2+4*r,4)}, v{AW} offset:{4096*r}")
    stage(k, 'B', DR, DI, OP, MFr, MFi)
    WP = M1r
    k("s_waitcnt lgkmcnt(0)")
    for i in range(16):
        k(f"v_lshlrev_b32 v{WP+2*i}, 16, v{Z2+i}")
        k(f"v_and_b32 v{WP+2*i+1}, s35, v{Z2+i}")
    k("s_or_b32 s46, s2, s29")
    k("s_cmp_eq_u32 s46, 0")
    k("s_cbranch_scc1 L_p2_spec")
    cmul_pack(k, DR, DI, WP, OP, T, conj=True)
    k("L_p2_specd:")
    stage(k, 'A', DR, DI, OP, MFr, MFi)
    cmul_pack(k, DR, DI, T2, OP, T)
    stage(k, 'B', DR, DI, OP, MIr, MIi)
    mark(k, 4)
    if fused and FILLPOS != 2:
        k("s_cmp_eq_u32 s28, 0")
        k("s_cbranch_scc0 L_p2_nochk0")
        k("v_and_b32 v249, 7, v1")
        k("v_lshlrev_b32 v249, 7, v249")
        k("buffer_load_dword v250, v249, s[16:19], 0 offen sc0 sc1")
        k("L_p2_nochk0:")
    XCH, STG = 32768, 49152
    AX = 252
    k("s_lshl_b32 s36, s28, 12")
    k(f"s_add_u32 s36, s36, {XCH}")
    k(f"v_lshl_add_u32 v{AX}, v1, 4, s36")
    k(f"ds_write_b128 v{AX}, {vr(DR+8,4)}")
    k(f"ds_write_b128 v{AX}, {vr(DR+12,4)} offset:1024")
    k(f"ds_write_b128 v{AX}, {vr(DI+8,4)} offset:2048")
    k(f"ds_write_b128 v{AX}, {vr(DI+12,4)} offset:3072")
    k(f"v_xor_b32 v{AX}, 4096, v{AX}")
    k("s_cmp_eq_u32 s30, 0")
    k(f"s_cselect_b32 s40, {f32(1.0)}, {f32(-1.0)}")
    k("s_mov_b32 s42, s40")
    k("s_waitcnt lgkmcnt(0)")
    k("s_barrier")
    OR_, OI = 36, 44
    k(f"ds_read_b128 {vr(OR_,4)}, v{AX}")
    k(f"ds_read_b128 {vr(OR_+4,4)}, v{AX} offset:1024")
    k(f"ds_read_b128 {vr(OI,4)}, v{AX} offset:2048")
    k(f"ds_read_b128 {vr(OI+4,4)}, v{AX} offset:3072")
    k(f"v_bfe_u32 v{T}, v1, 1, 2")
    k(f"v_xor_b32 v{T+1}, s29, v{T}")
    k(f"v_xor_b32 v{T+2}, 2, v{T+1}")
    k("s_lshl_b32 s43, s30, 13")
    k(f"s_add_u32 s43, s43, {STG}")
    k(f"v_lshl_add_u32 v{T+3}, v1, 6, s43")
    k(f"v_lshl_add_u32 v253, v{T+1}, 4, v{T+3}")
    k(f"v_lshl_add_u32 v254, v{T+2}, 4, v{T+3}")
    k("s_waitcnt lgkmcnt(0)")
    UA, UB = 52, 60
    Ur, Ui, Er, Ei, Ar, Ai, Br, Bi = [x + (64 if fused else 0) for x in (68, 70, 72, 74, 76, 78, 80, 82)]
    bc = "op_sel_hi:[1,0,1]"
    k("s_cmp_eq_u32 s46, 0")
    k("s_cbranch_scc1 L_p2_spost")
    for j in range(0, 8, 2):
        o = 16*((j//2) % 2)
        ur, ui, er, ei, a_r, a_i, b_r, b_i = [x+o for x in (Ur, Ui, Er, Ei, Ar, Ai, Br, Bi)]
        k(f"v_pk_add_f32 {vr(ur,2)}, {vr(DR+j,2)}, {vr(OR_+j,2)}")
        k(f"v_pk_add_f32 {vr(ui,2)}, {vr(DI+j,2)}, {vr(OI+j,2)}")
        k(f"v_pk_add_f32 {vr(er,2)}, {vr(DR+j,2)}, {vr(OR_+j,2)} neg_lo:[0,1] neg_hi:[0,1]")
        k(f"v_pk_add_f32 {vr(ei,2)}, {vr(DI+j,2)}, {vr(OI+j,2)} neg_lo:[0,1] neg_hi:[0,1]")
        k(f"v_pk_fma_f32 {vr(a_r,2)}, {vr(ei,2)}, s[42:43], {vr(ur,2)} {bc}")
        k(f"v_pk_fma_f32 {vr(b_r,2)}, {vr(ei,2)}, s[42:43], {vr(ur,2)} {bc} neg_lo:[1,0,0] neg_hi:[1,0,0]")
        k(f"v_pk_fma_f32 {vr(a_i,2)}, {vr(er,2)}, s[40:41], {vr(ui,2)} {bc} neg_lo:[1,0,0] neg_hi:[1,0,0]")
        k(f"v_pk_fma_f32 {vr(b_i,2)}, {vr(er,2)}, s[40:41], {vr(ui,2)} {bc} neg_lo:[1,0,1] neg_hi:[1,0,1]")
        k(f"{CVT} v{UA+j}, v{a_r}, v{a_i}")
        k(f"{CVT} v{UA+j+1}, v{a_r+1}, v{a_i+1}")
        k(f"{CVT} v{UB+j}, v{b_r}, v{b_i}")
        k(f"{CVT} v{UB+j+1}, v{b_r+1}, v{b_i+1}")
    k("s_branch L_p2_postd")
    k("L_p2_spost:")
    for j in range(0, 8, 2):
        o = 16*((j//2) % 2)
        ur, ui, er, ei, a_r, a_i, b_r, b_i = [x+o for x in (Ur, Ui, Er, Ei, Ar, Ai, Br, Bi)]
        k(f"v_pk_add_f32 {vr(ur,2)}, {vr(DR+j,2)}, {vr(OR_+j,2)}")
        k(f"v_pk_add_f32 {vr(ui,2)}, {vr(DI+j,2)}, {vr(OI+j,2)}")
        k(f"v_pk_add_f32 {vr(er,2)}, {vr(DR+j,2)}, {vr(OR_+j,2)} neg_lo:[0,1] neg_hi:[0,1]")
        k(f"v_pk_add_f32 {vr(ei,2)}, {vr(DI+j,2)}, {vr(OI+j,2)} neg_lo:[0,1] neg_hi:[0,1]")
        k(f"v_pk_mul_f32 {vr(a_i,2)}, {vr(er,2)}, s[40:41] op_sel_hi:[1,0] neg_lo:[1,0] neg_hi:[1,0]")
        k(f"v_pk_mul_f32 {vr(b_i,2)}, {vr(ei,2)}, s[40:41] op_sel_hi:[1,0]")
        k(f"{CVT} v{UA+j}, v{ur}, v{a_i}")
        k(f"{CVT} v{UA+j+1}, v{ur+1}, v{a_i+1}")
        k(f"{CVT} v{UB+j}, -v{ui}, v{b_i}")
        k(f"{CVT} v{UB+j+1}, -v{ui+1}, v{b_i+1}")
    k("L_p2_postd:")
    for rl in range(2):
        k(f"ds_write_b128 v253, {vr(UA+4*rl,4)} offset:{4096*rl}")
        k(f"ds_write_b128 v254, {vr(UB+4*rl,4)} offset:{4096*rl}")
    k(f"v_and_b32 v{T}, 3, v0")
    k(f"v_bfe_u32 v{T+1}, v0, 3, 2")
    k(f"v_xor_b32 v{T+1}, v{T}, v{T+1}")
    k(f"v_lshrrev_b32 v{T+2}, 2, v0")
    k(f"v_lshlrev_b32 v{T+3}, 6, v{T+2}")
    k(f"v_lshl_add_u32 v{T+3}, v{T+1}, 4, v{T+3}")
    k(f"v_add_u32 v{T+3}, {STG}, v{T+3}")
    k(f"v_mul_u32_u24 v{T+2}, {VB_BLK}, v{T+2}")
    k("s_and_b32 s44, s2, 2")
    k(f"v_xor_b32 v{T}, s44, v{T}")
    k(f"v_lshl_add_u32 v{T+2}, v{T}, 4, v{T+2}")
    k("s_lshl_b32 s45, s2, 6")
    if fused and FILLPOS != 2:
        k("s_cmp_eq_u32 s28, 0")
        k("s_cbranch_scc0 L_p2_chkd")
        k("s_mov_b32 s47, 0")
        k("L_p2_chk:")
        k("s_waitcnt vmcnt(0)")
        k("v_cmp_gt_u32 vcc, 32, v250")
        k("s_add_u32 s47, s47, 1")
        k("s_cmp_ge_u32 s47, 0x20000")
        k("s_cbranch_scc1 L_p2_chkd")
        k("s_nop 2")
        k("s_cbranch_vccz L_p2_chkd")
        k("buffer_load_dword v250, v249, s[16:19], 0 offen sc0 sc1")
        k("s_branch L_p2_chk")
        k("L_p2_chkd:")
    k("s_waitcnt lgkmcnt(0)")
    k("s_barrier")
    for j in range(4):
        k(f"ds_read_b128 {vr(4+4*j,4)}, v{T+3} offset:{4096*j}")
    k("s_waitcnt lgkmcnt(0)")
    for j in range(4):
        k(f"buffer_store_dwordx4 {vr(4+4*j,4)}, v{T+2}, s[12:15], s45 offen {ST_P2}")
        if j < 3: k(f"s_add_u32 s45, s45, {64*VB_BLK}")
    if fused:
        mark(k, 3)
        p3_body(k, True)
    stamp_end(k, 'p2')
    if mega:
        k("s_waitcnt vmcnt(0)")
        k("s_barrier")
        srd(k, 16, 26, 256*128, FH_OFF)
        k("s_lshl_b32 s33, s2, 7")
        k("v_mov_b32 v2, 1")
        k("v_mov_b32 v3, 0")
        k("v_cmp_eq_u32 vcc, 0, v0")
        k("s_and_saveexec_b64 s[34:35], vcc")
        k("s_cbranch_execz L_p2_nocnt")
        k("buffer_store_dword v2, v3, s[16:19], s33 offen sc0 sc1")
        k("L_p2_nocnt:")
        k("s_mov_b64 exec, -1")
        k("s_branch L_g1_entry")
    k("L_p2_end:")
    k("s_endpgm")
    k("L_p2_spec:")
    QP = T1
    XB_ = Z2
    k("s_lshl_b32 s47, s30, 12")
    k(f"v_lshl_add_u32 v{T}, v1, 4, s47")
    for r in range(4):
        k(f"ds_read_b128 {vr(XB_+4*r,4)}, v{T} offset:{32768+1024*r}")
    k("s_lshl_b32 s47, s30, 13")
    k(f"v_and_b32 v{T+1}, 31, v1")
    k(f"v_lshrrev_b32 v{T+2}, 5, v1")
    k(f"v_lshlrev_b32 v{T+3}, 2, v{T+1}")
    k(f"v_lshl_add_u32 v{T+3}, v{T+2}, 10, v{T+3}")
    k(f"v_add_u32 v{T+3}, s47, v{T+3}")
    for i, (r, c) in enumerate(SEQ):
        k(f"ds_write_b32 v{T+3}, v{DR+i} offset:{(8*r+c)*256}")
        k(f"ds_write_b32 v{T+3}, v{DI+i} offset:{(8*r+c)*256+128}")
    k(f"v_add_u32 v{T+4}, s30, v{T+1}")
    k(f"v_sub_u32 v{T+5}, 32, v{T+4}")
    k(f"v_lshlrev_b32 v{T+5}, 2, v{T+5}")
    k(f"v_cmp_eq_u32 vcc, 0, v{T+4}")
    k(f"v_mov_b32 v{T+6}, 256")
    k(f"v_cndmask_b32 v{T+5}, v{T+5}, v{T+6}, vcc")
    k(f"v_lshlrev_b32 v{T+6}, 10, v{T+2}")
    k(f"v_sub_u32 v{T+5}, v{T+5}, v{T+6}")
    k(f"v_add_u32 v{T+5}, 1024, v{T+5}")
    k(f"v_add_u32 v{T+5}, s47, v{T+5}")
    k(f"v_add_u32 v{T+6}, {27*256}, v{T+5}")
    k(f"v_or_b32 v{T+7}, v{T+4}, v{T+2}")
    k(f"v_cmp_eq_u32 vcc, 0, v{T+7}")
    k(f"v_mov_b32 v{T+7}, s47")
    k(f"v_cndmask_b32 v{T+6}, v{T+6}, v{T+7}, vcc")
    k("s_waitcnt lgkmcnt(0)")
    for i in range(16):
        k(f"v_lshlrev_b32 v{QP+2*i}, 16, v{XB_+i}")
        k(f"v_and_b32 v{QP+2*i+1}, s35, v{XB_+i}")
    for half in range(2):
        for jj in range(8):
            i = 8*half + jj; r, c = SEQ[i]
            if i == 0:
                k(f"ds_read_b32 v{XB_+2*jj}, v{T+6}")
                k(f"ds_read_b32 v{XB_+2*jj+1}, v{T+6} offset:128")
            else:
                k(f"ds_read_b32 v{XB_+2*jj}, v{T+5} offset:{(27-8*r-c)*256}")
                k(f"ds_read_b32 v{XB_+2*jj+1}, v{T+5} offset:{(27-8*r-c)*256+128}")
        k("s_waitcnt lgkmcnt(0)")
        for jj in range(8):
            j = 8*half + jj; o = T + 8 + 2*(jj % 4); jp = j & ~1; x = j & 1
            k(f"v_pk_mul_f32 {vr(o,2)}, {vr(WP+2*j,2)}, {vr(DR+jp,2)} op_sel:[0,{x}] op_sel_hi:[1,{x}]")
            k(f"v_pk_fma_f32 {vr(o,2)}, {vr(WP+2*j,2)}, {vr(DI+jp,2)}, {vr(o,2)} op_sel:[1,{x},0] op_sel_hi:[0,{x},1] neg_lo:[1,0,0]")
            k(f"v_pk_fma_f32 {vr(o,2)}, {vr(QP+2*j,2)}, {vr(XB_+2*jj,2)}, {vr(o,2)} op_sel:[0,0,0] op_sel_hi:[1,0,1]")
            k(f"v_pk_fma_f32 {vr(o,2)}, {vr(QP+2*j,2)}, {vr(XB_+2*jj,2)}, {vr(o,2)} op_sel:[1,1,0] op_sel_hi:[0,1,1] neg_hi:[1,0,0]")
            k(f"{CVT} v{OP+j}, v{o}, -v{o+1}")
    k("s_branch L_p2_specd")
    return k, 256, 65536

def ln_stats_rows(k, R0, R1, t, vRM, sTmp, twice=False):
    for (R, o) in ((R0, 0), (R1, 4)):
        a, b = t+o, t+o+2
        k(f"v_pk_add_f32 {vr(a,2)}, {vr(R,2)}, {vr(R+2,2)}")
        k(f"v_pk_add_f32 {vr(b,2)}, {vr(R+4,2)}, {vr(R+6,2)}")
    for i in range(4, 8):
        for (R, o) in ((R0, 0), (R1, 4)):
            a = t+o+2*(i % 2)
            k(f"v_pk_add_f32 {vr(a,2)}, {vr(a,2)}, {vr(R+2*i,2)}")
    for o in (0, 4):
        k(f"v_pk_add_f32 {vr(t+o,2)}, {vr(t+o,2)}, {vr(t+o+2,2)}")
    k(f"v_add_f32 v{t}, v{t}, v{t+1}")
    k(f"v_add_f32 v{t+1}, v{t+4}, v{t+5}")
    wave_reduce2(k, t, t+1)
    ln_mean(k, t, sTmp)
    acc = {0: t, 1: t+2}; tmp = [t+4, t+6, t+8, t+10]
    n = 0
    for i in range(8):
        for row, R in ((0, R0), (1, R1)):
            d = tmp[n % 4]; n += 1
            sel = "op_sel_hi:[1,0]" if row == 0 else "op_sel:[0,1] op_sel_hi:[1,1]"
            k(f"v_pk_add_f32 {vr(d,2)}, {vr(R+2*i,2)}, {sr(sTmp,2)} {sel} neg_lo:[0,1] neg_hi:[0,1]")
            a = acc[row]
            if i == 0: k(f"v_pk_mul_f32 {vr(a,2)}, {vr(d,2)}, {vr(d,2)}")
            else:      k(f"v_pk_fma_f32 {vr(a,2)}, {vr(d,2)}, {vr(d,2)}, {vr(a,2)}")
    k(f"v_add_f32 v{t}, v{t}, v{t+1}")
    k(f"v_add_f32 v{t+1}, v{t+2}, v{t+3}")
    wave_reduce2(k, t, t+1)
    ln_scalars(k, t, twice)
    k(f"v_readlane_b32 s{sTmp}, v{t}, 63")
    k(f"v_readlane_b32 s{sTmp+1}, v{t+1}, 63")
    k(f"v_readlane_b32 s{sTmp+2}, v{t+12}, 63")
    k(f"v_readlane_b32 s{sTmp+3}, v{t+13}, 63")
    for i in range(4):
        k(f"v_mov_b32 v{vRM+i}, s{sTmp+i}")

def ln_apply_rows(k, R0, R1, vRM, dst0, dst1):
    for i in range(8):
        k(f"v_pk_fma_f32 {vr(dst0+2*i,2)}, {vr(R0+2*i,2)}, {vr(vRM,2)}, {vr(vRM+2,2)} op_sel_hi:[1,0,0] neg_lo:[0,0,1] neg_hi:[0,0,1]")
        k(f"v_pk_fma_f32 {vr(dst1+2*i,2)}, {vr(R1+2*i,2)}, {vr(vRM,2)}, {vr(vRM+2,2)} op_sel:[0,1,1] op_sel_hi:[1,1,1] neg_lo:[0,0,1] neg_hi:[0,0,1]")

def p3_body(k, fused):
    if fused:
        XL, OP, Mr, Mi, TW, DR, DI, T = 36, 20, 68, 84, 164, 196, 212, 228
        R0, R1, Y0, Y1, HP, NP, RM = 100, 116, 132, 148, 52, 4, 244
        B1, B2, AJ8, t0, t1, t2, cj, ch, cA, cB, XV = 248, 249, 250, 251, 252, 253, 251, 252, 253, 254, 255
    else:
        XL, OP, Mr, Mi, TW, DR, DI, T = 4, 20, 36, 52, 68, 100, 116, 132
        R0, R1, Y0, Y1, HP, NP, RM = 148, 164, 180, 196, 36, 68, 220
        B1, B2, AJ8, t0, t1, t2, cj, ch, cA, cB, XV = 218, 219, 227, 216, 217, 226, 212, 213, 214, 215, 225
    k("s_lshr_b32 s29, s2, 5")
    k("s_lshl_b32 s29, s29, 2")
    k("s_and_b32 s30, s2, 31")
    k("s_add_u32 s31, s29, s28")
    k("s_lshl_b32 s31, s31, 5")
    k("s_add_u32 s31, s31, s30")
    k("s_lshl_b32 s31, s31, 11")
    k("s_add_u32 s32, s31, 0x200000")
    k(f"s_mul_i32 s33, s2, {VB_BLK}")
    k("s_lshl_b32 s34, s28, 12")
    k("s_add_u32 s33, s33, s34")
    k("v_lshlrev_b32 v2, 4, v1")
    if not fused: k("s_waitcnt lgkmcnt(0)")
    srd(k, 8, 4, S*D*2)
    if not fused: srd(k, 12, 26, 256*VB_BLK, VB_OFF)
    srd(k, 16, 26, S*D*2, H_OFF)
    srd(k, 20, 26, S*D*2, HN_OFF)
    def x_loads():
        k(f"v_lshlrev_b32 v{XV}, 4, v1")
        k(f"buffer_load_dwordx4 {vr(XL,4)}, v{XV}, s[8:11], s31 offen")
        k(f"buffer_load_dwordx4 {vr(XL+4,4)}, v{XV}, s[8:11], s31 offen offset:1024")
        k(f"buffer_load_dwordx4 {vr(XL+8,4)}, v{XV}, s[8:11], s32 offen")
        k(f"buffer_load_dwordx4 {vr(XL+12,4)}, v{XV}, s[8:11], s32 offen offset:1024")
    if fused:
        x_loads()
    else:
        for i in range(4):
            k(f"s_add_u32 m0, s34, {1024*i}")
            k(f"buffer_load_dwordx4 v2, s[12:15], s33 offen lds")
            k("s_add_u32 s33, s33, 1024")
    if CODEPF2:
        k("s_cmp_eq_u32 s28, 0")
        k("s_cbranch_scc0 L_p3_nonp")
        next_code_pf(k, 'p3', 'L_g1_entry' if FUSE_ALL else ('gg_kernel' if FUSE_GG else 'g1_kernel'), 'L_gbar' if FUSE_GG else 'g2_kernel', 32, RM, 40, 1)
        k("L_p3_nonp:")
    k(f"v_and_b32 v{cj}, 31, v1")
    k(f"v_cvt_f32_u32 v{cj}, v{cj}")
    k(f"v_lshrrev_b32 v{ch}, 5, v1")
    k(f"v_lshlrev_b32 v{ch}, 2, v{ch}")
    k(f"v_cvt_f32_u32 v{ch}, v{ch}")
    if not fused:
        k(f"v_mul_f32 v{cA}, {f32(1/32)}, v{cj}")
        k(f"v_mul_f32 v{cB}, v{cA}, v{ch}")
        gen_matrix(k, Mr, Mi, cA, cB, T)
    k(f"v_mul_f32 v{cA}, {f32(1/1024)}, v{cj}")
    k(f"v_mul_f32 v{cB}, v{cA}, v{ch}")
    gen_twiddle(k, TW, cA, cB, T, scale=2.0**-21.5)
    k("v_and_b32 v2, 31, v1")
    k("v_lshrrev_b32 v3, 5, v1")
    k(f"v_and_b32 v{t0}, 1, v2")
    k(f"v_lshrrev_b32 v{t1}, 1, v2")
    k(f"v_and_b32 v{B1}, 2, v{t1}")
    k(f"v_xor_b32 v{B1}, v{B1}, v{t0}")
    k(f"v_lshlrev_b32 v{B1}, 4, v{B1}")
    k(f"v_lshl_add_u32 v{B1}, v{t1}, 6, v{B1}")
    k(f"v_lshl_add_u32 v{B1}, v3, 12, v{B1}")
    k("s_lshl_b32 s37, s28, 2")
    k(f"v_add_u32 v{B1}, s37, v{B1}")
    k(f"v_add_u32 v{t1}, 1, v2")
    k(f"v_lshrrev_b32 v{t1}, 1, v{t1}")
    k(f"v_sub_u32 v{B2}, 0, v{t1}")
    k(f"v_and_b32 v{B2}, 2, v{B2}")
    k(f"v_add_u32 v{t0}, 2, v{t0}")
    k(f"v_xor_b32 v{B2}, v{B2}, v{t0}")
    k(f"v_lshlrev_b32 v{B2}, 4, v{B2}")
    k(f"v_lshlrev_b32 v{t1}, 6, v{t1}")
    k(f"v_sub_u32 v{B2}, v{B2}, v{t1}")
    k(f"v_lshlrev_b32 v{t1}, 12, v3")
    k(f"v_sub_u32 v{B2}, v{B2}, v{t1}")
    k("s_add_u32 s37, s37, 5120")
    k(f"v_add_u32 v{B2}, s37, v{B2}")
    k(f"v_add_u32 v{AJ8}, {16*1024-5120}, v{B2}")
    k("s_lshl_b32 s38, s28, 2")
    k("s_add_u32 s38, s38, 32")
    k(f"v_mov_b32 v{t2}, s38")
    k("v_cmp_eq_u32 vcc, 0, v1")
    k(f"v_cndmask_b32 v{AJ8}, v{AJ8}, v{t2}, vcc")
    k("s_mov_b32 s35, 0xffff0000")
    if fused:
        k("v_lshlrev_b32 v2, 4, v1")
        k("s_mov_b32 s41, 0")
        k("s_waitcnt vmcnt(0)")
        k("L_p3_poll:")
        for i in range(4):
            k(f"s_add_u32 s39, s33, {1024*i}")
            k(f"buffer_load_dwordx4 {vr(OP+4*i,4)}, v2, s[12:15], s39 offen sc0 sc1")
        k("s_add_u32 s41, s41, 1")
        k("s_waitcnt vmcnt(0)")
        k(f"v_max3_u32 v3, v{OP}, v{OP+1}, v{OP+2}")
        for i in range(3, 15, 2): k(f"v_max3_u32 v3, v3, v{OP+i}, v{OP+i+1}")
        k(f"v_max_u32 v3, v3, v{OP+15}")
        k("v_cmp_eq_u32 vcc, -1, v3")
        k("s_nop 4")
        k("s_cmp_ge_u32 s41, 0x20000")
        k("s_cbranch_scc1 L_p3_polld")
        k("s_cbranch_vccnz L_p3_poll")
        k("L_p3_polld:")
        mark(k, 5)
        k("v_add_u32 v2, s34, v2")
        for i in range(4): k(f"ds_write_b128 v2, {vr(OP+4*i,4)} offset:{1024*i}")
        k("s_waitcnt lgkmcnt(0)")
        k("s_barrier")
    else:
        mark(k, 1)
        k("s_waitcnt vmcnt(0)")
        x_loads()
        k("s_barrier")
        mark(k, 2)
    for i, (r, c) in enumerate(SEQ):
        if r < 2: k(f"ds_read_b32 v{OP+i}, v{B1} offset:{(8*r+c)*1024}")
        elif i == 8: k(f"ds_read_b32 v{OP+i}, v{AJ8}")
        else:     k(f"ds_read_b32 v{OP+i}, v{B2} offset:{(32-8*r-c)*1024-5120}")
    k("s_waitcnt lgkmcnt(0)")
    stage(k, 'A', DR, DI, OP, Mr, Mi)
    cmul_pack(k, DR, DI, TW, OP, T)
    stage(k, 'B', DR, DI, OP, Mr, Mi)
    if not fused: k("s_waitcnt vmcnt(0)")
    for i in range(8):
        k(f"v_lshlrev_b32 v{R0+2*i}, 16, v{XL+i}")
        k(f"v_and_b32 v{R0+2*i+1}, s35, v{XL+i}")
        k(f"v_lshlrev_b32 v{R1+2*i}, 16, v{XL+8+i}")
        k(f"v_and_b32 v{R1+2*i+1}, s35, v{XL+8+i}")
    TR = 17408
    if not fused: mark(k, 3)
    k("s_lshl_b32 s36, s28, 12")
    k(f"s_add_u32 s36, s36, {TR}")
    k("v_and_b32 v3, 31, v1")
    k("v_lshlrev_b32 v3, 2, v3")
    k(f"v_lshrrev_b32 v{t0}, 5, v1")
    k(f"v_lshlrev_b32 v{t0}, 9, v{t0}")
    k(f"v_add3_u32 v3, v3, v{t0}, s36")
    k("v_lshl_add_u32 v2, v1, 5, s36")
    for i in range(16):
        k(f"{CVT} v{OP+i}, v{DR+i}, -v{DI+i}")
    for i, (r, c) in enumerate(SEQ):
        k(f"ds_write_b32 v3, v{OP+i} offset:{(8*r+c)*128}")
    k("s_waitcnt lgkmcnt(0)")
    k(f"ds_read_b128 {vr(OP,4)}, v2")
    k(f"ds_read_b128 {vr(OP+4,4)}, v2 offset:16")
    k(f"ds_read_b128 {vr(OP+8,4)}, v2 offset:2048")
    k(f"ds_read_b128 {vr(OP+12,4)}, v2 offset:2064")
    k("s_waitcnt lgkmcnt(0)")
    for i in range(16):
        k(f"v_lshlrev_b32 v{Y0+i}, 16, v{OP+i}")
        k(f"v_and_b32 v{Y1+i}, s35, v{OP+i}")
    for i in range(8):
        k(f"v_pk_add_f32 {vr(Y0+2*i,2)}, {vr(Y0+2*i,2)}, {vr(R0+2*i,2)}")
        k(f"v_pk_add_f32 {vr(Y1+2*i,2)}, {vr(Y1+2*i,2)}, {vr(R1+2*i,2)}")
    for i in range(8):
        k(f"{CVT} v{HP+i}, v{Y0+2*i}, v{Y0+2*i+1}")
        k(f"{CVT} v{HP+8+i}, v{Y1+2*i}, v{Y1+2*i+1}")
    k("v_lshlrev_b32 v2, 4, v1")
    k(f"buffer_store_dwordx4 {vr(HP,4)}, v2, s[16:19], s31 offen {ST_P3}")
    k(f"buffer_store_dwordx4 {vr(HP+4,4)}, v2, s[16:19], s31 offen offset:1024 {ST_P3}")
    k(f"buffer_store_dwordx4 {vr(HP+8,4)}, v2, s[16:19], s32 offen {ST_P3}")
    k(f"buffer_store_dwordx4 {vr(HP+12,4)}, v2, s[16:19], s32 offen offset:1024 {ST_P3}")
    for i in range(8):
        k(f"v_lshlrev_b32 v{R0+2*i}, 16, v{HP+i}")
        k(f"v_and_b32 v{R0+2*i+1}, s35, v{HP+i}")
        k(f"v_lshlrev_b32 v{R1+2*i}, 16, v{HP+8+i}")
        k(f"v_and_b32 v{R1+2*i+1}, s35, v{HP+8+i}")
    if not fused: mark(k, 4)
    if LN_FUSE:
        assert not (EMU_LN or EMU_L2)
        ln_stats_rows(k, R0, R1, T, RM, 40, twice=True)
        ln_apply_rows(k, R0, R1, RM, Y0, Y1)
    else:
        ln_stats_rows(k, R0, R1, T, RM, 40)
        if EMU_L2:
            ln_apply_rows(k, R0, R1, RM, Y0, Y1)
            LP = OP
            for i in range(8):
                k(f"{CVT} v{LP+i}, v{Y0+2*i}, v{Y0+2*i+1}")
                k(f"{CVT} v{LP+8+i}, v{Y1+2*i}, v{Y1+2*i+1}")
            for i in range(8):
                k(f"v_lshlrev_b32 v{R0+2*i}, 16, v{LP+i}")
                k(f"v_and_b32 v{R0+2*i+1}, s35, v{LP+i}")
                k(f"v_lshlrev_b32 v{R1+2*i}, 16, v{LP+8+i}")
                k(f"v_and_b32 v{R1+2*i+1}, s35, v{LP+8+i}")
        else:
            ln_apply_rows(k, R0, R1, RM, R0, R1)
        ln_stats_rows(k, R0, R1, T, RM, 40)
        ln_apply_rows(k, R0, R1, RM, Y0, Y1)
    for i in range(8):
        k(f"{CVT} v{NP+i}, v{Y0+2*i}, v{Y0+2*i+1}")
        k(f"{CVT} v{NP+8+i}, v{Y1+2*i}, v{Y1+2*i+1}")
    k(f"buffer_store_dwordx4 {vr(NP,4)}, v2, s[20:23], s31 offen {ST_P3}")
    k(f"buffer_store_dwordx4 {vr(NP+4,4)}, v2, s[20:23], s31 offen offset:1024 {ST_P3}")
    k(f"buffer_store_dwordx4 {vr(NP+8,4)}, v2, s[20:23], s32 offen {ST_P3}")
    k(f"buffer_store_dwordx4 {vr(NP+12,4)}, v2, s[20:23], s32 offen offset:1024 {ST_P3}")

def gen_p3():
    k = Kern('p3_kernel')
    k("s_cmp_ge_u32 s2, 256")
    k("s_cbranch_scc1 L_p3_end")
    stamp_begin(k)
    k("s_load_dwordx2 s[4:5], s[0:1], 0")
    k("s_load_dwordx2 s[26:27], s[0:1], 80")
    k("s_load_dwordx2 s[24:25], s[0:1], 32")
    k("v_and_b32 v1, 63, v0")
    k("v_lshrrev_b32 v2, 6, v0")
    k("v_readfirstlane_b32 s28, v2")
    pf_wave(k, 'p3', W1PF0 + 256*W1PF)
    first_tiles_wave(k)
    p3_body(k, False)
    stamp_end(k, 'p3')
    k("L_p3_end:")
    k("s_endpgm")
    return k, 228, 33792

def gen_p23(): return gen_p2(True)

MF16 = 'v_mfma_f32_16x16x32_bf16'

def interleave(mf, rd, lead=0):
    out = []; n = len(mf); m = len(rd); ri = 0
    for i in range(n):
        out.append(mf[i])
        tgt = min(m, (m*(i+1) + n - 1)//n)
        while ri < tgt:
            out.append(rd[ri]); ri += 1
    out += rd[ri:]
    return out

def producer_loop(k, tag, per, issue, NS, NIT, check=None):
    mark(k, 1)
    issue()
    mark(k, 2)
    issue()
    k(f"s_waitcnt vmcnt({per})")
    mark(k, 3)
    if check: check()
    k("s_barrier")
    for n in range(2, NS): issue()
    mark(k, 4)
    nmain = NIT - NS
    k(f"s_mov_b32 s60, 0")
    k(f"L_{tag}_ploop:")
    k(f"s_waitcnt vmcnt({(NS-2)*per})")
    if check: check()
    k("s_barrier")
    issue()
    k("s_add_u32 s60, s60, 1")
    k(f"s_cmp_lt_u32 s60, {nmain}")
    k(f"s_cbranch_scc1 L_{tag}_ploop")
    for n in range(nmain, NIT-1):
        k(f"s_waitcnt vmcnt({(NIT-1-(n+1))*per})")
        k("s_barrier")


XB_OFF = ZW_OFF
FL_OFF = 0x2800000
def gemm_kernel(tag, fused=False, mega=False):
    g1 = tag == 'g1'
    k = Kern('gg_kernel' if fused else tag + '_kernel')
    ENDL = 'L_gg_end' if fused else f'L_{tag}_end'
    ASZ = 16384; STG = 32768; NS = 4 if STATIC else (5 if BAR2 else 3)
    NIT = 32 if g1 else 28
    BSTR = 7168 if g1 else 4096
    NB23 = 6
    if mega and g1:
        k("L_g1_entry:")
    elif not (fused and not g1):
        k(f"s_cmp_ge_u32 s2, 256")
        k(f"s_cbranch_scc1 {ENDL}")
    elif FUSE_GG == 2 and EARLY2:
        k("L_gbar:")
        k("s_lshl_b32 s3, s30, 5")
        k("s_add_u32 s3, s3, s29")
        k("s_lshl_b32 s3, s3, 7")
        k("L_g2start:")
        k("s_cmp_ge_u32 s28, 4")
        k("s_cbranch_scc1 L_g2_pro")
        k("s_waitcnt vmcnt(0)")
        k("s_barrier")
        k("s_cmp_eq_u32 s3, -1")
        k("s_cbranch_scc1 L_g2_pro")
        srd(k, 56, 26, 288*128, FG_OFF)
        k("v_mov_b32 v2, 1")
        k("v_mov_b32 v3, 0")
        k("v_cmp_eq_u32 vcc, 0, v0")
        k("s_and_saveexec_b64 s[44:45], vcc")
        k("s_cbranch_execz L_g2_nopubx")
        k("buffer_store_dword v2, v3, s[56:59], s3 offen sc0 sc1")
        k("L_g2_nopubx:")
        k("s_mov_b64 exec, -1")
        k("L_g2_pro:")
    elif FUSE_GG == 2:
        k("L_gbar:")
        k("s_waitcnt vmcnt(0)")
        k("s_barrier")
        srd(k, 36, 26, 288*128, FG_OFF)
        k("v_cmp_eq_u32 vcc, 0, v0")
        k("s_and_saveexec_b64 s[34:35], vcc")
        k("s_cbranch_execz L_gbar_noarr")
        k("s_lshl_b32 s33, s30, 5")
        k("s_add_u32 s33, s33, s29")
        k("s_lshl_b32 s33, s33, 7")
        k("v_mov_b32 v2, 1")
        k("v_mov_b32 v3, 0")
        k("buffer_store_dword v2, v3, s[36:39], s33 offen sc0 sc1")
        k("L_gbar_noarr:")
        k("s_mov_b64 exec, -1")
        k("L_g2start:")
    else:
        k("L_gbar:")
        k("s_load_dwordx2 s[26:27], s[0:1], 80")
        k("s_waitcnt vmcnt(0) lgkmcnt(0)")
        k("s_barrier")
        srd(k, 36, 26, 1024, BAR_OFF)
        k("v_cmp_eq_u32 vcc, 0, v0")
        k("s_and_saveexec_b64 s[34:35], vcc")
        k("s_cbranch_execz L_gbar_noarr")
        k("s_and_b32 s33, s2, 7")
        k("s_lshl_b32 s33, s33, 7")
        k("v_mov_b32 v2, 1")
        k("v_mov_b32 v3, 0")
        k("buffer_atomic_add v2, v3, s[36:39], s33 offen sc1")
        k("L_gbar_noarr:")
        k("s_mov_b64 exec, -1")
    stamp_begin(k)
    if g1:
        k("s_load_dwordx4 s[4:7], s[0:1], 32")
        k("s_load_dwordx2 s[24:25], s[0:1], 48")
    else:
        k("s_load_dwordx4 s[4:7], s[0:1], 48")
        k("s_load_dwordx2 s[24:25], s[0:1], 64")
    k("s_load_dwordx2 s[26:27], s[0:1], 80")
    k("v_and_b32 v1, 63, v0")
    k("v_lshrrev_b32 v2, 6, v0")
    k("v_readfirstlane_b32 s28, v2")
    if g1:
        k("s_and_b32 s30, s2, 1")
        k("s_lshl_b32 s30, s30, 2")
        k("s_bfe_u32 s52, s2, 0x20003")
        k("s_add_u32 s30, s30, s52")
        k("s_bfe_u32 s29, s2, 0x20001")
        k("s_mul_i32 s29, s29, 7")
        k("s_lshr_b32 s53, s2, 5")
        k("s_add_u32 s29, s29, s53")
        k("s_mov_b32 s63, 0")
        k("s_and_b32 s55, s2, 1")
        k(f"s_mul_i32 s55, s55, {16 if KHALF else 0}")
    else:
        if MAP2 == 1:
            k("s_bfe_u32 s62, s2, 0x10003")
            k("s_bfe_u32 s29, s2, 0x20001")
            k("s_lshl_b32 s29, s29, 2")
            k("s_bfe_u32 s52, s2, 0x20004")
            k("s_add_u32 s29, s29, s52")
            k("s_lshr_b32 s53, s2, 6")
            k("s_and_b32 s30, s2, 1")
            k("s_lshl_b32 s30, s30, 2")
            k("s_add_u32 s30, s30, s53")
        elif MAP2 == 2:
            k("s_bfe_u32 s62, s2, 0x10002")
            k("s_bfe_u32 s52, s2, 0x20003")
            k("s_lshr_b32 s53, s2, 5")
            k("s_and_b32 s30, s2, 1")
            k("s_lshl_b32 s30, s30, 2")
            k("s_add_u32 s30, s30, s52")
            k("s_bfe_u32 s34, s2, 0x10001")
            k("s_lshl_b32 s29, s34, 3")
            k("s_add_u32 s29, s29, s53")
        else:
            k("s_and_b32 s62, s2, 1")
            k("s_bfe_u32 s29, s2, 0x20001")
            k("s_lshl_b32 s29, s29, 2")
            k("s_bfe_u32 s52, s2, 0x20003")
            k("s_add_u32 s29, s29, s52")
            k("s_lshr_b32 s53, s2, 5")
            k("s_mov_b32 s30, s53")
        k("s_mov_b32 s55, 0")
        if MAP2 == 2:
            k("s_mul_i32 s55, s34, 7")
            k("s_add_u32 s55, s55, s53")
            k("s_lshl_b32 s55, s55, 1")
            k("s_add_u32 s55, s55, 1")
            k("s_cmp_ge_u32 s55, 28")
            k("s_cselect_b32 s34, 28, 0")
            k("s_sub_u32 s55, s55, s34")
        k("s_mul_i32 s63, s62, 28")
        srd(k, 56, 26, 256*64, FL_OFF) if False else None
    k("s_lshl_b32 s31, s29, 8")
    k("s_lshl_b32 s32, s30, 8")
    k("s_waitcnt lgkmcnt(0)")
    if g1:
        srd(k, 8, 4, S*F*2)
        srd(k, 12, 26, S*D*2, HN_OFF)
        srd(k, 16, 26, F*D*2, GT_OFF)
        srd(k, 20, 6, F*2)
        if not XSENT:
            srd(k, 44, 26, 256*64, FL_OFF)
            k("s_lshl_b32 s33, s2, 6")
            k("v_mov_b32 v2, 0")
            k("v_lshlrev_b32 v3, 2, v0")
            k("v_cmp_gt_u32 vcc, 16, v0")
            k("s_and_saveexec_b64 s[34:35], vcc")
            k(f"s_cbranch_execz L_{tag}_nozf")
            k("buffer_store_dword v2, v3, s[44:47], s33 offen sc0 sc1")
            k(f"L_{tag}_nozf:")
            k("s_mov_b64 exec, -1")
        k("s_cmp_lt_u32 s2, 224")
        k(f"s_cbranch_scc1 L_{tag}_main")
        def idle_fill():
            srd(k, 44, 26, 256*(16384 if XBF16 else 32768), 0x1E00000 if XB_SEP else VB_OFF)
            k("s_sub_u32 s33, s2, 224")
            k("s_lshl_b32 s33, s33, 17")
            k("v_lshlrev_b32 v2, 4, v0")
            for i in range(4): k(f"v_mov_b32 v{4+i}, -1")
            k("s_mov_b32 s34, 0")
            k(f"L_{tag}_clr:")
            k("buffer_store_dwordx4 v[4:7], v2, s[44:47], s33 offen sc0 sc1")
            k("s_add_u32 s33, s33, 8192")
            k("s_add_u32 s34, s34, 1")
            k("s_cmp_lt_u32 s34, 16")
            k(f"s_cbranch_scc1 L_{tag}_clr")
        if mega:
            k("s_cmp_ge_u32 s28, 4")
            k(f"s_cbranch_scc0 L_{tag}_nb23")
            for i in range(NB23): k("s_barrier")
            k(f"L_{tag}_nb23:")
        if fused and FUSE_GG == 2:
            idle_fill()
            k("s_waitcnt vmcnt(0)")
            k("s_barrier")
            srd(k, 36, 26, 288*128, FG_OFF)
            k("s_add_u32 s33, s2, 32")
            k("s_lshl_b32 s33, s33, 7")
            k("v_mov_b32 v2, 1")
            k("v_mov_b32 v3, 0")
            k("v_cmp_eq_u32 vcc, 0, v0")
            k("s_and_saveexec_b64 s[34:35], vcc")
            k(f"s_cbranch_execz L_{tag}_nofl")
            k("buffer_store_dword v2, v3, s[36:39], s33 offen sc0 sc1")
            k(f"L_{tag}_nofl:")
            k("s_mov_b64 exec, -1")
        if W1IDLE:
            k("s_sub_u32 s33, s2, 224")
            k("s_mul_i32 s33, s33, 112")
            k("v_mul_u32_u24 v3, 586, v0")
            k("v_lshrrev_b32 v3, 16, v3")
            k("v_mul_u32_u24 v4, 112, v3")
            k("v_sub_u32 v4, v0, v4")
            k("v_add_u32 v4, s33, v4")
            k("v_mul_u32_u24 v5, 4682, v4")
            k("v_lshrrev_b32 v5, 18, v5")
            k("v_mul_u32_u24 v6, 56, v5")
            k("v_sub_u32 v6, v4, v6")
            k("v_and_b32 v7, 1, v3")
            k("v_lshrrev_b32 v8, 1, v3")
            k("v_lshl_add_u32 v7, v7, 4, v8")
            k("v_lshl_add_u32 v5, v7, 6, v5")
            k("v_mul_u32_u24 v5, 7168, v5")
            k("v_lshl_add_u32 v2, v6, 7, v5")
            k("v_cmp_gt_u32 vcc, 448, v0")
            k("s_and_saveexec_b64 s[34:35], vcc")
            k(f"s_cbranch_execz L_{tag}_now1")
            k(f"s_mov_b32 s33, {W1IDLE*64*7168}")
            for i in range((16-W1IDLE)//2):
                k(f"buffer_load_dword v9, v2, s[8:11], s33 offen")
                k(f"s_add_u32 s33, s33, {2*64*7168}")
            k(f"L_{tag}_now1:")
            k("s_mov_b64 exec, -1")
        if W2PF:
            srd(k, 48, 24, F*S*2)
            k("s_sub_u32 s33, s2, 224")
            k("s_and_b32 s34, s33, 15")
            k("s_lshr_b32 s35, s33, 4")
            k(f"s_mul_i32 s35, s35, {1792*4096}")
            k("s_lshl_b32 s33, s34, 16")
            k("s_add_u32 s33, s33, s35")
            if W2WAVES == 8:
                k("v_lshlrev_b32 v2, 7, v0")
                for i in range(W2PF):
                    k(f"buffer_load_dword v9, v2, s[48:51], s33 offen")
                    k(f"s_add_u32 s33, s33, {16*65536}")
            else:
                k(f"s_cmp_ge_u32 s28, {W2WAVES}")
                k(f"s_cbranch_scc1 L_{tag}_now2")
                k("v_lshlrev_b32 v2, 7, v1")
                k(f"s_mul_i32 s34, s28, {8192*(8//W2WAVES)}")
                k("s_add_u32 s33, s33, s34")
                k("s_mov_b32 s35, 0")
                k(f"L_{tag}_w2l:")
                for q in range(8//W2WAVES):
                    k(f"s_add_u32 s34, s33, {8192*q}")
                    k(f"buffer_load_dword v9, v2, s[48:51], s34 offen")
                    k(f"s_waitcnt vmcnt({W2DEPTH})")
                k(f"s_add_u32 s33, s33, {16*65536}")
                k("s_add_u32 s35, s35, 1")
                k(f"s_cmp_lt_u32 s35, {W2PF}")
                k(f"s_cbranch_scc1 L_{tag}_w2l")
                k(f"L_{tag}_now2:")
        if XSENT and not (fused and FUSE_GG == 2): idle_fill()
        if fused and FUSE_GG == 2: k("s_waitcnt vmcnt(0)")
        if fused and FUSE_GG == 2 and EARLY2: k("s_mov_b32 s3, -1")
        stamp_end(k, tag, tid=0, slot=256, sfx='idle')
        k(f"s_branch {('L_g2start' if FUSE_GG == 2 else 'L_gbar') if fused else ENDL}")
        k(f"L_{tag}_main:")
    else:
        srd(k, 8, 4, F*S*2)
        srd(k, 12, 26, F*D*2, GT_OFF)
        srd(k, 16, 26, S*D*2, H_OFF)
        srd(k, 20, 6, S*2)
        srd(k, 48, 24, S*D*2)
        if not XSENT:
            k("s_getreg_b32 s54, hwreg(HW_REG_XCC_ID, 0, 4)")
            k("s_add_u32 s54, s54, 1")
            srd(k, 56, 26, 256*64, FL_OFF)
            k("s_lshl_b32 s33, s2, 6")
            k("v_mov_b32 v2, s54")
            k("v_mov_b32 v3, 0")
            k("v_cmp_eq_u32 vcc, 0, v0")
            k("s_and_saveexec_b64 s[34:35], vcc")
            k(f"s_cbranch_execz L_{tag}_nopub")
            k("buffer_store_dword v2, v3, s[56:59], s33 offen offset:4 sc0 sc1")
            k(f"L_{tag}_nopub:")
            k("s_mov_b64 exec, -1")
    if PRODFIRST:
        k("s_cmp_lt_u32 s28, 4")
        k(f"s_cbranch_scc1 L_{tag}_cons")
    else:
        k("s_cmp_ge_u32 s28, 4")
        k(f"s_cbranch_scc1 L_{tag}_prod")
    i_cons = len(k.l)
    k(f"L_{tag}_cons:")
    ACC = 8; X = 72; Y = 136; R = 200
    AA = [R+i for i in range(4)]; AB = [R+4+i for i in range(4)]
    BA = [R+8+i for i in range(4)]; BB = [R+12+i for i in range(4)]
    MISC = R + 16
    k("s_and_b32 s33, s28, 1")
    k("s_lshr_b32 s36, s28, 1")
    k("v_lshrrev_b32 v2, 4, v1")
    k("v_bfe_u32 v3, v1, 2, 2")
    k("v_and_b32 v4, 3, v1")
    k("v_lshl_add_u32 v5, v2, 2, v3")
    k("v_and_b32 v6, 7, v5")
    k("v_lshlrev_b32 v6, 1, v6")
    k("v_lshrrev_b32 v7, 1, v4")
    k("v_and_b32 v9, 1, v4")
    for (base, w, add) in ((BA, 's33', 0), (BB, 's36', ASZ)):
        k(f"s_lshl_b32 s35, {w}, 3")
        k("v_add_u32 v10, s35, v7")
        k("v_xor_b32 v10, v10, v6")
        k("v_lshlrev_b32 v10, 4, v10")
        k("v_lshl_add_u32 v10, v9, 3, v10")
        k("v_lshl_add_u32 v10, v5, 8, v10")
        if add: k(f"v_add_u32 v10, {add}, v10")
        k(f"v_mov_b32 v{base[0]}, v10")
        for t in range(1, 4): k(f"v_xor_b32 v{base[t]}, {32*t}, v10")
    for t in range(4):
        k(f"v_mov_b32 v{AA[t]}, v{BA[t]}"); k(f"v_mov_b32 v{AB[t]}, v{BB[t]}")
    BIAS = MISC
    k("v_and_b32 v2, 15, v1")
    k("v_lshlrev_b32 v2, 1, v2")
    k("s_lshl_b32 s37, s36, 7")
    k("s_add_u32 s37, s37, s31")
    for t in range(4):
        k(f"buffer_load_ushort v{BIAS+t}, v2, s[20:23], s37 offen offset:{32*t}")
    OV = MISC+4
    k("v_and_b32 v2, 15, v1")
    k("v_lshlrev_b32 v2, 11, v2")
    k("v_lshrrev_b32 v3, 4, v1")
    k(f"v_lshl_add_u32 v{OV}, v3, 4, v2")
    k("s_lshl_b32 s38, s29, 7")
    k("s_lshl_b32 s39, s36, 6")
    k("s_add_u32 s38, s38, s39")
    k("s_lshl_b32 s38, s38, 11")
    k("s_add_u32 s38, s38, s32")
    k("s_lshl_b32 s39, s33, 7")
    k("s_add_u32 s38, s38, s39")
    if not g1:
        HL = MISC+6
        NV = HL+16
        if OUT_TOUCH:
            k("s_lshl_b32 s39, s62, 16")
            k("s_add_u32 s39, s39, s38")
            k(f"buffer_load_dword v{NV}, v{OV}, s[48:51], s39 offen")
            NV += 1
    else:
        NV = MISC+5
    def reads(dst, buf=None):
        r = []
        for ks in range(2):
            b = dst + 32*ks; ko = 32*ks
            for t in range(4):
                if buf is None: regs = (AA[t], AB[t]); bo = 0
                else:
                    regs = (BA[t], BB[t]) if buf < 2 else (AA[t], AB[t]); bo = (buf % 2)*STG
                for (o, a) in ((0, regs[0]), (16, regs[1])):
                    r.append(f"ds_read_b64_tr_b16 {vr(b+o+4*t,2)}, v{a} offset:{bo+ko*256}")
                    r.append(f"ds_read_b64_tr_b16 {vr(b+o+4*t+2,2)}, v{a} offset:{bo+(ko+16)*256}")
        return r
    def mfmas(src):
        m = []
        for ks in range(2):
            b = src + 32*ks
            order = sorted([(td, tn) for td in range(4) for tn in range(4)], key=lambda x: (max(x), x))
            if FAKE32:
                for i in range(8):
                    a = ACC + 16*(i % 4)
                    m.append(f"{MF32} {vr(a,16)}, {vr(b+4*(i%4),4)}, {vr(b+16+4*((i//2)%4),4)}, {vr(a,16)}")
                continue
            for td, tn in order:
                a = ACC + 4*(4*tn+td)
                m.append(f"{MF16} {vr(a,4)}, {vr(b+4*td,4)}, {vr(b+16+4*tn,4)}, {vr(a,4)}")
        return m
    def sched(mf, rd, extra):
        out = []; ri = 0; ei = 0
        for i, m in enumerate(mf):
            out.append(m)
            if ri < len(rd):
                for _ in range(RPAT[i % len(RPAT)]):
                    if ri < len(rd): out.append(rd[ri]); ri += 1
            elif ei < len(extra):
                out.append(extra[ei]); ei += 1
        out += rd[ri:] + extra[ei:]
        return out
    def upd():
        e = [f"s_add_u32 s34, s34, {STG}", f"s_cmp_eq_u32 s34, {STG*NS}", "s_cselect_b32 s34, 0, s34"]
        e += [f"v_add_u32 v{AA[t]}, s34, v{BA[t]}" for t in range(4)]
        e += [f"v_add_u32 v{AB[t]}, s34, v{BB[t]}" for t in range(4)]
        return e
    for i in range(64): k(f"v_mov_b32 v{ACC+i}, 0")
    k("s_mov_b32 s34, 0")
    k("s_mov_b32 s35, 0")
    if fused and not g1 and FUSE_GG == 1: k("s_barrier")
    if mega and g1: k("s_barrier")
    mark(k, 1)
    k("s_barrier")
    mark(k, 2)
    if STATIC:
        for t in range(4):
            k(f"v_add_u32 v{AA[t]}, 65536, v{BA[t]}"); k(f"v_add_u32 v{AB[t]}, 65536, v{BB[t]}")
        for x in reads(X, 0): k(x)
        k(f"L_{tag}_cloop:")
        for u in range(4):
            cur, nxt = (X, Y) if u % 2 == 0 else (Y, X)
            k("s_waitcnt lgkmcnt(0)")
            k("s_barrier")
            ex = ["s_add_u32 s35, s35, 4", f"s_cmp_lt_u32 s35, {NIT-4}"] if u == 3 else []
            for x in sched(mfmas(cur), reads(nxt, (u+1) % 4), ex): k(x)
        k(f"s_cbranch_scc1 L_{tag}_cloop")
        for u in range(2):
            cur, nxt = (X, Y) if u % 2 == 0 else (Y, X)
            k("s_waitcnt lgkmcnt(0)")
            k("s_barrier")
            for x in sched(mfmas(cur), reads(nxt, u+1), []): k(x)
    else:
        for x in reads(X): k(x)
        for x in upd(): k(x)
        k(f"L_{tag}_cloop:")
        k("s_waitcnt lgkmcnt(0)")
        if LOOPSTAMP:
            k(f"s_cmp_eq_u32 s35, {LOOPSTAMP}")
            k(f"s_cbranch_scc0 L_{tag}_nolatch")
            for i in range(4): k(f"s_mov_b64 s[{96-20+2*i}:{97-20+2*i}], s[{66+2*i}:{67+2*i}]") if False else None
            k("s_sub_u32 s90, s68, s66"); k("s_sub_u32 s91, s70, s68"); k("s_sub_u32 s92, s72, s70")
            k("s_memtime s[82:83]"); k("s_waitcnt lgkmcnt(0)"); k("s_sub_u32 s93, s82, s72")
            k(f"L_{tag}_nolatch:")
        k("s_barrier")
        if LOOPSTAMP: k("s_memtime s[66:67]")
        for x in sched(mfmas(X), reads(Y), upd()): k(x)
        if LOOPSTAMP: k("s_memtime s[68:69]")
        k("s_waitcnt lgkmcnt(0)")
        if not BAR2: k("s_barrier")
        if LOOPSTAMP: k("s_memtime s[70:71]")
        for x in sched(mfmas(Y), reads(X), upd() + ["s_add_u32 s35, s35, 2", f"s_cmp_lt_u32 s35, {NIT-2}"]): k(x)
        if LOOPSTAMP: k("s_memtime s[72:73]")
        k(f"s_cbranch_scc1 L_{tag}_cloop")
    if LOOPSTAMP:
        k("s_waitcnt lgkmcnt(0)")
        for i in range(4):
            k(f"s_mov_b32 s{66+2*i}, s{90+i}"); k(f"s_mov_b32 s{67+2*i}, 0")
    XID = 3
    if not g1:
        if not XSENT:
            k(f"s_xor_b32 s42, s2, {8 if MAP2 == 1 else (4 if MAP2 == 2 else 1)}")
            k("s_lshl_b32 s39, s42, 6")
            k("v_mov_b32 v4, 0")
            k(f"buffer_load_dword v{XID}, v4, s[56:59], s39 offen offset:4 sc0 sc1")
        if fused and FUSE_GG == 2:
            srd(k, 56, 26, 288*128, FG_OFF)
            k("s_lshr_b32 s39, s2, 3")
            k("s_add_u32 s39, s39, 256")
            k("s_lshl_b32 s60, s39, 7")
            k("v_mov_b32 v4, 0")
            k(f"buffer_load_dword v{XID}, v4, s[56:59], s60 offen sc0 sc1")
        k("s_lshl_b32 s39, s62, 16")
        k("s_add_u32 s39, s39, s38")
        for tnl in range(1 if XSHARE else 2):
            for tp in range(2):
                k(f"s_add_u32 s40, s39, {tnl*16*2048 + tp*64}")
                k(f"buffer_load_dwordx4 {vr(HL+8*tnl+4*tp,4)}, v{OV}, s[16:19], s40 offen")
    k("s_waitcnt lgkmcnt(0)")
    k("s_barrier")
    for x in sched(mfmas(X), reads(Y, 3 if STATIC else None), []): k(x)
    k("s_waitcnt lgkmcnt(0)")
    for x in mfmas(Y): k(x)
    mark(k, 3)
    k("s_mov_b32 s40, 0xffff0000")
    T = X
    def pack_swap(P):
        k(f"v_permlane32_swap_b32 v{P}, v{P+2}")
        k(f"v_permlane32_swap_b32 v{P+1}, v{P+3}")
        k(f"v_permlane16_swap_b32 v{P}, v{P+2}")
        k(f"v_permlane16_swap_b32 v{P+1}, v{P+3}")
    def store_lines(P0, P1, tmp, so, srdreg):
        for i in range(4): k(f"v_mov_b32 v{tmp+i}, v{P0+i}")
        for i in range(4): k(f"v_mov_b32_dpp v{P0+i}, v{P1+i} row_ror:8 row_mask:0xf bank_mask:0xc")
        for i in range(4): k(f"v_mov_b32_dpp v{P1+i}, v{tmp+i} row_ror:8 row_mask:0xf bank_mask:0x3")
        fl = ST_G1 if g1 else ST_G2
        k(f"s_add_u32 s41, s38, {so}")
        k(f"buffer_store_dwordx4 {vr(P0,4)}, v{OVS}, s[{srdreg}:{srdreg+3}], s41 offen {fl}")
        k(f"s_add_u32 s41, s38, {so + 8*2048}")
        k(f"buffer_store_dwordx4 {vr(P1,4)}, v{OVS}, s[{srdreg}:{srdreg+3}], s41 offen {fl}")
    OVS = 3
    def set_ovs():
        k("v_and_b32 v2, 7, v1")
        k("v_lshlrev_b32 v2, 11, v2")
        k("v_bfe_u32 v3, v1, 3, 1")
        k("v_lshl_add_u32 v2, v3, 6, v2")
        k("v_lshrrev_b32 v3, 4, v1")
        k(f"v_lshl_add_u32 v{OVS}, v3, 4, v2")
    if g1:
        SH = (65536 if (fused and EARLY2) else 32768) if STATIC else (98304 if BAR2 else 65536)
        k("s_lshl_b32 s39, s28, 13")
        k(f"s_add_u32 s39, s39, {SH}")
        k("v_lshl_add_u32 v2, v1, 4, s39")
        for i in range(8): k(f"ds_write_b128 v2, {vr(ACC+32+4*i,4)} offset:{1024*i}")
        k("s_waitcnt vmcnt(0) lgkmcnt(0)")
        k("s_barrier")
        mark(k, 4)
        k(f"L_{tag}_epi:")
        for t in range(2): k(f"v_lshlrev_b32 v{BIAS+t}, 16, v{BIAS+t}")
        c0 = -2.0*math.log2(math.e)*math.sqrt(2.0/math.pi); c1 = c0*0.044715
        k("s_mov_b32 s40, 0xffff0000")
        k(f"s_mov_b32 s42, {f32(c1)}")
        k(f"v_mov_b32 v4, {f32(c0)}"); k(f"v_mov_b32 v5, {f32(c0)}")
        k(f"v_mov_b32 v6, 1.0"); k(f"v_mov_b32 v7, 1.0")
        set_ovs()
        for tn in range(2):
            for tp in range(2):
                P = T + 4*tp + 24*tn
                for q in range(4):
                    td = 2*tp + q//2
                    src = ACC + 4*(4*tn+td) + 2*(q % 2)
                    u, w = T+8+4*q, T+10+4*q
                    gelu_pair(k, src, u, w, BIAS+tn, P+q)
                pack_swap(P)
            store_lines(T+24*tn, T+24*tn+4, T+32, tn*16*2048, 16)
    else:
        if XSHARE:
            assert XSENT and XBF16
            SHX, SHY = 0, 16384
            k("s_waitcnt vmcnt(0)")
            srd(k, 44, 26, 256*16384, 0x1E00000 if XB_SEP else VB_OFF)
            k(f"s_xor_b32 s42, s2, {8 if MAP2 == 1 else (4 if MAP2 == 2 else 1)}")
            k("s_lshl_b32 s43, s42, 14")
            k("s_lshl_b32 s39, s28, 12")
            k("s_add_u32 s43, s43, s39")
            k("v_lshlrev_b32 v2, 4, v1")
            k("s_cmp_eq_u32 s62, 0")
            k(f"s_cbranch_scc1 L_{tag}_k0")
            for half, l2 in ((0, None), (32, f"L_{tag}_k0:")):
                if l2: k(l2)
                for i in range(16): k(f"{CVT} v{Y+32+i}, v{ACC+half+2*i}, v{ACC+half+2*i+1}")
                for i in range(4):
                    k(f"s_add_u32 s39, s43, {1024*i}")
                    k(f"buffer_store_dwordx4 {vr(Y+32+4*i,4)}, v2, s[44:47], s39 offen sc0 sc1")
                if half == 0:
                    for i in range(32): k(f"v_mov_b32 v{ACC+i}, v{ACC+32+i}")
                    k(f"v_mov_b32 v{BIAS}, v{BIAS+2}")
                    k(f"s_branch L_{tag}_k1")
            k(f"L_{tag}_k1:")
            k("s_lshl_b32 s39, s28, 12")
            k(f"v_add_u32 v3, s39, v2")
            for i in range(4): k(f"ds_write_b128 v3, {vr(ACC+16+4*i,4)} offset:{SHX+1024*i}")
            k("s_lshl_b32 s39, s62, 16")
            k("s_add_u32 s38, s38, s39")
            k("s_lshl_b32 s39, s28, 11")
            k(f"v_add_u32 v3, s39, v2")
            k("s_waitcnt vmcnt(0) lgkmcnt(0)" if XWAIT else "s_waitcnt lgkmcnt(0)")
            k("s_barrier")
            k("s_barrier")
            k(f"ds_read_b128 {vr(Y+40,4)}, v3 offset:{SHY}")
            k(f"ds_read_b128 {vr(Y+44,4)}, v3 offset:{SHY+1024}")
            k("s_waitcnt lgkmcnt(0)")
            mark(k, 4)
            k(f"L_{tag}_epi:")
            k("s_mov_b32 s40, 0xffff0000")
            k(f"v_lshlrev_b32 v{BIAS}, 16, v{BIAS}")
            if PERTURB: k(f"v_add_f32 v{BIAS}, {f32(PERTURB)}, v{BIAS}")
            set_ovs()
            for tp in range(2):
                P = T + 4*tp
                for q in range(4):
                    td = 2*tp + q//2
                    a_ = ACC + 4*td + 2*(q % 2); y = Y + 4*td + 2*(q % 2)
                    u, w = T+8+4*q, T+10+4*q
                    pk = Y + 40 + (4*td + 2*(q % 2))//2
                    k(f"v_lshlrev_b32 v{y}, 16, v{pk}")
                    k(f"v_and_b32 v{y+1}, s40, v{pk}")
                    k(f"v_pk_add_f32 {vr(a_,2)}, {vr(a_,2)}, {vr(y,2)}")
                    k(f"v_add_f32 v{u}, v{a_}, v{BIAS}")
                    k(f"v_add_f32 v{u+1}, v{a_+1}, v{BIAS}")
                    k(f"{CVT} v{P+q}, v{u}, v{u+1}")
                pack_swap(P)
                for q in range(4):
                    u, w = T+8+4*q, T+10+4*q
                    hp = HL+4*tp+q
                    k(f"v_lshlrev_b32 v{u}, 16, v{P+q}")
                    k(f"v_and_b32 v{u+1}, s40, v{P+q}")
                    k(f"v_lshlrev_b32 v{w}, 16, v{hp}")
                    k(f"v_and_b32 v{w+1}, s40, v{hp}")
                    k(f"v_pk_add_f32 {vr(u,2)}, {vr(u,2)}, {vr(w,2)}")
                    k(f"{CVT} v{P+q}, v{u}, v{u+1}")
            store_lines(T, T+4, T+32, 0, 48)
        else:
            k("s_waitcnt vmcnt(0)")
            srd(k, 44, 26, 256*(16384 if XBF16 else 32768), 0x1E00000 if XB_SEP else VB_OFF)
            if not XSENT: srd(k, 56, 26, 256*64, FL_OFF)
            k(f"s_xor_b32 s42, s2, {8 if MAP2 == 1 else (4 if MAP2 == 2 else 1)}")
            k(f"s_lshl_b32 s43, s42, {14 if XBF16 else 15}")
            k(f"s_lshl_b32 s39, s28, {12 if XBF16 else 13}")
            k("s_add_u32 s43, s43, s39")
            k("v_lshlrev_b32 v2, 4, v1")
            k("v_mov_b32 v4, 0")
            if fused and FUSE_GG == 2:
                k("s_mov_b32 s41, 0")
                k(f"L_{tag}_ffp:")
                k("v_readfirstlane_b32 s61, v3")
                k("s_add_u32 s41, s41, 1")
                k("s_cmp_ge_u32 s41, 0x20000")
                k(f"s_cbranch_scc1 L_{tag}_ffd")
                k("s_cmp_lg_u32 s61, 0")
                k(f"s_cbranch_scc1 L_{tag}_ffd")
                k("buffer_load_dword v3, v4, s[56:59], s60 offen sc0 sc1")
                k("s_waitcnt vmcnt(0)")
                k(f"s_branch L_{tag}_ffp")
                k(f"L_{tag}_ffd:")
            if not XSENT:
                k("s_lshl_b32 s39, s42, 6")
                k("s_mov_b32 s41, 0")
                k("v_readfirstlane_b32 s61, v3")
                k("s_cmp_eq_u32 s61, 0")
                k(f"s_cbranch_scc0 L_{tag}_xpolld")
                k(f"L_{tag}_xpoll:")
                k("buffer_load_dword v3, v4, s[56:59], s39 offen offset:4 sc0 sc1")
                k("s_waitcnt vmcnt(0)")
                k("v_readfirstlane_b32 s61, v3")
                k("s_add_u32 s41, s41, 1")
                k("s_cmp_ge_u32 s41, 0x40000")
                k(f"s_cbranch_scc1 L_{tag}_xpolld")
                k("s_cmp_eq_u32 s61, 0")
                k(f"s_cbranch_scc1 L_{tag}_xpoll")
                k(f"L_{tag}_xpolld:")
                k("s_cmp_eq_u32 s61, s54")
                k(f"s_cselect_b32 s61, {0 if FORCE_FAR else 1}, 0")
            def sends(flags, lab):
                k("s_cmp_eq_u32 s62, 0")
                k(f"s_cbranch_scc1 L_{tag}_k0{lab}")
                for half, l2 in ((0, None), (32, f"L_{tag}_k0{lab}:")):
                    if l2: k(l2)
                    if XBF16:
                        for i in range(16): k(f"{CVT} v{Y+32+i}, v{ACC+half+2*i}, v{ACC+half+2*i+1}")
                        for i in range(4):
                            k(f"s_add_u32 s39, s43, {1024*i}")
                            k(f"buffer_store_dwordx4 {vr(Y+32+4*i,4)}, v2, s[44:47], s39 offen {flags}")
                    else:
                        for i in range(8):
                            k(f"s_add_u32 s39, s43, {1024*i}")
                            k(f"buffer_store_dwordx4 {vr(ACC+half+4*i,4)}, v2, s[44:47], s39 offen {flags}")
                    if half == 0: k(f"s_branch L_{tag}_k1{lab}")
                k(f"L_{tag}_k1{lab}:")
            def handoff(stf, ldf, lab):
                sends(stf, lab)
                k("s_waitcnt vmcnt(0)")
                k("s_lshl_b32 s39, s42, 6")
                k("s_lshl_b32 s41, s28, 2")
                k("s_add_u32 s39, s39, s41")
                k("v_mov_b32 v3, 1")
                k("s_mov_b64 exec, 1")
                k(f"buffer_store_dword v3, v4, s[56:59], s39 offen offset:16 {stf}")
                k("s_lshl_b32 s39, s2, 6")
                k("s_add_u32 s39, s39, s41")
                k("s_mov_b32 s41, 0")
                k(f"L_{tag}_poll{lab}:")
                k(f"buffer_load_dword v3, v4, s[56:59], s39 offen offset:16 {ldf}")
                k("s_waitcnt vmcnt(0)")
                k("v_readfirstlane_b32 s43, v3")
                k("s_add_u32 s41, s41, 1")
                k("s_cmp_ge_u32 s41, 0x40000")
                k(f"s_cbranch_scc1 L_{tag}_polld{lab}")
                k("s_cmp_eq_u32 s43, 1")
                k(f"s_cbranch_scc0 L_{tag}_poll{lab}")
                k(f"L_{tag}_polld{lab}:")
                k("s_mov_b64 exec, -1")
                k(f"s_lshl_b32 s43, s2, {14 if XBF16 else 15}")
                k(f"s_lshl_b32 s39, s28, {12 if XBF16 else 13}")
                k("s_add_u32 s43, s43, s39")
                for i in range(4 if XBF16 else 8):
                    k(f"s_add_u32 s39, s43, {1024*i}")
                    k(f"buffer_load_dwordx4 {vr(Y+(32 if XBF16 else 0)+4*i,4)}, v2, s[44:47], s39 offen {ldf}")
            if XSENT:
                assert XBF16
                sends('sc0 sc1', 's')
                k("s_lshl_b32 s43, s2, 14")
                k("s_lshl_b32 s39, s28, 12")
                k("s_add_u32 s43, s43, s39")
                k("s_mov_b32 s41, 0")
                if XPRE: k("s_waitcnt vmcnt(0)")
                k(f"L_{tag}_spoll:")
                for i in range(4):
                    k(f"s_add_u32 s39, s43, {1024*i}")
                    k(f"buffer_load_dwordx4 {vr(Y+32+4*i,4)}, v2, s[44:47], s39 offen sc0 sc1")
                k("s_add_u32 s41, s41, 1")
                k("s_waitcnt vmcnt(0)")
                k(f"v_max3_u32 v3, v{Y+32}, v{Y+33}, v{Y+34}")
                for i in range(3, 15, 2): k(f"v_max3_u32 v3, v3, v{Y+32+i}, v{Y+32+i+1}")
                k(f"v_max_u32 v3, v3, v{Y+47}")
                k("v_cmp_eq_u32 vcc, -1, v3")
                k("s_nop 4")
                k("s_cmp_ge_u32 s41, 0x20000")
                k(f"s_cbranch_scc1 L_{tag}_spolld")
                k(f"s_cbranch_vccnz L_{tag}_spoll")
                k(f"L_{tag}_spolld:")
            else:
                k("s_cmp_eq_u32 s61, 1")
                k(f"s_cbranch_scc0 L_{tag}_far")
                handoff('', 'sc1', 'n')
                k(f"s_branch L_{tag}_xdone")
                k(f"L_{tag}_far:")
                handoff('sc0 sc1', 'sc0 sc1', 'f')
                k(f"L_{tag}_xdone:")
            k("s_cmp_eq_u32 s62, 0")
            k(f"s_cbranch_scc1 L_{tag}_kept")
            for i in range(32): k(f"v_mov_b32 v{ACC+i}, v{ACC+32+i}")
            k(f"v_mov_b32 v{BIAS}, v{BIAS+2}"); k(f"v_mov_b32 v{BIAS+1}, v{BIAS+3}")
            k(f"L_{tag}_kept:")
            mark(k, 4)
            k(f"v_lshlrev_b32 v{BIAS}, 16, v{BIAS}"); k(f"v_lshlrev_b32 v{BIAS+1}, 16, v{BIAS+1}")
            if PERTURB:
                k(f"v_add_f32 v{BIAS}, {f32(PERTURB)}, v{BIAS}"); k(f"v_add_f32 v{BIAS+1}, {f32(PERTURB)}, v{BIAS+1}")
            k("s_lshl_b32 s39, s62, 16")
            k("s_add_u32 s38, s38, s39")
            set_ovs()
            for tnl in range(2):
                for tp in range(2):
                    i0 = 4*tnl + 2*tp
                    if XSENT: pass
                    elif XBF16: k(f"s_waitcnt vmcnt({3 - i0//2})")
                    else:     k(f"s_waitcnt vmcnt({6 - i0 if i0 < 6 else 0})")
                    if i0 == 0: mark(k, 5)
                    P = T + 4*tp + 24*tnl
                    for q in range(4):
                        td = 2*tp + q//2
                        a = ACC + 4*(4*tnl+td) + 2*(q % 2); y = Y + 4*(4*tnl+td) + 2*(q % 2)
                        u, w = T+8+4*q, T+10+4*q
                        if XBF16:
                            pk = Y + 32 + (4*(4*tnl+td) + 2*(q % 2))//2
                            k(f"v_lshlrev_b32 v{y}, 16, v{pk}")
                            k(f"v_and_b32 v{y+1}, s40, v{pk}")
                        k(f"v_pk_add_f32 {vr(a,2)}, {vr(a,2)}, {vr(y,2)}")
                        if EMU_Y:
                            k(f"{CVT} v{w}, v{a}, v{a+1}")
                            k(f"v_lshlrev_b32 v{u}, 16, v{w}")
                            k(f"v_and_b32 v{u+1}, s40, v{w}")
                            k(f"v_add_f32 v{u}, v{u}, v{BIAS+tnl}")
                            k(f"v_add_f32 v{u+1}, v{u+1}, v{BIAS+tnl}")
                        else:
                            k(f"v_add_f32 v{u}, v{a}, v{BIAS+tnl}")
                            k(f"v_add_f32 v{u+1}, v{a+1}, v{BIAS+tnl}")
                        k(f"{CVT} v{P+q}, v{u}, v{u+1}")
                    pack_swap(P)
                    for q in range(4):
                        u, w = T+8+4*q, T+10+4*q
                        hp = HL+8*tnl+4*tp+q
                        k(f"v_lshlrev_b32 v{u}, 16, v{P+q}")
                        k(f"v_and_b32 v{u+1}, s40, v{P+q}")
                        k(f"v_lshlrev_b32 v{w}, 16, v{hp}")
                        k(f"v_and_b32 v{w+1}, s40, v{hp}")
                        k(f"v_pk_add_f32 {vr(u,2)}, {vr(u,2)}, {vr(w,2)}")
                        k(f"{CVT} v{P+q}, v{u}, v{u+1}")
                store_lines(T+24*tnl, T+24*tnl+4, T+32, tnl*16*2048, 48)
    stamp_end(k, tag)
    k(f"s_branch {'L_gbar' if (fused and g1) else ENDL}")
    i_prod = len(k.l)
    k(f"L_{tag}_prod:")
    if PPRIO: k(f"s_setprio {PPRIO}")
    k("s_sub_u32 s33, s28, 4")
    k("v_lshrrev_b32 v2, 4, v1")
    k("s_and_b32 s34, s33, 1")
    k("s_lshl_b32 s34, s34, 2")
    k("v_add_u32 v3, s34, v2")
    k("v_lshlrev_b32 v3, 1, v3")
    k("v_and_b32 v4, 15, v1")
    k("v_xor_b32 v3, v3, v4")
    k("v_lshlrev_b32 v3, 4, v3")
    k("v_lshl_add_u32 v8, v2, 11, v3")
    k(f"v_mul_u32_u24 v2, {BSTR}, v2")
    k("v_add_u32 v9, v2, v3")
    k("s_lshl_b32 s34, s33, 13")
    k("s_add_u32 s40, s32, s34")
    k(f"s_mul_i32 s34, s33, {4*BSTR}")
    k("s_add_u32 s41, s31, s34")
    k("s_lshl_b32 s42, s33, 10")
    k("s_mov_b32 s43, 0")
    k("s_add_u32 s46, s52, s53")
    k("s_mov_b32 s47, 0")
    if fused and (not g1) and FUSE_GG == 2: srd(k, 36, 26, 288*128, FG_OFF)
    if mega and g1:
        srd(k, 36, 26, 256*128, FH_OFF)
        k("v_and_b32 v11, 31, v1")
        k("v_lshlrev_b32 v11, 7, v11")
        for i in range(NB23): k("s_barrier")
    DF = fused and (not g1) and FUSE_GG == 2
    DH = mega and g1
    DFT = 1
    nissue = [0]
    def calc_stage(t, dst, tmp):
        if (not g1) and MAP2 == 2:
            k(f"s_add_u32 s{dst}, s52, s{t}")
            k(f"s_and_b32 s{dst}, s{dst}, 3")
            k(f"s_cmp_lt_u32 s{t}, 2")
            k(f"s_cselect_b32 s{dst}, 1, s{dst}")
            k(f"s_and_b32 s{tmp}, s{t}, 0xfffffffe")
            k(f"s_cmp_eq_u32 s{tmp}, 24")
            k(f"s_cselect_b32 s{tmp}, {NIT-21}, {NIT+3}")
            k(f"s_cmp_eq_u32 s{dst}, 0")
            k(f"s_cselect_b32 s{dst}, s{tmp}, {NIT-1}")
            k(f"s_add_u32 s{dst}, s{dst}, s{t}")
        else:
            k(f"s_add_u32 s{dst}, s46, s{t}")
            k(f"s_and_b32 s{dst}, s{dst}, 3")
            k(f"s_cmp_eq_u32 s{dst}, 0")
            k(f"s_cselect_b32 s{dst}, {3+NIT}, {NIT-1}")
            k(f"s_add_u32 s{dst}, s{dst}, s{t}")
        k(f"s_add_u32 s{dst}, s{dst}, s55")
        k(f"s_cmp_ge_u32 s{dst}, {2*NIT}")
        k(f"s_cselect_b32 s{tmp}, {2*NIT}, {NIT}")
        k(f"s_cmp_ge_u32 s{dst}, {NIT}")
        k(f"s_cselect_b32 s{tmp}, s{tmp}, 0")
        k(f"s_sub_u32 s{dst}, s{dst}, s{tmp}")
        if (not g1) and MAP2 == 2:
            k(f"s_cmp_ge_u32 s{dst}, {NIT}")
            k(f"s_cselect_b32 s{tmp}, {NIT}, 0")
            k(f"s_sub_u32 s{dst}, s{dst}, s{tmp}")
        if not KPERM: k(f"s_mov_b32 s{dst}, s{t}")
        if KWRAP: k(f"s_and_b32 s{dst}, s{dst}, {KWRAP-1}")
        k(f"s_add_u32 s{dst}, s{dst}, s63")
    def flag_off(stage, dst):
        if g1:
            k(f"s_bfe_u32 s{dst}, s{stage}, 0x30001")
            k(f"s_lshl_b32 s{dst}, s{dst}, 12")
            return
        k(f"s_lshr_b32 s{dst}, s{stage}, 1")
        k(f"s_lshl_b32 s{dst}, s{dst}, 7")
        k(f"s_add_u32 s{dst}, s{dst}, s57")
    def issue(part='AB', advance=True):
        n = nissue[0]; nissue[0] += 1
        if DF and not (EARLY2 and n < 4):
            if n == 0:
                k("s_lshl_b32 s57, s30, 12")
                k("v_mov_b32 v11, 0")
                calc_stage(47, 56, 59); flag_off(56, 54)
                k("buffer_load_dword v10, v11, s[36:39], s54 offen sc0 sc1")
                k("s_waitcnt vmcnt(0)")
            elif n == 1 and not EARLY2:
                k("s_waitcnt vmcnt(8)")
            k("v_readfirstlane_b32 s56, v10")
            k("s_cmp_lg_u32 s56, 0")
            k(f"s_cbranch_scc1 L_{tag}_fok{n}")
            k("s_mov_b32 s61, 0")
            k(f"L_{tag}_fpoll{n}:")
            k("s_sleep 4")
            k("buffer_load_dword v10, v11, s[36:39], s54 offen sc0 sc1")
            k("s_waitcnt vmcnt(0)")
            k("v_readfirstlane_b32 s56, v10")
            k("s_add_u32 s61, s61, 1")
            k("s_cmp_ge_u32 s61, 0x20000")
            k(f"s_cbranch_scc1 L_{tag}_fok{n}")
            k("s_cmp_eq_u32 s56, 0")
            k(f"s_cbranch_scc1 L_{tag}_fpoll{n}")
            k(f"L_{tag}_fok{n}:")
            k("s_add_u32 s61, s47, 1")
            calc_stage(61, 56, 59); flag_off(56, 54)
            k("buffer_load_dword v10, v11, s[36:39], s54 offen sc0 sc1")
        if DH and n >= 4:
            k("s_cmp_eq_u32 s33, 0")
            k(f"s_cbranch_scc0 L_{tag}_nh{n}")
            k("s_add_u32 s61, s47, 1")
            calc_stage(61, 56, 59); flag_off(56, 54)
            k("buffer_load_dword v10, v11, s[36:39], s54 offen sc0 sc1")
            k(f"L_{tag}_nh{n}:")
        calc_stage(47, 58, 59)
        k(f"s_mul_i32 s59, s58, {64*BSTR}")
        k(f"s_lshl_b32 s58, s58, 17")
        k("s_add_u32 s58, s58, s40")
        k("s_add_u32 s59, s59, s41")
        k("s_add_u32 s44, s43, s42")
        for m in range(4):
            if 'A' in part:
                k(f"s_add_u32 m0, s44, {4096*m}")
                k(f"s_add_u32 s45, s58, {m*16*2048}")
                k(f"buffer_load_dwordx4 v8, s[12:15], s45 offen {'sc1 ' if (DF or DH) else ''}lds")
            if 'B' in part:
                k(f"s_add_u32 m0, s44, {ASZ+4096*m}")
                k(f"s_add_u32 s45, s59, {m*16*BSTR}")
                k(f"buffer_load_dwordx4 v9, s[8:11], s45 offen {NT_B1 if g1 else NT_B2} lds")
        if not advance: return
        k("s_add_u32 s47, s47, 1")
        k(f"s_add_u32 s43, s43, {STG}")
        k(f"s_cmp_eq_u32 s43, {STG*NS}")
        k("s_cselect_b32 s43, 0, s43")
    if fused and not g1 and FUSE_GG == 1:
        k("s_cmp_eq_u32 s33, 0")
        k("s_cbranch_scc0 L_gbar_nopoll")
        srd(k, 36, 26, 1024, BAR_OFF)
        k("v_and_b32 v2, 7, v1")
        k("v_lshlrev_b32 v2, 7, v2")
        k("s_mov_b32 s34, 0")
        k("L_gbar_poll:")
        if PSLEEP: k(f"s_sleep {PSLEEP}")
        k(f"buffer_load_dword v3, v2, s[36:39], 0 offen {POLLF}")
        k("s_waitcnt vmcnt(0)")
        k("v_cmp_gt_u32 vcc, 32, v3")
        k("s_add_u32 s34, s34, 1")
        k("s_cmp_ge_u32 s34, 0x20000")
        k("s_cbranch_scc1 L_gbar_nopoll")
        k("s_cbranch_vccnz L_gbar_poll")
        k("L_gbar_nopoll:")
        k("s_barrier")
    if BAR2:
        per = 8
        mark(k, 1)
        issue(); mark(k, 2); issue()
        k(f"s_waitcnt vmcnt({per})")
        mark(k, 3)
        k("s_barrier")
        issue(); issue()
        mark(k, 4)
        k("s_mov_b32 s60, 0")
        k(f"L_{tag}_ploop:")
        k(f"s_waitcnt vmcnt({per})")
        k("s_barrier")
        issue(); issue()
        k("s_add_u32 s60, s60, 2")
        k(f"s_cmp_lt_u32 s60, {NIT-4}")
        k(f"s_cbranch_scc1 L_{tag}_ploop")
        k(f"s_waitcnt vmcnt({per})")
        k("s_barrier")
        k("s_waitcnt vmcnt(0)")
        k("s_barrier")
    else:
        ncheck = [0]
        def hpoll(lab):
            k("s_mov_b32 s61, 0")
            k(f"L_{tag}_hp{lab}:")
            k("v_cmp_eq_u32 vcc, 0, v10")
            k("s_add_u32 s61, s61, 1")
            k("s_cmp_ge_u32 s61, 0x20000")
            k(f"s_cbranch_scc1 L_{tag}_hd{lab}")
            k("s_nop 2")
            k(f"s_cbranch_vccz L_{tag}_hd{lab}")
            k("s_sleep 2")
            k("buffer_load_dword v10, v11, s[36:39], s54 offen sc0 sc1")
            k("s_waitcnt vmcnt(0)")
            k(f"s_branch L_{tag}_hp{lab}")
            k(f"L_{tag}_hd{lab}:")
        def hcheck():
            i = ncheck[0]; ncheck[0] += 1
            k("s_cmp_eq_u32 s33, 0")
            k(f"s_cbranch_scc0 L_{tag}_hc{i}")
            hpoll(f"c{i}")
            k(f"L_{tag}_hc{i}:")
        if DF and EARLY2:
            def fwait(reg, off, lab):
                k(f"v_readfirstlane_b32 s56, v{reg}")
                k("s_cmp_lg_u32 s56, 0")
                k(f"s_cbranch_scc1 L_{tag}_e{lab}")
                k("s_mov_b32 s61, 0")
                k(f"L_{tag}_ep{lab}:")
                k("s_sleep 4")
                k(f"buffer_load_dword v{reg}, v11, s[36:39], s{off} offen sc0 sc1")
                k("s_waitcnt vmcnt(0)")
                k(f"v_readfirstlane_b32 s56, v{reg}")
                k("s_add_u32 s61, s61, 1")
                k("s_cmp_ge_u32 s61, 0x20000")
                k(f"s_cbranch_scc1 L_{tag}_e{lab}")
                k("s_cmp_eq_u32 s56, 0")
                k(f"s_cbranch_scc1 L_{tag}_ep{lab}")
                k(f"L_{tag}_e{lab}:")
            k("s_lshl_b32 s57, s30, 12")
            k("v_mov_b32 v11, 0")
            k("s_mov_b32 s61, 0")
            calc_stage(61, 56, 59); flag_off(56, 54)
            k("s_mov_b32 s61, 1")
            calc_stage(61, 56, 59); flag_off(56, 64 if False else 35)
            k("buffer_load_dword v10, v11, s[36:39], s54 offen sc0 sc1")
            k("buffer_load_dword v12, v11, s[36:39], s35 offen sc0 sc1")
            issue('B'); issue('B')
            k("s_mov_b32 s47, 0"); k("s_mov_b32 s43, 0")
            k("s_waitcnt vmcnt(10)")
            k("s_barrier")
            k("s_waitcnt vmcnt(8)")
            if MAP2 == 2:
                k("s_cmp_eq_u32 s3, -1")
                k(f"s_cbranch_scc1 L_{tag}_notown")
                k("v_mov_b32 v10, 1")
                k("v_mov_b32 v12, 1")
                k(f"L_{tag}_notown:")
            fwait(10, 54, 'a')
            k("s_mov_b32 s61, 2")
            calc_stage(61, 56, 59); flag_off(56, 54)
            k("buffer_load_dword v10, v11, s[36:39], s54 offen sc0 sc1")
            mark(k, 1)
            issue('A')
            fwait(12, 35, 'b')
            issue('A')
            k("s_waitcnt vmcnt(4)")
            mark(k, 3)
            k("s_barrier")
            issue()
            nmain = NIT - 3
            k("s_mov_b32 s60, 0")
            k(f"L_{tag}_ploop:")
            k("s_waitcnt vmcnt(8)")
            k("s_barrier")
            issue()
            k("s_add_u32 s60, s60, 1")
            k(f"s_cmp_lt_u32 s60, {nmain}")
            k(f"s_cbranch_scc1 L_{tag}_ploop")
            for n_ in range(nmain, NIT-1):
                k(f"s_waitcnt vmcnt({(NIT-1-(n_+1))*8})")
                k("s_barrier")
        elif DH:
            issue('B'); issue('B')
            k("s_mov_b32 s47, 0"); k("s_mov_b32 s43, 0")
            k("s_cmp_eq_u32 s33, 0")
            k(f"s_cbranch_scc0 L_{tag}_hpre")
            k("s_mov_b32 s61, 0")
            calc_stage(61, 56, 59); flag_off(56, 54)
            k("s_mov_b32 s61, 1")
            calc_stage(61, 56, 59); flag_off(56, 57)
            k("v_mov_b32 v12, s54")
            k("v_mov_b32 v13, s57")
            k("v_cmp_gt_u32 vcc, 32, v1")
            k("v_cndmask_b32 v12, v13, v12, vcc")
            k("v_add_u32 v12, v12, v11")
            k("s_mov_b32 s61, 0")
            k(f"L_{tag}_hsp:")
            k("buffer_load_dword v10, v12, s[36:39], 0 offen sc0 sc1")
            k("s_waitcnt vmcnt(0)")
            k("v_cmp_eq_u32 vcc, 0, v10")
            k("s_add_u32 s61, s61, 1")
            k("s_cmp_ge_u32 s61, 0x20000")
            k(f"s_cbranch_scc1 L_{tag}_hsd")
            k("s_nop 2")
            k(f"s_cbranch_vccnz L_{tag}_hsp")
            k(f"L_{tag}_hsd:")
            k("s_mov_b32 s61, 2")
            calc_stage(61, 56, 59); flag_off(56, 54)
            k("buffer_load_dword v10, v11, s[36:39], s54 offen sc0 sc1")
            k(f"L_{tag}_hpre:")
            k("s_barrier")
            issue('A'); issue('A')
            k("s_waitcnt vmcnt(4)")
            mark(k, 3)
            hcheck()
            k("s_barrier")
            issue()
            NSe = 3; nmain = NIT - NSe
            k("s_mov_b32 s60, 0")
            k(f"L_{tag}_ploop:")
            k("s_waitcnt vmcnt(8)")
            hcheck()
            k("s_barrier")
            issue()
            k("s_add_u32 s60, s60, 1")
            k(f"s_cmp_lt_u32 s60, {nmain}")
            k(f"s_cbranch_scc1 L_{tag}_ploop")
            for n_ in range(nmain, NIT-1):
                k(f"s_waitcnt vmcnt({(NIT-1-(n_+1))*8})")
                k("s_barrier")
        else:
            producer_loop(k, tag, 8, issue, 3 if STATIC else NS, NIT)
    if g1 and CODEPF2:
        k("s_cmp_eq_u32 s33, 0")
        k(f"s_cbranch_scc0 L_{tag}_nonp")
        next_code_pf(k, 'g1', 'L_gbar' if fused else 'g2_kernel', 'L_text_end', 28, 120, 56, 1)
        k(f"L_{tag}_nonp:")
    if g1:
        k("s_and_b32 s34, s33, 1")
        k("s_lshr_b32 s36, s33, 1")
        k("v_and_b32 v2, 15, v1")
        k("v_lshlrev_b32 v2, 1, v2")
        k("s_lshl_b32 s37, s36, 7")
        k("s_add_u32 s37, s37, s31")
        for t in range(2):
            k(f"buffer_load_ushort v{BIAS+t}, v2, s[20:23], s37 offen offset:{64+32*t}")
        k("v_and_b32 v2, 15, v1")
        k("v_lshlrev_b32 v2, 11, v2")
        k("v_lshrrev_b32 v3, 4, v1")
        k(f"v_lshl_add_u32 v{OV}, v3, 4, v2")
        k("s_lshl_b32 s38, s29, 7")
        k("s_lshl_b32 s39, s36, 6")
        k("s_add_u32 s38, s38, s39")
        k("s_add_u32 s38, s38, 32")
        k("s_lshl_b32 s38, s38, 11")
        k("s_add_u32 s38, s38, s32")
        k("s_lshl_b32 s39, s34, 7")
        k("s_add_u32 s38, s38, s39")
        k("s_lshl_b32 s39, s33, 13")
        k(f"s_add_u32 s39, s39, {(65536 if (fused and EARLY2) else 32768) if STATIC else (98304 if BAR2 else 65536)}")
        k("v_lshl_add_u32 v2, v1, 4, s39")
        k("s_setprio 0")
        k("s_barrier")
        for i in range(8): k(f"ds_read_b128 {vr(ACC+4*i,4)}, v2 offset:{1024*i}")
        k("s_waitcnt vmcnt(0) lgkmcnt(0)")
        if STAMP:
            for i in range(5): k(f"v_mov_b32 v{120+i}, v{4+i}")
            k("v_mov_b32 v125, v8")
            stamp_end(k, tag, tid=256, slot=256, sfx='pp')
            k("s_mov_b64 exec, -1")
            for i in range(4): k(f"v_mov_b32 v{4+i}, v{120+i}")
            k("v_mov_b32 v8, v124")
        k(f"s_branch L_{tag}_epi")
    if (not g1) and XSHARE:
        SHX, SHY = 0, 16384
        k("s_setprio 0")
        k("s_and_b32 s34, s33, 1")
        k("s_lshr_b32 s36, s33, 1")
        k("v_and_b32 v2, 15, v1")
        k("v_lshlrev_b32 v2, 1, v2")
        k("s_lshl_b32 s37, s36, 7")
        k("s_add_u32 s37, s37, s31")
        k("s_lshl_b32 s39, s62, 6")
        k("s_add_u32 s37, s37, s39")
        k(f"buffer_load_ushort v{BIAS}, v2, s[20:23], s37 offen offset:32")
        k("v_and_b32 v2, 15, v1")
        k("v_lshlrev_b32 v2, 11, v2")
        k("v_lshrrev_b32 v3, 4, v1")
        k(f"v_lshl_add_u32 v{OV}, v3, 4, v2")
        k("s_lshl_b32 s38, s29, 7")
        k("s_lshl_b32 s39, s36, 6")
        k("s_add_u32 s38, s38, s39")
        k("s_lshl_b32 s39, s62, 5")
        k("s_add_u32 s38, s38, s39")
        k("s_add_u32 s38, s38, 16")
        k("s_lshl_b32 s38, s38, 11")
        k("s_add_u32 s38, s38, s32")
        k("s_lshl_b32 s39, s34, 7")
        k("s_add_u32 s38, s38, s39")
        for tp in range(2):
            k(f"s_add_u32 s40, s38, {tp*64}")
            k(f"buffer_load_dwordx4 {vr(HL+4*tp,4)}, v{OV}, s[16:19], s40 offen")
        srd(k, 44, 26, 256*16384, 0x1E00000 if XB_SEP else VB_OFF)
        k("s_lshl_b32 s43, s2, 14")
        k("s_lshl_b32 s39, s33, 12")
        k("s_add_u32 s43, s43, s39")
        k("v_lshlrev_b32 v2, 4, v1")
        k("s_lshl_b32 s39, s33, 12")
        k("v_add_u32 v3, s39, v2")
        k("s_barrier")
        for i in range(4): k(f"ds_read_b128 {vr(ACC+4*i,4)}, v3 offset:{SHX+1024*i}")
        k("s_mov_b32 s41, 0")
        k(f"L_{tag}_spoll:")
        for i in range(4):
            k(f"s_add_u32 s39, s43, {1024*i}")
            k(f"buffer_load_dwordx4 {vr(Y+32+4*i,4)}, v2, s[44:47], s39 offen sc0 sc1")
        k("s_add_u32 s41, s41, 1")
        k("s_waitcnt vmcnt(0)")
        k(f"v_max3_u32 v5, v{Y+32}, v{Y+33}, v{Y+34}")
        for i in range(3, 15, 2): k(f"v_max3_u32 v5, v5, v{Y+32+i}, v{Y+32+i+1}")
        k(f"v_max_u32 v5, v5, v{Y+47}")
        k("v_cmp_eq_u32 vcc, -1, v5")
        k("s_nop 4")
        k("s_cmp_ge_u32 s41, 0x20000")
        k(f"s_cbranch_scc1 L_{tag}_spolld")
        k(f"s_cbranch_vccnz L_{tag}_spoll")
        k(f"L_{tag}_spolld:")
        k("s_lshl_b32 s39, s33, 11")
        k("v_add_u32 v3, s39, v2")
        k(f"ds_write_b128 v3, {vr(Y+32,4)} offset:{SHY}")
        k(f"ds_write_b128 v3, {vr(Y+36,4)} offset:{SHY+1024}")
        k("s_waitcnt lgkmcnt(0)")
        k("s_barrier")
        k(f"s_branch L_{tag}_epi")
    stamp_end(k, tag, tid=256, slot=256, sfx='p')
    if PRODFIRST and not fused:
        k(f"s_branch {ENDL}")
        k.l = k.l[:i_cons] + k.l[i_prod:] + k.l[i_cons:i_prod]
    if fused and g1:
        return k, NV, STG*NS
    k(f"{ENDL}:")
    k("s_endpgm")
    return k, NV, STG*NS

def gelu_pair(k, src, u, w, bias, dst):
    if EMU_U:
        k(f"{CVT} v{w}, v{src}, v{src+1}")
        k(f"v_lshlrev_b32 v{u}, 16, v{w}")
        k(f"v_and_b32 v{u+1}, s40, v{w}")
        k(f"v_add_f32 v{u}, v{u}, v{bias}")
        k(f"v_add_f32 v{u+1}, v{u+1}, v{bias}")
        k(f"{CVT} v{w}, v{u}, v{u+1}")
        k(f"v_lshlrev_b32 v{u}, 16, v{w}")
        k(f"v_and_b32 v{u+1}, s40, v{w}")
    else:
        k(f"v_add_f32 v{u}, v{src}, v{bias}")
        k(f"v_add_f32 v{u+1}, v{src+1}, v{bias}")
    k(f"v_pk_mul_f32 {vr(w,2)}, {vr(u,2)}, {vr(u,2)}")
    k(f"v_pk_fma_f32 {vr(w,2)}, {vr(w,2)}, s[42:43], {vr(4,2)} op_sel_hi:[1,0,1]")
    k(f"v_pk_mul_f32 {vr(w,2)}, {vr(w,2)}, {vr(u,2)}")
    k(f"v_exp_f32 v{w}, v{w}")
    k(f"v_exp_f32 v{w+1}, v{w+1}")
    k(f"s_nop 0")
    k(f"v_pk_add_f32 {vr(w,2)}, {vr(w,2)}, {vr(6,2)}")
    k(f"v_rcp_f32 v{w}, v{w}")
    k(f"v_rcp_f32 v{w+1}, v{w+1}")
    k(f"s_nop 0")
    k(f"v_pk_mul_f32 {vr(w,2)}, {vr(w,2)}, {vr(u,2)}")
    k(f"{CVT} v{dst}, v{w}, v{w+1}")

RPAT = [2, 1]
FUSE_GG = 2
FUSE23 = 1
FUSE_ALL = 1
EARLY2 = 1
FILL1 = 1
FILLPOS = 2
W2WAVES = 4
W2DEPTH = 0
XPRE = 1
PRODFIRST = 0
FIRSTPF = 0
CODEPF2 = 1
WJOB = 2
LN_FUSE = 1
WEARLY = 1
W1IDLE = 0
EMU_LN = 0
EMU_L2 = 0
NT_B1 = ''
NT_B2 = ''
NT_X = ''
NT_W = ''
KHALF = 1
XSENT = 1
XSHARE = 0
XWAIT = 1
XBF16 = 1
EMU_Y = 0
PERTURB = 0
PSLEEP = 4
POLLF = 'sc0 sc1'
STATIC = 1
LOOPSTAMP = 0
BAR2 = 0
FAKE32 = 0
MAP2 = 2
XB_SEP = 1
FORCE_FAR = 0
PPRIO = 3
PFD = 0
KPERM = 1
FAKE16 = 0
NS1 = 3
NS2 = 3
KWRAP = 0
W2PF = 7
EMU_U = 0
RPG1 = 3
RPG2 = 4
def gen_mega():
    k0, nv0, l0 = gen_p2(True, True)
    k1, nv1, l1 = gemm_kernel('g1', True, True)
    k2, nv2, l2 = gemm_kernel('g2', True, True)
    k0.l += k1.l + k2.l
    return k0, 256, max(l0, l1, l2)
def gen_gg():
    k1, nv1, l1 = gemm_kernel('g1', True)
    k2, nv2, l2 = gemm_kernel('g2', True)
    k1.l += k2.l
    return k1, max(nv1, nv2), max(l1, l2)
def gen_g1(): return gemm_kernel('g1')
def gen_g2(): return gemm_kernel('g2')

KERNELS = [('p1_kernel', gen_p1, (256,1,1), (256,1,1)), ('p2_kernel', gen_p2, (256,1,1), (256,1,1)), ('p3_kernel', gen_p3, (256,1,1), (256,1,1)),
 ('g1_kernel', gen_g1, (256,1,1), (512,1,1)), ('g2_kernel', gen_g2, (256,1,1), (512,1,1))]

HEADER = """;
; Pipeline (S=2048 tokens, D=1024 channels, F=3584); all FFT stages are 32-point DFTs on bf16 MFMA with fp32 accumulation.
;   p1   : LayerNorm(x), two real rows packed as one complex row, 1024-point FFT along D; filter W transposed into column
;   mega : A  (waves 0-3) 2048-point FFT along S (even/odd halves, DC and Nyquist columns packed), multiply by W, inverse FFT
;          partial sums use blocks pre-filled with a marker (re-read until no marker is left), B->G1 and G1->G2 use done
; Workgroup -> tile maps assume ids congruent mod 8 share an L2 for speed only; correctness does not depend on placement.
"""

def build_all(kernels=None):
    ks = []
    if kernels is None:
        kernels = list(KERNELS[:3]) + [('gg_kernel', gen_gg, (256,1,1), (512,1,1))] if FUSE_GG else list(KERNELS)
        if FUSE23: kernels = [kernels[0], ('p23_kernel', gen_p23, (256,1,1), (256,1,1))] + list(kernels[3:])
        if FUSE_ALL: kernels = [kernels[0], ('mega_kernel', gen_mega, (256,1,1), (512,1,1))]
    for name, fn, grid, block in kernels:
        if W1PF and name in ('p2_kernel', 'p3_kernel'): block = (320, 1, 1)
        if FIRSTPF and name == 'p3_kernel': block = (320, 1, 1)
        k, nv, lds = fn()
        if ST_ALL:
            k.l = [ (x + ' ' + ST_ALL) if ('buffer_store' in x and 'sc1' not in x and 'sc0' not in x and ' nt' not in x) else x for x in k.l]
        if name.startswith('g'):
            if NO_DMA: k.l = [x for x in k.l if not ('offen lds' in x)]
            if NO_MFMA: k.l = [x for x in k.l if 'v_mfma' not in x]
            if NO_ADV: k.l = [x for x in k.l if not (x.strip().startswith('s_add_u32 s40, s40,') or x.strip().startswith('s_add_u32 s41, s41,'))]
            if NO_A: k.l = [x for x in k.l if not ('s[12:15]' in x and 'offen lds' in x)]
            if NO_B: k.l = [x for x in k.l if not ('s[8:11]' in x and 'offen lds' in x)]
            if NO_BAR: k.l = [x for x in k.l if 's_barrier' not in x]
            if NO_READ: k.l = [x for x in k.l if 'ds_read_b64_tr' not in x]
        ks.append((name, k, nv, lds, grid, block))
    hdr = open('sequential_preLN__spectral_gfnet__mixer_token_mlp__prompt.s.ref').read().split('; Override launch')[0]
    s = hdr + HEADER
    for name, k, nv, lds, grid, block in ks:
        s += f"; @launch kernel={name} grid=({grid[0]},{grid[1]},{grid[2]}) block=({block[0]},{block[1]},{block[2]}) lds={lds}\n"
    s += '.amdgcn_target "amdgcn-amd-amdhsa--gfx950"\n.text\n'
    for name, k, nv, lds, grid, block in ks: s += k.text()
    s += 'L_text_end:\n'
    s += '.section .rodata,"a"\n'
    for name, k, nv, lds, grid, block in ks: s += descriptor(name, nv)
    return s, ks

if __name__ == '__main__':
    s, ks = build_all()
    open(sys.argv[1] if len(sys.argv) > 1 else 'out.s', 'w').write(s)
    print('written', len(s), 'bytes')
```

```python
import sys, math, struct
sys.path.insert(0, 'work')
from asmlib import *

ZW_OFF = 0x0          ; ZW_SIZE = 257*32768
ZD_OFF = 0x0 ; WB_OFF = 0x480000
VB_OFF = 0x900000     ; VB_BLK = 256*64
H_OFF  = 0xE00000
HN_OFF = 0x1200000
GT_OFF = 0x1600000
BAR_OFF = 0x2810000
FG_OFF = 0x2820000
FH_OFF = 0x2830000
WS_USED = 0x1D00000
S, D, F = 2048, 1024, 3584

def f32(x):
    return '0x%08x' % struct.unpack('<I', struct.pack('<f', x))[0]

CVT = 'v_cvt_pk_bf16_f32'
STAMP = False
NO_DMA = False
NO_MFMA = False
NO_READ = False
NO_BAR = False
NO_ADV = False
NO_A = False
NO_B = False
STAMP_OFF = 0x3000000
KIDX = {'p1':0,'p2':1,'p3':2,'g1':3,'g2':4}
NMARK = 8
def mark(k, i):
    if STAMP and not (LOOPSTAMP and k.name.startswith('g') and 1 <= i <= 4): k(f"s_memrealtime s[{64+2*i}:{65+2*i}]")
def stamp_begin(k):
    if STAMP:
        for i in range(1, NMARK): k(f"s_mov_b64 s[{64+2*i}:{65+2*i}], 0")
        k("s_memrealtime s[64:65]")
        k("s_memtime s[94:95]")
def stamp_end(k, tag, tid=0, slot=0, sfx=''):
    if not STAMP: return
    mark(k, 6)
    k("s_waitcnt vmcnt(0) lgkmcnt(0)")
    mark(k, 7)
    k("s_memtime s[84:85]")
    k("s_load_dwordx2 s[88:89], s[0:1], 80")
    k("s_waitcnt lgkmcnt(0)")
    k(f"s_add_u32 s88, s88, {STAMP_OFF + KIDX[tag]*65536}")
    k("s_addc_u32 s89, s89, 0")
    k(f"s_add_u32 s87, s2, {slot}")
    k("s_lshl_b32 s87, s87, 7")
    k("v_mov_b32 v8, s87")
    k(f"v_cmp_eq_u32 vcc, {tid}, v0" if tid <= 64 else f"v_cmp_eq_u32 vcc, {hex(tid)}, v0")
    k("s_and_saveexec_b64 s[86:87], vcc")
    k(f"s_cbranch_execz L_{tag}_nostamp{sfx}")
    for i in range(0, NMARK, 2):
        for j in range(4): k(f"v_mov_b32 v{4+j}, s{64+2*i+j}")
        k(f"global_store_dwordx4 v8, v[4:7], s[88:89] offset:{8*i}")
        k("s_nop 1")
    k("v_mov_b32 v4, s94"); k("v_mov_b32 v5, s95"); k("v_mov_b32 v6, s84"); k("v_mov_b32 v7, s85")
    k("global_store_dwordx4 v8, v[4:7], s[88:89] offset:64")
    k("s_getreg_b32 s84, hwreg(HW_REG_XCC_ID, 0, 4)")
    k("s_nop 1")
    k("v_mov_b32 v4, s84")
    k("global_store_dword v8, v4, s[88:89] offset:80")
    k(f"L_{tag}_nostamp{sfx}:")
    k("s_mov_b64 exec, -1")

MF32 = 'v_mfma_f32_32x32x16_bf16'

CODEPF = 1
W1PF = 0
W1PF0 = 0
W1L2 = 0
ST_FLAGS = ''
ST_ALL = ''
ST_P1 = 'sc1'
ST_P2 = 'sc1'
ST_P3 = 'sc1'
ST_G1 = 'sc1'
ST_G2 = 'nt'
OUT_TOUCH = 0
def code_prefetch(k, tag, first_label, last_label, vtmp, stmp, nwaves_cond=None):
    if not CODEPF: return
    k(f"s_getpc_b64 s[{stmp}:{stmp+1}]")
    k(f"L_{tag}_pc:")
    k(f"s_add_u32 s{stmp}, s{stmp}, {first_label}-L_{tag}_pc")
    k(f"s_addc_u32 s{stmp+1}, s{stmp+1}, 0")

WS_BASE = 0
def srd(k, s, base, size, off=0):
    if base == 26: off += WS_BASE
    if off:
        k(f"s_add_u32 s{s}, s{base}, {hex(off)}")
        k(f"s_addc_u32 s{s+1}, s{base+1}, 0")
    else:
        k(f"s_mov_b32 s{s}, s{base}")
        k(f"s_mov_b32 s{s+1}, s{base+1}")
    k(f"s_mov_b32 s{s+2}, {hex(size)}")
    k(f"s_mov_b32 s{s+3}, 0x20000")

SEQ = [(r, c) for r in range(4) for c in range(4)]

def rot_setup(k, vA, t):
    k(f"v_mul_f32 v{t+4}, {f32(5.0)}, v{vA}")
    k(f"v_cos_f32 v{t}, v{vA}")
    k(f"v_sin_f32 v{t+1}, v{vA}")
    k(f"v_cos_f32 v{t+2}, v{t+4}")
    k(f"v_sin_f32 v{t+3}, v{t+4}")

def rot(k, dst, src, st, tmp, sign):
    k(f"v_pk_mul_f32 {vr(tmp,2)}, {vr(src,2)}, {vr(st,2)} op_sel_hi:[1,0]")
    neg = "neg_lo:[0,1,0]" if sign > 0 else "neg_hi:[0,1,0]"
    k(f"v_pk_fma_f32 {vr(dst,2)}, {vr(src,2)}, {vr(st,2)}, {vr(tmp,2)} op_sel:[1,1,0] op_sel_hi:[0,1,1] {neg}")

def gen_matrix(k, Mr, Mi, vA, vB, t):
    rot_setup(k, vA, t)
    cur = [t+6, t+8]
    k(f"v_cos_f32 v{cur[0]}, v{vB}")
    k(f"v_sin_f32 v{cur[0]+1}, v{vB}")
    k("s_nop 0")
    for i, (r, c) in enumerate(SEQ):
        a_, b_ = cur[i % 2], cur[(i+1) % 2]
        if i < 15: rot(k, b_, a_, t+2 if c == 3 else t, t+4, +1)
        k(f"{CVT} v{Mr+i}, v{a_}, v{a_+1}")
        k(f"{CVT} v{Mi+i}, -v{a_+1}, v{a_}")

def gen_twiddle(k, tw, vA, vB, t, scale=None):
    rot_setup(k, vA, t)
    k(f"v_cos_f32 v{tw}, v{vB}")
    k(f"v_sin_f32_e64 v{tw+1}, -v{vB}")
    if scale is not None:
        k(f"v_mul_f32 v{tw}, {f32(scale)}, v{tw}")
        k(f"v_mul_f32 v{tw+1}, {f32(scale)}, v{tw+1}")
    else: k("s_nop 0")
    for i, (r, c) in enumerate(SEQ):
        if i < 15: rot(k, tw+2*(i+1), tw+2*i, t+2 if c == 3 else t, t+4, -1)

def stage(k, typ, Dr, Di, data, Mr, Mi, first=True):
    for r in range(4):
        for (Dx, M) in ((Dr, Mr), (Di, Mi)):
            c = '0' if (r == 0 and first) else vr(Dx, 16)
            if typ == 'A': k(f"{MF32} {vr(Dx,16)}, {vr(data+4*r,4)}, {vr(M+4*r,4)}, {c}")
            else:          k(f"{MF32} {vr(Dx,16)}, {vr(M+4*r,4)}, {vr(data+4*r,4)}, {c}")

def cmul_pack(k, Dr, Di, w, out, t, conj=False):
    for j in range(16):
        o = t + 2*(j % 4); jp = j & ~1; x = j & 1
        k(f"v_pk_mul_f32 {vr(o,2)}, {vr(w+2*j,2)}, {vr(Dr+jp,2)} op_sel:[0,{x}] op_sel_hi:[1,{x}]")
        k(f"v_pk_fma_f32 {vr(o,2)}, {vr(w+2*j,2)}, {vr(Di+jp,2)}, {vr(o,2)} op_sel:[1,{x},0] op_sel_hi:[0,{x},1] neg_lo:[1,0,0]")
        if j >= 1:
            po = t + 2*((j-1) % 4); n = '-' if conj else ''
            k(f"{CVT} v{out+j-1}, v{po}, {n}v{po+1}")
    po = t + 2*(15 % 4); n = '-' if conj else ''
    k(f"{CVT} v{out+15}, v{po}, {n}v{po+1}")

def wave_reduce2(k, a, b):
    for m in ("quad_perm:[1,0,3,2] row_mask:0xf", "quad_perm:[2,3,0,1] row_mask:0xf", "row_half_mirror row_mask:0xf",
              "row_mirror row_mask:0xf", "row_bcast:15 row_mask:0xa", "row_bcast:31 row_mask:0xc"):
        k(f"v_add_f32_dpp v{a}, v{a}, v{a} {m} bank_mask:0xf")
        k(f"v_add_f32_dpp v{b}, v{b}, v{b} {m} bank_mask:0xf")

def tree_sum(k, X, n, t, op='add'):
    acc = [t, t+2, t+4, t+6]
    for i in range(4):
        k(f"v_pk_add_f32 {vr(acc[i],2)}, {vr(X+2*i,2)}, {vr(X+2*(i+4),2)}")
    for i in range(8, n):
        k(f"v_pk_add_f32 {vr(acc[i%4],2)}, {vr(acc[i%4],2)}, {vr(X+2*i,2)}")
    k(f"v_pk_add_f32 {vr(acc[0],2)}, {vr(acc[0],2)}, {vr(acc[1],2)}")
    k(f"v_pk_add_f32 {vr(acc[2],2)}, {vr(acc[2],2)}, {vr(acc[3],2)}")
    k(f"v_pk_add_f32 {vr(acc[0],2)}, {vr(acc[0],2)}, {vr(acc[2],2)}")

def ln_scalars(k, t, twice=False):
    k(f"v_mul_f32 v{t}, {f32(1/1024)}, v{t}")
    k(f"v_mul_f32 v{t+1}, {f32(1/1024)}, v{t+1}")
    if twice:
        k(f"v_add_f32 v{t+2}, {f32(1e-5)}, v{t}")
        k(f"v_add_f32 v{t+3}, {f32(1e-5)}, v{t+1}")
        k(f"v_rsq_f32 v{t+2}, v{t+2}")
        k(f"v_rsq_f32 v{t+3}, v{t+3}")
        k("s_nop 0")
        k(f"v_mul_f32 v{t}, v{t}, v{t+2}")
        k(f"v_mul_f32 v{t+1}, v{t+1}, v{t+3}")
        k(f"v_mul_f32 v{t}, v{t}, v{t+2}")
        k(f"v_mul_f32 v{t+1}, v{t+1}, v{t+3}")
        k(f"v_add_f32 v{t}, {f32(1e-5)}, v{t}")
        k(f"v_add_f32 v{t+1}, {f32(1e-5)}, v{t+1}")
        k(f"v_rsq_f32 v{t}, v{t}")
        k(f"v_rsq_f32 v{t+1}, v{t+1}")
        k("s_nop 0")
        k(f"v_mul_f32 v{t}, v{t}, v{t+2}")
        k(f"v_mul_f32 v{t+1}, v{t+1}, v{t+3}")
        k(f"v_mul_f32 v{t+12}, v{t+12}, v{t}")
        k(f"v_mul_f32 v{t+13}, v{t+13}, v{t+1}")
        return
    if EMU_LN:
        k(f"{CVT} v{t+2}, v{t}, v{t+1}")
        k(f"v_lshlrev_b32 v{t}, 16, v{t+2}")
        k(f"v_and_b32 v{t+1}, 0xffff0000, v{t+2}")
    k(f"v_add_f32 v{t}, {f32(1e-5)}, v{t}")
    k(f"v_add_f32 v{t+1}, {f32(1e-5)}, v{t+1}")
    if EMU_LN:
        k(f"{CVT} v{t+2}, v{t}, v{t+1}")
        k(f"v_lshlrev_b32 v{t}, 16, v{t+2}")
        k(f"v_and_b32 v{t+1}, 0xffff0000, v{t+2}")
        k(f"v_sqrt_f32 v{t}, v{t}")
        k(f"v_sqrt_f32 v{t+1}, v{t+1}")
        k(f"s_nop 0")
        k(f"{CVT} v{t+2}, v{t}, v{t+1}")
        k(f"v_lshlrev_b32 v{t}, 16, v{t+2}")
        k(f"v_and_b32 v{t+1}, 0xffff0000, v{t+2}")
        k(f"v_rcp_f32 v{t}, v{t}")
        k(f"v_rcp_f32 v{t+1}, v{t+1}")
    else:
        k(f"v_rsq_f32 v{t}, v{t}")
        k(f"v_rsq_f32 v{t+1}, v{t+1}")
    k(f"s_nop 0")
    k(f"v_mul_f32 v{t+12}, v{t+12}, v{t}")
    k(f"v_mul_f32 v{t+13}, v{t+13}, v{t+1}")

def ln_mean(k, t, sTmp):
    k(f"v_mul_f32 v{t}, {f32(1/1024)}, v{t}")
    k(f"v_mul_f32 v{t+1}, {f32(1/1024)}, v{t+1}")
    if EMU_LN:
        k(f"{CVT} v{t+2}, v{t}, v{t+1}")
        k(f"v_readlane_b32 s{sTmp}, v{t}, 63")
        k(f"v_readlane_b32 s{sTmp+1}, v{t+1}, 63")
        k(f"v_lshlrev_b32 v{t+12}, 16, v{t+2}")
        k(f"v_and_b32 v{t+13}, 0xffff0000, v{t+2}")
    else:
        k(f"v_mov_b32 v{t+12}, v{t}")
        k(f"v_mov_b32 v{t+13}, v{t+1}")
        k(f"v_readlane_b32 s{sTmp}, v{t}, 63")
        k(f"v_readlane_b32 s{sTmp+1}, v{t+1}, 63")

def ln_stats_xrow(k, X, t, sM, sR, sTmp):
    tree_sum(k, X, 16, t)
    wave_reduce2(k, t, t+1)
    ln_mean(k, t, sTmp)
    acc = [t, t+2]; tmp = [t+4, t+6, t+8, t+10]
    for i in range(16):
        d = tmp[i % 4]
        k(f"v_pk_add_f32 {vr(d,2)}, {vr(X+2*i,2)}, {sr(sTmp,2)} neg_lo:[0,1] neg_hi:[0,1]")
        a = acc[i % 2]
        if i < 2: k(f"v_pk_mul_f32 {vr(a,2)}, {vr(d,2)}, {vr(d,2)}")
        else:     k(f"v_pk_fma_f32 {vr(a,2)}, {vr(d,2)}, {vr(d,2)}, {vr(a,2)}")
    k(f"v_pk_add_f32 {vr(t,2)}, {vr(t,2)}, {vr(t+2,2)}")
    wave_reduce2(k, t, t+1)
    ln_scalars(k, t)
    k(f"v_readlane_b32 s{sR}, v{t}, 63")
    k(f"v_readlane_b32 s{sR+1}, v{t+1}, 63")
    k(f"v_readlane_b32 s{sM}, v{t+12}, 63")
    k(f"v_readlane_b32 s{sM+1}, v{t+13}, 63")

def gen_p1():
    k = Kern('p1_kernel')
    k("s_cmp_ge_u32 s2, 256")
    k("s_cbranch_scc1 L_p1_end")
    stamp_begin(k)
    k("s_load_dwordx4 s[4:7], s[0:1], 0")
    k("s_load_dwordx2 s[24:25], s[0:1], 16")
    k("s_load_dwordx2 s[60:61], s[0:1], 32")
    k("s_load_dwordx2 s[26:27], s[0:1], 80")
    TID, LANE = 0, 1
    if CODEPF:
        k("s_getpc_b64 s[52:53]")
        k("L_p1_pc:")
        k("s_sub_u32 s52, s52, L_p1_pc-p1_kernel")
        k("s_subb_u32 s53, s53, 0")
        k("s_lshr_b32 s54, s2, 3")
        k("s_mul_i32 s54, s54, (L_text_end-p1_kernel+4095)/4096")
        k("v_add_u32 v213, s54, v0")
        k("v_lshlrev_b32 v213, 7, v213")
        k("v_mov_b32 v211, s53")
        k("v_add_co_u32 v210, vcc, s52, v213")
        k("v_addc_co_u32 v211, vcc, 0, v211, vcc")
        k("v_cmp_gt_u32 vcc, (L_text_end-p1_kernel+4095)/4096, v0")
        k("s_and_saveexec_b64 s[54:55], vcc")
        k("s_cbranch_execz L_p1_cp0")
        k("v_cmp_gt_u32 vcc, L_text_end-p1_kernel, v213")
        k("s_and_b64 exec, exec, vcc")
        k("s_cbranch_execz L_p1_cp0")
        k("global_load_dword v212, v[210:211], off")
        k("L_p1_cp0:")
        k("s_mov_b64 exec, -1")
    k("v_and_b32 v1, 63, v0")
    k("v_lshrrev_b32 v2, 6, v0")
    k("v_readfirstlane_b32 s28, v2")
    k("s_lshr_b32 s29, s2, 5")
    k("s_lshl_b32 s29, s29, 2")
    k("s_and_b32 s30, s2, 31")
    k("s_add_u32 s31, s29, s28")
    k("s_lshl_b32 s31, s31, 5")
    k("s_add_u32 s31, s31, s30")
    k("s_lshl_b32 s31, s31, 11")
    k("s_add_u32 s32, s31, 0x200000")
    k("s_waitcnt lgkmcnt(0)")
    srd(k, 8, 4, S*D*2)
    srd(k, 12, 6, S*513*2)
    srd(k, 16, 24, S*513*2)
    srd(k, 20, 26, 257*16384, ZD_OFF)
    srd(k, 72 if False else 52, 26, 257*16384, WB_OFF) if False else None
    XL = 4
    if FUSE_GG == 2:
        srd(k, 56, 26, 288*128, FG_OFF)
        k("s_lshl_b32 s33, s2, 7")
        k("v_mov_b32 v2, 0")
        k("v_lshlrev_b32 v3, 15, v0")
        k("s_cmp_lt_u32 s2, 32")
        k("s_cselect_b32 s34, 2, 1")
        k("v_cmp_gt_u32 vcc, s34, v0")
        k("s_and_saveexec_b64 s[34:35], vcc")
        k("s_cbranch_execz L_p1_nozf")
        k("buffer_store_dword v2, v3, s[56:59], s33 offen sc0 sc1")
        k("L_p1_nozf:")
        k("s_mov_b64 exec, -1")
    if FUSE_ALL and HTAG:
        srd(k, 56, 26, S*D*2, HN_OFF)
        k("s_cmp_lt_u32 s2, 192")
        k("s_cbranch_scc0 L_p1_noht")
        k("s_lshr_b32 s33, s2, 4")
        k("s_cmp_ge_u32 s33, 6")
        k("s_cselect_b32 s34, 16, 0")
        k("s_cselect_b32 s35, 6, 0")
        k("s_sub_u32 s33, s33, s35")
        k("s_cmp_ge_u32 s33, 4")
        k("s_mov_b32 s49, 0x0400031f")
        k("s_cselect_b32 s35, 0x00000501, s49")
        k("s_and_b32 s33, s33, 3")
        k("s_lshl_b32 s33, s33, 3")
        k("s_lshr_b32 s33, s35, s33")
        k("s_and_b32 s33, s33, 31")
        k("s_add_u32 s33, s33, s34")
        k("s_and_b32 s33, s33, 31")
        k("s_lshl_b32 s33, s33, 6")
        k("s_and_b32 s34, s2, 15")
        k("s_lshl_b32 s34, s34, 2")
        k("s_add_u32 s33, s33, s34")
        k("s_lshl_b32 s33, s33, 11")
        for i in range(4): k(f"v_mov_b32 v{4+i}, -1")
        k("v_lshlrev_b32 v3, 4, v0")
        k("buffer_store_dwordx4 v[4:7], v3, s[56:59], s33 offen sc0 sc1")
        k("s_add_u32 s33, s33, 4096")
        k("buffer_store_dwordx4 v[4:7], v3, s[56:59], s33 offen sc0 sc1")
        k("L_p1_noht:")
    if FUSE_ALL:
        srd(k, 56, 26, 256*128, FH_OFF)
        k("s_lshl_b32 s33, s2, 7")
        k("v_mov_b32 v2, 0")
        k("v_cmp_eq_u32 vcc, 0, v0")
        k("s_and_saveexec_b64 s[34:35], vcc")
        k("s_cbranch_execz L_p1_nozh")
        k("buffer_store_dword v2, v2, s[56:59], s33 offen sc0 sc1")
        k("L_p1_nozh:")
        k("s_mov_b64 exec, -1")
    if FUSE_GG == 1 or (FUSE23 and FILLPOS != 2):
        srd(k, 56, 26, 1024, BAR_OFF)
        k("s_cmp_lt_u32 s2, 8")
        k("s_cbranch_scc0 L_p1_nozb")
        k("s_lshl_b32 s33, s2, 7")
        k("v_mov_b32 v2, 0")
        k("v_cmp_eq_u32 vcc, 0, v0")
        k("s_and_saveexec_b64 s[34:35], vcc")
        k("s_cbranch_execz L_p1_nozb")
        k("buffer_store_dword v2, v2, s[56:59], s33 offen sc0 sc1")
        k("L_p1_nozb:")
        k("s_mov_b64 exec, -1")
    k("v_lshlrev_b32 v2, 4, v1")
    k(f"buffer_load_dwordx4 {vr(XL,4)}, v2, s[8:11], s31 offen {NT_X}")
    k(f"buffer_load_dwordx4 {vr(XL+4,4)}, v2, s[8:11], s31 offen offset:1024 {NT_X}")
    k(f"buffer_load_dwordx4 {vr(XL+8,4)}, v2, s[8:11], s32 offen {NT_X}")
    k(f"buffer_load_dwordx4 {vr(XL+12,4)}, v2, s[8:11], s32 offen offset:1024 {NT_X}")
    WL = 20
    def w_loads():
        k("v_lshlrev_b32 v220, 2, v0")
        k("s_lshl_b32 s33, s29, 6")
        k("s_lshl_b32 s34, s30, 1")
        k("s_add_u32 s33, s33, s34")
        k("s_mul_i32 s33, s33, 1026")
        for pi in range(2):
            for cc in range(4):
                off = (64*cc + pi)*1026
                k(f"s_add_u32 s34, s33, {off}")
                k(f"buffer_load_dword v{WL+4*pi+cc}, v220, s[12:15], s34 offen {NT_W}")
                k(f"buffer_load_dword v{WL+8+4*pi+cc}, v220, s[16:19], s34 offen {NT_W}")
        WX = 200
        k("v_and_b32 v200, 3, v1")
        k("v_lshlrev_b32 v200, 6, v200")
        k("v_bfe_u32 v201, v1, 2, 1")
        k("v_add_u32 v200, v200, v201")
        k("v_mul_u32_u24 v200, 1026, v200")
        k("v_add_u32 v200, 1024, v200")
        k("v_and_b32 v226, 3, v1")
        k("v_lshlrev_b32 v226, 6, v226")
        k("v_add_u32 v226, v226, v201")
        k("s_lshl_b32 s49, s29, 6")
        k("s_lshl_b32 s50, s30, 1")
        k("s_add_u32 s49, s49, s50")
        k("v_add_u32 v226, s49, v226")
        k("v_sub_u32 v226, 2048, v226")
        k("v_and_b32 v226, 2047, v226")
        k("v_mul_u32_u24 v226, 1026, v226")
        k("v_subrev_u32 v227, 1024, v200")
        k("v_cmp_gt_u32 vcc, 8, v0")
        k("s_and_saveexec_b64 s[36:37], vcc")
        k("s_cbranch_execz L_p1_nox")
        k("buffer_load_ushort v202, v200, s[12:15], s33 offen")
        k("buffer_load_ushort v203, v200, s[16:19], s33 offen")
        k("buffer_load_ushort v228, v227, s[12:15], s33 offen")
        k("buffer_load_ushort v229, v227, s[16:19], s33 offen")
        k("buffer_load_ushort v230, v226, s[12:15], 0 offen")
        k("buffer_load_ushort v231, v226, s[16:19], 0 offen")
        k("buffer_load_ushort v232, v226, s[12:15], 0 offen offset:1024")
        k("buffer_load_ushort v233, v226, s[16:19], 0 offen offset:1024")
        k("L_p1_nox:")
        k("s_mov_b64 exec, -1")
    if WEARLY == 1: w_loads()
    def vb_fill(reg):
        srd(k, 56, 26, 256*VB_BLK, VB_OFF)
        for i in range(4): k(f"v_mov_b32 v{reg+i}, -1")
        k("v_lshlrev_b32 v234, 4, v0")
        k("s_lshl_b32 s51, s2, 14")
        for j in range(4):
            k(f"buffer_store_dwordx4 {vr(reg,4)}, v234, s[56:59], s51 offen sc0 sc1")
            if j < 3: k("s_add_u32 s51, s51, 4096")
    if FUSE23 and FILLPOS == 2 and FILL1 == 0: vb_fill(36)
    WL = 20
    Mr, Mi, TW = 36, 52, 68
    XF, DR, DI, OP, T = 100, 132, 148, 164, 180
    k("v_and_b32 v2, 31, v1")
    k("v_cvt_f32_u32 v2, v2")
    k("v_lshrrev_b32 v3, 5, v1")
    k("v_lshlrev_b32 v3, 2, v3")
    k("v_cvt_f32_u32 v3, v3")
    k(f"v_mul_f32 v204, {f32(1/32)}, v2")
    k("v_mul_f32 v205, v204, v3")
    gen_matrix(k, Mr, Mi, 204, 205, T)
    k(f"v_mul_f32 v204, {f32(1/1024)}, v2")
    k("v_mul_f32 v205, v204, v3")
    gen_twiddle(k, TW, 204, 205, T)
    STG = 16384; WST = STG + 257*64 + 64
    k("s_lshr_b32 s44, s2, 2")
    k("s_and_b32 s44, s44, 3")
    k("s_mov_b32 s45, 0x05040100")
    k("s_mov_b32 s46, 0x07060302")
    k("s_lshl_b32 s47, s2, 6")
    k("s_lshl_b32 s48, s28, 2")
    k(f"s_add_u32 s48, s48, {STG}")
    B1, B2, AWJ, AX, ARD, AGL, AT1, AT2, AWR, AWG = 206, 207, 208, 209, 216, 217, 218, 219, 221, 222
    k("v_and_b32 v2, 31, v1")
    k("v_lshrrev_b32 v3, 5, v1")
    k("v_and_b32 v204, 1, v2")
    k("v_lshrrev_b32 v205, 1, v2")
    k(f"v_xor_b32 v{B1}, s44, v204")
    k(f"v_lshlrev_b32 v{B1}, 4, v{B1}")
    k(f"v_lshl_add_u32 v{B1}, v205, 6, v{B1}")
    k(f"v_lshl_add_u32 v{B1}, v3, 12, v{B1}")
    k(f"v_add_u32 v{B1}, s48, v{B1}")
    k("v_add_u32 v205, 1, v2")
    k("v_lshrrev_b32 v205, 1, v205")
    k("v_add_u32 v204, 2, v204")
    k(f"v_xor_b32 v{B2}, s44, v204")
    k(f"v_lshlrev_b32 v{B2}, 4, v{B2}")
    k("v_lshlrev_b32 v205, 6, v205")
    k(f"v_sub_u32 v{B2}, v{B2}, v205")
    k("v_lshlrev_b32 v205, 12, v3")
    k(f"v_sub_u32 v{B2}, v{B2}, v205")
    k(f"v_add_u32 v{B2}, s48, v{B2}")
    k("s_lshl_b32 s49, s28, 12")
    k(f"s_add_u32 s49, s49, {WST}")
    k("v_bfe_u32 v204, v1, 1, 2")
    k("v_xor_b32 v204, s44, v204")
    k("v_lshlrev_b32 v204, 4, v204")
    k(f"v_lshl_add_u32 v{AWJ}, v1, 6, v204")
    k(f"v_add_u32 v{AWJ}, s49, v{AWJ}")
    k("v_lshrrev_b32 v204, 2, v1")
    k("v_and_b32 v205, 3, v1")
    k(f"v_bfe_u32 v{AT1}, v204, 1, 2")
    k(f"v_xor_b32 v{AT1}, v{AT1}, v205")
    k(f"v_lshlrev_b32 v{AT1}, 4, v{AT1}")
    k(f"v_lshl_add_u32 v{AWR}, v204, 6, v{AT1}")
    k(f"v_add_u32 v{AWR}, s49, v{AWR}")
    k("s_lshl_b32 s49, s28, 6")
    k("v_add_u32 v204, s49, v204")
    k("v_lshlrev_b32 v204, 14, v204")
    k(f"v_lshl_add_u32 v{AWG}, v205, 4, v204")
    k("v_bfe_u32 v204, v1, 2, 1")
    k("v_xor_b32 v204, s44, v204")
    k("v_lshlrev_b32 v204, 4, v204")
    k("v_and_b32 v205, 3, v1")
    k(f"v_lshl_add_u32 v{AX}, v205, 2, v204")
    APW = 223
    k(f"v_add_u32 v{APW}, {WST}, v{AX}")
    k(f"v_lshlrev_b32 v{ARD}, 4, v0")
    k(f"v_add_u32 v{ARD}, {STG}, v{ARD}")
    k("v_lshrrev_b32 v204, 2, v0")
    k("v_lshlrev_b32 v204, 14, v204")
    k("v_and_b32 v205, 3, v0")
    k(f"v_lshl_add_u32 v{AGL}, v205, 4, v204")
    k("s_xor_b32 s49, s44, 2")
    k("s_lshl_b32 s49, s49, 4")
    k("s_add_u32 s49, s49, s48")
    k("s_lshl_b32 s50, s44, 4")
    k("s_add_u32 s50, s50, s48")
    k(f"v_mov_b32 v{AT1}, s49")
    k(f"v_mov_b32 v{AT2}, s50")
    k("s_lshl_b32 s36, s28, 12")
    k("v_lshlrev_b32 v2, 5, v1")
    k("v_add_u32 v2, s36, v2")
    k("v_and_b32 v3, 31, v1")
    k("v_lshlrev_b32 v3, 2, v3")
    k("v_lshrrev_b32 v204, 5, v1")
    k("v_lshlrev_b32 v204, 9, v204")
    k("v_add3_u32 v3, v3, v204, s36")
    k("s_mov_b32 s35, 0xffff0000")
    if WEARLY == 2: w_loads()
    mark(k, 1)
    k(("s_waitcnt vmcnt(20)" if (FUSE23 and FILLPOS == 2 and FILL1 == 0) else "s_waitcnt vmcnt(16)") if WEARLY else "s_waitcnt vmcnt(0)")
    mark(k, 2)
    if FUSE23 and FILLPOS == 2 and FILL1 == 1: vb_fill(180)
    if not WEARLY: w_loads()
    for i in range(16):
        for row in range(2):
            src = XL + 8*row + (i >> 1)
            if i % 2 == 0: k(f"v_lshlrev_b32 v{XF+2*i+row}, 16, v{src}")
            else:          k(f"v_and_b32 v{XF+2*i+row}, s35, v{src}")
    ln_stats_xrow(k, XF, T, 38, 40, 42)
    k(f"v_mov_b32 v{T+8}, s40"); k(f"v_mov_b32 v{T+9}, s41")
    k(f"v_mov_b32 v{T+10}, s38"); k(f"v_mov_b32 v{T+11}, s39")
    for i in range(16):
        d = T + 2*(i % 4)
        k(f"v_pk_fma_f32 {vr(d,2)}, {vr(XF+2*i,2)}, {vr(T+8,2)}, {vr(T+10,2)} neg_lo:[0,0,1] neg_hi:[0,0,1]")
        k(f"{CVT} v{OP+i}, v{d}, v{d+1}")
    k(f"ds_write_b128 v2, {vr(OP,4)}")
    k(f"ds_write_b128 v2, {vr(OP+4,4)} offset:16")
    k(f"ds_write_b128 v2, {vr(OP+8,4)} offset:2048")
    k(f"ds_write_b128 v2, {vr(OP+12,4)} offset:2064")
    k("s_waitcnt lgkmcnt(0)")
    for i, (r, c) in enumerate(SEQ):
        k(f"ds_read_b32 v{OP+i}, v3 offset:{(8*r+c)*128}")
    mark(k, 3)
    k("s_waitcnt lgkmcnt(0)")
    stage(k, 'A', DR, DI, OP, Mr, Mi)
    def w_job():
        srd(k, 56, 26, 257*16384, WB_OFF)
        k("s_waitcnt vmcnt(4)" if WJOB == 2 else "s_waitcnt vmcnt(0)")
        WO = XF
        for e in range(2):
            for pi in range(2):
                for cc in range(4):
                    k(f"v_perm_b32 v{WO+4*(2*e+pi)+cc}, v{WL+8+4*pi+cc}, v{WL+4*pi+cc}, s{45+e}")
        for sl in range(4):
            if sl: k(f"v_xor_b32 v204, {16*sl}, v{AWJ}")
            k(f"ds_write_b128 v{204 if sl else AWJ}, {vr(WO+4*sl,4)}")
        k("s_add_u32 s49, s47, 0x400000")
        k("v_cmp_gt_u32 vcc, 8, v0")
        k("s_and_saveexec_b64 s[36:37], vcc")
        k("s_cbranch_execz L_p1_nox2")
        for r_ in (202, 203, 228, 229, 230, 231, 232, 233): k(f"v_lshlrev_b32 v{r_}, 16, v{r_}")
        k("v_add_f32 v228, v228, v230")
        k("v_sub_f32 v229, v229, v231")
        k("v_add_f32 v202, v202, v232")
        k("v_sub_f32 v203, v203, v233")
        k("v_add_f32 v230, v228, v202")
        k("v_add_f32 v231, v229, v203")
        k("v_sub_f32 v232, v228, v202")
        k("v_sub_f32 v233, v229, v203")
        for r_ in (230, 231, 232, 233): k(f"v_mul_f32 v{r_}, 0x3e800000, v{r_}")
        k(f"{CVT} v202, v230, v231")
        k(f"{CVT} v203, v232, v233")
        k(f"ds_write_b32 v{APW}, v202")
        k(f"buffer_store_dword v203, v{AX}, s[56:59], s49 offen {ST_P1}")
        k("L_p1_nox2:")
        k("s_mov_b64 exec, -1")
        k("s_waitcnt lgkmcnt(0)")
        for j in range(4): k(f"ds_read_b128 {vr(WO+16+4*j,4)}, v{AWR} offset:{1024*j}")
        k("s_mov_b32 s49, s47")
        for j in range(4):
            k(f"s_waitcnt lgkmcnt({3-j})")
            k(f"buffer_store_dwordx4 {vr(WO+16+4*j,4)}, v{AWG}, s[56:59], s49 offen {ST_P1}")
            if j < 3: k(f"s_add_u32 s49, s49, {16*16384}")
    if WJOB == 0: w_job()
    cmul_pack(k, DR, DI, TW, OP, T)
    stage(k, 'B', DR, DI, OP, Mr, Mi)
    mark(k, 4)
    for i, (r, c) in enumerate(SEQ):
        if r < 2: k(f"{CVT} v{OP+i}, v{DR+i}, v{DI+i}")
        else:     k(f"{CVT} v{OP+i}, v{DI+i}, v{DR+i}")
        if r < 2: k(f"ds_write_b32 v{B1}, v{OP+i} offset:{(8*r+c)*1024}")
        else:     k(f"ds_write_b32 v{B2}, v{OP+i} offset:{(32-8*r-c)*1024}")
    k(f"v_sub_f32 v{T+2}, v{DR}, v{DI+8}")
    k(f"v_add_f32 v{T+3}, v{DI}, v{DR+8}")
    k(f"v_sub_f32 v{T+4}, v{DI}, v{DR+8}")
    k(f"v_add_f32 v{T+5}, v{DR}, v{DI+8}")
    k(f"{CVT} v{T}, v{T+4}, v{T+5}")
    k(f"{CVT} v{T+1}, v{T+2}, v{T+3}")
    k("s_mov_b64 exec, 1")
    k(f"ds_write_b32 v{AT1}, v{T}")
    k(f"ds_write_b32 v{AT2}, v{T+1}")
    k("s_mov_b64 exec, -1")
    if WJOB == 1: w_job()
    k("s_waitcnt lgkmcnt(0)")
    k("s_barrier")
    RO = XF
    for j in range(4):
        k(f"ds_read_b128 {vr(RO+4*j,4)}, v{ARD} offset:{4096*j}")
    for j in range(4):
        k(f"s_waitcnt lgkmcnt({3-j})")
        k(f"buffer_store_dwordx4 {vr(RO+4*j,4)}, v{AGL}, s[20:23], s47 offen {ST_P1}")
        if j < 3: k("s_add_u32 s47, s47, 0x100000")
    if WJOB == 2:
        k("s_sub_u32 s47, s47, 0x300000")
        w_job()
    stamp_end(k, 'p1')
    k("L_p1_end:")
    k("s_endpgm")
    k("L_p1_endc:")
    return k, 236, WST + 16384

def pf_wave(k, tag, first_line):
    if not W1PF: return
    k("s_cmp_eq_u32 s28, 4")
    k(f"s_cbranch_scc0 L_{tag}_nopf")
    k("s_waitcnt lgkmcnt(0)")
    srd(k, 16, 24, S*F*2)
    k(f"s_mul_i32 s33, s2, {W1PF*128}")
    k(f"s_add_u32 s33, s33, {first_line*128}")
    k("v_lshlrev_b32 v3, 7, v1")
    for i in range(W1PF//64):
        k("buffer_load_dword v4, v3, s[16:19], s33 offen")
        k("s_add_u32 s33, s33, 8192")
    k("s_endpgm")
    k(f"L_{tag}_nopf:")

def first_tiles_wave(k):
    if not FIRSTPF: return
    k("s_cmp_eq_u32 s28, 4")
    k("s_cbranch_scc0 L_p3_noft")
    k("s_waitcnt lgkmcnt(0)")
    srd(k, 16, 24, S*F*2)
    k("s_lshr_b32 s33, s2, 6")
    k("s_lshl_b32 s33, s33, 3")
    k("s_lshr_b32 s33, 0x0400031f, s33")
    k("s_and_b32 s33, s33, 31")
    k("s_and_b32 s34, s2, 1")
    k("s_lshl_b32 s34, s34, 4")
    k("s_add_u32 s33, s33, s34")
    k("s_and_b32 s33, s33, 31")
    k(f"s_mul_i32 s33, s33, {64*7168}")
    k("s_bfe_u32 s34, s2, 0x20001")
    k("s_mul_i32 s34, s34, 1792")
    k("s_add_u32 s33, s33, s34")
    k("s_bfe_u32 s34, s2, 0x30003")
    k("s_mul_i32 s34, s34, 112")
    for h in range(2):
        k(f"v_add_u32 v2, {64*h}, v1")
        k("v_min_u32 v2, 111, v2")
        k("v_add_u32 v2, s34, v2")
        k("v_mul_u32_u24 v3, 4682, v2")
        k("v_lshrrev_b32 v3, 16, v3")
        k("v_mul_u32_u24 v4, 14, v3")
        k("v_sub_u32 v4, v2, v4")
        k("v_mul_u32_u24 v3, 7168, v3")
        k("v_lshl_add_u32 v3, v4, 7, v3")
        k(f"buffer_load_dword v{5+h}, v3, s[16:19], s33 offen")
    k("s_endpgm")
    k("L_p3_noft:")

def next_code_pf(k, tag, first, last, nwg, vt, st, lane):
    if not CODEPF2: return
    per = f"(({last}-{first})/128+{nwg})/{nwg}"
    k(f"s_getpc_b64 s[{st}:{st+1}]")
    k(f"L_{tag}_npc:")
    k(f"s_add_u32 s{st}, s{st}, {first}-L_{tag}_npc")
    k(f"s_addc_u32 s{st+1}, s{st+1}, 0")
    k(f"s_lshr_b32 s{st+2}, s2, 3")
    k(f"s_mul_i32 s{st+2}, s{st+2}, {per}")
    k(f"v_add_u32 v{vt+2}, s{st+2}, v{lane}")
    k(f"v_lshlrev_b32 v{vt+2}, 7, v{vt+2}")
    k(f"v_mov_b32 v{vt+1}, s{st+1}")
    k(f"v_add_co_u32 v{vt}, vcc, s{st}, v{vt+2}")
    k(f"v_addc_co_u32 v{vt+1}, vcc, 0, v{vt+1}, vcc")
    k(f"v_cmp_gt_u32 vcc, {per}, v{lane}")
    k(f"s_mov_b64 exec, vcc")
    k(f"v_cmp_gt_u32 vcc, {last}-{first}, v{vt+2}")
    k(f"s_and_b64 exec, exec, vcc")
    k(f"s_cbranch_execz L_{tag}_npe")
    k(f"global_load_dword v{vt+3}, v[{vt}:{vt+1}], off")
    k(f"L_{tag}_npe:")
    k("s_mov_b64 exec, -1")

def gen_p2(fused=False, mega=False):
    k = Kern('mega_kernel' if mega else ('p23_kernel' if fused else 'p2_kernel'))
    k("s_cmp_ge_u32 s2, 256")
    k("s_cbranch_scc1 L_p2_end")
    stamp_begin(k)
    k("s_load_dwordx2 s[26:27], s[0:1], 80")
    k("s_load_dwordx2 s[24:25], s[0:1], 32")
    if fused: k("s_load_dwordx2 s[4:5], s[0:1], 0")
    k("v_and_b32 v1, 63, v0")
    k("v_lshrrev_b32 v2, 6, v0")
    k("v_readfirstlane_b32 s28, v2")
    if mega:
        k("s_cmp_lt_u32 s28, 4")
        k("s_cbranch_scc1 L_p2_lo")
        k("s_waitcnt lgkmcnt(0)")
        k("s_branch L_g1_entry")
        k("L_p2_lo:")
    pf_wave(k, 'p2', W1PF0)
    k("v_lshlrev_b32 v2, 4, v1")
    k("s_lshr_b32 s29, s28, 1")
    k("s_and_b32 s30, s28, 1")
    k("s_lshl_b32 s31, s2, 14")
    k("s_lshl_b32 s32, s28, 12")
    k("s_add_u32 s31, s31, s32")
    k("s_waitcnt lgkmcnt(0)")
    srd(k, 8, 26, 257*16384, ZD_OFF)
    srd(k, 20, 26, 257*16384, WB_OFF)
    srd(k, 12, 26, 256*VB_BLK, VB_OFF)
    for i in range(4):
        k(f"s_add_u32 m0, s32, {1024*i}")
        k(f"s_add_u32 s33, s31, {1024*i}")
        k(f"buffer_load_dwordx4 v2, s[8:11], s33 offen lds")
    k("s_or_b32 s46, s2, s29")
    k("s_cmp_eq_u32 s46, 0")
    k("s_cbranch_scc0 L_p2_noq")
    k("v_bfe_u32 v3, v1, 2, 2")
    k("v_xor_b32 v3, s30, v3")
    k("v_lshlrev_b32 v3, 4, v3")
    k("v_lshl_add_u32 v3, v1, 6, v3")
    k("s_lshl_b32 s47, s30, 12")
    for r in range(4):
        k(f"s_add_u32 m0, s47, {32768+1024*r}")
        k(f"s_mov_b32 s33, {0x400000+4096*r}")
        k("buffer_load_dwordx4 v3, s[20:23], s33 offen lds")
    k("L_p2_noq:")
    def own_fill(reg):
        for i in range(4): k(f"v_mov_b32 v{reg+i}, -1")
        k("v_lshlrev_b32 v3, 4, v0")
        k("s_lshl_b32 s33, s2, 14")
        for j in range(4):
            k(f"buffer_store_dwordx4 {vr(reg,4)}, v3, s[12:15], s33 offen sc0 sc1")
            if j < 3: k("s_add_u32 s33, s33, 4096")
    if fused and FILLPOS != 2: srd(k, 16, 26, 1024, BAR_OFF)
    if fused and FILLPOS == 0: own_fill(4)
    Z1, Z2 = 4, 20
    M1r, M1i, MFr, MFi, MIr, MIi = 36, 52, 68, 84, 100, 116
    T1, T2 = 132, 164
    DR, DI, T = 196, 212, 228
    A, B, J, H4, PI = 244, 245, 246, 247, 248
    k(f"v_and_b32 v{J}, 31, v1")
    k(f"v_cvt_f32_u32 v{J}, v{J}")
    k(f"v_lshrrev_b32 v{H4}, 5, v1")
    k(f"v_lshlrev_b32 v{H4}, 2, v{H4}")
    k(f"v_cvt_f32_u32 v{H4}, v{H4}")
    k(f"v_mov_b32 v{PI}, s30")
    k(f"v_cvt_f32_u32 v{PI}, v{PI}")
    k(f"v_mul_f32 v{A}, {f32(1/32)}, v{J}")
    k(f"v_mul_f32 v{B}, v{A}, v{H4}")
    gen_matrix(k, MFr, MFi, A, B, T)
    k(f"v_fma_f32 v{A}, v{J}, 2.0, v{PI}")
    k(f"v_mul_f32 v{A}, {f32(1/64)}, v{A}")
    k(f"v_mul_f32 v{B}, v{A}, v{H4}")
    gen_matrix(k, M1r, M1i, A, B, T)
    k("s_lshl_b32 s33, s30, 4")
    k(f"v_and_b32 v{T}, 31, v1")
    k(f"v_xor_b32 v{T}, s33, v{T}")
    k(f"v_cvt_f32_u32 v{T}, v{T}")
    k(f"v_mul_f32 v{A}, {f32(1/32)}, v{T}")
    k(f"v_mul_f32 v{B}, v{A}, v{H4}")
    k(f"v_mul_f32 v{T}, {f32(1/64)}, v{T}")
    k(f"v_fma_f32 v{B}, v{T}, v{PI}, v{B}")
    gen_matrix(k, MIr, MIi, A, B, T)
    k(f"v_fma_f32 v{A}, v{J}, 2.0, v{PI}")
    k(f"v_mul_f32 v{A}, {f32(1/2048)}, v{A}")
    k(f"v_mov_b32 v{T}, {f32(0.125)}")
    k(f"v_mul_f32 v{T+1}, {f32(-0.25)}, v{PI}")
    k(f"v_add_f32 v{T}, v{T}, v{T+1}")
    k(f"v_fma_f32 v{B}, v{A}, v{H4}, v{T}")
    gen_twiddle(k, T1, A, B, T)
    k(f"v_mul_f32 v{A}, {f32(1/1024)}, v{J}")
    k(f"v_mul_f32 v{B}, v{A}, v{H4}")
    k(f"v_mul_f32 v{T}, {f32(1/2048)}, v{J}")
    k(f"v_fma_f32 v{B}, v{T}, v{PI}, v{B}")
    gen_twiddle(k, T2, A, B, T)
    AZ1, AZ2, AW = 249, 250, 251
    k(f"v_bfe_u32 v{T}, v1, 2, 2")
    k(f"v_lshlrev_b32 v{T+1}, 6, v1")
    k(f"v_xor_b32 v{AZ1}, s29, v{T}")
    k(f"v_lshl_add_u32 v{AZ1}, v{AZ1}, 4, v{T+1}")
    k(f"v_xor_b32 v{AZ2}, 32, v{AZ1}")
    k("s_lshl_b32 s33, s29, 1")
    k("s_add_u32 s33, s33, s30")
    k(f"v_xor_b32 v{AW}, s33, v{T}")
    k(f"v_lshl_add_u32 v{AW}, v{AW}, 4, v{T+1}")
    k(f"v_add_u32 v{AW}, 16384, v{AW}")
    k("s_mul_i32 s34, s30, 0x80008000")
    k("s_mov_b32 s35, 0xffff0000")
    mark(k, 1)
    k("s_waitcnt vmcnt(4)" if (fused and FILLPOS == 0) else "s_waitcnt vmcnt(0)")
    for i in range(4):
        k(f"s_add_u32 m0, s32, {16384+1024*i}")
        k(f"s_add_u32 s33, s31, {1024*i}")
        k(f"buffer_load_dwordx4 v2, s[20:23], s33 offen lds")
    if fused and FILLPOS == 1: own_fill(DR)
    k("s_barrier")
    mark(k, 2)
    for r in range(4):
        k(f"ds_read_b128 {vr(Z1+4*r,4)}, v{AZ1} offset:{4096*r}")
        k(f"ds_read_b128 {vr(Z2+4*r,4)}, v{AZ2} offset:{4096*r}")
    k("s_waitcnt lgkmcnt(0)")
    for i in range(16):
        k(f"v_xor_b32 v{Z2+i}, s34, v{Z2+i}")
    stage(k, 'A', DR, DI, Z1, M1r, M1i, first=True)
    stage(k, 'A', DR, DI, Z2, M1r, M1i, first=False)
    OP = Z1
    cmul_pack(k, DR, DI, T1, OP, T)
    k("s_waitcnt vmcnt(0)")
    k("s_barrier")
    if fused and FILLPOS != 2:
        k("s_cmp_eq_u32 s28, 0")
        k("s_cbranch_scc0 L_p2_noarr")
        k("s_and_b32 s33, s2, 7")
        k("s_lshl_b32 s33, s33, 7")
        k("v_mov_b32 v249, 1")
        k("v_mov_b32 v250, 0")
        k("s_mov_b64 exec, 1")
        k("buffer_atomic_add v249, v250, s[16:19], s33 offen sc1")
        k("s_mov_b64 exec, -1")
        k("L_p2_noarr:")
    for r in range(4):
        k(f"ds_read_b128 {vr(Z2+4*r,4)}, v{AW} offset:{4096*r}")
    stage(k, 'B', DR, DI, OP, MFr, MFi)
    WP = M1r
    k("s_waitcnt lgkmcnt(0)")
    for i in range(16):
        k(f"v_lshlrev_b32 v{WP+2*i}, 16, v{Z2+i}")
        k(f"v_and_b32 v{WP+2*i+1}, s35, v{Z2+i}")
    k("s_or_b32 s46, s2, s29")
    k("s_cmp_eq_u32 s46, 0")
    k("s_cbranch_scc1 L_p2_spec")
    cmul_pack(k, DR, DI, WP, OP, T, conj=True)
    k("L_p2_specd:")
    stage(k, 'A', DR, DI, OP, MFr, MFi)
    cmul_pack(k, DR, DI, T2, OP, T)
    stage(k, 'B', DR, DI, OP, MIr, MIi)
    mark(k, 4)
    if fused and FILLPOS != 2:
        k("s_cmp_eq_u32 s28, 0")
        k("s_cbranch_scc0 L_p2_nochk0")
        k("v_and_b32 v249, 7, v1")
        k("v_lshlrev_b32 v249, 7, v249")
        k("buffer_load_dword v250, v249, s[16:19], 0 offen sc0 sc1")
        k("L_p2_nochk0:")
    XCH, STG = 32768, 49152
    AX = 252
    k("s_lshl_b32 s36, s28, 12")
    k(f"s_add_u32 s36, s36, {XCH}")
    k(f"v_lshl_add_u32 v{AX}, v1, 4, s36")
    k(f"ds_write_b128 v{AX}, {vr(DR+8,4)}")
    k(f"ds_write_b128 v{AX}, {vr(DR+12,4)} offset:1024")
    k(f"ds_write_b128 v{AX}, {vr(DI+8,4)} offset:2048")
    k(f"ds_write_b128 v{AX}, {vr(DI+12,4)} offset:3072")
    k(f"v_xor_b32 v{AX}, 4096, v{AX}")
    k("s_cmp_eq_u32 s30, 0")
    k(f"s_cselect_b32 s40, {f32(1.0)}, {f32(-1.0)}")
    k("s_mov_b32 s42, s40")
    k("s_waitcnt lgkmcnt(0)")
    k("s_barrier")
    OR_, OI = 36, 44
    k(f"ds_read_b128 {vr(OR_,4)}, v{AX}")
    k(f"ds_read_b128 {vr(OR_+4,4)}, v{AX} offset:1024")
    k(f"ds_read_b128 {vr(OI,4)}, v{AX} offset:2048")
    k(f"ds_read_b128 {vr(OI+4,4)}, v{AX} offset:3072")
    k(f"v_bfe_u32 v{T}, v1, 1, 2")
    k(f"v_xor_b32 v{T+1}, s29, v{T}")
    k(f"v_xor_b32 v{T+2}, 2, v{T+1}")
    k("s_lshl_b32 s43, s30, 13")
    k(f"s_add_u32 s43, s43, {STG}")
    k(f"v_lshl_add_u32 v{T+3}, v1, 6, s43")
    k(f"v_lshl_add_u32 v253, v{T+1}, 4, v{T+3}")
    k(f"v_lshl_add_u32 v254, v{T+2}, 4, v{T+3}")
    k("s_waitcnt lgkmcnt(0)")
    UA, UB = 52, 60
    Ur, Ui, Er, Ei, Ar, Ai, Br, Bi = [x + (64 if fused else 0) for x in (68, 70, 72, 74, 76, 78, 80, 82)]
    bc = "op_sel_hi:[1,0,1]"
    k("s_cmp_eq_u32 s46, 0")
    k("s_cbranch_scc1 L_p2_spost")
    for j in range(0, 8, 2):
        o = 16*((j//2) % 2)
        ur, ui, er, ei, a_r, a_i, b_r, b_i = [x+o for x in (Ur, Ui, Er, Ei, Ar, Ai, Br, Bi)]
        k(f"v_pk_add_f32 {vr(ur,2)}, {vr(DR+j,2)}, {vr(OR_+j,2)}")
        k(f"v_pk_add_f32 {vr(ui,2)}, {vr(DI+j,2)}, {vr(OI+j,2)}")
        k(f"v_pk_add_f32 {vr(er,2)}, {vr(DR+j,2)}, {vr(OR_+j,2)} neg_lo:[0,1] neg_hi:[0,1]")
        k(f"v_pk_add_f32 {vr(ei,2)}, {vr(DI+j,2)}, {vr(OI+j,2)} neg_lo:[0,1] neg_hi:[0,1]")
        k(f"v_pk_fma_f32 {vr(a_r,2)}, {vr(ei,2)}, s[42:43], {vr(ur,2)} {bc}")
        k(f"v_pk_fma_f32 {vr(b_r,2)}, {vr(ei,2)}, s[42:43], {vr(ur,2)} {bc} neg_lo:[1,0,0] neg_hi:[1,0,0]")
        k(f"v_pk_fma_f32 {vr(a_i,2)}, {vr(er,2)}, s[40:41], {vr(ui,2)} {bc} neg_lo:[1,0,0] neg_hi:[1,0,0]")
        k(f"v_pk_fma_f32 {vr(b_i,2)}, {vr(er,2)}, s[40:41], {vr(ui,2)} {bc} neg_lo:[1,0,1] neg_hi:[1,0,1]")
        k(f"{CVT} v{UA+j}, v{a_r}, v{a_i}")
        k(f"{CVT} v{UA+j+1}, v{a_r+1}, v{a_i+1}")
        k(f"{CVT} v{UB+j}, v{b_r}, v{b_i}")
        k(f"{CVT} v{UB+j+1}, v{b_r+1}, v{b_i+1}")
    k("s_branch L_p2_postd")
    k("L_p2_spost:")
    for j in range(0, 8, 2):
        o = 16*((j//2) % 2)
        ur, ui, er, ei, a_r, a_i, b_r, b_i = [x+o for x in (Ur, Ui, Er, Ei, Ar, Ai, Br, Bi)]
        k(f"v_pk_add_f32 {vr(ur,2)}, {vr(DR+j,2)}, {vr(OR_+j,2)}")
        k(f"v_pk_add_f32 {vr(ui,2)}, {vr(DI+j,2)}, {vr(OI+j,2)}")
        k(f"v_pk_add_f32 {vr(er,2)}, {vr(DR+j,2)}, {vr(OR_+j,2)} neg_lo:[0,1] neg_hi:[0,1]")
        k(f"v_pk_add_f32 {vr(ei,2)}, {vr(DI+j,2)}, {vr(OI+j,2)} neg_lo:[0,1] neg_hi:[0,1]")
        k(f"v_pk_mul_f32 {vr(a_i,2)}, {vr(er,2)}, s[40:41] op_sel_hi:[1,0] neg_lo:[1,0] neg_hi:[1,0]")
        k(f"v_pk_mul_f32 {vr(b_i,2)}, {vr(ei,2)}, s[40:41] op_sel_hi:[1,0]")
        k(f"{CVT} v{UA+j}, v{ur}, v{a_i}")
        k(f"{CVT} v{UA+j+1}, v{ur+1}, v{a_i+1}")
        k(f"{CVT} v{UB+j}, -v{ui}, v{b_i}")
        k(f"{CVT} v{UB+j+1}, -v{ui+1}, v{b_i+1}")
    k("L_p2_postd:")
    for rl in range(2):
        k(f"ds_write_b128 v253, {vr(UA+4*rl,4)} offset:{4096*rl}")
        k(f"ds_write_b128 v254, {vr(UB+4*rl,4)} offset:{4096*rl}")
    k(f"v_and_b32 v{T}, 3, v0")
    k(f"v_bfe_u32 v{T+1}, v0, 3, 2")
    k(f"v_xor_b32 v{T+1}, v{T}, v{T+1}")
    k(f"v_lshrrev_b32 v{T+2}, 2, v0")
    k(f"v_lshlrev_b32 v{T+3}, 6, v{T+2}")
    k(f"v_lshl_add_u32 v{T+3}, v{T+1}, 4, v{T+3}")
    k(f"v_add_u32 v{T+3}, {STG}, v{T+3}")
    k(f"v_mul_u32_u24 v{T+2}, {VB_BLK}, v{T+2}")
    k("s_and_b32 s44, s2, 2")
    k(f"v_xor_b32 v{T}, s44, v{T}")
    k(f"v_lshl_add_u32 v{T+2}, v{T}, 4, v{T+2}")
    k("s_lshl_b32 s45, s2, 6")
    if fused and FILLPOS != 2:
        k("s_cmp_eq_u32 s28, 0")
        k("s_cbranch_scc0 L_p2_chkd")
        k("s_mov_b32 s47, 0")
        k("L_p2_chk:")
        k("s_waitcnt vmcnt(0)")
        k("v_cmp_gt_u32 vcc, 32, v250")
        k("s_add_u32 s47, s47, 1")
        k("s_cmp_ge_u32 s47, 0x20000")
        k("s_cbranch_scc1 L_p2_chkd")
        k("s_nop 2")
        k("s_cbranch_vccz L_p2_chkd")
        k("buffer_load_dword v250, v249, s[16:19], 0 offen sc0 sc1")
        k("s_branch L_p2_chk")
        k("L_p2_chkd:")
    k("s_waitcnt lgkmcnt(0)")
    k("s_barrier")
    for j in range(4):
        k(f"ds_read_b128 {vr(4+4*j,4)}, v{T+3} offset:{4096*j}")
    k("s_waitcnt lgkmcnt(0)")
    for j in range(4):
        k(f"buffer_store_dwordx4 {vr(4+4*j,4)}, v{T+2}, s[12:15], s45 offen {ST_P2}")
        if j < 3: k(f"s_add_u32 s45, s45, {64*VB_BLK}")
    if fused:
        mark(k, 3)
        p3_body(k, True)
    stamp_end(k, 'p2')
    if mega:
        k("s_waitcnt vmcnt(0)")
        k("s_barrier")
        srd(k, 16, 26, 256*128, FH_OFF)
        k("s_lshl_b32 s33, s2, 7")
        k("v_mov_b32 v2, 1")
        k("v_mov_b32 v3, 0")
        k("v_cmp_eq_u32 vcc, 0, v0")
        k("s_and_saveexec_b64 s[34:35], vcc")
        k("s_cbranch_execz L_p2_nocnt")
        k("buffer_store_dword v2, v3, s[16:19], s33 offen sc0 sc1")
        k("L_p2_nocnt:")
        k("s_mov_b64 exec, -1")
        k("s_branch L_g1_entry")
    k("L_p2_end:")
    k("s_endpgm")
    k("L_p2_spec:")
    QP = T1
    XB_ = Z2
    k("s_lshl_b32 s47, s30, 12")
    k(f"v_lshl_add_u32 v{T}, v1, 4, s47")
    for r in range(4):
        k(f"ds_read_b128 {vr(XB_+4*r,4)}, v{T} offset:{32768+1024*r}")
    k("s_lshl_b32 s47, s30, 13")
    k(f"v_and_b32 v{T+1}, 31, v1")
    k(f"v_lshrrev_b32 v{T+2}, 5, v1")
    k(f"v_lshlrev_b32 v{T+3}, 2, v{T+1}")
    k(f"v_lshl_add_u32 v{T+3}, v{T+2}, 10, v{T+3}")
    k(f"v_add_u32 v{T+3}, s47, v{T+3}")
    for i, (r, c) in enumerate(SEQ):
        k(f"ds_write_b32 v{T+3}, v{DR+i} offset:{(8*r+c)*256}")
        k(f"ds_write_b32 v{T+3}, v{DI+i} offset:{(8*r+c)*256+128}")
    k(f"v_add_u32 v{T+4}, s30, v{T+1}")
    k(f"v_sub_u32 v{T+5}, 32, v{T+4}")
    k(f"v_lshlrev_b32 v{T+5}, 2, v{T+5}")
    k(f"v_cmp_eq_u32 vcc, 0, v{T+4}")
    k(f"v_mov_b32 v{T+6}, 256")
    k(f"v_cndmask_b32 v{T+5}, v{T+5}, v{T+6}, vcc")
    k(f"v_lshlrev_b32 v{T+6}, 10, v{T+2}")
    k(f"v_sub_u32 v{T+5}, v{T+5}, v{T+6}")
    k(f"v_add_u32 v{T+5}, 1024, v{T+5}")
    k(f"v_add_u32 v{T+5}, s47, v{T+5}")
    k(f"v_add_u32 v{T+6}, {27*256}, v{T+5}")
    k(f"v_or_b32 v{T+7}, v{T+4}, v{T+2}")
    k(f"v_cmp_eq_u32 vcc, 0, v{T+7}")
    k(f"v_mov_b32 v{T+7}, s47")
    k(f"v_cndmask_b32 v{T+6}, v{T+6}, v{T+7}, vcc")
    k("s_waitcnt lgkmcnt(0)")
    for i in range(16):
        k(f"v_lshlrev_b32 v{QP+2*i}, 16, v{XB_+i}")
        k(f"v_and_b32 v{QP+2*i+1}, s35, v{XB_+i}")
    for half in range(2):
        for jj in range(8):
            i = 8*half + jj; r, c = SEQ[i]
            if i == 0:
                k(f"ds_read_b32 v{XB_+2*jj}, v{T+6}")
                k(f"ds_read_b32 v{XB_+2*jj+1}, v{T+6} offset:128")
            else:
                k(f"ds_read_b32 v{XB_+2*jj}, v{T+5} offset:{(27-8*r-c)*256}")
                k(f"ds_read_b32 v{XB_+2*jj+1}, v{T+5} offset:{(27-8*r-c)*256+128}")
        k("s_waitcnt lgkmcnt(0)")
        for jj in range(8):
            j = 8*half + jj; o = T + 8 + 2*(jj % 4); jp = j & ~1; x = j & 1
            k(f"v_pk_mul_f32 {vr(o,2)}, {vr(WP+2*j,2)}, {vr(DR+jp,2)} op_sel:[0,{x}] op_sel_hi:[1,{x}]")
            k(f"v_pk_fma_f32 {vr(o,2)}, {vr(WP+2*j,2)}, {vr(DI+jp,2)}, {vr(o,2)} op_sel:[1,{x},0] op_sel_hi:[0,{x},1] neg_lo:[1,0,0]")
            k(f"v_pk_fma_f32 {vr(o,2)}, {vr(QP+2*j,2)}, {vr(XB_+2*jj,2)}, {vr(o,2)} op_sel:[0,0,0] op_sel_hi:[1,0,1]")
            k(f"v_pk_fma_f32 {vr(o,2)}, {vr(QP+2*j,2)}, {vr(XB_+2*jj,2)}, {vr(o,2)} op_sel:[1,1,0] op_sel_hi:[0,1,1] neg_hi:[1,0,0]")
            k(f"{CVT} v{OP+j}, v{o}, -v{o+1}")
    k("s_branch L_p2_specd")
    return k, 256, 65536

def ln_stats_rows(k, R0, R1, t, vRM, sTmp, twice=False):
    for (R, o) in ((R0, 0), (R1, 4)):
        a, b = t+o, t+o+2
        k(f"v_pk_add_f32 {vr(a,2)}, {vr(R,2)}, {vr(R+2,2)}")
        k(f"v_pk_add_f32 {vr(b,2)}, {vr(R+4,2)}, {vr(R+6,2)}")
    for i in range(4, 8):
        for (R, o) in ((R0, 0), (R1, 4)):
            a = t+o+2*(i % 2)
            k(f"v_pk_add_f32 {vr(a,2)}, {vr(a,2)}, {vr(R+2*i,2)}")
    for o in (0, 4):
        k(f"v_pk_add_f32 {vr(t+o,2)}, {vr(t+o,2)}, {vr(t+o+2,2)}")
    k(f"v_add_f32 v{t}, v{t}, v{t+1}")
    k(f"v_add_f32 v{t+1}, v{t+4}, v{t+5}")
    wave_reduce2(k, t, t+1)
    ln_mean(k, t, sTmp)
    acc = {0: t, 1: t+2}; tmp = [t+4, t+6, t+8, t+10]
    n = 0
    for i in range(8):
        for row, R in ((0, R0), (1, R1)):
            d = tmp[n % 4]; n += 1
            sel = "op_sel_hi:[1,0]" if row == 0 else "op_sel:[0,1] op_sel_hi:[1,1]"
            k(f"v_pk_add_f32 {vr(d,2)}, {vr(R+2*i,2)}, {sr(sTmp,2)} {sel} neg_lo:[0,1] neg_hi:[0,1]")
            a = acc[row]
            if i == 0: k(f"v_pk_mul_f32 {vr(a,2)}, {vr(d,2)}, {vr(d,2)}")
            else:      k(f"v_pk_fma_f32 {vr(a,2)}, {vr(d,2)}, {vr(d,2)}, {vr(a,2)}")
    k(f"v_add_f32 v{t}, v{t}, v{t+1}")
    k(f"v_add_f32 v{t+1}, v{t+2}, v{t+3}")
    wave_reduce2(k, t, t+1)
    ln_scalars(k, t, twice)
    k(f"v_readlane_b32 s{sTmp}, v{t}, 63")
    k(f"v_readlane_b32 s{sTmp+1}, v{t+1}, 63")
    k(f"v_readlane_b32 s{sTmp+2}, v{t+12}, 63")
    k(f"v_readlane_b32 s{sTmp+3}, v{t+13}, 63")
    for i in range(4):
        k(f"v_mov_b32 v{vRM+i}, s{sTmp+i}")

def ln_apply_rows(k, R0, R1, vRM, dst0, dst1):
    for i in range(8):
        k(f"v_pk_fma_f32 {vr(dst0+2*i,2)}, {vr(R0+2*i,2)}, {vr(vRM,2)}, {vr(vRM+2,2)} op_sel_hi:[1,0,0] neg_lo:[0,0,1] neg_hi:[0,0,1]")
        k(f"v_pk_fma_f32 {vr(dst1+2*i,2)}, {vr(R1+2*i,2)}, {vr(vRM,2)}, {vr(vRM+2,2)} op_sel:[0,1,1] op_sel_hi:[1,1,1] neg_lo:[0,0,1] neg_hi:[0,0,1]")

def p3_body(k, fused):
    if fused:
        XL, OP, Mr, Mi, TW, DR, DI, T = 36, 20, 68, 84, 164, 196, 212, 228
        R0, R1, Y0, Y1, HP, NP, RM = 100, 116, 132, 148, 52, 4, 244
        B1, B2, AJ8, t0, t1, t2, cj, ch, cA, cB, XV = 248, 249, 250, 251, 252, 253, 251, 252, 253, 254, 255
    else:
        XL, OP, Mr, Mi, TW, DR, DI, T = 4, 20, 36, 52, 68, 100, 116, 132
        R0, R1, Y0, Y1, HP, NP, RM = 148, 164, 180, 196, 36, 68, 220
        B1, B2, AJ8, t0, t1, t2, cj, ch, cA, cB, XV = 218, 219, 227, 216, 217, 226, 212, 213, 214, 215, 225
    k("s_lshr_b32 s29, s2, 5")
    k("s_lshl_b32 s29, s29, 2")
    k("s_and_b32 s30, s2, 31")
    k("s_add_u32 s31, s29, s28")
    k("s_lshl_b32 s31, s31, 5")
    k("s_add_u32 s31, s31, s30")
    k("s_lshl_b32 s31, s31, 11")
    k("s_add_u32 s32, s31, 0x200000")
    k(f"s_mul_i32 s33, s2, {VB_BLK}")
    k("s_lshl_b32 s34, s28, 12")
    k("s_add_u32 s33, s33, s34")
    k("v_lshlrev_b32 v2, 4, v1")
    if not fused: k("s_waitcnt lgkmcnt(0)")
    srd(k, 8, 4, S*D*2)
    if not fused: srd(k, 12, 26, 256*VB_BLK, VB_OFF)
    srd(k, 16, 26, S*D*2, H_OFF)
    srd(k, 20, 26, S*D*2, HN_OFF)
    def x_loads():
        k(f"v_lshlrev_b32 v{XV}, 4, v1")
        k(f"buffer_load_dwordx4 {vr(XL,4)}, v{XV}, s[8:11], s31 offen")
        k(f"buffer_load_dwordx4 {vr(XL+4,4)}, v{XV}, s[8:11], s31 offen offset:1024")
        k(f"buffer_load_dwordx4 {vr(XL+8,4)}, v{XV}, s[8:11], s32 offen")
        k(f"buffer_load_dwordx4 {vr(XL+12,4)}, v{XV}, s[8:11], s32 offen offset:1024")
    if fused:
        x_loads()
    else:
        for i in range(4):
            k(f"s_add_u32 m0, s34, {1024*i}")
            k(f"buffer_load_dwordx4 v2, s[12:15], s33 offen lds")
            k("s_add_u32 s33, s33, 1024")
    if CODEPF2:
        k("s_cmp_eq_u32 s28, 0")
        k("s_cbranch_scc0 L_p3_nonp")
        next_code_pf(k, 'p3', 'L_g1_entry' if FUSE_ALL else ('gg_kernel' if FUSE_GG else 'g1_kernel'), 'L_gbar' if FUSE_GG else 'g2_kernel', 32, RM, 40, 1)
        k("L_p3_nonp:")
    k(f"v_and_b32 v{cj}, 31, v1")
    k(f"v_cvt_f32_u32 v{cj}, v{cj}")
    k(f"v_lshrrev_b32 v{ch}, 5, v1")
    k(f"v_lshlrev_b32 v{ch}, 2, v{ch}")
    k(f"v_cvt_f32_u32 v{ch}, v{ch}")
    if not fused:
        k(f"v_mul_f32 v{cA}, {f32(1/32)}, v{cj}")
        k(f"v_mul_f32 v{cB}, v{cA}, v{ch}")
        gen_matrix(k, Mr, Mi, cA, cB, T)
    k(f"v_mul_f32 v{cA}, {f32(1/1024)}, v{cj}")
    k(f"v_mul_f32 v{cB}, v{cA}, v{ch}")
    gen_twiddle(k, TW, cA, cB, T, scale=2.0**-21.5)
    k("v_and_b32 v2, 31, v1")
    k("v_lshrrev_b32 v3, 5, v1")
    k(f"v_and_b32 v{t0}, 1, v2")
    k(f"v_lshrrev_b32 v{t1}, 1, v2")
    k(f"v_and_b32 v{B1}, 2, v{t1}")
    k(f"v_xor_b32 v{B1}, v{B1}, v{t0}")
    k(f"v_lshlrev_b32 v{B1}, 4, v{B1}")
    k(f"v_lshl_add_u32 v{B1}, v{t1}, 6, v{B1}")
    k(f"v_lshl_add_u32 v{B1}, v3, 12, v{B1}")
    k("s_lshl_b32 s37, s28, 2")
    k(f"v_add_u32 v{B1}, s37, v{B1}")
    k(f"v_add_u32 v{t1}, 1, v2")
    k(f"v_lshrrev_b32 v{t1}, 1, v{t1}")
    k(f"v_sub_u32 v{B2}, 0, v{t1}")
    k(f"v_and_b32 v{B2}, 2, v{B2}")
    k(f"v_add_u32 v{t0}, 2, v{t0}")
    k(f"v_xor_b32 v{B2}, v{B2}, v{t0}")
    k(f"v_lshlrev_b32 v{B2}, 4, v{B2}")
    k(f"v_lshlrev_b32 v{t1}, 6, v{t1}")
    k(f"v_sub_u32 v{B2}, v{B2}, v{t1}")
    k(f"v_lshlrev_b32 v{t1}, 12, v3")
    k(f"v_sub_u32 v{B2}, v{B2}, v{t1}")
    k("s_add_u32 s37, s37, 5120")
    k(f"v_add_u32 v{B2}, s37, v{B2}")
    k(f"v_add_u32 v{AJ8}, {16*1024-5120}, v{B2}")
    k("s_lshl_b32 s38, s28, 2")
    k("s_add_u32 s38, s38, 32")
    k(f"v_mov_b32 v{t2}, s38")
    k("v_cmp_eq_u32 vcc, 0, v1")
    k(f"v_cndmask_b32 v{AJ8}, v{AJ8}, v{t2}, vcc")
    k("s_mov_b32 s35, 0xffff0000")
    if fused:
        k("v_lshlrev_b32 v2, 4, v1")
        k("s_mov_b32 s41, 0")
        k("s_waitcnt vmcnt(0)")
        k("L_p3_poll:")
        for i in range(4):
            k(f"s_add_u32 s39, s33, {1024*i}")
            k(f"buffer_load_dwordx4 {vr(OP+4*i,4)}, v2, s[12:15], s39 offen sc0 sc1")
        k("s_add_u32 s41, s41, 1")
        k("s_waitcnt vmcnt(0)")
        k(f"v_max3_u32 v3, v{OP}, v{OP+1}, v{OP+2}")
        for i in range(3, 15, 2): k(f"v_max3_u32 v3, v3, v{OP+i}, v{OP+i+1}")
        k(f"v_max_u32 v3, v3, v{OP+15}")
        k("v_cmp_eq_u32 vcc, -1, v3")
        k("s_nop 4")
        k("s_cmp_ge_u32 s41, 0x20000")
        k("s_cbranch_scc1 L_p3_polld")
        k("s_cbranch_vccnz L_p3_poll")
        k("L_p3_polld:")
        mark(k, 5)
        k("v_add_u32 v2, s34, v2")
        for i in range(4): k(f"ds_write_b128 v2, {vr(OP+4*i,4)} offset:{1024*i}")
        k("s_waitcnt lgkmcnt(0)")
        k("s_barrier")
    else:
        mark(k, 1)
        k("s_waitcnt vmcnt(0)")
        x_loads()
        k("s_barrier")
        mark(k, 2)
    for i, (r, c) in enumerate(SEQ):
        if r < 2: k(f"ds_read_b32 v{OP+i}, v{B1} offset:{(8*r+c)*1024}")
        elif i == 8: k(f"ds_read_b32 v{OP+i}, v{AJ8}")
        else:     k(f"ds_read_b32 v{OP+i}, v{B2} offset:{(32-8*r-c)*1024-5120}")
    k("s_waitcnt lgkmcnt(0)")
    stage(k, 'A', DR, DI, OP, Mr, Mi)
    cmul_pack(k, DR, DI, TW, OP, T)
    stage(k, 'B', DR, DI, OP, Mr, Mi)
    if not fused: k("s_waitcnt vmcnt(0)")
    for i in range(8):
        k(f"v_lshlrev_b32 v{R0+2*i}, 16, v{XL+i}")
        k(f"v_and_b32 v{R0+2*i+1}, s35, v{XL+i}")
        k(f"v_lshlrev_b32 v{R1+2*i}, 16, v{XL+8+i}")
        k(f"v_and_b32 v{R1+2*i+1}, s35, v{XL+8+i}")
    TR = 17408
    if not fused: mark(k, 3)
    k("s_lshl_b32 s36, s28, 12")
    k(f"s_add_u32 s36, s36, {TR}")
    k("v_and_b32 v3, 31, v1")
    k("v_lshlrev_b32 v3, 2, v3")
    k(f"v_lshrrev_b32 v{t0}, 5, v1")
    k(f"v_lshlrev_b32 v{t0}, 9, v{t0}")
    k(f"v_add3_u32 v3, v3, v{t0}, s36")
    k("v_lshl_add_u32 v2, v1, 5, s36")
    for i in range(16):
        k(f"{CVT} v{OP+i}, v{DR+i}, -v{DI+i}")
    for i, (r, c) in enumerate(SEQ):
        k(f"ds_write_b32 v3, v{OP+i} offset:{(8*r+c)*128}")
    k("s_waitcnt lgkmcnt(0)")
    k(f"ds_read_b128 {vr(OP,4)}, v2")
    k(f"ds_read_b128 {vr(OP+4,4)}, v2 offset:16")
    k(f"ds_read_b128 {vr(OP+8,4)}, v2 offset:2048")
    k(f"ds_read_b128 {vr(OP+12,4)}, v2 offset:2064")
    k("s_waitcnt lgkmcnt(0)")
    for i in range(16):
        k(f"v_lshlrev_b32 v{Y0+i}, 16, v{OP+i}")
        k(f"v_and_b32 v{Y1+i}, s35, v{OP+i}")
    for i in range(8):
        k(f"v_pk_add_f32 {vr(Y0+2*i,2)}, {vr(Y0+2*i,2)}, {vr(R0+2*i,2)}")
        k(f"v_pk_add_f32 {vr(Y1+2*i,2)}, {vr(Y1+2*i,2)}, {vr(R1+2*i,2)}")
    for i in range(8):
        k(f"{CVT} v{HP+i}, v{Y0+2*i}, v{Y0+2*i+1}")
        k(f"{CVT} v{HP+8+i}, v{Y1+2*i}, v{Y1+2*i+1}")
    k("v_lshlrev_b32 v2, 4, v1")
    k(f"buffer_store_dwordx4 {vr(HP,4)}, v2, s[16:19], s31 offen {ST_P3}")
    k(f"buffer_store_dwordx4 {vr(HP+4,4)}, v2, s[16:19], s31 offen offset:1024 {ST_P3}")
    k(f"buffer_store_dwordx4 {vr(HP+8,4)}, v2, s[16:19], s32 offen {ST_P3}")
    k(f"buffer_store_dwordx4 {vr(HP+12,4)}, v2, s[16:19], s32 offen offset:1024 {ST_P3}")
    for i in range(8):
        k(f"v_lshlrev_b32 v{R0+2*i}, 16, v{HP+i}")
        k(f"v_and_b32 v{R0+2*i+1}, s35, v{HP+i}")
        k(f"v_lshlrev_b32 v{R1+2*i}, 16, v{HP+8+i}")
        k(f"v_and_b32 v{R1+2*i+1}, s35, v{HP+8+i}")
    if not fused: mark(k, 4)
    if LN_FUSE:
        assert not (EMU_LN or EMU_L2)
        ln_stats_rows(k, R0, R1, T, RM, 40, twice=True)
        ln_apply_rows(k, R0, R1, RM, Y0, Y1)
    else:
        ln_stats_rows(k, R0, R1, T, RM, 40)
        if EMU_L2:
            ln_apply_rows(k, R0, R1, RM, Y0, Y1)
            LP = OP
            for i in range(8):
                k(f"{CVT} v{LP+i}, v{Y0+2*i}, v{Y0+2*i+1}")
                k(f"{CVT} v{LP+8+i}, v{Y1+2*i}, v{Y1+2*i+1}")
            for i in range(8):
                k(f"v_lshlrev_b32 v{R0+2*i}, 16, v{LP+i}")
                k(f"v_and_b32 v{R0+2*i+1}, s35, v{LP+i}")
                k(f"v_lshlrev_b32 v{R1+2*i}, 16, v{LP+8+i}")
                k(f"v_and_b32 v{R1+2*i+1}, s35, v{LP+8+i}")
        else:
            ln_apply_rows(k, R0, R1, RM, R0, R1)
        ln_stats_rows(k, R0, R1, T, RM, 40)
        ln_apply_rows(k, R0, R1, RM, Y0, Y1)
    for i in range(8):
        k(f"{CVT} v{NP+i}, v{Y0+2*i}, v{Y0+2*i+1}")
        k(f"{CVT} v{NP+8+i}, v{Y1+2*i}, v{Y1+2*i+1}")
    k(f"buffer_store_dwordx4 {vr(NP,4)}, v2, s[20:23], s31 offen {ST_P3}")
    k(f"buffer_store_dwordx4 {vr(NP+4,4)}, v2, s[20:23], s31 offen offset:1024 {ST_P3}")
    k(f"buffer_store_dwordx4 {vr(NP+8,4)}, v2, s[20:23], s32 offen {ST_P3}")
    k(f"buffer_store_dwordx4 {vr(NP+12,4)}, v2, s[20:23], s32 offen offset:1024 {ST_P3}")

def gen_p3():
    k = Kern('p3_kernel')
    k("s_cmp_ge_u32 s2, 256")
    k("s_cbranch_scc1 L_p3_end")
    stamp_begin(k)
    k("s_load_dwordx2 s[4:5], s[0:1], 0")
    k("s_load_dwordx2 s[26:27], s[0:1], 80")
    k("s_load_dwordx2 s[24:25], s[0:1], 32")
    k("v_and_b32 v1, 63, v0")
    k("v_lshrrev_b32 v2, 6, v0")
    k("v_readfirstlane_b32 s28, v2")
    pf_wave(k, 'p3', W1PF0 + 256*W1PF)
    first_tiles_wave(k)
    p3_body(k, False)
    stamp_end(k, 'p3')
    k("L_p3_end:")
    k("s_endpgm")
    return k, 228, 33792

def gen_p23(): return gen_p2(True)

MF16 = 'v_mfma_f32_16x16x32_bf16'

def interleave(mf, rd, lead=0):
    out = []; n = len(mf); m = len(rd); ri = 0
    for i in range(n):
        out.append(mf[i])
        tgt = min(m, (m*(i+1) + n - 1)//n)
        while ri < tgt:
            out.append(rd[ri]); ri += 1
    out += rd[ri:]
    return out

def producer_loop(k, tag, per, issue, NS, NIT, check=None):
    mark(k, 1)
    issue()
    mark(k, 2)
    issue()
    k(f"s_waitcnt vmcnt({per})")
    mark(k, 3)
    if check: check()
    k("s_barrier")
    for n in range(2, NS): issue()
    mark(k, 4)
    nmain = NIT - NS
    k(f"s_mov_b32 s60, 0")
    k(f"L_{tag}_ploop:")
    k(f"s_waitcnt vmcnt({(NS-2)*per})")
    if check: check()
    k("s_barrier")
    issue()
    k("s_add_u32 s60, s60, 1")
    k(f"s_cmp_lt_u32 s60, {nmain}")
    k(f"s_cbranch_scc1 L_{tag}_ploop")
    for n in range(nmain, NIT-1):
        k(f"s_waitcnt vmcnt({(NIT-1-(n+1))*per})")
        k("s_barrier")


XB_OFF = ZW_OFF
FL_OFF = 0x2800000
def gemm_kernel(tag, fused=False, mega=False):
    g1 = tag == 'g1'
    k = Kern('gg_kernel' if fused else tag + '_kernel')
    ENDL = 'L_gg_end' if fused else f'L_{tag}_end'
    ASZ = 16384; STG = 32768; NS = 4 if STATIC else (5 if BAR2 else 3)
    NIT = 32 if g1 else 28
    BSTR = 7168 if g1 else 4096
    NB23 = 6
    if mega and g1:
        k("L_g1_entry:")
    elif not (fused and not g1):
        k(f"s_cmp_ge_u32 s2, 256")
        k(f"s_cbranch_scc1 {ENDL}")
    elif FUSE_GG == 2 and EARLY2:
        k("L_gbar:")
        k("s_lshl_b32 s3, s30, 5")
        k("s_add_u32 s3, s3, s29")
        k("s_lshl_b32 s3, s3, 7")
        k("L_g2start:")
        k("s_cmp_ge_u32 s28, 4")
        k("s_cbranch_scc1 L_g2_pro")
        k("s_waitcnt vmcnt(0)")
        k("s_barrier")
        k("s_cmp_eq_u32 s3, -1")
        k("s_cbranch_scc1 L_g2_pro")
        srd(k, 56, 26, 288*128, FG_OFF)
        k("v_mov_b32 v2, 1")
        k("v_mov_b32 v3, 0")
        k("v_cmp_eq_u32 vcc, 0, v0")
        k("s_and_saveexec_b64 s[44:45], vcc")
        k("s_cbranch_execz L_g2_nopubx")
        k("buffer_store_dword v2, v3, s[56:59], s3 offen sc0 sc1")
        k("L_g2_nopubx:")
        k("s_mov_b64 exec, -1")
        k("L_g2_pro:")
    elif FUSE_GG == 2:
        k("L_gbar:")
        k("s_waitcnt vmcnt(0)")
        k("s_barrier")
        srd(k, 36, 26, 288*128, FG_OFF)
        k("v_cmp_eq_u32 vcc, 0, v0")
        k("s_and_saveexec_b64 s[34:35], vcc")
        k("s_cbranch_execz L_gbar_noarr")
        k("s_lshl_b32 s33, s30, 5")
        k("s_add_u32 s33, s33, s29")
        k("s_lshl_b32 s33, s33, 7")
        k("v_mov_b32 v2, 1")
        k("v_mov_b32 v3, 0")
        k("buffer_store_dword v2, v3, s[36:39], s33 offen sc0 sc1")
        k("L_gbar_noarr:")
        k("s_mov_b64 exec, -1")
        k("L_g2start:")
    else:
        k("L_gbar:")
        k("s_load_dwordx2 s[26:27], s[0:1], 80")
        k("s_waitcnt vmcnt(0) lgkmcnt(0)")
        k("s_barrier")
        srd(k, 36, 26, 1024, BAR_OFF)
        k("v_cmp_eq_u32 vcc, 0, v0")
        k("s_and_saveexec_b64 s[34:35], vcc")
        k("s_cbranch_execz L_gbar_noarr")
        k("s_and_b32 s33, s2, 7")
        k("s_lshl_b32 s33, s33, 7")
        k("v_mov_b32 v2, 1")
        k("v_mov_b32 v3, 0")
        k("buffer_atomic_add v2, v3, s[36:39], s33 offen sc1")
        k("L_gbar_noarr:")
        k("s_mov_b64 exec, -1")
    stamp_begin(k)
    if g1:
        k("s_load_dwordx4 s[4:7], s[0:1], 32")
        k("s_load_dwordx2 s[24:25], s[0:1], 48")
    else:
        k("s_load_dwordx4 s[4:7], s[0:1], 48")
        k("s_load_dwordx2 s[24:25], s[0:1], 64")
    k("s_load_dwordx2 s[26:27], s[0:1], 80")
    k("v_and_b32 v1, 63, v0")
    k("v_lshrrev_b32 v2, 6, v0")
    k("v_readfirstlane_b32 s28, v2")
    if g1:
        k("s_and_b32 s30, s2, 1")
        k("s_lshl_b32 s30, s30, 2")
        k("s_bfe_u32 s52, s2, 0x20003")
        k("s_add_u32 s30, s30, s52")
        k("s_bfe_u32 s29, s2, 0x20001")
        k("s_mul_i32 s29, s29, 7")
        k("s_lshr_b32 s53, s2, 5")
        k("s_add_u32 s29, s29, s53")
        k("s_mov_b32 s63, 0")
        k("s_and_b32 s55, s2, 1")
        k(f"s_mul_i32 s55, s55, {16 if KHALF else 0}")
    else:
        if MAP2 == 1:
            k("s_bfe_u32 s62, s2, 0x10003")
            k("s_bfe_u32 s29, s2, 0x20001")
            k("s_lshl_b32 s29, s29, 2")
            k("s_bfe_u32 s52, s2, 0x20004")
            k("s_add_u32 s29, s29, s52")
            k("s_lshr_b32 s53, s2, 6")
            k("s_and_b32 s30, s2, 1")
            k("s_lshl_b32 s30, s30, 2")
            k("s_add_u32 s30, s30, s53")
        elif MAP2 == 2:
            k("s_bfe_u32 s62, s2, 0x10002")
            k("s_bfe_u32 s52, s2, 0x20003")
            k("s_lshr_b32 s53, s2, 5")
            k("s_and_b32 s30, s2, 1")
            k("s_lshl_b32 s30, s30, 2")
            k("s_add_u32 s30, s30, s52")
            k("s_bfe_u32 s34, s2, 0x10001")
            k("s_lshl_b32 s29, s34, 3")
            k("s_add_u32 s29, s29, s53")
        else:
            k("s_and_b32 s62, s2, 1")
            k("s_bfe_u32 s29, s2, 0x20001")
            k("s_lshl_b32 s29, s29, 2")
            k("s_bfe_u32 s52, s2, 0x20003")
            k("s_add_u32 s29, s29, s52")
            k("s_lshr_b32 s53, s2, 5")
            k("s_mov_b32 s30, s53")
        k("s_mov_b32 s55, 0")
        if MAP2 == 2:
            k("s_mul_i32 s55, s34, 7")
            k("s_add_u32 s55, s55, s53")
            k("s_lshl_b32 s55, s55, 1")
            k("s_add_u32 s55, s55, 1")
            k("s_cmp_ge_u32 s55, 28")
            k("s_cselect_b32 s34, 28, 0")
            k("s_sub_u32 s55, s55, s34")
        k("s_mul_i32 s63, s62, 28")
        srd(k, 56, 26, 256*64, FL_OFF) if False else None
    k("s_lshl_b32 s31, s29, 8")
    k("s_lshl_b32 s32, s30, 8")
    k("s_waitcnt lgkmcnt(0)")
    if g1:
        srd(k, 8, 4, S*F*2)
        srd(k, 12, 26, S*D*2, HN_OFF)
        srd(k, 16, 26, F*D*2, GT_OFF)
        srd(k, 20, 6, F*2)
        if not XSENT:
            srd(k, 44, 26, 256*64, FL_OFF)
            k("s_lshl_b32 s33, s2, 6")
            k("v_mov_b32 v2, 0")
            k("v_lshlrev_b32 v3, 2, v0")
            k("v_cmp_gt_u32 vcc, 16, v0")
            k("s_and_saveexec_b64 s[34:35], vcc")
            k(f"s_cbranch_execz L_{tag}_nozf")
            k("buffer_store_dword v2, v3, s[44:47], s33 offen sc0 sc1")
            k(f"L_{tag}_nozf:")
            k("s_mov_b64 exec, -1")
        k("s_cmp_lt_u32 s2, 224")
        k(f"s_cbranch_scc1 L_{tag}_main")
        def idle_fill():
            srd(k, 44, 26, 256*(16384 if XBF16 else 32768), 0x1E00000 if XB_SEP else VB_OFF)
            k("s_sub_u32 s33, s2, 224")
            k("s_lshl_b32 s33, s33, 17")
            k("v_lshlrev_b32 v2, 4, v0")
            for i in range(4): k(f"v_mov_b32 v{4+i}, -1")
            k("s_mov_b32 s34, 0")
            k(f"L_{tag}_clr:")
            k("buffer_store_dwordx4 v[4:7], v2, s[44:47], s33 offen sc0 sc1")
            k("s_add_u32 s33, s33, 8192")
            k("s_add_u32 s34, s34, 1")
            k("s_cmp_lt_u32 s34, 16")
            k(f"s_cbranch_scc1 L_{tag}_clr")
        if mega:
            k("s_cmp_ge_u32 s28, 4")
            k(f"s_cbranch_scc0 L_{tag}_nb23")
            for i in range(NB23): k("s_barrier")
            k(f"L_{tag}_nb23:")
        if fused and FUSE_GG == 2:
            idle_fill()
            k("s_waitcnt vmcnt(0)")
            k("s_barrier")
            srd(k, 36, 26, 288*128, FG_OFF)
            k("s_add_u32 s33, s2, 32")
            k("s_lshl_b32 s33, s33, 7")
            k("v_mov_b32 v2, 1")
            k("v_mov_b32 v3, 0")
            k("v_cmp_eq_u32 vcc, 0, v0")
            k("s_and_saveexec_b64 s[34:35], vcc")
            k(f"s_cbranch_execz L_{tag}_nofl")
            k("buffer_store_dword v2, v3, s[36:39], s33 offen sc0 sc1")
            k(f"L_{tag}_nofl:")
            k("s_mov_b64 exec, -1")
        if W1IDLE:
            k("s_sub_u32 s33, s2, 224")
            k("s_mul_i32 s33, s33, 112")
            k("v_mul_u32_u24 v3, 586, v0")
            k("v_lshrrev_b32 v3, 16, v3")
            k("v_mul_u32_u24 v4, 112, v3")
            k("v_sub_u32 v4, v0, v4")
            k("v_add_u32 v4, s33, v4")
            k("v_mul_u32_u24 v5, 4682, v4")
            k("v_lshrrev_b32 v5, 18, v5")
            k("v_mul_u32_u24 v6, 56, v5")
            k("v_sub_u32 v6, v4, v6")
            k("v_and_b32 v7, 1, v3")
            k("v_lshrrev_b32 v8, 1, v3")
            k("v_lshl_add_u32 v7, v7, 4, v8")
            k("v_lshl_add_u32 v5, v7, 6, v5")
            k("v_mul_u32_u24 v5, 7168, v5")
            k("v_lshl_add_u32 v2, v6, 7, v5")
            k("v_cmp_gt_u32 vcc, 448, v0")
            k("s_and_saveexec_b64 s[34:35], vcc")
            k(f"s_cbranch_execz L_{tag}_now1")
            k(f"s_mov_b32 s33, {W1IDLE*64*7168}")
            for i in range((16-W1IDLE)//2):
                k(f"buffer_load_dword v9, v2, s[8:11], s33 offen")
                k(f"s_add_u32 s33, s33, {2*64*7168}")
            k(f"L_{tag}_now1:")
            k("s_mov_b64 exec, -1")
        if W2PF:
            srd(k, 48, 24, F*S*2)
            k("s_sub_u32 s33, s2, 224")
            k("s_and_b32 s34, s33, 15")
            k("s_lshr_b32 s35, s33, 4")
            k(f"s_mul_i32 s35, s35, {1792*4096}")
            k("s_lshl_b32 s33, s34, 16")
            k("s_add_u32 s33, s33, s35")
            if W2WAVES == 8:
                k("v_lshlrev_b32 v2, 7, v0")
                for i in range(W2PF):
                    k(f"buffer_load_dword v9, v2, s[48:51], s33 offen")
                    k(f"s_add_u32 s33, s33, {16*65536}")
            else:
                k(f"s_cmp_ge_u32 s28, {W2WAVES}")
                k(f"s_cbranch_scc1 L_{tag}_now2")
                k("v_lshlrev_b32 v2, 7, v1")
                k(f"s_mul_i32 s34, s28, {8192*(8//W2WAVES)}")
                k("s_add_u32 s33, s33, s34")
                k("s_mov_b32 s35, 0")
                k(f"L_{tag}_w2l:")
                for q in range(8//W2WAVES):
                    k(f"s_add_u32 s34, s33, {8192*q}")
                    k(f"buffer_load_dword v9, v2, s[48:51], s34 offen")
                    k(f"s_waitcnt vmcnt({W2DEPTH})")
                k(f"s_add_u32 s33, s33, {16*65536}")
                k("s_add_u32 s35, s35, 1")
                k(f"s_cmp_lt_u32 s35, {W2PF}")
                k(f"s_cbranch_scc1 L_{tag}_w2l")
                k(f"L_{tag}_now2:")
        if XSENT and not (fused and FUSE_GG == 2): idle_fill()
        if fused and FUSE_GG == 2: k("s_waitcnt vmcnt(0)")
        if fused and FUSE_GG == 2 and EARLY2: k("s_mov_b32 s3, -1")
        stamp_end(k, tag, tid=0, slot=256, sfx='idle')
        k(f"s_branch {('L_g2start' if FUSE_GG == 2 else 'L_gbar') if fused else ENDL}")
        k(f"L_{tag}_main:")
    else:
        srd(k, 8, 4, F*S*2)
        srd(k, 12, 26, F*D*2, GT_OFF)
        srd(k, 16, 26, S*D*2, H_OFF)
        srd(k, 20, 6, S*2)
        srd(k, 48, 24, S*D*2)
        if not XSENT:
            k("s_getreg_b32 s54, hwreg(HW_REG_XCC_ID, 0, 4)")
            k("s_add_u32 s54, s54, 1")
            srd(k, 56, 26, 256*64, FL_OFF)
            k("s_lshl_b32 s33, s2, 6")
            k("v_mov_b32 v2, s54")
            k("v_mov_b32 v3, 0")
            k("v_cmp_eq_u32 vcc, 0, v0")
            k("s_and_saveexec_b64 s[34:35], vcc")
            k(f"s_cbranch_execz L_{tag}_nopub")
            k("buffer_store_dword v2, v3, s[56:59], s33 offen offset:4 sc0 sc1")
            k(f"L_{tag}_nopub:")
            k("s_mov_b64 exec, -1")
    if PRODFIRST:
        k("s_cmp_lt_u32 s28, 4")
        k(f"s_cbranch_scc1 L_{tag}_cons")
    else:
        k("s_cmp_ge_u32 s28, 4")
        k(f"s_cbranch_scc1 L_{tag}_prod")
    i_cons = len(k.l)
    k(f"L_{tag}_cons:")
    ACC = 8; X = 72; Y = 136; R = 200
    AA = [R+i for i in range(4)]; AB = [R+4+i for i in range(4)]
    BA = [R+8+i for i in range(4)]; BB = [R+12+i for i in range(4)]
    MISC = R + 16
    k("s_and_b32 s33, s28, 1")
    k("s_lshr_b32 s36, s28, 1")
    k("v_lshrrev_b32 v2, 4, v1")
    k("v_bfe_u32 v3, v1, 2, 2")
    k("v_and_b32 v4, 3, v1")
    k("v_lshl_add_u32 v5, v2, 2, v3")
    k("v_and_b32 v6, 7, v5")
    k("v_lshlrev_b32 v6, 1, v6")
    k("v_lshrrev_b32 v7, 1, v4")
    k("v_and_b32 v9, 1, v4")
    for (base, w, add) in ((BA, 's33', 0), (BB, 's36', ASZ)):
        k(f"s_lshl_b32 s35, {w}, 3")
        k("v_add_u32 v10, s35, v7")
        k("v_xor_b32 v10, v10, v6")
        k("v_lshlrev_b32 v10, 4, v10")
        k("v_lshl_add_u32 v10, v9, 3, v10")
        k("v_lshl_add_u32 v10, v5, 8, v10")
        if add: k(f"v_add_u32 v10, {add}, v10")
        k(f"v_mov_b32 v{base[0]}, v10")
        for t in range(1, 4): k(f"v_xor_b32 v{base[t]}, {32*t}, v10")
    for t in range(4):
        k(f"v_mov_b32 v{AA[t]}, v{BA[t]}"); k(f"v_mov_b32 v{AB[t]}, v{BB[t]}")
    BIAS = MISC
    k("v_and_b32 v2, 15, v1")
    k("v_lshlrev_b32 v2, 1, v2")
    k("s_lshl_b32 s37, s36, 7")
    k("s_add_u32 s37, s37, s31")
    for t in range(4):
        k(f"buffer_load_ushort v{BIAS+t}, v2, s[20:23], s37 offen offset:{32*t}")
    OV = MISC+4
    k("v_and_b32 v2, 15, v1")
    k("v_lshlrev_b32 v2, 11, v2")
    k("v_lshrrev_b32 v3, 4, v1")
    k(f"v_lshl_add_u32 v{OV}, v3, 4, v2")
    k("s_lshl_b32 s38, s29, 7")
    k("s_lshl_b32 s39, s36, 6")
    k("s_add_u32 s38, s38, s39")
    k("s_lshl_b32 s38, s38, 11")
    k("s_add_u32 s38, s38, s32")
    k("s_lshl_b32 s39, s33, 7")
    k("s_add_u32 s38, s38, s39")
    if not g1:
        HL = MISC+6
        NV = HL+16
        if OUT_TOUCH:
            k("s_lshl_b32 s39, s62, 16")
            k("s_add_u32 s39, s39, s38")
            k(f"buffer_load_dword v{NV}, v{OV}, s[48:51], s39 offen")
            NV += 1
    else:
        NV = MISC+5
    def reads(dst, buf=None):
        r = []
        for ks in range(2):
            b = dst + 32*ks; ko = 32*ks
            for t in range(4):
                if buf is None: regs = (AA[t], AB[t]); bo = 0
                else:
                    regs = (BA[t], BB[t]) if buf < 2 else (AA[t], AB[t]); bo = (buf % 2)*STG
                for (o, a) in ((0, regs[0]), (16, regs[1])):
                    r.append(f"ds_read_b64_tr_b16 {vr(b+o+4*t,2)}, v{a} offset:{bo+ko*256}")
                    r.append(f"ds_read_b64_tr_b16 {vr(b+o+4*t+2,2)}, v{a} offset:{bo+(ko+16)*256}")
        return r
    def mfmas(src):
        m = []
        for ks in range(2):
            b = src + 32*ks
            order = sorted([(td, tn) for td in range(4) for tn in range(4)], key=lambda x: (max(x), x))
            if FAKE32:
                for i in range(8):
                    a = ACC + 16*(i % 4)
                    m.append(f"{MF32} {vr(a,16)}, {vr(b+4*(i%4),4)}, {vr(b+16+4*((i//2)%4),4)}, {vr(a,16)}")
                continue
            for td, tn in order:
                a = ACC + 4*(4*tn+td)
                m.append(f"{MF16} {vr(a,4)}, {vr(b+4*td,4)}, {vr(b+16+4*tn,4)}, {vr(a,4)}")
        return m
    def sched(mf, rd, extra):
        out = []; ri = 0; ei = 0
        for i, m in enumerate(mf):
            out.append(m)
            if ri < len(rd):
                for _ in range(RPAT[i % len(RPAT)]):
                    if ri < len(rd): out.append(rd[ri]); ri += 1
            elif ei < len(extra):
                out.append(extra[ei]); ei += 1
        out += rd[ri:] + extra[ei:]
        return out
    def upd():
        e = [f"s_add_u32 s34, s34, {STG}", f"s_cmp_eq_u32 s34, {STG*NS}", "s_cselect_b32 s34, 0, s34"]
        e += [f"v_add_u32 v{AA[t]}, s34, v{BA[t]}" for t in range(4)]
        e += [f"v_add_u32 v{AB[t]}, s34, v{BB[t]}" for t in range(4)]
        return e
    for i in range(64): k(f"v_mov_b32 v{ACC+i}, 0")
    k("s_mov_b32 s34, 0")
    k("s_mov_b32 s35, 0")
    if fused and not g1 and FUSE_GG == 1: k("s_barrier")
    if mega and g1 and not HTAG: k("s_barrier")
    mark(k, 1)
    k("s_barrier")
    mark(k, 2)
    if STATIC:
        for t in range(4):
            k(f"v_add_u32 v{AA[t]}, 65536, v{BA[t]}"); k(f"v_add_u32 v{AB[t]}, 65536, v{BB[t]}")
        ROT = 2 if (mega and g1 and HTAG) else 0
        for x in reads(X, ROT): k(x)
        k(f"L_{tag}_cloop:")
        for u in range(4):
            cur, nxt = (X, Y) if u % 2 == 0 else (Y, X)
            k("s_waitcnt lgkmcnt(0)")
            k("s_barrier")
            ex = ["s_add_u32 s35, s35, 4", f"s_cmp_lt_u32 s35, {NIT-4}"] if u == 3 else []
            for x in sched(mfmas(cur), reads(nxt, (u+1+ROT) % 4), ex): k(x)
        k(f"s_cbranch_scc1 L_{tag}_cloop")
        for u in range(2):
            cur, nxt = (X, Y) if u % 2 == 0 else (Y, X)
            k("s_waitcnt lgkmcnt(0)")
            k("s_barrier")
            for x in sched(mfmas(cur), reads(nxt, (u+1+ROT) % 4), []): k(x)
    else:
        for x in reads(X): k(x)
        for x in upd(): k(x)
        k(f"L_{tag}_cloop:")
        k("s_waitcnt lgkmcnt(0)")
        if LOOPSTAMP:
            k(f"s_cmp_eq_u32 s35, {LOOPSTAMP}")
            k(f"s_cbranch_scc0 L_{tag}_nolatch")
            for i in range(4): k(f"s_mov_b64 s[{96-20+2*i}:{97-20+2*i}], s[{66+2*i}:{67+2*i}]") if False else None
            k("s_sub_u32 s90, s68, s66"); k("s_sub_u32 s91, s70, s68"); k("s_sub_u32 s92, s72, s70")
            k("s_memtime s[82:83]"); k("s_waitcnt lgkmcnt(0)"); k("s_sub_u32 s93, s82, s72")
            k(f"L_{tag}_nolatch:")
        k("s_barrier")
        if LOOPSTAMP: k("s_memtime s[66:67]")
        for x in sched(mfmas(X), reads(Y), upd()): k(x)
        if LOOPSTAMP: k("s_memtime s[68:69]")
        k("s_waitcnt lgkmcnt(0)")
        if not BAR2: k("s_barrier")
        if LOOPSTAMP: k("s_memtime s[70:71]")
        for x in sched(mfmas(Y), reads(X), upd() + ["s_add_u32 s35, s35, 2", f"s_cmp_lt_u32 s35, {NIT-2}"]): k(x)
        if LOOPSTAMP: k("s_memtime s[72:73]")
        k(f"s_cbranch_scc1 L_{tag}_cloop")
    if LOOPSTAMP:
        k("s_waitcnt lgkmcnt(0)")
        for i in range(4):
            k(f"s_mov_b32 s{66+2*i}, s{90+i}"); k(f"s_mov_b32 s{67+2*i}, 0")
    XID = 3
    if not g1:
        if not XSENT:
            k(f"s_xor_b32 s42, s2, {8 if MAP2 == 1 else (4 if MAP2 == 2 else 1)}")
            k("s_lshl_b32 s39, s42, 6")
            k("v_mov_b32 v4, 0")
            k(f"buffer_load_dword v{XID}, v4, s[56:59], s39 offen offset:4 sc0 sc1")
        if fused and FUSE_GG == 2:
            srd(k, 56, 26, 288*128, FG_OFF)
            k("s_lshr_b32 s39, s2, 3")
            k("s_add_u32 s39, s39, 256")
            k("s_lshl_b32 s60, s39, 7")
            k("v_mov_b32 v4, 0")
            k(f"buffer_load_dword v{XID}, v4, s[56:59], s60 offen sc0 sc1")
        k("s_lshl_b32 s39, s62, 16")
        k("s_add_u32 s39, s39, s38")
        for tnl in range(1 if XSHARE else 2):
            for tp in range(2):
                k(f"s_add_u32 s40, s39, {tnl*16*2048 + tp*64}")
                k(f"buffer_load_dwordx4 {vr(HL+8*tnl+4*tp,4)}, v{OV}, s[16:19], s40 offen")
    k("s_waitcnt lgkmcnt(0)")
    k("s_barrier")
    for x in sched(mfmas(X), reads(Y, ((3 + (2 if (mega and g1 and HTAG) else 0)) % 4) if STATIC else None), []): k(x)
    k("s_waitcnt lgkmcnt(0)")
    for x in mfmas(Y): k(x)
    mark(k, 3)
    k("s_mov_b32 s40, 0xffff0000")
    T = X
    def pack_swap(P):
        k(f"v_permlane32_swap_b32 v{P}, v{P+2}")
        k(f"v_permlane32_swap_b32 v{P+1}, v{P+3}")
        k(f"v_permlane16_swap_b32 v{P}, v{P+2}")
        k(f"v_permlane16_swap_b32 v{P+1}, v{P+3}")
    def store_lines(P0, P1, tmp, so, srdreg):
        for i in range(4): k(f"v_mov_b32 v{tmp+i}, v{P0+i}")
        for i in range(4): k(f"v_mov_b32_dpp v{P0+i}, v{P1+i} row_ror:8 row_mask:0xf bank_mask:0xc")
        for i in range(4): k(f"v_mov_b32_dpp v{P1+i}, v{tmp+i} row_ror:8 row_mask:0xf bank_mask:0x3")
        fl = ST_G1 if g1 else ST_G2
        k(f"s_add_u32 s41, s38, {so}")
        k(f"buffer_store_dwordx4 {vr(P0,4)}, v{OVS}, s[{srdreg}:{srdreg+3}], s41 offen {fl}")
        k(f"s_add_u32 s41, s38, {so + 8*2048}")
        k(f"buffer_store_dwordx4 {vr(P1,4)}, v{OVS}, s[{srdreg}:{srdreg+3}], s41 offen {fl}")
    OVS = 3
    def set_ovs():
        k("v_and_b32 v2, 7, v1")
        k("v_lshlrev_b32 v2, 11, v2")
        k("v_bfe_u32 v3, v1, 3, 1")
        k("v_lshl_add_u32 v2, v3, 6, v2")
        k("v_lshrrev_b32 v3, 4, v1")
        k(f"v_lshl_add_u32 v{OVS}, v3, 4, v2")
    if g1:
        SH = (65536 if (fused and EARLY2) else 32768) if STATIC else (98304 if BAR2 else 65536)
        k("s_lshl_b32 s39, s28, 13")
        k(f"s_add_u32 s39, s39, {SH}")
        k("v_lshl_add_u32 v2, v1, 4, s39")
        for i in range(8): k(f"ds_write_b128 v2, {vr(ACC+32+4*i,4)} offset:{1024*i}")
        k("s_waitcnt vmcnt(0) lgkmcnt(0)")
        k("s_barrier")
        mark(k, 4)
        k(f"L_{tag}_epi:")
        for t in range(2): k(f"v_lshlrev_b32 v{BIAS+t}, 16, v{BIAS+t}")
        c0 = -2.0*math.log2(math.e)*math.sqrt(2.0/math.pi); c1 = c0*0.044715
        k("s_mov_b32 s40, 0xffff0000")
        k(f"s_mov_b32 s42, {f32(c1)}")
        k(f"v_mov_b32 v4, {f32(c0)}"); k(f"v_mov_b32 v5, {f32(c0)}")
        k(f"v_mov_b32 v6, 1.0"); k(f"v_mov_b32 v7, 1.0")
        set_ovs()
        for tn in range(2):
            for tp in range(2):
                P = T + 4*tp + 24*tn
                for q in range(4):
                    td = 2*tp + q//2
                    src = ACC + 4*(4*tn+td) + 2*(q % 2)
                    u, w = T+8+4*q, T+10+4*q
                    gelu_pair(k, src, u, w, BIAS+tn, P+q)
                pack_swap(P)
            store_lines(T+24*tn, T+24*tn+4, T+32, tn*16*2048, 16)
    else:
        if XSHARE:
            assert XSENT and XBF16
            SHX, SHY = 0, 16384
            k("s_waitcnt vmcnt(0)")
            srd(k, 44, 26, 256*16384, 0x1E00000 if XB_SEP else VB_OFF)
            k(f"s_xor_b32 s42, s2, {8 if MAP2 == 1 else (4 if MAP2 == 2 else 1)}")
            k("s_lshl_b32 s43, s42, 14")
            k("s_lshl_b32 s39, s28, 12")
            k("s_add_u32 s43, s43, s39")
            k("v_lshlrev_b32 v2, 4, v1")
            k("s_cmp_eq_u32 s62, 0")
            k(f"s_cbranch_scc1 L_{tag}_k0")
            for half, l2 in ((0, None), (32, f"L_{tag}_k0:")):
                if l2: k(l2)
                for i in range(16): k(f"{CVT} v{Y+32+i}, v{ACC+half+2*i}, v{ACC+half+2*i+1}")
                for i in range(4):
                    k(f"s_add_u32 s39, s43, {1024*i}")
                    k(f"buffer_store_dwordx4 {vr(Y+32+4*i,4)}, v2, s[44:47], s39 offen sc0 sc1")
                if half == 0:
                    for i in range(32): k(f"v_mov_b32 v{ACC+i}, v{ACC+32+i}")
                    k(f"v_mov_b32 v{BIAS}, v{BIAS+2}")
                    k(f"s_branch L_{tag}_k1")
            k(f"L_{tag}_k1:")
            k("s_lshl_b32 s39, s28, 12")
            k(f"v_add_u32 v3, s39, v2")
            for i in range(4): k(f"ds_write_b128 v3, {vr(ACC+16+4*i,4)} offset:{SHX+1024*i}")
            k("s_lshl_b32 s39, s62, 16")
            k("s_add_u32 s38, s38, s39")
            k("s_lshl_b32 s39, s28, 11")
            k(f"v_add_u32 v3, s39, v2")
            k("s_waitcnt vmcnt(0) lgkmcnt(0)" if XWAIT else "s_waitcnt lgkmcnt(0)")
            k("s_barrier")
            k("s_barrier")
            k(f"ds_read_b128 {vr(Y+40,4)}, v3 offset:{SHY}")
            k(f"ds_read_b128 {vr(Y+44,4)}, v3 offset:{SHY+1024}")
            k("s_waitcnt lgkmcnt(0)")
            mark(k, 4)
            k(f"L_{tag}_epi:")
            k("s_mov_b32 s40, 0xffff0000")
            k(f"v_lshlrev_b32 v{BIAS}, 16, v{BIAS}")
            if PERTURB: k(f"v_add_f32 v{BIAS}, {f32(PERTURB)}, v{BIAS}")
            set_ovs()
            for tp in range(2):
                P = T + 4*tp
                for q in range(4):
                    td = 2*tp + q//2
                    a_ = ACC + 4*td + 2*(q % 2); y = Y + 4*td + 2*(q % 2)
                    u, w = T+8+4*q, T+10+4*q
                    pk = Y + 40 + (4*td + 2*(q % 2))//2
                    k(f"v_lshlrev_b32 v{y}, 16, v{pk}")
                    k(f"v_and_b32 v{y+1}, s40, v{pk}")
                    k(f"v_pk_add_f32 {vr(a_,2)}, {vr(a_,2)}, {vr(y,2)}")
                    k(f"v_add_f32 v{u}, v{a_}, v{BIAS}")
                    k(f"v_add_f32 v{u+1}, v{a_+1}, v{BIAS}")
                    k(f"{CVT} v{P+q}, v{u}, v{u+1}")
                pack_swap(P)
                for q in range(4):
                    u, w = T+8+4*q, T+10+4*q
                    hp = HL+4*tp+q
                    k(f"v_lshlrev_b32 v{u}, 16, v{P+q}")
                    k(f"v_and_b32 v{u+1}, s40, v{P+q}")
                    k(f"v_lshlrev_b32 v{w}, 16, v{hp}")
                    k(f"v_and_b32 v{w+1}, s40, v{hp}")
                    k(f"v_pk_add_f32 {vr(u,2)}, {vr(u,2)}, {vr(w,2)}")
                    k(f"{CVT} v{P+q}, v{u}, v{u+1}")
            store_lines(T, T+4, T+32, 0, 48)
        else:
            k("s_waitcnt vmcnt(0)")
            srd(k, 44, 26, 256*(16384 if XBF16 else 32768), 0x1E00000 if XB_SEP else VB_OFF)
            if not XSENT: srd(k, 56, 26, 256*64, FL_OFF)
            k(f"s_xor_b32 s42, s2, {8 if MAP2 == 1 else (4 if MAP2 == 2 else 1)}")
            k(f"s_lshl_b32 s43, s42, {14 if XBF16 else 15}")
            k(f"s_lshl_b32 s39, s28, {12 if XBF16 else 13}")
            k("s_add_u32 s43, s43, s39")
            k("v_lshlrev_b32 v2, 4, v1")
            k("v_mov_b32 v4, 0")
            if fused and FUSE_GG == 2:
                k("s_mov_b32 s41, 0")
                k(f"L_{tag}_ffp:")
                k("v_readfirstlane_b32 s61, v3")
                k("s_add_u32 s41, s41, 1")
                k("s_cmp_ge_u32 s41, 0x20000")
                k(f"s_cbranch_scc1 L_{tag}_ffd")
                k("s_cmp_lg_u32 s61, 0")
                k(f"s_cbranch_scc1 L_{tag}_ffd")
                k("buffer_load_dword v3, v4, s[56:59], s60 offen sc0 sc1")
                k("s_waitcnt vmcnt(0)")
                k(f"s_branch L_{tag}_ffp")
                k(f"L_{tag}_ffd:")
            if not XSENT:
                k("s_lshl_b32 s39, s42, 6")
                k("s_mov_b32 s41, 0")
                k("v_readfirstlane_b32 s61, v3")
                k("s_cmp_eq_u32 s61, 0")
                k(f"s_cbranch_scc0 L_{tag}_xpolld")
                k(f"L_{tag}_xpoll:")
                k("buffer_load_dword v3, v4, s[56:59], s39 offen offset:4 sc0 sc1")
                k("s_waitcnt vmcnt(0)")
                k("v_readfirstlane_b32 s61, v3")
                k("s_add_u32 s41, s41, 1")
                k("s_cmp_ge_u32 s41, 0x40000")
                k(f"s_cbranch_scc1 L_{tag}_xpolld")
                k("s_cmp_eq_u32 s61, 0")
                k(f"s_cbranch_scc1 L_{tag}_xpoll")
                k(f"L_{tag}_xpolld:")
                k("s_cmp_eq_u32 s61, s54")
                k(f"s_cselect_b32 s61, {0 if FORCE_FAR else 1}, 0")
            def sends(flags, lab):
                k("s_cmp_eq_u32 s62, 0")
                k(f"s_cbranch_scc1 L_{tag}_k0{lab}")
                for half, l2 in ((0, None), (32, f"L_{tag}_k0{lab}:")):
                    if l2: k(l2)
                    if XBF16:
                        for i in range(16): k(f"{CVT} v{Y+32+i}, v{ACC+half+2*i}, v{ACC+half+2*i+1}")
                        for i in range(4):
                            k(f"s_add_u32 s39, s43, {1024*i}")
                            k(f"buffer_store_dwordx4 {vr(Y+32+4*i,4)}, v2, s[44:47], s39 offen {flags}")
                    else:
                        for i in range(8):
                            k(f"s_add_u32 s39, s43, {1024*i}")
                            k(f"buffer_store_dwordx4 {vr(ACC+half+4*i,4)}, v2, s[44:47], s39 offen {flags}")
                    if half == 0: k(f"s_branch L_{tag}_k1{lab}")
                k(f"L_{tag}_k1{lab}:")
            def handoff(stf, ldf, lab):
                sends(stf, lab)
                k("s_waitcnt vmcnt(0)")
                k("s_lshl_b32 s39, s42, 6")
                k("s_lshl_b32 s41, s28, 2")
                k("s_add_u32 s39, s39, s41")
                k("v_mov_b32 v3, 1")
                k("s_mov_b64 exec, 1")
                k(f"buffer_store_dword v3, v4, s[56:59], s39 offen offset:16 {stf}")
                k("s_lshl_b32 s39, s2, 6")
                k("s_add_u32 s39, s39, s41")
                k("s_mov_b32 s41, 0")
                k(f"L_{tag}_poll{lab}:")
                k(f"buffer_load_dword v3, v4, s[56:59], s39 offen offset:16 {ldf}")
                k("s_waitcnt vmcnt(0)")
                k("v_readfirstlane_b32 s43, v3")
                k("s_add_u32 s41, s41, 1")
                k("s_cmp_ge_u32 s41, 0x40000")
                k(f"s_cbranch_scc1 L_{tag}_polld{lab}")
                k("s_cmp_eq_u32 s43, 1")
                k(f"s_cbranch_scc0 L_{tag}_poll{lab}")
                k(f"L_{tag}_polld{lab}:")
                k("s_mov_b64 exec, -1")
                k(f"s_lshl_b32 s43, s2, {14 if XBF16 else 15}")
                k(f"s_lshl_b32 s39, s28, {12 if XBF16 else 13}")
                k("s_add_u32 s43, s43, s39")
                for i in range(4 if XBF16 else 8):
                    k(f"s_add_u32 s39, s43, {1024*i}")
                    k(f"buffer_load_dwordx4 {vr(Y+(32 if XBF16 else 0)+4*i,4)}, v2, s[44:47], s39 offen {ldf}")
            if XSENT:
                assert XBF16
                sends('sc0 sc1', 's')
                k("s_lshl_b32 s43, s2, 14")
                k("s_lshl_b32 s39, s28, 12")
                k("s_add_u32 s43, s43, s39")
                k("s_mov_b32 s41, 0")
                if XPRE: k("s_waitcnt vmcnt(0)")
                k(f"L_{tag}_spoll:")
                for i in range(4):
                    k(f"s_add_u32 s39, s43, {1024*i}")
                    k(f"buffer_load_dwordx4 {vr(Y+32+4*i,4)}, v2, s[44:47], s39 offen sc0 sc1")
                k("s_add_u32 s41, s41, 1")
                k("s_waitcnt vmcnt(0)")
                k(f"v_max3_u32 v3, v{Y+32}, v{Y+33}, v{Y+34}")
                for i in range(3, 15, 2): k(f"v_max3_u32 v3, v3, v{Y+32+i}, v{Y+32+i+1}")
                k(f"v_max_u32 v3, v3, v{Y+47}")
                k("v_cmp_eq_u32 vcc, -1, v3")
                k("s_nop 4")
                k("s_cmp_ge_u32 s41, 0x20000")
                k(f"s_cbranch_scc1 L_{tag}_spolld")
                k(f"s_cbranch_vccnz L_{tag}_spoll")
                k(f"L_{tag}_spolld:")
            else:
                k("s_cmp_eq_u32 s61, 1")
                k(f"s_cbranch_scc0 L_{tag}_far")
                handoff('', 'sc1', 'n')
                k(f"s_branch L_{tag}_xdone")
                k(f"L_{tag}_far:")
                handoff('sc0 sc1', 'sc0 sc1', 'f')
                k(f"L_{tag}_xdone:")
            k("s_cmp_eq_u32 s62, 0")
            k(f"s_cbranch_scc1 L_{tag}_kept")
            for i in range(32): k(f"v_mov_b32 v{ACC+i}, v{ACC+32+i}")
            k(f"v_mov_b32 v{BIAS}, v{BIAS+2}"); k(f"v_mov_b32 v{BIAS+1}, v{BIAS+3}")
            k(f"L_{tag}_kept:")
            mark(k, 4)
            k(f"v_lshlrev_b32 v{BIAS}, 16, v{BIAS}"); k(f"v_lshlrev_b32 v{BIAS+1}, 16, v{BIAS+1}")
            if PERTURB:
                k(f"v_add_f32 v{BIAS}, {f32(PERTURB)}, v{BIAS}"); k(f"v_add_f32 v{BIAS+1}, {f32(PERTURB)}, v{BIAS+1}")
            k("s_lshl_b32 s39, s62, 16")
            k("s_add_u32 s38, s38, s39")
            set_ovs()
            for tnl in range(2):
                for tp in range(2):
                    i0 = 4*tnl + 2*tp
                    if XSENT: pass
                    elif XBF16: k(f"s_waitcnt vmcnt({3 - i0//2})")
                    else:     k(f"s_waitcnt vmcnt({6 - i0 if i0 < 6 else 0})")
                    if i0 == 0: mark(k, 5)
                    P = T + 4*tp + 24*tnl
                    for q in range(4):
                        td = 2*tp + q//2
                        a = ACC + 4*(4*tnl+td) + 2*(q % 2); y = Y + 4*(4*tnl+td) + 2*(q % 2)
                        u, w = T+8+4*q, T+10+4*q
                        if XBF16:
                            pk = Y + 32 + (4*(4*tnl+td) + 2*(q % 2))//2
                            k(f"v_lshlrev_b32 v{y}, 16, v{pk}")
                            k(f"v_and_b32 v{y+1}, s40, v{pk}")
                        k(f"v_pk_add_f32 {vr(a,2)}, {vr(a,2)}, {vr(y,2)}")
                        if EMU_Y:
                            k(f"{CVT} v{w}, v{a}, v{a+1}")
                            k(f"v_lshlrev_b32 v{u}, 16, v{w}")
                            k(f"v_and_b32 v{u+1}, s40, v{w}")
                            k(f"v_add_f32 v{u}, v{u}, v{BIAS+tnl}")
                            k(f"v_add_f32 v{u+1}, v{u+1}, v{BIAS+tnl}")
                        else:
                            k(f"v_add_f32 v{u}, v{a}, v{BIAS+tnl}")
                            k(f"v_add_f32 v{u+1}, v{a+1}, v{BIAS+tnl}")
                        k(f"{CVT} v{P+q}, v{u}, v{u+1}")
                    pack_swap(P)
                    for q in range(4):
                        u, w = T+8+4*q, T+10+4*q
                        hp = HL+8*tnl+4*tp+q
                        k(f"v_lshlrev_b32 v{u}, 16, v{P+q}")
                        k(f"v_and_b32 v{u+1}, s40, v{P+q}")
                        k(f"v_lshlrev_b32 v{w}, 16, v{hp}")
                        k(f"v_and_b32 v{w+1}, s40, v{hp}")
                        k(f"v_pk_add_f32 {vr(u,2)}, {vr(u,2)}, {vr(w,2)}")
                        k(f"{CVT} v{P+q}, v{u}, v{u+1}")
                store_lines(T+24*tnl, T+24*tnl+4, T+32, tnl*16*2048, 48)
    stamp_end(k, tag)
    k(f"s_branch {'L_gbar' if (fused and g1) else ENDL}")
    i_prod = len(k.l)
    k(f"L_{tag}_prod:")
    if PPRIO: k(f"s_setprio {PPRIO}")
    k("s_sub_u32 s33, s28, 4")
    k("v_lshrrev_b32 v2, 4, v1")
    k("s_and_b32 s34, s33, 1")
    k("s_lshl_b32 s34, s34, 2")
    k("v_add_u32 v3, s34, v2")
    k("v_lshlrev_b32 v3, 1, v3")
    k("v_and_b32 v4, 15, v1")
    k("v_xor_b32 v3, v3, v4")
    k("v_lshlrev_b32 v3, 4, v3")
    k("v_lshl_add_u32 v8, v2, 11, v3")
    k(f"v_mul_u32_u24 v2, {BSTR}, v2")
    k("v_add_u32 v9, v2, v3")
    k("s_lshl_b32 s34, s33, 13")
    k("s_add_u32 s40, s32, s34")
    k(f"s_mul_i32 s34, s33, {4*BSTR}")
    k("s_add_u32 s41, s31, s34")
    k("s_lshl_b32 s42, s33, 10")
    k("s_mov_b32 s43, 0")
    k("s_add_u32 s46, s52, s53")
    k("s_mov_b32 s47, 0")
    if fused and (not g1) and FUSE_GG == 2: srd(k, 36, 26, 288*128, FG_OFF)
    if mega and g1:
        srd(k, 36, 26, 256*128, FH_OFF)
        k("v_and_b32 v11, 31, v1")
        k("v_lshlrev_b32 v11, 7, v11")
        if not HTAG:
            for i in range(NB23): k("s_barrier")
    DF = fused and (not g1) and FUSE_GG == 2
    DH = mega and g1
    DFT = 1
    nissue = [0]
    def calc_stage(t, dst, tmp):
        if (not g1) and MAP2 == 2:
            k(f"s_add_u32 s{dst}, s52, s{t}")
            k(f"s_and_b32 s{dst}, s{dst}, 3")
            k(f"s_cmp_lt_u32 s{t}, 2")
            k(f"s_cselect_b32 s{dst}, 1, s{dst}")
            k(f"s_and_b32 s{tmp}, s{t}, 0xfffffffe")
            k(f"s_cmp_eq_u32 s{tmp}, 24")
            k(f"s_cselect_b32 s{tmp}, {NIT-21}, {NIT+3}")
            k(f"s_cmp_eq_u32 s{dst}, 0")
            k(f"s_cselect_b32 s{dst}, s{tmp}, {NIT-1}")
            k(f"s_add_u32 s{dst}, s{dst}, s{t}")
        else:
            k(f"s_add_u32 s{dst}, s46, s{t}")
            k(f"s_and_b32 s{dst}, s{dst}, 3")
            k(f"s_cmp_eq_u32 s{dst}, 0")
            k(f"s_cselect_b32 s{dst}, {3+NIT}, {NIT-1}")
            k(f"s_add_u32 s{dst}, s{dst}, s{t}")
        k(f"s_add_u32 s{dst}, s{dst}, s55")
        k(f"s_cmp_ge_u32 s{dst}, {2*NIT}")
        k(f"s_cselect_b32 s{tmp}, {2*NIT}, {NIT}")
        k(f"s_cmp_ge_u32 s{dst}, {NIT}")
        k(f"s_cselect_b32 s{tmp}, s{tmp}, 0")
        k(f"s_sub_u32 s{dst}, s{dst}, s{tmp}")
        if (not g1) and MAP2 == 2:
            k(f"s_cmp_ge_u32 s{dst}, {NIT}")
            k(f"s_cselect_b32 s{tmp}, {NIT}, 0")
            k(f"s_sub_u32 s{dst}, s{dst}, s{tmp}")
        if not KPERM: k(f"s_mov_b32 s{dst}, s{t}")
        if KWRAP: k(f"s_and_b32 s{dst}, s{dst}, {KWRAP-1}")
        k(f"s_add_u32 s{dst}, s{dst}, s63")
    def flag_off(stage, dst):
        if g1:
            k(f"s_bfe_u32 s{dst}, s{stage}, 0x30001")
            k(f"s_lshl_b32 s{dst}, s{dst}, 12")
            return
        k(f"s_lshr_b32 s{dst}, s{stage}, 1")
        k(f"s_lshl_b32 s{dst}, s{dst}, 7")
        k(f"s_add_u32 s{dst}, s{dst}, s57")
    def issue(part='AB', advance=True):
        n = nissue[0]; nissue[0] += 1
        if DF and not (EARLY2 and n < 4):
            if n == 0:
                k("s_lshl_b32 s57, s30, 12")
                k("v_mov_b32 v11, 0")
                calc_stage(47, 56, 59); flag_off(56, 54)
                k("buffer_load_dword v10, v11, s[36:39], s54 offen sc0 sc1")
                k("s_waitcnt vmcnt(0)")
            elif n == 1 and not EARLY2:
                k("s_waitcnt vmcnt(8)")
            k("v_readfirstlane_b32 s56, v10")
            k("s_cmp_lg_u32 s56, 0")
            k(f"s_cbranch_scc1 L_{tag}_fok{n}")
            k("s_mov_b32 s61, 0")
            k(f"L_{tag}_fpoll{n}:")
            k("s_sleep 4")
            k("buffer_load_dword v10, v11, s[36:39], s54 offen sc0 sc1")
            k("s_waitcnt vmcnt(0)")
            k("v_readfirstlane_b32 s56, v10")
            k("s_add_u32 s61, s61, 1")
            k("s_cmp_ge_u32 s61, 0x20000")
            k(f"s_cbranch_scc1 L_{tag}_fok{n}")
            k("s_cmp_eq_u32 s56, 0")
            k(f"s_cbranch_scc1 L_{tag}_fpoll{n}")
            k(f"L_{tag}_fok{n}:")
            k("s_add_u32 s61, s47, 1")
            calc_stage(61, 56, 59); flag_off(56, 54)
            k("buffer_load_dword v10, v11, s[36:39], s54 offen sc0 sc1")
        if DH and n >= (3 if HTAG else 4):
            k("s_cmp_eq_u32 s33, 0")
            k(f"s_cbranch_scc0 L_{tag}_nh{n}")
            k("s_add_u32 s61, s47, 1")
            calc_stage(61, 56, 59); flag_off(56, 54)
            k("buffer_load_dword v10, v11, s[36:39], s54 offen sc0 sc1")
            k(f"L_{tag}_nh{n}:")
        calc_stage(47, 58, 59)
        k(f"s_mul_i32 s59, s58, {64*BSTR}")
        k(f"s_lshl_b32 s58, s58, 17")
        k("s_add_u32 s58, s58, s40")
        k("s_add_u32 s59, s59, s41")
        k("s_add_u32 s44, s43, s42")
        for m in range(4):
            if 'A' in part:
                k(f"s_add_u32 m0, s44, {4096*m}")
                k(f"s_add_u32 s45, s58, {m*16*2048}")
                k(f"buffer_load_dwordx4 v8, s[12:15], s45 offen {'sc1 ' if (DF or DH) else ''}lds")
            if 'B' in part:
                k(f"s_add_u32 m0, s44, {ASZ+4096*m}")
                k(f"s_add_u32 s45, s59, {m*16*BSTR}")
                k(f"buffer_load_dwordx4 v9, s[8:11], s45 offen {NT_B1 if g1 else NT_B2} lds")
        if not advance: return
        k("s_add_u32 s47, s47, 1")
        k(f"s_add_u32 s43, s43, {STG}")
        k(f"s_cmp_eq_u32 s43, {STG*NS}")
        k("s_cselect_b32 s43, 0, s43")
    if fused and not g1 and FUSE_GG == 1:
        k("s_cmp_eq_u32 s33, 0")
        k("s_cbranch_scc0 L_gbar_nopoll")
        srd(k, 36, 26, 1024, BAR_OFF)
        k("v_and_b32 v2, 7, v1")
        k("v_lshlrev_b32 v2, 7, v2")
        k("s_mov_b32 s34, 0")
        k("L_gbar_poll:")
        if PSLEEP: k(f"s_sleep {PSLEEP}")
        k(f"buffer_load_dword v3, v2, s[36:39], 0 offen {POLLF}")
        k("s_waitcnt vmcnt(0)")
        k("v_cmp_gt_u32 vcc, 32, v3")
        k("s_add_u32 s34, s34, 1")
        k("s_cmp_ge_u32 s34, 0x20000")
        k("s_cbranch_scc1 L_gbar_nopoll")
        k("s_cbranch_vccnz L_gbar_poll")
        k("L_gbar_nopoll:")
        k("s_barrier")
    if BAR2:
        per = 8
        mark(k, 1)
        issue(); mark(k, 2); issue()
        k(f"s_waitcnt vmcnt({per})")
        mark(k, 3)
        k("s_barrier")
        issue(); issue()
        mark(k, 4)
        k("s_mov_b32 s60, 0")
        k(f"L_{tag}_ploop:")
        k(f"s_waitcnt vmcnt({per})")
        k("s_barrier")
        issue(); issue()
        k("s_add_u32 s60, s60, 2")
        k(f"s_cmp_lt_u32 s60, {NIT-4}")
        k(f"s_cbranch_scc1 L_{tag}_ploop")
        k(f"s_waitcnt vmcnt({per})")
        k("s_barrier")
        k("s_waitcnt vmcnt(0)")
        k("s_barrier")
    else:
        ncheck = [0]
        def hpoll(lab):
            k("s_mov_b32 s61, 0")
            k(f"L_{tag}_hp{lab}:")
            k("v_cmp_eq_u32 vcc, 0, v10")
            k("s_add_u32 s61, s61, 1")
            k("s_cmp_ge_u32 s61, 0x20000")
            k(f"s_cbranch_scc1 L_{tag}_hd{lab}")
            k("s_nop 2")
            k(f"s_cbranch_vccz L_{tag}_hd{lab}")
            k("s_sleep 2")
            k("buffer_load_dword v10, v11, s[36:39], s54 offen sc0 sc1")
            k("s_waitcnt vmcnt(0)")
            k(f"s_branch L_{tag}_hp{lab}")
            k(f"L_{tag}_hd{lab}:")
        def hcheck():
            i = ncheck[0]; ncheck[0] += 1
            k("s_cmp_eq_u32 s33, 0")
            k(f"s_cbranch_scc0 L_{tag}_hc{i}")
            hpoll(f"c{i}")
            k(f"L_{tag}_hc{i}:")
        if DF and EARLY2:
            def fwait(reg, off, lab):
                k(f"v_readfirstlane_b32 s56, v{reg}")
                k("s_cmp_lg_u32 s56, 0")
                k(f"s_cbranch_scc1 L_{tag}_e{lab}")
                k("s_mov_b32 s61, 0")
                k(f"L_{tag}_ep{lab}:")
                k("s_sleep 4")
                k(f"buffer_load_dword v{reg}, v11, s[36:39], s{off} offen sc0 sc1")
                k("s_waitcnt vmcnt(0)")
                k(f"v_readfirstlane_b32 s56, v{reg}")
                k("s_add_u32 s61, s61, 1")
                k("s_cmp_ge_u32 s61, 0x20000")
                k(f"s_cbranch_scc1 L_{tag}_e{lab}")
                k("s_cmp_eq_u32 s56, 0")
                k(f"s_cbranch_scc1 L_{tag}_ep{lab}")
                k(f"L_{tag}_e{lab}:")
            k("s_lshl_b32 s57, s30, 12")
            k("v_mov_b32 v11, 0")
            k("s_mov_b32 s61, 0")
            calc_stage(61, 56, 59); flag_off(56, 54)
            k("s_mov_b32 s61, 1")
            calc_stage(61, 56, 59); flag_off(56, 64 if False else 35)
            k("buffer_load_dword v10, v11, s[36:39], s54 offen sc0 sc1")
            k("buffer_load_dword v12, v11, s[36:39], s35 offen sc0 sc1")
            issue('B'); issue('B')
            k("s_mov_b32 s47, 0"); k("s_mov_b32 s43, 0")
            k("s_waitcnt vmcnt(10)")
            k("s_barrier")
            k("s_waitcnt vmcnt(8)")
            if MAP2 == 2:
                k("s_cmp_eq_u32 s3, -1")
                k(f"s_cbranch_scc1 L_{tag}_notown")
                k("v_mov_b32 v10, 1")
                k("v_mov_b32 v12, 1")
                k(f"L_{tag}_notown:")
            fwait(10, 54, 'a')
            k("s_mov_b32 s61, 2")
            calc_stage(61, 56, 59); flag_off(56, 54)
            k("buffer_load_dword v10, v11, s[36:39], s54 offen sc0 sc1")
            mark(k, 1)
            issue('A')
            fwait(12, 35, 'b')
            issue('A')
            k("s_waitcnt vmcnt(4)")
            mark(k, 3)
            k("s_barrier")
            issue()
            nmain = NIT - 3
            k("s_mov_b32 s60, 0")
            k(f"L_{tag}_ploop:")
            k("s_waitcnt vmcnt(8)")
            k("s_barrier")
            issue()
            k("s_add_u32 s60, s60, 1")
            k(f"s_cmp_lt_u32 s60, {nmain}")
            k(f"s_cbranch_scc1 L_{tag}_ploop")
            for n_ in range(nmain, NIT-1):
                k(f"s_waitcnt vmcnt({(NIT-1-(n_+1))*8})")
                k("s_barrier")
        elif DH and HTAG:
            k(f"s_mov_b32 s43, {2*STG}")
            for i in range(HB_AFTER): k("s_barrier")
            issue('B'); issue('B')
            for i in range(NB23 - HB_AFTER): k("s_barrier")
            mark(k, 1)
            AO = (34, 35, 57)
            for st in range(3):
                k(f"s_mov_b32 s61, {st}")
                calc_stage(61, 58, 59)
                k(f"s_lshl_b32 s{AO[st]}, s58, 17")
                k(f"s_add_u32 s{AO[st]}, s{AO[st]}, s40")
            k("s_cmp_eq_u32 s33, 0")
            k(f"s_cbranch_scc0 L_{tag}_nf3")
            k("s_mov_b32 s61, 3")
            calc_stage(61, 56, 59); flag_off(56, 54)
            k("buffer_load_dword v10, v11, s[36:39], s54 offen sc0 sc1")
            k(f"L_{tag}_nf3:")
            k("s_mov_b32 s61, 0")
            k(f"L_{tag}_tpoll:")
            for st in range(3):
                for m in range(4):
                    k(f"s_add_u32 s45, s{AO[st]}, {m*16*2048}")
                    k(f"buffer_load_dwordx4 {vr(16+16*st+4*m,4)}, v8, s[12:15], s45 offen sc0 sc1")
            k("s_add_u32 s61, s61, 1")
            k("s_waitcnt vmcnt(0)")
            k("v_max3_u32 v12, v16, v17, v18")
            for i in range(19, 63, 2): k(f"v_max3_u32 v12, v12, v{i}, v{i+1}")
            k("v_max_u32 v12, v12, v63")
            k("v_cmp_eq_u32 vcc, -1, v12")
            k("s_nop 4")
            k("s_cmp_ge_u32 s61, 0x20000")
            k(f"s_cbranch_scc1 L_{tag}_tpolld")
            k(f"s_cbranch_vccnz L_{tag}_tpoll")
            k(f"L_{tag}_tpolld:")
            mark(k, 2)
            k("v_lshl_add_u32 v12, v1, 4, s42")
            for st in range(3):
                bo = ((st + 2) % 4) * STG
                if bo + 3*4096 > 65535:
                    k(f"v_add_u32 v13, {bo}, v12"); reg, bo = 13, 0
                else: reg = 12
                for m in range(4):
                    k(f"ds_write_b128 v{reg}, {vr(16+16*st+4*m,4)} offset:{bo+4096*m}")
            k("s_mov_b32 s47, 2"); k("s_mov_b32 s43, 0")
            issue('B')
            k("s_waitcnt lgkmcnt(0)")
            mark(k, 3)
            k("s_barrier")
            k("s_waitcnt vmcnt(4)")
            hcheck()
            k("s_barrier")
            issue()
            nmain = NIT - 3
            k("s_mov_b32 s60, 1")
            k(f"L_{tag}_ploop:")
            k("s_waitcnt vmcnt(8)")
            hcheck()
            k("s_barrier")
            issue()
            k("s_add_u32 s60, s60, 1")
            k(f"s_cmp_lt_u32 s60, {nmain}")
            k(f"s_cbranch_scc1 L_{tag}_ploop")
            for n_ in range(nmain, NIT-1):
                k(f"s_waitcnt vmcnt({(NIT-1-(n_+1))*8})")
                k("s_barrier")
        elif DH:
            issue('B'); issue('B')
            k("s_mov_b32 s47, 0"); k("s_mov_b32 s43, 0")
            k("s_cmp_eq_u32 s33, 0")
            k(f"s_cbranch_scc0 L_{tag}_hpre")
            k("s_mov_b32 s61, 0")
            calc_stage(61, 56, 59); flag_off(56, 54)
            k("s_mov_b32 s61, 1")
            calc_stage(61, 56, 59); flag_off(56, 57)
            k("v_mov_b32 v12, s54")
            k("v_mov_b32 v13, s57")
            k("v_cmp_gt_u32 vcc, 32, v1")
            k("v_cndmask_b32 v12, v13, v12, vcc")
            k("v_add_u32 v12, v12, v11")
            k("s_mov_b32 s61, 0")
            if HSLEEP0: k(f"s_sleep {HSLEEP0}")
            k(f"L_{tag}_hsp:")
            if HSLEEP: k(f"s_sleep {HSLEEP}")
            k("buffer_load_dword v10, v12, s[36:39], 0 offen sc0 sc1")
            k("s_waitcnt vmcnt(0)")
            k("v_cmp_eq_u32 vcc, 0, v10")
            k("s_add_u32 s61, s61, 1")
            k("s_cmp_ge_u32 s61, 0x20000")
            k(f"s_cbranch_scc1 L_{tag}_hsd")
            k("s_nop 2")
            k(f"s_cbranch_vccnz L_{tag}_hsp")
            k(f"L_{tag}_hsd:")
            k("s_mov_b32 s61, 2")
            calc_stage(61, 56, 59); flag_off(56, 54)
            k("buffer_load_dword v10, v11, s[36:39], s54 offen sc0 sc1")
            k(f"L_{tag}_hpre:")
            k("s_barrier")
            issue('A'); issue('A')
            k("s_waitcnt vmcnt(4)")
            mark(k, 3)
            hcheck()
            k("s_barrier")
            issue()
            NSe = 3; nmain = NIT - NSe
            k("s_mov_b32 s60, 0")
            k(f"L_{tag}_ploop:")
            k("s_waitcnt vmcnt(8)")
            hcheck()
            k("s_barrier")
            issue()
            k("s_add_u32 s60, s60, 1")
            k(f"s_cmp_lt_u32 s60, {nmain}")
            k(f"s_cbranch_scc1 L_{tag}_ploop")
            for n_ in range(nmain, NIT-1):
                k(f"s_waitcnt vmcnt({(NIT-1-(n_+1))*8})")
                k("s_barrier")
        else:
            producer_loop(k, tag, 8, issue, 3 if STATIC else NS, NIT)
    if g1 and CODEPF2:
        k("s_cmp_eq_u32 s33, 0")
        k(f"s_cbranch_scc0 L_{tag}_nonp")
        next_code_pf(k, 'g1', 'L_gbar' if fused else 'g2_kernel', 'L_text_end', 28, 120, 56, 1)
        k(f"L_{tag}_nonp:")
    if g1:
        k("s_and_b32 s34, s33, 1")
        k("s_lshr_b32 s36, s33, 1")
        k("v_and_b32 v2, 15, v1")
        k("v_lshlrev_b32 v2, 1, v2")
        k("s_lshl_b32 s37, s36, 7")
        k("s_add_u32 s37, s37, s31")
        for t in range(2):
            k(f"buffer_load_ushort v{BIAS+t}, v2, s[20:23], s37 offen offset:{64+32*t}")
        k("v_and_b32 v2, 15, v1")
        k("v_lshlrev_b32 v2, 11, v2")
        k("v_lshrrev_b32 v3, 4, v1")
        k(f"v_lshl_add_u32 v{OV}, v3, 4, v2")
        k("s_lshl_b32 s38, s29, 7")
        k("s_lshl_b32 s39, s36, 6")
        k("s_add_u32 s38, s38, s39")
        k("s_add_u32 s38, s38, 32")
        k("s_lshl_b32 s38, s38, 11")
        k("s_add_u32 s38, s38, s32")
        k("s_lshl_b32 s39, s34, 7")
        k("s_add_u32 s38, s38, s39")
        k("s_lshl_b32 s39, s33, 13")
        k(f"s_add_u32 s39, s39, {(65536 if (fused and EARLY2) else 32768) if STATIC else (98304 if BAR2 else 65536)}")
        k("v_lshl_add_u32 v2, v1, 4, s39")
        k("s_setprio 0")
        k("s_barrier")
        for i in range(8): k(f"ds_read_b128 {vr(ACC+4*i,4)}, v2 offset:{1024*i}")
        k("s_waitcnt vmcnt(0) lgkmcnt(0)")
        if STAMP:
            for i in range(5): k(f"v_mov_b32 v{120+i}, v{4+i}")
            k("v_mov_b32 v125, v8")
            stamp_end(k, tag, tid=256, slot=256, sfx='pp')
            k("s_mov_b64 exec, -1")
            for i in range(4): k(f"v_mov_b32 v{4+i}, v{120+i}")
            k("v_mov_b32 v8, v124")
        k(f"s_branch L_{tag}_epi")
    if (not g1) and XSHARE:
        SHX, SHY = 0, 16384
        k("s_setprio 0")
        k("s_and_b32 s34, s33, 1")
        k("s_lshr_b32 s36, s33, 1")
        k("v_and_b32 v2, 15, v1")
        k("v_lshlrev_b32 v2, 1, v2")
        k("s_lshl_b32 s37, s36, 7")
        k("s_add_u32 s37, s37, s31")
        k("s_lshl_b32 s39, s62, 6")
        k("s_add_u32 s37, s37, s39")
        k(f"buffer_load_ushort v{BIAS}, v2, s[20:23], s37 offen offset:32")
        k("v_and_b32 v2, 15, v1")
        k("v_lshlrev_b32 v2, 11, v2")
        k("v_lshrrev_b32 v3, 4, v1")
        k(f"v_lshl_add_u32 v{OV}, v3, 4, v2")
        k("s_lshl_b32 s38, s29, 7")
        k("s_lshl_b32 s39, s36, 6")
        k("s_add_u32 s38, s38, s39")
        k("s_lshl_b32 s39, s62, 5")
        k("s_add_u32 s38, s38, s39")
        k("s_add_u32 s38, s38, 16")
        k("s_lshl_b32 s38, s38, 11")
        k("s_add_u32 s38, s38, s32")
        k("s_lshl_b32 s39, s34, 7")
        k("s_add_u32 s38, s38, s39")
        for tp in range(2):
            k(f"s_add_u32 s40, s38, {tp*64}")
            k(f"buffer_load_dwordx4 {vr(HL+4*tp,4)}, v{OV}, s[16:19], s40 offen")
        srd(k, 44, 26, 256*16384, 0x1E00000 if XB_SEP else VB_OFF)
        k("s_lshl_b32 s43, s2, 14")
        k("s_lshl_b32 s39, s33, 12")
        k("s_add_u32 s43, s43, s39")
        k("v_lshlrev_b32 v2, 4, v1")
        k("s_lshl_b32 s39, s33, 12")
        k("v_add_u32 v3, s39, v2")
        k("s_barrier")
        for i in range(4): k(f"ds_read_b128 {vr(ACC+4*i,4)}, v3 offset:{SHX+1024*i}")
        k("s_mov_b32 s41, 0")
        k(f"L_{tag}_spoll:")
        for i in range(4):
            k(f"s_add_u32 s39, s43, {1024*i}")
            k(f"buffer_load_dwordx4 {vr(Y+32+4*i,4)}, v2, s[44:47], s39 offen sc0 sc1")
        k("s_add_u32 s41, s41, 1")
        k("s_waitcnt vmcnt(0)")
        k(f"v_max3_u32 v5, v{Y+32}, v{Y+33}, v{Y+34}")
        for i in range(3, 15, 2): k(f"v_max3_u32 v5, v5, v{Y+32+i}, v{Y+32+i+1}")
        k(f"v_max_u32 v5, v5, v{Y+47}")
        k("v_cmp_eq_u32 vcc, -1, v5")
        k("s_nop 4")
        k("s_cmp_ge_u32 s41, 0x20000")
        k(f"s_cbranch_scc1 L_{tag}_spolld")
        k(f"s_cbranch_vccnz L_{tag}_spoll")
        k(f"L_{tag}_spolld:")
        k("s_lshl_b32 s39, s33, 11")
        k("v_add_u32 v3, s39, v2")
        k(f"ds_write_b128 v3, {vr(Y+32,4)} offset:{SHY}")
        k(f"ds_write_b128 v3, {vr(Y+36,4)} offset:{SHY+1024}")
        k("s_waitcnt lgkmcnt(0)")
        k("s_barrier")
        k(f"s_branch L_{tag}_epi")
    stamp_end(k, tag, tid=256, slot=256, sfx='p')
    if PRODFIRST and not fused:
        k(f"s_branch {ENDL}")
        k.l = k.l[:i_cons] + k.l[i_prod:] + k.l[i_cons:i_prod]
    if fused and g1:
        return k, NV, STG*NS
    k(f"{ENDL}:")
    k("s_endpgm")
    return k, NV, STG*NS

def gelu_pair(k, src, u, w, bias, dst):
    if EMU_U:
        k(f"{CVT} v{w}, v{src}, v{src+1}")
        k(f"v_lshlrev_b32 v{u}, 16, v{w}")
        k(f"v_and_b32 v{u+1}, s40, v{w}")
        k(f"v_add_f32 v{u}, v{u}, v{bias}")
        k(f"v_add_f32 v{u+1}, v{u+1}, v{bias}")
        k(f"{CVT} v{w}, v{u}, v{u+1}")
        k(f"v_lshlrev_b32 v{u}, 16, v{w}")
        k(f"v_and_b32 v{u+1}, s40, v{w}")
    else:
        k(f"v_add_f32 v{u}, v{src}, v{bias}")
        k(f"v_add_f32 v{u+1}, v{src+1}, v{bias}")
    k(f"v_pk_mul_f32 {vr(w,2)}, {vr(u,2)}, {vr(u,2)}")
    k(f"v_pk_fma_f32 {vr(w,2)}, {vr(w,2)}, s[42:43], {vr(4,2)} op_sel_hi:[1,0,1]")
    k(f"v_pk_mul_f32 {vr(w,2)}, {vr(w,2)}, {vr(u,2)}")
    k(f"v_exp_f32 v{w}, v{w}")
    k(f"v_exp_f32 v{w+1}, v{w+1}")
    k(f"s_nop 0")
    k(f"v_pk_add_f32 {vr(w,2)}, {vr(w,2)}, {vr(6,2)}")
    k(f"v_rcp_f32 v{w}, v{w}")
    k(f"v_rcp_f32 v{w+1}, v{w+1}")
    k(f"s_nop 0")
    k(f"v_pk_mul_f32 {vr(w,2)}, {vr(w,2)}, {vr(u,2)}")
    k(f"{CVT} v{dst}, v{w}, v{w+1}")

RPAT = [2, 1]
FUSE_GG = 2
FUSE23 = 1
FUSE_ALL = 1
HTAG = 0
HB_AFTER = 5
HSLEEP0 = 0
HSLEEP = 0
EARLY2 = 1
FILL1 = 1
FILLPOS = 2
W2WAVES = 4
W2DEPTH = 0
XPRE = 1
PRODFIRST = 0
FIRSTPF = 0
CODEPF2 = 1
WJOB = 2
LN_FUSE = 1
WEARLY = 1
W1IDLE = 0
EMU_LN = 0
EMU_L2 = 0
NT_B1 = ''
NT_B2 = ''
NT_X = ''
NT_W = ''
KHALF = 1
XSENT = 1
XSHARE = 0
XWAIT = 1
XBF16 = 1
EMU_Y = 0
PERTURB = 0
PSLEEP = 4
POLLF = 'sc0 sc1'
STATIC = 1
LOOPSTAMP = 0
BAR2 = 0
FAKE32 = 0
MAP2 = 2
XB_SEP = 1
FORCE_FAR = 0
PPRIO = 3
PFD = 0
KPERM = 1
FAKE16 = 0
NS1 = 3
NS2 = 3
KWRAP = 0
W2PF = 7
EMU_U = 0
RPG1 = 3
RPG2 = 4
def gen_mega():
    k0, nv0, l0 = gen_p2(True, True)
    k1, nv1, l1 = gemm_kernel('g1', True, True)
    k2, nv2, l2 = gemm_kernel('g2', True, True)
    k0.l += k1.l + k2.l
    return k0, 256, max(l0, l1, l2)
def gen_gg():
    k1, nv1, l1 = gemm_kernel('g1', True)
    k2, nv2, l2 = gemm_kernel('g2', True)
    k1.l += k2.l
    return k1, max(nv1, nv2), max(l1, l2)
def gen_g1(): return gemm_kernel('g1')
def gen_g2(): return gemm_kernel('g2')

KERNELS = [('p1_kernel', gen_p1, (256,1,1), (256,1,1)), ('p2_kernel', gen_p2, (256,1,1), (256,1,1)), ('p3_kernel', gen_p3, (256,1,1), (256,1,1)),
 ('g1_kernel', gen_g1, (256,1,1), (512,1,1)), ('g2_kernel', gen_g2, (256,1,1), (512,1,1))]

HEADER = """;
; Pipeline (S=2048 tokens, D=1024 channels, F=3584); all FFT stages are 32-point DFTs on bf16 MFMA with fp32 accumulation.
;   p1   : LayerNorm(x), two real rows packed as one complex row, 1024-point FFT along D; filter W transposed into column
;   mega : A  (waves 0-3) 2048-point FFT along S (even/odd halves, DC and Nyquist columns packed), multiply by W, inverse FFT
;          partial sums use blocks pre-filled with a marker (re-read until no marker is left), B->G1 and G1->G2 use done
; Workgroup -> tile maps assume ids congruent mod 8 share an L2 for speed only; correctness does not depend on placement.
"""

def build_all(kernels=None):
    ks = []
    if kernels is None:
        kernels = list(KERNELS[:3]) + [('gg_kernel', gen_gg, (256,1,1), (512,1,1))] if FUSE_GG else list(KERNELS)
        if FUSE23: kernels = [kernels[0], ('p23_kernel', gen_p23, (256,1,1), (256,1,1))] + list(kernels[3:])
        if FUSE_ALL: kernels = [kernels[0], ('mega_kernel', gen_mega, (256,1,1), (512,1,1))]
    for name, fn, grid, block in kernels:
        if W1PF and name in ('p2_kernel', 'p3_kernel'): block = (320, 1, 1)
        if FIRSTPF and name == 'p3_kernel': block = (320, 1, 1)
        k, nv, lds = fn()
        if ST_ALL:
            k.l = [ (x + ' ' + ST_ALL) if ('buffer_store' in x and 'sc1' not in x and 'sc0' not in x and ' nt' not in x) else x for x in k.l]
        if name.startswith('g'):
            if NO_DMA: k.l = [x for x in k.l if not ('offen lds' in x)]
            if NO_MFMA: k.l = [x for x in k.l if 'v_mfma' not in x]
            if NO_ADV: k.l = [x for x in k.l if not (x.strip().startswith('s_add_u32 s40, s40,') or x.strip().startswith('s_add_u32 s41, s41,'))]
            if NO_A: k.l = [x for x in k.l if not ('s[12:15]' in x and 'offen lds' in x)]
            if NO_B: k.l = [x for x in k.l if not ('s[8:11]' in x and 'offen lds' in x)]
            if NO_BAR: k.l = [x for x in k.l if 's_barrier' not in x]
            if NO_READ: k.l = [x for x in k.l if 'ds_read_b64_tr' not in x]
        ks.append((name, k, nv, lds, grid, block))
    hdr = open('sequential_preLN__spectral_gfnet__mixer_token_mlp__prompt.s.ref').read().split('; Override launch')[0]
    s = hdr + HEADER
    for name, k, nv, lds, grid, block in ks:
        s += f"; @launch kernel={name} grid=({grid[0]},{grid[1]},{grid[2]}) block=({block[0]},{block[1]},{block[2]}) lds={lds}\n"
    s += '.amdgcn_target "amdgcn-amd-amdhsa--gfx950"\n.text\n'
    for name, k, nv, lds, grid, block in ks: s += k.text()
    s += 'L_text_end:\n'
    s += '.section .rodata,"a"\n'
    for name, k, nv, lds, grid, block in ks: s += descriptor(name, nv)
    return s, ks

if __name__ == '__main__':
    s, ks = build_all()
    open(sys.argv[1] if len(sys.argv) > 1 else 'out.s', 'w').write(s)
    print('written', len(s), 'bytes')
```
